```python
import torch

def _softmax(x, axis=-1):
    return torch.softmax(x, dim=axis)

def _gelu(x):
    return torch.nn.functional.gelu(x, approximate='tanh')

def _silu(x):
    return torch.nn.functional.silu(x)

def _sigmoid(x):
    return torch.sigmoid(x)

def _layernorm(x, axis=-1, eps=1e-05):
    m = x.mean(dim=axis, keepdim=True)
    v = x.var(dim=axis, keepdim=True, unbiased=False)
    return (x - m) / torch.sqrt(v + eps)

def _scatter_add(tgt, idx, src, axis=0):
    return tgt.clone().index_add_(axis, idx, src)

def _segment_sum(src, seg, n):
    out = torch.zeros((n,) + src.shape[1:], dtype=src.dtype)
    return out.index_add_(0, seg, src)

def _pad(x, pw):
    flat = tuple((v for pair in reversed(pw) for v in pair))
    return torch.nn.functional.pad(x, flat)
kernel_name = 'interleave_layers__linear_attn_block__memory_aug_recurrent_mem_tr__prompt'

def setup_inputs():

    _w = lambda a: (lambda t: t.to(torch.bfloat16) if t.is_floating_point() else t)(torch.as_tensor(a))

    def _A_setup():
        B, S, D = (1, 2048, 640)
        return {'x': _w((lambda *s: torch.randn(*s, dtype=torch.bfloat16) * 0.05)(B, S, D)), 'wqkv': _w((lambda *s: torch.randn(*s, dtype=torch.bfloat16) * 0.05)(D, 3 * D)), 'wo': _w((lambda *s: torch.randn(*s, dtype=torch.bfloat16) * 0.05)(D, D))}
    _A_in = _A_setup()

    def _B_setup():
        B, S, Dm = (1, 2048, 640)
        H, Dh = (32, 192)
        M, seg = (8, 32)
        seg = min(seg, S)
        S = S // seg * seg
        return {'x': _w((lambda *s: torch.randn(*s, dtype=torch.bfloat16) * 0.05)(B, S, Dm)), 'mem0': _w((lambda *s: torch.randn(*s, dtype=torch.bfloat16) * 0.8)(B, M, Dm)), 'Wq': _w((lambda *s: torch.randn(*s, dtype=torch.bfloat16) * 1.6)(Dm, H, Dh) * Dm ** (-0.5)), 'Wk': _w((lambda *s: torch.randn(*s, dtype=torch.bfloat16) * 1.6)(Dm, H, Dh) * Dm ** (-0.5)), 'Wv': _w((lambda *s: torch.randn(*s, dtype=torch.bfloat16) * 0.8)(Dm, H, Dh) * Dm ** (-0.5)), 'Wo': _w((lambda *s: torch.randn(*s, dtype=torch.bfloat16) * 0.8)(H, Dh, Dm) * (H * Dh) ** (-0.5)), 'seg_len': seg}
    _B_in = _B_setup()
    return {'A_x': _A_in['x'], 'A_wqkv': _A_in['wqkv'], 'A_wo': _A_in['wo'], 'B_x': _B_in['x'], 'B_mem0': _B_in['mem0'], 'B_Wq': _B_in['Wq'], 'B_Wk': _B_in['Wk'], 'B_Wv': _B_in['Wv'], 'B_Wo': _B_in['Wo'], 'B_seg_len': _B_in['seg_len']}

def reference(A_x, A_wqkv, A_wo, B_x, B_mem0, B_Wq, B_Wk, B_Wv, B_Wo, B_seg_len):

    def _A_ref(x, wqkv, wo):
        B, S, D = x.shape
        H = 32
        Dh = D // H
        qkv = (lambda x, *d: x.permute(*d))((x @ wqkv).reshape(B, S, 3, H, Dh), 2, 0, 3, 1, 4)
        q, k, v = (qkv[0], qkv[1], qkv[2])
        phi = lambda t: torch.where(t > 0, t + 1, torch.exp(t)) + 1e-06
        pq, pk = (phi(q), phi(k))
        kv = torch.einsum('bhsd,bhse->bhde', pk, v)
        z = torch.einsum('bhsd->bhd', pk)
        num = torch.einsum('bhqd,bhde->bhqe', pq, kv)
        den = torch.einsum('bhqd,bhd->bhq', pq, z)[..., None] + 1e-06
        o = num / den
        return (lambda x, *d: x.permute(*d))(o, 0, 2, 1, 3).reshape(B, S, D) @ wo

    def _B_ref(x, mem0, Wq, Wk, Wv, Wo, seg_len):
        B, S, Dm = x.shape
        H, Dh = (Wq.shape[1], Wq.shape[2])
        M = mem0.shape[1]
        scale = Dh ** (-0.5)
        n_seg = S // seg_len
        L = M + seg_len
        idx = torch.arange(L)
        mask = (idx[:, None] < M) | (idx[:, None] >= idx[None, :])
        mem = mem0
        outs = []
        for s in range(n_seg):
            xs = x[:, s * seg_len:(s + 1) * seg_len, :].clone()
            h = torch.concatenate([mem, xs], axis=1)
            q = torch.einsum('btd,dhe->bhte', h, Wq)
            k = torch.einsum('btd,dhe->bhte', h, Wk)
            v = torch.einsum('btd,dhe->bhte', h, Wv)
            scores = torch.einsum('bhqe,bhke->bhqk', q, k) * scale
            scores = torch.where(mask[None, None], scores, -1000000000.0)
            p = _softmax(scores, axis=-1)
            o = torch.einsum('bhqk,bhke->bhqe', p, v)
            o = torch.einsum('bhte,hed->btd', o, Wo)
            mem = o[:, :M, :].clone()
            outs.append(o[:, M:, :])
        return torch.concatenate(outs, axis=1)
    x = A_x
    x = x + _A_ref(_layernorm(x, axis=-1), A_wqkv, A_wo)
    x = x + _B_ref(_layernorm(x, axis=-1), B_mem0, B_Wq, B_Wk, B_Wv, B_Wo, B_seg_len)
    x = x + _A_ref(_layernorm(x, axis=-1), A_wqkv, A_wo)
    x = x + _B_ref(_layernorm(x, axis=-1), B_mem0, B_Wq, B_Wk, B_Wv, B_Wo, B_seg_len)
    return x
```

```python
import re
import hazard
_OFF = re.compile(r"offset:(\d+)")
class K:
    def __init__(self, name, vgpr, sgpr, agpr=0):
        self.name = name + "_kernel"; self.L = []; self.vgpr = vgpr; self.sgpr = sgpr; self.agpr = agpr
        self.uid = 0
    def __call__(self, s):
        for line in s.split("\n"):
            line = line.strip()
            if not line: continue
            m = _OFF.search(line)
            if m and line.startswith("buffer_"): assert int(m.group(1)) <= 4095, line
            if m and line.startswith("ds_"): assert int(m.group(1)) <= 65535, line
            self.L.append("    " + line)
    def lab(self, l): self.L.append(f"{self.name}_{l}:")
    def ref(self, l): return f"{self.name}_{l}"
    def new(self, p="L"):
        self.uid += 1
        return f"{p}{self.uid}"
    def ptr(self, slot, s):
        self(f"s_load_dwordx2 s[{s}:{s+1}], s[0:1], {slot*8}")
    def srd(self, sd, sp, size, off=0):
        if off:
            self(f"s_add_u32 s{sd}, s{sp}, {off}")
            self(f"s_addc_u32 s{sd+1}, s{sp+1}, 0")
        else:
            self(f"s_mov_b32 s{sd}, s{sp}")
            self(f"s_mov_b32 s{sd+1}, s{sp+1}")
        self(f"s_mov_b32 s{sd+2}, {size}")
        self(f"s_mov_b32 s{sd+3}, 0x00020000")
    def text(self):
        acc = ((self.vgpr + 3) // 4) * 4
        nfv = acc + self.agpr if self.agpr else self.vgpr
        t = [".text", f".globl {self.name}", ".p2align 8", f".type {self.name},@function", f"{self.name}:"]
        t += hazard.fix(self.L)
        t += ["    s_endpgm", '.section .rodata,"a"', ".p2align 6", f".amdhsa_kernel {self.name}",
              f"  .amdhsa_next_free_vgpr {nfv}", f"  .amdhsa_next_free_sgpr {self.sgpr}",
              f"  .amdhsa_accum_offset {acc}", "  .amdhsa_group_segment_fixed_size 0",
              "  .amdhsa_kernarg_size 104", "  .amdhsa_user_sgpr_count 2",
              "  .amdhsa_user_sgpr_kernarg_segment_ptr 1", "  .amdhsa_system_sgpr_workgroup_id_x 1",
              ".end_amdhsa_kernel"]
        return "\n".join(t)

def vr(a, n=1):
    return f"v{a}" if n == 1 else f"v[{a}:{a+n-1}]"
def ar(a, n=1):
    return f"a{a}" if n == 1 else f"a[{a}:{a+n-1}]"
def sr(a, n=1):
    return f"s{a}" if n == 1 else f"s[{a}:{a+n-1}]"

def listing(launches, kernels, comment="generated by my own generator"):
    head = [f"; {comment}"]
    for name, nwg, block, lds in launches:
        head.append(f"; @launch kernel={name} grid=({nwg},1,1) block=({block},1,1) lds={lds}")
    head.append('.amdgcn_target "amdgcn-amd-amdhsa--gfx950"')
    return "\n".join(head) + "\n" + "\n".join(k.text() for k in kernels) + "\n"

def magic(d, maxn):
    for sh in range(0, 32):
        m = -(-(1 << sh) // d)
        if m * maxn >= (1 << 32): break
        if all(((n * m) >> sh) == n // d for n in range(0, maxn + 1)): return m, sh
    raise ValueError("no magic")
```

```python
import sys

NAME = "interleave_layers__linear_attn_block__memory_aug_recurrent_mem_tr__prompt"
S, D = 2048, 640
H, DH, HD = 32, 192, 6144
NSEG, SEG, MEM = 64, 32, 8

KA_AX, KA_WQKV, KA_WOA, KA_BX, KA_MEM0, KA_WQ, KA_WK, KA_WV, KA_WO, KA_SEG, KA_OUT, KA_DBG, KA_WS = range(13)

WS_XN    = 0x00000000
WS_X1    = 0x00400000
WS_QA    = 0x00800000
WS_KVT   = 0x00C00000
WS_OA    = 0x01200000
WS_KVZ   = 0x01600000
WS_PQKVA = 0x01800000
WS_PWOA  = 0x01C00000
WS_PQ    = 0x02000000
WS_PK    = 0x02780000
WS_PV    = 0x02F00000
WS_PO    = 0x03800000
WS_QB    = 0x04000000
WS_KB    = 0x06000000
WS_VBT   = 0x08000000
WS_OB    = 0x0A000000
WS_KM    = 0x0C000000
WS_VMT   = 0x0C800000
WS_EX    = 0x0D000000
WS_BYTES = 268435456

import re
_BIGOFF = re.compile(r'^(buffer_\w+ .*?\], )(0 offen) offset:(\d+)(.*)$')
class K:
    def __init__(self, name, vgpr, sgpr, agpr=0, wgy=False):
        self.name = name + "_kernel"; self.L = []; self.vgpr = vgpr; self.sgpr = sgpr; self.agpr = agpr
    def __call__(self, s):
        m = _BIGOFF.match(s)
        if m and int(m.group(3)) > 4095:
            self.L.append(f"    s_mov_b32 s63, {m.group(3)}")
            s = m.group(1) + "s63 offen" + m.group(4)
        self.L.append("    " + s)
    def lab(self, l): self.L.append(f"{self.name}_{l}:")
    def ref(self, l): return f"{self.name}_{l}"
    def ptr(self, slot, s):
        self(f"s_load_dwordx2 s[{s}:{s+1}], s[0:1], {slot*8}")
    def srd(self, sd, sp, size, off=0):
        if off:
            self(f"s_add_u32 s{sd}, s{sp}, {off}")
            self(f"s_addc_u32 s{sd+1}, s{sp+1}, 0")
        else:
            self(f"s_mov_b32 s{sd}, s{sp}")
            self(f"s_mov_b32 s{sd+1}, s{sp+1}")
        self(f"s_mov_b32 s{sd+2}, {size}")
        self(f"s_mov_b32 s{sd+3}, 0x00020000")
    def text(self):
        acc = ((self.vgpr + 3) // 4) * 4
        nfv = acc + self.agpr if self.agpr else self.vgpr
        t = [".text", f".globl {self.name}", ".p2align 8", f".type {self.name},@function", f"{self.name}:"]
        t += self.L
        t += ["    s_endpgm", '.section .rodata,"a"', ".p2align 6", f".amdhsa_kernel {self.name}",
              f"  .amdhsa_next_free_vgpr {nfv}", f"  .amdhsa_next_free_sgpr {self.sgpr}",
              f"  .amdhsa_accum_offset {acc}", "  .amdhsa_group_segment_fixed_size 0",
              "  .amdhsa_kernarg_size 104", "  .amdhsa_user_sgpr_count 2",
              "  .amdhsa_user_sgpr_kernarg_segment_ptr 1", "  .amdhsa_system_sgpr_workgroup_id_x 1",
              ".end_amdhsa_kernel"]
        return "\n".join(t)

def magic(d, maxn):
    for sh in range(0, 32):
        m = -(-(1 << sh) // d)
        if m * maxn >= (1 << 32): break
        if all((n * m) >> sh == n // d for n in range(0, maxn + 1, func_step(maxn))) and all(((n * m) >> sh) == n // d for n in range(max(0,maxn-4096), maxn+1)):
            ok = all(((n*m)>>sh) == n//d for n in range(0, min(maxn+1, 70000)))
            if ok: return m, sh
    raise ValueError("no magic")
def func_step(n): return 1 if n < 70000 else 7

PACK = [
    (KA_WQKV, 640, 1920, WS_PQKVA),
    (KA_WOA, 640, 640, WS_PWOA),
    (KA_WQ, 640, 6144, WS_PQ),
    (KA_WK, 640, 6144, WS_PK),
    (KA_WV, 640, 6144, WS_PV),
    (KA_WO, 6144, 640, WS_PO),
]
EX_CLEAR_BYTES = 0x00510000
def k_pack():
    k = K("pack", vgpr=24, sgpr=40)
    blocks = [(kk // 32) * (n // 16) for _, kk, n, _ in PACK]
    total = sum(blocks)
    clear_waves = (EX_CLEAR_BYTES + 2 * 32 * 32 * 32 * 4) // (64 * 16)
    k("v_lshrrev_b32 v1, 6, v0")
    k("v_and_b32 v2, 63, v0")
    k("s_nop 0")
    k("v_readfirstlane_b32 s3, v1")
    k("s_lshl_b32 s4, s2, 2")
    k("s_add_u32 s4, s4, s3")
    k.ptr(KA_WS, 6)
    k("s_waitcnt lgkmcnt(0)")
    k.srd(8, 6, WS_BYTES)
    k(f"s_cmp_lt_u32 s4, {total}")
    k(f"s_cbranch_scc1 {k.ref('pk')}")
    k(f"s_cmp_ge_u32 s4, {total + clear_waves}")
    k(f"s_cbranch_scc1 {k.ref('end')}")
    k(f"s_sub_u32 s4, s4, {total}")
    k("s_lshl_b32 s5, s4, 10")
    k("v_lshlrev_b32 v3, 4, v2")
    k("v_add_u32 v3, s5, v3")
    k(f"v_add_u32 v4, {WS_EX}, v3")
    k(f"s_cmp_lt_u32 s5, {EX_CLEAR_BYTES}")
    k(f"s_cbranch_scc1 {k.ref('clr')}")
    k(f"v_add_u32 v4, {WS_KVZ - EX_CLEAR_BYTES}, v3")
    k.lab('clr')
    for i in range(4): k(f"v_mov_b32 v{8+i}, 0")
    k("buffer_store_dwordx4 v[8:11], v4, s[8:11], 0 offen")
    k(f"s_branch {k.ref('end')}")
    k.lab('pk')
    base = 0
    for idx, ((slot, kk, n, dst), nb) in enumerate(zip(PACK, blocks)):
        ks = kk // 32
        k(f"s_cmp_lt_u32 s4, {base + nb}")
        k(f"s_cbranch_scc0 {k.ref(f'nx{idx}')}")
        k(f"s_sub_u32 s4, s4, {base}")
        k.ptr(slot, 12)
        k(f"s_mov_b32 s20, {n}")
        k(f"s_mov_b32 s21, {ks}")
        k(f"s_mov_b32 s22, {dst}")
        k(f"s_mov_b32 s23, {kk * n * 2}")
        m, sh = magic(ks, nb)
        k(f"s_mul_i32 s24, s4, {m}")
        k(f"s_lshr_b32 s24, s24, {sh}")
        k(f"s_branch {k.ref('go')}")
        k.lab(f'nx{idx}')
        base += nb
    k(f"s_branch {k.ref('end')}")
    k.lab('go')
    k("s_waitcnt lgkmcnt(0)")
    k("s_mov_b32 s16, s12"); k("s_mov_b32 s17, s13"); k("s_mov_b32 s18, s23"); k("s_mov_b32 s19, 0x00020000")
    k("s_mul_i32 s25, s24, s21")
    k("s_sub_u32 s25, s4, s25")
    k("v_lshrrev_b32 v3, 4, v2")
    k("v_lshlrev_b32 v3, 3, v3")
    k("s_lshl_b32 s26, s25, 5")
    k("v_add_u32 v3, s26, v3")
    k("v_mul_lo_u32 v3, v3, s20")
    k("v_and_b32 v4, 15, v2")
    k("s_lshl_b32 s27, s24, 4")
    k("v_add3_u32 v3, v3, v4, s27")
    k("v_lshlrev_b32 v3, 1, v3")
    k("s_lshl_b32 s28, s20, 1")
    k("s_mov_b32 s29, 0")
    for j in range(8):
        k(f"buffer_load_ushort v{12 + j}, v3, s[16:19], s29 offen")
        if j < 7: k("s_add_u32 s29, s29, s28")
    k("s_lshl_b32 s5, s4, 10")
    k("s_add_u32 s5, s5, s22")
    k("v_lshlrev_b32 v5, 4, v2")
    k("v_add_u32 v5, s5, v5")
    k("s_waitcnt vmcnt(0)")
    for j in range(4): k(f"v_lshl_or_b32 v{8+j}, v{13+2*j}, 16, v{12+2*j}")
    k("buffer_store_dwordx4 v[8:11], v5, s[8:11], 0 offen")
    k.lab('end')
    nwg = (total + clear_waves + 3) // 4
    return k, nwg

def wave_sum(k, v, tmp, s0):
    k("s_nop 1")
    k(f"v_add_f32 v{tmp}, v{v}, v{v} quad_perm:[1,0,3,2] row_mask:0xf bank_mask:0xf")
    k("s_nop 1")
    k(f"v_add_f32 v{tmp}, v{tmp}, v{tmp} quad_perm:[2,3,0,1] row_mask:0xf bank_mask:0xf")
    k("s_nop 1")
    k(f"v_add_f32 v{tmp}, v{tmp}, v{tmp} row_half_mirror row_mask:0xf bank_mask:0xf")
    k("s_nop 1")
    k(f"v_add_f32 v{tmp}, v{tmp}, v{tmp} row_mirror row_mask:0xf bank_mask:0xf")
    k("s_nop 1")
    for i in range(4): k(f"v_readlane_b32 s{s0+i}, v{tmp}, {16*i}")
    k("s_nop 1")
    k(f"v_mov_b32 v{v}, s{s0}")
    for i in range(1, 4): k(f"v_add_f32 v{v}, s{s0+i}, v{v}")

def k_ln(name, src_slot, src_off):
    k = K(name, vgpr=32, sgpr=40)
    k("v_lshrrev_b32 v1, 6, v0")
    k("v_and_b32 v2, 63, v0")
    k("s_nop 0")
    k("v_readfirstlane_b32 s3, v1")
    k("s_lshl_b32 s4, s2, 2")
    k("s_add_u32 s4, s4, s3")
    k(f"s_cmp_ge_u32 s4, {S}")
    k(f"s_cbranch_scc1 {k.ref('end')}")
    k.ptr(src_slot, 6); k.ptr(KA_WS, 12)
    k("s_waitcnt lgkmcnt(0)")
    k.srd(8, 6, S * D * 2, src_off)
    k.srd(16, 12, S * D * 2, WS_XN)
    k(f"s_mul_i32 s5, s4, {D*2}")
    k("v_lshlrev_b32 v3, 2, v2")
    k("v_add_u32 v3, s5, v3")
    for j in range(5): k(f"buffer_load_dword v{4+j}, v3, s[8:11], 0 offen offset:{j*256}")
    k("s_waitcnt vmcnt(0)")
    for j in range(5):
        k(f"v_lshlrev_b32 v{10+2*j}, 16, v{4+j}")
        k(f"v_and_b32 v{11+2*j}, 0xffff0000, v{4+j}")
    k("v_add_f32 v20, v10, v11")
    for j in range(2, 10): k(f"v_add_f32 v20, v20, v{10+j}")
    wave_sum(k, 20, 21, 24)
    k(f"v_mul_f32 v20, {1.0/D!r}, v20")
    for j in range(10): k(f"v_sub_f32 v{10+j}, v{10+j}, v20")
    k("v_mul_f32 v21, v10, v10")
    for j in range(1, 10): k(f"v_fmac_f32 v21, v{10+j}, v{10+j}")
    wave_sum(k, 21, 22, 24)
    k(f"v_mov_b32 v22, 0x3727c5ac")
    k(f"v_fmac_f32 v22, {1.0/D!r}, v21")
    k("v_rsq_f32 v22, v22")
    k("s_nop 0")
    for j in range(10): k(f"v_mul_f32 v{10+j}, v{10+j}, v22")
    for j in range(5):
        k(f"v_cvt_pk_bf16_f32 v{4+j}, v{10+2*j}, v{11+2*j}")
    for j in range(5): k(f"buffer_store_dword v{4+j}, v3, s[16:19], 0 offen offset:{j*256}")
    k.lab('end')
    return k, S // 4

def k_gemm(name, M, N, Kd, a_off, lda, w_off, TM, TN, epi, ksplit=1, w_nt0=0):
    KS = Kd // 32
    nacc = TM * TN * 4
    nfr = (TM + TN) * 4
    VB = 16
    vgpr = VB + 2 * nfr + 24
    k = K(name, vgpr=vgpr, sgpr=64, agpr=nacc)
    mjobs = M // (16 * TM); njobs = N // (16 * TN)
    assert M % (16 * TM) == 0 and N % (16 * TN) == 0
    if ksplit == 1:
        assert mjobs % 4 == 0
        nwg = (mjobs // 4) * njobs
    else:
        assert ksplit == 4 and KS % 4 == 0
        nwg = mjobs * njobs
    kper = KS // ksplit
    k("v_lshrrev_b32 v1, 6, v0")
    k("v_and_b32 v2, 63, v0")
    k("s_nop 0")
    k("v_readfirstlane_b32 s3, v1")
    k(f"s_cmp_ge_u32 s2, {nwg}")
    k(f"s_cbranch_scc1 {k.ref('end')}")
    k.ptr(KA_WS, 4)
    k.ptr(KA_OUT, 6)
    if epi.get('res_in'): k.ptr(epi['res_slot'], 42)
    m, sh = magic(njobs, nwg)
    k(f"s_mul_i32 s20, s2, {m}")
    k(f"s_lshr_b32 s20, s20, {sh}")
    k(f"s_mul_i32 s21, s20, {njobs}")
    k("s_sub_u32 s21, s2, s21")
    if ksplit == 1:
        k("s_lshl_b32 s20, s20, 2")
        k("s_add_u32 s20, s20, s3")
    k(f"s_mul_i32 s22, s20, {16*TM}")
    k(f"s_mul_i32 s23, s21, {16*TN}")
    k("s_waitcnt lgkmcnt(0)")
    k.srd(8, 4, WS_BYTES)
    k("v_and_b32 v3, 15, v2")
    k("v_lshrrev_b32 v4, 4, v2")
    k(f"s_mov_b32 s24, {lda}")
    k("v_add_u32 v5, s22, v3")
    k("v_mul_lo_u32 v5, v5, s24")
    k("v_lshlrev_b32 v6, 4, v4")
    k("v_add_u32 v5, v5, v6")
    k(f"v_add_u32 v5, {a_off}, v5")
    assert TM <= 8
    for i in range(TM):
        if i == 0: k("v_mov_b32 v8, v5")
        else: k(f"v_add_u32 v{8+i}, {16*lda*i}, v5")
    k("v_lshlrev_b32 v7, 4, v2")
    if ksplit == 1:
        k("s_mov_b32 s25, 0")
        k("s_mov_b32 s26, 0")
    else:
        k(f"s_mul_i32 s26, s3, {kper*1024}")
        k(f"s_mul_i32 s25, s3, {kper*64}")
    k(f"s_mul_i32 s27, s21, {TN*KS*1024}")
    k("s_add_u32 s27, s27, s26")
    wbase = w_off + w_nt0 * KS * 1024
    k(f"s_add_u32 s27, s27, {wbase}")
    for j in range(TN):
        k(f"s_add_u32 s{32+j}, s27, {j*KS*1024}")
    for i in range(nacc): k(f"v_accvgpr_write_b32 a{i}, 0")
    def loads(st):
        b = VB + st * nfr
        for i in range(TM):
            k(f"buffer_load_dwordx4 v[{b+4*i}:{b+4*i+3}], v{8+i}, s[8:11], s25 offen")
        for j in range(TN):
            r = b + 4 * TM + 4 * j
            k(f"buffer_load_dwordx4 v[{r}:{r+3}], v7, s[8:11], s{32+j} offen")
    def adv():
        k("s_add_u32 s25, s25, 64")
        for j in range(TN): k(f"s_add_u32 s{32+j}, s{32+j}, 1024")
    def mfmas(st):
        b = VB + st * nfr
        for j in range(TN):
            for i in range(TM):
                a = (i * TN + j) * 4
                fa = f"v[{b+4*i}:{b+4*i+3}]"; fw = f"v[{b+4*TM+4*j}:{b+4*TM+4*j+3}]"
                if epi_normal(epi, j):
                    k(f"v_mfma_f32_16x16x32_bf16 a[{a}:{a+3}], {fa}, {fw}, a[{a}:{a+3}]")
                else:
                    k(f"v_mfma_f32_16x16x32_bf16 a[{a}:{a+3}], {fw}, {fa}, a[{a}:{a+3}]")
    def epi_normal(epi, j):
        return False
    def body(normal):
        nonlocal epi_normal
        epi_normal = (lambda e, j: normal)
        loads(0)
        assert kper % 2 == 0
        k(f"s_mov_b32 s28, {kper // 2}")
        lp = f"loop{int(normal)}"
        k.lab(lp)
        adv(); loads(1)
        k(f"s_waitcnt vmcnt({TM+TN})")
        mfmas(0)
        k("s_sub_u32 s28, s28, 1")
        k("s_cmp_eq_u32 s28, 0")
        k(f"s_cbranch_scc1 {k.ref(lp+'_last')}")
        adv(); loads(0)
        k(f"s_waitcnt vmcnt({TM+TN})")
        mfmas(1)
        k(f"s_branch {k.ref(lp)}")
        k.lab(lp + '_last')
        k("s_waitcnt vmcnt(0)")
        mfmas(1)
    kind = epi['kind']
    E0 = VB + 2 * nfr
    def ksplit_reduce():
        if ksplit == 1: return
        k("s_nop 7"); k("s_nop 7")
        k("v_lshlrev_b32 v5, 4, v2")
        k("s_cmp_eq_u32 s3, 0")
        k(f"s_cbranch_scc1 {k.ref('red0')}")
        k("s_sub_u32 s29, s3, 1")
        k(f"s_mul_i32 s29, s29, {TM*TN*1024}")
        k("v_add_u32 v5, s29, v5")
        for t in range(TM * TN):
            for r in range(4): k(f"v_accvgpr_read_b32 v{E0+r}, a{4*t+r}")
            k(f"ds_write_b128 v5, v[{E0}:{E0+3}] offset:{t*1024}")
        k("s_waitcnt lgkmcnt(0)")
        k("s_barrier")
        k(f"s_branch {k.ref('end')}")
        k.lab('red0')
        k("s_barrier")
        for t in range(TM * TN):
            for w in range(3):
                k(f"ds_read_b128 v[{E0+4*w}:{E0+4*w+3}], v5 offset:{(w*TM*TN+t)*1024}")
            k("s_waitcnt lgkmcnt(0)")
            for r in range(4):
                k(f"v_accvgpr_read_b32 v{E0+12+r}, a{4*t+r}")
            for r in range(4):
                k(f"v_add_f32 v{E0+12+r}, v{E0+12+r}, v{E0+r}")
                k(f"v_add_f32 v{E0+4+r}, v{E0+4+r}, v{E0+8+r}")
                k(f"v_add_f32 v{E0+12+r}, v{E0+12+r}, v{E0+4+r}")
                k(f"v_accvgpr_write_b32 a{4*t+r}, v{E0+12+r}")
    def epi_T_store(i, j, base_v, ldc_bytes, imm_extra=0):
        pass
    if kind == 'res':
        body(False)
        ksplit_reduce()
        k("s_nop 7"); k("s_nop 7")
        to_out = epi.get('to_out', False)
        if to_out: k.srd(12, 6, S * D * 2)
        rs = "s[8:11]"
        if epi.get('res_in'):
            k.srd(44, 42, S * D * 2); rs = "s[44:47]"
        k(f"s_mov_b32 s24, {N*2}")
        k("v_add_u32 v5, s22, v3")
        k("v_mul_lo_u32 v5, v5, s24")
        k("v_lshlrev_b32 v6, 3, v4")
        k("s_lshl_b32 s29, s23, 1")
        k("v_add3_u32 v5, v5, v6, s29")
        for i in range(TM):
            for j in range(TN):
                a = (i * TN + j) * 4
                off = i * 16 * N * 2 + j * 32
                k(f"v_add_u32 v6, {off + epi['res_off']}, v5")
                k(f"buffer_load_dwordx2 v[{E0}:{E0+1}], v6, {rs}, 0 offen")
                for r in range(4): k(f"v_accvgpr_read_b32 v{E0+4+r}, a{a+r}")
                k(f"v_cvt_pk_bf16_f32 v{E0+8}, v{E0+4}, v{E0+5}")
                k(f"v_cvt_pk_bf16_f32 v{E0+9}, v{E0+6}, v{E0+7}")
                k("s_waitcnt vmcnt(0)")
                for h in range(2):
                    k(f"v_lshlrev_b32 v{E0+4+2*h}, 16, v{E0+8+h}")
                    k(f"v_and_b32 v{E0+5+2*h}, 0xffff0000, v{E0+8+h}")
                    k(f"v_lshlrev_b32 v{E0+10}, 16, v{E0+h}")
                    k(f"v_and_b32 v{E0+11}, 0xffff0000, v{E0+h}")
                    k(f"v_add_f32 v{E0+4+2*h}, v{E0+4+2*h}, v{E0+10}")
                    k(f"v_add_f32 v{E0+5+2*h}, v{E0+5+2*h}, v{E0+11}")
                k(f"v_cvt_pk_bf16_f32 v{E0+8}, v{E0+4}, v{E0+5}")
                k(f"v_cvt_pk_bf16_f32 v{E0+9}, v{E0+6}, v{E0+7}")
                if to_out:
                    k(f"v_add_u32 v6, {off}, v5")
                    k(f"buffer_store_dwordx2 v[{E0+8}:{E0+9}], v6, s[12:15], 0 offen")
                else:
                    k(f"v_add_u32 v6, {off + epi['out_off']}, v5")
                    k(f"buffer_store_dwordx2 v[{E0+8}:{E0+9}], v6, s[8:11], 0 offen")
    elif kind in ('qkvA', 'qkvB'):
        nsplit = 640 if kind == 'qkvA' else 2 * HD
        assert nsplit % (16 * TN) == 0
        k(f"s_cmp_ge_u32 s23, {nsplit}")
        k(f"s_cbranch_scc1 {k.ref('nrm')}")
        body(False)
        k("s_nop 7"); k("s_nop 7")
        if kind == 'qkvA':
            ncols = 640
            k(f"s_mov_b32 s24, {ncols*2}")
            k("s_lshl_b32 s29, s23, 1")
            k(f"s_add_u32 s29, s29, {WS_QA}")
        else:
            ncols = HD
            k(f"s_mov_b32 s24, {ncols*2}")
            k(f"s_mov_b32 s31, {WS_KB - HD*2}")
            k(f"s_cmp_lt_u32 s23, {HD}")
            k(f"s_cselect_b32 s30, {WS_QB}, s31")
            k("s_lshl_b32 s29, s23, 1")
            k("s_add_u32 s29, s29, s30")
        k("v_add_u32 v5, s22, v3")
        k("v_mul_lo_u32 v5, v5, s24")
        k("v_lshlrev_b32 v6, 3, v4")
        k("v_add3_u32 v5, v5, v6, s29")
        for i in range(TM):
            for j in range(TN):
                a = (i * TN + j) * 4
                off = i * 16 * ncols * 2 + j * 32
                for r in range(4): k(f"v_accvgpr_read_b32 v{E0+4+r}, a{a+r}")
                k(f"v_cvt_pk_bf16_f32 v{E0+8}, v{E0+4}, v{E0+5}")
                k(f"v_cvt_pk_bf16_f32 v{E0+9}, v{E0+6}, v{E0+7}")
                k(f"v_add_u32 v6, {off}, v5")
                k(f"buffer_store_dwordx2 v[{E0+8}:{E0+9}], v6, s[8:11], 0 offen")
        k(f"s_branch {k.ref('end')}")
        k.lab('nrm')
        body(True)
        k("s_nop 7"); k("s_nop 7")
        if kind == 'qkvA':
            k(f"s_sub_u32 s29, s23, 640")
            k("v_add_u32 v5, s29, v3")
            k("v_lshlrev_b32 v5, 11, v5")
            k("v_lshlrev_b32 v6, 2, v4")
            k("v_add3_u32 v5, v5, v6, s22")
            k("v_lshlrev_b32 v5, 1, v5")
            k(f"v_add_u32 v5, {WS_KVT}, v5")
            joff = lambda i, j: (16 * j * 2048 + 16 * i) * 2
        else:
            assert TM % 2 == 0
            k(f"s_sub_u32 s29, s23, {2*HD}")
            k("v_add_u32 v5, s29, v3")
            k("v_lshlrev_b32 v5, 5, v5")
            k("v_lshlrev_b32 v6, 2, v4")
            k("v_add_u32 v5, v5, v6")
            k("s_lshr_b32 s30, s22, 5")
            k(f"s_mul_i32 s30, s30, {HD*32}")
            k("v_add_u32 v5, s30, v5")
            k("v_lshlrev_b32 v5, 1, v5")
            k(f"v_add_u32 v5, {WS_VBT}, v5")
            joff = lambda i, j: ((i // 2) * HD * 32 + 16 * j * 32 + 16 * (i % 2)) * 2
        for i in range(TM):
            for j in range(TN):
                a = (i * TN + j) * 4
                for r in range(4): k(f"v_accvgpr_read_b32 v{E0+4+r}, a{a+r}")
                k(f"v_cvt_pk_bf16_f32 v{E0+8}, v{E0+4}, v{E0+5}")
                k(f"v_cvt_pk_bf16_f32 v{E0+9}, v{E0+6}, v{E0+7}")
                k(f"v_add_u32 v6, {joff(i, j)}, v5")
                k(f"buffer_store_dwordx2 v[{E0+8}:{E0+9}], v6, s[8:11], 0 offen")
    k.lab('end')
    lds = 3 * TM * TN * 1024 if ksplit > 1 else 0
    return k, nwg, lds


LOG2E = 1.4426950408889634
def emit_phi(k, dst, src, tmp):
    k(f"v_mul_f32 v{tmp}, {LOG2E!r}, v{src}")
    k(f"v_exp_f32 v{tmp}, v{tmp}")
    k(f"v_add_f32 v{dst}, 1.0, v{src}")
    k(f"v_cmp_lt_f32 vcc, 0, v{src}")
    k("s_nop 1")
    k(f"v_cndmask_b32 v{dst}, v{tmp}, v{dst}, vcc")
    k(f"v_add_f32 v{dst}, 0x358637bd, v{dst}")

def k_kvz(name, layer):
    k = K(name, vgpr=64, sgpr=40, agpr=16)
    k("v_lshrrev_b32 v1, 6, v0")
    k("v_and_b32 v2, 63, v0")
    k("s_nop 0")
    k("v_readfirstlane_b32 s3, v1")
    k("s_lshl_b32 s4, s2, 2")
    k("s_add_u32 s4, s4, s3")
    k("s_cmp_ge_u32 s4, 512")
    k(f"s_cbranch_scc1 {k.ref('end')}")
    k.ptr(KA_WS, 6)
    k("s_waitcnt lgkmcnt(0)")
    k.srd(8, 6, WS_BYTES)
    k("s_lshr_b32 s5, s4, 4")
    k("s_and_b32 s12, s4, 15")
    k("s_mul_i32 s13, s5, 20")
    k("v_and_b32 v3, 15, v2")
    k("v_lshrrev_b32 v4, 4, v2")
    k("s_lshl_b32 s14, s12, 7")
    k("v_lshlrev_b32 v5, 3, v4")
    k("v_add_u32 v5, s14, v5")
    for t in range(2):
        k(f"v_add_u32 v{6+t}, {16*t}, v3")
        k(f"v_min_u32 v{8+t}, 19, v{6+t}")
        k(f"v_add_u32 v{8+t}, s13, v{8+t}")
        k(f"v_lshlrev_b32 v{8+t}, 11, v{8+t}")
        k(f"v_add_u32 v{8+t}, v{8+t}, v5")
        k(f"v_lshlrev_b32 v{8+t}, 1, v{8+t}")
        k(f"v_add_u32 v{8+t}, {WS_KVT}, v{8+t}")
        k(f"v_add_u32 v{10+t}, {640*2048*2}, v{8+t}")
    for i in range(16): k(f"v_accvgpr_write_b32 a{i}, 0")
    k("v_cmp_gt_u32 s[16:17], 20, v7")
    k("v_cmp_eq_u32 s[18:19], 20, v7")
    for ks in range(4):
        for t in range(2):
            k(f"buffer_load_dwordx4 v[{16+4*t}:{19+4*t}], v{8+t}, s[8:11], 0 offen offset:{ks*64}")
            k(f"buffer_load_dwordx4 v[{24+4*t}:{27+4*t}], v{10+t}, s[8:11], 0 offen offset:{ks*64}")
        k("s_waitcnt vmcnt(0)")
        for r in range(8):
            k(f"v_lshlrev_b32 v32, 16, v{16+r}")
            k(f"v_and_b32 v33, 0xffff0000, v{16+r}")
            emit_phi(k, 34, 32, 36)
            emit_phi(k, 35, 33, 36)
            k(f"v_cvt_pk_bf16_f32 v{16+r}, v34, v35")
        k("v_mov_b32 v37, 0x3f803f80")
        for r in range(4):
            k(f"v_cndmask_b32 v{20+r}, 0, v{20+r}, s[16:17]")
            k(f"v_cndmask_b32 v{28+r}, 0, v{28+r}, s[16:17]")
            k(f"v_cndmask_b32 v{28+r}, v{28+r}, v37, s[18:19]")
        k("s_nop 1")
        for te in range(2):
            for td in range(2):
                a = (te * 2 + td) * 4
                k(f"v_mfma_f32_16x16x32_bf16 a[{a}:{a+3}], v[{24+4*te}:{27+4*te}], v[{16+4*td}:{19+4*td}], a[{a}:{a+3}]")
    k("s_nop 7"); k("s_nop 7")
    k("v_lshlrev_b32 v5, 2, v4")
    k("v_lshlrev_b32 v5, 5, v5")
    k("v_add_u32 v5, v5, v3")
    k("v_lshlrev_b32 v5, 2, v5")
    k("s_lshl_b32 s14, s5, 12")
    k(f"s_add_u32 s14, s14, {WS_KVZ + layer * 32 * 4096}")
    k("v_add_u32 v5, s14, v5")
    for te in range(2):
        for td in range(2):
            a = (te * 2 + td) * 4
            for i in range(4):
                k(f"v_accvgpr_read_b32 v{40+i}, a{a+i}")
            for i in range(4):
                k(f"buffer_atomic_add_f32 v{40+i}, v5, s[8:11], 0 offen offset:{(16*te+i)*128 + td*64}")
    k.lab('end')
    return k, 128

def k_attn_a(name, layer):
    k = K(name, vgpr=96, sgpr=40)
    k(f"s_cmp_ge_u32 s2, {S*32//256}")
    k(f"s_cbranch_scc1 {k.ref('end')}")
    k.ptr(KA_WS, 6)
    k("s_waitcnt lgkmcnt(0)")
    k.srd(8, 6, WS_BYTES)
    k("v_mov_b32 v1, v0")
    for it in range(21):
        k(f"v_add_u32 v2, {it*256}, v1")
        m, sh = magic(168, 5376)
        k(f"s_mov_b32 s12, {m}")
        k("v_mul_lo_u32 v3, v2, s12")
        k(f"v_lshrrev_b32 v3, {sh}, v3")
        k("v_mul_u32_u24 v4, 168, v3")
        k("v_sub_u32 v4, v2, v4")
        k("v_lshlrev_b32 v5, 12, v3")
        k("v_lshlrev_b32 v6, 4, v4")
        k("v_add_u32 v5, v5, v6")
        k(f"v_add_u32 v5, {WS_KVZ + layer*32*4096}, v5")
        k(f"buffer_load_dwordx4 v[8:11], v5, s[8:11], 0 offen")
        k("v_mul_u32_u24 v7, 2688, v3")
        k("v_add_u32 v7, v7, v6")
        k("s_waitcnt vmcnt(0)")
        k("ds_write_b128 v7, v[8:11]")
    k("s_waitcnt lgkmcnt(0)")
    k("s_barrier")
    k("v_and_b32 v2, 31, v0")
    k("v_lshrrev_b32 v3, 5, v0")
    k("s_lshl_b32 s12, s2, 3")
    k("v_add_u32 v3, s12, v3")
    k("v_mul_u32_u24 v4, 1280, v3")
    k("v_mul_u32_u24 v5, 40, v2")
    k("v_add_u32 v4, v4, v5")
    k(f"v_add_u32 v6, {WS_QA}, v4")
    for j in range(5): k(f"buffer_load_dwordx2 v[{8+2*j}:{9+2*j}], v6, s[8:11], 0 offen offset:{8*j}")
    k("s_waitcnt vmcnt(0)")
    for j in range(10):
        k(f"v_lshlrev_b32 v40, 16, v{8+j}")
        k(f"v_and_b32 v41, 0xffff0000, v{8+j}")
        emit_phi(k, 42, 40, 44)
        emit_phi(k, 43, 41, 44)
        k(f"v_cvt_pk_bf16_f32 v45, v42, v43")
        k(f"v_lshlrev_b32 v{20+2*j}, 16, v45")
        k(f"v_and_b32 v{21+2*j}, 0xffff0000, v45")
    k("v_mul_u32_u24 v7, 2688, v2")
    for e in range(21):
        for c in range(5):
            k(f"ds_read_b128 v[{72+4*c}:{75+4*c}], v7 offset:{e*128 + c*16}")
        k("s_waitcnt lgkmcnt(0)")
        k(f"v_mul_f32 v{50+e}, v20, v72")
        for d in range(1, 20): k(f"v_fmac_f32 v{50+e}, v{20+d}, v{72+d}")
    k("v_add_f32 v70, 0x358637bd, v70")
    k("v_rcp_f32 v70, v70")
    k("s_nop 0")
    for e in range(20): k(f"v_mul_f32 v{50+e}, v{50+e}, v70")
    for j in range(10): k(f"v_cvt_pk_bf16_f32 v{8+j}, v{50+2*j}, v{51+2*j}")
    k(f"v_add_u32 v6, {WS_OA}, v4")
    for j in range(5): k(f"buffer_store_dwordx2 v[{8+2*j}:{9+2*j}], v6, s[8:11], 0 offen offset:{8*j}")
    k.lab('end')
    return k, S * 32 // 256, 32 * 2688


GCU = 3
NCH = H * GCU
EX_S = WS_EX
EX_P = WS_EX + 0x00100000
EX_M = WS_EX + 0x00500000
SPIN_MAX = 1 << 18
SCALE_B = DH ** -0.5

def emit_tag(k, regs, tagv):
    for r in regs:
        k(f"v_and_or_b32 v{r}, v{r}, s60, v{tagv}")

def emit_poll(k, name, loads, regs, tagv, tmp):
    k("s_mov_b32 s61, 0")
    k.lab(name)
    k("s_cmp_eq_u32 s61, 0")
    k(f"s_cbranch_scc1 {k.ref(name + '_nosl')}")
    k("s_sleep 4")
    k.lab(name + "_nosl")
    for l in loads: k(l)
    k("s_waitcnt vmcnt(0)")
    first = True
    for r in regs:
        if first:
            k(f"v_xor_b32 v{tmp}, v{r}, v{tagv}"); first = False
        else:
            k(f"v_xor_b32 v{tmp+1}, v{r}, v{tagv}")
            k(f"v_or_b32 v{tmp}, v{tmp}, v{tmp+1}")
    k(f"v_and_b32 v{tmp}, 0xff, v{tmp}")
    k(f"v_cmp_ne_u32 vcc, 0, v{tmp}")
    k("s_add_u32 s61, s61, 1")
    k(f"s_cmp_ge_u32 s61, s64")
    k(f"s_cbranch_scc0 {k.ref(name + '_cont')}")
    k("s_mov_b32 s64, 1")
    k(f"s_branch {k.ref(name + '_out')}")
    k.lab(name + "_cont")
    k(f"s_cbranch_vccnz {k.ref(name)}")
    k.lab(name + "_out")

STAMP = False
EX_V = WS_EX + 0x00300000
def k_chain(name, layer):
    def stamp(i):
        if not STAMP: return
        k(f"s_memrealtime s[{66+2*i}:{67+2*i}]")
    k = K(name, vgpr=256, sgpr=96, agpr=240)
    MF, WO = 16, 96
    PB = 16
    AQ, AK, AV = 192, 196, 200
    QB_, KB_, VB_ = 204, 206, 208
    KX, VX = 210, 214
    SC = 226
    T0, T1 = 238, 239
    LDS_MEM, LDS_O, LDS_S = 0, 10240, 16384
    k(f"s_cmp_ge_u32 s2, {NCH}")
    k(f"s_cbranch_scc1 {k.ref('end')}")
    k.ptr(KA_WS, 4); k.ptr(KA_MEM0, 6)
    k("v_and_b32 v2, 63, v0")
    k("v_lshrrev_b32 v1, 6, v0")
    k("v_and_b32 v3, 15, v2")
    k("v_lshrrev_b32 v4, 4, v2")
    k("v_readfirstlane_b32 s3, v1")
    k("s_and_b32 s20, s2, 31")
    k("s_lshr_b32 s21, s2, 5")
    k("s_mov_b32 s60, 0xffffff00")
    k(f"s_mov_b32 s64, {SPIN_MAX}")
    k("s_waitcnt lgkmcnt(0)")
    k.srd(8, 4, WS_BYTES)
    k.srd(12, 6, 8 * 640 * 2)
    k("s_mul_i32 s22, s20, 192")
    k("s_lshl_b32 s23, s21, 6")
    k("s_add_u32 s22, s22, s23")
    k("s_lshl_b32 s23, s3, 4")
    k("s_add_u32 s22, s22, s23")
    k("v_lshlrev_b32 v5, 4, v2")
    k("s_lshr_b32 s23, s22, 4")
    k("s_mul_i32 s23, s23, 20480")
    for mi, off in enumerate((WS_PQ, WS_PK, WS_PV)):
        k(f"s_add_u32 s24, s23, {off}")
        for g in range(5):
            for q in range(4):
                r = PB + 4 * q
                k(f"buffer_load_dwordx4 v[{r}:{r+3}], v5, s[8:11], s24 offen offset:{q*1024}")
            k("s_add_u32 s24, s24, 4096")
            k("s_waitcnt vmcnt(0)")
            for q in range(16): k(f"v_accvgpr_write_b32 a{mi*80 + g*16 + q}, v{PB+q}")
    k("s_cmp_eq_u32 s21, 1"); k("s_cselect_b32 s26, 14, 0")
    k("s_cmp_eq_u32 s21, 2"); k("s_cselect_b32 s26, 27, s26")
    k("s_cmp_eq_u32 s21, 0"); k("s_cselect_b32 s27, 14, 13")
    k("s_mul_i32 s28, s20, 6")
    k("s_mov_b32 s29, s26")
    for j in range(4):
        k(f"s_add_u32 s24, s3, {4*j}")
        k("s_sub_u32 s25, s27, 1")
        k("s_min_u32 s24, s24, s25")
        k("s_add_u32 s24, s24, s26")
        k("s_mul_i32 s24, s24, 192")
        k("s_add_u32 s24, s24, s28")
        k("s_lshl_b32 s24, s24, 10")
        k(f"s_add_u32 s24, s24, {WS_PO}")
        for ks in range(6):
            r = WO + (j * 6 + ks) * 4
            k(f"buffer_load_dwordx4 v[{r}:{r+3}], v5, s[8:11], s24 offen offset:{ks*1024 if ks<4 else 0}") if ks < 4 else None
        k("s_add_u32 s24, s24, 4096")
        for ks in range(4, 6):
            r = WO + (j * 6 + ks) * 4
            k(f"buffer_load_dwordx4 v[{r}:{r+3}], v5, s[8:11], s24 offen offset:{(ks-4)*1024}")
    k("v_lshlrev_b32 v6, 4, v0")
    for p in range(3):
        if p == 2:
            k("v_cmp_gt_u32 vcc, 128, v0")
            k("s_and_saveexec_b64 s[30:31], vcc")
        k(f"buffer_load_dwordx4 v[{PB}:{PB+3}], v6, s[12:15], 0 offen offset:{p*4096}")
        k("s_waitcnt vmcnt(0)")
        k(f"ds_write_b128 v6, v[{PB}:{PB+3}] offset:{LDS_MEM + p*4096}")
        if p == 2: k("s_mov_b64 exec, s[30:31]")
    k("v_and_b32 v7, 7, v3")
    k("v_mul_u32_u24 v7, 1280, v7")
    k("v_lshl_add_u32 v7, v4, 4, v7")
    k("v_mul_u32_u24 v9, 12288, v3")
    k("v_lshl_add_u32 v9, v4, 3, v9")
    k("s_lshl_b32 s23, s22, 1")
    k(f"s_add_u32 s23, s23, {WS_KB}")
    k("v_add_u32 v9, s23, v9")
    k("s_mul_i32 s23, s20, 192")
    k("s_mul_i32 s24, s3, 48")
    k("s_add_u32 s23, s23, s24")
    k("v_add_u32 v10, s23, v3")
    k("v_lshlrev_b32 v10, 6, v10")
    k("v_lshl_add_u32 v10, v4, 3, v10")
    k(f"v_add_u32 v10, {WS_VBT}, v10")
    k("s_mul_i32 s23, s20, 1344")
    k("s_add_u32 s23, s23, s22")
    k("v_mul_u32_u24 v11, 192, v3")
    k("v_lshlrev_b32 v8, 2, v4")
    k("v_add3_u32 v11, v11, v8, s23")
    k("v_lshlrev_b32 v11, 1, v11")
    k(f"v_add_u32 v11, {WS_KM}, v11")
    k("v_add_u32 v12, s22, v3")
    k("v_lshlrev_b32 v12, 3, v12")
    k("v_add_u32 v12, v12, v8")
    k("v_lshlrev_b32 v12, 1, v12")
    k(f"v_add_u32 v12, {WS_VMT}, v12")
    k("s_waitcnt vmcnt(0) lgkmcnt(0)")
    k("s_barrier")
    k("s_mov_b32 s40, 0")
    k.lab('step')
    k(f"s_add_u32 s41, s40, {layer*64 + 1}")
    stamp(0)
    if STAMP: k("s_memtime s[90:91]")
    k("v_mov_b32 v15, s41")
    k("s_and_b32 s42, s40, 1")
    k(f"buffer_load_dwordx2 v[{KX}:{KX+1}], v9, s[8:11], 0 offen")
    k(f"v_add_u32 v8, {16*12288}, v9")
    k(f"buffer_load_dwordx2 v[{KX+2}:{KX+3}], v8, s[8:11], 0 offen")
    for j in range(3):
        k(f"buffer_load_dwordx2 v[{VX+4*j}:{VX+4*j+1}], v10, s[8:11], 0 offen offset:{j*1024}")
        k(f"buffer_load_dwordx2 v[{VX+4*j+2}:{VX+4*j+3}], v10, s[8:11], 0 offen offset:{j*1024+32}")
    for ks in range(20): k(f"ds_read_b128 v[{MF+4*ks}:{MF+4*ks+3}], v7 offset:{LDS_MEM + ks*64}")
    for r in range(12): k(f"v_mov_b32 v{AQ+r}, 0")
    k("s_waitcnt lgkmcnt(0)")
    for ks in range(20):
        f = f"v[{MF+4*ks}:{MF+4*ks+3}]"
        k(f"v_mfma_f32_16x16x32_bf16 v[{AQ}:{AQ+3}], a[{4*ks}:{4*ks+3}], {f}, v[{AQ}:{AQ+3}]")
        k(f"v_mfma_f32_16x16x32_bf16 v[{AK}:{AK+3}], a[{80+4*ks}:{80+4*ks+3}], {f}, v[{AK}:{AK+3}]")
        k(f"v_mfma_f32_16x16x32_bf16 v[{AV}:{AV+3}], {f}, a[{160+4*ks}:{160+4*ks+3}], v[{AV}:{AV+3}]")
    k("s_nop 7")
    for acc, dst in ((AQ, QB_), (AK, KB_), (AV, VB_)):
        k(f"v_cvt_pk_bf16_f32 v{dst}, v{acc}, v{acc+1}")
        k(f"v_cvt_pk_bf16_f32 v{dst+1}, v{acc+2}, v{acc+3}")
    if STAMP:
        k("s_memtime s[92:93]")
        k("s_sub_u32 s92, s92, s90"); k("s_subb_u32 s93, s93, s91")
        k("s_mov_b64 s[90:91], s[92:93]")
    stamp(1)
    k("v_cmp_gt_u32 vcc, 8, v3")
    k("s_and_saveexec_b64 s[30:31], vcc")
    k(f"buffer_store_dwordx2 v[{KB_}:{KB_+1}], v11, s[8:11], 0 offen")
    k("s_mov_b64 exec, s[30:31]")
    k("v_cmp_gt_u32 vcc, 2, v4")
    k("s_and_saveexec_b64 s[30:31], vcc")
    k(f"buffer_store_dwordx2 v[{VB_}:{VB_+1}], v12, s[8:11], 0 offen")
    k("s_mov_b64 exec, s[30:31]")
    k("s_cmp_eq_u32 s40, 63")
    k(f"s_cbranch_scc1 {k.ref('end')}")
    k(f"v_mov_b32 v{PB+2}, v15"); k(f"v_mov_b32 v{PB+3}, v15")
    k(f"v_mov_b32 v{PB}, v{VB_}"); k(f"v_mov_b32 v{PB+1}, v{VB_+1}")
    k("s_lshl_b32 s23, s42, 18")
    k("s_lshl_b32 s24, s2, 11")
    k("s_add_u32 s23, s23, s24")
    k("s_lshl_b32 s24, s3, 9")
    k("s_add_u32 s23, s23, s24")
    k(f"s_add_u32 s23, s23, {EX_V}")
    k("v_lshlrev_b32 v13, 4, v2")
    k("v_add_u32 v13, s23, v13")
    k("v_cmp_gt_u32 vcc, 32, v2")
    k("s_and_saveexec_b64 s[30:31], vcc")
    k(f"buffer_store_dwordx4 v[{PB}:{PB+3}], v13, s[8:11], 0 offen sc1")
    k("s_mov_b64 exec, s[30:31]")
    for r in range(12): k(f"v_mov_b32 v{SC+r}, 0")
    k("s_waitcnt vmcnt(4)")
    k(f"v_mfma_f32_16x16x16_bf16 v[{SC}:{SC+3}], v[{KB_}:{KB_+1}], v[{QB_}:{QB_+1}], v[{SC}:{SC+3}]")
    k(f"v_mfma_f32_16x16x16_bf16 v[{SC+4}:{SC+7}], v[{KX}:{KX+1}], v[{QB_}:{QB_+1}], v[{SC+4}:{SC+7}]")
    k(f"v_mfma_f32_16x16x16_bf16 v[{SC+8}:{SC+11}], v[{KX+2}:{KX+3}], v[{QB_}:{QB_+1}], v[{SC+8}:{SC+11}]")
    k("s_nop 7")
    k("v_mul_u32_u24 v8, 48, v2")
    k("s_mul_i32 s23, s3, 3072")
    k(f"s_add_u32 s23, s23, {LDS_S}")
    k("v_add_u32 v13, s23, v8")
    for q in range(3): k(f"ds_write_b128 v13, v[{SC+4*q}:{SC+4*q+3}] offset:{16*q}")
    k("s_waitcnt lgkmcnt(0)")
    k("s_barrier")
    k(f"v_add_u32 v13, {LDS_S}, v8")
    for w in range(4):
        for q in range(3): k(f"ds_read_b128 v[{PB+12*w+4*q}:{PB+12*w+4*q+3}], v13 offset:{w*3072+16*q}")
    k("s_waitcnt lgkmcnt(0)")
    for r in range(12):
        k(f"v_add_f32 v{PB+r}, v{PB+r}, v{PB+12+r}")
        k(f"v_add_f32 v{PB+24+r}, v{PB+24+r}, v{PB+36+r}")
        k(f"v_add_f32 v{SC+r}, v{PB+r}, v{PB+24+r}")
    k("s_lshl_b32 s23, s42, 19")
    k("s_lshl_b32 s24, s2, 12")
    k("s_add_u32 s23, s23, s24")
    k(f"s_add_u32 s23, s23, {EX_S}")
    k("v_lshl_add_u32 v13, v4, 3, v3")
    k("v_mul_u32_u24 v13, 48, v13")
    k("v_add_u32 v13, s23, v13")
    k("v_cmp_gt_u32 vcc, 8, v3")
    k("s_and_saveexec_b64 s[30:31], vcc")
    k("s_cmp_lg_u32 s3, 0")
    k(f"s_cbranch_scc1 {k.ref('nopub')}")
    for r in range(12): k(f"v_and_or_b32 v{PB+r}, v{SC+r}, s60, v15")
    for q in range(3): k(f"buffer_store_dwordx4 v[{PB+4*q}:{PB+4*q+3}], v13, s[8:11], 0 offen offset:{16*q} sc1")
    k.lab('nopub')
    stamp(2)
    k("s_add_u32 s24, s21, 1"); k("s_cmp_ge_u32 s24, 3"); k("s_cselect_b32 s25, 3, 0"); k("s_sub_u32 s24, s24, s25")
    k("s_add_u32 s26, s21, 2"); k("s_cmp_ge_u32 s26, 3"); k("s_cselect_b32 s25, 3, 0"); k("s_sub_u32 s26, s26, s25")
    k("s_sub_u32 s24, s24, s21"); k("s_lshl_b32 s24, s24, 17")
    k("s_sub_u32 s26, s26, s21"); k("s_lshl_b32 s26, s26, 17")
    k("v_add_u32 v14, s24, v13")
    k("v_add_u32 v8, s26, v13")
    loads = [f"buffer_load_dwordx4 v[{PB+4*q}:{PB+4*q+3}], v14, s[8:11], 0 offen offset:{16*q} sc1" for q in range(3)]
    loads += [f"buffer_load_dwordx4 v[{PB+12+4*q}:{PB+12+4*q+3}], v8, s[8:11], 0 offen offset:{16*q} sc1" for q in range(3)]
    emit_poll(k, 'pollc', loads, list(range(PB, PB + 24)), 15, T0)
    for r in range(12):
        k(f"v_add_f32 v{SC+r}, v{SC+r}, v{PB+r}")
        k(f"v_add_f32 v{SC+r}, v{SC+r}, v{PB+12+r}")
    k("s_mov_b64 exec, s[30:31]")
    k("v_cmp_gt_u32 vcc, 32, v2")
    k("s_and_saveexec_b64 s[30:31], vcc")
    k("v_lshlrev_b32 v13, 4, v2")
    loads = []
    k("s_mul_i32 s23, s3, 3")
    for j in range(3):
        k(f"s_add_u32 s24, s23, {j}")
        k("s_lshr_b32 s25, s24, 2")
        k("s_lshl_b32 s25, s25, 5")
        k("s_add_u32 s25, s25, s20")
        k("s_lshl_b32 s25, s25, 11")
        k("s_and_b32 s24, s24, 3")
        k("s_lshl_b32 s24, s24, 9")
        k("s_add_u32 s25, s25, s24")
        k("s_lshl_b32 s24, s42, 18")
        k("s_add_u32 s25, s25, s24")
        k(f"s_add_u32 s{48+j}, s25, {EX_V}")
        loads.append(f"buffer_load_dwordx4 v[{PB+24+4*j}:{PB+24+4*j+3}], v13, s[8:11], s{48+j} offen sc1")
    emit_poll(k, 'pollv', loads, [PB+24+4*j+2 for j in range(3)], 15, T0)
    k("s_mov_b64 exec, s[30:31]")
    stamp(3)
    k(f"s_mov_b32 s23, {hexf(SCALE_B * LOG2E)}")
    for r in range(12): k(f"v_mul_f32 v{SC+r}, s23, v{SC+r}")
    k("v_cmp_gt_u32 vcc, 2, v4")
    k("v_mov_b32 v8, 0xff800000")
    for r in range(4): k(f"v_cndmask_b32 v{SC+r}, v8, v{SC+r}, vcc")
    k(f"v_max3_f32 v{T0}, v{SC}, v{SC+1}, v{SC+2}")
    for r in range(3, 11, 2): k(f"v_max3_f32 v{T0}, v{T0}, v{SC+r}, v{SC+r+1}")
    k(f"v_max_f32 v{T0}, v{T0}, v{SC+11}")
    def xlane(op, v):
        k(f"v_mov_b32 v{T1}, v{v}"); k("s_nop 1")
        k(f"v_permlane16_swap_b32 v{v}, v{T1}")
        k(f"{op} v{v}, v{v}, v{T1}")
        k(f"v_mov_b32 v{T1}, v{v}"); k("s_nop 1")
        k(f"v_permlane32_swap_b32 v{v}, v{T1}")
        k(f"{op} v{v}, v{v}, v{T1}")
    xlane("v_max_f32", T0)
    for r in range(12):
        k(f"v_sub_f32 v{SC+r}, v{SC+r}, v{T0}")
        k(f"v_exp_f32 v{SC+r}, v{SC+r}")
    k("s_nop 0")
    k(f"v_add_f32 v{T0}, v{SC}, v{SC+1}")
    for r in range(2, 12): k(f"v_add_f32 v{T0}, v{T0}, v{SC+r}")
    xlane("v_add_f32", T0)
    k(f"v_rcp_f32 v{T0}, v{T0}")
    k("s_nop 0")
    for r in range(12): k(f"v_mul_f32 v{SC+r}, v{SC+r}, v{T0}")
    for q in range(6): k(f"v_cvt_pk_bf16_f32 v{AQ+q}, v{SC+2*q}, v{SC+2*q+1}")
    k("v_cmp_gt_u32 vcc, 32, v2")
    for j in range(3):
        for r in range(2): k(f"v_cndmask_b32 v{PB+24+4*j+r}, 0, v{PB+24+4*j+r}, vcc")
    for j in range(3):
        a = PB + 40 + 4 * j
        for r in range(4): k(f"v_mov_b32 v{a+r}, 0")
    k("s_waitcnt vmcnt(0)")
    k("s_nop 1")
    for j in range(3):
        a = PB + 40 + 4 * j
        k(f"v_mfma_f32_16x16x16_bf16 v[{a}:{a+3}], v[{PB+24+4*j}:{PB+24+4*j+1}], v[{AQ}:{AQ+1}], v[{a}:{a+3}]")
        k(f"v_mfma_f32_16x16x16_bf16 v[{a}:{a+3}], v[{VX+4*j}:{VX+4*j+1}], v[{AQ+2}:{AQ+3}], v[{a}:{a+3}]")
        k(f"v_mfma_f32_16x16x16_bf16 v[{a}:{a+3}], v[{VX+4*j+2}:{VX+4*j+3}], v[{AQ+4}:{AQ+5}], v[{a}:{a+3}]")
    k("s_nop 7")
    k("v_mul_u32_u24 v8, 384, v3")
    k("v_lshl_add_u32 v8, v4, 3, v8")
    k("s_mul_i32 s23, s3, 96")
    k(f"s_add_u32 s23, s23, {LDS_O}")
    k("v_add_u32 v8, s23, v8")
    for j in range(3):
        a = PB + 40 + 4 * j
        k(f"v_cvt_pk_bf16_f32 v{T0}, v{a}, v{a+1}")
        k(f"v_cvt_pk_bf16_f32 v{T1}, v{a+2}, v{a+3}")
        k(f"ds_write_b64 v8, v[{T0}:{T1}] offset:{j*32}")
    k("s_waitcnt lgkmcnt(0)")
    k("s_barrier")
    k("v_mul_u32_u24 v8, 384, v3")
    k("v_lshl_add_u32 v8, v4, 4, v8")
    for ks in range(6): k(f"ds_read_b128 v[{PB+4*ks}:{PB+4*ks+3}], v8 offset:{LDS_O + ks*64}")
    for r in range(16): k(f"v_mov_b32 v{PB+24+r}, 0")
    k("s_waitcnt lgkmcnt(0)")
    for j in range(4):
        a = PB + 24 + 4 * j
        for ks in range(6):
            w_ = WO + (j * 6 + ks) * 4
            k(f"v_mfma_f32_16x16x32_bf16 v[{a}:{a+3}], v[{PB+4*ks}:{PB+4*ks+3}], v[{w_}:{w_+3}], v[{a}:{a+3}]")
    k("s_nop 7")
    k("v_cmp_gt_u32 vcc, 2, v4")
    k("s_and_saveexec_b64 s[30:31], vcc")
    k("v_and_b32 v13, 1, v3")
    k("v_lshlrev_b32 v13, 5, v13")
    k("v_lshl_add_u32 v13, v4, 4, v13")
    k("s_lshl_b32 s23, s42, 20")
    k("s_lshl_b32 s24, s20, 6")
    k("s_add_u32 s23, s23, s24")
    k(f"s_add_u32 s23, s23, {EX_P}")
    for j in range(4):
        k(f"s_add_u32 s24, s3, {4*j}")
        k("s_cmp_ge_u32 s24, s27")
        k(f"s_cbranch_scc1 {k.ref(f'skipp{j}')}")
        k("s_add_u32 s24, s24, s29")
        k("s_lshl_b32 s24, s24, 3")
        k("v_lshrrev_b32 v8, 1, v3")
        k("v_add_u32 v8, s24, v8")
        k("v_lshlrev_b32 v8, 11, v8")
        k("v_add3_u32 v8, v8, v13, s23")
        a = PB + 24 + 4 * j
        emit_tag(k, range(a, a + 4), 15)
        k(f"buffer_store_dwordx4 v[{a}:{a+3}], v8, s[8:11], 0 offen sc1")
        k.lab(f'skipp{j}')
    k("s_mov_b64 exec, s[30:31]")
    stamp(4)
    k("s_lshl_b32 s23, s2, 2")
    k("s_add_u32 s23, s23, s3")
    k("s_cmp_ge_u32 s23, 320")
    k(f"s_cbranch_scc1 {k.ref('nored')}")
    k("v_lshrrev_b32 v8, 2, v2")
    k("v_lshlrev_b32 v8, 7, v8")
    k("v_and_b32 v13, 3, v2")
    k("v_lshl_add_u32 v8, v13, 4, v8")
    k("s_lshl_b32 s24, s23, 11")
    k("s_lshl_b32 s25, s42, 20")
    k("s_add_u32 s24, s24, s25")
    k(f"s_add_u32 s24, s24, {EX_P}")
    k("v_add_u32 v8, s24, v8")
    loads = [f"buffer_load_dwordx4 v[{PB+4*m}:{PB+4*m+3}], v8, s[8:11], 0 offen offset:{m*64} sc1" for m in range(2)]
    emit_poll(k, 'polla', loads, list(range(PB, PB + 8)), 15, T0)
    for i in range(4): k(f"v_add_f32 v{PB+i}, v{PB+i}, v{PB+4+i}")
    k("s_nop 1")
    for i in range(4): k(f"v_add_f32 v{PB+i}, v{PB+i}, v{PB+i} row_ror:4 row_mask:0xf bank_mask:0xf")
    k("s_nop 1")
    for i in range(4): k(f"v_add_f32 v{PB+i}, v{PB+i}, v{PB+i} row_ror:8 row_mask:0xf bank_mask:0xf")
    for i in range(4): xlane("v_add_f32", PB + i)
    k(f"v_cvt_pk_bf16_f32 v{T0}, v{PB}, v{PB+1}")
    k(f"v_cvt_pk_bf16_f32 v{T1}, v{PB+2}, v{PB+3}")
    k(f"v_lshlrev_b32 v{PB}, 16, v{T0}")
    k(f"v_and_b32 v{PB+1}, 0xffff0000, v{T0}")
    k(f"v_lshlrev_b32 v{PB+2}, 16, v{T1}")
    k(f"v_and_b32 v{PB+3}, 0xffff0000, v{T1}")
    for i in range(4): k(f"v_or_b32 v{PB+i}, v{PB+i}, v15")
    k("v_lshlrev_b32 v13, 4, v2")
    k("s_lshl_b32 s24, s23, 6")
    k("s_lshl_b32 s25, s42, 15")
    k("s_add_u32 s24, s24, s25")
    k(f"s_add_u32 s24, s24, {EX_M}")
    k("v_add_u32 v13, s24, v13")
    k("v_cmp_gt_u32 vcc, 4, v2")
    k("s_and_saveexec_b64 s[30:31], vcc")
    k(f"buffer_store_dwordx4 v[{PB}:{PB+3}], v13, s[8:11], 0 offen sc1")
    k("s_mov_b64 exec, s[30:31]")
    k.lab('nored')
    stamp(5)
    k("v_lshlrev_b32 v8, 4, v0")
    k("s_lshl_b32 s25, s42, 15")
    k(f"s_add_u32 s25, s25, {EX_M}")
    k("v_add_u32 v13, s25, v8")
    loads = [f"buffer_load_dwordx4 v[{PB+4*p}:{PB+4*p+3}], v13, s[8:11], 0 offen offset:{p*4096} sc1" for p in range(5)]
    emit_poll(k, 'pollb', loads, list(range(PB, PB + 20)), 15, T0)
    stamp(6)
    for p in range(5):
        k(f"v_add_u32 v8, {p*256}, v0")
        k("v_lshrrev_b32 v13, 1, v8")
        k("v_and_b32 v8, 1, v8")
        k(f"v_mul_u32_u24 v8, {4*1280}, v8")
        k("v_lshl_add_u32 v8, v13, 1, v8")
        for i in range(4):
            k(f"ds_write_b16_d16_hi v8, v{PB+4*p+i} offset:{LDS_MEM + i*1280}")
    k("s_waitcnt lgkmcnt(0)")
    k("s_barrier")
    if STAMP:
        k("s_cmp_eq_u32 s40, 10")
        k(f"s_cbranch_scc0 {k.ref('nostamp')}")
        k("s_cmp_eq_u32 s3, 0")
        k(f"s_cbranch_scc0 {k.ref('nostamp')}")
        k.ptr(KA_DBG, 34)
        k("s_waitcnt lgkmcnt(0)")
        k.srd(36, 34, 256)
        k("s_cmp_eq_u32 s2, 0"); k("s_cselect_b32 s33, 0, 64")
        k("s_cmp_eq_u32 s2, 95"); k("s_cselect_b32 s32, 1, 0")
        k("s_cmp_eq_u32 s2, 0"); k("s_cselect_b32 s32, 1, s32")
        k("s_cmp_eq_u32 s32, 0")
        k(f"s_cbranch_scc1 {k.ref('nostamp')}")
        for i in range(7):
            k(f"v_mov_b32 v13, s{66+2*i}")
            k(f"v_mov_b32 v14, s33")
            k(f"buffer_store_dword v13, v14, s[36:39], 0 offen offset:{i*4}")
        k("v_mov_b32 v13, s90"); k("v_mov_b32 v14, s33")
        k("buffer_store_dword v13, v14, s[36:39], 0 offen offset:28")
        k.lab('nostamp')
    k(f"v_add_u32 v9, {32*12288}, v9")
    k(f"v_add_u32 v10, {6144*64}, v10")
    k(f"v_add_u32 v11, {32*8*384}, v11")
    k(f"v_add_u32 v12, {6144*16}, v12")
    k("s_add_u32 s40, s40, 1")
    k(f"s_branch {k.ref('step')}")
    k.lab('end')
    return k, NCH, 16384 + 12288

def hexf(x):
    import struct
    return "0x%08x" % struct.unpack("<I", struct.pack("<f", x))[0]


def k_attn_b(name):
    k = K(name, vgpr=200, sgpr=48)
    QF, KF = 16, 64
    SA = 136
    PP = 160
    VF = 172
    OA_ = 180
    T0, T1 = 190, 191
    k(f"s_cmp_ge_u32 s2, {NSEG*8}")
    k(f"s_cbranch_scc1 {k.ref('end')}")
    k.ptr(KA_WS, 4)
    k("v_and_b32 v2, 63, v0")
    k("v_lshrrev_b32 v1, 6, v0")
    k("v_and_b32 v3, 15, v2")
    k("v_lshrrev_b32 v4, 4, v2")
    k("v_readfirstlane_b32 s3, v1")
    k("s_lshr_b32 s20, s2, 3")
    k("s_and_b32 s21, s2, 7")
    k("s_lshl_b32 s21, s21, 2")
    k("s_add_u32 s21, s21, s3")
    k("s_waitcnt lgkmcnt(0)")
    k.srd(8, 4, WS_BYTES)
    k("s_mul_i32 s22, s21, 384")
    k("s_mul_i32 s23, s20, %d" % (32 * 12288))
    k("s_add_u32 s23, s23, s22")
    k("v_mul_u32_u24 v5, 12288, v3")
    k("v_lshlrev_b32 v6, 4, v4")
    k("v_add3_u32 v5, v5, v6, s23")
    for tt in range(2):
        k(f"v_add_u32 v{8+tt}, {WS_QB + tt*16*12288}, v5")
        k(f"v_add_u32 v{10+tt}, {WS_KB + tt*16*12288}, v5")
    k("v_and_b32 v7, 7, v3")
    k("v_mul_u32_u24 v7, 384, v7")
    k("s_lshl_b32 s24, s20, 5")
    k("s_add_u32 s24, s24, s21")
    k("s_mul_i32 s24, s24, 3072")
    k(f"s_add_u32 s24, s24, {WS_KM}")
    k("v_add3_u32 v12, v7, v6, s24")
    for ks in range(6):
        for tt in range(2):
            r = QF + (tt * 6 + ks) * 4
            k(f"buffer_load_dwordx4 v[{r}:{r+3}], v{8+tt}, s[8:11], 0 offen offset:{ks*64}")
        r = KF + ks * 4
        k(f"buffer_load_dwordx4 v[{r}:{r+3}], v12, s[8:11], 0 offen offset:{ks*64}")
        for tt in range(2):
            r = KF + ((1 + tt) * 6 + ks) * 4
            k(f"buffer_load_dwordx4 v[{r}:{r+3}], v{10+tt}, s[8:11], 0 offen offset:{ks*64}")
    for r in range(24): k(f"v_mov_b32 v{SA+r}, 0")
    k("s_waitcnt vmcnt(0)")
    for ks in range(6):
        for kt in range(3):
            for tt in range(2):
                a = SA + (kt * 2 + tt) * 4
                kf = KF + (kt * 6 + ks) * 4; qf = QF + (tt * 6 + ks) * 4
                k(f"v_mfma_f32_16x16x32_bf16 v[{a}:{a+3}], v[{kf}:{kf+3}], v[{qf}:{qf+3}], v[{a}:{a+3}]")
    k("s_nop 7")
    k(f"s_mov_b32 s25, {hexf(SCALE_B * LOG2E)}")
    k("v_mov_b32 v13, 0xff800000")
    def xlane(op, v):
        k(f"v_mov_b32 v{T1}, v{v}"); k("s_nop 1")
        k(f"v_permlane16_swap_b32 v{v}, v{T1}")
        k(f"{op} v{v}, v{v}, v{T1}")
        k(f"v_mov_b32 v{T1}, v{v}"); k("s_nop 1")
        k(f"v_permlane32_swap_b32 v{v}, v{T1}")
        k(f"{op} v{v}, v{v}, v{T1}")
    k("v_lshlrev_b32 v14, 2, v4")
    for tt in range(2):
        regs = [SA + (kt * 2 + tt) * 4 + i for kt in range(3) for i in range(4)]
        for r in regs: k(f"v_mul_f32 v{r}, s25, v{r}")
        k("v_cmp_gt_u32 vcc, 2, v4")
        for i in range(4): k(f"v_cndmask_b32 v{regs[i]}, v13, v{regs[i]}, vcc")
        for kt in (1, 2):
            for i in range(4):
                c = (kt - 1) * 16 + i - tt * 16
                k(f"v_add_u32 v15, {c}, v14") if c >= 0 else k(f"v_subrev_u32 v15, {-c}, v14")
                k("v_cmp_le_i32 vcc, v15, v3")
                k("s_nop 1")
                r = regs[kt * 4 + i]
                k(f"v_cndmask_b32 v{r}, v13, v{r}, vcc")
        k(f"v_max3_f32 v{T0}, v{regs[0]}, v{regs[1]}, v{regs[2]}")
        for q in range(3, 11, 2): k(f"v_max3_f32 v{T0}, v{T0}, v{regs[q]}, v{regs[q+1]}")
        k(f"v_max_f32 v{T0}, v{T0}, v{regs[11]}")
        xlane("v_max_f32", T0)
        for r in regs:
            k(f"v_sub_f32 v{r}, v{r}, v{T0}")
            k(f"v_exp_f32 v{r}, v{r}")
        k("s_nop 0")
        k(f"v_add_f32 v{T0}, v{regs[0]}, v{regs[1]}")
        for r in regs[2:]: k(f"v_add_f32 v{T0}, v{T0}, v{r}")
        xlane("v_add_f32", T0)
        k(f"v_rcp_f32 v{T0}, v{T0}")
        k("s_nop 0")
        for r in regs: k(f"v_mul_f32 v{r}, v{r}, v{T0}")
        for q in range(6): k(f"v_cvt_pk_bf16_f32 v{PP + tt*6 + q}, v{regs[2*q]}, v{regs[2*q+1]}")
    k("s_mul_i32 s26, s21, 192")
    k("v_add_u32 v16, s26, v3")
    k("v_lshlrev_b32 v17, 6, v16")
    k("v_lshlrev_b32 v18, 3, v4")
    k("v_add_u32 v17, v17, v18")
    k("s_mul_i32 s27, s20, %d" % (6144 * 64))
    k(f"s_add_u32 s27, s27, {WS_VBT}")
    k("v_add_u32 v17, s27, v17")
    k("v_lshlrev_b32 v19, 4, v16")
    k("v_and_b32 v18, 1, v4")
    k("v_lshlrev_b32 v18, 3, v18")
    k("v_add_u32 v19, v19, v18")
    k("s_mul_i32 s27, s20, %d" % (6144 * 16))
    k(f"s_add_u32 s27, s27, {WS_VMT}")
    k("v_add_u32 v19, s27, v19")
    k("v_mul_u32_u24 v20, 12288, v3")
    k("v_lshlrev_b32 v18, 3, v4")
    k("v_add3_u32 v20, v20, v18, s23")
    k(f"v_add_u32 v20, {WS_OB}, v20")
    for et in range(12):
        k(f"buffer_load_dwordx2 v[{VF}:{VF+1}], v19, s[8:11], 0 offen offset:{et*256}")
        k(f"buffer_load_dwordx2 v[{VF+2}:{VF+3}], v17, s[8:11], 0 offen offset:{et*1024}")
        k(f"buffer_load_dwordx2 v[{VF+4}:{VF+5}], v17, s[8:11], 0 offen offset:{et*1024+32}")
        for r in range(8): k(f"v_mov_b32 v{OA_+r}, 0")
        k("s_waitcnt vmcnt(0)")
        for tt in range(2):
            a = OA_ + 4 * tt
            for kt in range(3):
                k(f"v_mfma_f32_16x16x16_bf16 v[{a}:{a+3}], v[{VF+2*kt}:{VF+2*kt+1}], v[{PP+tt*6+2*kt}:{PP+tt*6+2*kt+1}], v[{a}:{a+3}]")
        k("s_nop 7")
        for tt in range(2):
            a = OA_ + 4 * tt
            k(f"v_cvt_pk_bf16_f32 v{T0}, v{a}, v{a+1}")
            k(f"v_cvt_pk_bf16_f32 v{T1}, v{a+2}, v{a+3}")
            k(f"v_add_u32 v21, {tt*16*12288 + et*32}, v20")
            k(f"buffer_store_dwordx2 v[{T0}:{T1}], v21, s[8:11], 0 offen")
    k.lab('end')
    return k, NSEG * 8

def build(stage=99):
    kernels = []; launches = []
    def add(k, nwg, lds=0, block=256):
        if k not in kernels: kernels.append(k)
        launches.append((k.name, nwg, block, lds))
    kp, n = k_pack(); add(kp, n)
    kl, n = k_ln("ln_a1", KA_AX, 0); add(kl, n)
    kg, n, lds = k_gemm("qkv_a", S, 1920, D, WS_XN, D * 2, WS_PQKVA, 4, 5, dict(kind='qkvA')); add(kg, n, lds); n_qkva, lds_qkva = n, lds
    kz, n = k_kvz("kvz_a1", 0); add(kz, n)
    ka, n, lds = k_attn_a("attn_a1", 0); add(ka, n, lds)
    kg2, n, lds = k_gemm("wo_a1", S, D, D, WS_OA, D * 2, WS_PWOA, 2, 5, dict(kind='res', res_slot=KA_AX, res_off=0, out_off=WS_X1, res_in=True)); add(kg2, n, lds)
    kl2, n = k_ln("ln_b1", KA_WS, WS_X1); add(kl2, n)
    kg3, n, lds = k_gemm("qkv_b", S, 3 * HD, D, WS_XN, D * 2, WS_PQ, 8, 6, dict(kind='qkvB')); add(kg3, n, lds); n_qkvb, lds_qkvb = n, lds
    kc, n, lds = k_chain("chain1", 0); add(kc, n, lds)
    kb, n = k_attn_b("attn_b"); add(kb, n)
    kg4, n, lds = k_gemm("wo_b1", S, D, HD, WS_OB, HD * 2, WS_PO, 4, 5, dict(kind='res', res_off=WS_X1, out_off=WS_X1), ksplit=4); add(kg4, n, lds)
    kl3, n = k_ln("ln_a2", KA_WS, WS_X1); add(kl3, n)
    add(kg, n_qkva, lds_qkva)
    kz2, n = k_kvz("kvz_a2", 1); add(kz2, n)
    ka2, n, lds = k_attn_a("attn_a2", 1); add(ka2, n, lds)
    kg5, n, lds = k_gemm("wo_a2", S, D, D, WS_OA, D * 2, WS_PWOA, 2, 5, dict(kind='res', res_off=WS_X1, out_off=WS_X1)); add(kg5, n, lds)
    add(kl2, S // 4)
    add(kg3, n_qkvb, lds_qkvb)
    kc2, n, lds = k_chain("chain2", 1); add(kc2, n, lds)
    add(kb, NSEG * 8)
    kg6, n, lds = k_gemm("wo_b2", S, D, HD, WS_OB, HD * 2, WS_PO, 4, 5, dict(kind='res', res_off=WS_X1, to_out=True), ksplit=4); add(kg6, n, lds)
    head = [f"; generated by gen.py (hand-written generator); kernarg: 13 pointers (see harness)"]
    for name, nwg, block, lds in launches:
        head.append(f"; @launch kernel={name} grid=({nwg},1,1) block=({block},1,1) lds={lds}")
    head.append('.amdgcn_target "amdgcn-amd-amdhsa--gfx950"')
    return "\n".join(head) + "\n" + "\n".join(k.text() for k in kernels) + "\n"

if __name__ == "__main__":
    if len(sys.argv) > 1 and sys.argv[1] == "stamp": STAMP = True
    open(f"/code/{NAME}.s", "w").write(build())
    print("written")
```

```python
import re

REG = re.compile(r'^(v|a|s)(\d+)$|^(v|a|s)\[(\d+):(\d+)\]$')
def regs_of(tok):
    tok = tok.strip()
    if tok in ('vcc',): return [('s', 'vcc')]
    if tok in ('vcc_lo', 'vcc_hi'): return [('s', 'vcc')]
    if tok == 'exec' or tok in ('exec_lo', 'exec_hi'): return [('s', 'exec')]
    if tok == 'm0': return [('s', 'm0')]
    m = REG.match(tok)
    if not m: return []
    if m.group(1): return [(m.group(1), int(m.group(2)))]
    return [(m.group(3), i) for i in range(int(m.group(4)), int(m.group(5)) + 1)]

def split_ops(s):
    parts = s.split(None, 1)
    op = parts[0]
    rest = parts[1] if len(parts) > 1 else ''
    rest = rest.split(';')[0]
    toks = [t.strip() for t in rest.split(',')]
    out = []; mods = ''
    for i, t in enumerate(toks):
        if ' ' in t and not t.startswith('['):
            a, b = t.split(None, 1)
            out.append(a); mods += ' ' + b
        else:
            out.append(t)
    return op, out, rest

TRANS = ('v_exp_f32','v_log_f32','v_rcp_f32','v_rsq_f32','v_sqrt_f32','v_sin_f32','v_cos_f32','v_rcp_iflag_f32')
def passes(op):
    if 'smfmac' in op: return 8 if ('16x16' in op) else 16
    if '32x32' in op: return 8
    return 4
W_VALU = {2: 5, 4: 8, 8: 12, 16: 20}
W_OVL = {2: 4, 4: 6, 8: 10, 16: 18}
W_WARC = {2: 1, 4: 3, 8: 7, 16: 15}

class Ins:
    def __init__(self, text):
        self.text = text
        s = text.strip()
        self.label = None; self.op = None
        if s.endswith(':'):
            self.label = s[:-1]; return
        if not s or s.startswith(';') or s.startswith('.'):
            return
        op, ops, rest = split_ops(s)
        self.op = op; self.ops = ops; self.rest = rest
        self.kind = None
        self.wr = []; self.rd = []
        self.dpp = ('quad_perm' in rest or 'row_' in rest or 'wave_' in rest)
        R = [regs_of(o) for o in ops]
        flat = lambda L: [x for l in L for x in l]
        if op.startswith('v_mfma'):
            self.kind = 'mfma'; self.D = R[0]; self.A = R[1]; self.B = R[2]; self.C = R[3]; self.idx = []
        elif op.startswith('v_smfmac'):
            self.kind = 'mfma'; self.D = R[0]; self.A = R[1]; self.B = R[2]; self.C = R[0]; self.idx = R[3]
        elif op.startswith('v_'):
            self.kind = 'valu'
            if (op.startswith('v_permlane') and 'swap' in op) or op.startswith('v_swap'):
                self.wr = R[0] + R[1]; self.rd = R[0] + R[1]
            elif op.startswith('v_cmpx'):
                self.wr = [('s', 'exec')]; self.rd = flat(R)
            elif op.startswith('v_nop'):
                pass
            else:
                self.wr = R[0]; self.rd = flat(R[1:])
                if op.startswith(('v_fmac', 'v_mac', 'v_dot2c', 'v_pk_fmac')) or self.dpp or op.startswith('v_writelane') or 'd16' in op:
                    self.rd = self.rd + R[0]
                if op.startswith(('v_add_co', 'v_sub_co', 'v_addc_co', 'v_subb_co', 'v_subrev_co')):
                    self.wr = R[0] + R[1]; self.rd = flat(R[2:])
                if op.startswith('v_cndmask_b32') and len(ops) == 3:
                    self.rd = self.rd + [('s', 'vcc')]
        elif op.startswith('ds_'):
            self.kind = 'ds'
            if op.startswith('ds_read') or op.startswith('ds_bpermute') or op.startswith('ds_permute') or op.startswith('ds_swizzle') or '_rtn_' in op:
                self.wr = R[0]; self.rd = flat(R[1:])
            else:
                self.rd = flat(R)
        elif op.startswith('buffer_') or op.startswith('global_'):
            self.kind = 'vmem'
            if ' lds' in (' ' + rest):
                self.rd = flat(R) + [('s', 'm0')]; self.ldsdma = True
            elif '_load' in op:
                self.wr = R[0]; self.rd = flat(R[1:])
            elif 'atomic' in op:
                self.rd = flat(R)
                if ' sc0' in (' ' + rest): self.wr = R[0]
            else:
                self.rd = flat(R); self.store_data = R[0]
        elif op.startswith('s_'):
            self.kind = 'salu'
            if op == 's_nop': self.n = int(ops[0], 0) + 1
            elif op.startswith(('s_cbranch', 's_branch')): self.target = ops[0]
            elif op.startswith(('s_cmp', 's_waitcnt', 's_barrier', 's_sleep', 's_endpgm', 's_setprio', 's_bitcmp', 's_sethalt', 's_setreg')):
                self.rd = flat(R)
            else:
                self.wr = R[0]; self.rd = flat(R[1:])
                if 'saveexec' in op: self.wr = self.wr + [('s', 'exec')]
        else:
            raise ValueError("unknown instruction: " + text)

CAP = 24
def merge(a, b):
    if a is None: return dict(b)
    out = dict(a)
    for k_, v in b.items():
        if k_[0] == 'MD':
            d = dict(out.get(k_, {}))
            for kk, vv in v.items():
                if kk not in d or vv < d[kk]: d[kk] = vv
            out[k_] = d
        elif k_ not in out or v < out[k_]: out[k_] = v
    return out

def need(ins, st):
    n = 0
    def req(ev, reg, w):
        nonlocal n
        k_ = (ev, reg)
        if k_ in st and st[k_] < w: n = max(n, w - st[k_])
    def mf(reg, table, exempt=None):
        nonlocal n
        for (p, tid), age in st.get(('MD', reg), {}).items():
            if exempt is not None and tid == exempt: continue
            if age < table[p]: n = max(n, table[p] - age)
    if ins.kind == 'mfma':
        for r in ins.A + ins.B + ins.C + ins.idx:
            req('valuW', r, 2)
        for r in ins.A + ins.B + ins.idx: mf(r, W_VALU)
        for r in ins.C: mf(r, W_OVL, exempt=(tuple(ins.C), ins.op))
        if ins.D != ins.C:
            for r in ins.D: mf(r, W_VALU)
        req('execV', ('s', 'exec'), 4)
    elif ins.kind == 'valu':
        for r in ins.rd + ins.wr:
            if r[0] in 'va': mf(r, W_VALU)
        for r in ins.wr:
            for p in (2, 4, 8, 16): req(('mC', p), r, W_WARC[p])
            req('stD', r, 2)
        for r in ins.rd:
            if r[0] == 's': req('valuS', r, 2)
            if ins.op not in TRANS: req('trans', r, 1)
        if ins.op not in TRANS:
            for r in ins.wr: req('trans', r, 1)
        if ins.dpp:
            for r in ins.rd: req('valuW', r, 2)
            req('execV', ('s', 'exec'), 5)
        if ins.op.startswith('v_permlane'):
            for r in ins.rd: req('valuW', r, 2)
            req('execV', ('s', 'exec'), 4)
        if ins.op.startswith(('v_readlane', 'v_readfirstlane')):
            for r in ins.rd: req('valuW', r, 1)
            if len(ins.ops) > 2:
                for r in regs_of(ins.ops[2]): req('valuS', r, 4)
            req('execV', ('s', 'exec'), 4)
    elif ins.kind in ('ds', 'vmem'):
        for r in ins.rd + ins.wr:
            if r[0] in 'va': mf(r, W_VALU)
        for r in ins.rd:
            if r[0] == 's' and ins.kind == 'vmem': req('valuS', r, 5)
            req('trans', r, 1)
        for r in ins.wr: req('stD', r, 1)
        if getattr(ins, 'ldsdma', False): req('m0', ('s', 'm0'), 1)
    elif ins.kind == 'salu':
        pass
    return n

def apply(ins, st):
    adv = ins.n if ins.op == 's_nop' else 1
    for k_ in list(st.keys()):
        if k_[0] == 'MD':
            d = {kk: v + adv for kk, v in st[k_].items() if v + adv <= CAP}
            if d: st[k_] = d
            else: del st[k_]
        else:
            st[k_] += adv
            if st[k_] > CAP: del st[k_]
    if ins.kind == 'mfma':
        p = passes(ins.op)
        for r in ins.D:
            st[('MD', r)] = {(p, (tuple(ins.D), ins.op)): 0}
        for r in ins.C: st[(('mC', p), r)] = 0
    elif ins.kind == 'valu':
        for r in ins.wr:
            if r[0] in 'va':
                st[('valuW', r)] = 0
                if ins.op in TRANS: st[('trans', r)] = 0
            else:
                if r == ('s', 'exec'): st[('execV', r)] = 0
                else: st[('valuS', r)] = 0
    elif ins.kind == 'vmem':
        sd = getattr(ins, 'store_data', None)
        if sd and len(sd) >= 3:
            for r in sd: st[('stD', r)] = 0
    elif ins.kind == 'salu':
        for r in ins.wr:
            if r == ('s', 'm0'): st[('m0', r)] = 0

def fix(lines):
    ins = [Ins(l) for l in lines]
    pend = {}
    for it in range(4):
        out = []; st = {}; newpend = {}
        dead = False
        changed = False
        for i in ins:
            if i.label:
                if dead: st = {}
                dead = False
                if i.label in pend: st = merge(st, pend[i.label]) if st is not None else dict(pend[i.label])
                out.append(i); continue
            if i.op is None:
                out.append(i); continue
            n = need(i, st)
            while n > 0:
                m = min(n, 16)
                nop = Ins(f"    s_nop {m-1}")
                apply(nop, st); out.append(nop); n -= m; changed = True
            apply(i, st)
            out.append(i)
            if hasattr(i, 'target'):
                newpend[i.target] = merge(newpend.get(i.target), st)
                if i.op == 's_branch': dead = True; st = {}
        ins = out
        same = (newpend == pend)
        pend = newpend
        if not changed and same: break
    return [i.text for i in ins]
```

```python
import sys
import gen as G
from asmlib import K, vr, ar, sr, magic
from gen import hexf, LOG2E

NAME = G.NAME
S, D, H, DH, HD, NSEG = 2048, 640, 32, 192, 6144, 64
KA_AX, KA_WQKV, KA_WOA, KA_BX, KA_MEM0, KA_WQ, KA_WK, KA_WV, KA_WO, KA_SEG, KA_OUT, KA_DBG, KA_WS = range(13)
WS_BYTES = 268435456

G.WS_QB  = 0x04000000
G.WS_KB  = 0x05800000
G.WS_VBT = 0x07000000
WS_SYNC  = 0x08800000
NREP_M, NREP_P = 4, 4
WS_VOM   = WS_SYNC
VOM_STEP = 40 * 32 * 256
WS_MB    = WS_VOM + 64 * VOM_STEP
MB_STEP  = 4 * 10240
WS_PB    = WS_MB + 64 * MB_STEP
PB_STEP  = 4 * 20480
SYNC_END = WS_PB + 64 * PB_STEP
G.WS_KM  = 0x0A400000
G.WS_VMT = 0x0AA00000
WS_VOX   = 0x0B000000
G.WS_OB  = WS_VOX
VOX_SEG  = 40 * 32 * 1024
assert SYNC_END <= G.WS_KM and WS_VOX + 64 * VOX_SEG <= WS_BYTES
SCALE_B = DH ** -0.5
SPIN_MAX = 1 << 17
OOB = 0x7ff00000

CFG = dict(stamp=False, dly_m=0, dly_p=0, sl_m=1, sl_p=1)

class LG:
    def __init__(self, k): self.k = k; self.q = []
    def issue(self, tag, text):
        self.k(text); self.q.append(tag)
    def wait(self, tag):
        idx = max(i for i, t in enumerate(self.q) if t == tag)
        n = len(self.q) - 1 - idx
        assert n <= 15, n
        self.k(f"s_waitcnt lgkmcnt({n})")
        self.q = self.q[idx + 1:]
    def all(self):
        self.k("s_waitcnt lgkmcnt(0)"); self.q = []

def poll(k, name, loads, regs, tmp, sleep, first_delay=0):
    if first_delay:
        k(f"s_sleep {first_delay}")
    k("s_mov_b32 s61, 0")
    k.lab(name)
    for l in loads: k(l)
    k("s_waitcnt vmcnt(0)")
    rs = list(regs)
    k(f"v_max3_u32 v{tmp}, v{rs[0]}, v{rs[1]}, v{rs[2]}")
    rs = rs[3:]
    while len(rs) >= 2:
        k(f"v_max3_u32 v{tmp}, v{tmp}, v{rs[0]}, v{rs[1]}"); rs = rs[2:]
    if rs: k(f"v_max_u32 v{tmp}, v{tmp}, v{rs[0]}")
    k(f"v_cmp_eq_u32 vcc, -1, v{tmp}")
    k("s_add_u32 s61, s61, 1")
    k(f"s_cbranch_vccz {k.ref(name + '_out')}")
    k("s_cmp_ge_u32 s61, s60")
    k(f"s_cbranch_scc1 {k.ref(name + '_to')}")
    if sleep: k(f"s_sleep {sleep}")
    k(f"s_branch {k.ref(name)}")
    k.lab(name + '_to')
    k("s_mov_b32 s60, 1")
    k.lab(name + '_out')

def divmod_const(k, q, r, x, d, maxn, stmp):
    m, sh = magic(d, maxn)
    k(f"s_mov_b32 s{stmp}, {m}")
    k(f"v_mul_lo_u32 v{q}, v{x}, s{stmp}")
    k(f"v_lshrrev_b32 v{q}, {sh}, v{q}")
    k(f"v_mul_u32_u24 v{r}, {d}, v{q}")
    k(f"v_sub_u32 v{r}, v{x}, v{r}")

def stage_offsets(k, n, cpr, gstride, RS, lbase, go, lo, t0):
    for i in range(n):
        k(f"v_add_u32 v{t0}, {256*i}, v0")
        divmod_const(k, t0 + 1, t0 + 2, t0, cpr, 256 * n, 24)
        k(f"s_mov_b32 s24, {gstride}")
        k(f"v_mul_lo_u32 v{go+i}, v{t0+1}, s24")
        k(f"v_lshl_add_u32 v{go+i}, v{t0+2}, 4, v{go+i}")
        k(f"v_mul_u32_u24 v{lo+i}, {RS}, v{t0+1}")
        k(f"v_lshl_add_u32 v{lo+i}, v{t0+2}, 4, v{lo+i}")
        k(f"v_add_u32 v{lo+i}, {lbase}, v{lo+i}")

def tr_base(k, dst, RS, lbase, t0):
    k(f"v_lshrrev_b32 v{t0}, 1, v3")
    k(f"v_lshlrev_b32 v{t0}, 4, v{t0}")
    k(f"v_and_b32 v{t0+1}, 1, v3")
    k(f"v_lshl_add_u32 v{t0}, v{t0+1}, 2, v{t0}")
    k(f"v_lshrrev_b32 v{t0+1}, 2, v2")
    k(f"v_and_b32 v{t0+2}, 1, v{t0+1}")
    k(f"v_add_u32 v{t0}, v{t0}, v{t0+2}")
    k(f"v_lshrrev_b32 v{t0+1}, 1, v{t0+1}")
    k(f"v_lshl_add_u32 v{t0}, v{t0+1}, 3, v{t0}")
    k(f"v_mul_u32_u24 v{dst}, {RS}, v{t0}")
    k(f"v_and_b32 v{t0+1}, 3, v2")
    k(f"v_lshl_add_u32 v{dst}, v{t0+1}, 3, v{dst}")
    k(f"v_add_u32 v{dst}, {lbase}, v{dst}")

def tr_frag(k, reg, kind, addr, RS, off):
    for q, ro in enumerate((0, 2, 32, 34)):
        k(f"ds_read_b64_tr_b16 {kind}[{reg+2*q}:{reg+2*q+1}], v{addr} offset:{off + ro*RS}")

def m0_image(k, srd, t0):
    for p in range(3):
        k(f"v_add_u32 v{t0}, {256*p}, v0")
        k(f"v_and_b32 v{t0+1}, 7, v{t0}")
        k(f"v_mul_u32_u24 v{t0+1}, 1280, v{t0+1}")
        k(f"v_lshrrev_b32 v{t0+2}, 3, v{t0}")
        k(f"v_lshl_add_u32 v{t0+1}, v{t0+2}, 4, v{t0+1}")
        k(f"v_cmp_gt_u32 vcc, 640, v{t0}")
        k(f"v_cndmask_b32 v{t0+1}, v{t0+3}, v{t0+1}, vcc") if False else None
        k(f"v_mov_b32 v{t0+3}, {OOB}")
        k(f"v_cndmask_b32 v{t0+1}, v{t0+3}, v{t0+1}, vcc")
        k(f"buffer_load_dwordx4 v[{t0+4}:{t0+7}], v{t0+1}, s[{srd}:{srd+3}], 0 offen")
        k(f"v_lshlrev_b32 v{t0}, 4, v{t0}")
        k("s_waitcnt vmcnt(0)")
        k(f"s_and_saveexec_b64 s[30:31], vcc")
        k(f"ds_write_b128 v{t0}, v[{t0+4}:{t0+7}]")
        k("s_mov_b64 exec, s[30:31]")

def stamp(k, i):
    if CFG['stamp']: k(f"s_memrealtime s[{66+2*i}:{67+2*i}]")

def stamp_out(k, nst, cond_wg, slot):
    if not CFG['stamp']: return
    l = k.new('st')
    k("s_cmp_eq_u32 s40, 20"); k(f"s_cbranch_scc0 {k.ref(l)}")
    k("s_cmp_eq_u32 s3, 0"); k(f"s_cbranch_scc0 {k.ref(l)}")
    k(f"s_cmp_eq_u32 s2, {cond_wg}"); k(f"s_cbranch_scc0 {k.ref(l)}")
    k.ptr(KA_DBG, 34)
    k("s_waitcnt lgkmcnt(0)")
    k.srd(36, 34, 256)
    k("v_mov_b32 v47, 0")
    for i in range(nst):
        k(f"v_mov_b32 v46, s{66+2*i}")
        k(f"buffer_store_dword v46, v47, s[36:39], 0 offen offset:{slot*32 + i*4}")
    k.lab(l)

def role_S(k, layer_sync):
    h = 44
    L_M, L_X, L_SP, L_DUM, L_W5, L_ST = 0, 10240, 16384, 22528, 24576, 106496
    RS = 400
    ACC, AF, WS5 = 24, 48, 68
    KX = 240
    def wreg(t, c):
        if t < 3: return 'a', t * 80 + c * 8
        return 'v', 96 + (t - 3) * 80 + c * 8
    k("s_mov_b32 s44, s2")
    k.ptr(KA_WQ, 6); k.ptr(KA_WK, 24)
    k("s_waitcnt lgkmcnt(0)")
    k.srd(12, 6, D * HD * 2); k.srd(16, 24, D * HD * 2)
    GO, LO, DAT = 4, 10, 24
    stage_offsets(k, 6, 24, HD * 2, RS, L_ST, GO, LO, 16)
    tr_base(k, 16, RS, L_ST, 17)
    k("s_mul_i32 s24, s3, 96")
    k("v_add_u32 v16, s24, v16")
    k("v_lshlrev_b32 v17, 4, v1")
    k(f"s_mul_i32 s24, s3, 20480"); k(f"s_add_u32 s24, s24, {L_W5}")
    k("v_add_u32 v17, s24, v17")
    k(f"s_mul_i32 s45, s44, 384")
    blocks = [(c, m) for c in range(10) for m in range(2)]
    def loads(bi):
        c, m = blocks[bi]
        d = DAT + 24 * (bi % 3)
        k(f"s_add_u32 s46, s45, {c * 64 * HD * 2}")
        for i in range(6):
            k(f"buffer_load_dwordx4 v[{d+4*i}:{d+4*i+3}], v{GO+i}, s[{12+4*m}:{15+4*m}], s46 offen")
    loads(0); loads(1)
    for bi, (c, m) in enumerate(blocks):
        d = DAT + 24 * (bi % 3)
        k(f"s_waitcnt vmcnt({6 if bi + 1 < len(blocks) else 0})")
        for i in range(6): k(f"ds_write_b128 v{LO+i}, v[{d+4*i}:{d+4*i+3}]")
        if bi + 2 < len(blocks): loads(bi + 2)
        k("s_waitcnt lgkmcnt(0)")
        k("s_barrier")
        for t in range(3):
            tt = 3 * m + t
            if tt < 5:
                kind, r = wreg(tt, c)
                tr_frag(k, r, kind, 16, RS, 32 * t)
            else:
                tr_frag(k, 18, 'v', 16, RS, 32 * t) if False else None
        if m == 1:
            tr_frag(k, d, 'v', 16, RS, 64)
            k("s_waitcnt lgkmcnt(0)")
            k(f"ds_write_b128 v17, v[{d}:{d+3}] offset:{c*2048}")
            k(f"ds_write_b128 v17, v[{d+4}:{d+7}] offset:{c*2048+1024}")
        k("s_waitcnt lgkmcnt(0)")
        k("s_barrier")
    k("v_mov_b32 v6, v17")
    k("v_mov_b32 v4, 0x4444"); k("v_mov_b32 v5, 0xeeee")
    k("v_cmp_gt_u32 vcc, 8, v2")
    k("v_cndmask_b32 v4, v5, v4, vcc")
    k("v_lshlrev_b32 v5, 4, v1")
    k("s_lshl_b32 s24, s3, 10")
    k("v_add_u32 v7, s24, v5")
    k("s_lshl_b32 s24, s3, 9"); k("s_add_u32 s24, s24, 8192")
    k("v_lshlrev_b32 v8, 3, v1")
    k("v_add_u32 v8, s24, v8")
    k(f"s_mul_i32 s24, s3, 1536"); k(f"s_add_u32 s24, s24, {L_X}")
    k("v_lshlrev_b32 v9, 5, v2")
    k("v_lshl_add_u32 v9, v3, 3, v9")
    k("v_add_u32 v9, s24, v9")
    k("v_lshrrev_b32 v16, 2, v2")
    k("v_and_b32 v17, 3, v2")
    k("v_lshl_add_u32 v10, v3, 3, v16")
    k("v_lshlrev_b32 v10, 5, v10")
    k("v_lshl_add_u32 v10, v17, 3, v10")
    k("v_add_u32 v10, s24, v10")
    k("v_lshl_add_u32 v11, v3, 2, v16")
    k("v_lshlrev_b32 v11, 5, v11")
    k("v_lshl_add_u32 v11, v17, 3, v11")
    k("v_add_u32 v11, s24, v11")
    k(f"s_mul_i32 s24, s3, 1408"); k(f"s_add_u32 s24, s24, {L_SP}")
    k("v_mul_u32_u24 v16, 176, v2")
    k("v_add_u32 v16, s24, v16")
    k("v_lshl_add_u32 v12, v3, 5, v16")
    k("v_lshlrev_b32 v17, 4, v1")
    k(f"v_add_u32 v17, {L_DUM}, v17")
    k("v_cmp_gt_u32 vcc, 8, v2")
    k("v_cndmask_b32 v12, v17, v12, vcc")
    k("v_lshl_add_u32 v13, v3, 4, v16")
    k("v_add_u32 v13, 96, v13")
    k("v_cmp_le_u32 s[24:25], 2, v3")
    k("s_and_b64 vcc, vcc, s[24:25]")
    k("v_cndmask_b32 v13, v17, v13, vcc")
    k("v_lshrrev_b32 v16, 3, v1")
    k("v_and_b32 v17, 7, v1")
    k("v_min_u32 v18, 4, v17")
    k("v_mul_u32_u24 v14, 176, v16")
    k("v_lshl_add_u32 v14, v18, 5, v14")
    k(f"v_add_u32 v14, {L_SP}, v14")
    k("v_cmp_gt_u32 s[50:51], 5, v17")
    k("s_lshr_b32 s24, s44, 1"); k("s_lshl_b32 s24, s24, 10")
    k("s_and_b32 s25, s44, 1"); k("s_lshl_b32 s25, s25, 7"); k("s_add_u32 s24, s24, s25")
    k("v_lshlrev_b32 v15, 8, v17")
    k("v_lshl_add_u32 v15, v16, 4, v15")
    k("v_add_u32 v15, s24, v15")
    k("s_lshr_b32 s24, s44, 3"); k("s_lshl_b32 s24, s24, 10")
    k("s_and_b32 s25, s44, 3"); k("s_lshl_b32 s25, s25, 8"); k("s_add_u32 s24, s24, s25")
    k("s_lshr_b32 s25, s44, 2"); k("s_and_b32 s25, s25, 1"); k("s_lshl_b32 s25, s25, 7"); k("s_add_u32 s24, s24, s25")
    k("s_add_u32 s24, s24, 16384")
    k("v_lshlrev_b32 v18, 4, v16")
    k("v_add_u32 v18, s24, v18")
    k("v_cmp_eq_u32 vcc, 4, v17")
    k("v_cndmask_b32 v15, v15, v18, vcc")
    k(f"v_mov_b32 v18, {OOB}")
    k("v_cndmask_b32 v15, v18, v15, s[50:51]")
    k(f"s_mul_i32 s24, s3, 20480")
    k("v_add_u32 v15, s24, v15")
    if NREP_P < 4:
        k(f"s_cmp_lt_u32 s3, {NREP_P}"); k(f"s_cselect_b32 s24, 0, {OOB}")
        k("v_or_b32 v15, s24, v15")
    k("s_mul_i32 s24, s44, 384"); k("s_mul_i32 s25, s3, 96"); k("s_add_u32 s24, s24, s25")
    k("v_mul_u32_u24 v16, 12288, v2")
    k("v_add_u32 v16, s24, v16")
    k("v_lshl_add_u32 v19, v3, 4, v16")
    k("v_lshl_add_u32 v20, v3, 3, v16")
    k("v_add_u32 v20, 64, v20")
    k("v_subrev_u32 v16, 8, v2")
    k("v_mul_u32_u24 v16, 384, v16")
    k("v_add_u32 v16, s25, v16")
    k("v_lshl_add_u32 v21, v3, 4, v16")
    k("v_lshl_add_u32 v22, v3, 3, v16")
    k("v_add_u32 v22, 64, v22")
    k(f"v_mov_b32 v18, {OOB}")
    k("v_cmp_le_u32 vcc, 8, v2")
    k("v_cndmask_b32 v21, v18, v21, vcc")
    k("v_cndmask_b32 v22, v18, v22, vcc")
    m0_image(k, 20, 48)
    k("s_mov_b32 s40, 0")
    k(f"s_mov_b32 s41, {G.WS_KB}")
    k(f"s_mul_i32 s42, s44, 3072"); k(f"s_add_u32 s42, s42, {G.WS_KM}")
    k(f"s_mov_b32 s43, {WS_PB}")
    k(f"s_mov_b32 s47, {WS_MB}")
    def kx_loads():
        k(f"s_add_u32 s24, s41, {16*12288}")
        k(f"buffer_load_dwordx4 a[{KX}:{KX+3}], v19, s[8:11], s41 offen")
        k(f"buffer_load_dwordx2 a[{KX+4}:{KX+5}], v20, s[8:11], s41 offen")
        k(f"buffer_load_dwordx4 a[{KX+6}:{KX+9}], v19, s[8:11], s24 offen")
        k(f"buffer_load_dwordx2 a[{KX+10}:{KX+11}], v20, s[8:11], s24 offen")
    kx_loads()
    k("s_waitcnt lgkmcnt(0)")
    k(f"s_branch {k.ref('s_go')}")
    k.lab('s_step')
    stamp(k, 0)
    for r in range(24): k(f"v_mov_b32 v{ACC+r}, 0")
    loads_ = [f"buffer_load_dwordx4 v[48:51], v7, s[8:11], s47 offen sc1",
              f"buffer_load_dwordx4 v[52:55], v7, s[8:11], s48 offen sc1",
              f"buffer_load_dwordx2 v[56:57], v8, s[8:11], s47 offen sc1"]
    k("s_add_u32 s48, s47, 4096")
    poll(k, 's_pm', loads_, range(48, 58), 58, CFG['sl_m'], CFG['dly_m'])
    stamp(k, 1)
    k("ds_write_b128 v7, v[48:51]")
    k("ds_write_b128 v7, v[52:55] offset:4096")
    k("ds_write_b64 v8, v[56:57]")
    k("s_waitcnt lgkmcnt(0)")
    k.lab('s_go2')
    k("s_barrier")
    lg = LG(k)
    def rdA(c): lg.issue(('A', c), f"ds_read_b128 v[{AF+4*(c%5)}:{AF+4*(c%5)+3}], v5 offset:{c*1024}")
    def rdW(c):
        b = WS5 + 8 * (c % 3)
        lg.issue(('W', c), f"ds_read_b128 v[{b}:{b+3}], v6 offset:{c*2048}")
        lg.issue(('W', c), f"ds_read_b128 v[{b+4}:{b+7}], v6 offset:{c*2048+1024}")
    rdA(0); rdW(0); rdA(1); rdW(1); rdA(2); rdA(3); rdA(4)
    for c in range(10):
        a = AF + 4 * (c % 5)
        lg.wait(('A', c)) if ('A', c) in lg.q else None
        for t in range(5):
            kind, r = wreg(t, c)
            k(f"v_smfmac_f32_16x16x64_bf16 v[{ACC+4*t}:{ACC+4*t+3}], v[{a}:{a+3}], {kind}[{r}:{r+7}], v4")
            if t == 1 and c + 2 < 10: rdW(c + 2)
        if ('W', c) in lg.q: lg.wait(('W', c))
        b = WS5 + 8 * (c % 3)
        k(f"v_smfmac_f32_16x16x64_bf16 v[{ACC+20}:{ACC+23}], v[{a}:{a+3}], v[{b}:{b+7}], v4")
        if c + 5 < 10: rdA(c + 5)
    stamp(k, 2)
    T = 48
    for t in range(3):
        q = ACC + 4 * t; kk = ACC + 12 + 4 * t
        for r in range(4): k(f"v_permlane32_swap_b32 v{q+r}, v{kk+r}")
        for r in range(4): k(f"v_add_f32 v{q+r}, v{q+r}, v{kk+r}")
        k(f"v_cvt_pk_bf16_f32 v{T+2*t}, v{q}, v{q+1}")
        k(f"v_cvt_pk_bf16_f32 v{T+2*t+1}, v{q+2}, v{q+3}")
        k(f"ds_write_b64 v9, v[{T+2*t}:{T+2*t+1}] offset:{t*512}")
    XA, XB = 56, 60
    k("s_waitcnt lgkmcnt(0)")
    k(f"ds_read_b64_tr_b16 v[{XA}:{XA+1}], v10")
    k(f"ds_read_b64_tr_b16 v[{XA+2}:{XA+3}], v10 offset:128")
    k(f"ds_read_b64_tr_b16 v[{XB}:{XB+1}], v11 offset:1024")
    k("s_waitcnt lgkmcnt(0)")
    k(f"buffer_store_dwordx4 v[{XA}:{XA+3}], v21, s[8:11], s42 offen")
    k(f"buffer_store_dwordx2 v[{XB}:{XB+1}], v22, s[8:11], s42 offen")
    k("s_cmp_eq_u32 s40, 63")
    k(f"s_cbranch_scc1 {k.ref('end')}")
    SC = 64
    k(f"v_mfma_f32_16x16x32_bf16 v[{SC}:{SC+3}], a[{KX}:{KX+3}], v[{XA}:{XA+3}], 0")
    k(f"v_mfma_f32_16x16x32_bf16 v[{SC+4}:{SC+7}], a[{KX+6}:{KX+9}], v[{XA}:{XA+3}], 0")
    k(f"v_mfma_f32_16x16x32_bf16 v[{SC+8}:{SC+11}], v[{XA}:{XA+3}], v[{XA}:{XA+3}], 0")
    k(f"v_mfma_f32_16x16x16_bf16 v[{SC}:{SC+3}], a[{KX+4}:{KX+5}], v[{XB}:{XB+1}], v[{SC}:{SC+3}]")
    k(f"v_mfma_f32_16x16x16_bf16 v[{SC+4}:{SC+7}], a[{KX+10}:{KX+11}], v[{XB}:{XB+1}], v[{SC+4}:{SC+7}]")
    k(f"v_mfma_f32_16x16x16_bf16 v[{SC+8}:{SC+11}], v[{XB}:{XB+1}], v[{XB}:{XB+1}], v[{SC+8}:{SC+11}]")
    k(f"ds_write_b128 v12, v[{SC}:{SC+3}]")
    k(f"ds_write_b128 v12, v[{SC+4}:{SC+7}] offset:16")
    k(f"ds_write_b128 v13, v[{SC+8}:{SC+11}]")
    k("s_waitcnt lgkmcnt(0)")
    k("s_barrier")
    stamp(k, 3)
    P0 = 48
    for w in range(4):
        k(f"ds_read_b128 v[{P0+8*w}:{P0+8*w+3}], v14 offset:{w*1408}")
        k(f"ds_read_b128 v[{P0+8*w+4}:{P0+8*w+7}], v14 offset:{w*1408+16}")
    k("s_waitcnt lgkmcnt(4)")
    for r in range(0, 8, 2): k(f"v_pk_add_f32 v[{P0+r}:{P0+r+1}], v[{P0+r}:{P0+r+1}], v[{P0+8+r}:{P0+8+r+1}]")
    k("s_waitcnt lgkmcnt(0)")
    for r in range(0, 8, 2): k(f"v_pk_add_f32 v[{P0+16+r}:{P0+16+r+1}], v[{P0+16+r}:{P0+16+r+1}], v[{P0+24+r}:{P0+24+r+1}]")
    for r in range(0, 8, 2): k(f"v_pk_add_f32 v[{P0+r}:{P0+r+1}], v[{P0+r}:{P0+r+1}], v[{P0+16+r}:{P0+16+r+1}]")
    T0, T1 = 80, 81
    k(f"v_max3_f32 v{T0}, v{P0}, v{P0+1}, v{P0+2}")
    k(f"v_max3_f32 v{T0}, v{T0}, v{P0+3}, v{P0+4}")
    k(f"v_max3_f32 v{T0}, v{T0}, v{P0+5}, v{P0+6}")
    k(f"v_max_f32 v{T0}, v{T0}, v{P0+7}")
    k(f"v_mov_b32 v{T1}, 0xff800000")
    k(f"v_cndmask_b32 v{T0}, v{T1}, v{T0}, s[50:51]")
    for dpp in ("quad_perm:[1,0,3,2]", "quad_perm:[2,3,0,1]", "row_half_mirror"):
        k(f"v_max_f32 v{T0}, v{T0}, v{T0} {dpp} row_mask:0xf bank_mask:0xf")
    k(f"s_mov_b32 s24, {hexf(SCALE_B * LOG2E)}")
    k(f"v_mul_f32 v{T0}, s24, v{T0}")
    for r in range(8): k(f"v_fma_f32 v{P0+r}, v{P0+r}, s24, -v{T0}")
    for r in range(8): k(f"v_exp_f32 v{P0+r}, v{P0+r}")
    k(f"v_add_f32 v{T0}, v{P0}, v{P0+1}")
    k(f"v_add_f32 v{T1}, v{P0+2}, v{P0+3}")
    k(f"v_add_f32 v{T0}, v{T0}, v{P0+4}")
    k(f"v_add_f32 v{T1}, v{T1}, v{P0+5}")
    k(f"v_add_f32 v{T0}, v{T0}, v{P0+6}")
    k(f"v_add_f32 v{T1}, v{T1}, v{P0+7}")
    k(f"v_add_f32 v{T0}, v{T0}, v{T1}")
    k(f"v_cndmask_b32 v{T0}, 0, v{T0}, s[50:51]")
    for dpp in ("quad_perm:[1,0,3,2]", "quad_perm:[2,3,0,1]", "row_half_mirror"):
        k(f"v_add_f32 v{T0}, v{T0}, v{T0} {dpp} row_mask:0xf bank_mask:0xf")
    k(f"v_rcp_f32 v{T0}, v{T0}")
    for r in range(8): k(f"v_mul_f32 v{P0+r}, v{P0+r}, v{T0}")
    for q in range(4): k(f"v_cvt_pk_bf16_f32 v{P0+8+q}, v{P0+2*q}, v{P0+2*q+1}")
    for q in range(4): k(f"v_min_u32 v{P0+8+q}, -2, v{P0+8+q}")
    k(f"buffer_store_dwordx4 v[{P0+8}:{P0+11}], v15, s[8:11], s43 offen sc1")
    stamp(k, 4)
    stamp_out(k, 5, 0, 0)
    k("s_add_u32 s40, s40, 1")
    k(f"s_add_u32 s41, s41, {32*12288}")
    k(f"s_add_u32 s42, s42, {32*3072}")
    k(f"s_add_u32 s43, s43, {PB_STEP}")
    k(f"s_add_u32 s47, s47, {MB_STEP}")
    kx_loads()
    k(f"s_branch {k.ref('s_step')}")
    k.lab('s_go')
    for r in range(24): k(f"v_mov_b32 v{ACC+r}, 0")
    k("s_waitcnt vmcnt(0)")
    k(f"s_branch {k.ref('s_go2')}")

def role_V(k):
    L_M, L_V, L_WO, L_ST = 0, 10240, 16384, 16384 + 73728
    RS1, RS2 = 400, 656
    MA, VACC, VA, STG = 16, 56, 68, 80
    def wv(t, c): return 'a', t * 80 + c * 8
    def wo(t, c):
        i = t * 3 + c
        if i < 2: return 'a', 240 + 8 * i
        return 'v', 104 + 8 * (i - 2)
    k("s_sub_u32 s44, s2, 32")
    k.ptr(KA_WV, 6); k.ptr(KA_WO, 24)
    k("s_waitcnt lgkmcnt(0)")
    k.srd(12, 6, D * HD * 2); k.srd(16, 24, D * HD * 2)
    GO, LO, DAT = 4, 10, 24
    stage_offsets(k, 6, 24, HD * 2, RS1, L_ST, GO, LO, 16)
    tr_base(k, 16, RS1, L_ST, 17)
    k("s_mul_i32 s24, s3, 96")
    k("v_add_u32 v16, s24, v16")
    k(f"s_mul_i32 s45, s44, 384")
    def loads(c):
        d = DAT + 24 * (c % 3)
        k(f"s_add_u32 s46, s45, {c * 64 * HD * 2}")
        for i in range(6):
            k(f"buffer_load_dwordx4 v[{d+4*i}:{d+4*i+3}], v{GO+i}, s[12:15], s46 offen")
    loads(0); loads(1)
    for c in range(10):
        d = DAT + 24 * (c % 3)
        k(f"s_waitcnt vmcnt({6 if c + 1 < 10 else 0})")
        for i in range(6): k(f"ds_write_b128 v{LO+i}, v[{d+4*i}:{d+4*i+3}]")
        if c + 2 < 10: loads(c + 2)
        k("s_waitcnt lgkmcnt(0)")
        k("s_barrier")
        for t in range(3):
            kind, r = wv(t, c)
            tr_frag(k, r, kind, 16, RS1, 32 * t)
        k("s_waitcnt lgkmcnt(0)")
        k("s_barrier")
    GO, LO, DAT = 4, 14, 24
    stage_offsets(k, 10, 40, 1280, RS2, L_ST, GO, LO, 64)
    tr_base(k, 72, RS2, L_ST, 64)
    k("s_and_b32 s24, s3, 1"); k("s_mul_i32 s24, s24, 320")
    k("v_add_u32 v72, s24, v72")
    k("v_lshlrev_b32 v73, 4, v1")
    k(f"s_mul_i32 s24, s3, 18432"); k(f"s_add_u32 s24, s24, {L_WO}")
    k("v_add_u32 v73, s24, v73")
    k(f"s_mul_i32 s45, s44, {192*1280}")
    for c in range(3):
        for hf in range(2):
            k(f"s_add_u32 s46, s45, {c*64*1280 + hf*640}")
            for i in range(10):
                k(f"buffer_load_dwordx4 v[{DAT+4*i}:{DAT+4*i+3}], v{GO+i}, s[16:19], s46 offen")
            k("s_waitcnt vmcnt(0)")
            for i in range(10): k(f"ds_write_b128 v{LO+i}, v[{DAT+4*i}:{DAT+4*i+3}]")
            k("s_waitcnt lgkmcnt(0)")
            k("s_barrier")
            l = k.new('wo')
            k("s_lshr_b32 s24, s3, 1")
            k(f"s_cmp_eq_u32 s24, {hf}")
            k(f"s_cbranch_scc0 {k.ref(l)}")
            for t in range(10):
                if t < 7:
                    kind, r = wo(t, c)
                    tr_frag(k, r, kind, 72, RS2, 32 * t)
                else:
                    tr_frag(k, 64, 'v', 72, RS2, 32 * t)
                    k("s_waitcnt lgkmcnt(0)")
                    o = ((t - 7) * 3 + c) * 2048
                    k(f"ds_write_b128 v73, v[64:67] offset:{o}")
                    k(f"ds_write_b128 v73, v[68:71] offset:{o+1024}")
                    k("s_waitcnt lgkmcnt(0)")
            k("s_waitcnt lgkmcnt(0)")
            k.lab(l)
            k("s_barrier")
    k("v_mov_b32 v6, v73")
    k("v_mov_b32 v4, 0x4444"); k("v_mov_b32 v5, 0xeeee")
    k("v_cmp_gt_u32 vcc, 8, v2")
    k("v_cndmask_b32 v4, v5, v4, vcc")
    k("v_lshlrev_b32 v5, 4, v1")
    k("s_lshl_b32 s24, s3, 10")
    k("v_add_u32 v7, s24, v5")
    k("s_lshl_b32 s24, s3, 9"); k("s_add_u32 s24, s24, 8192")
    k("v_lshlrev_b32 v8, 3, v1")
    k("v_add_u32 v8, s24, v8")
    k("v_and_b32 v64, 7, v2"); k("v_lshlrev_b32 v9, 5, v64")
    k("v_lshrrev_b32 v64, 3, v2"); k("v_lshl_add_u32 v9, v64, 4, v9")
    k("v_and_b32 v64, 1, v3"); k("v_lshl_add_u32 v9, v64, 3, v9")
    k(f"s_mul_i32 s24, s3, 768"); k(f"s_add_u32 s24, s24, {L_V}")
    k("v_add_u32 v9, s24, v9")
    k("v_lshrrev_b32 v65, 1, v3")
    k("v_lshl_add_u32 v10, v65, 8, v9")
    k("v_lshrrev_b32 v64, 2, v2"); k("v_lshlrev_b32 v11, 5, v64")
    k("v_and_b32 v64, 3, v2"); k("v_lshl_add_u32 v11, v64, 3, v11")
    k("v_lshl_add_u32 v11, v3, 8, v11")
    k(f"v_add_u32 v11, {L_V}, v11")
    k("s_mul_i32 s24, s44, 192"); k("s_mul_i32 s25, s3, 48"); k("s_add_u32 s24, s24, s25"); k("s_lshl_b32 s24, s24, 4")
    k("v_lshlrev_b32 v12, 4, v2")
    k("v_and_b32 v64, 1, v3"); k("v_lshl_add_u32 v12, v64, 3, v12")
    k("v_add_u32 v12, s24, v12")
    k("v_lshl_add_u32 v13, v65, 8, v12")
    k(f"v_mov_b32 v64, {OOB}")
    k("v_cmp_gt_u32 vcc, 2, v3")
    k("v_cndmask_b32 v12, v64, v12, vcc")
    k("s_mul_i32 s24, s3, 10"); k("s_lshl_b32 s24, s24, 13"); k("s_lshl_b32 s25, s44, 8"); k("s_add_u32 s24, s24, s25")
    k("v_lshlrev_b32 v14, 13, v3")
    k("v_lshl_add_u32 v14, v2, 4, v14")
    k("v_add_u32 v14, s24, v14")
    k("v_lshrrev_b32 v64, 1, v3")
    k("v_lshlrev_b32 v15, 13, v64")
    k("v_lshl_add_u32 v15, v2, 4, v15")
    k("v_add_u32 v15, s24, v15")
    k(f"v_add_u32 v15, {8*8192}, v15")
    k("v_and_b32 v64, 1, v3")
    k("v_cmp_eq_u32 vcc, 0, v64")
    k(f"v_mov_b32 v64, {OOB}")
    k("v_cndmask_b32 v15, v64, v15, vcc")
    m0_image(k, 20, 64)
    k("s_mov_b32 s40, 0")
    k(f"s_mov_b32 s42, {G.WS_VMT}")
    k(f"s_mov_b32 s43, {WS_VOM}")
    k(f"s_mov_b32 s47, {WS_MB}")
    k("s_waitcnt lgkmcnt(0)")
    k(f"s_branch {k.ref('v_go2')}")
    k.lab('v_step')
    stamp(k, 0)
    loads_ = [f"buffer_load_dwordx4 v[16:19], v7, s[8:11], s47 offen sc1",
              f"buffer_load_dwordx4 v[20:23], v7, s[8:11], s48 offen sc1",
              f"buffer_load_dwordx2 v[24:25], v8, s[8:11], s47 offen sc1"]
    k("s_add_u32 s48, s47, 4096")
    poll(k, 'v_pm', loads_, range(16, 26), 26, CFG['sl_m'], CFG['dly_m'])
    stamp(k, 1)
    k("ds_write_b128 v7, v[16:19]")
    k("ds_write_b128 v7, v[20:23] offset:4096")
    k("ds_write_b64 v8, v[24:25]")
    k("s_waitcnt lgkmcnt(0)")
    k.lab('v_go2')
    k("s_barrier")
    lg = LG(k)
    for c in range(10): lg.issue(('A', c), f"ds_read_b128 v[{MA+4*c}:{MA+4*c+3}], v5 offset:{c*1024}")
    for r in range(12): k(f"v_mov_b32 v{VACC+r}, 0")
    for c in range(10):
        lg.wait(('A', c))
        for t in range(3):
            kind, r = wv(t, c)
            k(f"v_smfmac_f32_16x16x64_bf16 v[{VACC+4*t}:{VACC+4*t+3}], v[{MA+4*c}:{MA+4*c+3}], {kind}[{r}:{r+7}], v4")
    def rdWo(t, c, slot):
        b = STG + 8 * slot; o = ((t - 7) * 3 + c) * 2048
        lg.issue(('W', t, c), f"ds_read_b128 v[{b}:{b+3}], v6 offset:{o}")
        lg.issue(('W', t, c), f"ds_read_b128 v[{b+4}:{b+7}], v6 offset:{o+1024}")
    for c in range(3): rdWo(7, c, c)
    stamp(k, 2)
    for r in range(40): k(f"v_mov_b32 v{MA+r}, 0")
    for r in range(4): k(f"v_permlane32_swap_b32 v{VACC+r}, v{VACC+4+r}")
    for r in range(4): k(f"v_add_f32 v{VACC+r}, v{VACC+r}, v{VACC+4+r}")
    k(f"v_cvt_pk_bf16_f32 v{VA}, v{VACC}, v{VACC+1}")
    k(f"v_cvt_pk_bf16_f32 v{VA+1}, v{VACC+2}, v{VACC+3}")
    for r in range(4): k(f"v_mov_b32 v{VACC+4+r}, v{VACC+8+r}")
    for r in range(4): k(f"v_permlane32_swap_b32 v{VACC+8+r}, v{VACC+4+r}")
    for r in range(4): k(f"v_add_f32 v{VACC+8+r}, v{VACC+8+r}, v{VACC+4+r}")
    k(f"v_cvt_pk_bf16_f32 v{VA+2}, v{VACC+8}, v{VACC+9}")
    k(f"v_cvt_pk_bf16_f32 v{VA+3}, v{VACC+10}, v{VACC+11}")
    lg.issue('x', f"ds_write_b64 v10, v[{VA}:{VA+1}]")
    lg.issue('x', f"ds_write_b64 v9, v[{VA+2}:{VA+3}] offset:512")
    k(f"buffer_store_dwordx2 v[{VA}:{VA+1}], v13, s[8:11], s42 offen")
    k(f"buffer_store_dwordx2 v[{VA+2}:{VA+3}], v12, s[8:11], s42 offen offset:512")
    k("s_cmp_eq_u32 s40, 63")
    k(f"s_cbranch_scc1 {k.ref('end')}")
    lg.all()
    k("s_barrier")
    for c in range(3):
        lg.issue(('V', c), f"ds_read_b64_tr_b16 v[{VA+4*c}:{VA+4*c+1}], v11 offset:{c*1024}")
        lg.issue(('V', c), f"ds_read_b64_tr_b16 v[{VA+4*c+2}:{VA+4*c+3}], v11 offset:{c*1024+128}")
    stamp(k, 3)
    acc = lambda t: MA + 4 * t
    def mm(t, c, B):
        k(f"v_smfmac_f32_16x16x64_bf16 v[{acc(t)}:{acc(t)+3}], v[{VA+4*c}:{VA+4*c+3}], {B}, v4")
    def B_reg(t, c):
        kind, r = wo(t, c); return f"{kind}[{r}:{r+7}]"
    OUT = 56
    def epi(T, o, which):
        L = []
        t0, t1, t2, t3 = T
        for (x, y) in ((t0, t2), (t1, t3)):
            for r in range(4): L.append(f"v_permlane32_swap_b32 v{acc(x)+r}, v{acc(y)+r}")
            for r in range(4): L.append(f"v_add_f32 v{acc(x)+r}, v{acc(x)+r}, v{acc(y)+r}")
        L.append(f"v_cvt_pk_bf16_f32 v{o}, v{acc(t0)}, v{acc(t0)+1}")
        L.append(f"v_cvt_pk_bf16_f32 v{o+1}, v{acc(t0)+2}, v{acc(t0)+3}")
        L.append(f"v_cvt_pk_bf16_f32 v{o+2}, v{acc(t1)}, v{acc(t1)+1}")
        L.append(f"v_cvt_pk_bf16_f32 v{o+3}, v{acc(t1)+2}, v{acc(t1)+3}")
        L.append(f"v_permlane16_swap_b32 v{o}, v{o+2}")
        L.append(f"v_permlane16_swap_b32 v{o+1}, v{o+3}")
        for r in range(4): L.append(f"v_min_u32 v{o+r}, -2, v{o+r}")
        return L
    lg.wait(('V', 0))
    for c in range(3):
        if c: lg.wait(('V', c))
        for t in range(4): mm(t, c, B_reg(t, c))
    for c in range(3):
        for t in (4, 5, 6): mm(t, c, B_reg(t, c))
        mm(7, c, f"v[{STG+8*c}:{STG+8*c+7}]")
        rdWo(8, c, c)
    for s_ in epi([0, 1, 2, 3], OUT, 0): k(s_)
    k(f"buffer_store_dwordx4 v[{OUT}:{OUT+3}], v14, s[8:11], s43 offen sc1")
    for c in range(3):
        lg.wait(('W', 8, c))
        mm(8, c, f"v[{STG+8*c}:{STG+8*c+7}]")
        rdWo(9, c, c)
    for s_ in epi([4, 5, 6, 7], OUT + 4, 1): k(s_)
    k("s_add_u32 s49, s43, 32768")
    k(f"buffer_store_dwordx4 v[{OUT+4}:{OUT+7}], v14, s[8:11], s49 offen sc1")
    for c in range(3):
        lg.wait(('W', 9, c))
        mm(9, c, f"v[{STG+8*c}:{STG+8*c+7}]")
    o = OUT + 8
    for r in range(4): k(f"v_permlane32_swap_b32 v{acc(8)+r}, v{acc(9)+r}")
    for r in range(4): k(f"v_add_f32 v{acc(8)+r}, v{acc(8)+r}, v{acc(9)+r}")
    k(f"v_cvt_pk_bf16_f32 v{o}, v{acc(8)}, v{acc(8)+1}")
    k(f"v_cvt_pk_bf16_f32 v{o+1}, v{acc(8)+2}, v{acc(8)+3}")
    k(f"v_mov_b32 v{o+2}, v{o}")
    k(f"v_mov_b32 v{o+3}, v{o+1}")
    k(f"v_permlane16_swap_b32 v{o}, v{o+2}")
    k(f"v_permlane16_swap_b32 v{o+1}, v{o+3}")
    for r in range(4): k(f"v_min_u32 v{o+r}, -2, v{o+r}")
    k(f"buffer_store_dwordx4 v[{o}:{o+3}], v15, s[8:11], s43 offen sc1")
    stamp(k, 4)
    stamp_out(k, 5, 32, 1)
    k("s_add_u32 s40, s40, 1")
    k(f"s_add_u32 s42, s42, {6144*16}")
    k(f"s_add_u32 s43, s43, {VOM_STEP}")
    k(f"s_add_u32 s47, s47, {MB_STEP}")
    k(f"s_branch {k.ref('v_step')}")

def role_R(k):
    BX, PX, PM, VM, A1, A2 = 16, 48, 64, 68, 76, 80
    L_R = 0
    k("s_sub_u32 s44, s2, 64")
    k("v_lshlrev_b32 v5, 4, v1")
    k("s_lshl_b32 s24, s44, 15"); k("s_lshl_b32 s25, s3, 13"); k("s_add_u32 s24, s24, s25")
    k("v_add_u32 v6, s24, v5")
    k("v_add_u32 v7, 4096, v6")
    k("s_lshl_b32 s24, s3, 12")
    k("v_add_u32 v8, s24, v5")
    k("s_lshl_b32 s24, s3, 10"); k("s_add_u32 s24, s24, 16384")
    k("v_add_u32 v9, s24, v5")
    k("s_lshl_b32 s24, s44, 13"); k("s_lshl_b32 s25, s3, 11"); k("s_add_u32 s24, s24, s25")
    k("v_add_u32 v10, s24, v5")
    k("v_and_b32 v16, 7, v2"); k("v_mul_u32_u24 v11, 80, v16")
    k("v_lshl_add_u32 v11, v3, 4, v11")
    k("s_mul_i32 s24, s3, 640")
    k("v_add_u32 v11, s24, v11")
    k("v_add_u32 v16, 8192, v5")
    k("v_cmp_gt_u32 vcc, 8, v2")
    k("v_cndmask_b32 v11, v16, v11, vcc")
    k("v_and_b32 v16, 7, v2"); k("v_mul_u32_u24 v12, 80, v16")
    k("v_lshrrev_b32 v16, 3, v2"); k("v_lshl_add_u32 v12, v16, 5, v12")
    k("v_mul_u32_u24 v13, 10240, v3")
    k("v_lshl_add_u32 v13, v2, 4, v13")
    k("s_lshl_b32 s24, s44, 8")
    k("v_add_u32 v13, s24, v13")
    if NREP_M < 4:
        k(f"v_mov_b32 v16, {OOB}")
        k(f"v_cmp_gt_u32 vcc, {NREP_M}, v3")
        k("v_cndmask_b32 v13, v16, v13, vcc")
    k("v_cmp_le_u32 s[50:51], 8, v2")
    k("s_mov_b32 s40, 0")
    k(f"s_mov_b32 s41, {WS_VOX}")
    k(f"s_mov_b32 s43, {WS_PB}")
    k(f"s_mov_b32 s42, {WS_VOM}")
    k(f"s_mov_b32 s47, {WS_MB + MB_STEP}")
    k("s_and_b32 s24, s44, 3"); k("s_mul_i32 s24, s24, 20480"); k("s_add_u32 s43, s43, s24") if NREP_P == 4 else None
    k.lab('r_step')
    stamp(k, 0)
    for q in range(4):
        k(f"buffer_load_dwordx4 v[{BX+4*q}:{BX+4*q+3}], v6, s[8:11], s41 offen offset:{q*1024}")
    for q in range(4):
        k(f"buffer_load_dwordx4 v[{BX+16+4*q}:{BX+16+4*q+3}], v7, s[8:11], s41 offen offset:{q*1024}")
    loads_ = [f"buffer_load_dwordx4 v[{PX+4*q}:{PX+4*q+3}], v8, s[8:11], s43 offen offset:{q*1024} sc1" for q in range(4)]
    loads_ += [f"buffer_load_dwordx4 v[{PM}:{PM+3}], v9, s[8:11], s43 offen sc1"]
    loads_ += [f"buffer_load_dwordx4 v[{VM+4*q}:{VM+4*q+3}], v10, s[8:11], s42 offen offset:{q*1024} sc1" for q in range(2)]
    poll(k, 'r_p', loads_, range(PX, VM + 8), 84, CFG['sl_p'], CFG['dly_p'])
    stamp(k, 1)
    k(f"v_mfma_f32_16x16x32_bf16 v[{A1}:{A1+3}], v[{VM}:{VM+3}], v[{PM}:{PM+3}], 0")
    k(f"v_mfma_f32_16x16x32_bf16 v[{A2}:{A2+3}], v[{VM+4}:{VM+7}], v[{PM}:{PM+3}], 0")
    for q in range(4):
        k(f"v_mfma_f32_16x16x32_bf16 v[{A1}:{A1+3}], v[{BX+8*q}:{BX+8*q+3}], v[{PX+4*q}:{PX+4*q+3}], v[{A1}:{A1+3}]")
        k(f"v_mfma_f32_16x16x32_bf16 v[{A2}:{A2+3}], v[{BX+8*q+4}:{BX+8*q+7}], v[{PX+4*q}:{PX+4*q+3}], v[{A2}:{A2+3}]")
    for r in range(4): k(f"v_cndmask_b32 v{A1+r}, v{A1+r}, v{A2+r}, s[50:51]")
    for r in range(4): k(f"v_add_f32 v{A1+r}, v{A1+r}, v{A1+r} row_ror:8 row_mask:0xf bank_mask:0xf")
    k("s_and_b32 s24, s40, 1"); k("s_mul_i32 s24, s24, 2560")
    k("v_add_u32 v14, s24, v11")
    k(f"ds_write_b128 v14, v[{A1}:{A1+3}]")
    k("v_add_u32 v15, s24, v12")
    k("s_waitcnt lgkmcnt(0)")
    k("s_barrier")
    stamp(k, 2)
    l = k.new('np')
    k("s_cmp_eq_u32 s3, 0")
    k(f"s_cbranch_scc0 {k.ref(l)}")
    Q0 = 48
    for w in range(4):
        k(f"ds_read_b128 v[{Q0+8*w}:{Q0+8*w+3}], v15 offset:{w*640}")
        k(f"ds_read_b128 v[{Q0+8*w+4}:{Q0+8*w+7}], v15 offset:{w*640+16}")
    k("s_waitcnt lgkmcnt(4)")
    for r in range(0, 8, 2): k(f"v_pk_add_f32 v[{Q0+r}:{Q0+r+1}], v[{Q0+r}:{Q0+r+1}], v[{Q0+8+r}:{Q0+8+r+1}]")
    k("s_waitcnt lgkmcnt(0)")
    for r in range(0, 8, 2): k(f"v_pk_add_f32 v[{Q0+16+r}:{Q0+16+r+1}], v[{Q0+16+r}:{Q0+16+r+1}], v[{Q0+24+r}:{Q0+24+r+1}]")
    for r in range(0, 8, 2): k(f"v_pk_add_f32 v[{Q0+r}:{Q0+r+1}], v[{Q0+r}:{Q0+r+1}], v[{Q0+16+r}:{Q0+16+r+1}]")
    for q in range(4): k(f"v_cvt_pk_bf16_f32 v{Q0+8+q}, v{Q0+2*q}, v{Q0+2*q+1}")
    for q in range(4): k(f"v_min_u32 v{Q0+8+q}, -2, v{Q0+8+q}")
    k(f"buffer_store_dwordx4 v[{Q0+8}:{Q0+11}], v13, s[8:11], s47 offen sc1")
    k.lab(l)
    stamp(k, 3)
    stamp_out(k, 4, 64, 2)
    k("s_add_u32 s40, s40, 1")
    k(f"s_add_u32 s41, s41, {VOX_SEG}")
    k(f"s_add_u32 s42, s42, {VOM_STEP}")
    k(f"s_add_u32 s43, s43, {PB_STEP}")
    k(f"s_add_u32 s47, s47, {MB_STEP}")
    k("s_cmp_lt_u32 s40, 63")
    k(f"s_cbranch_scc1 {k.ref('r_step')}")
    k(f"s_branch {k.ref('end')}")

def k_chainz(name):
    k = K(name, vgpr=256, sgpr=96, agpr=256)
    k("s_cmp_ge_u32 s2, 104")
    k(f"s_cbranch_scc1 {k.ref('end')}")
    k.ptr(KA_WS, 4); k.ptr(KA_MEM0, 6)
    k("v_and_b32 v1, 63, v0")
    k("v_lshrrev_b32 v4, 6, v0")
    k("v_and_b32 v2, 15, v1")
    k("v_lshrrev_b32 v3, 4, v1")
    k("v_readfirstlane_b32 s3, v4")
    k(f"s_mov_b32 s60, {SPIN_MAX}")
    k("s_waitcnt lgkmcnt(0)")
    k.srd(8, 4, WS_BYTES)
    k.srd(20, 6, 8 * 640 * 2)
    k("s_cmp_ge_u32 s2, 64")
    k(f"s_cbranch_scc1 {k.ref('roleR')}")
    k("s_cmp_ge_u32 s2, 32")
    k(f"s_cbranch_scc1 {k.ref('roleV')}")
    role_S(k, 0)
    k.lab('roleV')
    role_V(k)
    k.lab('roleR')
    role_R(k)
    k.lab('end')
    return k, 104, 135168

def k_clear(name, off, nbytes):
    k = K(name, vgpr=16, sgpr=24)
    n16 = nbytes // 16
    per = 8
    nwg = -(-n16 // (256 * per))
    k(f"s_cmp_ge_u32 s2, {nwg}")
    k(f"s_cbranch_scc1 {k.ref('end')}")
    k.ptr(KA_WS, 4)
    k("s_waitcnt lgkmcnt(0)")
    k(f"s_add_u32 s8, s4, {off}"); k("s_addc_u32 s9, s5, 0"); k(f"s_mov_b32 s10, {nbytes}"); k("s_mov_b32 s11, 0x00020000")
    k(f"s_mul_i32 s12, s2, {256*per*16}")
    k("v_lshlrev_b32 v1, 4, v0")
    k("v_add_u32 v1, s12, v1")
    for i in range(4): k(f"v_mov_b32 v{4+i}, -1")
    for i in range(per):
        k(f"s_mov_b32 s13, {i*4096}")
        k(f"buffer_store_dwordx4 v[4:7], v1, s[8:11], s13 offen")
    k.lab('end')
    return k, nwg

def k_vvo(name):
    k = K(name, vgpr=256, sgpr=64, agpr=192)
    XF, WF = 16, 48
    VF = 144
    k("s_cmp_ge_u32 s2, 256")
    k(f"s_cbranch_scc1 {k.ref('end')}")
    k.ptr(KA_WS, 4)
    k("v_and_b32 v1, 63, v0")
    k("v_lshrrev_b32 v4, 6, v0")
    k("v_and_b32 v2, 15, v1")
    k("v_lshrrev_b32 v3, 4, v1")
    k("v_readfirstlane_b32 s3, v4")
    k("s_and_b32 s20, s2, 31")
    k("s_lshr_b32 s21, s2, 5")
    k("s_waitcnt lgkmcnt(0)")
    k.srd(8, 4, WS_BYTES)
    k("s_lshl_b32 s22, s21, 8"); k("s_lshl_b32 s23, s3, 6"); k("s_add_u32 s22, s22, s23")
    k("v_add_u32 v5, s22, v2")
    k("v_mul_u32_u24 v5, 1280, v5")
    k("v_lshl_add_u32 v5, v3, 4, v5")
    k(f"v_add_u32 v5, {G.WS_XN}, v5")
    for tt in range(4): k(f"v_add_u32 v{8+tt}, {tt*16*1280}, v5")
    k("v_lshrrev_b32 v5, 3, v2")
    k("v_mul_u32_u24 v6, 20480, v5")
    k("v_lshrrev_b32 v5, 2, v2"); k("v_and_b32 v5, 1, v5")
    k("v_lshlrev_b32 v5, 3, v5")
    k("v_and_b32 v7, 3, v2")
    k("v_add_u32 v5, v5, v7")
    k("v_lshl_add_u32 v5, v3, 4, v5")
    k("v_lshl_add_u32 v6, v5, 4, v6")
    k(f"s_mul_i32 s24, s20, {12*20480}"); k(f"s_add_u32 s24, s24, {G.WS_PV}")
    for m in range(6): k(f"s_add_u32 s{32+m}, s24, {m*40960}")
    k("s_mov_b32 s25, 0")
    for i in range(192): k(f"v_accvgpr_write_b32 a{i}, 0")
    def loads(st):
        for tt in range(4):
            r = XF + 16 * st + 4 * tt
            k(f"buffer_load_dwordx4 v[{r}:{r+3}], v{8+tt}, s[8:11], s25 offen")
        for m in range(6):
            for b in range(2):
                r = WF + 48 * st + (2 * m + b) * 4
                k(f"buffer_load_dwordx4 v[{r}:{r+3}], v6, s[8:11], s{32+m} offen offset:{64*b}")
    def adv():
        k("s_add_u32 s25, s25, 64")
        for m in range(6): k(f"s_add_u32 s{32+m}, s{32+m}, 1024")
    def mf(st):
        for et in range(12):
            for tt in range(4):
                a = (et * 4 + tt) * 4
                w = WF + 48 * st + 4 * et; x = XF + 16 * st + 4 * tt
                k(f"v_mfma_f32_16x16x32_bf16 a[{a}:{a+3}], v[{w}:{w+3}], v[{x}:{x+3}], a[{a}:{a+3}]")
    loads(0)
    k("s_mov_b32 s28, 10")
    k.lab('l1')
    adv(); loads(1)
    k("s_waitcnt vmcnt(16)")
    mf(0)
    k("s_sub_u32 s28, s28, 1")
    k("s_cmp_eq_u32 s28, 0")
    k(f"s_cbranch_scc1 {k.ref('l1e')}")
    adv(); loads(0)
    k("s_waitcnt vmcnt(16)")
    mf(1)
    k(f"s_branch {k.ref('l1')}")
    k.lab('l1e')
    k("s_waitcnt vmcnt(0)")
    mf(1)
    for m in range(6):
        for tt in range(4):
            o = VF + (m * 4 + tt) * 4
            for b in range(2):
                a = ((2 * m + b) * 4 + tt) * 4
                for r in range(4): k(f"v_accvgpr_read_b32 v{16+r}, a{a+r}")
                k(f"v_cvt_pk_bf16_f32 v{o+2*b}, v16, v17")
                k(f"v_cvt_pk_bf16_f32 v{o+2*b+1}, v18, v19")
    PF, AC, OU = 16, 64, 96
    k("v_lshlrev_b32 v5, 4, v1")
    k(f"s_mul_i32 s24, s20, {6*1024}"); k(f"s_add_u32 s24, s24, {G.WS_PO}")
    k("s_lshl_b32 s26, s21, 3"); k("s_lshl_b32 s27, s3, 1"); k("s_add_u32 s26, s26, s27")
    k(f"s_mul_i32 s26, s26, {VOX_SEG}")
    k("s_lshl_b32 s27, s20, 10"); k("s_add_u32 s26, s26, s27"); k(f"s_add_u32 s26, s26, {WS_VOX}")
    k(f"s_add_u32 s27, s26, {VOX_SEG}")
    def ld2(st):
        k("s_add_u32 s29, s24, 4096")
        for m in range(6):
            r = PF + 24 * st + 4 * m
            k(f"buffer_load_dwordx4 v[{r}:{r+3}], v5, s[8:11], s{24 if m < 4 else 29} offen offset:{(m % 4)*1024}")
        k(f"s_add_u32 s24, s24, {192*1024}")
    def mf2(st):
        for m in range(6):
            for tt in range(4):
                a = AC + 16 * st + 4 * tt
                v = VF + (m * 4 + tt) * 4; w = PF + 24 * st + 4 * m
                c = f"v[{a}:{a+3}]" if m else "0"
                k(f"v_mfma_f32_16x16x32_bf16 v[{a}:{a+3}], v[{v}:{v+3}], v[{w}:{w+3}], {c}")
    def out2(st):
        for sg in range(2):
            o = OU + 4 * sg
            for b in range(2):
                a = AC + 16 * st + 4 * (2 * sg + b)
                k(f"v_cvt_pk_bf16_f32 v{o+2*b}, v{a}, v{a+1}")
                k(f"v_cvt_pk_bf16_f32 v{o+2*b+1}, v{a+2}, v{a+3}")
            k(f"buffer_store_dwordx4 v[{o}:{o+3}], v5, s[8:11], s{26+sg} offen")
        k("s_add_u32 s26, s26, 32768"); k("s_add_u32 s27, s27, 32768")
    ld2(0)
    k("s_mov_b32 s28, 20")
    k.lab('l2')
    ld2(1)
    k("s_waitcnt vmcnt(6)")
    mf2(0)
    out2(0)
    k("s_sub_u32 s28, s28, 1")
    k("s_cmp_eq_u32 s28, 0")
    k(f"s_cbranch_scc1 {k.ref('l2e')}")
    ld2(0)
    k("s_waitcnt vmcnt(6)")
    mf2(1)
    out2(1)
    k(f"s_branch {k.ref('l2')}")
    k.lab('l2e')
    k("s_waitcnt vmcnt(2)")
    mf2(1)
    out2(1)
    k.lab('end')
    return k, 256

def build():
    kernels = []; launches = []
    def add(k, nwg, lds=0, block=256):
        if k not in kernels: kernels.append(k)
        launches.append((k.name, nwg, block, lds))
    kp, n = G.k_pack(); add(kp, n)
    kl, n = G.k_ln("ln_a1", KA_AX, 0); add(kl, n)
    kg, n, lds = G.k_gemm("qkv_a", S, 1920, D, G.WS_XN, D * 2, G.WS_PQKVA, 4, 5, dict(kind='qkvA')); add(kg, n, lds); n_qkva, lds_qkva = n, lds
    kz, n = G.k_kvz("kvz_a1", 0); add(kz, n)
    ka, n, lds = G.k_attn_a("attn_a1", 0); add(ka, n, lds)
    kg2, n, lds = G.k_gemm("wo_a1", S, D, D, G.WS_OA, D * 2, G.WS_PWOA, 2, 5, dict(kind='res', res_slot=KA_AX, res_off=0, out_off=G.WS_X1, res_in=True)); add(kg2, n, lds)
    kl2, n = G.k_ln("ln_b1", KA_WS, G.WS_X1); add(kl2, n)
    kg3, n, lds = G.k_gemm("qkv_b", S, 3 * HD, D, G.WS_XN, D * 2, G.WS_PQ, 8, 6, dict(kind='qkvB')); add(kg3, n, lds); n_qkvb, lds_qkvb = n, lds
    kv, nv = k_vvo("vvo"); add(kv, nv)
    kcl, ncl = k_clear("clr", WS_SYNC, SYNC_END - WS_SYNC); add(kcl, ncl)
    kc, n, lds = k_chainz("chainz"); add(kc, n, lds); nc, ldsc = n, lds
    kb, n = G.k_attn_b("attn_b"); add(kb, n)
    kg4, n, lds = G.k_gemm("wo_b1", S, D, HD, G.WS_OB, HD * 2, G.WS_PO, 4, 5, dict(kind='res', res_off=G.WS_X1, out_off=G.WS_X1), ksplit=4); add(kg4, n, lds)
    kl3, n = G.k_ln("ln_a2", KA_WS, G.WS_X1); add(kl3, n)
    add(kg, n_qkva, lds_qkva)
    kz2, n = G.k_kvz("kvz_a2", 1); add(kz2, n)
    ka2, n, lds = G.k_attn_a("attn_a2", 1); add(ka2, n, lds)
    kg5, n, lds = G.k_gemm("wo_a2", S, D, D, G.WS_OA, D * 2, G.WS_PWOA, 2, 5, dict(kind='res', res_off=G.WS_X1, out_off=G.WS_X1)); add(kg5, n, lds)
    add(kl2, S // 4)
    add(kg3, n_qkvb, lds_qkvb)
    add(kv, nv)
    add(kcl, ncl)
    add(kc, nc, ldsc)
    add(kb, NSEG * 8)
    kg6, n, lds = G.k_gemm("wo_b2", S, D, HD, G.WS_OB, HD * 2, G.WS_PO, 4, 5, dict(kind='res', res_off=G.WS_X1, to_out=True), ksplit=4); add(kg6, n, lds)
    head = ["; generated by gen2.py (my own hand-written generator); kernarg: 13 pointers"]
    for name, nwg, block, lds in launches:
        head.append(f"; @launch kernel={name} grid=({nwg},1,1) block=({block},1,1) lds={lds}")
    head.append('.amdgcn_target "amdgcn-amd-amdhsa--gfx950"')
    return "\n".join(head) + "\n" + "\n".join(k.text() for k in kernels) + "\n"

if __name__ == "__main__":
    out = "z.s"
    for a in sys.argv[1:]:
        if a == "stamp": CFG['stamp'] = True
        elif a.endswith(".s"): out = a
        elif "=" in a:
            kk, v = a.split("="); CFG[kk] = int(v)
    open(out, "w").write(build())
    print("written", out)
```

```python
import sys
import gen as G
from asmlib import K, vr, ar, sr, magic
from gen import hexf, LOG2E

NAME = G.NAME
S, D, H, DH, HD, NSEG = 2048, 640, 32, 192, 6144, 64
KA_AX, KA_WQKV, KA_WOA, KA_BX, KA_MEM0, KA_WQ, KA_WK, KA_WV, KA_WO, KA_SEG, KA_OUT, KA_DBG, KA_WS = range(13)
WS_BYTES = 268435456

G.WS_QB  = 0x04000000
G.WS_KB  = 0x05800000
WS_SYNC  = 0x07000000
WS_VOM   = WS_SYNC
VOM_STEP = 40 * 32 * 256
WS_MB    = WS_VOM + 64 * VOM_STEP
MB_STEP  = 4 * 10240
WS_PB    = WS_MB + 65 * MB_STEP
PB_STEP  = 4 * 20480
WS_PX    = WS_PB + 64 * PB_STEP
PX_STEP  = 81920
SYNC_END = WS_PX + 64 * PX_STEP
WS_VOX   = 0x0B000000
VOX_SEG  = 40 * 32 * 1024
assert SYNC_END <= WS_VOX and WS_VOX + 64 * VOX_SEG <= WS_BYTES
SCALE_B = DH ** -0.5
SPIN_MAX = 1 << 17
OOB = 0x7ff00000

CFG = dict(stamp=False, dly_m=0, dly_p=0, sl_m=1, sl_p=1, sl_x=2, mrep=1, prep=1, stamp_step=20)

class LG:
    def __init__(self, k): self.k = k; self.q = []
    def issue(self, tag, text):
        self.k(text); self.q.append(tag)
    def wait(self, tag):
        if tag not in self.q: return
        idx = max(i for i, t in enumerate(self.q) if t == tag)
        n = len(self.q) - 1 - idx
        assert n <= 15, n
        self.k(f"s_waitcnt lgkmcnt({n})")
        self.q = self.q[idx + 1:]
    def all(self):
        self.k("s_waitcnt lgkmcnt(0)"); self.q = []

def poll(k, name, loads, regs, tmp, sleep, first_delay=0):
    if first_delay:
        k(f"s_sleep {first_delay}")
    k("s_mov_b32 s61, 0")
    k.lab(name)
    for l in loads: k(l)
    k("s_waitcnt vmcnt(0)")
    rs = list(regs)
    k(f"v_max3_u32 v{tmp}, v{rs[0]}, v{rs[1]}, v{rs[2]}")
    rs = rs[3:]
    while len(rs) >= 2:
        k(f"v_max3_u32 v{tmp}, v{tmp}, v{rs[0]}, v{rs[1]}"); rs = rs[2:]
    if rs: k(f"v_max_u32 v{tmp}, v{tmp}, v{rs[0]}")
    k(f"v_cmp_eq_u32 vcc, -1, v{tmp}")
    k("s_add_u32 s61, s61, 1")
    k(f"s_cbranch_vccz {k.ref(name + '_out')}")
    k("s_cmp_ge_u32 s61, s60")
    k(f"s_cbranch_scc1 {k.ref(name + '_to')}")
    if sleep: k(f"s_sleep {sleep}")
    k(f"s_branch {k.ref(name)}")
    k.lab(name + '_to')
    k("s_mov_b32 s60, 1")
    k.lab(name + '_out')

def divmod_const(k, q, r, x, d, maxn, stmp):
    m, sh = magic(d, maxn)
    k(f"s_mov_b32 s{stmp}, {m}")
    k(f"v_mul_lo_u32 v{q}, v{x}, s{stmp}")
    k(f"v_lshrrev_b32 v{q}, {sh}, v{q}")
    k(f"v_mul_u32_u24 v{r}, {d}, v{q}")
    k(f"v_sub_u32 v{r}, v{x}, v{r}")

def stage_offsets(k, n, cpr, gstride, RS, lbase, go, lo, t0):
    for i in range(n):
        k(f"v_add_u32 v{t0}, {256*i}, v0")
        divmod_const(k, t0 + 1, t0 + 2, t0, cpr, 256 * n, 24)
        k(f"s_mov_b32 s24, {gstride}")
        k(f"v_mul_lo_u32 v{go+i}, v{t0+1}, s24")
        k(f"v_lshl_add_u32 v{go+i}, v{t0+2}, 4, v{go+i}")
        k(f"v_mul_u32_u24 v{lo+i}, {RS}, v{t0+1}")
        k(f"v_lshl_add_u32 v{lo+i}, v{t0+2}, 4, v{lo+i}")
        k(f"v_add_u32 v{lo+i}, {lbase}, v{lo+i}")

def tr_base(k, dst, RS, lbase, t0):
    k(f"v_lshrrev_b32 v{t0}, 1, v3")
    k(f"v_lshlrev_b32 v{t0}, 4, v{t0}")
    k(f"v_and_b32 v{t0+1}, 1, v3")
    k(f"v_lshl_add_u32 v{t0}, v{t0+1}, 2, v{t0}")
    k(f"v_lshrrev_b32 v{t0+1}, 2, v2")
    k(f"v_and_b32 v{t0+2}, 1, v{t0+1}")
    k(f"v_add_u32 v{t0}, v{t0}, v{t0+2}")
    k(f"v_lshrrev_b32 v{t0+1}, 1, v{t0+1}")
    k(f"v_lshl_add_u32 v{t0}, v{t0+1}, 3, v{t0}")
    k(f"v_mul_u32_u24 v{dst}, {RS}, v{t0}")
    k(f"v_and_b32 v{t0+1}, 3, v2")
    k(f"v_lshl_add_u32 v{dst}, v{t0+1}, 3, v{dst}")
    k(f"v_add_u32 v{dst}, {lbase}, v{dst}")

def tr_frag(k, reg, kind, addr, RS, off):
    for q, ro in enumerate((0, 2, 32, 34)):
        k(f"ds_read_b64_tr_b16 {kind}[{reg+2*q}:{reg+2*q+1}], v{addr} offset:{off + ro*RS}")

def m0_image(k, srd, t0):
    for p in range(3):
        k(f"v_add_u32 v{t0}, {256*p}, v0")
        k(f"v_and_b32 v{t0+1}, 7, v{t0}")
        k(f"v_mul_u32_u24 v{t0+1}, 1280, v{t0+1}")
        k(f"v_lshrrev_b32 v{t0+2}, 3, v{t0}")
        k(f"v_lshl_add_u32 v{t0+1}, v{t0+2}, 4, v{t0+1}")
        k(f"v_cmp_gt_u32 vcc, 640, v{t0}")
        k(f"v_mov_b32 v{t0+3}, {OOB}")
        k(f"v_cndmask_b32 v{t0+1}, v{t0+3}, v{t0+1}, vcc")
        k(f"buffer_load_dwordx4 v[{t0+4}:{t0+7}], v{t0+1}, s[{srd}:{srd+3}], 0 offen")
        k(f"v_lshlrev_b32 v{t0}, 4, v{t0}")
        k("s_waitcnt vmcnt(0)")
        k(f"s_and_saveexec_b64 s[30:31], vcc")
        k(f"ds_write_b128 v{t0}, v[{t0+4}:{t0+7}]")
        k("s_mov_b64 exec, s[30:31]")

def stamp(k, i):
    if CFG['stamp']: k(f"s_memrealtime s[{80+2*i}:{81+2*i}]")

def stamp_out(k, nst, cond_wg, slot, t):
    if not CFG['stamp']: return
    l = k.new('st')
    k(f"s_cmp_eq_u32 s40, {CFG['stamp_step']}"); k(f"s_cbranch_scc0 {k.ref(l)}")
    k("s_cmp_eq_u32 s3, 0"); k(f"s_cbranch_scc0 {k.ref(l)}")
    k(f"s_cmp_eq_u32 s2, {cond_wg}"); k(f"s_cbranch_scc0 {k.ref(l)}")
    k.ptr(KA_DBG, 34)
    k("s_waitcnt lgkmcnt(0)")
    k.srd(36, 34, 256)
    k(f"v_mov_b32 v{t}, 0")
    for i in range(nst):
        k(f"v_mov_b32 v{t+1}, s{80+2*i}")
        k(f"buffer_store_dword v{t+1}, v{t}, s[36:39], 0 offen offset:{slot*32 + i*4}")
    k.lab(l)

def softmax8(k, P0, T0, T1, masks=None):
    if masks:
        k(f"v_mov_b32 v{T1}, 0xff800000")
        for j in range(8): k(f"v_cndmask_b32 v{P0+j}, v{T1}, v{P0+j}, s[{masks+2*j}:{masks+2*j+1}]")
    k(f"v_max3_f32 v{T0}, v{P0}, v{P0+1}, v{P0+2}")
    k(f"v_max3_f32 v{T0}, v{T0}, v{P0+3}, v{P0+4}")
    k(f"v_max3_f32 v{T0}, v{T0}, v{P0+5}, v{P0+6}")
    k(f"v_max_f32 v{T0}, v{T0}, v{P0+7}")
    k(f"v_mov_b32 v{T1}, 0xff800000")
    k(f"v_cndmask_b32 v{T0}, v{T1}, v{T0}, s[50:51]")
    for dpp in ("quad_perm:[1,0,3,2]", "quad_perm:[2,3,0,1]", "row_half_mirror"):
        k(f"v_max_f32 v{T0}, v{T0}, v{T0} {dpp} row_mask:0xf bank_mask:0xf")
    k(f"s_mov_b32 s24, {hexf(SCALE_B * LOG2E)}")
    k(f"v_mul_f32 v{T0}, s24, v{T0}")
    for r in range(8): k(f"v_fma_f32 v{P0+r}, v{P0+r}, s24, -v{T0}")
    for r in range(8): k(f"v_exp_f32 v{P0+r}, v{P0+r}")
    k(f"v_add_f32 v{T0}, v{P0}, v{P0+1}")
    k(f"v_add_f32 v{T1}, v{P0+2}, v{P0+3}")
    k(f"v_add_f32 v{T0}, v{T0}, v{P0+4}")
    k(f"v_add_f32 v{T1}, v{T1}, v{P0+5}")
    k(f"v_add_f32 v{T0}, v{T0}, v{P0+6}")
    k(f"v_add_f32 v{T1}, v{T1}, v{P0+7}")
    k(f"v_add_f32 v{T0}, v{T0}, v{T1}")
    k(f"v_cndmask_b32 v{T0}, 0, v{T0}, s[50:51]")
    for dpp in ("quad_perm:[1,0,3,2]", "quad_perm:[2,3,0,1]", "row_half_mirror"):
        k(f"v_add_f32 v{T0}, v{T0}, v{T0} {dpp} row_mask:0xf bank_mask:0xf")
    k(f"v_rcp_f32 v{T0}, v{T0}")
    for r in range(8): k(f"v_mul_f32 v{P0+r}, v{P0+r}, v{T0}")
    for q in range(4): k(f"v_cvt_pk_bf16_f32 v{P0+8+q}, v{P0+2*q}, v{P0+2*q+1}")
    for q in range(4): k(f"v_min_u32 v{P0+8+q}, -2, v{P0+8+q}")

def sum4x8(k, P0, addr, stride):
    for w in range(4):
        k(f"ds_read_b128 v[{P0+8*w}:{P0+8*w+3}], v{addr} offset:{w*stride}")
        k(f"ds_read_b128 v[{P0+8*w+4}:{P0+8*w+7}], v{addr} offset:{w*stride+16}")
    k("s_waitcnt lgkmcnt(4)")
    for r in range(0, 8, 2): k(f"v_pk_add_f32 v[{P0+r}:{P0+r+1}], v[{P0+r}:{P0+r+1}], v[{P0+8+r}:{P0+8+r+1}]")
    k("s_waitcnt lgkmcnt(0)")
    for r in range(0, 8, 2): k(f"v_pk_add_f32 v[{P0+16+r}:{P0+16+r+1}], v[{P0+16+r}:{P0+16+r+1}], v[{P0+24+r}:{P0+24+r+1}]")
    for r in range(0, 8, 2): k(f"v_pk_add_f32 v[{P0+r}:{P0+r+1}], v[{P0+r}:{P0+r+1}], v[{P0+16+r}:{P0+16+r+1}]")

def m_rep(k):
    if CFG['mrep'] > 1:
        k(f"s_and_b32 s24, s2, {CFG['mrep']-1}"); k("s_mul_i32 s24, s24, 10240"); k("s_add_u32 s47, s47, s24")

def role_S(k):
    L_M, L_X, L_SP, L_DUM, L_W5, L_ST = 0, 10240, 16384, 22528, 24576, 106496
    RS = 400
    ACC, AF, WS5 = 24, 48, 68
    KX = 240
    QX = 80
    T0, T1 = 92, 93
    def wreg(t, c):
        if t < 3: return 'a', t * 80 + c * 8
        return 'v', 96 + (t - 3) * 80 + c * 8
    k("s_mov_b32 s44, s2")
    k.ptr(KA_WQ, 6); k.ptr(KA_WK, 24)
    k("s_waitcnt lgkmcnt(0)")
    k.srd(12, 6, D * HD * 2); k.srd(16, 24, D * HD * 2)
    GO, LO, DAT = 4, 10, 24
    stage_offsets(k, 6, 24, HD * 2, RS, L_ST, GO, LO, 16)
    tr_base(k, 16, RS, L_ST, 17)
    k("s_mul_i32 s24, s3, 96")
    k("v_add_u32 v16, s24, v16")
    k("v_lshlrev_b32 v17, 4, v1")
    k(f"s_mul_i32 s24, s3, 20480"); k(f"s_add_u32 s24, s24, {L_W5}")
    k("v_add_u32 v17, s24, v17")
    k(f"s_mul_i32 s45, s44, 384")
    blocks = [(c, m) for c in range(10) for m in range(2)]
    def loads(bi):
        c, m = blocks[bi]
        d = DAT + 24 * (bi % 3)
        k(f"s_add_u32 s46, s45, {c * 64 * HD * 2}")
        for i in range(6):
            k(f"buffer_load_dwordx4 v[{d+4*i}:{d+4*i+3}], v{GO+i}, s[{12+4*m}:{15+4*m}], s46 offen")
    loads(0); loads(1)
    for bi, (c, m) in enumerate(blocks):
        d = DAT + 24 * (bi % 3)
        k(f"s_waitcnt vmcnt({6 if bi + 1 < len(blocks) else 0})")
        for i in range(6): k(f"ds_write_b128 v{LO+i}, v[{d+4*i}:{d+4*i+3}]")
        if bi + 2 < len(blocks): loads(bi + 2)
        k("s_waitcnt lgkmcnt(0)")
        k("s_barrier")
        for t in range(3):
            tt = 3 * m + t
            if tt < 5:
                kind, r = wreg(tt, c)
                tr_frag(k, r, kind, 16, RS, 32 * t)
        if m == 1:
            tr_frag(k, d, 'v', 16, RS, 64)
            k("s_waitcnt lgkmcnt(0)")
            k(f"ds_write_b128 v17, v[{d}:{d+3}] offset:{c*2048}")
            k(f"ds_write_b128 v17, v[{d+4}:{d+7}] offset:{c*2048+1024}")
        k("s_waitcnt lgkmcnt(0)")
        k("s_barrier")
    A_, B_, C_, D_ = 30, 31, 32, 33
    k("v_mov_b32 v6, v17")
    k(f"v_mov_b32 v{A_}, 0xeeee"); k("v_mov_b32 v4, 0x4444")
    k("v_cmp_gt_u32 vcc, 8, v2")
    k(f"v_cndmask_b32 v4, v{A_}, v4, vcc")
    k("v_lshlrev_b32 v5, 4, v1")
    k("s_lshl_b32 s24, s3, 10")
    k("v_add_u32 v7, s24, v5")
    k("s_lshl_b32 s24, s3, 9"); k("s_add_u32 s24, s24, 8192")
    k("v_lshlrev_b32 v8, 3, v1")
    k("v_add_u32 v8, s24, v8")
    k(f"s_mul_i32 s24, s3, 1536"); k(f"s_add_u32 s24, s24, {L_X}")
    k("v_lshlrev_b32 v9, 5, v2")
    k("v_lshl_add_u32 v9, v3, 3, v9")
    k("v_add_u32 v9, s24, v9")
    k(f"v_lshrrev_b32 v{A_}, 2, v2"); k(f"v_and_b32 v{B_}, 3, v2")
    k(f"v_lshl_add_u32 v10, v3, 3, v{A_}")
    k("v_lshlrev_b32 v10, 5, v10")
    k(f"v_lshl_add_u32 v10, v{B_}, 3, v10")
    k("v_add_u32 v10, s24, v10")
    k(f"v_lshl_add_u32 v11, v3, 2, v{A_}")
    k("v_lshlrev_b32 v11, 5, v11")
    k(f"v_lshl_add_u32 v11, v{B_}, 3, v11")
    k("v_add_u32 v11, s24, v11")
    k(f"v_add_u32 v{D_}, {L_DUM}, v5")
    k(f"s_mul_i32 s24, s3, 1408"); k(f"s_add_u32 s24, s24, {L_SP}")
    k(f"v_mul_u32_u24 v{A_}, 176, v2")
    k(f"v_add_u32 v{A_}, s24, v{A_}")
    k(f"v_lshl_add_u32 v12, v3, 5, v{A_}")
    k("v_cmp_gt_u32 vcc, 8, v2")
    k(f"v_cndmask_b32 v12, v{D_}, v12, vcc")
    k(f"v_lshl_add_u32 v13, v3, 4, v{A_}")
    k("v_add_u32 v13, 96, v13")
    k("v_cmp_le_u32 s[24:25], 2, v3")
    k("s_and_b64 vcc, vcc, s[24:25]")
    k(f"v_cndmask_b32 v13, v{D_}, v13, vcc")
    k(f"s_mul_i32 s24, s3, 5632"); k(f"s_add_u32 s24, s24, {L_ST}")
    k(f"v_mul_u32_u24 v{A_}, 176, v2")
    k(f"v_add_u32 v{A_}, s24, v{A_}")
    k(f"v_lshl_add_u32 v16, v3, 5, v{A_}")
    k(f"v_lshl_add_u32 v17, v3, 4, v{A_}")
    k("v_add_u32 v17, 96, v17")
    k("v_add_u32 v18, 2816, v17")
    k("v_cmp_le_u32 vcc, 2, v3")
    k(f"v_cndmask_b32 v17, v{D_}, v17, vcc")
    k(f"v_cndmask_b32 v18, v{D_}, v18, vcc")
    k(f"v_lshrrev_b32 v{A_}, 3, v1")
    k(f"v_and_b32 v{B_}, 7, v1")
    k(f"v_min_u32 v{C_}, 4, v{B_}")
    k(f"v_mul_u32_u24 v14, 176, v{A_}")
    k(f"v_lshl_add_u32 v14, v{C_}, 5, v14")
    k("s_mul_i32 s24, s3, 1408"); k(f"s_add_u32 s24, s24, {L_ST}")
    k("v_add_u32 v21, s24, v14")
    k(f"v_add_u32 v14, {L_SP}, v14")
    k(f"v_cmp_gt_u32 s[50:51], 5, v{B_}")
    k("s_lshl_b32 s24, s3, 3")
    k(f"v_add_u32 v{C_}, s24, v{A_}")
    k(f"v_lshlrev_b32 v{D_}, 2, v{B_}")
    k(f"v_sub_u32 v{C_}, v{C_}, v{D_}")
    k(f"v_mov_b32 v{D_}, 100")
    k(f"v_cmp_gt_u32 vcc, 4, v{B_}")
    k(f"v_cndmask_b32 v{C_}, v{D_}, v{C_}, vcc")
    for j in range(8):
        cj = j if j < 4 else j + 12
        k(f"v_cmp_le_i32 s[{64+2*j}:{65+2*j}], {cj}, v{C_}")
    k("s_lshr_b32 s24, s44, 1"); k("s_lshl_b32 s24, s24, 10")
    k("s_and_b32 s25, s44, 1"); k("s_lshl_b32 s25, s25, 7"); k("s_add_u32 s24, s24, s25")
    k(f"v_lshlrev_b32 v15, 8, v{B_}")
    k(f"v_lshl_add_u32 v15, v{A_}, 4, v15")
    k("v_add_u32 v15, s24, v15")
    k("s_lshr_b32 s24, s44, 3"); k("s_lshl_b32 s24, s24, 10")
    k("s_and_b32 s25, s44, 3"); k("s_lshl_b32 s25, s25, 8"); k("s_add_u32 s24, s24, s25")
    k("s_lshr_b32 s25, s44, 2"); k("s_and_b32 s25, s25, 1"); k("s_lshl_b32 s25, s25, 7"); k("s_add_u32 s24, s24, s25")
    k("s_add_u32 s24, s24, 16384")
    k(f"v_lshlrev_b32 v{C_}, 4, v{A_}")
    k(f"v_add_u32 v{C_}, s24, v{C_}")
    k(f"v_cmp_eq_u32 vcc, 4, v{B_}")
    k(f"v_cndmask_b32 v15, v15, v{C_}, vcc")
    k(f"v_mov_b32 v{C_}, {OOB}")
    k(f"v_cndmask_b32 v15, v{C_}, v15, s[50:51]")
    k(f"s_mul_i32 s24, s3, 20480")
    k("v_add_u32 v15, s24, v15")
    if CFG['prep'] < 4:
        k(f"s_cmp_lt_u32 s3, {CFG['prep']}"); k(f"s_cselect_b32 s24, 0, {OOB}")
        k("v_or_b32 v15, s24, v15")
    k("s_and_b32 s24, s3, 1"); k("s_lshl_b32 s24, s24, 7")
    k("s_lshr_b32 s25, s3, 1"); k("s_lshl_b32 s25, s25, 10")
    k("s_add_u32 s24, s24, s25")
    k("s_lshl_b32 s25, s44, 11"); k("s_add_u32 s25, s25, s24")
    k(f"v_lshlrev_b32 v22, 8, v{B_}")
    k(f"v_lshl_add_u32 v22, v{A_}, 4, v22")
    k("v_add_u32 v22, s25, v22")
    k("s_lshr_b32 s25, s44, 2"); k("s_lshl_b32 s25, s25, 11"); k("s_add_u32 s25, s25, s24")
    k("s_and_b32 s26, s44, 3"); k("s_lshl_b32 s26, s26, 8"); k("s_add_u32 s25, s25, s26"); k("s_add_u32 s25, s25, 65536")
    k(f"v_lshlrev_b32 v{C_}, 4, v{A_}")
    k(f"v_add_u32 v{C_}, s25, v{C_}")
    k(f"v_cmp_eq_u32 vcc, 4, v{B_}")
    k(f"v_cndmask_b32 v22, v22, v{C_}, vcc")
    k(f"v_mov_b32 v{C_}, {OOB}")
    k(f"v_cndmask_b32 v22, v{C_}, v22, s[50:51]")
    k("s_mul_i32 s24, s44, 384"); k("s_mul_i32 s25, s3, 96"); k("s_add_u32 s24, s24, s25")
    k(f"v_mul_u32_u24 v{A_}, 12288, v2")
    k(f"v_add_u32 v{A_}, s24, v{A_}")
    k(f"v_lshl_add_u32 v19, v3, 4, v{A_}")
    k(f"v_lshl_add_u32 v20, v3, 3, v{A_}")
    k("v_add_u32 v20, 64, v20")
    m0_image(k, 20, 48)
    k("s_mov_b32 s40, 0")
    k(f"s_mov_b32 s41, {G.WS_KB}")
    k(f"s_mov_b32 s42, {WS_PX}")
    k(f"s_mov_b32 s43, {WS_PB}")
    k(f"s_mov_b32 s45, {G.WS_QB}")
    k(f"s_mov_b32 s47, {WS_MB}")
    m_rep(k)
    def kx_loads():
        k(f"s_add_u32 s24, s41, {16*12288}")
        k(f"buffer_load_dwordx4 a[{KX}:{KX+3}], v19, s[8:11], s41 offen")
        k(f"buffer_load_dwordx2 a[{KX+4}:{KX+5}], v20, s[8:11], s41 offen")
        k(f"buffer_load_dwordx4 a[{KX+6}:{KX+9}], v19, s[8:11], s24 offen")
        k(f"buffer_load_dwordx2 a[{KX+10}:{KX+11}], v20, s[8:11], s24 offen")
    kx_loads()
    k("s_waitcnt lgkmcnt(0)")
    k(f"s_branch {k.ref('s_go')}")
    k.lab('s_step')
    stamp(k, 0)
    for r in range(24): k(f"v_mov_b32 v{ACC+r}, 0")
    loads_ = [f"buffer_load_dwordx4 v[48:51], v7, s[8:11], s47 offen sc1",
              f"buffer_load_dwordx4 v[52:55], v7, s[8:11], s48 offen sc1",
              f"buffer_load_dwordx2 v[56:57], v8, s[8:11], s47 offen sc1"]
    k("s_add_u32 s48, s47, 4096")
    poll(k, 's_pm', loads_, range(48, 58), 58, CFG['sl_m'], CFG['dly_m'])
    stamp(k, 1)
    k("ds_write_b128 v7, v[48:51]")
    k("ds_write_b128 v7, v[52:55] offset:4096")
    k("ds_write_b64 v8, v[56:57]")
    k("s_waitcnt lgkmcnt(0)")
    k.lab('s_go2')
    k("s_barrier")
    lg = LG(k)
    def rdA(c): lg.issue(('A', c), f"ds_read_b128 v[{AF+4*(c%5)}:{AF+4*(c%5)+3}], v5 offset:{c*1024}")
    def rdW(c):
        b = WS5 + 8 * (c % 3)
        lg.issue(('W', c), f"ds_read_b128 v[{b}:{b+3}], v6 offset:{c*2048}")
        lg.issue(('W', c), f"ds_read_b128 v[{b+4}:{b+7}], v6 offset:{c*2048+1024}")
    rdA(0); rdW(0); rdA(1); rdW(1); rdA(2); rdA(3); rdA(4)
    for c in range(10):
        a = AF + 4 * (c % 5)
        lg.wait(('A', c))
        for t in range(5):
            kind, r = wreg(t, c)
            k(f"v_smfmac_f32_16x16x64_bf16 v[{ACC+4*t}:{ACC+4*t+3}], v[{a}:{a+3}], {kind}[{r}:{r+7}], v4")
            if t == 1 and c + 2 < 10: rdW(c + 2)
        lg.wait(('W', c))
        b = WS5 + 8 * (c % 3)
        k(f"v_smfmac_f32_16x16x64_bf16 v[{ACC+20}:{ACC+23}], v[{a}:{a+3}], v[{b}:{b+7}], v4")
        if c + 5 < 10: rdA(c + 5)
    stamp(k, 2)
    k(f"s_add_u32 s24, s45, {16*12288}")
    k(f"buffer_load_dwordx4 v[{QX}:{QX+3}], v19, s[8:11], s45 offen")
    k(f"buffer_load_dwordx2 v[{QX+4}:{QX+5}], v20, s[8:11], s45 offen")
    k(f"buffer_load_dwordx4 v[{QX+6}:{QX+9}], v19, s[8:11], s24 offen")
    k(f"buffer_load_dwordx2 v[{QX+10}:{QX+11}], v20, s[8:11], s24 offen")
    T = 48
    for t in range(3):
        q = ACC + 4 * t; kk = ACC + 12 + 4 * t
        for r in range(4): k(f"v_permlane32_swap_b32 v{q+r}, v{kk+r}")
        for r in range(4): k(f"v_add_f32 v{q+r}, v{q+r}, v{kk+r}")
        k(f"v_cvt_pk_bf16_f32 v{T+2*t}, v{q}, v{q+1}")
        k(f"v_cvt_pk_bf16_f32 v{T+2*t+1}, v{q+2}, v{q+3}")
        k(f"ds_write_b64 v9, v[{T+2*t}:{T+2*t+1}] offset:{t*512}")
    XA, XB = 24, 28
    k("s_waitcnt lgkmcnt(0)")
    k(f"ds_read_b64_tr_b16 v[{XA}:{XA+1}], v10")
    k(f"ds_read_b64_tr_b16 v[{XA+2}:{XA+3}], v10 offset:128")
    k(f"ds_read_b64_tr_b16 v[{XB}:{XB+1}], v11 offset:1024")
    k("s_waitcnt lgkmcnt(0)")
    SC = 64
    k(f"v_mfma_f32_16x16x32_bf16 v[{SC}:{SC+3}], a[{KX}:{KX+3}], v[{XA}:{XA+3}], 0")
    k(f"v_mfma_f32_16x16x32_bf16 v[{SC+4}:{SC+7}], a[{KX+6}:{KX+9}], v[{XA}:{XA+3}], 0")
    k(f"v_mfma_f32_16x16x32_bf16 v[{SC+8}:{SC+11}], v[{XA}:{XA+3}], v[{XA}:{XA+3}], 0")
    k(f"v_mfma_f32_16x16x16_bf16 v[{SC}:{SC+3}], a[{KX+4}:{KX+5}], v[{XB}:{XB+1}], v[{SC}:{SC+3}]")
    k(f"v_mfma_f32_16x16x16_bf16 v[{SC+4}:{SC+7}], a[{KX+10}:{KX+11}], v[{XB}:{XB+1}], v[{SC+4}:{SC+7}]")
    k(f"v_mfma_f32_16x16x16_bf16 v[{SC+8}:{SC+11}], v[{XB}:{XB+1}], v[{XB}:{XB+1}], v[{SC+8}:{SC+11}]")
    k(f"ds_write_b128 v12, v[{SC}:{SC+3}]")
    k(f"ds_write_b128 v12, v[{SC+4}:{SC+7}] offset:16")
    k(f"ds_write_b128 v13, v[{SC+8}:{SC+11}]")
    k("s_waitcnt lgkmcnt(0)")
    k("s_barrier")
    stamp(k, 3)
    P0 = 48
    sum4x8(k, P0, 14, 1408)
    softmax8(k, P0, T0, T1)
    k(f"buffer_store_dwordx4 v[{P0+8}:{P0+11}], v15, s[8:11], s43 offen sc1")
    stamp(k, 4)
    SX = 32
    sx = lambda kt, tt: (32 + (kt * 2 + tt) * 4) if (kt * 2 + tt) < 4 else (64 + ((kt * 2 + tt) - 4) * 4)
    k("s_waitcnt vmcnt(1)")
    keys32 = [f"a[{KX}:{KX+3}]", f"a[{KX+6}:{KX+9}]", f"v[{XA}:{XA+3}]"]
    keys16 = [f"a[{KX+4}:{KX+5}]", f"a[{KX+10}:{KX+11}]", f"v[{XB}:{XB+1}]"]
    for tt in range(2):
        for kt in range(3):
            a = sx(kt, tt)
            k(f"v_mfma_f32_16x16x32_bf16 v[{a}:{a+3}], {keys32[kt]}, v[{QX+6*tt}:{QX+6*tt+3}], 0")
    for tt in range(2):
        for kt in range(3):
            a = sx(kt, tt)
            k(f"v_mfma_f32_16x16x16_bf16 v[{a}:{a+3}], {keys16[kt]}, v[{QX+6*tt+4}:{QX+6*tt+5}], v[{a}:{a+3}]")
    for tt in range(2):
        k(f"ds_write_b128 v16, v[{sx(0,tt)}:{sx(0,tt)+3}] offset:{tt*2816}")
        k(f"ds_write_b128 v16, v[{sx(1,tt)}:{sx(1,tt)+3}] offset:{tt*2816+16}")
        k(f"ds_write_b128 v{17+tt}, v[{sx(2,tt)}:{sx(2,tt)+3}]")
    k("s_add_u32 s40, s40, 1")
    k(f"s_add_u32 s41, s41, {32*12288}")
    k(f"s_add_u32 s45, s45, {32*12288}")
    k(f"s_add_u32 s43, s43, {PB_STEP}")
    k(f"s_add_u32 s47, s47, {MB_STEP}")
    k("s_waitcnt lgkmcnt(0)")
    k("s_barrier")
    kx_loads()
    sum4x8(k, P0, 21, 5632)
    softmax8(k, P0, T0, T1, masks=64)
    k(f"buffer_store_dwordx4 v[{P0+8}:{P0+11}], v22, s[8:11], s42 offen sc1")
    k(f"s_add_u32 s42, s42, {PX_STEP}")
    stamp(k, 5)
    if CFG['stamp']:
        k("s_sub_u32 s40, s40, 1"); stamp_out(k, 6, 0, 0, 46); k("s_add_u32 s40, s40, 1")
    k("s_cmp_lt_u32 s40, 64")
    k(f"s_cbranch_scc1 {k.ref('s_step')}")
    k(f"s_branch {k.ref('end')}")
    k.lab('s_go')
    for r in range(24): k(f"v_mov_b32 v{ACC+r}, 0")
    k("s_waitcnt vmcnt(0)")
    k(f"s_branch {k.ref('s_go2')}")

def role_V(k):
    L_M, L_V, L_WO, L_ST = 0, 10240, 16384, 16384 + 73728
    RS1, RS2 = 400, 656
    MA, VACC, VA, STG = 16, 56, 68, 80
    def wv(t, c): return 'a', t * 80 + c * 8
    def wo(t, c):
        i = t * 3 + c
        if i < 2: return 'a', 240 + 8 * i
        return 'v', 104 + 8 * (i - 2)
    k("s_sub_u32 s44, s2, 32")
    k.ptr(KA_WV, 6); k.ptr(KA_WO, 24)
    k("s_waitcnt lgkmcnt(0)")
    k.srd(12, 6, D * HD * 2); k.srd(16, 24, D * HD * 2)
    GO, LO, DAT = 4, 10, 24
    stage_offsets(k, 6, 24, HD * 2, RS1, L_ST, GO, LO, 16)
    tr_base(k, 16, RS1, L_ST, 17)
    k("s_mul_i32 s24, s3, 96")
    k("v_add_u32 v16, s24, v16")
    k(f"s_mul_i32 s45, s44, 384")
    def loads(c):
        d = DAT + 24 * (c % 3)
        k(f"s_add_u32 s46, s45, {c * 64 * HD * 2}")
        for i in range(6):
            k(f"buffer_load_dwordx4 v[{d+4*i}:{d+4*i+3}], v{GO+i}, s[12:15], s46 offen")
    loads(0); loads(1)
    for c in range(10):
        d = DAT + 24 * (c % 3)
        k(f"s_waitcnt vmcnt({6 if c + 1 < 10 else 0})")
        for i in range(6): k(f"ds_write_b128 v{LO+i}, v[{d+4*i}:{d+4*i+3}]")
        if c + 2 < 10: loads(c + 2)
        k("s_waitcnt lgkmcnt(0)")
        k("s_barrier")
        for t in range(3):
            kind, r = wv(t, c)
            tr_frag(k, r, kind, 16, RS1, 32 * t)
        k("s_waitcnt lgkmcnt(0)")
        k("s_barrier")
    GO, LO, DAT = 4, 14, 24
    stage_offsets(k, 10, 40, 1280, RS2, L_ST, GO, LO, 64)
    tr_base(k, 72, RS2, L_ST, 64)
    k("s_and_b32 s24, s3, 1"); k("s_mul_i32 s24, s24, 320")
    k("v_add_u32 v72, s24, v72")
    k("v_lshlrev_b32 v73, 4, v1")
    k(f"s_mul_i32 s24, s3, 18432"); k(f"s_add_u32 s24, s24, {L_WO}")
    k("v_add_u32 v73, s24, v73")
    k(f"s_mul_i32 s45, s44, {192*1280}")
    for c in range(3):
        for hf in range(2):
            k(f"s_add_u32 s46, s45, {c*64*1280 + hf*640}")
            for i in range(10):
                k(f"buffer_load_dwordx4 v[{DAT+4*i}:{DAT+4*i+3}], v{GO+i}, s[16:19], s46 offen")
            k("s_waitcnt vmcnt(0)")
            for i in range(10): k(f"ds_write_b128 v{LO+i}, v[{DAT+4*i}:{DAT+4*i+3}]")
            k("s_waitcnt lgkmcnt(0)")
            k("s_barrier")
            l = k.new('wo')
            k("s_lshr_b32 s24, s3, 1")
            k(f"s_cmp_eq_u32 s24, {hf}")
            k(f"s_cbranch_scc0 {k.ref(l)}")
            for t in range(10):
                if t < 7:
                    kind, r = wo(t, c)
                    tr_frag(k, r, kind, 72, RS2, 32 * t)
                else:
                    tr_frag(k, 64, 'v', 72, RS2, 32 * t)
                    k("s_waitcnt lgkmcnt(0)")
                    o = ((t - 7) * 3 + c) * 2048
                    k(f"ds_write_b128 v73, v[64:67] offset:{o}")
                    k(f"ds_write_b128 v73, v[68:71] offset:{o+1024}")
                    k("s_waitcnt lgkmcnt(0)")
            k("s_waitcnt lgkmcnt(0)")
            k.lab(l)
            k("s_barrier")
    k("v_mov_b32 v6, v73")
    k("v_mov_b32 v4, 0x4444"); k("v_mov_b32 v5, 0xeeee")
    k("v_cmp_gt_u32 vcc, 8, v2")
    k("v_cndmask_b32 v4, v5, v4, vcc")
    k("v_lshlrev_b32 v5, 4, v1")
    k("s_lshl_b32 s24, s3, 10")
    k("v_add_u32 v7, s24, v5")
    k("s_lshl_b32 s24, s3, 9"); k("s_add_u32 s24, s24, 8192")
    k("v_lshlrev_b32 v8, 3, v1")
    k("v_add_u32 v8, s24, v8")
    k("v_and_b32 v64, 7, v2"); k("v_lshlrev_b32 v9, 5, v64")
    k("v_lshrrev_b32 v64, 3, v2"); k("v_lshl_add_u32 v9, v64, 4, v9")
    k("v_and_b32 v64, 1, v3"); k("v_lshl_add_u32 v9, v64, 3, v9")
    k(f"s_mul_i32 s24, s3, 768"); k(f"s_add_u32 s24, s24, {L_V}")
    k("v_add_u32 v9, s24, v9")
    k("v_lshrrev_b32 v65, 1, v3")
    k("v_lshl_add_u32 v10, v65, 8, v9")
    k("v_lshrrev_b32 v64, 2, v2"); k("v_lshlrev_b32 v11, 5, v64")
    k("v_and_b32 v64, 3, v2"); k("v_lshl_add_u32 v11, v64, 3, v11")
    k("v_lshl_add_u32 v11, v3, 8, v11")
    k(f"v_add_u32 v11, {L_V}, v11")
    k("s_mul_i32 s24, s3, 10"); k("s_lshl_b32 s24, s24, 13"); k("s_lshl_b32 s25, s44, 8"); k("s_add_u32 s24, s24, s25")
    k("v_lshlrev_b32 v14, 13, v3")
    k("v_lshl_add_u32 v14, v2, 4, v14")
    k("v_add_u32 v14, s24, v14")
    k("v_lshrrev_b32 v64, 1, v3")
    k("v_lshlrev_b32 v15, 13, v64")
    k("v_lshl_add_u32 v15, v2, 4, v15")
    k("v_add_u32 v15, s24, v15")
    k(f"v_add_u32 v15, {8*8192}, v15")
    k("v_and_b32 v64, 1, v3")
    k("v_cmp_eq_u32 vcc, 0, v64")
    k(f"v_mov_b32 v64, {OOB}")
    k("v_cndmask_b32 v15, v64, v15, vcc")
    m0_image(k, 20, 64)
    k("s_mov_b32 s40, 0")
    k(f"s_mov_b32 s43, {WS_VOM}")
    k(f"s_mov_b32 s47, {WS_MB}")
    m_rep(k)
    k("s_waitcnt lgkmcnt(0)")
    k(f"s_branch {k.ref('v_go2')}")
    k.lab('v_step')
    stamp(k, 0)
    loads_ = [f"buffer_load_dwordx4 v[16:19], v7, s[8:11], s47 offen sc1",
              f"buffer_load_dwordx4 v[20:23], v7, s[8:11], s48 offen sc1",
              f"buffer_load_dwordx2 v[24:25], v8, s[8:11], s47 offen sc1"]
    k("s_add_u32 s48, s47, 4096")
    poll(k, 'v_pm', loads_, range(16, 26), 26, CFG['sl_m'], CFG['dly_m'])
    stamp(k, 1)
    k("ds_write_b128 v7, v[16:19]")
    k("ds_write_b128 v7, v[20:23] offset:4096")
    k("ds_write_b64 v8, v[24:25]")
    k("s_waitcnt lgkmcnt(0)")
    k.lab('v_go2')
    k("s_barrier")
    lg = LG(k)
    for c in range(10): lg.issue(('A', c), f"ds_read_b128 v[{MA+4*c}:{MA+4*c+3}], v5 offset:{c*1024}")
    for r in range(12): k(f"v_mov_b32 v{VACC+r}, 0")
    for c in range(10):
        lg.wait(('A', c))
        for t in range(3):
            kind, r = wv(t, c)
            k(f"v_smfmac_f32_16x16x64_bf16 v[{VACC+4*t}:{VACC+4*t+3}], v[{MA+4*c}:{MA+4*c+3}], {kind}[{r}:{r+7}], v4")
    def rdWo(t, c, slot):
        b = STG + 8 * slot; o = ((t - 7) * 3 + c) * 2048
        lg.issue(('W', t, c), f"ds_read_b128 v[{b}:{b+3}], v6 offset:{o}")
        lg.issue(('W', t, c), f"ds_read_b128 v[{b+4}:{b+7}], v6 offset:{o+1024}")
    for c in range(3): rdWo(7, c, c)
    stamp(k, 2)
    for r in range(40): k(f"v_mov_b32 v{MA+r}, 0")
    for r in range(4): k(f"v_permlane32_swap_b32 v{VACC+r}, v{VACC+4+r}")
    for r in range(4): k(f"v_add_f32 v{VACC+r}, v{VACC+r}, v{VACC+4+r}")
    k(f"v_cvt_pk_bf16_f32 v{VA}, v{VACC}, v{VACC+1}")
    k(f"v_cvt_pk_bf16_f32 v{VA+1}, v{VACC+2}, v{VACC+3}")
    for r in range(4): k(f"v_mov_b32 v{VACC+4+r}, v{VACC+8+r}")
    for r in range(4): k(f"v_permlane32_swap_b32 v{VACC+8+r}, v{VACC+4+r}")
    for r in range(4): k(f"v_add_f32 v{VACC+8+r}, v{VACC+8+r}, v{VACC+4+r}")
    k(f"v_cvt_pk_bf16_f32 v{VA+2}, v{VACC+8}, v{VACC+9}")
    k(f"v_cvt_pk_bf16_f32 v{VA+3}, v{VACC+10}, v{VACC+11}")
    lg.issue('x', f"ds_write_b64 v10, v[{VA}:{VA+1}]")
    lg.issue('x', f"ds_write_b64 v9, v[{VA+2}:{VA+3}] offset:512")
    lg.all()
    k("s_barrier")
    for c in range(3):
        lg.issue(('V', c), f"ds_read_b64_tr_b16 v[{VA+4*c}:{VA+4*c+1}], v11 offset:{c*1024}")
        lg.issue(('V', c), f"ds_read_b64_tr_b16 v[{VA+4*c+2}:{VA+4*c+3}], v11 offset:{c*1024+128}")
    stamp(k, 3)
    acc = lambda t: MA + 4 * t
    def mm(t, c, B):
        k(f"v_smfmac_f32_16x16x64_bf16 v[{acc(t)}:{acc(t)+3}], v[{VA+4*c}:{VA+4*c+3}], {B}, v4")
    def B_reg(t, c):
        kind, r = wo(t, c); return f"{kind}[{r}:{r+7}]"
    OUT = 56
    def epi(T, o):
        L = []
        t0, t1, t2, t3 = T
        for (x, y) in ((t0, t2), (t1, t3)):
            for r in range(4): L.append(f"v_permlane32_swap_b32 v{acc(x)+r}, v{acc(y)+r}")
            for r in range(4): L.append(f"v_add_f32 v{acc(x)+r}, v{acc(x)+r}, v{acc(y)+r}")
        L.append(f"v_cvt_pk_bf16_f32 v{o}, v{acc(t0)}, v{acc(t0)+1}")
        L.append(f"v_cvt_pk_bf16_f32 v{o+1}, v{acc(t0)+2}, v{acc(t0)+3}")
        L.append(f"v_cvt_pk_bf16_f32 v{o+2}, v{acc(t1)}, v{acc(t1)+1}")
        L.append(f"v_cvt_pk_bf16_f32 v{o+3}, v{acc(t1)+2}, v{acc(t1)+3}")
        L.append(f"v_permlane16_swap_b32 v{o}, v{o+2}")
        L.append(f"v_permlane16_swap_b32 v{o+1}, v{o+3}")
        for r in range(4): L.append(f"v_min_u32 v{o+r}, -2, v{o+r}")
        return L
    for c in range(3):
        lg.wait(('V', c))
        for t in range(4): mm(t, c, B_reg(t, c))
    for c in range(3):
        for t in (4, 5, 6): mm(t, c, B_reg(t, c))
        mm(7, c, f"v[{STG+8*c}:{STG+8*c+7}]")
        rdWo(8, c, c)
    for s_ in epi([0, 1, 2, 3], OUT): k(s_)
    k(f"buffer_store_dwordx4 v[{OUT}:{OUT+3}], v14, s[8:11], s43 offen sc1")
    for c in range(3):
        lg.wait(('W', 8, c))
        mm(8, c, f"v[{STG+8*c}:{STG+8*c+7}]")
        rdWo(9, c, c)
    for s_ in epi([4, 5, 6, 7], OUT + 4): k(s_)
    k("s_add_u32 s49, s43, 32768")
    k(f"buffer_store_dwordx4 v[{OUT+4}:{OUT+7}], v14, s[8:11], s49 offen sc1")
    for c in range(3):
        lg.wait(('W', 9, c))
        mm(9, c, f"v[{STG+8*c}:{STG+8*c+7}]")
    o = OUT + 8
    for r in range(4): k(f"v_permlane32_swap_b32 v{acc(8)+r}, v{acc(9)+r}")
    for r in range(4): k(f"v_add_f32 v{acc(8)+r}, v{acc(8)+r}, v{acc(9)+r}")
    k(f"v_cvt_pk_bf16_f32 v{o}, v{acc(8)}, v{acc(8)+1}")
    k(f"v_cvt_pk_bf16_f32 v{o+1}, v{acc(8)+2}, v{acc(8)+3}")
    k(f"v_mov_b32 v{o+2}, v{o}")
    k(f"v_mov_b32 v{o+3}, v{o+1}")
    k(f"v_permlane16_swap_b32 v{o}, v{o+2}")
    k(f"v_permlane16_swap_b32 v{o+1}, v{o+3}")
    for r in range(4): k(f"v_min_u32 v{o+r}, -2, v{o+r}")
    k(f"buffer_store_dwordx4 v[{o}:{o+3}], v15, s[8:11], s43 offen sc1")
    stamp(k, 4)
    stamp_out(k, 5, 32, 1, 46)
    k("s_add_u32 s40, s40, 1")
    k(f"s_add_u32 s43, s43, {VOM_STEP}")
    k(f"s_add_u32 s47, s47, {MB_STEP}")
    k("s_cmp_lt_u32 s40, 64")
    k(f"s_cbranch_scc1 {k.ref('v_step')}")
    k(f"s_branch {k.ref('end')}")

def role_R(k, to_out):
    BX, BN, PX, PM, VM, A1, A2 = 16, 48, 80, 96, 100, 108, 112
    XP, XM, OA, TQ = 116, 180, 196, 204
    L_R, L_O = 0, 16384
    k("s_sub_u32 s44, s2, 64")
    k("v_lshlrev_b32 v5, 4, v1")
    k("s_lshl_b32 s24, s44, 15"); k("s_lshl_b32 s25, s3, 13"); k("s_add_u32 s24, s24, s25")
    k("v_add_u32 v6, s24, v5")
    k("v_add_u32 v7, 4096, v6")
    k("s_lshl_b32 s24, s3, 12")
    k("v_add_u32 v8, s24, v5")
    k("s_lshl_b32 s24, s3, 10"); k("s_add_u32 s24, s24, 16384")
    k("v_add_u32 v9, s24, v5")
    k("s_lshl_b32 s24, s44, 13"); k("s_lshl_b32 s25, s3, 11"); k("s_add_u32 s24, s24, s25")
    k("v_add_u32 v10, s24, v5")
    k(f"v_and_b32 v{TQ}, 7, v2"); k(f"v_mul_u32_u24 v11, 80, v{TQ}")
    k("v_lshl_add_u32 v11, v3, 4, v11")
    k("s_mul_i32 s24, s3, 640")
    k("v_add_u32 v11, s24, v11")
    k(f"v_add_u32 v{TQ}, 8192, v5")
    k("v_cmp_gt_u32 vcc, 8, v2")
    k(f"v_cndmask_b32 v11, v{TQ}, v11, vcc")
    k(f"v_and_b32 v{TQ}, 7, v2"); k(f"v_mul_u32_u24 v12, 80, v{TQ}")
    k(f"v_lshrrev_b32 v{TQ}, 3, v2"); k(f"v_lshl_add_u32 v12, v{TQ}, 5, v12")
    k("v_mul_u32_u24 v13, 10240, v3")
    k("v_lshl_add_u32 v13, v2, 4, v13")
    k("s_lshl_b32 s24, s44, 8")
    k("v_add_u32 v13, s24, v13")
    if CFG['mrep'] < 4:
        k(f"v_mov_b32 v{TQ}, {OOB}")
        k(f"v_cmp_gt_u32 vcc, {CFG['mrep']}, v3")
        k(f"v_cndmask_b32 v13, v{TQ}, v13, vcc")
    k("v_cmp_le_u32 s[50:51], 8, v2")
    k("s_lshl_b32 s24, s3, 14")
    k(f"v_add_u32 v{TQ+1}, s24, v5")
    for jj in range(4): k(f"v_add_u32 v{212+jj}, {jj*4096}, v{TQ+1}")
    k("s_lshl_b32 s24, s3, 12"); k("s_add_u32 s24, s24, 65536")
    k("v_add_u32 v216, s24, v5")
    k(f"s_lshl_b32 s24, s3, 11"); k(f"s_add_u32 s24, s24, {L_O}")
    k("v_add_u32 v217, s24, v5")
    k(f"s_lshl_b32 s24, s3, 10"); k(f"s_add_u32 s24, s24, {L_O}")
    k("v_add_u32 v218, s24, v5")
    k("s_lshl_b32 s24, s3, 4")
    k("v_add_u32 v219, s24, v2")
    k("v_mul_u32_u24 v219, 1280, v219")
    k("v_lshl_add_u32 v219, v3, 3, v219")
    k("s_lshl_b32 s24, s44, 5")
    k("v_add_u32 v219, s24, v219")
    if to_out:
        k.ptr(KA_OUT, 26); k("s_waitcnt lgkmcnt(0)"); k.srd(12, 26, S * D * 2)
    else:
        k.srd(12, 4, S * D * 2, G.WS_X1)
    k.srd(16, 4, S * D * 2, G.WS_X1)
    k("s_mov_b32 s40, 0")
    k(f"s_mov_b32 s41, {WS_VOX}")
    k(f"s_mov_b32 s43, {WS_PB}")
    k(f"s_mov_b32 s42, {WS_VOM}")
    k(f"s_mov_b32 s45, {WS_PX}")
    k(f"s_mov_b32 s46, 0")
    k(f"s_mov_b32 s47, {WS_MB + MB_STEP}")
    if CFG['prep'] > 1:
        k(f"s_and_b32 s24, s44, {CFG['prep']-1}"); k("s_mul_i32 s24, s24, 20480"); k("s_add_u32 s43, s43, s24")
    def vox_loads():
        for q in range(4):
            k(f"buffer_load_dwordx4 v[{BN+4*q}:{BN+4*q+3}], v6, s[8:11], s41 offen offset:{q*1024}")
        for q in range(4):
            k(f"buffer_load_dwordx4 v[{BN+16+4*q}:{BN+16+4*q+3}], v7, s[8:11], s41 offen offset:{q*1024}")
        k(f"s_add_u32 s41, s41, {VOX_SEG}")
    vox_loads()
    k("s_waitcnt vmcnt(0)")
    k.lab('r_step')
    for r in range(32): k(f"v_mov_b32 v{BX+r}, v{BN+r}")
    stamp(k, 0)
    loads_ = [f"buffer_load_dwordx4 v[{PX+4*q}:{PX+4*q+3}], v8, s[8:11], s43 offen offset:{q*1024} sc1" for q in range(4)]
    loads_ += [f"buffer_load_dwordx4 v[{PM}:{PM+3}], v9, s[8:11], s43 offen sc1"]
    loads_ += [f"buffer_load_dwordx4 v[{VM+4*q}:{VM+4*q+3}], v10, s[8:11], s42 offen offset:{q*1024} sc1" for q in range(2)]
    poll(k, 'r_p', loads_, range(PX, VM + 8), TQ, CFG['sl_p'], CFG['dly_p'])
    stamp(k, 1)
    k(f"v_mfma_f32_16x16x32_bf16 v[{A1}:{A1+3}], v[{VM}:{VM+3}], v[{PM}:{PM+3}], 0")
    k(f"v_mfma_f32_16x16x32_bf16 v[{A2}:{A2+3}], v[{VM+4}:{VM+7}], v[{PM}:{PM+3}], 0")
    for q in range(4):
        k(f"v_mfma_f32_16x16x32_bf16 v[{A1}:{A1+3}], v[{BX+8*q}:{BX+8*q+3}], v[{PX+4*q}:{PX+4*q+3}], v[{A1}:{A1+3}]")
        k(f"v_mfma_f32_16x16x32_bf16 v[{A2}:{A2+3}], v[{BX+8*q+4}:{BX+8*q+7}], v[{PX+4*q}:{PX+4*q+3}], v[{A2}:{A2+3}]")
    k("s_and_b32 s24, s40, 1"); k("s_mul_i32 s24, s24, 2560")
    k("v_add_u32 v14, s24, v11")
    k("v_add_u32 v15, s24, v12")
    for r in range(4): k(f"v_cndmask_b32 v{A1+r}, v{A1+r}, v{A2+r}, s[50:51]")
    for r in range(4): k(f"v_add_f32 v{A1+r}, v{A1+r}, v{A1+r} row_ror:8 row_mask:0xf bank_mask:0xf")
    k(f"ds_write_b128 v14, v[{A1}:{A1+3}]")
    k("s_waitcnt lgkmcnt(0)")
    k("s_barrier")
    stamp(k, 2)
    l = k.new('np')
    k("s_cmp_eq_u32 s3, 0")
    k(f"s_cbranch_scc0 {k.ref(l)}")
    Q0 = 220
    sum4x8(k, Q0, 15, 640)
    for q in range(4): k(f"v_cvt_pk_bf16_f32 v{Q0+8+q}, v{Q0+2*q}, v{Q0+2*q+1}")
    for q in range(4): k(f"v_min_u32 v{Q0+8+q}, -2, v{Q0+8+q}")
    k(f"buffer_store_dwordx4 v[{Q0+8}:{Q0+11}], v13, s[8:11], s47 offen sc1")
    k.lab(l)
    stamp(k, 3)
    vox_loads()
    k(f"buffer_load_dwordx2 v[{TQ+2}:{TQ+3}], v219, s[16:19], s46 offen")
    if CFG['dly_x']: k(f"s_sleep {CFG['dly_x']}")
    loads_ = []
    for j in range(8):
        for tt in range(2):
            r = XP + (j * 2 + tt) * 4
            loads_.append(f"buffer_load_dwordx4 v[{r}:{r+3}], v{212 + j//2}, s[8:11], s45 offen offset:{(j%2)*2048 + tt*1024} sc1")
    for q in range(2):
        for tt in range(2):
            r = XM + (q * 2 + tt) * 4
            loads_.append(f"buffer_load_dwordx4 v[{r}:{r+3}], v216, s[8:11], s45 offen offset:{q*2048 + tt*1024} sc1")
    poll(k, 'r_x', loads_, range(XP, XM + 16), TQ, CFG['sl_x'], 0)
    stamp(k, 4)
    for tt in range(2):
        a = OA + 4 * tt
        k(f"v_mfma_f32_16x16x32_bf16 v[{a}:{a+3}], v[{VM}:{VM+3}], v[{XM+4*tt}:{XM+4*tt+3}], 0")
    for tt in range(2):
        a = OA + 4 * tt
        k(f"v_mfma_f32_16x16x32_bf16 v[{a}:{a+3}], v[{VM+4}:{VM+7}], v[{XM+8+4*tt}:{XM+8+4*tt+3}], v[{a}:{a+3}]")
    for j in range(8):
        for tt in range(2):
            a = OA + 4 * tt; r = XP + (j * 2 + tt) * 4
            k(f"v_mfma_f32_16x16x32_bf16 v[{a}:{a+3}], v[{BX+4*j}:{BX+4*j+3}], v[{r}:{r+3}], v[{a}:{a+3}]")
    for tt in range(2): k(f"ds_write_b128 v217, v[{OA+4*tt}:{OA+4*tt+3}] offset:{tt*1024}")
    k("s_waitcnt lgkmcnt(0)")
    k("s_barrier")
    l2 = k.new('no')
    k("s_cmp_lt_u32 s3, 2")
    k(f"s_cbranch_scc0 {k.ref(l2)}")
    for w in range(4): k(f"ds_read_b128 v[{Q0+4*w}:{Q0+4*w+3}], v218 offset:{w*2048}")
    k("s_waitcnt lgkmcnt(0)")
    for r in range(0, 4, 2):
        k(f"v_pk_add_f32 v[{Q0+r}:{Q0+r+1}], v[{Q0+r}:{Q0+r+1}], v[{Q0+4+r}:{Q0+4+r+1}]")
        k(f"v_pk_add_f32 v[{Q0+8+r}:{Q0+8+r+1}], v[{Q0+8+r}:{Q0+8+r+1}], v[{Q0+12+r}:{Q0+12+r+1}]")
    for r in range(0, 4, 2):
        k(f"v_pk_add_f32 v[{Q0+r}:{Q0+r+1}], v[{Q0+r}:{Q0+r+1}], v[{Q0+8+r}:{Q0+8+r+1}]")
    k(f"v_cvt_pk_bf16_f32 v{Q0+4}, v{Q0}, v{Q0+1}")
    k(f"v_cvt_pk_bf16_f32 v{Q0+5}, v{Q0+2}, v{Q0+3}")
    for h in range(2):
        k(f"v_lshlrev_b32 v{Q0+2*h}, 16, v{Q0+4+h}")
        k(f"v_and_b32 v{Q0+2*h+1}, 0xffff0000, v{Q0+4+h}")
        k(f"v_lshlrev_b32 v{Q0+6}, 16, v{TQ+2+h}")
        k(f"v_and_b32 v{Q0+7}, 0xffff0000, v{TQ+2+h}")
        k(f"v_add_f32 v{Q0+2*h}, v{Q0+2*h}, v{Q0+6}")
        k(f"v_add_f32 v{Q0+2*h+1}, v{Q0+2*h+1}, v{Q0+7}")
    k(f"v_cvt_pk_bf16_f32 v{Q0+4}, v{Q0}, v{Q0+1}")
    k(f"v_cvt_pk_bf16_f32 v{Q0+5}, v{Q0+2}, v{Q0+3}")
    k(f"buffer_store_dwordx2 v[{Q0+4}:{Q0+5}], v219, s[12:15], s46 offen")
    k.lab(l2)
    stamp(k, 5)
    stamp_out(k, 6, 64, 2, TQ)
    k("s_add_u32 s40, s40, 1")
    k(f"s_add_u32 s42, s42, {VOM_STEP}")
    k(f"s_add_u32 s43, s43, {PB_STEP}")
    k(f"s_add_u32 s45, s45, {PX_STEP}")
    k(f"s_add_u32 s46, s46, {32*1280}")
    k(f"s_add_u32 s47, s47, {MB_STEP}")
    k("s_cmp_lt_u32 s40, 64")
    k(f"s_cbranch_scc1 {k.ref('r_step')}")
    k(f"s_branch {k.ref('end')}")

def k_chainz(name, to_out):
    k = K(name, vgpr=256, sgpr=100, agpr=256)
    k("s_cmp_ge_u32 s2, 104")
    k(f"s_cbranch_scc1 {k.ref('end')}")
    k.ptr(KA_WS, 4); k.ptr(KA_MEM0, 6)
    k("v_and_b32 v1, 63, v0")
    k("v_lshrrev_b32 v4, 6, v0")
    k("v_and_b32 v2, 15, v1")
    k("v_lshrrev_b32 v3, 4, v1")
    k("v_readfirstlane_b32 s3, v4")
    k(f"s_mov_b32 s60, {SPIN_MAX}")
    k("s_waitcnt lgkmcnt(0)")
    k.srd(8, 4, WS_BYTES)
    k.srd(20, 6, 8 * 640 * 2)
    k("s_cmp_ge_u32 s2, 64")
    k(f"s_cbranch_scc1 {k.ref('roleR')}")
    k("s_cmp_ge_u32 s2, 32")
    k(f"s_cbranch_scc1 {k.ref('roleV')}")
    role_S(k)
    k.lab('roleV')
    role_V(k)
    k.lab('roleR')
    role_R(k, to_out)
    k.lab('end')
    return k, 104, 135168

import gen2
gen2.WS_VOX = WS_VOX
k_clear, k_vvo = gen2.k_clear, gen2.k_vvo
G.WS_QB = 0x04000000; G.WS_KB = 0x05800000

def build():
    kernels = []; launches = []
    def add(k, nwg, lds=0, block=256):
        if k not in kernels: kernels.append(k)
        launches.append((k.name, nwg, block, lds))
    kp, n = G.k_pack(); add(kp, n)
    kl, n = G.k_ln("ln_a1", KA_AX, 0); add(kl, n)
    kg, n, lds = G.k_gemm("qkv_a", S, 1920, D, G.WS_XN, D * 2, G.WS_PQKVA, 4, 5, dict(kind='qkvA')); add(kg, n, lds); n_qkva, lds_qkva = n, lds
    kz, n = G.k_kvz("kvz_a1", 0); add(kz, n)
    ka, n, lds = G.k_attn_a("attn_a1", 0); add(ka, n, lds)
    kg2, n, lds = G.k_gemm("wo_a1", S, D, D, G.WS_OA, D * 2, G.WS_PWOA, 2, 5, dict(kind='res', res_slot=KA_AX, res_off=0, out_off=G.WS_X1, res_in=True)); add(kg2, n, lds)
    kl2, n = G.k_ln("ln_b1", KA_WS, G.WS_X1); add(kl2, n)
    kg3, n, lds = G.k_gemm("qk_b", S, 2 * HD, D, G.WS_XN, D * 2, G.WS_PQ, 8, 6, dict(kind='qkvB')); add(kg3, n, lds); n_qkvb, lds_qkvb = n, lds
    kv, nv = k_vvo("vvo"); add(kv, nv)
    kcl, ncl = k_clear("clr", WS_SYNC, SYNC_END - WS_SYNC); add(kcl, ncl)
    kc, n, lds = k_chainz("chain1", False); add(kc, n, lds)
    kl3, n = G.k_ln("ln_a2", KA_WS, G.WS_X1); add(kl3, n)
    add(kg, n_qkva, lds_qkva)
    kz2, n = G.k_kvz("kvz_a2", 1); add(kz2, n)
    ka2, n, lds = G.k_attn_a("attn_a2", 1); add(ka2, n, lds)
    kg5, n, lds = G.k_gemm("wo_a2", S, D, D, G.WS_OA, D * 2, G.WS_PWOA, 2, 5, dict(kind='res', res_off=G.WS_X1, out_off=G.WS_X1)); add(kg5, n, lds)
    add(kl2, S // 4)
    add(kg3, n_qkvb, lds_qkvb)
    add(kv, nv)
    add(kcl, ncl)
    kc2, n, lds = k_chainz("chain2", True); add(kc2, n, lds)
    head = ["; generated by gen3.py (my own hand-written generator); kernarg: 13 pointers"]
    for name, nwg, block, lds in launches:
        head.append(f"; @launch kernel={name} grid=({nwg},1,1) block=({block},1,1) lds={lds}")
    head.append('.amdgcn_target "amdgcn-amd-amdhsa--gfx950"')
    return "\n".join(head) + "\n" + "\n".join(k.text() for k in kernels) + "\n"

CFG.setdefault('dly_x', 0)
if __name__ == "__main__":
    out = "z.s"
    for a in sys.argv[1:]:
        if a == "stamp": CFG['stamp'] = True
        elif a.endswith(".s"): out = a
        elif "=" in a:
            kk, v = a.split("="); CFG[kk] = int(v)
    open(out, "w").write(build())
    print("written", out)
```

```python
import sys
import gen as G
from asmlib import K, vr, ar, sr, magic
from gen import hexf, LOG2E

NAME = G.NAME
S, D, H, DH, HD, NSEG = 2048, 640, 32, 192, 6144, 64
KA_AX, KA_WQKV, KA_WOA, KA_BX, KA_MEM0, KA_WQ, KA_WK, KA_WV, KA_WO, KA_SEG, KA_OUT, KA_DBG, KA_WS = range(13)
WS_BYTES = 268435456

WS_VF    = 0x02000000
WS_XNF   = 0x03900000
WS_QF    = 0x04000000
WS_KF    = 0x05800000
QF_SEG   = 32 * 12288
WS_SYNC  = 0x07000000
WS_VOM   = WS_SYNC
VOM_STEP = 40 * 32 * 256
WS_MB    = WS_VOM + 64 * VOM_STEP
MB_STEP  = 4 * 10240
WS_PB    = WS_MB + 65 * MB_STEP
PB_STEP  = 4 * 20480
WS_PX    = WS_PB + 64 * PB_STEP
PX_STEP  = 81920
WS_FLG   = WS_PX + 64 * PX_STEP
SYNC_END = WS_FLG + 128 * 128
WS_VOX   = 0x0B000000
VOX_SEG  = 40 * 32 * 1024
assert SYNC_END <= WS_VOX and WS_VOX + 64 * VOX_SEG <= WS_BYTES
SCALE_B = DH ** -0.5
SPIN_MAX = 1 << 17
OOB = 0x7ff00000

CFG = dict(stamp=False, dly_m=0, dly_p=0, sl_m=1, sl_p=1, sl_x=2, mrep=1, prep=1, stamp_step=20)

class LG:
    def __init__(self, k): self.k = k; self.q = []
    def issue(self, tag, text):
        self.k(text); self.q.append(tag)
    def wait(self, tag):
        if tag not in self.q: return
        idx = max(i for i, t in enumerate(self.q) if t == tag)
        n = len(self.q) - 1 - idx
        assert n <= 15, n
        self.k(f"s_waitcnt lgkmcnt({n})")
        self.q = self.q[idx + 1:]
    def all(self):
        self.k("s_waitcnt lgkmcnt(0)"); self.q = []

def poll(k, name, loads, regs, tmp, sleep, first_delay=0):
    if first_delay:
        k(f"s_sleep {first_delay}")
    k("s_mov_b32 s61, 0")
    k.lab(name)
    for l in loads: k(l)
    k("s_waitcnt vmcnt(0)")
    rs = list(regs)
    k(f"v_max3_u32 v{tmp}, v{rs[0]}, v{rs[1]}, v{rs[2]}")
    rs = rs[3:]
    while len(rs) >= 2:
        k(f"v_max3_u32 v{tmp}, v{tmp}, v{rs[0]}, v{rs[1]}"); rs = rs[2:]
    if rs: k(f"v_max_u32 v{tmp}, v{tmp}, v{rs[0]}")
    k(f"v_cmp_eq_u32 vcc, -1, v{tmp}")
    k("s_add_u32 s61, s61, 1")
    k(f"s_cbranch_vccz {k.ref(name + '_out')}")
    k("s_cmp_ge_u32 s61, s60")
    k(f"s_cbranch_scc1 {k.ref(name + '_to')}")
    if sleep: k(f"s_sleep {sleep}")
    k(f"s_branch {k.ref(name)}")
    k.lab(name + '_to')
    k("s_mov_b32 s60, 1")
    k.lab(name + '_out')

def divmod_const(k, q, r, x, d, maxn, stmp):
    m, sh = magic(d, maxn)
    k(f"s_mov_b32 s{stmp}, {m}")
    k(f"v_mul_lo_u32 v{q}, v{x}, s{stmp}")
    k(f"v_lshrrev_b32 v{q}, {sh}, v{q}")
    k(f"v_mul_u32_u24 v{r}, {d}, v{q}")
    k(f"v_sub_u32 v{r}, v{x}, v{r}")

def stage_offsets(k, n, cpr, gstride, RS, lbase, go, lo, t0):
    for i in range(n):
        k(f"v_add_u32 v{t0}, {256*i}, v0")
        divmod_const(k, t0 + 1, t0 + 2, t0, cpr, 256 * n, 24)
        k(f"s_mov_b32 s24, {gstride}")
        k(f"v_mul_lo_u32 v{go+i}, v{t0+1}, s24")
        k(f"v_lshl_add_u32 v{go+i}, v{t0+2}, 4, v{go+i}")
        k(f"v_mul_u32_u24 v{lo+i}, {RS}, v{t0+1}")
        k(f"v_lshl_add_u32 v{lo+i}, v{t0+2}, 4, v{lo+i}")
        k(f"v_add_u32 v{lo+i}, {lbase}, v{lo+i}")

def tr_base(k, dst, RS, lbase, t0):
    k(f"v_lshrrev_b32 v{t0}, 1, v3")
    k(f"v_lshlrev_b32 v{t0}, 4, v{t0}")
    k(f"v_and_b32 v{t0+1}, 1, v3")
    k(f"v_lshl_add_u32 v{t0}, v{t0+1}, 2, v{t0}")
    k(f"v_lshrrev_b32 v{t0+1}, 2, v2")
    k(f"v_and_b32 v{t0+2}, 1, v{t0+1}")
    k(f"v_add_u32 v{t0}, v{t0}, v{t0+2}")
    k(f"v_lshrrev_b32 v{t0+1}, 1, v{t0+1}")
    k(f"v_lshl_add_u32 v{t0}, v{t0+1}, 3, v{t0}")
    k(f"v_mul_u32_u24 v{dst}, {RS}, v{t0}")
    k(f"v_and_b32 v{t0+1}, 3, v2")
    k(f"v_lshl_add_u32 v{dst}, v{t0+1}, 3, v{dst}")
    k(f"v_add_u32 v{dst}, {lbase}, v{dst}")

def tr_frag(k, reg, kind, addr, RS, off):
    for q, ro in enumerate((0, 2, 32, 34)):
        k(f"ds_read_b64_tr_b16 {kind}[{reg+2*q}:{reg+2*q+1}], v{addr} offset:{off + ro*RS}")

def m0_image(k, srd, t0):
    for p in range(3):
        k(f"v_add_u32 v{t0}, {256*p}, v0")
        k(f"v_and_b32 v{t0+1}, 7, v{t0}")
        k(f"v_mul_u32_u24 v{t0+1}, 1280, v{t0+1}")
        k(f"v_lshrrev_b32 v{t0+2}, 3, v{t0}")
        k(f"v_lshl_add_u32 v{t0+1}, v{t0+2}, 4, v{t0+1}")
        k(f"v_cmp_gt_u32 vcc, 640, v{t0}")
        k(f"v_mov_b32 v{t0+3}, {OOB}")
        k(f"v_cndmask_b32 v{t0+1}, v{t0+3}, v{t0+1}, vcc")
        k(f"buffer_load_dwordx4 v[{t0+4}:{t0+7}], v{t0+1}, s[{srd}:{srd+3}], 0 offen")
        k(f"v_lshlrev_b32 v{t0}, 4, v{t0}")
        k("s_waitcnt vmcnt(0)")
        k(f"s_and_saveexec_b64 s[30:31], vcc")
        k(f"ds_write_b128 v{t0}, v[{t0+4}:{t0+7}]")
        k("s_mov_b64 exec, s[30:31]")

def stamp(k, i):
    if CFG['stamp']: k(f"s_memrealtime s[{80+2*i}:{81+2*i}]")

def stamp_out(k, nst, cond_wg, slot, t):
    if not CFG['stamp']: return
    l = k.new('st')
    k(f"s_cmp_eq_u32 s40, {CFG['stamp_step']}"); k(f"s_cbranch_scc0 {k.ref(l)}")
    k("s_cmp_eq_u32 s3, 0"); k(f"s_cbranch_scc0 {k.ref(l)}")
    k(f"s_cmp_eq_u32 s2, {cond_wg}"); k(f"s_cbranch_scc0 {k.ref(l)}")
    k.ptr(KA_DBG, 34)
    k("s_waitcnt lgkmcnt(0)")
    k.srd(36, 34, 256)
    k(f"v_mov_b32 v{t}, 0")
    for i in range(nst):
        k(f"v_mov_b32 v{t+1}, s{80+2*i}")
        k(f"buffer_store_dword v{t+1}, v{t}, s[36:39], 0 offen offset:{slot*32 + i*4}")
    k.lab(l)

def softmax8(k, P0, T0, T1, masks=None):
    if masks:
        k(f"v_mov_b32 v{T1}, 0xff800000")
        for j in range(8): k(f"v_cndmask_b32 v{P0+j}, v{T1}, v{P0+j}, s[{masks+2*j}:{masks+2*j+1}]")
    k(f"v_max3_f32 v{T0}, v{P0}, v{P0+1}, v{P0+2}")
    k(f"v_max3_f32 v{T0}, v{T0}, v{P0+3}, v{P0+4}")
    k(f"v_max3_f32 v{T0}, v{T0}, v{P0+5}, v{P0+6}")
    k(f"v_max_f32 v{T0}, v{T0}, v{P0+7}")
    k(f"v_mov_b32 v{T1}, 0xff800000")
    k(f"v_cndmask_b32 v{T0}, v{T1}, v{T0}, s[50:51]")
    for dpp in ("quad_perm:[1,0,3,2]", "quad_perm:[2,3,0,1]", "row_half_mirror"):
        k(f"v_max_f32 v{T0}, v{T0}, v{T0} {dpp} row_mask:0xf bank_mask:0xf")
    k(f"s_mov_b32 s24, {hexf(SCALE_B * LOG2E)}")
    k(f"v_mul_f32 v{T0}, s24, v{T0}")
    for r in range(8): k(f"v_fma_f32 v{P0+r}, v{P0+r}, s24, -v{T0}")
    for r in range(8): k(f"v_exp_f32 v{P0+r}, v{P0+r}")
    k(f"v_add_f32 v{T0}, v{P0}, v{P0+1}")
    k(f"v_add_f32 v{T1}, v{P0+2}, v{P0+3}")
    k(f"v_add_f32 v{T0}, v{T0}, v{P0+4}")
    k(f"v_add_f32 v{T1}, v{T1}, v{P0+5}")
    k(f"v_add_f32 v{T0}, v{T0}, v{P0+6}")
    k(f"v_add_f32 v{T1}, v{T1}, v{P0+7}")
    k(f"v_add_f32 v{T0}, v{T0}, v{T1}")
    k(f"v_cndmask_b32 v{T0}, 0, v{T0}, s[50:51]")
    for dpp in ("quad_perm:[1,0,3,2]", "quad_perm:[2,3,0,1]", "row_half_mirror"):
        k(f"v_add_f32 v{T0}, v{T0}, v{T0} {dpp} row_mask:0xf bank_mask:0xf")
    k(f"v_rcp_f32 v{T0}, v{T0}")
    for r in range(8): k(f"v_mul_f32 v{P0+r}, v{P0+r}, v{T0}")
    for q in range(4): k(f"v_cvt_pk_bf16_f32 v{P0+8+q}, v{P0+2*q}, v{P0+2*q+1}")
    for q in range(4): k(f"v_min_u32 v{P0+8+q}, -2, v{P0+8+q}")

def sum4x8(k, P0, addr, stride):
    for w in range(4):
        k(f"ds_read_b128 v[{P0+8*w}:{P0+8*w+3}], v{addr} offset:{w*stride}")
        k(f"ds_read_b128 v[{P0+8*w+4}:{P0+8*w+7}], v{addr} offset:{w*stride+16}")
    k("s_waitcnt lgkmcnt(4)")
    for r in range(0, 8, 2): k(f"v_pk_add_f32 v[{P0+r}:{P0+r+1}], v[{P0+r}:{P0+r+1}], v[{P0+8+r}:{P0+8+r+1}]")
    k("s_waitcnt lgkmcnt(0)")
    for r in range(0, 8, 2): k(f"v_pk_add_f32 v[{P0+16+r}:{P0+16+r+1}], v[{P0+16+r}:{P0+16+r+1}], v[{P0+24+r}:{P0+24+r+1}]")
    for r in range(0, 8, 2): k(f"v_pk_add_f32 v[{P0+r}:{P0+r+1}], v[{P0+r}:{P0+r+1}], v[{P0+16+r}:{P0+16+r+1}]")

def m_rep(k):
    if CFG['mrep'] > 1:
        k(f"s_and_b32 s24, s2, {CFG['mrep']-1}"); k("s_mul_i32 s24, s24, 10240"); k("s_add_u32 s47, s47, s24")

def ensure(k, name, nfl, addr, tmp, need='s63', known='s62'):
    k(f"s_cmp_ge_i32 {known}, {need}")
    k(f"s_cbranch_scc1 {k.ref(name + '_ok')}")
    k("s_mov_b32 s61, 0")
    k.lab(name)
    k(f"buffer_load_dword v{tmp}, v{addr}, s[8:11], 0 offen sc1")
    k("s_waitcnt vmcnt(0)")
    k(f"v_readlane_b32 {known}, v{tmp}, 0")
    for i in range(1, nfl):
        k(f"v_readlane_b32 s24, v{tmp}, {i}")
        k(f"s_min_i32 {known}, {known}, s24")
    k(f"s_cmp_ge_i32 {known}, {need}")
    k(f"s_cbranch_scc1 {k.ref(name + '_ok')}")
    k("s_add_u32 s61, s61, 1")
    k("s_cmp_ge_u32 s61, s60")
    k(f"s_cbranch_scc1 {k.ref(name + '_to')}")
    k("s_sleep 2")
    k(f"s_branch {k.ref(name)}")
    k.lab(name + '_to')
    k("s_mov_b32 s60, 1")
    k.lab(name + '_ok')

def role_S(k):
    L_M, L_X, L_SP, L_DUM, L_W5, L_ST = 0, 10240, 16384, 22528, 24576, 106496
    RS = 400
    ACC, AF, WS5 = 24, 48, 68
    KX = 240
    QX = 80
    T0, T1 = 92, 93
    def wreg(t, c):
        if t < 3: return 'a', t * 80 + c * 8
        return 'v', 96 + (t - 3) * 80 + c * 8
    k("s_mov_b32 s44, s2")
    k.ptr(KA_WQ, 6); k.ptr(KA_WK, 24)
    k("s_waitcnt lgkmcnt(0)")
    k.srd(12, 6, D * HD * 2); k.srd(16, 24, D * HD * 2)
    GO, LO, DAT = 4, 10, 24
    stage_offsets(k, 6, 24, HD * 2, RS, L_ST, GO, LO, 16)
    tr_base(k, 16, RS, L_ST, 17)
    k("s_mul_i32 s24, s3, 96")
    k("v_add_u32 v16, s24, v16")
    k("v_lshlrev_b32 v17, 4, v1")
    k(f"s_mul_i32 s24, s3, 20480"); k(f"s_add_u32 s24, s24, {L_W5}")
    k("v_add_u32 v17, s24, v17")
    k(f"s_mul_i32 s45, s44, 384")
    blocks = [(c, m) for c in range(10) for m in range(2)]
    def loads(bi):
        c, m = blocks[bi]
        d = DAT + 24 * (bi % 3)
        k(f"s_add_u32 s46, s45, {c * 64 * HD * 2}")
        for i in range(6):
            k(f"buffer_load_dwordx4 v[{d+4*i}:{d+4*i+3}], v{GO+i}, s[{12+4*m}:{15+4*m}], s46 offen")
    loads(0); loads(1)
    for bi, (c, m) in enumerate(blocks):
        d = DAT + 24 * (bi % 3)
        k(f"s_waitcnt vmcnt({6 if bi + 1 < len(blocks) else 0})")
        for i in range(6): k(f"ds_write_b128 v{LO+i}, v[{d+4*i}:{d+4*i+3}]")
        if bi + 2 < len(blocks): loads(bi + 2)
        k("s_waitcnt lgkmcnt(0)")
        k("s_barrier")
        for t in range(3):
            tt = 3 * m + t
            if tt < 5:
                kind, r = wreg(tt, c)
                tr_frag(k, r, kind, 16, RS, 32 * t)
        if m == 1:
            tr_frag(k, d, 'v', 16, RS, 64)
            k("s_waitcnt lgkmcnt(0)")
            k(f"ds_write_b128 v17, v[{d}:{d+3}] offset:{c*2048}")
            k(f"ds_write_b128 v17, v[{d+4}:{d+7}] offset:{c*2048+1024}")
        k("s_waitcnt lgkmcnt(0)")
        k("s_barrier")
    A_, B_, C_, D_ = 30, 31, 32, 33
    k("v_mov_b32 v6, v17")
    k(f"v_mov_b32 v{A_}, 0xeeee"); k("v_mov_b32 v4, 0x4444")
    k("v_cmp_gt_u32 vcc, 8, v2")
    k(f"v_cndmask_b32 v4, v{A_}, v4, vcc")
    k("v_lshlrev_b32 v5, 4, v1")
    k("s_lshl_b32 s24, s3, 10")
    k("v_add_u32 v7, s24, v5")
    k("s_lshl_b32 s24, s3, 9"); k("s_add_u32 s24, s24, 8192")
    k("v_lshlrev_b32 v8, 3, v1")
    k("v_add_u32 v8, s24, v8")
    k(f"s_mul_i32 s24, s3, 1536"); k(f"s_add_u32 s24, s24, {L_X}")
    k("v_lshlrev_b32 v9, 5, v2")
    k("v_lshl_add_u32 v9, v3, 3, v9")
    k("v_add_u32 v9, s24, v9")
    k(f"v_lshrrev_b32 v{A_}, 2, v2"); k(f"v_and_b32 v{B_}, 3, v2")
    k(f"v_lshl_add_u32 v11, v3, 2, v{A_}")
    k("v_lshlrev_b32 v11, 5, v11")
    k(f"v_lshl_add_u32 v11, v{B_}, 3, v11")
    k("v_add_u32 v11, s24, v11")
    k(f"v_add_u32 v{D_}, {L_DUM}, v5")
    k(f"s_mul_i32 s24, s3, 1408"); k(f"s_add_u32 s24, s24, {L_SP}")
    k(f"v_mul_u32_u24 v{A_}, 176, v2")
    k(f"v_add_u32 v{A_}, s24, v{A_}")
    k(f"v_lshl_add_u32 v12, v3, 5, v{A_}")
    k("v_cmp_gt_u32 vcc, 8, v2")
    k(f"v_cndmask_b32 v12, v{D_}, v12, vcc")
    k(f"v_lshl_add_u32 v13, v3, 4, v{A_}")
    k("v_add_u32 v13, 96, v13")
    k("v_cmp_le_u32 s[24:25], 2, v3")
    k("s_and_b64 vcc, vcc, s[24:25]")
    k(f"v_cndmask_b32 v13, v{D_}, v13, vcc")
    k(f"s_mul_i32 s24, s3, 5632"); k(f"s_add_u32 s24, s24, {L_ST}")
    k(f"v_mul_u32_u24 v{A_}, 176, v2")
    k(f"v_add_u32 v{A_}, s24, v{A_}")
    k(f"v_lshl_add_u32 v16, v3, 5, v{A_}")
    k(f"v_lshl_add_u32 v17, v3, 4, v{A_}")
    k("v_add_u32 v17, 96, v17")
    k("v_add_u32 v18, 2816, v17")
    k("v_cmp_le_u32 vcc, 2, v3")
    k(f"v_cndmask_b32 v17, v{D_}, v17, vcc")
    k(f"v_cndmask_b32 v18, v{D_}, v18, vcc")
    k(f"v_lshrrev_b32 v{A_}, 3, v1")
    k(f"v_and_b32 v{B_}, 7, v1")
    k(f"v_min_u32 v{C_}, 4, v{B_}")
    k(f"v_mul_u32_u24 v14, 176, v{A_}")
    k(f"v_lshl_add_u32 v14, v{C_}, 5, v14")
    k("s_mul_i32 s24, s3, 1408"); k(f"s_add_u32 s24, s24, {L_ST}")
    k("v_add_u32 v21, s24, v14")
    k(f"v_add_u32 v14, {L_SP}, v14")
    k(f"v_cmp_gt_u32 s[50:51], 5, v{B_}")
    k("s_lshl_b32 s24, s3, 3")
    k(f"v_add_u32 v{C_}, s24, v{A_}")
    k(f"v_lshlrev_b32 v{D_}, 2, v{B_}")
    k(f"v_sub_u32 v{C_}, v{C_}, v{D_}")
    k(f"v_mov_b32 v{D_}, 100")
    k(f"v_cmp_gt_u32 vcc, 4, v{B_}")
    k(f"v_cndmask_b32 v{C_}, v{D_}, v{C_}, vcc")
    for j in range(8):
        cj = j if j < 4 else j + 12
        k(f"v_cmp_le_i32 s[{64+2*j}:{65+2*j}], {cj}, v{C_}")
    k("s_lshr_b32 s24, s44, 1"); k("s_lshl_b32 s24, s24, 10")
    k("s_and_b32 s25, s44, 1"); k("s_lshl_b32 s25, s25, 7"); k("s_add_u32 s24, s24, s25")
    k(f"v_lshlrev_b32 v15, 8, v{B_}")
    k(f"v_lshl_add_u32 v15, v{A_}, 4, v15")
    k("v_add_u32 v15, s24, v15")
    k("s_lshr_b32 s24, s44, 3"); k("s_lshl_b32 s24, s24, 10")
    k("s_and_b32 s25, s44, 3"); k("s_lshl_b32 s25, s25, 8"); k("s_add_u32 s24, s24, s25")
    k("s_lshr_b32 s25, s44, 2"); k("s_and_b32 s25, s25, 1"); k("s_lshl_b32 s25, s25, 7"); k("s_add_u32 s24, s24, s25")
    k("s_add_u32 s24, s24, 16384")
    k(f"v_lshlrev_b32 v{C_}, 4, v{A_}")
    k(f"v_add_u32 v{C_}, s24, v{C_}")
    k(f"v_cmp_eq_u32 vcc, 4, v{B_}")
    k(f"v_cndmask_b32 v15, v15, v{C_}, vcc")
    k(f"v_mov_b32 v{C_}, {OOB}")
    k(f"v_cndmask_b32 v15, v{C_}, v15, s[50:51]")
    k(f"s_mul_i32 s24, s3, 20480")
    k("v_add_u32 v15, s24, v15")
    if CFG['prep'] < 4:
        k(f"s_cmp_lt_u32 s3, {CFG['prep']}"); k(f"s_cselect_b32 s24, 0, {OOB}")
        k("v_or_b32 v15, s24, v15")
    k("s_and_b32 s24, s3, 1"); k("s_lshl_b32 s24, s24, 7")
    k("s_lshr_b32 s25, s3, 1"); k("s_lshl_b32 s25, s25, 10")
    k("s_add_u32 s24, s24, s25")
    k("s_lshl_b32 s25, s44, 11"); k("s_add_u32 s25, s25, s24")
    k(f"v_lshlrev_b32 v22, 8, v{B_}")
    k(f"v_lshl_add_u32 v22, v{A_}, 4, v22")
    k("v_add_u32 v22, s25, v22")
    k("s_lshr_b32 s25, s44, 2"); k("s_lshl_b32 s25, s25, 11"); k("s_add_u32 s25, s25, s24")
    k("s_and_b32 s26, s44, 3"); k("s_lshl_b32 s26, s26, 8"); k("s_add_u32 s25, s25, s26"); k("s_add_u32 s25, s25, 65536")
    k(f"v_lshlrev_b32 v{C_}, 4, v{A_}")
    k(f"v_add_u32 v{C_}, s25, v{C_}")
    k(f"v_cmp_eq_u32 vcc, 4, v{B_}")
    k(f"v_cndmask_b32 v22, v22, v{C_}, vcc")
    k(f"v_mov_b32 v{C_}, {OOB}")
    k(f"v_cndmask_b32 v22, v{C_}, v22, s[50:51]")
    k("s_mul_i32 s24, s44, 12288"); k("s_mul_i32 s25, s3, 3072"); k("s_add_u32 s24, s24, s25")
    k("v_add_u32 v19, s24, v5")
    k("v_and_b32 v10, 1, v1")
    k("v_lshlrev_b32 v10, 12, v10")
    k(f"s_lshl_b32 s24, s44, 7"); k(f"s_add_u32 s24, s24, {WS_FLG}")
    k("v_add_u32 v10, s24, v10")
    m0_image(k, 20, 48)
    k("s_mov_b32 s40, 0")
    k(f"s_mov_b32 s41, {WS_KF}")
    k(f"s_mov_b32 s42, {WS_PX}")
    k(f"s_mov_b32 s43, {WS_PB}")
    k(f"s_mov_b32 s45, {WS_QF}")
    k(f"s_mov_b32 s47, {WS_MB}")
    m_rep(k)
    def kx_loads():
        for b in range(3):
            k(f"buffer_load_dwordx4 a[{KX+4*b}:{KX+4*b+3}], v19, s[8:11], s41 offen offset:{b*1024} sc1")
    k("s_mov_b32 s62, -1"); k("s_mov_b32 s63, 1")
    ensure(k, 's_en0', 2, 10, 48)
    kx_loads()
    k("s_waitcnt lgkmcnt(0)")
    k(f"s_branch {k.ref('s_go')}")
    k.lab('s_step')
    stamp(k, 0)
    for r in range(24): k(f"v_mov_b32 v{ACC+r}, 0")
    loads_ = [f"buffer_load_dwordx4 v[48:51], v7, s[8:11], s47 offen sc1",
              f"buffer_load_dwordx4 v[52:55], v7, s[8:11], s48 offen sc1",
              f"buffer_load_dwordx2 v[56:57], v8, s[8:11], s47 offen sc1"]
    k("s_add_u32 s48, s47, 4096")
    poll(k, 's_pm', loads_, range(48, 58), 58, CFG['sl_m'], CFG['dly_m'])
    stamp(k, 1)
    k("ds_write_b128 v7, v[48:51]")
    k("ds_write_b128 v7, v[52:55] offset:4096")
    k("ds_write_b64 v8, v[56:57]")
    k("s_waitcnt lgkmcnt(0)")
    k.lab('s_go2')
    k("s_barrier")
    lg = LG(k)
    def rdA(c): lg.issue(('A', c), f"ds_read_b128 v[{AF+4*(c%5)}:{AF+4*(c%5)+3}], v5 offset:{c*1024}")
    def rdW(c):
        b = WS5 + 8 * (c % 3)
        lg.issue(('W', c), f"ds_read_b128 v[{b}:{b+3}], v6 offset:{c*2048}")
        lg.issue(('W', c), f"ds_read_b128 v[{b+4}:{b+7}], v6 offset:{c*2048+1024}")
    rdA(0); rdW(0); rdA(1); rdW(1); rdA(2); rdA(3); rdA(4)
    for c in range(10):
        a = AF + 4 * (c % 5)
        lg.wait(('A', c))
        for t in range(5):
            kind, r = wreg(t, c)
            k(f"v_smfmac_f32_16x16x64_bf16 v[{ACC+4*t}:{ACC+4*t+3}], v[{a}:{a+3}], {kind}[{r}:{r+7}], v4")
            if t == 1 and c + 2 < 10: rdW(c + 2)
        lg.wait(('W', c))
        b = WS5 + 8 * (c % 3)
        k(f"v_smfmac_f32_16x16x64_bf16 v[{ACC+20}:{ACC+23}], v[{a}:{a+3}], v[{b}:{b+7}], v4")
        if c + 5 < 10: rdA(c + 5)
    stamp(k, 2)
    for b in range(3):
        k(f"buffer_load_dwordx4 v[{QX+4*b}:{QX+4*b+3}], v19, s[8:11], s45 offen offset:{b*1024} sc1")
    T = 48
    for t in range(3):
        q = ACC + 4 * t; kk = ACC + 12 + 4 * t
        for r in range(4): k(f"v_permlane32_swap_b32 v{q+r}, v{kk+r}")
        for r in range(4): k(f"v_add_f32 v{q+r}, v{q+r}, v{kk+r}")
        k(f"v_cvt_pk_bf16_f32 v{T+2*t}, v{q}, v{q+1}")
        k(f"v_cvt_pk_bf16_f32 v{T+2*t+1}, v{q+2}, v{q+3}")
        k(f"ds_write_b64 v9, v[{T+2*t}:{T+2*t+1}] offset:{t*512}")
    XA, XB = 24, 28
    k("s_waitcnt lgkmcnt(0)")
    k(f"ds_read_b64_tr_b16 v[{XA}:{XA+1}], v11")
    k(f"ds_read_b64_tr_b16 v[{XA+2}:{XA+3}], v11 offset:512")
    k(f"ds_read_b64_tr_b16 v[{XB}:{XB+1}], v11 offset:1024")
    k("s_waitcnt lgkmcnt(0)")
    SC = 64
    k(f"v_mfma_f32_16x16x32_bf16 v[{SC}:{SC+3}], a[{KX}:{KX+3}], v[{XA}:{XA+3}], 0")
    k(f"v_mfma_f32_16x16x32_bf16 v[{SC+4}:{SC+7}], a[{KX+4}:{KX+7}], v[{XA}:{XA+3}], 0")
    k(f"v_mfma_f32_16x16x32_bf16 v[{SC+8}:{SC+11}], v[{XA}:{XA+3}], v[{XA}:{XA+3}], 0")
    k(f"v_mfma_f32_16x16x16_bf16 v[{SC}:{SC+3}], a[{KX+8}:{KX+9}], v[{XB}:{XB+1}], v[{SC}:{SC+3}]")
    k(f"v_mfma_f32_16x16x16_bf16 v[{SC+4}:{SC+7}], a[{KX+10}:{KX+11}], v[{XB}:{XB+1}], v[{SC+4}:{SC+7}]")
    k(f"v_mfma_f32_16x16x16_bf16 v[{SC+8}:{SC+11}], v[{XB}:{XB+1}], v[{XB}:{XB+1}], v[{SC+8}:{SC+11}]")
    k(f"ds_write_b128 v12, v[{SC}:{SC+3}]")
    k(f"ds_write_b128 v12, v[{SC+4}:{SC+7}] offset:16")
    k(f"ds_write_b128 v13, v[{SC+8}:{SC+11}]")
    k("s_waitcnt lgkmcnt(0)")
    k("s_barrier")
    stamp(k, 3)
    P0 = 48
    sum4x8(k, P0, 14, 1408)
    softmax8(k, P0, T0, T1)
    k(f"buffer_store_dwordx4 v[{P0+8}:{P0+11}], v15, s[8:11], s43 offen sc1")
    stamp(k, 4)
    SX = 32
    sx = lambda kt, tt: (32 + (kt * 2 + tt) * 4) if (kt * 2 + tt) < 4 else (64 + ((kt * 2 + tt) - 4) * 4)
    k("s_waitcnt vmcnt(1)")
    keys32 = [f"a[{KX}:{KX+3}]", f"a[{KX+4}:{KX+7}]", f"v[{XA}:{XA+3}]"]
    keys16 = [f"a[{KX+8}:{KX+9}]", f"a[{KX+10}:{KX+11}]", f"v[{XB}:{XB+1}]"]
    for tt in range(2):
        for kt in range(3):
            a = sx(kt, tt)
            k(f"v_mfma_f32_16x16x32_bf16 v[{a}:{a+3}], {keys32[kt]}, v[{QX+4*tt}:{QX+4*tt+3}], 0")
    for tt in range(2):
        for kt in range(3):
            a = sx(kt, tt)
            k(f"v_mfma_f32_16x16x16_bf16 v[{a}:{a+3}], {keys16[kt]}, v[{QX+8+2*tt}:{QX+8+2*tt+1}], v[{a}:{a+3}]")
    for tt in range(2):
        k(f"ds_write_b128 v16, v[{sx(0,tt)}:{sx(0,tt)+3}] offset:{tt*2816}")
        k(f"ds_write_b128 v16, v[{sx(1,tt)}:{sx(1,tt)+3}] offset:{tt*2816+16}")
        k(f"ds_write_b128 v{17+tt}, v[{sx(2,tt)}:{sx(2,tt)+3}]")
    k("s_add_u32 s40, s40, 1")
    k(f"s_add_u32 s41, s41, {QF_SEG}")
    k(f"s_add_u32 s45, s45, {QF_SEG}")
    k(f"s_add_u32 s43, s43, {PB_STEP}")
    k(f"s_add_u32 s47, s47, {MB_STEP}")
    k("s_waitcnt lgkmcnt(0)")
    k("s_barrier")
    k("s_add_u32 s63, s40, 1"); k("s_min_u32 s63, s63, 64")
    ensure(k, 's_en', 2, 10, 48)
    kx_loads()
    sum4x8(k, P0, 21, 5632)
    softmax8(k, P0, T0, T1, masks=64)
    k(f"buffer_store_dwordx4 v[{P0+8}:{P0+11}], v22, s[8:11], s42 offen sc1")
    k(f"s_add_u32 s42, s42, {PX_STEP}")
    stamp(k, 5)
    if CFG['stamp']:
        k("s_sub_u32 s40, s40, 1"); stamp_out(k, 6, 0, 0, 46); k("s_add_u32 s40, s40, 1")
    k("s_cmp_lt_u32 s40, 64")
    k(f"s_cbranch_scc1 {k.ref('s_step')}")
    k(f"s_branch {k.ref('end')}")
    k.lab('s_go')
    for r in range(24): k(f"v_mov_b32 v{ACC+r}, 0")
    k("s_waitcnt vmcnt(0)")
    k(f"s_branch {k.ref('s_go2')}")

def role_V(k):
    L_M, L_V, L_WO, L_ST = 0, 10240, 16384, 16384 + 73728
    RS1, RS2 = 400, 656
    MA, VACC, VA, STG = 16, 56, 68, 80
    def wv(t, c): return 'a', t * 80 + c * 8
    def wo(t, c):
        i = t * 3 + c
        if i < 2: return 'a', 240 + 8 * i
        return 'v', 104 + 8 * (i - 2)
    k("s_sub_u32 s44, s2, 32")
    k.ptr(KA_WV, 6); k.ptr(KA_WO, 24)
    k("s_waitcnt lgkmcnt(0)")
    k.srd(12, 6, D * HD * 2); k.srd(16, 24, D * HD * 2)
    GO, LO, DAT = 4, 10, 24
    stage_offsets(k, 6, 24, HD * 2, RS1, L_ST, GO, LO, 16)
    tr_base(k, 16, RS1, L_ST, 17)
    k("s_mul_i32 s24, s3, 96")
    k("v_add_u32 v16, s24, v16")
    k(f"s_mul_i32 s45, s44, 384")
    def loads(c):
        d = DAT + 24 * (c % 3)
        k(f"s_add_u32 s46, s45, {c * 64 * HD * 2}")
        for i in range(6):
            k(f"buffer_load_dwordx4 v[{d+4*i}:{d+4*i+3}], v{GO+i}, s[12:15], s46 offen")
    loads(0); loads(1)
    for c in range(10):
        d = DAT + 24 * (c % 3)
        k(f"s_waitcnt vmcnt({6 if c + 1 < 10 else 0})")
        for i in range(6): k(f"ds_write_b128 v{LO+i}, v[{d+4*i}:{d+4*i+3}]")
        if c + 2 < 10: loads(c + 2)
        k("s_waitcnt lgkmcnt(0)")
        k("s_barrier")
        for t in range(3):
            kind, r = wv(t, c)
            tr_frag(k, r, kind, 16, RS1, 32 * t)
        k("s_waitcnt lgkmcnt(0)")
        k("s_barrier")
    GO, LO, DAT = 4, 14, 24
    stage_offsets(k, 10, 40, 1280, RS2, L_ST, GO, LO, 64)
    tr_base(k, 72, RS2, L_ST, 64)
    k("s_and_b32 s24, s3, 1"); k("s_mul_i32 s24, s24, 320")
    k("v_add_u32 v72, s24, v72")
    k("v_lshlrev_b32 v73, 4, v1")
    k(f"s_mul_i32 s24, s3, 18432"); k(f"s_add_u32 s24, s24, {L_WO}")
    k("v_add_u32 v73, s24, v73")
    k(f"s_mul_i32 s45, s44, {192*1280}")
    for c in range(3):
        for hf in range(2):
            k(f"s_add_u32 s46, s45, {c*64*1280 + hf*640}")
            for i in range(10):
                k(f"buffer_load_dwordx4 v[{DAT+4*i}:{DAT+4*i+3}], v{GO+i}, s[16:19], s46 offen")
            k("s_waitcnt vmcnt(0)")
            for i in range(10): k(f"ds_write_b128 v{LO+i}, v[{DAT+4*i}:{DAT+4*i+3}]")
            k("s_waitcnt lgkmcnt(0)")
            k("s_barrier")
            l = k.new('wo')
            k("s_lshr_b32 s24, s3, 1")
            k(f"s_cmp_eq_u32 s24, {hf}")
            k(f"s_cbranch_scc0 {k.ref(l)}")
            for t in range(10):
                if t < 7:
                    kind, r = wo(t, c)
                    tr_frag(k, r, kind, 72, RS2, 32 * t)
                else:
                    tr_frag(k, 64, 'v', 72, RS2, 32 * t)
                    k("s_waitcnt lgkmcnt(0)")
                    o = ((t - 7) * 3 + c) * 2048
                    k(f"ds_write_b128 v73, v[64:67] offset:{o}")
                    k(f"ds_write_b128 v73, v[68:71] offset:{o+1024}")
                    k("s_waitcnt lgkmcnt(0)")
            k("s_waitcnt lgkmcnt(0)")
            k.lab(l)
            k("s_barrier")
    k("v_mov_b32 v6, v73")
    k("v_mov_b32 v4, 0x4444"); k("v_mov_b32 v5, 0xeeee")
    k("v_cmp_gt_u32 vcc, 8, v2")
    k("v_cndmask_b32 v4, v5, v4, vcc")
    k("v_lshlrev_b32 v5, 4, v1")
    k("s_lshl_b32 s24, s3, 10")
    k("v_add_u32 v7, s24, v5")
    k("s_lshl_b32 s24, s3, 9"); k("s_add_u32 s24, s24, 8192")
    k("v_lshlrev_b32 v8, 3, v1")
    k("v_add_u32 v8, s24, v8")
    k("v_and_b32 v64, 7, v2"); k("v_lshlrev_b32 v9, 5, v64")
    k("v_lshrrev_b32 v64, 3, v2"); k("v_lshl_add_u32 v9, v64, 4, v9")
    k("v_and_b32 v64, 1, v3"); k("v_lshl_add_u32 v9, v64, 3, v9")
    k(f"s_mul_i32 s24, s3, 768"); k(f"s_add_u32 s24, s24, {L_V}")
    k("v_add_u32 v9, s24, v9")
    k("v_lshrrev_b32 v65, 1, v3")
    k("v_lshl_add_u32 v10, v65, 8, v9")
    k("v_lshrrev_b32 v64, 2, v2"); k("v_lshlrev_b32 v11, 5, v64")
    k("v_and_b32 v64, 3, v2"); k("v_lshl_add_u32 v11, v64, 3, v11")
    k("v_lshl_add_u32 v11, v3, 8, v11")
    k(f"v_add_u32 v11, {L_V}, v11")
    k("s_mul_i32 s24, s3, 10"); k("s_lshl_b32 s24, s24, 13"); k("s_lshl_b32 s25, s44, 8"); k("s_add_u32 s24, s24, s25")
    k("v_lshlrev_b32 v14, 13, v3")
    k("v_lshl_add_u32 v14, v2, 4, v14")
    k("v_add_u32 v14, s24, v14")
    k("v_lshrrev_b32 v64, 1, v3")
    k("v_lshlrev_b32 v15, 13, v64")
    k("v_lshl_add_u32 v15, v2, 4, v15")
    k("v_add_u32 v15, s24, v15")
    k(f"v_add_u32 v15, {8*8192}, v15")
    k("v_and_b32 v64, 1, v3")
    k("v_cmp_eq_u32 vcc, 0, v64")
    k(f"v_mov_b32 v64, {OOB}")
    k("v_cndmask_b32 v15, v64, v15, vcc")
    m0_image(k, 20, 64)
    k("s_mov_b32 s40, 0")
    k(f"s_mov_b32 s43, {WS_VOM}")
    k(f"s_mov_b32 s47, {WS_MB}")
    m_rep(k)
    k("s_waitcnt lgkmcnt(0)")
    k(f"s_branch {k.ref('v_go2')}")
    k.lab('v_step')
    stamp(k, 0)
    loads_ = [f"buffer_load_dwordx4 v[16:19], v7, s[8:11], s47 offen sc1",
              f"buffer_load_dwordx4 v[20:23], v7, s[8:11], s48 offen sc1",
              f"buffer_load_dwordx2 v[24:25], v8, s[8:11], s47 offen sc1"]
    k("s_add_u32 s48, s47, 4096")
    poll(k, 'v_pm', loads_, range(16, 26), 26, CFG['sl_m'], CFG['dly_m'])
    stamp(k, 1)
    k("ds_write_b128 v7, v[16:19]")
    k("ds_write_b128 v7, v[20:23] offset:4096")
    k("ds_write_b64 v8, v[24:25]")
    k("s_waitcnt lgkmcnt(0)")
    k.lab('v_go2')
    k("s_barrier")
    lg = LG(k)
    for c in range(10): lg.issue(('A', c), f"ds_read_b128 v[{MA+4*c}:{MA+4*c+3}], v5 offset:{c*1024}")
    for r in range(12): k(f"v_mov_b32 v{VACC+r}, 0")
    for c in range(10):
        lg.wait(('A', c))
        for t in range(3):
            kind, r = wv(t, c)
            k(f"v_smfmac_f32_16x16x64_bf16 v[{VACC+4*t}:{VACC+4*t+3}], v[{MA+4*c}:{MA+4*c+3}], {kind}[{r}:{r+7}], v4")
    def rdWo(t, c, slot):
        b = STG + 8 * slot; o = ((t - 7) * 3 + c) * 2048
        lg.issue(('W', t, c), f"ds_read_b128 v[{b}:{b+3}], v6 offset:{o}")
        lg.issue(('W', t, c), f"ds_read_b128 v[{b+4}:{b+7}], v6 offset:{o+1024}")
    for c in range(3): rdWo(7, c, c)
    stamp(k, 2)
    for r in range(40): k(f"v_mov_b32 v{MA+r}, 0")
    for r in range(4): k(f"v_permlane32_swap_b32 v{VACC+r}, v{VACC+4+r}")
    for r in range(4): k(f"v_add_f32 v{VACC+r}, v{VACC+r}, v{VACC+4+r}")
    k(f"v_cvt_pk_bf16_f32 v{VA}, v{VACC}, v{VACC+1}")
    k(f"v_cvt_pk_bf16_f32 v{VA+1}, v{VACC+2}, v{VACC+3}")
    for r in range(4): k(f"v_mov_b32 v{VACC+4+r}, v{VACC+8+r}")
    for r in range(4): k(f"v_permlane32_swap_b32 v{VACC+8+r}, v{VACC+4+r}")
    for r in range(4): k(f"v_add_f32 v{VACC+8+r}, v{VACC+8+r}, v{VACC+4+r}")
    k(f"v_cvt_pk_bf16_f32 v{VA+2}, v{VACC+8}, v{VACC+9}")
    k(f"v_cvt_pk_bf16_f32 v{VA+3}, v{VACC+10}, v{VACC+11}")
    lg.issue('x', f"ds_write_b64 v10, v[{VA}:{VA+1}]")
    lg.issue('x', f"ds_write_b64 v9, v[{VA+2}:{VA+3}] offset:512")
    lg.all()
    k("s_barrier")
    for c in range(3):
        lg.issue(('V', c), f"ds_read_b64_tr_b16 v[{VA+4*c}:{VA+4*c+1}], v11 offset:{c*1024}")
        lg.issue(('V', c), f"ds_read_b64_tr_b16 v[{VA+4*c+2}:{VA+4*c+3}], v11 offset:{c*1024+128}")
    stamp(k, 3)
    acc = lambda t: MA + 4 * t
    def mm(t, c, B):
        k(f"v_smfmac_f32_16x16x64_bf16 v[{acc(t)}:{acc(t)+3}], v[{VA+4*c}:{VA+4*c+3}], {B}, v4")
    def B_reg(t, c):
        kind, r = wo(t, c); return f"{kind}[{r}:{r+7}]"
    OUT = 56
    def epi(T, o):
        L = []
        t0, t1, t2, t3 = T
        for (x, y) in ((t0, t2), (t1, t3)):
            for r in range(4): L.append(f"v_permlane32_swap_b32 v{acc(x)+r}, v{acc(y)+r}")
            for r in range(4): L.append(f"v_add_f32 v{acc(x)+r}, v{acc(x)+r}, v{acc(y)+r}")
        L.append(f"v_cvt_pk_bf16_f32 v{o}, v{acc(t0)}, v{acc(t0)+1}")
        L.append(f"v_cvt_pk_bf16_f32 v{o+1}, v{acc(t0)+2}, v{acc(t0)+3}")
        L.append(f"v_cvt_pk_bf16_f32 v{o+2}, v{acc(t1)}, v{acc(t1)+1}")
        L.append(f"v_cvt_pk_bf16_f32 v{o+3}, v{acc(t1)+2}, v{acc(t1)+3}")
        L.append(f"v_permlane16_swap_b32 v{o}, v{o+2}")
        L.append(f"v_permlane16_swap_b32 v{o+1}, v{o+3}")
        for r in range(4): L.append(f"v_min_u32 v{o+r}, -2, v{o+r}")
        return L
    for c in range(3):
        lg.wait(('V', c))
        for t in range(4): mm(t, c, B_reg(t, c))
    for c in range(3):
        for t in (4, 5, 6): mm(t, c, B_reg(t, c))
        mm(7, c, f"v[{STG+8*c}:{STG+8*c+7}]")
        rdWo(8, c, c)
    for s_ in epi([0, 1, 2, 3], OUT): k(s_)
    k(f"buffer_store_dwordx4 v[{OUT}:{OUT+3}], v14, s[8:11], s43 offen sc1")
    for c in range(3):
        lg.wait(('W', 8, c))
        mm(8, c, f"v[{STG+8*c}:{STG+8*c+7}]")
        rdWo(9, c, c)
    for s_ in epi([4, 5, 6, 7], OUT + 4): k(s_)
    k("s_add_u32 s49, s43, 32768")
    k(f"buffer_store_dwordx4 v[{OUT+4}:{OUT+7}], v14, s[8:11], s49 offen sc1")
    for c in range(3):
        lg.wait(('W', 9, c))
        mm(9, c, f"v[{STG+8*c}:{STG+8*c+7}]")
    o = OUT + 8
    for r in range(4): k(f"v_permlane32_swap_b32 v{acc(8)+r}, v{acc(9)+r}")
    for r in range(4): k(f"v_add_f32 v{acc(8)+r}, v{acc(8)+r}, v{acc(9)+r}")
    k(f"v_cvt_pk_bf16_f32 v{o}, v{acc(8)}, v{acc(8)+1}")
    k(f"v_cvt_pk_bf16_f32 v{o+1}, v{acc(8)+2}, v{acc(8)+3}")
    k(f"v_mov_b32 v{o+2}, v{o}")
    k(f"v_mov_b32 v{o+3}, v{o+1}")
    k(f"v_permlane16_swap_b32 v{o}, v{o+2}")
    k(f"v_permlane16_swap_b32 v{o+1}, v{o+3}")
    for r in range(4): k(f"v_min_u32 v{o+r}, -2, v{o+r}")
    k(f"buffer_store_dwordx4 v[{o}:{o+3}], v15, s[8:11], s43 offen sc1")
    stamp(k, 4)
    stamp_out(k, 5, 32, 1, 46)
    k("s_add_u32 s40, s40, 1")
    k(f"s_add_u32 s43, s43, {VOM_STEP}")
    k(f"s_add_u32 s47, s47, {MB_STEP}")
    k("s_cmp_lt_u32 s40, 64")
    k(f"s_cbranch_scc1 {k.ref('v_step')}")
    k(f"s_branch {k.ref('end')}")

def role_R(k, to_out):
    BX, BN, PX, PM, VM, A1, A2 = 16, 48, 80, 96, 100, 108, 112
    XP, XM, OA, TQ = 116, 180, 196, 204
    L_R, L_O = 0, 16384
    k("s_sub_u32 s44, s2, 64")
    k("v_lshlrev_b32 v5, 4, v1")
    k("s_lshl_b32 s24, s44, 15"); k("s_lshl_b32 s25, s3, 13"); k("s_add_u32 s24, s24, s25")
    k("v_add_u32 v6, s24, v5")
    k("v_add_u32 v7, 4096, v6")
    k("s_lshl_b32 s24, s3, 12")
    k("v_add_u32 v8, s24, v5")
    k("s_lshl_b32 s24, s3, 10"); k("s_add_u32 s24, s24, 16384")
    k("v_add_u32 v9, s24, v5")
    k("s_lshl_b32 s24, s44, 13"); k("s_lshl_b32 s25, s3, 11"); k("s_add_u32 s24, s24, s25")
    k("v_add_u32 v10, s24, v5")
    k(f"v_and_b32 v{TQ}, 7, v2"); k(f"v_mul_u32_u24 v11, 80, v{TQ}")
    k("v_lshl_add_u32 v11, v3, 4, v11")
    k("s_mul_i32 s24, s3, 640")
    k("v_add_u32 v11, s24, v11")
    k(f"v_add_u32 v{TQ}, 8192, v5")
    k("v_cmp_gt_u32 vcc, 8, v2")
    k(f"v_cndmask_b32 v11, v{TQ}, v11, vcc")
    k(f"v_and_b32 v{TQ}, 7, v2"); k(f"v_mul_u32_u24 v12, 80, v{TQ}")
    k(f"v_lshrrev_b32 v{TQ}, 3, v2"); k(f"v_lshl_add_u32 v12, v{TQ}, 5, v12")
    k("v_mul_u32_u24 v13, 10240, v3")
    k("v_lshl_add_u32 v13, v2, 4, v13")
    k("s_lshl_b32 s24, s44, 8")
    k("v_add_u32 v13, s24, v13")
    if CFG['mrep'] < 4:
        k(f"v_mov_b32 v{TQ}, {OOB}")
        k(f"v_cmp_gt_u32 vcc, {CFG['mrep']}, v3")
        k(f"v_cndmask_b32 v13, v{TQ}, v13, vcc")
    k("v_cmp_le_u32 s[50:51], 8, v2")
    k("s_lshl_b32 s24, s3, 14")
    k(f"v_add_u32 v{TQ+1}, s24, v5")
    for jj in range(4): k(f"v_add_u32 v{212+jj}, {jj*4096}, v{TQ+1}")
    k("s_lshl_b32 s24, s3, 12"); k("s_add_u32 s24, s24, 65536")
    k("v_add_u32 v216, s24, v5")
    k(f"s_lshl_b32 s24, s3, 11"); k(f"s_add_u32 s24, s24, {L_O}")
    k("v_add_u32 v217, s24, v5")
    k(f"s_lshl_b32 s24, s3, 10"); k(f"s_add_u32 s24, s24, {L_O}")
    k("v_add_u32 v218, s24, v5")
    k("s_lshl_b32 s24, s3, 4")
    k("v_add_u32 v219, s24, v2")
    k("v_mul_u32_u24 v219, 1280, v219")
    k("v_lshl_add_u32 v219, v3, 3, v219")
    k("s_lshl_b32 s24, s44, 5")
    k("v_add_u32 v219, s24, v219")
    if to_out:
        k.ptr(KA_OUT, 26); k("s_waitcnt lgkmcnt(0)"); k.srd(12, 26, S * D * 2)
    else:
        k.srd(12, 4, S * D * 2, G.WS_X1)
    k.srd(16, 4, S * D * 2, G.WS_X1)
    k("s_mov_b32 s40, 0")
    k(f"s_mov_b32 s41, {WS_VOX}")
    k(f"s_mov_b32 s43, {WS_PB}")
    k(f"s_mov_b32 s42, {WS_VOM}")
    k(f"s_mov_b32 s45, {WS_PX}")
    k(f"s_mov_b32 s46, 0")
    k(f"s_mov_b32 s47, {WS_MB + MB_STEP}")
    if CFG['prep'] > 1:
        k(f"s_and_b32 s24, s44, {CFG['prep']-1}"); k("s_mul_i32 s24, s24, 20480"); k("s_add_u32 s43, s43, s24")
    def vox_loads():
        for q in range(4):
            k(f"buffer_load_dwordx4 v[{BN+4*q}:{BN+4*q+3}], v6, s[8:11], s41 offen offset:{q*1024} sc1")
        for q in range(4):
            k(f"buffer_load_dwordx4 v[{BN+16+4*q}:{BN+16+4*q+3}], v7, s[8:11], s41 offen offset:{q*1024} sc1")
        k(f"s_add_u32 s41, s41, {VOX_SEG}")
    k("v_and_b32 v252, 7, v1")
    k("v_lshlrev_b32 v252, 7, v252")
    k(f"s_lshl_b32 s24, s3, 10"); k(f"s_add_u32 s24, s24, {WS_FLG + 3*4096}")
    k("v_add_u32 v252, s24, v252")
    k("s_mov_b32 s62, -1"); k("s_mov_b32 s63, 1")
    ensure(k, 'r_en0', 8, 252, 253)
    vox_loads()
    k("s_waitcnt vmcnt(0)")
    k.lab('r_step')
    for r in range(32): k(f"v_mov_b32 v{BX+r}, v{BN+r}")
    stamp(k, 0)
    loads_ = [f"buffer_load_dwordx4 v[{PX+4*q}:{PX+4*q+3}], v8, s[8:11], s43 offen offset:{q*1024} sc1" for q in range(4)]
    loads_ += [f"buffer_load_dwordx4 v[{PM}:{PM+3}], v9, s[8:11], s43 offen sc1"]
    loads_ += [f"buffer_load_dwordx4 v[{VM+4*q}:{VM+4*q+3}], v10, s[8:11], s42 offen offset:{q*1024} sc1" for q in range(2)]
    poll(k, 'r_p', loads_, range(PX, VM + 8), TQ, CFG['sl_p'], CFG['dly_p'])
    stamp(k, 1)
    k(f"v_mfma_f32_16x16x32_bf16 v[{A1}:{A1+3}], v[{VM}:{VM+3}], v[{PM}:{PM+3}], 0")
    k(f"v_mfma_f32_16x16x32_bf16 v[{A2}:{A2+3}], v[{VM+4}:{VM+7}], v[{PM}:{PM+3}], 0")
    for q in range(4):
        k(f"v_mfma_f32_16x16x32_bf16 v[{A1}:{A1+3}], v[{BX+8*q}:{BX+8*q+3}], v[{PX+4*q}:{PX+4*q+3}], v[{A1}:{A1+3}]")
        k(f"v_mfma_f32_16x16x32_bf16 v[{A2}:{A2+3}], v[{BX+8*q+4}:{BX+8*q+7}], v[{PX+4*q}:{PX+4*q+3}], v[{A2}:{A2+3}]")
    k("s_and_b32 s24, s40, 1"); k("s_mul_i32 s24, s24, 2560")
    k("v_add_u32 v14, s24, v11")
    k("v_add_u32 v15, s24, v12")
    for r in range(4): k(f"v_cndmask_b32 v{A1+r}, v{A1+r}, v{A2+r}, s[50:51]")
    for r in range(4): k(f"v_add_f32 v{A1+r}, v{A1+r}, v{A1+r} row_ror:8 row_mask:0xf bank_mask:0xf")
    k(f"ds_write_b128 v14, v[{A1}:{A1+3}]")
    k("s_waitcnt lgkmcnt(0)")
    k("s_barrier")
    stamp(k, 2)
    l = k.new('np')
    k("s_cmp_eq_u32 s3, 0")
    k(f"s_cbranch_scc0 {k.ref(l)}")
    Q0 = 220
    sum4x8(k, Q0, 15, 640)
    for q in range(4): k(f"v_cvt_pk_bf16_f32 v{Q0+8+q}, v{Q0+2*q}, v{Q0+2*q+1}")
    for q in range(4): k(f"v_min_u32 v{Q0+8+q}, -2, v{Q0+8+q}")
    k(f"buffer_store_dwordx4 v[{Q0+8}:{Q0+11}], v13, s[8:11], s47 offen sc1")
    k.lab(l)
    stamp(k, 3)
    k("s_add_u32 s63, s40, 2"); k("s_min_u32 s63, s63, 64")
    ensure(k, 'r_en', 8, 252, 253)
    vox_loads()
    k(f"buffer_load_dwordx2 v[{TQ+2}:{TQ+3}], v219, s[16:19], s46 offen")
    if CFG['dly_x']: k(f"s_sleep {CFG['dly_x']}")
    loads_ = []
    for j in range(8):
        for tt in range(2):
            r = XP + (j * 2 + tt) * 4
            loads_.append(f"buffer_load_dwordx4 v[{r}:{r+3}], v{212 + j//2}, s[8:11], s45 offen offset:{(j%2)*2048 + tt*1024} sc1")
    for q in range(2):
        for tt in range(2):
            r = XM + (q * 2 + tt) * 4
            loads_.append(f"buffer_load_dwordx4 v[{r}:{r+3}], v216, s[8:11], s45 offen offset:{q*2048 + tt*1024} sc1")
    poll(k, 'r_x', loads_, range(XP, XM + 16), TQ, CFG['sl_x'], 0)
    stamp(k, 4)
    for tt in range(2):
        a = OA + 4 * tt
        k(f"v_mfma_f32_16x16x32_bf16 v[{a}:{a+3}], v[{VM}:{VM+3}], v[{XM+4*tt}:{XM+4*tt+3}], 0")
    for tt in range(2):
        a = OA + 4 * tt
        k(f"v_mfma_f32_16x16x32_bf16 v[{a}:{a+3}], v[{VM+4}:{VM+7}], v[{XM+8+4*tt}:{XM+8+4*tt+3}], v[{a}:{a+3}]")
    for j in range(8):
        for tt in range(2):
            a = OA + 4 * tt; r = XP + (j * 2 + tt) * 4
            k(f"v_mfma_f32_16x16x32_bf16 v[{a}:{a+3}], v[{BX+4*j}:{BX+4*j+3}], v[{r}:{r+3}], v[{a}:{a+3}]")
    for tt in range(2): k(f"ds_write_b128 v217, v[{OA+4*tt}:{OA+4*tt+3}] offset:{tt*1024}")
    k("s_waitcnt lgkmcnt(0)")
    k("s_barrier")
    l2 = k.new('no')
    k("s_cmp_lt_u32 s3, 2")
    k(f"s_cbranch_scc0 {k.ref(l2)}")
    for w in range(4): k(f"ds_read_b128 v[{Q0+4*w}:{Q0+4*w+3}], v218 offset:{w*2048}")
    k("s_waitcnt lgkmcnt(0)")
    for r in range(0, 4, 2):
        k(f"v_pk_add_f32 v[{Q0+r}:{Q0+r+1}], v[{Q0+r}:{Q0+r+1}], v[{Q0+4+r}:{Q0+4+r+1}]")
        k(f"v_pk_add_f32 v[{Q0+8+r}:{Q0+8+r+1}], v[{Q0+8+r}:{Q0+8+r+1}], v[{Q0+12+r}:{Q0+12+r+1}]")
    for r in range(0, 4, 2):
        k(f"v_pk_add_f32 v[{Q0+r}:{Q0+r+1}], v[{Q0+r}:{Q0+r+1}], v[{Q0+8+r}:{Q0+8+r+1}]")
    k(f"v_cvt_pk_bf16_f32 v{Q0+4}, v{Q0}, v{Q0+1}")
    k(f"v_cvt_pk_bf16_f32 v{Q0+5}, v{Q0+2}, v{Q0+3}")
    for h in range(2):
        k(f"v_lshlrev_b32 v{Q0+2*h}, 16, v{Q0+4+h}")
        k(f"v_and_b32 v{Q0+2*h+1}, 0xffff0000, v{Q0+4+h}")
        k(f"v_lshlrev_b32 v{Q0+6}, 16, v{TQ+2+h}")
        k(f"v_and_b32 v{Q0+7}, 0xffff0000, v{TQ+2+h}")
        k(f"v_add_f32 v{Q0+2*h}, v{Q0+2*h}, v{Q0+6}")
        k(f"v_add_f32 v{Q0+2*h+1}, v{Q0+2*h+1}, v{Q0+7}")
    k(f"v_cvt_pk_bf16_f32 v{Q0+4}, v{Q0}, v{Q0+1}")
    k(f"v_cvt_pk_bf16_f32 v{Q0+5}, v{Q0+2}, v{Q0+3}")
    k(f"buffer_store_dwordx2 v[{Q0+4}:{Q0+5}], v219, s[12:15], s46 offen")
    k.lab(l2)
    stamp(k, 5)
    stamp_out(k, 6, 64, 2, TQ)
    k("s_add_u32 s40, s40, 1")
    k(f"s_add_u32 s42, s42, {VOM_STEP}")
    k(f"s_add_u32 s43, s43, {PB_STEP}")
    k(f"s_add_u32 s45, s45, {PX_STEP}")
    k(f"s_add_u32 s46, s46, {32*1280}")
    k(f"s_add_u32 s47, s47, {MB_STEP}")
    k("s_cmp_lt_u32 s40, 64")
    k(f"s_cbranch_scc1 {k.ref('r_step')}")
    k(f"s_branch {k.ref('end')}")

def flag_pub(k, val):
    l = k.new('fp')
    k("s_cmp_eq_u32 s3, 0")
    k(f"s_cbranch_scc0 {k.ref(l)}")
    k(f"v_mov_b32 v15, {val}")
    k("buffer_store_dword v15, v14, s[8:11], 0 offen sc1")
    k.lab(l)

def flag_addr(k, role_sreg_or_const):
    if isinstance(role_sreg_or_const, int): k(f"s_mov_b32 s24, {role_sreg_or_const * 4096}")
    else: k(f"s_lshl_b32 s24, {role_sreg_or_const}, 12")
    k("s_lshl_b32 s25, s44, 7"); k("s_add_u32 s24, s24, s25"); k(f"s_add_u32 s24, s24, {WS_FLG}")
    k("v_mov_b32 v14, s24")
    k(f"v_mov_b32 v15, {OOB}")
    k("v_cmp_eq_u32 vcc, 0, v1")
    k("v_cndmask_b32 v14, v15, v14, vcc")

def role_P(k):
    RS, L_ST = 400, 81920
    XPRE, BF, ACC, OUT = 16, 56, 88, 112
    k("s_sub_u32 s44, s2, 104")
    k("s_lshr_b32 s46, s44, 5")
    k("s_and_b32 s44, s44, 31")
    k.ptr(KA_WQ, 6); k.ptr(KA_WK, 24); k.ptr(KA_WV, 26)
    k("s_waitcnt lgkmcnt(0)")
    k("s_cmp_eq_u32 s46, 1"); k("s_cselect_b32 s6, s24, s6"); k("s_cselect_b32 s7, s25, s7")
    k(f"s_mov_b32 s43, {WS_QF}")
    k(f"s_cselect_b32 s43, {WS_KF}, s43")
    k("s_cmp_eq_u32 s46, 2"); k("s_cselect_b32 s6, s26, s6"); k("s_cselect_b32 s7, s27, s7")
    k(f"s_cselect_b32 s43, {WS_VF}, s43")
    k.srd(12, 6, D * HD * 2)
    GO, LO, DAT = 4, 10, 56
    stage_offsets(k, 6, 24, HD * 2, RS, L_ST, GO, LO, 16)
    k("v_lshrrev_b32 v16, 2, v2")
    k("v_lshl_add_u32 v16, v3, 3, v16")
    k(f"v_mul_u32_u24 v0, {RS}, v16")
    k("v_and_b32 v16, 3, v2")
    k("v_lshl_add_u32 v0, v16, 3, v0")
    k(f"s_mul_i32 s24, s3, 96"); k(f"s_add_u32 s24, s24, {L_ST}")
    k("v_add_u32 v0, s24, v0")
    k("v_lshlrev_b32 v16, 4, v1")
    k("s_mul_i32 s24, s3, 10240")
    k("v_add_u32 v17, s24, v16")
    k("v_add_u32 v18, 4096, v17"); k("v_add_u32 v19, 8192, v17")
    k(f"s_mov_b32 s41, {WS_XNF}")
    xdst = lambda i: (f"a[{240+4*i}:{243+4*i}]" if i < 4 else f"v[{20+4*(i-4)}:{23+4*(i-4)}]")
    for i in range(10):
        k(f"buffer_load_dwordx4 {xdst(i)}, v{17 + i//4}, s[8:11], s41 offen offset:{(i%4)*1024}")
    k("s_mul_i32 s45, s44, 384")
    def loads(c):
        d = DAT + 24 * (c % 8)
        k(f"s_add_u32 s47, s45, {c * 64 * HD * 2}")
        for i in range(6):
            k(f"buffer_load_dwordx4 v[{d+4*i}:{d+4*i+3}], v{GO+i}, s[12:15], s47 offen")
    for c in range(8): loads(c)
    waits = [42, 42, 42, 36, 30, 24, 18, 12, 6, 0]
    for c in range(10):
        d = DAT + 24 * (c % 8)
        k(f"s_waitcnt vmcnt({waits[c]})")
        for i in range(6): k(f"ds_write_b128 v{LO+i}, v[{d+4*i}:{d+4*i+3}] offset:{(c%2)*25600}")
        if c == 0:
            for i in range(10): k(f"ds_write_b128 v17, {xdst(i)} offset:{i*1024}")
        k("s_waitcnt lgkmcnt(0)")
        if c < 2: loads(c + 8)
        k("s_barrier")
        for t in range(3):
            for jj in range(2):
                r = (t * 20 + 2 * c + jj) * 4
                for hf in range(2):
                    k(f"ds_read_b64_tr_b16 a[{r+2*hf}:{r+2*hf+1}], v0 offset:{(c%2)*25600 + (32*jj + 4*hf)*RS + 32*t}")
    k("v_mov_b32 v6, v17"); k("v_mov_b32 v7, v18"); k("v_mov_b32 v8, v19")
    k("v_lshlrev_b32 v5, 4, v1")
    k("s_mul_i32 s24, s44, 12288"); k("s_mul_i32 s25, s3, 3072"); k("s_add_u32 s24, s24, s25")
    k("v_add_u32 v11, s24, v5")
    flag_addr(k, 's46')
    k("s_mov_b32 s40, 0")
    k("s_mov_b32 s42, 0")
    k("s_waitcnt lgkmcnt(0)")
    k.lab('p_seg')
    k("v_add_u32 v9, s42, v5")
    k("s_xor_b32 s42, s42, 40960")
    k("v_add_u32 v10, s42, v6")
    k("s_add_u32 s41, s41, 40960")
    for i in range(10):
        k(f"buffer_load_dwordx4 v[{XPRE+4*i}:{XPRE+4*i+3}], v{6 + i//4}, s[8:11], s41 offen offset:{(i%4)*1024}")
    lg = LG(k)
    def rd(j):
        for tt in range(2):
            r = BF + ((j % 4) * 2 + tt) * 4
            lg.issue(j, f"ds_read_b128 v[{r}:{r+3}], v9 offset:{tt*20480 + j*1024}")
    rd(0); rd(1); rd(2)
    for j in range(20):
        if j + 3 < 20: rd(j + 3)
        lg.wait(j)
        for tt in range(2):
            r = BF + ((j % 4) * 2 + tt) * 4
            for t in range(3):
                a = ACC + (tt * 3 + t) * 4; w = (t * 20 + j) * 4
                c = f"v[{a}:{a+3}]" if j else "0"
                k(f"v_mfma_f32_16x16x32_bf16 v[{a}:{a+3}], a[{w}:{w+3}], v[{r}:{r+3}], {c}")
        if j == 9:
            k("s_waitcnt vmcnt(10)")
            k("s_barrier")
            flag_pub(k, 's40')
    acc = lambda tt, t: ACC + (tt * 3 + t) * 4
    for o, (tt, t) in enumerate([(0, 0), (0, 1), (1, 0), (1, 1), (0, 2), (1, 2)]):
        a = acc(tt, t)
        k(f"v_cvt_pk_bf16_f32 v{OUT+2*o}, v{a}, v{a+1}")
        k(f"v_cvt_pk_bf16_f32 v{OUT+2*o+1}, v{a+2}, v{a+3}")
    for b in range(3):
        k(f"buffer_store_dwordx4 v[{OUT+4*b}:{OUT+4*b+3}], v11, s[8:11], s43 offen offset:{b*1024} sc1")
    k("s_waitcnt vmcnt(3)")
    for i in range(10): k(f"ds_write_b128 v10, v[{XPRE+4*i}:{XPRE+4*i+3}] offset:{i*1024}")
    k("s_add_u32 s40, s40, 1")
    k(f"s_add_u32 s43, s43, {QF_SEG}")
    k("s_waitcnt lgkmcnt(0)")
    k("s_barrier")
    k("s_cmp_lt_u32 s40, 64")
    k(f"s_cbranch_scc1 {k.ref('p_seg')}")
    k("s_waitcnt vmcnt(0)")
    k("s_barrier")
    flag_pub(k, 's40')
    k(f"s_branch {k.ref('end')}")

def role_O(k):
    RS = 1312
    VFa, VFb, ACC, OUT = 16, 64, 112, 192
    k("s_sub_u32 s44, s2, 200")
    k.ptr(KA_WO, 6)
    k("s_waitcnt lgkmcnt(0)")
    k.srd(12, 6, D * HD * 2)
    LO, D0, D1 = 16, 48, 168
    for i in range(30):
        k(f"v_add_u32 v8, {256*i}, v0")
        divmod_const(k, 9, 10, 8, 80, 256 * 30, 24)
        k(f"v_mul_u32_u24 v{LO+i}, {RS}, v9")
        k(f"v_lshl_add_u32 v{LO+i}, v10, 4, v{LO+i}")
    k("v_lshlrev_b32 v4, 4, v0")
    k(f"s_mul_i32 s45, s44, {192*1280}")
    dat = lambda b, i: (D0 + 4 * i) if b == 0 else ((D1 + 4 * i) if i < 22 else (D0 + 4 * (i - 22)))
    def ld(b, i):
        k(f"s_add_u32 s46, s45, {b*96*1280 + i*4096}")
        d = dat(b, i)
        k(f"buffer_load_dwordx4 v[{d}:{d+3}], v4, s[12:15], s46 offen")
    for i in range(30): ld(0, i)
    for i in range(22): ld(1, i)
    k("v_lshrrev_b32 v8, 2, v2")
    k("v_lshl_add_u32 v8, v3, 2, v8")
    k(f"v_mul_u32_u24 v5, {RS}, v8")
    k("v_and_b32 v8, 3, v2")
    k("v_lshl_add_u32 v5, v8, 3, v5")
    k("s_mul_i32 s24, s3, 320")
    k("v_add_u32 v5, s24, v5")
    k(f"v_add_u32 v6, {48*RS}, v5")
    for b in range(2):
        k(f"s_waitcnt vmcnt({22 if b == 0 else 0})")
        for i in range(30):
            d = dat(b, i)
            k(f"ds_write_b128 v{LO+i}, v[{d}:{d+3}]")
        k("s_waitcnt lgkmcnt(0)")
        if b == 0:
            for i in range(22, 30): ld(1, i)
        k("s_barrier")
        for t in range(10):
            def tr(ks, hf, base, row):
                r = (t * 6 + ks) * 4 + 2 * hf
                k(f"ds_read_b64_tr_b16 a[{r}:{r+1}], v{base} offset:{row*RS + 32*t}")
            tr(2*b, 0, 5, 0); tr(2*b, 1, 5, 16)
            tr(2*b+1, 0, 6, 0); tr(2*b+1, 1, 6, 16)
            tr(4+b, 0, 5, 32); tr(4+b, 1, 6, 32)
        k("s_waitcnt lgkmcnt(0)")
        k("s_barrier")
    k("v_lshlrev_b32 v5, 4, v1")
    k("s_mul_i32 s24, s44, 12288")
    k("v_add_u32 v6, s24, v5")
    k("v_add_u32 v7, 4096, v6"); k("v_add_u32 v8, 8192, v6")
    k(f"s_mul_i32 s24, s3, {10*32768}"); k("s_lshl_b32 s25, s44, 10"); k("s_add_u32 s24, s24, s25")
    k("v_add_u32 v9, s24, v5")
    flag_addr(k, 3)
    k(f"s_lshl_b32 s24, s44, 7"); k(f"s_add_u32 s24, s24, {WS_FLG + 2*4096}")
    k("v_mov_b32 v10, s24")
    k(f"s_mov_b32 s41, {WS_VF}")
    k(f"s_mov_b32 s43, {WS_VOX}")
    k("s_mov_b32 s40, 0")
    def vloads(V):
        for i in range(12):
            k(f"buffer_load_dwordx4 v[{V+4*i}:{V+4*i+3}], v{6 + i//4}, s[8:11], s41 offen offset:{(i%4)*1024} sc1")
        k(f"s_add_u32 s41, s41, {QF_SEG}")
    k("s_mov_b32 s62, -1"); k("s_mov_b32 s63, 1")
    ensure(k, 'o_en0', 1, 10, 11)
    vloads(VFa)
    k("s_waitcnt vmcnt(0)")
    k.lab('o_seg')
    for par, (V, VN) in enumerate(((VFa, VFb), (VFb, VFa))):
        for p in range(2):
            X = V + (6 * p + 2) * 4; Y = V + (6 * p + 5) * 4
            k(f"v_swap_b32 v{X+2}, v{Y}"); k(f"v_swap_b32 v{X+3}, v{Y+1}")
        def frag(tt, ks):
            if ks < 4: return V + (3 * ks + tt) * 4
            p = ks - 4
            return V + (6 * p + 2) * 4 if tt == 0 else V + (6 * p + 5) * 4
        for ks in range(6):
            for t in range(10):
                for tt in range(2):
                    a = ACC + (t * 2 + tt) * 4; w = (t * 6 + ks) * 4; f = frag(tt, ks)
                    c = f"v[{a}:{a+3}]" if ks else "0"
                    k(f"v_mfma_f32_16x16x32_bf16 v[{a}:{a+3}], v[{f}:{f+3}], a[{w}:{w+3}], {c}")
            if ks == 2:
                k("s_waitcnt vmcnt(0)")
                k("s_barrier")
                flag_pub(k, 's40')
                k("s_add_u32 s63, s40, 2"); k("s_min_u32 s63, s63, 64")
                ensure(k, f'o_en{par+1}', 1, 10, 11)
                vloads(VN)
        k("s_mov_b32 s46, s43")
        for t in range(10):
            o = OUT + 4 * t
            for tt in range(2):
                a = ACC + (t * 2 + tt) * 4
                k(f"v_cvt_pk_bf16_f32 v{o+2*tt}, v{a}, v{a+1}")
                k(f"v_cvt_pk_bf16_f32 v{o+2*tt+1}, v{a+2}, v{a+3}")
            k(f"buffer_store_dwordx4 v[{o}:{o+3}], v9, s[8:11], s46 offen sc1")
            if t < 9: k("s_add_u32 s46, s46, 32768")
        k("s_waitcnt vmcnt(10)")
        k("s_add_u32 s40, s40, 1")
        k(f"s_add_u32 s43, s43, {VOX_SEG}")
    k("s_cmp_lt_u32 s40, 64")
    k(f"s_cbranch_scc1 {k.ref('o_seg')}")
    k("s_waitcnt vmcnt(0)")
    k("s_barrier")
    flag_pub(k, 's40')
    k(f"s_branch {k.ref('end')}")

def k_lnf(name, src_slot, src_off):
    k = K(name, vgpr=72, sgpr=40)
    X, F = 8, 28
    k("s_cmp_ge_u32 s2, 128")
    k(f"s_cbranch_scc1 {k.ref('end')}")
    k.ptr(src_slot, 6); k.ptr(KA_WS, 12)
    k("v_and_b32 v1, 63, v0")
    k("v_lshrrev_b32 v4, 6, v0")
    k("v_and_b32 v2, 15, v1")
    k("v_lshrrev_b32 v3, 4, v1")
    k("v_readfirstlane_b32 s3, v4")
    k("s_waitcnt lgkmcnt(0)")
    k.srd(8, 6, S * D * 2, src_off)
    k.srd(16, 12, S * D * 2, WS_XNF)
    k("s_lshl_b32 s4, s2, 4")
    k("v_add_u32 v5, s4, v2")
    k("v_mul_u32_u24 v5, 1280, v5")
    k("v_lshl_add_u32 v5, v3, 4, v5")
    k("s_mul_i32 s5, s3, 320")
    k("v_add_u32 v5, s5, v5")
    for j in range(5): k(f"buffer_load_dwordx4 v[{X+4*j}:{X+4*j+3}], v5, s[8:11], 0 offen offset:{j*64}")
    k("v_lshlrev_b32 v6, 4, v2")
    k("s_lshl_b32 s5, s3, 2")
    k("v_add_u32 v7, s5, v6")
    k("s_waitcnt vmcnt(0)")
    for r in range(20):
        k(f"v_lshlrev_b32 v{F+2*r}, 16, v{X+r}")
        k(f"v_and_b32 v{F+2*r+1}, 0xffff0000, v{X+r}")
    def reduce(v, t, off):
        for sw in ("v_permlane16_swap_b32", "v_permlane32_swap_b32"):
            k(f"v_mov_b32 v{t}, v{v}")
            k(f"{sw} v{v}, v{t}")
            k(f"v_add_f32 v{v}, v{v}, v{t}")
        k(f"ds_write_b32 v7, v{v} offset:{off}")
        k("s_waitcnt lgkmcnt(0)")
        k("s_barrier")
        k(f"ds_read_b128 v[{X}:{X+3}], v6 offset:{off}")
        k("s_waitcnt lgkmcnt(0)")
        k(f"v_add_f32 v{X}, v{X}, v{X+1}")
        k(f"v_add_f32 v{X+2}, v{X+2}, v{X+3}")
        k(f"v_add_f32 v{v}, v{X}, v{X+2}")
    k(f"v_add_f32 v68, v{F}, v{F+1}")
    k(f"v_add_f32 v69, v{F+2}, v{F+3}")
    for r in range(4, 40, 2):
        k(f"v_add_f32 v68, v68, v{F+r}")
        k(f"v_add_f32 v69, v69, v{F+r+1}")
    k("v_add_f32 v68, v68, v69")
    reduce(68, 69, 0)
    k(f"v_mul_f32 v68, {1.0/D!r}, v68")
    for r in range(40): k(f"v_sub_f32 v{F+r}, v{F+r}, v68")
    k(f"v_mul_f32 v68, v{F}, v{F}")
    k(f"v_mul_f32 v69, v{F+1}, v{F+1}")
    for r in range(2, 40, 2):
        k(f"v_fmac_f32 v68, v{F+r}, v{F+r}")
        k(f"v_fmac_f32 v69, v{F+r+1}, v{F+r+1}")
    k("v_add_f32 v68, v68, v69")
    reduce(68, 69, 256)
    k("v_mov_b32 v69, 0x3727c5ac")
    k(f"v_fmac_f32 v69, {1.0/D!r}, v68")
    k("v_rsq_f32 v69, v69")
    for r in range(40): k(f"v_mul_f32 v{F+r}, v{F+r}, v69")
    for r in range(20): k(f"v_cvt_pk_bf16_f32 v{X+r}, v{F+2*r}, v{F+2*r+1}")
    k("s_mul_i32 s4, s2, 20480"); k("s_mul_i32 s5, s3, 5120"); k("s_add_u32 s4, s4, s5")
    k("v_lshlrev_b32 v5, 4, v1")
    for j in range(5):
        if j == 4: k("s_add_u32 s4, s4, 4096")
        k(f"buffer_store_dwordx4 v[{X+4*j}:{X+4*j+3}], v5, s[16:19], s4 offen offset:{(j%4)*1024}")
    k.lab('end')
    return k, 128, 512

def k_chainz(name, to_out):
    k = K(name, vgpr=256, sgpr=100, agpr=256)
    k("s_cmp_ge_u32 s2, 232")
    k(f"s_cbranch_scc1 {k.ref('end')}")
    k.ptr(KA_WS, 4); k.ptr(KA_MEM0, 6)
    k("v_and_b32 v1, 63, v0")
    k("v_lshrrev_b32 v4, 6, v0")
    k("v_and_b32 v2, 15, v1")
    k("v_lshrrev_b32 v3, 4, v1")
    k("v_readfirstlane_b32 s3, v4")
    k(f"s_mov_b32 s60, {SPIN_MAX}")
    k("s_waitcnt lgkmcnt(0)")
    k.srd(8, 4, WS_BYTES)
    k.srd(20, 6, 8 * 640 * 2)
    k("s_cmp_ge_u32 s2, 200")
    k(f"s_cbranch_scc1 {k.ref('roleO')}")
    k("s_cmp_ge_u32 s2, 104")
    k(f"s_cbranch_scc1 {k.ref('roleP')}")
    k("s_cmp_ge_u32 s2, 64")
    k(f"s_cbranch_scc1 {k.ref('roleR')}")
    k("s_cmp_ge_u32 s2, 32")
    k(f"s_cbranch_scc1 {k.ref('roleV')}")
    role_S(k)
    k.lab('roleV')
    role_V(k)
    k.lab('roleR')
    role_R(k, to_out)
    k.lab('roleP')
    role_P(k)
    k.lab('roleO')
    role_O(k)
    k.lab('end')
    return k, 232, 135168

import gen2
gen2.WS_VOX = WS_VOX
k_clear = gen2.k_clear
G.PACK = G.PACK[:2]
G.EX_CLEAR_BYTES = 0

def build():
    kernels = []; launches = []
    def add(k, nwg, lds=0, block=256):
        if k not in kernels: kernels.append(k)
        launches.append((k.name, nwg, block, lds))
    kp, n = G.k_pack(); add(kp, n)
    kl, n = G.k_ln("ln_a1", KA_AX, 0); add(kl, n)
    kg, n, lds = G.k_gemm("qkv_a", S, 1920, D, G.WS_XN, D * 2, G.WS_PQKVA, 4, 5, dict(kind='qkvA')); add(kg, n, lds); n_qkva, lds_qkva = n, lds
    kz, n = G.k_kvz("kvz_a1", 0); add(kz, n)
    ka, n, lds = G.k_attn_a("attn_a1", 0); add(ka, n, lds)
    kg2, n, lds = G.k_gemm("wo_a1", S, D, D, G.WS_OA, D * 2, G.WS_PWOA, 2, 5, dict(kind='res', res_slot=KA_AX, res_off=0, out_off=G.WS_X1, res_in=True)); add(kg2, n, lds)
    kl2, n2, lds2 = k_lnf("lnf", KA_WS, G.WS_X1); add(kl2, n2, lds2)
    kcl, ncl = k_clear("clr", WS_SYNC, SYNC_END - WS_SYNC); add(kcl, ncl)
    kc, n, lds = k_chainz("chain1", False); add(kc, n, lds)
    kl3, n = G.k_ln("ln_a2", KA_WS, G.WS_X1); add(kl3, n)
    add(kg, n_qkva, lds_qkva)
    kz2, n = G.k_kvz("kvz_a2", 1); add(kz2, n)
    ka2, n, lds = G.k_attn_a("attn_a2", 1); add(ka2, n, lds)
    kg5, n, lds = G.k_gemm("wo_a2", S, D, D, G.WS_OA, D * 2, G.WS_PWOA, 2, 5, dict(kind='res', res_off=G.WS_X1, out_off=G.WS_X1)); add(kg5, n, lds)
    add(kl2, n2, lds2)
    add(kcl, ncl)
    kc2, n, lds = k_chainz("chain2", True); add(kc2, n, lds)
    head = ["; generated by gen4.py (my own hand-written generator); kernarg: 13 pointers"]
    for name, nwg, block, lds in launches:
        head.append(f"; @launch kernel={name} grid=({nwg},1,1) block=({block},1,1) lds={lds}")
    head.append('.amdgcn_target "amdgcn-amd-amdhsa--gfx950"')
    return "\n".join(head) + "\n" + "\n".join(k.text() for k in kernels) + "\n"

CFG.setdefault('dly_x', 0)
if __name__ == "__main__":
    out = "z.s"
    for a in sys.argv[1:]:
        if a == "stamp": CFG['stamp'] = True
        elif a.endswith(".s"): out = a
        elif "=" in a:
            kk, v = a.split("="); CFG[kk] = int(v)
    open(out, "w").write(build())
    print("written", out)
```

```python
import sys
import gen as G
from asmlib import K, vr, ar, sr, magic
from gen import hexf, LOG2E

NAME = G.NAME
S, D, H, DH, HD, NSEG = 2048, 640, 32, 192, 6144, 64
KA_AX, KA_WQKV, KA_WOA, KA_BX, KA_MEM0, KA_WQ, KA_WK, KA_WV, KA_WO, KA_SEG, KA_OUT, KA_DBG, KA_WS = range(13)
WS_BYTES = 268435456

WS_VF    = 0x02000000
WS_XNF   = 0x03900000
WS_QF    = 0x04000000
WS_KF    = 0x05800000
QF_SEG   = 32 * 12288
WS_SYNC  = 0x07000000
WS_VOM   = WS_SYNC
VOM_STEP = 40 * 32 * 256
WS_MB    = WS_VOM + 64 * VOM_STEP
MB_STEP  = 4 * 10240
WS_PB    = WS_MB + 65 * MB_STEP
PB_STEP  = 4 * 20480
WS_PX    = WS_PB + 64 * PB_STEP
PX_STEP  = 81920
WS_FLG   = WS_PX + 64 * PX_STEP
WS_HR    = WS_FLG + 128 * 128
HK = 8
for _a in sys.argv[1:]:
    if _a.startswith('hk='): HK = int(_a[3:])
HR_REP = 40 * 128
HR_STEP = HK * HR_REP
WS_HS    = WS_HR + 65 * HR_STEP
HS_REP = 64 * 128
HS_STEP = HK * HS_REP
SYNC_END = WS_HS + 64 * HS_STEP
WS_VOX   = 0x0B000000
VOX_SEG  = 40 * 32 * 1024
assert SYNC_END <= WS_VOX and WS_VOX + 64 * VOX_SEG <= WS_BYTES
SCALE_B = DH ** -0.5
SPIN_MAX = 1 << 17
OOB = 0x7ff00000

CFG = dict(stamp=False, dly_m=0, dly_p=0, sl_m=1, sl_p=1, sl_x=2, mrep=1, prep=1, stamp_step=20)

class LG:
    def __init__(self, k): self.k = k; self.q = []
    def issue(self, tag, text):
        self.k(text); self.q.append(tag)
    def wait(self, tag):
        if tag not in self.q: return
        idx = max(i for i, t in enumerate(self.q) if t == tag)
        n = len(self.q) - 1 - idx
        assert n <= 15, n
        self.k(f"s_waitcnt lgkmcnt({n})")
        self.q = self.q[idx + 1:]
    def all(self):
        self.k("s_waitcnt lgkmcnt(0)"); self.q = []

def poll(k, name, loads, regs, tmp, sleep, first_delay=0, depth=1):
    if first_delay:
        k(f"s_sleep {first_delay}")
    k("s_mov_b32 s61, 0")
    for d in range(depth - 1):
        for l in loads: k(l)
        if sleep: k(f"s_sleep {sleep}")
    k.lab(name)
    for l in loads: k(l)
    k(f"s_waitcnt vmcnt({(depth - 1) * len(loads)})")
    rs = list(regs)
    k(f"v_max3_u32 v{tmp}, v{rs[0]}, v{rs[1]}, v{rs[2]}")
    rs = rs[3:]
    while len(rs) >= 2:
        k(f"v_max3_u32 v{tmp}, v{tmp}, v{rs[0]}, v{rs[1]}"); rs = rs[2:]
    if rs: k(f"v_max_u32 v{tmp}, v{tmp}, v{rs[0]}")
    k(f"v_cmp_eq_u32 vcc, -1, v{tmp}")
    k("s_add_u32 s61, s61, 1")
    k(f"s_cbranch_vccz {k.ref(name + '_out')}")
    k("s_cmp_ge_u32 s61, s60")
    k(f"s_cbranch_scc1 {k.ref(name + '_to')}")
    if sleep: k(f"s_sleep {sleep}")
    k(f"s_branch {k.ref(name)}")
    k.lab(name + '_to')
    k("s_mov_b32 s60, 1")
    k.lab(name + '_out')

def check_regs(k, rs, tmp):
    rs = list(rs)
    k(f"v_max3_u32 v{tmp}, v{rs[0]}, v{rs[1]}, v{rs[2]}")
    rs = rs[3:]
    while len(rs) >= 2:
        k(f"v_max3_u32 v{tmp}, v{tmp}, v{rs[0]}, v{rs[1]}"); rs = rs[2:]
    if rs: k(f"v_max_u32 v{tmp}, v{tmp}, v{rs[0]}")
    k(f"v_cmp_eq_u32 vcc, -1, v{tmp}")

def vsleep(k, sreg):
    for b in (6, 5, 4, 3, 2, 1, 0):
        l = k.new('vs')
        k(f"s_bitcmp1_b32 {sreg}, {b}")
        k(f"s_cbranch_scc0 {k.ref(l)}")
        k(f"s_sleep {1 << b}")
        k.lab(l)

def poll_stag(k, name, rounds, land, snap, tmp, delta, sleep, adj, adj_fb):
    land = list(land); snap = list(snap)
    vsleep(k, 's54')
    nl = [sum(1 for l in r if l.startswith('buffer')) for r in rounds]
    for j, r in enumerate(rounds):
        for l in r: k(l)
        if j + 1 < len(rounds) and delta: k(f"s_sleep {delta}")
    def snapshot():
        for a, b in zip(land, snap): k(f"v_mov_b32 v{b}, v{a}")
        check_regs(k, snap, tmp)
    for j in range(len(rounds)):
        k(f"s_waitcnt vmcnt({sum(nl[j+1:])})")
        snapshot()
        k(f"s_mov_b32 s55, {adj[j]}")
        if CFG['stamp']: k(f"s_mov_b32 s56, {j}")
        k(f"s_cbranch_vccz {k.ref(name + '_out')}")
    k("s_mov_b32 s61, 0")
    k(f"s_mov_b32 s55, {adj_fb[0]}")
    k.lab(name)
    for l in rounds[0]: k(l)
    k("s_waitcnt vmcnt(0)")
    snapshot()
    k("s_add_u32 s61, s61, 1")
    k(f"s_add_u32 s55, s55, {adj_fb[1]}")
    if CFG['stamp']: k("s_add_u32 s56, s56, 1")
    k(f"s_cbranch_vccz {k.ref(name + '_out')}")
    k("s_cmp_ge_u32 s61, s60")
    k(f"s_cbranch_scc1 {k.ref(name + '_to')}")
    if sleep: k(f"s_sleep {sleep}")
    k(f"s_branch {k.ref(name)}")
    k.lab(name + '_to')
    k("s_mov_b32 s60, 1")
    k.lab(name + '_out')
    k("s_min_i32 s55, s55, 40")
    k("s_add_i32 s54, s54, s55")
    k("s_max_i32 s54, s54, 0")
    k("s_min_i32 s54, s54, 127")

def probe(k, name, areg, sbase, rstride, ring, delta, depth=4):
    depth = min(depth, len(ring))
    vsleep(k, 's54')
    tgt = CFG['ptgt']
    def issue(j):
        k(f"s_add_u32 s52, {sbase}, {j * rstride}")
        k(f"buffer_load_dword v{ring[j % depth]}, v{areg}, s[8:11], s52 offen sc1")
    def check(j, n):
        k(f"s_waitcnt vmcnt({n})")
        k(f"v_cmp_eq_u32 vcc, -1, v{ring[j % depth]}")
        if CFG['stamp']: k(f"s_mov_b32 s56, {j}")
        k(f"s_mov_b32 s55, {(CFG['pgain'] * (j - tgt)) // 2}")
        k(f"s_cbranch_vccz {k.ref(name + '_out')}")
    for j in range(HK):
        issue(j)
        if j >= depth - 1: check(j - depth + 1, depth - 1)
        if delta and j + 1 < HK: k(f"s_sleep {delta}")
    for j in range(HK - depth + 1, HK): check(j, HK - 1 - j)
    k("s_mov_b32 s61, 0")
    k.lab(name)
    k(f"buffer_load_dword v{ring[0]}, v{areg}, s[8:11], s52 offen sc1")
    k("s_waitcnt vmcnt(0)")
    k(f"v_cmp_eq_u32 vcc, -1, v{ring[0]}")
    k("s_add_u32 s61, s61, 1")
    if CFG['stamp']: k("s_add_u32 s56, s56, 1")
    k(f"s_add_u32 s55, s55, {CFG['pfb']}")
    k(f"s_cbranch_vccz {k.ref(name + '_out')}")
    k("s_cmp_ge_u32 s61, s60")
    k(f"s_cbranch_scc0 {k.ref(name)}")
    k("s_mov_b32 s60, 1")
    k.lab(name + '_out')
    k(f"s_min_i32 s55, s55, {CFG['pmax']}")
    k("s_add_i32 s54, s54, s55")
    k("s_max_i32 s54, s54, 0")
    k("s_min_i32 s54, s54, 127")

RH_M, RH_P = 16, 8
HR2_STEP = 4 * RH_M * 128
HS2_STEP = 4 * RH_P * 128
def hr_step(): return HR2_STEP if CFG['hint'] == 2 else HR_STEP
def hs_step(): return HS2_STEP if CFG['hint'] == 2 else HS_STEP
def n_hint(): return 0 if not CFG['hint'] else (1 if CFG['hint'] == 2 else HK // 8)

def aprobe(k, name, areg, sbase, target, ring, delta, depth, dly):
    ring = ring[:depth]
    if CFG['pgain']: vsleep(k, 's54')
    elif dly: k(f"s_sleep {dly}")
    k("s_mov_b64 exec, 1")
    k("s_mov_b32 s61, 0")
    def issue(i):
        k(f"v_mov_b32 v{ring[i]}, 0")
        k(f"buffer_atomic_add v{ring[i]}, v{areg}, s[8:11], {sbase} offen sc0")
    for d in range(depth - 1):
        issue(d + 1)
        if delta: k(f"s_sleep {delta}")
    k.lab(name)
    for i in range(depth):
        issue(i)
        k(f"s_waitcnt vmcnt({depth - 1})")
        k(f"v_cmp_le_i32 vcc, {target}, v{ring[(i + 1) % depth]}")
        k("s_add_u32 s61, s61, 1")
        k(f"s_cbranch_vccnz {k.ref(name + '_out')}")
        if delta: k(f"s_sleep {delta}")
    k("s_cmp_ge_u32 s61, s60")
    k(f"s_cbranch_scc0 {k.ref(name)}")
    k("s_mov_b32 s60, 1")
    k.lab(name + '_out')
    k("s_mov_b64 exec, -1")
    if CFG['stamp']: k("s_mov_b32 s56, s61")
    if not CFG['pgain']: return
    k(f"s_sub_i32 s55, s61, {CFG['ptgt']}")
    k(f"s_mul_i32 s55, s55, {CFG['pgain']}")
    k("s_ashr_i32 s55, s55, 1")
    k(f"s_min_i32 s55, s55, {CFG['pmax']}")
    k("s_add_i32 s54, s54, s55")
    k("s_max_i32 s54, s54, 0")
    k("s_min_i32 s54, s54, 127")

def ahint(k, areg, one, sbase):
    k(f"buffer_atomic_add v{one}, v{areg}, s[8:11], {sbase} offen")

def ahint_addr(k, dst, t, w_sreg, nrep, only_wave0):
    k(f"s_mul_i32 s24, {w_sreg}, {nrep}")
    k(f"v_add_u32 v{dst}, s24, v1")
    k(f"v_lshlrev_b32 v{dst}, 7, v{dst}")
    k(f"v_mov_b32 v{t}, {OOB}")
    k(f"v_cmp_le_u32 vcc, {nrep}, v1")
    k(f"v_cndmask_b32 v{dst}, v{dst}, v{t}, vcc")
    if only_wave0:
        k("s_cmp_eq_u32 s3, 0"); k(f"s_cselect_b32 s24, 0, {OOB}")
        k(f"v_or_b32 v{dst}, s24, v{dst}")

def aprobe_addr(k, dst, wg_sreg, nrep):
    k(f"s_and_b32 s24, {wg_sreg}, {nrep - 1}")
    k(f"s_mul_i32 s25, s3, {nrep}")
    k("s_add_u32 s24, s24, s25"); k("s_lshl_b32 s24, s24, 7")
    k(f"v_mov_b32 v{dst}, s24")

def hint_store(k, areg, sbase, rstride, data=4):
    for q in range(HK // 8):
        so = sbase
        if q:
            k(f"s_add_u32 s53, {sbase}, {q * 8 * rstride}"); so = 's53'
        k(f"buffer_store_dwordx4 v[{data}:{data+3}], v{areg}, s[8:11], {so} offen sc1")

def hint_addr(k, dst, t, prod_sreg, rstride, only_wave0):
    k(f"v_lshrrev_b32 v{t}, 3, v1")
    k(f"v_mul_u32_u24 v{dst}, {rstride}, v{t}")
    k(f"v_and_b32 v{t}, 7, v1")
    k(f"v_lshl_add_u32 v{dst}, v{t}, 4, v{dst}")
    k(f"s_lshl_b32 s24, {prod_sreg}, 7")
    k(f"v_add_u32 v{dst}, s24, v{dst}")
    if only_wave0:
        k("s_cmp_eq_u32 s3, 0"); k(f"s_cselect_b32 s24, 0, {OOB}")
        k(f"v_or_b32 v{dst}, s24, v{dst}")

def m_probe_addr(k, dst, t):
    k(f"s_lshl_b32 s24, s3, 2")
    k(f"v_add_u32 v{dst}, s24, v1")
    k(f"v_add_u32 v{t}, 12, v{dst}")
    k(f"v_cmp_le_u32 vcc, 4, v1")
    k(f"v_cndmask_b32 v{dst}, v{dst}, v{t}, vcc")
    k(f"s_lshl_b32 s24, s3, 1"); k("s_add_u32 s24, s24, 24")
    k(f"v_add_u32 v{t}, s24, v1")
    k(f"v_cmp_le_u32 vcc, 8, v1")
    k(f"v_cndmask_b32 v{dst}, v{dst}, v{t}, vcc")
    k(f"v_lshlrev_b32 v{dst}, 7, v{dst}")
    k(f"v_mov_b32 v{t}, {OOB}")
    k(f"v_cmp_le_u32 vcc, {CFG['nhm']}, v1")
    k(f"v_cndmask_b32 v{dst}, v{dst}, v{t}, vcc")

def shot_check(k, name, loads, regs, tmp, nyoung, sleep):
    k(f"s_waitcnt vmcnt({nyoung})")
    check_regs(k, regs, tmp)
    if CFG['stamp']: k("s_mov_b32 s57, 0")
    k(f"s_cbranch_vccz {k.ref(name + '_out')}")
    k("s_mov_b32 s61, 0")
    k.lab(name)
    for l in loads: k(l)
    k("s_waitcnt vmcnt(0)")
    check_regs(k, regs, tmp)
    k("s_add_u32 s61, s61, 1")
    if CFG['stamp']: k("s_mov_b32 s57, s61")
    k(f"s_cbranch_vccz {k.ref(name + '_out')}")
    k("s_cmp_ge_u32 s61, s60")
    k(f"s_cbranch_scc1 {k.ref(name + '_to')}")
    if sleep: k(f"s_sleep {sleep}")
    k(f"s_branch {k.ref(name)}")
    k.lab(name + '_to')
    k("s_mov_b32 s60, 1")
    k.lab(name + '_out')

def adj_list(role='s'):
    if role == 'r': return [CFG['r0'], CFG['r1'], CFG['r2'], CFG['r3']][:CFG['stag_r']], (CFG['rfb'], CFG['afi'])
    return [CFG['a0'], CFG['a1'], CFG['a2'], CFG['a3']][:CFG['stag']], (CFG['afb'], CFG['afi'])

def m_rounds(A, B, C):
    R = []
    for j in range(CFG['stag']):
        R.append([f"s_add_u32 s52, s47, {j*10240}", f"s_add_u32 s53, s47, {j*10240 + 4096}",
                  f"buffer_load_dwordx4 v[{A}:{A+3}], v7, s[8:11], s52 offen sc1",
                  f"buffer_load_dwordx4 v[{B}:{B+3}], v7, s[8:11], s53 offen sc1",
                  f"buffer_load_dwordx2 v[{C}:{C+1}], v8, s[8:11], s52 offen sc1"])
    return R

def divmod_const(k, q, r, x, d, maxn, stmp):
    m, sh = magic(d, maxn)
    k(f"s_mov_b32 s{stmp}, {m}")
    k(f"v_mul_lo_u32 v{q}, v{x}, s{stmp}")
    k(f"v_lshrrev_b32 v{q}, {sh}, v{q}")
    k(f"v_mul_u32_u24 v{r}, {d}, v{q}")
    k(f"v_sub_u32 v{r}, v{x}, v{r}")

def stage_offsets(k, n, cpr, gstride, RS, lbase, go, lo, t0):
    for i in range(n):
        k(f"v_add_u32 v{t0}, {256*i}, v0")
        divmod_const(k, t0 + 1, t0 + 2, t0, cpr, 256 * n, 24)
        k(f"s_mov_b32 s24, {gstride}")
        k(f"v_mul_lo_u32 v{go+i}, v{t0+1}, s24")
        k(f"v_lshl_add_u32 v{go+i}, v{t0+2}, 4, v{go+i}")
        k(f"v_mul_u32_u24 v{lo+i}, {RS}, v{t0+1}")
        k(f"v_lshl_add_u32 v{lo+i}, v{t0+2}, 4, v{lo+i}")
        k(f"v_add_u32 v{lo+i}, {lbase}, v{lo+i}")

def tr_base(k, dst, RS, lbase, t0):
    k(f"v_lshrrev_b32 v{t0}, 1, v3")
    k(f"v_lshlrev_b32 v{t0}, 4, v{t0}")
    k(f"v_and_b32 v{t0+1}, 1, v3")
    k(f"v_lshl_add_u32 v{t0}, v{t0+1}, 2, v{t0}")
    k(f"v_lshrrev_b32 v{t0+1}, 2, v2")
    k(f"v_and_b32 v{t0+2}, 1, v{t0+1}")
    k(f"v_add_u32 v{t0}, v{t0}, v{t0+2}")
    k(f"v_lshrrev_b32 v{t0+1}, 1, v{t0+1}")
    k(f"v_lshl_add_u32 v{t0}, v{t0+1}, 3, v{t0}")
    k(f"v_mul_u32_u24 v{dst}, {RS}, v{t0}")
    k(f"v_and_b32 v{t0+1}, 3, v2")
    k(f"v_lshl_add_u32 v{dst}, v{t0+1}, 3, v{dst}")
    k(f"v_add_u32 v{dst}, {lbase}, v{dst}")

def tr_frag(k, reg, kind, addr, RS, off):
    for q, ro in enumerate((0, 2, 32, 34)):
        k(f"ds_read_b64_tr_b16 {kind}[{reg+2*q}:{reg+2*q+1}], v{addr} offset:{off + ro*RS}")

def m0_image(k, srd, t0):
    for p in range(3):
        k(f"v_add_u32 v{t0}, {256*p}, v0")
        k(f"v_and_b32 v{t0+1}, 7, v{t0}")
        k(f"v_mul_u32_u24 v{t0+1}, 1280, v{t0+1}")
        k(f"v_lshrrev_b32 v{t0+2}, 3, v{t0}")
        k(f"v_lshl_add_u32 v{t0+1}, v{t0+2}, 4, v{t0+1}")
        k(f"v_cmp_gt_u32 vcc, 640, v{t0}")
        k(f"v_mov_b32 v{t0+3}, {OOB}")
        k(f"v_cndmask_b32 v{t0+1}, v{t0+3}, v{t0+1}, vcc")
        k(f"buffer_load_dwordx4 v[{t0+4}:{t0+7}], v{t0+1}, s[{srd}:{srd+3}], 0 offen")
        k(f"v_lshlrev_b32 v{t0}, 4, v{t0}")
        k("s_waitcnt vmcnt(0)")
        k(f"s_and_saveexec_b64 s[30:31], vcc")
        k(f"ds_write_b128 v{t0}, v[{t0+4}:{t0+7}]")
        k("s_mov_b64 exec, s[30:31]")

def stamp(k, i):
    if CFG['stamp']: k(f"s_memrealtime s[{80+2*i}:{81+2*i}]")

WS_TRACE = 0x03C00000
def stamp_out(k, nst, cond_wg, slot, t):
    if not CFG['stamp']: return
    k("s_lshl_b32 s34, s2, 2"); k("s_add_u32 s34, s34, s3"); k("s_lshl_b32 s34, s34, 6")
    k("s_add_u32 s34, s34, s40"); k("s_lshl_b32 s34, s34, 5"); k(f"s_add_u32 s34, s34, {WS_TRACE}")
    k(f"v_mov_b32 v{t}, {OOB}")
    k("v_cmp_eq_u32 vcc, 0, v1")
    k(f"v_cndmask_b32 v{t}, v{t}, 0, vcc")
    for i in range(nst):
        k(f"v_mov_b32 v{t+1}, s{80+2*i}")
        k(f"buffer_store_dword v{t+1}, v{t}, s[8:11], s34 offen offset:{i*4}")
    for i, sreg in ((6, 's57' if CFG['hint'] else 's54'), (7, 's56')):
        k(f"v_mov_b32 v{t+1}, {sreg}")
        k(f"buffer_store_dword v{t+1}, v{t}, s[8:11], s34 offen offset:{i*4}")

def softmax8(k, P0, T0, T1, masks=None):
    if masks:
        k(f"v_mov_b32 v{T1}, 0xff800000")
        for j in range(8): k(f"v_cndmask_b32 v{P0+j}, v{T1}, v{P0+j}, s[{masks+2*j}:{masks+2*j+1}]")
    k(f"v_max3_f32 v{T0}, v{P0}, v{P0+1}, v{P0+2}")
    k(f"v_max3_f32 v{T0}, v{T0}, v{P0+3}, v{P0+4}")
    k(f"v_max3_f32 v{T0}, v{T0}, v{P0+5}, v{P0+6}")
    k(f"v_max_f32 v{T0}, v{T0}, v{P0+7}")
    k(f"v_mov_b32 v{T1}, 0xff800000")
    k(f"v_cndmask_b32 v{T0}, v{T1}, v{T0}, s[50:51]")
    for dpp in ("quad_perm:[1,0,3,2]", "quad_perm:[2,3,0,1]", "row_half_mirror"):
        k(f"v_max_f32 v{T0}, v{T0}, v{T0} {dpp} row_mask:0xf bank_mask:0xf")
    k(f"s_mov_b32 s24, {hexf(SCALE_B * LOG2E)}")
    k(f"v_mul_f32 v{T0}, s24, v{T0}")
    for r in range(8): k(f"v_fma_f32 v{P0+r}, v{P0+r}, s24, -v{T0}")
    for r in range(8): k(f"v_exp_f32 v{P0+r}, v{P0+r}")
    k(f"v_add_f32 v{T0}, v{P0}, v{P0+1}")
    k(f"v_add_f32 v{T1}, v{P0+2}, v{P0+3}")
    k(f"v_add_f32 v{T0}, v{T0}, v{P0+4}")
    k(f"v_add_f32 v{T1}, v{T1}, v{P0+5}")
    k(f"v_add_f32 v{T0}, v{T0}, v{P0+6}")
    k(f"v_add_f32 v{T1}, v{T1}, v{P0+7}")
    k(f"v_add_f32 v{T0}, v{T0}, v{T1}")
    k(f"v_cndmask_b32 v{T0}, 0, v{T0}, s[50:51]")
    for dpp in ("quad_perm:[1,0,3,2]", "quad_perm:[2,3,0,1]", "row_half_mirror"):
        k(f"v_add_f32 v{T0}, v{T0}, v{T0} {dpp} row_mask:0xf bank_mask:0xf")
    k(f"v_rcp_f32 v{T0}, v{T0}")
    for r in range(8): k(f"v_mul_f32 v{P0+r}, v{P0+r}, v{T0}")
    for q in range(4): k(f"v_cvt_pk_bf16_f32 v{P0+8+q}, v{P0+2*q}, v{P0+2*q+1}")
    for q in range(4): k(f"v_min_u32 v{P0+8+q}, -2, v{P0+8+q}")

def sum4x8(k, P0, addr, stride):
    for w in range(4):
        k(f"ds_read_b128 v[{P0+8*w}:{P0+8*w+3}], v{addr} offset:{w*stride}")
        k(f"ds_read_b128 v[{P0+8*w+4}:{P0+8*w+7}], v{addr} offset:{w*stride+16}")
    k("s_waitcnt lgkmcnt(4)")
    for r in range(0, 8, 2): k(f"v_pk_add_f32 v[{P0+r}:{P0+r+1}], v[{P0+r}:{P0+r+1}], v[{P0+8+r}:{P0+8+r+1}]")
    k("s_waitcnt lgkmcnt(0)")
    for r in range(0, 8, 2): k(f"v_pk_add_f32 v[{P0+16+r}:{P0+16+r+1}], v[{P0+16+r}:{P0+16+r+1}], v[{P0+24+r}:{P0+24+r+1}]")
    for r in range(0, 8, 2): k(f"v_pk_add_f32 v[{P0+r}:{P0+r+1}], v[{P0+r}:{P0+r+1}], v[{P0+16+r}:{P0+16+r+1}]")

def m_rep(k):
    if CFG['mrep'] > 1 and not CFG['stag']:
        k(f"s_and_b32 s24, s2, {CFG['mrep']-1}"); k("s_mul_i32 s24, s24, 10240"); k("s_add_u32 s47, s47, s24")

def ensure(k, name, nfl, addr, tmp, need='s63', known='s62'):
    k(f"s_cmp_ge_i32 {known}, {need}")
    k(f"s_cbranch_scc1 {k.ref(name + '_ok')}")
    k("s_mov_b32 s61, 0")
    k.lab(name)
    k(f"buffer_load_dword v{tmp}, v{addr}, s[8:11], 0 offen sc1")
    k("s_waitcnt vmcnt(0)")
    k(f"v_readlane_b32 {known}, v{tmp}, 0")
    for i in range(1, nfl):
        k(f"v_readlane_b32 s24, v{tmp}, {i}")
        k(f"s_min_i32 {known}, {known}, s24")
    k(f"s_cmp_ge_i32 {known}, {need}")
    k(f"s_cbranch_scc1 {k.ref(name + '_ok')}")
    k("s_add_u32 s61, s61, 1")
    k("s_cmp_ge_u32 s61, s60")
    k(f"s_cbranch_scc1 {k.ref(name + '_to')}")
    k("s_sleep 2")
    k(f"s_branch {k.ref(name)}")
    k.lab(name + '_to')
    k("s_mov_b32 s60, 1")
    k.lab(name + '_ok')

def role_S(k):
    L_M, L_X, L_SP, L_DUM, L_W5, L_ST = 0, 10240, 16384, 22528, 24576, 106496
    RS = 400
    ACC, AF, WS5 = 24, 48, 68
    KX = 240
    QX = 80
    T0, T1 = 92, 93
    def wreg(t, c):
        if t < 3: return 'a', t * 80 + c * 8
        return 'v', 96 + (t - 3) * 80 + c * 8
    k("s_mov_b32 s44, s2")
    k.ptr(KA_WQ, 6); k.ptr(KA_WK, 24)
    k("s_waitcnt lgkmcnt(0)")
    k.srd(12, 6, D * HD * 2); k.srd(16, 24, D * HD * 2)
    GO, LO, DAT = 4, 10, 24
    stage_offsets(k, 6, 24, HD * 2, RS, L_ST, GO, LO, 16)
    tr_base(k, 16, RS, L_ST, 17)
    k("s_mul_i32 s24, s3, 96")
    k("v_add_u32 v16, s24, v16")
    k("v_lshlrev_b32 v17, 4, v1")
    k(f"s_mul_i32 s24, s3, 20480"); k(f"s_add_u32 s24, s24, {L_W5}")
    k("v_add_u32 v17, s24, v17")
    k(f"s_mul_i32 s45, s44, 384")
    blocks = [(c, m) for c in range(10) for m in range(2)]
    def loads(bi):
        c, m = blocks[bi]
        d = DAT + 24 * (bi % 3)
        k(f"s_add_u32 s46, s45, {c * 64 * HD * 2}")
        for i in range(6):
            k(f"buffer_load_dwordx4 v[{d+4*i}:{d+4*i+3}], v{GO+i}, s[{12+4*m}:{15+4*m}], s46 offen")
    loads(0); loads(1)
    for bi, (c, m) in enumerate(blocks):
        d = DAT + 24 * (bi % 3)
        k(f"s_waitcnt vmcnt({6 if bi + 1 < len(blocks) else 0})")
        for i in range(6): k(f"ds_write_b128 v{LO+i}, v[{d+4*i}:{d+4*i+3}]")
        if bi + 2 < len(blocks): loads(bi + 2)
        k("s_waitcnt lgkmcnt(0)")
        k("s_barrier")
        for t in range(3):
            tt = 3 * m + t
            if tt < 5:
                kind, r = wreg(tt, c)
                tr_frag(k, r, kind, 16, RS, 32 * t)
        if m == 1:
            tr_frag(k, d, 'v', 16, RS, 64)
            k("s_waitcnt lgkmcnt(0)")
            k(f"ds_write_b128 v17, v[{d}:{d+3}] offset:{c*2048}")
            k(f"ds_write_b128 v17, v[{d+4}:{d+7}] offset:{c*2048+1024}")
        k("s_waitcnt lgkmcnt(0)")
        k("s_barrier")
    A_, B_, C_, D_ = 30, 31, 32, 33
    k("v_mov_b32 v6, v17")
    k(f"v_mov_b32 v{A_}, 0xeeee"); k("v_mov_b32 v4, 0x4444")
    k("v_cmp_gt_u32 vcc, 8, v2")
    k(f"v_cndmask_b32 v4, v{A_}, v4, vcc")
    k("v_lshlrev_b32 v5, 4, v1")
    k("s_lshl_b32 s24, s3, 10")
    k("v_add_u32 v7, s24, v5")
    k("s_lshl_b32 s24, s3, 9"); k("s_add_u32 s24, s24, 8192")
    k("v_lshlrev_b32 v8, 3, v1")
    k("v_add_u32 v8, s24, v8")
    k(f"s_mul_i32 s24, s3, 1536"); k(f"s_add_u32 s24, s24, {L_X}")
    k("v_lshlrev_b32 v9, 5, v2")
    k("v_lshl_add_u32 v9, v3, 3, v9")
    k("v_add_u32 v9, s24, v9")
    k(f"v_lshrrev_b32 v{A_}, 2, v2"); k(f"v_and_b32 v{B_}, 3, v2")
    k(f"v_lshl_add_u32 v11, v3, 2, v{A_}")
    k("v_lshlrev_b32 v11, 5, v11")
    k(f"v_lshl_add_u32 v11, v{B_}, 3, v11")
    k("v_add_u32 v11, s24, v11")
    k(f"v_add_u32 v{D_}, {L_DUM}, v5")
    k(f"s_mul_i32 s24, s3, 1408"); k(f"s_add_u32 s24, s24, {L_SP}")
    k(f"v_mul_u32_u24 v{A_}, 176, v2")
    k(f"v_add_u32 v{A_}, s24, v{A_}")
    k(f"v_lshl_add_u32 v12, v3, 5, v{A_}")
    k("v_cmp_gt_u32 vcc, 8, v2")
    k(f"v_cndmask_b32 v12, v{D_}, v12, vcc")
    k(f"v_lshl_add_u32 v13, v3, 4, v{A_}")
    k("v_add_u32 v13, 96, v13")
    k("v_cmp_le_u32 s[24:25], 2, v3")
    k("s_and_b64 vcc, vcc, s[24:25]")
    k(f"v_cndmask_b32 v13, v{D_}, v13, vcc")
    k(f"s_mul_i32 s24, s3, 5632"); k(f"s_add_u32 s24, s24, {L_ST}")
    k(f"v_mul_u32_u24 v{A_}, 176, v2")
    k(f"v_add_u32 v{A_}, s24, v{A_}")
    k(f"v_lshl_add_u32 v16, v3, 5, v{A_}")
    k(f"v_lshl_add_u32 v17, v3, 4, v{A_}")
    k("v_add_u32 v17, 96, v17")
    k("v_add_u32 v18, 2816, v17")
    k("v_cmp_le_u32 vcc, 2, v3")
    k(f"v_cndmask_b32 v17, v{D_}, v17, vcc")
    k(f"v_cndmask_b32 v18, v{D_}, v18, vcc")
    k(f"v_lshrrev_b32 v{A_}, 3, v1")
    k(f"v_and_b32 v{B_}, 7, v1")
    k(f"v_min_u32 v{C_}, 4, v{B_}")
    k(f"v_mul_u32_u24 v14, 176, v{A_}")
    k(f"v_lshl_add_u32 v14, v{C_}, 5, v14")
    k("s_mul_i32 s24, s3, 1408"); k(f"s_add_u32 s24, s24, {L_ST}")
    k("v_add_u32 v21, s24, v14")
    k(f"v_add_u32 v14, {L_SP}, v14")
    k(f"v_cmp_gt_u32 s[50:51], 5, v{B_}")
    k("s_lshl_b32 s24, s3, 3")
    k(f"v_add_u32 v{C_}, s24, v{A_}")
    k(f"v_lshlrev_b32 v{D_}, 2, v{B_}")
    k(f"v_sub_u32 v{C_}, v{C_}, v{D_}")
    k(f"v_mov_b32 v{D_}, 100")
    k(f"v_cmp_gt_u32 vcc, 4, v{B_}")
    k(f"v_cndmask_b32 v{C_}, v{D_}, v{C_}, vcc")
    for j in range(8):
        cj = j if j < 4 else j + 12
        k(f"v_cmp_le_i32 s[{64+2*j}:{65+2*j}], {cj}, v{C_}")
    k("s_lshr_b32 s24, s44, 1"); k("s_lshl_b32 s24, s24, 10")
    k("s_and_b32 s25, s44, 1"); k("s_lshl_b32 s25, s25, 7"); k("s_add_u32 s24, s24, s25")
    k(f"v_lshlrev_b32 v15, 8, v{B_}")
    k(f"v_lshl_add_u32 v15, v{A_}, 4, v15")
    k("v_add_u32 v15, s24, v15")
    k("s_lshr_b32 s24, s44, 3"); k("s_lshl_b32 s24, s24, 10")
    k("s_and_b32 s25, s44, 3"); k("s_lshl_b32 s25, s25, 8"); k("s_add_u32 s24, s24, s25")
    k("s_lshr_b32 s25, s44, 2"); k("s_and_b32 s25, s25, 1"); k("s_lshl_b32 s25, s25, 7"); k("s_add_u32 s24, s24, s25")
    k("s_add_u32 s24, s24, 16384")
    k(f"v_lshlrev_b32 v{C_}, 4, v{A_}")
    k(f"v_add_u32 v{C_}, s24, v{C_}")
    k(f"v_cmp_eq_u32 vcc, 4, v{B_}")
    k(f"v_cndmask_b32 v15, v15, v{C_}, vcc")
    k(f"v_mov_b32 v{C_}, {OOB}")
    k(f"v_cndmask_b32 v15, v{C_}, v15, s[50:51]")
    k(f"s_mul_i32 s24, s3, 20480")
    k("v_add_u32 v15, s24, v15")
    if CFG['prep'] < 4:
        k(f"s_cmp_lt_u32 s3, {CFG['prep']}"); k(f"s_cselect_b32 s24, 0, {OOB}")
        k("v_or_b32 v15, s24, v15")
    k("s_and_b32 s24, s3, 1"); k("s_lshl_b32 s24, s24, 7")
    k("s_lshr_b32 s25, s3, 1"); k("s_lshl_b32 s25, s25, 10")
    k("s_add_u32 s24, s24, s25")
    k("s_lshl_b32 s25, s44, 11"); k("s_add_u32 s25, s25, s24")
    k(f"v_lshlrev_b32 v22, 8, v{B_}")
    k(f"v_lshl_add_u32 v22, v{A_}, 4, v22")
    k("v_add_u32 v22, s25, v22")
    k("s_lshr_b32 s25, s44, 2"); k("s_lshl_b32 s25, s25, 11"); k("s_add_u32 s25, s25, s24")
    k("s_and_b32 s26, s44, 3"); k("s_lshl_b32 s26, s26, 8"); k("s_add_u32 s25, s25, s26"); k("s_add_u32 s25, s25, 65536")
    k(f"v_lshlrev_b32 v{C_}, 4, v{A_}")
    k(f"v_add_u32 v{C_}, s25, v{C_}")
    k(f"v_cmp_eq_u32 vcc, 4, v{B_}")
    k(f"v_cndmask_b32 v22, v22, v{C_}, vcc")
    k(f"v_mov_b32 v{C_}, {OOB}")
    k(f"v_cndmask_b32 v22, v{C_}, v22, s[50:51]")
    k("s_mul_i32 s24, s44, 12288"); k("s_mul_i32 s25, s3, 3072"); k("s_add_u32 s24, s24, s25")
    k("v_add_u32 v19, s24, v5")
    k("v_and_b32 v10, 1, v1")
    k("v_lshlrev_b32 v10, 12, v10")
    k(f"s_lshl_b32 s24, s44, 7"); k(f"s_add_u32 s24, s24, {WS_FLG}")
    k("v_add_u32 v10, s24, v10")
    if CFG['hint'] == 2:
        aprobe_addr(k, 23, 's2', RH_M)
        k("s_lshr_b32 s25, s44, 3")
        ahint_addr(k, 20, A_, 's25', RH_P, True)
    elif CFG['hint']:
        m_probe_addr(k, 23, A_)
        hint_addr(k, 20, A_, 's44', HS_REP, True)
    if CFG['hint']:
        k(f"s_mov_b32 s48, {WS_HR}")
        k(f"s_mov_b32 s49, {WS_HS}")
    m0_image(k, 20, 48)
    k("v_mov_b32 v0, 1")
    k("s_mov_b32 s40, 0")
    k(f"s_mov_b32 s54, {CFG['dly_m']}")
    k(f"s_mov_b32 s41, {WS_KF}")
    k(f"s_mov_b32 s42, {WS_PX}")
    k(f"s_mov_b32 s43, {WS_PB}")
    k(f"s_mov_b32 s45, {WS_QF}")
    k(f"s_mov_b32 s47, {WS_MB}")
    m_rep(k)
    def kx_loads():
        for b in range(3):
            k(f"buffer_load_dwordx4 a[{KX+4*b}:{KX+4*b+3}], v19, s[8:11], s41 offen offset:{b*1024} sc1")
    k("s_mov_b32 s62, -1"); k("s_mov_b32 s63, 1")
    ensure(k, 's_en0', 2, 10, 48)
    kx_loads()
    k("s_waitcnt lgkmcnt(0)")
    k(f"s_branch {k.ref('s_go')}")
    P0 = 48
    def px_tail(t0, t1, part=3):
        if part & 1:
            sum4x8(k, P0, 21, 5632)
            softmax8(k, P0, t0, t1, masks=64)
        if part & 2:
            k(f"buffer_store_dwordx4 v[{P0+8}:{P0+11}], v22, s[8:11], s42 offen sc1")
            k(f"s_add_u32 s42, s42, {PX_STEP}")
    k.lab('s_step')
    stamp(k, 0)
    for r in range(24): k(f"v_mov_b32 v{ACC+r}, 0")
    loads_ = [f"buffer_load_dwordx4 v[84:87], v7, s[8:11], s47 offen sc1",
              f"buffer_load_dwordx4 v[88:91], v7, s[8:11], s48 offen sc1",
              f"buffer_load_dwordx2 v[92:93], v8, s[8:11], s47 offen sc1"]
    if CFG['hint']:
        loads_ = [l.replace('s48', 's46') for l in loads_]
        k("s_add_u32 s46, s47, 4096")
        k("s_add_u32 s63, s40, 1")
        ensure(k, 's_en', 2, 10, 48)
        if CFG['px_first']: px_tail(80, 81, 1)
        if CFG['hint'] == 2: aprobe(k, 's_pr', 23, 's48', 9, [82, 83, 94, 95], CFG['pd_m'], CFG['pdep'], CFG['dly_m'])
        else: probe(k, 's_pr', 23, 's48', HR_REP, [82, 83, 94, 95], CFG['pd_m'])
        if CFG['dly_sm']: k(f"s_sleep {CFG['dly_sm']}")
        for l in loads_: k(l)
        kx_loads()
        px_tail(80, 81, 2 if CFG['px_first'] else 3)
        shot_check(k, 's_pm', loads_, range(84, 94), 58, 4, CFG['sl_m'])
        o = 84
    else:
        k("s_add_u32 s48, s47, 4096")
    if CFG['hint']: pass
    elif CFG['stag']:
        poll_stag(k, 's_pm', m_rounds(84, 88, 92), range(84, 94), range(48, 58), 58, CFG['st_m'], CFG['sl_m'], *adj_list())
        o = 48
    else:
        poll(k, 's_pm', loads_, range(84, 94), 58, CFG['sl_m'], CFG['dly_m'], CFG['dep_m'])
        o = 84
    stamp(k, 1)
    k(f"ds_write_b128 v7, v[{o}:{o+3}]")
    k(f"ds_write_b128 v7, v[{o+4}:{o+7}] offset:4096")
    k(f"ds_write_b64 v8, v[{o+8}:{o+9}]")
    k("s_waitcnt lgkmcnt(0)")
    k.lab('s_go2')
    k("s_barrier")
    lg = LG(k)
    def rdA(c): lg.issue(('A', c), f"ds_read_b128 v[{AF+4*(c%5)}:{AF+4*(c%5)+3}], v5 offset:{c*1024}")
    def rdW(c):
        b = WS5 + 8 * (c % 2)
        lg.issue(('W', c), f"ds_read_b128 v[{b}:{b+3}], v6 offset:{c*2048}")
        lg.issue(('W', c), f"ds_read_b128 v[{b+4}:{b+7}], v6 offset:{c*2048+1024}")
    rdA(0); rdW(0); rdA(1); rdW(1); rdA(2); rdA(3); rdA(4)
    for c in range(10):
        a = AF + 4 * (c % 5)
        lg.wait(('A', c))
        for t in range(5):
            kind, r = wreg(t, c)
            k(f"v_smfmac_f32_16x16x64_bf16 v[{ACC+4*t}:{ACC+4*t+3}], v[{a}:{a+3}], {kind}[{r}:{r+7}], v4")
        lg.wait(('W', c))
        b = WS5 + 8 * (c % 2)
        k(f"v_smfmac_f32_16x16x64_bf16 v[{ACC+20}:{ACC+23}], v[{a}:{a+3}], v[{b}:{b+7}], v4")
        if c + 2 < 10: rdW(c + 2)
        if c + 5 < 10: rdA(c + 5)
    stamp(k, 2)
    for b in range(3):
        k(f"buffer_load_dwordx4 v[{QX+4*b}:{QX+4*b+3}], v19, s[8:11], s45 offen offset:{b*1024} sc1")
    k("s_waitcnt vmcnt(3)")
    def s_hint():
        if CFG['hint'] == 2:
            ahint(k, 20, 0, 's49')
        else: hint_store(k, 20, 's49', HS_REP)
    if CFG['hint'] and CFG['hs_pos'] == 2: s_hint()
    T = 48
    for t in range(3):
        q = ACC + 4 * t; kk = ACC + 12 + 4 * t
        for r in range(4): k(f"v_permlane32_swap_b32 v{q+r}, v{kk+r}")
        for r in range(4): k(f"v_add_f32 v{q+r}, v{q+r}, v{kk+r}")
        k(f"v_cvt_pk_bf16_f32 v{T+2*t}, v{q}, v{q+1}")
        k(f"v_cvt_pk_bf16_f32 v{T+2*t+1}, v{q+2}, v{q+3}")
        k(f"ds_write_b64 v9, v[{T+2*t}:{T+2*t+1}] offset:{t*512}")
    XA, XB = 24, 28
    k("s_waitcnt lgkmcnt(0)")
    k(f"ds_read_b64_tr_b16 v[{XA}:{XA+1}], v11")
    k(f"ds_read_b64_tr_b16 v[{XA+2}:{XA+3}], v11 offset:512")
    k(f"ds_read_b64_tr_b16 v[{XB}:{XB+1}], v11 offset:1024")
    k("s_waitcnt lgkmcnt(0)")
    SC = 64
    k(f"v_mfma_f32_16x16x32_bf16 v[{SC}:{SC+3}], a[{KX}:{KX+3}], v[{XA}:{XA+3}], 0")
    k(f"v_mfma_f32_16x16x32_bf16 v[{SC+4}:{SC+7}], a[{KX+4}:{KX+7}], v[{XA}:{XA+3}], 0")
    k(f"v_mfma_f32_16x16x32_bf16 v[{SC+8}:{SC+11}], v[{XA}:{XA+3}], v[{XA}:{XA+3}], 0")
    k(f"v_mfma_f32_16x16x16_bf16 v[{SC}:{SC+3}], a[{KX+8}:{KX+9}], v[{XB}:{XB+1}], v[{SC}:{SC+3}]")
    k(f"v_mfma_f32_16x16x16_bf16 v[{SC+4}:{SC+7}], a[{KX+10}:{KX+11}], v[{XB}:{XB+1}], v[{SC+4}:{SC+7}]")
    k(f"v_mfma_f32_16x16x16_bf16 v[{SC+8}:{SC+11}], v[{XB}:{XB+1}], v[{XB}:{XB+1}], v[{SC+8}:{SC+11}]")
    k(f"ds_write_b128 v12, v[{SC}:{SC+3}]")
    k(f"ds_write_b128 v12, v[{SC+4}:{SC+7}] offset:16")
    k(f"ds_write_b128 v13, v[{SC+8}:{SC+11}]")
    k("s_waitcnt lgkmcnt(0)")
    k("s_barrier")
    if CFG['hint'] and CFG['hs_pos'] == 3: s_hint()
    stamp(k, 3)
    sum4x8(k, P0, 14, 1408)
    softmax8(k, P0, T0, T1)
    k(f"buffer_store_dwordx4 v[{P0+8}:{P0+11}], v15, s[8:11], s43 offen sc1")
    stamp(k, 4)
    SX = 32
    sx = lambda kt, tt: (32 + (kt * 2 + tt) * 4) if (kt * 2 + tt) < 4 else (64 + ((kt * 2 + tt) - 4) * 4)
    k(f"s_waitcnt vmcnt({1 + n_hint()})")
    keys32 = [f"a[{KX}:{KX+3}]", f"a[{KX+4}:{KX+7}]", f"v[{XA}:{XA+3}]"]
    keys16 = [f"a[{KX+8}:{KX+9}]", f"a[{KX+10}:{KX+11}]", f"v[{XB}:{XB+1}]"]
    for tt in range(2):
        for kt in range(3):
            a = sx(kt, tt)
            k(f"v_mfma_f32_16x16x32_bf16 v[{a}:{a+3}], {keys32[kt]}, v[{QX+4*tt}:{QX+4*tt+3}], 0")
    for tt in range(2):
        for kt in range(3):
            a = sx(kt, tt)
            k(f"v_mfma_f32_16x16x16_bf16 v[{a}:{a+3}], {keys16[kt]}, v[{QX+8+2*tt}:{QX+8+2*tt+1}], v[{a}:{a+3}]")
    for tt in range(2):
        k(f"ds_write_b128 v16, v[{sx(0,tt)}:{sx(0,tt)+3}] offset:{tt*2816}")
        k(f"ds_write_b128 v16, v[{sx(1,tt)}:{sx(1,tt)+3}] offset:{tt*2816+16}")
        k(f"ds_write_b128 v{17+tt}, v[{sx(2,tt)}:{sx(2,tt)+3}]")
    k("s_add_u32 s40, s40, 1")
    k(f"s_add_u32 s41, s41, {QF_SEG}")
    k(f"s_add_u32 s45, s45, {QF_SEG}")
    k(f"s_add_u32 s43, s43, {PB_STEP}")
    k(f"s_add_u32 s47, s47, {MB_STEP}")
    if CFG['hint']:
        k(f"s_add_u32 s48, s48, {hr_step()}")
        k(f"s_add_u32 s49, s49, {hs_step()}")
    k("s_waitcnt lgkmcnt(0)")
    k("s_barrier")
    if not CFG['hint']:
        k("s_add_u32 s63, s40, 1"); k("s_min_u32 s63, s63, 64")
        ensure(k, 's_en', 2, 10, 48)
        kx_loads()
        px_tail(T0, T1)
    stamp(k, 5)
    if CFG['stamp']:
        k("s_sub_u32 s40, s40, 1"); stamp_out(k, 6, 0, 0, 46); k("s_add_u32 s40, s40, 1")
    k("s_cmp_lt_u32 s40, 64")
    k(f"s_cbranch_scc1 {k.ref('s_step')}")
    if CFG['hint']: px_tail(80, 81)
    k(f"s_branch {k.ref('end')}")
    k.lab('s_go')
    for r in range(24): k(f"v_mov_b32 v{ACC+r}, 0")
    k("s_waitcnt vmcnt(0)")
    k(f"s_branch {k.ref('s_go2')}")

def role_V(k):
    L_M, L_V, L_WO, L_ST = 0, 10240, 16384, 16384 + 73728
    RS1, RS2 = 400, 656
    MA, VACC, VA, STG = 16, 56, 68, 80
    def wv(t, c): return 'a', t * 80 + c * 8
    def wo(t, c):
        i = t * 3 + c
        if i < 2: return 'a', 240 + 8 * i
        return 'v', 104 + 8 * (i - 2)
    k("s_sub_u32 s44, s2, 32")
    k.ptr(KA_WV, 6); k.ptr(KA_WO, 24)
    k("s_waitcnt lgkmcnt(0)")
    k.srd(12, 6, D * HD * 2); k.srd(16, 24, D * HD * 2)
    GO, LO, DAT = 4, 10, 24
    stage_offsets(k, 6, 24, HD * 2, RS1, L_ST, GO, LO, 16)
    tr_base(k, 16, RS1, L_ST, 17)
    k("s_mul_i32 s24, s3, 96")
    k("v_add_u32 v16, s24, v16")
    k(f"s_mul_i32 s45, s44, 384")
    def loads(c):
        d = DAT + 24 * (c % 3)
        k(f"s_add_u32 s46, s45, {c * 64 * HD * 2}")
        for i in range(6):
            k(f"buffer_load_dwordx4 v[{d+4*i}:{d+4*i+3}], v{GO+i}, s[12:15], s46 offen")
    loads(0); loads(1)
    for c in range(10):
        d = DAT + 24 * (c % 3)
        k(f"s_waitcnt vmcnt({6 if c + 1 < 10 else 0})")
        for i in range(6): k(f"ds_write_b128 v{LO+i}, v[{d+4*i}:{d+4*i+3}]")
        if c + 2 < 10: loads(c + 2)
        k("s_waitcnt lgkmcnt(0)")
        k("s_barrier")
        for t in range(3):
            kind, r = wv(t, c)
            tr_frag(k, r, kind, 16, RS1, 32 * t)
        k("s_waitcnt lgkmcnt(0)")
        k("s_barrier")
    GO, LO, DAT = 4, 14, 24
    stage_offsets(k, 10, 40, 1280, RS2, L_ST, GO, LO, 64)
    tr_base(k, 72, RS2, L_ST, 64)
    k("s_and_b32 s24, s3, 1"); k("s_mul_i32 s24, s24, 320")
    k("v_add_u32 v72, s24, v72")
    k("v_lshlrev_b32 v73, 4, v1")
    k(f"s_mul_i32 s24, s3, 18432"); k(f"s_add_u32 s24, s24, {L_WO}")
    k("v_add_u32 v73, s24, v73")
    k(f"s_mul_i32 s45, s44, {192*1280}")
    for c in range(3):
        for hf in range(2):
            k(f"s_add_u32 s46, s45, {c*64*1280 + hf*640}")
            for i in range(10):
                k(f"buffer_load_dwordx4 v[{DAT+4*i}:{DAT+4*i+3}], v{GO+i}, s[16:19], s46 offen")
            k("s_waitcnt vmcnt(0)")
            for i in range(10): k(f"ds_write_b128 v{LO+i}, v[{DAT+4*i}:{DAT+4*i+3}]")
            k("s_waitcnt lgkmcnt(0)")
            k("s_barrier")
            l = k.new('wo')
            k("s_lshr_b32 s24, s3, 1")
            k(f"s_cmp_eq_u32 s24, {hf}")
            k(f"s_cbranch_scc0 {k.ref(l)}")
            for t in range(10):
                if t < 7:
                    kind, r = wo(t, c)
                    tr_frag(k, r, kind, 72, RS2, 32 * t)
                else:
                    tr_frag(k, 64, 'v', 72, RS2, 32 * t)
                    k("s_waitcnt lgkmcnt(0)")
                    o = ((t - 7) * 3 + c) * 2048
                    k(f"ds_write_b128 v73, v[64:67] offset:{o}")
                    k(f"ds_write_b128 v73, v[68:71] offset:{o+1024}")
                    k("s_waitcnt lgkmcnt(0)")
            k("s_waitcnt lgkmcnt(0)")
            k.lab(l)
            k("s_barrier")
    k("v_mov_b32 v6, v73")
    k("v_mov_b32 v4, 0x4444"); k("v_mov_b32 v5, 0xeeee")
    k("v_cmp_gt_u32 vcc, 8, v2")
    k("v_cndmask_b32 v4, v5, v4, vcc")
    k("v_lshlrev_b32 v5, 4, v1")
    k("s_lshl_b32 s24, s3, 10")
    k("v_add_u32 v7, s24, v5")
    k("s_lshl_b32 s24, s3, 9"); k("s_add_u32 s24, s24, 8192")
    k("v_lshlrev_b32 v8, 3, v1")
    k("v_add_u32 v8, s24, v8")
    k("v_and_b32 v64, 7, v2"); k("v_lshlrev_b32 v9, 5, v64")
    k("v_lshrrev_b32 v64, 3, v2"); k("v_lshl_add_u32 v9, v64, 4, v9")
    k("v_and_b32 v64, 1, v3"); k("v_lshl_add_u32 v9, v64, 3, v9")
    k(f"s_mul_i32 s24, s3, 768"); k(f"s_add_u32 s24, s24, {L_V}")
    k("v_add_u32 v9, s24, v9")
    k("v_lshrrev_b32 v65, 1, v3")
    k("v_lshl_add_u32 v10, v65, 8, v9")
    k("v_lshrrev_b32 v64, 2, v2"); k("v_lshlrev_b32 v11, 5, v64")
    k("v_and_b32 v64, 3, v2"); k("v_lshl_add_u32 v11, v64, 3, v11")
    k("v_lshl_add_u32 v11, v3, 8, v11")
    k(f"v_add_u32 v11, {L_V}, v11")
    k("s_mul_i32 s24, s3, 10"); k("s_lshl_b32 s24, s24, 13"); k("s_lshl_b32 s25, s44, 8"); k("s_add_u32 s24, s24, s25")
    k("v_lshlrev_b32 v14, 13, v3")
    k("v_lshl_add_u32 v14, v2, 4, v14")
    k("v_add_u32 v14, s24, v14")
    k("v_lshrrev_b32 v64, 1, v3")
    k("v_lshlrev_b32 v15, 13, v64")
    k("v_lshl_add_u32 v15, v2, 4, v15")
    k("v_add_u32 v15, s24, v15")
    k(f"v_add_u32 v15, {8*8192}, v15")
    k("v_and_b32 v64, 1, v3")
    k("v_cmp_eq_u32 vcc, 0, v64")
    k(f"v_mov_b32 v64, {OOB}")
    k("v_cndmask_b32 v15, v64, v15, vcc")
    if CFG['hint'] == 2:
        aprobe_addr(k, 12, 's2', RH_M)
        k("s_lshr_b32 s25, s44, 3")
        ahint_addr(k, 13, 64, 's25', RH_P, True)
    elif CFG['hint']:
        m_probe_addr(k, 12, 64)
        k("s_add_u32 s25, s44, 32")
        hint_addr(k, 13, 64, 's25', HS_REP, True)
    if CFG['hint']:
        k(f"s_mov_b32 s45, {WS_HR}")
        k(f"s_mov_b32 s42, {WS_HS}")
    m0_image(k, 20, 64)
    k("v_mov_b32 v0, 1")
    k("s_mov_b32 s40, 0")
    k(f"s_mov_b32 s43, {WS_VOM}")
    k(f"s_mov_b32 s54, {CFG['dly_v']}")
    k(f"s_mov_b32 s47, {WS_MB}")
    m_rep(k)
    k("s_waitcnt lgkmcnt(0)")
    k(f"s_branch {k.ref('v_go2')}")
    k.lab('v_step')
    stamp(k, 0)
    loads_ = [f"buffer_load_dwordx4 v[68:71], v7, s[8:11], s47 offen sc1",
              f"buffer_load_dwordx4 v[72:75], v7, s[8:11], s48 offen sc1",
              f"buffer_load_dwordx2 v[76:77], v8, s[8:11], s47 offen sc1"]
    k("s_add_u32 s48, s47, 4096")
    if CFG['hint']:
        if CFG['hint'] == 2: aprobe(k, 'v_pr', 12, 's45', 9, [80, 81, 82, 83], CFG['pd_m'], CFG['pdep'], CFG['dly_v'])
        else: probe(k, 'v_pr', 12, 's45', HR_REP, [80, 81, 82, 83], CFG['pd_m'])
        stamp(k, 5)
        if CFG['dly_sm']: k(f"s_sleep {CFG['dly_sm']}")
        for l in loads_: k(l)
        shot_check(k, 'v_pm', loads_, range(68, 78), 26, 0, CFG['sl_m'])
        o = 68
    elif CFG['stag']:
        poll_stag(k, 'v_pm', m_rounds(68, 72, 76), range(68, 78), range(16, 26), 26, CFG['st_m'], CFG['sl_m'], *adj_list())
        o = 16
    else:
        poll(k, 'v_pm', loads_, range(68, 78), 26, CFG['sl_m'], CFG['dly_v'], CFG['dep_m'])
        o = 68
    stamp(k, 1)
    k(f"ds_write_b128 v7, v[{o}:{o+3}]")
    k(f"ds_write_b128 v7, v[{o+4}:{o+7}] offset:4096")
    k(f"ds_write_b64 v8, v[{o+8}:{o+9}]")
    k("s_waitcnt lgkmcnt(0)")
    k.lab('v_go2')
    k("s_barrier")
    lg = LG(k)
    for c in range(10): lg.issue(('A', c), f"ds_read_b128 v[{MA+4*c}:{MA+4*c+3}], v5 offset:{c*1024}")
    for r in range(12): k(f"v_mov_b32 v{VACC+r}, 0")
    for c in range(10):
        lg.wait(('A', c))
        for t in range(3):
            kind, r = wv(t, c)
            k(f"v_smfmac_f32_16x16x64_bf16 v[{VACC+4*t}:{VACC+4*t+3}], v[{MA+4*c}:{MA+4*c+3}], {kind}[{r}:{r+7}], v4")
    def rdWo(t, c, slot):
        b = STG + 8 * slot; o = ((t - 7) * 3 + c) * 2048
        lg.issue(('W', t, c), f"ds_read_b128 v[{b}:{b+3}], v6 offset:{o}")
        lg.issue(('W', t, c), f"ds_read_b128 v[{b+4}:{b+7}], v6 offset:{o+1024}")
    for c in range(3): rdWo(7, c, c)
    stamp(k, 2)
    k("s_waitcnt vmcnt(0)")
    for r in range(40): k(f"v_mov_b32 v{MA+r}, 0")
    for r in range(4): k(f"v_permlane32_swap_b32 v{VACC+r}, v{VACC+4+r}")
    for r in range(4): k(f"v_add_f32 v{VACC+r}, v{VACC+r}, v{VACC+4+r}")
    k(f"v_cvt_pk_bf16_f32 v{VA}, v{VACC}, v{VACC+1}")
    k(f"v_cvt_pk_bf16_f32 v{VA+1}, v{VACC+2}, v{VACC+3}")
    for r in range(4): k(f"v_mov_b32 v{VACC+4+r}, v{VACC+8+r}")
    for r in range(4): k(f"v_permlane32_swap_b32 v{VACC+8+r}, v{VACC+4+r}")
    for r in range(4): k(f"v_add_f32 v{VACC+8+r}, v{VACC+8+r}, v{VACC+4+r}")
    k(f"v_cvt_pk_bf16_f32 v{VA+2}, v{VACC+8}, v{VACC+9}")
    k(f"v_cvt_pk_bf16_f32 v{VA+3}, v{VACC+10}, v{VACC+11}")
    lg.issue('x', f"ds_write_b64 v10, v[{VA}:{VA+1}]")
    lg.issue('x', f"ds_write_b64 v9, v[{VA+2}:{VA+3}] offset:512")
    lg.all()
    k("s_barrier")
    if CFG['hint'] == 2 and CFG['hv']:
        ahint(k, 13, 0, 's42')
    elif CFG['hint'] and CFG['hv']: hint_store(k, 13, 's42', HS_REP)
    for c in range(3):
        lg.issue(('V', c), f"ds_read_b64_tr_b16 v[{VA+4*c}:{VA+4*c+1}], v11 offset:{c*1024}")
        lg.issue(('V', c), f"ds_read_b64_tr_b16 v[{VA+4*c+2}:{VA+4*c+3}], v11 offset:{c*1024+128}")
    stamp(k, 3)
    acc = lambda t: MA + 4 * t
    def mm(t, c, B):
        k(f"v_smfmac_f32_16x16x64_bf16 v[{acc(t)}:{acc(t)+3}], v[{VA+4*c}:{VA+4*c+3}], {B}, v4")
    def B_reg(t, c):
        kind, r = wo(t, c); return f"{kind}[{r}:{r+7}]"
    OUT = 56
    def epi(T, o):
        L = []
        t0, t1, t2, t3 = T
        for (x, y) in ((t0, t2), (t1, t3)):
            for r in range(4): L.append(f"v_permlane32_swap_b32 v{acc(x)+r}, v{acc(y)+r}")
            for r in range(4): L.append(f"v_add_f32 v{acc(x)+r}, v{acc(x)+r}, v{acc(y)+r}")
        L.append(f"v_cvt_pk_bf16_f32 v{o}, v{acc(t0)}, v{acc(t0)+1}")
        L.append(f"v_cvt_pk_bf16_f32 v{o+1}, v{acc(t0)+2}, v{acc(t0)+3}")
        L.append(f"v_cvt_pk_bf16_f32 v{o+2}, v{acc(t1)}, v{acc(t1)+1}")
        L.append(f"v_cvt_pk_bf16_f32 v{o+3}, v{acc(t1)+2}, v{acc(t1)+3}")
        L.append(f"v_permlane16_swap_b32 v{o}, v{o+2}")
        L.append(f"v_permlane16_swap_b32 v{o+1}, v{o+3}")
        for r in range(4): L.append(f"v_min_u32 v{o+r}, -2, v{o+r}")
        return L
    for c in range(3):
        lg.wait(('V', c))
        for t in range(4): mm(t, c, B_reg(t, c))
    for c in range(3):
        for t in (4, 5, 6): mm(t, c, B_reg(t, c))
        mm(7, c, f"v[{STG+8*c}:{STG+8*c+7}]")
        rdWo(8, c, c)
    for s_ in epi([0, 1, 2, 3], OUT): k(s_)
    k(f"buffer_store_dwordx4 v[{OUT}:{OUT+3}], v14, s[8:11], s43 offen sc1")
    for c in range(3):
        lg.wait(('W', 8, c))
        mm(8, c, f"v[{STG+8*c}:{STG+8*c+7}]")
        rdWo(9, c, c)
    for s_ in epi([4, 5, 6, 7], OUT + 4): k(s_)
    k("s_add_u32 s49, s43, 32768")
    k(f"buffer_store_dwordx4 v[{OUT+4}:{OUT+7}], v14, s[8:11], s49 offen sc1")
    for c in range(3):
        lg.wait(('W', 9, c))
        mm(9, c, f"v[{STG+8*c}:{STG+8*c+7}]")
    o = OUT + 8
    for r in range(4): k(f"v_permlane32_swap_b32 v{acc(8)+r}, v{acc(9)+r}")
    for r in range(4): k(f"v_add_f32 v{acc(8)+r}, v{acc(8)+r}, v{acc(9)+r}")
    k(f"v_cvt_pk_bf16_f32 v{o}, v{acc(8)}, v{acc(8)+1}")
    k(f"v_cvt_pk_bf16_f32 v{o+1}, v{acc(8)+2}, v{acc(8)+3}")
    k(f"v_mov_b32 v{o+2}, v{o}")
    k(f"v_mov_b32 v{o+3}, v{o+1}")
    k(f"v_permlane16_swap_b32 v{o}, v{o+2}")
    k(f"v_permlane16_swap_b32 v{o+1}, v{o+3}")
    for r in range(4): k(f"v_min_u32 v{o+r}, -2, v{o+r}")
    k(f"buffer_store_dwordx4 v[{o}:{o+3}], v15, s[8:11], s43 offen sc1")
    stamp(k, 4)
    stamp_out(k, 6, 32, 1, 46)
    k("s_add_u32 s40, s40, 1")
    k(f"s_add_u32 s43, s43, {VOM_STEP}")
    k(f"s_add_u32 s47, s47, {MB_STEP}")
    if CFG['hint']:
        k(f"s_add_u32 s45, s45, {hr_step()}")
        k(f"s_add_u32 s42, s42, {hs_step()}")
    k("s_cmp_lt_u32 s40, 64")
    k(f"s_cbranch_scc1 {k.ref('v_step')}")
    k(f"s_branch {k.ref('end')}")

def role_R(k, to_out):
    BX, BN, PX, PM, VM, A1, A2 = 16, 48, 80, 96, 100, 108, 112
    XP, XM, OA, TQ = 116, 180, 196, 204
    L_R, L_O = 0, 16384
    k("s_sub_u32 s44, s2, 64")
    k("v_lshlrev_b32 v5, 4, v1")
    k("s_lshl_b32 s24, s44, 15"); k("s_lshl_b32 s25, s3, 13"); k("s_add_u32 s24, s24, s25")
    k("v_add_u32 v6, s24, v5")
    k("v_add_u32 v7, 4096, v6")
    k("s_lshl_b32 s24, s3, 12")
    k("v_add_u32 v8, s24, v5")
    k("s_lshl_b32 s24, s3, 10"); k("s_add_u32 s24, s24, 16384")
    k("v_add_u32 v9, s24, v5")
    k("s_lshl_b32 s24, s44, 13"); k("s_lshl_b32 s25, s3, 11"); k("s_add_u32 s24, s24, s25")
    k("v_add_u32 v10, s24, v5")
    k(f"v_and_b32 v{TQ}, 7, v2"); k(f"v_mul_u32_u24 v11, 80, v{TQ}")
    k("v_lshl_add_u32 v11, v3, 4, v11")
    k("s_mul_i32 s24, s3, 640")
    k("v_add_u32 v11, s24, v11")
    k(f"v_add_u32 v{TQ}, 8192, v5")
    k("v_cmp_gt_u32 vcc, 8, v2")
    k(f"v_cndmask_b32 v11, v{TQ}, v11, vcc")
    k(f"v_and_b32 v{TQ}, 7, v2"); k(f"v_mul_u32_u24 v12, 80, v{TQ}")
    k(f"v_lshrrev_b32 v{TQ}, 3, v2"); k(f"v_lshl_add_u32 v12, v{TQ}, 5, v12")
    k("v_mul_u32_u24 v13, 10240, v3")
    k("v_lshl_add_u32 v13, v2, 4, v13")
    k("s_lshl_b32 s24, s44, 8")
    k("v_add_u32 v13, s24, v13")
    if CFG['mrep'] < 4:
        k(f"v_mov_b32 v{TQ}, {OOB}")
        k(f"v_cmp_gt_u32 vcc, {CFG['mrep']}, v3")
        k(f"v_cndmask_b32 v13, v{TQ}, v13, vcc")
    k("v_cmp_le_u32 s[50:51], 8, v2")
    if CFG['hint'] == 2:
        k("s_and_b32 s25, s44, 15"); k("s_lshr_b32 s25, s25, 2")
        k("s_sub_u32 s26, s44, 32"); k("s_lshr_b32 s26, s26, 1")
        k("s_cmp_ge_u32 s44, 32"); k("s_cselect_b32 s25, s26, s25")
        ahint_addr(k, 120, TQ, 's25', RH_M, False)
        aprobe_addr(k, 125, 's44', RH_P)
    if CFG['hint']:
        if CFG['hint'] == 1: hint_addr(k, 120, TQ, 's44', HR_REP, False)
        k("s_lshl_b32 s24, s3, 3")
        k(f"v_and_b32 v{TQ}, 7, v1")
        k(f"v_add_u32 v121, s24, v{TQ}")
        k(f"v_add_u32 v{TQ}, 32, v121")
        k("v_cmp_le_u32 vcc, 8, v1")
        k(f"v_cndmask_b32 v121, v121, v{TQ}, vcc")
        k("v_lshlrev_b32 v121, 7, v121")
        k(f"v_mov_b32 v{TQ}, {OOB}")
        k(f"v_cmp_le_u32 vcc, {16 if CFG['hv'] else CFG['nhp']}, v1")
        k(f"v_cndmask_b32 v121, v121, v{TQ}, vcc")
        k("v_mov_b32 v122, 12288")
        k("v_mov_b32 v123, 0")
        k("ds_write_b32 v122, v123")
        k("v_mov_b32 v123, 1")
        k("s_waitcnt lgkmcnt(0)")
        k("s_barrier")
        k(f"s_mov_b32 s45, {WS_HS}")
        k(f"s_mov_b32 s46, {WS_HR + hr_step()}")
    k("s_mov_b32 s40, 0")
    k(f"s_mov_b32 s54, {CFG['dly_p']}")
    k(f"s_mov_b32 s41, {WS_VOX}")
    k(f"s_mov_b32 s43, {WS_PB}")
    k(f"s_mov_b32 s42, {WS_VOM}")
    k(f"s_mov_b32 s47, {WS_MB + MB_STEP}")
    if CFG['prep'] > 1 and not CFG['stag']:
        k(f"s_and_b32 s24, s44, {CFG['prep']-1}"); k("s_mul_i32 s24, s24, 20480"); k("s_add_u32 s43, s43, s24")
    def vox_loads():
        for q in range(4):
            k(f"buffer_load_dwordx4 v[{BN+4*q}:{BN+4*q+3}], v6, s[8:11], s41 offen offset:{q*1024} sc1")
        for q in range(4):
            k(f"buffer_load_dwordx4 v[{BN+16+4*q}:{BN+16+4*q+3}], v7, s[8:11], s41 offen offset:{q*1024} sc1")
        k(f"s_add_u32 s41, s41, {VOX_SEG}")
    k("v_and_b32 v252, 7, v1")
    k("v_lshlrev_b32 v252, 7, v252")
    k(f"s_lshl_b32 s24, s3, 10"); k(f"s_add_u32 s24, s24, {WS_FLG + 3*4096}")
    k("v_add_u32 v252, s24, v252")
    k("s_mov_b32 s62, -1"); k("s_mov_b32 s63, 1")
    ensure(k, 'r_en0', 8, 252, 253)
    vox_loads()
    k("s_waitcnt vmcnt(0)")
    k.lab('r_step')
    k("s_waitcnt vmcnt(0)")
    for r in range(32): k(f"v_mov_b32 v{BX+r}, v{BN+r}")
    stamp(k, 0)
    def r_hint():
        k("s_waitcnt lgkmcnt(0)")
        k("v_readfirstlane_b32 s24, v124")
        k("s_and_b32 s24, s24, 3")
        k("s_cmp_eq_u32 s24, 3")
        k(f"s_cselect_b32 s24, 0, {OOB}")
        k("v_or_b32 v126, s24, v120")
        ahint(k, 126, 123, 's46')
    loads_ = [f"buffer_load_dwordx4 v[{PX+4*q}:{PX+4*q+3}], v8, s[8:11], s43 offen offset:{q*1024} sc1" for q in range(4)]
    loads_ += [f"buffer_load_dwordx4 v[{PM}:{PM+3}], v9, s[8:11], s43 offen sc1"]
    loads_ += [f"buffer_load_dwordx4 v[{VM+4*q}:{VM+4*q+3}], v10, s[8:11], s42 offen offset:{q*1024} sc1" for q in range(2)]
    if CFG['hint']:
        if CFG['hint'] == 2: aprobe(k, 'r_pr', 125, 's45', 15 if CFG['hv'] else 7, [116, 117, 118, 119], CFG['pd_p'], CFG['pdep'], CFG['dly_p'])
        else: probe(k, 'r_pr', 121, 's45', HS_REP, [116, 117, 118, 119], CFG['pd_p'])
        stamp(k, 4)
        if CFG['hr_pos'] == 0:
            k("s_mov_b64 exec, 1")
            k("ds_add_rtn_u32 v124, v122, v123")
            k("s_mov_b64 exec, -1")
        if CFG['dly_sp']: k(f"s_sleep {CFG['dly_sp']}")
        loads_ = loads_[5:] + loads_[:5]
        for l in loads_: k(l)
        if CFG['hr_pos'] == 0: r_hint()
        shot_check(k, 'r_p', loads_, range(PX, VM + 8), TQ, 1 if CFG['hr_pos'] == 0 else 0, CFG['sl_p'])
        VMs = VM
        if CFG['hr_pos'] == 1:
            k("s_mov_b64 exec, 1")
            k("ds_add_rtn_u32 v124, v122, v123")
            k("s_mov_b64 exec, -1")
    elif CFG['stag']:
        rounds = []
        for j in range(CFG['stag_r']):
            rr = [f"s_add_u32 s52, s43, {j*20480}"]
            if j == 0 or CFG['vom_all']: rr += loads_[5:]
            rr += [l.replace('s43 offen', 's52 offen') for l in loads_[:5]]
            rounds.append(rr)
        SN = 220
        al, afb = adj_list('r')
        poll_stag(k, 'r_p', rounds, range(PX, VM + 8), range(SN, SN + 28), TQ, CFG['st_p'], CFG['sl_p'], al, afb)
        LVM = VM
        PX, PM, VMs = SN, SN + 16, SN + 20
    else:
        poll(k, 'r_p', loads_, range(PX, VM + 8), TQ, CFG['sl_p'], CFG['dly_p'], CFG['dep_p'])
        VMs = VM
    stamp(k, 1)
    k(f"v_mfma_f32_16x16x32_bf16 v[{A1}:{A1+3}], v[{VMs}:{VMs+3}], v[{PM}:{PM+3}], 0")
    k(f"v_mfma_f32_16x16x32_bf16 v[{A2}:{A2+3}], v[{VMs+4}:{VMs+7}], v[{PM}:{PM+3}], 0")
    for q in range(4):
        k(f"v_mfma_f32_16x16x32_bf16 v[{A1}:{A1+3}], v[{BX+8*q}:{BX+8*q+3}], v[{PX+4*q}:{PX+4*q+3}], v[{A1}:{A1+3}]")
        k(f"v_mfma_f32_16x16x32_bf16 v[{A2}:{A2+3}], v[{BX+8*q+4}:{BX+8*q+7}], v[{PX+4*q}:{PX+4*q+3}], v[{A2}:{A2+3}]")
        if q == 0 and CFG['hint'] and CFG['hr_pos'] == 1:
            lh = k.new('nh')
            k("s_waitcnt lgkmcnt(0)")
            k("v_readfirstlane_b32 s24, v124")
            k("s_and_b32 s24, s24, 3")
            k("s_cmp_eq_u32 s24, 3")
            k(f"s_cbranch_scc0 {k.ref(lh)}")
            if CFG['hint'] == 2: ahint(k, 120, 123, 's46')
            else: hint_store(k, 120, 's46', HR_REP)
            k.lab(lh)
    k("s_and_b32 s24, s40, 1"); k("s_mul_i32 s24, s24, 2560")
    k("v_add_u32 v14, s24, v11")
    k("v_add_u32 v15, s24, v12")
    for r in range(4): k(f"v_cndmask_b32 v{A1+r}, v{A1+r}, v{A2+r}, s[50:51]")
    for r in range(4): k(f"v_add_f32 v{A1+r}, v{A1+r}, v{A1+r} row_ror:8 row_mask:0xf bank_mask:0xf")
    k(f"ds_write_b128 v14, v[{A1}:{A1+3}]")
    k("s_waitcnt lgkmcnt(0)")
    k("s_barrier")
    stamp(k, 2)
    l = k.new('np')
    k("s_cmp_eq_u32 s3, 0")
    k(f"s_cbranch_scc0 {k.ref(l)}")
    Q0 = 220
    sum4x8(k, Q0, 15, 640)
    for q in range(4): k(f"v_cvt_pk_bf16_f32 v{Q0+8+q}, v{Q0+2*q}, v{Q0+2*q+1}")
    for q in range(4): k(f"v_min_u32 v{Q0+8+q}, -2, v{Q0+8+q}")
    k(f"buffer_store_dwordx4 v[{Q0+8}:{Q0+11}], v13, s[8:11], s47 offen sc1")
    k.lab(l)
    stamp(k, 3)
    k("s_add_u32 s63, s40, 2"); k("s_min_u32 s63, s63, 64")
    if CFG['dly_vox']: k(f"s_sleep {CFG['dly_vox']}")
    ensure(k, 'r_en', 8, 252, 253)
    vox_loads()
    stamp(k, 5)
    stamp_out(k, 6, 64, 2, TQ)
    k("s_add_u32 s40, s40, 1")
    k(f"s_add_u32 s42, s42, {VOM_STEP}")
    k(f"s_add_u32 s43, s43, {PB_STEP}")
    k(f"s_add_u32 s47, s47, {MB_STEP}")
    if CFG['hint']:
        k(f"s_add_u32 s45, s45, {hs_step()}")
        k(f"s_add_u32 s46, s46, {hr_step()}")
    k("s_cmp_lt_u32 s40, 64")
    k(f"s_cbranch_scc1 {k.ref('r_step')}")
    k(f"s_branch {k.ref('end')}")

def flag_pub(k, val):
    l = k.new('fp')
    k("s_cmp_eq_u32 s3, 0")
    k(f"s_cbranch_scc0 {k.ref(l)}")
    k(f"v_mov_b32 v15, {val}")
    k("buffer_store_dword v15, v14, s[8:11], 0 offen sc1")
    k.lab(l)

def flag_addr(k, role_sreg_or_const):
    if isinstance(role_sreg_or_const, int): k(f"s_mov_b32 s24, {role_sreg_or_const * 4096}")
    else: k(f"s_lshl_b32 s24, {role_sreg_or_const}, 12")
    k("s_lshl_b32 s25, s44, 7"); k("s_add_u32 s24, s24, s25"); k(f"s_add_u32 s24, s24, {WS_FLG}")
    k("v_mov_b32 v14, s24")
    k(f"v_mov_b32 v15, {OOB}")
    k("v_cmp_eq_u32 vcc, 0, v1")
    k("v_cndmask_b32 v14, v15, v14, vcc")

def role_X(k, to_out):
    BX, XP, XM, VM, OA, TQ, Q0 = 16, 80, 144, 160, 176, 192, 196
    L_O = 0
    k("s_sub_u32 s44, s2, 104")
    k("s_cmp_ge_u32 s44, 80")
    k(f"s_cbranch_scc1 {k.ref('end')}")
    k("s_mul_i32 s40, s44, 205"); k("s_lshr_b32 s40, s40, 12")
    k("s_mul_i32 s24, s40, 20"); k("s_sub_u32 s44, s44, s24")
    k("v_lshlrev_b32 v5, 4, v1")
    k("s_lshl_b32 s24, s44, 16"); k("s_lshl_b32 s25, s3, 13"); k("s_add_u32 s24, s24, s25")
    k("v_add_u32 v6, s24, v5")
    k("v_add_u32 v7, 4096, v6")
    k("s_lshl_b32 s24, s44, 14"); k("s_lshl_b32 s25, s3, 11"); k("s_add_u32 s24, s24, s25")
    k("v_add_u32 v10, s24, v5")
    k("s_lshl_b32 s24, s3, 14")
    k(f"v_add_u32 v{TQ+1}, s24, v5")
    for jj in range(4): k(f"v_add_u32 v{212+jj}, {jj*4096}, v{TQ+1}")
    k("s_lshl_b32 s24, s3, 12"); k("s_add_u32 s24, s24, 65536")
    k("v_add_u32 v216, s24, v5")
    k(f"s_lshl_b32 s24, s3, 12"); k(f"s_add_u32 s24, s24, {L_O}")
    k("v_add_u32 v217, s24, v5")
    k(f"s_lshl_b32 s24, s3, 10"); k(f"s_add_u32 s24, s24, {L_O}")
    k("v_add_u32 v218, s24, v5")
    k("s_and_b32 s24, s3, 1"); k("s_lshl_b32 s24, s24, 4")
    k("v_add_u32 v219, s24, v2")
    k("v_mul_u32_u24 v219, 1280, v219")
    k("v_lshl_add_u32 v219, v3, 3, v219")
    k("s_lshr_b32 s24, s3, 1"); k("s_lshl_b32 s25, s44, 1"); k("s_add_u32 s24, s24, s25"); k("s_lshl_b32 s24, s24, 5")
    k("v_add_u32 v219, s24, v219")
    if to_out:
        k.ptr(KA_OUT, 26); k("s_waitcnt lgkmcnt(0)"); k.srd(12, 26, S * D * 2)
    else:
        k.srd(12, 4, S * D * 2, G.WS_X1)
    k.srd(16, 4, S * D * 2, G.WS_X1)
    k(f"s_mul_i32 s41, s40, {VOX_SEG}"); k(f"s_add_u32 s41, s41, {WS_VOX}")
    k(f"s_mul_i32 s42, s40, {VOM_STEP}"); k(f"s_add_u32 s42, s42, {WS_VOM}")
    k(f"s_mul_i32 s45, s40, {PX_STEP}"); k(f"s_add_u32 s45, s45, {WS_PX}")
    k(f"s_mul_i32 s46, s40, {32*1280}")
    k("v_and_b32 v252, 7, v1")
    k("v_lshlrev_b32 v252, 7, v252")
    k(f"s_lshl_b32 s24, s3, 10"); k(f"s_add_u32 s24, s24, {WS_FLG + 3*4096}")
    k("v_add_u32 v252, s24, v252")
    k("s_mov_b32 s62, -1")
    k.lab('x_seg')
    k("s_add_u32 s63, s40, 1")
    ensure(k, 'x_en', 8, 252, 253)
    k("s_add_u32 s52, s41, 32768")
    for rr in range(2):
        so = 's41' if rr == 0 else 's52'
        for q in range(8):
            r = BX + rr * 32 + 4 * q
            k(f"buffer_load_dwordx4 v[{r}:{r+3}], v{6 + q//4}, s[8:11], {so} offen offset:{(q%4)*1024} sc1")
    k(f"buffer_load_dwordx2 v[{TQ+2}:{TQ+3}], v219, s[16:19], s46 offen")
    loads_ = []
    for j in range(8):
        for tt in range(2):
            r = XP + (j * 2 + tt) * 4
            loads_.append(f"buffer_load_dwordx4 v[{r}:{r+3}], v{212 + j//2}, s[8:11], s45 offen offset:{(j%2)*2048 + tt*1024} sc1")
    for q in range(2):
        for tt in range(2):
            r = XM + (q * 2 + tt) * 4
            loads_.append(f"buffer_load_dwordx4 v[{r}:{r+3}], v216, s[8:11], s45 offen offset:{q*2048 + tt*1024} sc1")
    poll(k, 'x_p0', loads_[15:16], range(XP + 60, XP + 64), TQ, CFG['sl_x0'], 0)
    poll(k, 'x_p1', loads_, range(XP, XM + 16), TQ, CFG['sl_x'], 0)
    k("s_add_u32 s53, s42, 8192")
    loads_ = []
    for rr in range(2):
        so = 's42' if rr == 0 else 's53'
        for q in range(2):
            r = VM + rr * 8 + 4 * q
            loads_.append(f"buffer_load_dwordx4 v[{r}:{r+3}], v10, s[8:11], {so} offen offset:{q*1024} sc1")
    poll(k, 'x_v', loads_, range(VM, VM + 16), TQ, CFG['sl_x'], 0)
    oa = lambda rr, tt: OA + (rr * 2 + tt) * 4
    for j in range(8):
        for rr in range(2):
            for tt in range(2):
                a = oa(rr, tt); r = XP + (j * 2 + tt) * 4; b = BX + rr * 32 + 4 * j
                c = f"v[{a}:{a+3}]" if j else "0"
                k(f"v_mfma_f32_16x16x32_bf16 v[{a}:{a+3}], v[{b}:{b+3}], v[{r}:{r+3}], {c}")
    for q in range(2):
        for rr in range(2):
            for tt in range(2):
                a = oa(rr, tt); b = VM + rr * 8 + 4 * q; r = XM + (q * 2 + tt) * 4
                k(f"v_mfma_f32_16x16x32_bf16 v[{a}:{a+3}], v[{b}:{b+3}], v[{r}:{r+3}], v[{a}:{a+3}]")
    k("s_lshr_b32 s24, s40, 2"); k("s_and_b32 s24, s24, 1"); k("s_lshl_b32 s24, s24, 14")
    k("v_add_u32 v14, s24, v217")
    k("v_add_u32 v15, s24, v218")
    for t in range(4): k(f"ds_write_b128 v14, v[{OA+4*t}:{OA+4*t+3}] offset:{t*1024}")
    k("s_waitcnt lgkmcnt(0)")
    k("s_barrier")
    for w in range(4): k(f"ds_read_b128 v[{Q0+4*w}:{Q0+4*w+3}], v15 offset:{w*4096}")
    k("s_waitcnt lgkmcnt(0)")
    for r in range(0, 4, 2):
        k(f"v_pk_add_f32 v[{Q0+r}:{Q0+r+1}], v[{Q0+r}:{Q0+r+1}], v[{Q0+4+r}:{Q0+4+r+1}]")
        k(f"v_pk_add_f32 v[{Q0+8+r}:{Q0+8+r+1}], v[{Q0+8+r}:{Q0+8+r+1}], v[{Q0+12+r}:{Q0+12+r+1}]")
    for r in range(0, 4, 2):
        k(f"v_pk_add_f32 v[{Q0+r}:{Q0+r+1}], v[{Q0+r}:{Q0+r+1}], v[{Q0+8+r}:{Q0+8+r+1}]")
    k(f"v_cvt_pk_bf16_f32 v{Q0+4}, v{Q0}, v{Q0+1}")
    k(f"v_cvt_pk_bf16_f32 v{Q0+5}, v{Q0+2}, v{Q0+3}")
    for h in range(2):
        k(f"v_lshlrev_b32 v{Q0+2*h}, 16, v{Q0+4+h}")
        k(f"v_and_b32 v{Q0+2*h+1}, 0xffff0000, v{Q0+4+h}")
        k(f"v_lshlrev_b32 v{Q0+6}, 16, v{TQ+2+h}")
        k(f"v_and_b32 v{Q0+7}, 0xffff0000, v{TQ+2+h}")
        k(f"v_add_f32 v{Q0+2*h}, v{Q0+2*h}, v{Q0+6}")
        k(f"v_add_f32 v{Q0+2*h+1}, v{Q0+2*h+1}, v{Q0+7}")
    k(f"v_cvt_pk_bf16_f32 v{Q0+4}, v{Q0}, v{Q0+1}")
    k(f"v_cvt_pk_bf16_f32 v{Q0+5}, v{Q0+2}, v{Q0+3}")
    k(f"buffer_store_dwordx2 v[{Q0+4}:{Q0+5}], v219, s[12:15], s46 offen")
    k("s_add_u32 s40, s40, 4")
    k(f"s_add_u32 s41, s41, {4*VOX_SEG}")
    k(f"s_add_u32 s42, s42, {4*VOM_STEP}")
    k(f"s_add_u32 s45, s45, {4*PX_STEP}")
    k(f"s_add_u32 s46, s46, {4*32*1280}")
    k("s_cmp_lt_u32 s40, 64")
    k(f"s_cbranch_scc1 {k.ref('x_seg')}")
    k(f"s_branch {k.ref('end')}")

def role_P(k, to_out):
    RS, L_ST = 400, 81920
    XPRE, BF, ACC, OUT = 16, 56, 88, 112
    k("s_sub_u32 s44, s2, 104")
    k("s_lshr_b32 s46, s44, 5")
    k("s_and_b32 s44, s44, 31")
    k.ptr(KA_WQ, 6); k.ptr(KA_WK, 24); k.ptr(KA_WV, 26)
    k("s_waitcnt lgkmcnt(0)")
    k("s_cmp_eq_u32 s46, 1"); k("s_cselect_b32 s6, s24, s6"); k("s_cselect_b32 s7, s25, s7")
    k(f"s_mov_b32 s43, {WS_QF}")
    k(f"s_cselect_b32 s43, {WS_KF}, s43")
    k("s_cmp_eq_u32 s46, 2"); k("s_cselect_b32 s6, s26, s6"); k("s_cselect_b32 s7, s27, s7")
    k(f"s_cselect_b32 s43, {WS_VF}, s43")
    k.srd(12, 6, D * HD * 2)
    GO, LO, DAT = 4, 10, 56
    stage_offsets(k, 6, 24, HD * 2, RS, L_ST, GO, LO, 16)
    k("v_lshrrev_b32 v16, 2, v2")
    k("v_lshl_add_u32 v16, v3, 3, v16")
    k(f"v_mul_u32_u24 v0, {RS}, v16")
    k("v_and_b32 v16, 3, v2")
    k("v_lshl_add_u32 v0, v16, 3, v0")
    k(f"s_mul_i32 s24, s3, 96"); k(f"s_add_u32 s24, s24, {L_ST}")
    k("v_add_u32 v0, s24, v0")
    k("v_lshlrev_b32 v16, 4, v1")
    k("s_mul_i32 s24, s3, 10240")
    k("v_add_u32 v17, s24, v16")
    k("v_add_u32 v18, 4096, v17"); k("v_add_u32 v19, 8192, v17")
    k(f"s_mov_b32 s41, {WS_XNF}")
    xdst = lambda i: (f"a[{240+4*i}:{243+4*i}]" if i < 4 else f"v[{20+4*(i-4)}:{23+4*(i-4)}]")
    for i in range(10):
        k(f"buffer_load_dwordx4 {xdst(i)}, v{17 + i//4}, s[8:11], s41 offen offset:{(i%4)*1024}")
    k("s_mul_i32 s45, s44, 384")
    def loads(c):
        d = DAT + 24 * (c % 8)
        k(f"s_add_u32 s47, s45, {c * 64 * HD * 2}")
        for i in range(6):
            k(f"buffer_load_dwordx4 v[{d+4*i}:{d+4*i+3}], v{GO+i}, s[12:15], s47 offen")
    for c in range(8): loads(c)
    waits = [42, 42, 42, 36, 30, 24, 18, 12, 6, 0]
    for c in range(10):
        d = DAT + 24 * (c % 8)
        k(f"s_waitcnt vmcnt({waits[c]})")
        for i in range(6): k(f"ds_write_b128 v{LO+i}, v[{d+4*i}:{d+4*i+3}] offset:{(c%2)*25600}")
        if c == 0:
            for i in range(10): k(f"ds_write_b128 v17, {xdst(i)} offset:{i*1024}")
        k("s_waitcnt lgkmcnt(0)")
        if c < 2: loads(c + 8)
        k("s_barrier")
        for t in range(3):
            for jj in range(2):
                r = (t * 20 + 2 * c + jj) * 4
                for hf in range(2):
                    k(f"ds_read_b64_tr_b16 a[{r+2*hf}:{r+2*hf+1}], v0 offset:{(c%2)*25600 + (32*jj + 4*hf)*RS + 32*t}")
    k("v_mov_b32 v6, v17"); k("v_mov_b32 v7, v18"); k("v_mov_b32 v8, v19")
    k("v_lshlrev_b32 v5, 4, v1")
    k("s_mul_i32 s24, s44, 12288"); k("s_mul_i32 s25, s3, 3072"); k("s_add_u32 s24, s24, s25")
    k("v_add_u32 v11, s24, v5")
    flag_addr(k, 's46')
    k("s_mov_b32 s40, 0")
    k("s_mov_b32 s42, 0")
    k("s_waitcnt lgkmcnt(0)")
    k.lab('p_seg')
    k("v_add_u32 v9, s42, v5")
    k("s_xor_b32 s42, s42, 40960")
    k("v_add_u32 v10, s42, v6")
    k("s_add_u32 s41, s41, 40960")
    for i in range(10):
        k(f"buffer_load_dwordx4 v[{XPRE+4*i}:{XPRE+4*i+3}], v{6 + i//4}, s[8:11], s41 offen offset:{(i%4)*1024}")
    lg = LG(k)
    def rd(j):
        for tt in range(2):
            r = BF + ((j % 4) * 2 + tt) * 4
            lg.issue(j, f"ds_read_b128 v[{r}:{r+3}], v9 offset:{tt*20480 + j*1024}")
    rd(0); rd(1); rd(2)
    for j in range(20):
        if j + 3 < 20: rd(j + 3)
        lg.wait(j)
        for tt in range(2):
            r = BF + ((j % 4) * 2 + tt) * 4
            for t in range(3):
                a = ACC + (tt * 3 + t) * 4; w = (t * 20 + j) * 4
                c = f"v[{a}:{a+3}]" if j else "0"
                k(f"v_mfma_f32_16x16x32_bf16 v[{a}:{a+3}], a[{w}:{w+3}], v[{r}:{r+3}], {c}")
        if j == 9:
            k("s_waitcnt vmcnt(10)")
            k("s_barrier")
            flag_pub(k, 's40')
    acc = lambda tt, t: ACC + (tt * 3 + t) * 4
    for o, (tt, t) in enumerate([(0, 0), (0, 1), (1, 0), (1, 1), (0, 2), (1, 2)]):
        a = acc(tt, t)
        k(f"v_cvt_pk_bf16_f32 v{OUT+2*o}, v{a}, v{a+1}")
        k(f"v_cvt_pk_bf16_f32 v{OUT+2*o+1}, v{a+2}, v{a+3}")
    for b in range(3):
        k(f"buffer_store_dwordx4 v[{OUT+4*b}:{OUT+4*b+3}], v11, s[8:11], s43 offen offset:{b*1024} sc1")
    k("s_waitcnt vmcnt(3)")
    for i in range(10): k(f"ds_write_b128 v10, v[{XPRE+4*i}:{XPRE+4*i+3}] offset:{i*1024}")
    k("s_add_u32 s40, s40, 1")
    k(f"s_add_u32 s43, s43, {QF_SEG}")
    k("s_waitcnt lgkmcnt(0)")
    k("s_barrier")
    k("s_cmp_lt_u32 s40, 64")
    k(f"s_cbranch_scc1 {k.ref('p_seg')}")
    k("s_waitcnt vmcnt(0)")
    k("s_barrier")
    flag_pub(k, 's40')
    role_X(k, to_out)

def role_O(k):
    RS = 1312
    VFa, VFb, ACC, OUT = 16, 64, 112, 192
    k("s_sub_u32 s44, s2, 200")
    k.ptr(KA_WO, 6)
    k("s_waitcnt lgkmcnt(0)")
    k.srd(12, 6, D * HD * 2)
    LO, D0, D1 = 16, 48, 168
    for i in range(30):
        k(f"v_add_u32 v8, {256*i}, v0")
        divmod_const(k, 9, 10, 8, 80, 256 * 30, 24)
        k(f"v_mul_u32_u24 v{LO+i}, {RS}, v9")
        k(f"v_lshl_add_u32 v{LO+i}, v10, 4, v{LO+i}")
    k("v_lshlrev_b32 v4, 4, v0")
    k(f"s_mul_i32 s45, s44, {192*1280}")
    dat = lambda b, i: (D0 + 4 * i) if b == 0 else ((D1 + 4 * i) if i < 22 else (D0 + 4 * (i - 22)))
    def ld(b, i):
        k(f"s_add_u32 s46, s45, {b*96*1280 + i*4096}")
        d = dat(b, i)
        k(f"buffer_load_dwordx4 v[{d}:{d+3}], v4, s[12:15], s46 offen")
    for i in range(30): ld(0, i)
    for i in range(22): ld(1, i)
    k("v_lshrrev_b32 v8, 2, v2")
    k("v_lshl_add_u32 v8, v3, 2, v8")
    k(f"v_mul_u32_u24 v5, {RS}, v8")
    k("v_and_b32 v8, 3, v2")
    k("v_lshl_add_u32 v5, v8, 3, v5")
    k("s_mul_i32 s24, s3, 320")
    k("v_add_u32 v5, s24, v5")
    k(f"v_add_u32 v6, {48*RS}, v5")
    for b in range(2):
        k(f"s_waitcnt vmcnt({22 if b == 0 else 0})")
        for i in range(30):
            d = dat(b, i)
            k(f"ds_write_b128 v{LO+i}, v[{d}:{d+3}]")
        k("s_waitcnt lgkmcnt(0)")
        if b == 0:
            for i in range(22, 30): ld(1, i)
        k("s_barrier")
        for t in range(10):
            def tr(ks, hf, base, row):
                r = (t * 6 + ks) * 4 + 2 * hf
                k(f"ds_read_b64_tr_b16 a[{r}:{r+1}], v{base} offset:{row*RS + 32*t}")
            tr(2*b, 0, 5, 0); tr(2*b, 1, 5, 16)
            tr(2*b+1, 0, 6, 0); tr(2*b+1, 1, 6, 16)
            tr(4+b, 0, 5, 32); tr(4+b, 1, 6, 32)
        k("s_waitcnt lgkmcnt(0)")
        k("s_barrier")
    k("v_lshlrev_b32 v5, 4, v1")
    k("s_mul_i32 s24, s44, 12288")
    k("v_add_u32 v6, s24, v5")
    k("v_add_u32 v7, 4096, v6"); k("v_add_u32 v8, 8192, v6")
    k(f"s_mul_i32 s24, s3, {10*32768}"); k("s_lshl_b32 s25, s44, 10"); k("s_add_u32 s24, s24, s25")
    k("v_add_u32 v9, s24, v5")
    flag_addr(k, 3)
    k(f"s_lshl_b32 s24, s44, 7"); k(f"s_add_u32 s24, s24, {WS_FLG + 2*4096}")
    k("v_mov_b32 v10, s24")
    k(f"s_mov_b32 s41, {WS_VF}")
    k(f"s_mov_b32 s43, {WS_VOX}")
    k("s_mov_b32 s40, 0")
    def vloads(V):
        for i in range(12):
            k(f"buffer_load_dwordx4 v[{V+4*i}:{V+4*i+3}], v{6 + i//4}, s[8:11], s41 offen offset:{(i%4)*1024} sc1")
        k(f"s_add_u32 s41, s41, {QF_SEG}")
    k("s_mov_b32 s62, -1"); k("s_mov_b32 s63, 1")
    ensure(k, 'o_en0', 1, 10, 11)
    vloads(VFa)
    k("s_waitcnt vmcnt(0)")
    k.lab('o_seg')
    for par, (V, VN) in enumerate(((VFa, VFb), (VFb, VFa))):
        for p in range(2):
            X = V + (6 * p + 2) * 4; Y = V + (6 * p + 5) * 4
            k(f"v_swap_b32 v{X+2}, v{Y}"); k(f"v_swap_b32 v{X+3}, v{Y+1}")
        def frag(tt, ks):
            if ks < 4: return V + (3 * ks + tt) * 4
            p = ks - 4
            return V + (6 * p + 2) * 4 if tt == 0 else V + (6 * p + 5) * 4
        for ks in range(6):
            for t in range(10):
                for tt in range(2):
                    a = ACC + (t * 2 + tt) * 4; w = (t * 6 + ks) * 4; f = frag(tt, ks)
                    c = f"v[{a}:{a+3}]" if ks else "0"
                    k(f"v_mfma_f32_16x16x32_bf16 v[{a}:{a+3}], v[{f}:{f+3}], a[{w}:{w+3}], {c}")
            if ks == 2:
                k("s_waitcnt vmcnt(0)")
                k("s_barrier")
                flag_pub(k, 's40')
                k("s_add_u32 s63, s40, 2"); k("s_min_u32 s63, s63, 64")
                ensure(k, f'o_en{par+1}', 1, 10, 11)
                vloads(VN)
        k("s_mov_b32 s46, s43")
        for t in range(10):
            o = OUT + 4 * t
            for tt in range(2):
                a = ACC + (t * 2 + tt) * 4
                k(f"v_cvt_pk_bf16_f32 v{o+2*tt}, v{a}, v{a+1}")
                k(f"v_cvt_pk_bf16_f32 v{o+2*tt+1}, v{a+2}, v{a+3}")
            k(f"buffer_store_dwordx4 v[{o}:{o+3}], v9, s[8:11], s46 offen sc1")
            if t < 9: k("s_add_u32 s46, s46, 32768")
        k("s_waitcnt vmcnt(10)")
        k("s_add_u32 s40, s40, 1")
        k(f"s_add_u32 s43, s43, {VOX_SEG}")
    k("s_cmp_lt_u32 s40, 64")
    k(f"s_cbranch_scc1 {k.ref('o_seg')}")
    k("s_waitcnt vmcnt(0)")
    k("s_barrier")
    flag_pub(k, 's40')
    k(f"s_branch {k.ref('end')}")

def k_lnf(name, src_slot, src_off):
    k = K(name, vgpr=72, sgpr=40)
    X, F = 8, 28
    k("s_cmp_ge_u32 s2, 128")
    k(f"s_cbranch_scc1 {k.ref('end')}")
    k.ptr(src_slot, 6); k.ptr(KA_WS, 12)
    k("v_and_b32 v1, 63, v0")
    k("v_lshrrev_b32 v4, 6, v0")
    k("v_and_b32 v2, 15, v1")
    k("v_lshrrev_b32 v3, 4, v1")
    k("v_readfirstlane_b32 s3, v4")
    k("s_waitcnt lgkmcnt(0)")
    k.srd(8, 6, S * D * 2, src_off)
    k.srd(16, 12, S * D * 2, WS_XNF)
    k("s_lshl_b32 s4, s2, 4")
    k("v_add_u32 v5, s4, v2")
    k("v_mul_u32_u24 v5, 1280, v5")
    k("v_lshl_add_u32 v5, v3, 4, v5")
    k("s_mul_i32 s5, s3, 320")
    k("v_add_u32 v5, s5, v5")
    for j in range(5): k(f"buffer_load_dwordx4 v[{X+4*j}:{X+4*j+3}], v5, s[8:11], 0 offen offset:{j*64}")
    k("v_lshlrev_b32 v6, 4, v2")
    k("s_lshl_b32 s5, s3, 2")
    k("v_add_u32 v7, s5, v6")
    k("s_waitcnt vmcnt(0)")
    for r in range(20):
        k(f"v_lshlrev_b32 v{F+2*r}, 16, v{X+r}")
        k(f"v_and_b32 v{F+2*r+1}, 0xffff0000, v{X+r}")
    def reduce(v, t, off):
        for sw in ("v_permlane16_swap_b32", "v_permlane32_swap_b32"):
            k(f"v_mov_b32 v{t}, v{v}")
            k(f"{sw} v{v}, v{t}")
            k(f"v_add_f32 v{v}, v{v}, v{t}")
        k(f"ds_write_b32 v7, v{v} offset:{off}")
        k("s_waitcnt lgkmcnt(0)")
        k("s_barrier")
        k(f"ds_read_b128 v[{X}:{X+3}], v6 offset:{off}")
        k("s_waitcnt lgkmcnt(0)")
        k(f"v_add_f32 v{X}, v{X}, v{X+1}")
        k(f"v_add_f32 v{X+2}, v{X+2}, v{X+3}")
        k(f"v_add_f32 v{v}, v{X}, v{X+2}")
    k(f"v_add_f32 v68, v{F}, v{F+1}")
    k(f"v_add_f32 v69, v{F+2}, v{F+3}")
    for r in range(4, 40, 2):
        k(f"v_add_f32 v68, v68, v{F+r}")
        k(f"v_add_f32 v69, v69, v{F+r+1}")
    k("v_add_f32 v68, v68, v69")
    reduce(68, 69, 0)
    k(f"v_mul_f32 v68, {1.0/D!r}, v68")
    for r in range(40): k(f"v_sub_f32 v{F+r}, v{F+r}, v68")
    k(f"v_mul_f32 v68, v{F}, v{F}")
    k(f"v_mul_f32 v69, v{F+1}, v{F+1}")
    for r in range(2, 40, 2):
        k(f"v_fmac_f32 v68, v{F+r}, v{F+r}")
        k(f"v_fmac_f32 v69, v{F+r+1}, v{F+r+1}")
    k("v_add_f32 v68, v68, v69")
    reduce(68, 69, 256)
    k("v_mov_b32 v69, 0x3727c5ac")
    k(f"v_fmac_f32 v69, {1.0/D!r}, v68")
    k("v_rsq_f32 v69, v69")
    for r in range(40): k(f"v_mul_f32 v{F+r}, v{F+r}, v69")
    for r in range(20): k(f"v_cvt_pk_bf16_f32 v{X+r}, v{F+2*r}, v{F+2*r+1}")
    k("s_mul_i32 s4, s2, 20480"); k("s_mul_i32 s5, s3, 5120"); k("s_add_u32 s4, s4, s5")
    k("v_lshlrev_b32 v5, 4, v1")
    for j in range(5):
        if j == 4: k("s_add_u32 s4, s4, 4096")
        k(f"buffer_store_dwordx4 v[{X+4*j}:{X+4*j+3}], v5, s[16:19], s4 offen offset:{(j%4)*1024}")
    k.lab('end')
    return k, 128, 512

def k_chainz(name, to_out):
    k = K(name, vgpr=256, sgpr=100, agpr=256)
    k("s_cmp_ge_u32 s2, 232")
    k(f"s_cbranch_scc1 {k.ref('end')}")
    k.ptr(KA_WS, 4); k.ptr(KA_MEM0, 6)
    k("v_and_b32 v1, 63, v0")
    k("v_lshrrev_b32 v4, 6, v0")
    k("v_and_b32 v2, 15, v1")
    k("v_lshrrev_b32 v3, 4, v1")
    k("v_readfirstlane_b32 s3, v4")
    k(f"s_mov_b32 s60, {SPIN_MAX}")
    k("s_waitcnt lgkmcnt(0)")
    k.srd(8, 4, WS_BYTES)
    k.srd(20, 6, 8 * 640 * 2)
    k("s_cmp_ge_u32 s2, 200")
    k(f"s_cbranch_scc1 {k.ref('roleO')}")
    k("s_cmp_ge_u32 s2, 104")
    k(f"s_cbranch_scc1 {k.ref('roleP')}")
    k("s_cmp_ge_u32 s2, 64")
    k(f"s_cbranch_scc1 {k.ref('roleR')}")
    k("s_cmp_ge_u32 s2, 32")
    k(f"s_cbranch_scc1 {k.ref('roleV')}")
    role_S(k)
    k.lab('roleV')
    role_V(k)
    k.lab('roleR')
    role_R(k, to_out)
    k.lab('roleP')
    role_P(k, to_out)
    k.lab('roleO')
    role_O(k)
    k.lab('end')
    return k, 232, 135168

import gen2
gen2.WS_VOX = WS_VOX
k_clear = gen2.k_clear
G.PACK = G.PACK[:2]
G.EX_CLEAR_BYTES = 0

def build():
    kernels = []; launches = []
    def add(k, nwg, lds=0, block=256):
        if k not in kernels: kernels.append(k)
        launches.append((k.name, nwg, block, lds))
    kp, n = G.k_pack(); add(kp, n)
    kl, n = G.k_ln("ln_a1", KA_AX, 0); add(kl, n)
    kg, n, lds = G.k_gemm("qkv_a", S, 1920, D, G.WS_XN, D * 2, G.WS_PQKVA, 4, 5, dict(kind='qkvA')); add(kg, n, lds); n_qkva, lds_qkva = n, lds
    kz, n = G.k_kvz("kvz_a1", 0); add(kz, n)
    ka, n, lds = G.k_attn_a("attn_a1", 0); add(ka, n, lds)
    kg2, n, lds = G.k_gemm("wo_a1", S, D, D, G.WS_OA, D * 2, G.WS_PWOA, 2, 5, dict(kind='res', res_slot=KA_AX, res_off=0, out_off=G.WS_X1, res_in=True)); add(kg2, n, lds)
    kl2, n2, lds2 = k_lnf("lnf", KA_WS, G.WS_X1); add(kl2, n2, lds2)
    kcl, ncl = k_clear("clr", WS_SYNC, SYNC_END - WS_SYNC); add(kcl, ncl)
    kc, n, lds = k_chainz("chain1", False); add(kc, n, lds)
    kl3, n = G.k_ln("ln_a2", KA_WS, G.WS_X1); add(kl3, n)
    add(kg, n_qkva, lds_qkva)
    kz2, n = G.k_kvz("kvz_a2", 1); add(kz2, n)
    ka2, n, lds = G.k_attn_a("attn_a2", 1); add(ka2, n, lds)
    kg5, n, lds = G.k_gemm("wo_a2", S, D, D, G.WS_OA, D * 2, G.WS_PWOA, 2, 5, dict(kind='res', res_off=G.WS_X1, out_off=G.WS_X1)); add(kg5, n, lds)
    add(kl2, n2, lds2)
    add(kcl, ncl)
    kc2, n, lds = k_chainz("chain2", True); add(kc2, n, lds)
    head = ["; generated by gen5.py (my own hand-written generator); kernarg: 13 pointers"]
    for name, nwg, block, lds in launches:
        head.append(f"; @launch kernel={name} grid=({nwg},1,1) block=({block},1,1) lds={lds}")
    head.append('.amdgcn_target "amdgcn-amd-amdhsa--gfx950"')
    return "\n".join(head) + "\n" + "\n".join(k.text() for k in kernels) + "\n"

CFG.setdefault('dly_x', 0); CFG.setdefault('px_first', 0); CFG.setdefault('hr_pos', 1); CFG.setdefault('pdep', 3); CFG.setdefault('ptgt', 3); CFG.setdefault('pgain', 3); CFG.setdefault('pfb', 8); CFG.setdefault('pmax', 20); CFG.setdefault('hint', 0); CFG.setdefault('hk', 8); CFG.setdefault('hv', 0); CFG.setdefault('nhm', 10); CFG.setdefault('nhp', 8); CFG.setdefault('hs_pos', 3); CFG.setdefault('pd_m', 1); CFG.setdefault('pd_p', 1); CFG.setdefault('dly_sm', 0); CFG.setdefault('dly_sp', 0); CFG.setdefault('stag_r', 2); CFG.setdefault('vom_all', 1); CFG.setdefault('r0', -2); CFG.setdefault('r1', 1); CFG.setdefault('r2', 2); CFG.setdefault('r3', 3); CFG.setdefault('rfb', 3); CFG.setdefault('sl_x0', 8); CFG.setdefault('a0', -1); CFG.setdefault('a1', 0); CFG.setdefault('a2', 2); CFG.setdefault('a3', 4); CFG.setdefault('afb', 4); CFG.setdefault('afi', 8); CFG.setdefault('stag', 0); CFG.setdefault('st_m', 4); CFG.setdefault('st_p', 5); CFG.setdefault('dep_m', 1); CFG.setdefault('dep_p', 1); CFG.setdefault('nox', 0); CFG.setdefault('dly_vox', 0); CFG.setdefault('dly_v', 0)
CFG.update(hint=2, dly_vox=20, pd_m=2, pd_p=2, pdep=4, pgain=0, dly_m=5, dly_v=20, dly_p=10)
if __name__ == "__main__":
    out = "z.s"
    for a in sys.argv[1:]:
        if a == "stamp": CFG['stamp'] = True
        elif a.endswith(".s"): out = a
        elif "=" in a:
            kk, v = a.split("="); CFG[kk] = int(v)
    if CFG['stag']: CFG['mrep'] = 4; CFG['prep'] = 4
    open(out, "w").write(build())
    print("written", out)
```

```python
import sys, struct
from asmlib import K, magic

NAME = "interleave_layers__linear_attn_block__memory_aug_recurrent_mem_tr__prompt"
S, D = 2048, 640
KA_AX, KA_WQKV, KA_WOA, KA_BX, KA_MEM0, KA_WQ, KA_WK, KA_WV, KA_WO, KA_SEG, KA_OUT, KA_DBG, KA_WS = range(13)
WS_BYTES = 268435456
OOB = 0x7ff00000
LOG2E = 1.4426950408889634
def hexf(x): return "0x%08x" % struct.unpack("<I", struct.pack("<f", x))[0]

WS_XF1, WS_XF2, WS_XF3 = 0x00000000, 0x00400000, 0x00800000
XF_BYTES = S * D * 2
WS_PQF  = 0x00C00000
WS_PART = 0x01000000
PART_GRP = 18 * 1024
PART_REP = 8 * PART_GRP
WS_BDF  = 0x01500000
BDF_LAYER = 0x20000

class LG:
    def __init__(self, k): self.k = k; self.q = []
    def issue(self, tag, text):
        self.k(text); self.q.append(tag)
    def wait(self, tag):
        if tag not in self.q: return
        idx = max(i for i, t in enumerate(self.q) if t == tag)
        n = len(self.q) - 1 - idx
        assert n <= 15, n
        self.k(f"s_waitcnt lgkmcnt({n})")
        self.q = self.q[idx + 1:]
    def all(self):
        self.k("s_waitcnt lgkmcnt(0)"); self.q = []

def lookup(k, dst, idx, table):
    k(f"s_mov_b32 {dst}, {table[0]}")
    for i, v in enumerate(table[1:], 1):
        if v == table[0]: continue
        k(f"s_cmp_eq_u32 {idx}, {i}")
        k(f"s_cselect_b32 {dst}, {v}, {dst}")

def divmod_const(k, q, r, x, d, maxn, stmp):
    m, sh = magic(d, maxn)
    k(f"s_mov_b32 s{stmp}, {m}")
    k(f"v_mul_lo_u32 v{q}, v{x}, s{stmp}")
    k(f"v_lshrrev_b32 v{q}, {sh}, v{q}")
    k(f"v_mul_u32_u24 v{r}, {d}, v{q}")
    k(f"v_sub_u32 v{r}, v{x}, v{r}")

def row_stats_partial(k, X, n, S1, S2, ones, t):
    k(f"v_mov_b32 v{S1}, 0"); k(f"v_mov_b32 v{S2}, 0"); k(f"v_mov_b32 v{t}, 0"); k(f"v_mov_b32 v{t+1}, 0")
    for i in range(0, n, 2):
        k(f"v_dot2c_f32_bf16 v{S1}, v{X+i}, v{ones}")
        k(f"v_dot2c_f32_bf16 v{S2}, v{X+i}, v{X+i}")
        k(f"v_dot2c_f32_bf16 v{t}, v{X+i+1}, v{ones}")
        k(f"v_dot2c_f32_bf16 v{t+1}, v{X+i+1}, v{X+i+1}")
    k(f"v_add_f32 v{S1}, v{S1}, v{t}")
    k(f"v_add_f32 v{S2}, v{S2}, v{t+1}")
    for sw in ("v_permlane16_swap_b32", "v_permlane32_swap_b32"):
        k(f"v_mov_b32 v{t}, v{S1}"); k(f"v_mov_b32 v{t+1}, v{S2}")
        k(f"{sw} v{S1}, v{t}"); k(f"{sw} v{S2}, v{t+1}")
        k(f"v_add_f32 v{S1}, v{S1}, v{t}"); k(f"v_add_f32 v{S2}, v{S2}, v{t+1}")

def row_stats_final(k, P, dst):
    k(f"v_add_f32 v{P}, v{P}, v{P+2}")
    k(f"v_add_f32 v{P+1}, v{P+1}, v{P+3}")
    k(f"v_mul_f32 v{P}, {hexf(1.0/D)}, v{P}")
    k(f"v_mul_f32 v{P+2}, v{P}, v{P}")
    k(f"v_mov_b32 v{P+3}, {hexf(1.0/D)}")
    k(f"v_fma_f32 v{P+1}, v{P+1}, v{P+3}, -v{P+2}")
    k(f"v_max_f32 v{P+1}, 0, v{P+1}")
    k(f"v_add_f32 v{P+1}, {hexf(1e-5)}, v{P+1}")
    k(f"v_rsq_f32 v{dst}, v{P+1}")
    k(f"v_mul_f32 v{dst+1}, v{P}, v{dst}")
    k(f"v_sub_f32 v{dst+1}, 0, v{dst+1}")

def ln_fold(k, a, cs, st, t):
    for h in (0, 2):
        k(f"v_pk_mul_f32 v[{t+h}:{t+h+1}], v[{cs+h}:{cs+h+1}], v[{st}:{st+1}] op_sel:[0,1] op_sel_hi:[1,1]")
    for h in (0, 2):
        k(f"v_pk_fma_f32 v[{a+h}:{a+h+1}], v[{a+h}:{a+h+1}], v[{st}:{st+1}], v[{t+h}:{t+h+1}] op_sel:[0,0,0] op_sel_hi:[1,0,1]")

STAMP = False
WS_TRACE = 0x01800000
def stamp(k, i):
    if STAMP: k(f"s_memrealtime s[{64+2*i}:{65+2*i}]")
def stamp_out(k, n, base=0):
    if not STAMP: return
    k("s_waitcnt lgkmcnt(0)")
    k("s_lshl_b32 s24, s2, 2"); k("s_add_u32 s24, s24, s3"); k("s_lshl_b32 s24, s24, 6"); k(f"s_add_u32 s24, s24, {WS_TRACE + base}")
    k(f"v_mov_b32 v14, {OOB}"); k("v_cmp_eq_u32 vcc, 0, v1"); k("v_cndmask_b32 v14, v14, 0, vcc")
    for i in range(n):
        k(f"v_mov_b32 v15, s{64+2*i}")
        k(f"buffer_store_dword v15, v14, s[8:11], s24 offen offset:{4*i}")

class NoHooks:
    def k1_wait_x(self, k): pass
    def k1_early(self, k): pass
    def k1_first_barrier(self, k): pass
    def k1_ready_issue(self, k): pass
    def k1_ready_check(self, k): pass
    def k1_publish(self, k): pass
    def k2_wait(self, k): pass
    def k2_publish(self, k): pass
    def k3_wait(self, k): pass
    def k3_publish(self, k, last): pass

def role_K1(k, H):
    RSW, L_W, WBUF = 544, 40960, 64 * 544
    L_KV, RSK, L_PS = 40960, 336, 40960 + 32 * 336
    XPRE, RING, ACC, KVA, CS, ST, TMP, ONE, W3 = 16, 56, 88, 120, 156, 144, 148, 172, 176
    DAT, GO, LO, TA = 56, 152, 153, 12
    def wreg(slot, j, lo=0, n=4):
        if slot < 3: r = (slot * 20 + j) * 4 + lo; return f"a[{r}:{r+n-1}]"
        r = W3 + j * 4 + lo; return f"v[{r}:{r+n-1}]"
    stamp(k, 0)
    k.ptr(KA_WQKV, 6)
    k("s_lshr_b32 s24, s3, 1"); k("s_mul_i32 s24, s24, 20480")
    k("s_and_b32 s25, s3, 1"); k("s_mul_i32 s25, s25, 10"); k("s_mul_i32 s25, s25, s46"); k("s_add_u32 s24, s24, s25")
    k("s_cmp_eq_u32 s50, 1"); k("s_cselect_b32 s25, 16, 1280"); k("s_cselect_b32 s26, 256, 8")
    k("v_mul_u32_u24 v4, s25, v2"); k("v_mul_u32_u24 v5, s26, v3")
    k("v_add3_u32 v4, v4, v5, s24")
    k("v_add_u32 v5, s47, v4")
    k("s_mul_i32 s43, s48, 40960")
    k("s_mul_i32 s42, s49, 40960")
    def xloads():
        k("s_mov_b32 s24, s41")
        for i in range(10):
            k(f"buffer_load_dwordx2 v[{XPRE+4*i}:{XPRE+4*i+1}], v4, s[16:19], s24 offen sc1")
            k(f"buffer_load_dwordx2 v[{XPRE+4*i+2}:{XPRE+4*i+3}], v5, s[16:19], s24 offen sc1")
            if i < 9: k("s_add_u32 s24, s24, s46")
    k("s_mov_b32 s51, 0")
    l0 = k.new('k1')
    k("s_cmp_eq_u32 s92, 0"); k(f"s_cbranch_scc0 {k.ref(l0)}")
    k("s_mov_b32 s41, s43"); xloads(); k("s_mov_b32 s51, 1")
    k.lab(l0)
    k("v_and_b32 v7, 31, v0"); k("v_lshrrev_b32 v8, 5, v0")
    k(f"v_mul_u32_u24 v{GO}, 3840, v8")
    k("v_lshlrev_b32 v9, 4, v7")
    k(f"v_add_u32 v{GO}, v{GO}, v9")
    k("v_cmp_le_u32 vcc, 10, v7"); k("v_cndmask_b32 v10, 0, 1, vcc")
    k("v_cmp_le_u32 vcc, 20, v7"); k("v_cndmask_b32 v11, 0, 1, vcc")
    k("v_add_u32 v10, v10, v11")
    k("v_mul_u32_u24 v10, 1120, v10")
    k(f"v_add_u32 v{GO}, v{GO}, v10")
    k(f"v_mov_b32 v10, {OOB}"); k("v_cmp_le_u32 vcc, 30, v7"); k(f"v_cndmask_b32 v{GO}, v{GO}, v10, vcc")
    k(f"v_mul_u32_u24 v{LO}, {RSW}, v8"); k(f"v_add_u32 v{LO}, v{LO}, v9"); k(f"v_add_u32 v{LO}, {L_W}, v{LO}")
    k("s_waitcnt lgkmcnt(0)")
    k.srd(12, 6, D * 1920 * 2)
    k("s_mul_i32 s52, s44, 160")
    def wloads(c):
        d = DAT + 32 * (c % 3)
        k(f"s_add_u32 s24, s52, {c * 64 * 3840}")
        for i in range(8):
            k(f"buffer_load_dwordx4 v[{d+4*i}:{d+4*i+3}], v{GO}, s[12:15], s24 offen")
            if i < 7: k("s_add_u32 s24, s24, 30720")
    for c in range(3): wloads(c)
    k("v_lshrrev_b32 v6, 2, v2"); k("v_lshl_add_u32 v6, v3, 2, v6")
    k(f"v_mul_u32_u24 v6, {RSW}, v6")
    k("v_and_b32 v7, 3, v2"); k("v_lshl_add_u32 v6, v7, 3, v6")
    k(f"v_add_u32 v6, {L_W}, v6")
    col = [[0, 64, 128, 224], [32, 96, 160, 256], [320, 384, 192, 288], [352, 416, 448, 288]]
    for s_ in range(4):
        lookup(k, 's24', 's3', col[s_]); k(f"v_add_u32 v{TA+s_}, s24, v6")
    H.k1_early(k)
    stamp(k, 1)
    for r in range(4): k(f"v_mov_b32 v{ONE+r}, 0x3f803f80")
    def cs_mfma(c):
        for jj in range(2):
            j = 2 * c + jj
            for s_ in range(4):
                cc = f"v[{CS+4*s_}:{CS+4*s_+3}]"
                k(f"v_mfma_f32_16x16x32_bf16 {cc}, {wreg(s_, j)}, v[{ONE}:{ONE+3}], {cc if j else 0}")
    for c in range(10):
        d = DAT + 32 * (c % 3)
        k(f"s_waitcnt vmcnt({16 if c < 8 else (8 if c == 8 else 0)})")
        for i in range(8): k(f"ds_write_b128 v{LO}, v[{d+4*i}:{d+4*i+3}] offset:{(c%2)*WBUF + i*8*RSW}")
        k("s_waitcnt lgkmcnt(0)")
        if c + 3 < 10: wloads(c + 3)
        if c > 0: cs_mfma(c - 1)
        k("s_barrier")
        if c == 0: H.k1_first_barrier(k)
        for s_ in range(4):
            for jj in range(2):
                for hf in range(2):
                    k(f"ds_read_b64_tr_b16 {wreg(s_, 2*c+jj, 2*hf, 2)}, v{TA+s_} offset:{(c%2)*WBUF + (32*jj + 16*hf)*RSW}")
    stamp(k, 2)
    H.k1_ready_issue(k)
    k("v_lshlrev_b32 v7, 4, v1")
    k("s_lshr_b32 s24, s3, 1"); k("s_mul_i32 s24, s24, 20"); k("s_and_b32 s25, s3, 1"); k("s_mul_i32 s25, s25, 10")
    k("s_add_u32 s24, s24, s25"); k("s_lshl_b32 s24, s24, 10")
    k("v_add_u32 v6, s24, v7")
    k("s_lshr_b32 s24, s3, 1"); k("s_lshl_b32 s24, s24, 8"); k("s_and_b32 s25, s3, 1"); k("s_lshl_b32 s25, s25, 3")
    k("s_add_u32 s24, s24, s25"); k(f"s_add_u32 s24, s24, {L_PS}")
    k("v_lshlrev_b32 v9, 4, v2")
    k("v_add_u32 v8, s24, v9")
    k(f"v_add_u32 v9, {L_PS}, v9")
    k(f"v_mul_u32_u24 v10, {RSK}, v2"); k("v_lshl_add_u32 v10, v3, 3, v10"); k(f"v_add_u32 v10, {L_KV}, v10")
    k("v_lshrrev_b32 v11, 2, v2"); k("v_lshl_add_u32 v11, v3, 3, v11"); k(f"v_mul_u32_u24 v11, {RSK}, v11")
    k("v_and_b32 v15, 3, v2"); k("v_lshl_add_u32 v11, v15, 3, v11")
    k("s_lshl_b32 s24, s3, 5"); k(f"s_add_u32 s24, s24, {L_KV}")
    k("v_add_u32 v11, s24, v11")
    k("s_lshl_b32 s24, s3, 10")
    k("v_add_u32 v12, s24, v7")
    k("v_lshlrev_b32 v15, 3, v1"); k("v_add_u32 v15, 2048, v15")
    k("s_cmp_eq_u32 s3, 2"); k("s_cselect_b64 vcc, -1, 0")
    k("v_cndmask_b32 v12, v12, v15, vcc")
    k("s_mul_i32 s24, s44, 2560"); k(f"s_add_u32 s24, s24, {WS_PQF}")
    k("v_add_u32 v12, s24, v12")
    k(f"s_mov_b32 s52, {hexf(LOG2E)}"); k("s_mov_b32 s53, s52")
    k(f"s_mov_b32 s54, {hexf(1e-6)}"); k("s_mov_b32 s55, s54")
    for r in range(24): k(f"v_mov_b32 v{KVA+r}, 0")
    k("s_waitcnt lgkmcnt(0)")
    cs_mfma(9)
    H.k1_ready_check(k)
    stamp(k, 3)
    k.lab('k1_seg')
    stamp(k, 7)
    l1 = k.new('k1')
    k("s_cmp_eq_u32 s51, 1"); k(f"s_cbranch_scc1 {k.ref(l1)}")
    H.k1_wait_x(k)
    k("s_mov_b32 s41, s43"); xloads()
    k.lab(l1)
    k("s_waitcnt vmcnt(0)")
    row_stats_partial(k, XPRE, 40, TMP, TMP + 1, ONE, TMP + 2)
    for i in range(10): k(f"ds_write_b128 v6, v[{XPRE+4*i}:{XPRE+4*i+3}] offset:{i*1024}")
    k(f"ds_write_b64 v8, v[{TMP}:{TMP+1}]")
    k("s_mov_b32 s51, 0")
    k("s_waitcnt lgkmcnt(0)")
    l2 = k.new('k1')
    k("s_cmp_eq_u32 s92, 0"); k(f"s_cbranch_scc0 {k.ref(l2)}")
    k("s_cmp_gt_u32 s40, 1"); k(f"s_cbranch_scc0 {k.ref(l2)}")
    k("s_add_u32 s41, s43, s42"); xloads(); k("s_mov_b32 s51, 1")
    k.lab(l2)
    k("s_barrier")
    stamp(k, 8)
    lg = LG(k)
    lg.issue('ps', f"ds_read_b128 v[{TMP}:{TMP+3}], v9")
    lg.issue('ps', f"ds_read_b128 v[{TMP+4}:{TMP+7}], v9 offset:256")
    def rd(j):
        for tt in range(2):
            r = RING + ((j % 4) * 2 + tt) * 4
            lg.issue(j, f"ds_read_b128 v[{r}:{r+3}], v7 offset:{tt*20480 + j*1024}")
    rd(0); rd(1); rd(2)
    lg.wait('ps')
    row_stats_final(k, TMP, ST)
    row_stats_final(k, TMP + 4, ST + 2)
    acc = lambda s_, tt: ACC + (s_ * 2 + tt) * 4
    for j in range(20):
        if j + 3 < 20: rd(j + 3)
        lg.wait(j)
        for tt in range(2):
            r = RING + ((j % 4) * 2 + tt) * 4
            for s_ in range(4):
                a = acc(s_, tt)
                k(f"v_mfma_f32_16x16x32_bf16 v[{a}:{a+3}], {wreg(s_, j)}, v[{r}:{r+3}], " + (f"v[{a}:{a+3}]" if j else "0"))
    stamp(k, 9)
    for s_ in range(4):
        for tt in range(2): ln_fold(k, acc(s_, tt), CS + 4 * s_, ST + 2 * tt, TMP)
    def phi(a):
        for h in (0, 2):
            t = TMP + h
            k(f"v_min_f32 v{t}, 0, v{a+h}"); k(f"v_min_f32 v{t+1}, 0, v{a+h+1}")
            k(f"v_pk_mul_f32 v[{t}:{t+1}], v[{t}:{t+1}], s[52:53]")
        for h in range(4): k(f"v_exp_f32 v{TMP+h}, v{TMP+h}")
        for h in range(4): k(f"v_max_f32 v{a+h}, 0, v{a+h}")
        for h in (0, 2): k(f"v_pk_add_f32 v[{a+h}:{a+h+1}], v[{a+h}:{a+h+1}], v[{TMP+h}:{TMP+h+1}]")
        for h in (0, 2): k(f"v_pk_add_f32 v[{a+h}:{a+h+1}], v[{a+h}:{a+h+1}], s[54:55]")
    O = RING
    def pack(a, o):
        k(f"v_cvt_pk_bf16_f32 v{o}, v{a}, v{a+1}"); k(f"v_cvt_pk_bf16_f32 v{o+1}, v{a+2}, v{a+3}")
    def to_lds(s_, off, addr, o):
        for tt in range(2):
            pack(acc(s_, tt), o + 2 * tt)
            k(f"ds_write_b64 v{addr}, v[{o+2*tt}:{o+2*tt+1}] offset:{tt*16*RSK + off}")
    k("s_add_u32 s25, s43, 20480")
    k("s_cmp_ge_u32 s3, 2"); k(f"s_cbranch_scc1 {k.ref('k1_e2')}")
    k("s_lshl_b32 s24, s3, 6"); k("v_add_u32 v15, s24, v10")
    to_lds(2, 160, 15, O + 8); to_lds(3, 192, 15, O + 12)
    for tt in range(2):
        phi(acc(0, tt)); phi(acc(1, tt))
        pack(acc(0, tt), O + 4 * tt); pack(acc(1, tt), O + 4 * tt + 2)
        k(f"buffer_store_dwordx4 v[{O+4*tt}:{O+4*tt+3}], v12, s[8:11], {'s25' if tt else 's43'} offen sc1")
    k(f"s_branch {k.ref('k1_ej')}")
    k.lab('k1_e2')
    k("s_cmp_eq_u32 s3, 3"); k(f"s_cbranch_scc1 {k.ref('k1_e3')}")
    to_lds(3, 160 + 128, 10, O + 12)
    for tt in range(2): phi(acc(1, tt)); phi(acc(2, tt))
    to_lds(1, 0, 10, O + 4); to_lds(2, 32, 10, O + 8)
    for tt in range(2):
        phi(acc(0, tt)); pack(acc(0, tt), O + 2 * tt)
        k(f"buffer_store_dwordx2 v[{O+2*tt}:{O+2*tt+1}], v12, s[8:11], {'s25' if tt else 's43'} offen sc1")
    k(f"s_branch {k.ref('k1_ej')}")
    k.lab('k1_e3')
    for s_ in range(3):
        for tt in range(2): phi(acc(s_, tt))
        to_lds(s_, 64 + 32 * s_, 10, O + 4 * s_)
    k.lab('k1_ej')
    stamp(k, 10)
    k("s_waitcnt lgkmcnt(0)")
    k("s_barrier")
    stamp(k, 4)
    KF = RING + 16
    for i, off in enumerate((0, 32, 160, 192)):
        k(f"ds_read_b64_tr_b16 v[{KF+4*i}:{KF+4*i+1}], v11 offset:{off}")
        k(f"ds_read_b64_tr_b16 v[{KF+4*i+2}:{KF+4*i+3}], v11 offset:{off + 4*RSK}")
    k("s_waitcnt lgkmcnt(0)")
    k0, k1, v0_, v1_ = KF, KF + 4, KF + 8, KF + 12
    for i, (a, b) in enumerate(((k0, v1_), (k1, v0_), (k1, v1_), (k1, ONE), (k0, v0_), (k0, ONE))):
        c = f"v[{KVA+4*i}:{KVA+4*i+3}]"
        k(f"v_mfma_f32_16x16x32_bf16 {c}, v[{a}:{a+3}], v[{b}:{b+3}], {c}")
    k("s_add_u32 s43, s43, s42"); k("s_add_u32 s48, s48, s49")
    k("s_sub_u32 s40, s40, 1"); k("s_cmp_gt_u32 s40, 0")
    k(f"s_cbranch_scc1 {k.ref('k1_seg')}")
    stamp(k, 5)
    k(f"s_mul_i32 s24, s45, {PART_REP}"); k(f"s_mul_i32 s25, s44, {PART_GRP}"); k("s_add_u32 s24, s24, s25"); k(f"s_add_u32 s24, s24, {WS_PART}")
    k("s_mul_i32 s25, s3, 3072"); k("s_add_u32 s25, s25, s24")
    k("s_lshl_b32 s26, s3, 10"); k("s_add_u32 s26, s26, s24"); k(f"s_add_u32 s26, s26, {13*1024}")
    k("s_cmp_eq_u32 s3, 0"); k(f"s_cselect_b32 s27, 0, {OOB}"); k("s_add_u32 s27, s27, s24"); k(f"s_add_u32 s28, s27, {17*1024}"); k(f"s_add_u32 s27, s27, {12*1024}")
    for i in range(3): k(f"buffer_store_dwordx4 v[{KVA+4*i}:{KVA+4*i+3}], v7, s[8:11], s25 offen offset:{i*1024} sc1")
    k(f"buffer_store_dwordx4 v[{KVA+12}:{KVA+15}], v7, s[8:11], s26 offen sc1")
    k(f"buffer_store_dwordx4 v[{KVA+16}:{KVA+19}], v7, s[8:11], s27 offen sc1")
    k(f"buffer_store_dwordx4 v[{KVA+20}:{KVA+23}], v7, s[8:11], s28 offen sc1")
    k("s_waitcnt vmcnt(0)")
    k("s_barrier")
    stamp(k, 6)
    stamp_out(k, 11)
    H.k1_publish(k)

K2_TILES = [[12, 1, 0, 2, 4, 3, 3], [5, 7, 6, 8, 10, 9, 11], [17, 13, 14, 15, 16, 16, 16]]
def _k2p(tlo, thi, alo, ahi, b0, b1, b2): return tlo | thi << 3 | alo << 6 | ahi << 9 | b0 << 12 | b1 << 19 | b2 << 24
N_ = 7
K2_PAR = [_k2p(0, 1, 0, 1, 0, 1, 4), _k2p(2, 3, 0, 1, 16, 1, 4), _k2p(4, 0, 2, N_, 16, 1, 4), _k2p(0, 5, N_, 1, 32, 1, 4),
          _k2p(0, 1, 2, 3, 32, 1, 4), _k2p(2, 3, 2, 3, 48, 1, 4), _k2p(4, 0, 4, N_, 48, 1, 4), _k2p(0, 5, N_, 3, 64, 1, 4), _k2p(6, 0, 4, N_, 64, 1, 4),
          _k2p(0, 1, 0, 1, 0, 16, 4), _k2p(2, 3, 2, 3, 0, 16, 4), _k2p(4, 0, 4, N_, 0, 16, 4), _k2p(0, 3, N_, 3, 60, 0, 0), _k2p(4, 0, 4, N_, 60, 0, 0)]
def role_K2(k, H, mid=None):
    ACC, LD, T = 16, 48, 160
    k("v_lshlrev_b32 v5, 4, v1")
    for i in range(7): lookup(k, f"s{64+i}", 's45', [K2_TILES[t][i] * 1024 for t in range(3)])
    for r in range(28): k(f"v_mov_b32 v{ACC+r}, 0")
    H.k2_wait(k)
    k("s_mov_b32 s40, s3")
    k.lab('k2_rd')
    for q in range(4):
        k(f"s_add_u32 s25, s40, {4*q}")
        k(f"s_mul_i32 s24, s25, {PART_REP}"); k(f"s_mul_i32 s26, s44, {PART_GRP}"); k("s_add_u32 s24, s24, s26"); k(f"s_add_u32 s24, s24, {WS_PART}")
        k("s_cmp_lt_u32 s25, s46"); k(f"s_cselect_b32 s24, s24, {OOB}")
        for i in range(7):
            k(f"s_add_u32 s26, s24, s{64+i}")
            k(f"buffer_load_dwordx4 v[{LD+(q*7+i)*4}:{LD+(q*7+i)*4+3}], v5, s[8:11], s26 offen sc1")
    k("s_add_u32 s40, s40, 16")
    lm = k.new('k2m')
    k("s_cmp_lt_u32 s40, s46"); k(f"s_cbranch_scc0 {k.ref(lm)}")
    for q in range(4):
        k(f"s_waitcnt vmcnt({(3-q)*7})")
        for r in range(0, 28, 2):
            k(f"v_pk_add_f32 v[{ACC+r}:{ACC+r+1}], v[{ACC+r}:{ACC+r+1}], v[{LD+q*28+r}:{LD+q*28+r+1}]")
    k(f"s_branch {k.ref('k2_rd')}")
    k.lab(lm)
    nmid = mid(k) if mid else 0
    for q in range(4):
        k(f"s_waitcnt vmcnt({(3-q)*7 + nmid})")
        for r in range(0, 28, 2):
            k(f"v_pk_add_f32 v[{ACC+r}:{ACC+r+1}], v[{ACC+r}:{ACC+r+1}], v[{LD+q*28+r}:{LD+q*28+r+1}]")
    k("s_mul_i32 s24, s3, 7168"); k("v_add_u32 v6, s24, v5")
    for i in range(7): k(f"ds_write_b128 v6, v[{ACC+4*i}:{ACC+4*i+3}] offset:{i*1024}")
    k("s_waitcnt lgkmcnt(0)")
    k("s_barrier")
    lookup(k, 's41', 's45', [0, 4, 9]); lookup(k, 's42', 's45', [4, 5, 5])
    k(f"s_mul_i32 s43, s92, {BDF_LAYER}"); k(f"s_mul_i32 s24, s44, {14*1024}"); k("s_add_u32 s43, s43, s24"); k(f"s_add_u32 s43, s43, {WS_BDF}")
    k("v_and_b32 v7, 3, v2"); k("v_lshrrev_b32 v8, 2, v2")
    for rnd in range(2):
        l = k.new('k2f')
        k(f"s_add_u32 s40, s3, {4*rnd}")
        k("s_cmp_lt_u32 s40, s42"); k(f"s_cbranch_scc0 {k.ref(l)}")
        k("s_add_u32 s40, s40, s41")
        lookup(k, 's47', 's40', K2_PAR)
        k("s_bfe_u32 s24, s47, 0x7000c"); k("s_bfe_u32 s25, s47, 0x50013"); k("s_bfe_u32 s26, s47, 0x30018")
        k("v_mul_u32_u24 v9, s25, v7"); k("v_mul_u32_u24 v10, s26, v8"); k("v_add3_u32 v9, v9, v10, s24")
        k("v_mul_u32_u24 v9, 205, v9"); k("v_lshrrev_b32 v9, 12, v9")
        for hf in range(2):
            k(f"s_bfe_u32 s24, s47, {0x30000 + 3*hf}")
            k("s_lshl_b32 s24, s24, 10")
            k("v_add_u32 v10, s24, v5")
            for w in range(4): k(f"ds_read_b128 v[{T+4*w}:{T+4*w+3}], v10 offset:{w*7168}")
            k(f"s_bfe_u32 s25, s47, {0x30006 + 3*hf}")
            k("s_lshl_b32 s25, s25, 4")
            k("v_lshl_add_u32 v11, v3, 2, s25")
            k("v_mul_u32_u24 v11, 205, v11"); k("v_lshrrev_b32 v11, 12, v11")
            k("v_cmp_eq_u32 vcc, v9, v11")
            k("s_waitcnt lgkmcnt(0)")
            for r in (0, 2):
                k(f"v_pk_add_f32 v[{T+r}:{T+r+1}], v[{T+r}:{T+r+1}], v[{T+4+r}:{T+4+r+1}]")
                k(f"v_pk_add_f32 v[{T+8+r}:{T+8+r+1}], v[{T+8+r}:{T+8+r+1}], v[{T+12+r}:{T+12+r+1}]")
            for r in (0, 2): k(f"v_pk_add_f32 v[{T+r}:{T+r+1}], v[{T+r}:{T+r+1}], v[{T+8+r}:{T+8+r+1}]")
            o = T + 16 + 2 * hf
            k(f"v_cvt_pk_bf16_f32 v{o}, v{T}, v{T+1}"); k(f"v_cvt_pk_bf16_f32 v{o+1}, v{T+2}, v{T+3}")
            k(f"v_cndmask_b32 v{o}, 0, v{o}, vcc"); k(f"v_cndmask_b32 v{o+1}, 0, v{o+1}, vcc")
        k("s_lshl_b32 s24, s40, 10"); k("s_add_u32 s24, s24, s43")
        k(f"buffer_store_dwordx4 v[{T+16}:{T+19}], v5, s[8:11], s24 offen sc1")
        k.lab(l)
    k("s_waitcnt vmcnt(0)")
    k("s_barrier")
    H.k2_publish(k)

BD_OFF = [0, 4, 8, 12, 16, 20, 24, 26, 30, 32, 36, 40, 42, 46]
BD_N = [4, 4, 4, 4, 4, 4, 2, 4, 2, 4, 4, 2, 4, 2]
RSO = 288
def k3_wo_loads(k):
    k.ptr(KA_WOA, 6)
    k("v_lshrrev_b32 v12, 4, v0"); k("v_mul_u32_u24 v12, 1280, v12")
    k("v_and_b32 v13, 15, v0"); k("v_lshl_add_u32 v12, v13, 4, v12")
    k("s_waitcnt lgkmcnt(0)")
    k.srd(12, 6, D * D * 2)
    k("s_lshl_b32 s52, s56, 8")
    for c in range(10):
        for i in range(4):
            k(f"s_add_u32 s24, s52, {(c*64 + i*16) * 1280}")
            k(f"buffer_load_dwordx4 a[{16*c+4*i}:{16*c+4*i+3}], v12, s[12:15], s24 offen")
    return 40

def role_K3(k, H, wo_issued):
    L_O, L_W, WBUF = 0, 81920, 64 * RSO
    PQ, RES, BA, OFR, RING, OA = 16, 96, 112, 168, 208, 240
    stamp(k, 0)
    if not wo_issued: k3_wo_loads(k)
    k("v_lshrrev_b32 v6, 4, v0"); k(f"v_mul_u32_u24 v6, {RSO}, v6")
    k("v_and_b32 v7, 15, v0"); k("v_lshl_add_u32 v6, v7, 4, v6"); k(f"v_add_u32 v6, {L_W}, v6")
    k("v_lshrrev_b32 v7, 2, v2"); k("v_lshl_add_u32 v7, v3, 2, v7"); k(f"v_mul_u32_u24 v7, {RSO}, v7")
    k("v_and_b32 v8, 3, v2"); k("v_lshl_add_u32 v7, v8, 3, v7")
    k("s_lshl_b32 s24, s3, 6"); k(f"s_add_u32 s24, s24, {L_W}")
    k("v_add_u32 v7, s24, v7")
    k("s_waitcnt vmcnt(0)")
    for c in range(10):
        for i in range(4): k(f"ds_write_b128 v6, a[{16*c+4*i}:{16*c+4*i+3}] offset:{(c%2)*WBUF + i*16*RSO}")
        k("s_waitcnt lgkmcnt(0)")
        k("s_barrier")
        for jj in range(2):
            for i in range(2):
                for hf in range(2):
                    r = 16 * c + (jj * 2 + i) * 4 + 2 * hf
                    k(f"ds_read_b64_tr_b16 a[{r}:{r+1}], v7 offset:{(c%2)*WBUF + (32*jj + 16*hf)*RSO + 32*i}")
    stamp(k, 1)
    wo = lambda i, J: (lambda r: f"a[{r}:{r+3}]")(16 * (J // 2) + ((J % 2) * 2 + i) * 4)
    k("v_lshlrev_b32 v5, 4, v1")
    k("s_mul_i32 s24, s3, 5120"); k(f"s_add_u32 s24, s24, {WS_PQF}")
    k("v_add_u32 v8, s24, v5")
    k("v_lshlrev_b32 v9, 3, v1"); k("s_add_u32 s24, s24, 2048"); k("v_add_u32 v9, s24, v9")
    k("s_cmp_eq_u32 s50, 1"); k("s_cselect_b32 s25, 16, 1280"); k("s_cselect_b32 s26, 256, 8")
    k("v_mul_u32_u24 v10, s25, v2"); k("v_mul_u32_u24 v11, s26, v3")
    k("s_lshl_b32 s24, s56, 2"); k("s_add_u32 s24, s24, s3")
    k("s_mul_i32 s25, s24, s46")
    k("v_add3_u32 v10, v10, v11, s25")
    k("v_add_u32 v11, s47, v10")
    k("s_lshl_b32 s24, s24, 10"); k("s_add_u32 s24, s24, s58")
    k("v_add_u32 v12, s24, v5")
    k("s_mul_i32 s24, s3, 5120"); k(f"s_add_u32 s24, s24, {L_O}")
    k("v_add_u32 v13, s24, v5")
    k(f"s_mov_b32 s54, {hexf(1e-6)}")
    k("s_mul_i32 s43, s57, 40960")
    k("s_mov_b32 s40, 0")
    k("s_mov_b32 s42, 0")
    H.k3_wait(k)
    k(f"s_mul_i32 s24, s92, {BDF_LAYER}"); k(f"s_mul_i32 s25, s3, {2*14*1024}"); k("s_add_u32 s24, s24, s25"); k(f"s_add_u32 s24, s24, {WS_BDF}")
    for gp in range(2):
        for f in range(14):
            r = 160 + gp * 48 + BD_OFF[f]
            k(f"s_add_u32 s25, s24, {(gp*14+f)*1024}")
            if BD_N[f] == 4: k(f"buffer_load_dwordx4 a[{r}:{r+3}], v5, s[8:11], s25 offen sc1")
            else: k(f"buffer_load_dwordx2 a[{r}:{r+1}], v5, s[8:11], s25 offen sc1")
    def pq_loads(buf):
        b = PQ + 40 * buf
        k("s_add_u32 s25, s41, 20480")
        for tt in range(2):
            so = 's25' if tt else 's41'
            for gp in range(2):
                r = b + (tt * 2 + gp) * 10
                k(f"buffer_load_dwordx4 v[{r}:{r+3}], v8, s[8:11], {so} offen offset:{gp*2560} sc1")
                k(f"buffer_load_dwordx4 v[{r+4}:{r+7}], v8, s[8:11], {so} offen offset:{gp*2560+1024} sc1")
                k(f"buffer_load_dwordx2 v[{r+8}:{r+9}], v9, s[8:11], {so} offen offset:{gp*2560} sc1")
        for tt in range(2):
            so = 's25' if tt else 's41'
            r = RES + 8 * buf + 4 * tt
            k(f"buffer_load_dwordx2 v[{r}:{r+1}], v10, s[16:19], {so} offen sc1")
            k(f"buffer_load_dwordx2 v[{r+2}:{r+3}], v11, s[16:19], {so} offen sc1")
    bd = lambda gp, f: (lambda r: f"a[{r}:{r+BD_N[f]-1}]")(160 + gp * 48 + BD_OFF[f])
    def bd_stage(buf):
        b = PQ + 40 * buf
        for tt in range(2):
            sets = []
            for gp in range(2):
                r = b + (tt * 2 + gp) * 10
                k0, k1, k2 = f"v[{r}:{r+3}]", f"v[{r+4}:{r+7}]", f"v[{r+8}:{r+9}]"
                A = BA + 28 * gp
                t = lambda i: f"v[{A+4*i}:{A+4*i+3}]"
                M32 = "v_mfma_f32_16x16x32_bf16"; M16 = "v_mfma_f32_16x16x16_bf16"
                k(f"{M32} {t(5)}, {bd(gp,9)}, {k0}, 0");  k(f"{M32} {t(6)}, {bd(gp,12)}, {k1}, 0")
                k(f"{M32} {t(0)}, {bd(gp,0)}, {k0}, 0");  k(f"{M32} {t(1)}, {bd(gp,1)}, {k0}, 0"); k(f"{M32} {t(2)}, {bd(gp,3)}, {k0}, 0")
                k(f"{M32} {t(3)}, {bd(gp,5)}, {k1}, 0");  k(f"{M32} {t(4)}, {bd(gp,7)}, {k1}, 0")
                k(f"{M32} {t(5)}, {bd(gp,10)}, {k1}, {t(5)}")
                k(f"{M32} {t(1)}, {bd(gp,2)}, {k1}, {t(1)}"); k(f"{M32} {t(2)}, {bd(gp,4)}, {k1}, {t(2)}")
                k(f"{M16} {t(6)}, {bd(gp,13)}, {k2}, {t(6)}")
                k(f"{M16} {t(3)}, {bd(gp,6)}, {k2}, {t(3)}"); k(f"{M16} {t(4)}, {bd(gp,8)}, {k2}, {t(4)}")
                k(f"{M16} {t(5)}, {bd(gp,11)}, {k2}, {t(5)}")
            for gp in range(2):
                A = BA + 28 * gp
                for i in range(5): k(f"v_add_f32 v{A+20+i}, s54, v{A+20+i}")
                for i in range(5): k(f"v_rcp_f32 v{A+20+i}, v{A+20+i}")
                for i in range(5):
                    for h in range(4): k(f"v_mul_f32 v{A+4*i+h}, v{A+4*i+h}, v{A+20+i}")
                    o = OFR + tt * 20 + (gp * 5 + i) * 2
                    k(f"v_cvt_pk_bf16_f32 v{o}, v{A+4*i}, v{A+4*i+1}"); k(f"v_cvt_pk_bf16_f32 v{o+1}, v{A+4*i+2}, v{A+4*i+3}")
        k("v_add_u32 v14, s42, v13")
        for tt in range(2):
            for p in range(5):
                o = OFR + tt * 20 + 4 * p
                k(f"ds_write_b128 v14, v[{o}:{o+3}] offset:{tt*20480 + p*1024}")
    k("s_mov_b32 s41, s43"); pq_loads(0)
    k("s_waitcnt vmcnt(0)")
    stamp(k, 2)
    k("s_add_u32 s41, s43, 163840"); pq_loads(1)
    bd_stage(0)
    k("s_waitcnt lgkmcnt(0)"); k("s_barrier")
    stamp(k, 3)
    k.lab('k3_seg')
    for par in range(2):
        if par == 0: stamp(k, 4)
        k("v_add_u32 v15, s42, v5")
        lg = LG(k)
        def rd(J):
            for tt in range(2):
                r = RING + ((J % 4) * 2 + tt) * 4
                lg.issue(J, f"ds_read_b128 v[{r}:{r+3}], v15 offset:{tt*20480 + J*1024}")
        rd(0); rd(1); rd(2)
        for J in range(20):
            if J + 3 < 20: rd(J + 3)
            lg.wait(J)
            for tt in range(2):
                r = RING + ((J % 4) * 2 + tt) * 4
                for i in range(2):
                    a = OA + (tt * 2 + i) * 4
                    k(f"v_mfma_f32_16x16x32_bf16 v[{a}:{a+3}], {wo(i, J)}, v[{r}:{r+3}], " + (f"v[{a}:{a+3}]" if J else "0"))
        if par == 0: stamp(k, 5)
        T = RING
        for tt in range(2):
            for i in range(2):
                a = OA + (tt * 2 + i) * 4; rr = RES + 8 * par + 4 * tt + 2 * i; o = T + 8 + 4 * tt + 2 * i
                k(f"v_cvt_pk_bf16_f32 v{T}, v{a}, v{a+1}"); k(f"v_cvt_pk_bf16_f32 v{T+1}, v{a+2}, v{a+3}")
                for h in range(2):
                    k(f"v_lshlrev_b32 v{T+2}, 16, v{T+h}"); k(f"v_and_b32 v{T+3}, 0xffff0000, v{T+h}")
                    k(f"v_lshlrev_b32 v{T+4}, 16, v{rr+h}"); k(f"v_and_b32 v{T+5}, 0xffff0000, v{rr+h}")
                    k(f"v_pk_add_f32 v[{T+2}:{T+3}], v[{T+2}:{T+3}], v[{T+4}:{T+5}]")
                    k(f"v_cvt_pk_bf16_f32 v{o+h}, v{T+2}, v{T+3}")
        k("s_add_u32 s25, s43, 20480")
        k(f"buffer_store_dwordx4 v[{T+8}:{T+11}], v12, s[8:11], s43 offen sc1")
        k(f"buffer_store_dwordx4 v[{T+12}:{T+15}], v12, s[8:11], s25 offen sc1")
        k("s_add_u32 s40, s40, 1")
        k("s_add_u32 s43, s43, 163840")
        k("s_cmp_ge_u32 s40, 16"); k(f"s_cbranch_scc1 {k.ref('k3_done')}")
        k("s_xor_b32 s42, s42, 40960")
        if par == 0: stamp(k, 6)
        k("s_waitcnt vmcnt(2)")
        if par == 0: stamp(k, 7)
        bd_stage(1 - par)
        if par == 0: stamp(k, 8)
        k("s_add_u32 s41, s43, 163840")
        k("s_cmp_lt_u32 s40, 15"); k(f"s_cselect_b32 s41, s41, {OOB}")
        k("s_waitcnt vmcnt(0)")
        pq_loads(par)
        k("s_waitcnt lgkmcnt(0)"); k("s_barrier")
        if par == 0: stamp(k, 9)
        H.k3_publish(k, False)
    k(f"s_branch {k.ref('k3_seg')}")
    k.lab('k3_done')
    k("s_waitcnt vmcnt(0)"); k("s_barrier")
    stamp(k, 10)
    stamp_out(k, 11, 0x20000)
    H.k3_publish(k, True)

def common_prologue(k, nwg):
    k(f"s_cmp_ge_u32 s2, {nwg}")
    k(f"s_cbranch_scc1 {k.ref('end')}")
    k.ptr(KA_WS, 4)
    k("v_and_b32 v1, 63, v0")
    k("v_lshrrev_b32 v4, 6, v0")
    k("v_and_b32 v2, 15, v1")
    k("v_lshrrev_b32 v3, 4, v1")
    k("v_readfirstlane_b32 s3, v4")
    k("s_waitcnt lgkmcnt(0)")
    k.srd(8, 4, WS_BYTES)

def src_setup(k, layer, sreg=16):
    if layer == 0:
        k.ptr(KA_AX, 6); k("s_waitcnt lgkmcnt(0)"); k.srd(sreg, 6, XF_BYTES)
        k("s_mov_b32 s46, 64"); k("s_mov_b32 s47, 32"); k("s_mov_b32 s50, 0")
    else:
        k.srd(sreg, 4, XF_BYTES, WS_XF2)
        k("s_mov_b32 s46, 1024"); k("s_mov_b32 s47, 8"); k("s_mov_b32 s50, 1")

def test_kernels(layer):
    H = NoHooks()
    k1 = K(f"k1_{layer}", vgpr=256, sgpr=100, agpr=256)
    common_prologue(k1, 256 if layer == 0 else 16)
    k1(f"s_mov_b32 s92, {layer}")
    src_setup(k1, layer)
    k1("s_and_b32 s44, s2, 7"); k1("s_lshr_b32 s45, s2, 3")
    if layer == 0: k1("s_lshl_b32 s48, s45, 1"); k1("s_mov_b32 s49, 1"); k1("s_mov_b32 s40, 2")
    else: k1("s_mov_b32 s48, s45"); k1("s_mov_b32 s49, 2"); k1("s_mov_b32 s40, 32")
    role_K1(k1, H); k1.lab('end')
    k2 = K(f"k2_{layer}", vgpr=256, sgpr=100, agpr=256)
    common_prologue(k2, 24)
    k2(f"s_mov_b32 s92, {layer}")
    k2("s_and_b32 s44, s2, 7"); k2("s_lshr_b32 s45, s2, 3"); k2(f"s_mov_b32 s46, {32 if layer == 0 else 2}")
    role_K2(k2, H); k2.lab('end')
    k3 = K(f"k3_{layer}", vgpr=256, sgpr=100, agpr=256)
    common_prologue(k3, 20)
    k3(f"s_mov_b32 s92, {layer}")
    src_setup(k3, layer)
    k3("s_mul_i32 s57, s2, 52"); k3("s_lshr_b32 s57, s57, 8"); k3("s_mul_i32 s56, s57, 5"); k3("s_sub_u32 s56, s2, s56")
    k3(f"s_mov_b32 s58, {WS_XF1 if layer == 0 else WS_XF3}")
    role_K3(k3, H, False); k3.lab('end')
    return [(k1, 256 if layer == 0 else 16, 135168), (k2, 24, 135168), (k3, 20, 135168)]

if __name__ == "__main__":
    out = "za.s"
    for a in sys.argv[1:]:
        if a == "stamp": STAMP = True
        elif a.endswith(".s"): out = a
    ks = test_kernels(0)
    head = ["; layer A test list"]
    for kk, n, lds in ks: head.append(f"; @launch kernel={kk.name} grid=({n},1,1) block=(256,1,1) lds={lds}")
    head.append('.amdgcn_target "amdgcn-amd-amdhsa--gfx950"')
    open(out, "w").write("\n".join(head) + "\n" + "\n".join(kk.text() for kk, _, _ in ks) + "\n")
    print("written", out)
```

```python
import re

REG = re.compile(r'^(v|a|s)(\d+)$|^(v|a|s)\[(\d+):(\d+)\]$')
def regs_of(tok):
    tok = tok.strip()
    if tok in ('vcc',): return [('s', 'vcc')]
    if tok in ('vcc_lo', 'vcc_hi'): return [('s', 'vcc')]
    if tok == 'exec' or tok in ('exec_lo', 'exec_hi'): return [('s', 'exec')]
    if tok == 'm0': return [('s', 'm0')]
    m = REG.match(tok)
    if not m: return []
    if m.group(1): return [(m.group(1), int(m.group(2)))]
    return [(m.group(3), i) for i in range(int(m.group(4)), int(m.group(5)) + 1)]

def split_ops(s):
    parts = s.split(None, 1)
    op = parts[0]
    rest = parts[1] if len(parts) > 1 else ''
    rest = rest.split(';')[0]
    toks = [t.strip() for t in rest.split(',')]
    out = []; mods = ''
    for i, t in enumerate(toks):
        if ' ' in t and not t.startswith('['):
            a, b = t.split(None, 1)
            out.append(a); mods += ' ' + b
        else:
            out.append(t)
    return op, out, rest

TRANS = ('v_exp_f32','v_log_f32','v_rcp_f32','v_rsq_f32','v_sqrt_f32','v_sin_f32','v_cos_f32','v_rcp_iflag_f32')
def passes(op):
    if 'smfmac' in op: return 4 if ('16x16' in op) else 8
    if '32x32' in op: return 8
    return 4
W_VALU = {2: 5, 4: 8, 8: 12, 16: 20}
W_OVL = {2: 4, 4: 6, 8: 10, 16: 18}
W_WARC = {2: 1, 4: 3, 8: 7, 16: 15}

class Ins:
    def __init__(self, text):
        self.text = text
        s = text.strip()
        self.label = None; self.op = None
        if s.endswith(':'):
            self.label = s[:-1]; return
        if not s or s.startswith(';') or s.startswith('.'):
            return
        op, ops, rest = split_ops(s)
        self.op = op; self.ops = ops; self.rest = rest
        self.kind = None
        self.wr = []; self.rd = []
        self.dpp = ('quad_perm' in rest or 'row_' in rest or 'wave_' in rest)
        R = [regs_of(o) for o in ops]
        flat = lambda L: [x for l in L for x in l]
        if op.startswith('v_mfma'):
            self.kind = 'mfma'; self.D = R[0]; self.A = R[1]; self.B = R[2]; self.C = R[3]; self.idx = []
        elif op.startswith('v_smfmac'):
            self.kind = 'mfma'; self.D = R[0]; self.A = R[1]; self.B = R[2]; self.C = R[0]; self.idx = R[3]
        elif op.startswith('v_'):
            self.kind = 'valu'
            if (op.startswith('v_permlane') and 'swap' in op) or op.startswith('v_swap'):
                self.wr = R[0] + R[1]; self.rd = R[0] + R[1]
            elif op.startswith('v_cmpx'):
                self.wr = [('s', 'exec')]; self.rd = flat(R)
            elif op.startswith('v_nop'):
                pass
            else:
                self.wr = R[0]; self.rd = flat(R[1:])
                if op.startswith(('v_fmac', 'v_mac', 'v_dot2c', 'v_pk_fmac')) or self.dpp or op.startswith('v_writelane') or 'd16' in op:
                    self.rd = self.rd + R[0]
                if op.startswith(('v_add_co', 'v_sub_co', 'v_addc_co', 'v_subb_co', 'v_subrev_co')):
                    self.wr = R[0] + R[1]; self.rd = flat(R[2:])
                if op.startswith('v_cndmask_b32') and len(ops) == 3:
                    self.rd = self.rd + [('s', 'vcc')]
        elif op.startswith('ds_'):
            self.kind = 'ds'
            if op.startswith('ds_read') or op.startswith('ds_bpermute') or op.startswith('ds_permute') or op.startswith('ds_swizzle') or '_rtn_' in op:
                self.wr = R[0]; self.rd = flat(R[1:])
            else:
                self.rd = flat(R)
        elif op.startswith('buffer_') or op.startswith('global_'):
            self.kind = 'vmem'
            if ' lds' in (' ' + rest):
                self.rd = flat(R) + [('s', 'm0')]; self.ldsdma = True
            elif '_load' in op:
                self.wr = R[0]; self.rd = flat(R[1:])
            elif 'atomic' in op:
                self.rd = flat(R)
                if ' sc0' in (' ' + rest): self.wr = R[0]
            else:
                self.rd = flat(R); self.store_data = R[0]
        elif op.startswith('s_'):
            self.kind = 'salu'
            if op == 's_nop': self.n = int(ops[0], 0) + 1
            elif op.startswith(('s_cbranch', 's_branch')): self.target = ops[0]
            elif op.startswith(('s_cmp', 's_waitcnt', 's_barrier', 's_sleep', 's_endpgm', 's_setprio', 's_bitcmp', 's_sethalt', 's_setreg')):
                self.rd = flat(R)
            else:
                self.wr = R[0]; self.rd = flat(R[1:])
                if 'saveexec' in op: self.wr = self.wr + [('s', 'exec')]
        else:
            raise ValueError("unknown instruction: " + text)

CAP = 24
def merge(a, b):
    if a is None: return dict(b)
    out = dict(a)
    for k_, v in b.items():
        if k_[0] == 'MD':
            d = dict(out.get(k_, {}))
            for kk, vv in v.items():
                if kk not in d or vv < d[kk]: d[kk] = vv
            out[k_] = d
        elif k_ not in out or v < out[k_]: out[k_] = v
    return out

def need(ins, st):
    n = 0
    def req(ev, reg, w):
        nonlocal n
        k_ = (ev, reg)
        if k_ in st and st[k_] < w: n = max(n, w - st[k_])
    def mf(reg, table, exempt=None):
        nonlocal n
        for (p, tid), age in st.get(('MD', reg), {}).items():
            if exempt is not None and tid == exempt: continue
            if age < table[p]: n = max(n, table[p] - age)
    def dl(regs, exempt_op=None):
        nonlocal n
        for r in regs:
            for k_, age in st.items():
                if k_[0] == 'dlW' and k_[1][0] == r and k_[1][1] != exempt_op and age < 3: n = max(n, 3 - age)
    if ins.kind == 'mfma': dl(ins.A + ins.B + ins.C + ins.idx + ins.D)
    elif ins.kind == 'valu':
        if ins.op.startswith('v_dot'):
            R = [regs_of(o) for o in ins.ops]
            dl(R[1] + R[2])
            acc = R[0] + (R[3] if len(R) > 3 else [])
            dl(acc, ins.op)
        else: dl(ins.rd + ins.wr)
    elif ins.kind in ('ds', 'vmem'): dl(ins.rd + ins.wr)
    if ins.kind == 'mfma':
        for r in ins.A + ins.B + ins.C + ins.idx:
            req('valuW', r, 2)
        for r in ins.A + ins.B + ins.idx: mf(r, W_VALU)
        for r in ins.C: mf(r, W_OVL, exempt=(tuple(ins.C), ins.op))
        if ins.D != ins.C:
            for r in ins.D: mf(r, W_VALU)
        req('execV', ('s', 'exec'), 4)
    elif ins.kind == 'valu':
        for r in ins.rd + ins.wr:
            if r[0] in 'va': mf(r, W_VALU)
        for r in ins.wr:
            for p in (2, 4, 8, 16): req(('mC', p), r, W_WARC[p])
            req('stD', r, 2)
        for r in ins.rd:
            if r[0] == 's': req('valuS', r, 2)
            if ins.op not in TRANS: req('trans', r, 1)
        if ins.op not in TRANS:
            for r in ins.wr: req('trans', r, 1)
        if ins.dpp:
            for r in ins.rd: req('valuW', r, 2)
            req('execV', ('s', 'exec'), 5)
        if ins.op.startswith('v_permlane'):
            for r in ins.rd: req('valuW', r, 2)
            req('execV', ('s', 'exec'), 4)
        if ins.op.startswith(('v_readlane', 'v_readfirstlane')):
            for r in ins.rd: req('valuW', r, 1)
            if len(ins.ops) > 2:
                for r in regs_of(ins.ops[2]): req('valuS', r, 4)
            req('execV', ('s', 'exec'), 4)
    elif ins.kind in ('ds', 'vmem'):
        for r in ins.rd + ins.wr:
            if r[0] in 'va': mf(r, W_VALU)
        for r in ins.rd:
            if r[0] == 's' and ins.kind == 'vmem': req('valuS', r, 5)
            req('trans', r, 1)
        for r in ins.wr: req('stD', r, 1)
        if getattr(ins, 'ldsdma', False): req('m0', ('s', 'm0'), 1)
    elif ins.kind == 'salu':
        pass
    return n

def apply(ins, st):
    adv = ins.n if ins.op == 's_nop' else 1
    for k_ in list(st.keys()):
        if k_[0] == 'MD':
            d = {kk: v + adv for kk, v in st[k_].items() if v + adv <= CAP}
            if d: st[k_] = d
            else: del st[k_]
        else:
            st[k_] += adv
            if st[k_] > CAP: del st[k_]
    if ins.kind == 'mfma':
        p = passes(ins.op)
        for r in ins.D:
            st[('MD', r)] = {(p, (tuple(ins.D), ins.op)): 0}
        for r in ins.C: st[(('mC', p), r)] = 0
    elif ins.kind == 'valu':
        for r in ins.wr:
            if r[0] in 'va':
                st[('valuW', r)] = 0
                if ins.op in TRANS: st[('trans', r)] = 0
                for k_ in [k_ for k_ in st if k_[0] == 'dlW' and k_[1][0] == r]: del st[k_]
                if ins.op.startswith('v_dot'): st[('dlW', (r, ins.op))] = 0
            else:
                if r == ('s', 'exec'): st[('execV', r)] = 0
                else: st[('valuS', r)] = 0
    elif ins.kind == 'vmem':
        sd = getattr(ins, 'store_data', None)
        if sd and len(sd) >= 3:
            for r in sd: st[('stD', r)] = 0
    elif ins.kind == 'salu':
        for r in ins.wr:
            if r == ('s', 'm0'): st[('m0', r)] = 0

def fix(lines):
    ins = [Ins(l) for l in lines]
    pend = {}
    for it in range(4):
        out = []; st = {}; newpend = {}
        dead = False
        changed = False
        for i in ins:
            if i.label:
                if dead: st = {}
                dead = False
                if i.label in pend: st = merge(st, pend[i.label]) if st is not None else dict(pend[i.label])
                out.append(i); continue
            if i.op is None:
                out.append(i); continue
            n = need(i, st)
            while n > 0:
                m = min(n, 16)
                nop = Ins(f"    s_nop {m-1}")
                apply(nop, st); out.append(nop); n -= m; changed = True
            apply(i, st)
            out.append(i)
            if hasattr(i, 'target'):
                newpend[i.target] = merge(newpend.get(i.target), st)
                if i.op == 's_branch': dead = True; st = {}
        ins = out
        same = (newpend == pend)
        pend = newpend
        if not changed and same: break
    return [i.text for i in ins]
```

```python
import sys
from asmlib import K, magic
import genA as A
from genA import hexf, LOG2E, LG, lookup, row_stats_partial, row_stats_final, ln_fold

NAME = A.NAME
S, D, H, DH, HD, NSEG = 2048, 640, 32, 192, 6144, 64
KA_AX, KA_WQKV, KA_WOA, KA_BX, KA_MEM0, KA_WQ, KA_WK, KA_WV, KA_WO, KA_SEG, KA_OUT, KA_DBG, KA_WS = range(13)
WS_BYTES = 268435456

WS_FLG   = 0x01600000
FLG_BYTES = 0x10000
F_Q   = 0x0000
F_LAYER = 0x4000
F_K1  = 0x8000
F_K2  = 0x8800
F_K3  = 0x9000
F_X   = 0x9800
F_C   = 0xA000
WS_TRACE = 0x01800000
WS_VF    = 0x02000000
WS_QF    = 0x04000000
WS_KF    = 0x05800000
QF_SEG   = 32 * 12288
WS_SYNC  = 0x07000000
SYNC_STEP = 0x70000
O_VOM, O_PX, O_PB, O_MB, O_HR, O_HS = 0, 327680, 409600, 430080, 440320, 448512
SYNC_LAYER = 64 * SYNC_STEP
WS_VOX   = 0x0B000000
VOX_SEG  = 40 * 32 * 1024
assert WS_SYNC + 128 * SYNC_STEP <= WS_VOX and WS_VOX + 64 * VOX_SEG <= WS_BYTES
SCALE_B = DH ** -0.5
SPIN_MAX = 1 << 17
OOB = 0x7ff00000
RH_M, RH_P = 16, 8

CFG = dict(stamp=False, dly_vox=20, pd_m=2, pd_p=2, pdep=4, pgain=0, dly_m=5, dly_v=20, dly_p=10, sl_m=1, sl_p=1, sl_x=2, sl_x0=8,
           hs_pos=3, hr_pos=1, clr_sleep=0)


def poll(k, name, loads, regs, tmp, sleep, first_delay=0, depth=1):
    if first_delay:
        k(f"s_sleep {first_delay}")
    k("s_mov_b32 s61, 0")
    for d in range(depth - 1):
        for l in loads: k(l)
        if sleep: k(f"s_sleep {sleep}")
    k.lab(name)
    for l in loads: k(l)
    k(f"s_waitcnt vmcnt({(depth - 1) * len(loads)})")
    rs = list(regs)
    k(f"v_max3_u32 v{tmp}, v{rs[0]}, v{rs[1]}, v{rs[2]}")
    rs = rs[3:]
    while len(rs) >= 2:
        k(f"v_max3_u32 v{tmp}, v{tmp}, v{rs[0]}, v{rs[1]}"); rs = rs[2:]
    if rs: k(f"v_max_u32 v{tmp}, v{tmp}, v{rs[0]}")
    k(f"v_cmp_eq_u32 vcc, -1, v{tmp}")
    k("s_add_u32 s61, s61, 1")
    k(f"s_cbranch_vccz {k.ref(name + '_out')}")
    k("s_cmp_ge_u32 s61, s60")
    k(f"s_cbranch_scc1 {k.ref(name + '_to')}")
    if sleep: k(f"s_sleep {sleep}")
    k(f"s_branch {k.ref(name)}")
    k.lab(name + '_to')
    k("s_mov_b32 s60, 1")
    k.lab(name + '_out')

def check_regs(k, rs, tmp):
    rs = list(rs)
    k(f"v_max3_u32 v{tmp}, v{rs[0]}, v{rs[1]}, v{rs[2]}")
    rs = rs[3:]
    while len(rs) >= 2:
        k(f"v_max3_u32 v{tmp}, v{tmp}, v{rs[0]}, v{rs[1]}"); rs = rs[2:]
    if rs: k(f"v_max_u32 v{tmp}, v{tmp}, v{rs[0]}")
    k(f"v_cmp_eq_u32 vcc, -1, v{tmp}")


def aprobe(k, name, areg, sbase, target, ring, delta, depth, dly):
    ring = ring[:depth]
    if dly: k(f"s_sleep {dly}")
    k("s_mov_b64 exec, 1")
    k("s_mov_b32 s61, 0")
    def issue(i):
        k(f"v_mov_b32 v{ring[i]}, 0")
        k(f"buffer_atomic_add v{ring[i]}, v{areg}, s[8:11], {sbase} offen sc0")
    for d in range(depth - 1):
        issue(d + 1)
        if delta: k(f"s_sleep {delta}")
    k.lab(name)
    for i in range(depth):
        issue(i)
        k(f"s_waitcnt vmcnt({depth - 1})")
        k(f"v_cmp_le_i32 vcc, {target}, v{ring[(i + 1) % depth]}")
        k("s_add_u32 s61, s61, 1")
        k(f"s_cbranch_vccnz {k.ref(name + '_out')}")
        if delta: k(f"s_sleep {delta}")
    k("s_cmp_ge_u32 s61, s60")
    k(f"s_cbranch_scc0 {k.ref(name)}")
    k("s_mov_b32 s60, 1")
    k.lab(name + '_out')
    k("s_mov_b64 exec, -1")
    if CFG['stamp']: k("s_mov_b32 s56, s61")

def ahint(k, areg, one, sbase):
    k(f"buffer_atomic_add v{one}, v{areg}, s[8:11], {sbase} offen")

def ahint_addr(k, dst, t, w_sreg, nrep, only_wave0):
    k(f"s_mul_i32 s24, {w_sreg}, {nrep}")
    k(f"v_add_u32 v{dst}, s24, v1")
    k(f"v_lshlrev_b32 v{dst}, 7, v{dst}")
    k(f"v_mov_b32 v{t}, {OOB}")
    k(f"v_cmp_le_u32 vcc, {nrep}, v1")
    k(f"v_cndmask_b32 v{dst}, v{dst}, v{t}, vcc")
    if only_wave0:
        k("s_cmp_eq_u32 s3, 0"); k(f"s_cselect_b32 s24, 0, {OOB}")
        k(f"v_or_b32 v{dst}, s24, v{dst}")

def aprobe_addr(k, dst, wg_sreg, nrep):
    k(f"s_and_b32 s24, {wg_sreg}, {nrep - 1}")
    k(f"s_mul_i32 s25, s3, {nrep}")
    k("s_add_u32 s24, s24, s25"); k("s_lshl_b32 s24, s24, 7")
    k(f"v_mov_b32 v{dst}, s24")


def shot_check(k, name, loads, regs, tmp, nyoung, sleep):
    k(f"s_waitcnt vmcnt({nyoung})")
    check_regs(k, regs, tmp)
    if CFG['stamp']: k("s_mov_b32 s57, 0")
    k(f"s_cbranch_vccz {k.ref(name + '_out')}")
    k("s_mov_b32 s61, 0")
    k.lab(name)
    for l in loads: k(l)
    k("s_waitcnt vmcnt(0)")
    check_regs(k, regs, tmp)
    k("s_add_u32 s61, s61, 1")
    if CFG['stamp']: k("s_mov_b32 s57, s61")
    k(f"s_cbranch_vccz {k.ref(name + '_out')}")
    k("s_cmp_ge_u32 s61, s60")
    k(f"s_cbranch_scc1 {k.ref(name + '_to')}")
    if sleep: k(f"s_sleep {sleep}")
    k(f"s_branch {k.ref(name)}")
    k.lab(name + '_to')
    k("s_mov_b32 s60, 1")
    k.lab(name + '_out')


def divmod_const(k, q, r, x, d, maxn, stmp):
    m, sh = magic(d, maxn)
    k(f"s_mov_b32 s{stmp}, {m}")
    k(f"v_mul_lo_u32 v{q}, v{x}, s{stmp}")
    k(f"v_lshrrev_b32 v{q}, {sh}, v{q}")
    k(f"v_mul_u32_u24 v{r}, {d}, v{q}")
    k(f"v_sub_u32 v{r}, v{x}, v{r}")

def stage_offsets(k, n, cpr, gstride, RS, lbase, go, lo, t0):
    for i in range(n):
        k(f"v_add_u32 v{t0}, {256*i}, v0")
        divmod_const(k, t0 + 1, t0 + 2, t0, cpr, 256 * n, 24)
        k(f"s_mov_b32 s24, {gstride}")
        k(f"v_mul_lo_u32 v{go+i}, v{t0+1}, s24")
        k(f"v_lshl_add_u32 v{go+i}, v{t0+2}, 4, v{go+i}")
        k(f"v_mul_u32_u24 v{lo+i}, {RS}, v{t0+1}")
        k(f"v_lshl_add_u32 v{lo+i}, v{t0+2}, 4, v{lo+i}")
        k(f"v_add_u32 v{lo+i}, {lbase}, v{lo+i}")

def tr_base(k, dst, RS, lbase, t0):
    k(f"v_lshrrev_b32 v{t0}, 1, v3")
    k(f"v_lshlrev_b32 v{t0}, 4, v{t0}")
    k(f"v_and_b32 v{t0+1}, 1, v3")
    k(f"v_lshl_add_u32 v{t0}, v{t0+1}, 2, v{t0}")
    k(f"v_lshrrev_b32 v{t0+1}, 2, v2")
    k(f"v_and_b32 v{t0+2}, 1, v{t0+1}")
    k(f"v_add_u32 v{t0}, v{t0}, v{t0+2}")
    k(f"v_lshrrev_b32 v{t0+1}, 1, v{t0+1}")
    k(f"v_lshl_add_u32 v{t0}, v{t0+1}, 3, v{t0}")
    k(f"v_mul_u32_u24 v{dst}, {RS}, v{t0}")
    k(f"v_and_b32 v{t0+1}, 3, v2")
    k(f"v_lshl_add_u32 v{dst}, v{t0+1}, 3, v{dst}")
    k(f"v_add_u32 v{dst}, {lbase}, v{dst}")

def softmax8(k, P0, T0, T1, masks=None):
    if masks:
        k(f"v_mov_b32 v{T1}, 0xff800000")
        for j in range(8): k(f"v_cndmask_b32 v{P0+j}, v{T1}, v{P0+j}, s[{masks+2*j}:{masks+2*j+1}]")
    k(f"v_max3_f32 v{T0}, v{P0}, v{P0+1}, v{P0+2}")
    k(f"v_max3_f32 v{T0}, v{T0}, v{P0+3}, v{P0+4}")
    k(f"v_max3_f32 v{T0}, v{T0}, v{P0+5}, v{P0+6}")
    k(f"v_max_f32 v{T0}, v{T0}, v{P0+7}")
    k(f"v_mov_b32 v{T1}, 0xff800000")
    k(f"v_cndmask_b32 v{T0}, v{T1}, v{T0}, s[50:51]")
    for dpp in ("quad_perm:[1,0,3,2]", "quad_perm:[2,3,0,1]", "row_half_mirror"):
        k(f"v_max_f32 v{T0}, v{T0}, v{T0} {dpp} row_mask:0xf bank_mask:0xf")
    k(f"s_mov_b32 s24, {hexf(SCALE_B * LOG2E)}")
    k(f"v_mul_f32 v{T0}, s24, v{T0}")
    for r in range(8): k(f"v_fma_f32 v{P0+r}, v{P0+r}, s24, -v{T0}")
    for r in range(8): k(f"v_exp_f32 v{P0+r}, v{P0+r}")
    k(f"v_add_f32 v{T0}, v{P0}, v{P0+1}")
    k(f"v_add_f32 v{T1}, v{P0+2}, v{P0+3}")
    k(f"v_add_f32 v{T0}, v{T0}, v{P0+4}")
    k(f"v_add_f32 v{T1}, v{T1}, v{P0+5}")
    k(f"v_add_f32 v{T0}, v{T0}, v{P0+6}")
    k(f"v_add_f32 v{T1}, v{T1}, v{P0+7}")
    k(f"v_add_f32 v{T0}, v{T0}, v{T1}")
    k(f"v_cndmask_b32 v{T0}, 0, v{T0}, s[50:51]")
    for dpp in ("quad_perm:[1,0,3,2]", "quad_perm:[2,3,0,1]", "row_half_mirror"):
        k(f"v_add_f32 v{T0}, v{T0}, v{T0} {dpp} row_mask:0xf bank_mask:0xf")
    k(f"v_rcp_f32 v{T0}, v{T0}")
    for r in range(8): k(f"v_mul_f32 v{P0+r}, v{P0+r}, v{T0}")
    for q in range(4): k(f"v_cvt_pk_bf16_f32 v{P0+8+q}, v{P0+2*q}, v{P0+2*q+1}")
    for q in range(4): k(f"v_min_u32 v{P0+8+q}, -2, v{P0+8+q}")

def sum4x8(k, P0, addr, stride):
    for w in range(4):
        k(f"ds_read_b128 v[{P0+8*w}:{P0+8*w+3}], v{addr} offset:{w*stride}")
        k(f"ds_read_b128 v[{P0+8*w+4}:{P0+8*w+7}], v{addr} offset:{w*stride+16}")
    k("s_waitcnt lgkmcnt(4)")
    for r in range(0, 8, 2): k(f"v_pk_add_f32 v[{P0+r}:{P0+r+1}], v[{P0+r}:{P0+r+1}], v[{P0+8+r}:{P0+8+r+1}]")
    k("s_waitcnt lgkmcnt(0)")
    for r in range(0, 8, 2): k(f"v_pk_add_f32 v[{P0+16+r}:{P0+16+r+1}], v[{P0+16+r}:{P0+16+r+1}], v[{P0+24+r}:{P0+24+r+1}]")
    for r in range(0, 8, 2): k(f"v_pk_add_f32 v[{P0+r}:{P0+r+1}], v[{P0+r}:{P0+r+1}], v[{P0+16+r}:{P0+16+r+1}]")


def tr_frag(k, reg, kind, addr, RS, off):
    for q, ro in enumerate((0, 2, 32, 34)):
        k(f"ds_read_b64_tr_b16 {kind}[{reg+2*q}:{reg+2*q+1}], v{addr} offset:{off + ro*RS}")

def m0_image(k, srd, t0):
    for p in range(3):
        k(f"s_lshl_b32 s24, s3, 6"); k(f"s_add_u32 s24, s24, {256*p}")
        k(f"v_add_u32 v{t0}, s24, v1")
        k(f"v_and_b32 v{t0+1}, 7, v{t0}")
        k(f"v_mul_u32_u24 v{t0+1}, 1280, v{t0+1}")
        k(f"v_lshrrev_b32 v{t0+2}, 3, v{t0}")
        k(f"v_lshl_add_u32 v{t0+1}, v{t0+2}, 4, v{t0+1}")
        k(f"v_cmp_gt_u32 vcc, 640, v{t0}")
        k(f"v_mov_b32 v{t0+3}, {OOB}")
        k(f"v_cndmask_b32 v{t0+1}, v{t0+3}, v{t0+1}, vcc")
        k(f"buffer_load_dwordx4 v[{t0+4}:{t0+7}], v{t0+1}, s[{srd}:{srd+3}], 0 offen")
        k(f"v_lshlrev_b32 v{t0}, 4, v{t0}")
        k("s_waitcnt vmcnt(0)")
        k(f"s_and_saveexec_b64 s[30:31], vcc")
        k(f"ds_write_b128 v{t0}, v[{t0+4}:{t0+7}]")
        k("s_mov_b64 exec, s[30:31]")

def stamp(k, i):
    if CFG['stamp']: k(f"s_memrealtime s[{80+2*i}:{81+2*i}]")

def stamp_out(k, nst, t):
    if not CFG['stamp']: return
    k("s_lshl_b32 s34, s2, 2"); k("s_add_u32 s34, s34, s3"); k("s_lshl_b32 s34, s34, 7")
    k("s_lshl_b32 s35, s92, 6"); k("s_add_u32 s34, s34, s35")
    k("s_add_u32 s34, s34, s40"); k("s_lshl_b32 s34, s34, 5"); k(f"s_add_u32 s34, s34, {WS_TRACE}")
    k(f"v_mov_b32 v{t}, {OOB}")
    k("v_cmp_eq_u32 vcc, 0, v1")
    k(f"v_cndmask_b32 v{t}, v{t}, 0, vcc")
    for i in range(nst):
        k(f"v_mov_b32 v{t+1}, s{80+2*i}")
        k(f"buffer_store_dword v{t+1}, v{t}, s[8:11], s34 offen offset:{i*4}")
    for i, sreg in ((6, 's57'), (7, 's56')):
        k(f"v_mov_b32 v{t+1}, {sreg}")
        k(f"buffer_store_dword v{t+1}, v{t}, s[8:11], s34 offen offset:{i*4}")

WS_EVT = 0x01C00000
def event(k, idx, t=14):
    if not CFG['stamp']: return
    k("s_memrealtime s[96:97]")
    k("s_lshl_b32 s34, s2, 7"); k("s_lshl_b32 s35, s92, 6"); k("s_add_u32 s34, s34, s35"); k(f"s_add_u32 s34, s34, {WS_EVT + 4*idx}")
    k("s_cmp_eq_u32 s3, 0"); k(f"s_cselect_b32 s34, s34, {OOB}")
    k(f"v_mov_b32 v{t}, {OOB}")
    k("v_cmp_eq_u32 vcc, 0, v1")
    k(f"v_cndmask_b32 v{t}, v{t}, 0, vcc")
    k("s_waitcnt lgkmcnt(0)")
    k(f"v_mov_b32 v{t+1}, s96")
    k(f"buffer_store_dword v{t+1}, v{t}, s[8:11], s34 offen")

def ensure(k, name, nfl, addr, tmp, need='s63', known='s62', sleep=2):
    k(f"s_cmp_ge_i32 {known}, {need}")
    k(f"s_cbranch_scc1 {k.ref(name + '_ok')}")
    if callable(addr):
        addr(k, tmp + 1); addr = tmp + 1
    k("s_mov_b32 s61, 0")
    k.lab(name)
    k(f"buffer_load_dword v{tmp}, v{addr}, s[8:11], 0 offen sc1")
    k("s_waitcnt vmcnt(0)")
    k(f"v_readlane_b32 {known}, v{tmp}, 0")
    for i in range(1, nfl):
        k(f"v_readlane_b32 s24, v{tmp}, {i}")
        k(f"s_min_i32 {known}, {known}, s24")
    k(f"s_cmp_ge_i32 {known}, {need}")
    k(f"s_cbranch_scc1 {k.ref(name + '_ok')}")
    k("s_add_u32 s61, s61, 1")
    k("s_cmp_ge_u32 s61, s60")
    k(f"s_cbranch_scc1 {k.ref(name + '_to')}")
    k(f"s_sleep {sleep}")
    k(f"s_branch {k.ref(name)}")
    k.lab(name + '_to')
    k("s_mov_b32 s60, 1")
    k.lab(name + '_ok')

def clr_addr(k, dst):
    k("s_and_b32 s24, s2, 7"); k("s_lshl_b32 s24, s24, 7"); k(f"s_add_u32 s24, s24, {WS_FLG + F_C}")
    k(f"v_and_b32 v{dst}, 3, v1"); k(f"v_lshl_add_u32 v{dst}, v{dst}, 2, s24")

def ensure_clear(k, name, tmp, blk):
    k("s_lshl_b32 s95, s92, 6"); k(f"s_add_u32 s95, s95, {blk}"); k("s_add_u32 s95, s95, 1")
    ensure(k, name, 4, clr_addr, tmp, need='s95', known='s59')

def wait_all(k, name, n, t, need, sleep=2):
    k("s_mov_b32 s61, 0")
    k.lab(name)
    k(f"buffer_load_dword v{t}, v{t+1}, s[8:11], 0 offen sc1")
    k("s_waitcnt vmcnt(0)")
    k(f"v_cmp_le_i32 vcc, {need}, v{t}")
    mask = ((1 << n) - 1) if isinstance(n, int) else n
    if isinstance(n, int): k(f"s_mov_b32 s25, {hex(mask & 0xffffffff)}"); mask = 's25'
    k(f"s_and_b32 s24, vcc_lo, {mask}")
    k(f"s_cmp_eq_u32 s24, {mask}")
    k(f"s_cbranch_scc1 {k.ref(name + '_ok')}")
    k("s_add_u32 s61, s61, 1")
    k("s_cmp_ge_u32 s61, s60")
    k(f"s_cbranch_scc1 {k.ref(name + '_to')}")
    k(f"s_sleep {sleep}")
    k(f"s_branch {k.ref(name)}")
    k.lab(name + '_to')
    k("s_mov_b32 s60, 1")
    k.lab(name + '_ok')

def pub_dword(k, saddr, val, t, copies=1):
    l = k.new('pb')
    k("s_cmp_eq_u32 s3, 0")
    k(f"s_cbranch_scc0 {k.ref(l)}")
    k(f"v_lshlrev_b32 v{t}, 7, v1"); k(f"v_add_u32 v{t}, {saddr}, v{t}")
    k(f"v_mov_b32 v{t+1}, {OOB}"); k(f"v_cmp_le_u32 vcc, {copies}, v1"); k(f"v_cndmask_b32 v{t}, v{t}, v{t+1}, vcc")
    k(f"v_mov_b32 v{t+1}, {val}")
    k(f"buffer_store_dword v{t+1}, v{t}, s[8:11], 0 offen sc1")
    k.lab(l)

def next_layer(k, again):
    k("s_cmp_eq_u32 s92, 0")
    k(f"s_cbranch_scc0 {k.ref('end')}")
    k("s_mov_b32 s92, 1")
    k(f"s_branch {k.ref(again)}")

def layer_bases(k):
    k(f"s_mul_i32 s93, s92, {SYNC_LAYER}"); k(f"s_add_u32 s93, s93, {WS_SYNC}")
    k(f"s_mul_i32 s94, s92, {F_LAYER}"); k(f"s_add_u32 s94, s94, {WS_FLG + F_Q}")


def role_S(k):
    L_M, L_X, L_SP, L_DUM, L_W5, L_ST = 0, 10240, 16384, 22528, 24576, 106496
    RS = 400
    ACC, AF, WS5 = 24, 48, 68
    KX = 240
    QX = 80
    T0, T1 = 92, 93
    def wreg(t, c):
        if t < 3: return 'a', t * 80 + c * 8
        return 'v', 96 + (t - 3) * 80 + c * 8
    k("s_mov_b32 s44, s2")
    k.ptr(KA_WQ, 6); k.ptr(KA_WK, 24); k.ptr(KA_MEM0, 26)
    k("s_waitcnt lgkmcnt(0)")
    k.srd(12, 6, D * HD * 2); k.srd(16, 24, D * HD * 2); k.srd(20, 26, 8 * 640 * 2)
    GO, LO, DAT = 4, 10, 24
    stage_offsets(k, 6, 24, HD * 2, RS, L_ST, GO, LO, 16)
    tr_base(k, 16, RS, L_ST, 17)
    k("s_mul_i32 s24, s3, 96")
    k("v_add_u32 v16, s24, v16")
    k("v_lshlrev_b32 v17, 4, v1")
    k(f"s_mul_i32 s24, s3, 20480"); k(f"s_add_u32 s24, s24, {L_W5}")
    k("v_add_u32 v17, s24, v17")
    k(f"s_mul_i32 s45, s44, 384")
    blocks = [(c, m) for c in range(10) for m in range(2)]
    def loads(bi):
        c, m = blocks[bi]
        d = DAT + 24 * (bi % 3)
        k(f"s_add_u32 s46, s45, {c * 64 * HD * 2}")
        for i in range(6):
            k(f"buffer_load_dwordx4 v[{d+4*i}:{d+4*i+3}], v{GO+i}, s[{12+4*m}:{15+4*m}], s46 offen")
    loads(0); loads(1)
    for bi, (c, m) in enumerate(blocks):
        d = DAT + 24 * (bi % 3)
        k(f"s_waitcnt vmcnt({6 if bi + 1 < len(blocks) else 0})")
        for i in range(6): k(f"ds_write_b128 v{LO+i}, v[{d+4*i}:{d+4*i+3}]")
        if bi + 2 < len(blocks): loads(bi + 2)
        k("s_waitcnt lgkmcnt(0)")
        k("s_barrier")
        for t in range(3):
            tt = 3 * m + t
            if tt < 5:
                kind, r = wreg(tt, c)
                tr_frag(k, r, kind, 16, RS, 32 * t)
        if m == 1:
            tr_frag(k, d, 'v', 16, RS, 64)
            k("s_waitcnt lgkmcnt(0)")
            k(f"ds_write_b128 v17, v[{d}:{d+3}] offset:{c*2048}")
            k(f"ds_write_b128 v17, v[{d+4}:{d+7}] offset:{c*2048+1024}")
        k("s_waitcnt lgkmcnt(0)")
        k("s_barrier")
    A_, B_, C_, D_ = 30, 31, 32, 33
    k("v_mov_b32 v6, v17")
    k(f"v_mov_b32 v{A_}, 0xeeee"); k("v_mov_b32 v4, 0x4444")
    k("v_cmp_gt_u32 vcc, 8, v2")
    k(f"v_cndmask_b32 v4, v{A_}, v4, vcc")
    k("v_lshlrev_b32 v5, 4, v1")
    k("s_lshl_b32 s24, s3, 10")
    k("v_add_u32 v7, s24, v5")
    k("s_lshl_b32 s24, s3, 9"); k("s_add_u32 s24, s24, 8192")
    k("v_lshlrev_b32 v8, 3, v1")
    k("v_add_u32 v8, s24, v8")
    k(f"s_mul_i32 s24, s3, 1536"); k(f"s_add_u32 s24, s24, {L_X}")
    k("v_lshlrev_b32 v9, 5, v2")
    k("v_lshl_add_u32 v9, v3, 3, v9")
    k("v_add_u32 v9, s24, v9")
    k(f"v_lshrrev_b32 v{A_}, 2, v2"); k(f"v_and_b32 v{B_}, 3, v2")
    k(f"v_lshl_add_u32 v11, v3, 2, v{A_}")
    k("v_lshlrev_b32 v11, 5, v11")
    k(f"v_lshl_add_u32 v11, v{B_}, 3, v11")
    k("v_add_u32 v11, s24, v11")
    k(f"v_add_u32 v{D_}, {L_DUM}, v5")
    k(f"s_mul_i32 s24, s3, 1408"); k(f"s_add_u32 s24, s24, {L_SP}")
    k(f"v_mul_u32_u24 v{A_}, 176, v2")
    k(f"v_add_u32 v{A_}, s24, v{A_}")
    k(f"v_lshl_add_u32 v12, v3, 5, v{A_}")
    k("v_cmp_gt_u32 vcc, 8, v2")
    k(f"v_cndmask_b32 v12, v{D_}, v12, vcc")
    k(f"v_lshl_add_u32 v13, v3, 4, v{A_}")
    k("v_add_u32 v13, 96, v13")
    k("v_cmp_le_u32 s[24:25], 2, v3")
    k("s_and_b64 vcc, vcc, s[24:25]")
    k(f"v_cndmask_b32 v13, v{D_}, v13, vcc")
    k(f"s_mul_i32 s24, s3, 5632"); k(f"s_add_u32 s24, s24, {L_ST}")
    k(f"v_mul_u32_u24 v{A_}, 176, v2")
    k(f"v_add_u32 v{A_}, s24, v{A_}")
    k(f"v_lshl_add_u32 v16, v3, 5, v{A_}")
    k(f"v_lshl_add_u32 v17, v3, 4, v{A_}")
    k("v_add_u32 v17, 96, v17")
    k("v_add_u32 v18, 2816, v17")
    k("v_cmp_le_u32 vcc, 2, v3")
    k(f"v_cndmask_b32 v17, v{D_}, v17, vcc")
    k(f"v_cndmask_b32 v18, v{D_}, v18, vcc")
    k(f"v_lshrrev_b32 v{A_}, 3, v1")
    k(f"v_and_b32 v{B_}, 7, v1")
    k(f"v_min_u32 v{C_}, 4, v{B_}")
    k(f"v_mul_u32_u24 v14, 176, v{A_}")
    k(f"v_lshl_add_u32 v14, v{C_}, 5, v14")
    k("s_mul_i32 s24, s3, 1408"); k(f"s_add_u32 s24, s24, {L_ST}")
    k("v_add_u32 v21, s24, v14")
    k(f"v_add_u32 v14, {L_SP}, v14")
    k(f"v_cmp_gt_u32 s[50:51], 5, v{B_}")
    k("s_lshl_b32 s24, s3, 3")
    k(f"v_add_u32 v{C_}, s24, v{A_}")
    k(f"v_lshlrev_b32 v{D_}, 2, v{B_}")
    k(f"v_sub_u32 v{C_}, v{C_}, v{D_}")
    k(f"v_mov_b32 v{D_}, 100")
    k(f"v_cmp_gt_u32 vcc, 4, v{B_}")
    k(f"v_cndmask_b32 v{C_}, v{D_}, v{C_}, vcc")
    for j in range(8):
        cj = j if j < 4 else j + 12
        k(f"v_cmp_le_i32 s[{64+2*j}:{65+2*j}], {cj}, v{C_}")
    k("s_lshr_b32 s24, s44, 1"); k("s_lshl_b32 s24, s24, 10")
    k("s_and_b32 s25, s44, 1"); k("s_lshl_b32 s25, s25, 7"); k("s_add_u32 s24, s24, s25")
    k(f"v_lshlrev_b32 v15, 8, v{B_}")
    k(f"v_lshl_add_u32 v15, v{A_}, 4, v15")
    k("v_add_u32 v15, s24, v15")
    k("s_lshr_b32 s24, s44, 3"); k("s_lshl_b32 s24, s24, 10")
    k("s_and_b32 s25, s44, 3"); k("s_lshl_b32 s25, s25, 8"); k("s_add_u32 s24, s24, s25")
    k("s_lshr_b32 s25, s44, 2"); k("s_and_b32 s25, s25, 1"); k("s_lshl_b32 s25, s25, 7"); k("s_add_u32 s24, s24, s25")
    k("s_add_u32 s24, s24, 16384")
    k(f"v_lshlrev_b32 v{C_}, 4, v{A_}")
    k(f"v_add_u32 v{C_}, s24, v{C_}")
    k(f"v_cmp_eq_u32 vcc, 4, v{B_}")
    k(f"v_cndmask_b32 v15, v15, v{C_}, vcc")
    k(f"v_mov_b32 v{C_}, {OOB}")
    k(f"v_cndmask_b32 v15, v{C_}, v15, s[50:51]")
    k(f"s_cmp_lt_u32 s3, 1"); k(f"s_cselect_b32 s24, 0, {OOB}")
    k("v_or_b32 v15, s24, v15")
    k("s_and_b32 s24, s3, 1"); k("s_lshl_b32 s24, s24, 7")
    k("s_lshr_b32 s25, s3, 1"); k("s_lshl_b32 s25, s25, 10")
    k("s_add_u32 s24, s24, s25")
    k("s_lshl_b32 s25, s44, 11"); k("s_add_u32 s25, s25, s24")
    k(f"v_lshlrev_b32 v22, 8, v{B_}")
    k(f"v_lshl_add_u32 v22, v{A_}, 4, v22")
    k("v_add_u32 v22, s25, v22")
    k("s_lshr_b32 s25, s44, 2"); k("s_lshl_b32 s25, s25, 11"); k("s_add_u32 s25, s25, s24")
    k("s_and_b32 s26, s44, 3"); k("s_lshl_b32 s26, s26, 8"); k("s_add_u32 s25, s25, s26"); k("s_add_u32 s25, s25, 65536")
    k(f"v_lshlrev_b32 v{C_}, 4, v{A_}")
    k(f"v_add_u32 v{C_}, s25, v{C_}")
    k(f"v_cmp_eq_u32 vcc, 4, v{B_}")
    k(f"v_cndmask_b32 v22, v22, v{C_}, vcc")
    k(f"v_mov_b32 v{C_}, {OOB}")
    k(f"v_cndmask_b32 v22, v{C_}, v22, s[50:51]")
    k("s_mul_i32 s24, s44, 12288"); k("s_mul_i32 s25, s3, 3072"); k("s_add_u32 s24, s24, s25")
    k("v_add_u32 v19, s24, v5")
    aprobe_addr(k, 23, 's2', RH_M)
    k("s_lshr_b32 s25, s44, 3")
    ahint_addr(k, 20, A_, 's25', RH_P, True)
    k("v_mov_b32 v0, 1")
    event(k, 1, 48)
    k.lab('s_layer')
    layer_bases(k)
    k("v_and_b32 v10, 1, v1")
    k("v_lshlrev_b32 v10, 12, v10")
    k(f"s_lshl_b32 s24, s44, 7"); k(f"s_add_u32 s24, s24, s94")
    k("v_add_u32 v10, s24, v10")
    m0_image(k, 20, 48)
    k("s_mov_b32 s40, 0")
    k(f"s_mov_b32 s41, {WS_KF}")
    k(f"s_add_u32 s42, s93, {O_PX}")
    k(f"s_add_u32 s43, s93, {O_PB}")
    k(f"s_mov_b32 s45, {WS_QF}")
    k(f"s_add_u32 s47, s93, {O_MB - SYNC_STEP}")
    k(f"s_add_u32 s48, s93, {O_HR - SYNC_STEP}")
    k(f"s_add_u32 s49, s93, {O_HS}")
    def kx_loads():
        for b in range(3):
            k(f"buffer_load_dwordx4 a[{KX+4*b}:{KX+4*b+3}], v19, s[8:11], s41 offen offset:{b*1024} sc1")
    ensure_clear(k, 's_ec0', 48, 's40')
    k("s_mov_b32 s62, -1"); k("s_mov_b32 s63, 1")
    ensure(k, 's_en0', 2, 10, 48)
    kx_loads()
    event(k, 2, 48)
    k("s_waitcnt lgkmcnt(0)")
    k(f"s_branch {k.ref('s_go')}")
    P0 = 48
    def px_tail(t0, t1):
        sum4x8(k, P0, 21, 5632)
        softmax8(k, P0, t0, t1, masks=64)
        k(f"buffer_store_dwordx4 v[{P0+8}:{P0+11}], v22, s[8:11], s42 offen sc1")
        k(f"s_add_u32 s42, s42, {SYNC_STEP}")
    k.lab('s_step')
    stamp(k, 0)
    for r in range(24): k(f"v_mov_b32 v{ACC+r}, 0")
    loads_ = [f"buffer_load_dwordx4 v[84:87], v7, s[8:11], s47 offen sc1",
              f"buffer_load_dwordx4 v[88:91], v7, s[8:11], s46 offen sc1",
              f"buffer_load_dwordx2 v[92:93], v8, s[8:11], s47 offen sc1"]
    k("s_add_u32 s46, s47, 4096")
    ensure_clear(k, 's_ec', 48, 's40')
    k("s_add_u32 s63, s40, 1")
    ensure(k, 's_en', 2, 10, 48)
    aprobe(k, 's_pr', 23, 's48', 9, [82, 83, 94, 95], CFG['pd_m'], CFG['pdep'], CFG['dly_m'])
    for l in loads_: k(l)
    kx_loads()
    px_tail(80, 81)
    shot_check(k, 's_pm', loads_, range(84, 94), 58, 4, CFG['sl_m'])
    o = 84
    stamp(k, 1)
    k(f"ds_write_b128 v7, v[{o}:{o+3}]")
    k(f"ds_write_b128 v7, v[{o+4}:{o+7}] offset:4096")
    k(f"ds_write_b64 v8, v[{o+8}:{o+9}]")
    k("s_waitcnt lgkmcnt(0)")
    k.lab('s_go2')
    k("s_barrier")
    lg = LG(k)
    def rdA(c): lg.issue(('A', c), f"ds_read_b128 v[{AF+4*(c%5)}:{AF+4*(c%5)+3}], v5 offset:{c*1024}")
    def rdW(c):
        b = WS5 + 8 * (c % 2)
        lg.issue(('W', c), f"ds_read_b128 v[{b}:{b+3}], v6 offset:{c*2048}")
        lg.issue(('W', c), f"ds_read_b128 v[{b+4}:{b+7}], v6 offset:{c*2048+1024}")
    rdA(0); rdW(0); rdA(1); rdW(1); rdA(2); rdA(3); rdA(4)
    for c in range(10):
        a = AF + 4 * (c % 5)
        lg.wait(('A', c))
        for t in range(5):
            kind, r = wreg(t, c)
            k(f"v_smfmac_f32_16x16x64_bf16 v[{ACC+4*t}:{ACC+4*t+3}], v[{a}:{a+3}], {kind}[{r}:{r+7}], v4")
        lg.wait(('W', c))
        b = WS5 + 8 * (c % 2)
        k(f"v_smfmac_f32_16x16x64_bf16 v[{ACC+20}:{ACC+23}], v[{a}:{a+3}], v[{b}:{b+7}], v4")
        if c + 2 < 10: rdW(c + 2)
        if c + 5 < 10: rdA(c + 5)
    stamp(k, 2)
    for b in range(3):
        k(f"buffer_load_dwordx4 v[{QX+4*b}:{QX+4*b+3}], v19, s[8:11], s45 offen offset:{b*1024} sc1")
    k("s_waitcnt vmcnt(3)")
    def s_hint(): ahint(k, 20, 0, 's49')
    if CFG['hs_pos'] == 2: s_hint()
    T = 48
    for t in range(3):
        q = ACC + 4 * t; kk = ACC + 12 + 4 * t
        for r in range(4): k(f"v_permlane32_swap_b32 v{q+r}, v{kk+r}")
        for r in range(4): k(f"v_add_f32 v{q+r}, v{q+r}, v{kk+r}")
        k(f"v_cvt_pk_bf16_f32 v{T+2*t}, v{q}, v{q+1}")
        k(f"v_cvt_pk_bf16_f32 v{T+2*t+1}, v{q+2}, v{q+3}")
        k(f"ds_write_b64 v9, v[{T+2*t}:{T+2*t+1}] offset:{t*512}")
    XA, XB = 24, 28
    k("s_waitcnt lgkmcnt(0)")
    k(f"ds_read_b64_tr_b16 v[{XA}:{XA+1}], v11")
    k(f"ds_read_b64_tr_b16 v[{XA+2}:{XA+3}], v11 offset:512")
    k(f"ds_read_b64_tr_b16 v[{XB}:{XB+1}], v11 offset:1024")
    k("s_waitcnt lgkmcnt(0)")
    SC = 64
    k(f"v_mfma_f32_16x16x32_bf16 v[{SC}:{SC+3}], a[{KX}:{KX+3}], v[{XA}:{XA+3}], 0")
    k(f"v_mfma_f32_16x16x32_bf16 v[{SC+4}:{SC+7}], a[{KX+4}:{KX+7}], v[{XA}:{XA+3}], 0")
    k(f"v_mfma_f32_16x16x32_bf16 v[{SC+8}:{SC+11}], v[{XA}:{XA+3}], v[{XA}:{XA+3}], 0")
    k(f"v_mfma_f32_16x16x16_bf16 v[{SC}:{SC+3}], a[{KX+8}:{KX+9}], v[{XB}:{XB+1}], v[{SC}:{SC+3}]")
    k(f"v_mfma_f32_16x16x16_bf16 v[{SC+4}:{SC+7}], a[{KX+10}:{KX+11}], v[{XB}:{XB+1}], v[{SC+4}:{SC+7}]")
    k(f"v_mfma_f32_16x16x16_bf16 v[{SC+8}:{SC+11}], v[{XB}:{XB+1}], v[{XB}:{XB+1}], v[{SC+8}:{SC+11}]")
    k(f"ds_write_b128 v12, v[{SC}:{SC+3}]")
    k(f"ds_write_b128 v12, v[{SC+4}:{SC+7}] offset:16")
    k(f"ds_write_b128 v13, v[{SC+8}:{SC+11}]")
    k("s_waitcnt lgkmcnt(0)")
    k("s_barrier")
    if CFG['hs_pos'] == 3: s_hint()
    stamp(k, 3)
    sum4x8(k, P0, 14, 1408)
    softmax8(k, P0, T0, T1)
    k(f"buffer_store_dwordx4 v[{P0+8}:{P0+11}], v15, s[8:11], s43 offen sc1")
    stamp(k, 4)
    sx = lambda kt, tt: (32 + (kt * 2 + tt) * 4) if (kt * 2 + tt) < 4 else (64 + ((kt * 2 + tt) - 4) * 4)
    k(f"s_waitcnt vmcnt(2)")
    keys32 = [f"a[{KX}:{KX+3}]", f"a[{KX+4}:{KX+7}]", f"v[{XA}:{XA+3}]"]
    keys16 = [f"a[{KX+8}:{KX+9}]", f"a[{KX+10}:{KX+11}]", f"v[{XB}:{XB+1}]"]
    for tt in range(2):
        for kt in range(3):
            a = sx(kt, tt)
            k(f"v_mfma_f32_16x16x32_bf16 v[{a}:{a+3}], {keys32[kt]}, v[{QX+4*tt}:{QX+4*tt+3}], 0")
    for tt in range(2):
        for kt in range(3):
            a = sx(kt, tt)
            k(f"v_mfma_f32_16x16x16_bf16 v[{a}:{a+3}], {keys16[kt]}, v[{QX+8+2*tt}:{QX+8+2*tt+1}], v[{a}:{a+3}]")
    for tt in range(2):
        k(f"ds_write_b128 v16, v[{sx(0,tt)}:{sx(0,tt)+3}] offset:{tt*2816}")
        k(f"ds_write_b128 v16, v[{sx(1,tt)}:{sx(1,tt)+3}] offset:{tt*2816+16}")
        k(f"ds_write_b128 v{17+tt}, v[{sx(2,tt)}:{sx(2,tt)+3}]")
    k("s_add_u32 s40, s40, 1")
    k(f"s_add_u32 s41, s41, {QF_SEG}")
    k(f"s_add_u32 s45, s45, {QF_SEG}")
    for sreg in ('s43', 's47', 's48', 's49'): k(f"s_add_u32 {sreg}, {sreg}, {SYNC_STEP}")
    k("s_waitcnt lgkmcnt(0)")
    k("s_barrier")
    stamp(k, 5)
    if CFG['stamp']:
        k("s_sub_u32 s40, s40, 1"); stamp_out(k, 6, 46); k("s_add_u32 s40, s40, 1")
    k("s_cmp_lt_u32 s40, 64")
    k(f"s_cbranch_scc1 {k.ref('s_step')}")
    px_tail(80, 81)
    event(k, 3, 48)
    next_layer(k, 's_layer')
    k.lab('s_go')
    for r in range(24): k(f"v_mov_b32 v{ACC+r}, 0")
    k("s_waitcnt vmcnt(0)")
    k(f"s_branch {k.ref('s_go2')}")

def role_V(k):
    L_M, L_V, L_WO, L_ST = 0, 10240, 16384, 16384 + 73728
    RS1, RS2 = 400, 656
    MA, VACC, VA, STG = 16, 56, 68, 80
    def wv(t, c): return 'a', t * 80 + c * 8
    def wo(t, c):
        i = t * 3 + c
        if i < 2: return 'a', 240 + 8 * i
        return 'v', 104 + 8 * (i - 2)
    k("s_sub_u32 s44, s2, 32")
    k.ptr(KA_WV, 6); k.ptr(KA_WO, 24); k.ptr(KA_MEM0, 26)
    k("s_waitcnt lgkmcnt(0)")
    k.srd(12, 6, D * HD * 2); k.srd(16, 24, D * HD * 2); k.srd(20, 26, 8 * 640 * 2)
    GO, LO, DAT = 4, 10, 24
    stage_offsets(k, 6, 24, HD * 2, RS1, L_ST, GO, LO, 16)
    tr_base(k, 16, RS1, L_ST, 17)
    k("s_mul_i32 s24, s3, 96")
    k("v_add_u32 v16, s24, v16")
    k(f"s_mul_i32 s45, s44, 384")
    def loads(c):
        d = DAT + 24 * (c % 3)
        k(f"s_add_u32 s46, s45, {c * 64 * HD * 2}")
        for i in range(6):
            k(f"buffer_load_dwordx4 v[{d+4*i}:{d+4*i+3}], v{GO+i}, s[12:15], s46 offen")
    loads(0); loads(1)
    for c in range(10):
        d = DAT + 24 * (c % 3)
        k(f"s_waitcnt vmcnt({6 if c + 1 < 10 else 0})")
        for i in range(6): k(f"ds_write_b128 v{LO+i}, v[{d+4*i}:{d+4*i+3}]")
        if c + 2 < 10: loads(c + 2)
        k("s_waitcnt lgkmcnt(0)")
        k("s_barrier")
        for t in range(3):
            kind, r = wv(t, c)
            tr_frag(k, r, kind, 16, RS1, 32 * t)
        k("s_waitcnt lgkmcnt(0)")
        k("s_barrier")
    GO, LO, DAT = 4, 14, 24
    stage_offsets(k, 10, 40, 1280, RS2, L_ST, GO, LO, 64)
    tr_base(k, 72, RS2, L_ST, 64)
    k("s_and_b32 s24, s3, 1"); k("s_mul_i32 s24, s24, 320")
    k("v_add_u32 v72, s24, v72")
    k("v_lshlrev_b32 v73, 4, v1")
    k(f"s_mul_i32 s24, s3, 18432"); k(f"s_add_u32 s24, s24, {L_WO}")
    k("v_add_u32 v73, s24, v73")
    k(f"s_mul_i32 s45, s44, {192*1280}")
    for c in range(3):
        for hf in range(2):
            k(f"s_add_u32 s46, s45, {c*64*1280 + hf*640}")
            for i in range(10):
                k(f"buffer_load_dwordx4 v[{DAT+4*i}:{DAT+4*i+3}], v{GO+i}, s[16:19], s46 offen")
            k("s_waitcnt vmcnt(0)")
            for i in range(10): k(f"ds_write_b128 v{LO+i}, v[{DAT+4*i}:{DAT+4*i+3}]")
            k("s_waitcnt lgkmcnt(0)")
            k("s_barrier")
            l = k.new('wo')
            k("s_lshr_b32 s24, s3, 1")
            k(f"s_cmp_eq_u32 s24, {hf}")
            k(f"s_cbranch_scc0 {k.ref(l)}")
            for t in range(10):
                if t < 7:
                    kind, r = wo(t, c)
                    tr_frag(k, r, kind, 72, RS2, 32 * t)
                else:
                    tr_frag(k, 64, 'v', 72, RS2, 32 * t)
                    k("s_waitcnt lgkmcnt(0)")
                    o = ((t - 7) * 3 + c) * 2048
                    k(f"ds_write_b128 v73, v[64:67] offset:{o}")
                    k(f"ds_write_b128 v73, v[68:71] offset:{o+1024}")
                    k("s_waitcnt lgkmcnt(0)")
            k("s_waitcnt lgkmcnt(0)")
            k.lab(l)
            k("s_barrier")
    k("v_mov_b32 v6, v73")
    k("v_mov_b32 v4, 0x4444"); k("v_mov_b32 v5, 0xeeee")
    k("v_cmp_gt_u32 vcc, 8, v2")
    k("v_cndmask_b32 v4, v5, v4, vcc")
    k("v_lshlrev_b32 v5, 4, v1")
    k("s_lshl_b32 s24, s3, 10")
    k("v_add_u32 v7, s24, v5")
    k("s_lshl_b32 s24, s3, 9"); k("s_add_u32 s24, s24, 8192")
    k("v_lshlrev_b32 v8, 3, v1")
    k("v_add_u32 v8, s24, v8")
    k("v_and_b32 v64, 7, v2"); k("v_lshlrev_b32 v9, 5, v64")
    k("v_lshrrev_b32 v64, 3, v2"); k("v_lshl_add_u32 v9, v64, 4, v9")
    k("v_and_b32 v64, 1, v3"); k("v_lshl_add_u32 v9, v64, 3, v9")
    k(f"s_mul_i32 s24, s3, 768"); k(f"s_add_u32 s24, s24, {L_V}")
    k("v_add_u32 v9, s24, v9")
    k("v_lshrrev_b32 v65, 1, v3")
    k("v_lshl_add_u32 v10, v65, 8, v9")
    k("v_lshrrev_b32 v64, 2, v2"); k("v_lshlrev_b32 v11, 5, v64")
    k("v_and_b32 v64, 3, v2"); k("v_lshl_add_u32 v11, v64, 3, v11")
    k("v_lshl_add_u32 v11, v3, 8, v11")
    k(f"v_add_u32 v11, {L_V}, v11")
    k("s_mul_i32 s24, s3, 10"); k("s_lshl_b32 s24, s24, 13"); k("s_lshl_b32 s25, s44, 8"); k("s_add_u32 s24, s24, s25")
    k("v_lshlrev_b32 v14, 13, v3")
    k("v_lshl_add_u32 v14, v2, 4, v14")
    k("v_add_u32 v14, s24, v14")
    k("v_lshrrev_b32 v64, 1, v3")
    k("v_lshlrev_b32 v15, 13, v64")
    k("v_lshl_add_u32 v15, v2, 4, v15")
    k("v_add_u32 v15, s24, v15")
    k(f"v_add_u32 v15, {8*8192}, v15")
    k("v_and_b32 v64, 1, v3")
    k("v_cmp_eq_u32 vcc, 0, v64")
    k(f"v_mov_b32 v64, {OOB}")
    k("v_cndmask_b32 v15, v64, v15, vcc")
    aprobe_addr(k, 12, 's2', RH_M)
    k("v_mov_b32 v0, 1")
    event(k, 1, 64)
    k.lab('v_layer')
    layer_bases(k)
    m0_image(k, 20, 64)
    k("s_mov_b32 s40, 0")
    k(f"s_add_u32 s43, s93, {O_VOM}")
    k(f"s_add_u32 s47, s93, {O_MB - SYNC_STEP}")
    k(f"s_add_u32 s45, s93, {O_HR - SYNC_STEP}")
    ensure_clear(k, 'v_ec0', 64, 's40')
    k("s_waitcnt lgkmcnt(0)")
    k(f"s_branch {k.ref('v_go2')}")
    k.lab('v_step')
    stamp(k, 0)
    loads_ = [f"buffer_load_dwordx4 v[68:71], v7, s[8:11], s47 offen sc1",
              f"buffer_load_dwordx4 v[72:75], v7, s[8:11], s48 offen sc1",
              f"buffer_load_dwordx2 v[76:77], v8, s[8:11], s47 offen sc1"]
    k("s_add_u32 s48, s47, 4096")
    ensure_clear(k, 'v_ec', 64, 's40')
    aprobe(k, 'v_pr', 12, 's45', 9, [80, 81, 82, 83], CFG['pd_m'], CFG['pdep'], CFG['dly_v'])
    stamp(k, 5)
    for l in loads_: k(l)
    shot_check(k, 'v_pm', loads_, range(68, 78), 26, 0, CFG['sl_m'])
    o = 68
    stamp(k, 1)
    k(f"ds_write_b128 v7, v[{o}:{o+3}]")
    k(f"ds_write_b128 v7, v[{o+4}:{o+7}] offset:4096")
    k(f"ds_write_b64 v8, v[{o+8}:{o+9}]")
    k("s_waitcnt lgkmcnt(0)")
    k.lab('v_go2')
    k("s_barrier")
    lg = LG(k)
    for c in range(10): lg.issue(('A', c), f"ds_read_b128 v[{MA+4*c}:{MA+4*c+3}], v5 offset:{c*1024}")
    for r in range(12): k(f"v_mov_b32 v{VACC+r}, 0")
    for c in range(10):
        lg.wait(('A', c))
        for t in range(3):
            kind, r = wv(t, c)
            k(f"v_smfmac_f32_16x16x64_bf16 v[{VACC+4*t}:{VACC+4*t+3}], v[{MA+4*c}:{MA+4*c+3}], {kind}[{r}:{r+7}], v4")
    def rdWo(t, c, slot):
        b = STG + 8 * slot; o = ((t - 7) * 3 + c) * 2048
        lg.issue(('W', t, c), f"ds_read_b128 v[{b}:{b+3}], v6 offset:{o}")
        lg.issue(('W', t, c), f"ds_read_b128 v[{b+4}:{b+7}], v6 offset:{o+1024}")
    for c in range(3): rdWo(7, c, c)
    stamp(k, 2)
    k("s_waitcnt vmcnt(0)")
    for r in range(40): k(f"v_mov_b32 v{MA+r}, 0")
    for r in range(4): k(f"v_permlane32_swap_b32 v{VACC+r}, v{VACC+4+r}")
    for r in range(4): k(f"v_add_f32 v{VACC+r}, v{VACC+r}, v{VACC+4+r}")
    k(f"v_cvt_pk_bf16_f32 v{VA}, v{VACC}, v{VACC+1}")
    k(f"v_cvt_pk_bf16_f32 v{VA+1}, v{VACC+2}, v{VACC+3}")
    for r in range(4): k(f"v_mov_b32 v{VACC+4+r}, v{VACC+8+r}")
    for r in range(4): k(f"v_permlane32_swap_b32 v{VACC+8+r}, v{VACC+4+r}")
    for r in range(4): k(f"v_add_f32 v{VACC+8+r}, v{VACC+8+r}, v{VACC+4+r}")
    k(f"v_cvt_pk_bf16_f32 v{VA+2}, v{VACC+8}, v{VACC+9}")
    k(f"v_cvt_pk_bf16_f32 v{VA+3}, v{VACC+10}, v{VACC+11}")
    lg.issue('x', f"ds_write_b64 v10, v[{VA}:{VA+1}]")
    lg.issue('x', f"ds_write_b64 v9, v[{VA+2}:{VA+3}] offset:512")
    lg.all()
    k("s_barrier")
    for c in range(3):
        lg.issue(('V', c), f"ds_read_b64_tr_b16 v[{VA+4*c}:{VA+4*c+1}], v11 offset:{c*1024}")
        lg.issue(('V', c), f"ds_read_b64_tr_b16 v[{VA+4*c+2}:{VA+4*c+3}], v11 offset:{c*1024+128}")
    stamp(k, 3)
    acc = lambda t: MA + 4 * t
    def mm(t, c, B):
        k(f"v_smfmac_f32_16x16x64_bf16 v[{acc(t)}:{acc(t)+3}], v[{VA+4*c}:{VA+4*c+3}], {B}, v4")
    def B_reg(t, c):
        kind, r = wo(t, c); return f"{kind}[{r}:{r+7}]"
    OUT = 56
    def epi(T, o):
        L = []
        t0, t1, t2, t3 = T
        for (x, y) in ((t0, t2), (t1, t3)):
            for r in range(4): L.append(f"v_permlane32_swap_b32 v{acc(x)+r}, v{acc(y)+r}")
            for r in range(4): L.append(f"v_add_f32 v{acc(x)+r}, v{acc(x)+r}, v{acc(y)+r}")
        L.append(f"v_cvt_pk_bf16_f32 v{o}, v{acc(t0)}, v{acc(t0)+1}")
        L.append(f"v_cvt_pk_bf16_f32 v{o+1}, v{acc(t0)+2}, v{acc(t0)+3}")
        L.append(f"v_cvt_pk_bf16_f32 v{o+2}, v{acc(t1)}, v{acc(t1)+1}")
        L.append(f"v_cvt_pk_bf16_f32 v{o+3}, v{acc(t1)+2}, v{acc(t1)+3}")
        L.append(f"v_permlane16_swap_b32 v{o}, v{o+2}")
        L.append(f"v_permlane16_swap_b32 v{o+1}, v{o+3}")
        for r in range(4): L.append(f"v_min_u32 v{o+r}, -2, v{o+r}")
        return L
    for c in range(3):
        lg.wait(('V', c))
        for t in range(4): mm(t, c, B_reg(t, c))
    for c in range(3):
        for t in (4, 5, 6): mm(t, c, B_reg(t, c))
        mm(7, c, f"v[{STG+8*c}:{STG+8*c+7}]")
        rdWo(8, c, c)
    for s_ in epi([0, 1, 2, 3], OUT): k(s_)
    k(f"buffer_store_dwordx4 v[{OUT}:{OUT+3}], v14, s[8:11], s43 offen sc1")
    for c in range(3):
        lg.wait(('W', 8, c))
        mm(8, c, f"v[{STG+8*c}:{STG+8*c+7}]")
        rdWo(9, c, c)
    for s_ in epi([4, 5, 6, 7], OUT + 4): k(s_)
    k("s_add_u32 s49, s43, 32768")
    k(f"buffer_store_dwordx4 v[{OUT+4}:{OUT+7}], v14, s[8:11], s49 offen sc1")
    for c in range(3):
        lg.wait(('W', 9, c))
        mm(9, c, f"v[{STG+8*c}:{STG+8*c+7}]")
    o = OUT + 8
    for r in range(4): k(f"v_permlane32_swap_b32 v{acc(8)+r}, v{acc(9)+r}")
    for r in range(4): k(f"v_add_f32 v{acc(8)+r}, v{acc(8)+r}, v{acc(9)+r}")
    k(f"v_cvt_pk_bf16_f32 v{o}, v{acc(8)}, v{acc(8)+1}")
    k(f"v_cvt_pk_bf16_f32 v{o+1}, v{acc(8)+2}, v{acc(8)+3}")
    k(f"v_mov_b32 v{o+2}, v{o}")
    k(f"v_mov_b32 v{o+3}, v{o+1}")
    k(f"v_permlane16_swap_b32 v{o}, v{o+2}")
    k(f"v_permlane16_swap_b32 v{o+1}, v{o+3}")
    for r in range(4): k(f"v_min_u32 v{o+r}, -2, v{o+r}")
    k(f"buffer_store_dwordx4 v[{o}:{o+3}], v15, s[8:11], s43 offen sc1")
    stamp(k, 4)
    stamp_out(k, 6, 46)
    k("s_add_u32 s40, s40, 1")
    for sreg in ('s43', 's47', 's45'): k(f"s_add_u32 {sreg}, {sreg}, {SYNC_STEP}")
    k("s_cmp_lt_u32 s40, 64")
    k(f"s_cbranch_scc1 {k.ref('v_step')}")
    event(k, 3, 64)
    next_layer(k, 'v_layer')

def role_R(k):
    BX, BN, PX, PM, VM, A1, A2 = 16, 48, 80, 96, 100, 108, 112
    TQ = 204
    k("s_sub_u32 s44, s2, 64")
    k("v_lshlrev_b32 v5, 4, v1")
    k("s_lshl_b32 s24, s44, 15"); k("s_lshl_b32 s25, s3, 13"); k("s_add_u32 s24, s24, s25")
    k("v_add_u32 v6, s24, v5")
    k("v_add_u32 v7, 4096, v6")
    k("s_lshl_b32 s24, s3, 12")
    k("v_add_u32 v8, s24, v5")
    k("s_lshl_b32 s24, s3, 10"); k("s_add_u32 s24, s24, 16384")
    k("v_add_u32 v9, s24, v5")
    k("s_lshl_b32 s24, s44, 13"); k("s_lshl_b32 s25, s3, 11"); k("s_add_u32 s24, s24, s25")
    k("v_add_u32 v10, s24, v5")
    k(f"v_and_b32 v{TQ}, 7, v2"); k(f"v_mul_u32_u24 v11, 80, v{TQ}")
    k("v_lshl_add_u32 v11, v3, 4, v11")
    k("s_mul_i32 s24, s3, 640")
    k("v_add_u32 v11, s24, v11")
    k(f"v_add_u32 v{TQ}, 8192, v5")
    k("v_cmp_gt_u32 vcc, 8, v2")
    k(f"v_cndmask_b32 v11, v{TQ}, v11, vcc")
    k(f"v_and_b32 v{TQ}, 7, v2"); k(f"v_mul_u32_u24 v12, 80, v{TQ}")
    k(f"v_lshrrev_b32 v{TQ}, 3, v2"); k(f"v_lshl_add_u32 v12, v{TQ}, 5, v12")
    k("v_lshlrev_b32 v13, 4, v2")
    k("s_lshl_b32 s24, s44, 8")
    k("v_add_u32 v13, s24, v13")
    k(f"v_mov_b32 v{TQ}, {OOB}")
    k(f"v_cmp_gt_u32 vcc, 1, v3")
    k(f"v_cndmask_b32 v13, v{TQ}, v13, vcc")
    k("v_cmp_le_u32 s[50:51], 8, v2")
    k("s_and_b32 s25, s44, 15"); k("s_lshr_b32 s25, s25, 2")
    k("s_sub_u32 s26, s44, 32"); k("s_lshr_b32 s26, s26, 1")
    k("s_cmp_ge_u32 s44, 32"); k("s_cselect_b32 s25, s26, s25")
    ahint_addr(k, 120, TQ, 's25', RH_M, False)
    aprobe_addr(k, 125, 's44', RH_P)
    k("v_mov_b32 v122, 12288")
    k("v_mov_b32 v123, 0")
    k("s_barrier")
    k("ds_write_b32 v122, v123")
    k("v_mov_b32 v123, 1")
    k("s_waitcnt lgkmcnt(0)")
    k("s_barrier")
    k.lab('r_layer')
    layer_bases(k)
    k("s_mov_b32 s40, 0")
    k(f"s_mov_b32 s41, {WS_VOX}")
    k(f"s_add_u32 s45, s93, {O_HS}")
    k(f"s_add_u32 s46, s93, {O_HR}")
    k(f"s_add_u32 s43, s93, {O_PB}")
    k(f"s_add_u32 s42, s93, {O_VOM}")
    k(f"s_add_u32 s47, s93, {O_MB}")
    def vox_loads():
        for q in range(4):
            k(f"buffer_load_dwordx4 v[{BN+4*q}:{BN+4*q+3}], v6, s[8:11], s41 offen offset:{q*1024} sc1")
        for q in range(4):
            k(f"buffer_load_dwordx4 v[{BN+16+4*q}:{BN+16+4*q+3}], v7, s[8:11], s41 offen offset:{q*1024} sc1")
        k(f"s_add_u32 s41, s41, {VOX_SEG}")
    k("v_and_b32 v252, 7, v1")
    k("v_lshlrev_b32 v252, 7, v252")
    k(f"s_lshl_b32 s24, s3, 10"); k(f"s_add_u32 s24, s24, {3*4096}"); k("s_add_u32 s24, s24, s94")
    k("v_add_u32 v252, s24, v252")
    k("s_mov_b32 s62, -1"); k("s_mov_b32 s63, 1")
    ensure(k, 'r_en0', 8, 252, 253)
    vox_loads()
    event(k, 2, 204)
    k.lab('r_step')
    k("s_waitcnt vmcnt(0)")
    for r in range(32): k(f"v_mov_b32 v{BX+r}, v{BN+r}")
    stamp(k, 0)
    loads_ = [f"buffer_load_dwordx4 v[{PX+4*q}:{PX+4*q+3}], v8, s[8:11], s43 offen offset:{q*1024} sc1" for q in range(4)]
    loads_ += [f"buffer_load_dwordx4 v[{PM}:{PM+3}], v9, s[8:11], s43 offen sc1"]
    loads_ += [f"buffer_load_dwordx4 v[{VM+4*q}:{VM+4*q+3}], v10, s[8:11], s42 offen offset:{q*1024} sc1" for q in range(2)]
    ensure_clear(k, 'r_ec', 253, 's40')
    aprobe(k, 'r_pr', 125, 's45', 7, [116, 117, 118, 119], CFG['pd_p'], CFG['pdep'], CFG['dly_p'])
    stamp(k, 4)
    loads_ = loads_[5:] + loads_[:5]
    for l in loads_: k(l)
    shot_check(k, 'r_p', loads_, range(PX, VM + 8), TQ, 0, CFG['sl_p'])
    k("s_mov_b64 exec, 1")
    k("ds_add_rtn_u32 v124, v122, v123")
    k("s_mov_b64 exec, -1")
    stamp(k, 1)
    k(f"v_mfma_f32_16x16x32_bf16 v[{A1}:{A1+3}], v[{VM}:{VM+3}], v[{PM}:{PM+3}], 0")
    k(f"v_mfma_f32_16x16x32_bf16 v[{A2}:{A2+3}], v[{VM+4}:{VM+7}], v[{PM}:{PM+3}], 0")
    for q in range(4):
        k(f"v_mfma_f32_16x16x32_bf16 v[{A1}:{A1+3}], v[{BX+8*q}:{BX+8*q+3}], v[{PX+4*q}:{PX+4*q+3}], v[{A1}:{A1+3}]")
        k(f"v_mfma_f32_16x16x32_bf16 v[{A2}:{A2+3}], v[{BX+8*q+4}:{BX+8*q+7}], v[{PX+4*q}:{PX+4*q+3}], v[{A2}:{A2+3}]")
        if q == 0:
            lh = k.new('nh')
            k("s_waitcnt lgkmcnt(0)")
            k("v_readfirstlane_b32 s24, v124")
            k("s_and_b32 s24, s24, 3")
            k("s_cmp_eq_u32 s24, 3")
            k(f"s_cbranch_scc0 {k.ref(lh)}")
            ahint(k, 120, 123, 's46')
            k.lab(lh)
    k("s_and_b32 s24, s40, 1"); k("s_mul_i32 s24, s24, 2560")
    k("v_add_u32 v14, s24, v11")
    k("v_add_u32 v15, s24, v12")
    for r in range(4): k(f"v_cndmask_b32 v{A1+r}, v{A1+r}, v{A2+r}, s[50:51]")
    for r in range(4): k(f"v_add_f32 v{A1+r}, v{A1+r}, v{A1+r} row_ror:8 row_mask:0xf bank_mask:0xf")
    k(f"ds_write_b128 v14, v[{A1}:{A1+3}]")
    k("s_waitcnt lgkmcnt(0)")
    k("s_barrier")
    stamp(k, 2)
    l = k.new('np')
    k("s_cmp_eq_u32 s3, 0")
    k(f"s_cbranch_scc0 {k.ref(l)}")
    Q0 = 220
    sum4x8(k, Q0, 15, 640)
    for q in range(4): k(f"v_cvt_pk_bf16_f32 v{Q0+8+q}, v{Q0+2*q}, v{Q0+2*q+1}")
    for q in range(4): k(f"v_min_u32 v{Q0+8+q}, -2, v{Q0+8+q}")
    k(f"buffer_store_dwordx4 v[{Q0+8}:{Q0+11}], v13, s[8:11], s47 offen sc1")
    k.lab(l)
    stamp(k, 3)
    k("s_add_u32 s63, s40, 2"); k("s_min_u32 s63, s63, 64")
    if CFG['dly_vox']: k(f"s_sleep {CFG['dly_vox']}")
    ensure(k, 'r_en', 8, 252, 253)
    vox_loads()
    stamp(k, 5)
    stamp_out(k, 6, TQ)
    k("s_add_u32 s40, s40, 1")
    for sreg in ('s42', 's43', 's47', 's45', 's46'): k(f"s_add_u32 {sreg}, {sreg}, {SYNC_STEP}")
    k("s_cmp_lt_u32 s40, 64")
    k(f"s_cbranch_scc1 {k.ref('r_step')}")
    k("s_waitcnt vmcnt(0)")
    event(k, 3, 204)
    next_layer(k, 'r_layer')
def flag_pub(k, val):
    l = k.new('fp')
    k("s_cmp_eq_u32 s3, 0")
    k(f"s_cbranch_scc0 {k.ref(l)}")
    k(f"v_mov_b32 v15, {val}")
    k("buffer_store_dword v15, v14, s[8:11], 0 offen sc1")
    k.lab(l)

def flag_addr(k, role_sreg_or_const):
    if isinstance(role_sreg_or_const, int): k(f"s_mov_b32 s24, {role_sreg_or_const * 4096}")
    else: k(f"s_lshl_b32 s24, {role_sreg_or_const}, 12")
    k("s_lshl_b32 s25, s44, 7"); k("s_add_u32 s24, s24, s25"); k(f"s_add_u32 s24, s24, s94")
    k("v_mov_b32 v14, s24")
    k(f"v_mov_b32 v15, {OOB}")
    k("v_cmp_eq_u32 vcc, 0, v1")
    k("v_cndmask_b32 v14, v15, v14, vcc")

X_L_O = 83968
def x_init(k):
    TQ = 192
    k("s_sub_u32 s70, s2, 104")
    k("s_mul_i32 s71, s70, 205"); k("s_lshr_b32 s71, s71, 12")
    k("s_mul_i32 s24, s71, 20"); k("s_sub_u32 s70, s70, s24")
    k("s_cmp_lt_u32 s71, 4"); k("s_cselect_b32 s64, s71, 64")
    k("s_lshl_b32 s24, s70, 16"); k("s_lshl_b32 s25, s3, 13"); k("s_add_u32 s24, s24, s25")
    k("v_add_u32 v240, s24, v5")
    k("v_add_u32 v241, 4096, v240")
    k("s_lshl_b32 s24, s70, 14"); k("s_lshl_b32 s25, s3, 11"); k("s_add_u32 s24, s24, s25")
    k("v_add_u32 v242, s24, v5")
    k("s_lshl_b32 s24, s3, 14")
    k(f"v_add_u32 v{TQ+1}, s24, v5")
    for jj in range(4): k(f"v_add_u32 v{212+jj}, {jj*4096}, v{TQ+1}")
    k("s_lshl_b32 s24, s3, 12"); k("s_add_u32 s24, s24, 65536")
    k("v_add_u32 v216, s24, v5")
    k(f"s_lshl_b32 s24, s3, 12"); k(f"s_add_u32 s24, s24, {X_L_O}")
    k("v_add_u32 v217, s24, v5")
    k(f"s_and_b32 s24, s3, 1"); k("s_lshl_b32 s24, s24, 10"); k(f"s_add_u32 s24, s24, {X_L_O}")
    k("v_add_u32 v218, s24, v5")
    k("s_and_b32 s24, s3, 1"); k("s_mul_i32 s24, s24, 20480"); k("s_lshl_b32 s25, s70, 10"); k("s_add_u32 s24, s24, s25")
    k("v_add_u32 v219, s24, v5")
    k("s_and_b32 s24, s3, 1"); k("s_lshl_b32 s24, s24, 4")
    k("v_add_u32 v243, s24, v2")
    k("v_mul_u32_u24 v243, 1280, v243")
    k("v_lshl_add_u32 v243, v3, 3, v243")
    k("s_lshl_b32 s24, s70, 6")
    k("v_add_u32 v243, s24, v243")
    k.ptr(KA_OUT, 26); k("s_waitcnt lgkmcnt(0)"); k.srd(12, 26, S * D * 2)
    k(f"s_mul_i32 s65, s71, {VOX_SEG}"); k(f"s_add_u32 s65, s65, {WS_VOX}")
    k(f"s_mul_i32 s24, s71, {SYNC_STEP}"); k("s_add_u32 s24, s24, s93")
    k(f"s_add_u32 s66, s24, {O_VOM}"); k(f"s_add_u32 s67, s24, {O_PX}")
    k(f"s_mul_i32 s68, s71, 40960")
    k("v_and_b32 v252, 7, v1")
    k("v_lshlrev_b32 v252, 7, v252")
    k(f"s_lshl_b32 s24, s3, 10"); k(f"s_add_u32 s24, s24, {3*4096}"); k("s_add_u32 s24, s24, s94")
    k("v_add_u32 v252, s24, v252")
    k("s_mov_b32 s69, -1")

def x_iter(k):
    BX, XP, XM, VM, OA, TQ, RES, Q0 = 16, 80, 144, 160, 176, 192, 196, 16
    k("s_add_u32 s63, s64, 1")
    ensure(k, 'x_en', 8, 252, 253, known='s69')
    ensure_clear(k, 'x_ec', 253, 's64')
    k("s_add_u32 s52, s65, 32768")
    for rr in range(2):
        so = 's65' if rr == 0 else 's52'
        for q in range(8):
            r = BX + rr * 32 + 4 * q
            k(f"buffer_load_dwordx4 v[{r}:{r+3}], v{240 + q//4}, s[8:11], {so} offen offset:{(q%4)*1024} sc1")
    k("s_add_u32 s24, s68, s73")
    k(f"buffer_load_dwordx4 v[{RES}:{RES+3}], v219, s[8:11], s24 offen sc1")
    loads_ = []
    for j in range(8):
        for tt in range(2):
            r = XP + (j * 2 + tt) * 4
            loads_.append(f"buffer_load_dwordx4 v[{r}:{r+3}], v{212 + j//2}, s[8:11], s67 offen offset:{(j%2)*2048 + tt*1024} sc1")
    for q in range(2):
        for tt in range(2):
            r = XM + (q * 2 + tt) * 4
            loads_.append(f"buffer_load_dwordx4 v[{r}:{r+3}], v216, s[8:11], s67 offen offset:{q*2048 + tt*1024} sc1")
    poll(k, 'x_p0', loads_[15:16], range(XP + 60, XP + 64), TQ, CFG['sl_x0'], 0)
    poll(k, 'x_p1', loads_, range(XP, XM + 16), TQ, CFG['sl_x'], 0)
    k("s_add_u32 s53, s66, 8192")
    loads_ = []
    for rr in range(2):
        so = 's66' if rr == 0 else 's53'
        for q in range(2):
            r = VM + rr * 8 + 4 * q
            loads_.append(f"buffer_load_dwordx4 v[{r}:{r+3}], v242, s[8:11], {so} offen offset:{q*1024} sc1")
    poll(k, 'x_v', loads_, range(VM, VM + 16), TQ, CFG['sl_x'], 0)
    oa = lambda rr, tt: OA + (rr * 2 + tt) * 4
    for j in range(8):
        for rr in range(2):
            for tt in range(2):
                a = oa(rr, tt); r = XP + (j * 2 + tt) * 4; b = BX + rr * 32 + 4 * j
                c = f"v[{a}:{a+3}]" if j else "0"
                k(f"v_mfma_f32_16x16x32_bf16 v[{a}:{a+3}], v[{b}:{b+3}], v[{r}:{r+3}], {c}")
    for q in range(2):
        for rr in range(2):
            for tt in range(2):
                a = oa(rr, tt); b = VM + rr * 8 + 4 * q; r = XM + (q * 2 + tt) * 4
                k(f"v_mfma_f32_16x16x32_bf16 v[{a}:{a+3}], v[{b}:{b+3}], v[{r}:{r+3}], v[{a}:{a+3}]")
    for t in range(4): k(f"ds_write_b128 v217, v[{OA+4*t}:{OA+4*t+3}] offset:{t*1024}")
    k("s_waitcnt lgkmcnt(0)")
    k("s_barrier")
    lskip = k.new('xs')
    k("s_cmp_ge_u32 s3, 2"); k(f"s_cbranch_scc1 {k.ref(lskip)}")
    for rr in range(2):
        for w in range(4): k(f"ds_read_b128 v[{Q0+16*rr+4*w}:{Q0+16*rr+4*w+3}], v218 offset:{w*4096 + rr*2048}")
    O = 48
    for rr in range(2):
        q = Q0 + 16 * rr
        k(f"s_waitcnt lgkmcnt({4 if rr == 0 else 0})")
        for r in range(0, 4, 2):
            k(f"v_pk_add_f32 v[{q+r}:{q+r+1}], v[{q+r}:{q+r+1}], v[{q+4+r}:{q+4+r+1}]")
            k(f"v_pk_add_f32 v[{q+8+r}:{q+8+r+1}], v[{q+8+r}:{q+8+r+1}], v[{q+12+r}:{q+12+r+1}]")
        for r in range(0, 4, 2):
            k(f"v_pk_add_f32 v[{q+r}:{q+r+1}], v[{q+r}:{q+r+1}], v[{q+8+r}:{q+8+r+1}]")
        k(f"v_cvt_pk_bf16_f32 v{q+4}, v{q}, v{q+1}")
        k(f"v_cvt_pk_bf16_f32 v{q+5}, v{q+2}, v{q+3}")
        for h in range(2):
            k(f"v_lshlrev_b32 v{q}, 16, v{q+4+h}")
            k(f"v_and_b32 v{q+1}, 0xffff0000, v{q+4+h}")
            k(f"v_lshlrev_b32 v{q+6}, 16, v{RES+2*rr+h}")
            k(f"v_and_b32 v{q+7}, 0xffff0000, v{RES+2*rr+h}")
            k(f"v_pk_add_f32 v[{q}:{q+1}], v[{q}:{q+1}], v[{q+6}:{q+7}]")
            k(f"v_cvt_pk_bf16_f32 v{O+2*rr+h}, v{q}, v{q+1}")
    l1 = k.new('xo')
    k("s_cmp_eq_u32 s92, 0"); k(f"s_cbranch_scc0 {k.ref(l1)}")
    k(f"s_add_u32 s24, s68, {A.WS_XF2}")
    k(f"buffer_store_dwordx4 v[{O}:{O+3}], v219, s[8:11], s24 offen sc1")
    k(f"s_branch {k.ref(lskip)}")
    k.lab(l1)
    k(f"buffer_store_dwordx2 v[{O}:{O+1}], v243, s[12:15], s68 offen")
    k(f"buffer_store_dwordx2 v[{O+2}:{O+3}], v243, s[12:15], s68 offen offset:32")
    k.lab(lskip)
    k("s_waitcnt vmcnt(0)")
    k("s_barrier")
    l2 = k.new('xp')
    k("s_cmp_eq_u32 s92, 0"); k(f"s_cbranch_scc0 {k.ref(l2)}")
    k("s_lshl_b32 s24, s71, 7"); k("s_lshl_b32 s25, s70, 2"); k("s_add_u32 s24, s24, s25"); k(f"s_add_u32 s24, s24, {WS_FLG + F_X}")
    k("s_lshr_b32 s25, s64, 2"); k("s_add_u32 s25, s25, 1")
    pub_dword(k, 's24', 's25', 244)
    k.lab(l2)
    k("s_add_u32 s64, s64, 4")
    k(f"s_add_u32 s65, s65, {4*VOX_SEG}")
    k(f"s_add_u32 s66, s66, {4*SYNC_STEP}")
    k(f"s_add_u32 s67, s67, {4*SYNC_STEP}")
    k(f"s_add_u32 s68, s68, {4*40960}")

def role_P(k):
    RS, L_ST, L_PS = 400, 81920, 81920
    XPRE, BF, ACC, OUT, TMP, ST, CS, ONE = 16, 56, 88, 112, 124, 132, 224, 236
    k("s_sub_u32 s44, s2, 104")
    k("s_lshr_b32 s46, s44, 5")
    k("s_and_b32 s44, s44, 31")
    k.ptr(KA_WQ, 6); k.ptr(KA_WK, 24); k.ptr(KA_WV, 26)
    k("s_waitcnt lgkmcnt(0)")
    k("s_cmp_eq_u32 s46, 1"); k("s_cselect_b32 s6, s24, s6"); k("s_cselect_b32 s7, s25, s7")
    k("s_cmp_eq_u32 s46, 2"); k("s_cselect_b32 s6, s26, s6"); k("s_cselect_b32 s7, s27, s7")
    k.srd(12, 6, D * HD * 2)
    GO, LO, DAT = 4, 10, 56
    stage_offsets(k, 6, 24, HD * 2, RS, L_ST, GO, LO, 16)
    k("v_lshrrev_b32 v16, 2, v2")
    k("v_lshl_add_u32 v16, v3, 2, v16")
    k(f"v_mul_u32_u24 v32, {RS}, v16")
    k("v_and_b32 v16, 3, v2")
    k("v_lshl_add_u32 v32, v16, 3, v32")
    k(f"s_mul_i32 s24, s3, 96"); k(f"s_add_u32 s24, s24, {L_ST}")
    k("v_add_u32 v32, s24, v32")
    k("s_mul_i32 s45, s44, 384")
    def loads(c):
        d = DAT + 24 * (c % 8)
        k(f"s_add_u32 s47, s45, {c * 64 * HD * 2}")
        for i in range(6):
            k(f"buffer_load_dwordx4 v[{d+4*i}:{d+4*i+3}], v{GO+i}, s[12:15], s47 offen")
    for c in range(8): loads(c)
    C0, O0 = 16, 28
    for r in range(4): k(f"v_mov_b32 v{O0+r}, 0x3f803f80")
    def cs_mfma(c):
        for jj in range(2):
            j = 2 * c + jj
            for t in range(3):
                w = (t * 20 + j) * 4; cc = f"v[{C0+4*t}:{C0+4*t+3}]"
                k(f"v_mfma_f32_16x16x32_bf16 {cc}, a[{w}:{w+3}], v[{O0}:{O0+3}], {cc if j else 0}")
    waits = [42, 42, 42, 36, 30, 24, 18, 12, 6, 0]
    for c in range(10):
        d = DAT + 24 * (c % 8)
        k(f"s_waitcnt vmcnt({waits[c]})")
        for i in range(6): k(f"ds_write_b128 v{LO+i}, v[{d+4*i}:{d+4*i+3}] offset:{(c%2)*25600}")
        k("s_waitcnt lgkmcnt(0)")
        if c < 2: loads(c + 8)
        if c > 0: cs_mfma(c - 1)
        k("s_barrier")
        for t in range(3):
            for jj in range(2):
                r = (t * 20 + 2 * c + jj) * 4
                for hf in range(2):
                    k(f"ds_read_b64_tr_b16 a[{r+2*hf}:{r+2*hf+1}], v32 offset:{(c%2)*25600 + (32*jj + 16*hf)*RS + 32*t}")
    k("s_waitcnt lgkmcnt(0)")
    cs_mfma(9)
    for r in range(12): k(f"v_mov_b32 v{CS+r}, v{C0+r}")
    for r in range(4): k(f"v_mov_b32 v{ONE+r}, v{O0+r}")
    k("s_barrier")
    event(k, 1, 16)
    k.lab('p_layer')
    layer_bases(k)
    k("s_sub_u32 s44, s2, 104")
    k("s_lshr_b32 s46, s44, 5")
    k("s_and_b32 s44, s44, 31")
    k(f"s_mov_b32 s43, {WS_QF}")
    k("s_cmp_eq_u32 s46, 1"); k(f"s_cselect_b32 s43, {WS_KF}, s43")
    k("s_cmp_eq_u32 s46, 2"); k(f"s_cselect_b32 s43, {WS_VF}, s43")
    k("s_cmp_eq_u32 s92, 0"); k(f"s_cselect_b32 s73, {A.WS_XF1}, {A.WS_XF3}")
    k("v_lshlrev_b32 v5, 4, v1")
    k("s_mul_i32 s24, s3, 10240")
    k("v_add_u32 v6, s24, v5")
    k("v_add_u32 v7, 4096, v6"); k("v_add_u32 v8, 8192, v6")
    k("s_mul_i32 s24, s44, 12288"); k("s_mul_i32 s25, s3, 3072"); k("s_add_u32 s24, s24, s25")
    k("v_add_u32 v11, s24, v5")
    k("s_lshr_b32 s24, s3, 1"); k("s_lshl_b32 s24, s24, 8"); k("s_and_b32 s25, s3, 1"); k("s_lshl_b32 s25, s25, 3")
    k("s_add_u32 s24, s24, s25"); k(f"s_add_u32 s24, s24, {L_PS}")
    k("v_lshlrev_b32 v13, 4, v2")
    k("v_add_u32 v12, s24, v13")
    k(f"v_add_u32 v13, {L_PS}, v13")
    k("s_and_b32 s24, s2, 7"); k("s_lshl_b32 s24, s24, 7"); k("s_lshl_b32 s25, s92, 10"); k("s_add_u32 s24, s24, s25")
    k(f"s_add_u32 s24, s24, {WS_FLG + F_K3}")
    k("v_lshlrev_b32 v4, 2, v1"); k("v_add_u32 v4, s24, v4")
    flag_addr(k, 's46')
    x_init(k)
    def xloads():
        for i in range(10):
            k(f"buffer_load_dwordx4 v[{XPRE+4*i}:{XPRE+4*i+3}], v{6 + i//4}, s[8:11], s41 offen offset:{(i%4)*1024} sc1")
    def xstage(wbase, psw):
        row_stats_partial(k, XPRE, 40, TMP, TMP + 1, ONE, TMP + 2)
        for i in range(10): k(f"ds_write_b128 v{wbase}, v[{XPRE+4*i}:{XPRE+4*i+3}] offset:{i*1024}")
        k(f"ds_write_b64 v{psw}, v[{TMP}:{TMP+1}]")
    k("s_mov_b32 s62, -1"); k("s_mov_b32 s63, 1")
    ensure(k, 'p_en0', 20, 4, 16)
    k("s_mov_b32 s41, s73")
    xloads()
    k("s_mov_b32 s40, 0")
    k("s_mov_b32 s42, 0")
    k("s_waitcnt vmcnt(0)")
    xstage(6, 12)
    k("s_waitcnt lgkmcnt(0)")
    k("s_barrier")
    event(k, 2, 16)
    k.lab('p_seg')
    k("v_add_u32 v9, s42, v5")
    k("s_xor_b32 s42, s42, 40960")
    k("v_add_u32 v10, s42, v6")
    k("s_add_u32 s63, s40, 1"); k("s_lshr_b32 s63, s63, 2"); k("s_add_u32 s63, s63, 1"); k("s_min_u32 s63, s63, 16")
    ensure(k, 'p_en', 20, 4, 16)
    k("s_add_u32 s41, s41, 40960")
    xloads()
    k("s_and_b32 s24, s40, 1"); k("s_lshl_b32 s24, s24, 9")
    k(f"v_add_u32 v{TMP}, s24, v13")
    lg = LG(k)
    lg.issue('ps', f"ds_read_b128 v[{OUT}:{OUT+3}], v{TMP}")
    lg.issue('ps', f"ds_read_b128 v[{OUT+4}:{OUT+7}], v{TMP} offset:256")
    def rd(j):
        for tt in range(2):
            r = BF + ((j % 4) * 2 + tt) * 4
            lg.issue(j, f"ds_read_b128 v[{r}:{r+3}], v9 offset:{tt*20480 + j*1024}")
    rd(0); rd(1); rd(2)
    lg.wait('ps')
    row_stats_final(k, OUT, ST)
    row_stats_final(k, OUT + 4, ST + 2)
    for j in range(20):
        if j + 3 < 20: rd(j + 3)
        lg.wait(j)
        for tt in range(2):
            r = BF + ((j % 4) * 2 + tt) * 4
            for t in range(3):
                a = ACC + (tt * 3 + t) * 4; w = (t * 20 + j) * 4
                c = f"v[{a}:{a+3}]" if j else "0"
                k(f"v_mfma_f32_16x16x32_bf16 v[{a}:{a+3}], a[{w}:{w+3}], v[{r}:{r+3}], {c}")
        if j == 9:
            k("s_waitcnt vmcnt(10)")
            k("s_barrier")
            flag_pub(k, 's40')
    acc = lambda tt, t: ACC + (tt * 3 + t) * 4
    for tt in range(2):
        for t in range(3): ln_fold(k, acc(tt, t), CS + 4 * t, ST + 2 * tt, TMP)
    for o, (tt, t) in enumerate([(0, 0), (0, 1), (1, 0), (1, 1), (0, 2), (1, 2)]):
        a = acc(tt, t)
        k(f"v_cvt_pk_bf16_f32 v{OUT+2*o}, v{a}, v{a+1}")
        k(f"v_cvt_pk_bf16_f32 v{OUT+2*o+1}, v{a+2}, v{a+3}")
    for b in range(3):
        k(f"buffer_store_dwordx4 v[{OUT+4*b}:{OUT+4*b+3}], v11, s[8:11], s43 offen offset:{b*1024} sc1")
    k("s_add_u32 s40, s40, 1")
    k("s_and_b32 s24, s40, 1"); k("s_lshl_b32 s24, s24, 9")
    k(f"v_add_u32 v9, s24, v12")
    k("s_waitcnt vmcnt(3)")
    xstage(10, 9)
    k(f"s_add_u32 s43, s43, {QF_SEG}")
    k("s_waitcnt lgkmcnt(0)")
    k("s_barrier")
    k.lab('p_next')
    k("s_cmp_lt_u32 s40, 2"); k(f"s_cbranch_scc1 {k.ref('p_pub')}")
    k(f"s_add_u32 s24, s64, {CFG['xlag']}"); k("s_cmp_le_u32 s24, s40"); k(f"s_cbranch_scc1 {k.ref('p_pub')}")
    k("s_cmp_lt_u32 s40, 64"); k(f"s_cbranch_scc1 {k.ref('p_seg')}")
    k.lab('p_pub')
    k("s_waitcnt vmcnt(0)")
    k("s_barrier")
    flag_pub(k, 's40')
    k(f"s_add_u32 s24, s64, {CFG['xlag']}"); k("s_cmp_le_u32 s24, s40"); k(f"s_cbranch_scc1 {k.ref('p_x')}")
    k("s_cmp_lt_u32 s40, 64"); k(f"s_cbranch_scc1 {k.ref('p_seg')}")
    k("s_cmp_ge_u32 s64, 64"); k(f"s_cbranch_scc1 {k.ref('p_done')}")
    k.lab('p_x')
    x_iter(k)
    k(f"s_branch {k.ref('p_next')}")
    k.lab('p_done')
    event(k, 3, 16)
    next_layer(k, 'p_layer')

def role_O(k):
    RS = 1312
    VFa, VFb, ACC, OUT = 16, 64, 112, 192
    k("s_sub_u32 s44, s2, 200")
    k.ptr(KA_WO, 6)
    k("s_waitcnt lgkmcnt(0)")
    k.srd(12, 6, D * HD * 2)
    LO, D0, D1 = 16, 48, 168
    for i in range(30):
        k(f"v_add_u32 v8, {256*i}, v0")
        divmod_const(k, 9, 10, 8, 80, 256 * 30, 24)
        k(f"v_mul_u32_u24 v{LO+i}, {RS}, v9")
        k(f"v_lshl_add_u32 v{LO+i}, v10, 4, v{LO+i}")
    k("v_lshlrev_b32 v4, 4, v0")
    k(f"s_mul_i32 s45, s44, {192*1280}")
    dat = lambda b, i: (D0 + 4 * i) if b == 0 else ((D1 + 4 * i) if i < 22 else (D0 + 4 * (i - 22)))
    def ld(b, i):
        k(f"s_add_u32 s46, s45, {b*96*1280 + i*4096}")
        d = dat(b, i)
        k(f"buffer_load_dwordx4 v[{d}:{d+3}], v4, s[12:15], s46 offen")
    for i in range(30): ld(0, i)
    for i in range(22): ld(1, i)
    k("v_lshrrev_b32 v8, 2, v2")
    k("v_lshl_add_u32 v8, v3, 2, v8")
    k(f"v_mul_u32_u24 v5, {RS}, v8")
    k("v_and_b32 v8, 3, v2")
    k("v_lshl_add_u32 v5, v8, 3, v5")
    k("s_mul_i32 s24, s3, 320")
    k("v_add_u32 v5, s24, v5")
    k(f"v_add_u32 v6, {48*RS}, v5")
    for b in range(2):
        k(f"s_waitcnt vmcnt({22 if b == 0 else 0})")
        for i in range(30):
            d = dat(b, i)
            k(f"ds_write_b128 v{LO+i}, v[{d}:{d+3}]")
        k("s_waitcnt lgkmcnt(0)")
        if b == 0:
            for i in range(22, 30): ld(1, i)
        k("s_barrier")
        for t in range(10):
            def tr(ks, hf, base, row):
                r = (t * 6 + ks) * 4 + 2 * hf
                k(f"ds_read_b64_tr_b16 a[{r}:{r+1}], v{base} offset:{row*RS + 32*t}")
            tr(2*b, 0, 5, 0); tr(2*b, 1, 5, 16)
            tr(2*b+1, 0, 6, 0); tr(2*b+1, 1, 6, 16)
            tr(4+b, 0, 5, 32); tr(4+b, 1, 6, 32)
        k("s_waitcnt lgkmcnt(0)")
        k("s_barrier")
    k("v_lshlrev_b32 v5, 4, v1")
    k("s_mul_i32 s24, s44, 12288")
    k("v_add_u32 v6, s24, v5")
    k("v_add_u32 v7, 4096, v6"); k("v_add_u32 v8, 8192, v6")
    k(f"s_mul_i32 s24, s3, {10*32768}"); k("s_lshl_b32 s25, s44, 10"); k("s_add_u32 s24, s24, s25")
    k("v_add_u32 v9, s24, v5")
    event(k, 1, 16)
    k.lab('o_layer')
    layer_bases(k)
    flag_addr(k, 3)
    k(f"s_lshl_b32 s24, s44, 7"); k(f"s_add_u32 s24, s24, {2*4096}"); k("s_add_u32 s24, s24, s94")
    k("v_mov_b32 v10, s24")
    k(f"s_mov_b32 s41, {WS_VF}")
    k(f"s_mov_b32 s43, {WS_VOX}")
    k("s_mov_b32 s40, 0")
    def vloads(V):
        for i in range(12):
            k(f"buffer_load_dwordx4 v[{V+4*i}:{V+4*i+3}], v{6 + i//4}, s[8:11], s41 offen offset:{(i%4)*1024} sc1")
        k(f"s_add_u32 s41, s41, {QF_SEG}")
    k("s_mov_b32 s62, -1"); k("s_mov_b32 s63, 1")
    ensure(k, 'o_en0', 1, 10, 11)
    vloads(VFa)
    k("s_waitcnt vmcnt(0)")
    event(k, 2, 240)
    k.lab('o_seg')
    for par, (V, VN) in enumerate(((VFa, VFb), (VFb, VFa))):
        for p in range(2):
            X = V + (6 * p + 2) * 4; Y = V + (6 * p + 5) * 4
            k(f"v_swap_b32 v{X+2}, v{Y}"); k(f"v_swap_b32 v{X+3}, v{Y+1}")
        def frag(tt, ks):
            if ks < 4: return V + (3 * ks + tt) * 4
            p = ks - 4
            return V + (6 * p + 2) * 4 if tt == 0 else V + (6 * p + 5) * 4
        def nxt(tag):
            k("s_add_u32 s63, s40, 2"); k("s_min_u32 s63, s63, 64")
            ensure(k, tag, 1, 10, 11)
            vloads(VN)
        for ks in range(6):
            for t in range(10):
                for tt in range(2):
                    a = ACC + (t * 2 + tt) * 4; w = (t * 6 + ks) * 4; f = frag(tt, ks)
                    c = f"v[{a}:{a+3}]" if ks else "0"
                    k(f"v_mfma_f32_16x16x32_bf16 v[{a}:{a+3}], v[{f}:{f+3}], a[{w}:{w+3}], {c}")
            if ks == 2:
                lf = k.new('of')
                if par == 0:
                    k("s_cmp_eq_u32 s40, 0"); k(f"s_cbranch_scc1 {k.ref(lf)}")
                k("s_waitcnt vmcnt(0)")
                k("s_barrier")
                flag_pub(k, 's40')
                nxt(f'o_en{par+1}')
                k.lab(lf)
        k("s_mov_b32 s46, s43")
        for t in range(10):
            o = OUT + 4 * t
            for tt in range(2):
                a = ACC + (t * 2 + tt) * 4
                k(f"v_cvt_pk_bf16_f32 v{o+2*tt}, v{a}, v{a+1}")
                k(f"v_cvt_pk_bf16_f32 v{o+2*tt+1}, v{a+2}, v{a+3}")
            k(f"buffer_store_dwordx4 v[{o}:{o+3}], v9, s[8:11], s46 offen sc1")
            if t < 9: k("s_add_u32 s46, s46, 32768")
        if par == 0:
            lf = k.new('of')
            k("s_cmp_eq_u32 s40, 0"); k(f"s_cbranch_scc0 {k.ref(lf)}")
            k("s_waitcnt vmcnt(0)")
            k("s_barrier")
            flag_pub(k, 1)
            nxt('o_en3')
            k("s_waitcnt vmcnt(0)")
            k.lab(lf)
        k("s_waitcnt vmcnt(10)")
        k("s_add_u32 s40, s40, 1")
        k(f"s_add_u32 s43, s43, {VOX_SEG}")
    k("s_cmp_lt_u32 s40, 64")
    k(f"s_cbranch_scc1 {k.ref('o_seg')}")
    k("s_waitcnt vmcnt(0)")
    k("s_barrier")
    flag_pub(k, 's40')
    event(k, 3, 240)
    next_layer(k, 'o_layer')
class Hooks(A.NoHooks):
    def k1_wait_x(self, k):
        k("s_and_b32 s24, s48, 3"); k("s_lshl_b32 s24, s24, 7"); k(f"s_add_u32 s24, s24, {WS_FLG + F_X}")
        k("v_lshlrev_b32 v15, 2, v1"); k("v_add_u32 v15, s24, v15")
        k("s_lshr_b32 s95, s48, 2"); k("s_add_u32 s95, s95, 1")
        wait_all(k, 'k1_wx', 20, 14, 's95', sleep=4)
    def k1_first_barrier(self, k):
        l = k.new('fb')
        k("s_cmp_eq_u32 s2, 255"); k(f"s_cbranch_scc0 {k.ref(l)}")
        k("s_cmp_eq_u32 s92, 0"); k(f"s_cbranch_scc0 {k.ref(l)}")
        k("s_cmp_eq_u32 s3, 0"); k(f"s_cbranch_scc0 {k.ref(l)}")
        k(f"v_mov_b32 v154, {OOB}"); k("v_cmp_eq_u32 vcc, 0, v1"); k("v_cndmask_b32 v154, v154, 0, vcc")
        k("v_mov_b32 v155, 1")
        k("buffer_store_dword v155, v154, s[72:75], 0 offen sc1")
        k.lab(l)
    def k1_ready_issue(self, k):
        l = k.new('ri')
        k("s_cmp_eq_u32 s92, 0"); k(f"s_cbranch_scc0 {k.ref(l)}")
        k("v_mov_b32 v15, 0")
        k("buffer_load_dword v14, v15, s[72:75], 0 offen sc1")
        k.lab(l)
    def k1_ready_check(self, k):
        l = k.new('rc')
        k("s_cmp_eq_u32 s92, 0"); k(f"s_cbranch_scc0 {k.ref(l + '_ok')}")
        k("s_mov_b32 s61, 0")
        k.lab(l)
        k("s_waitcnt vmcnt(0)")
        k("v_readfirstlane_b32 s24, v14")
        k("s_cmp_eq_u32 s24, 1"); k(f"s_cbranch_scc1 {k.ref(l + '_ok')}")
        k("s_add_u32 s61, s61, 1"); k("s_cmp_ge_u32 s61, s60"); k(f"s_cbranch_scc1 {k.ref(l + '_to')}")
        k("s_sleep 2")
        k("v_mov_b32 v15, 0")
        k("buffer_load_dword v14, v15, s[72:75], 0 offen sc1")
        k(f"s_branch {k.ref(l)}")
        k.lab(l + '_to')
        k("s_mov_b32 s60, 1")
        k.lab(l + '_ok')
    def k1_publish(self, k):
        k("s_lshl_b32 s24, s92, 3"); k("s_add_u32 s24, s24, s44"); k("s_lshl_b32 s24, s24, 7")
        k("s_lshl_b32 s25, s45, 2"); k("s_add_u32 s24, s24, s25"); k(f"s_add_u32 s24, s24, {WS_FLG + F_K1}")
        pub_dword(k, 's24', 1, 14)
    def k2_wait(self, k):
        k("s_lshl_b32 s24, s92, 3"); k("s_add_u32 s24, s24, s44"); k("s_lshl_b32 s24, s24, 7"); k(f"s_add_u32 s24, s24, {WS_FLG + F_K1}")
        k("v_lshlrev_b32 v15, 2, v1"); k("v_add_u32 v15, s24, v15")
        k("s_cmp_eq_u32 s92, 0"); k("s_cselect_b32 s26, -1, 3")
        wait_all(k, 'k2_w', 's26', 14, 1, sleep=2)
    def k2_publish(self, k):
        k("s_lshl_b32 s24, s92, 7"); k("s_sub_u32 s25, s2, 232"); k("s_lshl_b32 s25, s25, 2"); k("s_add_u32 s24, s24, s25")
        k(f"s_add_u32 s24, s24, {WS_FLG + F_K2}")
        pub_dword(k, 's24', 1, 14)
    def k3_wait(self, k):
        k("s_lshl_b32 s24, s92, 7"); k(f"s_add_u32 s24, s24, {WS_FLG + F_K2}")
        k("v_lshlrev_b32 v15, 2, v1"); k("v_add_u32 v15, s24, v15")
        wait_all(k, 'k3_w', 24, 14, 1, sleep=2)
    def k3_publish(self, k, last):
        k("s_lshl_b32 s24, s92, 10"); k("s_sub_u32 s25, s2, 232"); k("s_lshl_b32 s25, s25, 2"); k("s_add_u32 s24, s24, s25")
        k(f"s_add_u32 s24, s24, {WS_FLG + F_K3}")
        pub_dword(k, 's24', 's40', 14, copies=8)

def role_clear(k):
    k("s_sub_u32 s44, s2, 252")
    k("s_lshl_b32 s24, s44, 2"); k("s_add_u32 s24, s24, s3"); k(f"s_mul_i32 s24, s24, {28*1024}"); k(f"s_add_u32 s41, s24, {WS_SYNC}")
    k("v_lshlrev_b32 v5, 4, v1")
    k("v_add_u32 v6, 4096, v5")
    for r in range(4): k(f"v_mov_b32 v{8+r}, -1")
    k("s_lshl_b32 s24, s44, 2"); k(f"s_add_u32 s42, s24, {WS_FLG + F_C}")
    k("s_mov_b32 s40, 0")
    k.lab('clr_blk')
    k("s_mov_b32 s43, s41")
    for i in range(7):
        for q in range(4):
            k(f"buffer_store_dwordx4 v[8:11], v5, s[8:11], s43 offen offset:{q*1024} {CFG['clr_mod']}")
        if i < 6: k("s_add_u32 s43, s43, 4096")
    k("s_waitcnt vmcnt(28)")
    k("s_barrier")
    pub_dword(k, 's42', 's40', 14, copies=8)
    if CFG['clr_sleep']: k(f"s_sleep {CFG['clr_sleep']}")
    k("s_add_u32 s40, s40, 1")
    k(f"s_add_u32 s41, s41, {SYNC_STEP}")
    k("s_cmp_lt_u32 s40, 128"); k(f"s_cbranch_scc1 {k.ref('clr_blk')}")
    k("s_waitcnt vmcnt(0)")
    k("s_barrier")
    pub_dword(k, 's42', 's40', 14, copies=8)

def build():
    k = K(NAME, vgpr=256, sgpr=100, agpr=256)
    H = Hooks()
    k("s_cmp_ge_u32 s2, 256")
    k(f"s_cbranch_scc1 {k.ref('end')}")
    k.ptr(KA_WS, 4); k.ptr(KA_DBG, 6); k.ptr(KA_AX, 24)
    k("v_and_b32 v1, 63, v0")
    k("v_lshrrev_b32 v4, 6, v0")
    k("v_and_b32 v2, 15, v1")
    k("v_lshrrev_b32 v3, 4, v1")
    k("v_readfirstlane_b32 s3, v4")
    k(f"s_mov_b32 s60, {CFG['spin']}")
    k("s_mov_b32 s59, -1")
    k("s_mov_b32 s92, 0")
    k("s_waitcnt lgkmcnt(0)")
    k.srd(8, 4, WS_BYTES)
    k.srd(72, 6, 256)
    k.srd(16, 24, A.XF_BYTES)
    event(k, 0)
    l = k.new('cf')
    k("s_cmp_eq_u32 s2, 255"); k(f"s_cbranch_scc0 {k.ref(l)}")
    k("v_lshlrev_b32 v5, 4, v0")
    for r in range(4): k(f"v_mov_b32 v{8+r}, -1")
    k(f"s_mov_b32 s24, {WS_FLG}")
    for i in range(FLG_BYTES // 4096):
        k(f"buffer_store_dwordx4 v[8:11], v5, s[8:11], s24 offen sc1")
        k("s_add_u32 s24, s24, 4096")
    k.lab(l)
    k("s_mov_b32 s46, 64"); k("s_mov_b32 s47, 32"); k("s_mov_b32 s50, 0")
    k("s_and_b32 s44, s2, 7"); k("s_lshr_b32 s45, s2, 3")
    k("s_lshl_b32 s48, s45, 1"); k("s_mov_b32 s49, 1"); k("s_mov_b32 s40, 2")
    k.lab('k1_entry')
    A.role_K1(k, H)
    event(k, 4)
    k("s_cmp_eq_u32 s92, 0"); k(f"s_cbranch_scc0 {k.ref('helper_k2')}")
    k("s_cmp_ge_u32 s2, 232"); k(f"s_cbranch_scc1 {k.ref('helper_k2')}")
    k("s_cmp_ge_u32 s2, 200"); k(f"s_cbranch_scc1 {k.ref('toO')}")
    k("s_cmp_ge_u32 s2, 104"); k(f"s_cbranch_scc1 {k.ref('toP')}")
    k("s_cmp_ge_u32 s2, 64"); k(f"s_cbranch_scc1 {k.ref('toR')}")
    k("s_cmp_ge_u32 s2, 32"); k(f"s_cbranch_scc1 {k.ref('toV')}")
    k(f"s_branch {k.ref('roleS')}")
    for nm in 'VRPO':
        k.lab('to' + nm); k(f"s_branch {k.ref('role' + nm)}")
    k.lab('helper_top')
    k("s_sub_u32 s24, s2, 232")
    k("s_cmp_ge_u32 s24, 16"); k(f"s_cbranch_scc1 {k.ref('helper_k2')}")
    k.srd(16, 4, A.XF_BYTES, A.WS_XF2)
    k("s_mov_b32 s46, 1024"); k("s_mov_b32 s47, 8"); k("s_mov_b32 s50, 1")
    k("s_and_b32 s44, s24, 7"); k("s_lshr_b32 s45, s24, 3")
    k("s_mov_b32 s48, s45"); k("s_mov_b32 s49, 2"); k("s_mov_b32 s40, 32")
    k(f"s_branch {k.ref('k1_entry')}")
    k.lab('helper_k2')
    k("s_sub_u32 s24, s2, 232")
    k("s_and_b32 s44, s24, 7"); k("s_lshr_b32 s45, s24, 3")
    k("s_cmp_eq_u32 s92, 0"); k("s_cselect_b32 s46, 32, 2")
    k("s_mul_i32 s57, s24, 52"); k("s_lshr_b32 s57, s57, 8"); k("s_mul_i32 s56, s57, 5"); k("s_sub_u32 s56, s24, s56")
    A.role_K2(k, H, mid=A.k3_wo_loads)
    event(k, 5)
    k("s_cmp_ge_u32 s2, 252"); k(f"s_cbranch_scc1 {k.ref('helper_clr')}")
    l1 = k.new('h3'); l2 = k.new('h3')
    k("s_cmp_eq_u32 s92, 0"); k(f"s_cbranch_scc0 {k.ref(l1)}")
    k.ptr(KA_AX, 6); k("s_waitcnt lgkmcnt(0)"); k.srd(16, 6, A.XF_BYTES)
    k("s_mov_b32 s46, 64"); k("s_mov_b32 s47, 32"); k("s_mov_b32 s50, 0"); k(f"s_mov_b32 s58, {A.WS_XF1}")
    k(f"s_branch {k.ref(l2)}")
    k.lab(l1)
    k.srd(16, 4, A.XF_BYTES, A.WS_XF2)
    k("s_mov_b32 s46, 1024"); k("s_mov_b32 s47, 8"); k("s_mov_b32 s50, 1"); k(f"s_mov_b32 s58, {A.WS_XF3}")
    k.lab(l2)
    A.role_K3(k, H, True)
    event(k, 6)
    next_layer(k, 'helper_top')
    k.lab('helper_clr')
    k("s_cmp_eq_u32 s92, 0"); k(f"s_cbranch_scc0 {k.ref('end')}")
    role_clear(k)
    event(k, 6)
    k("s_mov_b32 s92, 1")
    k(f"s_branch {k.ref('helper_top')}")
    k.lab('roleS'); role_S(k)
    k.lab('roleV'); role_V(k)
    k.lab('roleR'); role_R(k)
    k.lab('roleP'); role_P(k)
    k.lab('roleO'); role_O(k)
    k.lab('end')
    head = ["; generated by gen6.py (my own hand-written generator); kernarg: 13 pointers",
            f"; @launch kernel={k.name} grid=(256,1,1) block=(256,1,1) lds=135168",
            '.amdgcn_target "amdgcn-amd-amdhsa--gfx950"']
    return "\n".join(head) + "\n" + k.text() + "\n"

CFG.setdefault('spin', SPIN_MAX); CFG.setdefault('xlag', 8); CFG.setdefault('clr_mod', 'sc1')
if __name__ == "__main__":
    out = "z.s"
    for a in sys.argv[1:]:
        if a == "stamp": CFG['stamp'] = True
        elif a.endswith(".s"): out = a
        elif "=" in a:
            kk, v = a.split("=")
            try: CFG[kk] = int(v)
            except ValueError: CFG[kk] = v.replace('+', ' ')
    open(out, "w").write(build())
    print("written", out)
```

```python
import sys, struct
from asmlib import K, magic

NAME = "interleave_layers__linear_attn_block__memory_aug_recurrent_mem_tr__prompt"
S, D = 2048, 640
KA_AX, KA_WQKV, KA_WOA, KA_BX, KA_MEM0, KA_WQ, KA_WK, KA_WV, KA_WO, KA_SEG, KA_OUT, KA_DBG, KA_WS = range(13)
WS_BYTES = 268435456
OOB = 0x7ff00000
LOG2E = 1.4426950408889634
def hexf(x): return "0x%08x" % struct.unpack("<I", struct.pack("<f", x))[0]

WS_XF1, WS_XF2, WS_XF3 = 0x00000000, 0x00400000, 0x00800000
XF_BYTES = S * D * 2
WS_PQF  = 0x00C00000
WS_PART = 0x01000000
PART_GRP = 18 * 1024
PART_REP = 8 * PART_GRP
WS_BDF  = 0x01500000
BDF_LAYER = 0x20000

class LG:
    def __init__(self, k): self.k = k; self.q = []
    def issue(self, tag, text):
        self.k(text); self.q.append(tag)
    def wait(self, tag):
        if tag not in self.q: return
        idx = max(i for i, t in enumerate(self.q) if t == tag)
        n = len(self.q) - 1 - idx
        assert n <= 15, n
        self.k(f"s_waitcnt lgkmcnt({n})")
        self.q = self.q[idx + 1:]
    def all(self):
        self.k("s_waitcnt lgkmcnt(0)"); self.q = []

def lookup(k, dst, idx, table):
    k(f"s_mov_b32 {dst}, {table[0]}")
    for i, v in enumerate(table[1:], 1):
        if v == table[0]: continue
        k(f"s_cmp_eq_u32 {idx}, {i}")
        k(f"s_cselect_b32 {dst}, {v}, {dst}")

def divmod_const(k, q, r, x, d, maxn, stmp):
    m, sh = magic(d, maxn)
    k(f"s_mov_b32 s{stmp}, {m}")
    k(f"v_mul_lo_u32 v{q}, v{x}, s{stmp}")
    k(f"v_lshrrev_b32 v{q}, {sh}, v{q}")
    k(f"v_mul_u32_u24 v{r}, {d}, v{q}")
    k(f"v_sub_u32 v{r}, v{x}, v{r}")

def row_stats_partial(k, X, n, S1, S2, ones, t):
    k(f"v_mov_b32 v{S1}, 0"); k(f"v_mov_b32 v{S2}, 0"); k(f"v_mov_b32 v{t}, 0"); k(f"v_mov_b32 v{t+1}, 0")
    for i in range(0, n, 2):
        k(f"v_dot2c_f32_bf16 v{S1}, v{X+i}, v{ones}")
        k(f"v_dot2c_f32_bf16 v{S2}, v{X+i}, v{X+i}")
        k(f"v_dot2c_f32_bf16 v{t}, v{X+i+1}, v{ones}")
        k(f"v_dot2c_f32_bf16 v{t+1}, v{X+i+1}, v{X+i+1}")
    k(f"v_add_f32 v{S1}, v{S1}, v{t}")
    k(f"v_add_f32 v{S2}, v{S2}, v{t+1}")
    for sw in ("v_permlane16_swap_b32", "v_permlane32_swap_b32"):
        k(f"v_mov_b32 v{t}, v{S1}"); k(f"v_mov_b32 v{t+1}, v{S2}")
        k(f"{sw} v{S1}, v{t}"); k(f"{sw} v{S2}, v{t+1}")
        k(f"v_add_f32 v{S1}, v{S1}, v{t}"); k(f"v_add_f32 v{S2}, v{S2}, v{t+1}")

def row_stats_final(k, P, dst):
    k(f"v_add_f32 v{P}, v{P}, v{P+2}")
    k(f"v_add_f32 v{P+1}, v{P+1}, v{P+3}")
    k(f"v_mul_f32 v{P}, {hexf(1.0/D)}, v{P}")
    k(f"v_mul_f32 v{P+2}, v{P}, v{P}")
    k(f"v_mov_b32 v{P+3}, {hexf(1.0/D)}")
    k(f"v_fma_f32 v{P+1}, v{P+1}, v{P+3}, -v{P+2}")
    k(f"v_max_f32 v{P+1}, 0, v{P+1}")
    k(f"v_add_f32 v{P+1}, {hexf(1e-5)}, v{P+1}")
    k(f"v_rsq_f32 v{dst}, v{P+1}")
    k(f"v_mul_f32 v{dst+1}, v{P}, v{dst}")
    k(f"v_sub_f32 v{dst+1}, 0, v{dst+1}")

def ln_fold(k, a, cs, st, t):
    for h in (0, 2):
        k(f"v_pk_mul_f32 v[{t+h}:{t+h+1}], v[{cs+h}:{cs+h+1}], v[{st}:{st+1}] op_sel:[0,1] op_sel_hi:[1,1]")
    for h in (0, 2):
        k(f"v_pk_fma_f32 v[{a+h}:{a+h+1}], v[{a+h}:{a+h+1}], v[{st}:{st+1}], v[{t+h}:{t+h+1}] op_sel:[0,0,0] op_sel_hi:[1,0,1]")

STAMP = False
WS_TRACE = 0x01800000
def stamp(k, i):
    if STAMP: k(f"s_memrealtime s[{64+2*i}:{65+2*i}]")
def stamp_out(k, n, base=0):
    if not STAMP: return
    k("s_waitcnt lgkmcnt(0)")
    k("s_lshl_b32 s24, s2, 2"); k("s_add_u32 s24, s24, s3"); k("s_lshl_b32 s24, s24, 6"); k(f"s_add_u32 s24, s24, {WS_TRACE + base}")
    k(f"v_mov_b32 v14, {OOB}"); k("v_cmp_eq_u32 vcc, 0, v1"); k("v_cndmask_b32 v14, v14, 0, vcc")
    for i in range(n):
        k(f"v_mov_b32 v15, s{64+2*i}")
        k(f"buffer_store_dword v15, v14, s[8:11], s24 offen offset:{4*i}")

class NoHooks:
    def k1_wait_x(self, k): pass
    def k1_early(self, k): pass
    def k1_first_barrier(self, k): pass
    def k1_ready_issue(self, k): pass
    def k1_ready_check(self, k): pass
    def k1_publish(self, k): pass
    def k2_wait(self, k): pass
    def k2_publish(self, k): pass
    def k3_wait0(self, k): pass
    def k3_wait(self, k): pass
    def k3_publish(self, k, last): pass

def role_K1(k, H):
    RSW, L_W, WBUF = 544, 40960, 64 * 544
    L_KV, RSK, L_PS = 40960, 336, 40960 + 32 * 336
    XPRE, RING, ACC, KVA, CS, ST, TMP, ONE, W3 = 16, 56, 88, 120, 156, 144, 148, 172, 176
    DAT, GO, LO, TA = 56, 152, 153, 12
    def wreg(slot, j, lo=0, n=4):
        if slot < 3: r = (slot * 20 + j) * 4 + lo; return f"a[{r}:{r+n-1}]"
        r = W3 + j * 4 + lo; return f"v[{r}:{r+n-1}]"
    stamp(k, 0)
    k.ptr(KA_WQKV, 6)
    k("s_lshr_b32 s24, s3, 1"); k("s_mul_i32 s24, s24, 20480")
    k("s_and_b32 s25, s3, 1"); k("s_mul_i32 s25, s25, 10"); k("s_mul_i32 s25, s25, s46"); k("s_add_u32 s24, s24, s25")
    k("s_cmp_eq_u32 s50, 1"); k("s_cselect_b32 s25, 16, 1280"); k("s_cselect_b32 s26, 256, 8")
    k("v_mul_u32_u24 v4, s25, v2"); k("v_mul_u32_u24 v5, s26, v3")
    k("v_add3_u32 v4, v4, v5, s24")
    k("v_add_u32 v5, s47, v4")
    k("s_mul_i32 s43, s48, 40960")
    k("s_mul_i32 s42, s49, 40960")
    def xloads():
        k("s_mov_b32 s24, s41")
        for i in range(10):
            k(f"buffer_load_dwordx2 v[{XPRE+4*i}:{XPRE+4*i+1}], v4, s[16:19], s24 offen sc1")
            k(f"buffer_load_dwordx2 v[{XPRE+4*i+2}:{XPRE+4*i+3}], v5, s[16:19], s24 offen sc1")
            if i < 9: k("s_add_u32 s24, s24, s46")
    k("s_mov_b32 s51, 0")
    l0 = k.new('k1')
    k("s_cmp_eq_u32 s92, 0"); k(f"s_cbranch_scc0 {k.ref(l0)}")
    k("s_mov_b32 s41, s43"); xloads(); k("s_mov_b32 s51, 1")
    k.lab(l0)
    k("v_and_b32 v7, 31, v0"); k("v_lshrrev_b32 v8, 5, v0")
    k(f"v_mul_u32_u24 v{GO}, 3840, v8")
    k("v_lshlrev_b32 v9, 4, v7")
    k(f"v_add_u32 v{GO}, v{GO}, v9")
    k("v_cmp_le_u32 vcc, 10, v7"); k("v_cndmask_b32 v10, 0, 1, vcc")
    k("v_cmp_le_u32 vcc, 20, v7"); k("v_cndmask_b32 v11, 0, 1, vcc")
    k("v_add_u32 v10, v10, v11")
    k("v_mul_u32_u24 v10, 1120, v10")
    k(f"v_add_u32 v{GO}, v{GO}, v10")
    k(f"v_mov_b32 v10, {OOB}"); k("v_cmp_le_u32 vcc, 30, v7"); k(f"v_cndmask_b32 v{GO}, v{GO}, v10, vcc")
    k(f"v_mul_u32_u24 v{LO}, {RSW}, v8"); k(f"v_add_u32 v{LO}, v{LO}, v9"); k(f"v_add_u32 v{LO}, {L_W}, v{LO}")
    k("s_waitcnt lgkmcnt(0)")
    k.srd(12, 6, D * 1920 * 2)
    k("s_mul_i32 s52, s44, 160")
    def wloads(c):
        d = DAT + 32 * (c % 3)
        k(f"s_add_u32 s24, s52, {c * 64 * 3840}")
        for i in range(8):
            k(f"buffer_load_dwordx4 v[{d+4*i}:{d+4*i+3}], v{GO}, s[12:15], s24 offen")
            if i < 7: k("s_add_u32 s24, s24, 30720")
    for c in range(3): wloads(c)
    k("v_lshrrev_b32 v6, 2, v2"); k("v_lshl_add_u32 v6, v3, 2, v6")
    k(f"v_mul_u32_u24 v6, {RSW}, v6")
    k("v_and_b32 v7, 3, v2"); k("v_lshl_add_u32 v6, v7, 3, v6")
    k(f"v_add_u32 v6, {L_W}, v6")
    col = [[0, 64, 128, 224], [32, 96, 160, 256], [320, 384, 192, 288], [352, 416, 448, 288]]
    for s_ in range(4):
        lookup(k, 's24', 's3', col[s_]); k(f"v_add_u32 v{TA+s_}, s24, v6")
    H.k1_early(k)
    stamp(k, 1)
    for r in range(4): k(f"v_mov_b32 v{ONE+r}, 0x3f803f80")
    def cs_mfma(c):
        for jj in range(2):
            j = 2 * c + jj
            for s_ in range(4):
                cc = f"v[{CS+4*s_}:{CS+4*s_+3}]"
                k(f"v_mfma_f32_16x16x32_bf16 {cc}, {wreg(s_, j)}, v[{ONE}:{ONE+3}], {cc if j else 0}")
    for c in range(10):
        d = DAT + 32 * (c % 3)
        k(f"s_waitcnt vmcnt({16 if c < 8 else (8 if c == 8 else 0)})")
        for i in range(8): k(f"ds_write_b128 v{LO}, v[{d+4*i}:{d+4*i+3}] offset:{(c%2)*WBUF + i*8*RSW}")
        k("s_waitcnt lgkmcnt(0)")
        if c + 3 < 10: wloads(c + 3)
        if c > 0: cs_mfma(c - 1)
        k("s_barrier")
        if c == 0: H.k1_first_barrier(k)
        for s_ in range(4):
            for jj in range(2):
                for hf in range(2):
                    k(f"ds_read_b64_tr_b16 {wreg(s_, 2*c+jj, 2*hf, 2)}, v{TA+s_} offset:{(c%2)*WBUF + (32*jj + 16*hf)*RSW}")
    stamp(k, 2)
    H.k1_ready_issue(k)
    k("v_lshlrev_b32 v7, 4, v1")
    k("s_lshr_b32 s24, s3, 1"); k("s_mul_i32 s24, s24, 20"); k("s_and_b32 s25, s3, 1"); k("s_mul_i32 s25, s25, 10")
    k("s_add_u32 s24, s24, s25"); k("s_lshl_b32 s24, s24, 10")
    k("v_add_u32 v6, s24, v7")
    k("s_lshr_b32 s24, s3, 1"); k("s_lshl_b32 s24, s24, 8"); k("s_and_b32 s25, s3, 1"); k("s_lshl_b32 s25, s25, 3")
    k("s_add_u32 s24, s24, s25"); k(f"s_add_u32 s24, s24, {L_PS}")
    k("v_lshlrev_b32 v9, 4, v2")
    k("v_add_u32 v8, s24, v9")
    k(f"v_add_u32 v9, {L_PS}, v9")
    k(f"v_mul_u32_u24 v10, {RSK}, v2"); k("v_lshl_add_u32 v10, v3, 3, v10"); k(f"v_add_u32 v10, {L_KV}, v10")
    k("v_lshrrev_b32 v11, 2, v2"); k("v_lshl_add_u32 v11, v3, 3, v11"); k(f"v_mul_u32_u24 v11, {RSK}, v11")
    k("v_and_b32 v15, 3, v2"); k("v_lshl_add_u32 v11, v15, 3, v11")
    k("s_lshl_b32 s24, s3, 5"); k(f"s_add_u32 s24, s24, {L_KV}")
    k("v_add_u32 v11, s24, v11")
    k("s_lshl_b32 s24, s3, 10")
    k("v_add_u32 v12, s24, v7")
    k("v_lshlrev_b32 v15, 3, v1"); k("v_add_u32 v15, 2048, v15")
    k("s_cmp_eq_u32 s3, 2"); k("s_cselect_b64 vcc, -1, 0")
    k("v_cndmask_b32 v12, v12, v15, vcc")
    k("s_mul_i32 s24, s44, 2560"); k(f"s_add_u32 s24, s24, {WS_PQF}")
    k("v_add_u32 v12, s24, v12")
    k(f"s_mov_b32 s52, {hexf(LOG2E)}"); k("s_mov_b32 s53, s52")
    k(f"s_mov_b32 s54, {hexf(1e-6)}"); k("s_mov_b32 s55, s54")
    for r in range(24): k(f"v_mov_b32 v{KVA+r}, 0")
    k("s_waitcnt lgkmcnt(0)")
    cs_mfma(9)
    H.k1_ready_check(k)
    stamp(k, 3)
    k.lab('k1_seg')
    stamp(k, 7)
    l1 = k.new('k1')
    k("s_cmp_eq_u32 s51, 1"); k(f"s_cbranch_scc1 {k.ref(l1)}")
    H.k1_wait_x(k)
    k("s_mov_b32 s41, s43"); xloads()
    k.lab(l1)
    k("s_waitcnt vmcnt(0)")
    row_stats_partial(k, XPRE, 40, TMP, TMP + 1, ONE, TMP + 2)
    for i in range(10): k(f"ds_write_b128 v6, v[{XPRE+4*i}:{XPRE+4*i+3}] offset:{i*1024}")
    k(f"ds_write_b64 v8, v[{TMP}:{TMP+1}]")
    k("s_mov_b32 s51, 0")
    k("s_waitcnt lgkmcnt(0)")
    l2 = k.new('k1')
    k("s_cmp_eq_u32 s92, 0"); k(f"s_cbranch_scc0 {k.ref(l2)}")
    k("s_cmp_gt_u32 s40, 1"); k(f"s_cbranch_scc0 {k.ref(l2)}")
    k("s_add_u32 s41, s43, s42"); xloads(); k("s_mov_b32 s51, 1")
    k.lab(l2)
    k("s_barrier")
    stamp(k, 8)
    lg = LG(k)
    lg.issue('ps', f"ds_read_b128 v[{TMP}:{TMP+3}], v9")
    lg.issue('ps', f"ds_read_b128 v[{TMP+4}:{TMP+7}], v9 offset:256")
    def rd(j):
        for tt in range(2):
            r = RING + ((j % 4) * 2 + tt) * 4
            lg.issue(j, f"ds_read_b128 v[{r}:{r+3}], v7 offset:{tt*20480 + j*1024}")
    rd(0); rd(1); rd(2)
    lg.wait('ps')
    row_stats_final(k, TMP, ST)
    row_stats_final(k, TMP + 4, ST + 2)
    acc = lambda s_, tt: ACC + (s_ * 2 + tt) * 4
    for j in range(20):
        if j + 3 < 20: rd(j + 3)
        lg.wait(j)
        for tt in range(2):
            r = RING + ((j % 4) * 2 + tt) * 4
            for s_ in range(4):
                a = acc(s_, tt)
                k(f"v_mfma_f32_16x16x32_bf16 v[{a}:{a+3}], {wreg(s_, j)}, v[{r}:{r+3}], " + (f"v[{a}:{a+3}]" if j else "0"))
    stamp(k, 9)
    for s_ in range(4):
        for tt in range(2): ln_fold(k, acc(s_, tt), CS + 4 * s_, ST + 2 * tt, TMP)
    def phi(a):
        for h in (0, 2):
            t = TMP + h
            k(f"v_min_f32 v{t}, 0, v{a+h}"); k(f"v_min_f32 v{t+1}, 0, v{a+h+1}")
            k(f"v_pk_mul_f32 v[{t}:{t+1}], v[{t}:{t+1}], s[52:53]")
        for h in range(4): k(f"v_exp_f32 v{TMP+h}, v{TMP+h}")
        for h in range(4): k(f"v_max_f32 v{a+h}, 0, v{a+h}")
        for h in (0, 2): k(f"v_pk_add_f32 v[{a+h}:{a+h+1}], v[{a+h}:{a+h+1}], v[{TMP+h}:{TMP+h+1}]")
        for h in (0, 2): k(f"v_pk_add_f32 v[{a+h}:{a+h+1}], v[{a+h}:{a+h+1}], s[54:55]")
    O = RING
    def pack(a, o):
        k(f"v_cvt_pk_bf16_f32 v{o}, v{a}, v{a+1}"); k(f"v_cvt_pk_bf16_f32 v{o+1}, v{a+2}, v{a+3}")
    def to_lds(s_, off, addr, o):
        for tt in range(2):
            pack(acc(s_, tt), o + 2 * tt)
            k(f"ds_write_b64 v{addr}, v[{o+2*tt}:{o+2*tt+1}] offset:{tt*16*RSK + off}")
    k("s_add_u32 s25, s43, 20480")
    k("s_cmp_ge_u32 s3, 2"); k(f"s_cbranch_scc1 {k.ref('k1_e2')}")
    k("s_lshl_b32 s24, s3, 6"); k("v_add_u32 v15, s24, v10")
    to_lds(2, 160, 15, O + 8); to_lds(3, 192, 15, O + 12)
    for tt in range(2):
        phi(acc(0, tt)); phi(acc(1, tt))
        pack(acc(0, tt), O + 4 * tt); pack(acc(1, tt), O + 4 * tt + 2)
        k(f"buffer_store_dwordx4 v[{O+4*tt}:{O+4*tt+3}], v12, s[8:11], {'s25' if tt else 's43'} offen sc1")
    k(f"s_branch {k.ref('k1_ej')}")
    k.lab('k1_e2')
    k("s_cmp_eq_u32 s3, 3"); k(f"s_cbranch_scc1 {k.ref('k1_e3')}")
    to_lds(3, 160 + 128, 10, O + 12)
    for tt in range(2): phi(acc(1, tt)); phi(acc(2, tt))
    to_lds(1, 0, 10, O + 4); to_lds(2, 32, 10, O + 8)
    for tt in range(2):
        phi(acc(0, tt)); pack(acc(0, tt), O + 2 * tt)
        k(f"buffer_store_dwordx2 v[{O+2*tt}:{O+2*tt+1}], v12, s[8:11], {'s25' if tt else 's43'} offen sc1")
    k(f"s_branch {k.ref('k1_ej')}")
    k.lab('k1_e3')
    for s_ in range(3):
        for tt in range(2): phi(acc(s_, tt))
        to_lds(s_, 64 + 32 * s_, 10, O + 4 * s_)
    k.lab('k1_ej')
    stamp(k, 10)
    k("s_waitcnt lgkmcnt(0)")
    k("s_barrier")
    stamp(k, 4)
    KF = RING + 16
    for i, off in enumerate((0, 32, 160, 192)):
        k(f"ds_read_b64_tr_b16 v[{KF+4*i}:{KF+4*i+1}], v11 offset:{off}")
        k(f"ds_read_b64_tr_b16 v[{KF+4*i+2}:{KF+4*i+3}], v11 offset:{off + 4*RSK}")
    k("s_waitcnt lgkmcnt(0)")
    k0, k1, v0_, v1_ = KF, KF + 4, KF + 8, KF + 12
    for i, (a, b) in enumerate(((k0, v1_), (k1, v0_), (k1, v1_), (k1, ONE), (k0, v0_), (k0, ONE))):
        c = f"v[{KVA+4*i}:{KVA+4*i+3}]"
        k(f"v_mfma_f32_16x16x32_bf16 {c}, v[{a}:{a+3}], v[{b}:{b+3}], {c}")
    k("s_add_u32 s43, s43, s42"); k("s_add_u32 s48, s48, s49")
    k("s_sub_u32 s40, s40, 1"); k("s_cmp_gt_u32 s40, 0")
    k(f"s_cbranch_scc1 {k.ref('k1_seg')}")
    stamp(k, 5)
    k(f"s_mul_i32 s24, s45, {PART_REP}"); k(f"s_mul_i32 s25, s44, {PART_GRP}"); k("s_add_u32 s24, s24, s25"); k(f"s_add_u32 s24, s24, {WS_PART}")
    k("s_mul_i32 s25, s3, 3072"); k("s_add_u32 s25, s25, s24")
    k("s_lshl_b32 s26, s3, 10"); k("s_add_u32 s26, s26, s24"); k(f"s_add_u32 s26, s26, {13*1024}")
    k("s_cmp_eq_u32 s3, 0"); k(f"s_cselect_b32 s27, 0, {OOB}"); k("s_add_u32 s27, s27, s24"); k(f"s_add_u32 s28, s27, {17*1024}"); k(f"s_add_u32 s27, s27, {12*1024}")
    for i in range(3): k(f"buffer_store_dwordx4 v[{KVA+4*i}:{KVA+4*i+3}], v7, s[8:11], s25 offen offset:{i*1024} sc1")
    k(f"buffer_store_dwordx4 v[{KVA+12}:{KVA+15}], v7, s[8:11], s26 offen sc1")
    k(f"buffer_store_dwordx4 v[{KVA+16}:{KVA+19}], v7, s[8:11], s27 offen sc1")
    k(f"buffer_store_dwordx4 v[{KVA+20}:{KVA+23}], v7, s[8:11], s28 offen sc1")
    k("s_waitcnt vmcnt(0)")
    k("s_barrier")
    stamp(k, 6)
    stamp_out(k, 11)
    H.k1_publish(k)

K2_TILES = [[12, 1, 0, 2, 4, 3, 3], [5, 7, 6, 8, 10, 9, 11], [17, 13, 14, 15, 16, 16, 16]]
def _k2p(tlo, thi, alo, ahi, b0, b1, b2): return tlo | thi << 3 | alo << 6 | ahi << 9 | b0 << 12 | b1 << 19 | b2 << 24
N_ = 7
K2_PAR = [_k2p(0, 1, 0, 1, 0, 1, 4), _k2p(2, 3, 0, 1, 16, 1, 4), _k2p(4, 0, 2, N_, 16, 1, 4), _k2p(0, 5, N_, 1, 32, 1, 4),
          _k2p(0, 1, 2, 3, 32, 1, 4), _k2p(2, 3, 2, 3, 48, 1, 4), _k2p(4, 0, 4, N_, 48, 1, 4), _k2p(0, 5, N_, 3, 64, 1, 4), _k2p(6, 0, 4, N_, 64, 1, 4),
          _k2p(0, 1, 0, 1, 0, 16, 4), _k2p(2, 3, 2, 3, 0, 16, 4), _k2p(4, 0, 4, N_, 0, 16, 4), _k2p(0, 3, N_, 3, 60, 0, 0), _k2p(4, 0, 4, N_, 60, 0, 0)]
def role_K2(k, H, mid=None):
    ACC, LD, T = 16, 48, 160
    k("v_lshlrev_b32 v5, 4, v1")
    for i in range(7): lookup(k, f"s{64+i}", 's45', [K2_TILES[t][i] * 1024 for t in range(3)])
    for r in range(28): k(f"v_mov_b32 v{ACC+r}, 0")
    H.k2_wait(k)
    k("s_mov_b32 s40, s3")
    k.lab('k2_rd')
    for q in range(4):
        k(f"s_add_u32 s25, s40, {4*q}")
        k(f"s_mul_i32 s24, s25, {PART_REP}"); k(f"s_mul_i32 s26, s44, {PART_GRP}"); k("s_add_u32 s24, s24, s26"); k(f"s_add_u32 s24, s24, {WS_PART}")
        k("s_cmp_lt_u32 s25, s46"); k(f"s_cselect_b32 s24, s24, {OOB}")
        for i in range(7):
            k(f"s_add_u32 s26, s24, s{64+i}")
            k(f"buffer_load_dwordx4 v[{LD+(q*7+i)*4}:{LD+(q*7+i)*4+3}], v5, s[8:11], s26 offen sc1")
    k("s_add_u32 s40, s40, 16")
    lm = k.new('k2m')
    k("s_cmp_lt_u32 s40, s46"); k(f"s_cbranch_scc0 {k.ref(lm)}")
    for q in range(4):
        k(f"s_waitcnt vmcnt({(3-q)*7})")
        for r in range(0, 28, 2):
            k(f"v_pk_add_f32 v[{ACC+r}:{ACC+r+1}], v[{ACC+r}:{ACC+r+1}], v[{LD+q*28+r}:{LD+q*28+r+1}]")
    k(f"s_branch {k.ref('k2_rd')}")
    k.lab(lm)
    nmid = mid(k) if mid else 0
    for q in range(4):
        k(f"s_waitcnt vmcnt({(3-q)*7 + nmid})")
        for r in range(0, 28, 2):
            k(f"v_pk_add_f32 v[{ACC+r}:{ACC+r+1}], v[{ACC+r}:{ACC+r+1}], v[{LD+q*28+r}:{LD+q*28+r+1}]")
    k("s_mul_i32 s24, s3, 7168"); k("v_add_u32 v6, s24, v5")
    for i in range(7): k(f"ds_write_b128 v6, v[{ACC+4*i}:{ACC+4*i+3}] offset:{i*1024}")
    k("s_waitcnt lgkmcnt(0)")
    k("s_barrier")
    lookup(k, 's41', 's45', [0, 4, 9]); lookup(k, 's42', 's45', [4, 5, 5])
    k(f"s_mul_i32 s43, s92, {BDF_LAYER}"); k(f"s_mul_i32 s24, s44, {14*1024}"); k("s_add_u32 s43, s43, s24"); k(f"s_add_u32 s43, s43, {WS_BDF}")
    k("v_and_b32 v7, 3, v2"); k("v_lshrrev_b32 v8, 2, v2")
    for rnd in range(2):
        l = k.new('k2f')
        k(f"s_add_u32 s40, s3, {4*rnd}")
        k("s_cmp_lt_u32 s40, s42"); k(f"s_cbranch_scc0 {k.ref(l)}")
        k("s_add_u32 s40, s40, s41")
        lookup(k, 's47', 's40', K2_PAR)
        k("s_bfe_u32 s24, s47, 0x7000c"); k("s_bfe_u32 s25, s47, 0x50013"); k("s_bfe_u32 s26, s47, 0x30018")
        k("v_mul_u32_u24 v9, s25, v7"); k("v_mul_u32_u24 v10, s26, v8"); k("v_add3_u32 v9, v9, v10, s24")
        k("v_mul_u32_u24 v9, 205, v9"); k("v_lshrrev_b32 v9, 12, v9")
        for hf in range(2):
            k(f"s_bfe_u32 s24, s47, {0x30000 + 3*hf}")
            k("s_lshl_b32 s24, s24, 10")
            k("v_add_u32 v10, s24, v5")
            for w in range(4): k(f"ds_read_b128 v[{T+4*w}:{T+4*w+3}], v10 offset:{w*7168}")
            k(f"s_bfe_u32 s25, s47, {0x30006 + 3*hf}")
            k("s_lshl_b32 s25, s25, 4")
            k("v_lshl_add_u32 v11, v3, 2, s25")
            k("v_mul_u32_u24 v11, 205, v11"); k("v_lshrrev_b32 v11, 12, v11")
            k("v_cmp_eq_u32 vcc, v9, v11")
            k("s_waitcnt lgkmcnt(0)")
            for r in (0, 2):
                k(f"v_pk_add_f32 v[{T+r}:{T+r+1}], v[{T+r}:{T+r+1}], v[{T+4+r}:{T+4+r+1}]")
                k(f"v_pk_add_f32 v[{T+8+r}:{T+8+r+1}], v[{T+8+r}:{T+8+r+1}], v[{T+12+r}:{T+12+r+1}]")
            for r in (0, 2): k(f"v_pk_add_f32 v[{T+r}:{T+r+1}], v[{T+r}:{T+r+1}], v[{T+8+r}:{T+8+r+1}]")
            o = T + 16 + 2 * hf
            k(f"v_cvt_pk_bf16_f32 v{o}, v{T}, v{T+1}"); k(f"v_cvt_pk_bf16_f32 v{o+1}, v{T+2}, v{T+3}")
            k(f"v_cndmask_b32 v{o}, 0, v{o}, vcc"); k(f"v_cndmask_b32 v{o+1}, 0, v{o+1}, vcc")
        k("s_lshl_b32 s24, s40, 10"); k("s_add_u32 s24, s24, s43")
        k(f"buffer_store_dwordx4 v[{T+16}:{T+19}], v5, s[8:11], s24 offen sc1")
        k.lab(l)
    k("s_waitcnt vmcnt(0)")
    k("s_barrier")
    H.k2_publish(k)

BD_OFF = [0, 4, 8, 12, 16, 20, 24, 26, 30, 32, 36, 40, 42, 46]
BD_N = [4, 4, 4, 4, 4, 4, 2, 4, 2, 4, 4, 2, 4, 2]
RSO = 288
def k3_wo_loads(k):
    k.ptr(KA_WOA, 6)
    k("v_lshrrev_b32 v12, 4, v0"); k("v_mul_u32_u24 v12, 1280, v12")
    k("v_and_b32 v13, 15, v0"); k("v_lshl_add_u32 v12, v13, 4, v12")
    k("s_waitcnt lgkmcnt(0)")
    k.srd(12, 6, D * D * 2)
    k("s_lshl_b32 s52, s56, 8")
    for c in range(10):
        for i in range(4):
            k(f"s_add_u32 s24, s52, {(c*64 + i*16) * 1280}")
            k(f"buffer_load_dwordx4 a[{16*c+4*i}:{16*c+4*i+3}], v12, s[12:15], s24 offen")
    return 40

def k3_stage(k):
    L_W, WBUF = 81920, 64 * RSO
    k3_wo_loads(k)
    k("v_lshrrev_b32 v6, 4, v0"); k(f"v_mul_u32_u24 v6, {RSO}, v6")
    k("v_and_b32 v7, 15, v0"); k("v_lshl_add_u32 v6, v7, 4, v6"); k(f"v_add_u32 v6, {L_W}, v6")
    k("v_lshrrev_b32 v7, 2, v2"); k("v_lshl_add_u32 v7, v3, 2, v7"); k(f"v_mul_u32_u24 v7, {RSO}, v7")
    k("v_and_b32 v8, 3, v2"); k("v_lshl_add_u32 v7, v8, 3, v7")
    k("s_lshl_b32 s24, s3, 6"); k(f"s_add_u32 s24, s24, {L_W}")
    k("v_add_u32 v7, s24, v7")
    for c in range(10):
        k(f"s_waitcnt vmcnt({36 - 4*c})")
        for i in range(4): k(f"ds_write_b128 v6, a[{16*c+4*i}:{16*c+4*i+3}] offset:{(c%2)*WBUF + i*16*RSO}")
        k("s_waitcnt lgkmcnt(0)")
        k("s_barrier")
        for jj in range(2):
            for i in range(2):
                for hf in range(2):
                    r = 16 * c + (jj * 2 + i) * 4 + 2 * hf
                    k(f"ds_read_b64_tr_b16 a[{r}:{r+1}], v7 offset:{(c%2)*WBUF + (32*jj + 16*hf)*RSO + 32*i}")
    k("s_waitcnt lgkmcnt(0)")

def role_K3(k, H):
    L_O = 0
    PQ, RES, BA, OFR, RING, OA = 16, 96, 112, 168, 208, 240
    wo = lambda i, J: (lambda r: f"a[{r}:{r+3}]")(16 * (J // 2) + ((J % 2) * 2 + i) * 4)
    k("v_lshlrev_b32 v5, 4, v1")
    k("s_mul_i32 s24, s3, 5120"); k(f"s_add_u32 s24, s24, {WS_PQF}")
    k("v_add_u32 v8, s24, v5")
    k("v_lshlrev_b32 v9, 3, v1"); k("s_add_u32 s24, s24, 2048"); k("v_add_u32 v9, s24, v9")
    k("s_cmp_eq_u32 s50, 1"); k("s_cselect_b32 s25, 16, 1280"); k("s_cselect_b32 s26, 256, 8")
    k("v_mul_u32_u24 v10, s25, v2"); k("v_mul_u32_u24 v11, s26, v3")
    k("s_lshl_b32 s24, s56, 2"); k("s_add_u32 s24, s24, s3")
    k("s_mul_i32 s25, s24, s46")
    k("v_add3_u32 v10, v10, v11, s25")
    k("v_add_u32 v11, s47, v10")
    k("s_lshl_b32 s24, s24, 10"); k("s_add_u32 s24, s24, s58")
    k("v_add_u32 v12, s24, v5")
    k("s_mul_i32 s24, s3, 5120"); k(f"s_add_u32 s24, s24, {L_O}")
    k("v_add_u32 v13, s24, v5")
    k(f"s_mov_b32 s54, {hexf(1e-6)}")
    k("s_mul_i32 s43, s57, 40960")
    k("s_mov_b32 s40, 0")
    k("s_mov_b32 s42, 0")
    def pq_loads(buf):
        b = PQ + 40 * buf
        k("s_add_u32 s25, s41, 20480")
        for tt in range(2):
            so = 's25' if tt else 's41'
            for gp in range(2):
                r = b + (tt * 2 + gp) * 10
                k(f"buffer_load_dwordx4 v[{r}:{r+3}], v8, s[8:11], {so} offen offset:{gp*2560} sc1")
                k(f"buffer_load_dwordx4 v[{r+4}:{r+7}], v8, s[8:11], {so} offen offset:{gp*2560+1024} sc1")
                k(f"buffer_load_dwordx2 v[{r+8}:{r+9}], v9, s[8:11], {so} offen offset:{gp*2560} sc1")
        for tt in range(2):
            so = 's25' if tt else 's41'
            r = RES + 8 * buf + 4 * tt
            k(f"buffer_load_dwordx2 v[{r}:{r+1}], v10, s[16:19], {so} offen sc1")
            k(f"buffer_load_dwordx2 v[{r+2}:{r+3}], v11, s[16:19], {so} offen sc1")
    bd = lambda gp, f: (lambda r: f"a[{r}:{r+BD_N[f]-1}]")(160 + gp * 48 + BD_OFF[f])
    def bd_stage(buf):
        b = PQ + 40 * buf
        for tt in range(2):
            sets = []
            for gp in range(2):
                r = b + (tt * 2 + gp) * 10
                k0, k1, k2 = f"v[{r}:{r+3}]", f"v[{r+4}:{r+7}]", f"v[{r+8}:{r+9}]"
                A = BA + 28 * gp
                t = lambda i: f"v[{A+4*i}:{A+4*i+3}]"
                M32 = "v_mfma_f32_16x16x32_bf16"; M16 = "v_mfma_f32_16x16x16_bf16"
                k(f"{M32} {t(5)}, {bd(gp,9)}, {k0}, 0");  k(f"{M32} {t(6)}, {bd(gp,12)}, {k1}, 0")
                k(f"{M32} {t(0)}, {bd(gp,0)}, {k0}, 0");  k(f"{M32} {t(1)}, {bd(gp,1)}, {k0}, 0"); k(f"{M32} {t(2)}, {bd(gp,3)}, {k0}, 0")
                k(f"{M32} {t(3)}, {bd(gp,5)}, {k1}, 0");  k(f"{M32} {t(4)}, {bd(gp,7)}, {k1}, 0")
                k(f"{M32} {t(5)}, {bd(gp,10)}, {k1}, {t(5)}")
                k(f"{M32} {t(1)}, {bd(gp,2)}, {k1}, {t(1)}"); k(f"{M32} {t(2)}, {bd(gp,4)}, {k1}, {t(2)}")
                k(f"{M16} {t(6)}, {bd(gp,13)}, {k2}, {t(6)}")
                k(f"{M16} {t(3)}, {bd(gp,6)}, {k2}, {t(3)}"); k(f"{M16} {t(4)}, {bd(gp,8)}, {k2}, {t(4)}")
                k(f"{M16} {t(5)}, {bd(gp,11)}, {k2}, {t(5)}")
            for gp in range(2):
                A = BA + 28 * gp
                for i in range(5): k(f"v_add_f32 v{A+20+i}, s54, v{A+20+i}")
                for i in range(5): k(f"v_rcp_f32 v{A+20+i}, v{A+20+i}")
                for i in range(5):
                    for h in range(4): k(f"v_mul_f32 v{A+4*i+h}, v{A+4*i+h}, v{A+20+i}")
                    o = OFR + tt * 20 + (gp * 5 + i) * 2
                    k(f"v_cvt_pk_bf16_f32 v{o}, v{A+4*i}, v{A+4*i+1}"); k(f"v_cvt_pk_bf16_f32 v{o+1}, v{A+4*i+2}, v{A+4*i+3}")
        k("v_add_u32 v14, s42, v13")
        for tt in range(2):
            for p in range(5):
                o = OFR + tt * 20 + 4 * p
                k(f"ds_write_b128 v14, v[{o}:{o+3}] offset:{tt*20480 + p*1024}")
    H.k3_wait0(k)
    k("s_mov_b32 s41, s43"); pq_loads(0)
    k("s_add_u32 s41, s43, s77"); pq_loads(1)
    H.k3_wait(k)
    k(f"s_mul_i32 s24, s92, {BDF_LAYER}"); k(f"s_mul_i32 s25, s3, {2*14*1024}"); k("s_add_u32 s24, s24, s25"); k(f"s_add_u32 s24, s24, {WS_BDF}")
    for gp in range(2):
        for f in range(14):
            r = 160 + gp * 48 + BD_OFF[f]
            k(f"s_add_u32 s25, s24, {(gp*14+f)*1024}")
            if BD_N[f] == 4: k(f"buffer_load_dwordx4 a[{r}:{r+3}], v5, s[8:11], s25 offen sc1")
            else: k(f"buffer_load_dwordx2 a[{r}:{r+1}], v5, s[8:11], s25 offen sc1")
    k("s_waitcnt vmcnt(0)")
    stamp(k, 2)
    bd_stage(0)
    k("s_waitcnt lgkmcnt(0)"); k("s_barrier")
    stamp(k, 3)
    k.lab('k3_seg')
    for par in range(2):
        if par == 0: stamp(k, 4)
        k("v_add_u32 v15, s42, v5")
        lg = LG(k)
        def rd(J):
            for tt in range(2):
                r = RING + ((J % 4) * 2 + tt) * 4
                lg.issue(J, f"ds_read_b128 v[{r}:{r+3}], v15 offset:{tt*20480 + J*1024}")
        rd(0); rd(1); rd(2)
        for J in range(20):
            if J + 3 < 20: rd(J + 3)
            lg.wait(J)
            for tt in range(2):
                r = RING + ((J % 4) * 2 + tt) * 4
                for i in range(2):
                    a = OA + (tt * 2 + i) * 4
                    k(f"v_mfma_f32_16x16x32_bf16 v[{a}:{a+3}], {wo(i, J)}, v[{r}:{r+3}], " + (f"v[{a}:{a+3}]" if J else "0"))
        if par == 0: stamp(k, 5)
        T = RING
        for tt in range(2):
            for i in range(2):
                a = OA + (tt * 2 + i) * 4; rr = RES + 8 * par + 4 * tt + 2 * i; o = T + 8 + 4 * tt + 2 * i
                k(f"v_cvt_pk_bf16_f32 v{T}, v{a}, v{a+1}"); k(f"v_cvt_pk_bf16_f32 v{T+1}, v{a+2}, v{a+3}")
                for h in range(2):
                    k(f"v_lshlrev_b32 v{T+2}, 16, v{T+h}"); k(f"v_and_b32 v{T+3}, 0xffff0000, v{T+h}")
                    k(f"v_lshlrev_b32 v{T+4}, 16, v{rr+h}"); k(f"v_and_b32 v{T+5}, 0xffff0000, v{rr+h}")
                    k(f"v_pk_add_f32 v[{T+2}:{T+3}], v[{T+2}:{T+3}], v[{T+4}:{T+5}]")
                    k(f"v_cvt_pk_bf16_f32 v{o+h}, v{T+2}, v{T+3}")
        k("s_add_u32 s25, s43, 20480")
        k(f"buffer_store_dwordx4 v[{T+8}:{T+11}], v12, s[8:11], s43 offen sc1")
        k(f"buffer_store_dwordx4 v[{T+12}:{T+15}], v12, s[8:11], s25 offen sc1")
        k("s_add_u32 s40, s40, 1")
        k("s_add_u32 s43, s43, s77")
        k("s_cmp_ge_u32 s40, s76"); k(f"s_cbranch_scc1 {k.ref('k3_done')}")
        if par == 0:
            lq = k.new('k3q')
            k("s_cmp_eq_u32 s40, 1"); k(f"s_cbranch_scc0 {k.ref(lq)}")
            k("s_waitcnt vmcnt(0)"); k("s_barrier")
            H.k3_publish(k, False)
            k.lab(lq)
        k("s_xor_b32 s42, s42, 40960")
        if par == 0: stamp(k, 6)
        k("s_waitcnt vmcnt(2)")
        if par == 0: stamp(k, 7)
        bd_stage(1 - par)
        if par == 0: stamp(k, 8)
        k("s_add_u32 s41, s43, s77")
        k("s_add_u32 s24, s40, 1")
        k("s_cmp_lt_u32 s24, s76"); k(f"s_cselect_b32 s41, s41, {OOB}")
        k("s_waitcnt vmcnt(0)")
        pq_loads(par)
        k("s_waitcnt lgkmcnt(0)"); k("s_barrier")
        if par == 0: stamp(k, 9)
        H.k3_publish(k, False)
    k(f"s_branch {k.ref('k3_seg')}")
    k.lab('k3_done')
    k("s_waitcnt vmcnt(0)"); k("s_barrier")
    stamp(k, 10)
    stamp_out(k, 11, 0x20000)
    H.k3_publish(k, True)

def common_prologue(k, nwg):
    k(f"s_cmp_ge_u32 s2, {nwg}")
    k(f"s_cbranch_scc1 {k.ref('end')}")
    k.ptr(KA_WS, 4)
    k("v_and_b32 v1, 63, v0")
    k("v_lshrrev_b32 v4, 6, v0")
    k("v_and_b32 v2, 15, v1")
    k("v_lshrrev_b32 v3, 4, v1")
    k("v_readfirstlane_b32 s3, v4")
    k("s_waitcnt lgkmcnt(0)")
    k.srd(8, 4, WS_BYTES)

def src_setup(k, layer, sreg=16):
    if layer == 0:
        k.ptr(KA_AX, 6); k("s_waitcnt lgkmcnt(0)"); k.srd(sreg, 6, XF_BYTES)
        k("s_mov_b32 s46, 64"); k("s_mov_b32 s47, 32"); k("s_mov_b32 s50, 0")
    else:
        k.srd(sreg, 4, XF_BYTES, WS_XF2)
        k("s_mov_b32 s46, 1024"); k("s_mov_b32 s47, 8"); k("s_mov_b32 s50, 1")

def test_kernels(layer):
    H = NoHooks()
    k1 = K(f"k1_{layer}", vgpr=256, sgpr=100, agpr=256)
    common_prologue(k1, 256 if layer == 0 else 16)
    k1(f"s_mov_b32 s92, {layer}")
    src_setup(k1, layer)
    k1("s_and_b32 s44, s2, 7"); k1("s_lshr_b32 s45, s2, 3")
    if layer == 0: k1("s_lshl_b32 s48, s45, 1"); k1("s_mov_b32 s49, 1"); k1("s_mov_b32 s40, 2")
    else: k1("s_mov_b32 s48, s45"); k1("s_mov_b32 s49, 2"); k1("s_mov_b32 s40, 32")
    role_K1(k1, H); k1.lab('end')
    k2 = K(f"k2_{layer}", vgpr=256, sgpr=100, agpr=256)
    common_prologue(k2, 24)
    k2(f"s_mov_b32 s92, {layer}")
    k2("s_and_b32 s44, s2, 7"); k2("s_lshr_b32 s45, s2, 3"); k2(f"s_mov_b32 s46, {32 if layer == 0 else 2}")
    role_K2(k2, H); k2.lab('end')
    k3 = K(f"k3_{layer}", vgpr=256, sgpr=100, agpr=256)
    common_prologue(k3, 20)
    k3(f"s_mov_b32 s92, {layer}")
    src_setup(k3, layer)
    k3("s_mul_i32 s57, s2, 52"); k3("s_lshr_b32 s57, s57, 8"); k3("s_mul_i32 s56, s57, 5"); k3("s_sub_u32 s56, s2, s56")
    k3(f"s_mov_b32 s58, {WS_XF1 if layer == 0 else WS_XF3}")
    k3("s_mov_b32 s76, 16"); k3("s_mov_b32 s77, 163840")
    k3_stage(k3); role_K3(k3, H); k3.lab('end')
    return [(k1, 256 if layer == 0 else 16, 135168), (k2, 24, 135168), (k3, 20, 135168)]

if __name__ == "__main__":
    out = "za.s"
    for a in sys.argv[1:]:
        if a == "stamp": STAMP = True
        elif a.endswith(".s"): out = a
    ks = test_kernels(0)
    head = ["; layer A test list"]
    for kk, n, lds in ks: head.append(f"; @launch kernel={kk.name} grid=({n},1,1) block=(256,1,1) lds={lds}")
    head.append('.amdgcn_target "amdgcn-amd-amdhsa--gfx950"')
    open(out, "w").write("\n".join(head) + "\n" + "\n".join(kk.text() for kk, _, _ in ks) + "\n")
    print("written", out)
```

```python
import sys
from asmlib import K, magic
import genA as A
from genA import hexf, LOG2E, LG, lookup, row_stats_partial, row_stats_final, ln_fold

NAME = A.NAME
S, D, H, DH, HD, NSEG = 2048, 640, 32, 192, 6144, 64
KA_AX, KA_WQKV, KA_WOA, KA_BX, KA_MEM0, KA_WQ, KA_WK, KA_WV, KA_WO, KA_SEG, KA_OUT, KA_DBG, KA_WS = range(13)
WS_BYTES = 268435456

WS_FLG   = 0x01600000
FLG_BYTES = 0x10000
F_Q   = 0x0000
F_LAYER = 0x4000
F_K1  = 0x8000
F_K2  = 0x8800
F_K3  = 0x9000
F_X   = 0x9800
F_C   = 0xA000
WS_TRACE = 0x01800000
WS_VF    = 0x02000000
WS_QF    = 0x04000000
WS_KF    = 0x05800000
QF_SEG   = 32 * 12288
WS_SYNC  = 0x07000000
SYNC_STEP = 0x70000
O_VOM, O_PX, O_PB, O_MB, O_HR, O_HS = 0, 327680, 409600, 430080, 440320, 448512
SYNC_LAYER = 64 * SYNC_STEP
WS_VOX   = 0x0B000000
VOX_SEG  = 40 * 32 * 1024
assert WS_SYNC + 128 * SYNC_STEP <= WS_VOX and WS_VOX + 64 * VOX_SEG <= WS_BYTES
SCALE_B = DH ** -0.5
SPIN_MAX = 1 << 17
OOB = 0x7ff00000
RH_M, RH_P = 16, 8

CFG = dict(stamp=False, dly_vox=20, pd_m=3, pd_p=2, pdep=4, pgain=0, dly_m=5, dly_v=20, dly_p=0, sl_m=1, sl_p=1, sl_x=2, sl_x0=8,
           hs_pos=22, hr_pos=1, clr_sleep=0)


def poll(k, name, loads, regs, tmp, sleep, first_delay=0, depth=1):
    if first_delay:
        k(f"s_sleep {first_delay}")
    k("s_mov_b32 s61, 0")
    for d in range(depth - 1):
        for l in loads: k(l)
        if sleep: k(f"s_sleep {sleep}")
    k.lab(name)
    for l in loads: k(l)
    k(f"s_waitcnt vmcnt({(depth - 1) * len(loads)})")
    rs = list(regs)
    k(f"v_max3_u32 v{tmp}, v{rs[0]}, v{rs[1]}, v{rs[2]}")
    rs = rs[3:]
    while len(rs) >= 2:
        k(f"v_max3_u32 v{tmp}, v{tmp}, v{rs[0]}, v{rs[1]}"); rs = rs[2:]
    if rs: k(f"v_max_u32 v{tmp}, v{tmp}, v{rs[0]}")
    k(f"v_cmp_eq_u32 vcc, -1, v{tmp}")
    k("s_add_u32 s61, s61, 1")
    k(f"s_cbranch_vccz {k.ref(name + '_out')}")
    k("s_cmp_ge_u32 s61, s60")
    k(f"s_cbranch_scc1 {k.ref(name + '_to')}")
    if sleep: k(f"s_sleep {sleep}")
    k(f"s_branch {k.ref(name)}")
    k.lab(name + '_to')
    k("s_mov_b32 s60, 1")
    k.lab(name + '_out')

def check_regs(k, rs, tmp):
    rs = list(rs)
    k(f"v_max3_u32 v{tmp}, v{rs[0]}, v{rs[1]}, v{rs[2]}")
    rs = rs[3:]
    while len(rs) >= 2:
        k(f"v_max3_u32 v{tmp}, v{tmp}, v{rs[0]}, v{rs[1]}"); rs = rs[2:]
    if rs: k(f"v_max_u32 v{tmp}, v{tmp}, v{rs[0]}")
    k(f"v_cmp_eq_u32 vcc, -1, v{tmp}")


def aprobe(k, name, areg, sbase, target, ring, delta, depth, dly):
    ring = ring[:depth]
    if dly: k(f"s_sleep {dly}")
    k("s_mov_b64 exec, 1")
    k("s_mov_b32 s61, 0")
    def issue(i):
        k(f"v_mov_b32 v{ring[i]}, 0")
        k(f"buffer_atomic_add v{ring[i]}, v{areg}, s[8:11], {sbase} offen sc0")
    for d in range(depth - 1):
        issue(d + 1)
        if delta: k(f"s_sleep {delta}")
    k.lab(name)
    for i in range(depth):
        issue(i)
        k(f"s_waitcnt vmcnt({depth - 1})")
        k(f"v_cmp_le_i32 vcc, {target}, v{ring[(i + 1) % depth]}")
        k("s_add_u32 s61, s61, 1")
        k(f"s_cbranch_vccnz {k.ref(name + '_out')}")
        if delta: k(f"s_sleep {delta}")
    k("s_cmp_ge_u32 s61, s60")
    k(f"s_cbranch_scc0 {k.ref(name)}")
    k("s_mov_b32 s60, 1")
    k.lab(name + '_out')
    k("s_mov_b64 exec, -1")
    if CFG['stamp']: k("s_mov_b32 s56, s61")

def ahint(k, areg, one, sbase):
    k(f"buffer_atomic_add v{one}, v{areg}, s[8:11], {sbase} offen")

def ahint_addr(k, dst, t, w_sreg, nrep, only_wave0):
    k(f"s_mul_i32 s24, {w_sreg}, {nrep}")
    k(f"v_add_u32 v{dst}, s24, v1")
    k(f"v_lshlrev_b32 v{dst}, 7, v{dst}")
    k(f"v_mov_b32 v{t}, {OOB}")
    k(f"v_cmp_le_u32 vcc, {nrep}, v1")
    k(f"v_cndmask_b32 v{dst}, v{dst}, v{t}, vcc")
    if only_wave0:
        k("s_cmp_eq_u32 s3, 0"); k(f"s_cselect_b32 s24, 0, {OOB}")
        k(f"v_or_b32 v{dst}, s24, v{dst}")

def aprobe_addr(k, dst, wg_sreg, nrep):
    k(f"s_and_b32 s24, {wg_sreg}, {nrep - 1}")
    k(f"s_mul_i32 s25, s3, {nrep}")
    k("s_add_u32 s24, s24, s25"); k("s_lshl_b32 s24, s24, 7")
    k(f"v_mov_b32 v{dst}, s24")


def shot_check(k, name, loads, regs, tmp, nyoung, sleep):
    k(f"s_waitcnt vmcnt({nyoung})")
    check_regs(k, regs, tmp)
    if CFG['stamp']: k("s_mov_b32 s57, 0")
    k(f"s_cbranch_vccz {k.ref(name + '_out')}")
    k("s_mov_b32 s61, 0")
    k.lab(name)
    for l in loads: k(l)
    k("s_waitcnt vmcnt(0)")
    check_regs(k, regs, tmp)
    k("s_add_u32 s61, s61, 1")
    if CFG['stamp']: k("s_mov_b32 s57, s61")
    k(f"s_cbranch_vccz {k.ref(name + '_out')}")
    k("s_cmp_ge_u32 s61, s60")
    k(f"s_cbranch_scc1 {k.ref(name + '_to')}")
    if sleep: k(f"s_sleep {sleep}")
    k(f"s_branch {k.ref(name)}")
    k.lab(name + '_to')
    k("s_mov_b32 s60, 1")
    k.lab(name + '_out')


def divmod_const(k, q, r, x, d, maxn, stmp):
    m, sh = magic(d, maxn)
    k(f"s_mov_b32 s{stmp}, {m}")
    k(f"v_mul_lo_u32 v{q}, v{x}, s{stmp}")
    k(f"v_lshrrev_b32 v{q}, {sh}, v{q}")
    k(f"v_mul_u32_u24 v{r}, {d}, v{q}")
    k(f"v_sub_u32 v{r}, v{x}, v{r}")

def stage_offsets(k, n, cpr, gstride, RS, lbase, go, lo, t0):
    for i in range(n):
        k(f"v_add_u32 v{t0}, {256*i}, v0")
        divmod_const(k, t0 + 1, t0 + 2, t0, cpr, 256 * n, 24)
        k(f"s_mov_b32 s24, {gstride}")
        k(f"v_mul_lo_u32 v{go+i}, v{t0+1}, s24")
        k(f"v_lshl_add_u32 v{go+i}, v{t0+2}, 4, v{go+i}")
        k(f"v_mul_u32_u24 v{lo+i}, {RS}, v{t0+1}")
        k(f"v_lshl_add_u32 v{lo+i}, v{t0+2}, 4, v{lo+i}")
        k(f"v_add_u32 v{lo+i}, {lbase}, v{lo+i}")

def tr_base(k, dst, RS, lbase, t0):
    k(f"v_lshrrev_b32 v{t0}, 1, v3")
    k(f"v_lshlrev_b32 v{t0}, 4, v{t0}")
    k(f"v_and_b32 v{t0+1}, 1, v3")
    k(f"v_lshl_add_u32 v{t0}, v{t0+1}, 2, v{t0}")
    k(f"v_lshrrev_b32 v{t0+1}, 2, v2")
    k(f"v_and_b32 v{t0+2}, 1, v{t0+1}")
    k(f"v_add_u32 v{t0}, v{t0}, v{t0+2}")
    k(f"v_lshrrev_b32 v{t0+1}, 1, v{t0+1}")
    k(f"v_lshl_add_u32 v{t0}, v{t0+1}, 3, v{t0}")
    k(f"v_mul_u32_u24 v{dst}, {RS}, v{t0}")
    k(f"v_and_b32 v{t0+1}, 3, v2")
    k(f"v_lshl_add_u32 v{dst}, v{t0+1}, 3, v{dst}")
    k(f"v_add_u32 v{dst}, {lbase}, v{dst}")

def softmax8(k, P0, T0, T1, masks=None):
    if masks:
        k(f"v_mov_b32 v{T1}, 0xff800000")
        for j in range(8): k(f"v_cndmask_b32 v{P0+j}, v{T1}, v{P0+j}, s[{masks+2*j}:{masks+2*j+1}]")
    k(f"v_max3_f32 v{T0}, v{P0}, v{P0+1}, v{P0+2}")
    k(f"v_max3_f32 v{T0}, v{T0}, v{P0+3}, v{P0+4}")
    k(f"v_max3_f32 v{T0}, v{T0}, v{P0+5}, v{P0+6}")
    k(f"v_max_f32 v{T0}, v{T0}, v{P0+7}")
    k(f"v_mov_b32 v{T1}, 0xff800000")
    k(f"v_cndmask_b32 v{T0}, v{T1}, v{T0}, s[50:51]")
    for dpp in ("quad_perm:[1,0,3,2]", "quad_perm:[2,3,0,1]", "row_half_mirror"):
        k(f"v_max_f32 v{T0}, v{T0}, v{T0} {dpp} row_mask:0xf bank_mask:0xf")
    k(f"s_mov_b32 s24, {hexf(SCALE_B * LOG2E)}")
    k(f"v_mul_f32 v{T0}, s24, v{T0}")
    for r in range(8): k(f"v_fma_f32 v{P0+r}, v{P0+r}, s24, -v{T0}")
    for r in range(8): k(f"v_exp_f32 v{P0+r}, v{P0+r}")
    k(f"v_add_f32 v{T0}, v{P0}, v{P0+1}")
    k(f"v_add_f32 v{T1}, v{P0+2}, v{P0+3}")
    k(f"v_add_f32 v{T0}, v{T0}, v{P0+4}")
    k(f"v_add_f32 v{T1}, v{T1}, v{P0+5}")
    k(f"v_add_f32 v{T0}, v{T0}, v{P0+6}")
    k(f"v_add_f32 v{T1}, v{T1}, v{P0+7}")
    k(f"v_add_f32 v{T0}, v{T0}, v{T1}")
    k(f"v_cndmask_b32 v{T0}, 0, v{T0}, s[50:51]")
    for dpp in ("quad_perm:[1,0,3,2]", "quad_perm:[2,3,0,1]", "row_half_mirror"):
        k(f"v_add_f32 v{T0}, v{T0}, v{T0} {dpp} row_mask:0xf bank_mask:0xf")
    k(f"v_rcp_f32 v{T0}, v{T0}")
    for r in range(8): k(f"v_mul_f32 v{P0+r}, v{P0+r}, v{T0}")
    for q in range(4): k(f"v_cvt_pk_bf16_f32 v{P0+8+q}, v{P0+2*q}, v{P0+2*q+1}")
    for q in range(4): k(f"v_min_u32 v{P0+8+q}, -2, v{P0+8+q}")

def sum4x8(k, P0, addr, stride):
    for w in range(4):
        k(f"ds_read_b128 v[{P0+8*w}:{P0+8*w+3}], v{addr} offset:{w*stride}")
        k(f"ds_read_b128 v[{P0+8*w+4}:{P0+8*w+7}], v{addr} offset:{w*stride+16}")
    k("s_waitcnt lgkmcnt(4)")
    for r in range(0, 8, 2): k(f"v_pk_add_f32 v[{P0+r}:{P0+r+1}], v[{P0+r}:{P0+r+1}], v[{P0+8+r}:{P0+8+r+1}]")
    k("s_waitcnt lgkmcnt(0)")
    for r in range(0, 8, 2): k(f"v_pk_add_f32 v[{P0+16+r}:{P0+16+r+1}], v[{P0+16+r}:{P0+16+r+1}], v[{P0+24+r}:{P0+24+r+1}]")
    for r in range(0, 8, 2): k(f"v_pk_add_f32 v[{P0+r}:{P0+r+1}], v[{P0+r}:{P0+r+1}], v[{P0+16+r}:{P0+16+r+1}]")


def tr_frag(k, reg, kind, addr, RS, off):
    for q, ro in enumerate((0, 2, 32, 34)):
        k(f"ds_read_b64_tr_b16 {kind}[{reg+2*q}:{reg+2*q+1}], v{addr} offset:{off + ro*RS}")

def m0_image(k, srd, t0):
    for p in range(3):
        k(f"s_lshl_b32 s24, s3, 6"); k(f"s_add_u32 s24, s24, {256*p}")
        k(f"v_add_u32 v{t0}, s24, v1")
        k(f"v_and_b32 v{t0+1}, 7, v{t0}")
        k(f"v_mul_u32_u24 v{t0+1}, 1280, v{t0+1}")
        k(f"v_lshrrev_b32 v{t0+2}, 3, v{t0}")
        k(f"v_lshl_add_u32 v{t0+1}, v{t0+2}, 4, v{t0+1}")
        k(f"v_cmp_gt_u32 vcc, 640, v{t0}")
        k(f"v_mov_b32 v{t0+3}, {OOB}")
        k(f"v_cndmask_b32 v{t0+1}, v{t0+3}, v{t0+1}, vcc")
        k(f"buffer_load_dwordx4 v[{t0+4}:{t0+7}], v{t0+1}, s[{srd}:{srd+3}], 0 offen")
        k(f"v_lshlrev_b32 v{t0}, 4, v{t0}")
        k("s_waitcnt vmcnt(0)")
        k(f"s_and_saveexec_b64 s[30:31], vcc")
        k(f"ds_write_b128 v{t0}, v[{t0+4}:{t0+7}]")
        k("s_mov_b64 exec, s[30:31]")

def stamp(k, i):
    if CFG['stamp']: k(f"s_memrealtime s[{80+2*i}:{81+2*i}]")

def stamp_out(k, nst, t):
    if not CFG['stamp']: return
    k("s_lshl_b32 s34, s2, 2"); k("s_add_u32 s34, s34, s3"); k("s_lshl_b32 s34, s34, 7")
    k("s_lshl_b32 s35, s92, 6"); k("s_add_u32 s34, s34, s35")
    k("s_add_u32 s34, s34, s40"); k("s_lshl_b32 s34, s34, 5"); k(f"s_add_u32 s34, s34, {WS_TRACE}")
    k(f"v_mov_b32 v{t}, {OOB}")
    k("v_cmp_eq_u32 vcc, 0, v1")
    k(f"v_cndmask_b32 v{t}, v{t}, 0, vcc")
    for i in range(nst):
        k(f"v_mov_b32 v{t+1}, s{80+2*i}")
        k(f"buffer_store_dword v{t+1}, v{t}, s[8:11], s34 offen offset:{i*4}")
    for i, sreg in ((6, 's57'), (7, 's56')):
        k(f"v_mov_b32 v{t+1}, {sreg}")
        k(f"buffer_store_dword v{t+1}, v{t}, s[8:11], s34 offen offset:{i*4}")

WS_EVT = 0x01C00000
def event(k, idx, t=14):
    if not CFG['stamp']: return
    k("s_memrealtime s[96:97]")
    k("s_lshl_b32 s34, s2, 7"); k("s_lshl_b32 s35, s92, 6"); k("s_add_u32 s34, s34, s35"); k(f"s_add_u32 s34, s34, {WS_EVT + 4*idx}")
    k("s_cmp_eq_u32 s3, 0"); k(f"s_cselect_b32 s34, s34, {OOB}")
    k(f"v_mov_b32 v{t}, {OOB}")
    k("v_cmp_eq_u32 vcc, 0, v1")
    k(f"v_cndmask_b32 v{t}, v{t}, 0, vcc")
    k("s_waitcnt lgkmcnt(0)")
    k(f"v_mov_b32 v{t+1}, s96")
    k(f"buffer_store_dword v{t+1}, v{t}, s[8:11], s34 offen")

def ensure(k, name, nfl, addr, tmp, need='s63', known='s62', sleep=2):
    k(f"s_cmp_ge_i32 {known}, {need}")
    k(f"s_cbranch_scc1 {k.ref(name + '_ok')}")
    if callable(addr):
        addr(k, tmp + 1); addr = tmp + 1
    k("s_mov_b32 s61, 0")
    k.lab(name)
    k(f"buffer_load_dword v{tmp}, v{addr}, s[8:11], 0 offen sc1")
    k("s_waitcnt vmcnt(0)")
    k(f"v_readlane_b32 {known}, v{tmp}, 0")
    for i in range(1, nfl):
        k(f"v_readlane_b32 s24, v{tmp}, {i}")
        k(f"s_min_i32 {known}, {known}, s24")
    k(f"s_cmp_ge_i32 {known}, {need}")
    k(f"s_cbranch_scc1 {k.ref(name + '_ok')}")
    k("s_add_u32 s61, s61, 1")
    k("s_cmp_ge_u32 s61, s60")
    k(f"s_cbranch_scc1 {k.ref(name + '_to')}")
    k(f"s_sleep {sleep}")
    k(f"s_branch {k.ref(name)}")
    k.lab(name + '_to')
    k("s_mov_b32 s60, 1")
    k.lab(name + '_ok')

def clr_addr(k, dst):
    k("s_and_b32 s24, s2, 7"); k("s_lshl_b32 s24, s24, 7"); k(f"s_add_u32 s24, s24, {WS_FLG + F_C}")
    k(f"v_and_b32 v{dst}, 3, v1"); k(f"v_lshl_add_u32 v{dst}, v{dst}, 2, s24")

def ensure_clear(k, name, tmp, blk):
    k("s_lshl_b32 s95, s92, 6"); k(f"s_add_u32 s95, s95, {blk}"); k("s_add_u32 s95, s95, 1")
    ensure(k, name, 3, clr_addr, tmp, need='s95', known='s59')

def wait_all(k, name, n, t, need, sleep=2):
    k("s_mov_b32 s61, 0")
    k.lab(name)
    k(f"buffer_load_dword v{t}, v{t+1}, s[8:11], 0 offen sc1")
    k("s_waitcnt vmcnt(0)")
    k(f"v_cmp_le_i32 vcc, {need}, v{t}")
    mask = ((1 << n) - 1) if isinstance(n, int) else n
    if isinstance(n, int): k(f"s_mov_b32 s25, {hex(mask & 0xffffffff)}"); mask = 's25'
    k(f"s_and_b32 s24, vcc_lo, {mask}")
    k(f"s_cmp_eq_u32 s24, {mask}")
    k(f"s_cbranch_scc1 {k.ref(name + '_ok')}")
    k("s_add_u32 s61, s61, 1")
    k("s_cmp_ge_u32 s61, s60")
    k(f"s_cbranch_scc1 {k.ref(name + '_to')}")
    k(f"s_sleep {sleep}")
    k(f"s_branch {k.ref(name)}")
    k.lab(name + '_to')
    k("s_mov_b32 s60, 1")
    k.lab(name + '_ok')

def pub_dword(k, saddr, val, t, copies=1):
    l = k.new('pb')
    k("s_cmp_eq_u32 s3, 0")
    k(f"s_cbranch_scc0 {k.ref(l)}")
    k(f"v_lshlrev_b32 v{t}, 7, v1"); k(f"v_add_u32 v{t}, {saddr}, v{t}")
    k(f"v_mov_b32 v{t+1}, {OOB}"); k(f"v_cmp_le_u32 vcc, {copies}, v1"); k(f"v_cndmask_b32 v{t}, v{t}, v{t+1}, vcc")
    k(f"v_mov_b32 v{t+1}, {val}")
    k(f"buffer_store_dword v{t+1}, v{t}, s[8:11], 0 offen sc1")
    k.lab(l)

def next_layer(k, again):
    k("s_cmp_eq_u32 s92, 0")
    k(f"s_cbranch_scc0 {k.ref('end')}")
    k("s_mov_b32 s92, 1")
    k(f"s_branch {k.ref(again)}")

def layer_bases(k):
    k(f"s_mul_i32 s93, s92, {SYNC_LAYER}"); k(f"s_add_u32 s93, s93, {WS_SYNC}")
    k(f"s_mul_i32 s94, s92, {F_LAYER}"); k(f"s_add_u32 s94, s94, {WS_FLG + F_Q}")


def role_S(k):
    L_M, L_X, L_SP, L_DUM, L_W5, L_ST = 0, 10240, 16384, 22528, 24576, 106496
    RS = 400
    ACC, AF, WS5 = 24, 48, 68
    KX = 240
    QX = 80
    T0, T1 = 92, 93
    def wreg(t, c):
        if t < 3: return 'a', t * 80 + c * 8
        return 'v', 96 + (t - 3) * 80 + c * 8
    k("s_mov_b32 s44, s2")
    k.ptr(KA_WQ, 6); k.ptr(KA_WK, 24); k.ptr(KA_MEM0, 26)
    k("s_waitcnt lgkmcnt(0)")
    k.srd(12, 6, D * HD * 2); k.srd(16, 24, D * HD * 2); k.srd(20, 26, 8 * 640 * 2)
    GO, LO, DAT = 4, 10, 24
    stage_offsets(k, 6, 24, HD * 2, RS, L_ST, GO, LO, 16)
    tr_base(k, 16, RS, L_ST, 17)
    k("s_mul_i32 s24, s3, 96")
    k("v_add_u32 v16, s24, v16")
    k("v_lshlrev_b32 v17, 4, v1")
    k(f"s_mul_i32 s24, s3, 20480"); k(f"s_add_u32 s24, s24, {L_W5}")
    k("v_add_u32 v17, s24, v17")
    k(f"s_mul_i32 s45, s44, 384")
    blocks = [(c, m) for c in range(10) for m in range(2)]
    def loads(bi):
        c, m = blocks[bi]
        d = DAT + 24 * (bi % 3)
        k(f"s_add_u32 s46, s45, {c * 64 * HD * 2}")
        for i in range(6):
            k(f"buffer_load_dwordx4 v[{d+4*i}:{d+4*i+3}], v{GO+i}, s[{12+4*m}:{15+4*m}], s46 offen")
    loads(0); loads(1)
    for bi, (c, m) in enumerate(blocks):
        d = DAT + 24 * (bi % 3)
        k(f"s_waitcnt vmcnt({6 if bi + 1 < len(blocks) else 0})")
        for i in range(6): k(f"ds_write_b128 v{LO+i}, v[{d+4*i}:{d+4*i+3}]")
        if bi + 2 < len(blocks): loads(bi + 2)
        k("s_waitcnt lgkmcnt(0)")
        k("s_barrier")
        for t in range(3):
            tt = 3 * m + t
            if tt < 5:
                kind, r = wreg(tt, c)
                tr_frag(k, r, kind, 16, RS, 32 * t)
        if m == 1:
            tr_frag(k, d, 'v', 16, RS, 64)
            k("s_waitcnt lgkmcnt(0)")
            k(f"ds_write_b128 v17, v[{d}:{d+3}] offset:{c*2048}")
            k(f"ds_write_b128 v17, v[{d+4}:{d+7}] offset:{c*2048+1024}")
        k("s_waitcnt lgkmcnt(0)")
        k("s_barrier")
    A_, B_, C_, D_ = 30, 31, 32, 33
    k("v_mov_b32 v6, v17")
    k(f"v_mov_b32 v{A_}, 0xeeee"); k("v_mov_b32 v4, 0x4444")
    k("v_cmp_gt_u32 vcc, 8, v2")
    k(f"v_cndmask_b32 v4, v{A_}, v4, vcc")
    k("v_lshlrev_b32 v5, 4, v1")
    k("s_lshl_b32 s24, s3, 10")
    k("v_add_u32 v7, s24, v5")
    k("s_lshl_b32 s24, s3, 9"); k("s_add_u32 s24, s24, 8192")
    k("v_lshlrev_b32 v8, 3, v1")
    k("v_add_u32 v8, s24, v8")
    k(f"s_mul_i32 s24, s3, 1536"); k(f"s_add_u32 s24, s24, {L_X}")
    k("v_lshlrev_b32 v9, 5, v2")
    k("v_lshl_add_u32 v9, v3, 3, v9")
    k("v_add_u32 v9, s24, v9")
    k(f"v_lshrrev_b32 v{A_}, 2, v2"); k(f"v_and_b32 v{B_}, 3, v2")
    k(f"v_lshl_add_u32 v11, v3, 2, v{A_}")
    k("v_lshlrev_b32 v11, 5, v11")
    k(f"v_lshl_add_u32 v11, v{B_}, 3, v11")
    k("v_add_u32 v11, s24, v11")
    k(f"v_add_u32 v{D_}, {L_DUM}, v5")
    k(f"s_mul_i32 s24, s3, 1408"); k(f"s_add_u32 s24, s24, {L_SP}")
    k(f"v_mul_u32_u24 v{A_}, 176, v2")
    k(f"v_add_u32 v{A_}, s24, v{A_}")
    k(f"v_lshl_add_u32 v12, v3, 5, v{A_}")
    k("v_cmp_gt_u32 vcc, 8, v2")
    k(f"v_cndmask_b32 v12, v{D_}, v12, vcc")
    k(f"v_lshl_add_u32 v13, v3, 4, v{A_}")
    k("v_add_u32 v13, 96, v13")
    k("v_cmp_le_u32 s[24:25], 2, v3")
    k("s_and_b64 vcc, vcc, s[24:25]")
    k(f"v_cndmask_b32 v13, v{D_}, v13, vcc")
    k(f"s_mul_i32 s24, s3, 5632"); k(f"s_add_u32 s24, s24, {L_ST}")
    k(f"v_mul_u32_u24 v{A_}, 176, v2")
    k(f"v_add_u32 v{A_}, s24, v{A_}")
    k(f"v_lshl_add_u32 v16, v3, 5, v{A_}")
    k(f"v_lshl_add_u32 v17, v3, 4, v{A_}")
    k("v_add_u32 v17, 96, v17")
    k("v_add_u32 v18, 2816, v17")
    k("v_cmp_le_u32 vcc, 2, v3")
    k(f"v_cndmask_b32 v17, v{D_}, v17, vcc")
    k(f"v_cndmask_b32 v18, v{D_}, v18, vcc")
    k(f"v_lshrrev_b32 v{A_}, 3, v1")
    k(f"v_and_b32 v{B_}, 7, v1")
    k(f"v_min_u32 v{C_}, 4, v{B_}")
    k(f"v_mul_u32_u24 v14, 176, v{A_}")
    k(f"v_lshl_add_u32 v14, v{C_}, 5, v14")
    k("s_mul_i32 s24, s3, 1408"); k(f"s_add_u32 s24, s24, {L_ST}")
    k("v_add_u32 v21, s24, v14")
    k(f"v_add_u32 v14, {L_SP}, v14")
    k(f"v_cmp_gt_u32 s[50:51], 5, v{B_}")
    k("s_lshl_b32 s24, s3, 3")
    k(f"v_add_u32 v{C_}, s24, v{A_}")
    k(f"v_lshlrev_b32 v{D_}, 2, v{B_}")
    k(f"v_sub_u32 v{C_}, v{C_}, v{D_}")
    k(f"v_mov_b32 v{D_}, 100")
    k(f"v_cmp_gt_u32 vcc, 4, v{B_}")
    k(f"v_cndmask_b32 v{C_}, v{D_}, v{C_}, vcc")
    for j in range(8):
        cj = j if j < 4 else j + 12
        k(f"v_cmp_le_i32 s[{64+2*j}:{65+2*j}], {cj}, v{C_}")
    k("s_lshr_b32 s24, s44, 1"); k("s_lshl_b32 s24, s24, 10")
    k("s_and_b32 s25, s44, 1"); k("s_lshl_b32 s25, s25, 7"); k("s_add_u32 s24, s24, s25")
    k(f"v_lshlrev_b32 v15, 8, v{B_}")
    k(f"v_lshl_add_u32 v15, v{A_}, 4, v15")
    k("v_add_u32 v15, s24, v15")
    k("s_lshr_b32 s24, s44, 3"); k("s_lshl_b32 s24, s24, 10")
    k("s_and_b32 s25, s44, 3"); k("s_lshl_b32 s25, s25, 8"); k("s_add_u32 s24, s24, s25")
    k("s_lshr_b32 s25, s44, 2"); k("s_and_b32 s25, s25, 1"); k("s_lshl_b32 s25, s25, 7"); k("s_add_u32 s24, s24, s25")
    k("s_add_u32 s24, s24, 16384")
    k(f"v_lshlrev_b32 v{C_}, 4, v{A_}")
    k(f"v_add_u32 v{C_}, s24, v{C_}")
    k(f"v_cmp_eq_u32 vcc, 4, v{B_}")
    k(f"v_cndmask_b32 v15, v15, v{C_}, vcc")
    k(f"v_mov_b32 v{C_}, {OOB}")
    k(f"v_cndmask_b32 v15, v{C_}, v15, s[50:51]")
    k(f"s_cmp_lt_u32 s3, 1"); k(f"s_cselect_b32 s24, 0, {OOB}")
    k("v_or_b32 v15, s24, v15")
    k("s_and_b32 s24, s3, 1"); k("s_lshl_b32 s24, s24, 7")
    k("s_lshr_b32 s25, s3, 1"); k("s_lshl_b32 s25, s25, 10")
    k("s_add_u32 s24, s24, s25")
    k("s_lshl_b32 s25, s44, 11"); k("s_add_u32 s25, s25, s24")
    k(f"v_lshlrev_b32 v22, 8, v{B_}")
    k(f"v_lshl_add_u32 v22, v{A_}, 4, v22")
    k("v_add_u32 v22, s25, v22")
    k("s_lshr_b32 s25, s44, 2"); k("s_lshl_b32 s25, s25, 11"); k("s_add_u32 s25, s25, s24")
    k("s_and_b32 s26, s44, 3"); k("s_lshl_b32 s26, s26, 8"); k("s_add_u32 s25, s25, s26"); k("s_add_u32 s25, s25, 65536")
    k(f"v_lshlrev_b32 v{C_}, 4, v{A_}")
    k(f"v_add_u32 v{C_}, s25, v{C_}")
    k(f"v_cmp_eq_u32 vcc, 4, v{B_}")
    k(f"v_cndmask_b32 v22, v22, v{C_}, vcc")
    k(f"v_mov_b32 v{C_}, {OOB}")
    k(f"v_cndmask_b32 v22, v{C_}, v22, s[50:51]")
    k("s_mul_i32 s24, s44, 12288"); k("s_mul_i32 s25, s3, 3072"); k("s_add_u32 s24, s24, s25")
    k("v_add_u32 v19, s24, v5")
    aprobe_addr(k, 23, 's2', RH_M)
    k("s_lshr_b32 s25, s44, 3")
    ahint_addr(k, 20, A_, 's25', RH_P, True)
    k("v_mov_b32 v0, 1")
    event(k, 1, 48)
    k.lab('s_layer')
    layer_bases(k)
    k("v_and_b32 v10, 1, v1")
    k("v_lshlrev_b32 v10, 12, v10")
    k(f"s_lshl_b32 s24, s44, 7"); k(f"s_add_u32 s24, s24, s94")
    k("v_add_u32 v10, s24, v10")
    m0_image(k, 20, 48)
    k("s_mov_b32 s40, 0")
    k(f"s_mov_b32 s41, {WS_KF}")
    k(f"s_add_u32 s42, s93, {O_PX}")
    k(f"s_add_u32 s43, s93, {O_PB}")
    k(f"s_mov_b32 s45, {WS_QF}")
    k(f"s_add_u32 s47, s93, {O_MB - SYNC_STEP}")
    k(f"s_add_u32 s48, s93, {O_HR - SYNC_STEP}")
    k(f"s_add_u32 s49, s93, {O_HS}")
    def kx_loads():
        for b in range(3):
            k(f"buffer_load_dwordx4 a[{KX+4*b}:{KX+4*b+3}], v19, s[8:11], s41 offen offset:{b*1024} sc1")
    ensure_clear(k, 's_ec0', 48, 's40')
    k("s_mov_b32 s62, -1"); k("s_mov_b32 s63, 1")
    ensure(k, 's_en0', 2, 10, 48)
    kx_loads()
    event(k, 2, 48)
    k("s_waitcnt lgkmcnt(0)")
    k(f"s_branch {k.ref('s_go')}")
    P0 = 48
    def px_tail(t0, t1):
        sum4x8(k, P0, 21, 5632)
        softmax8(k, P0, t0, t1, masks=64)
        k(f"buffer_store_dwordx4 v[{P0+8}:{P0+11}], v22, s[8:11], s42 offen sc1")
        k(f"s_add_u32 s42, s42, {SYNC_STEP}")
    k.lab('s_step')
    stamp(k, 0)
    for r in range(24): k(f"v_mov_b32 v{ACC+r}, 0")
    loads_ = [f"buffer_load_dwordx4 v[84:87], v7, s[8:11], s47 offen sc1",
              f"buffer_load_dwordx4 v[88:91], v7, s[8:11], s46 offen sc1",
              f"buffer_load_dwordx2 v[92:93], v8, s[8:11], s47 offen sc1"]
    k("s_add_u32 s46, s47, 4096")
    ensure_clear(k, 's_ec', 48, 's40')
    k("s_add_u32 s63, s40, 1")
    ensure(k, 's_en', 2, 10, 48)
    aprobe(k, 's_pr', 23, 's48', 9, [82, 83, 94, 95], CFG['pd_m'], CFG['pdep'], CFG['dly_m'])
    for l in loads_: k(l)
    kx_loads()
    px_tail(80, 81)
    shot_check(k, 's_pm', loads_, range(84, 94), 58, 4, CFG['sl_m'])
    o = 84
    stamp(k, 1)
    k(f"ds_write_b128 v7, v[{o}:{o+3}]")
    k(f"ds_write_b128 v7, v[{o+4}:{o+7}] offset:4096")
    k(f"ds_write_b64 v8, v[{o+8}:{o+9}]")
    k("s_waitcnt lgkmcnt(0)")
    k.lab('s_go2')
    k("s_barrier")
    lg = LG(k)
    def rdA(c): lg.issue(('A', c), f"ds_read_b128 v[{AF+4*(c%5)}:{AF+4*(c%5)+3}], v5 offset:{c*1024}")
    def rdW(c):
        b = WS5 + 8 * (c % 2)
        lg.issue(('W', c), f"ds_read_b128 v[{b}:{b+3}], v6 offset:{c*2048}")
        lg.issue(('W', c), f"ds_read_b128 v[{b+4}:{b+7}], v6 offset:{c*2048+1024}")
    rdA(0); rdW(0); rdA(1); rdW(1); rdA(2); rdA(3); rdA(4)
    for c in range(10):
        a = AF + 4 * (c % 5)
        lg.wait(('A', c))
        for t in range(5):
            kind, r = wreg(t, c)
            k(f"v_smfmac_f32_16x16x64_bf16 v[{ACC+4*t}:{ACC+4*t+3}], v[{a}:{a+3}], {kind}[{r}:{r+7}], v4")
        lg.wait(('W', c))
        b = WS5 + 8 * (c % 2)
        k(f"v_smfmac_f32_16x16x64_bf16 v[{ACC+20}:{ACC+23}], v[{a}:{a+3}], v[{b}:{b+7}], v4")
        if c + 2 < 10: rdW(c + 2)
        if c + 5 < 10: rdA(c + 5)
    stamp(k, 2)
    for b in range(3):
        k(f"buffer_load_dwordx4 v[{QX+4*b}:{QX+4*b+3}], v19, s[8:11], s45 offen offset:{b*1024} sc1")
    k("s_waitcnt vmcnt(3)")
    def s_hint(): ahint(k, 20, 0, 's49')
    if CFG['hs_pos'] == 2: s_hint()
    T = 48
    for t in range(3):
        q = ACC + 4 * t; kk = ACC + 12 + 4 * t
        for r in range(4): k(f"v_permlane32_swap_b32 v{q+r}, v{kk+r}")
        for r in range(4): k(f"v_add_f32 v{q+r}, v{q+r}, v{kk+r}")
        k(f"v_cvt_pk_bf16_f32 v{T+2*t}, v{q}, v{q+1}")
        k(f"v_cvt_pk_bf16_f32 v{T+2*t+1}, v{q+2}, v{q+3}")
        k(f"ds_write_b64 v9, v[{T+2*t}:{T+2*t+1}] offset:{t*512}")
    XA, XB = 24, 28
    k("s_waitcnt lgkmcnt(0)")
    k(f"ds_read_b64_tr_b16 v[{XA}:{XA+1}], v11")
    k(f"ds_read_b64_tr_b16 v[{XA+2}:{XA+3}], v11 offset:512")
    k(f"ds_read_b64_tr_b16 v[{XB}:{XB+1}], v11 offset:1024")
    k("s_waitcnt lgkmcnt(0)")
    SC = 64
    k(f"v_mfma_f32_16x16x32_bf16 v[{SC}:{SC+3}], a[{KX}:{KX+3}], v[{XA}:{XA+3}], 0")
    k(f"v_mfma_f32_16x16x32_bf16 v[{SC+4}:{SC+7}], a[{KX+4}:{KX+7}], v[{XA}:{XA+3}], 0")
    k(f"v_mfma_f32_16x16x32_bf16 v[{SC+8}:{SC+11}], v[{XA}:{XA+3}], v[{XA}:{XA+3}], 0")
    k(f"v_mfma_f32_16x16x16_bf16 v[{SC}:{SC+3}], a[{KX+8}:{KX+9}], v[{XB}:{XB+1}], v[{SC}:{SC+3}]")
    k(f"v_mfma_f32_16x16x16_bf16 v[{SC+4}:{SC+7}], a[{KX+10}:{KX+11}], v[{XB}:{XB+1}], v[{SC+4}:{SC+7}]")
    k(f"v_mfma_f32_16x16x16_bf16 v[{SC+8}:{SC+11}], v[{XB}:{XB+1}], v[{XB}:{XB+1}], v[{SC+8}:{SC+11}]")
    k(f"ds_write_b128 v12, v[{SC}:{SC+3}]")
    k(f"ds_write_b128 v12, v[{SC+4}:{SC+7}] offset:16")
    k(f"ds_write_b128 v13, v[{SC+8}:{SC+11}]")
    k("s_waitcnt lgkmcnt(0)")
    k("s_barrier")
    if CFG['hs_pos'] == 3: s_hint()
    stamp(k, 3)
    sum4x8(k, P0, 14, 1408)
    softmax8(k, P0, T0, T1)
    k(f"buffer_store_dwordx4 v[{P0+8}:{P0+11}], v15, s[8:11], s43 offen sc1")
    stamp(k, 4)
    sx = lambda kt, tt: (32 + (kt * 2 + tt) * 4) if (kt * 2 + tt) < 4 else (64 + ((kt * 2 + tt) - 4) * 4)
    k(f"s_waitcnt vmcnt(2)")
    keys32 = [f"a[{KX}:{KX+3}]", f"a[{KX+4}:{KX+7}]", f"v[{XA}:{XA+3}]"]
    keys16 = [f"a[{KX+8}:{KX+9}]", f"a[{KX+10}:{KX+11}]", f"v[{XB}:{XB+1}]"]
    for tt in range(2):
        for kt in range(3):
            a = sx(kt, tt)
            k(f"v_mfma_f32_16x16x32_bf16 v[{a}:{a+3}], {keys32[kt]}, v[{QX+4*tt}:{QX+4*tt+3}], 0")
    for tt in range(2):
        for kt in range(3):
            a = sx(kt, tt)
            k(f"v_mfma_f32_16x16x16_bf16 v[{a}:{a+3}], {keys16[kt]}, v[{QX+8+2*tt}:{QX+8+2*tt+1}], v[{a}:{a+3}]")
    for tt in range(2):
        k(f"ds_write_b128 v16, v[{sx(0,tt)}:{sx(0,tt)+3}] offset:{tt*2816}")
        k(f"ds_write_b128 v16, v[{sx(1,tt)}:{sx(1,tt)+3}] offset:{tt*2816+16}")
        k(f"ds_write_b128 v{17+tt}, v[{sx(2,tt)}:{sx(2,tt)+3}]")
    k("s_add_u32 s40, s40, 1")
    k(f"s_add_u32 s41, s41, {QF_SEG}")
    k(f"s_add_u32 s45, s45, {QF_SEG}")
    for sreg in ('s43', 's47', 's48', 's49'): k(f"s_add_u32 {sreg}, {sreg}, {SYNC_STEP}")
    k("s_waitcnt lgkmcnt(0)")
    k("s_barrier")
    stamp(k, 5)
    if CFG['stamp']:
        k("s_sub_u32 s40, s40, 1"); stamp_out(k, 6, 46); k("s_add_u32 s40, s40, 1")
    k("s_cmp_lt_u32 s40, 64")
    k(f"s_cbranch_scc1 {k.ref('s_step')}")
    px_tail(80, 81)
    event(k, 3, 48)
    next_layer(k, 's_layer')
    k.lab('s_go')
    for r in range(24): k(f"v_mov_b32 v{ACC+r}, 0")
    k("s_waitcnt vmcnt(0)")
    k(f"s_branch {k.ref('s_go2')}")

def role_S2(k):
    L_M, L_X, L_SP, L_DUM, L_W5, L_ST = 0, 10240, 16384, 22528, 24576, 106496
    RS = 400
    ACC, AF, WS5 = 24, 48, 68
    KX = 240
    QX = 80
    T0, T1 = 92, 93
    def wreg(t, c):
        if t < 3: return 'a', t * 80 + c * 8
        return 'v', 96 + (t - 4) * 80 + c * 8
    k("s_mov_b32 s44, s2")
    k.ptr(KA_WQ, 6); k.ptr(KA_WK, 24); k.ptr(KA_MEM0, 26)
    k("s_waitcnt lgkmcnt(0)")
    k.srd(12, 6, D * HD * 2); k.srd(16, 24, D * HD * 2); k.srd(20, 26, 8 * 640 * 2)
    GO, LO, DAT = 4, 10, 24
    stage_offsets(k, 6, 24, HD * 2, RS, L_ST, GO, LO, 16)
    tr_base(k, 16, RS, L_ST, 17)
    k("s_mul_i32 s24, s3, 96")
    k("v_add_u32 v16, s24, v16")
    k("v_lshlrev_b32 v17, 4, v1")
    k(f"s_mul_i32 s24, s3, 20480"); k(f"s_add_u32 s24, s24, {L_W5}")
    k("v_add_u32 v17, s24, v17")
    k(f"s_mul_i32 s45, s44, 384")
    blocks = [(c, m) for c in range(10) for m in range(2)]
    def loads(bi):
        c, m = blocks[bi]
        d = DAT + 24 * (bi % 3)
        k(f"s_add_u32 s46, s45, {c * 64 * HD * 2}")
        for i in range(6):
            k(f"buffer_load_dwordx4 v[{d+4*i}:{d+4*i+3}], v{GO+i}, s[{12+4*m}:{15+4*m}], s46 offen")
    loads(0); loads(1)
    for bi, (c, m) in enumerate(blocks):
        d = DAT + 24 * (bi % 3)
        k(f"s_waitcnt vmcnt({6 if bi + 1 < len(blocks) else 0})")
        for i in range(6): k(f"ds_write_b128 v{LO+i}, v[{d+4*i}:{d+4*i+3}]")
        if bi + 2 < len(blocks): loads(bi + 2)
        k("s_waitcnt lgkmcnt(0)")
        k("s_barrier")
        for t in range(3):
            tt = 3 * m + t
            if tt != 3:
                kind, r = wreg(tt, c)
                tr_frag(k, r, kind, 16, RS, 32 * t)
        if m == 1:
            tr_frag(k, d, 'v', 16, RS, 0)
            k("s_waitcnt lgkmcnt(0)")
            k(f"ds_write_b128 v17, v[{d}:{d+3}] offset:{c*2048}")
            k(f"ds_write_b128 v17, v[{d+4}:{d+7}] offset:{c*2048+1024}")
        k("s_waitcnt lgkmcnt(0)")
        k("s_barrier")
    A_, B_, C_, D_ = 30, 31, 32, 33
    k("v_mov_b32 v6, v17")
    k(f"v_mov_b32 v{A_}, 0xeeee"); k("v_mov_b32 v4, 0x4444")
    k("v_cmp_gt_u32 vcc, 8, v2")
    k(f"v_cndmask_b32 v4, v{A_}, v4, vcc")
    k("v_lshlrev_b32 v5, 4, v1")
    k("s_lshl_b32 s24, s3, 10")
    k("v_add_u32 v7, s24, v5")
    k("s_lshl_b32 s24, s3, 9"); k("s_add_u32 s24, s24, 8192")
    k("v_lshlrev_b32 v8, 3, v1")
    k("v_add_u32 v8, s24, v8")
    k(f"v_and_b32 v{A_}, 1, v2"); k(f"v_lshlrev_b32 v{A_}, 4, v{A_}")
    k(f"v_mov_b32 v{B_}, 0x3f80"); k(f"v_lshlrev_b32 v{B_}, v{A_}, v{B_}")
    k(f"v_lshrrev_b32 v{A_}, 2, v2"); k(f"v_cmp_eq_u32 vcc, v{A_}, v3"); k(f"v_cndmask_b32 v{B_}, 0, v{B_}, vcc")
    k(f"v_and_b32 v{A_}, 2, v2"); k(f"v_cmp_eq_u32 vcc, 0, v{A_}")
    k(f"v_cndmask_b32 v10, 0, v{B_}, vcc"); k(f"v_cndmask_b32 v11, v{B_}, 0, vcc")
    k(f"v_add_u32 v{D_}, {L_DUM}, v5")
    k(f"s_mul_i32 s24, s3, 1408"); k(f"s_add_u32 s24, s24, {L_SP}")
    k(f"v_mul_u32_u24 v{A_}, 176, v2")
    k(f"v_add_u32 v{A_}, s24, v{A_}")
    k(f"v_lshl_add_u32 v12, v3, 5, v{A_}")
    k("v_cmp_gt_u32 vcc, 8, v2")
    k(f"v_cndmask_b32 v12, v{D_}, v12, vcc")
    k(f"v_lshl_add_u32 v13, v3, 4, v{A_}")
    k("v_add_u32 v13, 96, v13")
    k("v_cmp_le_u32 s[24:25], 2, v3")
    k("s_and_b64 vcc, vcc, s[24:25]")
    k(f"v_cndmask_b32 v13, v{D_}, v13, vcc")
    k(f"s_mul_i32 s24, s3, 5632"); k(f"s_add_u32 s24, s24, {L_ST}")
    k(f"v_mul_u32_u24 v{A_}, 176, v2")
    k(f"v_add_u32 v{A_}, s24, v{A_}")
    k(f"v_lshl_add_u32 v16, v3, 5, v{A_}")
    k(f"v_lshl_add_u32 v17, v3, 4, v{A_}")
    k("v_add_u32 v17, 96, v17")
    k("v_add_u32 v18, 2816, v17")
    k("v_cmp_le_u32 vcc, 2, v3")
    k(f"v_cndmask_b32 v17, v{D_}, v17, vcc")
    k(f"v_cndmask_b32 v18, v{D_}, v18, vcc")
    k(f"v_lshrrev_b32 v{A_}, 3, v1")
    k(f"v_and_b32 v{B_}, 7, v1")
    k(f"v_min_u32 v{C_}, 4, v{B_}")
    k(f"v_mul_u32_u24 v14, 176, v{A_}")
    k(f"v_lshl_add_u32 v14, v{C_}, 5, v14")
    k("s_mul_i32 s24, s3, 1408"); k(f"s_add_u32 s24, s24, {L_ST}")
    k("v_add_u32 v21, s24, v14")
    k(f"v_add_u32 v14, {L_SP}, v14")
    k(f"v_cmp_gt_u32 s[50:51], 5, v{B_}")
    k("s_lshl_b32 s24, s3, 3")
    k(f"v_add_u32 v{C_}, s24, v{A_}")
    k(f"v_lshlrev_b32 v{D_}, 2, v{B_}")
    k(f"v_sub_u32 v{C_}, v{C_}, v{D_}")
    k(f"v_mov_b32 v{D_}, 100")
    k(f"v_cmp_gt_u32 vcc, 4, v{B_}")
    k(f"v_cndmask_b32 v{C_}, v{D_}, v{C_}, vcc")
    for j in range(8):
        cj = j if j < 4 else j + 12
        k(f"v_cmp_le_i32 s[{64+2*j}:{65+2*j}], {cj}, v{C_}")
    k("s_lshr_b32 s24, s44, 1"); k("s_lshl_b32 s24, s24, 10")
    k("s_and_b32 s25, s44, 1"); k("s_lshl_b32 s25, s25, 7"); k("s_add_u32 s24, s24, s25")
    k(f"v_lshlrev_b32 v15, 8, v{B_}")
    k(f"v_lshl_add_u32 v15, v{A_}, 4, v15")
    k("v_add_u32 v15, s24, v15")
    k("s_lshr_b32 s24, s44, 3"); k("s_lshl_b32 s24, s24, 10")
    k("s_and_b32 s25, s44, 3"); k("s_lshl_b32 s25, s25, 8"); k("s_add_u32 s24, s24, s25")
    k("s_lshr_b32 s25, s44, 2"); k("s_and_b32 s25, s25, 1"); k("s_lshl_b32 s25, s25, 7"); k("s_add_u32 s24, s24, s25")
    k("s_add_u32 s24, s24, 16384")
    k(f"v_lshlrev_b32 v{C_}, 4, v{A_}")
    k(f"v_add_u32 v{C_}, s24, v{C_}")
    k(f"v_cmp_eq_u32 vcc, 4, v{B_}")
    k(f"v_cndmask_b32 v15, v15, v{C_}, vcc")
    k(f"v_mov_b32 v{C_}, {OOB}")
    k(f"v_cndmask_b32 v15, v{C_}, v15, s[50:51]")
    k(f"s_cmp_lt_u32 s3, 1"); k(f"s_cselect_b32 s24, 0, {OOB}")
    k("v_or_b32 v15, s24, v15")
    k("s_and_b32 s24, s3, 1"); k("s_lshl_b32 s24, s24, 7")
    k("s_lshr_b32 s25, s3, 1"); k("s_lshl_b32 s25, s25, 10")
    k("s_add_u32 s24, s24, s25")
    k("s_lshl_b32 s25, s44, 11"); k("s_add_u32 s25, s25, s24")
    k(f"v_lshlrev_b32 v22, 8, v{B_}")
    k(f"v_lshl_add_u32 v22, v{A_}, 4, v22")
    k("v_add_u32 v22, s25, v22")
    k("s_lshr_b32 s25, s44, 2"); k("s_lshl_b32 s25, s25, 11"); k("s_add_u32 s25, s25, s24")
    k("s_and_b32 s26, s44, 3"); k("s_lshl_b32 s26, s26, 8"); k("s_add_u32 s25, s25, s26"); k("s_add_u32 s25, s25, 65536")
    k(f"v_lshlrev_b32 v{C_}, 4, v{A_}")
    k(f"v_add_u32 v{C_}, s25, v{C_}")
    k(f"v_cmp_eq_u32 vcc, 4, v{B_}")
    k(f"v_cndmask_b32 v22, v22, v{C_}, vcc")
    k(f"v_mov_b32 v{C_}, {OOB}")
    k(f"v_cndmask_b32 v22, v{C_}, v22, s[50:51]")
    k("s_mul_i32 s24, s44, 12288"); k("s_mul_i32 s25, s3, 3072"); k("s_add_u32 s24, s24, s25")
    k("v_add_u32 v19, s24, v5")
    aprobe_addr(k, 23, 's2', RH_M)
    k("s_lshr_b32 s25, s44, 3")
    ahint_addr(k, 20, A_, 's25', RH_P, True)
    k("v_mov_b32 v0, 1")
    event(k, 1, 48)
    k.lab('s_layer')
    layer_bases(k)
    k("v_and_b32 v9, 1, v1")
    k("v_lshlrev_b32 v9, 12, v9")
    k(f"s_lshl_b32 s24, s44, 7"); k(f"s_add_u32 s24, s24, s94")
    k("v_add_u32 v9, s24, v9")
    m0_image(k, 20, 48)
    k("s_mov_b32 s40, 0")
    k(f"s_mov_b32 s41, {WS_KF}")
    k(f"s_add_u32 s42, s93, {O_PX}")
    k(f"s_add_u32 s43, s93, {O_PB}")
    k(f"s_mov_b32 s45, {WS_QF}")
    k(f"s_add_u32 s47, s93, {O_MB - SYNC_STEP}")
    k(f"s_add_u32 s48, s93, {O_HR - SYNC_STEP}")
    k(f"s_add_u32 s49, s93, {O_HS}")
    def kx_loads():
        for b in range(3):
            k(f"buffer_load_dwordx4 a[{KX+4*b}:{KX+4*b+3}], v19, s[8:11], s41 offen offset:{b*1024} sc1")
    ensure_clear(k, 's_ec0', 48, 's40')
    k("s_mov_b32 s62, -1"); k("s_mov_b32 s63, 1")
    ensure(k, 's_en0', 2, 9, 48)
    kx_loads()
    event(k, 2, 48)
    k("s_waitcnt lgkmcnt(0)")
    for r in range(24): k(f"v_mov_b32 v{ACC+r}, 0")
    k("s_barrier")
    k("ds_read_b128 v[84:87], v7"); k("ds_read_b128 v[88:91], v7 offset:4096")
    k("s_waitcnt vmcnt(0) lgkmcnt(0)")
    for w in range(3):
        k(f"s_cmp_eq_u32 s3, {w}"); k(f"s_cbranch_scc1 {k.ref('s_gow' + str(w))}")
    k(f"s_branch {k.ref('s_gow3')}")
    P0 = 48
    def px_tail(t0, t1):
        sum4x8(k, P0, 21, 5632)
        softmax8(k, P0, t0, t1, masks=64)
        k(f"buffer_store_dwordx4 v[{P0+8}:{P0+11}], v22, s[8:11], s42 offen sc1")
        k(f"s_add_u32 s42, s42, {SYNC_STEP}")
    M32 = "v_mfma_f32_16x16x32_bf16"; M16 = "v_mfma_f32_16x16x16_bf16"
    XA, XB = 24, 32
    SC = [28, 36, 40]
    def epi_pair(p, dest):
        q = ACC + 4 * p; kk = ACC + 12 + 4 * p
        L = [f"v_permlane32_swap_b32 v{q+r}, v{kk+r}" for r in range(4)]
        L += [f"v_add_f32 v{q+r}, v{q+r}, v{kk+r}" for r in range(4)]
        L += [f"v_cvt_pk_bf16_f32 v{kk}, v{q}, v{q+1}", f"v_cvt_pk_bf16_f32 v{kk+1}, v{q+2}, v{q+3}"]
        L += [f"{M16} v[{q}:{q+3}], v[{kk}:{kk+1}], v[10:11], 0"]
        return L, [f"v_cvt_pk_bf16_f32 v{dest}, v{q}, v{q+1}", f"v_cvt_pk_bf16_f32 v{dest+1}, v{q+2}, v{q+3}"]
    def loop(w):
        sf = 'w' + str(w)
        k.lab('s_step' + sf)
        stamp(k, 0)
        for r in range(24): k(f"v_mov_b32 v{ACC+r}, 0")
        loads_ = [f"buffer_load_dwordx4 v[84:87], v7, s[8:11], s47 offen sc1",
                  f"buffer_load_dwordx4 v[88:91], v7, s[8:11], s46 offen sc1",
                  f"buffer_load_dwordx2 v[92:93], v8, s[8:11], s47 offen sc1"]
        k("s_add_u32 s46, s47, 4096")
        ensure_clear(k, 's_ec' + sf, 48, 's40')
        k("s_add_u32 s63, s40, 1")
        ensure(k, 's_en' + sf, 2, 9, 48)
        aprobe(k, 's_pr' + sf, 23, 's48', CFG['tgt_m'], [82, 83, 94, 95], CFG['pd_m'], CFG['pdep'], CFG['dly_m'])
        for l in loads_: k(l)
        kx_loads()
        px_tail(80, 81)
        shot_check(k, 's_pm' + sf, loads_, range(84, 94), 58, 4, CFG['sl_m'])
        stamp(k, 1)
        k(f"ds_write_b128 v7, v[84:87]")
        k(f"ds_write_b128 v7, v[88:91] offset:4096")
        k(f"ds_write_b64 v8, v[92:93]")
        k.lab('s_go' + sf)
        lg = LG(k)
        own = [w, 4 + w]; oth = [c for c in range(10) if c not in own]
        def rdW(c, slot):
            b = WS5 + 8 * slot
            lg.issue(('W', c), f"ds_read_b128 v[{b}:{b+3}], v6 offset:{c*2048}")
            lg.issue(('W', c), f"ds_read_b128 v[{b+4}:{b+7}], v6 offset:{c*2048+1024}")
        def rdA(j):
            a = AF + 4 * (j % 5)
            lg.issue(('A', j), f"ds_read_b128 v[{a}:{a+3}], v5 offset:{oth[j % 8]*1024}")
        def sm(t, c, a, slot=None):
            if t == 3: B = f"v[{WS5+8*slot}:{WS5+8*slot+7}]"
            else:
                kind, r = wreg(t, c); B = f"{kind}[{r}:{r+7}]"
            k(f"v_smfmac_f32_16x16x64_bf16 v[{ACC+4*t}:{ACC+4*t+3}], v[{a}:{a+3}], {B}, v4")
        rdW(own[0], 0); rdW(own[1], 1)
        for t in (0, 1, 2, 4, 5): sm(t, own[0], 84)
        lg.wait(('W', own[0])); sm(3, own[0], 84, 0)
        rdW(oth[0], 0)
        k("s_barrier")
        for j in range(5): rdA(j)
        for t in (0, 1, 2, 4, 5): sm(t, own[1], 88)
        lg.wait(('W', own[1])); sm(3, own[1], 88, 1)
        rdW(oth[1], 1)
        for j in range(8):
            c = oth[j]; a = AF + 4 * (j % 5)
            lg.wait(('A', j))
            for t in (0, 1, 4): sm(t, c, a)
            lg.wait(('W', c)); sm(3, c, a, j % 2)
            if j + 2 < 8: rdW(oth[j + 2], j % 2)
            rdA(j + 5)
        for b in range(3):
            k(f"buffer_load_dwordx4 v[{QX+4*b}:{QX+4*b+3}], v19, s[8:11], s45 offen offset:{b*1024} sc1")
        e1a, e1b = epi_pair(1, XA + 2); e0a, e0b = epi_pair(0, XA)
        E = [None, None] + e1a + e0a + [None] + e0b + e1b + ["s_waitcnt vmcnt(4)", None]
        E += [f"{M32} v[{SC[0]}:{SC[0]+3}], a[{KX}:{KX+3}], v[{XA}:{XA+3}], 0",
              f"{M32} v[{SC[1]}:{SC[1]+3}], a[{KX+4}:{KX+7}], v[{XA}:{XA+3}], 0",
              f"{M32} v[{SC[2]}:{SC[2]+3}], v[{XA}:{XA+3}], v[{XA}:{XA+3}], 0"]
        def extra(n):
            for _ in range(n):
                if E:
                    t_ = E.pop(0)
                    if t_: k(t_)
        for j in range(8, 16):
            c = oth[j - 8]; a = AF + 4 * (j % 5)
            lg.wait(('A', j))
            sm(2, c, a); extra(2)
            sm(5, c, a); extra(2)
            if j + 5 < 16: rdA(j + 5)
        extra(100)
        stamp(k, 2)
        if CFG['hs_pos'] == 2 and w == 0: ahint(k, 20, 0, 's49')
        e2a, e2b = epi_pair(2, XB)
        for t_ in e2a: k(t_)
        if CFG['hs_pos'] == 20 and w == 0: ahint(k, 20, 0, 's49')
        for t_ in e2b: k(t_)
        if CFG['hs_pos'] == 21 and w == 0: ahint(k, 20, 0, 's49')
        k(f"{M16} v[{SC[0]}:{SC[0]+3}], a[{KX+8}:{KX+9}], v[{XB}:{XB+1}], v[{SC[0]}:{SC[0]+3}]")
        k(f"{M16} v[{SC[1]}:{SC[1]+3}], a[{KX+10}:{KX+11}], v[{XB}:{XB+1}], v[{SC[1]}:{SC[1]+3}]")
        k(f"{M16} v[{SC[2]}:{SC[2]+3}], v[{XB}:{XB+1}], v[{XB}:{XB+1}], v[{SC[2]}:{SC[2]+3}]")
        if CFG['hs_pos'] == 22 and w == 0: ahint(k, 20, 0, 's49')
        k(f"ds_write_b128 v12, v[{SC[0]}:{SC[0]+3}]")
        k(f"ds_write_b128 v12, v[{SC[1]}:{SC[1]+3}] offset:16")
        k(f"ds_write_b128 v13, v[{SC[2]}:{SC[2]+3}]")
        if CFG['hs_pos'] == 23 and w == 0: ahint(k, 20, 0, 's49')
        k("s_waitcnt lgkmcnt(0)")
        k("s_barrier")
        stamp(k, 3)
        if w == 0:
            if CFG['hs_pos'] == 3: ahint(k, 20, 0, 's49')
            sum4x8(k, P0, 14, 1408)
            softmax8(k, P0, T0, T1)
            k(f"buffer_store_dwordx4 v[{P0+8}:{P0+11}], v15, s[8:11], s43 offen sc1")
        stamp(k, 4)
        sx = lambda kt, tt: [36, 40, 44, 64, 68, 72][kt * 2 + tt]
        k(f"s_waitcnt vmcnt({2 if w == 0 else 0})")
        keys32 = [f"a[{KX}:{KX+3}]", f"a[{KX+4}:{KX+7}]", f"v[{XA}:{XA+3}]"]
        keys16 = [f"a[{KX+8}:{KX+9}]", f"a[{KX+10}:{KX+11}]", f"v[{XB}:{XB+1}]"]
        for tt in range(2):
            for kt in range(3):
                a = sx(kt, tt)
                k(f"{M32} v[{a}:{a+3}], {keys32[kt]}, v[{QX+4*tt}:{QX+4*tt+3}], 0")
        for tt in range(2):
            for kt in range(3):
                a = sx(kt, tt)
                k(f"{M16} v[{a}:{a+3}], {keys16[kt]}, v[{QX+8+2*tt}:{QX+8+2*tt+1}], v[{a}:{a+3}]")
        for tt in range(2):
            k(f"ds_write_b128 v16, v[{sx(0,tt)}:{sx(0,tt)+3}] offset:{tt*2816}")
            k(f"ds_write_b128 v16, v[{sx(1,tt)}:{sx(1,tt)+3}] offset:{tt*2816+16}")
            k(f"ds_write_b128 v{17+tt}, v[{sx(2,tt)}:{sx(2,tt)+3}]")
        k("s_add_u32 s40, s40, 1")
        k(f"s_add_u32 s41, s41, {QF_SEG}")
        k(f"s_add_u32 s45, s45, {QF_SEG}")
        for sreg in ('s43', 's47', 's48', 's49'): k(f"s_add_u32 {sreg}, {sreg}, {SYNC_STEP}")
        k("s_waitcnt lgkmcnt(0)")
        k("s_barrier")
        stamp(k, 5)
        if CFG['stamp']:
            k("s_sub_u32 s40, s40, 1"); stamp_out(k, 6, 46); k("s_add_u32 s40, s40, 1")
        k("s_cmp_lt_u32 s40, 64")
        k(f"s_cbranch_scc1 {k.ref('s_step' + sf)}")
        if w < 3: k(f"s_branch {k.ref('s_end')}")
    for w in range(4): loop(w)
    k.lab('s_end')
    px_tail(80, 81)
    event(k, 3, 48)
    next_layer(k, 's_layer')

def role_V(k):
    L_M, L_V, L_WO, L_ST = 0, 10240, 16384, 16384 + 73728
    RS1, RS2 = 400, 656
    MA, VACC, VA, STG = 16, 56, 68, 80
    def wv(t, c): return 'a', t * 80 + c * 8
    def wo(t, c):
        i = t * 3 + c
        if i < 2: return 'a', 240 + 8 * i
        return 'v', 104 + 8 * (i - 2)
    k("s_sub_u32 s44, s2, 32")
    k.ptr(KA_WV, 6); k.ptr(KA_WO, 24); k.ptr(KA_MEM0, 26)
    k("s_waitcnt lgkmcnt(0)")
    k.srd(12, 6, D * HD * 2); k.srd(16, 24, D * HD * 2); k.srd(20, 26, 8 * 640 * 2)
    GO, LO, DAT = 4, 10, 24
    stage_offsets(k, 6, 24, HD * 2, RS1, L_ST, GO, LO, 16)
    tr_base(k, 16, RS1, L_ST, 17)
    k("s_mul_i32 s24, s3, 96")
    k("v_add_u32 v16, s24, v16")
    k(f"s_mul_i32 s45, s44, 384")
    def loads(c):
        d = DAT + 24 * (c % 3)
        k(f"s_add_u32 s46, s45, {c * 64 * HD * 2}")
        for i in range(6):
            k(f"buffer_load_dwordx4 v[{d+4*i}:{d+4*i+3}], v{GO+i}, s[12:15], s46 offen")
    loads(0); loads(1)
    for c in range(10):
        d = DAT + 24 * (c % 3)
        k(f"s_waitcnt vmcnt({6 if c + 1 < 10 else 0})")
        for i in range(6): k(f"ds_write_b128 v{LO+i}, v[{d+4*i}:{d+4*i+3}]")
        if c + 2 < 10: loads(c + 2)
        k("s_waitcnt lgkmcnt(0)")
        k("s_barrier")
        for t in range(3):
            kind, r = wv(t, c)
            tr_frag(k, r, kind, 16, RS1, 32 * t)
        k("s_waitcnt lgkmcnt(0)")
        k("s_barrier")
    GO, LO, DAT = 4, 14, 24
    stage_offsets(k, 10, 40, 1280, RS2, L_ST, GO, LO, 64)
    tr_base(k, 72, RS2, L_ST, 64)
    k("s_and_b32 s24, s3, 1"); k("s_mul_i32 s24, s24, 320")
    k("v_add_u32 v72, s24, v72")
    k("v_lshlrev_b32 v73, 4, v1")
    k(f"s_mul_i32 s24, s3, 18432"); k(f"s_add_u32 s24, s24, {L_WO}")
    k("v_add_u32 v73, s24, v73")
    k(f"s_mul_i32 s45, s44, {192*1280}")
    for c in range(3):
        for hf in range(2):
            k(f"s_add_u32 s46, s45, {c*64*1280 + hf*640}")
            for i in range(10):
                k(f"buffer_load_dwordx4 v[{DAT+4*i}:{DAT+4*i+3}], v{GO+i}, s[16:19], s46 offen")
            k("s_waitcnt vmcnt(0)")
            for i in range(10): k(f"ds_write_b128 v{LO+i}, v[{DAT+4*i}:{DAT+4*i+3}]")
            k("s_waitcnt lgkmcnt(0)")
            k("s_barrier")
            l = k.new('wo')
            k("s_lshr_b32 s24, s3, 1")
            k(f"s_cmp_eq_u32 s24, {hf}")
            k(f"s_cbranch_scc0 {k.ref(l)}")
            for t in range(10):
                if t < 7:
                    kind, r = wo(t, c)
                    tr_frag(k, r, kind, 72, RS2, 32 * t)
                else:
                    tr_frag(k, 64, 'v', 72, RS2, 32 * t)
                    k("s_waitcnt lgkmcnt(0)")
                    o = ((t - 7) * 3 + c) * 2048
                    k(f"ds_write_b128 v73, v[64:67] offset:{o}")
                    k(f"ds_write_b128 v73, v[68:71] offset:{o+1024}")
                    k("s_waitcnt lgkmcnt(0)")
            k("s_waitcnt lgkmcnt(0)")
            k.lab(l)
            k("s_barrier")
    k("v_mov_b32 v6, v73")
    k("v_mov_b32 v4, 0x4444"); k("v_mov_b32 v5, 0xeeee")
    k("v_cmp_gt_u32 vcc, 8, v2")
    k("v_cndmask_b32 v4, v5, v4, vcc")
    k("v_lshlrev_b32 v5, 4, v1")
    k("s_lshl_b32 s24, s3, 10")
    k("v_add_u32 v7, s24, v5")
    k("s_lshl_b32 s24, s3, 9"); k("s_add_u32 s24, s24, 8192")
    k("v_lshlrev_b32 v8, 3, v1")
    k("v_add_u32 v8, s24, v8")
    k("v_and_b32 v64, 7, v2"); k("v_lshlrev_b32 v9, 5, v64")
    k("v_lshrrev_b32 v64, 3, v2"); k("v_lshl_add_u32 v9, v64, 4, v9")
    k("v_and_b32 v64, 1, v3"); k("v_lshl_add_u32 v9, v64, 3, v9")
    k(f"s_mul_i32 s24, s3, 768"); k(f"s_add_u32 s24, s24, {L_V}")
    k("v_add_u32 v9, s24, v9")
    k("v_lshrrev_b32 v65, 1, v3")
    k("v_lshl_add_u32 v10, v65, 8, v9")
    k("v_lshrrev_b32 v64, 2, v2"); k("v_lshlrev_b32 v11, 5, v64")
    k("v_and_b32 v64, 3, v2"); k("v_lshl_add_u32 v11, v64, 3, v11")
    k("v_lshl_add_u32 v11, v3, 8, v11")
    k(f"v_add_u32 v11, {L_V}, v11")
    k("s_mul_i32 s24, s3, 10"); k("s_lshl_b32 s24, s24, 13"); k("s_lshl_b32 s25, s44, 8"); k("s_add_u32 s24, s24, s25")
    k("v_lshlrev_b32 v14, 13, v3")
    k("v_lshl_add_u32 v14, v2, 4, v14")
    k("v_add_u32 v14, s24, v14")
    k("v_lshrrev_b32 v64, 1, v3")
    k("v_lshlrev_b32 v15, 13, v64")
    k("v_lshl_add_u32 v15, v2, 4, v15")
    k("v_add_u32 v15, s24, v15")
    k(f"v_add_u32 v15, {8*8192}, v15")
    k("v_and_b32 v64, 1, v3")
    k("v_cmp_eq_u32 vcc, 0, v64")
    k(f"v_mov_b32 v64, {OOB}")
    k("v_cndmask_b32 v15, v64, v15, vcc")
    aprobe_addr(k, 12, 's2', RH_M)
    k("v_mov_b32 v0, 1")
    event(k, 1, 64)
    k.lab('v_layer')
    layer_bases(k)
    m0_image(k, 20, 64)
    k("s_mov_b32 s40, 0")
    k(f"s_add_u32 s43, s93, {O_VOM}")
    k(f"s_add_u32 s47, s93, {O_MB - SYNC_STEP}")
    k(f"s_add_u32 s45, s93, {O_HR - SYNC_STEP}")
    ensure_clear(k, 'v_ec0', 64, 's40')
    k("s_waitcnt lgkmcnt(0)")
    k(f"s_branch {k.ref('v_go2')}")
    k.lab('v_step')
    stamp(k, 0)
    loads_ = [f"buffer_load_dwordx4 v[68:71], v7, s[8:11], s47 offen sc1",
              f"buffer_load_dwordx4 v[72:75], v7, s[8:11], s48 offen sc1",
              f"buffer_load_dwordx2 v[76:77], v8, s[8:11], s47 offen sc1"]
    k("s_add_u32 s48, s47, 4096")
    ensure_clear(k, 'v_ec', 64, 's40')
    aprobe(k, 'v_pr', 12, 's45', 9, [80, 81, 82, 83], CFG['pd_m'], CFG['pdep'], CFG['dly_v'])
    stamp(k, 5)
    for l in loads_: k(l)
    shot_check(k, 'v_pm', loads_, range(68, 78), 26, 0, CFG['sl_m'])
    o = 68
    stamp(k, 1)
    k(f"ds_write_b128 v7, v[{o}:{o+3}]")
    k(f"ds_write_b128 v7, v[{o+4}:{o+7}] offset:4096")
    k(f"ds_write_b64 v8, v[{o+8}:{o+9}]")
    k("s_waitcnt lgkmcnt(0)")
    k.lab('v_go2')
    k("s_barrier")
    lg = LG(k)
    for c in range(10): lg.issue(('A', c), f"ds_read_b128 v[{MA+4*c}:{MA+4*c+3}], v5 offset:{c*1024}")
    for r in range(12): k(f"v_mov_b32 v{VACC+r}, 0")
    for c in range(10):
        lg.wait(('A', c))
        for t in range(3):
            kind, r = wv(t, c)
            k(f"v_smfmac_f32_16x16x64_bf16 v[{VACC+4*t}:{VACC+4*t+3}], v[{MA+4*c}:{MA+4*c+3}], {kind}[{r}:{r+7}], v4")
    def rdWo(t, c, slot):
        b = STG + 8 * slot; o = ((t - 7) * 3 + c) * 2048
        lg.issue(('W', t, c), f"ds_read_b128 v[{b}:{b+3}], v6 offset:{o}")
        lg.issue(('W', t, c), f"ds_read_b128 v[{b+4}:{b+7}], v6 offset:{o+1024}")
    for c in range(3): rdWo(7, c, c)
    stamp(k, 2)
    k("s_waitcnt vmcnt(0)")
    for r in range(40): k(f"v_mov_b32 v{MA+r}, 0")
    for r in range(4): k(f"v_permlane32_swap_b32 v{VACC+r}, v{VACC+4+r}")
    for r in range(4): k(f"v_add_f32 v{VACC+r}, v{VACC+r}, v{VACC+4+r}")
    k(f"v_cvt_pk_bf16_f32 v{VA}, v{VACC}, v{VACC+1}")
    k(f"v_cvt_pk_bf16_f32 v{VA+1}, v{VACC+2}, v{VACC+3}")
    for r in range(4): k(f"v_mov_b32 v{VACC+4+r}, v{VACC+8+r}")
    for r in range(4): k(f"v_permlane32_swap_b32 v{VACC+8+r}, v{VACC+4+r}")
    for r in range(4): k(f"v_add_f32 v{VACC+8+r}, v{VACC+8+r}, v{VACC+4+r}")
    k(f"v_cvt_pk_bf16_f32 v{VA+2}, v{VACC+8}, v{VACC+9}")
    k(f"v_cvt_pk_bf16_f32 v{VA+3}, v{VACC+10}, v{VACC+11}")
    lg.issue('x', f"ds_write_b64 v10, v[{VA}:{VA+1}]")
    lg.issue('x', f"ds_write_b64 v9, v[{VA+2}:{VA+3}] offset:512")
    lg.all()
    k("s_barrier")
    for c in range(3):
        lg.issue(('V', c), f"ds_read_b64_tr_b16 v[{VA+4*c}:{VA+4*c+1}], v11 offset:{c*1024}")
        lg.issue(('V', c), f"ds_read_b64_tr_b16 v[{VA+4*c+2}:{VA+4*c+3}], v11 offset:{c*1024+128}")
    stamp(k, 3)
    acc = lambda t: MA + 4 * t
    def mm(t, c, B):
        k(f"v_smfmac_f32_16x16x64_bf16 v[{acc(t)}:{acc(t)+3}], v[{VA+4*c}:{VA+4*c+3}], {B}, v4")
    def B_reg(t, c):
        kind, r = wo(t, c); return f"{kind}[{r}:{r+7}]"
    OUT = 56
    def epi(T, o):
        L = []
        t0, t1, t2, t3 = T
        for (x, y) in ((t0, t2), (t1, t3)):
            for r in range(4): L.append(f"v_permlane32_swap_b32 v{acc(x)+r}, v{acc(y)+r}")
            for r in range(4): L.append(f"v_add_f32 v{acc(x)+r}, v{acc(x)+r}, v{acc(y)+r}")
        L.append(f"v_cvt_pk_bf16_f32 v{o}, v{acc(t0)}, v{acc(t0)+1}")
        L.append(f"v_cvt_pk_bf16_f32 v{o+1}, v{acc(t0)+2}, v{acc(t0)+3}")
        L.append(f"v_cvt_pk_bf16_f32 v{o+2}, v{acc(t1)}, v{acc(t1)+1}")
        L.append(f"v_cvt_pk_bf16_f32 v{o+3}, v{acc(t1)+2}, v{acc(t1)+3}")
        L.append(f"v_permlane16_swap_b32 v{o}, v{o+2}")
        L.append(f"v_permlane16_swap_b32 v{o+1}, v{o+3}")
        for r in range(4): L.append(f"v_min_u32 v{o+r}, -2, v{o+r}")
        return L
    for c in range(3):
        lg.wait(('V', c))
        for t in range(4): mm(t, c, B_reg(t, c))
    for c in range(3):
        for t in (4, 5, 6): mm(t, c, B_reg(t, c))
        mm(7, c, f"v[{STG+8*c}:{STG+8*c+7}]")
        rdWo(8, c, c)
    for s_ in epi([0, 1, 2, 3], OUT): k(s_)
    k(f"buffer_store_dwordx4 v[{OUT}:{OUT+3}], v14, s[8:11], s43 offen sc1")
    for c in range(3):
        lg.wait(('W', 8, c))
        mm(8, c, f"v[{STG+8*c}:{STG+8*c+7}]")
        rdWo(9, c, c)
    for s_ in epi([4, 5, 6, 7], OUT + 4): k(s_)
    k("s_add_u32 s49, s43, 32768")
    k(f"buffer_store_dwordx4 v[{OUT+4}:{OUT+7}], v14, s[8:11], s49 offen sc1")
    for c in range(3):
        lg.wait(('W', 9, c))
        mm(9, c, f"v[{STG+8*c}:{STG+8*c+7}]")
    o = OUT + 8
    for r in range(4): k(f"v_permlane32_swap_b32 v{acc(8)+r}, v{acc(9)+r}")
    for r in range(4): k(f"v_add_f32 v{acc(8)+r}, v{acc(8)+r}, v{acc(9)+r}")
    k(f"v_cvt_pk_bf16_f32 v{o}, v{acc(8)}, v{acc(8)+1}")
    k(f"v_cvt_pk_bf16_f32 v{o+1}, v{acc(8)+2}, v{acc(8)+3}")
    k(f"v_mov_b32 v{o+2}, v{o}")
    k(f"v_mov_b32 v{o+3}, v{o+1}")
    k(f"v_permlane16_swap_b32 v{o}, v{o+2}")
    k(f"v_permlane16_swap_b32 v{o+1}, v{o+3}")
    for r in range(4): k(f"v_min_u32 v{o+r}, -2, v{o+r}")
    k(f"buffer_store_dwordx4 v[{o}:{o+3}], v15, s[8:11], s43 offen sc1")
    stamp(k, 4)
    stamp_out(k, 6, 46)
    k("s_add_u32 s40, s40, 1")
    for sreg in ('s43', 's47', 's45'): k(f"s_add_u32 {sreg}, {sreg}, {SYNC_STEP}")
    k("s_cmp_lt_u32 s40, 64")
    k(f"s_cbranch_scc1 {k.ref('v_step')}")
    event(k, 3, 64)
    next_layer(k, 'v_layer')

def role_V2(k):
    L_M, L_V, L_WO, L_ST = 0, 10240, 16384, 16384 + 73728
    RS1, RS2 = 400, 656
    MA, VACC, VA, STG = 16, 56, 68, 80
    def wv(t, c): return 'a', t * 80 + c * 8
    def wo(t, c):
        i = t * 3 + c
        if i < 2: return 'a', 240 + 8 * i
        return 'v', 104 + 8 * (i - 2)
    k("s_sub_u32 s44, s2, 32")
    k.ptr(KA_WV, 6); k.ptr(KA_WO, 24); k.ptr(KA_MEM0, 26)
    k("s_waitcnt lgkmcnt(0)")
    k.srd(12, 6, D * HD * 2); k.srd(16, 24, D * HD * 2); k.srd(20, 26, 8 * 640 * 2)
    GO, LO, DAT = 4, 10, 24
    stage_offsets(k, 6, 24, HD * 2, RS1, L_ST, GO, LO, 16)
    tr_base(k, 16, RS1, L_ST, 17)
    k("s_mul_i32 s24, s3, 96")
    k("v_add_u32 v16, s24, v16")
    k(f"s_mul_i32 s45, s44, 384")
    def loads(c):
        d = DAT + 24 * (c % 3)
        k(f"s_add_u32 s46, s45, {c * 64 * HD * 2}")
        for i in range(6):
            k(f"buffer_load_dwordx4 v[{d+4*i}:{d+4*i+3}], v{GO+i}, s[12:15], s46 offen")
    loads(0); loads(1)
    for c in range(10):
        d = DAT + 24 * (c % 3)
        k(f"s_waitcnt vmcnt({6 if c + 1 < 10 else 0})")
        for i in range(6): k(f"ds_write_b128 v{LO+i}, v[{d+4*i}:{d+4*i+3}]")
        if c + 2 < 10: loads(c + 2)
        k("s_waitcnt lgkmcnt(0)")
        k("s_barrier")
        for t in range(3):
            kind, r = wv(t, c)
            tr_frag(k, r, kind, 16, RS1, 32 * t)
        k("s_waitcnt lgkmcnt(0)")
        k("s_barrier")
    GO, LO, DAT = 4, 14, 24
    stage_offsets(k, 10, 40, 1280, RS2, L_ST, GO, LO, 64)
    tr_base(k, 72, RS2, L_ST, 64)
    k("s_and_b32 s24, s3, 1"); k("s_mul_i32 s24, s24, 320")
    k("v_add_u32 v72, s24, v72")
    k("v_lshlrev_b32 v73, 4, v1")
    k(f"s_mul_i32 s24, s3, 18432"); k(f"s_add_u32 s24, s24, {L_WO}")
    k("v_add_u32 v73, s24, v73")
    k(f"s_mul_i32 s45, s44, {192*1280}")
    for c in range(3):
        for hf in range(2):
            k(f"s_add_u32 s46, s45, {c*64*1280 + hf*640}")
            for i in range(10):
                k(f"buffer_load_dwordx4 v[{DAT+4*i}:{DAT+4*i+3}], v{GO+i}, s[16:19], s46 offen")
            k("s_waitcnt vmcnt(0)")
            for i in range(10): k(f"ds_write_b128 v{LO+i}, v[{DAT+4*i}:{DAT+4*i+3}]")
            k("s_waitcnt lgkmcnt(0)")
            k("s_barrier")
            l = k.new('wo')
            k("s_lshr_b32 s24, s3, 1")
            k(f"s_cmp_eq_u32 s24, {hf}")
            k(f"s_cbranch_scc0 {k.ref(l)}")
            for t in range(10):
                if t < 7:
                    kind, r = wo(t, c)
                    tr_frag(k, r, kind, 72, RS2, 32 * t)
                else:
                    tr_frag(k, 64, 'v', 72, RS2, 32 * t)
                    k("s_waitcnt lgkmcnt(0)")
                    o = ((t - 7) * 3 + c) * 2048
                    k(f"ds_write_b128 v73, v[64:67] offset:{o}")
                    k(f"ds_write_b128 v73, v[68:71] offset:{o+1024}")
                    k("s_waitcnt lgkmcnt(0)")
            k("s_waitcnt lgkmcnt(0)")
            k.lab(l)
            k("s_barrier")
    k("v_mov_b32 v6, v73")
    k("v_mov_b32 v4, 0x4444"); k("v_mov_b32 v5, 0xeeee")
    k("v_cmp_gt_u32 vcc, 8, v2")
    k("v_cndmask_b32 v4, v5, v4, vcc")
    k("v_lshlrev_b32 v5, 4, v1")
    k("s_lshl_b32 s24, s3, 10")
    k("v_add_u32 v7, s24, v5")
    k("s_lshl_b32 s24, s3, 9"); k("s_add_u32 s24, s24, 8192")
    k("v_lshlrev_b32 v8, 3, v1")
    k("v_add_u32 v8, s24, v8")
    k("v_and_b32 v64, 7, v2"); k("v_lshlrev_b32 v9, 5, v64")
    k("v_lshrrev_b32 v64, 3, v2"); k("v_lshl_add_u32 v9, v64, 4, v9")
    k("v_and_b32 v64, 1, v3"); k("v_lshl_add_u32 v9, v64, 3, v9")
    k(f"s_mul_i32 s24, s3, 768"); k(f"s_add_u32 s24, s24, {L_V}")
    k("v_add_u32 v9, s24, v9")
    k("v_lshrrev_b32 v65, 1, v3")
    k("v_lshl_add_u32 v10, v65, 8, v9")
    k("v_lshrrev_b32 v64, 2, v2"); k("v_lshlrev_b32 v11, 5, v64")
    k("v_and_b32 v64, 3, v2"); k("v_lshl_add_u32 v11, v64, 3, v11")
    k("v_lshl_add_u32 v11, v3, 8, v11")
    k(f"v_add_u32 v11, {L_V}, v11")
    k("s_mul_i32 s24, s3, 10"); k("s_lshl_b32 s24, s24, 13"); k("s_lshl_b32 s25, s44, 8"); k("s_add_u32 s24, s24, s25")
    k("v_lshlrev_b32 v14, 13, v3")
    k("v_lshl_add_u32 v14, v2, 4, v14")
    k("v_add_u32 v14, s24, v14")
    k("v_lshrrev_b32 v64, 1, v3")
    k("v_lshlrev_b32 v15, 13, v64")
    k("v_lshl_add_u32 v15, v2, 4, v15")
    k("v_add_u32 v15, s24, v15")
    k(f"v_add_u32 v15, {8*8192}, v15")
    k("v_and_b32 v64, 1, v3")
    k("v_cmp_eq_u32 vcc, 0, v64")
    k(f"v_mov_b32 v64, {OOB}")
    k("v_cndmask_b32 v15, v64, v15, vcc")
    aprobe_addr(k, 12, 's2', RH_M)
    k("v_mov_b32 v0, 1")
    event(k, 1, 64)
    k.lab('v_layer')
    layer_bases(k)
    m0_image(k, 20, 64)
    k("s_mov_b32 s40, 0")
    k(f"s_add_u32 s43, s93, {O_VOM}")
    k(f"s_add_u32 s47, s93, {O_MB - SYNC_STEP}")
    k(f"s_add_u32 s45, s93, {O_HR - SYNC_STEP}")
    ensure_clear(k, 'v_ec0', 64, 's40')
    for r in range(16, 68): k(f"v_mov_b32 v{r}, 0")
    k("s_waitcnt lgkmcnt(0)")
    k("s_barrier")
    k("ds_read_b128 v[68:71], v7"); k("ds_read_b128 v[72:75], v7 offset:4096")
    k("s_waitcnt lgkmcnt(0)")
    for w in range(3):
        k(f"s_cmp_eq_u32 s3, {w}"); k(f"s_cbranch_scc1 {k.ref('v_gow' + str(w))}")
    k(f"s_branch {k.ref('v_gow3')}")
    SMF = "v_smfmac_f32_16x16x64_bf16"
    def loop(w):
        sf = 'w' + str(w)
        k.lab('v_step' + sf)
        stamp(k, 0)
        for r in range(16, 68): k(f"v_mov_b32 v{r}, 0")
        loads_ = [f"buffer_load_dwordx4 v[68:71], v7, s[8:11], s47 offen sc1",
                  f"buffer_load_dwordx4 v[72:75], v7, s[8:11], s48 offen sc1",
                  f"buffer_load_dwordx2 v[76:77], v8, s[8:11], s47 offen sc1"]
        k("s_add_u32 s48, s47, 4096")
        ensure_clear(k, 'v_ec' + sf, 78, 's40')
        aprobe(k, 'v_pr' + sf, 12, 's45', CFG['tgt_m'], [80, 81, 82, 83], CFG['pd_m'], CFG['pdep'], CFG['dly_v'])
        stamp(k, 5)
        for l in loads_: k(l)
        shot_check(k, 'v_pm' + sf, loads_, range(68, 78), 104 - 1, 0, CFG['sl_m'])
        stamp(k, 1)
        k(f"ds_write_b128 v7, v[68:71]")
        k(f"ds_write_b128 v7, v[72:75] offset:4096")
        k(f"ds_write_b64 v8, v[76:77]")
        k.lab('v_go' + sf)
        lg = LG(k)
        own = [w, 4 + w]; oth = [c for c in range(10) if c not in own]
        SL = [80, 84, 88, 92, 96, 100, 76, 68]
        def rdA(j):
            lg.issue(('A', j), f"ds_read_b128 v[{SL[j]}:{SL[j]+3}], v5 offset:{oth[j]*1024}")
        def sm(t, c, a):
            kind, r = wv(t, c)
            k(f"{SMF} v[{VACC+4*t}:{VACC+4*t+3}], v[{a}:{a+3}], {kind}[{r}:{r+7}], v4")
        for t in range(3): sm(t, own[0], 68)
        k("s_waitcnt lgkmcnt(0)")
        k("s_barrier")
        for j in range(8): rdA(j)
        for t in (2, 0, 1): sm(t, own[1], 72)
        for j in range(8):
            lg.wait(('A', j)); sm(2, oth[j], SL[j])
        E = [None] * 5
        E += [f"v_mov_b32 v{72+r}, v{VACC+8+r}" for r in range(4)] + [None]
        E += [f"v_permlane32_swap_b32 v{VACC+8+r}, v{72+r}" for r in range(4)]
        E += [f"v_add_f32 v{VACC+8+r}, v{VACC+8+r}, v{72+r}" for r in range(4)]
        E += [f"v_cvt_pk_bf16_f32 v72, v{VACC+8}, v{VACC+9}", f"v_cvt_pk_bf16_f32 v73, v{VACC+10}, v{VACC+11}"]
        E += [('x', f"ds_write_b64 v9, v[72:73] offset:512")]
        def extra(n):
            for _ in range(n):
                if E:
                    t_ = E.pop(0)
                    if isinstance(t_, tuple): lg.issue(*t_)
                    elif t_: k(t_)
        for j in range(8):
            sm(0, oth[j], SL[j]); extra(2)
            sm(1, oth[j], SL[j]); extra(2)
        extra(100)
        stamp(k, 2)
        for r in range(4): k(f"v_permlane32_swap_b32 v{VACC+r}, v{VACC+4+r}")
        for r in range(4): k(f"v_add_f32 v{VACC+r}, v{VACC+r}, v{VACC+4+r}")
        k(f"v_cvt_pk_bf16_f32 v{VA}, v{VACC}, v{VACC+1}")
        k(f"v_cvt_pk_bf16_f32 v{VA+1}, v{VACC+2}, v{VACC+3}")
        lg.issue('x', f"ds_write_b64 v10, v[{VA}:{VA+1}]")
        lg.all()
        k("s_barrier")
        for c in range(3):
            lg.issue(('V', c), f"ds_read_b64_tr_b16 v[{VA+4*c}:{VA+4*c+1}], v11 offset:{c*1024}")
            lg.issue(('V', c), f"ds_read_b64_tr_b16 v[{VA+4*c+2}:{VA+4*c+3}], v11 offset:{c*1024+128}")
        def rdWo(t, c, slot):
            b = STG + 8 * slot; o = ((t - 7) * 3 + c) * 2048
            lg.issue(('W', t, c), f"ds_read_b128 v[{b}:{b+3}], v6 offset:{o}")
            lg.issue(('W', t, c), f"ds_read_b128 v[{b+4}:{b+7}], v6 offset:{o+1024}")
        for c in range(3): rdWo(7, c, c)
        stamp(k, 3)
        acc = lambda t: MA + 4 * t
        def mm(t, c, B):
            k(f"{SMF} v[{acc(t)}:{acc(t)+3}], v[{VA+4*c}:{VA+4*c+3}], {B}, v4")
        def B_reg(t, c):
            kind, r = wo(t, c); return f"{kind}[{r}:{r+7}]"
        OUT = 56
        def epi(T, o):
            L = []
            t0, t1, t2, t3 = T
            for (x, y) in ((t0, t2), (t1, t3)):
                for r in range(4): L.append(f"v_permlane32_swap_b32 v{acc(x)+r}, v{acc(y)+r}")
                for r in range(4): L.append(f"v_add_f32 v{acc(x)+r}, v{acc(x)+r}, v{acc(y)+r}")
            L.append(f"v_cvt_pk_bf16_f32 v{o}, v{acc(t0)}, v{acc(t0)+1}")
            L.append(f"v_cvt_pk_bf16_f32 v{o+1}, v{acc(t0)+2}, v{acc(t0)+3}")
            L.append(f"v_cvt_pk_bf16_f32 v{o+2}, v{acc(t1)}, v{acc(t1)+1}")
            L.append(f"v_cvt_pk_bf16_f32 v{o+3}, v{acc(t1)+2}, v{acc(t1)+3}")
            L.append(None)
            L.append(f"v_permlane16_swap_b32 v{o}, v{o+2}")
            L.append(f"v_permlane16_swap_b32 v{o+1}, v{o+3}")
            for r in range(4): L.append(f"v_min_u32 v{o+r}, -2, v{o+r}")
            return L
        for c in range(3):
            lg.wait(('V', c))
            for t in range(4): mm(t, c, B_reg(t, c))
        E += [None, None] + epi([0, 1, 2, 3], OUT) + [f"buffer_store_dwordx4 v[{OUT}:{OUT+3}], v14, s[8:11], s43 offen sc1"]
        for c in range(3):
            for t in (4, 5, 6): mm(t, c, B_reg(t, c)); extra(2)
            lg.wait(('W', 7, c))
            mm(7, c, f"v[{STG+8*c}:{STG+8*c+7}]"); extra(2)
            rdWo(8, c, c)
        extra(100)
        k("s_add_u32 s49, s43, 32768")
        E += [None] + epi([4, 5, 6, 7], OUT + 4) + [f"buffer_store_dwordx4 v[{OUT+4}:{OUT+7}], v14, s[8:11], s49 offen sc1"]
        for c in range(3):
            lg.wait(('W', 8, c))
            mm(8, c, f"v[{STG+8*c}:{STG+8*c+7}]"); extra(CFG['v_x8'])
            rdWo(9, c, c)
        extra(CFG['v_x9'])
        for c in range(3):
            lg.wait(('W', 9, c))
            mm(9, c, f"v[{STG+8*c}:{STG+8*c+7}]"); extra(3)
        extra(100)
        o = OUT + 8
        for r in range(4): k(f"v_permlane32_swap_b32 v{acc(8)+r}, v{acc(9)+r}")
        for r in range(4): k(f"v_add_f32 v{acc(8)+r}, v{acc(8)+r}, v{acc(9)+r}")
        k(f"v_cvt_pk_bf16_f32 v{o}, v{acc(8)}, v{acc(8)+1}")
        k(f"v_cvt_pk_bf16_f32 v{o+1}, v{acc(8)+2}, v{acc(8)+3}")
        k(f"v_mov_b32 v{o+2}, v{o}")
        k(f"v_mov_b32 v{o+3}, v{o+1}")
        k(f"v_permlane16_swap_b32 v{o}, v{o+2}")
        k(f"v_permlane16_swap_b32 v{o+1}, v{o+3}")
        for r in range(4): k(f"v_min_u32 v{o+r}, -2, v{o+r}")
        k(f"buffer_store_dwordx4 v[{o}:{o+3}], v15, s[8:11], s43 offen sc1")
        stamp(k, 4)
        stamp_out(k, 6, 46)
        k("s_add_u32 s40, s40, 1")
        for sreg in ('s43', 's47', 's45'): k(f"s_add_u32 {sreg}, {sreg}, {SYNC_STEP}")
        k("s_cmp_lt_u32 s40, 64")
        k(f"s_cbranch_scc1 {k.ref('v_step' + sf)}")
        if w < 3: k(f"s_branch {k.ref('v_end')}")
    for w in range(4): loop(w)
    k.lab('v_end')
    event(k, 3, 64)
    next_layer(k, 'v_layer')

def role_R(k):
    BX, BN, PX, PM, VM, A1, A2 = 16, 48, 80, 96, 100, 108, 112
    TQ = 204
    k.lab('r_top')
    k("s_barrier")
    lk = k.new('rk')
    k("s_sub_u32 s24, s2, 64")
    k("s_cmp_ge_u32 s24, 24"); k(f"s_cbranch_scc1 {k.ref(lk)}")
    k("s_and_b32 s44, s24, 7"); k("s_lshr_b32 s45, s24, 3")
    k("s_cmp_eq_u32 s92, 0"); k("s_cselect_b32 s46, 32, 2")
    A.role_K2(k, Hooks())
    event(k, 5, 14)
    k.lab(lk)
    k("s_sub_u32 s44, s2, 64")
    k("v_lshlrev_b32 v5, 4, v1")
    k("s_lshl_b32 s24, s44, 15"); k("s_lshl_b32 s25, s3, 13"); k("s_add_u32 s24, s24, s25")
    k("v_add_u32 v6, s24, v5")
    k("v_add_u32 v7, 4096, v6")
    k("s_lshl_b32 s24, s3, 12")
    k("v_add_u32 v8, s24, v5")
    k("s_lshl_b32 s24, s3, 10"); k("s_add_u32 s24, s24, 16384")
    k("v_add_u32 v9, s24, v5")
    k("s_lshl_b32 s24, s44, 13"); k("s_lshl_b32 s25, s3, 11"); k("s_add_u32 s24, s24, s25")
    k("v_add_u32 v10, s24, v5")
    k(f"v_and_b32 v{TQ}, 7, v2"); k(f"v_mul_u32_u24 v11, 80, v{TQ}")
    k("v_lshl_add_u32 v11, v3, 4, v11")
    k("s_mul_i32 s24, s3, 640")
    k("v_add_u32 v11, s24, v11")
    k(f"v_add_u32 v{TQ}, 8192, v5")
    k("v_cmp_gt_u32 vcc, 8, v2")
    k(f"v_cndmask_b32 v11, v{TQ}, v11, vcc")
    k(f"v_and_b32 v{TQ}, 7, v2"); k(f"v_mul_u32_u24 v12, 80, v{TQ}")
    k(f"v_lshrrev_b32 v{TQ}, 3, v2"); k(f"v_lshl_add_u32 v12, v{TQ}, 5, v12")
    k("v_lshlrev_b32 v13, 4, v2")
    k("s_lshl_b32 s24, s44, 8")
    k("v_add_u32 v13, s24, v13")
    k(f"v_mov_b32 v{TQ}, {OOB}")
    k(f"v_cmp_gt_u32 vcc, 1, v3")
    k(f"v_cndmask_b32 v13, v{TQ}, v13, vcc")
    k("v_cmp_le_u32 s[50:51], 8, v2")
    k("s_and_b32 s25, s44, 15"); k("s_lshr_b32 s25, s25, 2")
    k("s_sub_u32 s26, s44, 32"); k("s_lshr_b32 s26, s26, 1")
    k("s_cmp_ge_u32 s44, 32"); k("s_cselect_b32 s25, s26, s25")
    ahint_addr(k, 120, TQ, 's25', RH_M, False)
    aprobe_addr(k, 125, 's44', RH_P)
    k("v_mov_b32 v122, 12288")
    k("v_mov_b32 v123, 0")
    k("s_barrier")
    k("ds_write_b32 v122, v123")
    k("v_mov_b32 v123, 1")
    k("s_waitcnt lgkmcnt(0)")
    k("s_barrier")
    layer_bases(k)
    k("s_mov_b32 s40, 0")
    k(f"s_mov_b32 s41, {WS_VOX}")
    k(f"s_add_u32 s45, s93, {O_HS}")
    k(f"s_add_u32 s46, s93, {O_HR}")
    k(f"s_add_u32 s43, s93, {O_PB}")
    k(f"s_add_u32 s42, s93, {O_VOM}")
    k(f"s_add_u32 s47, s93, {O_MB}")
    def vox_loads():
        for q in range(4):
            k(f"buffer_load_dwordx4 v[{BN+4*q}:{BN+4*q+3}], v6, s[8:11], s41 offen offset:{q*1024} sc1")
        for q in range(4):
            k(f"buffer_load_dwordx4 v[{BN+16+4*q}:{BN+16+4*q+3}], v7, s[8:11], s41 offen offset:{q*1024} sc1")
        k(f"s_add_u32 s41, s41, {VOX_SEG}")
    k("v_and_b32 v252, 7, v1")
    k("v_lshlrev_b32 v252, 7, v252")
    k(f"s_lshl_b32 s24, s3, 10"); k(f"s_add_u32 s24, s24, {3*4096}"); k("s_add_u32 s24, s24, s94")
    k("v_add_u32 v252, s24, v252")
    k("s_mov_b32 s62, -1"); k("s_mov_b32 s63, 1")
    ensure(k, 'r_en0', 8, 252, 253)
    vox_loads()
    event(k, 2, 204)
    k.lab('r_step')
    k("s_waitcnt vmcnt(0)")
    for r in range(32): k(f"v_mov_b32 v{BX+r}, v{BN+r}")
    stamp(k, 0)
    loads_ = [f"buffer_load_dwordx4 v[{PX+4*q}:{PX+4*q+3}], v8, s[8:11], s43 offen offset:{q*1024} sc1" for q in range(4)]
    loads_ += [f"buffer_load_dwordx4 v[{PM}:{PM+3}], v9, s[8:11], s43 offen sc1"]
    loads_ += [f"buffer_load_dwordx4 v[{VM+4*q}:{VM+4*q+3}], v10, s[8:11], s42 offen offset:{q*1024} sc1" for q in range(2)]
    ensure_clear(k, 'r_ec', 253, 's40')
    aprobe(k, 'r_pr', 125, 's45', CFG['tgt_p'], [116, 117, 118, 119], CFG['pd_p'], CFG['pdep'], CFG['dly_p'])
    stamp(k, 4)
    loads_ = loads_[5:] + loads_[:5]
    for l in loads_: k(l)
    if CFG['hr_pos'] == 0:
        k("s_mov_b64 exec, 1")
        k("ds_add_rtn_u32 v124, v122, v123")
        k("s_mov_b64 exec, -1")
        if CFG['dly_hr']: k(f"s_sleep {CFG['dly_hr']}")
        k("s_waitcnt lgkmcnt(0)")
        k("v_readfirstlane_b32 s24, v124")
        k("s_and_b32 s24, s24, 3")
        k("s_cmp_eq_u32 s24, 3"); k(f"s_cselect_b32 s24, 0, {OOB}")
        k("v_or_b32 v126, s24, v120")
        ahint(k, 126, 123, 's46')
    shot_check(k, 'r_p', loads_, range(PX, VM + 8), TQ, 1 if CFG['hr_pos'] == 0 else 0, CFG['sl_p'])
    if CFG['hr_pos'] == 1:
        k("s_mov_b64 exec, 1")
        k("ds_add_rtn_u32 v124, v122, v123")
        k("s_mov_b64 exec, -1")
    stamp(k, 1)
    k(f"v_mfma_f32_16x16x32_bf16 v[{A1}:{A1+3}], v[{VM}:{VM+3}], v[{PM}:{PM+3}], 0")
    k(f"v_mfma_f32_16x16x32_bf16 v[{A2}:{A2+3}], v[{VM+4}:{VM+7}], v[{PM}:{PM+3}], 0")
    for q in range(4):
        k(f"v_mfma_f32_16x16x32_bf16 v[{A1}:{A1+3}], v[{BX+8*q}:{BX+8*q+3}], v[{PX+4*q}:{PX+4*q+3}], v[{A1}:{A1+3}]")
        k(f"v_mfma_f32_16x16x32_bf16 v[{A2}:{A2+3}], v[{BX+8*q+4}:{BX+8*q+7}], v[{PX+4*q}:{PX+4*q+3}], v[{A2}:{A2+3}]")
        if q == 0 and CFG['hr_pos'] == 1:
            lh = k.new('nh')
            k("s_waitcnt lgkmcnt(0)")
            k("v_readfirstlane_b32 s24, v124")
            k("s_and_b32 s24, s24, 3")
            k(f"s_cmp_eq_u32 s24, {CFG['hr_wave']}")
            k(f"s_cbranch_scc0 {k.ref(lh)}")
            ahint(k, 120, 123, 's46')
            k.lab(lh)
    k("s_and_b32 s24, s40, 1"); k("s_mul_i32 s24, s24, 2560")
    k("v_add_u32 v14, s24, v11")
    k("v_add_u32 v15, s24, v12")
    for r in range(4): k(f"v_cndmask_b32 v{A1+r}, v{A1+r}, v{A2+r}, s[50:51]")
    for r in range(4): k(f"v_add_f32 v{A1+r}, v{A1+r}, v{A1+r} row_ror:8 row_mask:0xf bank_mask:0xf")
    k(f"ds_write_b128 v14, v[{A1}:{A1+3}]")
    k("s_waitcnt lgkmcnt(0)")
    k("s_barrier")
    stamp(k, 2)
    l = k.new('np')
    k("s_cmp_eq_u32 s3, 0")
    k(f"s_cbranch_scc0 {k.ref(l)}")
    Q0 = 220
    sum4x8(k, Q0, 15, 640)
    for q in range(4): k(f"v_cvt_pk_bf16_f32 v{Q0+8+q}, v{Q0+2*q}, v{Q0+2*q+1}")
    for q in range(4): k(f"v_min_u32 v{Q0+8+q}, -2, v{Q0+8+q}")
    k(f"buffer_store_dwordx4 v[{Q0+8}:{Q0+11}], v13, s[8:11], s47 offen sc1")
    k.lab(l)
    stamp(k, 3)
    k("s_add_u32 s63, s40, 2"); k("s_min_u32 s63, s63, 64")
    if CFG['dly_vox']: k(f"s_sleep {CFG['dly_vox']}")
    ensure(k, 'r_en', 8, 252, 253)
    vox_loads()
    stamp(k, 5)
    stamp_out(k, 6, TQ)
    k("s_add_u32 s40, s40, 1")
    for sreg in ('s42', 's43', 's47', 's45', 's46'): k(f"s_add_u32 {sreg}, {sreg}, {SYNC_STEP}")
    k("s_cmp_lt_u32 s40, 64")
    k(f"s_cbranch_scc1 {k.ref('r_step')}")
    k("s_waitcnt vmcnt(0)")
    event(k, 3, 204)
    next_layer(k, 'r_top')
def flag_pub(k, val):
    l = k.new('fp')
    k("s_cmp_eq_u32 s3, 0")
    k(f"s_cbranch_scc0 {k.ref(l)}")
    k(f"v_mov_b32 v15, {val}")
    k("buffer_store_dword v15, v14, s[8:11], 0 offen sc1")
    k.lab(l)

def flag_addr(k, role_sreg_or_const):
    if isinstance(role_sreg_or_const, int): k(f"s_mov_b32 s24, {role_sreg_or_const * 4096}")
    else: k(f"s_lshl_b32 s24, {role_sreg_or_const}, 12")
    k("s_lshl_b32 s25, s44, 7"); k("s_add_u32 s24, s24, s25"); k(f"s_add_u32 s24, s24, s94")
    k("v_mov_b32 v14, s24")
    k(f"v_mov_b32 v15, {OOB}")
    k("v_cmp_eq_u32 vcc, 0, v1")
    k("v_cndmask_b32 v14, v15, v14, vcc")

X_L_O = 83968
def x_init(k):
    TQ = 192
    k("s_sub_u32 s70, s2, 104")
    k("s_mul_i32 s71, s70, 205"); k("s_lshr_b32 s71, s71, 12")
    k("s_mul_i32 s24, s71, 20"); k("s_sub_u32 s70, s70, s24")
    k("s_cmp_lt_u32 s71, 4"); k("s_cselect_b32 s64, s71, 64")
    k("s_lshl_b32 s24, s70, 16"); k("s_lshl_b32 s25, s3, 13"); k("s_add_u32 s24, s24, s25")
    k("v_add_u32 v240, s24, v5")
    k("v_add_u32 v241, 4096, v240")
    k("s_lshl_b32 s24, s70, 14"); k("s_lshl_b32 s25, s3, 11"); k("s_add_u32 s24, s24, s25")
    k("v_add_u32 v242, s24, v5")
    k("s_lshl_b32 s24, s3, 14")
    k(f"v_add_u32 v{TQ+1}, s24, v5")
    for jj in range(4): k(f"v_add_u32 v{212+jj}, {jj*4096}, v{TQ+1}")
    k("s_lshl_b32 s24, s3, 12"); k("s_add_u32 s24, s24, 65536")
    k("v_add_u32 v216, s24, v5")
    k(f"s_lshl_b32 s24, s3, 12"); k(f"s_add_u32 s24, s24, {X_L_O}")
    k("v_add_u32 v217, s24, v5")
    k(f"s_and_b32 s24, s3, 1"); k("s_lshl_b32 s24, s24, 10"); k(f"s_add_u32 s24, s24, {X_L_O}")
    k("v_add_u32 v218, s24, v5")
    k("s_and_b32 s24, s3, 1"); k("s_mul_i32 s24, s24, 20480"); k("s_lshl_b32 s25, s70, 10"); k("s_add_u32 s24, s24, s25")
    k("v_add_u32 v219, s24, v5")
    k("s_and_b32 s24, s3, 1"); k("s_lshl_b32 s24, s24, 4")
    k("v_add_u32 v243, s24, v2")
    k("v_mul_u32_u24 v243, 1280, v243")
    k("v_lshl_add_u32 v243, v3, 3, v243")
    k("s_lshl_b32 s24, s70, 6")
    k("v_add_u32 v243, s24, v243")
    k.ptr(KA_OUT, 26); k("s_waitcnt lgkmcnt(0)"); k.srd(12, 26, S * D * 2)
    k(f"s_mul_i32 s65, s71, {VOX_SEG}"); k(f"s_add_u32 s65, s65, {WS_VOX}")
    k(f"s_mul_i32 s24, s71, {SYNC_STEP}"); k("s_add_u32 s24, s24, s93")
    k(f"s_add_u32 s66, s24, {O_VOM}"); k(f"s_add_u32 s67, s24, {O_PX}")
    k(f"s_mul_i32 s68, s71, 40960")
    k("v_and_b32 v252, 7, v1")
    k("v_lshlrev_b32 v252, 7, v252")
    k(f"s_lshl_b32 s24, s3, 10"); k(f"s_add_u32 s24, s24, {3*4096}"); k("s_add_u32 s24, s24, s94")
    k("v_add_u32 v252, s24, v252")
    k("s_mov_b32 s69, -1")
    k("s_lshl_b32 s24, s71, 7"); k("s_lshl_b32 s25, s70, 2"); k("s_add_u32 s24, s24, s25"); k(f"s_add_u32 s24, s24, {WS_FLG + F_X}")
    k("s_cmp_eq_u32 s3, 0"); k(f"s_cselect_b32 s24, s24, {OOB}")
    k("v_mov_b32 v245, s24"); k(f"v_mov_b32 v246, {OOB}"); k("v_cmp_eq_u32 vcc, 0, v1"); k("v_cndmask_b32 v245, v246, v245, vcc")
    k("s_mov_b32 s79, -1")

def x_pending(k):
    k("s_cmp_ge_i32 s79, 0"); k(f"s_cselect_b32 s24, 0, {OOB}")
    k("v_or_b32 v246, s24, v245"); k("v_mov_b32 v247, s79")
    k("buffer_store_dword v247, v246, s[8:11], 0 offen sc1")
    k("s_mov_b32 s79, -1")

def x_iter(k):
    BX, XP, XM, VM, OA, TQ, RES, Q0 = 16, 80, 144, 160, 176, 192, 196, 16
    k("s_add_u32 s63, s64, 1")
    ensure(k, 'x_en', 8, 252, 253, known='s69')
    ensure_clear(k, 'x_ec', 253, 's64')
    k("s_add_u32 s52, s65, 32768")
    for rr in range(2):
        so = 's65' if rr == 0 else 's52'
        for q in range(8):
            r = BX + rr * 32 + 4 * q
            k(f"buffer_load_dwordx4 v[{r}:{r+3}], v{240 + q//4}, s[8:11], {so} offen offset:{(q%4)*1024} sc1")
    k("s_add_u32 s24, s68, s73")
    k(f"buffer_load_dwordx4 v[{RES}:{RES+3}], v219, s[8:11], s24 offen sc1")
    loads_ = []
    for j in range(8):
        for tt in range(2):
            r = XP + (j * 2 + tt) * 4
            loads_.append(f"buffer_load_dwordx4 v[{r}:{r+3}], v{212 + j//2}, s[8:11], s67 offen offset:{(j%2)*2048 + tt*1024} sc1")
    for q in range(2):
        for tt in range(2):
            r = XM + (q * 2 + tt) * 4
            loads_.append(f"buffer_load_dwordx4 v[{r}:{r+3}], v216, s[8:11], s67 offen offset:{q*2048 + tt*1024} sc1")
    poll(k, 'x_p0', loads_[15:16], range(XP + 60, XP + 64), TQ, CFG['sl_x0'], 0)
    k("s_add_u32 s53, s66, 8192")
    for rr in range(2):
        so = 's66' if rr == 0 else 's53'
        for q in range(2):
            r = VM + rr * 8 + 4 * q
            loads_.append(f"buffer_load_dwordx4 v[{r}:{r+3}], v242, s[8:11], {so} offen offset:{q*1024} sc1")
    poll(k, 'x_p1', loads_, range(XP, VM + 16), TQ, CFG['sl_x'], 0)
    oa = lambda rr, tt: OA + (rr * 2 + tt) * 4
    for j in range(8):
        for rr in range(2):
            for tt in range(2):
                a = oa(rr, tt); r = XP + (j * 2 + tt) * 4; b = BX + rr * 32 + 4 * j
                c = f"v[{a}:{a+3}]" if j else "0"
                k(f"v_mfma_f32_16x16x32_bf16 v[{a}:{a+3}], v[{b}:{b+3}], v[{r}:{r+3}], {c}")
    for q in range(2):
        for rr in range(2):
            for tt in range(2):
                a = oa(rr, tt); b = VM + rr * 8 + 4 * q; r = XM + (q * 2 + tt) * 4
                k(f"v_mfma_f32_16x16x32_bf16 v[{a}:{a+3}], v[{b}:{b+3}], v[{r}:{r+3}], v[{a}:{a+3}]")
    for t in range(4): k(f"ds_write_b128 v217, v[{OA+4*t}:{OA+4*t+3}] offset:{t*1024}")
    k("s_waitcnt lgkmcnt(0)")
    k("s_barrier")
    lskip = k.new('xs')
    k("s_cmp_ge_u32 s3, 2"); k(f"s_cbranch_scc1 {k.ref(lskip)}")
    for rr in range(2):
        for w in range(4): k(f"ds_read_b128 v[{Q0+16*rr+4*w}:{Q0+16*rr+4*w+3}], v218 offset:{w*4096 + rr*2048}")
    O = 48
    for rr in range(2):
        q = Q0 + 16 * rr
        k(f"s_waitcnt lgkmcnt({4 if rr == 0 else 0})")
        for r in range(0, 4, 2):
            k(f"v_pk_add_f32 v[{q+r}:{q+r+1}], v[{q+r}:{q+r+1}], v[{q+4+r}:{q+4+r+1}]")
            k(f"v_pk_add_f32 v[{q+8+r}:{q+8+r+1}], v[{q+8+r}:{q+8+r+1}], v[{q+12+r}:{q+12+r+1}]")
        for r in range(0, 4, 2):
            k(f"v_pk_add_f32 v[{q+r}:{q+r+1}], v[{q+r}:{q+r+1}], v[{q+8+r}:{q+8+r+1}]")
        k(f"v_cvt_pk_bf16_f32 v{q+4}, v{q}, v{q+1}")
        k(f"v_cvt_pk_bf16_f32 v{q+5}, v{q+2}, v{q+3}")
        for h in range(2):
            k(f"v_lshlrev_b32 v{q}, 16, v{q+4+h}")
            k(f"v_and_b32 v{q+1}, 0xffff0000, v{q+4+h}")
            k(f"v_lshlrev_b32 v{q+6}, 16, v{RES+2*rr+h}")
            k(f"v_and_b32 v{q+7}, 0xffff0000, v{RES+2*rr+h}")
            k(f"v_pk_add_f32 v[{q}:{q+1}], v[{q}:{q+1}], v[{q+6}:{q+7}]")
            k(f"v_cvt_pk_bf16_f32 v{O+2*rr+h}, v{q}, v{q+1}")
    l1 = k.new('xo')
    k("s_cmp_eq_u32 s92, 0"); k(f"s_cbranch_scc0 {k.ref(l1)}")
    k(f"s_add_u32 s24, s68, {A.WS_XF2}")
    k(f"buffer_store_dwordx4 v[{O}:{O+3}], v219, s[8:11], s24 offen sc1")
    k(f"s_branch {k.ref(lskip)}")
    k.lab(l1)
    k(f"buffer_store_dwordx2 v[{O}:{O+1}], v243, s[12:15], s68 offen")
    k(f"buffer_store_dwordx2 v[{O+2}:{O+3}], v243, s[12:15], s68 offen offset:32")
    k.lab(lskip)
    l2 = k.new('xp')
    k("s_lshr_b32 s25, s64, 2"); k("s_add_u32 s25, s25, 1")
    k("s_cmp_eq_u32 s92, 0"); k("s_cselect_b32 s79, s25, -1")
    k("s_cmp_lt_u32 s40, 64"); k(f"s_cbranch_scc1 {k.ref(l2)}")
    k("s_waitcnt vmcnt(0)")
    k("s_barrier")
    x_pending(k)
    k.lab(l2)
    k("s_add_u32 s64, s64, 4")
    k(f"s_add_u32 s65, s65, {4*VOX_SEG}")
    k(f"s_add_u32 s66, s66, {4*SYNC_STEP}")
    k(f"s_add_u32 s67, s67, {4*SYNC_STEP}")
    k(f"s_add_u32 s68, s68, {4*40960}")

def role_P(k):
    RS, L_ST, L_PS = 400, 81920, 81920
    XPRE, BF, ACC, OUT, TMP, ST, CS, ONE = 16, 56, 88, 112, 124, 132, 224, 236
    k("s_sub_u32 s44, s2, 104")
    k("s_lshr_b32 s46, s44, 5")
    k("s_and_b32 s44, s44, 31")
    k.ptr(KA_WQ, 6); k.ptr(KA_WK, 24); k.ptr(KA_WV, 26)
    k("s_waitcnt lgkmcnt(0)")
    k("s_cmp_eq_u32 s46, 1"); k("s_cselect_b32 s6, s24, s6"); k("s_cselect_b32 s7, s25, s7")
    k("s_cmp_eq_u32 s46, 2"); k("s_cselect_b32 s6, s26, s6"); k("s_cselect_b32 s7, s27, s7")
    k.srd(12, 6, D * HD * 2)
    GO, LO, DAT = 4, 10, 56
    stage_offsets(k, 6, 24, HD * 2, RS, L_ST, GO, LO, 16)
    k("v_lshrrev_b32 v16, 2, v2")
    k("v_lshl_add_u32 v16, v3, 2, v16")
    k(f"v_mul_u32_u24 v32, {RS}, v16")
    k("v_and_b32 v16, 3, v2")
    k("v_lshl_add_u32 v32, v16, 3, v32")
    k(f"s_mul_i32 s24, s3, 96"); k(f"s_add_u32 s24, s24, {L_ST}")
    k("v_add_u32 v32, s24, v32")
    k("s_mul_i32 s45, s44, 384")
    def loads(c):
        d = DAT + 24 * (c % 8)
        k(f"s_add_u32 s47, s45, {c * 64 * HD * 2}")
        for i in range(6):
            k(f"buffer_load_dwordx4 v[{d+4*i}:{d+4*i+3}], v{GO+i}, s[12:15], s47 offen")
    for c in range(8): loads(c)
    C0, O0 = 16, 28
    for r in range(4): k(f"v_mov_b32 v{O0+r}, 0x3f803f80")
    def cs_mfma(c):
        for jj in range(2):
            j = 2 * c + jj
            for t in range(3):
                w = (t * 20 + j) * 4; cc = f"v[{C0+4*t}:{C0+4*t+3}]"
                k(f"v_mfma_f32_16x16x32_bf16 {cc}, a[{w}:{w+3}], v[{O0}:{O0+3}], {cc if j else 0}")
    waits = [42, 42, 42, 36, 30, 24, 18, 12, 6, 0]
    for c in range(10):
        d = DAT + 24 * (c % 8)
        k(f"s_waitcnt vmcnt({waits[c]})")
        for i in range(6): k(f"ds_write_b128 v{LO+i}, v[{d+4*i}:{d+4*i+3}] offset:{(c%2)*25600}")
        k("s_waitcnt lgkmcnt(0)")
        if c < 2: loads(c + 8)
        if c > 0: cs_mfma(c - 1)
        k("s_barrier")
        for t in range(3):
            for jj in range(2):
                r = (t * 20 + 2 * c + jj) * 4
                for hf in range(2):
                    k(f"ds_read_b64_tr_b16 a[{r+2*hf}:{r+2*hf+1}], v32 offset:{(c%2)*25600 + (32*jj + 16*hf)*RS + 32*t}")
    k("s_waitcnt lgkmcnt(0)")
    cs_mfma(9)
    for r in range(12): k(f"v_mov_b32 v{CS+r}, v{C0+r}")
    for r in range(4): k(f"v_mov_b32 v{ONE+r}, v{O0+r}")
    k("s_barrier")
    event(k, 1, 16)
    k.lab('p_layer')
    layer_bases(k)
    k("s_sub_u32 s44, s2, 104")
    k("s_lshr_b32 s46, s44, 5")
    k("s_and_b32 s44, s44, 31")
    k(f"s_mov_b32 s43, {WS_QF}")
    k("s_cmp_eq_u32 s46, 1"); k(f"s_cselect_b32 s43, {WS_KF}, s43")
    k("s_cmp_eq_u32 s46, 2"); k(f"s_cselect_b32 s43, {WS_VF}, s43")
    k("s_cmp_eq_u32 s92, 0"); k(f"s_cselect_b32 s73, {A.WS_XF1}, {A.WS_XF3}")
    k("v_lshlrev_b32 v5, 4, v1")
    k("s_mul_i32 s24, s3, 10240")
    k("v_add_u32 v6, s24, v5")
    k("v_add_u32 v7, 4096, v6"); k("v_add_u32 v8, 8192, v6")
    k("s_mul_i32 s24, s44, 12288"); k("s_mul_i32 s25, s3, 3072"); k("s_add_u32 s24, s24, s25")
    k("v_add_u32 v11, s24, v5")
    k("s_lshr_b32 s24, s3, 1"); k("s_lshl_b32 s24, s24, 8"); k("s_and_b32 s25, s3, 1"); k("s_lshl_b32 s25, s25, 3")
    k("s_add_u32 s24, s24, s25"); k(f"s_add_u32 s24, s24, {L_PS}")
    k("v_lshlrev_b32 v13, 4, v2")
    k("v_add_u32 v12, s24, v13")
    k(f"v_add_u32 v13, {L_PS}, v13")
    if CFG['pstat'] == 1:
        k("v_lshrrev_b32 v15, 2, v2"); k("v_cmp_eq_u32 vcc, v15, v3")
        k(f"v_lshlrev_b32 v15, 3, v1"); k(f"v_add_u32 v15, {L_PS + 1024}, v15")
        k("v_cndmask_b32 v12, v15, v12, vcc")
        k("v_and_b32 v15, 3, v2")
        for i_, sp in ((1, 48), (2, 50), (3, 54)): k(f"v_cmp_eq_u32 s[{sp}:{sp+1}], {i_}, v15")
    k("s_and_b32 s24, s2, 7"); k("s_lshl_b32 s24, s24, 7"); k("s_lshl_b32 s25, s92, 10"); k("s_add_u32 s24, s24, s25")
    k(f"s_add_u32 s24, s24, {WS_FLG + F_K3}")
    k("s_cmp_eq_u32 s92, 0"); k("s_cselect_b32 s25, 20, 5"); k("s_cselect_b32 s75, 2, 0"); k("s_cselect_b32 s74, 16, 64")
    k("v_cmp_gt_u32 vcc, s25, v1"); k("v_cndmask_b32 v4, 0, v1, vcc")
    k("v_lshlrev_b32 v4, 2, v4"); k("v_add_u32 v4, s24, v4")
    flag_addr(k, 's46')
    k("s_cmp_eq_u32 s3, 0"); k(f"s_cselect_b32 s24, 0, {OOB}"); k("v_or_b32 v14, s24, v14")
    x_init(k)
    def xloads():
        for i in range(10):
            k(f"buffer_load_dwordx4 v[{XPRE+4*i}:{XPRE+4*i+3}], v{6 + i//4}, s[8:11], s41 offen offset:{(i%4)*1024} {CFG['px_mod']}")
    SA = 136
    def stats_list():
        class L(list):
            def __call__(self, t): self.append(t)
        l = L(); row_stats_partial(l, XPRE, 40, SA, SA + 1, ONE, SA + 2); return l
    SM, SQ = 144, 148
    def stats_mfma():
        l = []
        for i in range(10):
            x = f"v[{XPRE+4*i}:{XPRE+4*i+3}]"
            l.append(f"v_mfma_f32_16x16x32_bf16 v[{SQ}:{SQ+3}], {x}, {x}, " + (f"v[{SQ}:{SQ+3}]" if i else "0"))
            l.append(f"v_mfma_f32_16x16x32_bf16 v[{SM}:{SM+3}], v[{ONE}:{ONE+3}], {x}, " + (f"v[{SM}:{SM+3}]" if i else "0"))
        return l
    def stats_sel():
        return [f"v_cndmask_b32 v{SM+1}, v{SQ}, v{SQ+1}, s[48:49]", f"v_cndmask_b32 v{SM+1}, v{SM+1}, v{SQ+2}, s[50:51]",
                f"v_cndmask_b32 v{SM+1}, v{SM+1}, v{SQ+3}, s[54:55]"]
    SR = SM if CFG['pstat'] == 1 else SA
    def xstage(wbase, psw):
        if CFG['pstat'] == 1:
            for t in stats_mfma(): k(t)
            for i in range(10): k(f"ds_write_b128 v{wbase}, v[{XPRE+4*i}:{XPRE+4*i+3}] offset:{i*1024}")
            for t in stats_sel(): k(t)
        else:
            for t in stats_list(): k(t)
            for i in range(10): k(f"ds_write_b128 v{wbase}, v[{XPRE+4*i}:{XPRE+4*i+3}] offset:{i*1024}")
        k(f"ds_write_b64 v{psw}, v[{SR}:{SR+1}]")
    k("s_mov_b32 s62, -1"); k("s_mov_b32 s63, 1")
    ensure(k, 'p_en0', 20, 4, 16)
    k("s_mov_b32 s41, s73")
    xloads()
    k("s_mov_b32 s40, 0")
    k("s_mov_b32 s42, 0")
    k("s_waitcnt vmcnt(0)")
    xstage(6, 12)
    k("s_waitcnt lgkmcnt(0)")
    k("s_barrier")
    event(k, 2, 16)
    acc = lambda tt, t: ACC + (tt * 3 + t) * 4
    def need_next():
        k("s_add_u32 s63, s40, 1"); k("s_lshr_b32 s63, s63, s75"); k("s_add_u32 s63, s63, 1"); k("s_min_u32 s63, s63, s74")
    def body(steady):
        if steady: stamp(k, 0)
        k("v_add_u32 v9, s42, v5")
        k("s_xor_b32 s42, s42, 40960")
        k("v_add_u32 v10, s42, v6")
        if steady:
            need_next()
            ensure(k, 'p_en', 20, 4, 16)
            k("s_add_u32 s41, s41, 40960")
            xloads()
            stamp(k, 1)
        k("s_and_b32 s24, s40, 1"); k("s_lshl_b32 s24, s24, 9")
        k(f"v_add_u32 v{TMP}, s24, v13")
        k("s_xor_b32 s24, s24, 512")
        k(f"v_add_u32 v{SA+4}, s24, v12")
        lg = LG(k)
        lg.issue('ps', f"ds_read_b128 v[{OUT}:{OUT+3}], v{TMP}")
        lg.issue('ps', f"ds_read_b128 v[{OUT+4}:{OUT+7}], v{TMP} offset:256")
        def rd(j):
            for tt in range(2):
                r = BF + ((j % 4) * 2 + tt) * 4
                lg.issue(j, f"ds_read_b128 v[{r}:{r+3}], v9 offset:{tt*20480 + j*1024}")
        rd(0); rd(1); rd(2)
        class L(list):
            def __call__(self, t): self.append(t)
        extra = L()
        row_stats_final(extra, OUT, ST); row_stats_final(extra, OUT + 4, ST + 2)
        wr = []; sm = []
        for j in range(20):
            if j + 3 < 20: rd(j + 3)
            lg.wait(j)
            if steady and j == 11:
                stamp(k, 4)
                k("s_waitcnt vmcnt(2)")
                stamp(k, 5)
                if CFG['pstat'] == 1: sm = stats_mfma()
                else: extra.extend(stats_list())
                wr = [f"ds_write_b128 v10, v[{XPRE+4*i}:{XPRE+4*i+3}] offset:{i*1024}" for i in range(10)]
            for tt in range(2):
                r = BF + ((j % 4) * 2 + tt) * 4
                for t in range(3):
                    a = acc(tt, t); w = (t * 20 + j) * 4
                    c = f"v[{a}:{a+3}]" if j else "0"
                    k(f"v_mfma_f32_16x16x32_bf16 v[{a}:{a+3}], a[{w}:{w+3}], v[{r}:{r+3}], {c}")
                    for _ in range(CFG['p_nx']):
                        if extra: k(extra.pop(0))
                    if t == 1 and wr and (CFG['p_wr'] == 1 or tt == 0 or True) and (CFG['p_wr'] == 2 or tt == 0): lg.issue('w', wr.pop(0))
            for _ in range(3):
                if sm: k(sm.pop(0))
            if steady and CFG['pstat'] == 1 and j == 19:
                for t_ in stats_sel(): k(t_)
            if steady and j == 9:
                stamp(k, 2)
                k("s_waitcnt vmcnt(10)")
                k("s_barrier")
                stamp(k, 3)
                k("v_mov_b32 v15, s40")
                k("buffer_store_dword v15, v14, s[8:11], 0 offen sc1")
                x_pending(k)
        for t_ in wr: lg.issue('w', t_)
        assert not sm
        for t_ in extra: k(t_)
        if steady: lg.issue('w', f"ds_write_b64 v{SA+4}, v[{SR}:{SR+1}]")
        for tt in range(2):
            for t in range(3): ln_fold(k, acc(tt, t), CS + 4 * t, ST + 2 * tt, TMP)
        for o, (tt, t) in enumerate([(0, 0), (0, 1), (1, 0), (1, 1), (0, 2), (1, 2)]):
            a = acc(tt, t)
            k(f"v_cvt_pk_bf16_f32 v{OUT+2*o}, v{a}, v{a+1}")
            k(f"v_cvt_pk_bf16_f32 v{OUT+2*o+1}, v{a+2}, v{a+3}")
        for b in range(3):
            k(f"buffer_store_dwordx4 v[{OUT+4*b}:{OUT+4*b+3}], v11, s[8:11], s43 offen offset:{b*1024} sc1")
        k(f"s_add_u32 s43, s43, {QF_SEG}")
        if not steady:
            k("s_waitcnt vmcnt(0)")
            k("s_barrier")
            k("s_add_u32 s24, s40, 1"); k("v_mov_b32 v15, s24")
            k("buffer_store_dword v15, v14, s[8:11], 0 offen sc1")
            need_next()
            ensure(k, 'p_enA', 20, 4, 16)
            k("s_add_u32 s41, s41, 40960")
            xloads()
            k("s_waitcnt vmcnt(0)")
            xstage(10, SA + 4)
        if steady and CFG['stamp']:
            k("s_waitcnt lgkmcnt(0)"); k("s_memrealtime s[56:57]"); k("s_waitcnt lgkmcnt(0)"); k("s_mov_b32 s57, s56"); stamp_out(k, 6, 16)
        k("s_add_u32 s40, s40, 1")
        k("s_waitcnt lgkmcnt(0)")
        k("s_barrier")
    k.lab('p_segA')
    body(False)
    k(f"s_cmp_lt_u32 s40, {CFG['p_ns']}"); k(f"s_cbranch_scc1 {k.ref('p_segA')}")
    k(f"s_branch {k.ref('p_next')}")
    k.lab('p_seg')
    body(True)
    k.lab('p_next')
    if CFG['stamp']:
        for i_, sv in enumerate((8, 16, 32, 48)):
            l_ = k.new('pe'); k(f"s_cmp_eq_u32 s40, {sv}"); k(f"s_cbranch_scc0 {k.ref(l_)}"); event(k, 8 + i_, 16); k.lab(l_)
    k(f"s_add_u32 s24, s64, {CFG['xlag']}"); k("s_cmp_le_u32 s24, s40"); k(f"s_cbranch_scc1 {k.ref('p_pub')}")
    k("s_cmp_lt_u32 s40, 64"); k(f"s_cbranch_scc1 {k.ref('p_seg')}")
    k.lab('p_pub')
    k("s_waitcnt vmcnt(0)")
    k("s_barrier")
    flag_pub(k, 's40')
    k(f"s_add_u32 s24, s64, {CFG['xlag']}"); k("s_cmp_le_u32 s24, s40"); k(f"s_cbranch_scc1 {k.ref('p_x')}")
    k("s_cmp_lt_u32 s40, 64"); k(f"s_cbranch_scc1 {k.ref('p_seg')}")
    k("s_cmp_ge_u32 s64, 64"); k(f"s_cbranch_scc1 {k.ref('p_done')}")
    k.lab('p_x')
    x_iter(k)
    k(f"s_branch {k.ref('p_next')}")
    k.lab('p_done')
    event(k, 3, 16)
    next_layer(k, 'p_layer')

def role_O(k):
    RS = 1312
    VFa, VFb, ACC, OUT = 16, 64, 112, 192
    k("s_sub_u32 s44, s2, 200")
    k.ptr(KA_WO, 6)
    k("s_waitcnt lgkmcnt(0)")
    k.srd(12, 6, D * HD * 2)
    LO, D0, D1 = 16, 48, 168
    for i in range(30):
        k(f"v_add_u32 v8, {256*i}, v0")
        divmod_const(k, 9, 10, 8, 80, 256 * 30, 24)
        k(f"v_mul_u32_u24 v{LO+i}, {RS}, v9")
        k(f"v_lshl_add_u32 v{LO+i}, v10, 4, v{LO+i}")
    k("v_lshlrev_b32 v4, 4, v0")
    k(f"s_mul_i32 s45, s44, {192*1280}")
    dat = lambda b, i: (D0 + 4 * i) if b == 0 else ((D1 + 4 * i) if i < 22 else (D0 + 4 * (i - 22)))
    def ld(b, i):
        k(f"s_add_u32 s46, s45, {b*96*1280 + i*4096}")
        d = dat(b, i)
        k(f"buffer_load_dwordx4 v[{d}:{d+3}], v4, s[12:15], s46 offen")
    for i in range(30): ld(0, i)
    for i in range(22): ld(1, i)
    k("v_lshrrev_b32 v8, 2, v2")
    k("v_lshl_add_u32 v8, v3, 2, v8")
    k(f"v_mul_u32_u24 v5, {RS}, v8")
    k("v_and_b32 v8, 3, v2")
    k("v_lshl_add_u32 v5, v8, 3, v5")
    k("s_mul_i32 s24, s3, 320")
    k("v_add_u32 v5, s24, v5")
    k(f"v_add_u32 v6, {48*RS}, v5")
    for b in range(2):
        k(f"s_waitcnt vmcnt({22 if b == 0 else 0})")
        for i in range(30):
            d = dat(b, i)
            k(f"ds_write_b128 v{LO+i}, v[{d}:{d+3}]")
        k("s_waitcnt lgkmcnt(0)")
        if b == 0:
            for i in range(22, 30): ld(1, i)
        k("s_barrier")
        for t in range(10):
            def tr(ks, hf, base, row):
                r = (t * 6 + ks) * 4 + 2 * hf
                k(f"ds_read_b64_tr_b16 a[{r}:{r+1}], v{base} offset:{row*RS + 32*t}")
            tr(2*b, 0, 5, 0); tr(2*b, 1, 5, 16)
            tr(2*b+1, 0, 6, 0); tr(2*b+1, 1, 6, 16)
            tr(4+b, 0, 5, 32); tr(4+b, 1, 6, 32)
        k("s_waitcnt lgkmcnt(0)")
        k("s_barrier")
    k("v_lshlrev_b32 v5, 4, v1")
    k("s_mul_i32 s24, s44, 12288")
    k("v_add_u32 v6, s24, v5")
    k("v_add_u32 v7, 4096, v6"); k("v_add_u32 v8, 8192, v6")
    k(f"s_mul_i32 s24, s3, {10*32768}"); k("s_lshl_b32 s25, s44, 10"); k("s_add_u32 s24, s24, s25")
    k("v_add_u32 v9, s24, v5")
    event(k, 1, 16)
    k.lab('o_layer')
    layer_bases(k)
    flag_addr(k, 3)
    k(f"s_lshl_b32 s24, s44, 7"); k(f"s_add_u32 s24, s24, {2*4096}"); k("s_add_u32 s24, s24, s94")
    k("v_mov_b32 v10, s24")
    k(f"s_mov_b32 s41, {WS_VF}")
    k(f"s_mov_b32 s43, {WS_VOX}")
    k("s_mov_b32 s40, 0")
    def vloads(V):
        for i in range(12):
            k(f"buffer_load_dwordx4 v[{V+4*i}:{V+4*i+3}], v{6 + i//4}, s[8:11], s41 offen offset:{(i%4)*1024} sc1")
        k(f"s_add_u32 s41, s41, {QF_SEG}")
    k("s_mov_b32 s62, -1"); k("s_mov_b32 s63, 1")
    ensure(k, 'o_en0', 1, 10, 11)
    vloads(VFa)
    k("s_waitcnt vmcnt(0)")
    event(k, 2, 240)
    k.lab('o_seg')
    for par, (V, VN) in enumerate(((VFa, VFb), (VFb, VFa))):
        for p in range(2):
            X = V + (6 * p + 2) * 4; Y = V + (6 * p + 5) * 4
            k(f"v_swap_b32 v{X+2}, v{Y}"); k(f"v_swap_b32 v{X+3}, v{Y+1}")
        def frag(tt, ks):
            if ks < 4: return V + (3 * ks + tt) * 4
            p = ks - 4
            return V + (6 * p + 2) * 4 if tt == 0 else V + (6 * p + 5) * 4
        def nxt(tag):
            k("s_add_u32 s63, s40, 2"); k("s_min_u32 s63, s63, 64")
            ensure(k, tag, 1, 10, 11)
            vloads(VN)
        for ks in range(6):
            for t in range(10):
                for tt in range(2):
                    a = ACC + (t * 2 + tt) * 4; w = (t * 6 + ks) * 4; f = frag(tt, ks)
                    c = f"v[{a}:{a+3}]" if ks else "0"
                    k(f"v_mfma_f32_16x16x32_bf16 v[{a}:{a+3}], v[{f}:{f+3}], a[{w}:{w+3}], {c}")
            if ks == 2:
                lf = k.new('of')
                if par == 0:
                    k("s_cmp_eq_u32 s40, 0"); k(f"s_cbranch_scc1 {k.ref(lf)}")
                k("s_waitcnt vmcnt(0)")
                k("s_barrier")
                flag_pub(k, 's40')
                nxt(f'o_en{par+1}')
                k.lab(lf)
        k("s_mov_b32 s46, s43")
        for t in range(10):
            o = OUT + 4 * t
            for tt in range(2):
                a = ACC + (t * 2 + tt) * 4
                k(f"v_cvt_pk_bf16_f32 v{o+2*tt}, v{a}, v{a+1}")
                k(f"v_cvt_pk_bf16_f32 v{o+2*tt+1}, v{a+2}, v{a+3}")
            k(f"buffer_store_dwordx4 v[{o}:{o+3}], v9, s[8:11], s46 offen sc1")
            if t < 9: k("s_add_u32 s46, s46, 32768")
        if par == 0:
            lf = k.new('of')
            k("s_cmp_eq_u32 s40, 0"); k(f"s_cbranch_scc0 {k.ref(lf)}")
            k("s_waitcnt vmcnt(0)")
            k("s_barrier")
            flag_pub(k, 1)
            nxt('o_en3')
            k("s_waitcnt vmcnt(0)")
            k.lab(lf)
        k("s_waitcnt vmcnt(10)")
        k("s_add_u32 s40, s40, 1")
        k(f"s_add_u32 s43, s43, {VOX_SEG}")
    k("s_cmp_lt_u32 s40, 64")
    k(f"s_cbranch_scc1 {k.ref('o_seg')}")
    k("s_waitcnt vmcnt(0)")
    k("s_barrier")
    flag_pub(k, 's40')
    event(k, 3, 240)
    next_layer(k, 'o_layer')
class Hooks(A.NoHooks):
    def k1_wait_x(self, k):
        k("s_and_b32 s24, s48, 3"); k("s_lshl_b32 s24, s24, 7"); k(f"s_add_u32 s24, s24, {WS_FLG + F_X}")
        k("v_lshlrev_b32 v15, 2, v1"); k("v_add_u32 v15, s24, v15")
        k("s_lshr_b32 s95, s48, 2"); k("s_add_u32 s95, s95, 1")
        wait_all(k, 'k1_wx', 20, 14, 's95', sleep=4)
    def k1_first_barrier(self, k):
        l = k.new('fb')
        k("s_cmp_eq_u32 s2, 255"); k(f"s_cbranch_scc0 {k.ref(l)}")
        k("s_cmp_eq_u32 s92, 0"); k(f"s_cbranch_scc0 {k.ref(l)}")
        k("s_cmp_eq_u32 s3, 0"); k(f"s_cbranch_scc0 {k.ref(l)}")
        k(f"v_mov_b32 v154, {OOB}"); k("v_cmp_eq_u32 vcc, 0, v1"); k("v_cndmask_b32 v154, v154, 0, vcc")
        k("v_mov_b32 v155, 1")
        k("buffer_store_dword v155, v154, s[72:75], 0 offen sc1")
        k.lab(l)
    def k1_ready_issue(self, k):
        l = k.new('ri')
        k("s_cmp_eq_u32 s92, 0"); k(f"s_cbranch_scc0 {k.ref(l)}")
        k("v_mov_b32 v15, 0")
        k("buffer_load_dword v14, v15, s[72:75], 0 offen sc1")
        k.lab(l)
    def k1_ready_check(self, k):
        l = k.new('rc')
        k("s_cmp_eq_u32 s92, 0"); k(f"s_cbranch_scc0 {k.ref(l + '_ok')}")
        k("s_mov_b32 s61, 0")
        k.lab(l)
        k("s_waitcnt vmcnt(0)")
        k("v_readfirstlane_b32 s24, v14")
        k("s_cmp_eq_u32 s24, 1"); k(f"s_cbranch_scc1 {k.ref(l + '_ok')}")
        k("s_add_u32 s61, s61, 1"); k("s_cmp_ge_u32 s61, s60"); k(f"s_cbranch_scc1 {k.ref(l + '_to')}")
        k("s_sleep 2")
        k("v_mov_b32 v15, 0")
        k("buffer_load_dword v14, v15, s[72:75], 0 offen sc1")
        k(f"s_branch {k.ref(l)}")
        k.lab(l + '_to')
        k("s_mov_b32 s60, 1")
        k.lab(l + '_ok')
    def k1_publish(self, k):
        k("s_lshl_b32 s24, s92, 3"); k("s_add_u32 s24, s24, s44"); k("s_lshl_b32 s24, s24, 7")
        k("s_lshl_b32 s25, s45, 2"); k("s_add_u32 s24, s24, s25"); k(f"s_add_u32 s24, s24, {WS_FLG + F_K1}")
        pub_dword(k, 's24', 1, 14)
    def k2_wait(self, k):
        k("s_lshl_b32 s24, s92, 3"); k("s_add_u32 s24, s24, s44"); k("s_lshl_b32 s24, s24, 7"); k(f"s_add_u32 s24, s24, {WS_FLG + F_K1}")
        k("v_lshlrev_b32 v15, 2, v1"); k("v_add_u32 v15, s24, v15")
        k("s_cmp_eq_u32 s92, 0"); k("s_cselect_b32 s26, -1, 3")
        wait_all(k, 'k2_w', 's26', 14, 1, sleep=2)
    def k2_publish(self, k):
        k("s_lshl_b32 s24, s92, 7"); k("s_sub_u32 s25, s2, 64"); k("s_lshl_b32 s25, s25, 2"); k("s_add_u32 s24, s24, s25")
        k(f"s_add_u32 s24, s24, {WS_FLG + F_K2}")
        pub_dword(k, 's24', 1, 14)
    def k3_wait0(self, k):
        k("s_cmp_eq_u32 s92, 0"); k("s_cselect_b32 s26, 32, 0"); k("s_cselect_b32 s27, 7, 1")
        k("s_lshl_b32 s24, s92, 10"); k(f"s_add_u32 s24, s24, {WS_FLG + F_K1}")
        k("v_and_b32 v15, 7, v1"); k("v_lshlrev_b32 v15, 7, v15")
        k("v_lshrrev_b32 v14, 3, v1"); k("v_and_b32 v14, s27, v14"); k("v_lshl_add_u32 v15, v14, 2, v15")
        k("v_add_u32 v15, s24, v15")
        k("s_lshl_b32 s27, s26, 1"); k("s_add_u32 s28, s27, s26")
        k("s_mov_b32 s61, 0")
        k.lab('k3_w0')
        for i, so in enumerate(('0', 's26', 's27', 's28')):
            k(f"buffer_load_dword v{16+i}, v15, s[8:11], {so} offen sc1")
        k("s_waitcnt vmcnt(0)")
        k("v_min_i32 v16, v16, v17"); k("v_min3_i32 v16, v16, v18, v19")
        k("v_cmp_le_i32 vcc, 1, v16")
        k("s_cmp_eq_u64 vcc, -1")
        k(f"s_cbranch_scc1 {k.ref('k3_w0_ok')}")
        k("s_add_u32 s61, s61, 1"); k("s_cmp_ge_u32 s61, s60"); k(f"s_cbranch_scc1 {k.ref('k3_w0_to')}")
        k("s_sleep 4")
        k(f"s_branch {k.ref('k3_w0')}")
        k.lab('k3_w0_to'); k("s_mov_b32 s60, 1")
        k.lab('k3_w0_ok')
    def k3_wait(self, k):
        k("s_lshl_b32 s24, s92, 7"); k(f"s_add_u32 s24, s24, {WS_FLG + F_K2}")
        k("v_lshlrev_b32 v15, 2, v1"); k("v_add_u32 v15, s24, v15")
        wait_all(k, 'k3_w', 24, 14, 1, sleep=2)
    def k3_publish(self, k, last):
        k("s_lshl_b32 s24, s92, 10"); k("s_lshl_b32 s25, s78, 2"); k("s_add_u32 s24, s24, s25")
        k(f"s_add_u32 s24, s24, {WS_FLG + F_K3}")
        pub_dword(k, 's24', 's40', 14, copies=8)

NCLR = 3
def role_clear(k):
    k("s_sub_u32 s44, s2, 253")
    k("s_lshl_b32 s24, s44, 2"); k("s_add_u32 s24, s24, s3"); k(f"s_mul_i32 s24, s24, {38*1024}"); k(f"s_add_u32 s41, s24, {WS_SYNC}")
    k("v_lshlrev_b32 v5, 4, v1")
    for r in range(4): k(f"v_mov_b32 v{8+r}, -1")
    k("s_lshl_b32 s24, s44, 2"); k(f"s_add_u32 s42, s24, {WS_FLG + F_C}")
    k("s_mov_b32 s40, 0")
    if CFG['noclr']:
        k("s_mov_b32 s40, 128"); pub_dword(k, 's42', 's40', 14, copies=8); return
    k.lab('clr_blk')
    k("s_mov_b32 s43, s41")
    for i in range(38):
        k(f"buffer_store_dwordx4 v[8:11], v5, s[8:11], s43 offen offset:{(i%4)*1024} {CFG['clr_mod']}")
        if i % 4 == 3: k("s_add_u32 s43, s43, 4096")
    k("s_waitcnt vmcnt(38)")
    k("s_barrier")
    pub_dword(k, 's42', 's40', 14, copies=8)
    if CFG['clr_sleep']: k(f"s_sleep {CFG['clr_sleep']}")
    k("s_add_u32 s40, s40, 1")
    k(f"s_add_u32 s41, s41, {SYNC_STEP}")
    k("s_cmp_lt_u32 s40, 128"); k(f"s_cbranch_scc1 {k.ref('clr_blk')}")
    k("s_waitcnt vmcnt(0)")
    k("s_barrier")
    pub_dword(k, 's42', 's40', 14, copies=8)

def build():
    k = K(NAME, vgpr=256, sgpr=100, agpr=256)
    H = Hooks()
    k("s_cmp_ge_u32 s2, 256")
    k(f"s_cbranch_scc1 {k.ref('end')}")
    k.ptr(KA_WS, 4); k.ptr(KA_DBG, 6); k.ptr(KA_AX, 24)
    k("v_and_b32 v1, 63, v0")
    k("v_lshrrev_b32 v4, 6, v0")
    k("v_and_b32 v2, 15, v1")
    k("v_lshrrev_b32 v3, 4, v1")
    k("v_readfirstlane_b32 s3, v4")
    k(f"s_mov_b32 s60, {CFG['spin']}")
    k("s_mov_b32 s59, -1")
    k("s_mov_b32 s92, 0")
    k("s_waitcnt lgkmcnt(0)")
    k.srd(8, 4, WS_BYTES)
    k.srd(72, 6, 256)
    k.srd(16, 24, A.XF_BYTES)
    event(k, 0)
    l = k.new('cf')
    k("s_cmp_eq_u32 s2, 255"); k(f"s_cbranch_scc0 {k.ref(l)}")
    k("v_lshlrev_b32 v5, 4, v0")
    for r in range(4): k(f"v_mov_b32 v{8+r}, -1")
    k(f"s_mov_b32 s24, {WS_FLG}")
    for i in range(FLG_BYTES // 4096):
        k(f"buffer_store_dwordx4 v[8:11], v5, s[8:11], s24 offen sc1")
        k("s_add_u32 s24, s24, 4096")
    k.lab(l)
    k("s_mov_b32 s46, 64"); k("s_mov_b32 s47, 32"); k("s_mov_b32 s50, 0")
    k("s_and_b32 s44, s2, 7"); k("s_lshr_b32 s45, s2, 3")
    k("s_lshl_b32 s48, s45, 1"); k("s_mov_b32 s49, 1"); k("s_mov_b32 s40, 2")
    k.lab('k1_entry')
    A.role_K1(k, H)
    event(k, 4)
    k("s_cmp_eq_u32 s92, 0"); k(f"s_cbranch_scc0 {k.ref('end')}")
    k("s_cmp_ge_u32 s2, 232"); k(f"s_cbranch_scc1 {k.ref('helper')}")
    k("s_cmp_ge_u32 s2, 200"); k(f"s_cbranch_scc1 {k.ref('toO')}")
    k("s_cmp_ge_u32 s2, 104"); k(f"s_cbranch_scc1 {k.ref('toP')}")
    k("s_cmp_ge_u32 s2, 64"); k(f"s_cbranch_scc1 {k.ref('toR')}")
    k("s_cmp_ge_u32 s2, 32"); k(f"s_cbranch_scc1 {k.ref('toV')}")
    k(f"s_branch {k.ref('roleS')}")
    for nm in 'VRPO':
        k.lab('to' + nm); k(f"s_branch {k.ref('role' + nm)}")
    k.lab('helper')
    k("s_sub_u32 s24, s2, 232")
    k("s_cmp_ge_u32 s24, 21"); k(f"s_cbranch_scc1 {k.ref('helper_clr')}")
    k("s_cmp_eq_u32 s24, 15"); k(f"s_cbranch_scc1 {k.ref('helper_k1')}")
    k("s_mul_i32 s57, s24, 52"); k("s_lshr_b32 s57, s57, 8"); k("s_mul_i32 s56, s57, 5"); k("s_sub_u32 s56, s24, s56")
    k("s_add_u32 s57, s57, 1")
    k("s_sub_u32 s25, s24, 16"); k("s_cmp_ge_u32 s24, 16"); k("s_cselect_b32 s56, s25, s56"); k("s_cselect_b32 s57, 0, s57")
    k("s_mul_i32 s78, s57, 5"); k("s_add_u32 s78, s78, s56")
    A.k3_stage(k)
    k.ptr(KA_AX, 6); k("s_waitcnt lgkmcnt(0)"); k.srd(16, 6, A.XF_BYTES)
    k("s_mov_b32 s46, 64"); k("s_mov_b32 s47, 32"); k("s_mov_b32 s50, 0"); k(f"s_mov_b32 s58, {A.WS_XF1}")
    k("s_mov_b32 s76, 16"); k("s_mov_b32 s77, 163840")
    k.lab('k3_entry')
    A.role_K3(k, H)
    event(k, 6)
    k("s_cmp_eq_u32 s92, 0"); k(f"s_cbranch_scc0 {k.ref('end')}")
    k("s_mov_b32 s92, 1")
    k("s_cmp_lt_u32 s2, 248"); k(f"s_cbranch_scc1 {k.ref('helper_k1')}")
    k.srd(16, 4, A.XF_BYTES, A.WS_XF2)
    k("s_mov_b32 s46, 1024"); k("s_mov_b32 s47, 8"); k("s_mov_b32 s50, 1"); k(f"s_mov_b32 s58, {A.WS_XF3}")
    k("s_mov_b32 s76, 64"); k("s_mov_b32 s77, 40960")
    k(f"s_branch {k.ref('k3_entry')}")
    k.lab('helper_k1')
    k("s_mov_b32 s92, 1")
    k("s_sub_u32 s24, s2, 232")
    k.srd(16, 4, A.XF_BYTES, A.WS_XF2)
    k("s_mov_b32 s46, 1024"); k("s_mov_b32 s47, 8"); k("s_mov_b32 s50, 1")
    k("s_and_b32 s44, s24, 7"); k("s_lshr_b32 s45, s24, 3")
    k("s_mov_b32 s48, s45"); k("s_mov_b32 s49, 2"); k("s_mov_b32 s40, 32")
    k(f"s_branch {k.ref('k1_entry')}")
    k.lab('helper_clr')
    role_clear(k)
    event(k, 6)
    k(f"s_branch {k.ref('end')}")
    k.lab('roleS'); (role_S2 if CFG['s2'] else role_S)(k)
    k.lab('roleV'); (role_V2 if CFG['v2'] else role_V)(k)
    k.lab('roleR'); role_R(k)
    k.lab('roleP'); role_P(k)
    k.lab('roleO'); role_O(k)
    k.lab('end')
    head = ["; generated by gen6.py (my own hand-written generator); kernarg: 13 pointers",
            f"; @launch kernel={k.name} grid=(256,1,1) block=(256,1,1) lds=135168",
            '.amdgcn_target "amdgcn-amd-amdhsa--gfx950"']
    return "\n".join(head) + "\n" + k.text() + "\n"

CFG.setdefault('dly_hr', 4); CFG.setdefault('hr_wave', 3); CFG.setdefault('s2', 1); CFG.setdefault('v2', 1); CFG.setdefault('v_x8', 4); CFG.setdefault('v_x9', 4); CFG.setdefault('tgt_m', 8); CFG.setdefault('tgt_p', 7); CFG.setdefault('noclr', 0); CFG.setdefault('pstat', 1); CFG.setdefault('p_nx', 1); CFG.setdefault('p_wr', 1); CFG.setdefault('px_mod', ''); CFG.setdefault('p_ns', 2); CFG.setdefault('spin', SPIN_MAX); CFG.setdefault('xlag', 24); CFG.setdefault('clr_mod', 'sc1')
if __name__ == "__main__":
    out = "z.s"
    for a in sys.argv[1:]:
        if a == "stamp": CFG['stamp'] = True
        elif a.endswith(".s"): out = a
        elif "=" in a:
            kk, v = a.split("=")
            try: CFG[kk] = int(v)
            except ValueError: CFG[kk] = v.replace('+', ' ')
    open(out, "w").write(build())
    print("written", out)
```

```python
import sys, struct
from asmlib import K, magic

NAME = "interleave_layers__linear_attn_block__memory_aug_recurrent_mem_tr__prompt"
S, D = 2048, 640
KA_AX, KA_WQKV, KA_WOA, KA_BX, KA_MEM0, KA_WQ, KA_WK, KA_WV, KA_WO, KA_SEG, KA_OUT, KA_DBG, KA_WS = range(13)
WS_BYTES = 268435456
OOB = 0x7ff00000
LOG2E = 1.4426950408889634
def hexf(x): return "0x%08x" % struct.unpack("<I", struct.pack("<f", x))[0]

WS_XF1, WS_XF2, WS_XF3 = 0x00000000, 0x00400000, 0x00800000
XF_BYTES = S * D * 2
WS_PQF  = 0x00C00000
WS_PART = 0x01000000
PART_GRP = 18 * 1024
PART_REP = 8 * PART_GRP
WS_BDF  = 0x01500000
BDF_LAYER = 0x20000

class LG:
    def __init__(self, k): self.k = k; self.q = []
    def issue(self, tag, text):
        self.k(text); self.q.append(tag)
    def wait(self, tag):
        if tag not in self.q: return
        idx = max(i for i, t in enumerate(self.q) if t == tag)
        n = len(self.q) - 1 - idx
        assert n <= 15, n
        self.k(f"s_waitcnt lgkmcnt({n})")
        self.q = self.q[idx + 1:]
    def all(self):
        self.k("s_waitcnt lgkmcnt(0)"); self.q = []

def lookup(k, dst, idx, table):
    k(f"s_mov_b32 {dst}, {table[0]}")
    for i, v in enumerate(table[1:], 1):
        if v == table[0]: continue
        k(f"s_cmp_eq_u32 {idx}, {i}")
        k(f"s_cselect_b32 {dst}, {v}, {dst}")

def divmod_const(k, q, r, x, d, maxn, stmp):
    m, sh = magic(d, maxn)
    k(f"s_mov_b32 s{stmp}, {m}")
    k(f"v_mul_lo_u32 v{q}, v{x}, s{stmp}")
    k(f"v_lshrrev_b32 v{q}, {sh}, v{q}")
    k(f"v_mul_u32_u24 v{r}, {d}, v{q}")
    k(f"v_sub_u32 v{r}, v{x}, v{r}")

def row_stats_partial(k, X, n, S1, S2, ones, t):
    k(f"v_mov_b32 v{S1}, 0"); k(f"v_mov_b32 v{S2}, 0"); k(f"v_mov_b32 v{t}, 0"); k(f"v_mov_b32 v{t+1}, 0")
    for i in range(0, n, 2):
        k(f"v_dot2c_f32_bf16 v{S1}, v{X+i}, v{ones}")
        k(f"v_dot2c_f32_bf16 v{S2}, v{X+i}, v{X+i}")
        k(f"v_dot2c_f32_bf16 v{t}, v{X+i+1}, v{ones}")
        k(f"v_dot2c_f32_bf16 v{t+1}, v{X+i+1}, v{X+i+1}")
    k(f"v_add_f32 v{S1}, v{S1}, v{t}")
    k(f"v_add_f32 v{S2}, v{S2}, v{t+1}")
    for sw in ("v_permlane16_swap_b32", "v_permlane32_swap_b32"):
        k(f"v_mov_b32 v{t}, v{S1}"); k(f"v_mov_b32 v{t+1}, v{S2}")
        k(f"{sw} v{S1}, v{t}"); k(f"{sw} v{S2}, v{t+1}")
        k(f"v_add_f32 v{S1}, v{S1}, v{t}"); k(f"v_add_f32 v{S2}, v{S2}, v{t+1}")

def row_stats_final(k, P, dst):
    k(f"v_add_f32 v{P}, v{P}, v{P+2}")
    k(f"v_add_f32 v{P+1}, v{P+1}, v{P+3}")
    k(f"v_mul_f32 v{P}, {hexf(1.0/D)}, v{P}")
    k(f"v_mul_f32 v{P+2}, v{P}, v{P}")
    k(f"v_mov_b32 v{P+3}, {hexf(1.0/D)}")
    k(f"v_fma_f32 v{P+1}, v{P+1}, v{P+3}, -v{P+2}")
    k(f"v_max_f32 v{P+1}, 0, v{P+1}")
    k(f"v_add_f32 v{P+1}, {hexf(1e-5)}, v{P+1}")
    k(f"v_rsq_f32 v{dst}, v{P+1}")
    k(f"v_mul_f32 v{dst+1}, v{P}, v{dst}")
    k(f"v_sub_f32 v{dst+1}, 0, v{dst+1}")

def ln_fold(k, a, cs, st, t):
    for h in (0, 2):
        k(f"v_pk_mul_f32 v[{t+h}:{t+h+1}], v[{cs+h}:{cs+h+1}], v[{st}:{st+1}] op_sel:[0,1] op_sel_hi:[1,1]")
    for h in (0, 2):
        k(f"v_pk_fma_f32 v[{a+h}:{a+h+1}], v[{a+h}:{a+h+1}], v[{st}:{st+1}], v[{t+h}:{t+h+1}] op_sel:[0,0,0] op_sel_hi:[1,0,1]")

STAMP = False
WS_TRACE = 0x01800000
def stamp(k, i):
    if STAMP: k(f"s_memrealtime s[{64+2*i}:{65+2*i}]")
def stamp_out(k, n, base=0):
    if not STAMP: return
    k("s_waitcnt lgkmcnt(0)")
    k("s_lshl_b32 s24, s2, 2"); k("s_add_u32 s24, s24, s3"); k("s_lshl_b32 s24, s24, 6"); k(f"s_add_u32 s24, s24, {WS_TRACE + base}")
    k(f"v_mov_b32 v14, {OOB}"); k("v_cmp_eq_u32 vcc, 0, v1"); k("v_cndmask_b32 v14, v14, 0, vcc")
    for i in range(n):
        k(f"v_mov_b32 v15, s{64+2*i}")
        k(f"buffer_store_dword v15, v14, s[8:11], s24 offen offset:{4*i}")

class NoHooks:
    def ev(self, k, i, t=14): pass
    def k1_wait_x(self, k): pass
    def k1_early(self, k): pass
    def k1_first_barrier(self, k): pass
    def k1_ready_issue(self, k): pass
    def k1_ready_check(self, k): pass
    def k1_publish(self, k): pass
    def k2_wait(self, k): pass
    def k2_publish(self, k): pass
    def k3_wait0(self, k): pass
    def k3_wait(self, k): pass
    def k3_publish(self, k, last): pass

def role_K1(k, H):
    RSW, L_W, WBUF = 544, 40960, 64 * 544
    L_KV, RSK, L_PS = 40960, 336, 40960 + 32 * 336
    XPRE, RING, ACC, KVA, CS, ST, TMP, ONE, W3 = 16, 56, 88, 120, 156, 144, 148, 172, 176
    DAT, GO, LO, TA = 56, 152, 153, 12
    def wreg(slot, j, lo=0, n=4):
        if slot < 3: r = (slot * 20 + j) * 4 + lo; return f"a[{r}:{r+n-1}]"
        r = W3 + j * 4 + lo; return f"v[{r}:{r+n-1}]"
    stamp(k, 0)
    k.ptr(KA_WQKV, 6)
    k("s_lshr_b32 s24, s3, 1"); k("s_mul_i32 s24, s24, 20480")
    k("s_and_b32 s25, s3, 1"); k("s_mul_i32 s25, s25, 10"); k("s_mul_i32 s25, s25, s46"); k("s_add_u32 s24, s24, s25")
    k("s_cmp_eq_u32 s50, 1"); k("s_cselect_b32 s25, 16, 1280"); k("s_cselect_b32 s26, 256, 8")
    k("v_mul_u32_u24 v4, s25, v2"); k("v_mul_u32_u24 v5, s26, v3")
    k("v_add3_u32 v4, v4, v5, s24")
    k("v_add_u32 v5, s47, v4")
    k("s_mul_i32 s43, s48, 40960")
    k("s_mul_i32 s42, s49, 40960")
    def xloads():
        k("s_mov_b32 s24, s41")
        for i in range(10):
            k(f"buffer_load_dwordx2 v[{XPRE+4*i}:{XPRE+4*i+1}], v4, s[16:19], s24 offen sc1")
            k(f"buffer_load_dwordx2 v[{XPRE+4*i+2}:{XPRE+4*i+3}], v5, s[16:19], s24 offen sc1")
            if i < 9: k("s_add_u32 s24, s24, s46")
    k("s_mov_b32 s51, 0")
    l0 = k.new('k1')
    k("s_cmp_eq_u32 s92, 0"); k(f"s_cbranch_scc0 {k.ref(l0)}")
    k("s_mov_b32 s41, s43"); xloads(); k("s_mov_b32 s51, 1")
    k.lab(l0)
    k("v_and_b32 v7, 31, v0"); k("v_lshrrev_b32 v8, 5, v0")
    k(f"v_mul_u32_u24 v{GO}, 3840, v8")
    k("v_lshlrev_b32 v9, 4, v7")
    k(f"v_add_u32 v{GO}, v{GO}, v9")
    k("v_cmp_le_u32 vcc, 10, v7"); k("v_cndmask_b32 v10, 0, 1, vcc")
    k("v_cmp_le_u32 vcc, 20, v7"); k("v_cndmask_b32 v11, 0, 1, vcc")
    k("v_add_u32 v10, v10, v11")
    k("v_mul_u32_u24 v10, 1120, v10")
    k(f"v_add_u32 v{GO}, v{GO}, v10")
    k(f"v_mov_b32 v10, {OOB}"); k("v_cmp_le_u32 vcc, 30, v7"); k(f"v_cndmask_b32 v{GO}, v{GO}, v10, vcc")
    k(f"v_mul_u32_u24 v{LO}, {RSW}, v8"); k(f"v_add_u32 v{LO}, v{LO}, v9"); k(f"v_add_u32 v{LO}, {L_W}, v{LO}")
    k("s_waitcnt lgkmcnt(0)")
    k.srd(12, 6, D * 1920 * 2)
    k("s_mul_i32 s52, s44, 160")
    def wloads(c):
        d = DAT + 32 * (c % 3)
        k(f"s_add_u32 s24, s52, {c * 64 * 3840}")
        for i in range(8):
            k(f"buffer_load_dwordx4 v[{d+4*i}:{d+4*i+3}], v{GO}, s[12:15], s24 offen")
            if i < 7: k("s_add_u32 s24, s24, 30720")
    for c in range(3): wloads(c)
    k("v_lshrrev_b32 v6, 2, v2"); k("v_lshl_add_u32 v6, v3, 2, v6")
    k(f"v_mul_u32_u24 v6, {RSW}, v6")
    k("v_and_b32 v7, 3, v2"); k("v_lshl_add_u32 v6, v7, 3, v6")
    k(f"v_add_u32 v6, {L_W}, v6")
    col = [[0, 64, 128, 224], [32, 96, 160, 256], [320, 384, 192, 288], [352, 416, 448, 288]]
    for s_ in range(4):
        lookup(k, 's24', 's3', col[s_]); k(f"v_add_u32 v{TA+s_}, s24, v6")
    H.k1_early(k)
    stamp(k, 1)
    for r in range(4): k(f"v_mov_b32 v{ONE+r}, 0x3f803f80")
    def cs_mfma(c):
        for jj in range(2):
            j = 2 * c + jj
            for s_ in range(4):
                cc = f"v[{CS+4*s_}:{CS+4*s_+3}]"
                k(f"v_mfma_f32_16x16x32_bf16 {cc}, {wreg(s_, j)}, v[{ONE}:{ONE+3}], {cc if j else 0}")
    for c in range(10):
        d = DAT + 32 * (c % 3)
        k(f"s_waitcnt vmcnt({16 if c < 8 else (8 if c == 8 else 0)})")
        for i in range(8): k(f"ds_write_b128 v{LO}, v[{d+4*i}:{d+4*i+3}] offset:{(c%2)*WBUF + i*8*RSW}")
        k("s_waitcnt lgkmcnt(0)")
        if c + 3 < 10: wloads(c + 3)
        if c > 0: cs_mfma(c - 1)
        k("s_barrier")
        if c == 0: H.k1_first_barrier(k)
        for s_ in range(4):
            for jj in range(2):
                for hf in range(2):
                    k(f"ds_read_b64_tr_b16 {wreg(s_, 2*c+jj, 2*hf, 2)}, v{TA+s_} offset:{(c%2)*WBUF + (32*jj + 16*hf)*RSW}")
    stamp(k, 2)
    H.ev(k, 12)
    H.k1_ready_issue(k)
    k("v_lshlrev_b32 v7, 4, v1")
    k("s_lshr_b32 s24, s3, 1"); k("s_mul_i32 s24, s24, 20"); k("s_and_b32 s25, s3, 1"); k("s_mul_i32 s25, s25, 10")
    k("s_add_u32 s24, s24, s25"); k("s_lshl_b32 s24, s24, 10")
    k("v_add_u32 v6, s24, v7")
    k("s_lshr_b32 s24, s3, 1"); k("s_lshl_b32 s24, s24, 8"); k("s_and_b32 s25, s3, 1"); k("s_lshl_b32 s25, s25, 3")
    k("s_add_u32 s24, s24, s25"); k(f"s_add_u32 s24, s24, {L_PS}")
    k("v_lshlrev_b32 v9, 4, v2")
    k("v_add_u32 v8, s24, v9")
    k(f"v_add_u32 v9, {L_PS}, v9")
    k(f"v_mul_u32_u24 v10, {RSK}, v2"); k("v_lshl_add_u32 v10, v3, 3, v10"); k(f"v_add_u32 v10, {L_KV}, v10")
    k("v_lshrrev_b32 v11, 2, v2"); k("v_lshl_add_u32 v11, v3, 3, v11"); k(f"v_mul_u32_u24 v11, {RSK}, v11")
    k("v_and_b32 v15, 3, v2"); k("v_lshl_add_u32 v11, v15, 3, v11")
    k("s_lshl_b32 s24, s3, 5"); k(f"s_add_u32 s24, s24, {L_KV}")
    k("v_add_u32 v11, s24, v11")
    k("s_lshl_b32 s24, s3, 10")
    k("v_add_u32 v12, s24, v7")
    k("v_lshlrev_b32 v15, 3, v1"); k("v_add_u32 v15, 2048, v15")
    k("s_cmp_eq_u32 s3, 2"); k("s_cselect_b64 vcc, -1, 0")
    k("v_cndmask_b32 v12, v12, v15, vcc")
    k("s_mul_i32 s24, s44, 2560"); k(f"s_add_u32 s24, s24, {WS_PQF}")
    k("v_add_u32 v12, s24, v12")
    k(f"s_mov_b32 s52, {hexf(LOG2E)}"); k("s_mov_b32 s53, s52")
    k(f"s_mov_b32 s54, {hexf(1e-6)}"); k("s_mov_b32 s55, s54")
    for r in range(24): k(f"v_mov_b32 v{KVA+r}, 0")
    k("s_waitcnt lgkmcnt(0)")
    cs_mfma(9)
    H.k1_ready_check(k)
    stamp(k, 3)
    k.lab('k1_seg')
    stamp(k, 7)
    l1 = k.new('k1')
    k("s_cmp_eq_u32 s51, 1"); k(f"s_cbranch_scc1 {k.ref(l1)}")
    H.k1_wait_x(k)
    k("s_mov_b32 s41, s43"); xloads()
    k.lab(l1)
    k("s_waitcnt vmcnt(0)")
    row_stats_partial(k, XPRE, 40, TMP, TMP + 1, ONE, TMP + 2)
    for i in range(10): k(f"ds_write_b128 v6, v[{XPRE+4*i}:{XPRE+4*i+3}] offset:{i*1024}")
    k(f"ds_write_b64 v8, v[{TMP}:{TMP+1}]")
    k("s_mov_b32 s51, 0")
    k("s_waitcnt lgkmcnt(0)")
    l2 = k.new('k1')
    k("s_cmp_eq_u32 s92, 0"); k(f"s_cbranch_scc0 {k.ref(l2)}")
    k("s_cmp_gt_u32 s40, 1"); k(f"s_cbranch_scc0 {k.ref(l2)}")
    k("s_add_u32 s41, s43, s42"); xloads(); k("s_mov_b32 s51, 1")
    k.lab(l2)
    k("s_barrier")
    stamp(k, 8)
    lg = LG(k)
    lg.issue('ps', f"ds_read_b128 v[{TMP}:{TMP+3}], v9")
    lg.issue('ps', f"ds_read_b128 v[{TMP+4}:{TMP+7}], v9 offset:256")
    def rd(j):
        for tt in range(2):
            r = RING + ((j % 4) * 2 + tt) * 4
            lg.issue(j, f"ds_read_b128 v[{r}:{r+3}], v7 offset:{tt*20480 + j*1024}")
    rd(0); rd(1); rd(2)
    lg.wait('ps')
    row_stats_final(k, TMP, ST)
    row_stats_final(k, TMP + 4, ST + 2)
    acc = lambda s_, tt: ACC + (s_ * 2 + tt) * 4
    for j in range(20):
        if j + 3 < 20: rd(j + 3)
        lg.wait(j)
        for tt in range(2):
            r = RING + ((j % 4) * 2 + tt) * 4
            for s_ in range(4):
                a = acc(s_, tt)
                k(f"v_mfma_f32_16x16x32_bf16 v[{a}:{a+3}], {wreg(s_, j)}, v[{r}:{r+3}], " + (f"v[{a}:{a+3}]" if j else "0"))
    stamp(k, 9)
    for s_ in range(4):
        for tt in range(2): ln_fold(k, acc(s_, tt), CS + 4 * s_, ST + 2 * tt, TMP)
    def phi(a):
        for h in (0, 2):
            t = TMP + h
            k(f"v_min_f32 v{t}, 0, v{a+h}"); k(f"v_min_f32 v{t+1}, 0, v{a+h+1}")
            k(f"v_pk_mul_f32 v[{t}:{t+1}], v[{t}:{t+1}], s[52:53]")
        for h in range(4): k(f"v_exp_f32 v{TMP+h}, v{TMP+h}")
        for h in range(4): k(f"v_max_f32 v{a+h}, 0, v{a+h}")
        for h in (0, 2): k(f"v_pk_add_f32 v[{a+h}:{a+h+1}], v[{a+h}:{a+h+1}], v[{TMP+h}:{TMP+h+1}]")
        for h in (0, 2): k(f"v_pk_add_f32 v[{a+h}:{a+h+1}], v[{a+h}:{a+h+1}], s[54:55]")
    O = RING
    def pack(a, o):
        k(f"v_cvt_pk_bf16_f32 v{o}, v{a}, v{a+1}"); k(f"v_cvt_pk_bf16_f32 v{o+1}, v{a+2}, v{a+3}")
    def to_lds(s_, off, addr, o):
        for tt in range(2):
            pack(acc(s_, tt), o + 2 * tt)
            k(f"ds_write_b64 v{addr}, v[{o+2*tt}:{o+2*tt+1}] offset:{tt*16*RSK + off}")
    k("s_add_u32 s25, s43, 20480")
    k("s_cmp_ge_u32 s3, 2"); k(f"s_cbranch_scc1 {k.ref('k1_e2')}")
    k("s_lshl_b32 s24, s3, 6"); k("v_add_u32 v15, s24, v10")
    to_lds(2, 160, 15, O + 8); to_lds(3, 192, 15, O + 12)
    for tt in range(2):
        phi(acc(0, tt)); phi(acc(1, tt))
        pack(acc(0, tt), O + 4 * tt); pack(acc(1, tt), O + 4 * tt + 2)
        k(f"buffer_store_dwordx4 v[{O+4*tt}:{O+4*tt+3}], v12, s[8:11], {'s25' if tt else 's43'} offen sc1")
    k(f"s_branch {k.ref('k1_ej')}")
    k.lab('k1_e2')
    k("s_cmp_eq_u32 s3, 3"); k(f"s_cbranch_scc1 {k.ref('k1_e3')}")
    to_lds(3, 160 + 128, 10, O + 12)
    for tt in range(2): phi(acc(1, tt)); phi(acc(2, tt))
    to_lds(1, 0, 10, O + 4); to_lds(2, 32, 10, O + 8)
    for tt in range(2):
        phi(acc(0, tt)); pack(acc(0, tt), O + 2 * tt)
        k(f"buffer_store_dwordx2 v[{O+2*tt}:{O+2*tt+1}], v12, s[8:11], {'s25' if tt else 's43'} offen sc1")
    k(f"s_branch {k.ref('k1_ej')}")
    k.lab('k1_e3')
    for s_ in range(3):
        for tt in range(2): phi(acc(s_, tt))
        to_lds(s_, 64 + 32 * s_, 10, O + 4 * s_)
    k.lab('k1_ej')
    stamp(k, 10)
    k("s_waitcnt lgkmcnt(0)")
    k("s_barrier")
    stamp(k, 4)
    KF = RING + 16
    for i, off in enumerate((0, 32, 160, 192)):
        k(f"ds_read_b64_tr_b16 v[{KF+4*i}:{KF+4*i+1}], v11 offset:{off}")
        k(f"ds_read_b64_tr_b16 v[{KF+4*i+2}:{KF+4*i+3}], v11 offset:{off + 4*RSK}")
    k("s_waitcnt lgkmcnt(0)")
    k0, k1, v0_, v1_ = KF, KF + 4, KF + 8, KF + 12
    for i, (a, b) in enumerate(((k0, v1_), (k1, v0_), (k1, v1_), (k1, ONE), (k0, v0_), (k0, ONE))):
        c = f"v[{KVA+4*i}:{KVA+4*i+3}]"
        k(f"v_mfma_f32_16x16x32_bf16 {c}, v[{a}:{a+3}], v[{b}:{b+3}], {c}")
    k("s_add_u32 s43, s43, s42"); k("s_add_u32 s48, s48, s49")
    H.ev(k, 13)
    k("s_sub_u32 s40, s40, 1"); k("s_cmp_gt_u32 s40, 0")
    k(f"s_cbranch_scc1 {k.ref('k1_seg')}")
    stamp(k, 5)
    k(f"s_mul_i32 s24, s45, {PART_REP}"); k(f"s_mul_i32 s25, s44, {PART_GRP}"); k("s_add_u32 s24, s24, s25"); k(f"s_add_u32 s24, s24, {WS_PART}")
    k("s_mul_i32 s25, s3, 3072"); k("s_add_u32 s25, s25, s24")
    k("s_lshl_b32 s26, s3, 10"); k("s_add_u32 s26, s26, s24"); k(f"s_add_u32 s26, s26, {13*1024}")
    k("s_cmp_eq_u32 s3, 0"); k(f"s_cselect_b32 s27, 0, {OOB}"); k("s_add_u32 s27, s27, s24"); k(f"s_add_u32 s28, s27, {17*1024}"); k(f"s_add_u32 s27, s27, {12*1024}")
    for i in range(3): k(f"buffer_store_dwordx4 v[{KVA+4*i}:{KVA+4*i+3}], v7, s[8:11], s25 offen offset:{i*1024} sc1")
    k(f"buffer_store_dwordx4 v[{KVA+12}:{KVA+15}], v7, s[8:11], s26 offen sc1")
    k(f"buffer_store_dwordx4 v[{KVA+16}:{KVA+19}], v7, s[8:11], s27 offen sc1")
    k(f"buffer_store_dwordx4 v[{KVA+20}:{KVA+23}], v7, s[8:11], s28 offen sc1")
    k("s_waitcnt vmcnt(0)")
    k("s_barrier")
    stamp(k, 6)
    stamp_out(k, 11)
    H.k1_publish(k)

K2_TILES = [[12, 1, 0, 2, 4, 3, 3], [5, 7, 6, 8, 10, 9, 11], [17, 13, 14, 15, 16, 16, 16]]
def _k2p(tlo, thi, alo, ahi, b0, b1, b2): return tlo | thi << 3 | alo << 6 | ahi << 9 | b0 << 12 | b1 << 19 | b2 << 24
N_ = 7
K2_PAR = [_k2p(0, 1, 0, 1, 0, 1, 4), _k2p(2, 3, 0, 1, 16, 1, 4), _k2p(4, 0, 2, N_, 16, 1, 4), _k2p(0, 5, N_, 1, 32, 1, 4),
          _k2p(0, 1, 2, 3, 32, 1, 4), _k2p(2, 3, 2, 3, 48, 1, 4), _k2p(4, 0, 4, N_, 48, 1, 4), _k2p(0, 5, N_, 3, 64, 1, 4), _k2p(6, 0, 4, N_, 64, 1, 4),
          _k2p(0, 1, 0, 1, 0, 16, 4), _k2p(2, 3, 2, 3, 0, 16, 4), _k2p(4, 0, 4, N_, 0, 16, 4), _k2p(0, 3, N_, 3, 60, 0, 0), _k2p(4, 0, 4, N_, 60, 0, 0)]
def role_K2(k, H, mid=None):
    ACC, LD, T = 16, 48, 160
    k("v_lshlrev_b32 v5, 4, v1")
    for i in range(7): lookup(k, f"s{64+i}", 's45', [K2_TILES[t][i] * 1024 for t in range(3)])
    for r in range(28): k(f"v_mov_b32 v{ACC+r}, 0")
    H.k2_wait(k)
    k("s_mov_b32 s40, s3")
    k.lab('k2_rd')
    for q in range(4):
        k(f"s_add_u32 s25, s40, {4*q}")
        k(f"s_mul_i32 s24, s25, {PART_REP}"); k(f"s_mul_i32 s26, s44, {PART_GRP}"); k("s_add_u32 s24, s24, s26"); k(f"s_add_u32 s24, s24, {WS_PART}")
        k("s_cmp_lt_u32 s25, s46"); k(f"s_cselect_b32 s24, s24, {OOB}")
        for i in range(7):
            k(f"s_add_u32 s26, s24, s{64+i}")
            k(f"buffer_load_dwordx4 v[{LD+(q*7+i)*4}:{LD+(q*7+i)*4+3}], v5, s[8:11], s26 offen sc1")
    k("s_add_u32 s40, s40, 16")
    lm = k.new('k2m')
    k("s_cmp_lt_u32 s40, s46"); k(f"s_cbranch_scc0 {k.ref(lm)}")
    for q in range(4):
        k(f"s_waitcnt vmcnt({(3-q)*7})")
        for r in range(0, 28, 2):
            k(f"v_pk_add_f32 v[{ACC+r}:{ACC+r+1}], v[{ACC+r}:{ACC+r+1}], v[{LD+q*28+r}:{LD+q*28+r+1}]")
    k(f"s_branch {k.ref('k2_rd')}")
    k.lab(lm)
    nmid = mid(k) if mid else 0
    for q in range(4):
        k(f"s_waitcnt vmcnt({(3-q)*7 + nmid})")
        for r in range(0, 28, 2):
            k(f"v_pk_add_f32 v[{ACC+r}:{ACC+r+1}], v[{ACC+r}:{ACC+r+1}], v[{LD+q*28+r}:{LD+q*28+r+1}]")
    k("s_mul_i32 s24, s3, 7168"); k("v_add_u32 v6, s24, v5")
    for i in range(7): k(f"ds_write_b128 v6, v[{ACC+4*i}:{ACC+4*i+3}] offset:{i*1024}")
    k("s_waitcnt lgkmcnt(0)")
    k("s_barrier")
    lookup(k, 's41', 's45', [0, 4, 9]); lookup(k, 's42', 's45', [4, 5, 5])
    k(f"s_mul_i32 s43, s92, {BDF_LAYER}"); k(f"s_mul_i32 s24, s44, {14*1024}"); k("s_add_u32 s43, s43, s24"); k(f"s_add_u32 s43, s43, {WS_BDF}")
    k("v_and_b32 v7, 3, v2"); k("v_lshrrev_b32 v8, 2, v2")
    for rnd in range(2):
        l = k.new('k2f')
        k(f"s_add_u32 s40, s3, {4*rnd}")
        k("s_cmp_lt_u32 s40, s42"); k(f"s_cbranch_scc0 {k.ref(l)}")
        k("s_add_u32 s40, s40, s41")
        lookup(k, 's47', 's40', K2_PAR)
        k("s_bfe_u32 s24, s47, 0x7000c"); k("s_bfe_u32 s25, s47, 0x50013"); k("s_bfe_u32 s26, s47, 0x30018")
        k("v_mul_u32_u24 v9, s25, v7"); k("v_mul_u32_u24 v10, s26, v8"); k("v_add3_u32 v9, v9, v10, s24")
        k("v_mul_u32_u24 v9, 205, v9"); k("v_lshrrev_b32 v9, 12, v9")
        for hf in range(2):
            k(f"s_bfe_u32 s24, s47, {0x30000 + 3*hf}")
            k("s_lshl_b32 s24, s24, 10")
            k("v_add_u32 v10, s24, v5")
            for w in range(4): k(f"ds_read_b128 v[{T+4*w}:{T+4*w+3}], v10 offset:{w*7168}")
            k(f"s_bfe_u32 s25, s47, {0x30006 + 3*hf}")
            k("s_lshl_b32 s25, s25, 4")
            k("v_lshl_add_u32 v11, v3, 2, s25")
            k("v_mul_u32_u24 v11, 205, v11"); k("v_lshrrev_b32 v11, 12, v11")
            k("v_cmp_eq_u32 vcc, v9, v11")
            k("s_waitcnt lgkmcnt(0)")
            for r in (0, 2):
                k(f"v_pk_add_f32 v[{T+r}:{T+r+1}], v[{T+r}:{T+r+1}], v[{T+4+r}:{T+4+r+1}]")
                k(f"v_pk_add_f32 v[{T+8+r}:{T+8+r+1}], v[{T+8+r}:{T+8+r+1}], v[{T+12+r}:{T+12+r+1}]")
            for r in (0, 2): k(f"v_pk_add_f32 v[{T+r}:{T+r+1}], v[{T+r}:{T+r+1}], v[{T+8+r}:{T+8+r+1}]")
            o = T + 16 + 2 * hf
            k(f"v_cvt_pk_bf16_f32 v{o}, v{T}, v{T+1}"); k(f"v_cvt_pk_bf16_f32 v{o+1}, v{T+2}, v{T+3}")
            k(f"v_cndmask_b32 v{o}, 0, v{o}, vcc"); k(f"v_cndmask_b32 v{o+1}, 0, v{o+1}, vcc")
        k("s_lshl_b32 s24, s40, 10"); k("s_add_u32 s24, s24, s43")
        k(f"buffer_store_dwordx4 v[{T+16}:{T+19}], v5, s[8:11], s24 offen sc1")
        k.lab(l)
    k("s_waitcnt vmcnt(0)")
    k("s_barrier")
    H.k2_publish(k)

BD_OFF = [0, 4, 8, 12, 16, 20, 24, 26, 30, 32, 36, 40, 42, 46]
BD_N = [4, 4, 4, 4, 4, 4, 2, 4, 2, 4, 4, 2, 4, 2]
RSO = 288
def k3_wo_loads(k):
    k.ptr(KA_WOA, 6)
    k("v_lshrrev_b32 v12, 4, v0"); k("v_mul_u32_u24 v12, 1280, v12")
    k("v_and_b32 v13, 15, v0"); k("v_lshl_add_u32 v12, v13, 4, v12")
    k("s_waitcnt lgkmcnt(0)")
    k.srd(12, 6, D * D * 2)
    k("s_lshl_b32 s52, s56, 8")
    for c in range(10):
        for i in range(4):
            k(f"s_add_u32 s24, s52, {(c*64 + i*16) * 1280}")
            k(f"buffer_load_dwordx4 a[{16*c+4*i}:{16*c+4*i+3}], v12, s[12:15], s24 offen")
    return 40

def k3_stage(k):
    L_W, WBUF = 81920, 64 * RSO
    k3_wo_loads(k)
    k("v_lshrrev_b32 v6, 4, v0"); k(f"v_mul_u32_u24 v6, {RSO}, v6")
    k("v_and_b32 v7, 15, v0"); k("v_lshl_add_u32 v6, v7, 4, v6"); k(f"v_add_u32 v6, {L_W}, v6")
    k("v_lshrrev_b32 v7, 2, v2"); k("v_lshl_add_u32 v7, v3, 2, v7"); k(f"v_mul_u32_u24 v7, {RSO}, v7")
    k("v_and_b32 v8, 3, v2"); k("v_lshl_add_u32 v7, v8, 3, v7")
    k("s_lshl_b32 s24, s3, 6"); k(f"s_add_u32 s24, s24, {L_W}")
    k("v_add_u32 v7, s24, v7")
    for c in range(10):
        k(f"s_waitcnt vmcnt({36 - 4*c})")
        for i in range(4): k(f"ds_write_b128 v6, a[{16*c+4*i}:{16*c+4*i+3}] offset:{(c%2)*WBUF + i*16*RSO}")
        k("s_waitcnt lgkmcnt(0)")
        k("s_barrier")
        for jj in range(2):
            for i in range(2):
                for hf in range(2):
                    r = 16 * c + (jj * 2 + i) * 4 + 2 * hf
                    k(f"ds_read_b64_tr_b16 a[{r}:{r+1}], v7 offset:{(c%2)*WBUF + (32*jj + 16*hf)*RSO + 32*i}")
    k("s_waitcnt lgkmcnt(0)")

def role_K3(k, H):
    L_O = 0
    PQ, RES, BA, OFR, RING, OA = 16, 96, 112, 168, 208, 240
    wo = lambda i, J: (lambda r: f"a[{r}:{r+3}]")(16 * (J // 2) + ((J % 2) * 2 + i) * 4)
    k("v_lshlrev_b32 v5, 4, v1")
    k("s_mul_i32 s24, s3, 5120"); k(f"s_add_u32 s24, s24, {WS_PQF}")
    k("v_add_u32 v8, s24, v5")
    k("v_lshlrev_b32 v9, 3, v1"); k("s_add_u32 s24, s24, 2048"); k("v_add_u32 v9, s24, v9")
    k("s_cmp_eq_u32 s50, 1"); k("s_cselect_b32 s25, 16, 1280"); k("s_cselect_b32 s26, 256, 8")
    k("v_mul_u32_u24 v10, s25, v2"); k("v_mul_u32_u24 v11, s26, v3")
    k("s_lshl_b32 s24, s56, 2"); k("s_add_u32 s24, s24, s3")
    k("s_mul_i32 s25, s24, s46")
    k("v_add3_u32 v10, v10, v11, s25")
    k("v_add_u32 v11, s47, v10")
    k("s_lshl_b32 s24, s24, 10"); k("s_add_u32 s24, s24, s58")
    k("v_add_u32 v12, s24, v5")
    k("s_mul_i32 s24, s3, 5120"); k(f"s_add_u32 s24, s24, {L_O}")
    k("v_add_u32 v13, s24, v5")
    k(f"s_mov_b32 s54, {hexf(1e-6)}")
    k("s_mul_i32 s43, s57, 40960")
    k("s_mov_b32 s40, 0")
    k("s_mov_b32 s42, 0")
    def pq_loads(buf):
        b = PQ + 40 * buf
        k("s_add_u32 s25, s41, 20480")
        for tt in range(2):
            so = 's25' if tt else 's41'
            for gp in range(2):
                r = b + (tt * 2 + gp) * 10
                k(f"buffer_load_dwordx4 v[{r}:{r+3}], v8, s[8:11], {so} offen offset:{gp*2560} sc1")
                k(f"buffer_load_dwordx4 v[{r+4}:{r+7}], v8, s[8:11], {so} offen offset:{gp*2560+1024} sc1")
                k(f"buffer_load_dwordx2 v[{r+8}:{r+9}], v9, s[8:11], {so} offen offset:{gp*2560} sc1")
        for tt in range(2):
            so = 's25' if tt else 's41'
            r = RES + 8 * buf + 4 * tt
            k(f"buffer_load_dwordx2 v[{r}:{r+1}], v10, s[16:19], {so} offen sc1")
            k(f"buffer_load_dwordx2 v[{r+2}:{r+3}], v11, s[16:19], {so} offen sc1")
    bd = lambda gp, f: (lambda r: f"a[{r}:{r+BD_N[f]-1}]")(160 + gp * 48 + BD_OFF[f])
    def bd_stage(buf):
        b = PQ + 40 * buf
        for tt in range(2):
            sets = []
            for gp in range(2):
                r = b + (tt * 2 + gp) * 10
                k0, k1, k2 = f"v[{r}:{r+3}]", f"v[{r+4}:{r+7}]", f"v[{r+8}:{r+9}]"
                A = BA + 28 * gp
                t = lambda i: f"v[{A+4*i}:{A+4*i+3}]"
                M32 = "v_mfma_f32_16x16x32_bf16"; M16 = "v_mfma_f32_16x16x16_bf16"
                k(f"{M32} {t(5)}, {bd(gp,9)}, {k0}, 0");  k(f"{M32} {t(6)}, {bd(gp,12)}, {k1}, 0")
                k(f"{M32} {t(0)}, {bd(gp,0)}, {k0}, 0");  k(f"{M32} {t(1)}, {bd(gp,1)}, {k0}, 0"); k(f"{M32} {t(2)}, {bd(gp,3)}, {k0}, 0")
                k(f"{M32} {t(3)}, {bd(gp,5)}, {k1}, 0");  k(f"{M32} {t(4)}, {bd(gp,7)}, {k1}, 0")
                k(f"{M32} {t(5)}, {bd(gp,10)}, {k1}, {t(5)}")
                k(f"{M32} {t(1)}, {bd(gp,2)}, {k1}, {t(1)}"); k(f"{M32} {t(2)}, {bd(gp,4)}, {k1}, {t(2)}")
                k(f"{M16} {t(6)}, {bd(gp,13)}, {k2}, {t(6)}")
                k(f"{M16} {t(3)}, {bd(gp,6)}, {k2}, {t(3)}"); k(f"{M16} {t(4)}, {bd(gp,8)}, {k2}, {t(4)}")
                k(f"{M16} {t(5)}, {bd(gp,11)}, {k2}, {t(5)}")
            for gp in range(2):
                A = BA + 28 * gp
                for i in range(5): k(f"v_add_f32 v{A+20+i}, s54, v{A+20+i}")
                for i in range(5): k(f"v_rcp_f32 v{A+20+i}, v{A+20+i}")
                for i in range(5):
                    for h in range(4): k(f"v_mul_f32 v{A+4*i+h}, v{A+4*i+h}, v{A+20+i}")
                    o = OFR + tt * 20 + (gp * 5 + i) * 2
                    k(f"v_cvt_pk_bf16_f32 v{o}, v{A+4*i}, v{A+4*i+1}"); k(f"v_cvt_pk_bf16_f32 v{o+1}, v{A+4*i+2}, v{A+4*i+3}")
        k("v_add_u32 v14, s42, v13")
        for tt in range(2):
            for p in range(5):
                o = OFR + tt * 20 + 4 * p
                k(f"ds_write_b128 v14, v[{o}:{o+3}] offset:{tt*20480 + p*1024}")
    H.k3_wait0(k)
    k("s_mov_b32 s41, s43"); pq_loads(0)
    k("s_add_u32 s41, s43, s77"); pq_loads(1)
    H.k3_wait(k)
    H.ev(k, 7)
    k(f"s_mul_i32 s24, s92, {BDF_LAYER}"); k(f"s_mul_i32 s25, s3, {2*14*1024}"); k("s_add_u32 s24, s24, s25"); k(f"s_add_u32 s24, s24, {WS_BDF}")
    for gp in range(2):
        for f in range(14):
            r = 160 + gp * 48 + BD_OFF[f]
            k(f"s_add_u32 s25, s24, {(gp*14+f)*1024}")
            if BD_N[f] == 4: k(f"buffer_load_dwordx4 a[{r}:{r+3}], v5, s[8:11], s25 offen sc1")
            else: k(f"buffer_load_dwordx2 a[{r}:{r+1}], v5, s[8:11], s25 offen sc1")
    k("s_waitcnt vmcnt(0)")
    stamp(k, 2)
    H.ev(k, 14)
    bd_stage(0)
    k("s_waitcnt lgkmcnt(0)"); k("s_barrier")
    stamp(k, 3)
    k.lab('k3_seg')
    for par in range(2):
        if par == 0: stamp(k, 4)
        k("v_add_u32 v15, s42, v5")
        lg = LG(k)
        def rd(J):
            for tt in range(2):
                r = RING + ((J % 4) * 2 + tt) * 4
                lg.issue(J, f"ds_read_b128 v[{r}:{r+3}], v15 offset:{tt*20480 + J*1024}")
        rd(0); rd(1); rd(2)
        for J in range(20):
            if J + 3 < 20: rd(J + 3)
            lg.wait(J)
            for tt in range(2):
                r = RING + ((J % 4) * 2 + tt) * 4
                for i in range(2):
                    a = OA + (tt * 2 + i) * 4
                    k(f"v_mfma_f32_16x16x32_bf16 v[{a}:{a+3}], {wo(i, J)}, v[{r}:{r+3}], " + (f"v[{a}:{a+3}]" if J else "0"))
        if par == 0: stamp(k, 5)
        T = RING
        for tt in range(2):
            for i in range(2):
                a = OA + (tt * 2 + i) * 4; rr = RES + 8 * par + 4 * tt + 2 * i; o = T + 8 + 4 * tt + 2 * i
                k(f"v_cvt_pk_bf16_f32 v{T}, v{a}, v{a+1}"); k(f"v_cvt_pk_bf16_f32 v{T+1}, v{a+2}, v{a+3}")
                for h in range(2):
                    k(f"v_lshlrev_b32 v{T+2}, 16, v{T+h}"); k(f"v_and_b32 v{T+3}, 0xffff0000, v{T+h}")
                    k(f"v_lshlrev_b32 v{T+4}, 16, v{rr+h}"); k(f"v_and_b32 v{T+5}, 0xffff0000, v{rr+h}")
                    k(f"v_pk_add_f32 v[{T+2}:{T+3}], v[{T+2}:{T+3}], v[{T+4}:{T+5}]")
                    k(f"v_cvt_pk_bf16_f32 v{o+h}, v{T+2}, v{T+3}")
        k("s_add_u32 s25, s43, 20480")
        k(f"buffer_store_dwordx4 v[{T+8}:{T+11}], v12, s[8:11], s43 offen sc1")
        k(f"buffer_store_dwordx4 v[{T+12}:{T+15}], v12, s[8:11], s25 offen sc1")
        k("s_add_u32 s40, s40, 1")
        k("s_add_u32 s43, s43, s77")
        k("s_cmp_ge_u32 s40, s76"); k(f"s_cbranch_scc1 {k.ref('k3_done')}")
        if par == 0:
            lq = k.new('k3q')
            k("s_cmp_eq_u32 s40, 1"); k(f"s_cbranch_scc0 {k.ref(lq)}")
            k("s_waitcnt vmcnt(0)"); k("s_barrier")
            H.k3_publish(k, False)
            H.ev(k, 15)
            k.lab(lq)
        k("s_xor_b32 s42, s42, 40960")
        if par == 0: stamp(k, 6)
        k("s_waitcnt vmcnt(2)")
        if par == 0: stamp(k, 7)
        bd_stage(1 - par)
        if par == 0: stamp(k, 8)
        k("s_add_u32 s41, s43, s77")
        k("s_add_u32 s24, s40, 1")
        k("s_cmp_lt_u32 s24, s76"); k(f"s_cselect_b32 s41, s41, {OOB}")
        k("s_waitcnt vmcnt(0)")
        pq_loads(par)
        k("s_waitcnt lgkmcnt(0)"); k("s_barrier")
        if par == 0: stamp(k, 9)
        H.k3_publish(k, False)
    k(f"s_branch {k.ref('k3_seg')}")
    k.lab('k3_done')
    k("s_waitcnt vmcnt(0)"); k("s_barrier")
    stamp(k, 10)
    stamp_out(k, 11, 0x20000)
    H.k3_publish(k, True)

def common_prologue(k, nwg):
    k(f"s_cmp_ge_u32 s2, {nwg}")
    k(f"s_cbranch_scc1 {k.ref('end')}")
    k.ptr(KA_WS, 4)
    k("v_and_b32 v1, 63, v0")
    k("v_lshrrev_b32 v4, 6, v0")
    k("v_and_b32 v2, 15, v1")
    k("v_lshrrev_b32 v3, 4, v1")
    k("v_readfirstlane_b32 s3, v4")
    k("s_waitcnt lgkmcnt(0)")
    k.srd(8, 4, WS_BYTES)

def src_setup(k, layer, sreg=16):
    if layer == 0:
        k.ptr(KA_AX, 6); k("s_waitcnt lgkmcnt(0)"); k.srd(sreg, 6, XF_BYTES)
        k("s_mov_b32 s46, 64"); k("s_mov_b32 s47, 32"); k("s_mov_b32 s50, 0")
    else:
        k.srd(sreg, 4, XF_BYTES, WS_XF2)
        k("s_mov_b32 s46, 1024"); k("s_mov_b32 s47, 8"); k("s_mov_b32 s50, 1")

def test_kernels(layer):
    H = NoHooks()
    k1 = K(f"k1_{layer}", vgpr=256, sgpr=100, agpr=256)
    common_prologue(k1, 256 if layer == 0 else 16)
    k1(f"s_mov_b32 s92, {layer}")
    src_setup(k1, layer)
    k1("s_and_b32 s44, s2, 7"); k1("s_lshr_b32 s45, s2, 3")
    if layer == 0: k1("s_lshl_b32 s48, s45, 1"); k1("s_mov_b32 s49, 1"); k1("s_mov_b32 s40, 2")
    else: k1("s_mov_b32 s48, s45"); k1("s_mov_b32 s49, 2"); k1("s_mov_b32 s40, 32")
    role_K1(k1, H); k1.lab('end')
    k2 = K(f"k2_{layer}", vgpr=256, sgpr=100, agpr=256)
    common_prologue(k2, 24)
    k2(f"s_mov_b32 s92, {layer}")
    k2("s_and_b32 s44, s2, 7"); k2("s_lshr_b32 s45, s2, 3"); k2(f"s_mov_b32 s46, {32 if layer == 0 else 2}")
    role_K2(k2, H); k2.lab('end')
    k3 = K(f"k3_{layer}", vgpr=256, sgpr=100, agpr=256)
    common_prologue(k3, 20)
    k3(f"s_mov_b32 s92, {layer}")
    src_setup(k3, layer)
    k3("s_mul_i32 s57, s2, 52"); k3("s_lshr_b32 s57, s57, 8"); k3("s_mul_i32 s56, s57, 5"); k3("s_sub_u32 s56, s2, s56")
    k3(f"s_mov_b32 s58, {WS_XF1 if layer == 0 else WS_XF3}")
    k3("s_mov_b32 s76, 16"); k3("s_mov_b32 s77, 163840")
    k3_stage(k3); role_K3(k3, H); k3.lab('end')
    return [(k1, 256 if layer == 0 else 16, 135168), (k2, 24, 135168), (k3, 20, 135168)]

if __name__ == "__main__":
    out = "za.s"
    for a in sys.argv[1:]:
        if a == "stamp": STAMP = True
        elif a.endswith(".s"): out = a
    ks = test_kernels(0)
    head = ["; layer A test list"]
    for kk, n, lds in ks: head.append(f"; @launch kernel={kk.name} grid=({n},1,1) block=(256,1,1) lds={lds}")
    head.append('.amdgcn_target "amdgcn-amd-amdhsa--gfx950"')
    open(out, "w").write("\n".join(head) + "\n" + "\n".join(kk.text() for kk, _, _ in ks) + "\n")
    print("written", out)
```

```python
import sys
from asmlib import K, magic
import genA as A
from genA import hexf, LOG2E, LG, lookup, row_stats_partial, row_stats_final, ln_fold

NAME = A.NAME
S, D, H, DH, HD, NSEG = 2048, 640, 32, 192, 6144, 64
KA_AX, KA_WQKV, KA_WOA, KA_BX, KA_MEM0, KA_WQ, KA_WK, KA_WV, KA_WO, KA_SEG, KA_OUT, KA_DBG, KA_WS = range(13)
WS_BYTES = 268435456

WS_FLG   = 0x01600000
FLG_BYTES = 0x10000
F_Q   = 0x0000
F_LAYER = 0x4000
F_K1  = 0x8000
F_K2  = 0x8800
F_K3  = 0x9000
F_X   = 0x9800
F_C   = 0xA000
WS_TRACE = 0x01800000
WS_VF    = 0x02000000
WS_QF    = 0x04000000
WS_KF    = 0x05800000
QF_SEG   = 32 * 12288
WS_SYNC  = 0x07000000
SYNC_STEP = 0x70000
O_VOM, O_PX, O_PB, O_MB, O_HR, O_HS = 0, 327680, 409600, 430080, 440320, 448512
SYNC_LAYER = 64 * SYNC_STEP
WS_VOX   = 0x0B000000
VOX_SEG  = 40 * 32 * 1024
assert WS_SYNC + 128 * SYNC_STEP <= WS_VOX and WS_VOX + 64 * VOX_SEG <= WS_BYTES
SCALE_B = DH ** -0.5
SPIN_MAX = 1 << 17
OOB = 0x7ff00000
RH_M, RH_P = 16, 8

CFG = dict(stamp=False, dly_vox=20, pd_m=3, pd_p=2, pdep=4, pgain=0, dly_m=5, dly_v=20, dly_p=0, sl_m=1, sl_p=1, sl_x=2, sl_x0=8,
           hs_pos=22, hr_pos=1, clr_sleep=0)


def poll(k, name, loads, regs, tmp, sleep, first_delay=0, depth=1):
    if first_delay:
        k(f"s_sleep {first_delay}")
    k("s_mov_b32 s61, 0")
    for d in range(depth - 1):
        for l in loads: k(l)
        if sleep: k(f"s_sleep {sleep}")
    k.lab(name)
    for l in loads: k(l)
    k(f"s_waitcnt vmcnt({(depth - 1) * len(loads)})")
    rs = list(regs)
    k(f"v_max3_u32 v{tmp}, v{rs[0]}, v{rs[1]}, v{rs[2]}")
    rs = rs[3:]
    while len(rs) >= 2:
        k(f"v_max3_u32 v{tmp}, v{tmp}, v{rs[0]}, v{rs[1]}"); rs = rs[2:]
    if rs: k(f"v_max_u32 v{tmp}, v{tmp}, v{rs[0]}")
    k(f"v_cmp_eq_u32 vcc, -1, v{tmp}")
    k("s_add_u32 s61, s61, 1")
    k(f"s_cbranch_vccz {k.ref(name + '_out')}")
    k("s_cmp_ge_u32 s61, s60")
    k(f"s_cbranch_scc1 {k.ref(name + '_to')}")
    if sleep: k(f"s_sleep {sleep}")
    k(f"s_branch {k.ref(name)}")
    k.lab(name + '_to')
    k("s_mov_b32 s60, 1")
    k.lab(name + '_out')

def check_regs(k, rs, tmp):
    rs = list(rs)
    k(f"v_max3_u32 v{tmp}, v{rs[0]}, v{rs[1]}, v{rs[2]}")
    rs = rs[3:]
    while len(rs) >= 2:
        k(f"v_max3_u32 v{tmp}, v{tmp}, v{rs[0]}, v{rs[1]}"); rs = rs[2:]
    if rs: k(f"v_max_u32 v{tmp}, v{tmp}, v{rs[0]}")
    k(f"v_cmp_eq_u32 vcc, -1, v{tmp}")


def aprobe(k, name, areg, sbase, target, ring, delta, depth, dly):
    ring = ring[:depth]
    if dly: k(f"s_sleep {dly}")
    k("s_mov_b64 exec, 1")
    k("s_mov_b32 s61, 0")
    def issue(i):
        k(f"v_mov_b32 v{ring[i]}, 0")
        k(f"buffer_atomic_add v{ring[i]}, v{areg}, s[8:11], {sbase} offen sc0")
    for d in range(depth - 1):
        issue(d + 1)
        if delta: k(f"s_sleep {delta}")
    k.lab(name)
    for i in range(depth):
        issue(i)
        k(f"s_waitcnt vmcnt({depth - 1})")
        k(f"v_cmp_le_i32 vcc, {target}, v{ring[(i + 1) % depth]}")
        k("s_add_u32 s61, s61, 1")
        k(f"s_cbranch_vccnz {k.ref(name + '_out')}")
        if delta: k(f"s_sleep {delta}")
    k("s_cmp_ge_u32 s61, s60")
    k(f"s_cbranch_scc0 {k.ref(name)}")
    k("s_mov_b32 s60, 1")
    k.lab(name + '_out')
    k("s_mov_b64 exec, -1")
    if CFG['stamp']: k("s_mov_b32 s56, s61")

def ahint(k, areg, one, sbase):
    k(f"buffer_atomic_add v{one}, v{areg}, s[8:11], {sbase} offen")

def ahint_addr(k, dst, t, w_sreg, nrep, only_wave0):
    k(f"s_mul_i32 s24, {w_sreg}, {nrep}")
    k(f"v_add_u32 v{dst}, s24, v1")
    k(f"v_lshlrev_b32 v{dst}, 7, v{dst}")
    k(f"v_mov_b32 v{t}, {OOB}")
    k(f"v_cmp_le_u32 vcc, {nrep}, v1")
    k(f"v_cndmask_b32 v{dst}, v{dst}, v{t}, vcc")
    if only_wave0:
        k("s_cmp_eq_u32 s3, 0"); k(f"s_cselect_b32 s24, 0, {OOB}")
        k(f"v_or_b32 v{dst}, s24, v{dst}")

def aprobe_addr(k, dst, wg_sreg, nrep):
    k(f"s_and_b32 s24, {wg_sreg}, {nrep - 1}")
    k(f"s_mul_i32 s25, s3, {nrep}")
    k("s_add_u32 s24, s24, s25"); k("s_lshl_b32 s24, s24, 7")
    k(f"v_mov_b32 v{dst}, s24")


def shot_check(k, name, loads, regs, tmp, nyoung, sleep):
    k(f"s_waitcnt vmcnt({nyoung})")
    check_regs(k, regs, tmp)
    if CFG['stamp']: k("s_mov_b32 s57, 0")
    k(f"s_cbranch_vccz {k.ref(name + '_out')}")
    k("s_mov_b32 s61, 0")
    k.lab(name)
    for l in loads: k(l)
    k("s_waitcnt vmcnt(0)")
    check_regs(k, regs, tmp)
    k("s_add_u32 s61, s61, 1")
    if CFG['stamp']: k("s_mov_b32 s57, s61")
    k(f"s_cbranch_vccz {k.ref(name + '_out')}")
    k("s_cmp_ge_u32 s61, s60")
    k(f"s_cbranch_scc1 {k.ref(name + '_to')}")
    if sleep: k(f"s_sleep {sleep}")
    k(f"s_branch {k.ref(name)}")
    k.lab(name + '_to')
    k("s_mov_b32 s60, 1")
    k.lab(name + '_out')


def divmod_const(k, q, r, x, d, maxn, stmp):
    m, sh = magic(d, maxn)
    k(f"s_mov_b32 s{stmp}, {m}")
    k(f"v_mul_lo_u32 v{q}, v{x}, s{stmp}")
    k(f"v_lshrrev_b32 v{q}, {sh}, v{q}")
    k(f"v_mul_u32_u24 v{r}, {d}, v{q}")
    k(f"v_sub_u32 v{r}, v{x}, v{r}")

def stage_offsets(k, n, cpr, gstride, RS, lbase, go, lo, t0):
    for i in range(n):
        k(f"v_add_u32 v{t0}, {256*i}, v0")
        divmod_const(k, t0 + 1, t0 + 2, t0, cpr, 256 * n, 24)
        k(f"s_mov_b32 s24, {gstride}")
        k(f"v_mul_lo_u32 v{go+i}, v{t0+1}, s24")
        k(f"v_lshl_add_u32 v{go+i}, v{t0+2}, 4, v{go+i}")
        k(f"v_mul_u32_u24 v{lo+i}, {RS}, v{t0+1}")
        k(f"v_lshl_add_u32 v{lo+i}, v{t0+2}, 4, v{lo+i}")
        k(f"v_add_u32 v{lo+i}, {lbase}, v{lo+i}")

def tr_base(k, dst, RS, lbase, t0):
    k(f"v_lshrrev_b32 v{t0}, 1, v3")
    k(f"v_lshlrev_b32 v{t0}, 4, v{t0}")
    k(f"v_and_b32 v{t0+1}, 1, v3")
    k(f"v_lshl_add_u32 v{t0}, v{t0+1}, 2, v{t0}")
    k(f"v_lshrrev_b32 v{t0+1}, 2, v2")
    k(f"v_and_b32 v{t0+2}, 1, v{t0+1}")
    k(f"v_add_u32 v{t0}, v{t0}, v{t0+2}")
    k(f"v_lshrrev_b32 v{t0+1}, 1, v{t0+1}")
    k(f"v_lshl_add_u32 v{t0}, v{t0+1}, 3, v{t0}")
    k(f"v_mul_u32_u24 v{dst}, {RS}, v{t0}")
    k(f"v_and_b32 v{t0+1}, 3, v2")
    k(f"v_lshl_add_u32 v{dst}, v{t0+1}, 3, v{dst}")
    k(f"v_add_u32 v{dst}, {lbase}, v{dst}")

def softmax8(k, P0, T0, T1, masks=None):
    if masks:
        k(f"v_mov_b32 v{T1}, 0xff800000")
        for j in range(8): k(f"v_cndmask_b32 v{P0+j}, v{T1}, v{P0+j}, s[{masks+2*j}:{masks+2*j+1}]")
    k(f"v_max3_f32 v{T0}, v{P0}, v{P0+1}, v{P0+2}")
    k(f"v_max3_f32 v{T0}, v{T0}, v{P0+3}, v{P0+4}")
    k(f"v_max3_f32 v{T0}, v{T0}, v{P0+5}, v{P0+6}")
    k(f"v_max_f32 v{T0}, v{T0}, v{P0+7}")
    k(f"v_mov_b32 v{T1}, 0xff800000")
    k(f"v_cndmask_b32 v{T0}, v{T1}, v{T0}, s[50:51]")
    for dpp in ("quad_perm:[1,0,3,2]", "quad_perm:[2,3,0,1]", "row_half_mirror"):
        k(f"v_max_f32 v{T0}, v{T0}, v{T0} {dpp} row_mask:0xf bank_mask:0xf")
    k(f"s_mov_b32 s24, {hexf(SCALE_B * LOG2E)}")
    k(f"v_mul_f32 v{T0}, s24, v{T0}")
    for r in range(8): k(f"v_fma_f32 v{P0+r}, v{P0+r}, s24, -v{T0}")
    for r in range(8): k(f"v_exp_f32 v{P0+r}, v{P0+r}")
    k(f"v_add_f32 v{T0}, v{P0}, v{P0+1}")
    k(f"v_add_f32 v{T1}, v{P0+2}, v{P0+3}")
    k(f"v_add_f32 v{T0}, v{T0}, v{P0+4}")
    k(f"v_add_f32 v{T1}, v{T1}, v{P0+5}")
    k(f"v_add_f32 v{T0}, v{T0}, v{P0+6}")
    k(f"v_add_f32 v{T1}, v{T1}, v{P0+7}")
    k(f"v_add_f32 v{T0}, v{T0}, v{T1}")
    k(f"v_cndmask_b32 v{T0}, 0, v{T0}, s[50:51]")
    for dpp in ("quad_perm:[1,0,3,2]", "quad_perm:[2,3,0,1]", "row_half_mirror"):
        k(f"v_add_f32 v{T0}, v{T0}, v{T0} {dpp} row_mask:0xf bank_mask:0xf")
    k(f"v_rcp_f32 v{T0}, v{T0}")
    for r in range(8): k(f"v_mul_f32 v{P0+r}, v{P0+r}, v{T0}")
    for q in range(4): k(f"v_cvt_pk_bf16_f32 v{P0+8+q}, v{P0+2*q}, v{P0+2*q+1}")
    for q in range(4): k(f"v_min_u32 v{P0+8+q}, -2, v{P0+8+q}")

def sum4x8(k, P0, addr, stride):
    for w in range(4):
        k(f"ds_read_b128 v[{P0+8*w}:{P0+8*w+3}], v{addr} offset:{w*stride}")
        k(f"ds_read_b128 v[{P0+8*w+4}:{P0+8*w+7}], v{addr} offset:{w*stride+16}")
    k("s_waitcnt lgkmcnt(4)")
    for r in range(0, 8, 2): k(f"v_pk_add_f32 v[{P0+r}:{P0+r+1}], v[{P0+r}:{P0+r+1}], v[{P0+8+r}:{P0+8+r+1}]")
    k("s_waitcnt lgkmcnt(0)")
    for r in range(0, 8, 2): k(f"v_pk_add_f32 v[{P0+16+r}:{P0+16+r+1}], v[{P0+16+r}:{P0+16+r+1}], v[{P0+24+r}:{P0+24+r+1}]")
    for r in range(0, 8, 2): k(f"v_pk_add_f32 v[{P0+r}:{P0+r+1}], v[{P0+r}:{P0+r+1}], v[{P0+16+r}:{P0+16+r+1}]")


def tr_frag(k, reg, kind, addr, RS, off):
    for q, ro in enumerate((0, 2, 32, 34)):
        k(f"ds_read_b64_tr_b16 {kind}[{reg+2*q}:{reg+2*q+1}], v{addr} offset:{off + ro*RS}")

def m0_image(k, srd, t0):
    for p in range(3):
        k(f"s_lshl_b32 s24, s3, 6"); k(f"s_add_u32 s24, s24, {256*p}")
        k(f"v_add_u32 v{t0}, s24, v1")
        k(f"v_and_b32 v{t0+1}, 7, v{t0}")
        k(f"v_mul_u32_u24 v{t0+1}, 1280, v{t0+1}")
        k(f"v_lshrrev_b32 v{t0+2}, 3, v{t0}")
        k(f"v_lshl_add_u32 v{t0+1}, v{t0+2}, 4, v{t0+1}")
        k(f"v_cmp_gt_u32 vcc, 640, v{t0}")
        k(f"v_mov_b32 v{t0+3}, {OOB}")
        k(f"v_cndmask_b32 v{t0+1}, v{t0+3}, v{t0+1}, vcc")
        k(f"buffer_load_dwordx4 v[{t0+4}:{t0+7}], v{t0+1}, s[{srd}:{srd+3}], 0 offen")
        k(f"v_lshlrev_b32 v{t0}, 4, v{t0}")
        k("s_waitcnt vmcnt(0)")
        k(f"s_and_saveexec_b64 s[30:31], vcc")
        k(f"ds_write_b128 v{t0}, v[{t0+4}:{t0+7}]")
        k("s_mov_b64 exec, s[30:31]")

def stamp(k, i):
    if CFG['stamp']: k(f"s_memrealtime s[{80+2*i}:{81+2*i}]")

def stamp_out(k, nst, t):
    if not CFG['stamp']: return
    k("s_lshl_b32 s34, s2, 2"); k("s_add_u32 s34, s34, s3"); k("s_lshl_b32 s34, s34, 7")
    k("s_lshl_b32 s35, s92, 6"); k("s_add_u32 s34, s34, s35")
    k("s_add_u32 s34, s34, s40"); k("s_lshl_b32 s34, s34, 5"); k(f"s_add_u32 s34, s34, {WS_TRACE}")
    k(f"v_mov_b32 v{t}, {OOB}")
    k("v_cmp_eq_u32 vcc, 0, v1")
    k(f"v_cndmask_b32 v{t}, v{t}, 0, vcc")
    for i in range(nst):
        k(f"v_mov_b32 v{t+1}, s{80+2*i}")
        k(f"buffer_store_dword v{t+1}, v{t}, s[8:11], s34 offen offset:{i*4}")
    for i, sreg in ((6, 's57'), (7, 's56')):
        k(f"v_mov_b32 v{t+1}, {sreg}")
        k(f"buffer_store_dword v{t+1}, v{t}, s[8:11], s34 offen offset:{i*4}")

WS_EVT = 0x01C00000
def event(k, idx, t=14):
    if not CFG['stamp']: return
    k("s_memrealtime s[96:97]")
    k("s_lshl_b32 s34, s2, 7"); k("s_lshl_b32 s35, s92, 6"); k("s_add_u32 s34, s34, s35"); k(f"s_add_u32 s34, s34, {WS_EVT + 4*idx}")
    k("s_cmp_eq_u32 s3, 0"); k(f"s_cselect_b32 s34, s34, {OOB}")
    k(f"v_mov_b32 v{t}, {OOB}")
    k("v_cmp_eq_u32 vcc, 0, v1")
    k(f"v_cndmask_b32 v{t}, v{t}, 0, vcc")
    k("s_waitcnt lgkmcnt(0)")
    k(f"v_mov_b32 v{t+1}, s96")
    k(f"buffer_store_dword v{t+1}, v{t}, s[8:11], s34 offen")

def ensure(k, name, nfl, addr, tmp, need='s63', known='s62', sleep=2):
    k(f"s_cmp_ge_i32 {known}, {need}")
    k(f"s_cbranch_scc1 {k.ref(name + '_ok')}")
    if callable(addr):
        addr(k, tmp + 1); addr = tmp + 1
    k("s_mov_b32 s61, 0")
    k.lab(name)
    k(f"buffer_load_dword v{tmp}, v{addr}, s[8:11], 0 offen sc1")
    k("s_waitcnt vmcnt(0)")
    k(f"v_readlane_b32 {known}, v{tmp}, 0")
    for i in range(1, nfl):
        k(f"v_readlane_b32 s24, v{tmp}, {i}")
        k(f"s_min_i32 {known}, {known}, s24")
    k(f"s_cmp_ge_i32 {known}, {need}")
    k(f"s_cbranch_scc1 {k.ref(name + '_ok')}")
    k("s_add_u32 s61, s61, 1")
    k("s_cmp_ge_u32 s61, s60")
    k(f"s_cbranch_scc1 {k.ref(name + '_to')}")
    k(f"s_sleep {sleep}")
    k(f"s_branch {k.ref(name)}")
    k.lab(name + '_to')
    k("s_mov_b32 s60, 1")
    k.lab(name + '_ok')

def clr_addr(k, dst):
    k("s_and_b32 s24, s2, 7"); k("s_lshl_b32 s24, s24, 7"); k(f"s_add_u32 s24, s24, {WS_FLG + F_C}")
    k(f"v_and_b32 v{dst}, 3, v1"); k(f"v_lshl_add_u32 v{dst}, v{dst}, 2, s24")

def ensure_clear(k, name, tmp, blk):
    k("s_lshl_b32 s95, s92, 6"); k(f"s_add_u32 s95, s95, {blk}"); k("s_add_u32 s95, s95, 1")
    ensure(k, name, 3, clr_addr, tmp, need='s95', known='s59')

def wait_all(k, name, n, t, need, sleep=2):
    k("s_mov_b32 s61, 0")
    k.lab(name)
    k(f"buffer_load_dword v{t}, v{t+1}, s[8:11], 0 offen sc1")
    k("s_waitcnt vmcnt(0)")
    k(f"v_cmp_le_i32 vcc, {need}, v{t}")
    mask = ((1 << n) - 1) if isinstance(n, int) else n
    if isinstance(n, int): k(f"s_mov_b32 s25, {hex(mask & 0xffffffff)}"); mask = 's25'
    k(f"s_and_b32 s24, vcc_lo, {mask}")
    k(f"s_cmp_eq_u32 s24, {mask}")
    k(f"s_cbranch_scc1 {k.ref(name + '_ok')}")
    k("s_add_u32 s61, s61, 1")
    k("s_cmp_ge_u32 s61, s60")
    k(f"s_cbranch_scc1 {k.ref(name + '_to')}")
    k(f"s_sleep {sleep}")
    k(f"s_branch {k.ref(name)}")
    k.lab(name + '_to')
    k("s_mov_b32 s60, 1")
    k.lab(name + '_ok')

def pub_dword(k, saddr, val, t, copies=1):
    l = k.new('pb')
    k("s_cmp_eq_u32 s3, 0")
    k(f"s_cbranch_scc0 {k.ref(l)}")
    k(f"v_lshlrev_b32 v{t}, 7, v1"); k(f"v_add_u32 v{t}, {saddr}, v{t}")
    k(f"v_mov_b32 v{t+1}, {OOB}"); k(f"v_cmp_le_u32 vcc, {copies}, v1"); k(f"v_cndmask_b32 v{t}, v{t}, v{t+1}, vcc")
    k(f"v_mov_b32 v{t+1}, {val}")
    k(f"buffer_store_dword v{t+1}, v{t}, s[8:11], 0 offen sc1")
    k.lab(l)

def next_layer(k, again):
    k("s_cmp_eq_u32 s92, 0")
    k(f"s_cbranch_scc0 {k.ref('end')}")
    k("s_mov_b32 s92, 1")
    k(f"s_branch {k.ref(again)}")

def layer_bases(k):
    k(f"s_mul_i32 s93, s92, {SYNC_LAYER}"); k(f"s_add_u32 s93, s93, {WS_SYNC}")
    k(f"s_mul_i32 s94, s92, {F_LAYER}"); k(f"s_add_u32 s94, s94, {WS_FLG + F_Q}")


def role_S(k):
    L_M, L_X, L_SP, L_DUM, L_W5, L_ST = 0, 10240, 16384, 22528, 24576, 106496
    RS = 400
    ACC, AF, WS5 = 24, 48, 68
    KX = 240
    QX = 80
    T0, T1 = 92, 93
    def wreg(t, c):
        if t < 3: return 'a', t * 80 + c * 8
        return 'v', 96 + (t - 3) * 80 + c * 8
    k("s_mov_b32 s44, s2")
    k.ptr(KA_WQ, 6); k.ptr(KA_WK, 24); k.ptr(KA_MEM0, 26)
    k("s_waitcnt lgkmcnt(0)")
    k.srd(12, 6, D * HD * 2); k.srd(16, 24, D * HD * 2); k.srd(20, 26, 8 * 640 * 2)
    GO, LO, DAT = 4, 10, 24
    stage_offsets(k, 6, 24, HD * 2, RS, L_ST, GO, LO, 16)
    tr_base(k, 16, RS, L_ST, 17)
    k("s_mul_i32 s24, s3, 96")
    k("v_add_u32 v16, s24, v16")
    k("v_lshlrev_b32 v17, 4, v1")
    k(f"s_mul_i32 s24, s3, 20480"); k(f"s_add_u32 s24, s24, {L_W5}")
    k("v_add_u32 v17, s24, v17")
    k(f"s_mul_i32 s45, s44, 384")
    blocks = [(c, m) for c in range(10) for m in range(2)]
    def loads(bi):
        c, m = blocks[bi]
        d = DAT + 24 * (bi % 3)
        k(f"s_add_u32 s46, s45, {c * 64 * HD * 2}")
        for i in range(6):
            k(f"buffer_load_dwordx4 v[{d+4*i}:{d+4*i+3}], v{GO+i}, s[{12+4*m}:{15+4*m}], s46 offen")
    loads(0); loads(1)
    for bi, (c, m) in enumerate(blocks):
        d = DAT + 24 * (bi % 3)
        k(f"s_waitcnt vmcnt({6 if bi + 1 < len(blocks) else 0})")
        for i in range(6): k(f"ds_write_b128 v{LO+i}, v[{d+4*i}:{d+4*i+3}]")
        if bi + 2 < len(blocks): loads(bi + 2)
        k("s_waitcnt lgkmcnt(0)")
        k("s_barrier")
        for t in range(3):
            tt = 3 * m + t
            if tt < 5:
                kind, r = wreg(tt, c)
                tr_frag(k, r, kind, 16, RS, 32 * t)
        if m == 1:
            tr_frag(k, d, 'v', 16, RS, 64)
            k("s_waitcnt lgkmcnt(0)")
            k(f"ds_write_b128 v17, v[{d}:{d+3}] offset:{c*2048}")
            k(f"ds_write_b128 v17, v[{d+4}:{d+7}] offset:{c*2048+1024}")
        k("s_waitcnt lgkmcnt(0)")
        k("s_barrier")
    A_, B_, C_, D_ = 30, 31, 32, 33
    k("v_mov_b32 v6, v17")
    k(f"v_mov_b32 v{A_}, 0xeeee"); k("v_mov_b32 v4, 0x4444")
    k("v_cmp_gt_u32 vcc, 8, v2")
    k(f"v_cndmask_b32 v4, v{A_}, v4, vcc")
    k("v_lshlrev_b32 v5, 4, v1")
    k("s_lshl_b32 s24, s3, 10")
    k("v_add_u32 v7, s24, v5")
    k("s_lshl_b32 s24, s3, 9"); k("s_add_u32 s24, s24, 8192")
    k("v_lshlrev_b32 v8, 3, v1")
    k("v_add_u32 v8, s24, v8")
    k(f"s_mul_i32 s24, s3, 1536"); k(f"s_add_u32 s24, s24, {L_X}")
    k("v_lshlrev_b32 v9, 5, v2")
    k("v_lshl_add_u32 v9, v3, 3, v9")
    k("v_add_u32 v9, s24, v9")
    k(f"v_lshrrev_b32 v{A_}, 2, v2"); k(f"v_and_b32 v{B_}, 3, v2")
    k(f"v_lshl_add_u32 v11, v3, 2, v{A_}")
    k("v_lshlrev_b32 v11, 5, v11")
    k(f"v_lshl_add_u32 v11, v{B_}, 3, v11")
    k("v_add_u32 v11, s24, v11")
    k(f"v_add_u32 v{D_}, {L_DUM}, v5")
    k(f"s_mul_i32 s24, s3, 1408"); k(f"s_add_u32 s24, s24, {L_SP}")
    k(f"v_mul_u32_u24 v{A_}, 176, v2")
    k(f"v_add_u32 v{A_}, s24, v{A_}")
    k(f"v_lshl_add_u32 v12, v3, 5, v{A_}")
    k("v_cmp_gt_u32 vcc, 8, v2")
    k(f"v_cndmask_b32 v12, v{D_}, v12, vcc")
    k(f"v_lshl_add_u32 v13, v3, 4, v{A_}")
    k("v_add_u32 v13, 96, v13")
    k("v_cmp_le_u32 s[24:25], 2, v3")
    k("s_and_b64 vcc, vcc, s[24:25]")
    k(f"v_cndmask_b32 v13, v{D_}, v13, vcc")
    k(f"s_mul_i32 s24, s3, 5632"); k(f"s_add_u32 s24, s24, {L_ST}")
    k(f"v_mul_u32_u24 v{A_}, 176, v2")
    k(f"v_add_u32 v{A_}, s24, v{A_}")
    k(f"v_lshl_add_u32 v16, v3, 5, v{A_}")
    k(f"v_lshl_add_u32 v17, v3, 4, v{A_}")
    k("v_add_u32 v17, 96, v17")
    k("v_add_u32 v18, 2816, v17")
    k("v_cmp_le_u32 vcc, 2, v3")
    k(f"v_cndmask_b32 v17, v{D_}, v17, vcc")
    k(f"v_cndmask_b32 v18, v{D_}, v18, vcc")
    k(f"v_lshrrev_b32 v{A_}, 3, v1")
    k(f"v_and_b32 v{B_}, 7, v1")
    k(f"v_min_u32 v{C_}, 4, v{B_}")
    k(f"v_mul_u32_u24 v14, 176, v{A_}")
    k(f"v_lshl_add_u32 v14, v{C_}, 5, v14")
    k("s_mul_i32 s24, s3, 1408"); k(f"s_add_u32 s24, s24, {L_ST}")
    k("v_add_u32 v21, s24, v14")
    k(f"v_add_u32 v14, {L_SP}, v14")
    k(f"v_cmp_gt_u32 s[50:51], 5, v{B_}")
    k("s_lshl_b32 s24, s3, 3")
    k(f"v_add_u32 v{C_}, s24, v{A_}")
    k(f"v_lshlrev_b32 v{D_}, 2, v{B_}")
    k(f"v_sub_u32 v{C_}, v{C_}, v{D_}")
    k(f"v_mov_b32 v{D_}, 100")
    k(f"v_cmp_gt_u32 vcc, 4, v{B_}")
    k(f"v_cndmask_b32 v{C_}, v{D_}, v{C_}, vcc")
    for j in range(8):
        cj = j if j < 4 else j + 12
        k(f"v_cmp_le_i32 s[{64+2*j}:{65+2*j}], {cj}, v{C_}")
    k("s_lshr_b32 s24, s44, 1"); k("s_lshl_b32 s24, s24, 10")
    k("s_and_b32 s25, s44, 1"); k("s_lshl_b32 s25, s25, 7"); k("s_add_u32 s24, s24, s25")
    k(f"v_lshlrev_b32 v15, 8, v{B_}")
    k(f"v_lshl_add_u32 v15, v{A_}, 4, v15")
    k("v_add_u32 v15, s24, v15")
    k("s_lshr_b32 s24, s44, 3"); k("s_lshl_b32 s24, s24, 10")
    k("s_and_b32 s25, s44, 3"); k("s_lshl_b32 s25, s25, 8"); k("s_add_u32 s24, s24, s25")
    k("s_lshr_b32 s25, s44, 2"); k("s_and_b32 s25, s25, 1"); k("s_lshl_b32 s25, s25, 7"); k("s_add_u32 s24, s24, s25")
    k("s_add_u32 s24, s24, 16384")
    k(f"v_lshlrev_b32 v{C_}, 4, v{A_}")
    k(f"v_add_u32 v{C_}, s24, v{C_}")
    k(f"v_cmp_eq_u32 vcc, 4, v{B_}")
    k(f"v_cndmask_b32 v15, v15, v{C_}, vcc")
    k(f"v_mov_b32 v{C_}, {OOB}")
    k(f"v_cndmask_b32 v15, v{C_}, v15, s[50:51]")
    k(f"s_cmp_lt_u32 s3, 1"); k(f"s_cselect_b32 s24, 0, {OOB}")
    k("v_or_b32 v15, s24, v15")
    k("s_and_b32 s24, s3, 1"); k("s_lshl_b32 s24, s24, 7")
    k("s_lshr_b32 s25, s3, 1"); k("s_lshl_b32 s25, s25, 10")
    k("s_add_u32 s24, s24, s25")
    k("s_lshl_b32 s25, s44, 11"); k("s_add_u32 s25, s25, s24")
    k(f"v_lshlrev_b32 v22, 8, v{B_}")
    k(f"v_lshl_add_u32 v22, v{A_}, 4, v22")
    k("v_add_u32 v22, s25, v22")
    k("s_lshr_b32 s25, s44, 2"); k("s_lshl_b32 s25, s25, 11"); k("s_add_u32 s25, s25, s24")
    k("s_and_b32 s26, s44, 3"); k("s_lshl_b32 s26, s26, 8"); k("s_add_u32 s25, s25, s26"); k("s_add_u32 s25, s25, 65536")
    k(f"v_lshlrev_b32 v{C_}, 4, v{A_}")
    k(f"v_add_u32 v{C_}, s25, v{C_}")
    k(f"v_cmp_eq_u32 vcc, 4, v{B_}")
    k(f"v_cndmask_b32 v22, v22, v{C_}, vcc")
    k(f"v_mov_b32 v{C_}, {OOB}")
    k(f"v_cndmask_b32 v22, v{C_}, v22, s[50:51]")
    k("s_mul_i32 s24, s44, 12288"); k("s_mul_i32 s25, s3, 3072"); k("s_add_u32 s24, s24, s25")
    k("v_add_u32 v19, s24, v5")
    aprobe_addr(k, 23, 's2', RH_M)
    k("s_lshr_b32 s25, s44, 3")
    ahint_addr(k, 20, A_, 's25', RH_P, True)
    k("v_mov_b32 v0, 1")
    event(k, 1, 48)
    k.lab('s_layer')
    layer_bases(k)
    k("v_and_b32 v10, 1, v1")
    k("v_lshlrev_b32 v10, 12, v10")
    k(f"s_lshl_b32 s24, s44, 7"); k(f"s_add_u32 s24, s24, s94")
    k("v_add_u32 v10, s24, v10")
    m0_image(k, 20, 48)
    k("s_mov_b32 s40, 0")
    k(f"s_mov_b32 s41, {WS_KF}")
    k(f"s_add_u32 s42, s93, {O_PX}")
    k(f"s_add_u32 s43, s93, {O_PB}")
    k(f"s_mov_b32 s45, {WS_QF}")
    k(f"s_add_u32 s47, s93, {O_MB - SYNC_STEP}")
    k(f"s_add_u32 s48, s93, {O_HR - SYNC_STEP}")
    k(f"s_add_u32 s49, s93, {O_HS}")
    def kx_loads():
        for b in range(3):
            k(f"buffer_load_dwordx4 a[{KX+4*b}:{KX+4*b+3}], v19, s[8:11], s41 offen offset:{b*1024} sc1")
    ensure_clear(k, 's_ec0', 48, 's40')
    k("s_mov_b32 s62, -1"); k("s_mov_b32 s63, 1")
    ensure(k, 's_en0', 2, 10, 48)
    kx_loads()
    event(k, 2, 48)
    k("s_waitcnt lgkmcnt(0)")
    k(f"s_branch {k.ref('s_go')}")
    P0 = 48
    def px_tail(t0, t1):
        sum4x8(k, P0, 21, 5632)
        softmax8(k, P0, t0, t1, masks=64)
        k(f"buffer_store_dwordx4 v[{P0+8}:{P0+11}], v22, s[8:11], s42 offen sc1")
        k(f"s_add_u32 s42, s42, {SYNC_STEP}")
    k.lab('s_step')
    stamp(k, 0)
    for r in range(24): k(f"v_mov_b32 v{ACC+r}, 0")
    loads_ = [f"buffer_load_dwordx4 v[84:87], v7, s[8:11], s47 offen sc1",
              f"buffer_load_dwordx4 v[88:91], v7, s[8:11], s46 offen sc1",
              f"buffer_load_dwordx2 v[92:93], v8, s[8:11], s47 offen sc1"]
    k("s_add_u32 s46, s47, 4096")
    ensure_clear(k, 's_ec', 48, 's40')
    k("s_add_u32 s63, s40, 1")
    ensure(k, 's_en', 2, 10, 48)
    aprobe(k, 's_pr', 23, 's48', 9, [82, 83, 94, 95], CFG['pd_m'], CFG['pdep'], CFG['dly_m'])
    for l in loads_: k(l)
    kx_loads()
    px_tail(80, 81)
    shot_check(k, 's_pm', loads_, range(84, 94), 58, 4, CFG['sl_m'])
    o = 84
    stamp(k, 1)
    k(f"ds_write_b128 v7, v[{o}:{o+3}]")
    k(f"ds_write_b128 v7, v[{o+4}:{o+7}] offset:4096")
    k(f"ds_write_b64 v8, v[{o+8}:{o+9}]")
    k("s_waitcnt lgkmcnt(0)")
    k.lab('s_go2')
    k("s_barrier")
    lg = LG(k)
    def rdA(c): lg.issue(('A', c), f"ds_read_b128 v[{AF+4*(c%5)}:{AF+4*(c%5)+3}], v5 offset:{c*1024}")
    def rdW(c):
        b = WS5 + 8 * (c % 2)
        lg.issue(('W', c), f"ds_read_b128 v[{b}:{b+3}], v6 offset:{c*2048}")
        lg.issue(('W', c), f"ds_read_b128 v[{b+4}:{b+7}], v6 offset:{c*2048+1024}")
    rdA(0); rdW(0); rdA(1); rdW(1); rdA(2); rdA(3); rdA(4)
    for c in range(10):
        a = AF + 4 * (c % 5)
        lg.wait(('A', c))
        for t in range(5):
            kind, r = wreg(t, c)
            k(f"v_smfmac_f32_16x16x64_bf16 v[{ACC+4*t}:{ACC+4*t+3}], v[{a}:{a+3}], {kind}[{r}:{r+7}], v4")
        lg.wait(('W', c))
        b = WS5 + 8 * (c % 2)
        k(f"v_smfmac_f32_16x16x64_bf16 v[{ACC+20}:{ACC+23}], v[{a}:{a+3}], v[{b}:{b+7}], v4")
        if c + 2 < 10: rdW(c + 2)
        if c + 5 < 10: rdA(c + 5)
    stamp(k, 2)
    for b in range(3):
        k(f"buffer_load_dwordx4 v[{QX+4*b}:{QX+4*b+3}], v19, s[8:11], s45 offen offset:{b*1024} sc1")
    k("s_waitcnt vmcnt(3)")
    def s_hint(): ahint(k, 20, 0, 's49')
    if CFG['hs_pos'] == 2: s_hint()
    T = 48
    for t in range(3):
        q = ACC + 4 * t; kk = ACC + 12 + 4 * t
        for r in range(4): k(f"v_permlane32_swap_b32 v{q+r}, v{kk+r}")
        for r in range(4): k(f"v_add_f32 v{q+r}, v{q+r}, v{kk+r}")
        k(f"v_cvt_pk_bf16_f32 v{T+2*t}, v{q}, v{q+1}")
        k(f"v_cvt_pk_bf16_f32 v{T+2*t+1}, v{q+2}, v{q+3}")
        k(f"ds_write_b64 v9, v[{T+2*t}:{T+2*t+1}] offset:{t*512}")
    XA, XB = 24, 28
    k("s_waitcnt lgkmcnt(0)")
    k(f"ds_read_b64_tr_b16 v[{XA}:{XA+1}], v11")
    k(f"ds_read_b64_tr_b16 v[{XA+2}:{XA+3}], v11 offset:512")
    k(f"ds_read_b64_tr_b16 v[{XB}:{XB+1}], v11 offset:1024")
    k("s_waitcnt lgkmcnt(0)")
    SC = 64
    k(f"v_mfma_f32_16x16x32_bf16 v[{SC}:{SC+3}], a[{KX}:{KX+3}], v[{XA}:{XA+3}], 0")
    k(f"v_mfma_f32_16x16x32_bf16 v[{SC+4}:{SC+7}], a[{KX+4}:{KX+7}], v[{XA}:{XA+3}], 0")
    k(f"v_mfma_f32_16x16x32_bf16 v[{SC+8}:{SC+11}], v[{XA}:{XA+3}], v[{XA}:{XA+3}], 0")
    k(f"v_mfma_f32_16x16x16_bf16 v[{SC}:{SC+3}], a[{KX+8}:{KX+9}], v[{XB}:{XB+1}], v[{SC}:{SC+3}]")
    k(f"v_mfma_f32_16x16x16_bf16 v[{SC+4}:{SC+7}], a[{KX+10}:{KX+11}], v[{XB}:{XB+1}], v[{SC+4}:{SC+7}]")
    k(f"v_mfma_f32_16x16x16_bf16 v[{SC+8}:{SC+11}], v[{XB}:{XB+1}], v[{XB}:{XB+1}], v[{SC+8}:{SC+11}]")
    k(f"ds_write_b128 v12, v[{SC}:{SC+3}]")
    k(f"ds_write_b128 v12, v[{SC+4}:{SC+7}] offset:16")
    k(f"ds_write_b128 v13, v[{SC+8}:{SC+11}]")
    k("s_waitcnt lgkmcnt(0)")
    k("s_barrier")
    if CFG['hs_pos'] == 3: s_hint()
    stamp(k, 3)
    sum4x8(k, P0, 14, 1408)
    softmax8(k, P0, T0, T1)
    k(f"buffer_store_dwordx4 v[{P0+8}:{P0+11}], v15, s[8:11], s43 offen sc1")
    stamp(k, 4)
    sx = lambda kt, tt: (32 + (kt * 2 + tt) * 4) if (kt * 2 + tt) < 4 else (64 + ((kt * 2 + tt) - 4) * 4)
    k(f"s_waitcnt vmcnt(2)")
    keys32 = [f"a[{KX}:{KX+3}]", f"a[{KX+4}:{KX+7}]", f"v[{XA}:{XA+3}]"]
    keys16 = [f"a[{KX+8}:{KX+9}]", f"a[{KX+10}:{KX+11}]", f"v[{XB}:{XB+1}]"]
    for tt in range(2):
        for kt in range(3):
            a = sx(kt, tt)
            k(f"v_mfma_f32_16x16x32_bf16 v[{a}:{a+3}], {keys32[kt]}, v[{QX+4*tt}:{QX+4*tt+3}], 0")
    for tt in range(2):
        for kt in range(3):
            a = sx(kt, tt)
            k(f"v_mfma_f32_16x16x16_bf16 v[{a}:{a+3}], {keys16[kt]}, v[{QX+8+2*tt}:{QX+8+2*tt+1}], v[{a}:{a+3}]")
    for tt in range(2):
        k(f"ds_write_b128 v16, v[{sx(0,tt)}:{sx(0,tt)+3}] offset:{tt*2816}")
        k(f"ds_write_b128 v16, v[{sx(1,tt)}:{sx(1,tt)+3}] offset:{tt*2816+16}")
        k(f"ds_write_b128 v{17+tt}, v[{sx(2,tt)}:{sx(2,tt)+3}]")
    k("s_add_u32 s40, s40, 1")
    k(f"s_add_u32 s41, s41, {QF_SEG}")
    k(f"s_add_u32 s45, s45, {QF_SEG}")
    for sreg in ('s43', 's47', 's48', 's49'): k(f"s_add_u32 {sreg}, {sreg}, {SYNC_STEP}")
    k("s_waitcnt lgkmcnt(0)")
    k("s_barrier")
    stamp(k, 5)
    if CFG['stamp']:
        k("s_sub_u32 s40, s40, 1"); stamp_out(k, 6, 46); k("s_add_u32 s40, s40, 1")
    k("s_cmp_lt_u32 s40, 64")
    k(f"s_cbranch_scc1 {k.ref('s_step')}")
    px_tail(80, 81)
    event(k, 3, 48)
    next_layer(k, 's_layer')
    k.lab('s_go')
    for r in range(24): k(f"v_mov_b32 v{ACC+r}, 0")
    k("s_waitcnt vmcnt(0)")
    k(f"s_branch {k.ref('s_go2')}")

def role_S2(k):
    L_M, L_X, L_SP, L_DUM, L_W5, L_ST = 0, 10240, 16384, 22528, 24576, 106496
    RS = 400
    ACC, AF, WS5 = 24, 48, 68
    KX = 240
    QX = 80
    T0, T1 = 92, 93
    def wreg(t, c):
        if t < 3: return 'a', t * 80 + c * 8
        return 'v', 96 + (t - 4) * 80 + c * 8
    k("s_mov_b32 s44, s2")
    k.ptr(KA_WQ, 6); k.ptr(KA_WK, 24); k.ptr(KA_MEM0, 26)
    k("s_waitcnt lgkmcnt(0)")
    k.srd(12, 6, D * HD * 2); k.srd(16, 24, D * HD * 2); k.srd(20, 26, 8 * 640 * 2)
    GO, LO, DAT = 4, 10, 24
    stage_offsets(k, 6, 24, HD * 2, RS, L_ST, GO, LO, 16)
    tr_base(k, 16, RS, L_ST, 17)
    k("s_mul_i32 s24, s3, 96")
    k("v_add_u32 v16, s24, v16")
    k("v_lshlrev_b32 v17, 4, v1")
    k(f"s_mul_i32 s24, s3, 20480"); k(f"s_add_u32 s24, s24, {L_W5}")
    k("v_add_u32 v17, s24, v17")
    k(f"s_mul_i32 s45, s44, 384")
    blocks = [(c, m) for c in range(10) for m in range(2)]
    def loads(bi):
        c, m = blocks[bi]
        d = DAT + 24 * (bi % 3)
        k(f"s_add_u32 s46, s45, {c * 64 * HD * 2}")
        for i in range(6):
            k(f"buffer_load_dwordx4 v[{d+4*i}:{d+4*i+3}], v{GO+i}, s[{12+4*m}:{15+4*m}], s46 offen")
    loads(0); loads(1)
    for bi, (c, m) in enumerate(blocks):
        d = DAT + 24 * (bi % 3)
        k(f"s_waitcnt vmcnt({6 if bi + 1 < len(blocks) else 0})")
        for i in range(6): k(f"ds_write_b128 v{LO+i}, v[{d+4*i}:{d+4*i+3}]")
        if bi + 2 < len(blocks): loads(bi + 2)
        k("s_waitcnt lgkmcnt(0)")
        k("s_barrier")
        for t in range(3):
            tt = 3 * m + t
            if tt != 3:
                kind, r = wreg(tt, c)
                tr_frag(k, r, kind, 16, RS, 32 * t)
        if m == 1:
            tr_frag(k, d, 'v', 16, RS, 0)
            k("s_waitcnt lgkmcnt(0)")
            k(f"ds_write_b128 v17, v[{d}:{d+3}] offset:{c*2048}")
            k(f"ds_write_b128 v17, v[{d+4}:{d+7}] offset:{c*2048+1024}")
        k("s_waitcnt lgkmcnt(0)")
        k("s_barrier")
    A_, B_, C_, D_ = 30, 31, 32, 33
    k("v_mov_b32 v6, v17")
    k(f"v_mov_b32 v{A_}, 0xeeee"); k("v_mov_b32 v4, 0x4444")
    k("v_cmp_gt_u32 vcc, 8, v2")
    k(f"v_cndmask_b32 v4, v{A_}, v4, vcc")
    k("v_lshlrev_b32 v5, 4, v1")
    k("s_lshl_b32 s24, s3, 10")
    k("v_add_u32 v7, s24, v5")
    k("s_lshl_b32 s24, s3, 9"); k("s_add_u32 s24, s24, 8192")
    k("v_lshlrev_b32 v8, 3, v1")
    k("v_add_u32 v8, s24, v8")
    k(f"v_and_b32 v{A_}, 1, v2"); k(f"v_lshlrev_b32 v{A_}, 4, v{A_}")
    k(f"v_mov_b32 v{B_}, 0x3f80"); k(f"v_lshlrev_b32 v{B_}, v{A_}, v{B_}")
    k(f"v_lshrrev_b32 v{A_}, 2, v2"); k(f"v_cmp_eq_u32 vcc, v{A_}, v3"); k(f"v_cndmask_b32 v{B_}, 0, v{B_}, vcc")
    k(f"v_and_b32 v{A_}, 2, v2"); k(f"v_cmp_eq_u32 vcc, 0, v{A_}")
    k(f"v_cndmask_b32 v10, 0, v{B_}, vcc"); k(f"v_cndmask_b32 v11, v{B_}, 0, vcc")
    k(f"v_add_u32 v{D_}, {L_DUM}, v5")
    k(f"s_mul_i32 s24, s3, 1408"); k(f"s_add_u32 s24, s24, {L_SP}")
    k(f"v_mul_u32_u24 v{A_}, 176, v2")
    k(f"v_add_u32 v{A_}, s24, v{A_}")
    k(f"v_lshl_add_u32 v12, v3, 5, v{A_}")
    k("v_cmp_gt_u32 vcc, 8, v2")
    k(f"v_cndmask_b32 v12, v{D_}, v12, vcc")
    k(f"v_lshl_add_u32 v13, v3, 4, v{A_}")
    k("v_add_u32 v13, 96, v13")
    k("v_cmp_le_u32 s[24:25], 2, v3")
    k("s_and_b64 vcc, vcc, s[24:25]")
    k(f"v_cndmask_b32 v13, v{D_}, v13, vcc")
    k(f"s_mul_i32 s24, s3, 5632"); k(f"s_add_u32 s24, s24, {L_ST}")
    k(f"v_mul_u32_u24 v{A_}, 176, v2")
    k(f"v_add_u32 v{A_}, s24, v{A_}")
    k(f"v_lshl_add_u32 v16, v3, 5, v{A_}")
    k(f"v_lshl_add_u32 v17, v3, 4, v{A_}")
    k("v_add_u32 v17, 96, v17")
    k("v_add_u32 v18, 2816, v17")
    k("v_cmp_le_u32 vcc, 2, v3")
    k(f"v_cndmask_b32 v17, v{D_}, v17, vcc")
    k(f"v_cndmask_b32 v18, v{D_}, v18, vcc")
    k(f"v_lshrrev_b32 v{A_}, 3, v1")
    k(f"v_and_b32 v{B_}, 7, v1")
    k(f"v_min_u32 v{C_}, 4, v{B_}")
    k(f"v_mul_u32_u24 v14, 176, v{A_}")
    k(f"v_lshl_add_u32 v14, v{C_}, 5, v14")
    k("s_mul_i32 s24, s3, 1408"); k(f"s_add_u32 s24, s24, {L_ST}")
    k("v_add_u32 v21, s24, v14")
    k(f"v_add_u32 v14, {L_SP}, v14")
    k(f"v_cmp_gt_u32 s[50:51], 5, v{B_}")
    k("s_lshl_b32 s24, s3, 3")
    k(f"v_add_u32 v{C_}, s24, v{A_}")
    k(f"v_lshlrev_b32 v{D_}, 2, v{B_}")
    k(f"v_sub_u32 v{C_}, v{C_}, v{D_}")
    k(f"v_mov_b32 v{D_}, 100")
    k(f"v_cmp_gt_u32 vcc, 4, v{B_}")
    k(f"v_cndmask_b32 v{C_}, v{D_}, v{C_}, vcc")
    for j in range(8):
        cj = j if j < 4 else j + 12
        k(f"v_cmp_le_i32 s[{64+2*j}:{65+2*j}], {cj}, v{C_}")
    k("s_lshr_b32 s24, s44, 1"); k("s_lshl_b32 s24, s24, 10")
    k("s_and_b32 s25, s44, 1"); k("s_lshl_b32 s25, s25, 7"); k("s_add_u32 s24, s24, s25")
    k(f"v_lshlrev_b32 v15, 8, v{B_}")
    k(f"v_lshl_add_u32 v15, v{A_}, 4, v15")
    k("v_add_u32 v15, s24, v15")
    k("s_lshr_b32 s24, s44, 3"); k("s_lshl_b32 s24, s24, 10")
    k("s_and_b32 s25, s44, 3"); k("s_lshl_b32 s25, s25, 8"); k("s_add_u32 s24, s24, s25")
    k("s_lshr_b32 s25, s44, 2"); k("s_and_b32 s25, s25, 1"); k("s_lshl_b32 s25, s25, 7"); k("s_add_u32 s24, s24, s25")
    k("s_add_u32 s24, s24, 16384")
    k(f"v_lshlrev_b32 v{C_}, 4, v{A_}")
    k(f"v_add_u32 v{C_}, s24, v{C_}")
    k(f"v_cmp_eq_u32 vcc, 4, v{B_}")
    k(f"v_cndmask_b32 v15, v15, v{C_}, vcc")
    k(f"v_mov_b32 v{C_}, {OOB}")
    k(f"v_cndmask_b32 v15, v{C_}, v15, s[50:51]")
    k(f"s_cmp_lt_u32 s3, 1"); k(f"s_cselect_b32 s24, 0, {OOB}")
    k("v_or_b32 v15, s24, v15")
    k("s_and_b32 s24, s3, 1"); k("s_lshl_b32 s24, s24, 7")
    k("s_lshr_b32 s25, s3, 1"); k("s_lshl_b32 s25, s25, 10")
    k("s_add_u32 s24, s24, s25")
    k("s_lshl_b32 s25, s44, 11"); k("s_add_u32 s25, s25, s24")
    k(f"v_lshlrev_b32 v22, 8, v{B_}")
    k(f"v_lshl_add_u32 v22, v{A_}, 4, v22")
    k("v_add_u32 v22, s25, v22")
    k("s_lshr_b32 s25, s44, 2"); k("s_lshl_b32 s25, s25, 11"); k("s_add_u32 s25, s25, s24")
    k("s_and_b32 s26, s44, 3"); k("s_lshl_b32 s26, s26, 8"); k("s_add_u32 s25, s25, s26"); k("s_add_u32 s25, s25, 65536")
    k(f"v_lshlrev_b32 v{C_}, 4, v{A_}")
    k(f"v_add_u32 v{C_}, s25, v{C_}")
    k(f"v_cmp_eq_u32 vcc, 4, v{B_}")
    k(f"v_cndmask_b32 v22, v22, v{C_}, vcc")
    k(f"v_mov_b32 v{C_}, {OOB}")
    k(f"v_cndmask_b32 v22, v{C_}, v22, s[50:51]")
    k("s_mul_i32 s24, s44, 12288"); k("s_mul_i32 s25, s3, 3072"); k("s_add_u32 s24, s24, s25")
    k("v_add_u32 v19, s24, v5")
    aprobe_addr(k, 23, 's2', RH_M)
    k("s_lshr_b32 s25, s44, 3")
    ahint_addr(k, 20, A_, 's25', RH_P, True)
    k("v_mov_b32 v0, 1")
    event(k, 1, 48)
    k.lab('s_layer')
    layer_bases(k)
    k("v_and_b32 v9, 1, v1")
    k("v_lshlrev_b32 v9, 12, v9")
    k(f"s_lshl_b32 s24, s44, 7"); k(f"s_add_u32 s24, s24, s94")
    k("v_add_u32 v9, s24, v9")
    m0_image(k, 20, 48)
    k("s_mov_b32 s40, 0")
    k(f"s_mov_b32 s41, {WS_KF}")
    k(f"s_add_u32 s42, s93, {O_PX}")
    k(f"s_add_u32 s43, s93, {O_PB}")
    k(f"s_mov_b32 s45, {WS_QF}")
    k(f"s_add_u32 s47, s93, {O_MB - SYNC_STEP}")
    k(f"s_add_u32 s48, s93, {O_HR - SYNC_STEP}")
    k(f"s_add_u32 s49, s93, {O_HS}")
    def kx_loads():
        for b in range(3):
            k(f"buffer_load_dwordx4 a[{KX+4*b}:{KX+4*b+3}], v19, s[8:11], s41 offen offset:{b*1024} sc1")
    ensure_clear(k, 's_ec0', 48, 's40')
    k("s_mov_b32 s62, -1"); k("s_mov_b32 s63, 1")
    ensure(k, 's_en0', 2, 9, 48)
    kx_loads()
    event(k, 2, 48)
    k("s_waitcnt lgkmcnt(0)")
    for r in range(24): k(f"v_mov_b32 v{ACC+r}, 0")
    k("s_barrier")
    k("ds_read_b128 v[84:87], v7"); k("ds_read_b128 v[88:91], v7 offset:4096")
    k("s_waitcnt vmcnt(0) lgkmcnt(0)")
    for w in range(3):
        k(f"s_cmp_eq_u32 s3, {w}"); k(f"s_cbranch_scc1 {k.ref('s_gow' + str(w))}")
    k(f"s_branch {k.ref('s_gow3')}")
    P0 = 48
    def px_tail(t0, t1):
        sum4x8(k, P0, 21, 5632)
        softmax8(k, P0, t0, t1, masks=64)
        k(f"buffer_store_dwordx4 v[{P0+8}:{P0+11}], v22, s[8:11], s42 offen sc1")
        k(f"s_add_u32 s42, s42, {SYNC_STEP}")
    M32 = "v_mfma_f32_16x16x32_bf16"; M16 = "v_mfma_f32_16x16x16_bf16"
    XA, XB = 24, 32
    SC = [28, 36, 40]
    def epi_pair(p, dest):
        q = ACC + 4 * p; kk = ACC + 12 + 4 * p
        L = [f"v_permlane32_swap_b32 v{q+r}, v{kk+r}" for r in range(4)]
        L += [f"v_add_f32 v{q+r}, v{q+r}, v{kk+r}" for r in range(4)]
        L += [f"v_cvt_pk_bf16_f32 v{kk}, v{q}, v{q+1}", f"v_cvt_pk_bf16_f32 v{kk+1}, v{q+2}, v{q+3}"]
        L += [f"{M16} v[{q}:{q+3}], v[{kk}:{kk+1}], v[10:11], 0"]
        return L, [f"v_cvt_pk_bf16_f32 v{dest}, v{q}, v{q+1}", f"v_cvt_pk_bf16_f32 v{dest+1}, v{q+2}, v{q+3}"]
    def loop(w):
        sf = 'w' + str(w)
        k.lab('s_step' + sf)
        stamp(k, 0)
        for r in range(24): k(f"v_mov_b32 v{ACC+r}, 0")
        loads_ = [f"buffer_load_dwordx4 v[84:87], v7, s[8:11], s47 offen sc1",
                  f"buffer_load_dwordx4 v[88:91], v7, s[8:11], s46 offen sc1",
                  f"buffer_load_dwordx2 v[92:93], v8, s[8:11], s47 offen sc1"]
        k("s_add_u32 s46, s47, 4096")
        ensure_clear(k, 's_ec' + sf, 48, 's40')
        k("s_add_u32 s63, s40, 1")
        ensure(k, 's_en' + sf, 2, 9, 48)
        if CFG['kx_pos'] == 0: kx_loads()
        if CFG['px_pos'] == 0: px_tail(80, 81)
        aprobe(k, 's_pr' + sf, 23, 's48', CFG['tgt_m'], [82, 83, 94, 95], CFG['pd_m'], CFG['pdep'], CFG['dly_m'])
        for l in loads_: k(l)
        ny = 0
        if CFG['kx_pos'] == 1: kx_loads(); ny += 3
        if CFG['px_pos'] == 1: px_tail(80, 81); ny += 1
        shot_check(k, 's_pm' + sf, loads_, range(84, 94), 58, ny, CFG['sl_m'])
        if CFG['kx_pos'] == 2: kx_loads()
        stamp(k, 1)
        k(f"ds_write_b128 v7, v[84:87]")
        k(f"ds_write_b128 v7, v[88:91] offset:4096")
        k(f"ds_write_b64 v8, v[92:93]")
        k.lab('s_go' + sf)
        lg = LG(k)
        own = [w, 4 + w]; oth = [c for c in range(10) if c not in own]
        def rdW(c, slot):
            b = WS5 + 8 * slot
            lg.issue(('W', c), f"ds_read_b128 v[{b}:{b+3}], v6 offset:{c*2048}")
            lg.issue(('W', c), f"ds_read_b128 v[{b+4}:{b+7}], v6 offset:{c*2048+1024}")
        def rdA(j):
            a = AF + 4 * (j % 5)
            lg.issue(('A', j), f"ds_read_b128 v[{a}:{a+3}], v5 offset:{oth[j % 8]*1024}")
        def sm(t, c, a, slot=None):
            if t == 3: B = f"v[{WS5+8*slot}:{WS5+8*slot+7}]"
            else:
                kind, r = wreg(t, c); B = f"{kind}[{r}:{r+7}]"
            k(f"v_smfmac_f32_16x16x64_bf16 v[{ACC+4*t}:{ACC+4*t+3}], v[{a}:{a+3}], {B}, v4")
        rdW(own[0], 0); rdW(own[1], 1)
        for t in (0, 1, 2, 4, 5): sm(t, own[0], 84)
        lg.wait(('W', own[0])); sm(3, own[0], 84, 0)
        rdW(oth[0], 0)
        k("s_barrier")
        for j in range(5): rdA(j)
        for t in (0, 1, 2, 4, 5): sm(t, own[1], 88)
        lg.wait(('W', own[1])); sm(3, own[1], 88, 1)
        rdW(oth[1], 1)
        for j in range(8):
            c = oth[j]; a = AF + 4 * (j % 5)
            lg.wait(('A', j))
            for t in (0, 1, 4): sm(t, c, a)
            lg.wait(('W', c)); sm(3, c, a, j % 2)
            if j + 2 < 8: rdW(oth[j + 2], j % 2)
            rdA(j + 5)
        for b in range(3):
            k(f"buffer_load_dwordx4 v[{QX+4*b}:{QX+4*b+3}], v19, s[8:11], s45 offen offset:{b*1024} sc1")
        e1a, e1b = epi_pair(1, XA + 2); e0a, e0b = epi_pair(0, XA)
        E = [None, None] + e1a + e0a + [None] + e0b + e1b + [f"s_waitcnt vmcnt({4 if (CFG['kx_pos'] == 1 and CFG['px_pos'] == 1) else 3})", None]
        E += [f"{M32} v[{SC[0]}:{SC[0]+3}], a[{KX}:{KX+3}], v[{XA}:{XA+3}], 0",
              f"{M32} v[{SC[1]}:{SC[1]+3}], a[{KX+4}:{KX+7}], v[{XA}:{XA+3}], 0",
              f"{M32} v[{SC[2]}:{SC[2]+3}], v[{XA}:{XA+3}], v[{XA}:{XA+3}], 0"]
        def extra(n):
            for _ in range(n):
                if E:
                    t_ = E.pop(0)
                    if t_: k(t_)
        for j in range(8, 16):
            c = oth[j - 8]; a = AF + 4 * (j % 5)
            lg.wait(('A', j))
            sm(2, c, a); extra(2)
            sm(5, c, a); extra(2)
            if j + 5 < 16: rdA(j + 5)
        extra(100)
        stamp(k, 2)
        if CFG['hs_pos'] == 2 and w == 0: ahint(k, 20, 0, 's49')
        e2a, e2b = epi_pair(2, XB)
        for t_ in e2a: k(t_)
        if CFG['hs_pos'] == 20 and w == 0: ahint(k, 20, 0, 's49')
        for t_ in e2b: k(t_)
        if CFG['hs_pos'] == 21 and w == 0: ahint(k, 20, 0, 's49')
        k(f"{M16} v[{SC[0]}:{SC[0]+3}], a[{KX+8}:{KX+9}], v[{XB}:{XB+1}], v[{SC[0]}:{SC[0]+3}]")
        k(f"{M16} v[{SC[1]}:{SC[1]+3}], a[{KX+10}:{KX+11}], v[{XB}:{XB+1}], v[{SC[1]}:{SC[1]+3}]")
        k(f"{M16} v[{SC[2]}:{SC[2]+3}], v[{XB}:{XB+1}], v[{XB}:{XB+1}], v[{SC[2]}:{SC[2]+3}]")
        if CFG['hs_pos'] == 22 and w == 0: ahint(k, 20, 0, 's49')
        k(f"ds_write_b128 v12, v[{SC[0]}:{SC[0]+3}]")
        k(f"ds_write_b128 v12, v[{SC[1]}:{SC[1]+3}] offset:16")
        k(f"ds_write_b128 v13, v[{SC[2]}:{SC[2]+3}]")
        if CFG['hs_pos'] == 23 and w == 0: ahint(k, 20, 0, 's49')
        k("s_waitcnt lgkmcnt(0)")
        k("s_barrier")
        stamp(k, 3)
        if w == 0:
            if CFG['hs_pos'] == 3: ahint(k, 20, 0, 's49')
            sum4x8(k, P0, 14, 1408)
            softmax8(k, P0, T0, T1)
            k(f"buffer_store_dwordx4 v[{P0+8}:{P0+11}], v15, s[8:11], s43 offen sc1")
        stamp(k, 4)
        sx = lambda kt, tt: [36, 40, 44, 64, 68, 72][kt * 2 + tt]
        k(f"s_waitcnt vmcnt({2 if w == 0 else 0})")
        keys32 = [f"a[{KX}:{KX+3}]", f"a[{KX+4}:{KX+7}]", f"v[{XA}:{XA+3}]"]
        keys16 = [f"a[{KX+8}:{KX+9}]", f"a[{KX+10}:{KX+11}]", f"v[{XB}:{XB+1}]"]
        for tt in range(2):
            for kt in range(3):
                a = sx(kt, tt)
                k(f"{M32} v[{a}:{a+3}], {keys32[kt]}, v[{QX+4*tt}:{QX+4*tt+3}], 0")
        for tt in range(2):
            for kt in range(3):
                a = sx(kt, tt)
                k(f"{M16} v[{a}:{a+3}], {keys16[kt]}, v[{QX+8+2*tt}:{QX+8+2*tt+1}], v[{a}:{a+3}]")
        for tt in range(2):
            k(f"ds_write_b128 v16, v[{sx(0,tt)}:{sx(0,tt)+3}] offset:{tt*2816}")
            k(f"ds_write_b128 v16, v[{sx(1,tt)}:{sx(1,tt)+3}] offset:{tt*2816+16}")
            k(f"ds_write_b128 v{17+tt}, v[{sx(2,tt)}:{sx(2,tt)+3}]")
        k("s_add_u32 s40, s40, 1")
        k(f"s_add_u32 s41, s41, {QF_SEG}")
        k(f"s_add_u32 s45, s45, {QF_SEG}")
        for sreg in ('s43', 's47', 's48', 's49'): k(f"s_add_u32 {sreg}, {sreg}, {SYNC_STEP}")
        k("s_waitcnt lgkmcnt(0)")
        k("s_barrier")
        stamp(k, 5)
        if CFG['stamp']:
            k("s_sub_u32 s40, s40, 1"); stamp_out(k, 6, 46); k("s_add_u32 s40, s40, 1")
        k("s_cmp_lt_u32 s40, 64")
        k(f"s_cbranch_scc1 {k.ref('s_step' + sf)}")
        if w < 3: k(f"s_branch {k.ref('s_end')}")
    for w in range(4): loop(w)
    k.lab('s_end')
    px_tail(80, 81)
    event(k, 3, 48)
    next_layer(k, 's_layer')

def role_V(k):
    L_M, L_V, L_WO, L_ST = 0, 10240, 16384, 16384 + 73728
    RS1, RS2 = 400, 656
    MA, VACC, VA, STG = 16, 56, 68, 80
    def wv(t, c): return 'a', t * 80 + c * 8
    def wo(t, c):
        i = t * 3 + c
        if i < 2: return 'a', 240 + 8 * i
        return 'v', 104 + 8 * (i - 2)
    k("s_sub_u32 s44, s2, 32")
    k.ptr(KA_WV, 6); k.ptr(KA_WO, 24); k.ptr(KA_MEM0, 26)
    k("s_waitcnt lgkmcnt(0)")
    k.srd(12, 6, D * HD * 2); k.srd(16, 24, D * HD * 2); k.srd(20, 26, 8 * 640 * 2)
    GO, LO, DAT = 4, 10, 24
    stage_offsets(k, 6, 24, HD * 2, RS1, L_ST, GO, LO, 16)
    tr_base(k, 16, RS1, L_ST, 17)
    k("s_mul_i32 s24, s3, 96")
    k("v_add_u32 v16, s24, v16")
    k(f"s_mul_i32 s45, s44, 384")
    def loads(c):
        d = DAT + 24 * (c % 3)
        k(f"s_add_u32 s46, s45, {c * 64 * HD * 2}")
        for i in range(6):
            k(f"buffer_load_dwordx4 v[{d+4*i}:{d+4*i+3}], v{GO+i}, s[12:15], s46 offen")
    loads(0); loads(1)
    for c in range(10):
        d = DAT + 24 * (c % 3)
        k(f"s_waitcnt vmcnt({6 if c + 1 < 10 else 0})")
        for i in range(6): k(f"ds_write_b128 v{LO+i}, v[{d+4*i}:{d+4*i+3}]")
        if c + 2 < 10: loads(c + 2)
        k("s_waitcnt lgkmcnt(0)")
        k("s_barrier")
        for t in range(3):
            kind, r = wv(t, c)
            tr_frag(k, r, kind, 16, RS1, 32 * t)
        k("s_waitcnt lgkmcnt(0)")
        k("s_barrier")
    GO, LO, DAT = 4, 14, 24
    stage_offsets(k, 10, 40, 1280, RS2, L_ST, GO, LO, 64)
    tr_base(k, 72, RS2, L_ST, 64)
    k("s_and_b32 s24, s3, 1"); k("s_mul_i32 s24, s24, 320")
    k("v_add_u32 v72, s24, v72")
    k("v_lshlrev_b32 v73, 4, v1")
    k(f"s_mul_i32 s24, s3, 18432"); k(f"s_add_u32 s24, s24, {L_WO}")
    k("v_add_u32 v73, s24, v73")
    k(f"s_mul_i32 s45, s44, {192*1280}")
    for c in range(3):
        for hf in range(2):
            k(f"s_add_u32 s46, s45, {c*64*1280 + hf*640}")
            for i in range(10):
                k(f"buffer_load_dwordx4 v[{DAT+4*i}:{DAT+4*i+3}], v{GO+i}, s[16:19], s46 offen")
            k("s_waitcnt vmcnt(0)")
            for i in range(10): k(f"ds_write_b128 v{LO+i}, v[{DAT+4*i}:{DAT+4*i+3}]")
            k("s_waitcnt lgkmcnt(0)")
            k("s_barrier")
            l = k.new('wo')
            k("s_lshr_b32 s24, s3, 1")
            k(f"s_cmp_eq_u32 s24, {hf}")
            k(f"s_cbranch_scc0 {k.ref(l)}")
            for t in range(10):
                if t < 7:
                    kind, r = wo(t, c)
                    tr_frag(k, r, kind, 72, RS2, 32 * t)
                else:
                    tr_frag(k, 64, 'v', 72, RS2, 32 * t)
                    k("s_waitcnt lgkmcnt(0)")
                    o = ((t - 7) * 3 + c) * 2048
                    k(f"ds_write_b128 v73, v[64:67] offset:{o}")
                    k(f"ds_write_b128 v73, v[68:71] offset:{o+1024}")
                    k("s_waitcnt lgkmcnt(0)")
            k("s_waitcnt lgkmcnt(0)")
            k.lab(l)
            k("s_barrier")
    k("v_mov_b32 v6, v73")
    k("v_mov_b32 v4, 0x4444"); k("v_mov_b32 v5, 0xeeee")
    k("v_cmp_gt_u32 vcc, 8, v2")
    k("v_cndmask_b32 v4, v5, v4, vcc")
    k("v_lshlrev_b32 v5, 4, v1")
    k("s_lshl_b32 s24, s3, 10")
    k("v_add_u32 v7, s24, v5")
    k("s_lshl_b32 s24, s3, 9"); k("s_add_u32 s24, s24, 8192")
    k("v_lshlrev_b32 v8, 3, v1")
    k("v_add_u32 v8, s24, v8")
    k("v_and_b32 v64, 7, v2"); k("v_lshlrev_b32 v9, 5, v64")
    k("v_lshrrev_b32 v64, 3, v2"); k("v_lshl_add_u32 v9, v64, 4, v9")
    k("v_and_b32 v64, 1, v3"); k("v_lshl_add_u32 v9, v64, 3, v9")
    k(f"s_mul_i32 s24, s3, 768"); k(f"s_add_u32 s24, s24, {L_V}")
    k("v_add_u32 v9, s24, v9")
    k("v_lshrrev_b32 v65, 1, v3")
    k("v_lshl_add_u32 v10, v65, 8, v9")
    k("v_lshrrev_b32 v64, 2, v2"); k("v_lshlrev_b32 v11, 5, v64")
    k("v_and_b32 v64, 3, v2"); k("v_lshl_add_u32 v11, v64, 3, v11")
    k("v_lshl_add_u32 v11, v3, 8, v11")
    k(f"v_add_u32 v11, {L_V}, v11")
    k("s_mul_i32 s24, s3, 10"); k("s_lshl_b32 s24, s24, 13"); k("s_lshl_b32 s25, s44, 8"); k("s_add_u32 s24, s24, s25")
    k("v_lshlrev_b32 v14, 13, v3")
    k("v_lshl_add_u32 v14, v2, 4, v14")
    k("v_add_u32 v14, s24, v14")
    k("v_lshrrev_b32 v64, 1, v3")
    k("v_lshlrev_b32 v15, 13, v64")
    k("v_lshl_add_u32 v15, v2, 4, v15")
    k("v_add_u32 v15, s24, v15")
    k(f"v_add_u32 v15, {8*8192}, v15")
    k("v_and_b32 v64, 1, v3")
    k("v_cmp_eq_u32 vcc, 0, v64")
    k(f"v_mov_b32 v64, {OOB}")
    k("v_cndmask_b32 v15, v64, v15, vcc")
    aprobe_addr(k, 12, 's2', RH_M)
    k("v_mov_b32 v0, 1")
    event(k, 1, 64)
    k.lab('v_layer')
    layer_bases(k)
    m0_image(k, 20, 64)
    k("s_mov_b32 s40, 0")
    k(f"s_add_u32 s43, s93, {O_VOM}")
    k(f"s_add_u32 s47, s93, {O_MB - SYNC_STEP}")
    k(f"s_add_u32 s45, s93, {O_HR - SYNC_STEP}")
    ensure_clear(k, 'v_ec0', 64, 's40')
    k("s_waitcnt lgkmcnt(0)")
    k(f"s_branch {k.ref('v_go2')}")
    k.lab('v_step')
    stamp(k, 0)
    loads_ = [f"buffer_load_dwordx4 v[68:71], v7, s[8:11], s47 offen sc1",
              f"buffer_load_dwordx4 v[72:75], v7, s[8:11], s48 offen sc1",
              f"buffer_load_dwordx2 v[76:77], v8, s[8:11], s47 offen sc1"]
    k("s_add_u32 s48, s47, 4096")
    ensure_clear(k, 'v_ec', 64, 's40')
    aprobe(k, 'v_pr', 12, 's45', 9, [80, 81, 82, 83], CFG['pd_m'], CFG['pdep'], CFG['dly_v'])
    stamp(k, 5)
    for l in loads_: k(l)
    shot_check(k, 'v_pm', loads_, range(68, 78), 26, 0, CFG['sl_m'])
    o = 68
    stamp(k, 1)
    k(f"ds_write_b128 v7, v[{o}:{o+3}]")
    k(f"ds_write_b128 v7, v[{o+4}:{o+7}] offset:4096")
    k(f"ds_write_b64 v8, v[{o+8}:{o+9}]")
    k("s_waitcnt lgkmcnt(0)")
    k.lab('v_go2')
    k("s_barrier")
    lg = LG(k)
    for c in range(10): lg.issue(('A', c), f"ds_read_b128 v[{MA+4*c}:{MA+4*c+3}], v5 offset:{c*1024}")
    for r in range(12): k(f"v_mov_b32 v{VACC+r}, 0")
    for c in range(10):
        lg.wait(('A', c))
        for t in range(3):
            kind, r = wv(t, c)
            k(f"v_smfmac_f32_16x16x64_bf16 v[{VACC+4*t}:{VACC+4*t+3}], v[{MA+4*c}:{MA+4*c+3}], {kind}[{r}:{r+7}], v4")
    def rdWo(t, c, slot):
        b = STG + 8 * slot; o = ((t - 7) * 3 + c) * 2048
        lg.issue(('W', t, c), f"ds_read_b128 v[{b}:{b+3}], v6 offset:{o}")
        lg.issue(('W', t, c), f"ds_read_b128 v[{b+4}:{b+7}], v6 offset:{o+1024}")
    for c in range(3): rdWo(7, c, c)
    stamp(k, 2)
    k("s_waitcnt vmcnt(0)")
    for r in range(40): k(f"v_mov_b32 v{MA+r}, 0")
    for r in range(4): k(f"v_permlane32_swap_b32 v{VACC+r}, v{VACC+4+r}")
    for r in range(4): k(f"v_add_f32 v{VACC+r}, v{VACC+r}, v{VACC+4+r}")
    k(f"v_cvt_pk_bf16_f32 v{VA}, v{VACC}, v{VACC+1}")
    k(f"v_cvt_pk_bf16_f32 v{VA+1}, v{VACC+2}, v{VACC+3}")
    for r in range(4): k(f"v_mov_b32 v{VACC+4+r}, v{VACC+8+r}")
    for r in range(4): k(f"v_permlane32_swap_b32 v{VACC+8+r}, v{VACC+4+r}")
    for r in range(4): k(f"v_add_f32 v{VACC+8+r}, v{VACC+8+r}, v{VACC+4+r}")
    k(f"v_cvt_pk_bf16_f32 v{VA+2}, v{VACC+8}, v{VACC+9}")
    k(f"v_cvt_pk_bf16_f32 v{VA+3}, v{VACC+10}, v{VACC+11}")
    lg.issue('x', f"ds_write_b64 v10, v[{VA}:{VA+1}]")
    lg.issue('x', f"ds_write_b64 v9, v[{VA+2}:{VA+3}] offset:512")
    lg.all()
    k("s_barrier")
    for c in range(3):
        lg.issue(('V', c), f"ds_read_b64_tr_b16 v[{VA+4*c}:{VA+4*c+1}], v11 offset:{c*1024}")
        lg.issue(('V', c), f"ds_read_b64_tr_b16 v[{VA+4*c+2}:{VA+4*c+3}], v11 offset:{c*1024+128}")
    stamp(k, 3)
    acc = lambda t: MA + 4 * t
    def mm(t, c, B):
        k(f"v_smfmac_f32_16x16x64_bf16 v[{acc(t)}:{acc(t)+3}], v[{VA+4*c}:{VA+4*c+3}], {B}, v4")
    def B_reg(t, c):
        kind, r = wo(t, c); return f"{kind}[{r}:{r+7}]"
    OUT = 56
    def epi(T, o):
        L = []
        t0, t1, t2, t3 = T
        for (x, y) in ((t0, t2), (t1, t3)):
            for r in range(4): L.append(f"v_permlane32_swap_b32 v{acc(x)+r}, v{acc(y)+r}")
            for r in range(4): L.append(f"v_add_f32 v{acc(x)+r}, v{acc(x)+r}, v{acc(y)+r}")
        L.append(f"v_cvt_pk_bf16_f32 v{o}, v{acc(t0)}, v{acc(t0)+1}")
        L.append(f"v_cvt_pk_bf16_f32 v{o+1}, v{acc(t0)+2}, v{acc(t0)+3}")
        L.append(f"v_cvt_pk_bf16_f32 v{o+2}, v{acc(t1)}, v{acc(t1)+1}")
        L.append(f"v_cvt_pk_bf16_f32 v{o+3}, v{acc(t1)+2}, v{acc(t1)+3}")
        L.append(f"v_permlane16_swap_b32 v{o}, v{o+2}")
        L.append(f"v_permlane16_swap_b32 v{o+1}, v{o+3}")
        for r in range(4): L.append(f"v_min_u32 v{o+r}, -2, v{o+r}")
        return L
    for c in range(3):
        lg.wait(('V', c))
        for t in range(4): mm(t, c, B_reg(t, c))
    for c in range(3):
        for t in (4, 5, 6): mm(t, c, B_reg(t, c))
        mm(7, c, f"v[{STG+8*c}:{STG+8*c+7}]")
        rdWo(8, c, c)
    for s_ in epi([0, 1, 2, 3], OUT): k(s_)
    k(f"buffer_store_dwordx4 v[{OUT}:{OUT+3}], v14, s[8:11], s43 offen sc1")
    for c in range(3):
        lg.wait(('W', 8, c))
        mm(8, c, f"v[{STG+8*c}:{STG+8*c+7}]")
        rdWo(9, c, c)
    for s_ in epi([4, 5, 6, 7], OUT + 4): k(s_)
    k("s_add_u32 s49, s43, 32768")
    k(f"buffer_store_dwordx4 v[{OUT+4}:{OUT+7}], v14, s[8:11], s49 offen sc1")
    for c in range(3):
        lg.wait(('W', 9, c))
        mm(9, c, f"v[{STG+8*c}:{STG+8*c+7}]")
    o = OUT + 8
    for r in range(4): k(f"v_permlane32_swap_b32 v{acc(8)+r}, v{acc(9)+r}")
    for r in range(4): k(f"v_add_f32 v{acc(8)+r}, v{acc(8)+r}, v{acc(9)+r}")
    k(f"v_cvt_pk_bf16_f32 v{o}, v{acc(8)}, v{acc(8)+1}")
    k(f"v_cvt_pk_bf16_f32 v{o+1}, v{acc(8)+2}, v{acc(8)+3}")
    k(f"v_mov_b32 v{o+2}, v{o}")
    k(f"v_mov_b32 v{o+3}, v{o+1}")
    k(f"v_permlane16_swap_b32 v{o}, v{o+2}")
    k(f"v_permlane16_swap_b32 v{o+1}, v{o+3}")
    for r in range(4): k(f"v_min_u32 v{o+r}, -2, v{o+r}")
    k(f"buffer_store_dwordx4 v[{o}:{o+3}], v15, s[8:11], s43 offen sc1")
    stamp(k, 4)
    stamp_out(k, 6, 46)
    k("s_add_u32 s40, s40, 1")
    for sreg in ('s43', 's47', 's45'): k(f"s_add_u32 {sreg}, {sreg}, {SYNC_STEP}")
    k("s_cmp_lt_u32 s40, 64")
    k(f"s_cbranch_scc1 {k.ref('v_step')}")
    event(k, 3, 64)
    next_layer(k, 'v_layer')

def role_V2(k):
    L_M, L_V, L_WO, L_ST = 0, 10240, 16384, 16384 + 73728
    RS1, RS2 = 400, 656
    MA, VACC, VA, STG = 16, 56, 68, 80
    def wv(t, c): return 'a', t * 80 + c * 8
    def wo(t, c):
        i = t * 3 + c
        if i < 2: return 'a', 240 + 8 * i
        return 'v', 104 + 8 * (i - 2)
    k("s_sub_u32 s44, s2, 32")
    k.ptr(KA_WV, 6); k.ptr(KA_WO, 24); k.ptr(KA_MEM0, 26)
    k("s_waitcnt lgkmcnt(0)")
    k.srd(12, 6, D * HD * 2); k.srd(16, 24, D * HD * 2); k.srd(20, 26, 8 * 640 * 2)
    GO, LO, DAT = 4, 10, 24
    stage_offsets(k, 6, 24, HD * 2, RS1, L_ST, GO, LO, 16)
    tr_base(k, 16, RS1, L_ST, 17)
    k("s_mul_i32 s24, s3, 96")
    k("v_add_u32 v16, s24, v16")
    k(f"s_mul_i32 s45, s44, 384")
    def loads(c):
        d = DAT + 24 * (c % 3)
        k(f"s_add_u32 s46, s45, {c * 64 * HD * 2}")
        for i in range(6):
            k(f"buffer_load_dwordx4 v[{d+4*i}:{d+4*i+3}], v{GO+i}, s[12:15], s46 offen")
    loads(0); loads(1)
    for c in range(10):
        d = DAT + 24 * (c % 3)
        k(f"s_waitcnt vmcnt({6 if c + 1 < 10 else 0})")
        for i in range(6): k(f"ds_write_b128 v{LO+i}, v[{d+4*i}:{d+4*i+3}]")
        if c + 2 < 10: loads(c + 2)
        k("s_waitcnt lgkmcnt(0)")
        k("s_barrier")
        for t in range(3):
            kind, r = wv(t, c)
            tr_frag(k, r, kind, 16, RS1, 32 * t)
        k("s_waitcnt lgkmcnt(0)")
        k("s_barrier")
    GO, LO, DAT = 4, 14, 24
    stage_offsets(k, 10, 40, 1280, RS2, L_ST, GO, LO, 64)
    tr_base(k, 72, RS2, L_ST, 64)
    k("s_and_b32 s24, s3, 1"); k("s_mul_i32 s24, s24, 320")
    k("v_add_u32 v72, s24, v72")
    k("v_lshlrev_b32 v73, 4, v1")
    k(f"s_mul_i32 s24, s3, 18432"); k(f"s_add_u32 s24, s24, {L_WO}")
    k("v_add_u32 v73, s24, v73")
    k(f"s_mul_i32 s45, s44, {192*1280}")
    for c in range(3):
        for hf in range(2):
            k(f"s_add_u32 s46, s45, {c*64*1280 + hf*640}")
            for i in range(10):
                k(f"buffer_load_dwordx4 v[{DAT+4*i}:{DAT+4*i+3}], v{GO+i}, s[16:19], s46 offen")
            k("s_waitcnt vmcnt(0)")
            for i in range(10): k(f"ds_write_b128 v{LO+i}, v[{DAT+4*i}:{DAT+4*i+3}]")
            k("s_waitcnt lgkmcnt(0)")
            k("s_barrier")
            l = k.new('wo')
            k("s_lshr_b32 s24, s3, 1")
            k(f"s_cmp_eq_u32 s24, {hf}")
            k(f"s_cbranch_scc0 {k.ref(l)}")
            for t in range(10):
                if t < 7:
                    kind, r = wo(t, c)
                    tr_frag(k, r, kind, 72, RS2, 32 * t)
                else:
                    tr_frag(k, 64, 'v', 72, RS2, 32 * t)
                    k("s_waitcnt lgkmcnt(0)")
                    o = ((t - 7) * 3 + c) * 2048
                    k(f"ds_write_b128 v73, v[64:67] offset:{o}")
                    k(f"ds_write_b128 v73, v[68:71] offset:{o+1024}")
                    k("s_waitcnt lgkmcnt(0)")
            k("s_waitcnt lgkmcnt(0)")
            k.lab(l)
            k("s_barrier")
    k("v_mov_b32 v6, v73")
    k("v_mov_b32 v4, 0x4444"); k("v_mov_b32 v5, 0xeeee")
    k("v_cmp_gt_u32 vcc, 8, v2")
    k("v_cndmask_b32 v4, v5, v4, vcc")
    k("v_lshlrev_b32 v5, 4, v1")
    k("s_lshl_b32 s24, s3, 10")
    k("v_add_u32 v7, s24, v5")
    k("s_lshl_b32 s24, s3, 9"); k("s_add_u32 s24, s24, 8192")
    k("v_lshlrev_b32 v8, 3, v1")
    k("v_add_u32 v8, s24, v8")
    k("v_and_b32 v64, 7, v2"); k("v_lshlrev_b32 v9, 5, v64")
    k("v_lshrrev_b32 v64, 3, v2"); k("v_lshl_add_u32 v9, v64, 4, v9")
    k("v_and_b32 v64, 1, v3"); k("v_lshl_add_u32 v9, v64, 3, v9")
    k(f"s_mul_i32 s24, s3, 768"); k(f"s_add_u32 s24, s24, {L_V}")
    k("v_add_u32 v9, s24, v9")
    k("v_lshrrev_b32 v65, 1, v3")
    k("v_lshl_add_u32 v10, v65, 8, v9")
    k("v_lshrrev_b32 v64, 2, v2"); k("v_lshlrev_b32 v11, 5, v64")
    k("v_and_b32 v64, 3, v2"); k("v_lshl_add_u32 v11, v64, 3, v11")
    k("v_lshl_add_u32 v11, v3, 8, v11")
    k(f"v_add_u32 v11, {L_V}, v11")
    k("s_mul_i32 s24, s3, 10"); k("s_lshl_b32 s24, s24, 13"); k("s_lshl_b32 s25, s44, 8"); k("s_add_u32 s24, s24, s25")
    k("v_lshlrev_b32 v14, 13, v3")
    k("v_lshl_add_u32 v14, v2, 4, v14")
    k("v_add_u32 v14, s24, v14")
    k("v_lshrrev_b32 v64, 1, v3")
    k("v_lshlrev_b32 v15, 13, v64")
    k("v_lshl_add_u32 v15, v2, 4, v15")
    k("v_add_u32 v15, s24, v15")
    k(f"v_add_u32 v15, {8*8192}, v15")
    k("v_and_b32 v64, 1, v3")
    k("v_cmp_eq_u32 vcc, 0, v64")
    k(f"v_mov_b32 v64, {OOB}")
    k("v_cndmask_b32 v15, v64, v15, vcc")
    aprobe_addr(k, 12, 's2', RH_M)
    k("v_mov_b32 v0, 1")
    event(k, 1, 64)
    k.lab('v_layer')
    layer_bases(k)
    m0_image(k, 20, 64)
    k("s_mov_b32 s40, 0")
    k(f"s_add_u32 s43, s93, {O_VOM}")
    k(f"s_add_u32 s47, s93, {O_MB - SYNC_STEP}")
    k(f"s_add_u32 s45, s93, {O_HR - SYNC_STEP}")
    ensure_clear(k, 'v_ec0', 64, 's40')
    for r in range(16, 68): k(f"v_mov_b32 v{r}, 0")
    k("s_waitcnt lgkmcnt(0)")
    k("s_barrier")
    k("ds_read_b128 v[68:71], v7"); k("ds_read_b128 v[72:75], v7 offset:4096")
    k("s_waitcnt lgkmcnt(0)")
    for w in range(3):
        k(f"s_cmp_eq_u32 s3, {w}"); k(f"s_cbranch_scc1 {k.ref('v_gow' + str(w))}")
    k(f"s_branch {k.ref('v_gow3')}")
    SMF = "v_smfmac_f32_16x16x64_bf16"
    def loop(w):
        sf = 'w' + str(w)
        k.lab('v_step' + sf)
        stamp(k, 0)
        for r in range(16, 68): k(f"v_mov_b32 v{r}, 0")
        loads_ = [f"buffer_load_dwordx4 v[68:71], v7, s[8:11], s47 offen sc1",
                  f"buffer_load_dwordx4 v[72:75], v7, s[8:11], s48 offen sc1",
                  f"buffer_load_dwordx2 v[76:77], v8, s[8:11], s47 offen sc1"]
        k("s_add_u32 s48, s47, 4096")
        ensure_clear(k, 'v_ec' + sf, 78, 's40')
        aprobe(k, 'v_pr' + sf, 12, 's45', CFG['tgt_m'], [80, 81, 82, 83], CFG['pd_m'], CFG['pdep'], CFG['dly_v'])
        stamp(k, 5)
        for l in loads_: k(l)
        shot_check(k, 'v_pm' + sf, loads_, range(68, 78), 104 - 1, 0, CFG['sl_m'])
        stamp(k, 1)
        k(f"ds_write_b128 v7, v[68:71]")
        k(f"ds_write_b128 v7, v[72:75] offset:4096")
        k(f"ds_write_b64 v8, v[76:77]")
        k.lab('v_go' + sf)
        lg = LG(k)
        own = [w, 4 + w]; oth = [c for c in range(10) if c not in own]
        SL = [80, 84, 88, 92, 96, 100, 76, 68]
        def rdA(j):
            lg.issue(('A', j), f"ds_read_b128 v[{SL[j]}:{SL[j]+3}], v5 offset:{oth[j]*1024}")
        def sm(t, c, a):
            kind, r = wv(t, c)
            k(f"{SMF} v[{VACC+4*t}:{VACC+4*t+3}], v[{a}:{a+3}], {kind}[{r}:{r+7}], v4")
        for t in range(3): sm(t, own[0], 68)
        k("s_waitcnt lgkmcnt(0)")
        k("s_barrier")
        for j in range(8): rdA(j)
        for t in (2, 0, 1): sm(t, own[1], 72)
        for j in range(8):
            lg.wait(('A', j)); sm(2, oth[j], SL[j])
        E = [None] * 5
        E += [f"v_mov_b32 v{72+r}, v{VACC+8+r}" for r in range(4)] + [None]
        E += [f"v_permlane32_swap_b32 v{VACC+8+r}, v{72+r}" for r in range(4)]
        E += [f"v_add_f32 v{VACC+8+r}, v{VACC+8+r}, v{72+r}" for r in range(4)]
        E += [f"v_cvt_pk_bf16_f32 v72, v{VACC+8}, v{VACC+9}", f"v_cvt_pk_bf16_f32 v73, v{VACC+10}, v{VACC+11}"]
        E += [('x', f"ds_write_b64 v9, v[72:73] offset:512")]
        def extra(n):
            for _ in range(n):
                if E:
                    t_ = E.pop(0)
                    if isinstance(t_, tuple): lg.issue(*t_)
                    elif t_: k(t_)
        for j in range(8):
            sm(0, oth[j], SL[j]); extra(2)
            sm(1, oth[j], SL[j]); extra(2)
        extra(100)
        stamp(k, 2)
        for r in range(4): k(f"v_permlane32_swap_b32 v{VACC+r}, v{VACC+4+r}")
        for r in range(4): k(f"v_add_f32 v{VACC+r}, v{VACC+r}, v{VACC+4+r}")
        k(f"v_cvt_pk_bf16_f32 v{VA}, v{VACC}, v{VACC+1}")
        k(f"v_cvt_pk_bf16_f32 v{VA+1}, v{VACC+2}, v{VACC+3}")
        lg.issue('x', f"ds_write_b64 v10, v[{VA}:{VA+1}]")
        lg.all()
        k("s_barrier")
        for c in range(3):
            lg.issue(('V', c), f"ds_read_b64_tr_b16 v[{VA+4*c}:{VA+4*c+1}], v11 offset:{c*1024}")
            lg.issue(('V', c), f"ds_read_b64_tr_b16 v[{VA+4*c+2}:{VA+4*c+3}], v11 offset:{c*1024+128}")
        def rdWo(t, c, slot):
            b = STG + 8 * slot; o = ((t - 7) * 3 + c) * 2048
            lg.issue(('W', t, c), f"ds_read_b128 v[{b}:{b+3}], v6 offset:{o}")
            lg.issue(('W', t, c), f"ds_read_b128 v[{b+4}:{b+7}], v6 offset:{o+1024}")
        for c in range(3): rdWo(7, c, c)
        stamp(k, 3)
        acc = lambda t: MA + 4 * t
        def mm(t, c, B):
            k(f"{SMF} v[{acc(t)}:{acc(t)+3}], v[{VA+4*c}:{VA+4*c+3}], {B}, v4")
        def B_reg(t, c):
            kind, r = wo(t, c); return f"{kind}[{r}:{r+7}]"
        OUT = 56
        def epi(T, o):
            L = []
            t0, t1, t2, t3 = T
            for (x, y) in ((t0, t2), (t1, t3)):
                for r in range(4): L.append(f"v_permlane32_swap_b32 v{acc(x)+r}, v{acc(y)+r}")
                for r in range(4): L.append(f"v_add_f32 v{acc(x)+r}, v{acc(x)+r}, v{acc(y)+r}")
            L.append(f"v_cvt_pk_bf16_f32 v{o}, v{acc(t0)}, v{acc(t0)+1}")
            L.append(f"v_cvt_pk_bf16_f32 v{o+1}, v{acc(t0)+2}, v{acc(t0)+3}")
            L.append(f"v_cvt_pk_bf16_f32 v{o+2}, v{acc(t1)}, v{acc(t1)+1}")
            L.append(f"v_cvt_pk_bf16_f32 v{o+3}, v{acc(t1)+2}, v{acc(t1)+3}")
            L.append(None)
            L.append(f"v_permlane16_swap_b32 v{o}, v{o+2}")
            L.append(f"v_permlane16_swap_b32 v{o+1}, v{o+3}")
            for r in range(4): L.append(f"v_min_u32 v{o+r}, -2, v{o+r}")
            return L
        for c in range(3):
            lg.wait(('V', c))
            for t in range(4): mm(t, c, B_reg(t, c))
        E += [None, None] + epi([0, 1, 2, 3], OUT) + [f"buffer_store_dwordx4 v[{OUT}:{OUT+3}], v14, s[8:11], s43 offen sc1"]
        for c in range(3):
            for t in (4, 5, 6): mm(t, c, B_reg(t, c)); extra(2)
            lg.wait(('W', 7, c))
            mm(7, c, f"v[{STG+8*c}:{STG+8*c+7}]"); extra(2)
            rdWo(8, c, c)
        extra(100)
        k("s_add_u32 s49, s43, 32768")
        E += [None] + epi([4, 5, 6, 7], OUT + 4) + [f"buffer_store_dwordx4 v[{OUT+4}:{OUT+7}], v14, s[8:11], s49 offen sc1"]
        for c in range(3):
            lg.wait(('W', 8, c))
            mm(8, c, f"v[{STG+8*c}:{STG+8*c+7}]"); extra(CFG['v_x8'])
            rdWo(9, c, c)
        extra(CFG['v_x9'])
        for c in range(3):
            lg.wait(('W', 9, c))
            mm(9, c, f"v[{STG+8*c}:{STG+8*c+7}]"); extra(3)
        extra(100)
        o = OUT + 8
        for r in range(4): k(f"v_permlane32_swap_b32 v{acc(8)+r}, v{acc(9)+r}")
        for r in range(4): k(f"v_add_f32 v{acc(8)+r}, v{acc(8)+r}, v{acc(9)+r}")
        k(f"v_cvt_pk_bf16_f32 v{o}, v{acc(8)}, v{acc(8)+1}")
        k(f"v_cvt_pk_bf16_f32 v{o+1}, v{acc(8)+2}, v{acc(8)+3}")
        k(f"v_mov_b32 v{o+2}, v{o}")
        k(f"v_mov_b32 v{o+3}, v{o+1}")
        k(f"v_permlane16_swap_b32 v{o}, v{o+2}")
        k(f"v_permlane16_swap_b32 v{o+1}, v{o+3}")
        for r in range(4): k(f"v_min_u32 v{o+r}, -2, v{o+r}")
        k(f"buffer_store_dwordx4 v[{o}:{o+3}], v15, s[8:11], s43 offen sc1")
        stamp(k, 4)
        stamp_out(k, 6, 46)
        k("s_add_u32 s40, s40, 1")
        for sreg in ('s43', 's47', 's45'): k(f"s_add_u32 {sreg}, {sreg}, {SYNC_STEP}")
        k("s_cmp_lt_u32 s40, 64")
        k(f"s_cbranch_scc1 {k.ref('v_step' + sf)}")
        if w < 3: k(f"s_branch {k.ref('v_end')}")
    for w in range(4): loop(w)
    k.lab('v_end')
    event(k, 3, 64)
    next_layer(k, 'v_layer')

def role_R(k):
    BX, BN, PX, PM, VM, A1, A2 = 16, 48, 80, 96, 100, 108, 112
    TQ = 204
    k.lab('r_top')
    k("s_barrier")
    lk = k.new('rk')
    k("s_sub_u32 s24, s2, 64")
    k("s_cmp_ge_u32 s24, 24"); k(f"s_cbranch_scc1 {k.ref(lk)}")
    k("s_and_b32 s44, s24, 7"); k("s_lshr_b32 s45, s24, 3")
    k("s_cmp_eq_u32 s92, 0"); k("s_cselect_b32 s46, 32, 2")
    A.role_K2(k, Hooks())
    event(k, 5, 14)
    k.lab(lk)
    k("s_sub_u32 s44, s2, 64")
    k("v_lshlrev_b32 v5, 4, v1")
    k("s_lshl_b32 s24, s44, 15"); k("s_lshl_b32 s25, s3, 13"); k("s_add_u32 s24, s24, s25")
    k("v_add_u32 v6, s24, v5")
    k("v_add_u32 v7, 4096, v6")
    k("s_lshl_b32 s24, s3, 12")
    k("v_add_u32 v8, s24, v5")
    k("s_lshl_b32 s24, s3, 10"); k("s_add_u32 s24, s24, 16384")
    k("v_add_u32 v9, s24, v5")
    k("s_lshl_b32 s24, s44, 13"); k("s_lshl_b32 s25, s3, 11"); k("s_add_u32 s24, s24, s25")
    k("v_add_u32 v10, s24, v5")
    k(f"v_and_b32 v{TQ}, 7, v2"); k(f"v_mul_u32_u24 v11, 80, v{TQ}")
    k("v_lshl_add_u32 v11, v3, 4, v11")
    k("s_mul_i32 s24, s3, 640")
    k("v_add_u32 v11, s24, v11")
    k(f"v_add_u32 v{TQ}, 8192, v5")
    k("v_cmp_gt_u32 vcc, 8, v2")
    k(f"v_cndmask_b32 v11, v{TQ}, v11, vcc")
    k(f"v_and_b32 v{TQ}, 7, v2"); k(f"v_mul_u32_u24 v12, 80, v{TQ}")
    k(f"v_lshrrev_b32 v{TQ}, 3, v2"); k(f"v_lshl_add_u32 v12, v{TQ}, 5, v12")
    k("v_lshlrev_b32 v13, 4, v2")
    k("s_lshl_b32 s24, s44, 8")
    k("v_add_u32 v13, s24, v13")
    k(f"v_mov_b32 v{TQ}, {OOB}")
    k(f"v_cmp_gt_u32 vcc, 1, v3")
    k(f"v_cndmask_b32 v13, v{TQ}, v13, vcc")
    k("v_cmp_le_u32 s[50:51], 8, v2")
    k("s_and_b32 s25, s44, 15"); k("s_lshr_b32 s25, s25, 2")
    k("s_sub_u32 s26, s44, 32"); k("s_lshr_b32 s26, s26, 1")
    k("s_cmp_ge_u32 s44, 32"); k("s_cselect_b32 s25, s26, s25")
    ahint_addr(k, 120, TQ, 's25', RH_M, False)
    aprobe_addr(k, 125, 's44', RH_P)
    k("v_mov_b32 v122, 12288")
    k("v_mov_b32 v123, 0")
    k("s_barrier")
    k("ds_write_b32 v122, v123")
    k("v_mov_b32 v123, 1")
    k("s_waitcnt lgkmcnt(0)")
    k("s_barrier")
    layer_bases(k)
    k("s_mov_b32 s40, 0")
    k(f"s_mov_b32 s41, {WS_VOX}")
    k(f"s_add_u32 s45, s93, {O_HS}")
    k(f"s_add_u32 s46, s93, {O_HR}")
    k(f"s_add_u32 s43, s93, {O_PB}")
    k(f"s_add_u32 s42, s93, {O_VOM}")
    k(f"s_add_u32 s47, s93, {O_MB}")
    if CFG['rv_off']:
        k("s_cmp_eq_u32 s92, 1"); k(f"s_cselect_b32 s24, {OOB}, 0"); k("v_or_b32 v6, s24, v6"); k("v_or_b32 v7, s24, v7")
    def vox_loads():
        for q in range(4):
            k(f"buffer_load_dwordx4 v[{BN+4*q}:{BN+4*q+3}], v6, s[8:11], s41 offen offset:{q*1024} sc1")
        for q in range(4):
            k(f"buffer_load_dwordx4 v[{BN+16+4*q}:{BN+16+4*q+3}], v7, s[8:11], s41 offen offset:{q*1024} sc1")
        k(f"s_add_u32 s41, s41, {VOX_SEG}")
    k("v_and_b32 v252, 7, v1")
    k("v_lshlrev_b32 v252, 7, v252")
    k(f"s_lshl_b32 s24, s3, 10"); k(f"s_add_u32 s24, s24, {3*4096}"); k("s_add_u32 s24, s24, s94")
    k("v_add_u32 v252, s24, v252")
    k("s_mov_b32 s62, -1"); k("s_mov_b32 s63, 1")
    ensure(k, 'r_en0', 8, 252, 253)
    vox_loads()
    event(k, 2, 204)
    k.lab('r_step')
    k("s_waitcnt vmcnt(0)")
    for r in range(32): k(f"v_mov_b32 v{BX+r}, v{BN+r}")
    stamp(k, 0)
    loads_ = [f"buffer_load_dwordx4 v[{PX+4*q}:{PX+4*q+3}], v8, s[8:11], s43 offen offset:{q*1024} sc1" for q in range(4)]
    loads_ += [f"buffer_load_dwordx4 v[{PM}:{PM+3}], v9, s[8:11], s43 offen sc1"]
    loads_ += [f"buffer_load_dwordx4 v[{VM+4*q}:{VM+4*q+3}], v10, s[8:11], s42 offen offset:{q*1024} sc1" for q in range(2)]
    ensure_clear(k, 'r_ec', 253, 's40')
    aprobe(k, 'r_pr', 125, 's45', CFG['tgt_p'], [116, 117, 118, 119], CFG['pd_p'], CFG['pdep'], CFG['dly_p'])
    stamp(k, 4)
    loads_ = loads_[5:] + loads_[:5]
    for l in loads_: k(l)
    if CFG['hr_pos'] == 0:
        k("s_mov_b64 exec, 1")
        k("ds_add_rtn_u32 v124, v122, v123")
        k("s_mov_b64 exec, -1")
        if CFG['dly_hr']: k(f"s_sleep {CFG['dly_hr']}")
        k("s_waitcnt lgkmcnt(0)")
        k("v_readfirstlane_b32 s24, v124")
        k("s_and_b32 s24, s24, 3")
        k("s_cmp_eq_u32 s24, 3"); k(f"s_cselect_b32 s24, 0, {OOB}")
        k("v_or_b32 v126, s24, v120")
        ahint(k, 126, 123, 's46')
    shot_check(k, 'r_p', loads_, range(PX, VM + 8), TQ, 1 if CFG['hr_pos'] == 0 else 0, CFG['sl_p'])
    if CFG['hr_pos'] == 1:
        k("s_mov_b64 exec, 1")
        k("ds_add_rtn_u32 v124, v122, v123")
        k("s_mov_b64 exec, -1")
    stamp(k, 1)
    k(f"v_mfma_f32_16x16x32_bf16 v[{A1}:{A1+3}], v[{VM}:{VM+3}], v[{PM}:{PM+3}], 0")
    k(f"v_mfma_f32_16x16x32_bf16 v[{A2}:{A2+3}], v[{VM+4}:{VM+7}], v[{PM}:{PM+3}], 0")
    for q in range(4):
        k(f"v_mfma_f32_16x16x32_bf16 v[{A1}:{A1+3}], v[{BX+8*q}:{BX+8*q+3}], v[{PX+4*q}:{PX+4*q+3}], v[{A1}:{A1+3}]")
        k(f"v_mfma_f32_16x16x32_bf16 v[{A2}:{A2+3}], v[{BX+8*q+4}:{BX+8*q+7}], v[{PX+4*q}:{PX+4*q+3}], v[{A2}:{A2+3}]")
        if q == 0 and CFG['hr_pos'] == 1:
            lh = k.new('nh')
            k("s_waitcnt lgkmcnt(0)")
            k("v_readfirstlane_b32 s24, v124")
            k("s_and_b32 s24, s24, 3")
            k(f"s_cmp_eq_u32 s24, {CFG['hr_wave']}")
            k(f"s_cbranch_scc0 {k.ref(lh)}")
            ahint(k, 120, 123, 's46')
            k.lab(lh)
    k("s_and_b32 s24, s40, 1"); k("s_mul_i32 s24, s24, 2560")
    k("v_add_u32 v14, s24, v11")
    k("v_add_u32 v15, s24, v12")
    for r in range(4): k(f"v_cndmask_b32 v{A1+r}, v{A1+r}, v{A2+r}, s[50:51]")
    for r in range(4): k(f"v_add_f32 v{A1+r}, v{A1+r}, v{A1+r} row_ror:8 row_mask:0xf bank_mask:0xf")
    k(f"ds_write_b128 v14, v[{A1}:{A1+3}]")
    k("s_waitcnt lgkmcnt(0)")
    k("s_barrier")
    stamp(k, 2)
    l = k.new('np')
    k("s_cmp_eq_u32 s3, 0")
    k(f"s_cbranch_scc0 {k.ref(l)}")
    Q0 = 220
    sum4x8(k, Q0, 15, 640)
    for q in range(4): k(f"v_cvt_pk_bf16_f32 v{Q0+8+q}, v{Q0+2*q}, v{Q0+2*q+1}")
    for q in range(4): k(f"v_min_u32 v{Q0+8+q}, -2, v{Q0+8+q}")
    k(f"buffer_store_dwordx4 v[{Q0+8}:{Q0+11}], v13, s[8:11], s47 offen sc1")
    k.lab(l)
    stamp(k, 3)
    k("s_add_u32 s63, s40, 2"); k("s_min_u32 s63, s63, 64")
    if CFG['dly_vox']: k(f"s_sleep {CFG['dly_vox']}")
    ensure(k, 'r_en', 8, 252, 253)
    vox_loads()
    stamp(k, 5)
    stamp_out(k, 6, TQ)
    k("s_add_u32 s40, s40, 1")
    for sreg in ('s42', 's43', 's47', 's45', 's46'): k(f"s_add_u32 {sreg}, {sreg}, {SYNC_STEP}")
    k("s_cmp_lt_u32 s40, 64")
    k(f"s_cbranch_scc1 {k.ref('r_step')}")
    k("s_waitcnt vmcnt(0)")
    event(k, 3, 204)
    next_layer(k, 'r_top')
def flag_pub(k, val):
    l = k.new('fp')
    k("s_cmp_eq_u32 s3, 0")
    k(f"s_cbranch_scc0 {k.ref(l)}")
    k(f"v_mov_b32 v15, {val}")
    k("buffer_store_dword v15, v14, s[8:11], 0 offen sc1")
    k.lab(l)

def flag_addr(k, role_sreg_or_const):
    if isinstance(role_sreg_or_const, int): k(f"s_mov_b32 s24, {role_sreg_or_const * 4096}")
    else: k(f"s_lshl_b32 s24, {role_sreg_or_const}, 12")
    k("s_lshl_b32 s25, s44, 7"); k("s_add_u32 s24, s24, s25"); k(f"s_add_u32 s24, s24, s94")
    k("v_mov_b32 v14, s24")
    k(f"v_mov_b32 v15, {OOB}")
    k("v_cmp_eq_u32 vcc, 0, v1")
    k("v_cndmask_b32 v14, v15, v14, vcc")

X_L_O = 83968
def x_init(k):
    TQ = 192
    k("s_sub_u32 s70, s2, 104")
    k("s_mul_i32 s71, s70, 205"); k("s_lshr_b32 s71, s71, 12")
    k("s_mul_i32 s24, s71, 20"); k("s_sub_u32 s70, s70, s24")
    k("s_cmp_lt_u32 s71, 4"); k("s_cselect_b32 s64, s71, 64")
    if CFG['x_off']: k("s_cmp_eq_u32 s92, 1"); k("s_cselect_b32 s64, 64, s64")
    k("s_lshl_b32 s24, s70, 16"); k("s_lshl_b32 s25, s3, 13"); k("s_add_u32 s24, s24, s25")
    k("v_add_u32 v240, s24, v5")
    k("v_add_u32 v241, 4096, v240")
    k("s_lshl_b32 s24, s70, 14"); k("s_lshl_b32 s25, s3, 11"); k("s_add_u32 s24, s24, s25")
    k("v_add_u32 v242, s24, v5")
    k("s_lshl_b32 s24, s3, 14")
    k(f"v_add_u32 v{TQ+1}, s24, v5")
    for jj in range(4): k(f"v_add_u32 v{212+jj}, {jj*4096}, v{TQ+1}")
    k("s_lshl_b32 s24, s3, 12"); k("s_add_u32 s24, s24, 65536")
    k("v_add_u32 v216, s24, v5")
    k(f"s_lshl_b32 s24, s3, 12"); k(f"s_add_u32 s24, s24, {X_L_O}")
    k("v_add_u32 v217, s24, v5")
    k(f"s_and_b32 s24, s3, 1"); k("s_lshl_b32 s24, s24, 10"); k(f"s_add_u32 s24, s24, {X_L_O}")
    k("v_add_u32 v218, s24, v5")
    k("s_and_b32 s24, s3, 1"); k("s_mul_i32 s24, s24, 20480"); k("s_lshl_b32 s25, s70, 10"); k("s_add_u32 s24, s24, s25")
    k("v_add_u32 v219, s24, v5")
    k("s_and_b32 s24, s3, 1"); k("s_lshl_b32 s24, s24, 4")
    k("v_add_u32 v243, s24, v2")
    k("v_mul_u32_u24 v243, 1280, v243")
    k("v_lshl_add_u32 v243, v3, 3, v243")
    k("s_lshl_b32 s24, s70, 6")
    k("v_add_u32 v243, s24, v243")
    k.ptr(KA_OUT, 26); k("s_waitcnt lgkmcnt(0)"); k.srd(12, 26, S * D * 2)
    k(f"s_mul_i32 s65, s71, {VOX_SEG}"); k(f"s_add_u32 s65, s65, {WS_VOX}")
    k(f"s_mul_i32 s24, s71, {SYNC_STEP}"); k("s_add_u32 s24, s24, s93")
    k(f"s_add_u32 s66, s24, {O_VOM}"); k(f"s_add_u32 s67, s24, {O_PX}")
    k(f"s_mul_i32 s68, s71, 40960")
    k("v_and_b32 v252, 7, v1")
    k("v_lshlrev_b32 v252, 7, v252")
    k(f"s_lshl_b32 s24, s3, 10"); k(f"s_add_u32 s24, s24, {3*4096}"); k("s_add_u32 s24, s24, s94")
    k("v_add_u32 v252, s24, v252")
    k("s_mov_b32 s69, -1")
    k("s_lshl_b32 s24, s71, 7"); k("s_lshl_b32 s25, s70, 2"); k("s_add_u32 s24, s24, s25"); k(f"s_add_u32 s24, s24, {WS_FLG + F_X}")
    k("s_cmp_eq_u32 s3, 0"); k(f"s_cselect_b32 s24, s24, {OOB}")
    k("v_mov_b32 v245, s24"); k(f"v_mov_b32 v246, {OOB}"); k("v_cmp_eq_u32 vcc, 0, v1"); k("v_cndmask_b32 v245, v246, v245, vcc")
    k("s_mov_b32 s79, -1")

def x_pending(k):
    k("s_cmp_ge_i32 s79, 0"); k(f"s_cselect_b32 s24, 0, {OOB}")
    k("v_or_b32 v246, s24, v245"); k("v_mov_b32 v247, s79")
    k("buffer_store_dword v247, v246, s[8:11], 0 offen sc1")
    k("s_mov_b32 s79, -1")

def x_iter(k):
    BX, XP, XM, VM, OA, TQ, RES, Q0 = 16, 80, 144, 160, 176, 192, 196, 16
    k("s_add_u32 s63, s64, 1")
    ensure(k, 'x_en', 8, 252, 253, known='s69')
    ensure_clear(k, 'x_ec', 253, 's64')
    k("s_add_u32 s52, s65, 32768")
    for rr in range(2):
        so = 's65' if rr == 0 else 's52'
        for q in range(8):
            r = BX + rr * 32 + 4 * q
            k(f"buffer_load_dwordx4 v[{r}:{r+3}], v{240 + q//4}, s[8:11], {so} offen offset:{(q%4)*1024} sc1")
    k("s_add_u32 s24, s68, s73")
    k(f"buffer_load_dwordx4 v[{RES}:{RES+3}], v219, s[8:11], s24 offen sc1")
    loads_ = []
    for j in range(8):
        for tt in range(2):
            r = XP + (j * 2 + tt) * 4
            loads_.append(f"buffer_load_dwordx4 v[{r}:{r+3}], v{212 + j//2}, s[8:11], s67 offen offset:{(j%2)*2048 + tt*1024} sc1")
    for q in range(2):
        for tt in range(2):
            r = XM + (q * 2 + tt) * 4
            loads_.append(f"buffer_load_dwordx4 v[{r}:{r+3}], v216, s[8:11], s67 offen offset:{q*2048 + tt*1024} sc1")
    poll(k, 'x_p0', loads_[15:16], range(XP + 60, XP + 64), TQ, CFG['sl_x0'], 0)
    k("s_add_u32 s53, s66, 8192")
    for rr in range(2):
        so = 's66' if rr == 0 else 's53'
        for q in range(2):
            r = VM + rr * 8 + 4 * q
            loads_.append(f"buffer_load_dwordx4 v[{r}:{r+3}], v242, s[8:11], {so} offen offset:{q*1024} sc1")
    poll(k, 'x_p1', loads_, range(XP, VM + 16), TQ, CFG['sl_x'], 0)
    oa = lambda rr, tt: OA + (rr * 2 + tt) * 4
    for j in range(8):
        for rr in range(2):
            for tt in range(2):
                a = oa(rr, tt); r = XP + (j * 2 + tt) * 4; b = BX + rr * 32 + 4 * j
                c = f"v[{a}:{a+3}]" if j else "0"
                k(f"v_mfma_f32_16x16x32_bf16 v[{a}:{a+3}], v[{b}:{b+3}], v[{r}:{r+3}], {c}")
    for q in range(2):
        for rr in range(2):
            for tt in range(2):
                a = oa(rr, tt); b = VM + rr * 8 + 4 * q; r = XM + (q * 2 + tt) * 4
                k(f"v_mfma_f32_16x16x32_bf16 v[{a}:{a+3}], v[{b}:{b+3}], v[{r}:{r+3}], v[{a}:{a+3}]")
    for t in range(4): k(f"ds_write_b128 v217, v[{OA+4*t}:{OA+4*t+3}] offset:{t*1024}")
    k("s_waitcnt lgkmcnt(0)")
    k("s_barrier")
    lskip = k.new('xs')
    k("s_cmp_ge_u32 s3, 2"); k(f"s_cbranch_scc1 {k.ref(lskip)}")
    for rr in range(2):
        for w in range(4): k(f"ds_read_b128 v[{Q0+16*rr+4*w}:{Q0+16*rr+4*w+3}], v218 offset:{w*4096 + rr*2048}")
    O = 48
    for rr in range(2):
        q = Q0 + 16 * rr
        k(f"s_waitcnt lgkmcnt({4 if rr == 0 else 0})")
        for r in range(0, 4, 2):
            k(f"v_pk_add_f32 v[{q+r}:{q+r+1}], v[{q+r}:{q+r+1}], v[{q+4+r}:{q+4+r+1}]")
            k(f"v_pk_add_f32 v[{q+8+r}:{q+8+r+1}], v[{q+8+r}:{q+8+r+1}], v[{q+12+r}:{q+12+r+1}]")
        for r in range(0, 4, 2):
            k(f"v_pk_add_f32 v[{q+r}:{q+r+1}], v[{q+r}:{q+r+1}], v[{q+8+r}:{q+8+r+1}]")
        k(f"v_cvt_pk_bf16_f32 v{q+4}, v{q}, v{q+1}")
        k(f"v_cvt_pk_bf16_f32 v{q+5}, v{q+2}, v{q+3}")
        for h in range(2):
            k(f"v_lshlrev_b32 v{q}, 16, v{q+4+h}")
            k(f"v_and_b32 v{q+1}, 0xffff0000, v{q+4+h}")
            k(f"v_lshlrev_b32 v{q+6}, 16, v{RES+2*rr+h}")
            k(f"v_and_b32 v{q+7}, 0xffff0000, v{RES+2*rr+h}")
            k(f"v_pk_add_f32 v[{q}:{q+1}], v[{q}:{q+1}], v[{q+6}:{q+7}]")
            k(f"v_cvt_pk_bf16_f32 v{O+2*rr+h}, v{q}, v{q+1}")
    l1 = k.new('xo')
    k("s_cmp_eq_u32 s92, 0"); k(f"s_cbranch_scc0 {k.ref(l1)}")
    k(f"s_add_u32 s24, s68, {A.WS_XF2}")
    k(f"buffer_store_dwordx4 v[{O}:{O+3}], v219, s[8:11], s24 offen sc1")
    k(f"s_branch {k.ref(lskip)}")
    k.lab(l1)
    k(f"buffer_store_dwordx2 v[{O}:{O+1}], v243, s[12:15], s68 offen")
    k(f"buffer_store_dwordx2 v[{O+2}:{O+3}], v243, s[12:15], s68 offen offset:32")
    k.lab(lskip)
    l2 = k.new('xp')
    k("s_lshr_b32 s25, s64, 2"); k("s_add_u32 s25, s25, 1")
    k("s_cmp_eq_u32 s92, 0"); k("s_cselect_b32 s79, s25, -1")
    k("s_cmp_lt_u32 s40, 64"); k(f"s_cbranch_scc1 {k.ref(l2)}")
    k("s_waitcnt vmcnt(0)")
    k("s_barrier")
    x_pending(k)
    k.lab(l2)
    k("s_add_u32 s64, s64, 4")
    k(f"s_add_u32 s65, s65, {4*VOX_SEG}")
    k(f"s_add_u32 s66, s66, {4*SYNC_STEP}")
    k(f"s_add_u32 s67, s67, {4*SYNC_STEP}")
    k(f"s_add_u32 s68, s68, {4*40960}")

def role_P(k):
    RS, L_ST, L_PS = 400, 81920, 81920
    XPRE, BF, ACC, OUT, TMP, ST, CS, ONE = 16, 56, 88, 112, 124, 132, 224, 236
    k("s_sub_u32 s44, s2, 104")
    k("s_lshr_b32 s46, s44, 5")
    k("s_and_b32 s44, s44, 31")
    k.ptr(KA_WQ, 6); k.ptr(KA_WK, 24); k.ptr(KA_WV, 26)
    k("s_waitcnt lgkmcnt(0)")
    k("s_cmp_eq_u32 s46, 1"); k("s_cselect_b32 s6, s24, s6"); k("s_cselect_b32 s7, s25, s7")
    k("s_cmp_eq_u32 s46, 2"); k("s_cselect_b32 s6, s26, s6"); k("s_cselect_b32 s7, s27, s7")
    k.srd(12, 6, D * HD * 2)
    GO, LO, DAT = 4, 10, 56
    stage_offsets(k, 6, 24, HD * 2, RS, L_ST, GO, LO, 16)
    k("v_lshrrev_b32 v16, 2, v2")
    k("v_lshl_add_u32 v16, v3, 2, v16")
    k(f"v_mul_u32_u24 v32, {RS}, v16")
    k("v_and_b32 v16, 3, v2")
    k("v_lshl_add_u32 v32, v16, 3, v32")
    k(f"s_mul_i32 s24, s3, 96"); k(f"s_add_u32 s24, s24, {L_ST}")
    k("v_add_u32 v32, s24, v32")
    k("s_mul_i32 s45, s44, 384")
    def loads(c):
        d = DAT + 24 * (c % 8)
        k(f"s_add_u32 s47, s45, {c * 64 * HD * 2}")
        for i in range(6):
            k(f"buffer_load_dwordx4 v[{d+4*i}:{d+4*i+3}], v{GO+i}, s[12:15], s47 offen")
    for c in range(8): loads(c)
    C0, O0 = 16, 28
    for r in range(4): k(f"v_mov_b32 v{O0+r}, 0x3f803f80")
    def cs_mfma(c):
        for jj in range(2):
            j = 2 * c + jj
            for t in range(3):
                w = (t * 20 + j) * 4; cc = f"v[{C0+4*t}:{C0+4*t+3}]"
                k(f"v_mfma_f32_16x16x32_bf16 {cc}, a[{w}:{w+3}], v[{O0}:{O0+3}], {cc if j else 0}")
    waits = [42, 42, 42, 36, 30, 24, 18, 12, 6, 0]
    for c in range(10):
        d = DAT + 24 * (c % 8)
        k(f"s_waitcnt vmcnt({waits[c]})")
        for i in range(6): k(f"ds_write_b128 v{LO+i}, v[{d+4*i}:{d+4*i+3}] offset:{(c%2)*25600}")
        k("s_waitcnt lgkmcnt(0)")
        if c < 2: loads(c + 8)
        if c > 0: cs_mfma(c - 1)
        k("s_barrier")
        for t in range(3):
            for jj in range(2):
                r = (t * 20 + 2 * c + jj) * 4
                for hf in range(2):
                    k(f"ds_read_b64_tr_b16 a[{r+2*hf}:{r+2*hf+1}], v32 offset:{(c%2)*25600 + (32*jj + 16*hf)*RS + 32*t}")
    k("s_waitcnt lgkmcnt(0)")
    cs_mfma(9)
    for r in range(12): k(f"v_mov_b32 v{CS+r}, v{C0+r}")
    for r in range(4): k(f"v_mov_b32 v{ONE+r}, v{O0+r}")
    k("s_barrier")
    event(k, 1, 16)
    k.lab('p_layer')
    layer_bases(k)
    k("s_sub_u32 s44, s2, 104")
    k("s_lshr_b32 s46, s44, 5")
    k("s_and_b32 s44, s44, 31")
    k(f"s_mov_b32 s43, {WS_QF}")
    k("s_cmp_eq_u32 s46, 1"); k(f"s_cselect_b32 s43, {WS_KF}, s43")
    k("s_cmp_eq_u32 s46, 2"); k(f"s_cselect_b32 s43, {WS_VF}, s43")
    k("s_cmp_eq_u32 s92, 0"); k(f"s_cselect_b32 s73, {A.WS_XF1}, {A.WS_XF3}")
    k("v_lshlrev_b32 v5, 4, v1")
    k("s_mul_i32 s24, s3, 10240")
    k("v_add_u32 v6, s24, v5")
    k("v_add_u32 v7, 4096, v6"); k("v_add_u32 v8, 8192, v6")
    k("s_mul_i32 s24, s44, 12288"); k("s_mul_i32 s25, s3, 3072"); k("s_add_u32 s24, s24, s25")
    k("v_add_u32 v11, s24, v5")
    if CFG['p_off']:
        k("s_cmp_eq_u32 s92, 1"); k(f"s_cselect_b32 s24, {OOB}, 0"); k("v_or_b32 v11, s24, v11")
    k("s_lshr_b32 s24, s3, 1"); k("s_lshl_b32 s24, s24, 8"); k("s_and_b32 s25, s3, 1"); k("s_lshl_b32 s25, s25, 3")
    k("s_add_u32 s24, s24, s25"); k(f"s_add_u32 s24, s24, {L_PS}")
    k("v_lshlrev_b32 v13, 4, v2")
    k("v_add_u32 v12, s24, v13")
    k(f"v_add_u32 v13, {L_PS}, v13")
    if CFG['pstat'] == 1:
        k("v_lshrrev_b32 v15, 2, v2"); k("v_cmp_eq_u32 vcc, v15, v3")
        k(f"v_lshlrev_b32 v15, 3, v1"); k(f"v_add_u32 v15, {L_PS + 1024}, v15")
        k("v_cndmask_b32 v12, v15, v12, vcc")
        k("v_and_b32 v15, 3, v2")
        for i_, sp in ((1, 48), (2, 50), (3, 54)): k(f"v_cmp_eq_u32 s[{sp}:{sp+1}], {i_}, v15")
    k("s_and_b32 s24, s2, 7"); k("s_lshl_b32 s24, s24, 7"); k("s_lshl_b32 s25, s92, 10"); k("s_add_u32 s24, s24, s25")
    k(f"s_add_u32 s24, s24, {WS_FLG + F_K3}")
    k("s_cmp_eq_u32 s92, 0"); k("s_cselect_b32 s25, 20, 5"); k("s_cselect_b32 s75, 2, 0"); k("s_cselect_b32 s74, 16, 64")
    k("v_cmp_gt_u32 vcc, s25, v1"); k("v_cndmask_b32 v4, 0, v1, vcc")
    k("v_lshlrev_b32 v4, 2, v4"); k("v_add_u32 v4, s24, v4")
    flag_addr(k, 's46')
    k("s_cmp_eq_u32 s3, 0"); k(f"s_cselect_b32 s24, 0, {OOB}"); k("v_or_b32 v14, s24, v14")
    x_init(k)
    def xloads():
        for i in range(10):
            k(f"buffer_load_dwordx4 v[{XPRE+4*i}:{XPRE+4*i+3}], v{6 + i//4}, s[8:11], s41 offen offset:{(i%4)*1024} {CFG['px_mod']}")
    SA = 136
    def stats_list():
        class L(list):
            def __call__(self, t): self.append(t)
        l = L(); row_stats_partial(l, XPRE, 40, SA, SA + 1, ONE, SA + 2); return l
    SM, SQ = 144, 148
    def stats_mfma():
        l = []
        for i in range(10):
            x = f"v[{XPRE+4*i}:{XPRE+4*i+3}]"
            l.append(f"v_mfma_f32_16x16x32_bf16 v[{SQ}:{SQ+3}], {x}, {x}, " + (f"v[{SQ}:{SQ+3}]" if i else "0"))
            l.append(f"v_mfma_f32_16x16x32_bf16 v[{SM}:{SM+3}], v[{ONE}:{ONE+3}], {x}, " + (f"v[{SM}:{SM+3}]" if i else "0"))
        return l
    def stats_sel():
        return [f"v_cndmask_b32 v{SM+1}, v{SQ}, v{SQ+1}, s[48:49]", f"v_cndmask_b32 v{SM+1}, v{SM+1}, v{SQ+2}, s[50:51]",
                f"v_cndmask_b32 v{SM+1}, v{SM+1}, v{SQ+3}, s[54:55]"]
    SR = SM if CFG['pstat'] == 1 else SA
    def xstage(wbase, psw):
        if CFG['pstat'] == 1:
            for t in stats_mfma(): k(t)
            for i in range(10): k(f"ds_write_b128 v{wbase}, v[{XPRE+4*i}:{XPRE+4*i+3}] offset:{i*1024}")
            for t in stats_sel(): k(t)
        else:
            for t in stats_list(): k(t)
            for i in range(10): k(f"ds_write_b128 v{wbase}, v[{XPRE+4*i}:{XPRE+4*i+3}] offset:{i*1024}")
        k(f"ds_write_b64 v{psw}, v[{SR}:{SR+1}]")
    k("s_mov_b32 s62, -1"); k("s_mov_b32 s63, 1")
    ensure(k, 'p_en0', 20, 4, 16)
    k("s_mov_b32 s41, s73")
    xloads()
    k("s_mov_b32 s40, 0")
    k("s_mov_b32 s42, 0")
    k("s_waitcnt vmcnt(0)")
    xstage(6, 12)
    k("s_waitcnt lgkmcnt(0)")
    k("s_barrier")
    event(k, 2, 16)
    acc = lambda tt, t: ACC + (tt * 3 + t) * 4
    def need_next():
        k("s_add_u32 s63, s40, 1"); k("s_lshr_b32 s63, s63, s75"); k("s_add_u32 s63, s63, 1"); k("s_min_u32 s63, s63, s74")
    def body(steady):
        if steady: stamp(k, 0)
        k("v_add_u32 v9, s42, v5")
        k("s_xor_b32 s42, s42, 40960")
        k("v_add_u32 v10, s42, v6")
        if steady:
            need_next()
            ensure(k, 'p_en', 20, 4, 16)
            k("s_add_u32 s41, s41, 40960")
            xloads()
            stamp(k, 1)
        k("s_and_b32 s24, s40, 1"); k("s_lshl_b32 s24, s24, 9")
        k(f"v_add_u32 v{TMP}, s24, v13")
        k("s_xor_b32 s24, s24, 512")
        k(f"v_add_u32 v{SA+4}, s24, v12")
        lg = LG(k)
        lg.issue('ps', f"ds_read_b128 v[{OUT}:{OUT+3}], v{TMP}")
        lg.issue('ps', f"ds_read_b128 v[{OUT+4}:{OUT+7}], v{TMP} offset:256")
        def rd(j):
            for tt in range(2):
                r = BF + ((j % 4) * 2 + tt) * 4
                lg.issue(j, f"ds_read_b128 v[{r}:{r+3}], v9 offset:{tt*20480 + j*1024}")
        rd(0); rd(1); rd(2)
        class L(list):
            def __call__(self, t): self.append(t)
        extra = L()
        row_stats_final(extra, OUT, ST); row_stats_final(extra, OUT + 4, ST + 2)
        wr = []; sm = []
        for j in range(20):
            if j + 3 < 20: rd(j + 3)
            lg.wait(j)
            if steady and j == 11:
                stamp(k, 4)
                k("s_waitcnt vmcnt(2)")
                stamp(k, 5)
                if CFG['pstat'] == 1: sm = stats_mfma()
                else: extra.extend(stats_list())
                wr = [f"ds_write_b128 v10, v[{XPRE+4*i}:{XPRE+4*i+3}] offset:{i*1024}" for i in range(10)]
            for tt in range(2):
                r = BF + ((j % 4) * 2 + tt) * 4
                for t in range(3):
                    a = acc(tt, t); w = (t * 20 + j) * 4
                    c = f"v[{a}:{a+3}]" if j else "0"
                    k(f"v_mfma_f32_16x16x32_bf16 v[{a}:{a+3}], a[{w}:{w+3}], v[{r}:{r+3}], {c}")
                    for _ in range(CFG['p_nx']):
                        if extra: k(extra.pop(0))
                    if t == 1 and wr and (CFG['p_wr'] == 1 or tt == 0 or True) and (CFG['p_wr'] == 2 or tt == 0): lg.issue('w', wr.pop(0))
            for _ in range(3):
                if sm: k(sm.pop(0))
            if steady and CFG['pstat'] == 1 and j == 19:
                for t_ in stats_sel(): k(t_)
            if steady and j == 9:
                stamp(k, 2)
                k("s_waitcnt vmcnt(10)")
                k("s_barrier")
                stamp(k, 3)
                k("v_mov_b32 v15, s40")
                k("buffer_store_dword v15, v14, s[8:11], 0 offen sc1")
                x_pending(k)
        for t_ in wr: lg.issue('w', t_)
        assert not sm
        for t_ in extra: k(t_)
        if steady: lg.issue('w', f"ds_write_b64 v{SA+4}, v[{SR}:{SR+1}]")
        for tt in range(2):
            for t in range(3): ln_fold(k, acc(tt, t), CS + 4 * t, ST + 2 * tt, TMP)
        for o, (tt, t) in enumerate([(0, 0), (0, 1), (1, 0), (1, 1), (0, 2), (1, 2)]):
            a = acc(tt, t)
            k(f"v_cvt_pk_bf16_f32 v{OUT+2*o}, v{a}, v{a+1}")
            k(f"v_cvt_pk_bf16_f32 v{OUT+2*o+1}, v{a+2}, v{a+3}")
        for b in range(3):
            k(f"buffer_store_dwordx4 v[{OUT+4*b}:{OUT+4*b+3}], v11, s[8:11], s43 offen offset:{b*1024} sc1")
        k(f"s_add_u32 s43, s43, {QF_SEG}")
        if not steady:
            k("s_waitcnt vmcnt(0)")
            k("s_barrier")
            k("s_add_u32 s24, s40, 1"); k("v_mov_b32 v15, s24")
            k("buffer_store_dword v15, v14, s[8:11], 0 offen sc1")
            need_next()
            ensure(k, 'p_enA', 20, 4, 16)
            k("s_add_u32 s41, s41, 40960")
            xloads()
            k("s_waitcnt vmcnt(0)")
            xstage(10, SA + 4)
        if steady and CFG['stamp']:
            k("s_waitcnt lgkmcnt(0)"); k("s_memrealtime s[56:57]"); k("s_waitcnt lgkmcnt(0)"); k("s_mov_b32 s57, s56"); stamp_out(k, 6, 16)
        k("s_add_u32 s40, s40, 1")
        k("s_waitcnt lgkmcnt(0)")
        k("s_barrier")
    k.lab('p_segA')
    body(False)
    k(f"s_cmp_lt_u32 s40, {CFG['p_ns']}"); k(f"s_cbranch_scc1 {k.ref('p_segA')}")
    k(f"s_branch {k.ref('p_next')}")
    k.lab('p_seg')
    body(True)
    k.lab('p_next')
    if CFG['stamp']:
        for i_, sv in enumerate((8, 16, 32, 48)):
            l_ = k.new('pe'); k(f"s_cmp_eq_u32 s40, {sv}"); k(f"s_cbranch_scc0 {k.ref(l_)}"); event(k, 8 + i_, 16); k.lab(l_)
    k(f"s_add_u32 s24, s64, {CFG['xlag']}"); k("s_cmp_le_u32 s24, s40"); k(f"s_cbranch_scc1 {k.ref('p_pub')}")
    k("s_cmp_lt_u32 s40, 64"); k(f"s_cbranch_scc1 {k.ref('p_seg')}")
    k.lab('p_pub')
    k("s_waitcnt vmcnt(0)")
    k("s_barrier")
    flag_pub(k, 's40')
    k(f"s_add_u32 s24, s64, {CFG['xlag']}"); k("s_cmp_le_u32 s24, s40"); k(f"s_cbranch_scc1 {k.ref('p_x')}")
    k("s_cmp_lt_u32 s40, 64"); k(f"s_cbranch_scc1 {k.ref('p_seg')}")
    k("s_cmp_ge_u32 s64, 64"); k(f"s_cbranch_scc1 {k.ref('p_done')}")
    k.lab('p_x')
    x_iter(k)
    k(f"s_branch {k.ref('p_next')}")
    k.lab('p_done')
    event(k, 3, 16)
    next_layer(k, 'p_layer')

def role_O(k):
    RS = 1312
    VFa, VFb, ACC, OUT = 16, 64, 112, 192
    k("s_sub_u32 s44, s2, 200")
    k.ptr(KA_WO, 6)
    k("s_waitcnt lgkmcnt(0)")
    k.srd(12, 6, D * HD * 2)
    LO, D0, D1 = 16, 48, 168
    for i in range(30):
        k(f"v_add_u32 v8, {256*i}, v0")
        divmod_const(k, 9, 10, 8, 80, 256 * 30, 24)
        k(f"v_mul_u32_u24 v{LO+i}, {RS}, v9")
        k(f"v_lshl_add_u32 v{LO+i}, v10, 4, v{LO+i}")
    k("v_lshlrev_b32 v4, 4, v0")
    k(f"s_mul_i32 s45, s44, {192*1280}")
    dat = lambda b, i: (D0 + 4 * i) if b == 0 else ((D1 + 4 * i) if i < 22 else (D0 + 4 * (i - 22)))
    def ld(b, i):
        k(f"s_add_u32 s46, s45, {b*96*1280 + i*4096}")
        d = dat(b, i)
        k(f"buffer_load_dwordx4 v[{d}:{d+3}], v4, s[12:15], s46 offen")
    for i in range(30): ld(0, i)
    for i in range(22): ld(1, i)
    k("v_lshrrev_b32 v8, 2, v2")
    k("v_lshl_add_u32 v8, v3, 2, v8")
    k(f"v_mul_u32_u24 v5, {RS}, v8")
    k("v_and_b32 v8, 3, v2")
    k("v_lshl_add_u32 v5, v8, 3, v5")
    k("s_mul_i32 s24, s3, 320")
    k("v_add_u32 v5, s24, v5")
    k(f"v_add_u32 v6, {48*RS}, v5")
    for b in range(2):
        k(f"s_waitcnt vmcnt({22 if b == 0 else 0})")
        for i in range(30):
            d = dat(b, i)
            k(f"ds_write_b128 v{LO+i}, v[{d}:{d+3}]")
        k("s_waitcnt lgkmcnt(0)")
        if b == 0:
            for i in range(22, 30): ld(1, i)
        k("s_barrier")
        for t in range(10):
            def tr(ks, hf, base, row):
                r = (t * 6 + ks) * 4 + 2 * hf
                k(f"ds_read_b64_tr_b16 a[{r}:{r+1}], v{base} offset:{row*RS + 32*t}")
            tr(2*b, 0, 5, 0); tr(2*b, 1, 5, 16)
            tr(2*b+1, 0, 6, 0); tr(2*b+1, 1, 6, 16)
            tr(4+b, 0, 5, 32); tr(4+b, 1, 6, 32)
        k("s_waitcnt lgkmcnt(0)")
        k("s_barrier")
    k("v_lshlrev_b32 v5, 4, v1")
    k("s_mul_i32 s24, s44, 12288")
    k("v_add_u32 v6, s24, v5")
    k("v_add_u32 v7, 4096, v6"); k("v_add_u32 v8, 8192, v6")
    k(f"s_mul_i32 s24, s3, {10*32768}"); k("s_lshl_b32 s25, s44, 10"); k("s_add_u32 s24, s24, s25")
    k("v_add_u32 v9, s24, v5")
    event(k, 1, 16)
    k.lab('o_layer')
    layer_bases(k)
    flag_addr(k, 3)
    if CFG['o_off']:
        k("s_cmp_eq_u32 s92, 1"); k(f"s_cselect_b32 s24, {OOB}, 0"); k("v_or_b32 v9, s24, v9")
    k(f"s_lshl_b32 s24, s44, 7"); k(f"s_add_u32 s24, s24, {2*4096}"); k("s_add_u32 s24, s24, s94")
    k("v_mov_b32 v10, s24")
    k(f"s_mov_b32 s41, {WS_VF}")
    k(f"s_mov_b32 s43, {WS_VOX}")
    k("s_mov_b32 s40, 0")
    def vloads(V):
        for i in range(12):
            k(f"buffer_load_dwordx4 v[{V+4*i}:{V+4*i+3}], v{6 + i//4}, s[8:11], s41 offen offset:{(i%4)*1024} sc1")
        k(f"s_add_u32 s41, s41, {QF_SEG}")
    k("s_mov_b32 s62, -1"); k("s_mov_b32 s63, 1")
    ensure(k, 'o_en0', 1, 10, 11)
    vloads(VFa)
    k("s_waitcnt vmcnt(0)")
    event(k, 2, 240)
    k.lab('o_seg')
    for par, (V, VN) in enumerate(((VFa, VFb), (VFb, VFa))):
        for p in range(2):
            X = V + (6 * p + 2) * 4; Y = V + (6 * p + 5) * 4
            k(f"v_swap_b32 v{X+2}, v{Y}"); k(f"v_swap_b32 v{X+3}, v{Y+1}")
        def frag(tt, ks):
            if ks < 4: return V + (3 * ks + tt) * 4
            p = ks - 4
            return V + (6 * p + 2) * 4 if tt == 0 else V + (6 * p + 5) * 4
        def nxt(tag):
            k("s_add_u32 s63, s40, 2"); k("s_min_u32 s63, s63, 64")
            ensure(k, tag, 1, 10, 11)
            vloads(VN)
        for ks in range(6):
            for t in range(10):
                for tt in range(2):
                    a = ACC + (t * 2 + tt) * 4; w = (t * 6 + ks) * 4; f = frag(tt, ks)
                    c = f"v[{a}:{a+3}]" if ks else "0"
                    k(f"v_mfma_f32_16x16x32_bf16 v[{a}:{a+3}], v[{f}:{f+3}], a[{w}:{w+3}], {c}")
            if ks == 2:
                lf = k.new('of')
                if par == 0:
                    k("s_cmp_eq_u32 s40, 0"); k(f"s_cbranch_scc1 {k.ref(lf)}")
                k("s_waitcnt vmcnt(0)")
                k("s_barrier")
                flag_pub(k, 's40')
                nxt(f'o_en{par+1}')
                k.lab(lf)
        k("s_mov_b32 s46, s43")
        for t in range(10):
            o = OUT + 4 * t
            for tt in range(2):
                a = ACC + (t * 2 + tt) * 4
                k(f"v_cvt_pk_bf16_f32 v{o+2*tt}, v{a}, v{a+1}")
                k(f"v_cvt_pk_bf16_f32 v{o+2*tt+1}, v{a+2}, v{a+3}")
            k(f"buffer_store_dwordx4 v[{o}:{o+3}], v9, s[8:11], s46 offen sc1")
            if t < 9: k("s_add_u32 s46, s46, 32768")
        if par == 0:
            lf = k.new('of')
            k("s_cmp_eq_u32 s40, 0"); k(f"s_cbranch_scc0 {k.ref(lf)}")
            k("s_waitcnt vmcnt(0)")
            k("s_barrier")
            flag_pub(k, 1)
            nxt('o_en3')
            k("s_waitcnt vmcnt(0)")
            k.lab(lf)
        k("s_waitcnt vmcnt(10)")
        k("s_add_u32 s40, s40, 1")
        k(f"s_add_u32 s43, s43, {VOX_SEG}")
    k("s_cmp_lt_u32 s40, 64")
    k(f"s_cbranch_scc1 {k.ref('o_seg')}")
    k("s_waitcnt vmcnt(0)")
    k("s_barrier")
    flag_pub(k, 's40')
    event(k, 3, 240)
    next_layer(k, 'o_layer')
class Hooks(A.NoHooks):
    def ev(self, k, i, t=14): event(k, i, t)
    def k1_wait_x(self, k):
        k("s_and_b32 s24, s48, 3"); k("s_lshl_b32 s24, s24, 7"); k(f"s_add_u32 s24, s24, {WS_FLG + F_X}")
        k("v_lshlrev_b32 v15, 2, v1"); k("v_add_u32 v15, s24, v15")
        k("s_lshr_b32 s95, s48, 2"); k("s_add_u32 s95, s95, 1")
        wait_all(k, 'k1_wx', 20, 14, 's95', sleep=4)
    def k1_first_barrier(self, k):
        l = k.new('fb')
        k("s_cmp_eq_u32 s2, 255"); k(f"s_cbranch_scc0 {k.ref(l)}")
        k("s_cmp_eq_u32 s92, 0"); k(f"s_cbranch_scc0 {k.ref(l)}")
        k("s_cmp_eq_u32 s3, 0"); k(f"s_cbranch_scc0 {k.ref(l)}")
        k(f"v_mov_b32 v154, {OOB}"); k("v_cmp_eq_u32 vcc, 0, v1"); k("v_cndmask_b32 v154, v154, 0, vcc")
        k("v_mov_b32 v155, 1")
        k("buffer_store_dword v155, v154, s[72:75], 0 offen sc1")
        k.lab(l)
    def k1_ready_issue(self, k):
        l = k.new('ri')
        k("s_cmp_eq_u32 s92, 0"); k(f"s_cbranch_scc0 {k.ref(l)}")
        k("v_mov_b32 v15, 0")
        k("buffer_load_dword v14, v15, s[72:75], 0 offen sc1")
        k.lab(l)
    def k1_ready_check(self, k):
        l = k.new('rc')
        k("s_cmp_eq_u32 s92, 0"); k(f"s_cbranch_scc0 {k.ref(l + '_ok')}")
        k("s_mov_b32 s61, 0")
        k.lab(l)
        k("s_waitcnt vmcnt(0)")
        k("v_readfirstlane_b32 s24, v14")
        k("s_cmp_eq_u32 s24, 1"); k(f"s_cbranch_scc1 {k.ref(l + '_ok')}")
        k("s_add_u32 s61, s61, 1"); k("s_cmp_ge_u32 s61, s60"); k(f"s_cbranch_scc1 {k.ref(l + '_to')}")
        k("s_sleep 2")
        k("v_mov_b32 v15, 0")
        k("buffer_load_dword v14, v15, s[72:75], 0 offen sc1")
        k(f"s_branch {k.ref(l)}")
        k.lab(l + '_to')
        k("s_mov_b32 s60, 1")
        k.lab(l + '_ok')
    def k1_publish(self, k):
        k("s_lshl_b32 s24, s92, 3"); k("s_add_u32 s24, s24, s44"); k("s_lshl_b32 s24, s24, 7")
        k("s_lshl_b32 s25, s45, 2"); k("s_add_u32 s24, s24, s25"); k(f"s_add_u32 s24, s24, {WS_FLG + F_K1}")
        pub_dword(k, 's24', 1, 14)
    def k2_wait(self, k):
        k("s_lshl_b32 s24, s92, 3"); k("s_add_u32 s24, s24, s44"); k("s_lshl_b32 s24, s24, 7"); k(f"s_add_u32 s24, s24, {WS_FLG + F_K1}")
        k("v_lshlrev_b32 v15, 2, v1"); k("v_add_u32 v15, s24, v15")
        k("s_cmp_eq_u32 s92, 0"); k("s_cselect_b32 s26, -1, 3")
        wait_all(k, 'k2_w', 's26', 14, 1, sleep=2)
    def k2_publish(self, k):
        k("s_lshl_b32 s24, s92, 7"); k("s_sub_u32 s25, s2, 64"); k("s_lshl_b32 s25, s25, 2"); k("s_add_u32 s24, s24, s25")
        k(f"s_add_u32 s24, s24, {WS_FLG + F_K2}")
        pub_dword(k, 's24', 1, 14)
    def k3_wait0(self, k):
        k("s_cmp_eq_u32 s92, 0"); k("s_cselect_b32 s26, 32, 0"); k("s_cselect_b32 s27, 7, 1")
        k("s_lshl_b32 s24, s92, 10"); k(f"s_add_u32 s24, s24, {WS_FLG + F_K1}")
        k("v_and_b32 v15, 7, v1"); k("v_lshlrev_b32 v15, 7, v15")
        k("v_lshrrev_b32 v14, 3, v1"); k("v_and_b32 v14, s27, v14"); k("v_lshl_add_u32 v15, v14, 2, v15")
        k("v_add_u32 v15, s24, v15")
        k("s_lshl_b32 s27, s26, 1"); k("s_add_u32 s28, s27, s26")
        k("s_mov_b32 s61, 0")
        k.lab('k3_w0')
        for i, so in enumerate(('0', 's26', 's27', 's28')):
            k(f"buffer_load_dword v{16+i}, v15, s[8:11], {so} offen sc1")
        k("s_waitcnt vmcnt(0)")
        k("v_min_i32 v16, v16, v17"); k("v_min3_i32 v16, v16, v18, v19")
        k("v_cmp_le_i32 vcc, 1, v16")
        k("s_cmp_eq_u64 vcc, -1")
        k(f"s_cbranch_scc1 {k.ref('k3_w0_ok')}")
        k("s_add_u32 s61, s61, 1"); k("s_cmp_ge_u32 s61, s60"); k(f"s_cbranch_scc1 {k.ref('k3_w0_to')}")
        k("s_sleep 4")
        k(f"s_branch {k.ref('k3_w0')}")
        k.lab('k3_w0_to'); k("s_mov_b32 s60, 1")
        k.lab('k3_w0_ok')
    def k3_wait(self, k):
        k("s_lshl_b32 s24, s92, 7"); k(f"s_add_u32 s24, s24, {WS_FLG + F_K2}")
        k("v_lshlrev_b32 v15, 2, v1"); k("v_add_u32 v15, s24, v15")
        wait_all(k, 'k3_w', 24, 14, 1, sleep=2)
    def k3_publish(self, k, last):
        k("s_lshl_b32 s24, s92, 10"); k("s_lshl_b32 s25, s78, 2"); k("s_add_u32 s24, s24, s25")
        k(f"s_add_u32 s24, s24, {WS_FLG + F_K3}")
        pub_dword(k, 's24', 's40', 14, copies=8)

NCLR = 3
def role_clear(k):
    k("s_sub_u32 s44, s2, 253")
    k("s_lshl_b32 s24, s44, 2"); k("s_add_u32 s24, s24, s3"); k(f"s_mul_i32 s24, s24, {38*1024}"); k(f"s_add_u32 s41, s24, {WS_SYNC}")
    k("v_lshlrev_b32 v5, 4, v1")
    for r in range(4): k(f"v_mov_b32 v{8+r}, -1")
    k("s_lshl_b32 s24, s44, 2"); k(f"s_add_u32 s42, s24, {WS_FLG + F_C}")
    k("s_mov_b32 s40, 0")
    if CFG['noclr']:
        k("s_mov_b32 s40, 128"); pub_dword(k, 's42', 's40', 14, copies=8); return
    k.lab('clr_blk')
    k("s_mov_b32 s43, s41")
    for i in range(38):
        k(f"buffer_store_dwordx4 v[8:11], v5, s[8:11], s43 offen offset:{(i%4)*1024} {CFG['clr_mod']}")
        if i % 4 == 3: k("s_add_u32 s43, s43, 4096")
    k("s_waitcnt vmcnt(38)")
    k("s_barrier")
    pub_dword(k, 's42', 's40', 14, copies=8)
    if CFG['clr_sleep']: k(f"s_sleep {CFG['clr_sleep']}")
    k("s_add_u32 s40, s40, 1")
    k(f"s_add_u32 s41, s41, {SYNC_STEP}")
    k("s_cmp_lt_u32 s40, 128"); k(f"s_cbranch_scc1 {k.ref('clr_blk')}")
    k("s_waitcnt vmcnt(0)")
    k("s_barrier")
    pub_dword(k, 's42', 's40', 14, copies=8)

def build():
    k = K(NAME, vgpr=256, sgpr=100, agpr=256)
    H = Hooks()
    k("s_cmp_ge_u32 s2, 256")
    k(f"s_cbranch_scc1 {k.ref('end')}")
    k.ptr(KA_WS, 4); k.ptr(KA_DBG, 6); k.ptr(KA_AX, 24)
    k("v_and_b32 v1, 63, v0")
    k("v_lshrrev_b32 v4, 6, v0")
    k("v_and_b32 v2, 15, v1")
    k("v_lshrrev_b32 v3, 4, v1")
    k("v_readfirstlane_b32 s3, v4")
    k(f"s_mov_b32 s60, {CFG['spin']}")
    k("s_mov_b32 s59, -1")
    k("s_mov_b32 s92, 0")
    k("s_waitcnt lgkmcnt(0)")
    k.srd(8, 4, WS_BYTES)
    k.srd(72, 6, 256)
    k.srd(16, 24, A.XF_BYTES)
    event(k, 0)
    l = k.new('cf')
    k("s_cmp_eq_u32 s2, 255"); k(f"s_cbranch_scc0 {k.ref(l)}")
    k("v_lshlrev_b32 v5, 4, v0")
    for r in range(4): k(f"v_mov_b32 v{8+r}, -1")
    k(f"s_mov_b32 s24, {WS_FLG}")
    for i in range(FLG_BYTES // 4096):
        k(f"buffer_store_dwordx4 v[8:11], v5, s[8:11], s24 offen sc1")
        k("s_add_u32 s24, s24, 4096")
    k.lab(l)
    k("s_mov_b32 s46, 64"); k("s_mov_b32 s47, 32"); k("s_mov_b32 s50, 0")
    k("s_and_b32 s44, s2, 7"); k("s_lshr_b32 s45, s2, 3")
    k("s_lshl_b32 s48, s45, 1"); k("s_mov_b32 s49, 1"); k("s_mov_b32 s40, 2")
    k.lab('k1_entry')
    A.role_K1(k, H)
    event(k, 4)
    k("s_cmp_eq_u32 s92, 0"); k(f"s_cbranch_scc0 {k.ref('end')}")
    k("s_cmp_ge_u32 s2, 232"); k(f"s_cbranch_scc1 {k.ref('helper')}")
    k("s_cmp_ge_u32 s2, 200"); k(f"s_cbranch_scc1 {k.ref('toO')}")
    k("s_cmp_ge_u32 s2, 104"); k(f"s_cbranch_scc1 {k.ref('toP')}")
    k("s_cmp_ge_u32 s2, 64"); k(f"s_cbranch_scc1 {k.ref('toR')}")
    k("s_cmp_ge_u32 s2, 32"); k(f"s_cbranch_scc1 {k.ref('toV')}")
    k(f"s_branch {k.ref('roleS')}")
    for nm in 'VRPO':
        k.lab('to' + nm); k(f"s_branch {k.ref('role' + nm)}")
    k.lab('helper')
    k("s_sub_u32 s24, s2, 232")
    k("s_cmp_ge_u32 s24, 21"); k(f"s_cbranch_scc1 {k.ref('helper_clr')}")
    k("s_cmp_eq_u32 s24, 15"); k(f"s_cbranch_scc1 {k.ref('helper_k1')}")
    k("s_mul_i32 s57, s24, 52"); k("s_lshr_b32 s57, s57, 8"); k("s_mul_i32 s56, s57, 5"); k("s_sub_u32 s56, s24, s56")
    k("s_add_u32 s57, s57, 1")
    k("s_sub_u32 s25, s24, 16"); k("s_cmp_ge_u32 s24, 16"); k("s_cselect_b32 s56, s25, s56"); k("s_cselect_b32 s57, 0, s57")
    k("s_mul_i32 s78, s57, 5"); k("s_add_u32 s78, s78, s56")
    A.k3_stage(k)
    k.ptr(KA_AX, 6); k("s_waitcnt lgkmcnt(0)"); k.srd(16, 6, A.XF_BYTES)
    k("s_mov_b32 s46, 64"); k("s_mov_b32 s47, 32"); k("s_mov_b32 s50, 0"); k(f"s_mov_b32 s58, {A.WS_XF1}")
    k("s_mov_b32 s76, 16"); k("s_mov_b32 s77, 163840")
    k.lab('k3_entry')
    A.role_K3(k, H)
    event(k, 6)
    k("s_cmp_eq_u32 s92, 0"); k(f"s_cbranch_scc0 {k.ref('end')}")
    k("s_mov_b32 s92, 1")
    k("s_cmp_lt_u32 s2, 248"); k(f"s_cbranch_scc1 {k.ref('helper_k1')}")
    k.srd(16, 4, A.XF_BYTES, A.WS_XF2)
    k("s_mov_b32 s46, 1024"); k("s_mov_b32 s47, 8"); k("s_mov_b32 s50, 1"); k(f"s_mov_b32 s58, {A.WS_XF3}")
    k("s_mov_b32 s76, 64"); k("s_mov_b32 s77, 40960")
    k(f"s_branch {k.ref('k3_entry')}")
    k.lab('helper_k1')
    k("s_mov_b32 s92, 1")
    k("s_sub_u32 s24, s2, 232")
    k.srd(16, 4, A.XF_BYTES, A.WS_XF2)
    k("s_mov_b32 s46, 1024"); k("s_mov_b32 s47, 8"); k("s_mov_b32 s50, 1")
    k("s_and_b32 s44, s24, 7"); k("s_lshr_b32 s45, s24, 3")
    k("s_mov_b32 s48, s45"); k("s_mov_b32 s49, 2"); k("s_mov_b32 s40, 32")
    k(f"s_branch {k.ref('k1_entry')}")
    k.lab('helper_clr')
    role_clear(k)
    event(k, 6)
    k(f"s_branch {k.ref('end')}")
    k.lab('roleS'); (role_S2 if CFG['s2'] else role_S)(k)
    k.lab('roleV'); (role_V2 if CFG['v2'] else role_V)(k)
    k.lab('roleR'); role_R(k)
    k.lab('roleP'); role_P(k)
    k.lab('roleO'); role_O(k)
    k.lab('end')
    head = ["; generated by gen6.py (my own hand-written generator); kernarg: 13 pointers",
            f"; @launch kernel={k.name} grid=(256,1,1) block=(256,1,1) lds=135168",
            '.amdgcn_target "amdgcn-amd-amdhsa--gfx950"']
    return "\n".join(head) + "\n" + k.text() + "\n"

CFG.setdefault('dly_hr', 4); CFG.setdefault('hr_wave', 3); CFG.setdefault('s2', 1); CFG.setdefault('v2', 1); CFG.setdefault('v_x8', 4); CFG.setdefault('v_x9', 4); CFG.setdefault('tgt_m', 8); CFG.setdefault('tgt_p', 7); CFG.setdefault('kx_pos', 0); CFG.setdefault('px_pos', 1); CFG.setdefault('x_off', 0); CFG.setdefault('o_off', 0); CFG.setdefault('p_off', 0); CFG.setdefault('rv_off', 0); CFG.setdefault('noclr', 0); CFG.setdefault('pstat', 1); CFG.setdefault('p_nx', 1); CFG.setdefault('p_wr', 1); CFG.setdefault('px_mod', ''); CFG.setdefault('p_ns', 2); CFG.setdefault('spin', SPIN_MAX); CFG.setdefault('xlag', 24); CFG.setdefault('clr_mod', 'sc1')
if __name__ == "__main__":
    out = "z.s"
    for a in sys.argv[1:]:
        if a == "stamp": CFG['stamp'] = True
        elif a.endswith(".s"): out = a
        elif "=" in a:
            kk, v = a.split("=")
            try: CFG[kk] = int(v)
            except ValueError: CFG[kk] = v.replace('+', ' ')
    open(out, "w").write(build())
    print("written", out)
```

```python
import sys
from asmlib import K, magic
import genA as A
from genA import hexf, LOG2E, LG, lookup, row_stats_partial, row_stats_final, ln_fold

NAME = A.NAME
S, D, H, DH, HD, NSEG = 2048, 640, 32, 192, 6144, 64
KA_AX, KA_WQKV, KA_WOA, KA_BX, KA_MEM0, KA_WQ, KA_WK, KA_WV, KA_WO, KA_SEG, KA_OUT, KA_DBG, KA_WS = range(13)
WS_BYTES = 268435456

WS_FLG   = 0x01600000
FLG_BYTES = 0x10000
F_Q   = 0x0000
F_LAYER = 0x4000
F_K1  = 0x8000
F_K2  = 0x8800
F_K3  = 0x9000
F_X   = 0x9800
F_C   = 0xA000
WS_TRACE = 0x01800000
WS_VF    = 0x02000000
WS_QF    = 0x04000000
WS_KF    = 0x05800000
QF_SEG   = 32 * 12288
WS_SYNC  = 0x07000000
SYNC_STEP = 0x70000
O_VOM, O_PX, O_PB, O_MB, O_HR, O_HS = 0, 327680, 409600, 430080, 440320, 448512
SYNC_LAYER = 64 * SYNC_STEP
WS_VOX   = 0x0B000000
VOX_SEG  = 40 * 32 * 1024
assert WS_SYNC + 128 * SYNC_STEP <= WS_VOX and WS_VOX + 64 * VOX_SEG <= WS_BYTES
SCALE_B = DH ** -0.5
SPIN_MAX = 1 << 17
OOB = 0x7ff00000
RH_M, RH_P = 16, 8

CFG = dict(stamp=False, dly_vox=20, pd_m=3, pd_p=2, pdep=4, pgain=0, dly_m=5, dly_v=20, dly_p=0, sl_m=1, sl_p=1, sl_x=2, sl_x0=8,
           hs_pos=22, hr_pos=1, clr_sleep=0)


def poll(k, name, loads, regs, tmp, sleep, first_delay=0, depth=1):
    if first_delay:
        k(f"s_sleep {first_delay}")
    k("s_mov_b32 s61, 0")
    for d in range(depth - 1):
        for l in loads: k(l)
        if sleep: k(f"s_sleep {sleep}")
    k.lab(name)
    for l in loads: k(l)
    k(f"s_waitcnt vmcnt({(depth - 1) * len(loads)})")
    rs = list(regs)
    k(f"v_max3_u32 v{tmp}, v{rs[0]}, v{rs[1]}, v{rs[2]}")
    rs = rs[3:]
    while len(rs) >= 2:
        k(f"v_max3_u32 v{tmp}, v{tmp}, v{rs[0]}, v{rs[1]}"); rs = rs[2:]
    if rs: k(f"v_max_u32 v{tmp}, v{tmp}, v{rs[0]}")
    k(f"v_cmp_eq_u32 vcc, -1, v{tmp}")
    k("s_add_u32 s61, s61, 1")
    k(f"s_cbranch_vccz {k.ref(name + '_out')}")
    k("s_cmp_ge_u32 s61, s60")
    k(f"s_cbranch_scc1 {k.ref(name + '_to')}")
    if sleep: k(f"s_sleep {sleep}")
    k(f"s_branch {k.ref(name)}")
    k.lab(name + '_to')
    k("s_mov_b32 s60, 1")
    k.lab(name + '_out')

def check_regs(k, rs, tmp):
    rs = list(rs)
    k(f"v_max3_u32 v{tmp}, v{rs[0]}, v{rs[1]}, v{rs[2]}")
    rs = rs[3:]
    while len(rs) >= 2:
        k(f"v_max3_u32 v{tmp}, v{tmp}, v{rs[0]}, v{rs[1]}"); rs = rs[2:]
    if rs: k(f"v_max_u32 v{tmp}, v{tmp}, v{rs[0]}")
    k(f"v_cmp_eq_u32 vcc, -1, v{tmp}")


def aprobe(k, name, areg, sbase, target, ring, delta, depth, dly):
    ring = ring[:depth]
    if dly: k(f"s_sleep {dly}")
    k("s_mov_b64 exec, 1")
    k("s_mov_b32 s61, 0")
    def issue(i):
        k(f"v_mov_b32 v{ring[i]}, 0")
        k(f"buffer_atomic_add v{ring[i]}, v{areg}, s[8:11], {sbase} offen sc0")
    for d in range(depth - 1):
        issue(d + 1)
        if delta: k(f"s_sleep {delta}")
    k.lab(name)
    for i in range(depth):
        issue(i)
        k(f"s_waitcnt vmcnt({depth - 1})")
        k(f"v_cmp_le_i32 vcc, {target}, v{ring[(i + 1) % depth]}")
        k("s_add_u32 s61, s61, 1")
        k(f"s_cbranch_vccnz {k.ref(name + '_out')}")
        if delta: k(f"s_sleep {delta}")
    k("s_cmp_ge_u32 s61, s60")
    k(f"s_cbranch_scc0 {k.ref(name)}")
    k("s_mov_b32 s60, 1")
    k.lab(name + '_out')
    k("s_mov_b64 exec, -1")
    if CFG['stamp']: k("s_mov_b32 s56, s61")

def ahint(k, areg, one, sbase):
    k(f"buffer_atomic_add v{one}, v{areg}, s[8:11], {sbase} offen")

def ahint_addr(k, dst, t, w_sreg, nrep, only_wave0):
    k(f"s_mul_i32 s24, {w_sreg}, {nrep}")
    k(f"v_add_u32 v{dst}, s24, v1")
    k(f"v_lshlrev_b32 v{dst}, 7, v{dst}")
    k(f"v_mov_b32 v{t}, {OOB}")
    k(f"v_cmp_le_u32 vcc, {nrep}, v1")
    k(f"v_cndmask_b32 v{dst}, v{dst}, v{t}, vcc")
    if only_wave0:
        k("s_cmp_eq_u32 s3, 0"); k(f"s_cselect_b32 s24, 0, {OOB}")
        k(f"v_or_b32 v{dst}, s24, v{dst}")

def aprobe_addr(k, dst, wg_sreg, nrep):
    k(f"s_and_b32 s24, {wg_sreg}, {nrep - 1}")
    k(f"s_mul_i32 s25, s3, {nrep}")
    k("s_add_u32 s24, s24, s25"); k("s_lshl_b32 s24, s24, 7")
    k(f"v_mov_b32 v{dst}, s24")


def shot_check(k, name, loads, regs, tmp, nyoung, sleep):
    k(f"s_waitcnt vmcnt({nyoung})")
    check_regs(k, regs, tmp)
    if CFG['stamp']: k("s_mov_b32 s57, 0")
    k(f"s_cbranch_vccz {k.ref(name + '_out')}")
    k("s_mov_b32 s61, 0")
    k.lab(name)
    for l in loads: k(l)
    k("s_waitcnt vmcnt(0)")
    check_regs(k, regs, tmp)
    k("s_add_u32 s61, s61, 1")
    if CFG['stamp']: k("s_mov_b32 s57, s61")
    k(f"s_cbranch_vccz {k.ref(name + '_out')}")
    k("s_cmp_ge_u32 s61, s60")
    k(f"s_cbranch_scc1 {k.ref(name + '_to')}")
    if sleep: k(f"s_sleep {sleep}")
    k(f"s_branch {k.ref(name)}")
    k.lab(name + '_to')
    k("s_mov_b32 s60, 1")
    k.lab(name + '_out')


def divmod_const(k, q, r, x, d, maxn, stmp):
    m, sh = magic(d, maxn)
    k(f"s_mov_b32 s{stmp}, {m}")
    k(f"v_mul_lo_u32 v{q}, v{x}, s{stmp}")
    k(f"v_lshrrev_b32 v{q}, {sh}, v{q}")
    k(f"v_mul_u32_u24 v{r}, {d}, v{q}")
    k(f"v_sub_u32 v{r}, v{x}, v{r}")

def stage_offsets(k, n, cpr, gstride, RS, lbase, go, lo, t0):
    for i in range(n):
        k(f"v_add_u32 v{t0}, {256*i}, v0")
        divmod_const(k, t0 + 1, t0 + 2, t0, cpr, 256 * n, 24)
        k(f"s_mov_b32 s24, {gstride}")
        k(f"v_mul_lo_u32 v{go+i}, v{t0+1}, s24")
        k(f"v_lshl_add_u32 v{go+i}, v{t0+2}, 4, v{go+i}")
        k(f"v_mul_u32_u24 v{lo+i}, {RS}, v{t0+1}")
        k(f"v_lshl_add_u32 v{lo+i}, v{t0+2}, 4, v{lo+i}")
        k(f"v_add_u32 v{lo+i}, {lbase}, v{lo+i}")

def tr_base(k, dst, RS, lbase, t0):
    k(f"v_lshrrev_b32 v{t0}, 1, v3")
    k(f"v_lshlrev_b32 v{t0}, 4, v{t0}")
    k(f"v_and_b32 v{t0+1}, 1, v3")
    k(f"v_lshl_add_u32 v{t0}, v{t0+1}, 2, v{t0}")
    k(f"v_lshrrev_b32 v{t0+1}, 2, v2")
    k(f"v_and_b32 v{t0+2}, 1, v{t0+1}")
    k(f"v_add_u32 v{t0}, v{t0}, v{t0+2}")
    k(f"v_lshrrev_b32 v{t0+1}, 1, v{t0+1}")
    k(f"v_lshl_add_u32 v{t0}, v{t0+1}, 3, v{t0}")
    k(f"v_mul_u32_u24 v{dst}, {RS}, v{t0}")
    k(f"v_and_b32 v{t0+1}, 3, v2")
    k(f"v_lshl_add_u32 v{dst}, v{t0+1}, 3, v{dst}")
    k(f"v_add_u32 v{dst}, {lbase}, v{dst}")

def softmax8(k, P0, T0, T1, masks=None):
    if masks:
        k(f"v_mov_b32 v{T1}, 0xff800000")
        for j in range(8): k(f"v_cndmask_b32 v{P0+j}, v{T1}, v{P0+j}, s[{masks+2*j}:{masks+2*j+1}]")
    k(f"v_max3_f32 v{T0}, v{P0}, v{P0+1}, v{P0+2}")
    k(f"v_max3_f32 v{T0}, v{T0}, v{P0+3}, v{P0+4}")
    k(f"v_max3_f32 v{T0}, v{T0}, v{P0+5}, v{P0+6}")
    k(f"v_max_f32 v{T0}, v{T0}, v{P0+7}")
    k(f"v_mov_b32 v{T1}, 0xff800000")
    k(f"v_cndmask_b32 v{T0}, v{T1}, v{T0}, s[50:51]")
    for dpp in ("quad_perm:[1,0,3,2]", "quad_perm:[2,3,0,1]", "row_half_mirror"):
        k(f"v_max_f32 v{T0}, v{T0}, v{T0} {dpp} row_mask:0xf bank_mask:0xf")
    k(f"s_mov_b32 s24, {hexf(SCALE_B * LOG2E)}")
    k(f"v_mul_f32 v{T0}, s24, v{T0}")
    for r in range(8): k(f"v_fma_f32 v{P0+r}, v{P0+r}, s24, -v{T0}")
    for r in range(8): k(f"v_exp_f32 v{P0+r}, v{P0+r}")
    k(f"v_add_f32 v{T0}, v{P0}, v{P0+1}")
    k(f"v_add_f32 v{T1}, v{P0+2}, v{P0+3}")
    k(f"v_add_f32 v{T0}, v{T0}, v{P0+4}")
    k(f"v_add_f32 v{T1}, v{T1}, v{P0+5}")
    k(f"v_add_f32 v{T0}, v{T0}, v{P0+6}")
    k(f"v_add_f32 v{T1}, v{T1}, v{P0+7}")
    k(f"v_add_f32 v{T0}, v{T0}, v{T1}")
    k(f"v_cndmask_b32 v{T0}, 0, v{T0}, s[50:51]")
    for dpp in ("quad_perm:[1,0,3,2]", "quad_perm:[2,3,0,1]", "row_half_mirror"):
        k(f"v_add_f32 v{T0}, v{T0}, v{T0} {dpp} row_mask:0xf bank_mask:0xf")
    k(f"v_rcp_f32 v{T0}, v{T0}")
    for r in range(8): k(f"v_mul_f32 v{P0+r}, v{P0+r}, v{T0}")
    for q in range(4): k(f"v_cvt_pk_bf16_f32 v{P0+8+q}, v{P0+2*q}, v{P0+2*q+1}")
    for q in range(4): k(f"v_min_u32 v{P0+8+q}, -2, v{P0+8+q}")

def sum4x8(k, P0, addr, stride):
    for w in range(4):
        k(f"ds_read_b128 v[{P0+8*w}:{P0+8*w+3}], v{addr} offset:{w*stride}")
        k(f"ds_read_b128 v[{P0+8*w+4}:{P0+8*w+7}], v{addr} offset:{w*stride+16}")
    k("s_waitcnt lgkmcnt(4)")
    for r in range(0, 8, 2): k(f"v_pk_add_f32 v[{P0+r}:{P0+r+1}], v[{P0+r}:{P0+r+1}], v[{P0+8+r}:{P0+8+r+1}]")
    k("s_waitcnt lgkmcnt(0)")
    for r in range(0, 8, 2): k(f"v_pk_add_f32 v[{P0+16+r}:{P0+16+r+1}], v[{P0+16+r}:{P0+16+r+1}], v[{P0+24+r}:{P0+24+r+1}]")
    for r in range(0, 8, 2): k(f"v_pk_add_f32 v[{P0+r}:{P0+r+1}], v[{P0+r}:{P0+r+1}], v[{P0+16+r}:{P0+16+r+1}]")


def tr_frag(k, reg, kind, addr, RS, off):
    for q, ro in enumerate((0, 2, 32, 34)):
        k(f"ds_read_b64_tr_b16 {kind}[{reg+2*q}:{reg+2*q+1}], v{addr} offset:{off + ro*RS}")

def m0_image(k, srd, t0):
    for p in range(3):
        k(f"s_lshl_b32 s24, s3, 6"); k(f"s_add_u32 s24, s24, {256*p}")
        k(f"v_add_u32 v{t0}, s24, v1")
        k(f"v_and_b32 v{t0+1}, 7, v{t0}")
        k(f"v_mul_u32_u24 v{t0+1}, 1280, v{t0+1}")
        k(f"v_lshrrev_b32 v{t0+2}, 3, v{t0}")
        k(f"v_lshl_add_u32 v{t0+1}, v{t0+2}, 4, v{t0+1}")
        k(f"v_cmp_gt_u32 vcc, 640, v{t0}")
        k(f"v_mov_b32 v{t0+3}, {OOB}")
        k(f"v_cndmask_b32 v{t0+1}, v{t0+3}, v{t0+1}, vcc")
        k(f"buffer_load_dwordx4 v[{t0+4}:{t0+7}], v{t0+1}, s[{srd}:{srd+3}], 0 offen")
        k(f"v_lshlrev_b32 v{t0}, 4, v{t0}")
        k("s_waitcnt vmcnt(0)")
        k(f"s_and_saveexec_b64 s[30:31], vcc")
        k(f"ds_write_b128 v{t0}, v[{t0+4}:{t0+7}]")
        k("s_mov_b64 exec, s[30:31]")

def stamp(k, i):
    if CFG['stamp']: k(f"s_memrealtime s[{80+2*i}:{81+2*i}]")

def stamp_out(k, nst, t):
    if not CFG['stamp']: return
    if CFG.get('clk'):
        k("s_memtime s[56:57]"); k("s_waitcnt lgkmcnt(0)")
    k("s_lshl_b32 s34, s2, 2"); k("s_add_u32 s34, s34, s3"); k("s_lshl_b32 s34, s34, 7")
    k("s_lshl_b32 s35, s92, 6"); k("s_add_u32 s34, s34, s35")
    k("s_add_u32 s34, s34, s40"); k("s_lshl_b32 s34, s34, 5"); k(f"s_add_u32 s34, s34, {WS_TRACE}")
    k(f"v_mov_b32 v{t}, {OOB}")
    k("v_cmp_eq_u32 vcc, 0, v1")
    k(f"v_cndmask_b32 v{t}, v{t}, 0, vcc")
    for i in range(nst):
        k(f"v_mov_b32 v{t+1}, s{80+2*i}")
        k(f"buffer_store_dword v{t+1}, v{t}, s[8:11], s34 offen offset:{i*4}")
    for i, sreg in ((6, 's57'), (7, 's56')):
        k(f"v_mov_b32 v{t+1}, {sreg}")
        k(f"buffer_store_dword v{t+1}, v{t}, s[8:11], s34 offen offset:{i*4}")

WS_EVT = 0x01C00000
def event(k, idx, t=14):
    if not CFG['stamp']: return
    k("s_memrealtime s[96:97]")
    k("s_lshl_b32 s34, s2, 7"); k("s_lshl_b32 s35, s92, 6"); k("s_add_u32 s34, s34, s35"); k(f"s_add_u32 s34, s34, {WS_EVT + 4*idx}")
    k("s_cmp_eq_u32 s3, 0"); k(f"s_cselect_b32 s34, s34, {OOB}")
    k(f"v_mov_b32 v{t}, {OOB}")
    k("v_cmp_eq_u32 vcc, 0, v1")
    k(f"v_cndmask_b32 v{t}, v{t}, 0, vcc")
    k("s_waitcnt lgkmcnt(0)")
    k(f"v_mov_b32 v{t+1}, s96")
    k(f"buffer_store_dword v{t+1}, v{t}, s[8:11], s34 offen")

def ensure(k, name, nfl, addr, tmp, need='s63', known='s62', sleep=2):
    k(f"s_cmp_ge_i32 {known}, {need}")
    k(f"s_cbranch_scc1 {k.ref(name + '_ok')}")
    if callable(addr):
        addr(k, tmp + 1); addr = tmp + 1
    k("s_mov_b32 s61, 0")
    k.lab(name)
    k(f"buffer_load_dword v{tmp}, v{addr}, s[8:11], 0 offen sc1")
    k("s_waitcnt vmcnt(0)")
    k(f"v_readlane_b32 {known}, v{tmp}, 0")
    for i in range(1, nfl):
        k(f"v_readlane_b32 s24, v{tmp}, {i}")
        k(f"s_min_i32 {known}, {known}, s24")
    k(f"s_cmp_ge_i32 {known}, {need}")
    k(f"s_cbranch_scc1 {k.ref(name + '_ok')}")
    k("s_add_u32 s61, s61, 1")
    k("s_cmp_ge_u32 s61, s60")
    k(f"s_cbranch_scc1 {k.ref(name + '_to')}")
    k(f"s_sleep {sleep}")
    k(f"s_branch {k.ref(name)}")
    k.lab(name + '_to')
    k("s_mov_b32 s60, 1")
    k.lab(name + '_ok')

def clr_addr(k, dst):
    k("s_and_b32 s24, s2, 7"); k("s_lshl_b32 s24, s24, 7"); k(f"s_add_u32 s24, s24, {WS_FLG + F_C}")
    k(f"v_and_b32 v{dst}, 3, v1"); k(f"v_lshl_add_u32 v{dst}, v{dst}, 2, s24")

def ensure_clear(k, name, tmp, blk):
    k("s_lshl_b32 s95, s92, 6"); k(f"s_add_u32 s95, s95, {blk}"); k("s_add_u32 s95, s95, 1")
    ensure(k, name, 3, clr_addr, tmp, need='s95', known='s59')

def wait_all(k, name, n, t, need, sleep=2):
    k("s_mov_b32 s61, 0")
    k.lab(name)
    k(f"buffer_load_dword v{t}, v{t+1}, s[8:11], 0 offen sc1")
    k("s_waitcnt vmcnt(0)")
    k(f"v_cmp_le_i32 vcc, {need}, v{t}")
    mask = ((1 << n) - 1) if isinstance(n, int) else n
    if isinstance(n, int): k(f"s_mov_b32 s25, {hex(mask & 0xffffffff)}"); mask = 's25'
    k(f"s_and_b32 s24, vcc_lo, {mask}")
    k(f"s_cmp_eq_u32 s24, {mask}")
    k(f"s_cbranch_scc1 {k.ref(name + '_ok')}")
    k("s_add_u32 s61, s61, 1")
    k("s_cmp_ge_u32 s61, s60")
    k(f"s_cbranch_scc1 {k.ref(name + '_to')}")
    k(f"s_sleep {sleep}")
    k(f"s_branch {k.ref(name)}")
    k.lab(name + '_to')
    k("s_mov_b32 s60, 1")
    k.lab(name + '_ok')

def pub_dword(k, saddr, val, t, copies=1):
    l = k.new('pb')
    k("s_cmp_eq_u32 s3, 0")
    k(f"s_cbranch_scc0 {k.ref(l)}")
    k(f"v_lshlrev_b32 v{t}, 7, v1"); k(f"v_add_u32 v{t}, {saddr}, v{t}")
    k(f"v_mov_b32 v{t+1}, {OOB}"); k(f"v_cmp_le_u32 vcc, {copies}, v1"); k(f"v_cndmask_b32 v{t}, v{t}, v{t+1}, vcc")
    k(f"v_mov_b32 v{t+1}, {val}")
    k(f"buffer_store_dword v{t+1}, v{t}, s[8:11], 0 offen sc1")
    k.lab(l)

def next_layer(k, again):
    k("s_cmp_eq_u32 s92, 0")
    k(f"s_cbranch_scc0 {k.ref('end')}")
    k("s_mov_b32 s92, 1")
    k(f"s_branch {k.ref(again)}")

def layer_bases(k):
    k(f"s_mul_i32 s93, s92, {SYNC_LAYER}"); k(f"s_add_u32 s93, s93, {WS_SYNC}")
    k(f"s_mul_i32 s94, s92, {F_LAYER}"); k(f"s_add_u32 s94, s94, {WS_FLG + F_Q}")


def role_S(k):
    L_M, L_X, L_SP, L_DUM, L_W5, L_ST = 0, 10240, 16384, 22528, 24576, 106496
    RS = 400
    ACC, AF, WS5 = 24, 48, 68
    KX = 240
    QX = 80
    T0, T1 = 92, 93
    def wreg(t, c):
        if t < 3: return 'a', t * 80 + c * 8
        return 'v', 96 + (t - 3) * 80 + c * 8
    k("s_mov_b32 s44, s2")
    k.ptr(KA_WQ, 6); k.ptr(KA_WK, 24); k.ptr(KA_MEM0, 26)
    k("s_waitcnt lgkmcnt(0)")
    k.srd(12, 6, D * HD * 2); k.srd(16, 24, D * HD * 2); k.srd(20, 26, 8 * 640 * 2)
    GO, LO, DAT = 4, 10, 24
    stage_offsets(k, 6, 24, HD * 2, RS, L_ST, GO, LO, 16)
    tr_base(k, 16, RS, L_ST, 17)
    k("s_mul_i32 s24, s3, 96")
    k("v_add_u32 v16, s24, v16")
    k("v_lshlrev_b32 v17, 4, v1")
    k(f"s_mul_i32 s24, s3, 20480"); k(f"s_add_u32 s24, s24, {L_W5}")
    k("v_add_u32 v17, s24, v17")
    k(f"s_mul_i32 s45, s44, 384")
    blocks = [(c, m) for c in range(10) for m in range(2)]
    def loads(bi):
        c, m = blocks[bi]
        d = DAT + 24 * (bi % 3)
        k(f"s_add_u32 s46, s45, {c * 64 * HD * 2}")
        for i in range(6):
            k(f"buffer_load_dwordx4 v[{d+4*i}:{d+4*i+3}], v{GO+i}, s[{12+4*m}:{15+4*m}], s46 offen")
    loads(0); loads(1)
    for bi, (c, m) in enumerate(blocks):
        d = DAT + 24 * (bi % 3)
        k(f"s_waitcnt vmcnt({6 if bi + 1 < len(blocks) else 0})")
        for i in range(6): k(f"ds_write_b128 v{LO+i}, v[{d+4*i}:{d+4*i+3}]")
        if bi + 2 < len(blocks): loads(bi + 2)
        k("s_waitcnt lgkmcnt(0)")
        k("s_barrier")
        for t in range(3):
            tt = 3 * m + t
            if tt < 5:
                kind, r = wreg(tt, c)
                tr_frag(k, r, kind, 16, RS, 32 * t)
        if m == 1:
            tr_frag(k, d, 'v', 16, RS, 64)
            k("s_waitcnt lgkmcnt(0)")
            k(f"ds_write_b128 v17, v[{d}:{d+3}] offset:{c*2048}")
            k(f"ds_write_b128 v17, v[{d+4}:{d+7}] offset:{c*2048+1024}")
        k("s_waitcnt lgkmcnt(0)")
        k("s_barrier")
    A_, B_, C_, D_ = 30, 31, 32, 33
    k("v_mov_b32 v6, v17")
    k(f"v_mov_b32 v{A_}, 0xeeee"); k("v_mov_b32 v4, 0x4444")
    k("v_cmp_gt_u32 vcc, 8, v2")
    k(f"v_cndmask_b32 v4, v{A_}, v4, vcc")
    k("v_lshlrev_b32 v5, 4, v1")
    k("s_lshl_b32 s24, s3, 10")
    k("v_add_u32 v7, s24, v5")
    k("s_lshl_b32 s24, s3, 9"); k("s_add_u32 s24, s24, 8192")
    k("v_lshlrev_b32 v8, 3, v1")
    k("v_add_u32 v8, s24, v8")
    k(f"s_mul_i32 s24, s3, 1536"); k(f"s_add_u32 s24, s24, {L_X}")
    k("v_lshlrev_b32 v9, 5, v2")
    k("v_lshl_add_u32 v9, v3, 3, v9")
    k("v_add_u32 v9, s24, v9")
    k(f"v_lshrrev_b32 v{A_}, 2, v2"); k(f"v_and_b32 v{B_}, 3, v2")
    k(f"v_lshl_add_u32 v11, v3, 2, v{A_}")
    k("v_lshlrev_b32 v11, 5, v11")
    k(f"v_lshl_add_u32 v11, v{B_}, 3, v11")
    k("v_add_u32 v11, s24, v11")
    k(f"v_add_u32 v{D_}, {L_DUM}, v5")
    k(f"s_mul_i32 s24, s3, 1408"); k(f"s_add_u32 s24, s24, {L_SP}")
    k(f"v_mul_u32_u24 v{A_}, 176, v2")
    k(f"v_add_u32 v{A_}, s24, v{A_}")
    k(f"v_lshl_add_u32 v12, v3, 5, v{A_}")
    k("v_cmp_gt_u32 vcc, 8, v2")
    k(f"v_cndmask_b32 v12, v{D_}, v12, vcc")
    k(f"v_lshl_add_u32 v13, v3, 4, v{A_}")
    k("v_add_u32 v13, 96, v13")
    k("v_cmp_le_u32 s[24:25], 2, v3")
    k("s_and_b64 vcc, vcc, s[24:25]")
    k(f"v_cndmask_b32 v13, v{D_}, v13, vcc")
    k(f"s_mul_i32 s24, s3, 5632"); k(f"s_add_u32 s24, s24, {L_ST}")
    k(f"v_mul_u32_u24 v{A_}, 176, v2")
    k(f"v_add_u32 v{A_}, s24, v{A_}")
    k(f"v_lshl_add_u32 v16, v3, 5, v{A_}")
    k(f"v_lshl_add_u32 v17, v3, 4, v{A_}")
    k("v_add_u32 v17, 96, v17")
    k("v_add_u32 v18, 2816, v17")
    k("v_cmp_le_u32 vcc, 2, v3")
    k(f"v_cndmask_b32 v17, v{D_}, v17, vcc")
    k(f"v_cndmask_b32 v18, v{D_}, v18, vcc")
    k(f"v_lshrrev_b32 v{A_}, 3, v1")
    k(f"v_and_b32 v{B_}, 7, v1")
    k(f"v_min_u32 v{C_}, 4, v{B_}")
    k(f"v_mul_u32_u24 v14, 176, v{A_}")
    k(f"v_lshl_add_u32 v14, v{C_}, 5, v14")
    k("s_mul_i32 s24, s3, 1408"); k(f"s_add_u32 s24, s24, {L_ST}")
    k("v_add_u32 v21, s24, v14")
    k(f"v_add_u32 v14, {L_SP}, v14")
    k(f"v_cmp_gt_u32 s[50:51], 5, v{B_}")
    k("s_lshl_b32 s24, s3, 3")
    k(f"v_add_u32 v{C_}, s24, v{A_}")
    k(f"v_lshlrev_b32 v{D_}, 2, v{B_}")
    k(f"v_sub_u32 v{C_}, v{C_}, v{D_}")
    k(f"v_mov_b32 v{D_}, 100")
    k(f"v_cmp_gt_u32 vcc, 4, v{B_}")
    k(f"v_cndmask_b32 v{C_}, v{D_}, v{C_}, vcc")
    for j in range(8):
        cj = j if j < 4 else j + 12
        k(f"v_cmp_le_i32 s[{64+2*j}:{65+2*j}], {cj}, v{C_}")
    k("s_lshr_b32 s24, s44, 1"); k("s_lshl_b32 s24, s24, 10")
    k("s_and_b32 s25, s44, 1"); k("s_lshl_b32 s25, s25, 7"); k("s_add_u32 s24, s24, s25")
    k(f"v_lshlrev_b32 v15, 8, v{B_}")
    k(f"v_lshl_add_u32 v15, v{A_}, 4, v15")
    k("v_add_u32 v15, s24, v15")
    k("s_lshr_b32 s24, s44, 3"); k("s_lshl_b32 s24, s24, 10")
    k("s_and_b32 s25, s44, 3"); k("s_lshl_b32 s25, s25, 8"); k("s_add_u32 s24, s24, s25")
    k("s_lshr_b32 s25, s44, 2"); k("s_and_b32 s25, s25, 1"); k("s_lshl_b32 s25, s25, 7"); k("s_add_u32 s24, s24, s25")
    k("s_add_u32 s24, s24, 16384")
    k(f"v_lshlrev_b32 v{C_}, 4, v{A_}")
    k(f"v_add_u32 v{C_}, s24, v{C_}")
    k(f"v_cmp_eq_u32 vcc, 4, v{B_}")
    k(f"v_cndmask_b32 v15, v15, v{C_}, vcc")
    k(f"v_mov_b32 v{C_}, {OOB}")
    k(f"v_cndmask_b32 v15, v{C_}, v15, s[50:51]")
    k(f"s_cmp_lt_u32 s3, 1"); k(f"s_cselect_b32 s24, 0, {OOB}")
    k("v_or_b32 v15, s24, v15")
    k("s_and_b32 s24, s3, 1"); k("s_lshl_b32 s24, s24, 7")
    k("s_lshr_b32 s25, s3, 1"); k("s_lshl_b32 s25, s25, 10")
    k("s_add_u32 s24, s24, s25")
    k("s_lshl_b32 s25, s44, 11"); k("s_add_u32 s25, s25, s24")
    k(f"v_lshlrev_b32 v22, 8, v{B_}")
    k(f"v_lshl_add_u32 v22, v{A_}, 4, v22")
    k("v_add_u32 v22, s25, v22")
    k("s_lshr_b32 s25, s44, 2"); k("s_lshl_b32 s25, s25, 11"); k("s_add_u32 s25, s25, s24")
    k("s_and_b32 s26, s44, 3"); k("s_lshl_b32 s26, s26, 8"); k("s_add_u32 s25, s25, s26"); k("s_add_u32 s25, s25, 65536")
    k(f"v_lshlrev_b32 v{C_}, 4, v{A_}")
    k(f"v_add_u32 v{C_}, s25, v{C_}")
    k(f"v_cmp_eq_u32 vcc, 4, v{B_}")
    k(f"v_cndmask_b32 v22, v22, v{C_}, vcc")
    k(f"v_mov_b32 v{C_}, {OOB}")
    k(f"v_cndmask_b32 v22, v{C_}, v22, s[50:51]")
    k("s_mul_i32 s24, s44, 12288"); k("s_mul_i32 s25, s3, 3072"); k("s_add_u32 s24, s24, s25")
    k("v_add_u32 v19, s24, v5")
    aprobe_addr(k, 23, 's2', RH_M)
    k("s_lshr_b32 s25, s44, 3")
    ahint_addr(k, 20, A_, 's25', RH_P, True)
    k("v_mov_b32 v0, 1")
    event(k, 1, 48)
    k.lab('s_layer')
    layer_bases(k)
    k("v_and_b32 v10, 1, v1")
    k("v_lshlrev_b32 v10, 12, v10")
    k(f"s_lshl_b32 s24, s44, 7"); k(f"s_add_u32 s24, s24, s94")
    k("v_add_u32 v10, s24, v10")
    m0_image(k, 20, 48)
    k("s_mov_b32 s40, 0")
    k(f"s_mov_b32 s41, {WS_KF}")
    k(f"s_add_u32 s42, s93, {O_PX}")
    k(f"s_add_u32 s43, s93, {O_PB}")
    k(f"s_mov_b32 s45, {WS_QF}")
    k(f"s_add_u32 s47, s93, {O_MB - SYNC_STEP}")
    k(f"s_add_u32 s48, s93, {O_HR - SYNC_STEP}")
    k(f"s_add_u32 s49, s93, {O_HS}")
    def kx_loads():
        for b in range(3):
            k(f"buffer_load_dwordx4 a[{KX+4*b}:{KX+4*b+3}], v19, s[8:11], s41 offen offset:{b*1024} sc1")
    ensure_clear(k, 's_ec0', 48, 's40')
    k("s_mov_b32 s62, -1"); k("s_mov_b32 s63, 1")
    ensure(k, 's_en0', 2, 10, 48)
    kx_loads()
    event(k, 2, 48)
    k("s_waitcnt lgkmcnt(0)")
    k(f"s_branch {k.ref('s_go')}")
    P0 = 48
    def px_tail(t0, t1):
        sum4x8(k, P0, 21, 5632)
        softmax8(k, P0, t0, t1, masks=64)
        k(f"buffer_store_dwordx4 v[{P0+8}:{P0+11}], v22, s[8:11], s42 offen sc1")
        k(f"s_add_u32 s42, s42, {SYNC_STEP}")
    k.lab('s_step')
    stamp(k, 0)
    for r in range(24): k(f"v_mov_b32 v{ACC+r}, 0")
    loads_ = [f"buffer_load_dwordx4 v[84:87], v7, s[8:11], s47 offen sc1",
              f"buffer_load_dwordx4 v[88:91], v7, s[8:11], s46 offen sc1",
              f"buffer_load_dwordx2 v[92:93], v8, s[8:11], s47 offen sc1"]
    k("s_add_u32 s46, s47, 4096")
    ensure_clear(k, 's_ec', 48, 's40')
    k("s_add_u32 s63, s40, 1")
    ensure(k, 's_en', 2, 10, 48)
    aprobe(k, 's_pr', 23, 's48', 9, [82, 83, 94, 95], CFG['pd_m'], CFG['pdep'], CFG['dly_m'])
    for l in loads_: k(l)
    kx_loads()
    px_tail(80, 81)
    shot_check(k, 's_pm', loads_, range(84, 94), 58, 4, CFG['sl_m'])
    o = 84
    stamp(k, 1)
    k(f"ds_write_b128 v7, v[{o}:{o+3}]")
    k(f"ds_write_b128 v7, v[{o+4}:{o+7}] offset:4096")
    k(f"ds_write_b64 v8, v[{o+8}:{o+9}]")
    k("s_waitcnt lgkmcnt(0)")
    k.lab('s_go2')
    k("s_barrier")
    lg = LG(k)
    def rdA(c): lg.issue(('A', c), f"ds_read_b128 v[{AF+4*(c%5)}:{AF+4*(c%5)+3}], v5 offset:{c*1024}")
    def rdW(c):
        b = WS5 + 8 * (c % 2)
        lg.issue(('W', c), f"ds_read_b128 v[{b}:{b+3}], v6 offset:{c*2048}")
        lg.issue(('W', c), f"ds_read_b128 v[{b+4}:{b+7}], v6 offset:{c*2048+1024}")
    rdA(0); rdW(0); rdA(1); rdW(1); rdA(2); rdA(3); rdA(4)
    for c in range(10):
        a = AF + 4 * (c % 5)
        lg.wait(('A', c))
        for t in range(5):
            kind, r = wreg(t, c)
            k(f"v_smfmac_f32_16x16x64_bf16 v[{ACC+4*t}:{ACC+4*t+3}], v[{a}:{a+3}], {kind}[{r}:{r+7}], v4")
        lg.wait(('W', c))
        b = WS5 + 8 * (c % 2)
        k(f"v_smfmac_f32_16x16x64_bf16 v[{ACC+20}:{ACC+23}], v[{a}:{a+3}], v[{b}:{b+7}], v4")
        if c + 2 < 10: rdW(c + 2)
        if c + 5 < 10: rdA(c + 5)
    stamp(k, 2)
    for b in range(3):
        k(f"buffer_load_dwordx4 v[{QX+4*b}:{QX+4*b+3}], v19, s[8:11], s45 offen offset:{b*1024} sc1")
    k("s_waitcnt vmcnt(3)")
    def s_hint(): ahint(k, 20, 0, 's49')
    if CFG['hs_pos'] == 2: s_hint()
    T = 48
    for t in range(3):
        q = ACC + 4 * t; kk = ACC + 12 + 4 * t
        for r in range(4): k(f"v_permlane32_swap_b32 v{q+r}, v{kk+r}")
        for r in range(4): k(f"v_add_f32 v{q+r}, v{q+r}, v{kk+r}")
        k(f"v_cvt_pk_bf16_f32 v{T+2*t}, v{q}, v{q+1}")
        k(f"v_cvt_pk_bf16_f32 v{T+2*t+1}, v{q+2}, v{q+3}")
        k(f"ds_write_b64 v9, v[{T+2*t}:{T+2*t+1}] offset:{t*512}")
    XA, XB = 24, 28
    k("s_waitcnt lgkmcnt(0)")
    k(f"ds_read_b64_tr_b16 v[{XA}:{XA+1}], v11")
    k(f"ds_read_b64_tr_b16 v[{XA+2}:{XA+3}], v11 offset:512")
    k(f"ds_read_b64_tr_b16 v[{XB}:{XB+1}], v11 offset:1024")
    k("s_waitcnt lgkmcnt(0)")
    SC = 64
    k(f"v_mfma_f32_16x16x32_bf16 v[{SC}:{SC+3}], a[{KX}:{KX+3}], v[{XA}:{XA+3}], 0")
    k(f"v_mfma_f32_16x16x32_bf16 v[{SC+4}:{SC+7}], a[{KX+4}:{KX+7}], v[{XA}:{XA+3}], 0")
    k(f"v_mfma_f32_16x16x32_bf16 v[{SC+8}:{SC+11}], v[{XA}:{XA+3}], v[{XA}:{XA+3}], 0")
    k(f"v_mfma_f32_16x16x16_bf16 v[{SC}:{SC+3}], a[{KX+8}:{KX+9}], v[{XB}:{XB+1}], v[{SC}:{SC+3}]")
    k(f"v_mfma_f32_16x16x16_bf16 v[{SC+4}:{SC+7}], a[{KX+10}:{KX+11}], v[{XB}:{XB+1}], v[{SC+4}:{SC+7}]")
    k(f"v_mfma_f32_16x16x16_bf16 v[{SC+8}:{SC+11}], v[{XB}:{XB+1}], v[{XB}:{XB+1}], v[{SC+8}:{SC+11}]")
    k(f"ds_write_b128 v12, v[{SC}:{SC+3}]")
    k(f"ds_write_b128 v12, v[{SC+4}:{SC+7}] offset:16")
    k(f"ds_write_b128 v13, v[{SC+8}:{SC+11}]")
    k("s_waitcnt lgkmcnt(0)")
    k("s_barrier")
    if CFG['hs_pos'] == 3: s_hint()
    stamp(k, 3)
    sum4x8(k, P0, 14, 1408)
    softmax8(k, P0, T0, T1)
    k(f"buffer_store_dwordx4 v[{P0+8}:{P0+11}], v15, s[8:11], s43 offen sc1")
    stamp(k, 4)
    sx = lambda kt, tt: (32 + (kt * 2 + tt) * 4) if (kt * 2 + tt) < 4 else (64 + ((kt * 2 + tt) - 4) * 4)
    k(f"s_waitcnt vmcnt(2)")
    keys32 = [f"a[{KX}:{KX+3}]", f"a[{KX+4}:{KX+7}]", f"v[{XA}:{XA+3}]"]
    keys16 = [f"a[{KX+8}:{KX+9}]", f"a[{KX+10}:{KX+11}]", f"v[{XB}:{XB+1}]"]
    for tt in range(2):
        for kt in range(3):
            a = sx(kt, tt)
            k(f"v_mfma_f32_16x16x32_bf16 v[{a}:{a+3}], {keys32[kt]}, v[{QX+4*tt}:{QX+4*tt+3}], 0")
    for tt in range(2):
        for kt in range(3):
            a = sx(kt, tt)
            k(f"v_mfma_f32_16x16x16_bf16 v[{a}:{a+3}], {keys16[kt]}, v[{QX+8+2*tt}:{QX+8+2*tt+1}], v[{a}:{a+3}]")
    for tt in range(2):
        k(f"ds_write_b128 v16, v[{sx(0,tt)}:{sx(0,tt)+3}] offset:{tt*2816}")
        k(f"ds_write_b128 v16, v[{sx(1,tt)}:{sx(1,tt)+3}] offset:{tt*2816+16}")
        k(f"ds_write_b128 v{17+tt}, v[{sx(2,tt)}:{sx(2,tt)+3}]")
    k("s_add_u32 s40, s40, 1")
    k(f"s_add_u32 s41, s41, {QF_SEG}")
    k(f"s_add_u32 s45, s45, {QF_SEG}")
    for sreg in ('s43', 's47', 's48', 's49'): k(f"s_add_u32 {sreg}, {sreg}, {SYNC_STEP}")
    k("s_waitcnt lgkmcnt(0)")
    k("s_barrier")
    stamp(k, 5)
    if CFG['stamp']:
        k("s_sub_u32 s40, s40, 1"); stamp_out(k, 6, 46); k("s_add_u32 s40, s40, 1")
    k("s_cmp_lt_u32 s40, 64")
    k(f"s_cbranch_scc1 {k.ref('s_step')}")
    px_tail(80, 81)
    event(k, 3, 48)
    next_layer(k, 's_layer')
    k.lab('s_go')
    for r in range(24): k(f"v_mov_b32 v{ACC+r}, 0")
    k("s_waitcnt vmcnt(0)")
    k(f"s_branch {k.ref('s_go2')}")

def role_S2(k):
    L_M, L_X, L_SP, L_DUM, L_W5, L_ST = 0, 10240, 16384, 22528, 24576, 106496
    RS = 400
    ACC, AF, WS5 = 24, 48, 68
    KX = 240
    QX = 80
    T0, T1 = 92, 93
    def wreg(t, c):
        if t < 3: return 'a', t * 80 + c * 8
        return 'v', 96 + (t - 4) * 80 + c * 8
    k("s_mov_b32 s44, s2")
    k.ptr(KA_WQ, 6); k.ptr(KA_WK, 24); k.ptr(KA_MEM0, 26)
    k("s_waitcnt lgkmcnt(0)")
    k.srd(12, 6, D * HD * 2); k.srd(16, 24, D * HD * 2); k.srd(20, 26, 8 * 640 * 2)
    GO, LO, DAT = 4, 10, 24
    stage_offsets(k, 6, 24, HD * 2, RS, L_ST, GO, LO, 16)
    tr_base(k, 16, RS, L_ST, 17)
    k("s_mul_i32 s24, s3, 96")
    k("v_add_u32 v16, s24, v16")
    k("v_lshlrev_b32 v17, 4, v1")
    k(f"s_mul_i32 s24, s3, 20480"); k(f"s_add_u32 s24, s24, {L_W5}")
    k("v_add_u32 v17, s24, v17")
    k(f"s_mul_i32 s45, s44, 384")
    blocks = [(c, m) for c in range(10) for m in range(2)]
    def loads(bi):
        c, m = blocks[bi]
        d = DAT + 24 * (bi % 3)
        k(f"s_add_u32 s46, s45, {c * 64 * HD * 2}")
        for i in range(6):
            k(f"buffer_load_dwordx4 v[{d+4*i}:{d+4*i+3}], v{GO+i}, s[{12+4*m}:{15+4*m}], s46 offen")
    loads(0); loads(1)
    for bi, (c, m) in enumerate(blocks):
        d = DAT + 24 * (bi % 3)
        k(f"s_waitcnt vmcnt({6 if bi + 1 < len(blocks) else 0})")
        for i in range(6): k(f"ds_write_b128 v{LO+i}, v[{d+4*i}:{d+4*i+3}]")
        if bi + 2 < len(blocks): loads(bi + 2)
        k("s_waitcnt lgkmcnt(0)")
        k("s_barrier")
        for t in range(3):
            tt = 3 * m + t
            if tt != 3:
                kind, r = wreg(tt, c)
                tr_frag(k, r, kind, 16, RS, 32 * t)
        if m == 1:
            tr_frag(k, d, 'v', 16, RS, 0)
            k("s_waitcnt lgkmcnt(0)")
            k(f"ds_write_b128 v17, v[{d}:{d+3}] offset:{c*2048}")
            k(f"ds_write_b128 v17, v[{d+4}:{d+7}] offset:{c*2048+1024}")
        k("s_waitcnt lgkmcnt(0)")
        k("s_barrier")
    A_, B_, C_, D_ = 30, 31, 32, 33
    k("v_mov_b32 v6, v17")
    k(f"v_mov_b32 v{A_}, 0xeeee"); k("v_mov_b32 v4, 0x4444")
    k("v_cmp_gt_u32 vcc, 8, v2")
    k(f"v_cndmask_b32 v4, v{A_}, v4, vcc")
    k("v_lshlrev_b32 v5, 4, v1")
    k("s_lshl_b32 s24, s3, 10")
    k("v_add_u32 v7, s24, v5")
    k("s_lshl_b32 s24, s3, 9"); k("s_add_u32 s24, s24, 8192")
    k("v_lshlrev_b32 v8, 3, v1")
    k("v_add_u32 v8, s24, v8")
    k(f"v_and_b32 v{A_}, 1, v2"); k(f"v_lshlrev_b32 v{A_}, 4, v{A_}")
    k(f"v_mov_b32 v{B_}, 0x3f80"); k(f"v_lshlrev_b32 v{B_}, v{A_}, v{B_}")
    k(f"v_lshrrev_b32 v{A_}, 2, v2"); k(f"v_cmp_eq_u32 vcc, v{A_}, v3"); k(f"v_cndmask_b32 v{B_}, 0, v{B_}, vcc")
    k(f"v_and_b32 v{A_}, 2, v2"); k(f"v_cmp_eq_u32 vcc, 0, v{A_}")
    k(f"v_cndmask_b32 v10, 0, v{B_}, vcc"); k(f"v_cndmask_b32 v11, v{B_}, 0, vcc")
    k(f"v_add_u32 v{D_}, {L_DUM}, v5")
    k(f"s_mul_i32 s24, s3, 1408"); k(f"s_add_u32 s24, s24, {L_SP}")
    k(f"v_mul_u32_u24 v{A_}, 176, v2")
    k(f"v_add_u32 v{A_}, s24, v{A_}")
    k(f"v_lshl_add_u32 v12, v3, 5, v{A_}")
    k("v_cmp_gt_u32 vcc, 8, v2")
    k(f"v_cndmask_b32 v12, v{D_}, v12, vcc")
    k(f"v_lshl_add_u32 v13, v3, 4, v{A_}")
    k("v_add_u32 v13, 96, v13")
    k("v_cmp_le_u32 s[24:25], 2, v3")
    k("s_and_b64 vcc, vcc, s[24:25]")
    k(f"v_cndmask_b32 v13, v{D_}, v13, vcc")
    k(f"s_mul_i32 s24, s3, 5632"); k(f"s_add_u32 s24, s24, {L_ST}")
    k(f"v_mul_u32_u24 v{A_}, 176, v2")
    k(f"v_add_u32 v{A_}, s24, v{A_}")
    k(f"v_lshl_add_u32 v16, v3, 5, v{A_}")
    k(f"v_lshl_add_u32 v17, v3, 4, v{A_}")
    k("v_add_u32 v17, 96, v17")
    k("v_add_u32 v18, 2816, v17")
    k("v_cmp_le_u32 vcc, 2, v3")
    k(f"v_cndmask_b32 v17, v{D_}, v17, vcc")
    k(f"v_cndmask_b32 v18, v{D_}, v18, vcc")
    k(f"v_lshrrev_b32 v{A_}, 3, v1")
    k(f"v_and_b32 v{B_}, 7, v1")
    k(f"v_min_u32 v{C_}, 4, v{B_}")
    k(f"v_mul_u32_u24 v14, 176, v{A_}")
    k(f"v_lshl_add_u32 v14, v{C_}, 5, v14")
    k("s_mul_i32 s24, s3, 1408"); k(f"s_add_u32 s24, s24, {L_ST}")
    k("v_add_u32 v21, s24, v14")
    k(f"v_add_u32 v14, {L_SP}, v14")
    k(f"v_cmp_gt_u32 s[50:51], 5, v{B_}")
    k("s_lshl_b32 s24, s3, 3")
    k(f"v_add_u32 v{C_}, s24, v{A_}")
    k(f"v_lshlrev_b32 v{D_}, 2, v{B_}")
    k(f"v_sub_u32 v{C_}, v{C_}, v{D_}")
    k(f"v_mov_b32 v{D_}, 100")
    k(f"v_cmp_gt_u32 vcc, 4, v{B_}")
    k(f"v_cndmask_b32 v{C_}, v{D_}, v{C_}, vcc")
    for j in range(8):
        cj = j if j < 4 else j + 12
        k(f"v_cmp_le_i32 s[{64+2*j}:{65+2*j}], {cj}, v{C_}")
    k("s_lshr_b32 s24, s44, 1"); k("s_lshl_b32 s24, s24, 10")
    k("s_and_b32 s25, s44, 1"); k("s_lshl_b32 s25, s25, 7"); k("s_add_u32 s24, s24, s25")
    k(f"v_lshlrev_b32 v15, 8, v{B_}")
    k(f"v_lshl_add_u32 v15, v{A_}, 4, v15")
    k("v_add_u32 v15, s24, v15")
    k("s_lshr_b32 s24, s44, 3"); k("s_lshl_b32 s24, s24, 10")
    k("s_and_b32 s25, s44, 3"); k("s_lshl_b32 s25, s25, 8"); k("s_add_u32 s24, s24, s25")
    k("s_lshr_b32 s25, s44, 2"); k("s_and_b32 s25, s25, 1"); k("s_lshl_b32 s25, s25, 7"); k("s_add_u32 s24, s24, s25")
    k("s_add_u32 s24, s24, 16384")
    k(f"v_lshlrev_b32 v{C_}, 4, v{A_}")
    k(f"v_add_u32 v{C_}, s24, v{C_}")
    k(f"v_cmp_eq_u32 vcc, 4, v{B_}")
    k(f"v_cndmask_b32 v15, v15, v{C_}, vcc")
    k(f"v_mov_b32 v{C_}, {OOB}")
    k(f"v_cndmask_b32 v15, v{C_}, v15, s[50:51]")
    k(f"s_cmp_lt_u32 s3, 1"); k(f"s_cselect_b32 s24, 0, {OOB}")
    k("v_or_b32 v15, s24, v15")
    k("s_and_b32 s24, s3, 1"); k("s_lshl_b32 s24, s24, 7")
    k("s_lshr_b32 s25, s3, 1"); k("s_lshl_b32 s25, s25, 10")
    k("s_add_u32 s24, s24, s25")
    k("s_lshl_b32 s25, s44, 11"); k("s_add_u32 s25, s25, s24")
    k(f"v_lshlrev_b32 v22, 8, v{B_}")
    k(f"v_lshl_add_u32 v22, v{A_}, 4, v22")
    k("v_add_u32 v22, s25, v22")
    k("s_lshr_b32 s25, s44, 2"); k("s_lshl_b32 s25, s25, 11"); k("s_add_u32 s25, s25, s24")
    k("s_and_b32 s26, s44, 3"); k("s_lshl_b32 s26, s26, 8"); k("s_add_u32 s25, s25, s26"); k("s_add_u32 s25, s25, 65536")
    k(f"v_lshlrev_b32 v{C_}, 4, v{A_}")
    k(f"v_add_u32 v{C_}, s25, v{C_}")
    k(f"v_cmp_eq_u32 vcc, 4, v{B_}")
    k(f"v_cndmask_b32 v22, v22, v{C_}, vcc")
    k(f"v_mov_b32 v{C_}, {OOB}")
    k(f"v_cndmask_b32 v22, v{C_}, v22, s[50:51]")
    k("s_mul_i32 s24, s44, 12288"); k("s_mul_i32 s25, s3, 3072"); k("s_add_u32 s24, s24, s25")
    k("v_add_u32 v19, s24, v5")
    aprobe_addr(k, 23, 's2', RH_M)
    k("s_lshr_b32 s25, s44, 3")
    ahint_addr(k, 20, A_, 's25', RH_P, True)
    k("v_mov_b32 v0, 1")
    event(k, 1, 48)
    k.lab('s_layer')
    layer_bases(k)
    k("v_and_b32 v9, 1, v1")
    k("v_lshlrev_b32 v9, 12, v9")
    k(f"s_lshl_b32 s24, s44, 7"); k(f"s_add_u32 s24, s24, s94")
    k("v_add_u32 v9, s24, v9")
    m0_image(k, 20, 48)
    k("s_mov_b32 s40, 0")
    k(f"s_mov_b32 s41, {WS_KF}")
    k(f"s_add_u32 s42, s93, {O_PX}")
    k(f"s_add_u32 s43, s93, {O_PB}")
    k(f"s_mov_b32 s45, {WS_QF}")
    k(f"s_add_u32 s47, s93, {O_MB - SYNC_STEP}")
    k(f"s_add_u32 s48, s93, {O_HR - SYNC_STEP}")
    k(f"s_add_u32 s49, s93, {O_HS}")
    def kx_loads():
        for b in range(3):
            k(f"buffer_load_dwordx4 a[{KX+4*b}:{KX+4*b+3}], v19, s[8:11], s41 offen offset:{b*1024} sc1")
    ensure_clear(k, 's_ec0', 48, 's40')
    k("s_mov_b32 s62, -1"); k("s_mov_b32 s63, 1")
    ensure(k, 's_en0', 2, 9, 48)
    kx_loads()
    event(k, 2, 48)
    k("s_waitcnt lgkmcnt(0)")
    for r in range(24): k(f"v_mov_b32 v{ACC+r}, 0")
    k("s_barrier")
    k("ds_read_b128 v[84:87], v7"); k("ds_read_b128 v[88:91], v7 offset:4096")
    k("s_waitcnt vmcnt(0) lgkmcnt(0)")
    for w in range(3):
        k(f"s_cmp_eq_u32 s3, {w}"); k(f"s_cbranch_scc1 {k.ref('s_gow' + str(w))}")
    k(f"s_branch {k.ref('s_gow3')}")
    P0 = 48
    def px_tail(t0, t1):
        sum4x8(k, P0, 21, 5632)
        softmax8(k, P0, t0, t1, masks=64)
        k(f"buffer_store_dwordx4 v[{P0+8}:{P0+11}], v22, s[8:11], s42 offen sc1")
        k(f"s_add_u32 s42, s42, {SYNC_STEP}")
    M32 = "v_mfma_f32_16x16x32_bf16"; M16 = "v_mfma_f32_16x16x16_bf16"
    XA, XB = 24, 32
    SC = [28, 36, 40]
    def epi_pair(p, dest):
        q = ACC + 4 * p; kk = ACC + 12 + 4 * p
        L = [f"v_permlane32_swap_b32 v{q+r}, v{kk+r}" for r in range(4)]
        L += [f"v_add_f32 v{q+r}, v{q+r}, v{kk+r}" for r in range(4)]
        L += [f"v_cvt_pk_bf16_f32 v{kk}, v{q}, v{q+1}", f"v_cvt_pk_bf16_f32 v{kk+1}, v{q+2}, v{q+3}"]
        L += [f"{M16} v[{q}:{q+3}], v[{kk}:{kk+1}], v[10:11], 0"]
        return L, [f"v_cvt_pk_bf16_f32 v{dest}, v{q}, v{q+1}", f"v_cvt_pk_bf16_f32 v{dest+1}, v{q+2}, v{q+3}"]
    def loop(w):
        sf = 'w' + str(w)
        k.lab('s_step' + sf)
        stamp(k, 0)
        for r in range(24): k(f"v_mov_b32 v{ACC+r}, 0")
        loads_ = [f"buffer_load_dwordx4 v[84:87], v7, s[8:11], s47 offen sc1",
                  f"buffer_load_dwordx4 v[88:91], v7, s[8:11], s46 offen sc1",
                  f"buffer_load_dwordx2 v[92:93], v8, s[8:11], s47 offen sc1"]
        k("s_add_u32 s46, s47, 4096")
        ensure_clear(k, 's_ec' + sf, 48, 's40')
        k("s_add_u32 s63, s40, 1")
        ensure(k, 's_en' + sf, 2, 9, 48)
        if CFG['kx_pos'] == 0: kx_loads()
        if CFG['px_pos'] == 0: px_tail(80, 81)
        aprobe(k, 's_pr' + sf, 23, 's48', CFG['tgt_m'], [82, 83, 94, 95], CFG['pd_m'], CFG['pdep'], CFG['dly_m'])
        for l in loads_: k(l)
        ny = 0
        if CFG['kx_pos'] == 1: kx_loads(); ny += 3
        if CFG['px_pos'] == 1: px_tail(80, 81); ny += 1
        shot_check(k, 's_pm' + sf, loads_, range(84, 94), 58, ny, CFG['sl_m'])
        if CFG['kx_pos'] == 2: kx_loads()
        stamp(k, 1)
        k(f"ds_write_b128 v7, v[84:87]")
        k(f"ds_write_b128 v7, v[88:91] offset:4096")
        k(f"ds_write_b64 v8, v[92:93]")
        k.lab('s_go' + sf)
        lg = LG(k)
        own = [w, 4 + w]; oth = [c for c in range(10) if c not in own]
        def rdW(c, slot):
            b = WS5 + 8 * slot
            lg.issue(('W', c), f"ds_read_b128 v[{b}:{b+3}], v6 offset:{c*2048}")
            lg.issue(('W', c), f"ds_read_b128 v[{b+4}:{b+7}], v6 offset:{c*2048+1024}")
        def rdA(j):
            a = AF + 4 * (j % 5)
            lg.issue(('A', j), f"ds_read_b128 v[{a}:{a+3}], v5 offset:{oth[j % 8]*1024}")
        def sm(t, c, a, slot=None):
            if t == 3: B = f"v[{WS5+8*slot}:{WS5+8*slot+7}]"
            else:
                kind, r = wreg(t, c); B = f"{kind}[{r}:{r+7}]"
            k(f"v_smfmac_f32_16x16x64_bf16 v[{ACC+4*t}:{ACC+4*t+3}], v[{a}:{a+3}], {B}, v4")
        rdW(own[0], 0); rdW(own[1], 1)
        for t in (0, 1, 2, 4, 5): sm(t, own[0], 84)
        lg.wait(('W', own[0])); sm(3, own[0], 84, 0)
        rdW(oth[0], 0)
        k("s_barrier")
        for j in range(5): rdA(j)
        for t in (0, 1, 2, 4, 5): sm(t, own[1], 88)
        lg.wait(('W', own[1])); sm(3, own[1], 88, 1)
        rdW(oth[1], 1)
        for j in range(8):
            c = oth[j]; a = AF + 4 * (j % 5)
            lg.wait(('A', j))
            for t in (0, 1, 4): sm(t, c, a)
            lg.wait(('W', c)); sm(3, c, a, j % 2)
            if j + 2 < 8: rdW(oth[j + 2], j % 2)
            rdA(j + 5)
        for b in range(3):
            k(f"buffer_load_dwordx4 v[{QX+4*b}:{QX+4*b+3}], v19, s[8:11], s45 offen offset:{b*1024} sc1")
        e1a, e1b = epi_pair(1, XA + 2); e0a, e0b = epi_pair(0, XA)
        E = [None, None] + e1a + e0a + [None] + e0b + e1b + [f"s_waitcnt vmcnt({4 if (CFG['kx_pos'] == 1 and CFG['px_pos'] == 1) else 3})", None]
        E += [f"{M32} v[{SC[0]}:{SC[0]+3}], a[{KX}:{KX+3}], v[{XA}:{XA+3}], 0",
              f"{M32} v[{SC[1]}:{SC[1]+3}], a[{KX+4}:{KX+7}], v[{XA}:{XA+3}], 0",
              f"{M32} v[{SC[2]}:{SC[2]+3}], v[{XA}:{XA+3}], v[{XA}:{XA+3}], 0"]
        def extra(n):
            for _ in range(n):
                if E:
                    t_ = E.pop(0)
                    if t_: k(t_)
        for j in range(8, 16):
            c = oth[j - 8]; a = AF + 4 * (j % 5)
            lg.wait(('A', j))
            sm(2, c, a); extra(2)
            sm(5, c, a); extra(2)
            if j + 5 < 16: rdA(j + 5)
        extra(100)
        stamp(k, 2)
        if CFG['hs_pos'] == 2 and w == 0: ahint(k, 20, 0, 's49')
        e2a, e2b = epi_pair(2, XB)
        for t_ in e2a: k(t_)
        if CFG['hs_pos'] == 20 and w == 0: ahint(k, 20, 0, 's49')
        for t_ in e2b: k(t_)
        if CFG['hs_pos'] == 21 and w == 0: ahint(k, 20, 0, 's49')
        k(f"{M16} v[{SC[0]}:{SC[0]+3}], a[{KX+8}:{KX+9}], v[{XB}:{XB+1}], v[{SC[0]}:{SC[0]+3}]")
        k(f"{M16} v[{SC[1]}:{SC[1]+3}], a[{KX+10}:{KX+11}], v[{XB}:{XB+1}], v[{SC[1]}:{SC[1]+3}]")
        k(f"{M16} v[{SC[2]}:{SC[2]+3}], v[{XB}:{XB+1}], v[{XB}:{XB+1}], v[{SC[2]}:{SC[2]+3}]")
        if CFG['hs_pos'] == 22 and w == 0: ahint(k, 20, 0, 's49')
        k(f"ds_write_b128 v12, v[{SC[0]}:{SC[0]+3}]")
        k(f"ds_write_b128 v12, v[{SC[1]}:{SC[1]+3}] offset:16")
        k(f"ds_write_b128 v13, v[{SC[2]}:{SC[2]+3}]")
        if CFG['hs_pos'] == 23 and w == 0: ahint(k, 20, 0, 's49')
        k("s_waitcnt lgkmcnt(0)")
        k("s_barrier")
        stamp(k, 3)
        if w == 0:
            if CFG['hs_pos'] == 3: ahint(k, 20, 0, 's49')
            sum4x8(k, P0, 14, 1408)
            softmax8(k, P0, T0, T1)
            k(f"buffer_store_dwordx4 v[{P0+8}:{P0+11}], v15, s[8:11], s43 offen sc1")
        stamp(k, 4)
        sx = lambda kt, tt: [36, 40, 44, 64, 68, 72][kt * 2 + tt]
        k(f"s_waitcnt vmcnt({2 if w == 0 else 0})")
        keys32 = [f"a[{KX}:{KX+3}]", f"a[{KX+4}:{KX+7}]", f"v[{XA}:{XA+3}]"]
        keys16 = [f"a[{KX+8}:{KX+9}]", f"a[{KX+10}:{KX+11}]", f"v[{XB}:{XB+1}]"]
        for tt in range(2):
            for kt in range(3):
                a = sx(kt, tt)
                k(f"{M32} v[{a}:{a+3}], {keys32[kt]}, v[{QX+4*tt}:{QX+4*tt+3}], 0")
        for tt in range(2):
            for kt in range(3):
                a = sx(kt, tt)
                k(f"{M16} v[{a}:{a+3}], {keys16[kt]}, v[{QX+8+2*tt}:{QX+8+2*tt+1}], v[{a}:{a+3}]")
        for tt in range(2):
            k(f"ds_write_b128 v16, v[{sx(0,tt)}:{sx(0,tt)+3}] offset:{tt*2816}")
            k(f"ds_write_b128 v16, v[{sx(1,tt)}:{sx(1,tt)+3}] offset:{tt*2816+16}")
            k(f"ds_write_b128 v{17+tt}, v[{sx(2,tt)}:{sx(2,tt)+3}]")
        k("s_add_u32 s40, s40, 1")
        k(f"s_add_u32 s41, s41, {QF_SEG}")
        k(f"s_add_u32 s45, s45, {QF_SEG}")
        for sreg in ('s43', 's47', 's48', 's49'): k(f"s_add_u32 {sreg}, {sreg}, {SYNC_STEP}")
        k("s_waitcnt lgkmcnt(0)")
        k("s_barrier")
        stamp(k, 5)
        if CFG['stamp']:
            k("s_sub_u32 s40, s40, 1"); stamp_out(k, 6, 46); k("s_add_u32 s40, s40, 1")
        k("s_cmp_lt_u32 s40, 64")
        k(f"s_cbranch_scc1 {k.ref('s_step' + sf)}")
        if w < 3: k(f"s_branch {k.ref('s_end')}")
    for w in range(4): loop(w)
    k.lab('s_end')
    px_tail(80, 81)
    event(k, 3, 48)
    next_layer(k, 's_layer')

def role_V(k):
    L_M, L_V, L_WO, L_ST = 0, 10240, 16384, 16384 + 73728
    RS1, RS2 = 400, 656
    MA, VACC, VA, STG = 16, 56, 68, 80
    def wv(t, c): return 'a', t * 80 + c * 8
    def wo(t, c):
        i = t * 3 + c
        if i < 2: return 'a', 240 + 8 * i
        return 'v', 104 + 8 * (i - 2)
    k("s_sub_u32 s44, s2, 32")
    k.ptr(KA_WV, 6); k.ptr(KA_WO, 24); k.ptr(KA_MEM0, 26)
    k("s_waitcnt lgkmcnt(0)")
    k.srd(12, 6, D * HD * 2); k.srd(16, 24, D * HD * 2); k.srd(20, 26, 8 * 640 * 2)
    GO, LO, DAT = 4, 10, 24
    stage_offsets(k, 6, 24, HD * 2, RS1, L_ST, GO, LO, 16)
    tr_base(k, 16, RS1, L_ST, 17)
    k("s_mul_i32 s24, s3, 96")
    k("v_add_u32 v16, s24, v16")
    k(f"s_mul_i32 s45, s44, 384")
    def loads(c):
        d = DAT + 24 * (c % 3)
        k(f"s_add_u32 s46, s45, {c * 64 * HD * 2}")
        for i in range(6):
            k(f"buffer_load_dwordx4 v[{d+4*i}:{d+4*i+3}], v{GO+i}, s[12:15], s46 offen")
    loads(0); loads(1)
    for c in range(10):
        d = DAT + 24 * (c % 3)
        k(f"s_waitcnt vmcnt({6 if c + 1 < 10 else 0})")
        for i in range(6): k(f"ds_write_b128 v{LO+i}, v[{d+4*i}:{d+4*i+3}]")
        if c + 2 < 10: loads(c + 2)
        k("s_waitcnt lgkmcnt(0)")
        k("s_barrier")
        for t in range(3):
            kind, r = wv(t, c)
            tr_frag(k, r, kind, 16, RS1, 32 * t)
        k("s_waitcnt lgkmcnt(0)")
        k("s_barrier")
    GO, LO, DAT = 4, 14, 24
    stage_offsets(k, 10, 40, 1280, RS2, L_ST, GO, LO, 64)
    tr_base(k, 72, RS2, L_ST, 64)
    k("s_and_b32 s24, s3, 1"); k("s_mul_i32 s24, s24, 320")
    k("v_add_u32 v72, s24, v72")
    k("v_lshlrev_b32 v73, 4, v1")
    k(f"s_mul_i32 s24, s3, 18432"); k(f"s_add_u32 s24, s24, {L_WO}")
    k("v_add_u32 v73, s24, v73")
    k(f"s_mul_i32 s45, s44, {192*1280}")
    for c in range(3):
        for hf in range(2):
            k(f"s_add_u32 s46, s45, {c*64*1280 + hf*640}")
            for i in range(10):
                k(f"buffer_load_dwordx4 v[{DAT+4*i}:{DAT+4*i+3}], v{GO+i}, s[16:19], s46 offen")
            k("s_waitcnt vmcnt(0)")
            for i in range(10): k(f"ds_write_b128 v{LO+i}, v[{DAT+4*i}:{DAT+4*i+3}]")
            k("s_waitcnt lgkmcnt(0)")
            k("s_barrier")
            l = k.new('wo')
            k("s_lshr_b32 s24, s3, 1")
            k(f"s_cmp_eq_u32 s24, {hf}")
            k(f"s_cbranch_scc0 {k.ref(l)}")
            for t in range(10):
                if t < 7:
                    kind, r = wo(t, c)
                    tr_frag(k, r, kind, 72, RS2, 32 * t)
                else:
                    tr_frag(k, 64, 'v', 72, RS2, 32 * t)
                    k("s_waitcnt lgkmcnt(0)")
                    o = ((t - 7) * 3 + c) * 2048
                    k(f"ds_write_b128 v73, v[64:67] offset:{o}")
                    k(f"ds_write_b128 v73, v[68:71] offset:{o+1024}")
                    k("s_waitcnt lgkmcnt(0)")
            k("s_waitcnt lgkmcnt(0)")
            k.lab(l)
            k("s_barrier")
    k("v_mov_b32 v6, v73")
    k("v_mov_b32 v4, 0x4444"); k("v_mov_b32 v5, 0xeeee")
    k("v_cmp_gt_u32 vcc, 8, v2")
    k("v_cndmask_b32 v4, v5, v4, vcc")
    k("v_lshlrev_b32 v5, 4, v1")
    k("s_lshl_b32 s24, s3, 10")
    k("v_add_u32 v7, s24, v5")
    k("s_lshl_b32 s24, s3, 9"); k("s_add_u32 s24, s24, 8192")
    k("v_lshlrev_b32 v8, 3, v1")
    k("v_add_u32 v8, s24, v8")
    k("v_and_b32 v64, 7, v2"); k("v_lshlrev_b32 v9, 5, v64")
    k("v_lshrrev_b32 v64, 3, v2"); k("v_lshl_add_u32 v9, v64, 4, v9")
    k("v_and_b32 v64, 1, v3"); k("v_lshl_add_u32 v9, v64, 3, v9")
    k(f"s_mul_i32 s24, s3, 768"); k(f"s_add_u32 s24, s24, {L_V}")
    k("v_add_u32 v9, s24, v9")
    k("v_lshrrev_b32 v65, 1, v3")
    k("v_lshl_add_u32 v10, v65, 8, v9")
    k("v_lshrrev_b32 v64, 2, v2"); k("v_lshlrev_b32 v11, 5, v64")
    k("v_and_b32 v64, 3, v2"); k("v_lshl_add_u32 v11, v64, 3, v11")
    k("v_lshl_add_u32 v11, v3, 8, v11")
    k(f"v_add_u32 v11, {L_V}, v11")
    k("s_mul_i32 s24, s3, 10"); k("s_lshl_b32 s24, s24, 13"); k("s_lshl_b32 s25, s44, 8"); k("s_add_u32 s24, s24, s25")
    k("v_lshlrev_b32 v14, 13, v3")
    k("v_lshl_add_u32 v14, v2, 4, v14")
    k("v_add_u32 v14, s24, v14")
    k("v_lshrrev_b32 v64, 1, v3")
    k("v_lshlrev_b32 v15, 13, v64")
    k("v_lshl_add_u32 v15, v2, 4, v15")
    k("v_add_u32 v15, s24, v15")
    k(f"v_add_u32 v15, {8*8192}, v15")
    k("v_and_b32 v64, 1, v3")
    k("v_cmp_eq_u32 vcc, 0, v64")
    k(f"v_mov_b32 v64, {OOB}")
    k("v_cndmask_b32 v15, v64, v15, vcc")
    aprobe_addr(k, 12, 's2', RH_M)
    k("v_mov_b32 v0, 1")
    event(k, 1, 64)
    k.lab('v_layer')
    layer_bases(k)
    m0_image(k, 20, 64)
    k("s_mov_b32 s40, 0")
    k(f"s_add_u32 s43, s93, {O_VOM}")
    k(f"s_add_u32 s47, s93, {O_MB - SYNC_STEP}")
    k(f"s_add_u32 s45, s93, {O_HR - SYNC_STEP}")
    ensure_clear(k, 'v_ec0', 64, 's40')
    k("s_waitcnt lgkmcnt(0)")
    k(f"s_branch {k.ref('v_go2')}")
    k.lab('v_step')
    stamp(k, 0)
    loads_ = [f"buffer_load_dwordx4 v[68:71], v7, s[8:11], s47 offen sc1",
              f"buffer_load_dwordx4 v[72:75], v7, s[8:11], s48 offen sc1",
              f"buffer_load_dwordx2 v[76:77], v8, s[8:11], s47 offen sc1"]
    k("s_add_u32 s48, s47, 4096")
    ensure_clear(k, 'v_ec', 64, 's40')
    aprobe(k, 'v_pr', 12, 's45', 9, [80, 81, 82, 83], CFG['pd_m'], CFG['pdep'], CFG['dly_v'])
    stamp(k, 5)
    for l in loads_: k(l)
    shot_check(k, 'v_pm', loads_, range(68, 78), 26, 0, CFG['sl_m'])
    o = 68
    stamp(k, 1)
    k(f"ds_write_b128 v7, v[{o}:{o+3}]")
    k(f"ds_write_b128 v7, v[{o+4}:{o+7}] offset:4096")
    k(f"ds_write_b64 v8, v[{o+8}:{o+9}]")
    k("s_waitcnt lgkmcnt(0)")
    k.lab('v_go2')
    k("s_barrier")
    lg = LG(k)
    for c in range(10): lg.issue(('A', c), f"ds_read_b128 v[{MA+4*c}:{MA+4*c+3}], v5 offset:{c*1024}")
    for r in range(12): k(f"v_mov_b32 v{VACC+r}, 0")
    for c in range(10):
        lg.wait(('A', c))
        for t in range(3):
            kind, r = wv(t, c)
            k(f"v_smfmac_f32_16x16x64_bf16 v[{VACC+4*t}:{VACC+4*t+3}], v[{MA+4*c}:{MA+4*c+3}], {kind}[{r}:{r+7}], v4")
    def rdWo(t, c, slot):
        b = STG + 8 * slot; o = ((t - 7) * 3 + c) * 2048
        lg.issue(('W', t, c), f"ds_read_b128 v[{b}:{b+3}], v6 offset:{o}")
        lg.issue(('W', t, c), f"ds_read_b128 v[{b+4}:{b+7}], v6 offset:{o+1024}")
    for c in range(3): rdWo(7, c, c)
    stamp(k, 2)
    k("s_waitcnt vmcnt(0)")
    for r in range(40): k(f"v_mov_b32 v{MA+r}, 0")
    for r in range(4): k(f"v_permlane32_swap_b32 v{VACC+r}, v{VACC+4+r}")
    for r in range(4): k(f"v_add_f32 v{VACC+r}, v{VACC+r}, v{VACC+4+r}")
    k(f"v_cvt_pk_bf16_f32 v{VA}, v{VACC}, v{VACC+1}")
    k(f"v_cvt_pk_bf16_f32 v{VA+1}, v{VACC+2}, v{VACC+3}")
    for r in range(4): k(f"v_mov_b32 v{VACC+4+r}, v{VACC+8+r}")
    for r in range(4): k(f"v_permlane32_swap_b32 v{VACC+8+r}, v{VACC+4+r}")
    for r in range(4): k(f"v_add_f32 v{VACC+8+r}, v{VACC+8+r}, v{VACC+4+r}")
    k(f"v_cvt_pk_bf16_f32 v{VA+2}, v{VACC+8}, v{VACC+9}")
    k(f"v_cvt_pk_bf16_f32 v{VA+3}, v{VACC+10}, v{VACC+11}")
    lg.issue('x', f"ds_write_b64 v10, v[{VA}:{VA+1}]")
    lg.issue('x', f"ds_write_b64 v9, v[{VA+2}:{VA+3}] offset:512")
    lg.all()
    k("s_barrier")
    for c in range(3):
        lg.issue(('V', c), f"ds_read_b64_tr_b16 v[{VA+4*c}:{VA+4*c+1}], v11 offset:{c*1024}")
        lg.issue(('V', c), f"ds_read_b64_tr_b16 v[{VA+4*c+2}:{VA+4*c+3}], v11 offset:{c*1024+128}")
    stamp(k, 3)
    acc = lambda t: MA + 4 * t
    def mm(t, c, B):
        k(f"v_smfmac_f32_16x16x64_bf16 v[{acc(t)}:{acc(t)+3}], v[{VA+4*c}:{VA+4*c+3}], {B}, v4")
    def B_reg(t, c):
        kind, r = wo(t, c); return f"{kind}[{r}:{r+7}]"
    OUT = 56
    def epi(T, o):
        L = []
        t0, t1, t2, t3 = T
        for (x, y) in ((t0, t2), (t1, t3)):
            for r in range(4): L.append(f"v_permlane32_swap_b32 v{acc(x)+r}, v{acc(y)+r}")
            for r in range(4): L.append(f"v_add_f32 v{acc(x)+r}, v{acc(x)+r}, v{acc(y)+r}")
        L.append(f"v_cvt_pk_bf16_f32 v{o}, v{acc(t0)}, v{acc(t0)+1}")
        L.append(f"v_cvt_pk_bf16_f32 v{o+1}, v{acc(t0)+2}, v{acc(t0)+3}")
        L.append(f"v_cvt_pk_bf16_f32 v{o+2}, v{acc(t1)}, v{acc(t1)+1}")
        L.append(f"v_cvt_pk_bf16_f32 v{o+3}, v{acc(t1)+2}, v{acc(t1)+3}")
        L.append(f"v_permlane16_swap_b32 v{o}, v{o+2}")
        L.append(f"v_permlane16_swap_b32 v{o+1}, v{o+3}")
        for r in range(4): L.append(f"v_min_u32 v{o+r}, -2, v{o+r}")
        return L
    for c in range(3):
        lg.wait(('V', c))
        for t in range(4): mm(t, c, B_reg(t, c))
    for c in range(3):
        for t in (4, 5, 6): mm(t, c, B_reg(t, c))
        mm(7, c, f"v[{STG+8*c}:{STG+8*c+7}]")
        rdWo(8, c, c)
    for s_ in epi([0, 1, 2, 3], OUT): k(s_)
    k(f"buffer_store_dwordx4 v[{OUT}:{OUT+3}], v14, s[8:11], s43 offen sc1")
    for c in range(3):
        lg.wait(('W', 8, c))
        mm(8, c, f"v[{STG+8*c}:{STG+8*c+7}]")
        rdWo(9, c, c)
    for s_ in epi([4, 5, 6, 7], OUT + 4): k(s_)
    k("s_add_u32 s49, s43, 32768")
    k(f"buffer_store_dwordx4 v[{OUT+4}:{OUT+7}], v14, s[8:11], s49 offen sc1")
    for c in range(3):
        lg.wait(('W', 9, c))
        mm(9, c, f"v[{STG+8*c}:{STG+8*c+7}]")
    o = OUT + 8
    for r in range(4): k(f"v_permlane32_swap_b32 v{acc(8)+r}, v{acc(9)+r}")
    for r in range(4): k(f"v_add_f32 v{acc(8)+r}, v{acc(8)+r}, v{acc(9)+r}")
    k(f"v_cvt_pk_bf16_f32 v{o}, v{acc(8)}, v{acc(8)+1}")
    k(f"v_cvt_pk_bf16_f32 v{o+1}, v{acc(8)+2}, v{acc(8)+3}")
    k(f"v_mov_b32 v{o+2}, v{o}")
    k(f"v_mov_b32 v{o+3}, v{o+1}")
    k(f"v_permlane16_swap_b32 v{o}, v{o+2}")
    k(f"v_permlane16_swap_b32 v{o+1}, v{o+3}")
    for r in range(4): k(f"v_min_u32 v{o+r}, -2, v{o+r}")
    k(f"buffer_store_dwordx4 v[{o}:{o+3}], v15, s[8:11], s43 offen sc1")
    stamp(k, 4)
    stamp_out(k, 6, 46)
    k("s_add_u32 s40, s40, 1")
    for sreg in ('s43', 's47', 's45'): k(f"s_add_u32 {sreg}, {sreg}, {SYNC_STEP}")
    k("s_cmp_lt_u32 s40, 64")
    k(f"s_cbranch_scc1 {k.ref('v_step')}")
    event(k, 3, 64)
    next_layer(k, 'v_layer')

def role_V2(k):
    L_M, L_V, L_WO, L_ST = 0, 10240, 16384, 16384 + 73728
    RS1, RS2 = 400, 656
    MA, VACC, VA, STG = 16, 56, 68, 80
    def wv(t, c): return 'a', t * 80 + c * 8
    def wo(t, c):
        i = t * 3 + c
        if i < 2: return 'a', 240 + 8 * i
        return 'v', 104 + 8 * (i - 2)
    k("s_sub_u32 s44, s2, 32")
    k.ptr(KA_WV, 6); k.ptr(KA_WO, 24); k.ptr(KA_MEM0, 26)
    k("s_waitcnt lgkmcnt(0)")
    k.srd(12, 6, D * HD * 2); k.srd(16, 24, D * HD * 2); k.srd(20, 26, 8 * 640 * 2)
    GO, LO, DAT = 4, 10, 24
    stage_offsets(k, 6, 24, HD * 2, RS1, L_ST, GO, LO, 16)
    tr_base(k, 16, RS1, L_ST, 17)
    k("s_mul_i32 s24, s3, 96")
    k("v_add_u32 v16, s24, v16")
    k(f"s_mul_i32 s45, s44, 384")
    def loads(c):
        d = DAT + 24 * (c % 3)
        k(f"s_add_u32 s46, s45, {c * 64 * HD * 2}")
        for i in range(6):
            k(f"buffer_load_dwordx4 v[{d+4*i}:{d+4*i+3}], v{GO+i}, s[12:15], s46 offen")
    loads(0); loads(1)
    for c in range(10):
        d = DAT + 24 * (c % 3)
        k(f"s_waitcnt vmcnt({6 if c + 1 < 10 else 0})")
        for i in range(6): k(f"ds_write_b128 v{LO+i}, v[{d+4*i}:{d+4*i+3}]")
        if c + 2 < 10: loads(c + 2)
        k("s_waitcnt lgkmcnt(0)")
        k("s_barrier")
        for t in range(3):
            kind, r = wv(t, c)
            tr_frag(k, r, kind, 16, RS1, 32 * t)
        k("s_waitcnt lgkmcnt(0)")
        k("s_barrier")
    GO, LO, DAT = 4, 14, 24
    stage_offsets(k, 10, 40, 1280, RS2, L_ST, GO, LO, 64)
    tr_base(k, 72, RS2, L_ST, 64)
    k("s_and_b32 s24, s3, 1"); k("s_mul_i32 s24, s24, 320")
    k("v_add_u32 v72, s24, v72")
    k("v_lshlrev_b32 v73, 4, v1")
    k(f"s_mul_i32 s24, s3, 18432"); k(f"s_add_u32 s24, s24, {L_WO}")
    k("v_add_u32 v73, s24, v73")
    k(f"s_mul_i32 s45, s44, {192*1280}")
    for c in range(3):
        for hf in range(2):
            k(f"s_add_u32 s46, s45, {c*64*1280 + hf*640}")
            for i in range(10):
                k(f"buffer_load_dwordx4 v[{DAT+4*i}:{DAT+4*i+3}], v{GO+i}, s[16:19], s46 offen")
            k("s_waitcnt vmcnt(0)")
            for i in range(10): k(f"ds_write_b128 v{LO+i}, v[{DAT+4*i}:{DAT+4*i+3}]")
            k("s_waitcnt lgkmcnt(0)")
            k("s_barrier")
            l = k.new('wo')
            k("s_lshr_b32 s24, s3, 1")
            k(f"s_cmp_eq_u32 s24, {hf}")
            k(f"s_cbranch_scc0 {k.ref(l)}")
            for t in range(10):
                if t < 7:
                    kind, r = wo(t, c)
                    tr_frag(k, r, kind, 72, RS2, 32 * t)
                else:
                    tr_frag(k, 64, 'v', 72, RS2, 32 * t)
                    k("s_waitcnt lgkmcnt(0)")
                    o = ((t - 7) * 3 + c) * 2048
                    k(f"ds_write_b128 v73, v[64:67] offset:{o}")
                    k(f"ds_write_b128 v73, v[68:71] offset:{o+1024}")
                    k("s_waitcnt lgkmcnt(0)")
            k("s_waitcnt lgkmcnt(0)")
            k.lab(l)
            k("s_barrier")
    k("v_mov_b32 v6, v73")
    k("v_mov_b32 v4, 0x4444"); k("v_mov_b32 v5, 0xeeee")
    k("v_cmp_gt_u32 vcc, 8, v2")
    k("v_cndmask_b32 v4, v5, v4, vcc")
    k("v_lshlrev_b32 v5, 4, v1")
    k("s_lshl_b32 s24, s3, 10")
    k("v_add_u32 v7, s24, v5")
    k("s_lshl_b32 s24, s3, 9"); k("s_add_u32 s24, s24, 8192")
    k("v_lshlrev_b32 v8, 3, v1")
    k("v_add_u32 v8, s24, v8")
    k("v_and_b32 v64, 7, v2"); k("v_lshlrev_b32 v9, 5, v64")
    k("v_lshrrev_b32 v64, 3, v2"); k("v_lshl_add_u32 v9, v64, 4, v9")
    k("v_and_b32 v64, 1, v3"); k("v_lshl_add_u32 v9, v64, 3, v9")
    k(f"s_mul_i32 s24, s3, 768"); k(f"s_add_u32 s24, s24, {L_V}")
    k("v_add_u32 v9, s24, v9")
    k("v_lshrrev_b32 v65, 1, v3")
    k("v_lshl_add_u32 v10, v65, 8, v9")
    k("v_lshrrev_b32 v64, 2, v2"); k("v_lshlrev_b32 v11, 5, v64")
    k("v_and_b32 v64, 3, v2"); k("v_lshl_add_u32 v11, v64, 3, v11")
    k("v_lshl_add_u32 v11, v3, 8, v11")
    k(f"v_add_u32 v11, {L_V}, v11")
    k("s_mul_i32 s24, s3, 10"); k("s_lshl_b32 s24, s24, 13"); k("s_lshl_b32 s25, s44, 8"); k("s_add_u32 s24, s24, s25")
    k("v_lshlrev_b32 v14, 13, v3")
    k("v_lshl_add_u32 v14, v2, 4, v14")
    k("v_add_u32 v14, s24, v14")
    k("v_lshrrev_b32 v64, 1, v3")
    k("v_lshlrev_b32 v15, 13, v64")
    k("v_lshl_add_u32 v15, v2, 4, v15")
    k("v_add_u32 v15, s24, v15")
    k(f"v_add_u32 v15, {8*8192}, v15")
    k("v_and_b32 v64, 1, v3")
    k("v_cmp_eq_u32 vcc, 0, v64")
    k(f"v_mov_b32 v64, {OOB}")
    k("v_cndmask_b32 v15, v64, v15, vcc")
    aprobe_addr(k, 12, 's2', RH_M)
    k("v_mov_b32 v0, 1")
    event(k, 1, 64)
    k.lab('v_layer')
    layer_bases(k)
    m0_image(k, 20, 64)
    k("s_mov_b32 s40, 0")
    k(f"s_add_u32 s43, s93, {O_VOM}")
    k(f"s_add_u32 s47, s93, {O_MB - SYNC_STEP}")
    k(f"s_add_u32 s45, s93, {O_HR - SYNC_STEP}")
    ensure_clear(k, 'v_ec0', 64, 's40')
    for r in range(16, 68): k(f"v_mov_b32 v{r}, 0")
    k("s_waitcnt lgkmcnt(0)")
    k("s_barrier")
    k("ds_read_b128 v[68:71], v7"); k("ds_read_b128 v[72:75], v7 offset:4096")
    k("s_waitcnt lgkmcnt(0)")
    for w in range(3):
        k(f"s_cmp_eq_u32 s3, {w}"); k(f"s_cbranch_scc1 {k.ref('v_gow' + str(w))}")
    k(f"s_branch {k.ref('v_gow3')}")
    SMF = "v_smfmac_f32_16x16x64_bf16"
    def loop(w):
        sf = 'w' + str(w)
        k.lab('v_step' + sf)
        stamp(k, 0)
        for r in range(16, 68): k(f"v_mov_b32 v{r}, 0")
        loads_ = [f"buffer_load_dwordx4 v[68:71], v7, s[8:11], s47 offen sc1",
                  f"buffer_load_dwordx4 v[72:75], v7, s[8:11], s48 offen sc1",
                  f"buffer_load_dwordx2 v[76:77], v8, s[8:11], s47 offen sc1"]
        k("s_add_u32 s48, s47, 4096")
        ensure_clear(k, 'v_ec' + sf, 78, 's40')
        aprobe(k, 'v_pr' + sf, 12, 's45', CFG['tgt_m'], [80, 81, 82, 83], CFG['pd_m'], CFG['pdep'], CFG['dly_v'])
        stamp(k, 5)
        for l in loads_: k(l)
        shot_check(k, 'v_pm' + sf, loads_, range(68, 78), 104 - 1, 0, CFG['sl_m'])
        stamp(k, 1)
        k(f"ds_write_b128 v7, v[68:71]")
        k(f"ds_write_b128 v7, v[72:75] offset:4096")
        k(f"ds_write_b64 v8, v[76:77]")
        k.lab('v_go' + sf)
        lg = LG(k)
        own = [w, 4 + w]; oth = [c for c in range(10) if c not in own]
        SL = [80, 84, 88, 92, 96, 100, 76, 68]
        def rdA(j):
            lg.issue(('A', j), f"ds_read_b128 v[{SL[j]}:{SL[j]+3}], v5 offset:{oth[j]*1024}")
        def sm(t, c, a):
            kind, r = wv(t, c)
            k(f"{SMF} v[{VACC+4*t}:{VACC+4*t+3}], v[{a}:{a+3}], {kind}[{r}:{r+7}], v4")
        for t in range(3): sm(t, own[0], 68)
        k("s_waitcnt lgkmcnt(0)")
        k("s_barrier")
        for j in range(8): rdA(j)
        for t in (2, 0, 1): sm(t, own[1], 72)
        for j in range(8):
            lg.wait(('A', j)); sm(2, oth[j], SL[j])
        E = [None] * 5
        E += [f"v_mov_b32 v{72+r}, v{VACC+8+r}" for r in range(4)] + [None]
        E += [f"v_permlane32_swap_b32 v{VACC+8+r}, v{72+r}" for r in range(4)]
        E += [f"v_add_f32 v{VACC+8+r}, v{VACC+8+r}, v{72+r}" for r in range(4)]
        E += [f"v_cvt_pk_bf16_f32 v72, v{VACC+8}, v{VACC+9}", f"v_cvt_pk_bf16_f32 v73, v{VACC+10}, v{VACC+11}"]
        E += [('x', f"ds_write_b64 v9, v[72:73] offset:512")]
        def extra(n):
            for _ in range(n):
                if E:
                    t_ = E.pop(0)
                    if isinstance(t_, tuple): lg.issue(*t_)
                    elif t_: k(t_)
        for j in range(8):
            sm(0, oth[j], SL[j]); extra(2)
            sm(1, oth[j], SL[j]); extra(2)
        extra(100)
        stamp(k, 2)
        for r in range(4): k(f"v_permlane32_swap_b32 v{VACC+r}, v{VACC+4+r}")
        for r in range(4): k(f"v_add_f32 v{VACC+r}, v{VACC+r}, v{VACC+4+r}")
        k(f"v_cvt_pk_bf16_f32 v{VA}, v{VACC}, v{VACC+1}")
        k(f"v_cvt_pk_bf16_f32 v{VA+1}, v{VACC+2}, v{VACC+3}")
        lg.issue('x', f"ds_write_b64 v10, v[{VA}:{VA+1}]")
        lg.all()
        k("s_barrier")
        for c in range(3):
            lg.issue(('V', c), f"ds_read_b64_tr_b16 v[{VA+4*c}:{VA+4*c+1}], v11 offset:{c*1024}")
            lg.issue(('V', c), f"ds_read_b64_tr_b16 v[{VA+4*c+2}:{VA+4*c+3}], v11 offset:{c*1024+128}")
        def rdWo(t, c, slot):
            b = STG + 8 * slot; o = ((t - 7) * 3 + c) * 2048
            lg.issue(('W', t, c), f"ds_read_b128 v[{b}:{b+3}], v6 offset:{o}")
            lg.issue(('W', t, c), f"ds_read_b128 v[{b+4}:{b+7}], v6 offset:{o+1024}")
        for c in range(3): rdWo(7, c, c)
        stamp(k, 3)
        acc = lambda t: MA + 4 * t
        def mm(t, c, B):
            k(f"{SMF} v[{acc(t)}:{acc(t)+3}], v[{VA+4*c}:{VA+4*c+3}], {B}, v4")
        def B_reg(t, c):
            kind, r = wo(t, c); return f"{kind}[{r}:{r+7}]"
        OUT = 56
        def epi(T, o):
            L = []
            t0, t1, t2, t3 = T
            for (x, y) in ((t0, t2), (t1, t3)):
                for r in range(4): L.append(f"v_permlane32_swap_b32 v{acc(x)+r}, v{acc(y)+r}")
                for r in range(4): L.append(f"v_add_f32 v{acc(x)+r}, v{acc(x)+r}, v{acc(y)+r}")
            L.append(f"v_cvt_pk_bf16_f32 v{o}, v{acc(t0)}, v{acc(t0)+1}")
            L.append(f"v_cvt_pk_bf16_f32 v{o+1}, v{acc(t0)+2}, v{acc(t0)+3}")
            L.append(f"v_cvt_pk_bf16_f32 v{o+2}, v{acc(t1)}, v{acc(t1)+1}")
            L.append(f"v_cvt_pk_bf16_f32 v{o+3}, v{acc(t1)+2}, v{acc(t1)+3}")
            L.append(None)
            L.append(f"v_permlane16_swap_b32 v{o}, v{o+2}")
            L.append(f"v_permlane16_swap_b32 v{o+1}, v{o+3}")
            for r in range(4): L.append(f"v_min_u32 v{o+r}, -2, v{o+r}")
            return L
        for c in range(3):
            lg.wait(('V', c))
            for t in range(4): mm(t, c, B_reg(t, c))
        E += [None, None] + epi([0, 1, 2, 3], OUT) + [f"buffer_store_dwordx4 v[{OUT}:{OUT+3}], v14, s[8:11], s43 offen sc1"]
        for c in range(3):
            for t in (4, 5, 6): mm(t, c, B_reg(t, c)); extra(2)
            lg.wait(('W', 7, c))
            mm(7, c, f"v[{STG+8*c}:{STG+8*c+7}]"); extra(2)
            rdWo(8, c, c)
        extra(100)
        k("s_add_u32 s49, s43, 32768")
        E += [None] + epi([4, 5, 6, 7], OUT + 4) + [f"buffer_store_dwordx4 v[{OUT+4}:{OUT+7}], v14, s[8:11], s49 offen sc1"]
        for c in range(3):
            lg.wait(('W', 8, c))
            mm(8, c, f"v[{STG+8*c}:{STG+8*c+7}]"); extra(CFG['v_x8'])
            rdWo(9, c, c)
        extra(CFG['v_x9'])
        for c in range(3):
            lg.wait(('W', 9, c))
            mm(9, c, f"v[{STG+8*c}:{STG+8*c+7}]"); extra(3)
        extra(100)
        o = OUT + 8
        for r in range(4): k(f"v_permlane32_swap_b32 v{acc(8)+r}, v{acc(9)+r}")
        for r in range(4): k(f"v_add_f32 v{acc(8)+r}, v{acc(8)+r}, v{acc(9)+r}")
        k(f"v_cvt_pk_bf16_f32 v{o}, v{acc(8)}, v{acc(8)+1}")
        k(f"v_cvt_pk_bf16_f32 v{o+1}, v{acc(8)+2}, v{acc(8)+3}")
        k(f"v_mov_b32 v{o+2}, v{o}")
        k(f"v_mov_b32 v{o+3}, v{o+1}")
        k(f"v_permlane16_swap_b32 v{o}, v{o+2}")
        k(f"v_permlane16_swap_b32 v{o+1}, v{o+3}")
        for r in range(4): k(f"v_min_u32 v{o+r}, -2, v{o+r}")
        k(f"buffer_store_dwordx4 v[{o}:{o+3}], v15, s[8:11], s43 offen sc1")
        stamp(k, 4)
        stamp_out(k, 6, 46)
        k("s_add_u32 s40, s40, 1")
        for sreg in ('s43', 's47', 's45'): k(f"s_add_u32 {sreg}, {sreg}, {SYNC_STEP}")
        k("s_cmp_lt_u32 s40, 64")
        k(f"s_cbranch_scc1 {k.ref('v_step' + sf)}")
        if w < 3: k(f"s_branch {k.ref('v_end')}")
    for w in range(4): loop(w)
    k.lab('v_end')
    event(k, 3, 64)
    next_layer(k, 'v_layer')

def role_R(k):
    BX, BN, PX, PM, VM, A1, A2 = 16, 48, 80, 96, 100, 108, 112
    TQ = 204
    k.lab('r_top')
    k("s_barrier")
    lk = k.new('rk')
    k("s_sub_u32 s24, s2, 64")
    k("s_cmp_ge_u32 s24, 24"); k(f"s_cbranch_scc1 {k.ref(lk)}")
    k("s_and_b32 s44, s24, 7"); k("s_lshr_b32 s45, s24, 3")
    k("s_cmp_eq_u32 s92, 0"); k("s_cselect_b32 s46, 32, 2")
    A.role_K2(k, Hooks())
    event(k, 5, 14)
    k.lab(lk)
    k("s_sub_u32 s44, s2, 64")
    k("v_lshlrev_b32 v5, 4, v1")
    k("s_lshl_b32 s24, s44, 15"); k("s_lshl_b32 s25, s3, 13"); k("s_add_u32 s24, s24, s25")
    k("v_add_u32 v6, s24, v5")
    k("v_add_u32 v7, 4096, v6")
    k("s_lshl_b32 s24, s3, 12")
    k("v_add_u32 v8, s24, v5")
    k("s_lshl_b32 s24, s3, 10"); k("s_add_u32 s24, s24, 16384")
    k("v_add_u32 v9, s24, v5")
    k("s_lshl_b32 s24, s44, 13"); k("s_lshl_b32 s25, s3, 11"); k("s_add_u32 s24, s24, s25")
    k("v_add_u32 v10, s24, v5")
    k(f"v_and_b32 v{TQ}, 7, v2"); k(f"v_mul_u32_u24 v11, 80, v{TQ}")
    k("v_lshl_add_u32 v11, v3, 4, v11")
    k("s_mul_i32 s24, s3, 640")
    k("v_add_u32 v11, s24, v11")
    k(f"v_add_u32 v{TQ}, 8192, v5")
    k("v_cmp_gt_u32 vcc, 8, v2")
    k(f"v_cndmask_b32 v11, v{TQ}, v11, vcc")
    k(f"v_and_b32 v{TQ}, 7, v2"); k(f"v_mul_u32_u24 v12, 80, v{TQ}")
    k(f"v_lshrrev_b32 v{TQ}, 3, v2"); k(f"v_lshl_add_u32 v12, v{TQ}, 5, v12")
    k("v_lshlrev_b32 v13, 4, v2")
    k("s_lshl_b32 s24, s44, 8")
    k("v_add_u32 v13, s24, v13")
    k(f"v_mov_b32 v{TQ}, {OOB}")
    k(f"v_cmp_gt_u32 vcc, 1, v3")
    k(f"v_cndmask_b32 v13, v{TQ}, v13, vcc")
    k("v_cmp_le_u32 s[50:51], 8, v2")
    k("s_and_b32 s25, s44, 15"); k("s_lshr_b32 s25, s25, 2")
    k("s_sub_u32 s26, s44, 32"); k("s_lshr_b32 s26, s26, 1")
    k("s_cmp_ge_u32 s44, 32"); k("s_cselect_b32 s25, s26, s25")
    ahint_addr(k, 120, TQ, 's25', RH_M, False)
    aprobe_addr(k, 125, 's44', RH_P)
    k("v_mov_b32 v122, 12288")
    k("v_mov_b32 v123, 0")
    k("s_barrier")
    k("ds_write_b32 v122, v123")
    k("v_mov_b32 v123, 1")
    k("s_waitcnt lgkmcnt(0)")
    k("s_barrier")
    layer_bases(k)
    k("s_mov_b32 s40, 0")
    k(f"s_mov_b32 s41, {WS_VOX}")
    k(f"s_add_u32 s45, s93, {O_HS}")
    k(f"s_add_u32 s46, s93, {O_HR}")
    k(f"s_add_u32 s43, s93, {O_PB}")
    k(f"s_add_u32 s42, s93, {O_VOM}")
    k(f"s_add_u32 s47, s93, {O_MB}")
    if CFG['rv_off']:
        k("s_cmp_eq_u32 s92, 1"); k(f"s_cselect_b32 s24, {OOB}, 0"); k("v_or_b32 v6, s24, v6"); k("v_or_b32 v7, s24, v7")
    def vox_loads():
        for q in range(4):
            k(f"buffer_load_dwordx4 v[{BN+4*q}:{BN+4*q+3}], v6, s[8:11], s41 offen offset:{q*1024} sc1")
        for q in range(4):
            k(f"buffer_load_dwordx4 v[{BN+16+4*q}:{BN+16+4*q+3}], v7, s[8:11], s41 offen offset:{q*1024} sc1")
        k(f"s_add_u32 s41, s41, {VOX_SEG}")
    k("v_and_b32 v252, 7, v1")
    k("v_lshlrev_b32 v252, 7, v252")
    k(f"s_lshl_b32 s24, s3, 10"); k(f"s_add_u32 s24, s24, {3*4096}"); k("s_add_u32 s24, s24, s94")
    k("v_add_u32 v252, s24, v252")
    k("s_mov_b32 s62, -1"); k("s_mov_b32 s63, 1")
    ensure(k, 'r_en0', 8, 252, 253)
    vox_loads()
    event(k, 2, 204)
    k.lab('r_step')
    k("s_waitcnt vmcnt(0)")
    for r in range(32): k(f"v_mov_b32 v{BX+r}, v{BN+r}")
    stamp(k, 0)
    loads_ = [f"buffer_load_dwordx4 v[{PX+4*q}:{PX+4*q+3}], v8, s[8:11], s43 offen offset:{q*1024} sc1" for q in range(4)]
    loads_ += [f"buffer_load_dwordx4 v[{PM}:{PM+3}], v9, s[8:11], s43 offen sc1"]
    loads_ += [f"buffer_load_dwordx4 v[{VM+4*q}:{VM+4*q+3}], v10, s[8:11], s42 offen offset:{q*1024} sc1" for q in range(2)]
    ensure_clear(k, 'r_ec', 253, 's40')
    aprobe(k, 'r_pr', 125, 's45', CFG['tgt_p'], [116, 117, 118, 119], CFG['pd_p'], CFG['pdep'], CFG['dly_p'])
    stamp(k, 4)
    loads_ = loads_[5:] + loads_[:5]
    for l in loads_: k(l)
    if CFG['hr_pos'] == 0:
        k("s_mov_b64 exec, 1")
        k("ds_add_rtn_u32 v124, v122, v123")
        k("s_mov_b64 exec, -1")
        if CFG['dly_hr']: k(f"s_sleep {CFG['dly_hr']}")
        k("s_waitcnt lgkmcnt(0)")
        k("v_readfirstlane_b32 s24, v124")
        k("s_and_b32 s24, s24, 3")
        k("s_cmp_eq_u32 s24, 3"); k(f"s_cselect_b32 s24, 0, {OOB}")
        k("v_or_b32 v126, s24, v120")
        ahint(k, 126, 123, 's46')
    shot_check(k, 'r_p', loads_, range(PX, VM + 8), TQ, 1 if CFG['hr_pos'] == 0 else 0, CFG['sl_p'])
    if CFG['hr_pos'] == 1:
        k("s_mov_b64 exec, 1")
        k("ds_add_rtn_u32 v124, v122, v123")
        k("s_mov_b64 exec, -1")
    stamp(k, 1)
    k(f"v_mfma_f32_16x16x32_bf16 v[{A1}:{A1+3}], v[{VM}:{VM+3}], v[{PM}:{PM+3}], 0")
    k(f"v_mfma_f32_16x16x32_bf16 v[{A2}:{A2+3}], v[{VM+4}:{VM+7}], v[{PM}:{PM+3}], 0")
    for q in range(4):
        k(f"v_mfma_f32_16x16x32_bf16 v[{A1}:{A1+3}], v[{BX+8*q}:{BX+8*q+3}], v[{PX+4*q}:{PX+4*q+3}], v[{A1}:{A1+3}]")
        k(f"v_mfma_f32_16x16x32_bf16 v[{A2}:{A2+3}], v[{BX+8*q+4}:{BX+8*q+7}], v[{PX+4*q}:{PX+4*q+3}], v[{A2}:{A2+3}]")
        if q == 0 and CFG['hr_pos'] == 1:
            lh = k.new('nh')
            k("s_waitcnt lgkmcnt(0)")
            k("v_readfirstlane_b32 s24, v124")
            k("s_and_b32 s24, s24, 3")
            k(f"s_cmp_eq_u32 s24, {CFG['hr_wave']}")
            k(f"s_cbranch_scc0 {k.ref(lh)}")
            ahint(k, 120, 123, 's46')
            k.lab(lh)
    k("s_and_b32 s24, s40, 1"); k("s_mul_i32 s24, s24, 2560")
    k("v_add_u32 v14, s24, v11")
    k("v_add_u32 v15, s24, v12")
    for r in range(4): k(f"v_cndmask_b32 v{A1+r}, v{A1+r}, v{A2+r}, s[50:51]")
    for r in range(4): k(f"v_add_f32 v{A1+r}, v{A1+r}, v{A1+r} row_ror:8 row_mask:0xf bank_mask:0xf")
    k(f"ds_write_b128 v14, v[{A1}:{A1+3}]")
    k("s_waitcnt lgkmcnt(0)")
    k("s_barrier")
    stamp(k, 2)
    l = k.new('np')
    k("s_cmp_eq_u32 s3, 0")
    k(f"s_cbranch_scc0 {k.ref(l)}")
    Q0 = 220
    sum4x8(k, Q0, 15, 640)
    for q in range(4): k(f"v_cvt_pk_bf16_f32 v{Q0+8+q}, v{Q0+2*q}, v{Q0+2*q+1}")
    for q in range(4): k(f"v_min_u32 v{Q0+8+q}, -2, v{Q0+8+q}")
    k(f"buffer_store_dwordx4 v[{Q0+8}:{Q0+11}], v13, s[8:11], s47 offen sc1")
    k.lab(l)
    stamp(k, 3)
    k("s_add_u32 s63, s40, 2"); k("s_min_u32 s63, s63, 64")
    if CFG['dly_vox']: k(f"s_sleep {CFG['dly_vox']}")
    ensure(k, 'r_en', 8, 252, 253)
    vox_loads()
    stamp(k, 5)
    stamp_out(k, 6, TQ)
    k("s_add_u32 s40, s40, 1")
    for sreg in ('s42', 's43', 's47', 's45', 's46'): k(f"s_add_u32 {sreg}, {sreg}, {SYNC_STEP}")
    k("s_cmp_lt_u32 s40, 64")
    k(f"s_cbranch_scc1 {k.ref('r_step')}")
    k("s_waitcnt vmcnt(0)")
    event(k, 3, 204)
    next_layer(k, 'r_top')
def flag_pub(k, val):
    l = k.new('fp')
    k("s_cmp_eq_u32 s3, 0")
    k(f"s_cbranch_scc0 {k.ref(l)}")
    k(f"v_mov_b32 v15, {val}")
    k("buffer_store_dword v15, v14, s[8:11], 0 offen sc1")
    k.lab(l)

def flag_addr(k, role_sreg_or_const):
    if isinstance(role_sreg_or_const, int): k(f"s_mov_b32 s24, {role_sreg_or_const * 4096}")
    else: k(f"s_lshl_b32 s24, {role_sreg_or_const}, 12")
    k("s_lshl_b32 s25, s44, 7"); k("s_add_u32 s24, s24, s25"); k(f"s_add_u32 s24, s24, s94")
    k("v_mov_b32 v14, s24")
    k(f"v_mov_b32 v15, {OOB}")
    k("v_cmp_eq_u32 vcc, 0, v1")
    k("v_cndmask_b32 v14, v15, v14, vcc")

X_L_O = 83968
def x_init(k):
    TQ = 192
    k("s_sub_u32 s70, s2, 104")
    k("s_mul_i32 s71, s70, 205"); k("s_lshr_b32 s71, s71, 12")
    k("s_mul_i32 s24, s71, 20"); k("s_sub_u32 s70, s70, s24")
    k("s_cmp_lt_u32 s71, 4"); k("s_cselect_b32 s64, s71, 64")
    if CFG['x_off']: k("s_cmp_eq_u32 s92, 1"); k("s_cselect_b32 s64, 64, s64")
    k("s_lshl_b32 s24, s70, 16"); k("s_lshl_b32 s25, s3, 13"); k("s_add_u32 s24, s24, s25")
    k("v_add_u32 v240, s24, v5")
    k("v_add_u32 v241, 4096, v240")
    k("s_lshl_b32 s24, s70, 14"); k("s_lshl_b32 s25, s3, 11"); k("s_add_u32 s24, s24, s25")
    k("v_add_u32 v242, s24, v5")
    k("s_lshl_b32 s24, s3, 14")
    k(f"v_add_u32 v{TQ+1}, s24, v5")
    for jj in range(4): k(f"v_add_u32 v{212+jj}, {jj*4096}, v{TQ+1}")
    k("s_lshl_b32 s24, s3, 12"); k("s_add_u32 s24, s24, 65536")
    k("v_add_u32 v216, s24, v5")
    k(f"s_lshl_b32 s24, s3, 12"); k(f"s_add_u32 s24, s24, {X_L_O}")
    k("v_add_u32 v217, s24, v5")
    k(f"s_and_b32 s24, s3, 1"); k("s_lshl_b32 s24, s24, 10"); k(f"s_add_u32 s24, s24, {X_L_O}")
    k("v_add_u32 v218, s24, v5")
    k("s_and_b32 s24, s3, 1"); k("s_mul_i32 s24, s24, 20480"); k("s_lshl_b32 s25, s70, 10"); k("s_add_u32 s24, s24, s25")
    k("v_add_u32 v219, s24, v5")
    k("s_and_b32 s24, s3, 1"); k("s_lshl_b32 s24, s24, 4")
    k("v_add_u32 v243, s24, v2")
    k("v_mul_u32_u24 v243, 1280, v243")
    k("v_lshl_add_u32 v243, v3, 3, v243")
    k("s_lshl_b32 s24, s70, 6")
    k("v_add_u32 v243, s24, v243")
    k.ptr(KA_OUT, 26); k("s_waitcnt lgkmcnt(0)"); k.srd(12, 26, S * D * 2)
    k(f"s_mul_i32 s65, s71, {VOX_SEG}"); k(f"s_add_u32 s65, s65, {WS_VOX}")
    k(f"s_mul_i32 s24, s71, {SYNC_STEP}"); k("s_add_u32 s24, s24, s93")
    k(f"s_add_u32 s66, s24, {O_VOM}"); k(f"s_add_u32 s67, s24, {O_PX}")
    k(f"s_mul_i32 s68, s71, 40960")
    k("v_and_b32 v252, 7, v1")
    k("v_lshlrev_b32 v252, 7, v252")
    k(f"s_lshl_b32 s24, s3, 10"); k(f"s_add_u32 s24, s24, {3*4096}"); k("s_add_u32 s24, s24, s94")
    k("v_add_u32 v252, s24, v252")
    k("s_mov_b32 s69, -1")
    k("s_lshl_b32 s24, s71, 7"); k("s_lshl_b32 s25, s70, 2"); k("s_add_u32 s24, s24, s25"); k(f"s_add_u32 s24, s24, {WS_FLG + F_X}")
    k("s_cmp_eq_u32 s3, 0"); k(f"s_cselect_b32 s24, s24, {OOB}")
    k("v_mov_b32 v245, s24"); k(f"v_mov_b32 v246, {OOB}"); k("v_cmp_eq_u32 vcc, 0, v1"); k("v_cndmask_b32 v245, v246, v245, vcc")
    k("s_mov_b32 s79, -1")

def x_pending(k):
    k("s_cmp_ge_i32 s79, 0"); k(f"s_cselect_b32 s24, 0, {OOB}")
    k("v_or_b32 v246, s24, v245"); k("v_mov_b32 v247, s79")
    k("buffer_store_dword v247, v246, s[8:11], 0 offen sc1")
    k("s_mov_b32 s79, -1")

def x_iter(k):
    BX, XP, XM, VM, OA, TQ, RES, Q0 = 16, 80, 144, 160, 176, 192, 196, 16
    k("s_add_u32 s63, s64, 1")
    ensure(k, 'x_en', 8, 252, 253, known='s69')
    ensure_clear(k, 'x_ec', 253, 's64')
    k("s_add_u32 s52, s65, 32768")
    for rr in range(2):
        so = 's65' if rr == 0 else 's52'
        for q in range(8):
            r = BX + rr * 32 + 4 * q
            k(f"buffer_load_dwordx4 v[{r}:{r+3}], v{240 + q//4}, s[8:11], {so} offen offset:{(q%4)*1024} sc1")
    k("s_add_u32 s24, s68, s73")
    k(f"buffer_load_dwordx4 v[{RES}:{RES+3}], v219, s[8:11], s24 offen sc1")
    loads_ = []
    for j in range(8):
        for tt in range(2):
            r = XP + (j * 2 + tt) * 4
            loads_.append(f"buffer_load_dwordx4 v[{r}:{r+3}], v{212 + j//2}, s[8:11], s67 offen offset:{(j%2)*2048 + tt*1024} sc1")
    for q in range(2):
        for tt in range(2):
            r = XM + (q * 2 + tt) * 4
            loads_.append(f"buffer_load_dwordx4 v[{r}:{r+3}], v216, s[8:11], s67 offen offset:{q*2048 + tt*1024} sc1")
    poll(k, 'x_p0', loads_[15:16], range(XP + 60, XP + 64), TQ, CFG['sl_x0'], 0)
    k("s_add_u32 s53, s66, 8192")
    for rr in range(2):
        so = 's66' if rr == 0 else 's53'
        for q in range(2):
            r = VM + rr * 8 + 4 * q
            loads_.append(f"buffer_load_dwordx4 v[{r}:{r+3}], v242, s[8:11], {so} offen offset:{q*1024} sc1")
    poll(k, 'x_p1', loads_, range(XP, VM + 16), TQ, CFG['sl_x'], 0)
    oa = lambda rr, tt: OA + (rr * 2 + tt) * 4
    for j in range(8):
        for rr in range(2):
            for tt in range(2):
                a = oa(rr, tt); r = XP + (j * 2 + tt) * 4; b = BX + rr * 32 + 4 * j
                c = f"v[{a}:{a+3}]" if j else "0"
                k(f"v_mfma_f32_16x16x32_bf16 v[{a}:{a+3}], v[{b}:{b+3}], v[{r}:{r+3}], {c}")
    for q in range(2):
        for rr in range(2):
            for tt in range(2):
                a = oa(rr, tt); b = VM + rr * 8 + 4 * q; r = XM + (q * 2 + tt) * 4
                k(f"v_mfma_f32_16x16x32_bf16 v[{a}:{a+3}], v[{b}:{b+3}], v[{r}:{r+3}], v[{a}:{a+3}]")
    for t in range(4): k(f"ds_write_b128 v217, v[{OA+4*t}:{OA+4*t+3}] offset:{t*1024}")
    k("s_waitcnt lgkmcnt(0)")
    k("s_barrier")
    lskip = k.new('xs')
    k("s_cmp_ge_u32 s3, 2"); k(f"s_cbranch_scc1 {k.ref(lskip)}")
    for rr in range(2):
        for w in range(4): k(f"ds_read_b128 v[{Q0+16*rr+4*w}:{Q0+16*rr+4*w+3}], v218 offset:{w*4096 + rr*2048}")
    O = 48
    for rr in range(2):
        q = Q0 + 16 * rr
        k(f"s_waitcnt lgkmcnt({4 if rr == 0 else 0})")
        for r in range(0, 4, 2):
            k(f"v_pk_add_f32 v[{q+r}:{q+r+1}], v[{q+r}:{q+r+1}], v[{q+4+r}:{q+4+r+1}]")
            k(f"v_pk_add_f32 v[{q+8+r}:{q+8+r+1}], v[{q+8+r}:{q+8+r+1}], v[{q+12+r}:{q+12+r+1}]")
        for r in range(0, 4, 2):
            k(f"v_pk_add_f32 v[{q+r}:{q+r+1}], v[{q+r}:{q+r+1}], v[{q+8+r}:{q+8+r+1}]")
        k(f"v_cvt_pk_bf16_f32 v{q+4}, v{q}, v{q+1}")
        k(f"v_cvt_pk_bf16_f32 v{q+5}, v{q+2}, v{q+3}")
        for h in range(2):
            k(f"v_lshlrev_b32 v{q}, 16, v{q+4+h}")
            k(f"v_and_b32 v{q+1}, 0xffff0000, v{q+4+h}")
            k(f"v_lshlrev_b32 v{q+6}, 16, v{RES+2*rr+h}")
            k(f"v_and_b32 v{q+7}, 0xffff0000, v{RES+2*rr+h}")
            k(f"v_pk_add_f32 v[{q}:{q+1}], v[{q}:{q+1}], v[{q+6}:{q+7}]")
            k(f"v_cvt_pk_bf16_f32 v{O+2*rr+h}, v{q}, v{q+1}")
    l1 = k.new('xo')
    k("s_cmp_eq_u32 s92, 0"); k(f"s_cbranch_scc0 {k.ref(l1)}")
    k(f"s_add_u32 s24, s68, {A.WS_XF2}")
    k(f"buffer_store_dwordx4 v[{O}:{O+3}], v219, s[8:11], s24 offen sc1")
    k(f"s_branch {k.ref(lskip)}")
    k.lab(l1)
    k(f"buffer_store_dwordx2 v[{O}:{O+1}], v243, s[12:15], s68 offen")
    k(f"buffer_store_dwordx2 v[{O+2}:{O+3}], v243, s[12:15], s68 offen offset:32")
    k.lab(lskip)
    l2 = k.new('xp')
    k("s_lshr_b32 s25, s64, 2"); k("s_add_u32 s25, s25, 1")
    k("s_cmp_eq_u32 s92, 0"); k("s_cselect_b32 s79, s25, -1")
    k("s_cmp_lt_u32 s40, 64"); k(f"s_cbranch_scc1 {k.ref(l2)}")
    k("s_waitcnt vmcnt(0)")
    k("s_barrier")
    x_pending(k)
    k.lab(l2)
    k("s_add_u32 s64, s64, 4")
    k(f"s_add_u32 s65, s65, {4*VOX_SEG}")
    k(f"s_add_u32 s66, s66, {4*SYNC_STEP}")
    k(f"s_add_u32 s67, s67, {4*SYNC_STEP}")
    k(f"s_add_u32 s68, s68, {4*40960}")

def role_P(k):
    RS, L_ST, L_PS = 400, 81920, 81920
    XPRE, BF, ACC, OUT, TMP, ST, CS, ONE = 16, 56, 88, 112, 124, 132, 224, 236
    k("s_sub_u32 s44, s2, 104")
    k("s_lshr_b32 s46, s44, 5")
    k("s_and_b32 s44, s44, 31")
    k.ptr(KA_WQ, 6); k.ptr(KA_WK, 24); k.ptr(KA_WV, 26)
    k("s_waitcnt lgkmcnt(0)")
    k("s_cmp_eq_u32 s46, 1"); k("s_cselect_b32 s6, s24, s6"); k("s_cselect_b32 s7, s25, s7")
    k("s_cmp_eq_u32 s46, 2"); k("s_cselect_b32 s6, s26, s6"); k("s_cselect_b32 s7, s27, s7")
    k.srd(12, 6, D * HD * 2)
    GO, LO, DAT = 4, 10, 56
    stage_offsets(k, 6, 24, HD * 2, RS, L_ST, GO, LO, 16)
    k("v_lshrrev_b32 v16, 2, v2")
    k("v_lshl_add_u32 v16, v3, 2, v16")
    k(f"v_mul_u32_u24 v32, {RS}, v16")
    k("v_and_b32 v16, 3, v2")
    k("v_lshl_add_u32 v32, v16, 3, v32")
    k(f"s_mul_i32 s24, s3, 96"); k(f"s_add_u32 s24, s24, {L_ST}")
    k("v_add_u32 v32, s24, v32")
    k("s_mul_i32 s45, s44, 384")
    def loads(c):
        d = DAT + 24 * (c % 8)
        k(f"s_add_u32 s47, s45, {c * 64 * HD * 2}")
        for i in range(6):
            k(f"buffer_load_dwordx4 v[{d+4*i}:{d+4*i+3}], v{GO+i}, s[12:15], s47 offen")
    for c in range(8): loads(c)
    C0, O0 = 16, 28
    for r in range(4): k(f"v_mov_b32 v{O0+r}, 0x3f803f80")
    def cs_mfma(c):
        for jj in range(2):
            j = 2 * c + jj
            for t in range(3):
                w = (t * 20 + j) * 4; cc = f"v[{C0+4*t}:{C0+4*t+3}]"
                k(f"v_mfma_f32_16x16x32_bf16 {cc}, a[{w}:{w+3}], v[{O0}:{O0+3}], {cc if j else 0}")
    waits = [42, 42, 42, 36, 30, 24, 18, 12, 6, 0]
    for c in range(10):
        d = DAT + 24 * (c % 8)
        k(f"s_waitcnt vmcnt({waits[c]})")
        for i in range(6): k(f"ds_write_b128 v{LO+i}, v[{d+4*i}:{d+4*i+3}] offset:{(c%2)*25600}")
        k("s_waitcnt lgkmcnt(0)")
        if c < 2: loads(c + 8)
        if c > 0: cs_mfma(c - 1)
        k("s_barrier")
        for t in range(3):
            for jj in range(2):
                r = (t * 20 + 2 * c + jj) * 4
                for hf in range(2):
                    k(f"ds_read_b64_tr_b16 a[{r+2*hf}:{r+2*hf+1}], v32 offset:{(c%2)*25600 + (32*jj + 16*hf)*RS + 32*t}")
    k("s_waitcnt lgkmcnt(0)")
    cs_mfma(9)
    for r in range(12): k(f"v_mov_b32 v{CS+r}, v{C0+r}")
    for r in range(4): k(f"v_mov_b32 v{ONE+r}, v{O0+r}")
    k("s_barrier")
    event(k, 1, 16)
    k.lab('p_layer')
    layer_bases(k)
    k("s_sub_u32 s44, s2, 104")
    k("s_lshr_b32 s46, s44, 5")
    k("s_and_b32 s44, s44, 31")
    k(f"s_mov_b32 s43, {WS_QF}")
    k("s_cmp_eq_u32 s46, 1"); k(f"s_cselect_b32 s43, {WS_KF}, s43")
    k("s_cmp_eq_u32 s46, 2"); k(f"s_cselect_b32 s43, {WS_VF}, s43")
    k("s_cmp_eq_u32 s92, 0"); k(f"s_cselect_b32 s73, {A.WS_XF1}, {A.WS_XF3}")
    k("v_lshlrev_b32 v5, 4, v1")
    k("s_mul_i32 s24, s3, 10240")
    k("v_add_u32 v6, s24, v5")
    k("v_add_u32 v7, 4096, v6"); k("v_add_u32 v8, 8192, v6")
    k("s_mul_i32 s24, s44, 12288"); k("s_mul_i32 s25, s3, 3072"); k("s_add_u32 s24, s24, s25")
    k("v_add_u32 v11, s24, v5")
    if CFG['p_off']:
        k("s_cmp_eq_u32 s92, 1"); k(f"s_cselect_b32 s24, {OOB}, 0"); k("v_or_b32 v11, s24, v11")
    k("s_lshr_b32 s24, s3, 1"); k("s_lshl_b32 s24, s24, 8"); k("s_and_b32 s25, s3, 1"); k("s_lshl_b32 s25, s25, 3")
    k("s_add_u32 s24, s24, s25"); k(f"s_add_u32 s24, s24, {L_PS}")
    k("v_lshlrev_b32 v13, 4, v2")
    k("v_add_u32 v12, s24, v13")
    k(f"v_add_u32 v13, {L_PS}, v13")
    if CFG['pstat'] == 1:
        k("v_lshrrev_b32 v15, 2, v2"); k("v_cmp_eq_u32 vcc, v15, v3")
        k(f"v_lshlrev_b32 v15, 3, v1"); k(f"v_add_u32 v15, {L_PS + 1024}, v15")
        k("v_cndmask_b32 v12, v15, v12, vcc")
        k("v_and_b32 v15, 3, v2")
        for i_, sp in ((1, 48), (2, 50), (3, 54)): k(f"v_cmp_eq_u32 s[{sp}:{sp+1}], {i_}, v15")
    k("s_and_b32 s24, s2, 7"); k("s_lshl_b32 s24, s24, 7"); k("s_lshl_b32 s25, s92, 10"); k("s_add_u32 s24, s24, s25")
    k(f"s_add_u32 s24, s24, {WS_FLG + F_K3}")
    k("s_cmp_eq_u32 s92, 0"); k("s_cselect_b32 s25, 20, 5"); k("s_cselect_b32 s75, 2, 0"); k("s_cselect_b32 s74, 16, 64")
    k("v_cmp_gt_u32 vcc, s25, v1"); k("v_cndmask_b32 v4, 0, v1, vcc")
    k("v_lshlrev_b32 v4, 2, v4"); k("v_add_u32 v4, s24, v4")
    flag_addr(k, 's46')
    k("s_cmp_eq_u32 s3, 0"); k(f"s_cselect_b32 s24, 0, {OOB}"); k("v_or_b32 v14, s24, v14")
    x_init(k)
    def xloads():
        for i in range(10):
            k(f"buffer_load_dwordx4 v[{XPRE+4*i}:{XPRE+4*i+3}], v{6 + i//4}, s[8:11], s41 offen offset:{(i%4)*1024} {CFG['px_mod']}")
    SA = 136
    def stats_list():
        class L(list):
            def __call__(self, t): self.append(t)
        l = L(); row_stats_partial(l, XPRE, 40, SA, SA + 1, ONE, SA + 2); return l
    SM, SQ = 144, 148
    def stats_mfma():
        l = []
        for i in range(10):
            x = f"v[{XPRE+4*i}:{XPRE+4*i+3}]"
            l.append(f"v_mfma_f32_16x16x32_bf16 v[{SQ}:{SQ+3}], {x}, {x}, " + (f"v[{SQ}:{SQ+3}]" if i else "0"))
            l.append(f"v_mfma_f32_16x16x32_bf16 v[{SM}:{SM+3}], v[{ONE}:{ONE+3}], {x}, " + (f"v[{SM}:{SM+3}]" if i else "0"))
        return l
    def stats_sel():
        return [f"v_cndmask_b32 v{SM+1}, v{SQ}, v{SQ+1}, s[48:49]", f"v_cndmask_b32 v{SM+1}, v{SM+1}, v{SQ+2}, s[50:51]",
                f"v_cndmask_b32 v{SM+1}, v{SM+1}, v{SQ+3}, s[54:55]"]
    SR = SM if CFG['pstat'] == 1 else SA
    def xstage(wbase, psw):
        if CFG['pstat'] == 1:
            for t in stats_mfma(): k(t)
            for i in range(10): k(f"ds_write_b128 v{wbase}, v[{XPRE+4*i}:{XPRE+4*i+3}] offset:{i*1024}")
            for t in stats_sel(): k(t)
        else:
            for t in stats_list(): k(t)
            for i in range(10): k(f"ds_write_b128 v{wbase}, v[{XPRE+4*i}:{XPRE+4*i+3}] offset:{i*1024}")
        k(f"ds_write_b64 v{psw}, v[{SR}:{SR+1}]")
    k("s_mov_b32 s62, -1"); k("s_mov_b32 s63, 1")
    ensure(k, 'p_en0', 20, 4, 16)
    k("s_mov_b32 s41, s73")
    xloads()
    k("s_mov_b32 s40, 0")
    k("s_mov_b32 s42, 0")
    k("s_waitcnt vmcnt(0)")
    xstage(6, 12)
    k("s_waitcnt lgkmcnt(0)")
    k("s_barrier")
    event(k, 2, 16)
    acc = lambda tt, t: ACC + (tt * 3 + t) * 4
    def need_next():
        k("s_add_u32 s63, s40, 1"); k("s_lshr_b32 s63, s63, s75"); k("s_add_u32 s63, s63, 1"); k("s_min_u32 s63, s63, s74")
    def body(steady):
        if steady: stamp(k, 0)
        k("v_add_u32 v9, s42, v5")
        k("s_xor_b32 s42, s42, 40960")
        k("v_add_u32 v10, s42, v6")
        if steady:
            need_next()
            ensure(k, 'p_en', 20, 4, 16)
            k("s_add_u32 s41, s41, 40960")
            xloads()
            stamp(k, 1)
        k("s_and_b32 s24, s40, 1"); k("s_lshl_b32 s24, s24, 9")
        k(f"v_add_u32 v{TMP}, s24, v13")
        k("s_xor_b32 s24, s24, 512")
        k(f"v_add_u32 v{SA+4}, s24, v12")
        lg = LG(k)
        lg.issue('ps', f"ds_read_b128 v[{OUT}:{OUT+3}], v{TMP}")
        lg.issue('ps', f"ds_read_b128 v[{OUT+4}:{OUT+7}], v{TMP} offset:256")
        def rd(j):
            for tt in range(2):
                r = BF + ((j % 4) * 2 + tt) * 4
                lg.issue(j, f"ds_read_b128 v[{r}:{r+3}], v9 offset:{tt*20480 + j*1024}")
        rd(0); rd(1); rd(2)
        class L(list):
            def __call__(self, t): self.append(t)
        extra = L()
        row_stats_final(extra, OUT, ST); row_stats_final(extra, OUT + 4, ST + 2)
        wr = []; sm = []
        for j in range(20):
            if j + 3 < 20: rd(j + 3)
            lg.wait(j)
            if steady and j == 11:
                stamp(k, 4)
                k("s_waitcnt vmcnt(2)")
                stamp(k, 5)
                if CFG['pstat'] == 1: sm = stats_mfma()
                else: extra.extend(stats_list())
                wr = [f"ds_write_b128 v10, v[{XPRE+4*i}:{XPRE+4*i+3}] offset:{i*1024}" for i in range(10)]
            for tt in range(2):
                r = BF + ((j % 4) * 2 + tt) * 4
                for t in range(3):
                    a = acc(tt, t); w = (t * 20 + j) * 4
                    c = f"v[{a}:{a+3}]" if j else "0"
                    k(f"v_mfma_f32_16x16x32_bf16 v[{a}:{a+3}], a[{w}:{w+3}], v[{r}:{r+3}], {c}")
                    for _ in range(CFG['p_nx']):
                        if extra: k(extra.pop(0))
                    if t == 1 and wr and (CFG['p_wr'] == 1 or tt == 0 or True) and (CFG['p_wr'] == 2 or tt == 0): lg.issue('w', wr.pop(0))
            for _ in range(3):
                if sm: k(sm.pop(0))
            if steady and CFG['pstat'] == 1 and j == 19:
                for t_ in stats_sel(): k(t_)
            if steady and j == 9:
                stamp(k, 2)
                k("s_waitcnt vmcnt(10)")
                k("s_barrier")
                stamp(k, 3)
                k("v_mov_b32 v15, s40")
                k("buffer_store_dword v15, v14, s[8:11], 0 offen sc1")
                x_pending(k)
        for t_ in wr: lg.issue('w', t_)
        assert not sm
        for t_ in extra: k(t_)
        if steady: lg.issue('w', f"ds_write_b64 v{SA+4}, v[{SR}:{SR+1}]")
        for tt in range(2):
            for t in range(3): ln_fold(k, acc(tt, t), CS + 4 * t, ST + 2 * tt, TMP)
        for o, (tt, t) in enumerate([(0, 0), (0, 1), (1, 0), (1, 1), (0, 2), (1, 2)]):
            a = acc(tt, t)
            k(f"v_cvt_pk_bf16_f32 v{OUT+2*o}, v{a}, v{a+1}")
            k(f"v_cvt_pk_bf16_f32 v{OUT+2*o+1}, v{a+2}, v{a+3}")
        for b in range(3):
            k(f"buffer_store_dwordx4 v[{OUT+4*b}:{OUT+4*b+3}], v11, s[8:11], s43 offen offset:{b*1024} sc1")
        k(f"s_add_u32 s43, s43, {QF_SEG}")
        if not steady:
            k("s_waitcnt vmcnt(0)")
            k("s_barrier")
            k("s_add_u32 s24, s40, 1"); k("v_mov_b32 v15, s24")
            k("buffer_store_dword v15, v14, s[8:11], 0 offen sc1")
            need_next()
            ensure(k, 'p_enA', 20, 4, 16)
            k("s_add_u32 s41, s41, 40960")
            xloads()
            k("s_waitcnt vmcnt(0)")
            xstage(10, SA + 4)
        if steady and CFG['stamp']:
            k("s_waitcnt lgkmcnt(0)"); k("s_memrealtime s[56:57]"); k("s_waitcnt lgkmcnt(0)"); k("s_mov_b32 s57, s56"); stamp_out(k, 6, 16)
        k("s_add_u32 s40, s40, 1")
        k("s_waitcnt lgkmcnt(0)")
        k("s_barrier")
    k.lab('p_segA')
    body(False)
    k(f"s_cmp_lt_u32 s40, {CFG['p_ns']}"); k(f"s_cbranch_scc1 {k.ref('p_segA')}")
    k(f"s_branch {k.ref('p_next')}")
    k.lab('p_seg')
    body(True)
    k.lab('p_next')
    if CFG['stamp']:
        for i_, sv in enumerate((8, 16, 32, 48)):
            l_ = k.new('pe'); k(f"s_cmp_eq_u32 s40, {sv}"); k(f"s_cbranch_scc0 {k.ref(l_)}"); event(k, 8 + i_, 16); k.lab(l_)
    k(f"s_add_u32 s24, s64, {CFG['xlag']}"); k("s_cmp_le_u32 s24, s40"); k(f"s_cbranch_scc1 {k.ref('p_pub')}")
    k("s_cmp_lt_u32 s40, 64"); k(f"s_cbranch_scc1 {k.ref('p_seg')}")
    k.lab('p_pub')
    k("s_waitcnt vmcnt(0)")
    k("s_barrier")
    flag_pub(k, 's40')
    k(f"s_add_u32 s24, s64, {CFG['xlag']}"); k("s_cmp_le_u32 s24, s40"); k(f"s_cbranch_scc1 {k.ref('p_x')}")
    k("s_cmp_lt_u32 s40, 64"); k(f"s_cbranch_scc1 {k.ref('p_seg')}")
    k("s_cmp_ge_u32 s64, 64"); k(f"s_cbranch_scc1 {k.ref('p_done')}")
    k.lab('p_x')
    x_iter(k)
    k(f"s_branch {k.ref('p_next')}")
    k.lab('p_done')
    event(k, 3, 16)
    next_layer(k, 'p_layer')

def role_O(k):
    RS = 1312
    VFa, VFb, ACC, OUT = 16, 64, 112, 192
    k("s_sub_u32 s44, s2, 200")
    k.ptr(KA_WO, 6)
    k("s_waitcnt lgkmcnt(0)")
    k.srd(12, 6, D * HD * 2)
    LO, D0, D1 = 16, 48, 168
    for i in range(30):
        k(f"v_add_u32 v8, {256*i}, v0")
        divmod_const(k, 9, 10, 8, 80, 256 * 30, 24)
        k(f"v_mul_u32_u24 v{LO+i}, {RS}, v9")
        k(f"v_lshl_add_u32 v{LO+i}, v10, 4, v{LO+i}")
    k("v_lshlrev_b32 v4, 4, v0")
    k(f"s_mul_i32 s45, s44, {192*1280}")
    dat = lambda b, i: (D0 + 4 * i) if b == 0 else ((D1 + 4 * i) if i < 22 else (D0 + 4 * (i - 22)))
    def ld(b, i):
        k(f"s_add_u32 s46, s45, {b*96*1280 + i*4096}")
        d = dat(b, i)
        k(f"buffer_load_dwordx4 v[{d}:{d+3}], v4, s[12:15], s46 offen")
    for i in range(30): ld(0, i)
    for i in range(22): ld(1, i)
    k("v_lshrrev_b32 v8, 2, v2")
    k("v_lshl_add_u32 v8, v3, 2, v8")
    k(f"v_mul_u32_u24 v5, {RS}, v8")
    k("v_and_b32 v8, 3, v2")
    k("v_lshl_add_u32 v5, v8, 3, v5")
    k("s_mul_i32 s24, s3, 320")
    k("v_add_u32 v5, s24, v5")
    k(f"v_add_u32 v6, {48*RS}, v5")
    for b in range(2):
        k(f"s_waitcnt vmcnt({22 if b == 0 else 0})")
        for i in range(30):
            d = dat(b, i)
            k(f"ds_write_b128 v{LO+i}, v[{d}:{d+3}]")
        k("s_waitcnt lgkmcnt(0)")
        if b == 0:
            for i in range(22, 30): ld(1, i)
        k("s_barrier")
        for t in range(10):
            def tr(ks, hf, base, row):
                r = (t * 6 + ks) * 4 + 2 * hf
                k(f"ds_read_b64_tr_b16 a[{r}:{r+1}], v{base} offset:{row*RS + 32*t}")
            tr(2*b, 0, 5, 0); tr(2*b, 1, 5, 16)
            tr(2*b+1, 0, 6, 0); tr(2*b+1, 1, 6, 16)
            tr(4+b, 0, 5, 32); tr(4+b, 1, 6, 32)
        k("s_waitcnt lgkmcnt(0)")
        k("s_barrier")
    k("v_lshlrev_b32 v5, 4, v1")
    k("s_mul_i32 s24, s44, 12288")
    k("v_add_u32 v6, s24, v5")
    k("v_add_u32 v7, 4096, v6"); k("v_add_u32 v8, 8192, v6")
    k(f"s_mul_i32 s24, s3, {10*32768}"); k("s_lshl_b32 s25, s44, 10"); k("s_add_u32 s24, s24, s25")
    k("v_add_u32 v9, s24, v5")
    event(k, 1, 16)
    k.lab('o_layer')
    layer_bases(k)
    flag_addr(k, 3)
    if CFG['o_off']:
        k("s_cmp_eq_u32 s92, 1"); k(f"s_cselect_b32 s24, {OOB}, 0"); k("v_or_b32 v9, s24, v9")
    k(f"s_lshl_b32 s24, s44, 7"); k(f"s_add_u32 s24, s24, {2*4096}"); k("s_add_u32 s24, s24, s94")
    k("v_mov_b32 v10, s24")
    k(f"s_mov_b32 s41, {WS_VF}")
    k(f"s_mov_b32 s43, {WS_VOX}")
    k("s_mov_b32 s40, 0")
    def vloads(V):
        for i in range(12):
            k(f"buffer_load_dwordx4 v[{V+4*i}:{V+4*i+3}], v{6 + i//4}, s[8:11], s41 offen offset:{(i%4)*1024} sc1")
        k(f"s_add_u32 s41, s41, {QF_SEG}")
    k("s_mov_b32 s62, -1"); k("s_mov_b32 s63, 1")
    ensure(k, 'o_en0', 1, 10, 11)
    vloads(VFa)
    k("s_waitcnt vmcnt(0)")
    event(k, 2, 240)
    k.lab('o_seg')
    for par, (V, VN) in enumerate(((VFa, VFb), (VFb, VFa))):
        for p in range(2):
            X = V + (6 * p + 2) * 4; Y = V + (6 * p + 5) * 4
            k(f"v_swap_b32 v{X+2}, v{Y}"); k(f"v_swap_b32 v{X+3}, v{Y+1}")
        def frag(tt, ks):
            if ks < 4: return V + (3 * ks + tt) * 4
            p = ks - 4
            return V + (6 * p + 2) * 4 if tt == 0 else V + (6 * p + 5) * 4
        def nxt(tag):
            k("s_add_u32 s63, s40, 2"); k("s_min_u32 s63, s63, 64")
            ensure(k, tag, 1, 10, 11)
            vloads(VN)
        for ks in range(6):
            for t in range(10):
                for tt in range(2):
                    a = ACC + (t * 2 + tt) * 4; w = (t * 6 + ks) * 4; f = frag(tt, ks)
                    c = f"v[{a}:{a+3}]" if ks else "0"
                    k(f"v_mfma_f32_16x16x32_bf16 v[{a}:{a+3}], v[{f}:{f+3}], a[{w}:{w+3}], {c}")
            if ks == 2:
                lf = k.new('of')
                if par == 0:
                    k("s_cmp_eq_u32 s40, 0"); k(f"s_cbranch_scc1 {k.ref(lf)}")
                k("s_waitcnt vmcnt(0)")
                k("s_barrier")
                flag_pub(k, 's40')
                nxt(f'o_en{par+1}')
                k.lab(lf)
        k("s_mov_b32 s46, s43")
        for t in range(10):
            o = OUT + 4 * t
            for tt in range(2):
                a = ACC + (t * 2 + tt) * 4
                k(f"v_cvt_pk_bf16_f32 v{o+2*tt}, v{a}, v{a+1}")
                k(f"v_cvt_pk_bf16_f32 v{o+2*tt+1}, v{a+2}, v{a+3}")
            k(f"buffer_store_dwordx4 v[{o}:{o+3}], v9, s[8:11], s46 offen sc1")
            if t < 9: k("s_add_u32 s46, s46, 32768")
        if par == 0:
            lf = k.new('of')
            k("s_cmp_eq_u32 s40, 0"); k(f"s_cbranch_scc0 {k.ref(lf)}")
            k("s_waitcnt vmcnt(0)")
            k("s_barrier")
            flag_pub(k, 1)
            nxt('o_en3')
            k("s_waitcnt vmcnt(0)")
            k.lab(lf)
        k("s_waitcnt vmcnt(10)")
        k("s_add_u32 s40, s40, 1")
        k(f"s_add_u32 s43, s43, {VOX_SEG}")
    k("s_cmp_lt_u32 s40, 64")
    k(f"s_cbranch_scc1 {k.ref('o_seg')}")
    k("s_waitcnt vmcnt(0)")
    k("s_barrier")
    flag_pub(k, 's40')
    event(k, 3, 240)
    next_layer(k, 'o_layer')
class Hooks(A.NoHooks):
    def ev(self, k, i, t=14): event(k, i, t)
    def k1_wait_x(self, k):
        k("s_and_b32 s24, s48, 3"); k("s_lshl_b32 s24, s24, 7"); k(f"s_add_u32 s24, s24, {WS_FLG + F_X}")
        k("v_lshlrev_b32 v15, 2, v1"); k("v_add_u32 v15, s24, v15")
        k("s_lshr_b32 s95, s48, 2"); k("s_add_u32 s95, s95, 1")
        wait_all(k, 'k1_wx', 20, 14, 's95', sleep=4)
    def k1_first_barrier(self, k):
        l = k.new('fb')
        k("s_cmp_eq_u32 s2, 255"); k(f"s_cbranch_scc0 {k.ref(l)}")
        k("s_cmp_eq_u32 s92, 0"); k(f"s_cbranch_scc0 {k.ref(l)}")
        k("s_cmp_eq_u32 s3, 0"); k(f"s_cbranch_scc0 {k.ref(l)}")
        k(f"v_mov_b32 v154, {OOB}"); k("v_cmp_eq_u32 vcc, 0, v1"); k("v_cndmask_b32 v154, v154, 0, vcc")
        k("v_mov_b32 v155, 1")
        k("buffer_store_dword v155, v154, s[72:75], 0 offen sc1")
        k.lab(l)
    def k1_ready_issue(self, k):
        l = k.new('ri')
        k("s_cmp_eq_u32 s92, 0"); k(f"s_cbranch_scc0 {k.ref(l)}")
        k("v_mov_b32 v15, 0")
        k("buffer_load_dword v14, v15, s[72:75], 0 offen sc1")
        k.lab(l)
    def k1_ready_check(self, k):
        l = k.new('rc')
        k("s_cmp_eq_u32 s92, 0"); k(f"s_cbranch_scc0 {k.ref(l + '_ok')}")
        k("s_mov_b32 s61, 0")
        k.lab(l)
        k("s_waitcnt vmcnt(0)")
        k("v_readfirstlane_b32 s24, v14")
        k("s_cmp_eq_u32 s24, 1"); k(f"s_cbranch_scc1 {k.ref(l + '_ok')}")
        k("s_add_u32 s61, s61, 1"); k("s_cmp_ge_u32 s61, s60"); k(f"s_cbranch_scc1 {k.ref(l + '_to')}")
        k("s_sleep 2")
        k("v_mov_b32 v15, 0")
        k("buffer_load_dword v14, v15, s[72:75], 0 offen sc1")
        k(f"s_branch {k.ref(l)}")
        k.lab(l + '_to')
        k("s_mov_b32 s60, 1")
        k.lab(l + '_ok')
    def k1_publish(self, k):
        k("s_lshl_b32 s24, s92, 3"); k("s_add_u32 s24, s24, s44"); k("s_lshl_b32 s24, s24, 7")
        k("s_lshl_b32 s25, s45, 2"); k("s_add_u32 s24, s24, s25"); k(f"s_add_u32 s24, s24, {WS_FLG + F_K1}")
        pub_dword(k, 's24', 1, 14)
    def k2_wait(self, k):
        k("s_lshl_b32 s24, s92, 3"); k("s_add_u32 s24, s24, s44"); k("s_lshl_b32 s24, s24, 7"); k(f"s_add_u32 s24, s24, {WS_FLG + F_K1}")
        k("v_lshlrev_b32 v15, 2, v1"); k("v_add_u32 v15, s24, v15")
        k("s_cmp_eq_u32 s92, 0"); k("s_cselect_b32 s26, -1, 3")
        wait_all(k, 'k2_w', 's26', 14, 1, sleep=2)
    def k2_publish(self, k):
        k("s_lshl_b32 s24, s92, 7"); k("s_sub_u32 s25, s2, 64"); k("s_lshl_b32 s25, s25, 2"); k("s_add_u32 s24, s24, s25")
        k(f"s_add_u32 s24, s24, {WS_FLG + F_K2}")
        pub_dword(k, 's24', 1, 14)
    def k3_wait0(self, k):
        k("s_cmp_eq_u32 s92, 0"); k("s_cselect_b32 s26, 32, 0"); k("s_cselect_b32 s27, 7, 1")
        k("s_lshl_b32 s24, s92, 10"); k(f"s_add_u32 s24, s24, {WS_FLG + F_K1}")
        k("v_and_b32 v15, 7, v1"); k("v_lshlrev_b32 v15, 7, v15")
        k("v_lshrrev_b32 v14, 3, v1"); k("v_and_b32 v14, s27, v14"); k("v_lshl_add_u32 v15, v14, 2, v15")
        k("v_add_u32 v15, s24, v15")
        k("s_lshl_b32 s27, s26, 1"); k("s_add_u32 s28, s27, s26")
        k("s_mov_b32 s61, 0")
        k.lab('k3_w0')
        for i, so in enumerate(('0', 's26', 's27', 's28')):
            k(f"buffer_load_dword v{16+i}, v15, s[8:11], {so} offen sc1")
        k("s_waitcnt vmcnt(0)")
        k("v_min_i32 v16, v16, v17"); k("v_min3_i32 v16, v16, v18, v19")
        k("v_cmp_le_i32 vcc, 1, v16")
        k("s_cmp_eq_u64 vcc, -1")
        k(f"s_cbranch_scc1 {k.ref('k3_w0_ok')}")
        k("s_add_u32 s61, s61, 1"); k("s_cmp_ge_u32 s61, s60"); k(f"s_cbranch_scc1 {k.ref('k3_w0_to')}")
        k("s_sleep 4")
        k(f"s_branch {k.ref('k3_w0')}")
        k.lab('k3_w0_to'); k("s_mov_b32 s60, 1")
        k.lab('k3_w0_ok')
    def k3_wait(self, k):
        k("s_lshl_b32 s24, s92, 7"); k(f"s_add_u32 s24, s24, {WS_FLG + F_K2}")
        k("v_lshlrev_b32 v15, 2, v1"); k("v_add_u32 v15, s24, v15")
        wait_all(k, 'k3_w', 24, 14, 1, sleep=2)
    def k3_publish(self, k, last):
        k("s_lshl_b32 s24, s92, 10"); k("s_lshl_b32 s25, s78, 2"); k("s_add_u32 s24, s24, s25")
        k(f"s_add_u32 s24, s24, {WS_FLG + F_K3}")
        pub_dword(k, 's24', 's40', 14, copies=8)

NCLR = 3
def role_clear(k):
    k("s_sub_u32 s44, s2, 253")
    k("s_lshl_b32 s24, s44, 2"); k("s_add_u32 s24, s24, s3"); k(f"s_mul_i32 s24, s24, {38*1024}"); k(f"s_add_u32 s41, s24, {WS_SYNC}")
    k("v_lshlrev_b32 v5, 4, v1")
    for r in range(4): k(f"v_mov_b32 v{8+r}, -1")
    k("s_lshl_b32 s24, s44, 2"); k(f"s_add_u32 s42, s24, {WS_FLG + F_C}")
    k("s_mov_b32 s40, 0")
    if CFG['noclr']:
        k("s_mov_b32 s40, 128"); pub_dword(k, 's42', 's40', 14, copies=8); return
    k.lab('clr_blk')
    k("s_mov_b32 s43, s41")
    for i in range(38):
        k(f"buffer_store_dwordx4 v[8:11], v5, s[8:11], s43 offen offset:{(i%4)*1024} {CFG['clr_mod']}")
        if i % 4 == 3: k("s_add_u32 s43, s43, 4096")
    k("s_waitcnt vmcnt(38)")
    k("s_barrier")
    pub_dword(k, 's42', 's40', 14, copies=8)
    if CFG['clr_sleep']: k(f"s_sleep {CFG['clr_sleep']}")
    k("s_add_u32 s40, s40, 1")
    k(f"s_add_u32 s41, s41, {SYNC_STEP}")
    k("s_cmp_lt_u32 s40, 128"); k(f"s_cbranch_scc1 {k.ref('clr_blk')}")
    k("s_waitcnt vmcnt(0)")
    k("s_barrier")
    pub_dword(k, 's42', 's40', 14, copies=8)

def build():
    k = K(NAME, vgpr=256, sgpr=100, agpr=256)
    H = Hooks()
    k("s_cmp_ge_u32 s2, 256")
    k(f"s_cbranch_scc1 {k.ref('end')}")
    k.ptr(KA_WS, 4); k.ptr(KA_DBG, 6); k.ptr(KA_AX, 24)
    k("s_and_b32 s44, s2, 7"); k("s_lshr_b32 s45, s2, 3")
    if CFG['xmap']:
        xm = CFG['xmap']
        k("s_and_b32 s26, s44, 3"); k("s_lshl_b32 s27, s45, 2"); k("s_add_u32 s26, s26, s27")
        k("s_add_u32 s27, s26, 128"); k("s_cmp_lt_u32 s26, 104"); k("s_cselect_b32 s27, s26, s27")
        k("s_add_u32 s26, s26, 104")
        k("s_cmp_lt_u32 s44, 4"); k("s_cselect_b32 s2, s27, s26" if xm == 1 else "s_cselect_b32 s2, s26, s27")
    k("v_and_b32 v1, 63, v0")
    k("v_lshrrev_b32 v4, 6, v0")
    k("v_and_b32 v2, 15, v1")
    k("v_lshrrev_b32 v3, 4, v1")
    k("v_readfirstlane_b32 s3, v4")
    k(f"s_mov_b32 s60, {CFG['spin']}")
    k("s_mov_b32 s59, -1")
    k("s_mov_b32 s92, 0")
    k("s_waitcnt lgkmcnt(0)")
    k.srd(8, 4, WS_BYTES)
    k.srd(72, 6, 256)
    k.srd(16, 24, A.XF_BYTES)
    event(k, 0)
    l = k.new('cf')
    k("s_cmp_eq_u32 s2, 255"); k(f"s_cbranch_scc0 {k.ref(l)}")
    k("v_lshlrev_b32 v5, 4, v0")
    for r in range(4): k(f"v_mov_b32 v{8+r}, -1")
    k(f"s_mov_b32 s24, {WS_FLG}")
    for i in range(FLG_BYTES // 4096):
        k(f"buffer_store_dwordx4 v[8:11], v5, s[8:11], s24 offen sc1")
        k("s_add_u32 s24, s24, 4096")
    k.lab(l)
    k("s_mov_b32 s46, 64"); k("s_mov_b32 s47, 32"); k("s_mov_b32 s50, 0")
    k("s_lshl_b32 s48, s45, 1"); k("s_mov_b32 s49, 1"); k("s_mov_b32 s40, 2")
    k.lab('k1_entry')
    A.role_K1(k, H)
    event(k, 4)
    k("s_cmp_eq_u32 s92, 0"); k(f"s_cbranch_scc0 {k.ref('end')}")
    k("s_cmp_ge_u32 s2, 232"); k(f"s_cbranch_scc1 {k.ref('helper')}")
    k("s_cmp_ge_u32 s2, 200"); k(f"s_cbranch_scc1 {k.ref('toO')}")
    k("s_cmp_ge_u32 s2, 104"); k(f"s_cbranch_scc1 {k.ref('toP')}")
    k("s_cmp_ge_u32 s2, 64"); k(f"s_cbranch_scc1 {k.ref('toR')}")
    k("s_cmp_ge_u32 s2, 32"); k(f"s_cbranch_scc1 {k.ref('toV')}")
    k(f"s_branch {k.ref('roleS')}")
    for nm in 'VRPO':
        k.lab('to' + nm); k(f"s_branch {k.ref('role' + nm)}")
    k.lab('helper')
    k("s_sub_u32 s24, s2, 232")
    k("s_cmp_ge_u32 s24, 21"); k(f"s_cbranch_scc1 {k.ref('helper_clr')}")
    k("s_cmp_eq_u32 s24, 15"); k(f"s_cbranch_scc1 {k.ref('helper_k1')}")
    k("s_mul_i32 s57, s24, 52"); k("s_lshr_b32 s57, s57, 8"); k("s_mul_i32 s56, s57, 5"); k("s_sub_u32 s56, s24, s56")
    k("s_add_u32 s57, s57, 1")
    k("s_sub_u32 s25, s24, 16"); k("s_cmp_ge_u32 s24, 16"); k("s_cselect_b32 s56, s25, s56"); k("s_cselect_b32 s57, 0, s57")
    k("s_mul_i32 s78, s57, 5"); k("s_add_u32 s78, s78, s56")
    A.k3_stage(k)
    k.ptr(KA_AX, 6); k("s_waitcnt lgkmcnt(0)"); k.srd(16, 6, A.XF_BYTES)
    k("s_mov_b32 s46, 64"); k("s_mov_b32 s47, 32"); k("s_mov_b32 s50, 0"); k(f"s_mov_b32 s58, {A.WS_XF1}")
    k("s_mov_b32 s76, 16"); k("s_mov_b32 s77, 163840")
    k.lab('k3_entry')
    A.role_K3(k, H)
    event(k, 6)
    k("s_cmp_eq_u32 s92, 0"); k(f"s_cbranch_scc0 {k.ref('end')}")
    k("s_mov_b32 s92, 1")
    k("s_cmp_lt_u32 s2, 248"); k(f"s_cbranch_scc1 {k.ref('helper_k1')}")
    k.srd(16, 4, A.XF_BYTES, A.WS_XF2)
    k("s_mov_b32 s46, 1024"); k("s_mov_b32 s47, 8"); k("s_mov_b32 s50, 1"); k(f"s_mov_b32 s58, {A.WS_XF3}")
    k("s_mov_b32 s76, 64"); k("s_mov_b32 s77, 40960")
    k(f"s_branch {k.ref('k3_entry')}")
    k.lab('helper_k1')
    k("s_mov_b32 s92, 1")
    k("s_sub_u32 s24, s2, 232")
    k.srd(16, 4, A.XF_BYTES, A.WS_XF2)
    k("s_mov_b32 s46, 1024"); k("s_mov_b32 s47, 8"); k("s_mov_b32 s50, 1")
    k("s_and_b32 s44, s24, 7"); k("s_lshr_b32 s45, s24, 3")
    k("s_mov_b32 s48, s45"); k("s_mov_b32 s49, 2"); k("s_mov_b32 s40, 32")
    k(f"s_branch {k.ref('k1_entry')}")
    k.lab('helper_clr')
    role_clear(k)
    event(k, 6)
    k(f"s_branch {k.ref('end')}")
    k.lab('roleS'); (role_S2 if CFG['s2'] else role_S)(k)
    k.lab('roleV'); (role_V2 if CFG['v2'] else role_V)(k)
    k.lab('roleR'); role_R(k)
    k.lab('roleP'); role_P(k)
    k.lab('roleO'); role_O(k)
    k.lab('end')
    head = ["; generated by gen6.py (my own hand-written generator); kernarg: 13 pointers",
            f"; @launch kernel={k.name} grid=(256,1,1) block=(256,1,1) lds=135168",
            '.amdgcn_target "amdgcn-amd-amdhsa--gfx950"']
    return "\n".join(head) + "\n" + k.text() + "\n"

CFG.setdefault('xmap', 1); CFG.setdefault('dly_hr', 4); CFG.setdefault('hr_wave', 3); CFG.setdefault('s2', 1); CFG.setdefault('v2', 1); CFG.setdefault('v_x8', 4); CFG.setdefault('v_x9', 4); CFG.setdefault('tgt_m', 8); CFG.setdefault('tgt_p', 7); CFG.setdefault('kx_pos', 0); CFG.setdefault('px_pos', 1); CFG.setdefault('x_off', 0); CFG.setdefault('o_off', 0); CFG.setdefault('p_off', 0); CFG.setdefault('rv_off', 0); CFG.setdefault('noclr', 0); CFG.setdefault('pstat', 1); CFG.setdefault('p_nx', 1); CFG.setdefault('p_wr', 1); CFG.setdefault('px_mod', ''); CFG.setdefault('p_ns', 2); CFG.setdefault('spin', SPIN_MAX); CFG.setdefault('xlag', 24); CFG.setdefault('clr_mod', 'sc1')
if __name__ == "__main__":
    out = "z.s"
    for a in sys.argv[1:]:
        if a == "stamp": CFG['stamp'] = True
        elif a.endswith(".s"): out = a
        elif "=" in a:
            kk, v = a.split("=")
            try: CFG[kk] = int(v)
            except ValueError: CFG[kk] = v.replace('+', ' ')
    open(out, "w").write(build())
    print("written", out)
```

```python
import sys, struct
from asmlib import K, magic

NAME = "interleave_layers__linear_attn_block__memory_aug_recurrent_mem_tr__prompt"
S, D = 2048, 640
KA_AX, KA_WQKV, KA_WOA, KA_BX, KA_MEM0, KA_WQ, KA_WK, KA_WV, KA_WO, KA_SEG, KA_OUT, KA_DBG, KA_WS = range(13)
WS_BYTES = 268435456
OOB = 0x7ff00000
LOG2E = 1.4426950408889634
def hexf(x): return "0x%08x" % struct.unpack("<I", struct.pack("<f", x))[0]

WS_XF1, WS_XF2, WS_XF3 = 0x00000000, 0x00400000, 0x00800000
XF_BYTES = S * D * 2
WS_PQF  = 0x00C00000
WS_PART = 0x01000000
PART_GRP = 18 * 1024
PART_REP = 8 * PART_GRP
WS_BDF  = 0x01500000
BDF_LAYER = 0x20000

class LG:
    def __init__(self, k): self.k = k; self.q = []
    def issue(self, tag, text):
        self.k(text); self.q.append(tag)
    def wait(self, tag):
        if tag not in self.q: return
        idx = max(i for i, t in enumerate(self.q) if t == tag)
        n = len(self.q) - 1 - idx
        assert n <= 15, n
        self.k(f"s_waitcnt lgkmcnt({n})")
        self.q = self.q[idx + 1:]
    def all(self):
        self.k("s_waitcnt lgkmcnt(0)"); self.q = []

def lookup(k, dst, idx, table):
    k(f"s_mov_b32 {dst}, {table[0]}")
    for i, v in enumerate(table[1:], 1):
        if v == table[0]: continue
        k(f"s_cmp_eq_u32 {idx}, {i}")
        k(f"s_cselect_b32 {dst}, {v}, {dst}")

def divmod_const(k, q, r, x, d, maxn, stmp):
    m, sh = magic(d, maxn)
    k(f"s_mov_b32 s{stmp}, {m}")
    k(f"v_mul_lo_u32 v{q}, v{x}, s{stmp}")
    k(f"v_lshrrev_b32 v{q}, {sh}, v{q}")
    k(f"v_mul_u32_u24 v{r}, {d}, v{q}")
    k(f"v_sub_u32 v{r}, v{x}, v{r}")

def row_stats_partial(k, X, n, S1, S2, ones, t):
    k(f"v_mov_b32 v{S1}, 0"); k(f"v_mov_b32 v{S2}, 0"); k(f"v_mov_b32 v{t}, 0"); k(f"v_mov_b32 v{t+1}, 0")
    for i in range(0, n, 2):
        k(f"v_dot2c_f32_bf16 v{S1}, v{X+i}, v{ones}")
        k(f"v_dot2c_f32_bf16 v{S2}, v{X+i}, v{X+i}")
        k(f"v_dot2c_f32_bf16 v{t}, v{X+i+1}, v{ones}")
        k(f"v_dot2c_f32_bf16 v{t+1}, v{X+i+1}, v{X+i+1}")
    k(f"v_add_f32 v{S1}, v{S1}, v{t}")
    k(f"v_add_f32 v{S2}, v{S2}, v{t+1}")
    for sw in ("v_permlane16_swap_b32", "v_permlane32_swap_b32"):
        k(f"v_mov_b32 v{t}, v{S1}"); k(f"v_mov_b32 v{t+1}, v{S2}")
        k(f"{sw} v{S1}, v{t}"); k(f"{sw} v{S2}, v{t+1}")
        k(f"v_add_f32 v{S1}, v{S1}, v{t}"); k(f"v_add_f32 v{S2}, v{S2}, v{t+1}")

def row_stats_final(k, P, dst):
    k(f"v_add_f32 v{P}, v{P}, v{P+2}")
    k(f"v_add_f32 v{P+1}, v{P+1}, v{P+3}")
    k(f"v_mul_f32 v{P}, {hexf(1.0/D)}, v{P}")
    k(f"v_mul_f32 v{P+2}, v{P}, v{P}")
    k(f"v_mov_b32 v{P+3}, {hexf(1.0/D)}")
    k(f"v_fma_f32 v{P+1}, v{P+1}, v{P+3}, -v{P+2}")
    k(f"v_max_f32 v{P+1}, 0, v{P+1}")
    k(f"v_add_f32 v{P+1}, {hexf(1e-5)}, v{P+1}")
    k(f"v_rsq_f32 v{dst}, v{P+1}")
    k(f"v_mul_f32 v{dst+1}, v{P}, v{dst}")
    k(f"v_sub_f32 v{dst+1}, 0, v{dst+1}")

def ln_fold(k, a, cs, st, t):
    for h in (0, 2):
        k(f"v_pk_mul_f32 v[{t+h}:{t+h+1}], v[{cs+h}:{cs+h+1}], v[{st}:{st+1}] op_sel:[0,1] op_sel_hi:[1,1]")
    for h in (0, 2):
        k(f"v_pk_fma_f32 v[{a+h}:{a+h+1}], v[{a+h}:{a+h+1}], v[{st}:{st+1}], v[{t+h}:{t+h+1}] op_sel:[0,0,0] op_sel_hi:[1,0,1]")

STAMP = False
WS_TRACE = 0x01800000
def stamp(k, i):
    if STAMP: k(f"s_memrealtime s[{64+2*i}:{65+2*i}]")
def stamp_out(k, n, base=0):
    if not STAMP: return
    k("s_waitcnt lgkmcnt(0)")
    k("s_lshl_b32 s24, s2, 2"); k("s_add_u32 s24, s24, s3"); k("s_lshl_b32 s24, s24, 6"); k(f"s_add_u32 s24, s24, {WS_TRACE + base}")
    k(f"v_mov_b32 v14, {OOB}"); k("v_cmp_eq_u32 vcc, 0, v1"); k("v_cndmask_b32 v14, v14, 0, vcc")
    for i in range(n):
        k(f"v_mov_b32 v15, s{64+2*i}")
        k(f"buffer_store_dword v15, v14, s[8:11], s24 offen offset:{4*i}")

class NoHooks:
    def ev(self, k, i, t=14): pass
    def k1_wait_x(self, k): pass
    def k1_early(self, k): pass
    def k1_prefetch(self, k): return 0
    def tr(self, k, slot): pass
    def k1_flag_issue(self, k, n): pass
    def k1_flag_check(self, k, skip): k(f"s_branch {k.ref(skip)}")
    def k1_first_barrier(self, k): pass
    def k1_after_weights(self, k): pass
    def k1_ready_issue(self, k): pass
    def k1_ready_check(self, k): pass
    def k1_publish(self, k): pass
    def k2_wait(self, k): pass
    def k2_publish(self, k): pass
    def k3_wait0(self, k): pass
    def k3_wait(self, k): pass
    def k3_publish(self, k, last): pass

def role_K1(k, H, wq=None, l2pf=False, xmod='sc1'):
    RSW, L_W, WBUF = 544, 40960, 64 * 544
    L_KV, RSK, L_PS = 40960, 336, 40960 + 32 * 336
    XPRE, RING, ACC, KVA, CS, ST, TMP, ONE, W3 = 16, 56, 88, 120, 156, 144, 148, 172, 176
    DAT, GO, LO, TA = 56, 152, 153, 12
    def wreg(slot, j, lo=0, n=4):
        if slot < 3: r = (slot * 20 + j) * 4 + lo; return f"a[{r}:{r+n-1}]"
        r = W3 + j * 4 + lo; return f"v[{r}:{r+n-1}]"
    stamp(k, 0)
    if wq is None: k.ptr(KA_WQKV, 6)
    k("v_and_b32 v7, 31, v0"); k("v_lshrrev_b32 v8, 5, v0")
    k(f"v_mul_u32_u24 v{GO}, 3840, v8")
    k("v_lshlrev_b32 v9, 4, v7")
    k(f"v_add_u32 v{GO}, v{GO}, v9")
    k("v_cmp_le_u32 vcc, 10, v7"); k("v_cndmask_b32 v10, 0, 1, vcc")
    k("v_cmp_le_u32 vcc, 20, v7"); k("v_cndmask_b32 v11, 0, 1, vcc")
    k("v_add_u32 v10, v10, v11")
    k("v_mul_u32_u24 v10, 1120, v10")
    k(f"v_add_u32 v{GO}, v{GO}, v10")
    k(f"v_mov_b32 v10, {OOB}"); k("v_cmp_le_u32 vcc, 30, v7"); k(f"v_cndmask_b32 v{GO}, v{GO}, v10, vcc")
    k(f"v_mul_u32_u24 v{LO}, {RSW}, v8"); k(f"v_add_u32 v{LO}, v{LO}, v9"); k(f"v_add_u32 v{LO}, {L_W}, v{LO}")
    if wq is None:
        k("s_waitcnt lgkmcnt(0)")
        k.srd(12, 6, D * 1920 * 2)
    else:
        k.srd(12, wq, D * 1920 * 2)
    k("s_mul_i32 s52, s44, 160")
    if l2pf:
        k("v_lshrrev_b32 v10, 2, v0"); k("v_mul_u32_u24 v10, 3840, v10")
        k("v_and_b32 v11, 3, v0"); k("v_lshlrev_b32 v11, 6, v11"); k("v_min_u32 v11, 156, v11"); k("v_add_u32 v10, v10, v11")
        k("s_mul_i32 s24, s45, 205"); k("s_lshr_b32 s24, s24, 11"); k("s_mul_i32 s24, s24, 10"); k("s_sub_u32 s24, s45, s24")
        k(f"s_mul_i32 s24, s24, {64 * 3840}"); k("s_add_u32 s24, s24, s52")
        for p in range(3):
            k("buffer_load_dword a254, v10, s[12:15], s24 offen")
            if p < 2: k("s_add_u32 s24, s24, 1280")
    def wloads(c):
        d = DAT + 32 * (c % 3)
        k(f"s_add_u32 s24, s52, {c * 64 * 3840}")
        for i in range(8):
            k(f"buffer_load_dwordx4 v[{d+4*i}:{d+4*i+3}], v{GO}, s[12:15], s24 offen")
            if i < 7: k("s_add_u32 s24, s24, 30720")
    for c in range(3): wloads(c)
    k("s_lshr_b32 s24, s3, 1"); k("s_mul_i32 s24, s24, 20480")
    k("s_and_b32 s25, s3, 1"); k("s_mul_i32 s25, s25, 10"); k("s_mul_i32 s25, s25, s46"); k("s_add_u32 s24, s24, s25")
    k("s_cmp_eq_u32 s50, 1"); k("s_cselect_b32 s25, 16, 1280"); k("s_cselect_b32 s26, 256, 8")
    k("v_mul_u32_u24 v4, s25, v2"); k("v_mul_u32_u24 v5, s26, v3")
    k("v_add3_u32 v4, v4, v5, s24")
    k("v_add_u32 v5, s47, v4")
    k("s_mul_i32 s43, s48, 40960")
    k("s_mul_i32 s42, s49, 40960")
    def xloads(oob=False):
        k("s_mov_b32 s24, s41")
        for i in range(10):
            k(f"buffer_load_dwordx2 v[{XPRE+4*i}:{XPRE+4*i+1}], v4, s[16:19], s24 offen {xmod}")
            k(f"buffer_load_dwordx2 v[{XPRE+4*i+2}:{XPRE+4*i+3}], v5, s[16:19], s24 offen {xmod}")
            if i < 9: k("s_add_u32 s24, s24, s46")
    def xloads4():
        k("s_mov_b32 s24, s41")
        for i in range(10):
            k(f"buffer_load_dwordx4 v[{XPRE+4*i}:{XPRE+4*i+3}], v4, s[16:19], s24 offen sc1")
            if i < 9: k("s_add_u32 s24, s24, s46")
    k("s_cmp_eq_u32 s92, 0"); k("s_cselect_b32 s51, 1, 0"); k(f"s_cselect_b32 s41, s43, {OOB}")
    xloads()
    k("v_lshrrev_b32 v6, 2, v2"); k("v_lshl_add_u32 v6, v3, 2, v6")
    k(f"v_mul_u32_u24 v6, {RSW}, v6")
    k("v_and_b32 v7, 3, v2"); k("v_lshl_add_u32 v6, v7, 3, v6")
    k(f"v_add_u32 v6, {L_W}, v6")
    col = [[0, 64, 128, 224], [32, 96, 160, 256], [320, 384, 192, 288], [352, 416, 448, 288]]
    for s_ in range(4):
        lookup(k, 's24', 's3', col[s_]); k(f"v_add_u32 v{TA+s_}, s24, v6")
    H.k1_early(k)
    stamp(k, 1)
    for r in range(4): k(f"v_mov_b32 v{ONE+r}, 0x3f803f80")
    def cs_mfma(c):
        for jj in range(2):
            j = 2 * c + jj
            for s_ in range(4):
                cc = f"v[{CS+4*s_}:{CS+4*s_+3}]"
                k(f"v_mfma_f32_16x16x32_bf16 {cc}, {wreg(s_, j)}, v[{ONE}:{ONE+3}], {cc if j else 0}")
    npf = 0
    for c in range(10):
        d = DAT + 32 * (c % 3)
        k(f"s_waitcnt vmcnt({(36 if c < 3 else 16 if c < 8 else (8 if c == 8 else 0)) + npf})")
        if c in (0, 1, 3, 6): H.ev(k, {0: 8, 1: 9, 3: 10, 6: 11}[c], 154)
        for i in range(8): k(f"ds_write_b128 v{LO}, v[{d+4*i}:{d+4*i+3}] offset:{(c%2)*WBUF + i*8*RSW}")
        k("s_waitcnt lgkmcnt(0)")
        if c + 3 < 10: wloads(c + 3)
        if c == 6: npf = H.k1_prefetch(k)
        if c > 0: cs_mfma(c - 1)
        k("s_barrier")
        if c == 0: H.k1_first_barrier(k)
        for s_ in range(4):
            for jj in range(2):
                for hf in range(2):
                    k(f"ds_read_b64_tr_b16 {wreg(s_, 2*c+jj, 2*hf, 2)}, v{TA+s_} offset:{(c%2)*WBUF + (32*jj + 16*hf)*RSW}")
    stamp(k, 2)
    H.ev(k, 12)
    H.k1_after_weights(k)
    k("v_lshlrev_b32 v7, 4, v1")
    k("s_lshr_b32 s24, s3, 1"); k("s_mul_i32 s24, s24, 20"); k("s_and_b32 s25, s3, 1"); k("s_mul_i32 s25, s25, 10")
    k("s_add_u32 s24, s24, s25"); k("s_lshl_b32 s24, s24, 10")
    k("v_add_u32 v6, s24, v7")
    k("s_lshr_b32 s24, s3, 1"); k("s_lshl_b32 s24, s24, 8"); k("s_and_b32 s25, s3, 1"); k("s_lshl_b32 s25, s25, 3")
    k("s_add_u32 s24, s24, s25"); k(f"s_add_u32 s24, s24, {L_PS}")
    k("v_lshlrev_b32 v9, 4, v2")
    k("v_add_u32 v8, s24, v9")
    k(f"v_add_u32 v9, {L_PS}, v9")
    k(f"v_mul_u32_u24 v10, {RSK}, v2"); k("v_lshl_add_u32 v10, v3, 3, v10"); k(f"v_add_u32 v10, {L_KV}, v10")
    k("v_lshrrev_b32 v11, 2, v2"); k("v_lshl_add_u32 v11, v3, 3, v11"); k(f"v_mul_u32_u24 v11, {RSK}, v11")
    k("v_and_b32 v15, 3, v2"); k("v_lshl_add_u32 v11, v15, 3, v11")
    k("s_lshl_b32 s24, s3, 5"); k(f"s_add_u32 s24, s24, {L_KV}")
    k("v_add_u32 v11, s24, v11")
    k("s_lshl_b32 s24, s3, 10")
    k("v_add_u32 v12, s24, v7")
    k("v_lshlrev_b32 v15, 3, v1"); k("v_add_u32 v15, 2048, v15")
    k("s_cmp_eq_u32 s3, 2"); k("s_cselect_b64 vcc, -1, 0")
    k("v_cndmask_b32 v12, v12, v15, vcc")
    k("s_mul_i32 s24, s44, 2560"); k(f"s_add_u32 s24, s24, {WS_PQF}")
    k("v_add_u32 v12, s24, v12")
    k(f"s_mov_b32 s52, {hexf(LOG2E)}"); k("s_mov_b32 s53, s52")
    k(f"s_mov_b32 s54, {hexf(1e-6)}"); k("s_mov_b32 s55, s54")
    for r in range(24): k(f"v_mov_b32 v{KVA+r}, 0")
    k("s_waitcnt lgkmcnt(0)")
    cs_mfma(9)
    k("s_mov_b32 s56, 1")
    stamp(k, 3)
    k.lab('k1_seg')
    stamp(k, 7)
    H.tr(k, 0)
    l1 = k.new('k1')
    k("s_cmp_eq_u32 s51, 1"); k(f"s_cbranch_scc1 {k.ref(l1)}")
    H.k1_wait_x(k)
    k("s_mov_b32 s41, s43"); xloads4()
    H.k1_flag_issue(k, 1)
    k.lab(l1)
    H.tr(k, 1)
    lw = k.new('k1w')
    k("s_cmp_eq_u32 s92, 0"); k("s_cselect_b32 s24, s56, 0"); k("s_cmp_eq_u32 s24, 1"); k(f"s_cbranch_scc1 {k.ref(lw)}")
    k("s_waitcnt vmcnt(0)")
    k.lab(lw)
    k("s_mov_b32 s56, 0")
    H.tr(k, 2)
    row_stats_partial(k, XPRE, 40, TMP, TMP + 1, ONE, TMP + 2)
    for i in range(10): k(f"ds_write_b128 v6, v[{XPRE+4*i}:{XPRE+4*i+3}] offset:{i*1024}")
    k(f"ds_write_b64 v8, v[{TMP}:{TMP+1}]")
    k("s_mov_b32 s51, 0")
    k("s_waitcnt lgkmcnt(0)")
    l2 = k.new('k1'); l3 = k.new('k1')
    k("s_cmp_gt_u32 s40, 1"); k(f"s_cbranch_scc0 {k.ref(l2)}")
    k("s_cmp_eq_u32 s92, 0"); k(f"s_cbranch_scc1 {k.ref(l3)}")
    H.k1_flag_check(k, l2)
    k("s_add_u32 s41, s43, s42"); xloads4(); k("s_mov_b32 s51, 1")
    H.k1_flag_issue(k, 2)
    k(f"s_branch {k.ref(l2)}")
    k.lab(l3)
    k("s_add_u32 s41, s43, s42"); xloads(); k("s_mov_b32 s51, 1")
    k.lab(l2)
    k("s_barrier")
    stamp(k, 8)
    H.tr(k, 3)
    lg = LG(k)
    lg.issue('ps', f"ds_read_b128 v[{TMP}:{TMP+3}], v9")
    lg.issue('ps', f"ds_read_b128 v[{TMP+4}:{TMP+7}], v9 offset:256")
    def rd(j):
        for tt in range(2):
            r = RING + ((j % 4) * 2 + tt) * 4
            lg.issue(j, f"ds_read_b128 v[{r}:{r+3}], v7 offset:{tt*20480 + j*1024}")
    rd(0); rd(1); rd(2)
    lg.wait('ps')
    row_stats_final(k, TMP, ST)
    row_stats_final(k, TMP + 4, ST + 2)
    acc = lambda s_, tt: ACC + (s_ * 2 + tt) * 4
    for j in range(20):
        if j + 3 < 20: rd(j + 3)
        lg.wait(j)
        for tt in range(2):
            r = RING + ((j % 4) * 2 + tt) * 4
            for s_ in range(4):
                a = acc(s_, tt)
                k(f"v_mfma_f32_16x16x32_bf16 v[{a}:{a+3}], {wreg(s_, j)}, v[{r}:{r+3}], " + (f"v[{a}:{a+3}]" if j else "0"))
    stamp(k, 9)
    H.tr(k, 4)
    for s_ in range(4):
        for tt in range(2): ln_fold(k, acc(s_, tt), CS + 4 * s_, ST + 2 * tt, TMP)
    def phi(a):
        for h in (0, 2):
            t = TMP + h
            k(f"v_min_f32 v{t}, 0, v{a+h}"); k(f"v_min_f32 v{t+1}, 0, v{a+h+1}")
            k(f"v_pk_mul_f32 v[{t}:{t+1}], v[{t}:{t+1}], s[52:53]")
        for h in range(4): k(f"v_exp_f32 v{TMP+h}, v{TMP+h}")
        for h in range(4): k(f"v_max_f32 v{a+h}, 0, v{a+h}")
        for h in (0, 2): k(f"v_pk_add_f32 v[{a+h}:{a+h+1}], v[{a+h}:{a+h+1}], v[{TMP+h}:{TMP+h+1}]")
        for h in (0, 2): k(f"v_pk_add_f32 v[{a+h}:{a+h+1}], v[{a+h}:{a+h+1}], s[54:55]")
    O = RING
    def pack(a, o):
        k(f"v_cvt_pk_bf16_f32 v{o}, v{a}, v{a+1}"); k(f"v_cvt_pk_bf16_f32 v{o+1}, v{a+2}, v{a+3}")
    def to_lds(s_, off, addr, o):
        for tt in range(2):
            pack(acc(s_, tt), o + 2 * tt)
            k(f"ds_write_b64 v{addr}, v[{o+2*tt}:{o+2*tt+1}] offset:{tt*16*RSK + off}")
    k("s_add_u32 s25, s43, 20480")
    k("s_cmp_ge_u32 s3, 2"); k(f"s_cbranch_scc1 {k.ref('k1_e2')}")
    k("s_lshl_b32 s24, s3, 6"); k("v_add_u32 v15, s24, v10")
    to_lds(2, 160, 15, O + 8); to_lds(3, 192, 15, O + 12)
    for tt in range(2):
        phi(acc(0, tt)); phi(acc(1, tt))
        pack(acc(0, tt), O + 4 * tt); pack(acc(1, tt), O + 4 * tt + 2)
        k(f"buffer_store_dwordx4 v[{O+4*tt}:{O+4*tt+3}], v12, s[8:11], {'s25' if tt else 's43'} offen sc1")
    k(f"s_branch {k.ref('k1_ej')}")
    k.lab('k1_e2')
    k("s_cmp_eq_u32 s3, 3"); k(f"s_cbranch_scc1 {k.ref('k1_e3')}")
    to_lds(3, 160 + 128, 10, O + 12)
    for tt in range(2): phi(acc(1, tt)); phi(acc(2, tt))
    to_lds(1, 0, 10, O + 4); to_lds(2, 32, 10, O + 8)
    for tt in range(2):
        phi(acc(0, tt)); pack(acc(0, tt), O + 2 * tt)
        k(f"buffer_store_dwordx2 v[{O+2*tt}:{O+2*tt+1}], v12, s[8:11], {'s25' if tt else 's43'} offen sc1")
    k(f"s_branch {k.ref('k1_ej')}")
    k.lab('k1_e3')
    for s_ in range(3):
        for tt in range(2): phi(acc(s_, tt))
        to_lds(s_, 64 + 32 * s_, 10, O + 4 * s_)
    k.lab('k1_ej')
    stamp(k, 10)
    k("s_waitcnt lgkmcnt(0)")
    k("s_barrier")
    stamp(k, 4)
    H.tr(k, 5)
    KF = RING + 16
    for i, off in enumerate((0, 32, 160, 192)):
        k(f"ds_read_b64_tr_b16 v[{KF+4*i}:{KF+4*i+1}], v11 offset:{off}")
        k(f"ds_read_b64_tr_b16 v[{KF+4*i+2}:{KF+4*i+3}], v11 offset:{off + 4*RSK}")
    k("s_waitcnt lgkmcnt(0)")
    k0, k1, v0_, v1_ = KF, KF + 4, KF + 8, KF + 12
    for i, (a, b) in enumerate(((k0, v1_), (k1, v0_), (k1, v1_), (k1, ONE), (k0, v0_), (k0, ONE))):
        c = f"v[{KVA+4*i}:{KVA+4*i+3}]"
        k(f"v_mfma_f32_16x16x32_bf16 {c}, v[{a}:{a+3}], v[{b}:{b+3}], {c}")
    k("s_add_u32 s43, s43, s42"); k("s_add_u32 s48, s48, s49")
    H.ev(k, 13)
    k("s_sub_u32 s40, s40, 1"); k("s_cmp_gt_u32 s40, 0")
    k(f"s_cbranch_scc1 {k.ref('k1_seg')}")
    stamp(k, 5)
    H.k1_ready_issue(k)
    k(f"s_mul_i32 s24, s45, {PART_REP}"); k(f"s_mul_i32 s25, s44, {PART_GRP}"); k("s_add_u32 s24, s24, s25"); k(f"s_add_u32 s24, s24, {WS_PART}")
    k("s_mul_i32 s25, s3, 3072"); k("s_add_u32 s25, s25, s24")
    k("s_lshl_b32 s26, s3, 10"); k("s_add_u32 s26, s26, s24"); k(f"s_add_u32 s26, s26, {13*1024}")
    k("s_cmp_eq_u32 s3, 0"); k(f"s_cselect_b32 s27, 0, {OOB}"); k("s_add_u32 s27, s27, s24"); k(f"s_add_u32 s28, s27, {17*1024}"); k(f"s_add_u32 s27, s27, {12*1024}")
    for i in range(3): k(f"buffer_store_dwordx4 v[{KVA+4*i}:{KVA+4*i+3}], v7, s[8:11], s25 offen offset:{i*1024} sc1")
    k(f"buffer_store_dwordx4 v[{KVA+12}:{KVA+15}], v7, s[8:11], s26 offen sc1")
    k(f"buffer_store_dwordx4 v[{KVA+16}:{KVA+19}], v7, s[8:11], s27 offen sc1")
    k(f"buffer_store_dwordx4 v[{KVA+20}:{KVA+23}], v7, s[8:11], s28 offen sc1")
    k("s_waitcnt vmcnt(0)")
    H.k1_ready_check(k)
    k("s_barrier")
    stamp(k, 6)
    stamp_out(k, 11)
    H.k1_publish(k)

K2_TILES = [[12, 1, 0, 2, 4, 3, 3], [5, 7, 6, 8, 10, 9, 11], [17, 13, 14, 15, 16, 16, 16]]
def _k2p(tlo, thi, alo, ahi, b0, b1, b2): return tlo | thi << 3 | alo << 6 | ahi << 9 | b0 << 12 | b1 << 19 | b2 << 24
N_ = 7
K2_PAR = [_k2p(0, 1, 0, 1, 0, 1, 4), _k2p(2, 3, 0, 1, 16, 1, 4), _k2p(4, 0, 2, N_, 16, 1, 4), _k2p(0, 5, N_, 1, 32, 1, 4),
          _k2p(0, 1, 2, 3, 32, 1, 4), _k2p(2, 3, 2, 3, 48, 1, 4), _k2p(4, 0, 4, N_, 48, 1, 4), _k2p(0, 5, N_, 3, 64, 1, 4), _k2p(6, 0, 4, N_, 64, 1, 4),
          _k2p(0, 1, 0, 1, 0, 16, 4), _k2p(2, 3, 2, 3, 0, 16, 4), _k2p(4, 0, 4, N_, 0, 16, 4), _k2p(0, 3, N_, 3, 60, 0, 0), _k2p(4, 0, 4, N_, 60, 0, 0)]
def role_K2(k, H, mid=None):
    ACC, LD, T = 16, 44, 160
    k("v_lshlrev_b32 v5, 4, v1")
    for i in range(7): lookup(k, f"s{64+i}", 's45', [K2_TILES[t][i] * 1024 for t in range(3)])
    H.ev(k, 8, 160)
    H.k2_wait(k)
    H.ev(k, 9, 160)
    dst = lambda q: ACC if q == 0 else LD + (q - 1) * 28
    for q in range(8):
        k(f"s_add_u32 s25, s3, {4*q}")
        k(f"s_mul_i32 s24, s25, {PART_REP}"); k(f"s_mul_i32 s26, s44, {PART_GRP}"); k("s_add_u32 s24, s24, s26"); k(f"s_add_u32 s24, s24, {WS_PART}")
        k("s_cmp_lt_u32 s25, s46"); k(f"s_cselect_b32 s24, s24, {OOB}")
        for i in range(7):
            k(f"s_add_u32 s26, s24, s{64+i}")
            k(f"buffer_load_dwordx4 v[{dst(q)+i*4}:{dst(q)+i*4+3}], v5, s[8:11], s26 offen sc1")
    for q in range(1, 8):
        k(f"s_waitcnt vmcnt({(7-q)*7})")
        for r in range(0, 28, 2):
            k(f"v_pk_add_f32 v[{ACC+r}:{ACC+r+1}], v[{ACC+r}:{ACC+r+1}], v[{dst(q)+r}:{dst(q)+r+1}]")
    H.ev(k, 10, 160)
    k("s_mul_i32 s24, s3, 7168"); k("v_add_u32 v6, s24, v5")
    for i in range(7): k(f"ds_write_b128 v6, v[{ACC+4*i}:{ACC+4*i+3}] offset:{i*1024}")
    k("s_waitcnt lgkmcnt(0)")
    k("s_barrier")
    lookup(k, 's41', 's45', [0, 4, 9]); lookup(k, 's42', 's45', [4, 5, 5])
    k(f"s_mul_i32 s43, s92, {BDF_LAYER}"); k(f"s_mul_i32 s24, s44, {14*1024}"); k("s_add_u32 s43, s43, s24"); k(f"s_add_u32 s43, s43, {WS_BDF}")
    k("v_and_b32 v7, 3, v2"); k("v_lshrrev_b32 v8, 2, v2")
    for rnd in range(2):
        l = k.new('k2f')
        k(f"s_add_u32 s40, s3, {4*rnd}")
        k("s_cmp_lt_u32 s40, s42"); k(f"s_cbranch_scc0 {k.ref(l)}")
        k("s_add_u32 s40, s40, s41")
        lookup(k, 's47', 's40', K2_PAR)
        k("s_bfe_u32 s24, s47, 0x7000c"); k("s_bfe_u32 s25, s47, 0x50013"); k("s_bfe_u32 s26, s47, 0x30018")
        k("v_mul_u32_u24 v9, s25, v7"); k("v_mul_u32_u24 v10, s26, v8"); k("v_add3_u32 v9, v9, v10, s24")
        k("v_mul_u32_u24 v9, 205, v9"); k("v_lshrrev_b32 v9, 12, v9")
        for hf in range(2):
            k(f"s_bfe_u32 s24, s47, {0x30000 + 3*hf}")
            k("s_lshl_b32 s24, s24, 10")
            k("v_add_u32 v10, s24, v5")
            for w in range(4): k(f"ds_read_b128 v[{T+4*w}:{T+4*w+3}], v10 offset:{w*7168}")
            k(f"s_bfe_u32 s25, s47, {0x30006 + 3*hf}")
            k("s_lshl_b32 s25, s25, 4")
            k("v_lshl_add_u32 v11, v3, 2, s25")
            k("v_mul_u32_u24 v11, 205, v11"); k("v_lshrrev_b32 v11, 12, v11")
            k("v_cmp_eq_u32 vcc, v9, v11")
            k("s_waitcnt lgkmcnt(0)")
            for r in (0, 2):
                k(f"v_pk_add_f32 v[{T+r}:{T+r+1}], v[{T+r}:{T+r+1}], v[{T+4+r}:{T+4+r+1}]")
                k(f"v_pk_add_f32 v[{T+8+r}:{T+8+r+1}], v[{T+8+r}:{T+8+r+1}], v[{T+12+r}:{T+12+r+1}]")
            for r in (0, 2): k(f"v_pk_add_f32 v[{T+r}:{T+r+1}], v[{T+r}:{T+r+1}], v[{T+8+r}:{T+8+r+1}]")
            o = T + 16 + 2 * hf
            k(f"v_cvt_pk_bf16_f32 v{o}, v{T}, v{T+1}"); k(f"v_cvt_pk_bf16_f32 v{o+1}, v{T+2}, v{T+3}")
            k(f"v_cndmask_b32 v{o}, 0, v{o}, vcc"); k(f"v_cndmask_b32 v{o+1}, 0, v{o+1}, vcc")
        k("s_lshl_b32 s24, s40, 10"); k("s_add_u32 s24, s24, s43")
        k(f"buffer_store_dwordx4 v[{T+16}:{T+19}], v5, s[8:11], s24 offen sc1")
        k.lab(l)
    H.ev(k, 11, 160)
    k("s_waitcnt vmcnt(0)")
    k("s_barrier")
    H.k2_publish(k)

BD_OFF = [0, 4, 8, 12, 16, 20, 24, 26, 30, 32, 36, 40, 42, 46]
BD_N = [4, 4, 4, 4, 4, 4, 2, 4, 2, 4, 4, 2, 4, 2]
RSO = 288
def k3_wo_loads(k):
    k.ptr(KA_WOA, 6)
    k("v_lshrrev_b32 v12, 4, v0"); k("v_mul_u32_u24 v12, 1280, v12")
    k("v_and_b32 v13, 15, v0"); k("v_lshl_add_u32 v12, v13, 4, v12")
    k("s_waitcnt lgkmcnt(0)")
    k.srd(12, 6, D * D * 2)
    k("s_lshl_b32 s52, s56, 8")
    for c in range(10):
        for i in range(4):
            k(f"s_add_u32 s24, s52, {(c*64 + i*16) * 1280}")
            k(f"buffer_load_dwordx4 a[{16*c+4*i}:{16*c+4*i+3}], v12, s[12:15], s24 offen")
    return 40

def k3_stage(k):
    L_W, WBUF = 81920, 64 * RSO
    k3_wo_loads(k)
    k("v_lshrrev_b32 v6, 4, v0"); k(f"v_mul_u32_u24 v6, {RSO}, v6")
    k("v_and_b32 v7, 15, v0"); k("v_lshl_add_u32 v6, v7, 4, v6"); k(f"v_add_u32 v6, {L_W}, v6")
    k("v_lshrrev_b32 v7, 2, v2"); k("v_lshl_add_u32 v7, v3, 2, v7"); k(f"v_mul_u32_u24 v7, {RSO}, v7")
    k("v_and_b32 v8, 3, v2"); k("v_lshl_add_u32 v7, v8, 3, v7")
    k("s_lshl_b32 s24, s3, 6"); k(f"s_add_u32 s24, s24, {L_W}")
    k("v_add_u32 v7, s24, v7")
    for c in range(10):
        k(f"s_waitcnt vmcnt({36 - 4*c})")
        for i in range(4): k(f"ds_write_b128 v6, a[{16*c+4*i}:{16*c+4*i+3}] offset:{(c%2)*WBUF + i*16*RSO}")
        k("s_waitcnt lgkmcnt(0)")
        k("s_barrier")
        for jj in range(2):
            for i in range(2):
                for hf in range(2):
                    r = 16 * c + (jj * 2 + i) * 4 + 2 * hf
                    k(f"ds_read_b64_tr_b16 a[{r}:{r+1}], v7 offset:{(c%2)*WBUF + (32*jj + 16*hf)*RSO + 32*i}")
    k("s_waitcnt lgkmcnt(0)")

def role_K3(k, H):
    L_O = 0
    PQ, RES, BA, OFR, RING, OA = 16, 96, 112, 168, 208, 240
    wo = lambda i, J: (lambda r: f"a[{r}:{r+3}]")(16 * (J // 2) + ((J % 2) * 2 + i) * 4)
    k("v_lshlrev_b32 v5, 4, v1")
    k("s_mul_i32 s24, s3, 5120"); k(f"s_add_u32 s24, s24, {WS_PQF}")
    k("v_add_u32 v8, s24, v5")
    k("v_lshlrev_b32 v9, 3, v1"); k("s_add_u32 s24, s24, 2048"); k("v_add_u32 v9, s24, v9")
    k("s_cmp_eq_u32 s50, 1"); k("s_cselect_b32 s25, 16, 1280"); k("s_cselect_b32 s26, 256, 8")
    k("v_mul_u32_u24 v10, s25, v2"); k("v_mul_u32_u24 v11, s26, v3")
    k("s_lshl_b32 s24, s56, 2"); k("s_add_u32 s24, s24, s3")
    k("s_mul_i32 s25, s24, s46")
    k("v_add3_u32 v10, v10, v11, s25")
    k("v_add_u32 v11, s47, v10")
    k("s_lshl_b32 s24, s24, 10"); k("s_add_u32 s24, s24, s58")
    k("v_add_u32 v12, s24, v5")
    k("s_mul_i32 s24, s3, 5120"); k(f"s_add_u32 s24, s24, {L_O}")
    k("v_add_u32 v13, s24, v5")
    k(f"s_mov_b32 s54, {hexf(1e-6)}")
    k("s_mul_i32 s43, s57, 40960")
    k("s_mov_b32 s40, 0")
    k("s_mov_b32 s42, 0")
    def pq_loads(buf):
        b = PQ + 40 * buf
        k("s_add_u32 s25, s41, 20480")
        for tt in range(2):
            so = 's25' if tt else 's41'
            for gp in range(2):
                r = b + (tt * 2 + gp) * 10
                k(f"buffer_load_dwordx4 v[{r}:{r+3}], v8, s[8:11], {so} offen offset:{gp*2560} sc1")
                k(f"buffer_load_dwordx4 v[{r+4}:{r+7}], v8, s[8:11], {so} offen offset:{gp*2560+1024} sc1")
                k(f"buffer_load_dwordx2 v[{r+8}:{r+9}], v9, s[8:11], {so} offen offset:{gp*2560} sc1")
        for tt in range(2):
            so = 's25' if tt else 's41'
            r = RES + 8 * buf + 4 * tt
            k(f"buffer_load_dwordx2 v[{r}:{r+1}], v10, s[16:19], {so} offen sc1")
            k(f"buffer_load_dwordx2 v[{r+2}:{r+3}], v11, s[16:19], {so} offen sc1")
    bd = lambda gp, f: (lambda r: f"a[{r}:{r+BD_N[f]-1}]")(160 + gp * 48 + BD_OFF[f])
    def bd_stage(buf):
        b = PQ + 40 * buf
        for tt in range(2):
            sets = []
            for gp in range(2):
                r = b + (tt * 2 + gp) * 10
                k0, k1, k2 = f"v[{r}:{r+3}]", f"v[{r+4}:{r+7}]", f"v[{r+8}:{r+9}]"
                A = BA + 28 * gp
                t = lambda i: f"v[{A+4*i}:{A+4*i+3}]"
                M32 = "v_mfma_f32_16x16x32_bf16"; M16 = "v_mfma_f32_16x16x16_bf16"
                k(f"{M32} {t(5)}, {bd(gp,9)}, {k0}, 0");  k(f"{M32} {t(6)}, {bd(gp,12)}, {k1}, 0")
                k(f"{M32} {t(0)}, {bd(gp,0)}, {k0}, 0");  k(f"{M32} {t(1)}, {bd(gp,1)}, {k0}, 0"); k(f"{M32} {t(2)}, {bd(gp,3)}, {k0}, 0")
                k(f"{M32} {t(3)}, {bd(gp,5)}, {k1}, 0");  k(f"{M32} {t(4)}, {bd(gp,7)}, {k1}, 0")
                k(f"{M32} {t(5)}, {bd(gp,10)}, {k1}, {t(5)}")
                k(f"{M32} {t(1)}, {bd(gp,2)}, {k1}, {t(1)}"); k(f"{M32} {t(2)}, {bd(gp,4)}, {k1}, {t(2)}")
                k(f"{M16} {t(6)}, {bd(gp,13)}, {k2}, {t(6)}")
                k(f"{M16} {t(3)}, {bd(gp,6)}, {k2}, {t(3)}"); k(f"{M16} {t(4)}, {bd(gp,8)}, {k2}, {t(4)}")
                k(f"{M16} {t(5)}, {bd(gp,11)}, {k2}, {t(5)}")
            for gp in range(2):
                A = BA + 28 * gp
                for i in range(5): k(f"v_add_f32 v{A+20+i}, s54, v{A+20+i}")
                for i in range(5): k(f"v_rcp_f32 v{A+20+i}, v{A+20+i}")
                for i in range(5):
                    for h in range(4): k(f"v_mul_f32 v{A+4*i+h}, v{A+4*i+h}, v{A+20+i}")
                    o = OFR + tt * 20 + (gp * 5 + i) * 2
                    k(f"v_cvt_pk_bf16_f32 v{o}, v{A+4*i}, v{A+4*i+1}"); k(f"v_cvt_pk_bf16_f32 v{o+1}, v{A+4*i+2}, v{A+4*i+3}")
        k("v_add_u32 v14, s42, v13")
        for tt in range(2):
            for p in range(5):
                o = OFR + tt * 20 + 4 * p
                k(f"ds_write_b128 v14, v[{o}:{o+3}] offset:{tt*20480 + p*1024}")
    H.k3_wait0(k)
    k("s_mov_b32 s41, s43"); pq_loads(0)
    k("s_add_u32 s41, s43, s77"); pq_loads(1)
    H.k3_wait(k)
    H.ev(k, 7)
    k(f"s_mul_i32 s24, s92, {BDF_LAYER}"); k(f"s_mul_i32 s25, s3, {2*14*1024}"); k("s_add_u32 s24, s24, s25"); k(f"s_add_u32 s24, s24, {WS_BDF}")
    for gp in range(2):
        for f in range(14):
            r = 160 + gp * 48 + BD_OFF[f]
            k(f"s_add_u32 s25, s24, {(gp*14+f)*1024}")
            if BD_N[f] == 4: k(f"buffer_load_dwordx4 a[{r}:{r+3}], v5, s[8:11], s25 offen sc1")
            else: k(f"buffer_load_dwordx2 a[{r}:{r+1}], v5, s[8:11], s25 offen sc1")
    k("s_waitcnt vmcnt(0)")
    stamp(k, 2)
    H.ev(k, 14)
    bd_stage(0)
    k("s_waitcnt lgkmcnt(0)"); k("s_barrier")
    stamp(k, 3)
    k.lab('k3_seg')
    for par in range(2):
        if par == 0: stamp(k, 4)
        k("v_add_u32 v15, s42, v5")
        lg = LG(k)
        def rd(J):
            for tt in range(2):
                r = RING + ((J % 4) * 2 + tt) * 4
                lg.issue(J, f"ds_read_b128 v[{r}:{r+3}], v15 offset:{tt*20480 + J*1024}")
        rd(0); rd(1); rd(2)
        for J in range(20):
            if J + 3 < 20: rd(J + 3)
            lg.wait(J)
            for tt in range(2):
                r = RING + ((J % 4) * 2 + tt) * 4
                for i in range(2):
                    a = OA + (tt * 2 + i) * 4
                    k(f"v_mfma_f32_16x16x32_bf16 v[{a}:{a+3}], {wo(i, J)}, v[{r}:{r+3}], " + (f"v[{a}:{a+3}]" if J else "0"))
        if par == 0: stamp(k, 5)
        T = RING
        for tt in range(2):
            for i in range(2):
                a = OA + (tt * 2 + i) * 4; rr = RES + 8 * par + 4 * tt + 2 * i; o = T + 8 + 4 * tt + 2 * i
                k(f"v_cvt_pk_bf16_f32 v{T}, v{a}, v{a+1}"); k(f"v_cvt_pk_bf16_f32 v{T+1}, v{a+2}, v{a+3}")
                for h in range(2):
                    k(f"v_lshlrev_b32 v{T+2}, 16, v{T+h}"); k(f"v_and_b32 v{T+3}, 0xffff0000, v{T+h}")
                    k(f"v_lshlrev_b32 v{T+4}, 16, v{rr+h}"); k(f"v_and_b32 v{T+5}, 0xffff0000, v{rr+h}")
                    k(f"v_pk_add_f32 v[{T+2}:{T+3}], v[{T+2}:{T+3}], v[{T+4}:{T+5}]")
                    k(f"v_cvt_pk_bf16_f32 v{o+h}, v{T+2}, v{T+3}")
        k("s_add_u32 s25, s43, 20480")
        k(f"buffer_store_dwordx4 v[{T+8}:{T+11}], v12, s[8:11], s43 offen sc1")
        k(f"buffer_store_dwordx4 v[{T+12}:{T+15}], v12, s[8:11], s25 offen sc1")
        k("s_add_u32 s40, s40, 1")
        k("s_add_u32 s43, s43, s77")
        k("s_cmp_ge_u32 s40, s76"); k(f"s_cbranch_scc1 {k.ref('k3_done')}")
        if par == 0:
            lq = k.new('k3q')
            k("s_cmp_eq_u32 s40, 1"); k(f"s_cbranch_scc0 {k.ref(lq)}")
            k("s_waitcnt vmcnt(0)"); k("s_barrier")
            H.k3_publish(k, False)
            H.ev(k, 15)
            k.lab(lq)
        k("s_xor_b32 s42, s42, 40960")
        if par == 0: stamp(k, 6)
        k("s_waitcnt vmcnt(2)")
        if par == 0: stamp(k, 7)
        bd_stage(1 - par)
        if par == 0: stamp(k, 8)
        k("s_add_u32 s41, s43, s77")
        k("s_add_u32 s24, s40, 1")
        k("s_cmp_lt_u32 s24, s76"); k(f"s_cselect_b32 s41, s41, {OOB}")
        k("s_waitcnt vmcnt(0)")
        pq_loads(par)
        k("s_waitcnt lgkmcnt(0)"); k("s_barrier")
        if par == 0: stamp(k, 9)
        H.k3_publish(k, False)
    k(f"s_branch {k.ref('k3_seg')}")
    k.lab('k3_done')
    k("s_waitcnt vmcnt(0)"); k("s_barrier")
    stamp(k, 10)
    stamp_out(k, 11, 0x20000)
    H.k3_publish(k, True)

def common_prologue(k, nwg):
    k(f"s_cmp_ge_u32 s2, {nwg}")
    k(f"s_cbranch_scc1 {k.ref('end')}")
    k.ptr(KA_WS, 4)
    k("v_and_b32 v1, 63, v0")
    k("v_lshrrev_b32 v4, 6, v0")
    k("v_and_b32 v2, 15, v1")
    k("v_lshrrev_b32 v3, 4, v1")
    k("v_readfirstlane_b32 s3, v4")
    k("s_waitcnt lgkmcnt(0)")
    k.srd(8, 4, WS_BYTES)

def src_setup(k, layer, sreg=16):
    if layer == 0:
        k.ptr(KA_AX, 6); k("s_waitcnt lgkmcnt(0)"); k.srd(sreg, 6, XF_BYTES)
        k("s_mov_b32 s46, 64"); k("s_mov_b32 s47, 32"); k("s_mov_b32 s50, 0")
    else:
        k.srd(sreg, 4, XF_BYTES, WS_XF2)
        k("s_mov_b32 s46, 1024"); k("s_mov_b32 s47, 8"); k("s_mov_b32 s50, 1")

def test_kernels(layer):
    H = NoHooks()
    k1 = K(f"k1_{layer}", vgpr=256, sgpr=100, agpr=256)
    common_prologue(k1, 256 if layer == 0 else 16)
    k1(f"s_mov_b32 s92, {layer}")
    src_setup(k1, layer)
    k1("s_and_b32 s44, s2, 7"); k1("s_lshr_b32 s45, s2, 3")
    if layer == 0: k1("s_lshl_b32 s48, s45, 1"); k1("s_mov_b32 s49, 1"); k1("s_mov_b32 s40, 2")
    else: k1("s_mov_b32 s48, s45"); k1("s_mov_b32 s49, 2"); k1("s_mov_b32 s40, 32")
    role_K1(k1, H); k1.lab('end')
    k2 = K(f"k2_{layer}", vgpr=256, sgpr=100, agpr=256)
    common_prologue(k2, 24)
    k2(f"s_mov_b32 s92, {layer}")
    k2("s_and_b32 s44, s2, 7"); k2("s_lshr_b32 s45, s2, 3"); k2(f"s_mov_b32 s46, {32 if layer == 0 else 2}")
    role_K2(k2, H); k2.lab('end')
    k3 = K(f"k3_{layer}", vgpr=256, sgpr=100, agpr=256)
    common_prologue(k3, 20)
    k3(f"s_mov_b32 s92, {layer}")
    src_setup(k3, layer)
    k3("s_mul_i32 s57, s2, 52"); k3("s_lshr_b32 s57, s57, 8"); k3("s_mul_i32 s56, s57, 5"); k3("s_sub_u32 s56, s2, s56")
    k3(f"s_mov_b32 s58, {WS_XF1 if layer == 0 else WS_XF3}")
    k3("s_mov_b32 s76, 16"); k3("s_mov_b32 s77, 163840")
    k3_stage(k3); role_K3(k3, H); k3.lab('end')
    return [(k1, 256 if layer == 0 else 16, 135168), (k2, 24, 135168), (k3, 20, 135168)]

if __name__ == "__main__":
    out = "za.s"
    for a in sys.argv[1:]:
        if a == "stamp": STAMP = True
        elif a.endswith(".s"): out = a
    ks = test_kernels(0)
    head = ["; layer A test list"]
    for kk, n, lds in ks: head.append(f"; @launch kernel={kk.name} grid=({n},1,1) block=(256,1,1) lds={lds}")
    head.append('.amdgcn_target "amdgcn-amd-amdhsa--gfx950"')
    open(out, "w").write("\n".join(head) + "\n" + "\n".join(kk.text() for kk, _, _ in ks) + "\n")
    print("written", out)
```

```python
import sys
from asmlib import K, magic
import genA as A
from genA import hexf, LOG2E, LG, lookup, row_stats_partial, row_stats_final, ln_fold

NAME = A.NAME
S, D, H, DH, HD, NSEG = 2048, 640, 32, 192, 6144, 64
KA_AX, KA_WQKV, KA_WOA, KA_BX, KA_MEM0, KA_WQ, KA_WK, KA_WV, KA_WO, KA_SEG, KA_OUT, KA_DBG, KA_WS = range(13)
WS_BYTES = 268435456

WS_FLG   = 0x01600000
FLG_BYTES = 0x10000
F_Q   = 0x0000
F_LAYER = 0x4000
F_K1  = 0x8000
F_K2  = 0x8800
F_K3  = 0x9000
F_X   = 0x9800
F_C   = 0xA000
F_S   = 0xA800
WS_TRACE = 0x01800000
WS_VF    = 0x02000000
WS_QF    = 0x04000000
WS_KF    = 0x05800000
QF_SEG   = 32 * 12288
WS_SYNC  = 0x07000000
SYNC_STEP = 0x70000
O_VOM, O_PX, O_PB, O_MB, O_HR, O_HS = 0, 327680, 409600, 430080, 440320, 448512
SYNC_LAYER = 64 * SYNC_STEP
WS_VOX   = 0x0B000000
VOX_SEG  = 40 * 32 * 1024
assert WS_SYNC + 128 * SYNC_STEP <= WS_VOX and WS_VOX + 64 * VOX_SEG <= WS_BYTES
SCALE_B = DH ** -0.5
SPIN_MAX = 1 << 17
OOB = 0x7ff00000
RH_M, RH_P = 16, 8

CFG = dict(stamp=False, dly_vox=20, pd_m=3, pd_p=2, pdep=4, pgain=0, dly_m=5, dly_v=20, dly_p=0, sl_m=1, sl_p=1, sl_x=2, sl_x0=8,
           hs_pos=22, hr_pos=1, clr_sleep=0)


def poll(k, name, loads, regs, tmp, sleep, first_delay=0, depth=1):
    if first_delay:
        k(f"s_sleep {first_delay}")
    k("s_mov_b32 s61, 0")
    for d in range(depth - 1):
        for l in loads: k(l)
        if sleep: k(f"s_sleep {sleep}")
    k.lab(name)
    for l in loads: k(l)
    k(f"s_waitcnt vmcnt({(depth - 1) * len(loads)})")
    rs = list(regs)
    k(f"v_max3_u32 v{tmp}, v{rs[0]}, v{rs[1]}, v{rs[2]}")
    rs = rs[3:]
    while len(rs) >= 2:
        k(f"v_max3_u32 v{tmp}, v{tmp}, v{rs[0]}, v{rs[1]}"); rs = rs[2:]
    if rs: k(f"v_max_u32 v{tmp}, v{tmp}, v{rs[0]}")
    k(f"v_cmp_eq_u32 vcc, -1, v{tmp}")
    k("s_add_u32 s61, s61, 1")
    k(f"s_cbranch_vccz {k.ref(name + '_out')}")
    k("s_cmp_ge_u32 s61, s60")
    k(f"s_cbranch_scc1 {k.ref(name + '_to')}")
    if sleep: k(f"s_sleep {sleep}")
    k(f"s_branch {k.ref(name)}")
    k.lab(name + '_to')
    k("s_mov_b32 s60, 1")
    k.lab(name + '_out')

def check_regs(k, rs, tmp):
    rs = list(rs)
    k(f"v_max3_u32 v{tmp}, v{rs[0]}, v{rs[1]}, v{rs[2]}")
    rs = rs[3:]
    while len(rs) >= 2:
        k(f"v_max3_u32 v{tmp}, v{tmp}, v{rs[0]}, v{rs[1]}"); rs = rs[2:]
    if rs: k(f"v_max_u32 v{tmp}, v{tmp}, v{rs[0]}")
    k(f"v_cmp_eq_u32 vcc, -1, v{tmp}")


def aprobe(k, name, areg, sbase, target, ring, delta, depth, dly):
    ring = ring[:depth]
    if dly: k(f"s_sleep {dly}")
    k("s_mov_b64 exec, 1")
    k("s_mov_b32 s61, 0")
    def issue(i):
        k(f"v_mov_b32 v{ring[i]}, 0")
        k(f"buffer_atomic_add v{ring[i]}, v{areg}, s[8:11], {sbase} offen sc0")
    for d in range(depth - 1):
        issue(d + 1)
        if delta: k(f"s_sleep {delta}")
    k.lab(name)
    for i in range(depth):
        issue(i)
        k(f"s_waitcnt vmcnt({depth - 1})")
        k(f"v_cmp_le_i32 vcc, {target}, v{ring[(i + 1) % depth]}")
        k("s_add_u32 s61, s61, 1")
        k(f"s_cbranch_vccnz {k.ref(name + '_out')}")
        if delta: k(f"s_sleep {delta}")
    k("s_cmp_ge_u32 s61, s60")
    k(f"s_cbranch_scc0 {k.ref(name)}")
    k("s_mov_b32 s60, 1")
    k.lab(name + '_out')
    k("s_mov_b64 exec, -1")
    if CFG['stamp']: k("s_mov_b32 s56, s61")

def ahint(k, areg, one, sbase):
    k(f"buffer_atomic_add v{one}, v{areg}, s[8:11], {sbase} offen")

def ahint_addr(k, dst, t, w_sreg, nrep, only_wave0):
    k(f"s_mul_i32 s24, {w_sreg}, {nrep}")
    k(f"v_add_u32 v{dst}, s24, v1")
    k(f"v_lshlrev_b32 v{dst}, 7, v{dst}")
    k(f"v_mov_b32 v{t}, {OOB}")
    k(f"v_cmp_le_u32 vcc, {nrep}, v1")
    k(f"v_cndmask_b32 v{dst}, v{dst}, v{t}, vcc")
    if only_wave0:
        k("s_cmp_eq_u32 s3, 0"); k(f"s_cselect_b32 s24, 0, {OOB}")
        k(f"v_or_b32 v{dst}, s24, v{dst}")

def aprobe_addr(k, dst, wg_sreg, nrep):
    k(f"s_and_b32 s24, {wg_sreg}, {nrep - 1}")
    k(f"s_mul_i32 s25, s3, {nrep}")
    k("s_add_u32 s24, s24, s25"); k("s_lshl_b32 s24, s24, 7")
    k(f"v_mov_b32 v{dst}, s24")


def shot_check(k, name, loads, regs, tmp, nyoung, sleep):
    k(f"s_waitcnt vmcnt({nyoung})")
    check_regs(k, regs, tmp)
    if CFG['stamp']: k("s_mov_b32 s57, 0")
    k(f"s_cbranch_vccz {k.ref(name + '_out')}")
    k("s_mov_b32 s61, 0")
    k.lab(name)
    for l in loads: k(l)
    k("s_waitcnt vmcnt(0)")
    check_regs(k, regs, tmp)
    k("s_add_u32 s61, s61, 1")
    if CFG['stamp']: k("s_mov_b32 s57, s61")
    k(f"s_cbranch_vccz {k.ref(name + '_out')}")
    k("s_cmp_ge_u32 s61, s60")
    k(f"s_cbranch_scc1 {k.ref(name + '_to')}")
    if sleep: k(f"s_sleep {sleep}")
    k(f"s_branch {k.ref(name)}")
    k.lab(name + '_to')
    k("s_mov_b32 s60, 1")
    k.lab(name + '_out')


def divmod_const(k, q, r, x, d, maxn, stmp):
    m, sh = magic(d, maxn)
    k(f"s_mov_b32 s{stmp}, {m}")
    k(f"v_mul_lo_u32 v{q}, v{x}, s{stmp}")
    k(f"v_lshrrev_b32 v{q}, {sh}, v{q}")
    k(f"v_mul_u32_u24 v{r}, {d}, v{q}")
    k(f"v_sub_u32 v{r}, v{x}, v{r}")

def stage_offsets(k, n, cpr, gstride, RS, lbase, go, lo, t0):
    for i in range(n):
        k(f"v_add_u32 v{t0}, {256*i}, v0")
        divmod_const(k, t0 + 1, t0 + 2, t0, cpr, 256 * n, 24)
        k(f"s_mov_b32 s24, {gstride}")
        k(f"v_mul_lo_u32 v{go+i}, v{t0+1}, s24")
        k(f"v_lshl_add_u32 v{go+i}, v{t0+2}, 4, v{go+i}")
        k(f"v_mul_u32_u24 v{lo+i}, {RS}, v{t0+1}")
        k(f"v_lshl_add_u32 v{lo+i}, v{t0+2}, 4, v{lo+i}")
        k(f"v_add_u32 v{lo+i}, {lbase}, v{lo+i}")

def tr_base(k, dst, RS, lbase, t0):
    k(f"v_lshrrev_b32 v{t0}, 1, v3")
    k(f"v_lshlrev_b32 v{t0}, 4, v{t0}")
    k(f"v_and_b32 v{t0+1}, 1, v3")
    k(f"v_lshl_add_u32 v{t0}, v{t0+1}, 2, v{t0}")
    k(f"v_lshrrev_b32 v{t0+1}, 2, v2")
    k(f"v_and_b32 v{t0+2}, 1, v{t0+1}")
    k(f"v_add_u32 v{t0}, v{t0}, v{t0+2}")
    k(f"v_lshrrev_b32 v{t0+1}, 1, v{t0+1}")
    k(f"v_lshl_add_u32 v{t0}, v{t0+1}, 3, v{t0}")
    k(f"v_mul_u32_u24 v{dst}, {RS}, v{t0}")
    k(f"v_and_b32 v{t0+1}, 3, v2")
    k(f"v_lshl_add_u32 v{dst}, v{t0+1}, 3, v{dst}")
    k(f"v_add_u32 v{dst}, {lbase}, v{dst}")

def softmax8(k, P0, T0, T1, masks=None):
    if masks:
        k(f"v_mov_b32 v{T1}, 0xff800000")
        for j in range(8): k(f"v_cndmask_b32 v{P0+j}, v{T1}, v{P0+j}, s[{masks+2*j}:{masks+2*j+1}]")
    k(f"v_max3_f32 v{T0}, v{P0}, v{P0+1}, v{P0+2}")
    k(f"v_max3_f32 v{T0}, v{T0}, v{P0+3}, v{P0+4}")
    k(f"v_max3_f32 v{T0}, v{T0}, v{P0+5}, v{P0+6}")
    k(f"v_max_f32 v{T0}, v{T0}, v{P0+7}")
    k(f"v_mov_b32 v{T1}, 0xff800000")
    k(f"v_cndmask_b32 v{T0}, v{T1}, v{T0}, s[50:51]")
    for dpp in ("quad_perm:[1,0,3,2]", "quad_perm:[2,3,0,1]", "row_half_mirror"):
        k(f"v_max_f32 v{T0}, v{T0}, v{T0} {dpp} row_mask:0xf bank_mask:0xf")
    k(f"s_mov_b32 s24, {hexf(SCALE_B * LOG2E)}")
    k(f"v_mul_f32 v{T0}, s24, v{T0}")
    for r in range(8): k(f"v_fma_f32 v{P0+r}, v{P0+r}, s24, -v{T0}")
    for r in range(8): k(f"v_exp_f32 v{P0+r}, v{P0+r}")
    k(f"v_add_f32 v{T0}, v{P0}, v{P0+1}")
    k(f"v_add_f32 v{T1}, v{P0+2}, v{P0+3}")
    k(f"v_add_f32 v{T0}, v{T0}, v{P0+4}")
    k(f"v_add_f32 v{T1}, v{T1}, v{P0+5}")
    k(f"v_add_f32 v{T0}, v{T0}, v{P0+6}")
    k(f"v_add_f32 v{T1}, v{T1}, v{P0+7}")
    k(f"v_add_f32 v{T0}, v{T0}, v{T1}")
    k(f"v_cndmask_b32 v{T0}, 0, v{T0}, s[50:51]")
    for dpp in ("quad_perm:[1,0,3,2]", "quad_perm:[2,3,0,1]", "row_half_mirror"):
        k(f"v_add_f32 v{T0}, v{T0}, v{T0} {dpp} row_mask:0xf bank_mask:0xf")
    k(f"v_rcp_f32 v{T0}, v{T0}")
    for r in range(8): k(f"v_mul_f32 v{P0+r}, v{P0+r}, v{T0}")
    for q in range(4): k(f"v_cvt_pk_bf16_f32 v{P0+8+q}, v{P0+2*q}, v{P0+2*q+1}")
    for q in range(4): k(f"v_min_u32 v{P0+8+q}, -2, v{P0+8+q}")

def sum4x8(k, P0, addr, stride):
    for w in range(4):
        k(f"ds_read_b128 v[{P0+8*w}:{P0+8*w+3}], v{addr} offset:{w*stride}")
        k(f"ds_read_b128 v[{P0+8*w+4}:{P0+8*w+7}], v{addr} offset:{w*stride+16}")
    k("s_waitcnt lgkmcnt(4)")
    for r in range(0, 8, 2): k(f"v_pk_add_f32 v[{P0+r}:{P0+r+1}], v[{P0+r}:{P0+r+1}], v[{P0+8+r}:{P0+8+r+1}]")
    k("s_waitcnt lgkmcnt(0)")
    for r in range(0, 8, 2): k(f"v_pk_add_f32 v[{P0+16+r}:{P0+16+r+1}], v[{P0+16+r}:{P0+16+r+1}], v[{P0+24+r}:{P0+24+r+1}]")
    for r in range(0, 8, 2): k(f"v_pk_add_f32 v[{P0+r}:{P0+r+1}], v[{P0+r}:{P0+r+1}], v[{P0+16+r}:{P0+16+r+1}]")


def tr_frag(k, reg, kind, addr, RS, off):
    for q, ro in enumerate((0, 2, 32, 34)):
        k(f"ds_read_b64_tr_b16 {kind}[{reg+2*q}:{reg+2*q+1}], v{addr} offset:{off + ro*RS}")

def m0_image(k, srd, t0):
    for p in range(3):
        k(f"s_lshl_b32 s24, s3, 6"); k(f"s_add_u32 s24, s24, {256*p}")
        k(f"v_add_u32 v{t0}, s24, v1")
        k(f"v_and_b32 v{t0+1}, 7, v{t0}")
        k(f"v_mul_u32_u24 v{t0+1}, 1280, v{t0+1}")
        k(f"v_lshrrev_b32 v{t0+2}, 3, v{t0}")
        k(f"v_lshl_add_u32 v{t0+1}, v{t0+2}, 4, v{t0+1}")
        k(f"v_cmp_gt_u32 vcc, 640, v{t0}")
        k(f"v_mov_b32 v{t0+3}, {OOB}")
        k(f"v_cndmask_b32 v{t0+1}, v{t0+3}, v{t0+1}, vcc")
        k(f"buffer_load_dwordx4 v[{t0+4}:{t0+7}], v{t0+1}, s[{srd}:{srd+3}], 0 offen")
        k(f"v_lshlrev_b32 v{t0}, 4, v{t0}")
        k("s_waitcnt vmcnt(0)")
        k(f"s_and_saveexec_b64 s[30:31], vcc")
        k(f"ds_write_b128 v{t0}, v[{t0+4}:{t0+7}]")
        k("s_mov_b64 exec, s[30:31]")

def stamp(k, i):
    if CFG['stamp']: k(f"s_memrealtime s[{80+2*i}:{81+2*i}]")

def stamp_out(k, nst, t):
    if not CFG['stamp']: return
    if CFG.get('clk'):
        k("s_memtime s[56:57]"); k("s_waitcnt lgkmcnt(0)")
    k("s_lshl_b32 s34, s2, 2"); k("s_add_u32 s34, s34, s3"); k("s_lshl_b32 s34, s34, 7")
    k("s_lshl_b32 s35, s92, 6"); k("s_add_u32 s34, s34, s35")
    k("s_add_u32 s34, s34, s40"); k("s_lshl_b32 s34, s34, 5"); k(f"s_add_u32 s34, s34, {WS_TRACE}")
    k(f"v_mov_b32 v{t}, {OOB}")
    k("v_cmp_eq_u32 vcc, 0, v1")
    k(f"v_cndmask_b32 v{t}, v{t}, 0, vcc")
    for i in range(nst):
        k(f"v_mov_b32 v{t+1}, s{80+2*i}")
        k(f"buffer_store_dword v{t+1}, v{t}, s[8:11], s34 offen offset:{i*4}")
    for i, sreg in ((6, 's57'), (7, 's56')):
        k(f"v_mov_b32 v{t+1}, {sreg}")
        k(f"buffer_store_dword v{t+1}, v{t}, s[8:11], s34 offen offset:{i*4}")

WS_EVT = 0x01C00000
def event(k, idx, t=14):
    if not CFG['stamp']: return
    k("s_memrealtime s[96:97]")
    k("s_lshl_b32 s34, s2, 7"); k("s_lshl_b32 s35, s92, 6"); k("s_add_u32 s34, s34, s35"); k(f"s_add_u32 s34, s34, {WS_EVT + 4*idx}")
    k("s_cmp_eq_u32 s3, 0"); k(f"s_cselect_b32 s34, s34, {OOB}")
    k(f"v_mov_b32 v{t}, {OOB}")
    k("v_cmp_eq_u32 vcc, 0, v1")
    k(f"v_cndmask_b32 v{t}, v{t}, 0, vcc")
    k("s_waitcnt lgkmcnt(0)")
    k(f"v_mov_b32 v{t+1}, s96")
    k(f"buffer_store_dword v{t+1}, v{t}, s[8:11], s34 offen")

def ensure(k, name, nfl, addr, tmp, need='s63', known='s62', sleep=2):
    k(f"s_cmp_ge_i32 {known}, {need}")
    k(f"s_cbranch_scc1 {k.ref(name + '_ok')}")
    if callable(addr):
        addr(k, tmp + 1); addr = tmp + 1
    k("s_mov_b32 s61, 0")
    k.lab(name)
    k(f"buffer_load_dword v{tmp}, v{addr}, s[8:11], 0 offen sc1")
    k("s_waitcnt vmcnt(0)")
    k(f"v_readlane_b32 {known}, v{tmp}, 0")
    for i in range(1, nfl):
        k(f"v_readlane_b32 s24, v{tmp}, {i}")
        k(f"s_min_i32 {known}, {known}, s24")
    k(f"s_cmp_ge_i32 {known}, {need}")
    k(f"s_cbranch_scc1 {k.ref(name + '_ok')}")
    k("s_add_u32 s61, s61, 1")
    k("s_cmp_ge_u32 s61, s60")
    k(f"s_cbranch_scc1 {k.ref(name + '_to')}")
    k(f"s_sleep {sleep}")
    k(f"s_branch {k.ref(name)}")
    k.lab(name + '_to')
    k("s_mov_b32 s60, 1")
    k.lab(name + '_ok')

def clr_addr(k, dst):
    k("s_and_b32 s24, s2, 7"); k("s_lshl_b32 s24, s24, 7"); k(f"s_add_u32 s24, s24, {WS_FLG + F_C}")
    k(f"v_and_b32 v{dst}, 3, v1"); k(f"v_lshl_add_u32 v{dst}, v{dst}, 2, s24")

def ensure_clear(k, name, tmp, blk):
    k("s_lshl_b32 s95, s92, 6"); k(f"s_add_u32 s95, s95, {blk}"); k("s_add_u32 s95, s95, 1")
    ensure(k, name, 3, clr_addr, tmp, need='s95', known='s59')

def wait_all(k, name, n, t, need, sleep=2):
    k("s_mov_b32 s61, 0")
    k.lab(name)
    k(f"buffer_load_dword v{t}, v{t+1}, s[8:11], 0 offen sc1")
    k("s_waitcnt vmcnt(0)")
    k(f"v_cmp_le_i32 vcc, {need}, v{t}")
    mask = ((1 << n) - 1) if isinstance(n, int) else n
    if isinstance(n, int): k(f"s_mov_b32 s25, {hex(mask & 0xffffffff)}"); mask = 's25'
    k(f"s_and_b32 s24, vcc_lo, {mask}")
    k(f"s_cmp_eq_u32 s24, {mask}")
    k(f"s_cbranch_scc1 {k.ref(name + '_ok')}")
    k("s_add_u32 s61, s61, 1")
    k("s_cmp_ge_u32 s61, s60")
    k(f"s_cbranch_scc1 {k.ref(name + '_to')}")
    k(f"s_sleep {sleep}")
    k(f"s_branch {k.ref(name)}")
    k.lab(name + '_to')
    k("s_mov_b32 s60, 1")
    k.lab(name + '_ok')

def pub_dword(k, saddr, val, t, copies=1):
    l = k.new('pb')
    k("s_cmp_eq_u32 s3, 0")
    k(f"s_cbranch_scc0 {k.ref(l)}")
    k(f"v_lshlrev_b32 v{t}, 7, v1"); k(f"v_add_u32 v{t}, {saddr}, v{t}")
    k(f"v_mov_b32 v{t+1}, {OOB}"); k(f"v_cmp_le_u32 vcc, {copies}, v1"); k(f"v_cndmask_b32 v{t}, v{t}, v{t+1}, vcc")
    k(f"v_mov_b32 v{t+1}, {val}")
    k(f"buffer_store_dword v{t+1}, v{t}, s[8:11], 0 offen sc1")
    k.lab(l)

def next_layer(k, again):
    k("s_cmp_eq_u32 s92, 0")
    k(f"s_cbranch_scc0 {k.ref('end')}")
    k("s_mov_b32 s92, 1")
    k(f"s_branch {k.ref(again)}")

def layer_bases(k):
    k(f"s_mul_i32 s93, s92, {SYNC_LAYER}"); k(f"s_add_u32 s93, s93, {WS_SYNC}")
    k(f"s_mul_i32 s94, s92, {F_LAYER}"); k(f"s_add_u32 s94, s94, {WS_FLG + F_Q}")


def role_S(k):
    L_M, L_X, L_SP, L_DUM, L_W5, L_ST = 0, 10240, 16384, 22528, 24576, 106496
    RS = 400
    ACC, AF, WS5 = 24, 48, 68
    KX = 240
    QX = 80
    T0, T1 = 92, 93
    def wreg(t, c):
        if t < 3: return 'a', t * 80 + c * 8
        return 'v', 96 + (t - 3) * 80 + c * 8
    k("s_mov_b32 s44, s2")
    k.ptr(KA_WQ, 6); k.ptr(KA_WK, 24); k.ptr(KA_MEM0, 26)
    k("s_waitcnt lgkmcnt(0)")
    k.srd(12, 6, D * HD * 2); k.srd(16, 24, D * HD * 2); k.srd(20, 26, 8 * 640 * 2)
    GO, LO, DAT = 4, 10, 24
    stage_offsets(k, 6, 24, HD * 2, RS, L_ST, GO, LO, 16)
    tr_base(k, 16, RS, L_ST, 17)
    k("s_mul_i32 s24, s3, 96")
    k("v_add_u32 v16, s24, v16")
    k("v_lshlrev_b32 v17, 4, v1")
    k(f"s_mul_i32 s24, s3, 20480"); k(f"s_add_u32 s24, s24, {L_W5}")
    k("v_add_u32 v17, s24, v17")
    k(f"s_mul_i32 s45, s44, 384")
    blocks = [(c, m) for c in range(10) for m in range(2)]
    def loads(bi):
        c, m = blocks[bi]
        d = DAT + 24 * (bi % 3)
        k(f"s_add_u32 s46, s45, {c * 64 * HD * 2}")
        for i in range(6):
            k(f"buffer_load_dwordx4 v[{d+4*i}:{d+4*i+3}], v{GO+i}, s[{12+4*m}:{15+4*m}], s46 offen")
    loads(0); loads(1)
    for bi, (c, m) in enumerate(blocks):
        d = DAT + 24 * (bi % 3)
        k(f"s_waitcnt vmcnt({6 if bi + 1 < len(blocks) else 0})")
        for i in range(6): k(f"ds_write_b128 v{LO+i}, v[{d+4*i}:{d+4*i+3}]")
        if bi + 2 < len(blocks): loads(bi + 2)
        k("s_waitcnt lgkmcnt(0)")
        k("s_barrier")
        for t in range(3):
            tt = 3 * m + t
            if tt < 5:
                kind, r = wreg(tt, c)
                tr_frag(k, r, kind, 16, RS, 32 * t)
        if m == 1:
            tr_frag(k, d, 'v', 16, RS, 64)
            k("s_waitcnt lgkmcnt(0)")
            k(f"ds_write_b128 v17, v[{d}:{d+3}] offset:{c*2048}")
            k(f"ds_write_b128 v17, v[{d+4}:{d+7}] offset:{c*2048+1024}")
        k("s_waitcnt lgkmcnt(0)")
        k("s_barrier")
    A_, B_, C_, D_ = 30, 31, 32, 33
    k("v_mov_b32 v6, v17")
    k(f"v_mov_b32 v{A_}, 0xeeee"); k("v_mov_b32 v4, 0x4444")
    k("v_cmp_gt_u32 vcc, 8, v2")
    k(f"v_cndmask_b32 v4, v{A_}, v4, vcc")
    k("v_lshlrev_b32 v5, 4, v1")
    k("s_lshl_b32 s24, s3, 10")
    k("v_add_u32 v7, s24, v5")
    k("s_lshl_b32 s24, s3, 9"); k("s_add_u32 s24, s24, 8192")
    k("v_lshlrev_b32 v8, 3, v1")
    k("v_add_u32 v8, s24, v8")
    k(f"s_mul_i32 s24, s3, 1536"); k(f"s_add_u32 s24, s24, {L_X}")
    k("v_lshlrev_b32 v9, 5, v2")
    k("v_lshl_add_u32 v9, v3, 3, v9")
    k("v_add_u32 v9, s24, v9")
    k(f"v_lshrrev_b32 v{A_}, 2, v2"); k(f"v_and_b32 v{B_}, 3, v2")
    k(f"v_lshl_add_u32 v11, v3, 2, v{A_}")
    k("v_lshlrev_b32 v11, 5, v11")
    k(f"v_lshl_add_u32 v11, v{B_}, 3, v11")
    k("v_add_u32 v11, s24, v11")
    k(f"v_add_u32 v{D_}, {L_DUM}, v5")
    k(f"s_mul_i32 s24, s3, 1408"); k(f"s_add_u32 s24, s24, {L_SP}")
    k(f"v_mul_u32_u24 v{A_}, 176, v2")
    k(f"v_add_u32 v{A_}, s24, v{A_}")
    k(f"v_lshl_add_u32 v12, v3, 5, v{A_}")
    k("v_cmp_gt_u32 vcc, 8, v2")
    k(f"v_cndmask_b32 v12, v{D_}, v12, vcc")
    k(f"v_lshl_add_u32 v13, v3, 4, v{A_}")
    k("v_add_u32 v13, 96, v13")
    k("v_cmp_le_u32 s[24:25], 2, v3")
    k("s_and_b64 vcc, vcc, s[24:25]")
    k(f"v_cndmask_b32 v13, v{D_}, v13, vcc")
    k(f"s_mul_i32 s24, s3, 5632"); k(f"s_add_u32 s24, s24, {L_ST}")
    k(f"v_mul_u32_u24 v{A_}, 176, v2")
    k(f"v_add_u32 v{A_}, s24, v{A_}")
    k(f"v_lshl_add_u32 v16, v3, 5, v{A_}")
    k(f"v_lshl_add_u32 v17, v3, 4, v{A_}")
    k("v_add_u32 v17, 96, v17")
    k("v_add_u32 v18, 2816, v17")
    k("v_cmp_le_u32 vcc, 2, v3")
    k(f"v_cndmask_b32 v17, v{D_}, v17, vcc")
    k(f"v_cndmask_b32 v18, v{D_}, v18, vcc")
    k(f"v_lshrrev_b32 v{A_}, 3, v1")
    k(f"v_and_b32 v{B_}, 7, v1")
    k(f"v_min_u32 v{C_}, 4, v{B_}")
    k(f"v_mul_u32_u24 v14, 176, v{A_}")
    k(f"v_lshl_add_u32 v14, v{C_}, 5, v14")
    k("s_mul_i32 s24, s3, 1408"); k(f"s_add_u32 s24, s24, {L_ST}")
    k("v_add_u32 v21, s24, v14")
    k(f"v_add_u32 v14, {L_SP}, v14")
    k(f"v_cmp_gt_u32 s[50:51], 5, v{B_}")
    k("s_lshl_b32 s24, s3, 3")
    k(f"v_add_u32 v{C_}, s24, v{A_}")
    k(f"v_lshlrev_b32 v{D_}, 2, v{B_}")
    k(f"v_sub_u32 v{C_}, v{C_}, v{D_}")
    k(f"v_mov_b32 v{D_}, 100")
    k(f"v_cmp_gt_u32 vcc, 4, v{B_}")
    k(f"v_cndmask_b32 v{C_}, v{D_}, v{C_}, vcc")
    for j in range(8):
        cj = j if j < 4 else j + 12
        k(f"v_cmp_le_i32 s[{64+2*j}:{65+2*j}], {cj}, v{C_}")
    k("s_lshr_b32 s24, s44, 1"); k("s_lshl_b32 s24, s24, 10")
    k("s_and_b32 s25, s44, 1"); k("s_lshl_b32 s25, s25, 7"); k("s_add_u32 s24, s24, s25")
    k(f"v_lshlrev_b32 v15, 8, v{B_}")
    k(f"v_lshl_add_u32 v15, v{A_}, 4, v15")
    k("v_add_u32 v15, s24, v15")
    k("s_lshr_b32 s24, s44, 3"); k("s_lshl_b32 s24, s24, 10")
    k("s_and_b32 s25, s44, 3"); k("s_lshl_b32 s25, s25, 8"); k("s_add_u32 s24, s24, s25")
    k("s_lshr_b32 s25, s44, 2"); k("s_and_b32 s25, s25, 1"); k("s_lshl_b32 s25, s25, 7"); k("s_add_u32 s24, s24, s25")
    k("s_add_u32 s24, s24, 16384")
    k(f"v_lshlrev_b32 v{C_}, 4, v{A_}")
    k(f"v_add_u32 v{C_}, s24, v{C_}")
    k(f"v_cmp_eq_u32 vcc, 4, v{B_}")
    k(f"v_cndmask_b32 v15, v15, v{C_}, vcc")
    k(f"v_mov_b32 v{C_}, {OOB}")
    k(f"v_cndmask_b32 v15, v{C_}, v15, s[50:51]")
    k(f"s_cmp_lt_u32 s3, 1"); k(f"s_cselect_b32 s24, 0, {OOB}")
    k("v_or_b32 v15, s24, v15")
    k("s_and_b32 s24, s3, 1"); k("s_lshl_b32 s24, s24, 7")
    k("s_lshr_b32 s25, s3, 1"); k("s_lshl_b32 s25, s25, 10")
    k("s_add_u32 s24, s24, s25")
    k("s_lshl_b32 s25, s44, 11"); k("s_add_u32 s25, s25, s24")
    k(f"v_lshlrev_b32 v22, 8, v{B_}")
    k(f"v_lshl_add_u32 v22, v{A_}, 4, v22")
    k("v_add_u32 v22, s25, v22")
    k("s_lshr_b32 s25, s44, 2"); k("s_lshl_b32 s25, s25, 11"); k("s_add_u32 s25, s25, s24")
    k("s_and_b32 s26, s44, 3"); k("s_lshl_b32 s26, s26, 8"); k("s_add_u32 s25, s25, s26"); k("s_add_u32 s25, s25, 65536")
    k(f"v_lshlrev_b32 v{C_}, 4, v{A_}")
    k(f"v_add_u32 v{C_}, s25, v{C_}")
    k(f"v_cmp_eq_u32 vcc, 4, v{B_}")
    k(f"v_cndmask_b32 v22, v22, v{C_}, vcc")
    k(f"v_mov_b32 v{C_}, {OOB}")
    k(f"v_cndmask_b32 v22, v{C_}, v22, s[50:51]")
    k("s_mul_i32 s24, s44, 12288"); k("s_mul_i32 s25, s3, 3072"); k("s_add_u32 s24, s24, s25")
    k("v_add_u32 v19, s24, v5")
    aprobe_addr(k, 23, 's2', RH_M)
    k("s_lshr_b32 s25, s44, 3")
    ahint_addr(k, 20, A_, 's25', RH_P, True)
    k("v_mov_b32 v0, 1")
    event(k, 1, 48)
    k.lab('s_layer')
    layer_bases(k)
    k("v_and_b32 v10, 1, v1")
    k("v_lshlrev_b32 v10, 12, v10")
    k(f"s_lshl_b32 s24, s44, 7"); k(f"s_add_u32 s24, s24, s94")
    k("v_add_u32 v10, s24, v10")
    m0_image(k, 20, 48)
    k("s_mov_b32 s40, 0")
    k(f"s_mov_b32 s41, {WS_KF}")
    k(f"s_add_u32 s42, s93, {O_PX}")
    k(f"s_add_u32 s43, s93, {O_PB}")
    k(f"s_mov_b32 s45, {WS_QF}")
    k(f"s_add_u32 s47, s93, {O_MB - SYNC_STEP}")
    k(f"s_add_u32 s48, s93, {O_HR - SYNC_STEP}")
    k(f"s_add_u32 s49, s93, {O_HS}")
    def kx_loads():
        for b in range(3):
            k(f"buffer_load_dwordx4 a[{KX+4*b}:{KX+4*b+3}], v19, s[8:11], s41 offen offset:{b*1024} sc1")
    ensure_clear(k, 's_ec0', 48, 's40')
    k("s_mov_b32 s62, -1"); k("s_mov_b32 s63, 1")
    ensure(k, 's_en0', 2, 10, 48)
    kx_loads()
    event(k, 2, 48)
    k("s_waitcnt lgkmcnt(0)")
    k(f"s_branch {k.ref('s_go')}")
    P0 = 48
    def px_tail(t0, t1):
        sum4x8(k, P0, 21, 5632)
        softmax8(k, P0, t0, t1, masks=64)
        k(f"buffer_store_dwordx4 v[{P0+8}:{P0+11}], v22, s[8:11], s42 offen sc1")
        k(f"s_add_u32 s42, s42, {SYNC_STEP}")
    k.lab('s_step')
    stamp(k, 0)
    for r in range(24): k(f"v_mov_b32 v{ACC+r}, 0")
    loads_ = [f"buffer_load_dwordx4 v[84:87], v7, s[8:11], s47 offen sc1",
              f"buffer_load_dwordx4 v[88:91], v7, s[8:11], s46 offen sc1",
              f"buffer_load_dwordx2 v[92:93], v8, s[8:11], s47 offen sc1"]
    k("s_add_u32 s46, s47, 4096")
    ensure_clear(k, 's_ec', 48, 's40')
    k("s_add_u32 s63, s40, 1")
    ensure(k, 's_en', 2, 10, 48)
    aprobe(k, 's_pr', 23, 's48', 9, [82, 83, 94, 95], CFG['pd_m'], CFG['pdep'], CFG['dly_m'])
    for l in loads_: k(l)
    kx_loads()
    px_tail(80, 81)
    shot_check(k, 's_pm', loads_, range(84, 94), 58, 4, CFG['sl_m'])
    o = 84
    stamp(k, 1)
    k(f"ds_write_b128 v7, v[{o}:{o+3}]")
    k(f"ds_write_b128 v7, v[{o+4}:{o+7}] offset:4096")
    k(f"ds_write_b64 v8, v[{o+8}:{o+9}]")
    k("s_waitcnt lgkmcnt(0)")
    k.lab('s_go2')
    k("s_barrier")
    lg = LG(k)
    def rdA(c): lg.issue(('A', c), f"ds_read_b128 v[{AF+4*(c%5)}:{AF+4*(c%5)+3}], v5 offset:{c*1024}")
    def rdW(c):
        b = WS5 + 8 * (c % 2)
        lg.issue(('W', c), f"ds_read_b128 v[{b}:{b+3}], v6 offset:{c*2048}")
        lg.issue(('W', c), f"ds_read_b128 v[{b+4}:{b+7}], v6 offset:{c*2048+1024}")
    rdA(0); rdW(0); rdA(1); rdW(1); rdA(2); rdA(3); rdA(4)
    for c in range(10):
        a = AF + 4 * (c % 5)
        lg.wait(('A', c))
        for t in range(5):
            kind, r = wreg(t, c)
            k(f"v_smfmac_f32_16x16x64_bf16 v[{ACC+4*t}:{ACC+4*t+3}], v[{a}:{a+3}], {kind}[{r}:{r+7}], v4")
        lg.wait(('W', c))
        b = WS5 + 8 * (c % 2)
        k(f"v_smfmac_f32_16x16x64_bf16 v[{ACC+20}:{ACC+23}], v[{a}:{a+3}], v[{b}:{b+7}], v4")
        if c + 2 < 10: rdW(c + 2)
        if c + 5 < 10: rdA(c + 5)
    stamp(k, 2)
    for b in range(3):
        k(f"buffer_load_dwordx4 v[{QX+4*b}:{QX+4*b+3}], v19, s[8:11], s45 offen offset:{b*1024} sc1")
    k("s_waitcnt vmcnt(3)")
    def s_hint(): ahint(k, 20, 0, 's49')
    if CFG['hs_pos'] == 2: s_hint()
    T = 48
    for t in range(3):
        q = ACC + 4 * t; kk = ACC + 12 + 4 * t
        for r in range(4): k(f"v_permlane32_swap_b32 v{q+r}, v{kk+r}")
        for r in range(4): k(f"v_add_f32 v{q+r}, v{q+r}, v{kk+r}")
        k(f"v_cvt_pk_bf16_f32 v{T+2*t}, v{q}, v{q+1}")
        k(f"v_cvt_pk_bf16_f32 v{T+2*t+1}, v{q+2}, v{q+3}")
        k(f"ds_write_b64 v9, v[{T+2*t}:{T+2*t+1}] offset:{t*512}")
    XA, XB = 24, 28
    k("s_waitcnt lgkmcnt(0)")
    k(f"ds_read_b64_tr_b16 v[{XA}:{XA+1}], v11")
    k(f"ds_read_b64_tr_b16 v[{XA+2}:{XA+3}], v11 offset:512")
    k(f"ds_read_b64_tr_b16 v[{XB}:{XB+1}], v11 offset:1024")
    k("s_waitcnt lgkmcnt(0)")
    SC = 64
    k(f"v_mfma_f32_16x16x32_bf16 v[{SC}:{SC+3}], a[{KX}:{KX+3}], v[{XA}:{XA+3}], 0")
    k(f"v_mfma_f32_16x16x32_bf16 v[{SC+4}:{SC+7}], a[{KX+4}:{KX+7}], v[{XA}:{XA+3}], 0")
    k(f"v_mfma_f32_16x16x32_bf16 v[{SC+8}:{SC+11}], v[{XA}:{XA+3}], v[{XA}:{XA+3}], 0")
    k(f"v_mfma_f32_16x16x16_bf16 v[{SC}:{SC+3}], a[{KX+8}:{KX+9}], v[{XB}:{XB+1}], v[{SC}:{SC+3}]")
    k(f"v_mfma_f32_16x16x16_bf16 v[{SC+4}:{SC+7}], a[{KX+10}:{KX+11}], v[{XB}:{XB+1}], v[{SC+4}:{SC+7}]")
    k(f"v_mfma_f32_16x16x16_bf16 v[{SC+8}:{SC+11}], v[{XB}:{XB+1}], v[{XB}:{XB+1}], v[{SC+8}:{SC+11}]")
    k(f"ds_write_b128 v12, v[{SC}:{SC+3}]")
    k(f"ds_write_b128 v12, v[{SC+4}:{SC+7}] offset:16")
    k(f"ds_write_b128 v13, v[{SC+8}:{SC+11}]")
    k("s_waitcnt lgkmcnt(0)")
    k("s_barrier")
    if CFG['hs_pos'] == 3: s_hint()
    stamp(k, 3)
    sum4x8(k, P0, 14, 1408)
    softmax8(k, P0, T0, T1)
    k(f"buffer_store_dwordx4 v[{P0+8}:{P0+11}], v15, s[8:11], s43 offen sc1")
    stamp(k, 4)
    sx = lambda kt, tt: (32 + (kt * 2 + tt) * 4) if (kt * 2 + tt) < 4 else (64 + ((kt * 2 + tt) - 4) * 4)
    k(f"s_waitcnt vmcnt(2)")
    keys32 = [f"a[{KX}:{KX+3}]", f"a[{KX+4}:{KX+7}]", f"v[{XA}:{XA+3}]"]
    keys16 = [f"a[{KX+8}:{KX+9}]", f"a[{KX+10}:{KX+11}]", f"v[{XB}:{XB+1}]"]
    for tt in range(2):
        for kt in range(3):
            a = sx(kt, tt)
            k(f"v_mfma_f32_16x16x32_bf16 v[{a}:{a+3}], {keys32[kt]}, v[{QX+4*tt}:{QX+4*tt+3}], 0")
    for tt in range(2):
        for kt in range(3):
            a = sx(kt, tt)
            k(f"v_mfma_f32_16x16x16_bf16 v[{a}:{a+3}], {keys16[kt]}, v[{QX+8+2*tt}:{QX+8+2*tt+1}], v[{a}:{a+3}]")
    for tt in range(2):
        k(f"ds_write_b128 v16, v[{sx(0,tt)}:{sx(0,tt)+3}] offset:{tt*2816}")
        k(f"ds_write_b128 v16, v[{sx(1,tt)}:{sx(1,tt)+3}] offset:{tt*2816+16}")
        k(f"ds_write_b128 v{17+tt}, v[{sx(2,tt)}:{sx(2,tt)+3}]")
    k("s_add_u32 s40, s40, 1")
    k(f"s_add_u32 s41, s41, {QF_SEG}")
    k(f"s_add_u32 s45, s45, {QF_SEG}")
    for sreg in ('s43', 's47', 's48', 's49'): k(f"s_add_u32 {sreg}, {sreg}, {SYNC_STEP}")
    k("s_waitcnt lgkmcnt(0)")
    k("s_barrier")
    stamp(k, 5)
    if CFG['stamp']:
        k("s_sub_u32 s40, s40, 1"); stamp_out(k, 6, 46); k("s_add_u32 s40, s40, 1")
    k("s_cmp_lt_u32 s40, 64")
    k(f"s_cbranch_scc1 {k.ref('s_step')}")
    px_tail(80, 81)
    event(k, 3, 48)
    next_layer(k, 's_layer')
    k.lab('s_go')
    for r in range(24): k(f"v_mov_b32 v{ACC+r}, 0")
    k("s_waitcnt vmcnt(0)")
    k(f"s_branch {k.ref('s_go2')}")

def role_S2(k):
    L_M, L_X, L_SP, L_DUM, L_W5, L_ST = 0, 10240, 16384, 22528, 24576, 106496
    RS = 400
    ACC, AF, WS5 = 24, 48, 68
    KX = 240
    QX = 80
    T0, T1 = 92, 93
    def wreg(t, c):
        if t < 3: return 'a', t * 80 + c * 8
        return 'v', 96 + (t - 4) * 80 + c * 8
    k("s_mov_b32 s44, s2")
    k.ptr(KA_WQ, 6); k.ptr(KA_WK, 24); k.ptr(KA_MEM0, 26)
    k("s_waitcnt lgkmcnt(0)")
    k.srd(12, 6, D * HD * 2); k.srd(16, 24, D * HD * 2); k.srd(20, 26, 8 * 640 * 2)
    GO, LO, DAT = 4, 10, 24
    stage_offsets(k, 6, 24, HD * 2, RS, L_ST, GO, LO, 16)
    tr_base(k, 16, RS, L_ST, 17)
    k("s_mul_i32 s24, s3, 96")
    k("v_add_u32 v16, s24, v16")
    k("v_lshlrev_b32 v17, 4, v1")
    k(f"s_mul_i32 s24, s3, 20480"); k(f"s_add_u32 s24, s24, {L_W5}")
    k("v_add_u32 v17, s24, v17")
    k(f"s_mul_i32 s45, s44, 384")
    blocks = [(c, m) for c in range(10) for m in range(2)]
    def loads(bi):
        c, m = blocks[bi]
        d = DAT + 24 * (bi % 3)
        k(f"s_add_u32 s46, s45, {c * 64 * HD * 2}")
        for i in range(6):
            k(f"buffer_load_dwordx4 v[{d+4*i}:{d+4*i+3}], v{GO+i}, s[{12+4*m}:{15+4*m}], s46 offen")
    loads(0); loads(1)
    for bi, (c, m) in enumerate(blocks):
        d = DAT + 24 * (bi % 3)
        k(f"s_waitcnt vmcnt({6 if bi + 1 < len(blocks) else 0})")
        for i in range(6): k(f"ds_write_b128 v{LO+i}, v[{d+4*i}:{d+4*i+3}]")
        if bi + 2 < len(blocks): loads(bi + 2)
        k("s_waitcnt lgkmcnt(0)")
        k("s_barrier")
        for t in range(3):
            tt = 3 * m + t
            if tt != 3:
                kind, r = wreg(tt, c)
                tr_frag(k, r, kind, 16, RS, 32 * t)
        if m == 1:
            tr_frag(k, d, 'v', 16, RS, 0)
            k("s_waitcnt lgkmcnt(0)")
            k(f"ds_write_b128 v17, v[{d}:{d+3}] offset:{c*2048}")
            k(f"ds_write_b128 v17, v[{d+4}:{d+7}] offset:{c*2048+1024}")
        k("s_waitcnt lgkmcnt(0)")
        k("s_barrier")
    A_, B_, C_, D_ = 30, 31, 32, 33
    k("v_mov_b32 v6, v17")
    k(f"v_mov_b32 v{A_}, 0xeeee"); k("v_mov_b32 v4, 0x4444")
    k("v_cmp_gt_u32 vcc, 8, v2")
    k(f"v_cndmask_b32 v4, v{A_}, v4, vcc")
    k("v_lshlrev_b32 v5, 4, v1")
    k("s_lshl_b32 s24, s3, 10")
    k("v_add_u32 v7, s24, v5")
    k("s_lshl_b32 s24, s3, 9"); k("s_add_u32 s24, s24, 8192")
    k("v_lshlrev_b32 v8, 3, v1")
    k("v_add_u32 v8, s24, v8")
    k(f"v_and_b32 v{A_}, 1, v2"); k(f"v_lshlrev_b32 v{A_}, 4, v{A_}")
    k(f"v_mov_b32 v{B_}, 0x3f80"); k(f"v_lshlrev_b32 v{B_}, v{A_}, v{B_}")
    k(f"v_lshrrev_b32 v{A_}, 2, v2"); k(f"v_cmp_eq_u32 vcc, v{A_}, v3"); k(f"v_cndmask_b32 v{B_}, 0, v{B_}, vcc")
    k(f"v_and_b32 v{A_}, 2, v2"); k(f"v_cmp_eq_u32 vcc, 0, v{A_}")
    k(f"v_cndmask_b32 v10, 0, v{B_}, vcc"); k(f"v_cndmask_b32 v11, v{B_}, 0, vcc")
    k(f"v_add_u32 v{D_}, {L_DUM}, v5")
    k(f"s_mul_i32 s24, s3, 1408"); k(f"s_add_u32 s24, s24, {L_SP}")
    k(f"v_mul_u32_u24 v{A_}, 176, v2")
    k(f"v_add_u32 v{A_}, s24, v{A_}")
    k(f"v_lshl_add_u32 v12, v3, 5, v{A_}")
    k("v_cmp_gt_u32 vcc, 8, v2")
    k(f"v_cndmask_b32 v12, v{D_}, v12, vcc")
    k(f"v_lshl_add_u32 v13, v3, 4, v{A_}")
    k("v_add_u32 v13, 96, v13")
    k("v_cmp_le_u32 s[24:25], 2, v3")
    k("s_and_b64 vcc, vcc, s[24:25]")
    k(f"v_cndmask_b32 v13, v{D_}, v13, vcc")
    k(f"s_mul_i32 s24, s3, 5632"); k(f"s_add_u32 s24, s24, {L_ST}")
    k(f"v_mul_u32_u24 v{A_}, 176, v2")
    k(f"v_add_u32 v{A_}, s24, v{A_}")
    k(f"v_lshl_add_u32 v16, v3, 5, v{A_}")
    k(f"v_lshl_add_u32 v17, v3, 4, v{A_}")
    k("v_add_u32 v17, 96, v17")
    k("v_add_u32 v18, 2816, v17")
    k("v_cmp_le_u32 vcc, 2, v3")
    k(f"v_cndmask_b32 v17, v{D_}, v17, vcc")
    k(f"v_cndmask_b32 v18, v{D_}, v18, vcc")
    k(f"v_lshrrev_b32 v{A_}, 3, v1")
    k(f"v_and_b32 v{B_}, 7, v1")
    k(f"v_min_u32 v{C_}, 4, v{B_}")
    k(f"v_mul_u32_u24 v14, 176, v{A_}")
    k(f"v_lshl_add_u32 v14, v{C_}, 5, v14")
    k("s_mul_i32 s24, s3, 1408"); k(f"s_add_u32 s24, s24, {L_ST}")
    k("v_add_u32 v21, s24, v14")
    k(f"v_add_u32 v14, {L_SP}, v14")
    k(f"v_cmp_gt_u32 s[50:51], 5, v{B_}")
    k("s_lshl_b32 s24, s3, 3")
    k(f"v_add_u32 v{C_}, s24, v{A_}")
    k(f"v_lshlrev_b32 v{D_}, 2, v{B_}")
    k(f"v_sub_u32 v{C_}, v{C_}, v{D_}")
    k(f"v_mov_b32 v{D_}, 100")
    k(f"v_cmp_gt_u32 vcc, 4, v{B_}")
    k(f"v_cndmask_b32 v{C_}, v{D_}, v{C_}, vcc")
    for j in range(8):
        cj = j if j < 4 else j + 12
        k(f"v_cmp_le_i32 s[{64+2*j}:{65+2*j}], {cj}, v{C_}")
    k("s_lshr_b32 s24, s44, 1"); k("s_lshl_b32 s24, s24, 10")
    k("s_and_b32 s25, s44, 1"); k("s_lshl_b32 s25, s25, 7"); k("s_add_u32 s24, s24, s25")
    k(f"v_lshlrev_b32 v15, 8, v{B_}")
    k(f"v_lshl_add_u32 v15, v{A_}, 4, v15")
    k("v_add_u32 v15, s24, v15")
    k("s_lshr_b32 s24, s44, 3"); k("s_lshl_b32 s24, s24, 10")
    k("s_and_b32 s25, s44, 3"); k("s_lshl_b32 s25, s25, 8"); k("s_add_u32 s24, s24, s25")
    k("s_lshr_b32 s25, s44, 2"); k("s_and_b32 s25, s25, 1"); k("s_lshl_b32 s25, s25, 7"); k("s_add_u32 s24, s24, s25")
    k("s_add_u32 s24, s24, 16384")
    k(f"v_lshlrev_b32 v{C_}, 4, v{A_}")
    k(f"v_add_u32 v{C_}, s24, v{C_}")
    k(f"v_cmp_eq_u32 vcc, 4, v{B_}")
    k(f"v_cndmask_b32 v15, v15, v{C_}, vcc")
    k(f"v_mov_b32 v{C_}, {OOB}")
    k(f"v_cndmask_b32 v15, v{C_}, v15, s[50:51]")
    k(f"s_cmp_lt_u32 s3, 1"); k(f"s_cselect_b32 s24, 0, {OOB}")
    k("v_or_b32 v15, s24, v15")
    k("s_and_b32 s24, s3, 1"); k("s_lshl_b32 s24, s24, 7")
    k("s_lshr_b32 s25, s3, 1"); k("s_lshl_b32 s25, s25, 10")
    k("s_add_u32 s24, s24, s25")
    k("s_lshl_b32 s25, s44, 11"); k("s_add_u32 s25, s25, s24")
    k(f"v_lshlrev_b32 v22, 8, v{B_}")
    k(f"v_lshl_add_u32 v22, v{A_}, 4, v22")
    k("v_add_u32 v22, s25, v22")
    k("s_lshr_b32 s25, s44, 2"); k("s_lshl_b32 s25, s25, 11"); k("s_add_u32 s25, s25, s24")
    k("s_and_b32 s26, s44, 3"); k("s_lshl_b32 s26, s26, 8"); k("s_add_u32 s25, s25, s26"); k("s_add_u32 s25, s25, 65536")
    k(f"v_lshlrev_b32 v{C_}, 4, v{A_}")
    k(f"v_add_u32 v{C_}, s25, v{C_}")
    k(f"v_cmp_eq_u32 vcc, 4, v{B_}")
    k(f"v_cndmask_b32 v22, v22, v{C_}, vcc")
    k(f"v_mov_b32 v{C_}, {OOB}")
    k(f"v_cndmask_b32 v22, v{C_}, v22, s[50:51]")
    k("s_mul_i32 s24, s44, 12288"); k("s_mul_i32 s25, s3, 3072"); k("s_add_u32 s24, s24, s25")
    k("v_add_u32 v19, s24, v5")
    aprobe_addr(k, 23, 's2', RH_M)
    k("s_lshr_b32 s25, s44, 3")
    ahint_addr(k, 20, A_, 's25', RH_P, True)
    k("v_mov_b32 v0, 1")
    event(k, 1, 48)
    k.lab('s_layer')
    layer_bases(k)
    k("v_and_b32 v9, 1, v1")
    k("v_lshlrev_b32 v9, 12, v9")
    k(f"s_lshl_b32 s24, s44, 7"); k(f"s_add_u32 s24, s24, s94")
    k("v_add_u32 v9, s24, v9")
    m0_image(k, 20, 48)
    k("s_mov_b32 s40, 0")
    k(f"s_mov_b32 s41, {WS_KF}")
    k(f"s_add_u32 s42, s93, {O_PX}")
    k(f"s_add_u32 s43, s93, {O_PB}")
    k(f"s_mov_b32 s45, {WS_QF}")
    k(f"s_add_u32 s47, s93, {O_MB - SYNC_STEP}")
    k(f"s_add_u32 s48, s93, {O_HR - SYNC_STEP}")
    k(f"s_add_u32 s49, s93, {O_HS}")
    def kx_loads():
        for b in range(3):
            k(f"buffer_load_dwordx4 a[{KX+4*b}:{KX+4*b+3}], v19, s[8:11], s41 offen offset:{b*1024} sc1")
    ensure_clear(k, 's_ec0', 48, 's40')
    k("s_mov_b32 s62, -1"); k("s_mov_b32 s63, 1")
    ensure(k, 's_en0', 2, 9, 48)
    kx_loads()
    event(k, 2, 48)
    k("s_waitcnt lgkmcnt(0)")
    for r in range(24): k(f"v_mov_b32 v{ACC+r}, 0")
    k("s_barrier")
    k("ds_read_b128 v[84:87], v7"); k("ds_read_b128 v[88:91], v7 offset:4096")
    k("s_waitcnt vmcnt(0) lgkmcnt(0)")
    for w in range(3):
        k(f"s_cmp_eq_u32 s3, {w}"); k(f"s_cbranch_scc1 {k.ref('s_gow' + str(w))}")
    k(f"s_branch {k.ref('s_gow3')}")
    P0 = 48
    def px_tail(t0, t1):
        sum4x8(k, P0, 21, 5632)
        softmax8(k, P0, t0, t1, masks=64)
        k(f"buffer_store_dwordx4 v[{P0+8}:{P0+11}], v22, s[8:11], s42 offen sc1")
        k(f"s_add_u32 s42, s42, {SYNC_STEP}")
    M32 = "v_mfma_f32_16x16x32_bf16"; M16 = "v_mfma_f32_16x16x16_bf16"
    XA, XB = 24, 32
    SC = [28, 36, 40]
    def epi_pair(p, dest):
        q = ACC + 4 * p; kk = ACC + 12 + 4 * p
        L = [f"v_permlane32_swap_b32 v{q+r}, v{kk+r}" for r in range(4)]
        L += [f"v_add_f32 v{q+r}, v{q+r}, v{kk+r}" for r in range(4)]
        L += [f"v_cvt_pk_bf16_f32 v{kk}, v{q}, v{q+1}", f"v_cvt_pk_bf16_f32 v{kk+1}, v{q+2}, v{q+3}"]
        L += [f"{M16} v[{q}:{q+3}], v[{kk}:{kk+1}], v[10:11], 0"]
        return L, [f"v_cvt_pk_bf16_f32 v{dest}, v{q}, v{q+1}", f"v_cvt_pk_bf16_f32 v{dest+1}, v{q+2}, v{q+3}"]
    def loop(w):
        sf = 'w' + str(w)
        k.lab('s_step' + sf)
        stamp(k, 0)
        for r in range(24): k(f"v_mov_b32 v{ACC+r}, 0")
        loads_ = [f"buffer_load_dwordx4 v[84:87], v7, s[8:11], s47 offen sc1",
                  f"buffer_load_dwordx4 v[88:91], v7, s[8:11], s46 offen sc1",
                  f"buffer_load_dwordx2 v[92:93], v8, s[8:11], s47 offen sc1"]
        k("s_add_u32 s46, s47, 4096")
        ensure_clear(k, 's_ec' + sf, 48, 's40')
        k("s_add_u32 s63, s40, 1")
        ensure(k, 's_en' + sf, 2, 9, 48)
        if CFG['kx_pos'] == 0: kx_loads()
        if CFG['px_pos'] == 0: px_tail(80, 81)
        aprobe(k, 's_pr' + sf, 23, 's48', CFG['tgt_m'], [82, 83, 94, 95], CFG['pd_m'], CFG['pdep'], CFG['dly_m'])
        for l in loads_: k(l)
        ny = 0
        if CFG['kx_pos'] == 1: kx_loads(); ny += 3
        if CFG['px_pos'] == 1: px_tail(80, 81); ny += 1
        shot_check(k, 's_pm' + sf, loads_, range(84, 94), 58, ny, CFG['sl_m'])
        if CFG['kx_pos'] == 2: kx_loads()
        stamp(k, 1)
        k(f"ds_write_b128 v7, v[84:87]")
        k(f"ds_write_b128 v7, v[88:91] offset:4096")
        k(f"ds_write_b64 v8, v[92:93]")
        k.lab('s_go' + sf)
        lg = LG(k)
        own = [w, 4 + w]; oth = [c for c in range(10) if c not in own]
        def rdW(c, slot):
            b = WS5 + 8 * slot
            lg.issue(('W', c), f"ds_read_b128 v[{b}:{b+3}], v6 offset:{c*2048}")
            lg.issue(('W', c), f"ds_read_b128 v[{b+4}:{b+7}], v6 offset:{c*2048+1024}")
        def rdA(j):
            a = AF + 4 * (j % 5)
            lg.issue(('A', j), f"ds_read_b128 v[{a}:{a+3}], v5 offset:{oth[j % 8]*1024}")
        def sm(t, c, a, slot=None):
            if t == 3: B = f"v[{WS5+8*slot}:{WS5+8*slot+7}]"
            else:
                kind, r = wreg(t, c); B = f"{kind}[{r}:{r+7}]"
            k(f"v_smfmac_f32_16x16x64_bf16 v[{ACC+4*t}:{ACC+4*t+3}], v[{a}:{a+3}], {B}, v4")
        rdW(own[0], 0); rdW(own[1], 1)
        for t in (0, 1, 2, 4, 5): sm(t, own[0], 84)
        lg.wait(('W', own[0])); sm(3, own[0], 84, 0)
        rdW(oth[0], 0)
        k("s_barrier")
        for j in range(5): rdA(j)
        for t in (0, 1, 2, 4, 5): sm(t, own[1], 88)
        lg.wait(('W', own[1])); sm(3, own[1], 88, 1)
        rdW(oth[1], 1)
        for j in range(8):
            c = oth[j]; a = AF + 4 * (j % 5)
            lg.wait(('A', j))
            for t in (0, 1, 4): sm(t, c, a)
            lg.wait(('W', c)); sm(3, c, a, j % 2)
            if j + 2 < 8: rdW(oth[j + 2], j % 2)
            rdA(j + 5)
        for b in range(3):
            k(f"buffer_load_dwordx4 v[{QX+4*b}:{QX+4*b+3}], v19, s[8:11], s45 offen offset:{b*1024} sc1")
        e1a, e1b = epi_pair(1, XA + 2); e0a, e0b = epi_pair(0, XA)
        E = [None, None] + e1a + e0a + [None] + e0b + e1b + [f"s_waitcnt vmcnt({4 if (CFG['kx_pos'] == 1 and CFG['px_pos'] == 1) else 3})", None]
        E += [f"{M32} v[{SC[0]}:{SC[0]+3}], a[{KX}:{KX+3}], v[{XA}:{XA+3}], 0",
              f"{M32} v[{SC[1]}:{SC[1]+3}], a[{KX+4}:{KX+7}], v[{XA}:{XA+3}], 0",
              f"{M32} v[{SC[2]}:{SC[2]+3}], v[{XA}:{XA+3}], v[{XA}:{XA+3}], 0"]
        def extra(n):
            for _ in range(n):
                if E:
                    t_ = E.pop(0)
                    if t_: k(t_)
        for j in range(8, 16):
            c = oth[j - 8]; a = AF + 4 * (j % 5)
            lg.wait(('A', j))
            sm(2, c, a); extra(2)
            sm(5, c, a); extra(2)
            if j + 5 < 16: rdA(j + 5)
        extra(100)
        stamp(k, 2)
        if CFG['hs_pos'] == 2 and w == 0: ahint(k, 20, 0, 's49')
        e2a, e2b = epi_pair(2, XB)
        for t_ in e2a: k(t_)
        if CFG['hs_pos'] == 20 and w == 0: ahint(k, 20, 0, 's49')
        for t_ in e2b: k(t_)
        if CFG['hs_pos'] == 21 and w == 0: ahint(k, 20, 0, 's49')
        k(f"{M16} v[{SC[0]}:{SC[0]+3}], a[{KX+8}:{KX+9}], v[{XB}:{XB+1}], v[{SC[0]}:{SC[0]+3}]")
        k(f"{M16} v[{SC[1]}:{SC[1]+3}], a[{KX+10}:{KX+11}], v[{XB}:{XB+1}], v[{SC[1]}:{SC[1]+3}]")
        k(f"{M16} v[{SC[2]}:{SC[2]+3}], v[{XB}:{XB+1}], v[{XB}:{XB+1}], v[{SC[2]}:{SC[2]+3}]")
        if CFG['hs_pos'] == 22 and w == 0: ahint(k, 20, 0, 's49')
        k(f"ds_write_b128 v12, v[{SC[0]}:{SC[0]+3}]")
        k(f"ds_write_b128 v12, v[{SC[1]}:{SC[1]+3}] offset:16")
        k(f"ds_write_b128 v13, v[{SC[2]}:{SC[2]+3}]")
        if CFG['hs_pos'] == 23 and w == 0: ahint(k, 20, 0, 's49')
        k("s_waitcnt lgkmcnt(0)")
        k("s_barrier")
        stamp(k, 3)
        if w == 0:
            if CFG['hs_pos'] == 3: ahint(k, 20, 0, 's49')
            sum4x8(k, P0, 14, 1408)
            softmax8(k, P0, T0, T1)
            k(f"buffer_store_dwordx4 v[{P0+8}:{P0+11}], v15, s[8:11], s43 offen sc1")
        stamp(k, 4)
        sx = lambda kt, tt: [36, 40, 44, 64, 68, 72][kt * 2 + tt]
        k(f"s_waitcnt vmcnt({2 if w == 0 else 0})")
        keys32 = [f"a[{KX}:{KX+3}]", f"a[{KX+4}:{KX+7}]", f"v[{XA}:{XA+3}]"]
        keys16 = [f"a[{KX+8}:{KX+9}]", f"a[{KX+10}:{KX+11}]", f"v[{XB}:{XB+1}]"]
        for tt in range(2):
            for kt in range(3):
                a = sx(kt, tt)
                k(f"{M32} v[{a}:{a+3}], {keys32[kt]}, v[{QX+4*tt}:{QX+4*tt+3}], 0")
        for tt in range(2):
            for kt in range(3):
                a = sx(kt, tt)
                k(f"{M16} v[{a}:{a+3}], {keys16[kt]}, v[{QX+8+2*tt}:{QX+8+2*tt+1}], v[{a}:{a+3}]")
        for tt in range(2):
            k(f"ds_write_b128 v16, v[{sx(0,tt)}:{sx(0,tt)+3}] offset:{tt*2816}")
            k(f"ds_write_b128 v16, v[{sx(1,tt)}:{sx(1,tt)+3}] offset:{tt*2816+16}")
            k(f"ds_write_b128 v{17+tt}, v[{sx(2,tt)}:{sx(2,tt)+3}]")
        k("s_add_u32 s40, s40, 1")
        k(f"s_add_u32 s41, s41, {QF_SEG}")
        k(f"s_add_u32 s45, s45, {QF_SEG}")
        for sreg in ('s43', 's47', 's48', 's49'): k(f"s_add_u32 {sreg}, {sreg}, {SYNC_STEP}")
        k("s_waitcnt lgkmcnt(0)")
        k("s_barrier")
        stamp(k, 5)
        if CFG['stamp']:
            k("s_sub_u32 s40, s40, 1"); stamp_out(k, 6, 46); k("s_add_u32 s40, s40, 1")
        k("s_cmp_lt_u32 s40, 64")
        k(f"s_cbranch_scc1 {k.ref('s_step' + sf)}")
        if w < 3: k(f"s_branch {k.ref('s_end')}")
    for w in range(4): loop(w)
    k.lab('s_end')
    px_tail(80, 81)
    event(k, 3, 48)
    next_layer(k, 's_layer')

def role_V(k):
    L_M, L_V, L_WO, L_ST = 0, 10240, 16384, 16384 + 73728
    RS1, RS2 = 400, 656
    MA, VACC, VA, STG = 16, 56, 68, 80
    def wv(t, c): return 'a', t * 80 + c * 8
    def wo(t, c):
        i = t * 3 + c
        if i < 2: return 'a', 240 + 8 * i
        return 'v', 104 + 8 * (i - 2)
    k("s_sub_u32 s44, s2, 32")
    k.ptr(KA_WV, 6); k.ptr(KA_WO, 24); k.ptr(KA_MEM0, 26)
    k("s_waitcnt lgkmcnt(0)")
    k.srd(12, 6, D * HD * 2); k.srd(16, 24, D * HD * 2); k.srd(20, 26, 8 * 640 * 2)
    GO, LO, DAT = 4, 10, 24
    stage_offsets(k, 6, 24, HD * 2, RS1, L_ST, GO, LO, 16)
    tr_base(k, 16, RS1, L_ST, 17)
    k("s_mul_i32 s24, s3, 96")
    k("v_add_u32 v16, s24, v16")
    k(f"s_mul_i32 s45, s44, 384")
    def loads(c):
        d = DAT + 24 * (c % 3)
        k(f"s_add_u32 s46, s45, {c * 64 * HD * 2}")
        for i in range(6):
            k(f"buffer_load_dwordx4 v[{d+4*i}:{d+4*i+3}], v{GO+i}, s[12:15], s46 offen")
    loads(0); loads(1)
    for c in range(10):
        d = DAT + 24 * (c % 3)
        k(f"s_waitcnt vmcnt({6 if c + 1 < 10 else 0})")
        for i in range(6): k(f"ds_write_b128 v{LO+i}, v[{d+4*i}:{d+4*i+3}]")
        if c + 2 < 10: loads(c + 2)
        k("s_waitcnt lgkmcnt(0)")
        k("s_barrier")
        for t in range(3):
            kind, r = wv(t, c)
            tr_frag(k, r, kind, 16, RS1, 32 * t)
        k("s_waitcnt lgkmcnt(0)")
        k("s_barrier")
    GO, LO, DAT = 4, 14, 24
    stage_offsets(k, 10, 40, 1280, RS2, L_ST, GO, LO, 64)
    tr_base(k, 72, RS2, L_ST, 64)
    k("s_and_b32 s24, s3, 1"); k("s_mul_i32 s24, s24, 320")
    k("v_add_u32 v72, s24, v72")
    k("v_lshlrev_b32 v73, 4, v1")
    k(f"s_mul_i32 s24, s3, 18432"); k(f"s_add_u32 s24, s24, {L_WO}")
    k("v_add_u32 v73, s24, v73")
    k(f"s_mul_i32 s45, s44, {192*1280}")
    for c in range(3):
        for hf in range(2):
            k(f"s_add_u32 s46, s45, {c*64*1280 + hf*640}")
            for i in range(10):
                k(f"buffer_load_dwordx4 v[{DAT+4*i}:{DAT+4*i+3}], v{GO+i}, s[16:19], s46 offen")
            k("s_waitcnt vmcnt(0)")
            for i in range(10): k(f"ds_write_b128 v{LO+i}, v[{DAT+4*i}:{DAT+4*i+3}]")
            k("s_waitcnt lgkmcnt(0)")
            k("s_barrier")
            l = k.new('wo')
            k("s_lshr_b32 s24, s3, 1")
            k(f"s_cmp_eq_u32 s24, {hf}")
            k(f"s_cbranch_scc0 {k.ref(l)}")
            for t in range(10):
                if t < 7:
                    kind, r = wo(t, c)
                    tr_frag(k, r, kind, 72, RS2, 32 * t)
                else:
                    tr_frag(k, 64, 'v', 72, RS2, 32 * t)
                    k("s_waitcnt lgkmcnt(0)")
                    o = ((t - 7) * 3 + c) * 2048
                    k(f"ds_write_b128 v73, v[64:67] offset:{o}")
                    k(f"ds_write_b128 v73, v[68:71] offset:{o+1024}")
                    k("s_waitcnt lgkmcnt(0)")
            k("s_waitcnt lgkmcnt(0)")
            k.lab(l)
            k("s_barrier")
    k("v_mov_b32 v6, v73")
    k("v_mov_b32 v4, 0x4444"); k("v_mov_b32 v5, 0xeeee")
    k("v_cmp_gt_u32 vcc, 8, v2")
    k("v_cndmask_b32 v4, v5, v4, vcc")
    k("v_lshlrev_b32 v5, 4, v1")
    k("s_lshl_b32 s24, s3, 10")
    k("v_add_u32 v7, s24, v5")
    k("s_lshl_b32 s24, s3, 9"); k("s_add_u32 s24, s24, 8192")
    k("v_lshlrev_b32 v8, 3, v1")
    k("v_add_u32 v8, s24, v8")
    k("v_and_b32 v64, 7, v2"); k("v_lshlrev_b32 v9, 5, v64")
    k("v_lshrrev_b32 v64, 3, v2"); k("v_lshl_add_u32 v9, v64, 4, v9")
    k("v_and_b32 v64, 1, v3"); k("v_lshl_add_u32 v9, v64, 3, v9")
    k(f"s_mul_i32 s24, s3, 768"); k(f"s_add_u32 s24, s24, {L_V}")
    k("v_add_u32 v9, s24, v9")
    k("v_lshrrev_b32 v65, 1, v3")
    k("v_lshl_add_u32 v10, v65, 8, v9")
    k("v_lshrrev_b32 v64, 2, v2"); k("v_lshlrev_b32 v11, 5, v64")
    k("v_and_b32 v64, 3, v2"); k("v_lshl_add_u32 v11, v64, 3, v11")
    k("v_lshl_add_u32 v11, v3, 8, v11")
    k(f"v_add_u32 v11, {L_V}, v11")
    k("s_mul_i32 s24, s3, 10"); k("s_lshl_b32 s24, s24, 13"); k("s_lshl_b32 s25, s44, 8"); k("s_add_u32 s24, s24, s25")
    k("v_lshlrev_b32 v14, 13, v3")
    k("v_lshl_add_u32 v14, v2, 4, v14")
    k("v_add_u32 v14, s24, v14")
    k("v_lshrrev_b32 v64, 1, v3")
    k("v_lshlrev_b32 v15, 13, v64")
    k("v_lshl_add_u32 v15, v2, 4, v15")
    k("v_add_u32 v15, s24, v15")
    k(f"v_add_u32 v15, {8*8192}, v15")
    k("v_and_b32 v64, 1, v3")
    k("v_cmp_eq_u32 vcc, 0, v64")
    k(f"v_mov_b32 v64, {OOB}")
    k("v_cndmask_b32 v15, v64, v15, vcc")
    aprobe_addr(k, 12, 's2', RH_M)
    k("v_mov_b32 v0, 1")
    event(k, 1, 64)
    k.lab('v_layer')
    layer_bases(k)
    m0_image(k, 20, 64)
    k("s_mov_b32 s40, 0")
    k(f"s_add_u32 s43, s93, {O_VOM}")
    k(f"s_add_u32 s47, s93, {O_MB - SYNC_STEP}")
    k(f"s_add_u32 s45, s93, {O_HR - SYNC_STEP}")
    ensure_clear(k, 'v_ec0', 64, 's40')
    k("s_waitcnt lgkmcnt(0)")
    k(f"s_branch {k.ref('v_go2')}")
    k.lab('v_step')
    stamp(k, 0)
    loads_ = [f"buffer_load_dwordx4 v[68:71], v7, s[8:11], s47 offen sc1",
              f"buffer_load_dwordx4 v[72:75], v7, s[8:11], s48 offen sc1",
              f"buffer_load_dwordx2 v[76:77], v8, s[8:11], s47 offen sc1"]
    k("s_add_u32 s48, s47, 4096")
    ensure_clear(k, 'v_ec', 64, 's40')
    aprobe(k, 'v_pr', 12, 's45', 9, [80, 81, 82, 83], CFG['pd_m'], CFG['pdep'], CFG['dly_v'])
    stamp(k, 5)
    for l in loads_: k(l)
    shot_check(k, 'v_pm', loads_, range(68, 78), 26, 0, CFG['sl_m'])
    o = 68
    stamp(k, 1)
    k(f"ds_write_b128 v7, v[{o}:{o+3}]")
    k(f"ds_write_b128 v7, v[{o+4}:{o+7}] offset:4096")
    k(f"ds_write_b64 v8, v[{o+8}:{o+9}]")
    k("s_waitcnt lgkmcnt(0)")
    k.lab('v_go2')
    k("s_barrier")
    lg = LG(k)
    for c in range(10): lg.issue(('A', c), f"ds_read_b128 v[{MA+4*c}:{MA+4*c+3}], v5 offset:{c*1024}")
    for r in range(12): k(f"v_mov_b32 v{VACC+r}, 0")
    for c in range(10):
        lg.wait(('A', c))
        for t in range(3):
            kind, r = wv(t, c)
            k(f"v_smfmac_f32_16x16x64_bf16 v[{VACC+4*t}:{VACC+4*t+3}], v[{MA+4*c}:{MA+4*c+3}], {kind}[{r}:{r+7}], v4")
    def rdWo(t, c, slot):
        b = STG + 8 * slot; o = ((t - 7) * 3 + c) * 2048
        lg.issue(('W', t, c), f"ds_read_b128 v[{b}:{b+3}], v6 offset:{o}")
        lg.issue(('W', t, c), f"ds_read_b128 v[{b+4}:{b+7}], v6 offset:{o+1024}")
    for c in range(3): rdWo(7, c, c)
    stamp(k, 2)
    k("s_waitcnt vmcnt(0)")
    for r in range(40): k(f"v_mov_b32 v{MA+r}, 0")
    for r in range(4): k(f"v_permlane32_swap_b32 v{VACC+r}, v{VACC+4+r}")
    for r in range(4): k(f"v_add_f32 v{VACC+r}, v{VACC+r}, v{VACC+4+r}")
    k(f"v_cvt_pk_bf16_f32 v{VA}, v{VACC}, v{VACC+1}")
    k(f"v_cvt_pk_bf16_f32 v{VA+1}, v{VACC+2}, v{VACC+3}")
    for r in range(4): k(f"v_mov_b32 v{VACC+4+r}, v{VACC+8+r}")
    for r in range(4): k(f"v_permlane32_swap_b32 v{VACC+8+r}, v{VACC+4+r}")
    for r in range(4): k(f"v_add_f32 v{VACC+8+r}, v{VACC+8+r}, v{VACC+4+r}")
    k(f"v_cvt_pk_bf16_f32 v{VA+2}, v{VACC+8}, v{VACC+9}")
    k(f"v_cvt_pk_bf16_f32 v{VA+3}, v{VACC+10}, v{VACC+11}")
    lg.issue('x', f"ds_write_b64 v10, v[{VA}:{VA+1}]")
    lg.issue('x', f"ds_write_b64 v9, v[{VA+2}:{VA+3}] offset:512")
    lg.all()
    k("s_barrier")
    for c in range(3):
        lg.issue(('V', c), f"ds_read_b64_tr_b16 v[{VA+4*c}:{VA+4*c+1}], v11 offset:{c*1024}")
        lg.issue(('V', c), f"ds_read_b64_tr_b16 v[{VA+4*c+2}:{VA+4*c+3}], v11 offset:{c*1024+128}")
    stamp(k, 3)
    acc = lambda t: MA + 4 * t
    def mm(t, c, B):
        k(f"v_smfmac_f32_16x16x64_bf16 v[{acc(t)}:{acc(t)+3}], v[{VA+4*c}:{VA+4*c+3}], {B}, v4")
    def B_reg(t, c):
        kind, r = wo(t, c); return f"{kind}[{r}:{r+7}]"
    OUT = 56
    def epi(T, o):
        L = []
        t0, t1, t2, t3 = T
        for (x, y) in ((t0, t2), (t1, t3)):
            for r in range(4): L.append(f"v_permlane32_swap_b32 v{acc(x)+r}, v{acc(y)+r}")
            for r in range(4): L.append(f"v_add_f32 v{acc(x)+r}, v{acc(x)+r}, v{acc(y)+r}")
        L.append(f"v_cvt_pk_bf16_f32 v{o}, v{acc(t0)}, v{acc(t0)+1}")
        L.append(f"v_cvt_pk_bf16_f32 v{o+1}, v{acc(t0)+2}, v{acc(t0)+3}")
        L.append(f"v_cvt_pk_bf16_f32 v{o+2}, v{acc(t1)}, v{acc(t1)+1}")
        L.append(f"v_cvt_pk_bf16_f32 v{o+3}, v{acc(t1)+2}, v{acc(t1)+3}")
        L.append(f"v_permlane16_swap_b32 v{o}, v{o+2}")
        L.append(f"v_permlane16_swap_b32 v{o+1}, v{o+3}")
        for r in range(4): L.append(f"v_min_u32 v{o+r}, -2, v{o+r}")
        return L
    for c in range(3):
        lg.wait(('V', c))
        for t in range(4): mm(t, c, B_reg(t, c))
    for c in range(3):
        for t in (4, 5, 6): mm(t, c, B_reg(t, c))
        mm(7, c, f"v[{STG+8*c}:{STG+8*c+7}]")
        rdWo(8, c, c)
    for s_ in epi([0, 1, 2, 3], OUT): k(s_)
    k(f"buffer_store_dwordx4 v[{OUT}:{OUT+3}], v14, s[8:11], s43 offen sc1")
    for c in range(3):
        lg.wait(('W', 8, c))
        mm(8, c, f"v[{STG+8*c}:{STG+8*c+7}]")
        rdWo(9, c, c)
    for s_ in epi([4, 5, 6, 7], OUT + 4): k(s_)
    k("s_add_u32 s49, s43, 32768")
    k(f"buffer_store_dwordx4 v[{OUT+4}:{OUT+7}], v14, s[8:11], s49 offen sc1")
    for c in range(3):
        lg.wait(('W', 9, c))
        mm(9, c, f"v[{STG+8*c}:{STG+8*c+7}]")
    o = OUT + 8
    for r in range(4): k(f"v_permlane32_swap_b32 v{acc(8)+r}, v{acc(9)+r}")
    for r in range(4): k(f"v_add_f32 v{acc(8)+r}, v{acc(8)+r}, v{acc(9)+r}")
    k(f"v_cvt_pk_bf16_f32 v{o}, v{acc(8)}, v{acc(8)+1}")
    k(f"v_cvt_pk_bf16_f32 v{o+1}, v{acc(8)+2}, v{acc(8)+3}")
    k(f"v_mov_b32 v{o+2}, v{o}")
    k(f"v_mov_b32 v{o+3}, v{o+1}")
    k(f"v_permlane16_swap_b32 v{o}, v{o+2}")
    k(f"v_permlane16_swap_b32 v{o+1}, v{o+3}")
    for r in range(4): k(f"v_min_u32 v{o+r}, -2, v{o+r}")
    k(f"buffer_store_dwordx4 v[{o}:{o+3}], v15, s[8:11], s43 offen sc1")
    stamp(k, 4)
    stamp_out(k, 6, 46)
    k("s_add_u32 s40, s40, 1")
    for sreg in ('s43', 's47', 's45'): k(f"s_add_u32 {sreg}, {sreg}, {SYNC_STEP}")
    k("s_cmp_lt_u32 s40, 64")
    k(f"s_cbranch_scc1 {k.ref('v_step')}")
    event(k, 3, 64)
    next_layer(k, 'v_layer')

def role_V2(k):
    L_M, L_V, L_WO, L_ST = 0, 10240, 16384, 16384 + 73728
    RS1, RS2 = 400, 656
    MA, VACC, VA, STG = 16, 56, 68, 80
    def wv(t, c): return 'a', t * 80 + c * 8
    def wo(t, c):
        i = t * 3 + c
        if i < 2: return 'a', 240 + 8 * i
        return 'v', 104 + 8 * (i - 2)
    k("s_sub_u32 s44, s2, 32")
    k.ptr(KA_WV, 6); k.ptr(KA_WO, 24); k.ptr(KA_MEM0, 26)
    k("s_waitcnt lgkmcnt(0)")
    k.srd(12, 6, D * HD * 2); k.srd(16, 24, D * HD * 2); k.srd(20, 26, 8 * 640 * 2)
    GO, LO, DAT = 4, 10, 24
    stage_offsets(k, 6, 24, HD * 2, RS1, L_ST, GO, LO, 16)
    tr_base(k, 16, RS1, L_ST, 17)
    k("s_mul_i32 s24, s3, 96")
    k("v_add_u32 v16, s24, v16")
    k(f"s_mul_i32 s45, s44, 384")
    def loads(c):
        d = DAT + 24 * (c % 3)
        k(f"s_add_u32 s46, s45, {c * 64 * HD * 2}")
        for i in range(6):
            k(f"buffer_load_dwordx4 v[{d+4*i}:{d+4*i+3}], v{GO+i}, s[12:15], s46 offen")
    loads(0); loads(1)
    for c in range(10):
        d = DAT + 24 * (c % 3)
        k(f"s_waitcnt vmcnt({6 if c + 1 < 10 else 0})")
        for i in range(6): k(f"ds_write_b128 v{LO+i}, v[{d+4*i}:{d+4*i+3}]")
        if c + 2 < 10: loads(c + 2)
        k("s_waitcnt lgkmcnt(0)")
        k("s_barrier")
        for t in range(3):
            kind, r = wv(t, c)
            tr_frag(k, r, kind, 16, RS1, 32 * t)
        k("s_waitcnt lgkmcnt(0)")
        k("s_barrier")
    GO, LO, DAT = 4, 14, 24
    stage_offsets(k, 10, 40, 1280, RS2, L_ST, GO, LO, 64)
    tr_base(k, 72, RS2, L_ST, 64)
    k("s_and_b32 s24, s3, 1"); k("s_mul_i32 s24, s24, 320")
    k("v_add_u32 v72, s24, v72")
    k("v_lshlrev_b32 v73, 4, v1")
    k(f"s_mul_i32 s24, s3, 18432"); k(f"s_add_u32 s24, s24, {L_WO}")
    k("v_add_u32 v73, s24, v73")
    k(f"s_mul_i32 s45, s44, {192*1280}")
    for c in range(3):
        for hf in range(2):
            k(f"s_add_u32 s46, s45, {c*64*1280 + hf*640}")
            for i in range(10):
                k(f"buffer_load_dwordx4 v[{DAT+4*i}:{DAT+4*i+3}], v{GO+i}, s[16:19], s46 offen")
            k("s_waitcnt vmcnt(0)")
            for i in range(10): k(f"ds_write_b128 v{LO+i}, v[{DAT+4*i}:{DAT+4*i+3}]")
            k("s_waitcnt lgkmcnt(0)")
            k("s_barrier")
            l = k.new('wo')
            k("s_lshr_b32 s24, s3, 1")
            k(f"s_cmp_eq_u32 s24, {hf}")
            k(f"s_cbranch_scc0 {k.ref(l)}")
            for t in range(10):
                if t < 7:
                    kind, r = wo(t, c)
                    tr_frag(k, r, kind, 72, RS2, 32 * t)
                else:
                    tr_frag(k, 64, 'v', 72, RS2, 32 * t)
                    k("s_waitcnt lgkmcnt(0)")
                    o = ((t - 7) * 3 + c) * 2048
                    k(f"ds_write_b128 v73, v[64:67] offset:{o}")
                    k(f"ds_write_b128 v73, v[68:71] offset:{o+1024}")
                    k("s_waitcnt lgkmcnt(0)")
            k("s_waitcnt lgkmcnt(0)")
            k.lab(l)
            k("s_barrier")
    k("v_mov_b32 v6, v73")
    k("v_mov_b32 v4, 0x4444"); k("v_mov_b32 v5, 0xeeee")
    k("v_cmp_gt_u32 vcc, 8, v2")
    k("v_cndmask_b32 v4, v5, v4, vcc")
    k("v_lshlrev_b32 v5, 4, v1")
    k("s_lshl_b32 s24, s3, 10")
    k("v_add_u32 v7, s24, v5")
    k("s_lshl_b32 s24, s3, 9"); k("s_add_u32 s24, s24, 8192")
    k("v_lshlrev_b32 v8, 3, v1")
    k("v_add_u32 v8, s24, v8")
    k("v_and_b32 v64, 7, v2"); k("v_lshlrev_b32 v9, 5, v64")
    k("v_lshrrev_b32 v64, 3, v2"); k("v_lshl_add_u32 v9, v64, 4, v9")
    k("v_and_b32 v64, 1, v3"); k("v_lshl_add_u32 v9, v64, 3, v9")
    k(f"s_mul_i32 s24, s3, 768"); k(f"s_add_u32 s24, s24, {L_V}")
    k("v_add_u32 v9, s24, v9")
    k("v_lshrrev_b32 v65, 1, v3")
    k("v_lshl_add_u32 v10, v65, 8, v9")
    k("v_lshrrev_b32 v64, 2, v2"); k("v_lshlrev_b32 v11, 5, v64")
    k("v_and_b32 v64, 3, v2"); k("v_lshl_add_u32 v11, v64, 3, v11")
    k("v_lshl_add_u32 v11, v3, 8, v11")
    k(f"v_add_u32 v11, {L_V}, v11")
    k("s_mul_i32 s24, s3, 10"); k("s_lshl_b32 s24, s24, 13"); k("s_lshl_b32 s25, s44, 8"); k("s_add_u32 s24, s24, s25")
    k("v_lshlrev_b32 v14, 13, v3")
    k("v_lshl_add_u32 v14, v2, 4, v14")
    k("v_add_u32 v14, s24, v14")
    k("v_lshrrev_b32 v64, 1, v3")
    k("v_lshlrev_b32 v15, 13, v64")
    k("v_lshl_add_u32 v15, v2, 4, v15")
    k("v_add_u32 v15, s24, v15")
    k(f"v_add_u32 v15, {8*8192}, v15")
    k("v_and_b32 v64, 1, v3")
    k("v_cmp_eq_u32 vcc, 0, v64")
    k(f"v_mov_b32 v64, {OOB}")
    k("v_cndmask_b32 v15, v64, v15, vcc")
    aprobe_addr(k, 12, 's2', RH_M)
    k("v_mov_b32 v0, 1")
    event(k, 1, 64)
    k.lab('v_layer')
    layer_bases(k)
    m0_image(k, 20, 64)
    k("s_mov_b32 s40, 0")
    k(f"s_add_u32 s43, s93, {O_VOM}")
    k(f"s_add_u32 s47, s93, {O_MB - SYNC_STEP}")
    k(f"s_add_u32 s45, s93, {O_HR - SYNC_STEP}")
    ensure_clear(k, 'v_ec0', 64, 's40')
    for r in range(16, 68): k(f"v_mov_b32 v{r}, 0")
    k("s_waitcnt lgkmcnt(0)")
    k("s_barrier")
    k("ds_read_b128 v[68:71], v7"); k("ds_read_b128 v[72:75], v7 offset:4096")
    k("s_waitcnt lgkmcnt(0)")
    for w in range(3):
        k(f"s_cmp_eq_u32 s3, {w}"); k(f"s_cbranch_scc1 {k.ref('v_gow' + str(w))}")
    k(f"s_branch {k.ref('v_gow3')}")
    SMF = "v_smfmac_f32_16x16x64_bf16"
    def loop(w):
        sf = 'w' + str(w)
        k.lab('v_step' + sf)
        stamp(k, 0)
        for r in range(16, 68): k(f"v_mov_b32 v{r}, 0")
        loads_ = [f"buffer_load_dwordx4 v[68:71], v7, s[8:11], s47 offen sc1",
                  f"buffer_load_dwordx4 v[72:75], v7, s[8:11], s48 offen sc1",
                  f"buffer_load_dwordx2 v[76:77], v8, s[8:11], s47 offen sc1"]
        k("s_add_u32 s48, s47, 4096")
        ensure_clear(k, 'v_ec' + sf, 78, 's40')
        aprobe(k, 'v_pr' + sf, 12, 's45', CFG['tgt_m'], [80, 81, 82, 83], CFG['pd_m'], CFG['pdep'], CFG['dly_v'])
        stamp(k, 5)
        for l in loads_: k(l)
        shot_check(k, 'v_pm' + sf, loads_, range(68, 78), 104 - 1, 0, CFG['sl_m'])
        stamp(k, 1)
        k(f"ds_write_b128 v7, v[68:71]")
        k(f"ds_write_b128 v7, v[72:75] offset:4096")
        k(f"ds_write_b64 v8, v[76:77]")
        k.lab('v_go' + sf)
        lg = LG(k)
        own = [w, 4 + w]; oth = [c for c in range(10) if c not in own]
        SL = [80, 84, 88, 92, 96, 100, 76, 68]
        def rdA(j):
            lg.issue(('A', j), f"ds_read_b128 v[{SL[j]}:{SL[j]+3}], v5 offset:{oth[j]*1024}")
        def sm(t, c, a):
            kind, r = wv(t, c)
            k(f"{SMF} v[{VACC+4*t}:{VACC+4*t+3}], v[{a}:{a+3}], {kind}[{r}:{r+7}], v4")
        for t in range(3): sm(t, own[0], 68)
        k("s_waitcnt lgkmcnt(0)")
        k("s_barrier")
        for j in range(8): rdA(j)
        for t in (2, 0, 1): sm(t, own[1], 72)
        for j in range(8):
            lg.wait(('A', j)); sm(2, oth[j], SL[j])
        E = [None] * 5
        E += [f"v_mov_b32 v{72+r}, v{VACC+8+r}" for r in range(4)] + [None]
        E += [f"v_permlane32_swap_b32 v{VACC+8+r}, v{72+r}" for r in range(4)]
        E += [f"v_add_f32 v{VACC+8+r}, v{VACC+8+r}, v{72+r}" for r in range(4)]
        E += [f"v_cvt_pk_bf16_f32 v72, v{VACC+8}, v{VACC+9}", f"v_cvt_pk_bf16_f32 v73, v{VACC+10}, v{VACC+11}"]
        E += [('x', f"ds_write_b64 v9, v[72:73] offset:512")]
        def extra(n):
            for _ in range(n):
                if E:
                    t_ = E.pop(0)
                    if isinstance(t_, tuple): lg.issue(*t_)
                    elif t_: k(t_)
        for j in range(8):
            sm(0, oth[j], SL[j]); extra(2)
            sm(1, oth[j], SL[j]); extra(2)
        extra(100)
        stamp(k, 2)
        for r in range(4): k(f"v_permlane32_swap_b32 v{VACC+r}, v{VACC+4+r}")
        for r in range(4): k(f"v_add_f32 v{VACC+r}, v{VACC+r}, v{VACC+4+r}")
        k(f"v_cvt_pk_bf16_f32 v{VA}, v{VACC}, v{VACC+1}")
        k(f"v_cvt_pk_bf16_f32 v{VA+1}, v{VACC+2}, v{VACC+3}")
        lg.issue('x', f"ds_write_b64 v10, v[{VA}:{VA+1}]")
        lg.all()
        k("s_barrier")
        for c in range(3):
            lg.issue(('V', c), f"ds_read_b64_tr_b16 v[{VA+4*c}:{VA+4*c+1}], v11 offset:{c*1024}")
            lg.issue(('V', c), f"ds_read_b64_tr_b16 v[{VA+4*c+2}:{VA+4*c+3}], v11 offset:{c*1024+128}")
        def rdWo(t, c, slot):
            b = STG + 8 * slot; o = ((t - 7) * 3 + c) * 2048
            lg.issue(('W', t, c), f"ds_read_b128 v[{b}:{b+3}], v6 offset:{o}")
            lg.issue(('W', t, c), f"ds_read_b128 v[{b+4}:{b+7}], v6 offset:{o+1024}")
        for c in range(3): rdWo(7, c, c)
        stamp(k, 3)
        acc = lambda t: MA + 4 * t
        def mm(t, c, B):
            k(f"{SMF} v[{acc(t)}:{acc(t)+3}], v[{VA+4*c}:{VA+4*c+3}], {B}, v4")
        def B_reg(t, c):
            kind, r = wo(t, c); return f"{kind}[{r}:{r+7}]"
        OUT = 56
        def epi(T, o):
            L = []
            t0, t1, t2, t3 = T
            for (x, y) in ((t0, t2), (t1, t3)):
                for r in range(4): L.append(f"v_permlane32_swap_b32 v{acc(x)+r}, v{acc(y)+r}")
                for r in range(4): L.append(f"v_add_f32 v{acc(x)+r}, v{acc(x)+r}, v{acc(y)+r}")
            L.append(f"v_cvt_pk_bf16_f32 v{o}, v{acc(t0)}, v{acc(t0)+1}")
            L.append(f"v_cvt_pk_bf16_f32 v{o+1}, v{acc(t0)+2}, v{acc(t0)+3}")
            L.append(f"v_cvt_pk_bf16_f32 v{o+2}, v{acc(t1)}, v{acc(t1)+1}")
            L.append(f"v_cvt_pk_bf16_f32 v{o+3}, v{acc(t1)+2}, v{acc(t1)+3}")
            L.append(None)
            L.append(f"v_permlane16_swap_b32 v{o}, v{o+2}")
            L.append(f"v_permlane16_swap_b32 v{o+1}, v{o+3}")
            for r in range(4): L.append(f"v_min_u32 v{o+r}, -2, v{o+r}")
            return L
        for c in range(3):
            lg.wait(('V', c))
            for t in range(4): mm(t, c, B_reg(t, c))
        E += [None, None] + epi([0, 1, 2, 3], OUT) + [f"buffer_store_dwordx4 v[{OUT}:{OUT+3}], v14, s[8:11], s43 offen sc1"]
        for c in range(3):
            for t in (4, 5, 6): mm(t, c, B_reg(t, c)); extra(2)
            lg.wait(('W', 7, c))
            mm(7, c, f"v[{STG+8*c}:{STG+8*c+7}]"); extra(2)
            rdWo(8, c, c)
        extra(100)
        k("s_add_u32 s49, s43, 32768")
        E += [None] + epi([4, 5, 6, 7], OUT + 4) + [f"buffer_store_dwordx4 v[{OUT+4}:{OUT+7}], v14, s[8:11], s49 offen sc1"]
        for c in range(3):
            lg.wait(('W', 8, c))
            mm(8, c, f"v[{STG+8*c}:{STG+8*c+7}]"); extra(CFG['v_x8'])
            rdWo(9, c, c)
        extra(CFG['v_x9'])
        for c in range(3):
            lg.wait(('W', 9, c))
            mm(9, c, f"v[{STG+8*c}:{STG+8*c+7}]"); extra(3)
        extra(100)
        o = OUT + 8
        for r in range(4): k(f"v_permlane32_swap_b32 v{acc(8)+r}, v{acc(9)+r}")
        for r in range(4): k(f"v_add_f32 v{acc(8)+r}, v{acc(8)+r}, v{acc(9)+r}")
        k(f"v_cvt_pk_bf16_f32 v{o}, v{acc(8)}, v{acc(8)+1}")
        k(f"v_cvt_pk_bf16_f32 v{o+1}, v{acc(8)+2}, v{acc(8)+3}")
        k(f"v_mov_b32 v{o+2}, v{o}")
        k(f"v_mov_b32 v{o+3}, v{o+1}")
        k(f"v_permlane16_swap_b32 v{o}, v{o+2}")
        k(f"v_permlane16_swap_b32 v{o+1}, v{o+3}")
        for r in range(4): k(f"v_min_u32 v{o+r}, -2, v{o+r}")
        k(f"buffer_store_dwordx4 v[{o}:{o+3}], v15, s[8:11], s43 offen sc1")
        stamp(k, 4)
        stamp_out(k, 6, 46)
        k("s_add_u32 s40, s40, 1")
        for sreg in ('s43', 's47', 's45'): k(f"s_add_u32 {sreg}, {sreg}, {SYNC_STEP}")
        k("s_cmp_lt_u32 s40, 64")
        k(f"s_cbranch_scc1 {k.ref('v_step' + sf)}")
        if w < 3: k(f"s_branch {k.ref('v_end')}")
    for w in range(4): loop(w)
    k.lab('v_end')
    event(k, 3, 64)
    next_layer(k, 'v_layer')

def role_R(k):
    BX, BN, PX, PM, VM, A1, A2 = 16, 48, 80, 96, 100, 108, 112
    TQ = 204
    k.lab('r_top')
    k("s_barrier")
    lk = k.new('rk')
    k("s_sub_u32 s24, s2, 64")
    k("s_cmp_ge_u32 s24, 24"); k(f"s_cbranch_scc1 {k.ref(lk)}")
    k("s_and_b32 s44, s24, 7"); k("s_lshr_b32 s45, s24, 3")
    k("s_cmp_eq_u32 s92, 0"); k("s_cselect_b32 s46, 32, 2")
    A.role_K2(k, Hooks())
    event(k, 5, 14)
    k.lab(lk)
    k("s_sub_u32 s44, s2, 64")
    k("v_lshlrev_b32 v5, 4, v1")
    k("s_lshl_b32 s24, s44, 15"); k("s_lshl_b32 s25, s3, 13"); k("s_add_u32 s24, s24, s25")
    k("v_add_u32 v6, s24, v5")
    k("v_add_u32 v7, 4096, v6")
    k("s_lshl_b32 s24, s3, 12")
    k("v_add_u32 v8, s24, v5")
    k("s_lshl_b32 s24, s3, 10"); k("s_add_u32 s24, s24, 16384")
    k("v_add_u32 v9, s24, v5")
    k("s_lshl_b32 s24, s44, 13"); k("s_lshl_b32 s25, s3, 11"); k("s_add_u32 s24, s24, s25")
    k("v_add_u32 v10, s24, v5")
    k(f"v_and_b32 v{TQ}, 7, v2"); k(f"v_mul_u32_u24 v11, 80, v{TQ}")
    k("v_lshl_add_u32 v11, v3, 4, v11")
    k("s_mul_i32 s24, s3, 640")
    k("v_add_u32 v11, s24, v11")
    k(f"v_add_u32 v{TQ}, 8192, v5")
    k("v_cmp_gt_u32 vcc, 8, v2")
    k(f"v_cndmask_b32 v11, v{TQ}, v11, vcc")
    k(f"v_and_b32 v{TQ}, 7, v2"); k(f"v_mul_u32_u24 v12, 80, v{TQ}")
    k(f"v_lshrrev_b32 v{TQ}, 3, v2"); k(f"v_lshl_add_u32 v12, v{TQ}, 5, v12")
    k("v_lshlrev_b32 v13, 4, v2")
    k("s_lshl_b32 s24, s44, 8")
    k("v_add_u32 v13, s24, v13")
    k(f"v_mov_b32 v{TQ}, {OOB}")
    k(f"v_cmp_gt_u32 vcc, 1, v3")
    k(f"v_cndmask_b32 v13, v{TQ}, v13, vcc")
    k("v_cmp_le_u32 s[50:51], 8, v2")
    k("s_and_b32 s25, s44, 15"); k("s_lshr_b32 s25, s25, 2")
    k("s_sub_u32 s26, s44, 32"); k("s_lshr_b32 s26, s26, 1")
    k("s_cmp_ge_u32 s44, 32"); k("s_cselect_b32 s25, s26, s25")
    ahint_addr(k, 120, TQ, 's25', RH_M, False)
    aprobe_addr(k, 125, 's44', RH_P)
    k("v_mov_b32 v122, 12288")
    k("v_mov_b32 v123, 0")
    k("s_barrier")
    k("ds_write_b32 v122, v123")
    k("v_mov_b32 v123, 1")
    k("s_waitcnt lgkmcnt(0)")
    k("s_barrier")
    layer_bases(k)
    k("s_mov_b32 s40, 0")
    k(f"s_mov_b32 s41, {WS_VOX}")
    k(f"s_add_u32 s45, s93, {O_HS}")
    k(f"s_add_u32 s46, s93, {O_HR}")
    k(f"s_add_u32 s43, s93, {O_PB}")
    k(f"s_add_u32 s42, s93, {O_VOM}")
    k(f"s_add_u32 s47, s93, {O_MB}")
    if CFG['rv_off']:
        k("s_cmp_eq_u32 s92, 1"); k(f"s_cselect_b32 s24, {OOB}, 0"); k("v_or_b32 v6, s24, v6"); k("v_or_b32 v7, s24, v7")
    def vox_loads():
        for q in range(4):
            k(f"buffer_load_dwordx4 v[{BN+4*q}:{BN+4*q+3}], v6, s[8:11], s41 offen offset:{q*1024} sc1")
        for q in range(4):
            k(f"buffer_load_dwordx4 v[{BN+16+4*q}:{BN+16+4*q+3}], v7, s[8:11], s41 offen offset:{q*1024} sc1")
        k(f"s_add_u32 s41, s41, {VOX_SEG}")
    k("v_and_b32 v252, 7, v1")
    k("v_lshlrev_b32 v252, 7, v252")
    k(f"s_lshl_b32 s24, s3, 10"); k(f"s_add_u32 s24, s24, {3*4096}"); k("s_add_u32 s24, s24, s94")
    k("v_add_u32 v252, s24, v252")
    k("s_mov_b32 s62, -1"); k("s_mov_b32 s63, 1")
    ensure(k, 'r_en0', 8, 252, 253)
    vox_loads()
    event(k, 2, 204)
    k.lab('r_step')
    k("s_waitcnt vmcnt(0)")
    for r in range(32): k(f"v_mov_b32 v{BX+r}, v{BN+r}")
    stamp(k, 0)
    loads_ = [f"buffer_load_dwordx4 v[{PX+4*q}:{PX+4*q+3}], v8, s[8:11], s43 offen offset:{q*1024} sc1" for q in range(4)]
    loads_ += [f"buffer_load_dwordx4 v[{PM}:{PM+3}], v9, s[8:11], s43 offen sc1"]
    loads_ += [f"buffer_load_dwordx4 v[{VM+4*q}:{VM+4*q+3}], v10, s[8:11], s42 offen offset:{q*1024} sc1" for q in range(2)]
    ensure_clear(k, 'r_ec', 253, 's40')
    aprobe(k, 'r_pr', 125, 's45', CFG['tgt_p'], [116, 117, 118, 119], CFG['pd_p'], CFG['pdep'], CFG['dly_p'])
    stamp(k, 4)
    loads_ = loads_[5:] + loads_[:5]
    for l in loads_: k(l)
    if CFG['hr_pos'] == 0:
        k("s_mov_b64 exec, 1")
        k("ds_add_rtn_u32 v124, v122, v123")
        k("s_mov_b64 exec, -1")
        if CFG['dly_hr']: k(f"s_sleep {CFG['dly_hr']}")
        k("s_waitcnt lgkmcnt(0)")
        k("v_readfirstlane_b32 s24, v124")
        k("s_and_b32 s24, s24, 3")
        k("s_cmp_eq_u32 s24, 3"); k(f"s_cselect_b32 s24, 0, {OOB}")
        k("v_or_b32 v126, s24, v120")
        ahint(k, 126, 123, 's46')
    shot_check(k, 'r_p', loads_, range(PX, VM + 8), TQ, 1 if CFG['hr_pos'] == 0 else 0, CFG['sl_p'])
    if CFG['hr_pos'] == 1:
        k("s_mov_b64 exec, 1")
        k("ds_add_rtn_u32 v124, v122, v123")
        k("s_mov_b64 exec, -1")
    stamp(k, 1)
    k(f"v_mfma_f32_16x16x32_bf16 v[{A1}:{A1+3}], v[{VM}:{VM+3}], v[{PM}:{PM+3}], 0")
    k(f"v_mfma_f32_16x16x32_bf16 v[{A2}:{A2+3}], v[{VM+4}:{VM+7}], v[{PM}:{PM+3}], 0")
    for q in range(4):
        k(f"v_mfma_f32_16x16x32_bf16 v[{A1}:{A1+3}], v[{BX+8*q}:{BX+8*q+3}], v[{PX+4*q}:{PX+4*q+3}], v[{A1}:{A1+3}]")
        k(f"v_mfma_f32_16x16x32_bf16 v[{A2}:{A2+3}], v[{BX+8*q+4}:{BX+8*q+7}], v[{PX+4*q}:{PX+4*q+3}], v[{A2}:{A2+3}]")
        if q == 0 and CFG['hr_pos'] == 1:
            lh = k.new('nh')
            k("s_waitcnt lgkmcnt(0)")
            k("v_readfirstlane_b32 s24, v124")
            k("s_and_b32 s24, s24, 3")
            k(f"s_cmp_eq_u32 s24, {CFG['hr_wave']}")
            k(f"s_cbranch_scc0 {k.ref(lh)}")
            ahint(k, 120, 123, 's46')
            k.lab(lh)
    k("s_and_b32 s24, s40, 1"); k("s_mul_i32 s24, s24, 2560")
    k("v_add_u32 v14, s24, v11")
    k("v_add_u32 v15, s24, v12")
    for r in range(4): k(f"v_cndmask_b32 v{A1+r}, v{A1+r}, v{A2+r}, s[50:51]")
    for r in range(4): k(f"v_add_f32 v{A1+r}, v{A1+r}, v{A1+r} row_ror:8 row_mask:0xf bank_mask:0xf")
    k(f"ds_write_b128 v14, v[{A1}:{A1+3}]")
    k("s_waitcnt lgkmcnt(0)")
    k("s_barrier")
    stamp(k, 2)
    l = k.new('np')
    k("s_cmp_eq_u32 s3, 0")
    k(f"s_cbranch_scc0 {k.ref(l)}")
    Q0 = 220
    sum4x8(k, Q0, 15, 640)
    for q in range(4): k(f"v_cvt_pk_bf16_f32 v{Q0+8+q}, v{Q0+2*q}, v{Q0+2*q+1}")
    for q in range(4): k(f"v_min_u32 v{Q0+8+q}, -2, v{Q0+8+q}")
    k(f"buffer_store_dwordx4 v[{Q0+8}:{Q0+11}], v13, s[8:11], s47 offen sc1")
    k.lab(l)
    if CFG['xflag']:
        l = k.new('xf')
        k("s_cmp_eq_u32 s3, 1"); k(f"s_cbranch_scc0 {k.ref(l)}")
        k("s_cmp_eq_u32 s44, 39"); k(f"s_cbranch_scc0 {k.ref(l)}")
        k("s_lshl_b32 s24, s92, 6"); k("s_add_u32 s24, s24, s40"); k("s_add_u32 s24, s24, 1")
        k(f"v_lshlrev_b32 v{TQ}, 7, v1"); k(f"v_add_u32 v{TQ}, {WS_FLG + F_S}, v{TQ}")
        k(f"v_mov_b32 v{TQ+1}, {OOB}"); k("v_cmp_le_u32 vcc, 8, v1"); k(f"v_cndmask_b32 v{TQ}, v{TQ}, v{TQ+1}, vcc")
        k(f"v_mov_b32 v{TQ+1}, s24")
        k(f"buffer_store_dword v{TQ+1}, v{TQ}, s[8:11], 0 offen sc1")
        k.lab(l)
    stamp(k, 3)
    k("s_add_u32 s63, s40, 2"); k("s_min_u32 s63, s63, 64")
    if CFG['dly_vox']: k(f"s_sleep {CFG['dly_vox']}")
    ensure(k, 'r_en', 8, 252, 253)
    vox_loads()
    stamp(k, 5)
    stamp_out(k, 6, TQ)
    k("s_add_u32 s40, s40, 1")
    for sreg in ('s42', 's43', 's47', 's45', 's46'): k(f"s_add_u32 {sreg}, {sreg}, {SYNC_STEP}")
    k("s_cmp_lt_u32 s40, 64")
    k(f"s_cbranch_scc1 {k.ref('r_step')}")
    k("s_waitcnt vmcnt(0)")
    event(k, 3, 204)
    next_layer(k, 'r_top')
def flag_pub(k, val):
    l = k.new('fp')
    k("s_cmp_eq_u32 s3, 0")
    k(f"s_cbranch_scc0 {k.ref(l)}")
    k(f"v_mov_b32 v15, {val}")
    k("buffer_store_dword v15, v14, s[8:11], 0 offen sc1")
    k.lab(l)

def flag_addr(k, role_sreg_or_const):
    if isinstance(role_sreg_or_const, int): k(f"s_mov_b32 s24, {role_sreg_or_const * 4096}")
    else: k(f"s_lshl_b32 s24, {role_sreg_or_const}, 12")
    k("s_lshl_b32 s25, s44, 7"); k("s_add_u32 s24, s24, s25"); k(f"s_add_u32 s24, s24, s94")
    k("v_mov_b32 v14, s24")
    k(f"v_mov_b32 v15, {OOB}")
    k("v_cmp_eq_u32 vcc, 0, v1")
    k("v_cndmask_b32 v14, v15, v14, vcc")

X_L_O = 83968
def x_init(k):
    TQ = 192
    k("s_sub_u32 s70, s2, 104")
    k("s_mul_i32 s71, s70, 205"); k("s_lshr_b32 s71, s71, 12")
    k("s_mul_i32 s24, s71, 20"); k("s_sub_u32 s70, s70, s24")
    k("s_cmp_lt_u32 s71, 4"); k("s_cselect_b32 s64, s71, 64")
    if CFG['x_off']: k("s_cmp_eq_u32 s92, 1"); k("s_cselect_b32 s64, 64, s64")
    k("s_lshl_b32 s24, s70, 16"); k("s_lshl_b32 s25, s3, 13"); k("s_add_u32 s24, s24, s25")
    k("v_add_u32 v240, s24, v5")
    k("v_add_u32 v241, 4096, v240")
    k("s_lshl_b32 s24, s70, 14"); k("s_lshl_b32 s25, s3, 11"); k("s_add_u32 s24, s24, s25")
    k("v_add_u32 v242, s24, v5")
    k("s_lshl_b32 s24, s3, 14")
    k(f"v_add_u32 v{TQ+1}, s24, v5")
    for jj in range(4): k(f"v_add_u32 v{212+jj}, {jj*4096}, v{TQ+1}")
    k("s_lshl_b32 s24, s3, 12"); k("s_add_u32 s24, s24, 65536")
    k("v_add_u32 v216, s24, v5")
    k(f"s_lshl_b32 s24, s3, 12"); k(f"s_add_u32 s24, s24, {X_L_O}")
    k("v_add_u32 v217, s24, v5")
    k(f"s_and_b32 s24, s3, 1"); k("s_lshl_b32 s24, s24, 10"); k(f"s_add_u32 s24, s24, {X_L_O}")
    k("v_add_u32 v218, s24, v5")
    k("s_and_b32 s24, s3, 1"); k("s_mul_i32 s24, s24, 20480"); k("s_lshl_b32 s25, s70, 10"); k("s_add_u32 s24, s24, s25")
    k("v_add_u32 v219, s24, v5")
    k("s_and_b32 s24, s3, 1"); k("s_lshl_b32 s24, s24, 4")
    k("v_add_u32 v243, s24, v2")
    k("v_mul_u32_u24 v243, 1280, v243")
    k("v_lshl_add_u32 v243, v3, 3, v243")
    k("s_lshl_b32 s24, s70, 6")
    k("v_add_u32 v243, s24, v243")
    k.ptr(KA_OUT, 26); k("s_waitcnt lgkmcnt(0)"); k.srd(12, 26, S * D * 2)
    k(f"s_mul_i32 s65, s71, {VOX_SEG}"); k(f"s_add_u32 s65, s65, {WS_VOX}")
    k(f"s_mul_i32 s24, s71, {SYNC_STEP}"); k("s_add_u32 s24, s24, s93")
    k(f"s_add_u32 s66, s24, {O_VOM}"); k(f"s_add_u32 s67, s24, {O_PX}")
    k(f"s_mul_i32 s68, s71, 40960")
    k("v_and_b32 v252, 7, v1")
    k("v_lshlrev_b32 v252, 7, v252")
    k(f"s_lshl_b32 s24, s3, 10"); k(f"s_add_u32 s24, s24, {3*4096}"); k("s_add_u32 s24, s24, s94")
    k("v_add_u32 v252, s24, v252")
    k("s_mov_b32 s69, -1")
    k("s_lshl_b32 s24, s71, 7"); k("s_lshl_b32 s25, s70, 2"); k("s_add_u32 s24, s24, s25"); k(f"s_add_u32 s24, s24, {WS_FLG + F_X}")
    k("s_cmp_eq_u32 s3, 0"); k(f"s_cselect_b32 s24, s24, {OOB}")
    k("v_mov_b32 v245, s24"); k(f"v_mov_b32 v246, {OOB}"); k("v_cmp_eq_u32 vcc, 0, v1"); k("v_cndmask_b32 v245, v246, v245, vcc")
    k("s_mov_b32 s79, -1")
    k("s_mov_b32 s76, -1")

def x_pending(k):
    k("s_cmp_ge_i32 s79, 0"); k(f"s_cselect_b32 s24, 0, {OOB}")
    k("v_or_b32 v246, s24, v245"); k("v_mov_b32 v247, s79")
    k("buffer_store_dword v247, v246, s[8:11], 0 offen sc1")
    k("s_mov_b32 s79, -1")

def x_iter(k):
    BX, XP, XM, VM, OA, TQ, RES, Q0 = 16, 80, 144, 160, 176, 192, 196, 16
    k("s_add_u32 s63, s64, 1")
    ensure(k, 'x_en', 8, 252, 253, known='s69')
    ensure_clear(k, 'x_ec', 253, 's64')
    def xs_addr(k, dst):
        k("s_and_b32 s24, s2, 7"); k("s_lshl_b32 s24, s24, 7"); k(f"s_add_u32 s24, s24, {WS_FLG + F_S}"); k(f"v_mov_b32 v{dst}, s24")
    k("s_add_u32 s52, s65, 32768")
    for rr in range(2):
        so = 's65' if rr == 0 else 's52'
        for q in range(8):
            r = BX + rr * 32 + 4 * q
            k(f"buffer_load_dwordx4 v[{r}:{r+3}], v{240 + q//4}, s[8:11], {so} offen offset:{(q%4)*1024} sc1")
    k("s_add_u32 s24, s68, s73")
    k(f"buffer_load_dwordx4 v[{RES}:{RES+3}], v219, s[8:11], s24 offen sc1")
    loads_ = []
    for j in range(8):
        for tt in range(2):
            r = XP + (j * 2 + tt) * 4
            loads_.append(f"buffer_load_dwordx4 v[{r}:{r+3}], v{212 + j//2}, s[8:11], s67 offen offset:{(j%2)*2048 + tt*1024} sc1")
    for q in range(2):
        for tt in range(2):
            r = XM + (q * 2 + tt) * 4
            loads_.append(f"buffer_load_dwordx4 v[{r}:{r+3}], v216, s[8:11], s67 offen offset:{q*2048 + tt*1024} sc1")
    if CFG['xflag']:
        k("s_lshl_b32 s77, s92, 6"); k("s_add_u32 s77, s77, s64"); k("s_add_u32 s77, s77, 1")
        ensure(k, 'x_cs', 1, xs_addr, 253, need='s77', known='s76', sleep=CFG['sl_xc'])
    else:
        poll(k, 'x_p0', loads_[15:16], range(XP + 60, XP + 64), TQ, CFG['sl_x0'], 0)
    k("s_add_u32 s53, s66, 8192")
    for rr in range(2):
        so = 's66' if rr == 0 else 's53'
        for q in range(2):
            r = VM + rr * 8 + 4 * q
            loads_.append(f"buffer_load_dwordx4 v[{r}:{r+3}], v242, s[8:11], {so} offen offset:{q*1024} sc1")
    poll(k, 'x_p1', loads_, range(XP, VM + 16), TQ, CFG['sl_x'], 0)
    oa = lambda rr, tt: OA + (rr * 2 + tt) * 4
    for j in range(8):
        for rr in range(2):
            for tt in range(2):
                a = oa(rr, tt); r = XP + (j * 2 + tt) * 4; b = BX + rr * 32 + 4 * j
                c = f"v[{a}:{a+3}]" if j else "0"
                k(f"v_mfma_f32_16x16x32_bf16 v[{a}:{a+3}], v[{b}:{b+3}], v[{r}:{r+3}], {c}")
    for q in range(2):
        for rr in range(2):
            for tt in range(2):
                a = oa(rr, tt); b = VM + rr * 8 + 4 * q; r = XM + (q * 2 + tt) * 4
                k(f"v_mfma_f32_16x16x32_bf16 v[{a}:{a+3}], v[{b}:{b+3}], v[{r}:{r+3}], v[{a}:{a+3}]")
    for t in range(4): k(f"ds_write_b128 v217, v[{OA+4*t}:{OA+4*t+3}] offset:{t*1024}")
    k("s_waitcnt lgkmcnt(0)")
    k("s_barrier")
    lskip = k.new('xs')
    k("s_cmp_ge_u32 s3, 2"); k(f"s_cbranch_scc1 {k.ref(lskip)}")
    for rr in range(2):
        for w in range(4): k(f"ds_read_b128 v[{Q0+16*rr+4*w}:{Q0+16*rr+4*w+3}], v218 offset:{w*4096 + rr*2048}")
    O = 48
    for rr in range(2):
        q = Q0 + 16 * rr
        k(f"s_waitcnt lgkmcnt({4 if rr == 0 else 0})")
        for r in range(0, 4, 2):
            k(f"v_pk_add_f32 v[{q+r}:{q+r+1}], v[{q+r}:{q+r+1}], v[{q+4+r}:{q+4+r+1}]")
            k(f"v_pk_add_f32 v[{q+8+r}:{q+8+r+1}], v[{q+8+r}:{q+8+r+1}], v[{q+12+r}:{q+12+r+1}]")
        for r in range(0, 4, 2):
            k(f"v_pk_add_f32 v[{q+r}:{q+r+1}], v[{q+r}:{q+r+1}], v[{q+8+r}:{q+8+r+1}]")
        k(f"v_cvt_pk_bf16_f32 v{q+4}, v{q}, v{q+1}")
        k(f"v_cvt_pk_bf16_f32 v{q+5}, v{q+2}, v{q+3}")
        for h in range(2):
            k(f"v_lshlrev_b32 v{q}, 16, v{q+4+h}")
            k(f"v_and_b32 v{q+1}, 0xffff0000, v{q+4+h}")
            k(f"v_lshlrev_b32 v{q+6}, 16, v{RES+2*rr+h}")
            k(f"v_and_b32 v{q+7}, 0xffff0000, v{RES+2*rr+h}")
            k(f"v_pk_add_f32 v[{q}:{q+1}], v[{q}:{q+1}], v[{q+6}:{q+7}]")
            k(f"v_cvt_pk_bf16_f32 v{O+2*rr+h}, v{q}, v{q+1}")
    l1 = k.new('xo')
    k("s_cmp_eq_u32 s92, 0"); k(f"s_cbranch_scc0 {k.ref(l1)}")
    k(f"s_add_u32 s24, s68, {A.WS_XF2}")
    k(f"buffer_store_dwordx4 v[{O}:{O+3}], v219, s[8:11], s24 offen sc1")
    k(f"s_branch {k.ref(lskip)}")
    k.lab(l1)
    k(f"buffer_store_dwordx2 v[{O}:{O+1}], v243, s[12:15], s68 offen")
    k(f"buffer_store_dwordx2 v[{O+2}:{O+3}], v243, s[12:15], s68 offen offset:32")
    k.lab(lskip)
    l2 = k.new('xp')
    k("s_lshr_b32 s25, s64, 2"); k("s_add_u32 s25, s25, 1")
    k("s_cmp_eq_u32 s92, 0"); k("s_cselect_b32 s79, s25, -1")
    k("s_cmp_lt_u32 s40, 64"); k(f"s_cbranch_scc1 {k.ref(l2)}")
    k("s_waitcnt vmcnt(0)")
    k("s_barrier")
    x_pending(k)
    k.lab(l2)
    k("s_add_u32 s64, s64, 4")
    k(f"s_add_u32 s65, s65, {4*VOX_SEG}")
    k(f"s_add_u32 s66, s66, {4*SYNC_STEP}")
    k(f"s_add_u32 s67, s67, {4*SYNC_STEP}")
    k(f"s_add_u32 s68, s68, {4*40960}")

def role_P(k):
    RS, L_ST, L_PS = 400, 81920, 81920
    XPRE, BF, ACC, OUT, TMP, ST, CS, ONE = 16, 56, 88, 112, 124, 132, 224, 236
    k("s_sub_u32 s44, s2, 104")
    k("s_lshr_b32 s46, s44, 5")
    k("s_and_b32 s44, s44, 31")
    k.ptr(KA_WQ, 6); k.ptr(KA_WK, 24); k.ptr(KA_WV, 26)
    k("s_waitcnt lgkmcnt(0)")
    k("s_cmp_eq_u32 s46, 1"); k("s_cselect_b32 s6, s24, s6"); k("s_cselect_b32 s7, s25, s7")
    k("s_cmp_eq_u32 s46, 2"); k("s_cselect_b32 s6, s26, s6"); k("s_cselect_b32 s7, s27, s7")
    k.srd(12, 6, D * HD * 2)
    GO, LO, DAT = 4, 10, 56
    stage_offsets(k, 6, 24, HD * 2, RS, L_ST, GO, LO, 16)
    k("v_lshrrev_b32 v16, 2, v2")
    k("v_lshl_add_u32 v16, v3, 2, v16")
    k(f"v_mul_u32_u24 v32, {RS}, v16")
    k("v_and_b32 v16, 3, v2")
    k("v_lshl_add_u32 v32, v16, 3, v32")
    k(f"s_mul_i32 s24, s3, 96"); k(f"s_add_u32 s24, s24, {L_ST}")
    k("v_add_u32 v32, s24, v32")
    k("s_mul_i32 s45, s44, 384")
    def loads(c):
        d = DAT + 24 * (c % 8)
        k(f"s_add_u32 s47, s45, {c * 64 * HD * 2}")
        for i in range(6):
            k(f"buffer_load_dwordx4 v[{d+4*i}:{d+4*i+3}], v{GO+i}, s[12:15], s47 offen")
    for c in range(8): loads(c)
    C0, O0 = 16, 28
    for r in range(4): k(f"v_mov_b32 v{O0+r}, 0x3f803f80")
    def cs_mfma(c):
        for jj in range(2):
            j = 2 * c + jj
            for t in range(3):
                w = (t * 20 + j) * 4; cc = f"v[{C0+4*t}:{C0+4*t+3}]"
                k(f"v_mfma_f32_16x16x32_bf16 {cc}, a[{w}:{w+3}], v[{O0}:{O0+3}], {cc if j else 0}")
    waits = [42, 42, 42, 36, 30, 24, 18, 12, 6, 0]
    for c in range(10):
        d = DAT + 24 * (c % 8)
        k(f"s_waitcnt vmcnt({waits[c]})")
        for i in range(6): k(f"ds_write_b128 v{LO+i}, v[{d+4*i}:{d+4*i+3}] offset:{(c%2)*25600}")
        k("s_waitcnt lgkmcnt(0)")
        if c < 2: loads(c + 8)
        if c > 0: cs_mfma(c - 1)
        k("s_barrier")
        for t in range(3):
            for jj in range(2):
                r = (t * 20 + 2 * c + jj) * 4
                for hf in range(2):
                    k(f"ds_read_b64_tr_b16 a[{r+2*hf}:{r+2*hf+1}], v32 offset:{(c%2)*25600 + (32*jj + 16*hf)*RS + 32*t}")
    k("s_waitcnt lgkmcnt(0)")
    cs_mfma(9)
    for r in range(12): k(f"v_mov_b32 v{CS+r}, v{C0+r}")
    for r in range(4): k(f"v_mov_b32 v{ONE+r}, v{O0+r}")
    k("s_barrier")
    event(k, 1, 16)
    k.lab('p_layer')
    layer_bases(k)
    k("s_sub_u32 s44, s2, 104")
    k("s_lshr_b32 s46, s44, 5")
    k("s_and_b32 s44, s44, 31")
    k(f"s_mov_b32 s43, {WS_QF}")
    k("s_cmp_eq_u32 s46, 1"); k(f"s_cselect_b32 s43, {WS_KF}, s43")
    k("s_cmp_eq_u32 s46, 2"); k(f"s_cselect_b32 s43, {WS_VF}, s43")
    k("s_cmp_eq_u32 s92, 0"); k(f"s_cselect_b32 s73, {A.WS_XF1}, {A.WS_XF3}")
    k("v_lshlrev_b32 v5, 4, v1")
    k("s_mul_i32 s24, s3, 10240")
    k("v_add_u32 v6, s24, v5")
    k("v_add_u32 v7, 4096, v6"); k("v_add_u32 v8, 8192, v6")
    k("s_mul_i32 s24, s44, 12288"); k("s_mul_i32 s25, s3, 3072"); k("s_add_u32 s24, s24, s25")
    k("v_add_u32 v11, s24, v5")
    if CFG['p_off']:
        k("s_cmp_eq_u32 s92, 1"); k(f"s_cselect_b32 s24, {OOB}, 0"); k("v_or_b32 v11, s24, v11")
    k("s_lshr_b32 s24, s3, 1"); k("s_lshl_b32 s24, s24, 8"); k("s_and_b32 s25, s3, 1"); k("s_lshl_b32 s25, s25, 3")
    k("s_add_u32 s24, s24, s25"); k(f"s_add_u32 s24, s24, {L_PS}")
    k("v_lshlrev_b32 v13, 4, v2")
    k("v_add_u32 v12, s24, v13")
    k(f"v_add_u32 v13, {L_PS}, v13")
    if CFG['pstat'] == 1:
        k("v_lshrrev_b32 v15, 2, v2"); k("v_cmp_eq_u32 vcc, v15, v3")
        k(f"v_lshlrev_b32 v15, 3, v1"); k(f"v_add_u32 v15, {L_PS + 1024}, v15")
        k("v_cndmask_b32 v12, v15, v12, vcc")
        k("v_and_b32 v15, 3, v2")
        for i_, sp in ((1, 48), (2, 50), (3, 54)): k(f"v_cmp_eq_u32 s[{sp}:{sp+1}], {i_}, v15")
    k("s_and_b32 s24, s2, 7"); k("s_lshl_b32 s24, s24, 7"); k("s_lshl_b32 s25, s92, 10"); k("s_add_u32 s24, s24, s25")
    k(f"s_add_u32 s24, s24, {WS_FLG + F_K3}")
    k("s_cmp_eq_u32 s92, 0"); k("s_cselect_b32 s25, 20, 5"); k("s_cselect_b32 s75, 2, 0"); k("s_cselect_b32 s74, 16, 64")
    k("v_cmp_gt_u32 vcc, s25, v1"); k("v_cndmask_b32 v4, 0, v1, vcc")
    k("v_lshlrev_b32 v4, 2, v4"); k("v_add_u32 v4, s24, v4")
    flag_addr(k, 's46')
    k("s_cmp_eq_u32 s3, 0"); k(f"s_cselect_b32 s24, 0, {OOB}"); k("v_or_b32 v14, s24, v14")
    x_init(k)
    def xloads():
        for i in range(10):
            k(f"buffer_load_dwordx4 v[{XPRE+4*i}:{XPRE+4*i+3}], v{6 + i//4}, s[8:11], s41 offen offset:{(i%4)*1024} {CFG['px_mod']}")
    SA = 136
    FL = 152
    def stats_list():
        class L(list):
            def __call__(self, t): self.append(t)
        l = L(); row_stats_partial(l, XPRE, 40, SA, SA + 1, ONE, SA + 2); return l
    SM, SQ = 144, 148
    def stats_mfma():
        l = []
        for i in range(10):
            x = f"v[{XPRE+4*i}:{XPRE+4*i+3}]"
            l.append(f"v_mfma_f32_16x16x32_bf16 v[{SQ}:{SQ+3}], {x}, {x}, " + (f"v[{SQ}:{SQ+3}]" if i else "0"))
            l.append(f"v_mfma_f32_16x16x32_bf16 v[{SM}:{SM+3}], v[{ONE}:{ONE+3}], {x}, " + (f"v[{SM}:{SM+3}]" if i else "0"))
        return l
    def stats_sel():
        return [f"v_cndmask_b32 v{SM+1}, v{SQ}, v{SQ+1}, s[48:49]", f"v_cndmask_b32 v{SM+1}, v{SM+1}, v{SQ+2}, s[50:51]",
                f"v_cndmask_b32 v{SM+1}, v{SM+1}, v{SQ+3}, s[54:55]"]
    SR = SM if CFG['pstat'] == 1 else SA
    def xstage(wbase, psw):
        if CFG['pstat'] == 1:
            for t in stats_mfma(): k(t)
            for i in range(10): k(f"ds_write_b128 v{wbase}, v[{XPRE+4*i}:{XPRE+4*i+3}] offset:{i*1024}")
            for t in stats_sel(): k(t)
        else:
            for t in stats_list(): k(t)
            for i in range(10): k(f"ds_write_b128 v{wbase}, v[{XPRE+4*i}:{XPRE+4*i+3}] offset:{i*1024}")
        k(f"ds_write_b64 v{psw}, v[{SR}:{SR+1}]")
    k("s_mov_b32 s62, -1"); k("s_mov_b32 s63, 1")
    ensure(k, 'p_en0', 20, 4, 16)
    k("s_mov_b32 s41, s73")
    xloads()
    k("s_mov_b32 s40, 0")
    k("s_mov_b32 s42, 0")
    k("s_waitcnt vmcnt(0)")
    xstage(6, 12)
    k("s_waitcnt lgkmcnt(0)")
    k("s_barrier")
    event(k, 2, 16)
    acc = lambda tt, t: ACC + (tt * 3 + t) * 4
    def need_next():
        k("s_add_u32 s63, s40, 1"); k("s_lshr_b32 s63, s63, s75"); k("s_add_u32 s63, s63, 1"); k("s_min_u32 s63, s63, s74")
    def body(steady):
        if steady: stamp(k, 0)
        k("v_add_u32 v9, s42, v5")
        k("s_xor_b32 s42, s42, 40960")
        k("v_add_u32 v10, s42, v6")
        if steady:
            need_next()
            ensure(k, 'p_en', 20, 4, 16)
            k("s_add_u32 s41, s41, 40960")
            xloads()
            stamp(k, 1)
        k("s_and_b32 s24, s40, 1"); k("s_lshl_b32 s24, s24, 9")
        k(f"v_add_u32 v{TMP}, s24, v13")
        k("s_xor_b32 s24, s24, 512")
        k(f"v_add_u32 v{SA+4}, s24, v12")
        lg = LG(k)
        lg.issue('ps', f"ds_read_b128 v[{OUT}:{OUT+3}], v{TMP}")
        lg.issue('ps', f"ds_read_b128 v[{OUT+4}:{OUT+7}], v{TMP} offset:256")
        def rd(j):
            for tt in range(2):
                r = BF + ((j % 4) * 2 + tt) * 4
                lg.issue(j, f"ds_read_b128 v[{r}:{r+3}], v9 offset:{tt*20480 + j*1024}")
        rd(0); rd(1); rd(2)
        class L(list):
            def __call__(self, t): self.append(t)
        extra = L()
        row_stats_final(extra, OUT, ST); row_stats_final(extra, OUT + 4, ST + 2)
        wr = []; sm = []
        for j in range(20):
            if j + 3 < 20: rd(j + 3)
            lg.wait(j)
            if steady and j == 11:
                stamp(k, 4)
                k(f"s_waitcnt vmcnt({3 if CFG['p_adapt'] else 2})")
                stamp(k, 5)
                if CFG['pstat'] == 1: sm = stats_mfma()
                else: extra.extend(stats_list())
                wr = [f"ds_write_b128 v10, v[{XPRE+4*i}:{XPRE+4*i+3}] offset:{i*1024}" for i in range(10)]
            for tt in range(2):
                r = BF + ((j % 4) * 2 + tt) * 4
                for t in range(3):
                    a = acc(tt, t); w = (t * 20 + j) * 4
                    c = f"v[{a}:{a+3}]" if j else "0"
                    k(f"v_mfma_f32_16x16x32_bf16 v[{a}:{a+3}], a[{w}:{w+3}], v[{r}:{r+3}], {c}")
                    for _ in range(CFG['p_nx']):
                        if extra: k(extra.pop(0))
                    if t == 1 and wr and (CFG['p_wr'] == 1 or tt == 0 or True) and (CFG['p_wr'] == 2 or tt == 0): lg.issue('w', wr.pop(0))
            for _ in range(3):
                if sm: k(sm.pop(0))
            if steady and CFG['pstat'] == 1 and j == 19:
                for t_ in stats_sel(): k(t_)
            if steady and j == 9:
                stamp(k, 2)
                k("s_waitcnt vmcnt(10)")
                k("s_barrier")
                stamp(k, 3)
                k("v_mov_b32 v15, s40")
                k("buffer_store_dword v15, v14, s[8:11], 0 offen sc1")
                x_pending(k)
                if CFG['p_adapt']: k(f"buffer_load_dword v{FL}, v4, s[8:11], 0 offen sc1")
        for t_ in wr: lg.issue('w', t_)
        assert not sm
        for t_ in extra: k(t_)
        if steady: lg.issue('w', f"ds_write_b64 v{SA+4}, v[{SR}:{SR+1}]")
        for tt in range(2):
            for t in range(3): ln_fold(k, acc(tt, t), CS + 4 * t, ST + 2 * tt, TMP)
        for o, (tt, t) in enumerate([(0, 0), (0, 1), (1, 0), (1, 1), (0, 2), (1, 2)]):
            a = acc(tt, t)
            k(f"v_cvt_pk_bf16_f32 v{OUT+2*o}, v{a}, v{a+1}")
            k(f"v_cvt_pk_bf16_f32 v{OUT+2*o+1}, v{a+2}, v{a+3}")
        for b in range(3):
            k(f"buffer_store_dwordx4 v[{OUT+4*b}:{OUT+4*b+3}], v11, s[8:11], s43 offen offset:{b*1024} sc1")
        k(f"s_add_u32 s43, s43, {QF_SEG}")
        if steady and CFG['p_adapt']: k("s_waitcnt vmcnt(3)")
        if not steady:
            k("s_waitcnt vmcnt(0)")
            k("s_barrier")
            k("s_add_u32 s24, s40, 1"); k("v_mov_b32 v15, s24")
            k("buffer_store_dword v15, v14, s[8:11], 0 offen sc1")
            need_next()
            ensure(k, 'p_enA', 20, 4, 16)
            k("s_add_u32 s41, s41, 40960")
            xloads()
            if CFG['p_adapt']: k(f"buffer_load_dword v{FL}, v4, s[8:11], 0 offen sc1")
            k("s_waitcnt vmcnt(0)")
            xstage(10, SA + 4)
        if steady and CFG['stamp']:
            k("s_waitcnt lgkmcnt(0)"); k("s_memrealtime s[56:57]"); k("s_waitcnt lgkmcnt(0)"); k("s_mov_b32 s57, s56"); stamp_out(k, 6, 16)
        k("s_add_u32 s40, s40, 1")
        if CFG['p_adapt']:
            need_next()
            k(f"v_cmp_le_i32 vcc, s63, v{FL}")
            k("s_cmp_eq_u64 vcc, -1"); k("s_cselect_b32 s58, 1, 0")
            k("s_cmp_ge_i32 s62, s63"); k("s_cselect_b32 s58, 1, s58")
            k("s_and_b32 s24, s40, 1"); k("s_lshl_b32 s24, s24, 2"); k(f"s_add_u32 s24, s24, {L_PS + 1536}")
            k("s_lshl_b32 s25, s3, 4"); k("s_add_u32 s25, s25, s24")
            k("v_mov_b32 v15, s25"); k(f"v_mov_b32 v{FL}, s58")
            k(f"ds_write_b32 v15, v{FL}")
            k("v_mov_b32 v15, s24")
        k("s_waitcnt lgkmcnt(0)")
        k("s_barrier")
        if CFG['p_adapt']:
            k(f"ds_read_b32 v{FL}, v15")
            k("s_waitcnt lgkmcnt(0)")
            k(f"v_readfirstlane_b32 s58, v{FL}")
            k("s_cmp_eq_u32 s58, 1"); k("s_cselect_b32 s24, s63, s62"); k("s_max_i32 s62, s62, s24")
    k(f"s_branch {k.ref('p_segA')}")
    k.lab('p_pubA')
    k("s_waitcnt vmcnt(0)")
    k("s_barrier")
    flag_pub(k, 's40')
    k.lab('p_segA')
    body(False)
    if not CFG['p_adapt']:
        k(f"s_cmp_lt_u32 s40, {CFG['p_ns']}"); k(f"s_cbranch_scc1 {k.ref('p_segA')}")
    k(f"s_branch {k.ref('p_next')}")
    k.lab('p_seg')
    body(True)
    k.lab('p_next')
    if CFG['stamp']:
        for i_, sv in enumerate((8, 16, 32, 48)):
            l_ = k.new('pe'); k(f"s_cmp_eq_u32 s40, {sv}"); k(f"s_cbranch_scc0 {k.ref(l_)}"); event(k, 8 + i_, 16); k.lab(l_)
    def go_seg():
        if CFG['p_adapt']:
            l_ = k.new('pg')
            k("s_cmp_lt_u32 s40, 64"); k(f"s_cbranch_scc0 {k.ref(l_)}")
            k("s_cmp_eq_u32 s58, 1"); k(f"s_cbranch_scc1 {k.ref('p_seg')}")
            k(f"s_branch {k.ref('p_pubA')}")
            k.lab(l_)
        else:
            k("s_cmp_lt_u32 s40, 64"); k(f"s_cbranch_scc1 {k.ref('p_seg')}")
    k(f"s_add_u32 s24, s64, {CFG['xlag']}"); k("s_cmp_le_u32 s24, s40"); k(f"s_cbranch_scc1 {k.ref('p_pub')}")
    go_seg()
    k.lab('p_pub')
    k("s_waitcnt vmcnt(0)")
    k("s_barrier")
    flag_pub(k, 's40')
    k(f"s_add_u32 s24, s64, {CFG['xlag']}"); k("s_cmp_le_u32 s24, s40"); k(f"s_cbranch_scc1 {k.ref('p_x')}")
    go_seg()
    k("s_cmp_ge_u32 s64, 64"); k(f"s_cbranch_scc1 {k.ref('p_done')}")
    k.lab('p_x')
    x_iter(k)
    k(f"s_branch {k.ref('p_next')}")
    k.lab('p_done')
    event(k, 3, 16)
    next_layer(k, 'p_layer')

def role_O(k):
    RS = 1312
    VFa, VFb, ACC, OUT = 16, 64, 112, 192
    k("s_sub_u32 s44, s2, 200")
    k.ptr(KA_WO, 6)
    k("s_waitcnt lgkmcnt(0)")
    k.srd(12, 6, D * HD * 2)
    LO, D0, D1 = 16, 48, 168
    for i in range(30):
        k(f"v_add_u32 v8, {256*i}, v0")
        divmod_const(k, 9, 10, 8, 80, 256 * 30, 24)
        k(f"v_mul_u32_u24 v{LO+i}, {RS}, v9")
        k(f"v_lshl_add_u32 v{LO+i}, v10, 4, v{LO+i}")
    k("v_lshlrev_b32 v4, 4, v0")
    k(f"s_mul_i32 s45, s44, {192*1280}")
    dat = lambda b, i: (D0 + 4 * i) if b == 0 else ((D1 + 4 * i) if i < 22 else (D0 + 4 * (i - 22)))
    def ld(b, i):
        k(f"s_add_u32 s46, s45, {b*96*1280 + i*4096}")
        d = dat(b, i)
        k(f"buffer_load_dwordx4 v[{d}:{d+3}], v4, s[12:15], s46 offen")
    for i in range(30): ld(0, i)
    for i in range(22): ld(1, i)
    k("v_lshrrev_b32 v8, 2, v2")
    k("v_lshl_add_u32 v8, v3, 2, v8")
    k(f"v_mul_u32_u24 v5, {RS}, v8")
    k("v_and_b32 v8, 3, v2")
    k("v_lshl_add_u32 v5, v8, 3, v5")
    k("s_mul_i32 s24, s3, 320")
    k("v_add_u32 v5, s24, v5")
    k(f"v_add_u32 v6, {48*RS}, v5")
    for b in range(2):
        k(f"s_waitcnt vmcnt({22 if b == 0 else 0})")
        for i in range(30):
            d = dat(b, i)
            k(f"ds_write_b128 v{LO+i}, v[{d}:{d+3}]")
        k("s_waitcnt lgkmcnt(0)")
        if b == 0:
            for i in range(22, 30): ld(1, i)
        k("s_barrier")
        for t in range(10):
            def tr(ks, hf, base, row):
                r = (t * 6 + ks) * 4 + 2 * hf
                k(f"ds_read_b64_tr_b16 a[{r}:{r+1}], v{base} offset:{row*RS + 32*t}")
            tr(2*b, 0, 5, 0); tr(2*b, 1, 5, 16)
            tr(2*b+1, 0, 6, 0); tr(2*b+1, 1, 6, 16)
            tr(4+b, 0, 5, 32); tr(4+b, 1, 6, 32)
        k("s_waitcnt lgkmcnt(0)")
        k("s_barrier")
    k("v_lshlrev_b32 v5, 4, v1")
    k("s_mul_i32 s24, s44, 12288")
    k("v_add_u32 v6, s24, v5")
    k("v_add_u32 v7, 4096, v6"); k("v_add_u32 v8, 8192, v6")
    k(f"s_mul_i32 s24, s3, {10*32768}"); k("s_lshl_b32 s25, s44, 10"); k("s_add_u32 s24, s24, s25")
    k("v_add_u32 v9, s24, v5")
    event(k, 1, 16)
    k.lab('o_layer')
    layer_bases(k)
    flag_addr(k, 3)
    if CFG['o_off']:
        k("s_cmp_eq_u32 s92, 1"); k(f"s_cselect_b32 s24, {OOB}, 0"); k("v_or_b32 v9, s24, v9")
    k(f"s_lshl_b32 s24, s44, 7"); k(f"s_add_u32 s24, s24, {2*4096}"); k("s_add_u32 s24, s24, s94")
    k("v_mov_b32 v10, s24")
    k(f"s_mov_b32 s41, {WS_VF}")
    k(f"s_mov_b32 s43, {WS_VOX}")
    k("s_mov_b32 s40, 0")
    def vloads(V):
        for i in range(12):
            k(f"buffer_load_dwordx4 v[{V+4*i}:{V+4*i+3}], v{6 + i//4}, s[8:11], s41 offen offset:{(i%4)*1024} sc1")
        k(f"s_add_u32 s41, s41, {QF_SEG}")
    k("s_mov_b32 s62, -1"); k("s_mov_b32 s63, 1")
    ensure(k, 'o_en0', 1, 10, 11)
    vloads(VFa)
    k("s_waitcnt vmcnt(0)")
    event(k, 2, 240)
    k.lab('o_seg')
    for par, (V, VN) in enumerate(((VFa, VFb), (VFb, VFa))):
        for p in range(2):
            X = V + (6 * p + 2) * 4; Y = V + (6 * p + 5) * 4
            k(f"v_swap_b32 v{X+2}, v{Y}"); k(f"v_swap_b32 v{X+3}, v{Y+1}")
        def frag(tt, ks):
            if ks < 4: return V + (3 * ks + tt) * 4
            p = ks - 4
            return V + (6 * p + 2) * 4 if tt == 0 else V + (6 * p + 5) * 4
        def nxt(tag):
            k("s_add_u32 s63, s40, 2"); k("s_min_u32 s63, s63, 64")
            ensure(k, tag, 1, 10, 11)
            vloads(VN)
        if CFG['o_adapt']: k("buffer_load_dword v232, v10, s[8:11], 0 offen sc1")
        for ks in range(6):
            for t in range(10):
                for tt in range(2):
                    a = ACC + (t * 2 + tt) * 4; w = (t * 6 + ks) * 4; f = frag(tt, ks)
                    c = f"v[{a}:{a+3}]" if ks else "0"
                    k(f"v_mfma_f32_16x16x32_bf16 v[{a}:{a+3}], v[{f}:{f+3}], a[{w}:{w+3}], {c}")
            if ks == 2 and CFG['o_adapt']:
                lf = k.new('of')
                k("s_waitcnt vmcnt(0)")
                k("v_readfirstlane_b32 s24, v232"); k("s_max_i32 s62, s62, s24")
                k("s_add_u32 s63, s40, 2"); k("s_min_u32 s63, s63, 64")
                k("s_cmp_ge_i32 s62, s63"); k("s_cselect_b32 s24, 1, 0")
                k("s_lshl_b32 s25, s3, 4"); k(f"s_add_u32 s25, s25, {4*par}")
                k("v_mov_b32 v12, s25"); k("v_mov_b32 v13, s24")
                k("ds_write_b32 v12, v13")
                k(f"v_mov_b32 v12, {4*par}")
                k("s_waitcnt lgkmcnt(0)")
                k("s_barrier")
                k("ds_read_b32 v13, v12")
                flag_pub(k, 's40')
                k("s_waitcnt lgkmcnt(0)")
                k("v_readfirstlane_b32 s58, v13")
                k("s_cmp_eq_u32 s58, 1"); k(f"s_cbranch_scc0 {k.ref(lf)}")
                k("s_max_i32 s62, s62, s63")
                vloads(VN)
                k.lab(lf)
            elif ks == 2:
                lf = k.new('of')
                if par == 0:
                    k("s_cmp_eq_u32 s40, 0"); k(f"s_cbranch_scc1 {k.ref(lf)}")
                k("s_waitcnt vmcnt(0)")
                k("s_barrier")
                flag_pub(k, 's40')
                nxt(f'o_en{par+1}')
                k.lab(lf)
        k("s_mov_b32 s46, s43")
        for t in range(10):
            o = OUT + 4 * t
            for tt in range(2):
                a = ACC + (t * 2 + tt) * 4
                k(f"v_cvt_pk_bf16_f32 v{o+2*tt}, v{a}, v{a+1}")
                k(f"v_cvt_pk_bf16_f32 v{o+2*tt+1}, v{a+2}, v{a+3}")
            k(f"buffer_store_dwordx4 v[{o}:{o+3}], v9, s[8:11], s46 offen sc1")
            if t < 9: k("s_add_u32 s46, s46, 32768")
        if CFG['o_adapt']:
            lf = k.new('of')
            k("s_cmp_eq_u32 s58, 1"); k(f"s_cbranch_scc1 {k.ref(lf)}")
            k("s_waitcnt vmcnt(0)")
            k("s_barrier")
            k("s_add_u32 s24, s40, 1")
            flag_pub(k, 's24')
            nxt(f'o_en{par+3}')
            k("s_waitcnt vmcnt(0)")
            k.lab(lf)
        elif par == 0:
            lf = k.new('of')
            k("s_cmp_eq_u32 s40, 0"); k(f"s_cbranch_scc0 {k.ref(lf)}")
            k("s_waitcnt vmcnt(0)")
            k("s_barrier")
            flag_pub(k, 1)
            nxt('o_en3')
            k("s_waitcnt vmcnt(0)")
            k.lab(lf)
        k("s_waitcnt vmcnt(10)")
        k("s_add_u32 s40, s40, 1")
        k(f"s_add_u32 s43, s43, {VOX_SEG}")
    k("s_cmp_lt_u32 s40, 64")
    k(f"s_cbranch_scc1 {k.ref('o_seg')}")
    k("s_waitcnt vmcnt(0)")
    k("s_barrier")
    flag_pub(k, 's40')
    event(k, 3, 240)
    next_layer(k, 'o_layer')
class Hooks(A.NoHooks):
    def ev(self, k, i, t=14): event(k, i, t)
    def k1_wait_x(self, k):
        k("s_and_b32 s24, s48, 3"); k("s_lshl_b32 s24, s24, 7"); k(f"s_add_u32 s24, s24, {WS_FLG + F_X}")
        k("v_lshlrev_b32 v15, 2, v1"); k("v_add_u32 v15, s24, v15")
        k("s_lshr_b32 s95, s48, 2"); k("s_add_u32 s95, s95, 1")
        wait_all(k, 'k1_wx', 20, 14, 's95', sleep=4)
    def tr(self, k, slot):
        if not (CFG['stamp'] and CFG.get('k1tr')): return
        k("s_memrealtime s[96:97]")
        k("s_lshl_b32 s34, s2, 2"); k("s_add_u32 s34, s34, s3"); k("s_lshl_b32 s34, s34, 7")
        k("s_lshl_b32 s35, s92, 6"); k("s_add_u32 s34, s34, s35")
        k("s_add_u32 s34, s34, s48"); k("s_lshl_b32 s34, s34, 5"); k(f"s_add_u32 s34, s34, {WS_TRACE + 4*slot}")
        k(f"v_mov_b32 v14, {OOB}"); k("v_cmp_eq_u32 vcc, 0, v1"); k("v_cndmask_b32 v14, v14, 0, vcc")
        k("s_waitcnt lgkmcnt(0)")
        k("v_mov_b32 v15, s96")
        k("buffer_store_dword v15, v14, s[8:11], s34 offen")
    def k1_prefetch(self, k):
        st = CFG['pf']
        if not st: return 0
        n = 32768 // (256 * st)
        l = k.new('pf')
        k("s_cmp_eq_u32 s92, 0"); k(f"s_cselect_b32 s25, 0, {OOB}")
        k("s_lshl_b32 s24, s45, 3"); k("s_add_u32 s24, s24, s44"); k("s_mul_i32 s24, s24, 30720"); k("s_add_u32 s24, s24, s25")
        k(f"v_mul_u32_u24 v154, {st}, v0")
        for i in range(4):
            k.srd(20, 64 + 2 * i, D * HD * 2)
            for q in range(n):
                k(f"s_add_u32 s25, s24, {q * 256 * st}")
                k("buffer_load_dword a255, v154, s[20:23], s25 offen")
        return 4 * n
    def k1_flag_issue(self, k, n):
        k(f"s_mul_i32 s24, s49, {n}"); k("s_add_u32 s24, s24, s48")
        k("s_and_b32 s24, s24, 3"); k("s_lshl_b32 s24, s24, 7"); k(f"s_add_u32 s24, s24, {WS_FLG + F_X}")
        k("v_lshlrev_b32 v15, 2, v1"); k("v_add_u32 v15, s24, v15")
        k("buffer_load_dword v13, v15, s[8:11], 0 offen sc1")
    def k1_flag_check(self, k, skip):
        if not CFG['k1_pre']:
            k(f"s_branch {k.ref(skip)}"); return
        k("s_add_u32 s24, s48, s49"); k("s_lshr_b32 s24, s24, 2"); k("s_add_u32 s24, s24, 1")
        k("v_cmp_le_i32 vcc, s24, v13")
        k("s_and_b32 s24, vcc_lo, 0xfffff"); k("s_cmp_eq_u32 s24, 0xfffff")
        k(f"s_cbranch_scc0 {k.ref(skip)}")
    def k1_first_barrier(self, k):
        l = k.new('fb')
        k("s_cmp_eq_u32 s2, 255"); k(f"s_cbranch_scc0 {k.ref(l)}")
        k("s_cmp_eq_u32 s92, 0"); k(f"s_cbranch_scc0 {k.ref(l)}")
        k("s_cmp_eq_u32 s3, 0"); k(f"s_cbranch_scc0 {k.ref(l)}")
        k(f"v_mov_b32 v154, {OOB}"); k("v_cmp_eq_u32 vcc, 0, v1"); k("v_cndmask_b32 v154, v154, 0, vcc")
        k("v_mov_b32 v155, 1")
        k("buffer_store_dword v155, v154, s[72:75], 0 offen sc1")
        k.lab(l)
    def k1_ready_issue(self, k):
        l = k.new('ri')
        k("s_cmp_eq_u32 s92, 0"); k(f"s_cbranch_scc0 {k.ref(l)}")
        k("v_mov_b32 v15, 0")
        k("buffer_load_dword v14, v15, s[72:75], 0 offen sc1")
        k.lab(l)
    def k1_ready_check(self, k):
        l = k.new('rc')
        k("s_cmp_eq_u32 s92, 0"); k(f"s_cbranch_scc0 {k.ref(l + '_ok')}")
        k("s_mov_b32 s61, 0")
        k.lab(l)
        k("s_waitcnt vmcnt(0)")
        k("v_readfirstlane_b32 s24, v14")
        k("s_cmp_eq_u32 s24, 1"); k(f"s_cbranch_scc1 {k.ref(l + '_ok')}")
        k("s_add_u32 s61, s61, 1"); k("s_cmp_ge_u32 s61, s60"); k(f"s_cbranch_scc1 {k.ref(l + '_to')}")
        k("s_sleep 2")
        k("v_mov_b32 v15, 0")
        k("buffer_load_dword v14, v15, s[72:75], 0 offen sc1")
        k(f"s_branch {k.ref(l)}")
        k.lab(l + '_to')
        k("s_mov_b32 s60, 1")
        k.lab(l + '_ok')
    def k1_publish(self, k):
        k("s_lshl_b32 s24, s92, 3"); k("s_add_u32 s24, s24, s44"); k("s_lshl_b32 s24, s24, 7")
        k("s_lshl_b32 s25, s45, 2"); k("s_add_u32 s24, s24, s25"); k(f"s_add_u32 s24, s24, {WS_FLG + F_K1}")
        pub_dword(k, 's24', 1, 14)
    def k2_wait(self, k):
        k("s_lshl_b32 s24, s92, 3"); k("s_add_u32 s24, s24, s44"); k("s_lshl_b32 s24, s24, 7"); k(f"s_add_u32 s24, s24, {WS_FLG + F_K1}")
        k("v_lshlrev_b32 v15, 2, v1"); k("v_add_u32 v15, s24, v15")
        k("s_cmp_eq_u32 s92, 0"); k("s_cselect_b32 s26, -1, 3")
        wait_all(k, 'k2_w', 's26', 14, 1, sleep=2)
    def k2_publish(self, k):
        k("s_lshl_b32 s24, s92, 7"); k("s_sub_u32 s25, s2, 64"); k("s_lshl_b32 s25, s25, 2"); k("s_add_u32 s24, s24, s25")
        k(f"s_add_u32 s24, s24, {WS_FLG + F_K2}")
        pub_dword(k, 's24', 1, 14)
    def k3_wait0(self, k):
        k("s_cmp_eq_u32 s92, 0"); k("s_cselect_b32 s26, 32, 0"); k("s_cselect_b32 s27, 7, 1")
        k("s_lshl_b32 s24, s92, 10"); k(f"s_add_u32 s24, s24, {WS_FLG + F_K1}")
        k("v_and_b32 v15, 7, v1"); k("v_lshlrev_b32 v15, 7, v15")
        k("v_lshrrev_b32 v14, 3, v1"); k("v_and_b32 v14, s27, v14"); k("v_lshl_add_u32 v15, v14, 2, v15")
        k("v_add_u32 v15, s24, v15")
        k("s_lshl_b32 s27, s26, 1"); k("s_add_u32 s28, s27, s26")
        k("s_mov_b32 s61, 0")
        k.lab('k3_w0')
        for i, so in enumerate(('0', 's26', 's27', 's28')):
            k(f"buffer_load_dword v{16+i}, v15, s[8:11], {so} offen sc1")
        k("s_waitcnt vmcnt(0)")
        k("v_min_i32 v16, v16, v17"); k("v_min3_i32 v16, v16, v18, v19")
        k("v_cmp_le_i32 vcc, 1, v16")
        k("s_cmp_eq_u64 vcc, -1")
        k(f"s_cbranch_scc1 {k.ref('k3_w0_ok')}")
        k("s_add_u32 s61, s61, 1"); k("s_cmp_ge_u32 s61, s60"); k(f"s_cbranch_scc1 {k.ref('k3_w0_to')}")
        k("s_sleep 4")
        k(f"s_branch {k.ref('k3_w0')}")
        k.lab('k3_w0_to'); k("s_mov_b32 s60, 1")
        k.lab('k3_w0_ok')
    def k3_wait(self, k):
        k("s_lshl_b32 s24, s92, 7"); k(f"s_add_u32 s24, s24, {WS_FLG + F_K2}")
        k("v_lshlrev_b32 v15, 2, v1"); k("v_add_u32 v15, s24, v15")
        wait_all(k, 'k3_w', 24, 14, 1, sleep=2)
    def k3_publish(self, k, last):
        k("s_lshl_b32 s24, s92, 10"); k("s_lshl_b32 s25, s78, 2"); k("s_add_u32 s24, s24, s25")
        k(f"s_add_u32 s24, s24, {WS_FLG + F_K3}")
        pub_dword(k, 's24', 's40', 14, copies=8)

NCLR = 3
def role_clear(k):
    k("s_sub_u32 s44, s2, 253")
    k("s_lshl_b32 s24, s44, 2"); k("s_add_u32 s24, s24, s3"); k(f"s_mul_i32 s24, s24, {38*1024}"); k(f"s_add_u32 s41, s24, {WS_SYNC}")
    k("v_lshlrev_b32 v5, 4, v1")
    for r in range(4): k(f"v_mov_b32 v{8+r}, -1")
    k("s_lshl_b32 s24, s44, 2"); k(f"s_add_u32 s42, s24, {WS_FLG + F_C}")
    k("s_mov_b32 s40, 0")
    if CFG['noclr']:
        k("s_mov_b32 s40, 128"); pub_dword(k, 's42', 's40', 14, copies=8); return
    k.lab('clr_blk')
    k("s_mov_b32 s43, s41")
    for i in range(38):
        k(f"buffer_store_dwordx4 v[8:11], v5, s[8:11], s43 offen offset:{(i%4)*1024} {CFG['clr_mod']}")
        if i % 4 == 3: k("s_add_u32 s43, s43, 4096")
    k("s_waitcnt vmcnt(38)")
    k("s_barrier")
    pub_dword(k, 's42', 's40', 14, copies=8)
    if CFG['clr_sleep']: k(f"s_sleep {CFG['clr_sleep']}")
    k("s_add_u32 s40, s40, 1")
    k(f"s_add_u32 s41, s41, {SYNC_STEP}")
    k("s_cmp_lt_u32 s40, 128"); k(f"s_cbranch_scc1 {k.ref('clr_blk')}")
    k("s_waitcnt vmcnt(0)")
    k("s_barrier")
    pub_dword(k, 's42', 's40', 14, copies=8)

def build():
    k = K(NAME, vgpr=256, sgpr=100, agpr=256)
    H = Hooks()
    k("s_cmp_ge_u32 s2, 256")
    k(f"s_cbranch_scc1 {k.ref('end')}")
    k.ptr(KA_WS, 4); k.ptr(KA_DBG, 6); k.ptr(KA_AX, 24); k.ptr(KA_WQKV, 98)
    if CFG['pf']:
        for i_, a_ in enumerate((KA_WQ, KA_WK, KA_WV, KA_WO)): k.ptr(a_, 64 + 2 * i_)
    k("s_and_b32 s44, s2, 7"); k("s_lshr_b32 s45, s2, 3")
    if CFG['xmap']:
        xm = CFG['xmap']
        k("s_and_b32 s26, s44, 3"); k("s_lshl_b32 s27, s45, 2"); k("s_add_u32 s26, s26, s27")
        k("s_add_u32 s27, s26, 128"); k("s_cmp_lt_u32 s26, 104"); k("s_cselect_b32 s27, s26, s27")
        k("s_add_u32 s26, s26, 104")
        k("s_cmp_lt_u32 s44, 4"); k("s_cselect_b32 s2, s27, s26" if xm == 1 else "s_cselect_b32 s2, s26, s27")
    k("v_and_b32 v1, 63, v0")
    k("v_lshrrev_b32 v4, 6, v0")
    k("v_and_b32 v2, 15, v1")
    k("v_lshrrev_b32 v3, 4, v1")
    k("v_readfirstlane_b32 s3, v4")
    k(f"s_mov_b32 s60, {CFG['spin']}")
    k("s_mov_b32 s59, -1")
    k("s_mov_b32 s92, 0")
    k("s_waitcnt lgkmcnt(0)")
    k.srd(8, 4, WS_BYTES)
    k.srd(72, 6, 256)
    k.srd(16, 24, A.XF_BYTES)
    event(k, 0)
    l = k.new('cf')
    k("s_cmp_eq_u32 s2, 255"); k(f"s_cbranch_scc0 {k.ref(l)}")
    k("v_lshlrev_b32 v5, 4, v0")
    for r in range(4): k(f"v_mov_b32 v{8+r}, -1")
    k(f"s_mov_b32 s24, {WS_FLG}")
    for i in range(FLG_BYTES // 4096):
        k(f"buffer_store_dwordx4 v[8:11], v5, s[8:11], s24 offen sc1")
        k("s_add_u32 s24, s24, 4096")
    k.lab(l)
    k("s_mov_b32 s46, 64"); k("s_mov_b32 s47, 32"); k("s_mov_b32 s50, 0")
    k("s_lshl_b32 s48, s45, 1"); k("s_mov_b32 s49, 1"); k("s_mov_b32 s40, 2")
    k.lab('k1_entry')
    A.role_K1(k, H, wq=98, l2pf=bool(CFG['l2pf']), xmod=CFG['k1xmod'])
    event(k, 4)
    k("s_cmp_eq_u32 s92, 0"); k(f"s_cbranch_scc0 {k.ref('end')}")
    k("s_cmp_ge_u32 s2, 232"); k(f"s_cbranch_scc1 {k.ref('helper')}")
    k("s_cmp_ge_u32 s2, 200"); k(f"s_cbranch_scc1 {k.ref('toO')}")
    k("s_cmp_ge_u32 s2, 104"); k(f"s_cbranch_scc1 {k.ref('toP')}")
    k("s_cmp_ge_u32 s2, 64"); k(f"s_cbranch_scc1 {k.ref('toR')}")
    k("s_cmp_ge_u32 s2, 32"); k(f"s_cbranch_scc1 {k.ref('toV')}")
    k(f"s_branch {k.ref('roleS')}")
    for nm in 'VRPO':
        k.lab('to' + nm); k(f"s_branch {k.ref('role' + nm)}")
    k.lab('helper')
    k("s_sub_u32 s24, s2, 232")
    k("s_cmp_ge_u32 s24, 21"); k(f"s_cbranch_scc1 {k.ref('helper_clr')}")
    k("s_cmp_eq_u32 s24, 15"); k(f"s_cbranch_scc1 {k.ref('helper_k1')}")
    k("s_mul_i32 s57, s24, 52"); k("s_lshr_b32 s57, s57, 8"); k("s_mul_i32 s56, s57, 5"); k("s_sub_u32 s56, s24, s56")
    k("s_add_u32 s57, s57, 1")
    k("s_sub_u32 s25, s24, 16"); k("s_cmp_ge_u32 s24, 16"); k("s_cselect_b32 s56, s25, s56"); k("s_cselect_b32 s57, 0, s57")
    k("s_mul_i32 s78, s57, 5"); k("s_add_u32 s78, s78, s56")
    A.k3_stage(k)
    k.ptr(KA_AX, 6); k("s_waitcnt lgkmcnt(0)"); k.srd(16, 6, A.XF_BYTES)
    k("s_mov_b32 s46, 64"); k("s_mov_b32 s47, 32"); k("s_mov_b32 s50, 0"); k(f"s_mov_b32 s58, {A.WS_XF1}")
    k("s_mov_b32 s76, 16"); k("s_mov_b32 s77, 163840")
    k.lab('k3_entry')
    A.role_K3(k, H)
    event(k, 6)
    k("s_cmp_eq_u32 s92, 0"); k(f"s_cbranch_scc0 {k.ref('end')}")
    k("s_mov_b32 s92, 1")
    k("s_cmp_lt_u32 s2, 248"); k(f"s_cbranch_scc1 {k.ref('helper_k1')}")
    k.srd(16, 4, A.XF_BYTES, A.WS_XF2)
    k("s_mov_b32 s46, 1024"); k("s_mov_b32 s47, 8"); k("s_mov_b32 s50, 1"); k(f"s_mov_b32 s58, {A.WS_XF3}")
    k("s_mov_b32 s76, 64"); k("s_mov_b32 s77, 40960")
    k(f"s_branch {k.ref('k3_entry')}")
    k.lab('helper_k1')
    k("s_mov_b32 s92, 1")
    k("s_sub_u32 s24, s2, 232")
    k.srd(16, 4, A.XF_BYTES, A.WS_XF2)
    k("s_mov_b32 s46, 1024"); k("s_mov_b32 s47, 8"); k("s_mov_b32 s50, 1")
    k("s_and_b32 s44, s24, 7"); k("s_lshr_b32 s45, s24, 3")
    k("s_mov_b32 s48, s45"); k("s_mov_b32 s49, 2"); k("s_mov_b32 s40, 32")
    k(f"s_branch {k.ref('k1_entry')}")
    k.lab('helper_clr')
    role_clear(k)
    event(k, 6)
    k(f"s_branch {k.ref('end')}")
    k.lab('roleS'); (role_S2 if CFG['s2'] else role_S)(k)
    k.lab('roleV'); (role_V2 if CFG['v2'] else role_V)(k)
    k.lab('roleR'); role_R(k)
    k.lab('roleP'); role_P(k)
    k.lab('roleO'); role_O(k)
    k.lab('end')
    head = ["; generated by gen6.py (my own hand-written generator); kernarg: 13 pointers",
            f"; @launch kernel={k.name} grid=(256,1,1) block=(256,1,1) lds=135168",
            '.amdgcn_target "amdgcn-amd-amdhsa--gfx950"']
    return "\n".join(head) + "\n" + k.text() + "\n"

CFG.setdefault('xmap', 1); CFG.setdefault('l2pf', 1); CFG.setdefault('k1xmod', ''); CFG.setdefault('pf', 0); CFG.setdefault('p_adapt', 1); CFG.setdefault('o_adapt', 1); CFG.setdefault('xflag', 1); CFG.setdefault('sl_xc', 16); CFG.setdefault('k1_pre', 1); CFG.setdefault('dly_hr', 4); CFG.setdefault('hr_wave', 3); CFG.setdefault('s2', 1); CFG.setdefault('v2', 1); CFG.setdefault('v_x8', 4); CFG.setdefault('v_x9', 4); CFG.setdefault('tgt_m', 8); CFG.setdefault('tgt_p', 7); CFG.setdefault('kx_pos', 0); CFG.setdefault('px_pos', 1); CFG.setdefault('x_off', 0); CFG.setdefault('o_off', 0); CFG.setdefault('p_off', 0); CFG.setdefault('rv_off', 0); CFG.setdefault('noclr', 0); CFG.setdefault('pstat', 1); CFG.setdefault('p_nx', 1); CFG.setdefault('p_wr', 1); CFG.setdefault('px_mod', ''); CFG.setdefault('p_ns', 2); CFG.setdefault('spin', SPIN_MAX); CFG.setdefault('xlag', 8); CFG.setdefault('clr_mod', 'sc1')
if __name__ == "__main__":
    out = "z.s"
    for a in sys.argv[1:]:
        if a == "stamp": CFG['stamp'] = True
        elif a.endswith(".s"): out = a
        elif "=" in a:
            kk, v = a.split("=")
            try: CFG[kk] = int(v)
            except ValueError: CFG[kk] = v.replace('+', ' ')
    open(out, "w").write(build())
    print("written", out)
```

```python
import sys
from asmlib import K, magic
import genA as A
from genA import hexf, LOG2E, LG, lookup, row_stats_partial, row_stats_final, ln_fold

NAME = A.NAME
S, D, H, DH, HD, NSEG = 2048, 640, 32, 192, 6144, 64
KA_AX, KA_WQKV, KA_WOA, KA_BX, KA_MEM0, KA_WQ, KA_WK, KA_WV, KA_WO, KA_SEG, KA_OUT, KA_DBG, KA_WS = range(13)
WS_BYTES = 268435456

WS_FLG   = 0x01600000
FLG_BYTES = 0x10000
F_Q   = 0x0000
F_LAYER = 0x4000
F_K1  = 0x8000
F_K2  = 0x8800
F_K3  = 0x9000
F_X   = 0x9800
F_C   = 0xA000
F_S   = 0xA800
WS_TRACE = 0x01800000
WS_VF    = 0x02000000
WS_QF    = 0x04000000
WS_KF    = 0x05800000
QF_SEG   = 32 * 12288
WS_SYNC  = 0x07000000
SYNC_STEP = 0x100000
O_VOM, O_PB, O_MB, O_HR, O_HS = 0, 40 * 16384, 43 * 16384, 45 * 16384, 46 * 16384
O_PX = 0
N_NEAR, N_COMP = 47, 10
WS_VOX   = 0x0B000000
VOX_SEG  = 40 * 32 * 1024
assert WS_SYNC + 64 * SYNC_STEP <= WS_VOX and WS_VOX + 64 * VOX_SEG <= WS_BYTES
SCALE_B = DH ** -0.5
SPIN_MAX = 1 << 17
OOB = 0x7ff00000
RH_M, RH_P = 16, 8

CFG = dict(stamp=False, dly_vox=18, pd_m=2, pd_p=1, pdep=4, pgain=0, dly_m=5, dly_v=20, dly_p=0, sl_m=1, sl_p=1, sl_x=2, sl_x0=8,
           hs_pos=23, hr_pos=1, clr_sleep=0)


def poll(k, name, loads, regs, tmp, sleep, first_delay=0, depth=1):
    if first_delay:
        k(f"s_sleep {first_delay}")
    k("s_mov_b32 s61, 0")
    for d in range(depth - 1):
        for l in loads: k(l)
        if sleep: k(f"s_sleep {sleep}")
    k.lab(name)
    for l in loads: k(l)
    k(f"s_waitcnt vmcnt({(depth - 1) * len(loads)})")
    rs = list(regs)
    k(f"v_max3_u32 v{tmp}, v{rs[0]}, v{rs[1]}, v{rs[2]}")
    rs = rs[3:]
    while len(rs) >= 2:
        k(f"v_max3_u32 v{tmp}, v{tmp}, v{rs[0]}, v{rs[1]}"); rs = rs[2:]
    if rs: k(f"v_max_u32 v{tmp}, v{tmp}, v{rs[0]}")
    k(f"v_cmp_eq_u32 vcc, -1, v{tmp}")
    k("s_add_u32 s61, s61, 1")
    k(f"s_cbranch_vccz {k.ref(name + '_out')}")
    k("s_cmp_ge_u32 s61, s60")
    k(f"s_cbranch_scc1 {k.ref(name + '_to')}")
    if sleep: k(f"s_sleep {sleep}")
    k(f"s_branch {k.ref(name)}")
    k.lab(name + '_to')
    k("s_mov_b32 s60, 1")
    k.lab(name + '_out')

def check_regs(k, rs, tmp):
    rs = list(rs)
    k(f"v_max3_u32 v{tmp}, v{rs[0]}, v{rs[1]}, v{rs[2]}")
    rs = rs[3:]
    while len(rs) >= 2:
        k(f"v_max3_u32 v{tmp}, v{tmp}, v{rs[0]}, v{rs[1]}"); rs = rs[2:]
    if rs: k(f"v_max_u32 v{tmp}, v{tmp}, v{rs[0]}")
    k(f"v_cmp_eq_u32 vcc, -1, v{tmp}")


def aprobe(k, name, areg, sbase, target, ring, delta, depth, dly):
    ring = ring[:depth]
    if dly: k(f"s_sleep {dly}")
    k("s_mov_b64 exec, 1")
    k("s_mov_b32 s61, 0")
    def issue(i):
        k(f"v_mov_b32 v{ring[i]}, 0")
        k(f"buffer_atomic_add v{ring[i]}, v{areg}, s[8:11], {sbase} offen sc0")
    for d in range(depth - 1):
        issue(d + 1)
        if delta: k(f"s_sleep {delta}")
    k.lab(name)
    for i in range(depth):
        issue(i)
        k(f"s_waitcnt vmcnt({depth - 1})")
        k(f"v_cmp_le_i32 vcc, {target}, v{ring[(i + 1) % depth]}")
        k("s_add_u32 s61, s61, 1")
        k(f"s_cbranch_vccnz {k.ref(name + '_out')}")
        if delta: k(f"s_sleep {delta}")
    k("s_cmp_ge_u32 s61, s60")
    k(f"s_cbranch_scc0 {k.ref(name)}")
    k("s_mov_b32 s60, 1")
    k.lab(name + '_out')
    k("s_mov_b64 exec, -1")
    if CFG['stamp']: k("s_mov_b32 s56, s61")

def ahint(k, areg, one, sbase):
    k(f"buffer_atomic_add v{one}, v{areg}, s[8:11], {sbase} offen")

def ahint_addr(k, dst, t, w_sreg, nrep, only_wave0):
    k(f"s_mul_i32 s24, {w_sreg}, {nrep}")
    k(f"v_add_u32 v{dst}, s24, v1")
    k(f"v_lshlrev_b32 v{dst}, 7, v{dst}")
    k(f"v_mov_b32 v{t}, {OOB}")
    k(f"v_cmp_le_u32 vcc, {nrep}, v1")
    k(f"v_cndmask_b32 v{dst}, v{dst}, v{t}, vcc")
    if only_wave0:
        k("s_cmp_eq_u32 s3, 0"); k(f"s_cselect_b32 s24, 0, {OOB}")
        k(f"v_or_b32 v{dst}, s24, v{dst}")

def aprobe_addr(k, dst, wg_sreg, nrep):
    k(f"s_and_b32 s24, {wg_sreg}, {nrep - 1}")
    k(f"s_mul_i32 s25, s3, {nrep}")
    k("s_add_u32 s24, s24, s25"); k("s_lshl_b32 s24, s24, 7")
    k(f"v_mov_b32 v{dst}, s24")


def shot_check(k, name, loads, regs, tmp, nyoung, sleep):
    k(f"s_waitcnt vmcnt({nyoung})")
    check_regs(k, regs, tmp)
    if CFG['stamp']: k("s_mov_b32 s57, 0")
    k(f"s_cbranch_vccz {k.ref(name + '_out')}")
    k("s_mov_b32 s61, 0")
    k.lab(name)
    for l in loads: k(l)
    k("s_waitcnt vmcnt(0)")
    check_regs(k, regs, tmp)
    k("s_add_u32 s61, s61, 1")
    if CFG['stamp']: k("s_mov_b32 s57, s61")
    k(f"s_cbranch_vccz {k.ref(name + '_out')}")
    k("s_cmp_ge_u32 s61, s60")
    k(f"s_cbranch_scc1 {k.ref(name + '_to')}")
    if sleep: k(f"s_sleep {sleep}")
    k(f"s_branch {k.ref(name)}")
    k.lab(name + '_to')
    k("s_mov_b32 s60, 1")
    k.lab(name + '_out')


def divmod_const(k, q, r, x, d, maxn, stmp):
    m, sh = magic(d, maxn)
    k(f"s_mov_b32 s{stmp}, {m}")
    k(f"v_mul_lo_u32 v{q}, v{x}, s{stmp}")
    k(f"v_lshrrev_b32 v{q}, {sh}, v{q}")
    k(f"v_mul_u32_u24 v{r}, {d}, v{q}")
    k(f"v_sub_u32 v{r}, v{x}, v{r}")

def stage_offsets(k, n, cpr, gstride, RS, lbase, go, lo, t0):
    for i in range(n):
        k(f"v_add_u32 v{t0}, {256*i}, v0")
        divmod_const(k, t0 + 1, t0 + 2, t0, cpr, 256 * n, 24)
        k(f"s_mov_b32 s24, {gstride}")
        k(f"v_mul_lo_u32 v{go+i}, v{t0+1}, s24")
        k(f"v_lshl_add_u32 v{go+i}, v{t0+2}, 4, v{go+i}")
        k(f"v_mul_u32_u24 v{lo+i}, {RS}, v{t0+1}")
        k(f"v_lshl_add_u32 v{lo+i}, v{t0+2}, 4, v{lo+i}")
        k(f"v_add_u32 v{lo+i}, {lbase}, v{lo+i}")

def tr_base(k, dst, RS, lbase, t0):
    k(f"v_lshrrev_b32 v{t0}, 1, v3")
    k(f"v_lshlrev_b32 v{t0}, 4, v{t0}")
    k(f"v_and_b32 v{t0+1}, 1, v3")
    k(f"v_lshl_add_u32 v{t0}, v{t0+1}, 2, v{t0}")
    k(f"v_lshrrev_b32 v{t0+1}, 2, v2")
    k(f"v_and_b32 v{t0+2}, 1, v{t0+1}")
    k(f"v_add_u32 v{t0}, v{t0}, v{t0+2}")
    k(f"v_lshrrev_b32 v{t0+1}, 1, v{t0+1}")
    k(f"v_lshl_add_u32 v{t0}, v{t0+1}, 3, v{t0}")
    k(f"v_mul_u32_u24 v{dst}, {RS}, v{t0}")
    k(f"v_and_b32 v{t0+1}, 3, v2")
    k(f"v_lshl_add_u32 v{dst}, v{t0+1}, 3, v{dst}")
    k(f"v_add_u32 v{dst}, {lbase}, v{dst}")

def softmax8(k, P0, T0, T1, masks=None):
    if masks:
        k(f"v_mov_b32 v{T1}, 0xff800000")
        for j in range(8): k(f"v_cndmask_b32 v{P0+j}, v{T1}, v{P0+j}, s[{masks+2*j}:{masks+2*j+1}]")
    k(f"v_max3_f32 v{T0}, v{P0}, v{P0+1}, v{P0+2}")
    k(f"v_max3_f32 v{T0}, v{T0}, v{P0+3}, v{P0+4}")
    k(f"v_max3_f32 v{T0}, v{T0}, v{P0+5}, v{P0+6}")
    k(f"v_max_f32 v{T0}, v{T0}, v{P0+7}")
    k(f"v_mov_b32 v{T1}, 0xff800000")
    k(f"v_cndmask_b32 v{T0}, v{T1}, v{T0}, s[50:51]")
    for dpp in ("quad_perm:[1,0,3,2]", "quad_perm:[2,3,0,1]", "row_half_mirror"):
        k(f"v_max_f32 v{T0}, v{T0}, v{T0} {dpp} row_mask:0xf bank_mask:0xf")
    k(f"s_mov_b32 s24, {hexf(SCALE_B * LOG2E)}")
    k(f"v_mul_f32 v{T0}, s24, v{T0}")
    for r in range(8): k(f"v_fma_f32 v{P0+r}, v{P0+r}, s24, -v{T0}")
    for r in range(8): k(f"v_exp_f32 v{P0+r}, v{P0+r}")
    k(f"v_add_f32 v{T0}, v{P0}, v{P0+1}")
    k(f"v_add_f32 v{T1}, v{P0+2}, v{P0+3}")
    k(f"v_add_f32 v{T0}, v{T0}, v{P0+4}")
    k(f"v_add_f32 v{T1}, v{T1}, v{P0+5}")
    k(f"v_add_f32 v{T0}, v{T0}, v{P0+6}")
    k(f"v_add_f32 v{T1}, v{T1}, v{P0+7}")
    k(f"v_add_f32 v{T0}, v{T0}, v{T1}")
    k(f"v_cndmask_b32 v{T0}, 0, v{T0}, s[50:51]")
    for dpp in ("quad_perm:[1,0,3,2]", "quad_perm:[2,3,0,1]", "row_half_mirror"):
        k(f"v_add_f32 v{T0}, v{T0}, v{T0} {dpp} row_mask:0xf bank_mask:0xf")
    k(f"v_rcp_f32 v{T0}, v{T0}")
    for r in range(8): k(f"v_mul_f32 v{P0+r}, v{P0+r}, v{T0}")
    for q in range(4): k(f"v_cvt_pk_bf16_f32 v{P0+8+q}, v{P0+2*q}, v{P0+2*q+1}")
    for q in range(4): k(f"v_min_u32 v{P0+8+q}, -2, v{P0+8+q}")

def sum4x8(k, P0, addr, stride):
    for w in range(4):
        k(f"ds_read_b128 v[{P0+8*w}:{P0+8*w+3}], v{addr} offset:{w*stride}")
        k(f"ds_read_b128 v[{P0+8*w+4}:{P0+8*w+7}], v{addr} offset:{w*stride+16}")
    k("s_waitcnt lgkmcnt(4)")
    for r in range(0, 8, 2): k(f"v_pk_add_f32 v[{P0+r}:{P0+r+1}], v[{P0+r}:{P0+r+1}], v[{P0+8+r}:{P0+8+r+1}]")
    k("s_waitcnt lgkmcnt(0)")
    for r in range(0, 8, 2): k(f"v_pk_add_f32 v[{P0+16+r}:{P0+16+r+1}], v[{P0+16+r}:{P0+16+r+1}], v[{P0+24+r}:{P0+24+r+1}]")
    for r in range(0, 8, 2): k(f"v_pk_add_f32 v[{P0+r}:{P0+r+1}], v[{P0+r}:{P0+r+1}], v[{P0+16+r}:{P0+16+r+1}]")


def tr_frag(k, reg, kind, addr, RS, off):
    for q, ro in enumerate((0, 2, 32, 34)):
        k(f"ds_read_b64_tr_b16 {kind}[{reg+2*q}:{reg+2*q+1}], v{addr} offset:{off + ro*RS}")

def m0_image(k, srd, t0):
    for p in range(3):
        k(f"s_lshl_b32 s24, s3, 6"); k(f"s_add_u32 s24, s24, {256*p}")
        k(f"v_add_u32 v{t0}, s24, v1")
        k(f"v_and_b32 v{t0+1}, 7, v{t0}")
        k(f"v_mul_u32_u24 v{t0+1}, 1280, v{t0+1}")
        k(f"v_lshrrev_b32 v{t0+2}, 3, v{t0}")
        k(f"v_lshl_add_u32 v{t0+1}, v{t0+2}, 4, v{t0+1}")
        k(f"v_cmp_gt_u32 vcc, 640, v{t0}")
        k(f"v_mov_b32 v{t0+3}, {OOB}")
        k(f"v_cndmask_b32 v{t0+1}, v{t0+3}, v{t0+1}, vcc")
        k(f"buffer_load_dwordx4 v[{t0+4}:{t0+7}], v{t0+1}, s[{srd}:{srd+3}], 0 offen")
        k(f"v_lshlrev_b32 v{t0}, 4, v{t0}")
        k("s_waitcnt vmcnt(0)")
        k(f"s_and_saveexec_b64 s[30:31], vcc")
        k(f"ds_write_b128 v{t0}, v[{t0+4}:{t0+7}]")
        k("s_mov_b64 exec, s[30:31]")

def stamp(k, i):
    if CFG['stamp']: k(f"s_memrealtime s[{80+2*i}:{81+2*i}]")

def stamp_out(k, nst, t):
    if not CFG['stamp']: return
    if CFG.get('clk'):
        k("s_memtime s[56:57]"); k("s_waitcnt lgkmcnt(0)")
    k("s_lshl_b32 s34, s2, 2"); k("s_add_u32 s34, s34, s3"); k("s_lshl_b32 s34, s34, 7")
    k("s_lshl_b32 s35, s92, 6"); k("s_add_u32 s34, s34, s35")
    k("s_add_u32 s34, s34, s40"); k("s_lshl_b32 s34, s34, 5"); k(f"s_add_u32 s34, s34, {WS_TRACE}")
    k(f"v_mov_b32 v{t}, {OOB}")
    k("v_cmp_eq_u32 vcc, 0, v1")
    k(f"v_cndmask_b32 v{t}, v{t}, 0, vcc")
    for i in range(nst):
        k(f"v_mov_b32 v{t+1}, s{80+2*i}")
        k(f"buffer_store_dword v{t+1}, v{t}, s[8:11], s34 offen offset:{i*4}")
    for i, sreg in ((6, 's57'), (7, 's56')):
        k(f"v_mov_b32 v{t+1}, {sreg}")
        k(f"buffer_store_dword v{t+1}, v{t}, s[8:11], s34 offen offset:{i*4}")

WS_EVT = 0x01C00000
def event(k, idx, t=14):
    if not CFG['stamp']: return
    k("s_memrealtime s[96:97]")
    k("s_lshl_b32 s34, s2, 7"); k("s_lshl_b32 s35, s92, 6"); k("s_add_u32 s34, s34, s35"); k(f"s_add_u32 s34, s34, {WS_EVT + 4*idx}")
    k("s_cmp_eq_u32 s3, 0"); k(f"s_cselect_b32 s34, s34, {OOB}")
    k(f"v_mov_b32 v{t}, {OOB}")
    k("v_cmp_eq_u32 vcc, 0, v1")
    k(f"v_cndmask_b32 v{t}, v{t}, 0, vcc")
    k("s_waitcnt lgkmcnt(0)")
    k(f"v_mov_b32 v{t+1}, s96")
    k(f"buffer_store_dword v{t+1}, v{t}, s[8:11], s34 offen")

def ensure(k, name, nfl, addr, tmp, need='s63', known='s62', sleep=2):
    k(f"s_cmp_ge_i32 {known}, {need}")
    k(f"s_cbranch_scc1 {k.ref(name + '_ok')}")
    if callable(addr):
        addr(k, tmp + 1); addr = tmp + 1
    k("s_mov_b32 s61, 0")
    k.lab(name)
    k(f"buffer_load_dword v{tmp}, v{addr}, s[8:11], 0 offen sc1")
    k("s_waitcnt vmcnt(0)")
    k(f"v_readlane_b32 {known}, v{tmp}, 0")
    for i in range(1, nfl):
        k(f"v_readlane_b32 s24, v{tmp}, {i}")
        k(f"s_min_i32 {known}, {known}, s24")
    k(f"s_cmp_ge_i32 {known}, {need}")
    k(f"s_cbranch_scc1 {k.ref(name + '_ok')}")
    k("s_add_u32 s61, s61, 1")
    k("s_cmp_ge_u32 s61, s60")
    k(f"s_cbranch_scc1 {k.ref(name + '_to')}")
    k(f"s_sleep {sleep}")
    k(f"s_branch {k.ref(name)}")
    k.lab(name + '_to')
    k("s_mov_b32 s60, 1")
    k.lab(name + '_ok')

def clr_addr(k, dst):
    k("s_and_b32 s24, s2, 7"); k("s_lshl_b32 s24, s24, 7"); k(f"s_add_u32 s24, s24, {WS_FLG + F_C}")
    k(f"v_and_b32 v{dst}, 3, v1"); k(f"v_lshl_add_u32 v{dst}, v{dst}, 2, s24")

def ensure_clear(k, name, tmp, blk):
    k("s_lshl_b32 s95, s92, 6"); k(f"s_add_u32 s95, s95, {blk}"); k("s_add_u32 s95, s95, 1")
    ensure(k, name, 3, clr_addr, tmp, need='s95', known='s59')

def wait_all(k, name, n, t, need, sleep=2):
    k("s_mov_b32 s61, 0")
    k.lab(name)
    k(f"buffer_load_dword v{t}, v{t+1}, s[8:11], 0 offen sc1")
    k("s_waitcnt vmcnt(0)")
    k(f"v_cmp_le_i32 vcc, {need}, v{t}")
    mask = ((1 << n) - 1) if isinstance(n, int) else n
    if isinstance(n, int): k(f"s_mov_b32 s25, {hex(mask & 0xffffffff)}"); mask = 's25'
    k(f"s_and_b32 s24, vcc_lo, {mask}")
    k(f"s_cmp_eq_u32 s24, {mask}")
    k(f"s_cbranch_scc1 {k.ref(name + '_ok')}")
    k("s_add_u32 s61, s61, 1")
    k("s_cmp_ge_u32 s61, s60")
    k(f"s_cbranch_scc1 {k.ref(name + '_to')}")
    k(f"s_sleep {sleep}")
    k(f"s_branch {k.ref(name)}")
    k.lab(name + '_to')
    k("s_mov_b32 s60, 1")
    k.lab(name + '_ok')

def pub_dword(k, saddr, val, t, copies=1):
    l = k.new('pb')
    k("s_cmp_eq_u32 s3, 0")
    k(f"s_cbranch_scc0 {k.ref(l)}")
    k(f"v_lshlrev_b32 v{t}, 7, v1"); k(f"v_add_u32 v{t}, {saddr}, v{t}")
    k(f"v_mov_b32 v{t+1}, {OOB}"); k(f"v_cmp_le_u32 vcc, {copies}, v1"); k(f"v_cndmask_b32 v{t}, v{t}, v{t+1}, vcc")
    k(f"v_mov_b32 v{t+1}, {val}")
    k(f"buffer_store_dword v{t+1}, v{t}, s[8:11], 0 offen sc1")
    k.lab(l)

def next_layer(k, again):
    k("s_cmp_eq_u32 s92, 0")
    k(f"s_cbranch_scc0 {k.ref('end')}")
    k("s_mov_b32 s92, 1")
    k(f"s_branch {k.ref(again)}")

def blk_base(k, step, dst, add=0):
    if add: k(f"s_add_u32 {dst}, {step}, {add}"); step = dst
    k(f"s_lshl_b32 s24, {step}, 12"); k("s_and_b32 s24, s24, 0x2000"); k("s_xor_b32 s24, s24, s36")
    k(f"s_lshl_b32 {dst}, {step}, 20"); k(f"s_add_u32 {dst}, {dst}, s24"); k(f"s_add_u32 {dst}, {dst}, {WS_SYNC}")

def spread(k, reg, t):
    k(f"v_and_b32 v{t}, 0xffffe000, v{reg}"); k(f"v_add_u32 v{reg}, v{reg}, v{t}")

def layer_bases(k):
    k("s_mov_b32 s93, 0"); blk_base(k, 's93', 's93')
    k(f"s_mul_i32 s94, s92, {F_LAYER}"); k(f"s_add_u32 s94, s94, {WS_FLG + F_Q}")


def role_S2(k):
    L_M, L_X, L_SP, L_DUM, L_W5, L_ST = 0, 10240, 16384, 22528, 24576, 106496
    RS = 400
    ACC, AF, WS5 = 24, 48, 68
    KX = 240
    QX = 80
    T0, T1 = 92, 93
    def wreg(t, c):
        if t < 3: return 'a', t * 80 + c * 8
        return 'v', 96 + (t - 4) * 80 + c * 8
    k("s_mov_b32 s44, s2")
    k.ptr(KA_WQ, 6); k.ptr(KA_WK, 24); k.ptr(KA_MEM0, 26)
    k("s_waitcnt lgkmcnt(0)")
    k.srd(12, 6, D * HD * 2); k.srd(16, 24, D * HD * 2); k.srd(20, 26, 8 * 640 * 2)
    GO, LO, DAT = 4, 10, 24
    stage_offsets(k, 6, 24, HD * 2, RS, L_ST, GO, LO, 16)
    tr_base(k, 16, RS, L_ST, 17)
    k("s_mul_i32 s24, s3, 96")
    k("v_add_u32 v16, s24, v16")
    k("v_lshlrev_b32 v17, 4, v1")
    k(f"s_mul_i32 s24, s3, 20480"); k(f"s_add_u32 s24, s24, {L_W5}")
    k("v_add_u32 v17, s24, v17")
    k(f"s_mul_i32 s45, s44, 384")
    blocks = [(c, m) for c in range(10) for m in range(2)]
    def loads(bi):
        c, m = blocks[bi]
        d = DAT + 24 * (bi % 3)
        k(f"s_add_u32 s46, s45, {c * 64 * HD * 2}")
        for i in range(6):
            k(f"buffer_load_dwordx4 v[{d+4*i}:{d+4*i+3}], v{GO+i}, s[{12+4*m}:{15+4*m}], s46 offen")
    loads(0); loads(1)
    for bi, (c, m) in enumerate(blocks):
        d = DAT + 24 * (bi % 3)
        k(f"s_waitcnt vmcnt({6 if bi + 1 < len(blocks) else 0})")
        for i in range(6): k(f"ds_write_b128 v{LO+i}, v[{d+4*i}:{d+4*i+3}]")
        if bi + 2 < len(blocks): loads(bi + 2)
        k("s_waitcnt lgkmcnt(0)")
        k("s_barrier")
        for t in range(3):
            tt = 3 * m + t
            if tt != 3:
                kind, r = wreg(tt, c)
                tr_frag(k, r, kind, 16, RS, 32 * t)
        if m == 1:
            tr_frag(k, d, 'v', 16, RS, 0)
            k("s_waitcnt lgkmcnt(0)")
            k(f"ds_write_b128 v17, v[{d}:{d+3}] offset:{c*2048}")
            k(f"ds_write_b128 v17, v[{d+4}:{d+7}] offset:{c*2048+1024}")
        k("s_waitcnt lgkmcnt(0)")
        k("s_barrier")
    A_, B_, C_, D_ = 30, 31, 32, 33
    k("v_mov_b32 v6, v17")
    k(f"v_mov_b32 v{A_}, 0xeeee"); k("v_mov_b32 v4, 0x4444")
    k("v_cmp_gt_u32 vcc, 8, v2")
    k(f"v_cndmask_b32 v4, v{A_}, v4, vcc")
    k("v_lshlrev_b32 v5, 4, v1")
    k("s_lshl_b32 s24, s3, 10")
    k("v_add_u32 v7, s24, v5")
    k("s_lshl_b32 s24, s3, 9"); k("s_add_u32 s24, s24, 8192")
    k("v_lshlrev_b32 v8, 3, v1")
    k("v_add_u32 v8, s24, v8")
    k(f"v_and_b32 v{A_}, 1, v2"); k(f"v_lshlrev_b32 v{A_}, 4, v{A_}")
    k(f"v_mov_b32 v{B_}, 0x3f80"); k(f"v_lshlrev_b32 v{B_}, v{A_}, v{B_}")
    k(f"v_lshrrev_b32 v{A_}, 2, v2"); k(f"v_cmp_eq_u32 vcc, v{A_}, v3"); k(f"v_cndmask_b32 v{B_}, 0, v{B_}, vcc")
    k(f"v_and_b32 v{A_}, 2, v2"); k(f"v_cmp_eq_u32 vcc, 0, v{A_}")
    k(f"v_cndmask_b32 v10, 0, v{B_}, vcc"); k(f"v_cndmask_b32 v11, v{B_}, 0, vcc")
    k(f"v_add_u32 v{D_}, {L_DUM}, v5")
    k(f"s_mul_i32 s24, s3, 1408"); k(f"s_add_u32 s24, s24, {L_SP}")
    k(f"v_mul_u32_u24 v{A_}, 176, v2")
    k(f"v_add_u32 v{A_}, s24, v{A_}")
    k(f"v_lshl_add_u32 v12, v3, 5, v{A_}")
    k("v_cmp_gt_u32 vcc, 8, v2")
    k(f"v_cndmask_b32 v12, v{D_}, v12, vcc")
    k(f"v_lshl_add_u32 v13, v3, 4, v{A_}")
    k("v_add_u32 v13, 96, v13")
    k("v_cmp_le_u32 s[24:25], 2, v3")
    k("s_and_b64 vcc, vcc, s[24:25]")
    k(f"v_cndmask_b32 v13, v{D_}, v13, vcc")
    k(f"s_mul_i32 s24, s3, 5632"); k(f"s_add_u32 s24, s24, {L_ST}")
    k(f"v_mul_u32_u24 v{A_}, 176, v2")
    k(f"v_add_u32 v{A_}, s24, v{A_}")
    k(f"v_lshl_add_u32 v16, v3, 5, v{A_}")
    k(f"v_lshl_add_u32 v17, v3, 4, v{A_}")
    k("v_add_u32 v17, 96, v17")
    k("v_add_u32 v18, 2816, v17")
    k("v_cmp_le_u32 vcc, 2, v3")
    k(f"v_cndmask_b32 v17, v{D_}, v17, vcc")
    k(f"v_cndmask_b32 v18, v{D_}, v18, vcc")
    k(f"v_lshrrev_b32 v{A_}, 3, v1")
    k(f"v_and_b32 v{B_}, 7, v1")
    k(f"v_min_u32 v{C_}, 4, v{B_}")
    k(f"v_mul_u32_u24 v14, 176, v{A_}")
    k(f"v_lshl_add_u32 v14, v{C_}, 5, v14")
    k("s_mul_i32 s24, s3, 1408"); k(f"s_add_u32 s24, s24, {L_ST}")
    k("v_add_u32 v21, s24, v14")
    k(f"v_add_u32 v14, {L_SP}, v14")
    k(f"v_cmp_gt_u32 s[50:51], 5, v{B_}")
    k("s_lshl_b32 s24, s3, 3")
    k(f"v_add_u32 v{C_}, s24, v{A_}")
    k(f"v_lshlrev_b32 v{D_}, 2, v{B_}")
    k(f"v_sub_u32 v{C_}, v{C_}, v{D_}")
    k(f"v_mov_b32 v{D_}, 100")
    k(f"v_cmp_gt_u32 vcc, 4, v{B_}")
    k(f"v_cndmask_b32 v{C_}, v{D_}, v{C_}, vcc")
    for j in range(8):
        cj = j if j < 4 else j + 12
        k(f"v_cmp_le_i32 s[{64+2*j}:{65+2*j}], {cj}, v{C_}")
    k("s_lshr_b32 s24, s44, 1"); k("s_lshl_b32 s24, s24, 10")
    k("s_and_b32 s25, s44, 1"); k("s_lshl_b32 s25, s25, 7"); k("s_add_u32 s24, s24, s25")
    k(f"v_lshlrev_b32 v15, 8, v{B_}")
    k(f"v_lshl_add_u32 v15, v{A_}, 4, v15")
    k("v_add_u32 v15, s24, v15")
    k("s_lshr_b32 s24, s44, 3"); k("s_lshl_b32 s24, s24, 10")
    k("s_and_b32 s25, s44, 3"); k("s_lshl_b32 s25, s25, 8"); k("s_add_u32 s24, s24, s25")
    k("s_lshr_b32 s25, s44, 2"); k("s_and_b32 s25, s25, 1"); k("s_lshl_b32 s25, s25, 7"); k("s_add_u32 s24, s24, s25")
    k("s_add_u32 s24, s24, 16384")
    k(f"v_lshlrev_b32 v{C_}, 4, v{A_}")
    k(f"v_add_u32 v{C_}, s24, v{C_}")
    k(f"v_cmp_eq_u32 vcc, 4, v{B_}")
    k(f"v_cndmask_b32 v15, v15, v{C_}, vcc")
    spread(k, 15, C_)
    k(f"v_mov_b32 v{C_}, {OOB}")
    k(f"v_cndmask_b32 v15, v{C_}, v15, s[50:51]")
    k(f"s_cmp_lt_u32 s3, 1"); k(f"s_cselect_b32 s24, 0, {OOB}")
    k("v_or_b32 v15, s24, v15")
    k("s_and_b32 s24, s3, 1"); k("s_lshl_b32 s24, s24, 7")
    k("s_lshr_b32 s25, s3, 1"); k("s_lshl_b32 s25, s25, 10")
    k("s_add_u32 s24, s24, s25")
    k("s_lshl_b32 s25, s44, 11"); k("s_add_u32 s25, s25, s24")
    k(f"v_lshlrev_b32 v22, 8, v{B_}")
    k(f"v_lshl_add_u32 v22, v{A_}, 4, v22")
    k("v_add_u32 v22, s25, v22")
    k("s_lshr_b32 s25, s44, 2"); k("s_lshl_b32 s25, s25, 11"); k("s_add_u32 s25, s25, s24")
    k("s_and_b32 s26, s44, 3"); k("s_lshl_b32 s26, s26, 8"); k("s_add_u32 s25, s25, s26"); k("s_add_u32 s25, s25, 65536")
    k(f"v_lshlrev_b32 v{C_}, 4, v{A_}")
    k(f"v_add_u32 v{C_}, s25, v{C_}")
    k(f"v_cmp_eq_u32 vcc, 4, v{B_}")
    k(f"v_cndmask_b32 v22, v22, v{C_}, vcc")
    spread(k, 22, C_)
    k(f"v_mov_b32 v{C_}, {OOB}")
    k(f"v_cndmask_b32 v22, v{C_}, v22, s[50:51]")
    k("s_mul_i32 s24, s44, 12288"); k("s_mul_i32 s25, s3, 3072"); k("s_add_u32 s24, s24, s25")
    k("v_add_u32 v19, s24, v5")
    aprobe_addr(k, 23, 's2', RH_M)
    k("s_lshr_b32 s25, s44, 3")
    ahint_addr(k, 20, A_, 's25', RH_P, True)
    k("v_mov_b32 v0, 1")
    event(k, 1, 48)
    k.lab('s_layer')
    layer_bases(k)
    k("v_and_b32 v9, 1, v1")
    k("v_lshlrev_b32 v9, 12, v9")
    k(f"s_lshl_b32 s24, s44, 7"); k(f"s_add_u32 s24, s24, s94")
    k("v_add_u32 v9, s24, v9")
    m0_image(k, 20, 48)
    k("s_mov_b32 s40, 0")
    k(f"s_mov_b32 s41, {WS_KF}")
    k("s_mov_b32 s37, s93")
    k(f"s_add_u32 s43, s93, {O_PB}")
    k(f"s_mov_b32 s45, {WS_QF}")
    k(f"s_add_u32 s49, s93, {O_HS}")
    def kx_loads():
        for b in range(3):
            k(f"buffer_load_dwordx4 a[{KX+4*b}:{KX+4*b+3}], v19, s[8:11], s41 offen offset:{b*1024} sc1")
    ensure_clear(k, 's_ec0', 48, 's40')
    k("s_mov_b32 s62, -1"); k("s_mov_b32 s63, 1")
    ensure(k, 's_en0', 2, 9, 48)
    kx_loads()
    event(k, 2, 48)
    k("s_waitcnt lgkmcnt(0)")
    for r in range(24): k(f"v_mov_b32 v{ACC+r}, 0")
    k("s_barrier")
    k("ds_read_b128 v[84:87], v7"); k("ds_read_b128 v[88:91], v7 offset:4096")
    k("s_waitcnt vmcnt(0) lgkmcnt(0)")
    for w in range(3):
        k(f"s_cmp_eq_u32 s3, {w}"); k(f"s_cbranch_scc1 {k.ref('s_gow' + str(w))}")
    k(f"s_branch {k.ref('s_gow3')}")
    P0 = 48
    def px_tail(t0, t1):
        sum4x8(k, P0, 21, 5632)
        softmax8(k, P0, t0, t1, masks=64)
        k(f"buffer_store_dwordx4 v[{P0+8}:{P0+11}], v22, s[8:11], s42 offen sc1")
    M32 = "v_mfma_f32_16x16x32_bf16"; M16 = "v_mfma_f32_16x16x16_bf16"
    XA, XB = 24, 32
    SC = [28, 36, 40]
    def epi_pair(p, dest):
        q = ACC + 4 * p; kk = ACC + 12 + 4 * p
        L = [f"v_permlane32_swap_b32 v{q+r}, v{kk+r}" for r in range(4)]
        L += [f"v_add_f32 v{q+r}, v{q+r}, v{kk+r}" for r in range(4)]
        L += [f"v_cvt_pk_bf16_f32 v{kk}, v{q}, v{q+1}", f"v_cvt_pk_bf16_f32 v{kk+1}, v{q+2}, v{q+3}"]
        L += [f"{M16} v[{q}:{q+3}], v[{kk}:{kk+1}], v[10:11], 0"]
        return L, [f"v_cvt_pk_bf16_f32 v{dest}, v{q}, v{q+1}", f"v_cvt_pk_bf16_f32 v{dest+1}, v{q+2}, v{q+3}"]
    def loop(w):
        sf = 'w' + str(w)
        k.lab('s_step' + sf)
        stamp(k, 0)
        for r in range(24): k(f"v_mov_b32 v{ACC+r}, 0")
        loads_ = [f"buffer_load_dwordx4 v[84:87], v7, s[8:11], s47 offen sc1",
                  f"buffer_load_dwordx4 v[88:91], v7, s[8:11], s46 offen sc1",
                  f"buffer_load_dwordx2 v[92:93], v8, s[8:11], s52 offen sc1"]
        k("s_add_u32 s46, s47, 4096"); k("s_add_u32 s52, s47, 8192")
        ensure_clear(k, 's_ec' + sf, 48, 's40')
        k("s_add_u32 s63, s40, 1")
        ensure(k, 's_en' + sf, 2, 9, 48)
        if CFG['kx_pos'] == 0: kx_loads()
        if CFG['px_pos'] == 0: px_tail(80, 81)
        aprobe(k, 's_pr' + sf, 23, 's48', CFG['tgt_m'], [82, 83, 94, 95], CFG['pd_m'], CFG['pdep'], CFG['dly_m'])
        for l in loads_: k(l)
        ny = 0
        if CFG['kx_pos'] == 1: kx_loads(); ny += 3
        if CFG['px_pos'] == 1: px_tail(80, 81); ny += 1
        shot_check(k, 's_pm' + sf, loads_, range(84, 94), 58, ny, CFG['sl_m'])
        if CFG['kx_pos'] == 2: kx_loads()
        stamp(k, 1)
        k(f"ds_write_b128 v7, v[84:87]")
        k(f"ds_write_b128 v7, v[88:91] offset:4096")
        k(f"ds_write_b64 v8, v[92:93]")
        k.lab('s_go' + sf)
        lg = LG(k)
        own = [w, 4 + w]; oth = [c for c in range(10) if c not in own]
        def rdW(c, slot):
            b = WS5 + 8 * slot
            lg.issue(('W', c), f"ds_read_b128 v[{b}:{b+3}], v6 offset:{c*2048}")
            lg.issue(('W', c), f"ds_read_b128 v[{b+4}:{b+7}], v6 offset:{c*2048+1024}")
        def rdA(j):
            a = AF + 4 * (j % 5)
            lg.issue(('A', j), f"ds_read_b128 v[{a}:{a+3}], v5 offset:{oth[j % 8]*1024}")
        def sm(t, c, a, slot=None):
            if t == 3: B = f"v[{WS5+8*slot}:{WS5+8*slot+7}]"
            else:
                kind, r = wreg(t, c); B = f"{kind}[{r}:{r+7}]"
            k(f"v_smfmac_f32_16x16x64_bf16 v[{ACC+4*t}:{ACC+4*t+3}], v[{a}:{a+3}], {B}, v4")
        rdW(own[0], 0); rdW(own[1], 1)
        for t in (0, 1, 2, 4, 5): sm(t, own[0], 84)
        lg.wait(('W', own[0])); sm(3, own[0], 84, 0)
        rdW(oth[0], 0)
        k("s_barrier")
        for j in range(5): rdA(j)
        for t in (0, 1, 2, 4, 5): sm(t, own[1], 88)
        lg.wait(('W', own[1])); sm(3, own[1], 88, 1)
        rdW(oth[1], 1)
        for j in range(8):
            c = oth[j]; a = AF + 4 * (j % 5)
            lg.wait(('A', j))
            for t in (0, 1, 4): sm(t, c, a)
            lg.wait(('W', c)); sm(3, c, a, j % 2)
            if j + 2 < 8: rdW(oth[j + 2], j % 2)
            rdA(j + 5)
        for b in range(3):
            k(f"buffer_load_dwordx4 v[{QX+4*b}:{QX+4*b+3}], v19, s[8:11], s45 offen offset:{b*1024} sc1")
        e1a, e1b = epi_pair(1, XA + 2); e0a, e0b = epi_pair(0, XA)
        E = [None, None] + e1a + e0a + [None] + e0b + e1b + [f"s_waitcnt vmcnt({4 if (CFG['kx_pos'] == 1 and CFG['px_pos'] == 1) else 3})", None]
        E += [f"{M32} v[{SC[0]}:{SC[0]+3}], a[{KX}:{KX+3}], v[{XA}:{XA+3}], 0",
              f"{M32} v[{SC[1]}:{SC[1]+3}], a[{KX+4}:{KX+7}], v[{XA}:{XA+3}], 0",
              f"{M32} v[{SC[2]}:{SC[2]+3}], v[{XA}:{XA+3}], v[{XA}:{XA+3}], 0"]
        def extra(n):
            for _ in range(n):
                if E:
                    t_ = E.pop(0)
                    if t_: k(t_)
        for j in range(8, 16):
            c = oth[j - 8]; a = AF + 4 * (j % 5)
            lg.wait(('A', j))
            sm(2, c, a); extra(2)
            sm(5, c, a); extra(2)
            if j + 5 < 16: rdA(j + 5)
        extra(100)
        stamp(k, 2)
        if CFG['hs_pos'] == 2 and w == 0: ahint(k, 20, 0, 's49')
        e2a, e2b = epi_pair(2, XB)
        for t_ in e2a: k(t_)
        if CFG['hs_pos'] == 20 and w == 0: ahint(k, 20, 0, 's49')
        for t_ in e2b: k(t_)
        if CFG['hs_pos'] == 21 and w == 0: ahint(k, 20, 0, 's49')
        k(f"{M16} v[{SC[0]}:{SC[0]+3}], a[{KX+8}:{KX+9}], v[{XB}:{XB+1}], v[{SC[0]}:{SC[0]+3}]")
        k(f"{M16} v[{SC[1]}:{SC[1]+3}], a[{KX+10}:{KX+11}], v[{XB}:{XB+1}], v[{SC[1]}:{SC[1]+3}]")
        k(f"{M16} v[{SC[2]}:{SC[2]+3}], v[{XB}:{XB+1}], v[{XB}:{XB+1}], v[{SC[2]}:{SC[2]+3}]")
        if CFG['hs_pos'] == 22 and w == 0: ahint(k, 20, 0, 's49')
        k(f"ds_write_b128 v12, v[{SC[0]}:{SC[0]+3}]")
        k(f"ds_write_b128 v12, v[{SC[1]}:{SC[1]+3}] offset:16")
        k(f"ds_write_b128 v13, v[{SC[2]}:{SC[2]+3}]")
        if CFG['hs_pos'] == 23 and w == 0: ahint(k, 20, 0, 's49')
        k("s_waitcnt lgkmcnt(0)")
        k("s_barrier")
        stamp(k, 3)
        if w == 0:
            if CFG['hs_pos'] == 3: ahint(k, 20, 0, 's49')
            sum4x8(k, P0, 14, 1408)
            softmax8(k, P0, T0, T1)
            k(f"buffer_store_dwordx4 v[{P0+8}:{P0+11}], v15, s[8:11], s43 offen sc1")
        stamp(k, 4)
        sx = lambda kt, tt: [36, 40, 44, 64, 68, 72][kt * 2 + tt]
        k(f"s_waitcnt vmcnt({2 if w == 0 else 0})")
        keys32 = [f"a[{KX}:{KX+3}]", f"a[{KX+4}:{KX+7}]", f"v[{XA}:{XA+3}]"]
        keys16 = [f"a[{KX+8}:{KX+9}]", f"a[{KX+10}:{KX+11}]", f"v[{XB}:{XB+1}]"]
        for tt in range(2):
            for kt in range(3):
                a = sx(kt, tt)
                k(f"{M32} v[{a}:{a+3}], {keys32[kt]}, v[{QX+4*tt}:{QX+4*tt+3}], 0")
        for tt in range(2):
            for kt in range(3):
                a = sx(kt, tt)
                k(f"{M16} v[{a}:{a+3}], {keys16[kt]}, v[{QX+8+2*tt}:{QX+8+2*tt+1}], v[{a}:{a+3}]")
        for tt in range(2):
            k(f"ds_write_b128 v16, v[{sx(0,tt)}:{sx(0,tt)+3}] offset:{tt*2816}")
            k(f"ds_write_b128 v16, v[{sx(1,tt)}:{sx(1,tt)+3}] offset:{tt*2816+16}")
            k(f"ds_write_b128 v{17+tt}, v[{sx(2,tt)}:{sx(2,tt)+3}]")
        k("s_add_u32 s40, s40, 1")
        k(f"s_add_u32 s41, s41, {QF_SEG}")
        k(f"s_add_u32 s45, s45, {QF_SEG}")
        k(f"s_add_u32 s47, s37, {O_MB}"); k(f"s_add_u32 s48, s37, {O_HR}"); k(f"s_xor_b32 s42, s37, 0x2000")
        blk_base(k, 's40', 's37')
        k(f"s_add_u32 s43, s37, {O_PB}"); k(f"s_add_u32 s49, s37, {O_HS}")
        k("s_waitcnt lgkmcnt(0)")
        k("s_barrier")
        stamp(k, 5)
        if CFG['stamp']:
            k("s_sub_u32 s40, s40, 1"); stamp_out(k, 6, 46); k("s_add_u32 s40, s40, 1")
        k("s_cmp_lt_u32 s40, 64")
        k(f"s_cbranch_scc1 {k.ref('s_step' + sf)}")
        if w < 3: k(f"s_branch {k.ref('s_end')}")
    for w in range(4): loop(w)
    k.lab('s_end')
    px_tail(80, 81)
    event(k, 3, 48)
    next_layer(k, 's_layer')

def role_V2(k):
    L_M, L_V, L_WO, L_ST = 0, 10240, 16384, 16384 + 73728
    RS1, RS2 = 400, 656
    MA, VACC, VA, STG = 16, 56, 68, 80
    def wv(t, c): return 'a', t * 80 + c * 8
    def wo(t, c):
        i = t * 3 + c
        if i < 2: return 'a', 240 + 8 * i
        return 'v', 104 + 8 * (i - 2)
    k("s_sub_u32 s44, s2, 32")
    k.ptr(KA_WV, 6); k.ptr(KA_WO, 24); k.ptr(KA_MEM0, 26)
    k("s_waitcnt lgkmcnt(0)")
    k.srd(12, 6, D * HD * 2); k.srd(16, 24, D * HD * 2); k.srd(20, 26, 8 * 640 * 2)
    GO, LO, DAT = 4, 10, 24
    stage_offsets(k, 6, 24, HD * 2, RS1, L_ST, GO, LO, 16)
    tr_base(k, 16, RS1, L_ST, 17)
    k("s_mul_i32 s24, s3, 96")
    k("v_add_u32 v16, s24, v16")
    k(f"s_mul_i32 s45, s44, 384")
    def loads(c):
        d = DAT + 24 * (c % 3)
        k(f"s_add_u32 s46, s45, {c * 64 * HD * 2}")
        for i in range(6):
            k(f"buffer_load_dwordx4 v[{d+4*i}:{d+4*i+3}], v{GO+i}, s[12:15], s46 offen")
    loads(0); loads(1)
    for c in range(10):
        d = DAT + 24 * (c % 3)
        k(f"s_waitcnt vmcnt({6 if c + 1 < 10 else 0})")
        for i in range(6): k(f"ds_write_b128 v{LO+i}, v[{d+4*i}:{d+4*i+3}]")
        if c + 2 < 10: loads(c + 2)
        k("s_waitcnt lgkmcnt(0)")
        k("s_barrier")
        for t in range(3):
            kind, r = wv(t, c)
            tr_frag(k, r, kind, 16, RS1, 32 * t)
        k("s_waitcnt lgkmcnt(0)")
        k("s_barrier")
    GO, LO, DAT = 4, 14, 24
    stage_offsets(k, 10, 40, 1280, RS2, L_ST, GO, LO, 64)
    tr_base(k, 72, RS2, L_ST, 64)
    k("s_and_b32 s24, s3, 1"); k("s_mul_i32 s24, s24, 320")
    k("v_add_u32 v72, s24, v72")
    k("v_lshlrev_b32 v73, 4, v1")
    k(f"s_mul_i32 s24, s3, 18432"); k(f"s_add_u32 s24, s24, {L_WO}")
    k("v_add_u32 v73, s24, v73")
    k(f"s_mul_i32 s45, s44, {192*1280}")
    for c in range(3):
        for hf in range(2):
            k(f"s_add_u32 s46, s45, {c*64*1280 + hf*640}")
            for i in range(10):
                k(f"buffer_load_dwordx4 v[{DAT+4*i}:{DAT+4*i+3}], v{GO+i}, s[16:19], s46 offen")
            k("s_waitcnt vmcnt(0)")
            for i in range(10): k(f"ds_write_b128 v{LO+i}, v[{DAT+4*i}:{DAT+4*i+3}]")
            k("s_waitcnt lgkmcnt(0)")
            k("s_barrier")
            l = k.new('wo')
            k("s_lshr_b32 s24, s3, 1")
            k(f"s_cmp_eq_u32 s24, {hf}")
            k(f"s_cbranch_scc0 {k.ref(l)}")
            for t in range(10):
                if t < 7:
                    kind, r = wo(t, c)
                    tr_frag(k, r, kind, 72, RS2, 32 * t)
                else:
                    tr_frag(k, 64, 'v', 72, RS2, 32 * t)
                    k("s_waitcnt lgkmcnt(0)")
                    o = ((t - 7) * 3 + c) * 2048
                    k(f"ds_write_b128 v73, v[64:67] offset:{o}")
                    k(f"ds_write_b128 v73, v[68:71] offset:{o+1024}")
                    k("s_waitcnt lgkmcnt(0)")
            k("s_waitcnt lgkmcnt(0)")
            k.lab(l)
            k("s_barrier")
    k("v_mov_b32 v6, v73")
    k("v_mov_b32 v4, 0x4444"); k("v_mov_b32 v5, 0xeeee")
    k("v_cmp_gt_u32 vcc, 8, v2")
    k("v_cndmask_b32 v4, v5, v4, vcc")
    k("v_lshlrev_b32 v5, 4, v1")
    k("s_lshl_b32 s24, s3, 10")
    k("v_add_u32 v7, s24, v5")
    k("s_lshl_b32 s24, s3, 9"); k("s_add_u32 s24, s24, 8192")
    k("v_lshlrev_b32 v8, 3, v1")
    k("v_add_u32 v8, s24, v8")
    k("v_and_b32 v64, 7, v2"); k("v_lshlrev_b32 v9, 5, v64")
    k("v_lshrrev_b32 v64, 3, v2"); k("v_lshl_add_u32 v9, v64, 4, v9")
    k("v_and_b32 v64, 1, v3"); k("v_lshl_add_u32 v9, v64, 3, v9")
    k(f"s_mul_i32 s24, s3, 768"); k(f"s_add_u32 s24, s24, {L_V}")
    k("v_add_u32 v9, s24, v9")
    k("v_lshrrev_b32 v65, 1, v3")
    k("v_lshl_add_u32 v10, v65, 8, v9")
    k("v_lshrrev_b32 v64, 2, v2"); k("v_lshlrev_b32 v11, 5, v64")
    k("v_and_b32 v64, 3, v2"); k("v_lshl_add_u32 v11, v64, 3, v11")
    k("v_lshl_add_u32 v11, v3, 8, v11")
    k(f"v_add_u32 v11, {L_V}, v11")
    k("s_mul_i32 s24, s3, 10"); k("s_lshl_b32 s24, s24, 14"); k("s_lshl_b32 s25, s44, 8"); k("s_add_u32 s24, s24, s25")
    k("v_lshlrev_b32 v14, 14, v3")
    k("v_lshl_add_u32 v14, v2, 4, v14")
    k("v_add_u32 v14, s24, v14")
    k("v_lshrrev_b32 v64, 1, v3")
    k("v_lshlrev_b32 v15, 14, v64")
    k("v_lshl_add_u32 v15, v2, 4, v15")
    k("v_add_u32 v15, s24, v15")
    k(f"v_add_u32 v15, {8*16384}, v15")
    k("v_and_b32 v64, 1, v3")
    k("v_cmp_eq_u32 vcc, 0, v64")
    k(f"v_mov_b32 v64, {OOB}")
    k("v_cndmask_b32 v15, v64, v15, vcc")
    aprobe_addr(k, 12, 's2', RH_M)
    k("v_mov_b32 v0, 1")
    event(k, 1, 64)
    k.lab('v_layer')
    layer_bases(k)
    m0_image(k, 20, 64)
    k("s_mov_b32 s40, 0")
    k("s_mov_b32 s37, s93")
    k(f"s_add_u32 s43, s93, {O_VOM}")
    ensure_clear(k, 'v_ec0', 64, 's40')
    for r in range(16, 68): k(f"v_mov_b32 v{r}, 0")
    k("s_waitcnt lgkmcnt(0)")
    k("s_barrier")
    k("ds_read_b128 v[68:71], v7"); k("ds_read_b128 v[72:75], v7 offset:4096")
    k("s_waitcnt lgkmcnt(0)")
    for w in range(3):
        k(f"s_cmp_eq_u32 s3, {w}"); k(f"s_cbranch_scc1 {k.ref('v_gow' + str(w))}")
    k(f"s_branch {k.ref('v_gow3')}")
    SMF = "v_smfmac_f32_16x16x64_bf16"
    def loop(w):
        sf = 'w' + str(w)
        k.lab('v_step' + sf)
        stamp(k, 0)
        for r in range(16, 68): k(f"v_mov_b32 v{r}, 0")
        loads_ = [f"buffer_load_dwordx4 v[68:71], v7, s[8:11], s47 offen sc1",
                  f"buffer_load_dwordx4 v[72:75], v7, s[8:11], s48 offen sc1",
                  f"buffer_load_dwordx2 v[76:77], v8, s[8:11], s50 offen sc1"]
        k("s_add_u32 s48, s47, 4096"); k("s_add_u32 s50, s47, 8192")
        ensure_clear(k, 'v_ec' + sf, 78, 's40')
        aprobe(k, 'v_pr' + sf, 12, 's45', CFG['tgt_m'], [80, 81, 82, 83], CFG['pd_m'], CFG['pdep'], CFG['dly_v'])
        stamp(k, 5)
        for l in loads_: k(l)
        shot_check(k, 'v_pm' + sf, loads_, range(68, 78), 104 - 1, 0, CFG['sl_m'])
        stamp(k, 1)
        k(f"ds_write_b128 v7, v[68:71]")
        k(f"ds_write_b128 v7, v[72:75] offset:4096")
        k(f"ds_write_b64 v8, v[76:77]")
        k.lab('v_go' + sf)
        lg = LG(k)
        own = [w, 4 + w]; oth = [c for c in range(10) if c not in own]
        SL = [80, 84, 88, 92, 96, 100, 76, 68]
        def rdA(j):
            lg.issue(('A', j), f"ds_read_b128 v[{SL[j]}:{SL[j]+3}], v5 offset:{oth[j]*1024}")
        def sm(t, c, a):
            kind, r = wv(t, c)
            k(f"{SMF} v[{VACC+4*t}:{VACC+4*t+3}], v[{a}:{a+3}], {kind}[{r}:{r+7}], v4")
        for t in range(3): sm(t, own[0], 68)
        k("s_waitcnt lgkmcnt(0)")
        k("s_barrier")
        for j in range(8): rdA(j)
        for t in (2, 0, 1): sm(t, own[1], 72)
        for j in range(8):
            lg.wait(('A', j)); sm(2, oth[j], SL[j])
        E = [None] * 5
        E += [f"v_mov_b32 v{72+r}, v{VACC+8+r}" for r in range(4)] + [None]
        E += [f"v_permlane32_swap_b32 v{VACC+8+r}, v{72+r}" for r in range(4)]
        E += [f"v_add_f32 v{VACC+8+r}, v{VACC+8+r}, v{72+r}" for r in range(4)]
        E += [f"v_cvt_pk_bf16_f32 v72, v{VACC+8}, v{VACC+9}", f"v_cvt_pk_bf16_f32 v73, v{VACC+10}, v{VACC+11}"]
        E += [('x', f"ds_write_b64 v9, v[72:73] offset:512")]
        def extra(n):
            for _ in range(n):
                if E:
                    t_ = E.pop(0)
                    if isinstance(t_, tuple): lg.issue(*t_)
                    elif t_: k(t_)
        for j in range(8):
            sm(0, oth[j], SL[j]); extra(2)
            sm(1, oth[j], SL[j]); extra(2)
        extra(100)
        stamp(k, 2)
        for r in range(4): k(f"v_permlane32_swap_b32 v{VACC+r}, v{VACC+4+r}")
        for r in range(4): k(f"v_add_f32 v{VACC+r}, v{VACC+r}, v{VACC+4+r}")
        k(f"v_cvt_pk_bf16_f32 v{VA}, v{VACC}, v{VACC+1}")
        k(f"v_cvt_pk_bf16_f32 v{VA+1}, v{VACC+2}, v{VACC+3}")
        lg.issue('x', f"ds_write_b64 v10, v[{VA}:{VA+1}]")
        lg.all()
        k("s_barrier")
        for c in range(3):
            lg.issue(('V', c), f"ds_read_b64_tr_b16 v[{VA+4*c}:{VA+4*c+1}], v11 offset:{c*1024}")
            lg.issue(('V', c), f"ds_read_b64_tr_b16 v[{VA+4*c+2}:{VA+4*c+3}], v11 offset:{c*1024+128}")
        def rdWo(t, c, slot):
            b = STG + 8 * slot; o = ((t - 7) * 3 + c) * 2048
            lg.issue(('W', t, c), f"ds_read_b128 v[{b}:{b+3}], v6 offset:{o}")
            lg.issue(('W', t, c), f"ds_read_b128 v[{b+4}:{b+7}], v6 offset:{o+1024}")
        for c in range(3): rdWo(7, c, c)
        stamp(k, 3)
        acc = lambda t: MA + 4 * t
        def mm(t, c, B):
            k(f"{SMF} v[{acc(t)}:{acc(t)+3}], v[{VA+4*c}:{VA+4*c+3}], {B}, v4")
        def B_reg(t, c):
            kind, r = wo(t, c); return f"{kind}[{r}:{r+7}]"
        OUT = 56
        def epi(T, o):
            L = []
            t0, t1, t2, t3 = T
            for (x, y) in ((t0, t2), (t1, t3)):
                for r in range(4): L.append(f"v_permlane32_swap_b32 v{acc(x)+r}, v{acc(y)+r}")
                for r in range(4): L.append(f"v_add_f32 v{acc(x)+r}, v{acc(x)+r}, v{acc(y)+r}")
            L.append(f"v_cvt_pk_bf16_f32 v{o}, v{acc(t0)}, v{acc(t0)+1}")
            L.append(f"v_cvt_pk_bf16_f32 v{o+1}, v{acc(t0)+2}, v{acc(t0)+3}")
            L.append(f"v_cvt_pk_bf16_f32 v{o+2}, v{acc(t1)}, v{acc(t1)+1}")
            L.append(f"v_cvt_pk_bf16_f32 v{o+3}, v{acc(t1)+2}, v{acc(t1)+3}")
            L.append(None)
            L.append(f"v_permlane16_swap_b32 v{o}, v{o+2}")
            L.append(f"v_permlane16_swap_b32 v{o+1}, v{o+3}")
            for r in range(4): L.append(f"v_min_u32 v{o+r}, -2, v{o+r}")
            return L
        for c in range(3):
            lg.wait(('V', c))
            for t in range(4): mm(t, c, B_reg(t, c))
        E += [None, None] + epi([0, 1, 2, 3], OUT) + [f"buffer_store_dwordx4 v[{OUT}:{OUT+3}], v14, s[8:11], s43 offen sc1"]
        for c in range(3):
            for t in (4, 5, 6): mm(t, c, B_reg(t, c)); extra(2)
            lg.wait(('W', 7, c))
            mm(7, c, f"v[{STG+8*c}:{STG+8*c+7}]"); extra(2)
            rdWo(8, c, c)
        extra(100)
        k("s_add_u32 s49, s43, 65536")
        E += [None] + epi([4, 5, 6, 7], OUT + 4) + [f"buffer_store_dwordx4 v[{OUT+4}:{OUT+7}], v14, s[8:11], s49 offen sc1"]
        for c in range(3):
            lg.wait(('W', 8, c))
            mm(8, c, f"v[{STG+8*c}:{STG+8*c+7}]"); extra(CFG['v_x8'])
            rdWo(9, c, c)
        extra(CFG['v_x9'])
        for c in range(3):
            lg.wait(('W', 9, c))
            mm(9, c, f"v[{STG+8*c}:{STG+8*c+7}]"); extra(3)
        extra(100)
        o = OUT + 8
        for r in range(4): k(f"v_permlane32_swap_b32 v{acc(8)+r}, v{acc(9)+r}")
        for r in range(4): k(f"v_add_f32 v{acc(8)+r}, v{acc(8)+r}, v{acc(9)+r}")
        k(f"v_cvt_pk_bf16_f32 v{o}, v{acc(8)}, v{acc(8)+1}")
        k(f"v_cvt_pk_bf16_f32 v{o+1}, v{acc(8)+2}, v{acc(8)+3}")
        k(f"v_mov_b32 v{o+2}, v{o}")
        k(f"v_mov_b32 v{o+3}, v{o+1}")
        k(f"v_permlane16_swap_b32 v{o}, v{o+2}")
        k(f"v_permlane16_swap_b32 v{o+1}, v{o+3}")
        for r in range(4): k(f"v_min_u32 v{o+r}, -2, v{o+r}")
        k(f"buffer_store_dwordx4 v[{o}:{o+3}], v15, s[8:11], s43 offen sc1")
        stamp(k, 4)
        stamp_out(k, 6, 46)
        k("s_add_u32 s40, s40, 1")
        k(f"s_add_u32 s47, s37, {O_MB}"); k(f"s_add_u32 s45, s37, {O_HR}")
        blk_base(k, 's40', 's37')
        k(f"s_add_u32 s43, s37, {O_VOM}")
        k("s_cmp_lt_u32 s40, 64")
        k(f"s_cbranch_scc1 {k.ref('v_step' + sf)}")
        if w < 3: k(f"s_branch {k.ref('v_end')}")
    for w in range(4): loop(w)
    k.lab('v_end')
    event(k, 3, 64)
    next_layer(k, 'v_layer')

def role_R(k):
    BX, BN, PX, PM, VM, A1, A2 = 16, 48, 80, 96, 100, 108, 112
    TQ = 204
    k.lab('r_top')
    k("s_barrier")
    lk = k.new('rk')
    k("s_sub_u32 s24, s2, 64")
    k("s_cmp_ge_u32 s24, 24"); k(f"s_cbranch_scc1 {k.ref(lk)}")
    k("s_and_b32 s44, s24, 7"); k("s_lshr_b32 s45, s24, 3")
    k("s_cmp_eq_u32 s92, 0"); k("s_cselect_b32 s46, 32, 2")
    A.role_K2(k, Hooks())
    event(k, 5, 14)
    k.lab(lk)
    k("s_sub_u32 s44, s2, 64")
    k("v_lshlrev_b32 v5, 4, v1")
    k("s_lshl_b32 s24, s44, 15"); k("s_lshl_b32 s25, s3, 13"); k("s_add_u32 s24, s24, s25")
    k("v_add_u32 v6, s24, v5")
    k("v_add_u32 v7, 4096, v6")
    k("s_lshl_b32 s24, s3, 12"); k("s_and_b32 s25, s24, 0x2000"); k("s_add_u32 s24, s24, s25")
    k("v_add_u32 v8, s24, v5")
    k("s_lshl_b32 s24, s3, 10"); k("s_add_u32 s24, s24, 32768")
    k("v_add_u32 v9, s24, v5")
    k("s_lshl_b32 s24, s44, 14"); k("s_lshl_b32 s25, s3, 11"); k("s_add_u32 s24, s24, s25")
    k("v_add_u32 v10, s24, v5")
    k(f"v_and_b32 v{TQ}, 7, v2"); k(f"v_mul_u32_u24 v11, 80, v{TQ}")
    k("v_lshl_add_u32 v11, v3, 4, v11")
    k("s_mul_i32 s24, s3, 640")
    k("v_add_u32 v11, s24, v11")
    k(f"v_add_u32 v{TQ}, 8192, v5")
    k("v_cmp_gt_u32 vcc, 8, v2")
    k(f"v_cndmask_b32 v11, v{TQ}, v11, vcc")
    k(f"v_and_b32 v{TQ}, 7, v2"); k(f"v_mul_u32_u24 v12, 80, v{TQ}")
    k(f"v_lshrrev_b32 v{TQ}, 3, v2"); k(f"v_lshl_add_u32 v12, v{TQ}, 5, v12")
    k("v_lshlrev_b32 v13, 4, v2")
    k("s_lshl_b32 s24, s44, 8"); k("s_and_b32 s25, s24, 0x2000"); k("s_add_u32 s24, s24, s25")
    k("v_add_u32 v13, s24, v13")
    k(f"v_mov_b32 v{TQ}, {OOB}")
    k(f"v_cmp_gt_u32 vcc, 1, v3")
    k(f"v_cndmask_b32 v13, v{TQ}, v13, vcc")
    k("v_cmp_le_u32 s[50:51], 8, v2")
    k("s_and_b32 s25, s44, 15"); k("s_lshr_b32 s25, s25, 2")
    k("s_sub_u32 s26, s44, 32"); k("s_lshr_b32 s26, s26, 1")
    k("s_cmp_ge_u32 s44, 32"); k("s_cselect_b32 s25, s26, s25")
    ahint_addr(k, 120, TQ, 's25', RH_M, False)
    aprobe_addr(k, 125, 's44', RH_P)
    k("v_mov_b32 v122, 12288")
    k("v_mov_b32 v123, 0")
    k("s_barrier")
    k("ds_write_b32 v122, v123")
    k("v_mov_b32 v123, 1")
    k("s_waitcnt lgkmcnt(0)")
    k("s_barrier")
    layer_bases(k)
    k("s_mov_b32 s40, 0")
    k(f"s_mov_b32 s41, {WS_VOX}")
    k(f"s_add_u32 s45, s93, {O_HS}")
    k(f"s_add_u32 s46, s93, {O_HR}")
    k(f"s_add_u32 s43, s93, {O_PB}")
    k(f"s_add_u32 s42, s93, {O_VOM}")
    k(f"s_add_u32 s47, s93, {O_MB}")
    if CFG['rv_off']:
        k("s_cmp_eq_u32 s92, 1"); k(f"s_cselect_b32 s24, {OOB}, 0"); k("v_or_b32 v6, s24, v6"); k("v_or_b32 v7, s24, v7")
    def vox_loads():
        for q in range(4):
            k(f"buffer_load_dwordx4 v[{BN+4*q}:{BN+4*q+3}], v6, s[8:11], s41 offen offset:{q*1024} sc1")
        for q in range(4):
            k(f"buffer_load_dwordx4 v[{BN+16+4*q}:{BN+16+4*q+3}], v7, s[8:11], s41 offen offset:{q*1024} sc1")
        k(f"s_add_u32 s41, s41, {VOX_SEG}")
    k("v_and_b32 v252, 7, v1")
    k("v_lshlrev_b32 v252, 7, v252")
    k(f"s_lshl_b32 s24, s3, 10"); k(f"s_add_u32 s24, s24, {3*4096}"); k("s_add_u32 s24, s24, s94")
    k("v_add_u32 v252, s24, v252")
    k("s_mov_b32 s62, -1"); k("s_mov_b32 s63, 1")
    ensure(k, 'r_en0', 8, 252, 253)
    vox_loads()
    event(k, 2, 204)
    k.lab('r_step')
    k("s_waitcnt vmcnt(0)")
    for r in range(32): k(f"v_mov_b32 v{BX+r}, v{BN+r}")
    stamp(k, 0)
    loads_ = [f"buffer_load_dwordx4 v[{PX+4*q}:{PX+4*q+3}], v8, s[8:11], s43 offen offset:{q*1024} sc1" for q in range(4)]
    loads_ += [f"buffer_load_dwordx4 v[{PM}:{PM+3}], v9, s[8:11], s43 offen sc1"]
    loads_ += [f"buffer_load_dwordx4 v[{VM+4*q}:{VM+4*q+3}], v10, s[8:11], s42 offen offset:{q*1024} sc1" for q in range(2)]
    ensure_clear(k, 'r_ec', 253, 's40')
    aprobe(k, 'r_pr', 125, 's45', CFG['tgt_p'], [116, 117, 118, 119], CFG['pd_p'], CFG['pdep'], CFG['dly_p'])
    stamp(k, 4)
    loads_ = loads_[5:] + loads_[:5]
    for l in loads_: k(l)
    if CFG['hr_pos'] == 0:
        k("s_mov_b64 exec, 1")
        k("ds_add_rtn_u32 v124, v122, v123")
        k("s_mov_b64 exec, -1")
        if CFG['dly_hr']: k(f"s_sleep {CFG['dly_hr']}")
        k("s_waitcnt lgkmcnt(0)")
        k("v_readfirstlane_b32 s24, v124")
        k("s_and_b32 s24, s24, 3")
        k("s_cmp_eq_u32 s24, 3"); k(f"s_cselect_b32 s24, 0, {OOB}")
        k("v_or_b32 v126, s24, v120")
        ahint(k, 126, 123, 's46')
    shot_check(k, 'r_p', loads_, range(PX, VM + 8), TQ, 1 if CFG['hr_pos'] == 0 else 0, CFG['sl_p'])
    if CFG['hr_pos'] == 1:
        k("s_mov_b64 exec, 1")
        k("ds_add_rtn_u32 v124, v122, v123")
        k("s_mov_b64 exec, -1")
    stamp(k, 1)
    k(f"v_mfma_f32_16x16x32_bf16 v[{A1}:{A1+3}], v[{VM}:{VM+3}], v[{PM}:{PM+3}], 0")
    k(f"v_mfma_f32_16x16x32_bf16 v[{A2}:{A2+3}], v[{VM+4}:{VM+7}], v[{PM}:{PM+3}], 0")
    for q in range(4):
        k(f"v_mfma_f32_16x16x32_bf16 v[{A1}:{A1+3}], v[{BX+8*q}:{BX+8*q+3}], v[{PX+4*q}:{PX+4*q+3}], v[{A1}:{A1+3}]")
        k(f"v_mfma_f32_16x16x32_bf16 v[{A2}:{A2+3}], v[{BX+8*q+4}:{BX+8*q+7}], v[{PX+4*q}:{PX+4*q+3}], v[{A2}:{A2+3}]")
        if q == 0 and CFG['hr_pos'] == 1:
            lh = k.new('nh')
            k("s_waitcnt lgkmcnt(0)")
            k("v_readfirstlane_b32 s24, v124")
            k("s_and_b32 s24, s24, 3")
            k(f"s_cmp_eq_u32 s24, {CFG['hr_wave']}")
            k(f"s_cbranch_scc0 {k.ref(lh)}")
            ahint(k, 120, 123, 's46')
            k.lab(lh)
    k("s_and_b32 s24, s40, 1"); k("s_mul_i32 s24, s24, 2560")
    k("v_add_u32 v14, s24, v11")
    k("v_add_u32 v15, s24, v12")
    for r in range(4): k(f"v_cndmask_b32 v{A1+r}, v{A1+r}, v{A2+r}, s[50:51]")
    for r in range(4): k(f"v_add_f32 v{A1+r}, v{A1+r}, v{A1+r} row_ror:8 row_mask:0xf bank_mask:0xf")
    k(f"ds_write_b128 v14, v[{A1}:{A1+3}]")
    k("s_waitcnt lgkmcnt(0)")
    k("s_barrier")
    stamp(k, 2)
    l = k.new('np')
    k("s_cmp_eq_u32 s3, 0")
    k(f"s_cbranch_scc0 {k.ref(l)}")
    Q0 = 220
    sum4x8(k, Q0, 15, 640)
    for q in range(4): k(f"v_cvt_pk_bf16_f32 v{Q0+8+q}, v{Q0+2*q}, v{Q0+2*q+1}")
    for q in range(4): k(f"v_min_u32 v{Q0+8+q}, -2, v{Q0+8+q}")
    k(f"buffer_store_dwordx4 v[{Q0+8}:{Q0+11}], v13, s[8:11], s47 offen sc1")
    k.lab(l)
    if CFG['xflag']:
        l = k.new('xf')
        k("s_cmp_eq_u32 s3, 1"); k(f"s_cbranch_scc0 {k.ref(l)}")
        k("s_cmp_eq_u32 s44, 39"); k(f"s_cbranch_scc0 {k.ref(l)}")
        k("s_lshl_b32 s24, s92, 6"); k("s_add_u32 s24, s24, s40"); k("s_add_u32 s24, s24, 1")
        k(f"v_lshlrev_b32 v{TQ}, 7, v1"); k(f"v_add_u32 v{TQ}, {WS_FLG + F_S}, v{TQ}")
        k(f"v_mov_b32 v{TQ+1}, {OOB}"); k("v_cmp_le_u32 vcc, 8, v1"); k(f"v_cndmask_b32 v{TQ}, v{TQ}, v{TQ+1}, vcc")
        k(f"v_mov_b32 v{TQ+1}, s24")
        k(f"buffer_store_dword v{TQ+1}, v{TQ}, s[8:11], 0 offen sc1")
        k.lab(l)
    stamp(k, 3)
    k("s_add_u32 s63, s40, 2"); k("s_min_u32 s63, s63, 64")
    if CFG['dly_vox']: k(f"s_sleep {CFG['dly_vox']}")
    ensure(k, 'r_en', 8, 252, 253)
    vox_loads()
    stamp(k, 5)
    stamp_out(k, 6, TQ)
    k("s_add_u32 s40, s40, 1")
    blk_base(k, 's40', 's37')
    for sreg, o_ in (('s42', O_VOM), ('s43', O_PB), ('s47', O_MB), ('s45', O_HS), ('s46', O_HR)): k(f"s_add_u32 {sreg}, s37, {o_}")
    k("s_cmp_lt_u32 s40, 64")
    k(f"s_cbranch_scc1 {k.ref('r_step')}")
    k("s_waitcnt vmcnt(0)")
    event(k, 3, 204)
    next_layer(k, 'r_top')
def flag_pub(k, val):
    l = k.new('fp')
    k("s_cmp_eq_u32 s3, 0")
    k(f"s_cbranch_scc0 {k.ref(l)}")
    k(f"v_mov_b32 v15, {val}")
    k("buffer_store_dword v15, v14, s[8:11], 0 offen sc1")
    k.lab(l)

def flag_addr(k, role_sreg_or_const):
    if isinstance(role_sreg_or_const, int): k(f"s_mov_b32 s24, {role_sreg_or_const * 4096}")
    else: k(f"s_lshl_b32 s24, {role_sreg_or_const}, 12")
    k("s_lshl_b32 s25, s44, 7"); k("s_add_u32 s24, s24, s25"); k(f"s_add_u32 s24, s24, s94")
    k("v_mov_b32 v14, s24")
    k(f"v_mov_b32 v15, {OOB}")
    k("v_cmp_eq_u32 vcc, 0, v1")
    k("v_cndmask_b32 v14, v15, v14, vcc")

X_L_O = 83968
def x_init(k):
    TQ = 192
    k("s_sub_u32 s70, s2, 104")
    k("s_mul_i32 s71, s70, 205"); k("s_lshr_b32 s71, s71, 12")
    k("s_mul_i32 s24, s71, 20"); k("s_sub_u32 s70, s70, s24")
    k("s_cmp_lt_u32 s71, 4"); k("s_cselect_b32 s64, s71, 64")
    if CFG['x_off']: k("s_cmp_eq_u32 s92, 1"); k("s_cselect_b32 s64, 64, s64")
    k("s_lshl_b32 s24, s70, 16"); k("s_lshl_b32 s25, s3, 13"); k("s_add_u32 s24, s24, s25")
    k("v_add_u32 v240, s24, v5")
    k("v_add_u32 v241, 4096, v240")
    k("s_lshl_b32 s24, s70, 15"); k("s_lshl_b32 s25, s3, 11"); k("s_add_u32 s24, s24, s25")
    k("v_add_u32 v242, s24, v5")
    k("s_lshl_b32 s24, s3, 15")
    k(f"v_add_u32 v{TQ+1}, s24, v5")
    for jj in range(4): k(f"v_add_u32 v{212+jj}, {(jj >> 1)*16384 + (jj & 1)*4096}, v{TQ+1}")
    k("s_lshl_b32 s24, s3, 12"); k("s_and_b32 s25, s24, 0x2000"); k("s_add_u32 s24, s24, s25"); k("s_add_u32 s24, s24, 131072")
    k("v_add_u32 v216, s24, v5")
    k(f"s_lshl_b32 s24, s3, 12"); k(f"s_add_u32 s24, s24, {X_L_O}")
    k("v_add_u32 v217, s24, v5")
    k(f"s_and_b32 s24, s3, 1"); k("s_lshl_b32 s24, s24, 10"); k(f"s_add_u32 s24, s24, {X_L_O}")
    k("v_add_u32 v218, s24, v5")
    k("s_and_b32 s24, s3, 1"); k("s_mul_i32 s24, s24, 20480"); k("s_lshl_b32 s25, s70, 10"); k("s_add_u32 s24, s24, s25")
    k("v_add_u32 v219, s24, v5")
    k("s_and_b32 s24, s3, 1"); k("s_lshl_b32 s24, s24, 4")
    k("v_add_u32 v243, s24, v2")
    k("v_mul_u32_u24 v243, 1280, v243")
    k("v_lshl_add_u32 v243, v3, 3, v243")
    k("s_lshl_b32 s24, s70, 6")
    k("v_add_u32 v243, s24, v243")
    k.ptr(KA_OUT, 26); k("s_waitcnt lgkmcnt(0)"); k.srd(12, 26, S * D * 2)
    k(f"s_mul_i32 s65, s71, {VOX_SEG}"); k(f"s_add_u32 s65, s65, {WS_VOX}")
    blk_base(k, 's71', 's66')
    k("s_xor_b32 s67, s66, 0x2000")
    assert O_VOM == 0 and O_PX == 0
    k(f"s_mul_i32 s68, s71, 40960")
    k("v_and_b32 v252, 7, v1")
    k("v_lshlrev_b32 v252, 7, v252")
    k(f"s_lshl_b32 s24, s3, 10"); k(f"s_add_u32 s24, s24, {3*4096}"); k("s_add_u32 s24, s24, s94")
    k("v_add_u32 v252, s24, v252")
    k("s_mov_b32 s69, -1")
    k("s_lshl_b32 s24, s71, 7"); k("s_lshl_b32 s25, s70, 2"); k("s_add_u32 s24, s24, s25"); k(f"s_add_u32 s24, s24, {WS_FLG + F_X}")
    k("s_cmp_eq_u32 s3, 0"); k(f"s_cselect_b32 s24, s24, {OOB}")
    k("v_mov_b32 v245, s24"); k(f"v_mov_b32 v246, {OOB}"); k("v_cmp_eq_u32 vcc, 0, v1"); k("v_cndmask_b32 v245, v246, v245, vcc")
    k("s_mov_b32 s79, -1")
    k("s_mov_b32 s76, -1")

def x_pending(k):
    k("s_cmp_ge_i32 s79, 0"); k(f"s_cselect_b32 s24, 0, {OOB}")
    k("v_or_b32 v246, s24, v245"); k("v_mov_b32 v247, s79")
    k("buffer_store_dword v247, v246, s[8:11], 0 offen sc1")
    k("s_mov_b32 s79, -1")

def x_iter(k):
    BX, XP, XM, VM, OA, TQ, RES, Q0 = 16, 80, 144, 160, 176, 192, 196, 16
    k("s_add_u32 s63, s64, 1")
    ensure(k, 'x_en', 8, 252, 253, known='s69')
    ensure_clear(k, 'x_ec', 253, 's64')
    def xs_addr(k, dst):
        k("s_and_b32 s24, s2, 7"); k("s_lshl_b32 s24, s24, 7"); k(f"s_add_u32 s24, s24, {WS_FLG + F_S}"); k(f"v_mov_b32 v{dst}, s24")
    k("s_add_u32 s52, s65, 32768")
    for rr in range(2):
        so = 's65' if rr == 0 else 's52'
        for q in range(8):
            r = BX + rr * 32 + 4 * q
            k(f"buffer_load_dwordx4 v[{r}:{r+3}], v{240 + q//4}, s[8:11], {so} offen offset:{(q%4)*1024} sc1")
    k("s_add_u32 s24, s68, s73")
    k(f"buffer_load_dwordx4 v[{RES}:{RES+3}], v219, s[8:11], s24 offen sc1")
    loads_ = []
    for j in range(8):
        for tt in range(2):
            r = XP + (j * 2 + tt) * 4
            loads_.append(f"buffer_load_dwordx4 v[{r}:{r+3}], v{212 + j//2}, s[8:11], s67 offen offset:{(j%2)*2048 + tt*1024} sc1")
    for q in range(2):
        for tt in range(2):
            r = XM + (q * 2 + tt) * 4
            loads_.append(f"buffer_load_dwordx4 v[{r}:{r+3}], v216, s[8:11], s67 offen offset:{q*2048 + tt*1024} sc1")
    if CFG['xflag']:
        k("s_lshl_b32 s77, s92, 6"); k("s_add_u32 s77, s77, s64"); k("s_add_u32 s77, s77, 1")
        ensure(k, 'x_cs', 1, xs_addr, 253, need='s77', known='s76', sleep=CFG['sl_xc'])
    else:
        poll(k, 'x_p0', loads_[15:16], range(XP + 60, XP + 64), TQ, CFG['sl_x0'], 0)
    k("s_add_u32 s53, s66, 16384")
    for rr in range(2):
        so = 's66' if rr == 0 else 's53'
        for q in range(2):
            r = VM + rr * 8 + 4 * q
            loads_.append(f"buffer_load_dwordx4 v[{r}:{r+3}], v242, s[8:11], {so} offen offset:{q*1024} sc1")
    poll(k, 'x_p1', loads_, range(XP, VM + 16), TQ, CFG['sl_x'], 0)
    oa = lambda rr, tt: OA + (rr * 2 + tt) * 4
    for j in range(8):
        for rr in range(2):
            for tt in range(2):
                a = oa(rr, tt); r = XP + (j * 2 + tt) * 4; b = BX + rr * 32 + 4 * j
                c = f"v[{a}:{a+3}]" if j else "0"
                k(f"v_mfma_f32_16x16x32_bf16 v[{a}:{a+3}], v[{b}:{b+3}], v[{r}:{r+3}], {c}")
    for q in range(2):
        for rr in range(2):
            for tt in range(2):
                a = oa(rr, tt); b = VM + rr * 8 + 4 * q; r = XM + (q * 2 + tt) * 4
                k(f"v_mfma_f32_16x16x32_bf16 v[{a}:{a+3}], v[{b}:{b+3}], v[{r}:{r+3}], v[{a}:{a+3}]")
    for t in range(4): k(f"ds_write_b128 v217, v[{OA+4*t}:{OA+4*t+3}] offset:{t*1024}")
    k("s_waitcnt lgkmcnt(0)")
    k("s_barrier")
    lskip = k.new('xs')
    k("s_cmp_ge_u32 s3, 2"); k(f"s_cbranch_scc1 {k.ref(lskip)}")
    for rr in range(2):
        for w in range(4): k(f"ds_read_b128 v[{Q0+16*rr+4*w}:{Q0+16*rr+4*w+3}], v218 offset:{w*4096 + rr*2048}")
    O = 48
    for rr in range(2):
        q = Q0 + 16 * rr
        k(f"s_waitcnt lgkmcnt({4 if rr == 0 else 0})")
        for r in range(0, 4, 2):
            k(f"v_pk_add_f32 v[{q+r}:{q+r+1}], v[{q+r}:{q+r+1}], v[{q+4+r}:{q+4+r+1}]")
            k(f"v_pk_add_f32 v[{q+8+r}:{q+8+r+1}], v[{q+8+r}:{q+8+r+1}], v[{q+12+r}:{q+12+r+1}]")
        for r in range(0, 4, 2):
            k(f"v_pk_add_f32 v[{q+r}:{q+r+1}], v[{q+r}:{q+r+1}], v[{q+8+r}:{q+8+r+1}]")
        k(f"v_cvt_pk_bf16_f32 v{q+4}, v{q}, v{q+1}")
        k(f"v_cvt_pk_bf16_f32 v{q+5}, v{q+2}, v{q+3}")
        for h in range(2):
            k(f"v_lshlrev_b32 v{q}, 16, v{q+4+h}")
            k(f"v_and_b32 v{q+1}, 0xffff0000, v{q+4+h}")
            k(f"v_lshlrev_b32 v{q+6}, 16, v{RES+2*rr+h}")
            k(f"v_and_b32 v{q+7}, 0xffff0000, v{RES+2*rr+h}")
            k(f"v_pk_add_f32 v[{q}:{q+1}], v[{q}:{q+1}], v[{q+6}:{q+7}]")
            k(f"v_cvt_pk_bf16_f32 v{O+2*rr+h}, v{q}, v{q+1}")
    l1 = k.new('xo')
    k("s_cmp_eq_u32 s92, 0"); k(f"s_cbranch_scc0 {k.ref(l1)}")
    k(f"s_add_u32 s24, s68, {A.WS_XF2}")
    k(f"buffer_store_dwordx4 v[{O}:{O+3}], v219, s[8:11], s24 offen sc1")
    k(f"s_branch {k.ref(lskip)}")
    k.lab(l1)
    k(f"buffer_store_dwordx2 v[{O}:{O+1}], v243, s[12:15], s68 offen")
    k(f"buffer_store_dwordx2 v[{O+2}:{O+3}], v243, s[12:15], s68 offen offset:32")
    k.lab(lskip)
    l2 = k.new('xp')
    k("s_lshr_b32 s25, s64, 2"); k("s_add_u32 s25, s25, 1")
    k("s_cmp_eq_u32 s92, 0"); k("s_cselect_b32 s79, s25, -1")
    k("s_cmp_lt_u32 s40, 64"); k(f"s_cbranch_scc1 {k.ref(l2)}")
    k("s_waitcnt vmcnt(0)")
    k("s_barrier")
    x_pending(k)
    k.lab(l2)
    k("s_add_u32 s64, s64, 4")
    k(f"s_add_u32 s65, s65, {4*VOX_SEG}")
    k(f"s_add_u32 s66, s66, {4*SYNC_STEP}")
    k(f"s_add_u32 s67, s67, {4*SYNC_STEP}")
    k(f"s_add_u32 s68, s68, {4*40960}")

def role_P(k):
    RS, L_ST, L_PS = 400, 81920, 81920
    XPRE, BF, ACC, OUT, TMP, ST, CS, ONE = 16, 56, 88, 112, 124, 132, 224, 236
    k("s_sub_u32 s44, s2, 104")
    k("s_lshr_b32 s46, s44, 5")
    k("s_and_b32 s44, s44, 31")
    k.ptr(KA_WQ, 6); k.ptr(KA_WK, 24); k.ptr(KA_WV, 26)
    k("s_waitcnt lgkmcnt(0)")
    k("s_cmp_eq_u32 s46, 1"); k("s_cselect_b32 s6, s24, s6"); k("s_cselect_b32 s7, s25, s7")
    k("s_cmp_eq_u32 s46, 2"); k("s_cselect_b32 s6, s26, s6"); k("s_cselect_b32 s7, s27, s7")
    k.srd(12, 6, D * HD * 2)
    GO, LO, DAT = 4, 10, 56
    stage_offsets(k, 6, 24, HD * 2, RS, L_ST, GO, LO, 16)
    k("v_lshrrev_b32 v16, 2, v2")
    k("v_lshl_add_u32 v16, v3, 2, v16")
    k(f"v_mul_u32_u24 v32, {RS}, v16")
    k("v_and_b32 v16, 3, v2")
    k("v_lshl_add_u32 v32, v16, 3, v32")
    k(f"s_mul_i32 s24, s3, 96"); k(f"s_add_u32 s24, s24, {L_ST}")
    k("v_add_u32 v32, s24, v32")
    k("s_mul_i32 s45, s44, 384")
    def loads(c):
        d = DAT + 24 * (c % 8)
        k(f"s_add_u32 s47, s45, {c * 64 * HD * 2}")
        for i in range(6):
            k(f"buffer_load_dwordx4 v[{d+4*i}:{d+4*i+3}], v{GO+i}, s[12:15], s47 offen")
    for c in range(8): loads(c)
    C0, O0 = 16, 28
    for r in range(4): k(f"v_mov_b32 v{O0+r}, 0x3f803f80")
    def cs_mfma(c):
        for jj in range(2):
            j = 2 * c + jj
            for t in range(3):
                w = (t * 20 + j) * 4; cc = f"v[{C0+4*t}:{C0+4*t+3}]"
                k(f"v_mfma_f32_16x16x32_bf16 {cc}, a[{w}:{w+3}], v[{O0}:{O0+3}], {cc if j else 0}")
    waits = [42, 42, 42, 36, 30, 24, 18, 12, 6, 0]
    for c in range(10):
        d = DAT + 24 * (c % 8)
        k(f"s_waitcnt vmcnt({waits[c]})")
        for i in range(6): k(f"ds_write_b128 v{LO+i}, v[{d+4*i}:{d+4*i+3}] offset:{(c%2)*25600}")
        k("s_waitcnt lgkmcnt(0)")
        if c < 2: loads(c + 8)
        if c > 0: cs_mfma(c - 1)
        k("s_barrier")
        for t in range(3):
            for jj in range(2):
                r = (t * 20 + 2 * c + jj) * 4
                for hf in range(2):
                    k(f"ds_read_b64_tr_b16 a[{r+2*hf}:{r+2*hf+1}], v32 offset:{(c%2)*25600 + (32*jj + 16*hf)*RS + 32*t}")
    k("s_waitcnt lgkmcnt(0)")
    cs_mfma(9)
    for r in range(12): k(f"v_mov_b32 v{CS+r}, v{C0+r}")
    for r in range(4): k(f"v_mov_b32 v{ONE+r}, v{O0+r}")
    k("s_barrier")
    event(k, 1, 16)
    k.lab('p_layer')
    layer_bases(k)
    k("s_sub_u32 s44, s2, 104")
    k("s_lshr_b32 s46, s44, 5")
    k("s_and_b32 s44, s44, 31")
    k(f"s_mov_b32 s43, {WS_QF}")
    k("s_cmp_eq_u32 s46, 1"); k(f"s_cselect_b32 s43, {WS_KF}, s43")
    k("s_cmp_eq_u32 s46, 2"); k(f"s_cselect_b32 s43, {WS_VF}, s43")
    k("s_cmp_eq_u32 s92, 0"); k(f"s_cselect_b32 s73, {A.WS_XF1}, {A.WS_XF3}")
    k("v_lshlrev_b32 v5, 4, v1")
    k("s_mul_i32 s24, s3, 10240")
    k("v_add_u32 v6, s24, v5")
    k("v_add_u32 v7, 4096, v6"); k("v_add_u32 v8, 8192, v6")
    k("s_mul_i32 s24, s44, 12288"); k("s_mul_i32 s25, s3, 3072"); k("s_add_u32 s24, s24, s25")
    k("v_add_u32 v11, s24, v5")
    if CFG['p_off']:
        k("s_cmp_eq_u32 s92, 1"); k(f"s_cselect_b32 s24, {OOB}, 0"); k("v_or_b32 v11, s24, v11")
    k("s_lshr_b32 s24, s3, 1"); k("s_lshl_b32 s24, s24, 8"); k("s_and_b32 s25, s3, 1"); k("s_lshl_b32 s25, s25, 3")
    k("s_add_u32 s24, s24, s25"); k(f"s_add_u32 s24, s24, {L_PS}")
    k("v_lshlrev_b32 v13, 4, v2")
    k("v_add_u32 v12, s24, v13")
    k(f"v_add_u32 v13, {L_PS}, v13")
    if CFG['pstat'] == 1:
        k("v_lshrrev_b32 v15, 2, v2"); k("v_cmp_eq_u32 vcc, v15, v3")
        k(f"v_lshlrev_b32 v15, 3, v1"); k(f"v_add_u32 v15, {L_PS + 1024}, v15")
        k("v_cndmask_b32 v12, v15, v12, vcc")
        k("v_and_b32 v15, 3, v2")
        for i_, sp in ((1, 48), (2, 50), (3, 54)): k(f"v_cmp_eq_u32 s[{sp}:{sp+1}], {i_}, v15")
    k("s_and_b32 s24, s2, 7"); k("s_lshl_b32 s24, s24, 7"); k("s_lshl_b32 s25, s92, 10"); k("s_add_u32 s24, s24, s25")
    k(f"s_add_u32 s24, s24, {WS_FLG + F_K3}")
    k("s_cmp_eq_u32 s92, 0"); k("s_cselect_b32 s25, 20, 5"); k("s_cselect_b32 s75, 2, 0"); k("s_cselect_b32 s74, 16, 64")
    k("v_cmp_gt_u32 vcc, s25, v1"); k("v_cndmask_b32 v4, 0, v1, vcc")
    k("v_lshlrev_b32 v4, 2, v4"); k("v_add_u32 v4, s24, v4")
    flag_addr(k, 's46')
    k("s_cmp_eq_u32 s3, 0"); k(f"s_cselect_b32 s24, 0, {OOB}"); k("v_or_b32 v14, s24, v14")
    x_init(k)
    def xloads():
        for i in range(10):
            k(f"buffer_load_dwordx4 v[{XPRE+4*i}:{XPRE+4*i+3}], v{6 + i//4}, s[8:11], s41 offen offset:{(i%4)*1024} {CFG['px_mod']}")
    SA = 136
    FL = 152
    def stats_list():
        class L(list):
            def __call__(self, t): self.append(t)
        l = L(); row_stats_partial(l, XPRE, 40, SA, SA + 1, ONE, SA + 2); return l
    SM, SQ = 144, 148
    def stats_mfma():
        l = []
        for i in range(10):
            x = f"v[{XPRE+4*i}:{XPRE+4*i+3}]"
            l.append(f"v_mfma_f32_16x16x32_bf16 v[{SQ}:{SQ+3}], {x}, {x}, " + (f"v[{SQ}:{SQ+3}]" if i else "0"))
            l.append(f"v_mfma_f32_16x16x32_bf16 v[{SM}:{SM+3}], v[{ONE}:{ONE+3}], {x}, " + (f"v[{SM}:{SM+3}]" if i else "0"))
        return l
    def stats_sel():
        return [f"v_cndmask_b32 v{SM+1}, v{SQ}, v{SQ+1}, s[48:49]", f"v_cndmask_b32 v{SM+1}, v{SM+1}, v{SQ+2}, s[50:51]",
                f"v_cndmask_b32 v{SM+1}, v{SM+1}, v{SQ+3}, s[54:55]"]
    SR = SM if CFG['pstat'] == 1 else SA
    def xstage(wbase, psw):
        if CFG['pstat'] == 1:
            for t in stats_mfma(): k(t)
            for i in range(10): k(f"ds_write_b128 v{wbase}, v[{XPRE+4*i}:{XPRE+4*i+3}] offset:{i*1024}")
            for t in stats_sel(): k(t)
        else:
            for t in stats_list(): k(t)
            for i in range(10): k(f"ds_write_b128 v{wbase}, v[{XPRE+4*i}:{XPRE+4*i+3}] offset:{i*1024}")
        k(f"ds_write_b64 v{psw}, v[{SR}:{SR+1}]")
    k("s_mov_b32 s62, -1"); k("s_mov_b32 s63, 1")
    ensure(k, 'p_en0', 20, 4, 16)
    k("s_mov_b32 s41, s73")
    xloads()
    k("s_mov_b32 s40, 0")
    k("s_mov_b32 s42, 0")
    k("s_waitcnt vmcnt(0)")
    xstage(6, 12)
    k("s_waitcnt lgkmcnt(0)")
    k("s_barrier")
    event(k, 2, 16)
    acc = lambda tt, t: ACC + (tt * 3 + t) * 4
    def need_next():
        k("s_add_u32 s63, s40, 1"); k("s_lshr_b32 s63, s63, s75"); k("s_add_u32 s63, s63, 1"); k("s_min_u32 s63, s63, s74")
    def body(steady):
        if steady: stamp(k, 0)
        k("v_add_u32 v9, s42, v5")
        k("s_xor_b32 s42, s42, 40960")
        k("v_add_u32 v10, s42, v6")
        if steady:
            need_next()
            ensure(k, 'p_en', 20, 4, 16)
            k("s_add_u32 s41, s41, 40960")
            xloads()
            stamp(k, 1)
        k("s_and_b32 s24, s40, 1"); k("s_lshl_b32 s24, s24, 9")
        k(f"v_add_u32 v{TMP}, s24, v13")
        k("s_xor_b32 s24, s24, 512")
        k(f"v_add_u32 v{SA+4}, s24, v12")
        lg = LG(k)
        lg.issue('ps', f"ds_read_b128 v[{OUT}:{OUT+3}], v{TMP}")
        lg.issue('ps', f"ds_read_b128 v[{OUT+4}:{OUT+7}], v{TMP} offset:256")
        def rd(j):
            for tt in range(2):
                r = BF + ((j % 4) * 2 + tt) * 4
                lg.issue(j, f"ds_read_b128 v[{r}:{r+3}], v9 offset:{tt*20480 + j*1024}")
        rd(0); rd(1); rd(2)
        class L(list):
            def __call__(self, t): self.append(t)
        extra = L()
        row_stats_final(extra, OUT, ST); row_stats_final(extra, OUT + 4, ST + 2)
        wr = []; sm = []
        for j in range(20):
            if j + 3 < 20: rd(j + 3)
            lg.wait(j)
            if steady and j == 11:
                stamp(k, 4)
                k(f"s_waitcnt vmcnt({3 if CFG['p_adapt'] else 2})")
                stamp(k, 5)
                if CFG['pstat'] == 1: sm = stats_mfma()
                else: extra.extend(stats_list())
                wr = [f"ds_write_b128 v10, v[{XPRE+4*i}:{XPRE+4*i+3}] offset:{i*1024}" for i in range(10)]
            for tt in range(2):
                r = BF + ((j % 4) * 2 + tt) * 4
                for t in range(3):
                    a = acc(tt, t); w = (t * 20 + j) * 4
                    c = f"v[{a}:{a+3}]" if j else "0"
                    k(f"v_mfma_f32_16x16x32_bf16 v[{a}:{a+3}], a[{w}:{w+3}], v[{r}:{r+3}], {c}")
                    for _ in range(CFG['p_nx']):
                        if extra: k(extra.pop(0))
                    if t == 1 and wr and (CFG['p_wr'] == 1 or tt == 0 or True) and (CFG['p_wr'] == 2 or tt == 0): lg.issue('w', wr.pop(0))
            for _ in range(3):
                if sm: k(sm.pop(0))
            if steady and CFG['pstat'] == 1 and j == 19:
                for t_ in stats_sel(): k(t_)
            if steady and j == 9:
                stamp(k, 2)
                k("s_waitcnt vmcnt(10)")
                k("s_barrier")
                stamp(k, 3)
                k("v_mov_b32 v15, s40")
                k("buffer_store_dword v15, v14, s[8:11], 0 offen sc1")
                x_pending(k)
                if CFG['p_adapt']: k(f"buffer_load_dword v{FL}, v4, s[8:11], 0 offen sc1")
        for t_ in wr: lg.issue('w', t_)
        assert not sm
        for t_ in extra: k(t_)
        if steady: lg.issue('w', f"ds_write_b64 v{SA+4}, v[{SR}:{SR+1}]")
        for tt in range(2):
            for t in range(3): ln_fold(k, acc(tt, t), CS + 4 * t, ST + 2 * tt, TMP)
        for o, (tt, t) in enumerate([(0, 0), (0, 1), (1, 0), (1, 1), (0, 2), (1, 2)]):
            a = acc(tt, t)
            k(f"v_cvt_pk_bf16_f32 v{OUT+2*o}, v{a}, v{a+1}")
            k(f"v_cvt_pk_bf16_f32 v{OUT+2*o+1}, v{a+2}, v{a+3}")
        for b in range(3):
            k(f"buffer_store_dwordx4 v[{OUT+4*b}:{OUT+4*b+3}], v11, s[8:11], s43 offen offset:{b*1024} sc1")
        k(f"s_add_u32 s43, s43, {QF_SEG}")
        if steady and CFG['p_adapt']: k("s_waitcnt vmcnt(3)")
        if not steady:
            k("s_waitcnt vmcnt(0)")
            k("s_barrier")
            k("s_add_u32 s24, s40, 1"); k("v_mov_b32 v15, s24")
            k("buffer_store_dword v15, v14, s[8:11], 0 offen sc1")
            need_next()
            ensure(k, 'p_enA', 20, 4, 16)
            k("s_add_u32 s41, s41, 40960")
            xloads()
            if CFG['p_adapt']: k(f"buffer_load_dword v{FL}, v4, s[8:11], 0 offen sc1")
            k("s_waitcnt vmcnt(0)")
            xstage(10, SA + 4)
        if steady and CFG['stamp']:
            k("s_waitcnt lgkmcnt(0)"); k("s_memrealtime s[56:57]"); k("s_waitcnt lgkmcnt(0)"); k("s_mov_b32 s57, s56"); stamp_out(k, 6, 16)
        k("s_add_u32 s40, s40, 1")
        if CFG['p_adapt']:
            need_next()
            k(f"v_cmp_le_i32 vcc, s63, v{FL}")
            k("s_cmp_eq_u64 vcc, -1"); k("s_cselect_b32 s58, 1, 0")
            k("s_cmp_ge_i32 s62, s63"); k("s_cselect_b32 s58, 1, s58")
            k("s_and_b32 s24, s40, 1"); k("s_lshl_b32 s24, s24, 2"); k(f"s_add_u32 s24, s24, {L_PS + 1536}")
            k("s_lshl_b32 s25, s3, 4"); k("s_add_u32 s25, s25, s24")
            k("v_mov_b32 v15, s25"); k(f"v_mov_b32 v{FL}, s58")
            k(f"ds_write_b32 v15, v{FL}")
            k("v_mov_b32 v15, s24")
        k("s_waitcnt lgkmcnt(0)")
        k("s_barrier")
        if CFG['p_adapt']:
            k(f"ds_read_b32 v{FL}, v15")
            k("s_waitcnt lgkmcnt(0)")
            k(f"v_readfirstlane_b32 s58, v{FL}")
            k("s_cmp_eq_u32 s58, 1"); k("s_cselect_b32 s24, s63, s62"); k("s_max_i32 s62, s62, s24")
    k(f"s_branch {k.ref('p_segA')}")
    k.lab('p_pubA')
    k("s_waitcnt vmcnt(0)")
    k("s_barrier")
    flag_pub(k, 's40')
    k.lab('p_segA')
    body(False)
    if not CFG['p_adapt']:
        k(f"s_cmp_lt_u32 s40, {CFG['p_ns']}"); k(f"s_cbranch_scc1 {k.ref('p_segA')}")
    k(f"s_branch {k.ref('p_next')}")
    k.lab('p_seg')
    body(True)
    k.lab('p_next')
    if CFG['stamp']:
        for i_, sv in enumerate((8, 16, 32, 48)):
            l_ = k.new('pe'); k(f"s_cmp_eq_u32 s40, {sv}"); k(f"s_cbranch_scc0 {k.ref(l_)}"); event(k, 8 + i_, 16); k.lab(l_)
    def go_seg():
        if CFG['p_adapt']:
            l_ = k.new('pg')
            k("s_cmp_lt_u32 s40, 64"); k(f"s_cbranch_scc0 {k.ref(l_)}")
            k("s_cmp_eq_u32 s58, 1"); k(f"s_cbranch_scc1 {k.ref('p_seg')}")
            k(f"s_branch {k.ref('p_pubA')}")
            k.lab(l_)
        else:
            k("s_cmp_lt_u32 s40, 64"); k(f"s_cbranch_scc1 {k.ref('p_seg')}")
    k(f"s_add_u32 s24, s64, {CFG['xlag']}"); k("s_cmp_le_u32 s24, s40"); k(f"s_cbranch_scc1 {k.ref('p_pub')}")
    go_seg()
    k.lab('p_pub')
    k("s_waitcnt vmcnt(0)")
    k("s_barrier")
    flag_pub(k, 's40')
    k(f"s_add_u32 s24, s64, {CFG['xlag']}"); k("s_cmp_le_u32 s24, s40"); k(f"s_cbranch_scc1 {k.ref('p_x')}")
    go_seg()
    k("s_cmp_ge_u32 s64, 64"); k(f"s_cbranch_scc1 {k.ref('p_done')}")
    k.lab('p_x')
    x_iter(k)
    k(f"s_branch {k.ref('p_next')}")
    k.lab('p_done')
    event(k, 3, 16)
    next_layer(k, 'p_layer')

def role_O(k):
    RS = 1312
    VFa, VFb, ACC, OUT = 16, 64, 112, 192
    k("s_sub_u32 s44, s2, 200")
    k.ptr(KA_WO, 6)
    k("s_waitcnt lgkmcnt(0)")
    k.srd(12, 6, D * HD * 2)
    LO, D0, D1 = 16, 48, 168
    for i in range(30):
        k(f"v_add_u32 v8, {256*i}, v0")
        divmod_const(k, 9, 10, 8, 80, 256 * 30, 24)
        k(f"v_mul_u32_u24 v{LO+i}, {RS}, v9")
        k(f"v_lshl_add_u32 v{LO+i}, v10, 4, v{LO+i}")
    k("v_lshlrev_b32 v4, 4, v0")
    k(f"s_mul_i32 s45, s44, {192*1280}")
    dat = lambda b, i: (D0 + 4 * i) if b == 0 else ((D1 + 4 * i) if i < 22 else (D0 + 4 * (i - 22)))
    def ld(b, i):
        k(f"s_add_u32 s46, s45, {b*96*1280 + i*4096}")
        d = dat(b, i)
        k(f"buffer_load_dwordx4 v[{d}:{d+3}], v4, s[12:15], s46 offen")
    for i in range(30): ld(0, i)
    for i in range(22): ld(1, i)
    k("v_lshrrev_b32 v8, 2, v2")
    k("v_lshl_add_u32 v8, v3, 2, v8")
    k(f"v_mul_u32_u24 v5, {RS}, v8")
    k("v_and_b32 v8, 3, v2")
    k("v_lshl_add_u32 v5, v8, 3, v5")
    k("s_mul_i32 s24, s3, 320")
    k("v_add_u32 v5, s24, v5")
    k(f"v_add_u32 v6, {48*RS}, v5")
    for b in range(2):
        k(f"s_waitcnt vmcnt({22 if b == 0 else 0})")
        for i in range(30):
            d = dat(b, i)
            k(f"ds_write_b128 v{LO+i}, v[{d}:{d+3}]")
        k("s_waitcnt lgkmcnt(0)")
        if b == 0:
            for i in range(22, 30): ld(1, i)
        k("s_barrier")
        for t in range(10):
            def tr(ks, hf, base, row):
                r = (t * 6 + ks) * 4 + 2 * hf
                k(f"ds_read_b64_tr_b16 a[{r}:{r+1}], v{base} offset:{row*RS + 32*t}")
            tr(2*b, 0, 5, 0); tr(2*b, 1, 5, 16)
            tr(2*b+1, 0, 6, 0); tr(2*b+1, 1, 6, 16)
            tr(4+b, 0, 5, 32); tr(4+b, 1, 6, 32)
        k("s_waitcnt lgkmcnt(0)")
        k("s_barrier")
    k("v_lshlrev_b32 v5, 4, v1")
    k("s_mul_i32 s24, s44, 12288")
    k("v_add_u32 v6, s24, v5")
    k("v_add_u32 v7, 4096, v6"); k("v_add_u32 v8, 8192, v6")
    k(f"s_mul_i32 s24, s3, {10*32768}"); k("s_lshl_b32 s25, s44, 10"); k("s_add_u32 s24, s24, s25")
    k("v_add_u32 v9, s24, v5")
    event(k, 1, 16)
    k.lab('o_layer')
    layer_bases(k)
    flag_addr(k, 3)
    if CFG['o_off']:
        k("s_cmp_eq_u32 s92, 1"); k(f"s_cselect_b32 s24, {OOB}, 0"); k("v_or_b32 v9, s24, v9")
    k(f"s_lshl_b32 s24, s44, 7"); k(f"s_add_u32 s24, s24, {2*4096}"); k("s_add_u32 s24, s24, s94")
    k("v_mov_b32 v10, s24")
    k(f"s_mov_b32 s41, {WS_VF}")
    k(f"s_mov_b32 s43, {WS_VOX}")
    k("s_mov_b32 s40, 0")
    def vloads(V):
        for i in range(12):
            k(f"buffer_load_dwordx4 v[{V+4*i}:{V+4*i+3}], v{6 + i//4}, s[8:11], s41 offen offset:{(i%4)*1024} sc1")
        k(f"s_add_u32 s41, s41, {QF_SEG}")
    k("s_mov_b32 s62, -1"); k("s_mov_b32 s63, 1")
    ensure(k, 'o_en0', 1, 10, 11)
    vloads(VFa)
    k("s_waitcnt vmcnt(0)")
    event(k, 2, 240)
    k.lab('o_seg')
    for par, (V, VN) in enumerate(((VFa, VFb), (VFb, VFa))):
        for p in range(2):
            X = V + (6 * p + 2) * 4; Y = V + (6 * p + 5) * 4
            k(f"v_swap_b32 v{X+2}, v{Y}"); k(f"v_swap_b32 v{X+3}, v{Y+1}")
        def frag(tt, ks):
            if ks < 4: return V + (3 * ks + tt) * 4
            p = ks - 4
            return V + (6 * p + 2) * 4 if tt == 0 else V + (6 * p + 5) * 4
        def nxt(tag):
            k("s_add_u32 s63, s40, 2"); k("s_min_u32 s63, s63, 64")
            ensure(k, tag, 1, 10, 11)
            vloads(VN)
        if CFG['o_adapt']: k("buffer_load_dword v232, v10, s[8:11], 0 offen sc1")
        for ks in range(6):
            for t in range(10):
                for tt in range(2):
                    a = ACC + (t * 2 + tt) * 4; w = (t * 6 + ks) * 4; f = frag(tt, ks)
                    c = f"v[{a}:{a+3}]" if ks else "0"
                    k(f"v_mfma_f32_16x16x32_bf16 v[{a}:{a+3}], v[{f}:{f+3}], a[{w}:{w+3}], {c}")
            if ks == 2 and CFG['o_adapt']:
                lf = k.new('of')
                k("s_waitcnt vmcnt(0)")
                k("v_readfirstlane_b32 s24, v232"); k("s_max_i32 s62, s62, s24")
                k("s_add_u32 s63, s40, 2"); k("s_min_u32 s63, s63, 64")
                k("s_cmp_ge_i32 s62, s63"); k("s_cselect_b32 s24, 1, 0")
                k("s_lshl_b32 s25, s3, 4"); k(f"s_add_u32 s25, s25, {4*par}")
                k("v_mov_b32 v12, s25"); k("v_mov_b32 v13, s24")
                k("ds_write_b32 v12, v13")
                k(f"v_mov_b32 v12, {4*par}")
                k("s_waitcnt lgkmcnt(0)")
                k("s_barrier")
                k("ds_read_b32 v13, v12")
                flag_pub(k, 's40')
                k("s_waitcnt lgkmcnt(0)")
                k("v_readfirstlane_b32 s58, v13")
                k("s_cmp_eq_u32 s58, 1"); k(f"s_cbranch_scc0 {k.ref(lf)}")
                k("s_max_i32 s62, s62, s63")
                vloads(VN)
                k.lab(lf)
            elif ks == 2:
                lf = k.new('of')
                if par == 0:
                    k("s_cmp_eq_u32 s40, 0"); k(f"s_cbranch_scc1 {k.ref(lf)}")
                k("s_waitcnt vmcnt(0)")
                k("s_barrier")
                flag_pub(k, 's40')
                nxt(f'o_en{par+1}')
                k.lab(lf)
        k("s_mov_b32 s46, s43")
        for t in range(10):
            o = OUT + 4 * t
            for tt in range(2):
                a = ACC + (t * 2 + tt) * 4
                k(f"v_cvt_pk_bf16_f32 v{o+2*tt}, v{a}, v{a+1}")
                k(f"v_cvt_pk_bf16_f32 v{o+2*tt+1}, v{a+2}, v{a+3}")
            k(f"buffer_store_dwordx4 v[{o}:{o+3}], v9, s[8:11], s46 offen sc1")
            if t < 9: k("s_add_u32 s46, s46, 32768")
        if CFG['o_adapt']:
            lf = k.new('of')
            k("s_cmp_eq_u32 s58, 1"); k(f"s_cbranch_scc1 {k.ref(lf)}")
            k("s_waitcnt vmcnt(0)")
            k("s_barrier")
            k("s_add_u32 s24, s40, 1")
            flag_pub(k, 's24')
            nxt(f'o_en{par+3}')
            k("s_waitcnt vmcnt(0)")
            k.lab(lf)
        elif par == 0:
            lf = k.new('of')
            k("s_cmp_eq_u32 s40, 0"); k(f"s_cbranch_scc0 {k.ref(lf)}")
            k("s_waitcnt vmcnt(0)")
            k("s_barrier")
            flag_pub(k, 1)
            nxt('o_en3')
            k("s_waitcnt vmcnt(0)")
            k.lab(lf)
        k("s_waitcnt vmcnt(10)")
        k("s_add_u32 s40, s40, 1")
        k(f"s_add_u32 s43, s43, {VOX_SEG}")
    k("s_cmp_lt_u32 s40, 64")
    k(f"s_cbranch_scc1 {k.ref('o_seg')}")
    k("s_waitcnt vmcnt(0)")
    k("s_barrier")
    flag_pub(k, 's40')
    event(k, 3, 240)
    next_layer(k, 'o_layer')
class Hooks(A.NoHooks):
    def ev(self, k, i, t=14): event(k, i, t)
    def k1_wait_x(self, k):
        k("s_and_b32 s24, s48, 3"); k("s_lshl_b32 s24, s24, 7"); k(f"s_add_u32 s24, s24, {WS_FLG + F_X}")
        k("v_lshlrev_b32 v15, 2, v1"); k("v_add_u32 v15, s24, v15")
        k("s_lshr_b32 s95, s48, 2"); k("s_add_u32 s95, s95, 1")
        wait_all(k, 'k1_wx', 20, 14, 's95', sleep=4)
    def tr(self, k, slot):
        if not (CFG['stamp'] and CFG.get('k1tr')): return
        k("s_memrealtime s[96:97]")
        k("s_lshl_b32 s34, s2, 2"); k("s_add_u32 s34, s34, s3"); k("s_lshl_b32 s34, s34, 7")
        k("s_lshl_b32 s35, s92, 6"); k("s_add_u32 s34, s34, s35")
        k("s_add_u32 s34, s34, s48"); k("s_lshl_b32 s34, s34, 5"); k(f"s_add_u32 s34, s34, {WS_TRACE + 4*slot}")
        k(f"v_mov_b32 v14, {OOB}"); k("v_cmp_eq_u32 vcc, 0, v1"); k("v_cndmask_b32 v14, v14, 0, vcc")
        k("s_waitcnt lgkmcnt(0)")
        k("v_mov_b32 v15, s96")
        k("buffer_store_dword v15, v14, s[8:11], s34 offen")
    def k1_prefetch(self, k):
        st = CFG['pf']
        if not st: return 0
        n = 32768 // (256 * st)
        l = k.new('pf')
        k("s_cmp_eq_u32 s92, 0"); k(f"s_cselect_b32 s25, 0, {OOB}")
        k("s_lshl_b32 s24, s45, 3"); k("s_add_u32 s24, s24, s44"); k("s_mul_i32 s24, s24, 30720"); k("s_add_u32 s24, s24, s25")
        k(f"v_mul_u32_u24 v154, {st}, v0")
        for i in range(4):
            k.srd(20, 64 + 2 * i, D * HD * 2)
            for q in range(n):
                k(f"s_add_u32 s25, s24, {q * 256 * st}")
                k("buffer_load_dword a255, v154, s[20:23], s25 offen")
        return 4 * n
    def k1_flag_issue(self, k, n):
        k(f"s_mul_i32 s24, s49, {n}"); k("s_add_u32 s24, s24, s48")
        k("s_and_b32 s24, s24, 3"); k("s_lshl_b32 s24, s24, 7"); k(f"s_add_u32 s24, s24, {WS_FLG + F_X}")
        k("v_lshlrev_b32 v15, 2, v1"); k("v_add_u32 v15, s24, v15")
        k("buffer_load_dword v13, v15, s[8:11], 0 offen sc1")
    def k1_flag_check(self, k, skip):
        if not CFG['k1_pre']:
            k(f"s_branch {k.ref(skip)}"); return
        k("s_add_u32 s24, s48, s49"); k("s_lshr_b32 s24, s24, 2"); k("s_add_u32 s24, s24, 1")
        k("v_cmp_le_i32 vcc, s24, v13")
        k("s_and_b32 s24, vcc_lo, 0xfffff"); k("s_cmp_eq_u32 s24, 0xfffff")
        k(f"s_cbranch_scc0 {k.ref(skip)}")
    def k1_first_barrier(self, k): pass
    def k1_after_weights(self, k):
        l = k.new('fb')
        k("s_cmp_eq_u32 s2, 255"); k(f"s_cbranch_scc0 {k.ref(l)}")
        k("s_cmp_eq_u32 s92, 0"); k(f"s_cbranch_scc0 {k.ref(l)}")
        if CFG['pol'] < 0:
            k("s_waitcnt vmcnt(0)")
            k("s_lshl_b32 s24, s3, 9"); k(f"s_add_u32 s24, s24, {WS_SYNC + 0xF0000}")
            k("v_mov_b32 v154, 0")
            k("s_lshl_b32 s27, s3, 3"); k("s_add_u32 s27, s27, 131072")
            for cl in range(2):
                k("s_barrier")
                k("s_mov_b32 s25, -1")
                k("s_mov_b64 exec, 1")
                for i in range(CFG['npol']):
                    k("v_mov_b32 v155, 0")
                    k("s_memtime s[28:29]"); k("s_waitcnt lgkmcnt(0)")
                    k(f"buffer_atomic_add v155, v154, s[8:11], s24 offen offset:{128 * i} sc0")
                    k("s_waitcnt vmcnt(0)")
                    k("s_memtime s[30:31]"); k("s_waitcnt lgkmcnt(0)")
                    k("s_sub_u32 s30, s30, s28"); k("s_min_u32 s25, s25, s30")
                k("v_mov_b32 v148, s27"); k("v_mov_b32 v155, s25")
                k(f"ds_write_b32 v148, v155 offset:{4 * cl}")
                k("s_mov_b64 exec, -1")
                k("s_add_u32 s24, s24, 0x2000")
            k("s_waitcnt lgkmcnt(0)")
            k("s_barrier")
            k("v_mov_b32 v154, 131072")
            k("ds_read_b128 v[148:151], v154"); k("ds_read_b128 v[152:155], v154 offset:16")
            k("s_waitcnt lgkmcnt(0)")
            k("v_min_u32 v148, v148, v152"); k("v_min_u32 v149, v149, v153"); k("v_min_u32 v150, v150, v154"); k("v_min_u32 v151, v151, v155")
            if CFG.get('poldbg'):
                k(f"v_mov_b32 v154, {OOB}"); k("v_cmp_eq_u32 vcc, 0, v1"); k("v_cndmask_b32 v154, v154, 16, vcc")
                k("buffer_store_dwordx4 v[148:151], v154, s[72:75], 0 offen sc1"); k("s_waitcnt vmcnt(0)")
            k("v_min_u32 v148, v148, v150"); k("v_min_u32 v149, v149, v151")
            k("v_cmp_lt_u32 vcc, v149, v148")
            k("v_cndmask_b32 v155, 1, 2, vcc")
        else:
            k("s_waitcnt vmcnt(0)")
            k("s_barrier")
            k(f"v_mov_b32 v155, {1 + CFG['pol']}")
        k("s_cmp_eq_u32 s3, 0"); k(f"s_cbranch_scc0 {k.ref(l)}")
        k(f"v_mov_b32 v154, {OOB}"); k("v_cmp_eq_u32 vcc, 0, v1"); k("v_cndmask_b32 v154, v154, 0, vcc")
        k("buffer_store_dword v155, v154, s[72:75], 0 offen sc1")
        k.lab(l)
    def k1_ready_issue(self, k):
        l = k.new('ri')
        k("s_cmp_eq_u32 s92, 0"); k(f"s_cbranch_scc0 {k.ref(l)}")
        k("v_mov_b32 v15, 0")
        k("buffer_load_dword v14, v15, s[72:75], 0 offen sc1")
        k.lab(l)
    def k1_ready_check(self, k):
        l = k.new('rc')
        k("s_cmp_eq_u32 s92, 0"); k(f"s_cbranch_scc0 {k.ref(l + '_ok')}")
        k("s_mov_b32 s61, 0")
        k.lab(l)
        k("s_waitcnt vmcnt(0)")
        k("v_readfirstlane_b32 s24, v14")
        k("s_sub_u32 s36, s24, 1"); k("s_and_b32 s36, s36, 1"); k("s_lshl_b32 s36, s36, 13")
        k("s_cmp_ge_u32 s24, 1"); k(f"s_cbranch_scc1 {k.ref(l + '_ok')}")
        k("s_add_u32 s61, s61, 1"); k("s_cmp_ge_u32 s61, s60"); k(f"s_cbranch_scc1 {k.ref(l + '_to')}")
        k("s_sleep 2")
        k("v_mov_b32 v15, 0")
        k("buffer_load_dword v14, v15, s[72:75], 0 offen sc1")
        k(f"s_branch {k.ref(l)}")
        k.lab(l + '_to')
        k("s_mov_b32 s60, 1")
        k.lab(l + '_ok')
    def k1_publish(self, k):
        k("s_lshl_b32 s24, s92, 3"); k("s_add_u32 s24, s24, s44"); k("s_lshl_b32 s24, s24, 7")
        k("s_lshl_b32 s25, s45, 2"); k("s_add_u32 s24, s24, s25"); k(f"s_add_u32 s24, s24, {WS_FLG + F_K1}")
        pub_dword(k, 's24', 1, 14)
    def k2_wait(self, k):
        k("s_lshl_b32 s24, s92, 3"); k("s_add_u32 s24, s24, s44"); k("s_lshl_b32 s24, s24, 7"); k(f"s_add_u32 s24, s24, {WS_FLG + F_K1}")
        k("v_lshlrev_b32 v15, 2, v1"); k("v_add_u32 v15, s24, v15")
        k("s_cmp_eq_u32 s92, 0"); k("s_cselect_b32 s26, -1, 3")
        wait_all(k, 'k2_w', 's26', 14, 1, sleep=2)
    def k2_publish(self, k):
        k("s_lshl_b32 s24, s92, 7"); k("s_sub_u32 s25, s2, 64"); k("s_lshl_b32 s25, s25, 2"); k("s_add_u32 s24, s24, s25")
        k(f"s_add_u32 s24, s24, {WS_FLG + F_K2}")
        pub_dword(k, 's24', 1, 14)
    def k3_wait0(self, k):
        k("s_cmp_eq_u32 s92, 0"); k("s_cselect_b32 s26, 32, 0"); k("s_cselect_b32 s27, 7, 1")
        k("s_lshl_b32 s24, s92, 10"); k(f"s_add_u32 s24, s24, {WS_FLG + F_K1}")
        k("v_and_b32 v15, 7, v1"); k("v_lshlrev_b32 v15, 7, v15")
        k("v_lshrrev_b32 v14, 3, v1"); k("v_and_b32 v14, s27, v14"); k("v_lshl_add_u32 v15, v14, 2, v15")
        k("v_add_u32 v15, s24, v15")
        k("s_lshl_b32 s27, s26, 1"); k("s_add_u32 s28, s27, s26")
        k("s_mov_b32 s61, 0")
        k.lab('k3_w0')
        for i, so in enumerate(('0', 's26', 's27', 's28')):
            k(f"buffer_load_dword v{16+i}, v15, s[8:11], {so} offen sc1")
        k("s_waitcnt vmcnt(0)")
        k("v_min_i32 v16, v16, v17"); k("v_min3_i32 v16, v16, v18, v19")
        k("v_cmp_le_i32 vcc, 1, v16")
        k("s_cmp_eq_u64 vcc, -1")
        k(f"s_cbranch_scc1 {k.ref('k3_w0_ok')}")
        k("s_add_u32 s61, s61, 1"); k("s_cmp_ge_u32 s61, s60"); k(f"s_cbranch_scc1 {k.ref('k3_w0_to')}")
        k("s_sleep 4")
        k(f"s_branch {k.ref('k3_w0')}")
        k.lab('k3_w0_to'); k("s_mov_b32 s60, 1")
        k.lab('k3_w0_ok')
    def k3_wait(self, k):
        k("s_lshl_b32 s24, s92, 7"); k(f"s_add_u32 s24, s24, {WS_FLG + F_K2}")
        k("v_lshlrev_b32 v15, 2, v1"); k("v_add_u32 v15, s24, v15")
        wait_all(k, 'k3_w', 24, 14, 1, sleep=2)
    def k3_publish(self, k, last):
        k("s_lshl_b32 s24, s92, 10"); k("s_lshl_b32 s25, s78, 2"); k("s_add_u32 s24, s24, s25")
        k(f"s_add_u32 s24, s24, {WS_FLG + F_K3}")
        pub_dword(k, 's24', 's40', 14, copies=8)

NCLR = 3
def role_clear(k):
    k("s_sub_u32 s44, s2, 253")
    k("s_lshl_b32 s24, s44, 2"); k("s_add_u32 s24, s24, s3"); k("s_mul_i32 s45, s24, 5")
    for i in range(5):
        k(f"s_add_u32 s24, s45, {i}"); k(f"s_min_u32 s24, s24, {N_NEAR + N_COMP - 1}")
        k(f"s_sub_u32 s25, s24, {N_NEAR}"); k(f"s_cmp_ge_u32 s24, {N_NEAR}")
        k("s_cselect_b32 s24, s25, s24"); k(f"s_cselect_b32 s{69+i}, 0x2000, 0"); k(f"s_lshl_b32 s{64+i}, s24, 14")
    k("v_lshlrev_b32 v5, 4, v1")
    for r in range(4): k(f"v_mov_b32 v{8+r}, -1")
    k("s_lshl_b32 s24, s44, 2"); k(f"s_add_u32 s42, s24, {WS_FLG + F_C}")
    k("s_mov_b32 s40, 0")
    def stores():
        for i in range(5):
            k(f"s_add_u32 s43, s41, s{64+i}"); k(f"s_xor_b32 s43, s43, s{69+i}"); k("s_add_u32 s46, s43, 4096")
            for q in range(8):
                k(f"buffer_store_dwordx4 v[8:11], v5, s[8:11], {'s43' if q < 4 else 's46'} offen offset:{(q%4)*1024} {CFG['clr_mod']}")
    k.lab('clr_blk')
    blk_base(k, 's40', 's41')
    stores()
    k("s_waitcnt vmcnt(40)")
    k("s_barrier")
    pub_dword(k, 's42', 's40', 14, copies=8)
    k("s_add_u32 s40, s40, 1")
    k("s_cmp_lt_u32 s40, 64"); k(f"s_cbranch_scc1 {k.ref('clr_blk')}")
    k("s_waitcnt vmcnt(0)")
    k("s_barrier")
    pub_dword(k, 's42', 's40', 14, copies=8)
    k.lab('clr_blk2')
    k("s_sub_u32 s47, s40, 64")
    k("s_cmp_ge_u32 s47, 60"); k(f"s_cbranch_scc1 {k.ref('clr_last')}")
    k("s_and_b32 s24, s47, 3"); k("s_lshl_b32 s24, s24, 7"); k(f"s_add_u32 s24, s24, {WS_FLG + F_X}")
    k("v_lshlrev_b32 v15, 2, v1"); k("v_add_u32 v15, s24, v15")
    k("s_lshr_b32 s95, s47, 2"); k("s_add_u32 s95, s95, 2")
    wait_all(k, 'clr_wx', 20, 14, 's95', sleep=32)
    k(f"s_branch {k.ref('clr_go')}")
    k.lab('clr_last')
    k(f"v_mov_b32 v15, {WS_FLG + F_S}")
    k("s_mov_b32 s95, 66")
    wait_all(k, 'clr_ws', 1, 14, 's95', sleep=32)
    k.lab('clr_go')
    blk_base(k, 's47', 's41')
    stores()
    k("s_waitcnt vmcnt(0)")
    k("s_barrier")
    k("s_add_u32 s40, s40, 1")
    pub_dword(k, 's42', 's40', 14, copies=8)
    k("s_cmp_lt_u32 s40, 128"); k(f"s_cbranch_scc1 {k.ref('clr_blk2')}")
    k("s_waitcnt vmcnt(0)")

def build():
    k = K(NAME, vgpr=256, sgpr=100, agpr=256)
    H = Hooks()
    k("s_cmp_ge_u32 s2, 256")
    k(f"s_cbranch_scc1 {k.ref('end')}")
    k.ptr(KA_WS, 4); k.ptr(KA_DBG, 6); k.ptr(KA_AX, 24); k.ptr(KA_WQKV, 98)
    if CFG['pf']:
        for i_, a_ in enumerate((KA_WQ, KA_WK, KA_WV, KA_WO)): k.ptr(a_, 64 + 2 * i_)
    k("s_and_b32 s44, s2, 7"); k("s_lshr_b32 s45, s2, 3")
    if CFG['xmap']:
        xm = CFG['xmap']
        k("s_and_b32 s26, s44, 3"); k("s_lshl_b32 s27, s45, 2"); k("s_add_u32 s26, s26, s27")
        k("s_add_u32 s27, s26, 128"); k("s_cmp_lt_u32 s26, 104"); k("s_cselect_b32 s27, s26, s27")
        k("s_add_u32 s26, s26, 104")
        k("s_cmp_lt_u32 s44, 4"); k("s_cselect_b32 s2, s27, s26" if xm == 1 else "s_cselect_b32 s2, s26, s27")
    k("v_and_b32 v1, 63, v0")
    k("v_lshrrev_b32 v4, 6, v0")
    k("v_and_b32 v2, 15, v1")
    k("v_lshrrev_b32 v3, 4, v1")
    k("v_readfirstlane_b32 s3, v4")
    k(f"s_mov_b32 s60, {CFG['spin']}")
    k("s_mov_b32 s59, -1")
    k("s_mov_b32 s92, 0")
    k("s_mov_b32 s36, 0")
    k("s_waitcnt lgkmcnt(0)")
    k.srd(8, 4, WS_BYTES)
    k.srd(72, 6, 256)
    k.srd(16, 24, A.XF_BYTES)
    event(k, 0)
    l = k.new('cf')
    k("s_cmp_eq_u32 s2, 255"); k(f"s_cbranch_scc0 {k.ref(l)}")
    k("v_lshlrev_b32 v5, 4, v0")
    for r in range(4): k(f"v_mov_b32 v{8+r}, -1")
    k(f"s_mov_b32 s24, {WS_FLG}")
    for i in range(FLG_BYTES // 4096):
        k(f"buffer_store_dwordx4 v[8:11], v5, s[8:11], s24 offen sc1")
        k("s_add_u32 s24, s24, 4096")
    k.lab(l)
    k("s_mov_b32 s46, 64"); k("s_mov_b32 s47, 32"); k("s_mov_b32 s50, 0")
    k("s_lshl_b32 s48, s45, 1"); k("s_mov_b32 s49, 1"); k("s_mov_b32 s40, 2")
    k.lab('k1_entry')
    A.role_K1(k, H, wq=98, l2pf=bool(CFG['l2pf']), xmod=CFG['k1xmod'])
    event(k, 4)
    k("s_cmp_eq_u32 s92, 0"); k(f"s_cbranch_scc0 {k.ref('end')}")
    k("s_cmp_ge_u32 s2, 232"); k(f"s_cbranch_scc1 {k.ref('helper')}")
    k("s_cmp_ge_u32 s2, 200"); k(f"s_cbranch_scc1 {k.ref('toO')}")
    k("s_cmp_ge_u32 s2, 104"); k(f"s_cbranch_scc1 {k.ref('toP')}")
    k("s_cmp_ge_u32 s2, 64"); k(f"s_cbranch_scc1 {k.ref('toR')}")
    k("s_cmp_ge_u32 s2, 32"); k(f"s_cbranch_scc1 {k.ref('toV')}")
    k(f"s_branch {k.ref('roleS')}")
    for nm in 'VRPO':
        k.lab('to' + nm); k(f"s_branch {k.ref('role' + nm)}")
    k.lab('helper')
    k("s_sub_u32 s24, s2, 232")
    k("s_cmp_ge_u32 s24, 21"); k(f"s_cbranch_scc1 {k.ref('helper_clr')}")
    k("s_cmp_eq_u32 s24, 15"); k(f"s_cbranch_scc1 {k.ref('helper_k1')}")
    k("s_mul_i32 s57, s24, 52"); k("s_lshr_b32 s57, s57, 8"); k("s_mul_i32 s56, s57, 5"); k("s_sub_u32 s56, s24, s56")
    k("s_add_u32 s57, s57, 1")
    k("s_sub_u32 s25, s24, 16"); k("s_cmp_ge_u32 s24, 16"); k("s_cselect_b32 s56, s25, s56"); k("s_cselect_b32 s57, 0, s57")
    k("s_mul_i32 s78, s57, 5"); k("s_add_u32 s78, s78, s56")
    A.k3_stage(k)
    k.ptr(KA_AX, 6); k("s_waitcnt lgkmcnt(0)"); k.srd(16, 6, A.XF_BYTES)
    k("s_mov_b32 s46, 64"); k("s_mov_b32 s47, 32"); k("s_mov_b32 s50, 0"); k(f"s_mov_b32 s58, {A.WS_XF1}")
    k("s_mov_b32 s76, 16"); k("s_mov_b32 s77, 163840")
    k.lab('k3_entry')
    A.role_K3(k, H)
    event(k, 6)
    k("s_cmp_eq_u32 s92, 0"); k(f"s_cbranch_scc0 {k.ref('end')}")
    k("s_mov_b32 s92, 1")
    k("s_cmp_lt_u32 s2, 248"); k(f"s_cbranch_scc1 {k.ref('helper_k1')}")
    k.srd(16, 4, A.XF_BYTES, A.WS_XF2)
    k("s_mov_b32 s46, 1024"); k("s_mov_b32 s47, 8"); k("s_mov_b32 s50, 1"); k(f"s_mov_b32 s58, {A.WS_XF3}")
    k("s_mov_b32 s76, 64"); k("s_mov_b32 s77, 40960")
    k(f"s_branch {k.ref('k3_entry')}")
    k.lab('helper_k1')
    k("s_mov_b32 s92, 1")
    k("s_sub_u32 s24, s2, 232")
    k.srd(16, 4, A.XF_BYTES, A.WS_XF2)
    k("s_mov_b32 s46, 1024"); k("s_mov_b32 s47, 8"); k("s_mov_b32 s50, 1")
    k("s_and_b32 s44, s24, 7"); k("s_lshr_b32 s45, s24, 3")
    k("s_mov_b32 s48, s45"); k("s_mov_b32 s49, 2"); k("s_mov_b32 s40, 32")
    k(f"s_branch {k.ref('k1_entry')}")
    k.lab('helper_clr')
    role_clear(k)
    event(k, 6)
    k(f"s_branch {k.ref('end')}")
    k.lab('roleS'); role_S2(k)
    k.lab('roleV'); role_V2(k)
    k.lab('roleR'); role_R(k)
    k.lab('roleP'); role_P(k)
    k.lab('roleO'); role_O(k)
    k.lab('end')
    head = ["; generated by gen6.py (my own hand-written generator); kernarg: 13 pointers",
            f"; @launch kernel={k.name} grid=(256,1,1) block=(256,1,1) lds=135168",
            '.amdgcn_target "amdgcn-amd-amdhsa--gfx950"']
    return "\n".join(head) + "\n" + k.text() + "\n"

CFG.setdefault('pol', -1); CFG.setdefault('npol', 3); CFG.setdefault('xmap', 1); CFG.setdefault('l2pf', 1); CFG.setdefault('k1xmod', ''); CFG.setdefault('pf', 0); CFG.setdefault('p_adapt', 1); CFG.setdefault('o_adapt', 1); CFG.setdefault('xflag', 1); CFG.setdefault('sl_xc', 16); CFG.setdefault('k1_pre', 1); CFG.setdefault('dly_hr', 4); CFG.setdefault('hr_wave', 3); CFG.setdefault('s2', 1); CFG.setdefault('v2', 1); CFG.setdefault('v_x8', 4); CFG.setdefault('v_x9', 4); CFG.setdefault('tgt_m', 9); CFG.setdefault('tgt_p', 7); CFG.setdefault('kx_pos', 0); CFG.setdefault('px_pos', 1); CFG.setdefault('x_off', 0); CFG.setdefault('o_off', 0); CFG.setdefault('p_off', 0); CFG.setdefault('rv_off', 0); CFG.setdefault('noclr', 0); CFG.setdefault('pstat', 1); CFG.setdefault('p_nx', 1); CFG.setdefault('p_wr', 1); CFG.setdefault('px_mod', ''); CFG.setdefault('p_ns', 2); CFG.setdefault('spin', SPIN_MAX); CFG.setdefault('xlag', 8); CFG.setdefault('clr_mod', 'sc1')
if __name__ == "__main__":
    out = "z.s"
    for a in sys.argv[1:]:
        if a == "stamp": CFG['stamp'] = True
        elif a.endswith(".s"): out = a
        elif "=" in a:
            kk, v = a.split("=")
            try: CFG[kk] = int(v)
            except ValueError: CFG[kk] = v.replace('+', ' ')
    open(out, "w").write(build())
    print("written", out)
```

```python
import sys
from asmlib import K, magic
import genA as A
from genA import hexf, LOG2E, LG, lookup, row_stats_partial, row_stats_final, ln_fold

NAME = A.NAME
S, D, H, DH, HD, NSEG = 2048, 640, 32, 192, 6144, 64
KA_AX, KA_WQKV, KA_WOA, KA_BX, KA_MEM0, KA_WQ, KA_WK, KA_WV, KA_WO, KA_SEG, KA_OUT, KA_DBG, KA_WS = range(13)
WS_BYTES = 268435456

WS_FLG   = 0x01600000
FLG_BYTES = 0x10000
F_Q   = 0x0000
F_LAYER = 0x4000
F_K1  = 0x8000
F_K2  = 0x8800
F_K3  = 0x9000
F_X   = 0x9800
F_C   = 0xA000
F_S   = 0xA800
WS_TRACE = 0x01800000
WS_VF    = 0x02000000
WS_QF    = 0x04000000
WS_KF    = 0x05800000
QF_SEG   = 32 * 12288
WS_SYNC  = 0x07000000
SYNC_STEP = 0x100000
O_VOM, O_PB, O_MB, O_HR, O_HS = 0, 40 * 16384, 43 * 16384, 45 * 16384, 46 * 16384
O_PX = 0
N_NEAR, N_COMP = 47, 10
WS_VOX   = 0x0B000000
VOX_SEG  = 40 * 32 * 1024
assert WS_SYNC + 64 * SYNC_STEP <= WS_VOX and WS_VOX + 64 * VOX_SEG <= WS_BYTES
SCALE_B = DH ** -0.5
SPIN_MAX = 1 << 17
OOB = 0x7ff00000
RH_M, RH_P = 16, 8

CFG = dict(stamp=False, dly_vox=18, pd_m=2, pd_p=1, pdep=4, pgain=0, dly_m=5, dly_v=20, dly_p=0, sl_m=1, sl_p=1, sl_x=2, sl_x0=8,
           hs_pos=23, hr_pos=1, clr_sleep=0)


def poll(k, name, loads, regs, tmp, sleep, first_delay=0, depth=1):
    if first_delay:
        k(f"s_sleep {first_delay}")
    k("s_mov_b32 s61, 0")
    for d in range(depth - 1):
        for l in loads: k(l)
        if sleep: k(f"s_sleep {sleep}")
    k.lab(name)
    for l in loads: k(l)
    k(f"s_waitcnt vmcnt({(depth - 1) * len(loads)})")
    rs = list(regs)
    k(f"v_max3_u32 v{tmp}, v{rs[0]}, v{rs[1]}, v{rs[2]}")
    rs = rs[3:]
    while len(rs) >= 2:
        k(f"v_max3_u32 v{tmp}, v{tmp}, v{rs[0]}, v{rs[1]}"); rs = rs[2:]
    if rs: k(f"v_max_u32 v{tmp}, v{tmp}, v{rs[0]}")
    k(f"v_cmp_eq_u32 vcc, -1, v{tmp}")
    k("s_add_u32 s61, s61, 1")
    k(f"s_cbranch_vccz {k.ref(name + '_out')}")
    k("s_cmp_ge_u32 s61, s60")
    k(f"s_cbranch_scc1 {k.ref(name + '_to')}")
    if sleep: k(f"s_sleep {sleep}")
    k(f"s_branch {k.ref(name)}")
    k.lab(name + '_to')
    k("s_mov_b32 s60, 1")
    k.lab(name + '_out')

def check_regs(k, rs, tmp):
    rs = list(rs)
    k(f"v_max3_u32 v{tmp}, v{rs[0]}, v{rs[1]}, v{rs[2]}")
    rs = rs[3:]
    while len(rs) >= 2:
        k(f"v_max3_u32 v{tmp}, v{tmp}, v{rs[0]}, v{rs[1]}"); rs = rs[2:]
    if rs: k(f"v_max_u32 v{tmp}, v{tmp}, v{rs[0]}")
    k(f"v_cmp_eq_u32 vcc, -1, v{tmp}")


def aprobe(k, name, areg, sbase, target, ring, delta, depth, dly):
    ring = ring[:depth]
    if dly: k(f"s_sleep {dly}")
    k("s_mov_b64 exec, 1")
    k("s_mov_b32 s61, 0")
    def issue(i):
        k(f"v_mov_b32 v{ring[i]}, 0")
        k(f"buffer_atomic_add v{ring[i]}, v{areg}, s[8:11], {sbase} offen sc0")
    for d in range(depth - 1):
        issue(d + 1)
        if delta: k(f"s_sleep {delta}")
    k.lab(name)
    for i in range(depth):
        issue(i)
        k(f"s_waitcnt vmcnt({depth - 1})")
        k(f"v_cmp_le_i32 vcc, {target}, v{ring[(i + 1) % depth]}")
        k("s_add_u32 s61, s61, 1")
        k(f"s_cbranch_vccnz {k.ref(name + '_out')}")
        if delta: k(f"s_sleep {delta}")
    k("s_cmp_ge_u32 s61, s60")
    k(f"s_cbranch_scc0 {k.ref(name)}")
    k("s_mov_b32 s60, 1")
    k.lab(name + '_out')
    k("s_mov_b64 exec, -1")
    if CFG['stamp']: k("s_mov_b32 s56, s61")

def ahint(k, areg, one, sbase):
    k(f"buffer_atomic_add v{one}, v{areg}, s[8:11], {sbase} offen")

def ahint_addr(k, dst, t, w_sreg, nrep, only_wave0):
    k(f"s_mul_i32 s24, {w_sreg}, {nrep}")
    k(f"v_add_u32 v{dst}, s24, v1")
    k(f"v_lshlrev_b32 v{dst}, 7, v{dst}")
    k(f"v_mov_b32 v{t}, {OOB}")
    k(f"v_cmp_le_u32 vcc, {nrep}, v1")
    k(f"v_cndmask_b32 v{dst}, v{dst}, v{t}, vcc")
    if only_wave0:
        k("s_cmp_eq_u32 s3, 0"); k(f"s_cselect_b32 s24, 0, {OOB}")
        k(f"v_or_b32 v{dst}, s24, v{dst}")

def aprobe_addr(k, dst, wg_sreg, nrep):
    k(f"s_and_b32 s24, {wg_sreg}, {nrep - 1}")
    k(f"s_mul_i32 s25, s3, {nrep}")
    k("s_add_u32 s24, s24, s25"); k("s_lshl_b32 s24, s24, 7")
    k(f"v_mov_b32 v{dst}, s24")


def shot_check(k, name, loads, regs, tmp, nyoung, sleep):
    k(f"s_waitcnt vmcnt({nyoung})")
    check_regs(k, regs, tmp)
    if CFG['stamp']: k("s_mov_b32 s57, 0")
    k(f"s_cbranch_vccz {k.ref(name + '_out')}")
    k("s_mov_b32 s61, 0")
    k.lab(name)
    for l in loads: k(l)
    k("s_waitcnt vmcnt(0)")
    check_regs(k, regs, tmp)
    k("s_add_u32 s61, s61, 1")
    if CFG['stamp']: k("s_mov_b32 s57, s61")
    k(f"s_cbranch_vccz {k.ref(name + '_out')}")
    k("s_cmp_ge_u32 s61, s60")
    k(f"s_cbranch_scc1 {k.ref(name + '_to')}")
    if sleep: k(f"s_sleep {sleep}")
    k(f"s_branch {k.ref(name)}")
    k.lab(name + '_to')
    k("s_mov_b32 s60, 1")
    k.lab(name + '_out')


def divmod_const(k, q, r, x, d, maxn, stmp):
    m, sh = magic(d, maxn)
    k(f"s_mov_b32 s{stmp}, {m}")
    k(f"v_mul_lo_u32 v{q}, v{x}, s{stmp}")
    k(f"v_lshrrev_b32 v{q}, {sh}, v{q}")
    k(f"v_mul_u32_u24 v{r}, {d}, v{q}")
    k(f"v_sub_u32 v{r}, v{x}, v{r}")

def stage_offsets(k, n, cpr, gstride, RS, lbase, go, lo, t0):
    for i in range(n):
        k(f"v_add_u32 v{t0}, {256*i}, v0")
        divmod_const(k, t0 + 1, t0 + 2, t0, cpr, 256 * n, 24)
        k(f"s_mov_b32 s24, {gstride}")
        k(f"v_mul_lo_u32 v{go+i}, v{t0+1}, s24")
        k(f"v_lshl_add_u32 v{go+i}, v{t0+2}, 4, v{go+i}")
        k(f"v_mul_u32_u24 v{lo+i}, {RS}, v{t0+1}")
        k(f"v_lshl_add_u32 v{lo+i}, v{t0+2}, 4, v{lo+i}")
        k(f"v_add_u32 v{lo+i}, {lbase}, v{lo+i}")

def tr_base(k, dst, RS, lbase, t0):
    k(f"v_lshrrev_b32 v{t0}, 1, v3")
    k(f"v_lshlrev_b32 v{t0}, 4, v{t0}")
    k(f"v_and_b32 v{t0+1}, 1, v3")
    k(f"v_lshl_add_u32 v{t0}, v{t0+1}, 2, v{t0}")
    k(f"v_lshrrev_b32 v{t0+1}, 2, v2")
    k(f"v_and_b32 v{t0+2}, 1, v{t0+1}")
    k(f"v_add_u32 v{t0}, v{t0}, v{t0+2}")
    k(f"v_lshrrev_b32 v{t0+1}, 1, v{t0+1}")
    k(f"v_lshl_add_u32 v{t0}, v{t0+1}, 3, v{t0}")
    k(f"v_mul_u32_u24 v{dst}, {RS}, v{t0}")
    k(f"v_and_b32 v{t0+1}, 3, v2")
    k(f"v_lshl_add_u32 v{dst}, v{t0+1}, 3, v{dst}")
    k(f"v_add_u32 v{dst}, {lbase}, v{dst}")

def softmax8(k, P0, T0, T1, masks=None):
    if masks:
        k(f"v_mov_b32 v{T1}, 0xff800000")
        for j in range(8): k(f"v_cndmask_b32 v{P0+j}, v{T1}, v{P0+j}, s[{masks+2*j}:{masks+2*j+1}]")
    k(f"v_max3_f32 v{T0}, v{P0}, v{P0+1}, v{P0+2}")
    k(f"v_max3_f32 v{T0}, v{T0}, v{P0+3}, v{P0+4}")
    k(f"v_max3_f32 v{T0}, v{T0}, v{P0+5}, v{P0+6}")
    k(f"v_max_f32 v{T0}, v{T0}, v{P0+7}")
    k(f"v_mov_b32 v{T1}, 0xff800000")
    k(f"v_cndmask_b32 v{T0}, v{T1}, v{T0}, s[50:51]")
    for dpp in ("quad_perm:[1,0,3,2]", "quad_perm:[2,3,0,1]", "row_half_mirror"):
        k(f"v_max_f32 v{T0}, v{T0}, v{T0} {dpp} row_mask:0xf bank_mask:0xf")
    k(f"s_mov_b32 s24, {hexf(SCALE_B * LOG2E)}")
    k(f"v_mul_f32 v{T0}, s24, v{T0}")
    for r in range(8): k(f"v_fma_f32 v{P0+r}, v{P0+r}, s24, -v{T0}")
    for r in range(8): k(f"v_exp_f32 v{P0+r}, v{P0+r}")
    k(f"v_add_f32 v{T0}, v{P0}, v{P0+1}")
    k(f"v_add_f32 v{T1}, v{P0+2}, v{P0+3}")
    k(f"v_add_f32 v{T0}, v{T0}, v{P0+4}")
    k(f"v_add_f32 v{T1}, v{T1}, v{P0+5}")
    k(f"v_add_f32 v{T0}, v{T0}, v{P0+6}")
    k(f"v_add_f32 v{T1}, v{T1}, v{P0+7}")
    k(f"v_add_f32 v{T0}, v{T0}, v{T1}")
    k(f"v_cndmask_b32 v{T0}, 0, v{T0}, s[50:51]")
    for dpp in ("quad_perm:[1,0,3,2]", "quad_perm:[2,3,0,1]", "row_half_mirror"):
        k(f"v_add_f32 v{T0}, v{T0}, v{T0} {dpp} row_mask:0xf bank_mask:0xf")
    k(f"v_rcp_f32 v{T0}, v{T0}")
    for r in range(8): k(f"v_mul_f32 v{P0+r}, v{P0+r}, v{T0}")
    for q in range(4): k(f"v_cvt_pk_bf16_f32 v{P0+8+q}, v{P0+2*q}, v{P0+2*q+1}")
    for q in range(4): k(f"v_min_u32 v{P0+8+q}, -2, v{P0+8+q}")

def sum4x8(k, P0, addr, stride):
    for w in range(4):
        k(f"ds_read_b128 v[{P0+8*w}:{P0+8*w+3}], v{addr} offset:{w*stride}")
        k(f"ds_read_b128 v[{P0+8*w+4}:{P0+8*w+7}], v{addr} offset:{w*stride+16}")
    k("s_waitcnt lgkmcnt(4)")
    for r in range(0, 8, 2): k(f"v_pk_add_f32 v[{P0+r}:{P0+r+1}], v[{P0+r}:{P0+r+1}], v[{P0+8+r}:{P0+8+r+1}]")
    k("s_waitcnt lgkmcnt(0)")
    for r in range(0, 8, 2): k(f"v_pk_add_f32 v[{P0+16+r}:{P0+16+r+1}], v[{P0+16+r}:{P0+16+r+1}], v[{P0+24+r}:{P0+24+r+1}]")
    for r in range(0, 8, 2): k(f"v_pk_add_f32 v[{P0+r}:{P0+r+1}], v[{P0+r}:{P0+r+1}], v[{P0+16+r}:{P0+16+r+1}]")


def tr_frag(k, reg, kind, addr, RS, off):
    for q, ro in enumerate((0, 2, 32, 34)):
        k(f"ds_read_b64_tr_b16 {kind}[{reg+2*q}:{reg+2*q+1}], v{addr} offset:{off + ro*RS}")

def m0_image(k, srd, t0):
    for p in range(3):
        k(f"s_lshl_b32 s24, s3, 6"); k(f"s_add_u32 s24, s24, {256*p}")
        k(f"v_add_u32 v{t0}, s24, v1")
        k(f"v_and_b32 v{t0+1}, 7, v{t0}")
        k(f"v_mul_u32_u24 v{t0+1}, 1280, v{t0+1}")
        k(f"v_lshrrev_b32 v{t0+2}, 3, v{t0}")
        k(f"v_lshl_add_u32 v{t0+1}, v{t0+2}, 4, v{t0+1}")
        k(f"v_cmp_gt_u32 vcc, 640, v{t0}")
        k(f"v_mov_b32 v{t0+3}, {OOB}")
        k(f"v_cndmask_b32 v{t0+1}, v{t0+3}, v{t0+1}, vcc")
        k(f"buffer_load_dwordx4 v[{t0+4}:{t0+7}], v{t0+1}, s[{srd}:{srd+3}], 0 offen")
        k(f"v_lshlrev_b32 v{t0}, 4, v{t0}")
        k("s_waitcnt vmcnt(0)")
        k(f"s_and_saveexec_b64 s[30:31], vcc")
        k(f"ds_write_b128 v{t0}, v[{t0+4}:{t0+7}]")
        k("s_mov_b64 exec, s[30:31]")

def stamp(k, i):
    if CFG['stamp']: k(f"s_memrealtime s[{80+2*i}:{81+2*i}]")

def stamp_out(k, nst, t):
    if not CFG['stamp']: return
    if CFG.get('clk'):
        k("s_memtime s[56:57]"); k("s_waitcnt lgkmcnt(0)")
    k("s_lshl_b32 s34, s2, 2"); k("s_add_u32 s34, s34, s3"); k("s_lshl_b32 s34, s34, 7")
    k("s_lshl_b32 s35, s92, 6"); k("s_add_u32 s34, s34, s35")
    k("s_add_u32 s34, s34, s40"); k("s_lshl_b32 s34, s34, 5"); k(f"s_add_u32 s34, s34, {WS_TRACE}")
    k(f"v_mov_b32 v{t}, {OOB}")
    k("v_cmp_eq_u32 vcc, 0, v1")
    k(f"v_cndmask_b32 v{t}, v{t}, 0, vcc")
    for i in range(nst):
        k(f"v_mov_b32 v{t+1}, s{80+2*i}")
        k(f"buffer_store_dword v{t+1}, v{t}, s[8:11], s34 offen offset:{i*4}")
    for i, sreg in ((6, 's57'), (7, 's56')):
        k(f"v_mov_b32 v{t+1}, {sreg}")
        k(f"buffer_store_dword v{t+1}, v{t}, s[8:11], s34 offen offset:{i*4}")

WS_EVT = 0x01C00000
def event(k, idx, t=14):
    if not CFG['stamp']: return
    k("s_memrealtime s[96:97]")
    k("s_lshl_b32 s34, s2, 7"); k("s_lshl_b32 s35, s92, 6"); k("s_add_u32 s34, s34, s35"); k(f"s_add_u32 s34, s34, {WS_EVT + 4*idx}")
    k("s_cmp_eq_u32 s3, 0"); k(f"s_cselect_b32 s34, s34, {OOB}")
    k(f"v_mov_b32 v{t}, {OOB}")
    k("v_cmp_eq_u32 vcc, 0, v1")
    k(f"v_cndmask_b32 v{t}, v{t}, 0, vcc")
    k("s_waitcnt lgkmcnt(0)")
    k(f"v_mov_b32 v{t+1}, s96")
    k(f"buffer_store_dword v{t+1}, v{t}, s[8:11], s34 offen")

def ensure(k, name, nfl, addr, tmp, need='s63', known='s62', sleep=2):
    k(f"s_cmp_ge_i32 {known}, {need}")
    k(f"s_cbranch_scc1 {k.ref(name + '_ok')}")
    if callable(addr):
        addr(k, tmp + 1); addr = tmp + 1
    k("s_mov_b32 s61, 0")
    k.lab(name)
    k(f"buffer_load_dword v{tmp}, v{addr}, s[8:11], 0 offen sc1")
    k("s_waitcnt vmcnt(0)")
    k(f"v_readlane_b32 {known}, v{tmp}, 0")
    for i in range(1, nfl):
        k(f"v_readlane_b32 s24, v{tmp}, {i}")
        k(f"s_min_i32 {known}, {known}, s24")
    k(f"s_cmp_ge_i32 {known}, {need}")
    k(f"s_cbranch_scc1 {k.ref(name + '_ok')}")
    k("s_add_u32 s61, s61, 1")
    k("s_cmp_ge_u32 s61, s60")
    k(f"s_cbranch_scc1 {k.ref(name + '_to')}")
    k(f"s_sleep {sleep}")
    k(f"s_branch {k.ref(name)}")
    k.lab(name + '_to')
    k("s_mov_b32 s60, 1")
    k.lab(name + '_ok')

def clr_addr(k, dst):
    k("s_and_b32 s24, s2, 7"); k("s_lshl_b32 s24, s24, 7"); k(f"s_add_u32 s24, s24, {WS_FLG + F_C}")
    k(f"v_and_b32 v{dst}, 3, v1"); k(f"v_lshl_add_u32 v{dst}, v{dst}, 2, s24")

def ensure_clear(k, name, tmp, blk):
    k("s_lshl_b32 s95, s92, 6"); k(f"s_add_u32 s95, s95, {blk}"); k("s_add_u32 s95, s95, 1")
    ensure(k, name, 3, clr_addr, tmp, need='s95', known='s59')

def wait_all(k, name, n, t, need, sleep=2):
    k("s_mov_b32 s61, 0")
    k.lab(name)
    k(f"buffer_load_dword v{t}, v{t+1}, s[8:11], 0 offen sc1")
    k("s_waitcnt vmcnt(0)")
    k(f"v_cmp_le_i32 vcc, {need}, v{t}")
    mask = ((1 << n) - 1) if isinstance(n, int) else n
    if isinstance(n, int): k(f"s_mov_b32 s25, {hex(mask & 0xffffffff)}"); mask = 's25'
    k(f"s_and_b32 s24, vcc_lo, {mask}")
    k(f"s_cmp_eq_u32 s24, {mask}")
    k(f"s_cbranch_scc1 {k.ref(name + '_ok')}")
    k("s_add_u32 s61, s61, 1")
    k("s_cmp_ge_u32 s61, s60")
    k(f"s_cbranch_scc1 {k.ref(name + '_to')}")
    k(f"s_sleep {sleep}")
    k(f"s_branch {k.ref(name)}")
    k.lab(name + '_to')
    k("s_mov_b32 s60, 1")
    k.lab(name + '_ok')

def pub_dword(k, saddr, val, t, copies=1):
    l = k.new('pb')
    k("s_cmp_eq_u32 s3, 0")
    k(f"s_cbranch_scc0 {k.ref(l)}")
    k(f"v_lshlrev_b32 v{t}, 7, v1"); k(f"v_add_u32 v{t}, {saddr}, v{t}")
    k(f"v_mov_b32 v{t+1}, {OOB}"); k(f"v_cmp_le_u32 vcc, {copies}, v1"); k(f"v_cndmask_b32 v{t}, v{t}, v{t+1}, vcc")
    k(f"v_mov_b32 v{t+1}, {val}")
    k(f"buffer_store_dword v{t+1}, v{t}, s[8:11], 0 offen sc1")
    k.lab(l)

def next_layer(k, again):
    k("s_cmp_eq_u32 s92, 0")
    k(f"s_cbranch_scc0 {k.ref('end')}")
    k("s_mov_b32 s92, 1")
    k(f"s_branch {k.ref(again)}")

def blk_base(k, step, dst, add=0):
    if add: k(f"s_add_u32 {dst}, {step}, {add}"); step = dst
    k(f"s_lshl_b32 s24, {step}, 12"); k("s_and_b32 s24, s24, 0x2000"); k("s_xor_b32 s24, s24, s36")
    k(f"s_lshl_b32 {dst}, {step}, 20"); k(f"s_add_u32 {dst}, {dst}, s24"); k(f"s_add_u32 {dst}, {dst}, {WS_SYNC}")

def spread(k, reg, t):
    k(f"v_and_b32 v{t}, 0xffffe000, v{reg}"); k(f"v_add_u32 v{reg}, v{reg}, v{t}")

def layer_bases(k):
    k("s_mov_b32 s93, 0"); blk_base(k, 's93', 's93')
    k(f"s_mul_i32 s94, s92, {F_LAYER}"); k(f"s_add_u32 s94, s94, {WS_FLG + F_Q}")


def role_S2(k):
    L_M, L_X, L_SP, L_DUM, L_W5, L_ST = 0, 10240, 16384, 22528, 24576, 106496
    RS = 400
    ACC, AF, WS5 = 24, 48, 68
    KX = 240
    QX = 80
    T0, T1 = 92, 93
    def wreg(t, c):
        if t < 3: return 'a', t * 80 + c * 8
        return 'v', 96 + (t - 4) * 80 + c * 8
    k("s_mov_b32 s44, s2")
    k.ptr(KA_WQ, 6); k.ptr(KA_WK, 24); k.ptr(KA_MEM0, 26)
    k("s_waitcnt lgkmcnt(0)")
    k.srd(12, 6, D * HD * 2); k.srd(16, 24, D * HD * 2); k.srd(20, 26, 8 * 640 * 2)
    GO, LO, DAT = 4, 10, 24
    stage_offsets(k, 6, 24, HD * 2, RS, L_ST, GO, LO, 16)
    tr_base(k, 16, RS, L_ST, 17)
    k("s_mul_i32 s24, s3, 96")
    k("v_add_u32 v16, s24, v16")
    k("v_lshlrev_b32 v17, 4, v1")
    k(f"s_mul_i32 s24, s3, 20480"); k(f"s_add_u32 s24, s24, {L_W5}")
    k("v_add_u32 v17, s24, v17")
    k(f"s_mul_i32 s45, s44, 384")
    blocks = [(c, m) for c in range(10) for m in range(2)]
    def loads(bi):
        c, m = blocks[bi]
        d = DAT + 24 * (bi % 3)
        k(f"s_add_u32 s46, s45, {c * 64 * HD * 2}")
        for i in range(6):
            k(f"buffer_load_dwordx4 v[{d+4*i}:{d+4*i+3}], v{GO+i}, s[{12+4*m}:{15+4*m}], s46 offen")
    loads(0); loads(1)
    for bi, (c, m) in enumerate(blocks):
        d = DAT + 24 * (bi % 3)
        k(f"s_waitcnt vmcnt({6 if bi + 1 < len(blocks) else 0})")
        for i in range(6): k(f"ds_write_b128 v{LO+i}, v[{d+4*i}:{d+4*i+3}]")
        if bi + 2 < len(blocks): loads(bi + 2)
        k("s_waitcnt lgkmcnt(0)")
        k("s_barrier")
        for t in range(3):
            tt = 3 * m + t
            if tt != 3:
                kind, r = wreg(tt, c)
                tr_frag(k, r, kind, 16, RS, 32 * t)
        if m == 1:
            tr_frag(k, d, 'v', 16, RS, 0)
            k("s_waitcnt lgkmcnt(0)")
            k(f"ds_write_b128 v17, v[{d}:{d+3}] offset:{c*2048}")
            k(f"ds_write_b128 v17, v[{d+4}:{d+7}] offset:{c*2048+1024}")
        k("s_waitcnt lgkmcnt(0)")
        k("s_barrier")
    A_, B_, C_, D_ = 30, 31, 32, 33
    k("v_mov_b32 v6, v17")
    k(f"v_mov_b32 v{A_}, 0xeeee"); k("v_mov_b32 v4, 0x4444")
    k("v_cmp_gt_u32 vcc, 8, v2")
    k(f"v_cndmask_b32 v4, v{A_}, v4, vcc")
    k("v_lshlrev_b32 v5, 4, v1")
    k("s_lshl_b32 s24, s3, 10")
    k("v_add_u32 v7, s24, v5")
    k("s_lshl_b32 s24, s3, 9"); k("s_add_u32 s24, s24, 8192")
    k("v_lshlrev_b32 v8, 3, v1")
    k("v_add_u32 v8, s24, v8")
    k(f"v_and_b32 v{A_}, 1, v2"); k(f"v_lshlrev_b32 v{A_}, 4, v{A_}")
    k(f"v_mov_b32 v{B_}, 0x3f80"); k(f"v_lshlrev_b32 v{B_}, v{A_}, v{B_}")
    k(f"v_lshrrev_b32 v{A_}, 2, v2"); k(f"v_cmp_eq_u32 vcc, v{A_}, v3"); k(f"v_cndmask_b32 v{B_}, 0, v{B_}, vcc")
    k(f"v_and_b32 v{A_}, 2, v2"); k(f"v_cmp_eq_u32 vcc, 0, v{A_}")
    k(f"v_cndmask_b32 v10, 0, v{B_}, vcc"); k(f"v_cndmask_b32 v11, v{B_}, 0, vcc")
    k(f"v_add_u32 v{D_}, {L_DUM}, v5")
    k(f"s_mul_i32 s24, s3, 1408"); k(f"s_add_u32 s24, s24, {L_SP}")
    k(f"v_mul_u32_u24 v{A_}, 176, v2")
    k(f"v_add_u32 v{A_}, s24, v{A_}")
    k(f"v_lshl_add_u32 v12, v3, 5, v{A_}")
    k("v_cmp_gt_u32 vcc, 8, v2")
    k(f"v_cndmask_b32 v12, v{D_}, v12, vcc")
    k(f"v_lshl_add_u32 v13, v3, 4, v{A_}")
    k("v_add_u32 v13, 96, v13")
    k("v_cmp_le_u32 s[24:25], 2, v3")
    k("s_and_b64 vcc, vcc, s[24:25]")
    k(f"v_cndmask_b32 v13, v{D_}, v13, vcc")
    k(f"s_mul_i32 s24, s3, 5632"); k(f"s_add_u32 s24, s24, {L_ST}")
    k(f"v_mul_u32_u24 v{A_}, 176, v2")
    k(f"v_add_u32 v{A_}, s24, v{A_}")
    k(f"v_lshl_add_u32 v16, v3, 5, v{A_}")
    k(f"v_lshl_add_u32 v17, v3, 4, v{A_}")
    k("v_add_u32 v17, 96, v17")
    k("v_add_u32 v18, 2816, v17")
    k("v_cmp_le_u32 vcc, 2, v3")
    k(f"v_cndmask_b32 v17, v{D_}, v17, vcc")
    k(f"v_cndmask_b32 v18, v{D_}, v18, vcc")
    k(f"v_lshrrev_b32 v{A_}, 3, v1")
    k(f"v_and_b32 v{B_}, 7, v1")
    k(f"v_min_u32 v{C_}, 4, v{B_}")
    k(f"v_mul_u32_u24 v14, 176, v{A_}")
    k(f"v_lshl_add_u32 v14, v{C_}, 5, v14")
    k("s_mul_i32 s24, s3, 1408"); k(f"s_add_u32 s24, s24, {L_ST}")
    k("v_add_u32 v21, s24, v14")
    k(f"v_add_u32 v14, {L_SP}, v14")
    k(f"v_cmp_gt_u32 s[50:51], 5, v{B_}")
    k("s_lshl_b32 s24, s3, 3")
    k(f"v_add_u32 v{C_}, s24, v{A_}")
    k(f"v_lshlrev_b32 v{D_}, 2, v{B_}")
    k(f"v_sub_u32 v{C_}, v{C_}, v{D_}")
    k(f"v_mov_b32 v{D_}, 100")
    k(f"v_cmp_gt_u32 vcc, 4, v{B_}")
    k(f"v_cndmask_b32 v{C_}, v{D_}, v{C_}, vcc")
    for j in range(8):
        cj = j if j < 4 else j + 12
        k(f"v_cmp_le_i32 s[{64+2*j}:{65+2*j}], {cj}, v{C_}")
    k("s_lshr_b32 s24, s44, 1"); k("s_lshl_b32 s24, s24, 10")
    k("s_and_b32 s25, s44, 1"); k("s_lshl_b32 s25, s25, 7"); k("s_add_u32 s24, s24, s25")
    k(f"v_lshlrev_b32 v15, 8, v{B_}")
    k(f"v_lshl_add_u32 v15, v{A_}, 4, v15")
    k("v_add_u32 v15, s24, v15")
    k("s_lshr_b32 s24, s44, 3"); k("s_lshl_b32 s24, s24, 10")
    k("s_and_b32 s25, s44, 3"); k("s_lshl_b32 s25, s25, 8"); k("s_add_u32 s24, s24, s25")
    k("s_lshr_b32 s25, s44, 2"); k("s_and_b32 s25, s25, 1"); k("s_lshl_b32 s25, s25, 7"); k("s_add_u32 s24, s24, s25")
    k("s_add_u32 s24, s24, 16384")
    k(f"v_lshlrev_b32 v{C_}, 4, v{A_}")
    k(f"v_add_u32 v{C_}, s24, v{C_}")
    k(f"v_cmp_eq_u32 vcc, 4, v{B_}")
    k(f"v_cndmask_b32 v15, v15, v{C_}, vcc")
    spread(k, 15, C_)
    k(f"v_mov_b32 v{C_}, {OOB}")
    k(f"v_cndmask_b32 v15, v{C_}, v15, s[50:51]")
    k(f"s_cmp_lt_u32 s3, 1"); k(f"s_cselect_b32 s24, 0, {OOB}")
    k("v_or_b32 v15, s24, v15")
    k("s_and_b32 s24, s3, 1"); k("s_lshl_b32 s24, s24, 7")
    k("s_lshr_b32 s25, s3, 1"); k("s_lshl_b32 s25, s25, 10")
    k("s_add_u32 s24, s24, s25")
    k("s_lshl_b32 s25, s44, 11"); k("s_add_u32 s25, s25, s24")
    k(f"v_lshlrev_b32 v22, 8, v{B_}")
    k(f"v_lshl_add_u32 v22, v{A_}, 4, v22")
    k("v_add_u32 v22, s25, v22")
    k("s_lshr_b32 s25, s44, 2"); k("s_lshl_b32 s25, s25, 11"); k("s_add_u32 s25, s25, s24")
    k("s_and_b32 s26, s44, 3"); k("s_lshl_b32 s26, s26, 8"); k("s_add_u32 s25, s25, s26"); k("s_add_u32 s25, s25, 65536")
    k(f"v_lshlrev_b32 v{C_}, 4, v{A_}")
    k(f"v_add_u32 v{C_}, s25, v{C_}")
    k(f"v_cmp_eq_u32 vcc, 4, v{B_}")
    k(f"v_cndmask_b32 v22, v22, v{C_}, vcc")
    spread(k, 22, C_)
    k(f"v_mov_b32 v{C_}, {OOB}")
    k(f"v_cndmask_b32 v22, v{C_}, v22, s[50:51]")
    k("s_mul_i32 s24, s44, 12288"); k("s_mul_i32 s25, s3, 3072"); k("s_add_u32 s24, s24, s25")
    k("v_add_u32 v19, s24, v5")
    aprobe_addr(k, 23, 's2', RH_M)
    k("s_lshr_b32 s25, s44, 3")
    ahint_addr(k, 20, A_, 's25', RH_P, True)
    k("v_mov_b32 v0, 1")
    event(k, 1, 48)
    k.lab('s_layer')
    layer_bases(k)
    k("v_and_b32 v9, 1, v1")
    k("v_lshlrev_b32 v9, 12, v9")
    k(f"s_lshl_b32 s24, s44, 7"); k(f"s_add_u32 s24, s24, s94")
    k("v_add_u32 v9, s24, v9")
    m0_image(k, 20, 48)
    k("s_mov_b32 s40, 0")
    k(f"s_mov_b32 s41, {WS_KF}")
    k("s_mov_b32 s37, s93")
    k(f"s_add_u32 s43, s93, {O_PB}")
    k(f"s_mov_b32 s45, {WS_QF}")
    k(f"s_add_u32 s49, s93, {O_HS}")
    def kx_loads():
        for b in range(3):
            k(f"buffer_load_dwordx4 a[{KX+4*b}:{KX+4*b+3}], v19, s[8:11], s41 offen offset:{b*1024} sc1")
    ensure_clear(k, 's_ec0', 48, 's40')
    k("s_mov_b32 s62, -1"); k("s_mov_b32 s63, 1")
    ensure(k, 's_en0', 2, 9, 48)
    kx_loads()
    event(k, 2, 48)
    k("s_waitcnt lgkmcnt(0)")
    for r in range(24): k(f"v_mov_b32 v{ACC+r}, 0")
    k("s_barrier")
    k("ds_read_b128 v[84:87], v7"); k("ds_read_b128 v[88:91], v7 offset:4096")
    k("s_waitcnt vmcnt(0) lgkmcnt(0)")
    for w in range(3):
        k(f"s_cmp_eq_u32 s3, {w}"); k(f"s_cbranch_scc1 {k.ref('s_gow' + str(w))}")
    k(f"s_branch {k.ref('s_gow3')}")
    P0 = 48
    def px_tail(t0, t1):
        sum4x8(k, P0, 21, 5632)
        softmax8(k, P0, t0, t1, masks=64)
        k(f"buffer_store_dwordx4 v[{P0+8}:{P0+11}], v22, s[8:11], s42 offen sc1")
    M32 = "v_mfma_f32_16x16x32_bf16"; M16 = "v_mfma_f32_16x16x16_bf16"
    XA, XB = 24, 32
    SC = [28, 36, 40]
    def epi_pair(p, dest):
        q = ACC + 4 * p; kk = ACC + 12 + 4 * p
        L = [f"v_permlane32_swap_b32 v{q+r}, v{kk+r}" for r in range(4)]
        L += [f"v_add_f32 v{q+r}, v{q+r}, v{kk+r}" for r in range(4)]
        L += [f"v_cvt_pk_bf16_f32 v{kk}, v{q}, v{q+1}", f"v_cvt_pk_bf16_f32 v{kk+1}, v{q+2}, v{q+3}"]
        L += [f"{M16} v[{q}:{q+3}], v[{kk}:{kk+1}], v[10:11], 0"]
        return L, [f"v_cvt_pk_bf16_f32 v{dest}, v{q}, v{q+1}", f"v_cvt_pk_bf16_f32 v{dest+1}, v{q+2}, v{q+3}"]
    def loop(w):
        sf = 'w' + str(w)
        k.lab('s_step' + sf)
        stamp(k, 0)
        for r in range(24): k(f"v_mov_b32 v{ACC+r}, 0")
        loads_ = [f"buffer_load_dwordx4 v[84:87], v7, s[8:11], s47 offen sc1",
                  f"buffer_load_dwordx4 v[88:91], v7, s[8:11], s46 offen sc1",
                  f"buffer_load_dwordx2 v[92:93], v8, s[8:11], s52 offen sc1"]
        k("s_add_u32 s46, s47, 4096"); k("s_add_u32 s52, s47, 8192")
        if CFG['s_pre']:
            lq = k.new('sq')
            k("s_cmp_eq_u32 s58, 1"); k(f"s_cbranch_scc1 {k.ref(lq)}")
            k("s_waitcnt vmcnt(0)")
            k("v_readlane_b32 s58, v60, 0"); k("v_readlane_b32 s24, v60, 1"); k("s_min_i32 s58, s58, s24"); k("s_max_i32 s62, s62, s58")
            k.lab(lq)
        ensure_clear(k, 's_ec' + sf, 48, 's40')
        k("s_add_u32 s63, s40, 1")
        ensure(k, 's_en' + sf, 2, 9, 48)
        if CFG['kx_pos'] == 0: kx_loads()
        if CFG['px_pos'] == 0: px_tail(80, 81)
        aprobe(k, 's_pr' + sf, 23, 's48', CFG['tgt_m'], [82, 83, 94, 95], CFG['pd_m'], CFG['pdep'], CFG['dly_m'])
        for l in loads_: k(l)
        ny = 0
        if CFG['kx_pos'] == 1: kx_loads(); ny += 3
        if CFG['px_pos'] == 1: px_tail(80, 81); ny += 1
        shot_check(k, 's_pm' + sf, loads_, range(84, 94), 58, ny, CFG['sl_m'])
        if CFG['kx_pos'] == 2: kx_loads()
        stamp(k, 1)
        k(f"ds_write_b128 v7, v[84:87]")
        k(f"ds_write_b128 v7, v[88:91] offset:4096")
        k(f"ds_write_b64 v8, v[92:93]")
        k.lab('s_go' + sf)
        lg = LG(k)
        own = [w, 4 + w]; oth = [c for c in range(10) if c not in own]
        def rdW(c, slot):
            b = WS5 + 8 * slot
            lg.issue(('W', c), f"ds_read_b128 v[{b}:{b+3}], v6 offset:{c*2048}")
            lg.issue(('W', c), f"ds_read_b128 v[{b+4}:{b+7}], v6 offset:{c*2048+1024}")
        def rdA(j):
            a = AF + 4 * (j % 5)
            lg.issue(('A', j), f"ds_read_b128 v[{a}:{a+3}], v5 offset:{oth[j % 8]*1024}")
        def sm(t, c, a, slot=None):
            if t == 3: B = f"v[{WS5+8*slot}:{WS5+8*slot+7}]"
            else:
                kind, r = wreg(t, c); B = f"{kind}[{r}:{r+7}]"
            k(f"v_smfmac_f32_16x16x64_bf16 v[{ACC+4*t}:{ACC+4*t+3}], v[{a}:{a+3}], {B}, v4")
        rdW(own[0], 0); rdW(own[1], 1)
        for t in (0, 1, 2, 4, 5): sm(t, own[0], 84)
        lg.wait(('W', own[0])); sm(3, own[0], 84, 0)
        rdW(oth[0], 0)
        k("s_barrier")
        for j in range(5): rdA(j)
        for t in (0, 1, 2, 4, 5): sm(t, own[1], 88)
        lg.wait(('W', own[1])); sm(3, own[1], 88, 1)
        rdW(oth[1], 1)
        for j in range(8):
            c = oth[j]; a = AF + 4 * (j % 5)
            lg.wait(('A', j))
            for t in (0, 1, 4): sm(t, c, a)
            lg.wait(('W', c)); sm(3, c, a, j % 2)
            if j + 2 < 8: rdW(oth[j + 2], j % 2)
            rdA(j + 5)
        for b in range(3):
            k(f"buffer_load_dwordx4 v[{QX+4*b}:{QX+4*b+3}], v19, s[8:11], s45 offen offset:{b*1024} sc1")
        e1a, e1b = epi_pair(1, XA + 2); e0a, e0b = epi_pair(0, XA)
        E = [None, None] + e1a + e0a + [None] + e0b + e1b + [f"s_waitcnt vmcnt({4 if (CFG['kx_pos'] == 1 and CFG['px_pos'] == 1) else 3})", None]
        E += [f"{M32} v[{SC[0]}:{SC[0]+3}], a[{KX}:{KX+3}], v[{XA}:{XA+3}], 0",
              f"{M32} v[{SC[1]}:{SC[1]+3}], a[{KX+4}:{KX+7}], v[{XA}:{XA+3}], 0",
              f"{M32} v[{SC[2]}:{SC[2]+3}], v[{XA}:{XA+3}], v[{XA}:{XA+3}], 0"]
        def extra(n):
            for _ in range(n):
                if E:
                    t_ = E.pop(0)
                    if t_: k(t_)
        for j in range(8, 16):
            c = oth[j - 8]; a = AF + 4 * (j % 5)
            lg.wait(('A', j))
            sm(2, c, a); extra(2)
            sm(5, c, a); extra(2)
            if j + 5 < 16: rdA(j + 5)
        extra(100)
        stamp(k, 2)
        if CFG['hs_pos'] == 2 and w == 0: ahint(k, 20, 0, 's49')
        e2a, e2b = epi_pair(2, XB)
        for t_ in e2a: k(t_)
        if CFG['hs_pos'] == 20 and w == 0: ahint(k, 20, 0, 's49')
        for t_ in e2b: k(t_)
        if CFG['hs_pos'] == 21 and w == 0: ahint(k, 20, 0, 's49')
        k(f"{M16} v[{SC[0]}:{SC[0]+3}], a[{KX+8}:{KX+9}], v[{XB}:{XB+1}], v[{SC[0]}:{SC[0]+3}]")
        k(f"{M16} v[{SC[1]}:{SC[1]+3}], a[{KX+10}:{KX+11}], v[{XB}:{XB+1}], v[{SC[1]}:{SC[1]+3}]")
        k(f"{M16} v[{SC[2]}:{SC[2]+3}], v[{XB}:{XB+1}], v[{XB}:{XB+1}], v[{SC[2]}:{SC[2]+3}]")
        if CFG['hs_pos'] == 22 and w == 0: ahint(k, 20, 0, 's49')
        k(f"ds_write_b128 v12, v[{SC[0]}:{SC[0]+3}]")
        k(f"ds_write_b128 v12, v[{SC[1]}:{SC[1]+3}] offset:16")
        k(f"ds_write_b128 v13, v[{SC[2]}:{SC[2]+3}]")
        if CFG['hs_pos'] == 23 and w == 0: ahint(k, 20, 0, 's49')
        k("s_waitcnt lgkmcnt(0)")
        k("s_barrier")
        stamp(k, 3)
        if w == 0:
            if CFG['hs_pos'] == 3: ahint(k, 20, 0, 's49')
            sum4x8(k, P0, 14, 1408)
            softmax8(k, P0, T0, T1)
            k(f"buffer_store_dwordx4 v[{P0+8}:{P0+11}], v15, s[8:11], s43 offen sc1")
        stamp(k, 4)
        sx = lambda kt, tt: [36, 40, 44, 64, 68, 72][kt * 2 + tt]
        k(f"s_waitcnt vmcnt({2 if w == 0 else 0})")
        if CFG['s_pre']:
            lq = k.new('sq')
            k(f"s_add_u32 s24, s40, {1 + CFG['s_pre']}"); k("s_min_u32 s24, s24, 64"); k("s_cmp_ge_i32 s62, s24"); k("s_cselect_b32 s58, 1, 0")
            k(f"s_cbranch_scc1 {k.ref(lq)}")
            k("buffer_load_dword v60, v9, s[8:11], 0 offen sc1")
            k.lab(lq)
        keys32 = [f"a[{KX}:{KX+3}]", f"a[{KX+4}:{KX+7}]", f"v[{XA}:{XA+3}]"]
        keys16 = [f"a[{KX+8}:{KX+9}]", f"a[{KX+10}:{KX+11}]", f"v[{XB}:{XB+1}]"]
        for tt in range(2):
            for kt in range(3):
                a = sx(kt, tt)
                k(f"{M32} v[{a}:{a+3}], {keys32[kt]}, v[{QX+4*tt}:{QX+4*tt+3}], 0")
        for tt in range(2):
            for kt in range(3):
                a = sx(kt, tt)
                k(f"{M16} v[{a}:{a+3}], {keys16[kt]}, v[{QX+8+2*tt}:{QX+8+2*tt+1}], v[{a}:{a+3}]")
        for tt in range(2):
            k(f"ds_write_b128 v16, v[{sx(0,tt)}:{sx(0,tt)+3}] offset:{tt*2816}")
            k(f"ds_write_b128 v16, v[{sx(1,tt)}:{sx(1,tt)+3}] offset:{tt*2816+16}")
            k(f"ds_write_b128 v{17+tt}, v[{sx(2,tt)}:{sx(2,tt)+3}]")
        k("s_add_u32 s40, s40, 1")
        k(f"s_add_u32 s41, s41, {QF_SEG}")
        k(f"s_add_u32 s45, s45, {QF_SEG}")
        k(f"s_add_u32 s47, s37, {O_MB}"); k(f"s_add_u32 s48, s37, {O_HR}"); k(f"s_xor_b32 s42, s37, 0x2000")
        blk_base(k, 's40', 's37')
        k(f"s_add_u32 s43, s37, {O_PB}"); k(f"s_add_u32 s49, s37, {O_HS}")
        k("s_waitcnt lgkmcnt(0)")
        k("s_barrier")
        stamp(k, 5)
        if CFG['stamp']:
            k("s_sub_u32 s40, s40, 1"); stamp_out(k, 6, 46); k("s_add_u32 s40, s40, 1")
        k("s_cmp_lt_u32 s40, 64")
        k(f"s_cbranch_scc1 {k.ref('s_step' + sf)}")
        if w < 3: k(f"s_branch {k.ref('s_end')}")
    for w in range(4): loop(w)
    k.lab('s_end')
    px_tail(80, 81)
    event(k, 3, 48)
    next_layer(k, 's_layer')

def role_V2(k):
    L_M, L_V, L_WO, L_ST = 0, 10240, 16384, 16384 + 73728
    RS1, RS2 = 400, 656
    MA, VACC, VA, STG = 16, 56, 68, 80
    def wv(t, c): return 'a', t * 80 + c * 8
    def wo(t, c):
        i = t * 3 + c
        if i < 2: return 'a', 240 + 8 * i
        return 'v', 104 + 8 * (i - 2)
    k("s_sub_u32 s44, s2, 32")
    k.ptr(KA_WV, 6); k.ptr(KA_WO, 24); k.ptr(KA_MEM0, 26)
    k("s_waitcnt lgkmcnt(0)")
    k.srd(12, 6, D * HD * 2); k.srd(16, 24, D * HD * 2); k.srd(20, 26, 8 * 640 * 2)
    GO, LO, DAT = 4, 10, 24
    stage_offsets(k, 6, 24, HD * 2, RS1, L_ST, GO, LO, 16)
    tr_base(k, 16, RS1, L_ST, 17)
    k("s_mul_i32 s24, s3, 96")
    k("v_add_u32 v16, s24, v16")
    k(f"s_mul_i32 s45, s44, 384")
    def loads(c):
        d = DAT + 24 * (c % 3)
        k(f"s_add_u32 s46, s45, {c * 64 * HD * 2}")
        for i in range(6):
            k(f"buffer_load_dwordx4 v[{d+4*i}:{d+4*i+3}], v{GO+i}, s[12:15], s46 offen")
    loads(0); loads(1)
    for c in range(10):
        d = DAT + 24 * (c % 3)
        k(f"s_waitcnt vmcnt({6 if c + 1 < 10 else 0})")
        for i in range(6): k(f"ds_write_b128 v{LO+i}, v[{d+4*i}:{d+4*i+3}]")
        if c + 2 < 10: loads(c + 2)
        k("s_waitcnt lgkmcnt(0)")
        k("s_barrier")
        for t in range(3):
            kind, r = wv(t, c)
            tr_frag(k, r, kind, 16, RS1, 32 * t)
        k("s_waitcnt lgkmcnt(0)")
        k("s_barrier")
    GO, LO, DAT = 4, 14, 24
    stage_offsets(k, 10, 40, 1280, RS2, L_ST, GO, LO, 64)
    tr_base(k, 72, RS2, L_ST, 64)
    k("s_and_b32 s24, s3, 1"); k("s_mul_i32 s24, s24, 320")
    k("v_add_u32 v72, s24, v72")
    k("v_lshlrev_b32 v73, 4, v1")
    k(f"s_mul_i32 s24, s3, 18432"); k(f"s_add_u32 s24, s24, {L_WO}")
    k("v_add_u32 v73, s24, v73")
    k(f"s_mul_i32 s45, s44, {192*1280}")
    for c in range(3):
        for hf in range(2):
            k(f"s_add_u32 s46, s45, {c*64*1280 + hf*640}")
            for i in range(10):
                k(f"buffer_load_dwordx4 v[{DAT+4*i}:{DAT+4*i+3}], v{GO+i}, s[16:19], s46 offen")
            k("s_waitcnt vmcnt(0)")
            for i in range(10): k(f"ds_write_b128 v{LO+i}, v[{DAT+4*i}:{DAT+4*i+3}]")
            k("s_waitcnt lgkmcnt(0)")
            k("s_barrier")
            l = k.new('wo')
            k("s_lshr_b32 s24, s3, 1")
            k(f"s_cmp_eq_u32 s24, {hf}")
            k(f"s_cbranch_scc0 {k.ref(l)}")
            for t in range(10):
                if t < 7:
                    kind, r = wo(t, c)
                    tr_frag(k, r, kind, 72, RS2, 32 * t)
                else:
                    tr_frag(k, 64, 'v', 72, RS2, 32 * t)
                    k("s_waitcnt lgkmcnt(0)")
                    o = ((t - 7) * 3 + c) * 2048
                    k(f"ds_write_b128 v73, v[64:67] offset:{o}")
                    k(f"ds_write_b128 v73, v[68:71] offset:{o+1024}")
                    k("s_waitcnt lgkmcnt(0)")
            k("s_waitcnt lgkmcnt(0)")
            k.lab(l)
            k("s_barrier")
    k("v_mov_b32 v6, v73")
    k("v_mov_b32 v4, 0x4444"); k("v_mov_b32 v5, 0xeeee")
    k("v_cmp_gt_u32 vcc, 8, v2")
    k("v_cndmask_b32 v4, v5, v4, vcc")
    k("v_lshlrev_b32 v5, 4, v1")
    k("s_lshl_b32 s24, s3, 10")
    k("v_add_u32 v7, s24, v5")
    k("s_lshl_b32 s24, s3, 9"); k("s_add_u32 s24, s24, 8192")
    k("v_lshlrev_b32 v8, 3, v1")
    k("v_add_u32 v8, s24, v8")
    k("v_and_b32 v64, 7, v2"); k("v_lshlrev_b32 v9, 5, v64")
    k("v_lshrrev_b32 v64, 3, v2"); k("v_lshl_add_u32 v9, v64, 4, v9")
    k("v_and_b32 v64, 1, v3"); k("v_lshl_add_u32 v9, v64, 3, v9")
    k(f"s_mul_i32 s24, s3, 768"); k(f"s_add_u32 s24, s24, {L_V}")
    k("v_add_u32 v9, s24, v9")
    k("v_lshrrev_b32 v65, 1, v3")
    k("v_lshl_add_u32 v10, v65, 8, v9")
    k("v_lshrrev_b32 v64, 2, v2"); k("v_lshlrev_b32 v11, 5, v64")
    k("v_and_b32 v64, 3, v2"); k("v_lshl_add_u32 v11, v64, 3, v11")
    k("v_lshl_add_u32 v11, v3, 8, v11")
    k(f"v_add_u32 v11, {L_V}, v11")
    k("s_mul_i32 s24, s3, 10"); k("s_lshl_b32 s24, s24, 14"); k("s_lshl_b32 s25, s44, 8"); k("s_add_u32 s24, s24, s25")
    k("v_lshlrev_b32 v14, 14, v3")
    k("v_lshl_add_u32 v14, v2, 4, v14")
    k("v_add_u32 v14, s24, v14")
    k("v_lshrrev_b32 v64, 1, v3")
    k("v_lshlrev_b32 v15, 14, v64")
    k("v_lshl_add_u32 v15, v2, 4, v15")
    k("v_add_u32 v15, s24, v15")
    k(f"v_add_u32 v15, {8*16384}, v15")
    k("v_and_b32 v64, 1, v3")
    k("v_cmp_eq_u32 vcc, 0, v64")
    k(f"v_mov_b32 v64, {OOB}")
    k("v_cndmask_b32 v15, v64, v15, vcc")
    aprobe_addr(k, 12, 's2', RH_M)
    k("v_mov_b32 v0, 1")
    event(k, 1, 64)
    k.lab('v_layer')
    layer_bases(k)
    m0_image(k, 20, 64)
    k("s_mov_b32 s40, 0")
    k("s_mov_b32 s37, s93")
    k(f"s_add_u32 s43, s93, {O_VOM}")
    ensure_clear(k, 'v_ec0', 64, 's40')
    for r in range(16, 68): k(f"v_mov_b32 v{r}, 0")
    k("s_waitcnt lgkmcnt(0)")
    k("s_barrier")
    k("ds_read_b128 v[68:71], v7"); k("ds_read_b128 v[72:75], v7 offset:4096")
    k("s_waitcnt lgkmcnt(0)")
    for w in range(3):
        k(f"s_cmp_eq_u32 s3, {w}"); k(f"s_cbranch_scc1 {k.ref('v_gow' + str(w))}")
    k(f"s_branch {k.ref('v_gow3')}")
    SMF = "v_smfmac_f32_16x16x64_bf16"
    def loop(w):
        sf = 'w' + str(w)
        k.lab('v_step' + sf)
        stamp(k, 0)
        for r in range(16, 68): k(f"v_mov_b32 v{r}, 0")
        loads_ = [f"buffer_load_dwordx4 v[68:71], v7, s[8:11], s47 offen sc1",
                  f"buffer_load_dwordx4 v[72:75], v7, s[8:11], s48 offen sc1",
                  f"buffer_load_dwordx2 v[76:77], v8, s[8:11], s50 offen sc1"]
        k("s_add_u32 s48, s47, 4096"); k("s_add_u32 s50, s47, 8192")
        ensure_clear(k, 'v_ec' + sf, 78, 's40')
        aprobe(k, 'v_pr' + sf, 12, 's45', CFG['tgt_m'], [80, 81, 82, 83], CFG['pd_m'], CFG['pdep'], CFG['dly_v'])
        stamp(k, 5)
        for l in loads_: k(l)
        shot_check(k, 'v_pm' + sf, loads_, range(68, 78), 104 - 1, 0, CFG['sl_m'])
        stamp(k, 1)
        k(f"ds_write_b128 v7, v[68:71]")
        k(f"ds_write_b128 v7, v[72:75] offset:4096")
        k(f"ds_write_b64 v8, v[76:77]")
        k.lab('v_go' + sf)
        lg = LG(k)
        own = [w, 4 + w]; oth = [c for c in range(10) if c not in own]
        SL = [80, 84, 88, 92, 96, 100, 76, 68]
        def rdA(j):
            lg.issue(('A', j), f"ds_read_b128 v[{SL[j]}:{SL[j]+3}], v5 offset:{oth[j]*1024}")
        def sm(t, c, a):
            kind, r = wv(t, c)
            k(f"{SMF} v[{VACC+4*t}:{VACC+4*t+3}], v[{a}:{a+3}], {kind}[{r}:{r+7}], v4")
        for t in range(3): sm(t, own[0], 68)
        k("s_waitcnt lgkmcnt(0)")
        k("s_barrier")
        for j in range(8): rdA(j)
        for t in (2, 0, 1): sm(t, own[1], 72)
        for j in range(8):
            lg.wait(('A', j)); sm(2, oth[j], SL[j])
        E = [None] * 5
        E += [f"v_mov_b32 v{72+r}, v{VACC+8+r}" for r in range(4)] + [None]
        E += [f"v_permlane32_swap_b32 v{VACC+8+r}, v{72+r}" for r in range(4)]
        E += [f"v_add_f32 v{VACC+8+r}, v{VACC+8+r}, v{72+r}" for r in range(4)]
        E += [f"v_cvt_pk_bf16_f32 v72, v{VACC+8}, v{VACC+9}", f"v_cvt_pk_bf16_f32 v73, v{VACC+10}, v{VACC+11}"]
        E += [('x', f"ds_write_b64 v9, v[72:73] offset:512")]
        def extra(n):
            for _ in range(n):
                if E:
                    t_ = E.pop(0)
                    if isinstance(t_, tuple): lg.issue(*t_)
                    elif t_: k(t_)
        for j in range(8):
            sm(0, oth[j], SL[j]); extra(2)
            sm(1, oth[j], SL[j]); extra(2)
        extra(100)
        stamp(k, 2)
        for r in range(4): k(f"v_permlane32_swap_b32 v{VACC+r}, v{VACC+4+r}")
        for r in range(4): k(f"v_add_f32 v{VACC+r}, v{VACC+r}, v{VACC+4+r}")
        k(f"v_cvt_pk_bf16_f32 v{VA}, v{VACC}, v{VACC+1}")
        k(f"v_cvt_pk_bf16_f32 v{VA+1}, v{VACC+2}, v{VACC+3}")
        lg.issue('x', f"ds_write_b64 v10, v[{VA}:{VA+1}]")
        lg.all()
        k("s_barrier")
        for c in range(3):
            lg.issue(('V', c), f"ds_read_b64_tr_b16 v[{VA+4*c}:{VA+4*c+1}], v11 offset:{c*1024}")
            lg.issue(('V', c), f"ds_read_b64_tr_b16 v[{VA+4*c+2}:{VA+4*c+3}], v11 offset:{c*1024+128}")
        def rdWo(t, c, slot):
            b = STG + 8 * slot; o = ((t - 7) * 3 + c) * 2048
            lg.issue(('W', t, c), f"ds_read_b128 v[{b}:{b+3}], v6 offset:{o}")
            lg.issue(('W', t, c), f"ds_read_b128 v[{b+4}:{b+7}], v6 offset:{o+1024}")
        for c in range(3): rdWo(7, c, c)
        stamp(k, 3)
        acc = lambda t: MA + 4 * t
        def mm(t, c, B):
            k(f"{SMF} v[{acc(t)}:{acc(t)+3}], v[{VA+4*c}:{VA+4*c+3}], {B}, v4")
        def B_reg(t, c):
            kind, r = wo(t, c); return f"{kind}[{r}:{r+7}]"
        OUT = 56
        def epi(T, o):
            L = []
            t0, t1, t2, t3 = T
            for (x, y) in ((t0, t2), (t1, t3)):
                for r in range(4): L.append(f"v_permlane32_swap_b32 v{acc(x)+r}, v{acc(y)+r}")
                for r in range(4): L.append(f"v_add_f32 v{acc(x)+r}, v{acc(x)+r}, v{acc(y)+r}")
            L.append(f"v_cvt_pk_bf16_f32 v{o}, v{acc(t0)}, v{acc(t0)+1}")
            L.append(f"v_cvt_pk_bf16_f32 v{o+1}, v{acc(t0)+2}, v{acc(t0)+3}")
            L.append(f"v_cvt_pk_bf16_f32 v{o+2}, v{acc(t1)}, v{acc(t1)+1}")
            L.append(f"v_cvt_pk_bf16_f32 v{o+3}, v{acc(t1)+2}, v{acc(t1)+3}")
            L.append(None)
            L.append(f"v_permlane16_swap_b32 v{o}, v{o+2}")
            L.append(f"v_permlane16_swap_b32 v{o+1}, v{o+3}")
            for r in range(4): L.append(f"v_min_u32 v{o+r}, -2, v{o+r}")
            return L
        for c in range(3):
            lg.wait(('V', c))
            for t in range(4): mm(t, c, B_reg(t, c))
        E += [None, None] + epi([0, 1, 2, 3], OUT) + [f"buffer_store_dwordx4 v[{OUT}:{OUT+3}], v14, s[8:11], s43 offen sc1"]
        for c in range(3):
            for t in (4, 5, 6): mm(t, c, B_reg(t, c)); extra(2)
            lg.wait(('W', 7, c))
            mm(7, c, f"v[{STG+8*c}:{STG+8*c+7}]"); extra(2)
            rdWo(8, c, c)
        extra(100)
        k("s_add_u32 s49, s43, 65536")
        E += [None] + epi([4, 5, 6, 7], OUT + 4) + [f"buffer_store_dwordx4 v[{OUT+4}:{OUT+7}], v14, s[8:11], s49 offen sc1"]
        for c in range(3):
            lg.wait(('W', 8, c))
            mm(8, c, f"v[{STG+8*c}:{STG+8*c+7}]"); extra(CFG['v_x8'])
            rdWo(9, c, c)
        extra(CFG['v_x9'])
        for c in range(3):
            lg.wait(('W', 9, c))
            mm(9, c, f"v[{STG+8*c}:{STG+8*c+7}]"); extra(3)
        extra(100)
        o = OUT + 8
        for r in range(4): k(f"v_permlane32_swap_b32 v{acc(8)+r}, v{acc(9)+r}")
        for r in range(4): k(f"v_add_f32 v{acc(8)+r}, v{acc(8)+r}, v{acc(9)+r}")
        k(f"v_cvt_pk_bf16_f32 v{o}, v{acc(8)}, v{acc(8)+1}")
        k(f"v_cvt_pk_bf16_f32 v{o+1}, v{acc(8)+2}, v{acc(8)+3}")
        k(f"v_mov_b32 v{o+2}, v{o}")
        k(f"v_mov_b32 v{o+3}, v{o+1}")
        k(f"v_permlane16_swap_b32 v{o}, v{o+2}")
        k(f"v_permlane16_swap_b32 v{o+1}, v{o+3}")
        for r in range(4): k(f"v_min_u32 v{o+r}, -2, v{o+r}")
        k(f"buffer_store_dwordx4 v[{o}:{o+3}], v15, s[8:11], s43 offen sc1")
        stamp(k, 4)
        stamp_out(k, 6, 46)
        k("s_add_u32 s40, s40, 1")
        k(f"s_add_u32 s47, s37, {O_MB}"); k(f"s_add_u32 s45, s37, {O_HR}")
        blk_base(k, 's40', 's37')
        k(f"s_add_u32 s43, s37, {O_VOM}")
        k("s_cmp_lt_u32 s40, 64")
        k(f"s_cbranch_scc1 {k.ref('v_step' + sf)}")
        if w < 3: k(f"s_branch {k.ref('v_end')}")
    for w in range(4): loop(w)
    k.lab('v_end')
    event(k, 3, 64)
    next_layer(k, 'v_layer')

def role_R(k):
    BX, BN, PX, PM, VM, A1, A2 = 16, 48, 80, 96, 100, 108, 112
    TQ = 204
    k.lab('r_top')
    k("s_barrier")
    lk = k.new('rk')
    k("s_sub_u32 s24, s2, 64")
    k("s_cmp_ge_u32 s24, 24"); k(f"s_cbranch_scc1 {k.ref(lk)}")
    k("s_and_b32 s44, s24, 7"); k("s_lshr_b32 s45, s24, 3")
    k("s_cmp_eq_u32 s92, 0"); k("s_cselect_b32 s46, 32, 2")
    A.role_K2(k, Hooks())
    event(k, 5, 14)
    k.lab(lk)
    k("s_sub_u32 s44, s2, 64")
    k("v_lshlrev_b32 v5, 4, v1")
    k("s_lshl_b32 s24, s44, 15"); k("s_lshl_b32 s25, s3, 13"); k("s_add_u32 s24, s24, s25")
    k("v_add_u32 v6, s24, v5")
    k("v_add_u32 v7, 4096, v6")
    k("s_lshl_b32 s24, s3, 12"); k("s_and_b32 s25, s24, 0x2000"); k("s_add_u32 s24, s24, s25")
    k("v_add_u32 v8, s24, v5")
    k("s_lshl_b32 s24, s3, 10"); k("s_add_u32 s24, s24, 32768")
    k("v_add_u32 v9, s24, v5")
    k("s_lshl_b32 s24, s44, 14"); k("s_lshl_b32 s25, s3, 11"); k("s_add_u32 s24, s24, s25")
    k("v_add_u32 v10, s24, v5")
    k(f"v_and_b32 v{TQ}, 7, v2"); k(f"v_mul_u32_u24 v11, 80, v{TQ}")
    k("v_lshl_add_u32 v11, v3, 4, v11")
    k("s_mul_i32 s24, s3, 640")
    k("v_add_u32 v11, s24, v11")
    k(f"v_add_u32 v{TQ}, 8192, v5")
    k("v_cmp_gt_u32 vcc, 8, v2")
    k(f"v_cndmask_b32 v11, v{TQ}, v11, vcc")
    k(f"v_and_b32 v{TQ}, 7, v2"); k(f"v_mul_u32_u24 v12, 80, v{TQ}")
    k(f"v_lshrrev_b32 v{TQ}, 3, v2"); k(f"v_lshl_add_u32 v12, v{TQ}, 5, v12")
    k("v_lshlrev_b32 v13, 4, v2")
    k("s_lshl_b32 s24, s44, 8"); k("s_and_b32 s25, s24, 0x2000"); k("s_add_u32 s24, s24, s25")
    k("v_add_u32 v13, s24, v13")
    k(f"v_mov_b32 v{TQ}, {OOB}")
    k(f"v_cmp_gt_u32 vcc, 1, v3")
    k(f"v_cndmask_b32 v13, v{TQ}, v13, vcc")
    k("v_cmp_le_u32 s[50:51], 8, v2")
    k("s_and_b32 s25, s44, 15"); k("s_lshr_b32 s25, s25, 2")
    k("s_sub_u32 s26, s44, 32"); k("s_lshr_b32 s26, s26, 1")
    k("s_cmp_ge_u32 s44, 32"); k("s_cselect_b32 s25, s26, s25")
    ahint_addr(k, 120, TQ, 's25', RH_M, False)
    aprobe_addr(k, 125, 's44', RH_P)
    k("v_mov_b32 v122, 12288")
    k("v_mov_b32 v123, 0")
    k("s_barrier")
    k("ds_write_b32 v122, v123")
    k("v_mov_b32 v123, 1")
    k("s_waitcnt lgkmcnt(0)")
    k("s_barrier")
    layer_bases(k)
    k("s_mov_b32 s40, 0")
    k(f"s_mov_b32 s41, {WS_VOX}")
    k(f"s_add_u32 s45, s93, {O_HS}")
    k(f"s_add_u32 s46, s93, {O_HR}")
    k(f"s_add_u32 s43, s93, {O_PB}")
    k(f"s_add_u32 s42, s93, {O_VOM}")
    k(f"s_add_u32 s47, s93, {O_MB}")
    if CFG['rv_off']:
        k("s_cmp_eq_u32 s92, 1"); k(f"s_cselect_b32 s24, {OOB}, 0"); k("v_or_b32 v6, s24, v6"); k("v_or_b32 v7, s24, v7")
    def vox_loads():
        for q in range(4):
            k(f"buffer_load_dwordx4 v[{BN+4*q}:{BN+4*q+3}], v6, s[8:11], s41 offen offset:{q*1024} sc1")
        for q in range(4):
            k(f"buffer_load_dwordx4 v[{BN+16+4*q}:{BN+16+4*q+3}], v7, s[8:11], s41 offen offset:{q*1024} sc1")
        k(f"s_add_u32 s41, s41, {VOX_SEG}")
    k("v_and_b32 v252, 7, v1")
    k("v_lshlrev_b32 v252, 7, v252")
    k(f"s_lshl_b32 s24, s3, 10"); k(f"s_add_u32 s24, s24, {3*4096}"); k("s_add_u32 s24, s24, s94")
    k("v_add_u32 v252, s24, v252")
    k("s_mov_b32 s62, -1"); k("s_mov_b32 s63, 1")
    ensure(k, 'r_en0', 8, 252, 253)
    vox_loads()
    event(k, 2, 204)
    k.lab('r_step')
    k("s_waitcnt vmcnt(0)")
    for r in range(32): k(f"v_mov_b32 v{BX+r}, v{BN+r}")
    stamp(k, 0)
    loads_ = [f"buffer_load_dwordx4 v[{PX+4*q}:{PX+4*q+3}], v8, s[8:11], s43 offen offset:{q*1024} sc1" for q in range(4)]
    loads_ += [f"buffer_load_dwordx4 v[{PM}:{PM+3}], v9, s[8:11], s43 offen sc1"]
    loads_ += [f"buffer_load_dwordx4 v[{VM+4*q}:{VM+4*q+3}], v10, s[8:11], s42 offen offset:{q*1024} sc1" for q in range(2)]
    ensure_clear(k, 'r_ec', 253, 's40')
    aprobe(k, 'r_pr', 125, 's45', CFG['tgt_p'], [116, 117, 118, 119], CFG['pd_p'], CFG['pdep'], CFG['dly_p'])
    stamp(k, 4)
    loads_ = loads_[5:] + loads_[:5]
    for l in loads_: k(l)
    if CFG['hr_pos'] == 0:
        k("s_mov_b64 exec, 1")
        k("ds_add_rtn_u32 v124, v122, v123")
        k("s_mov_b64 exec, -1")
        if CFG['dly_hr']: k(f"s_sleep {CFG['dly_hr']}")
        k("s_waitcnt lgkmcnt(0)")
        k("v_readfirstlane_b32 s24, v124")
        k("s_and_b32 s24, s24, 3")
        k("s_cmp_eq_u32 s24, 3"); k(f"s_cselect_b32 s24, 0, {OOB}")
        k("v_or_b32 v126, s24, v120")
        ahint(k, 126, 123, 's46')
    shot_check(k, 'r_p', loads_, range(PX, VM + 8), TQ, 1 if CFG['hr_pos'] == 0 else 0, CFG['sl_p'])
    if CFG['hr_pos'] == 1:
        k("s_mov_b64 exec, 1")
        k("ds_add_rtn_u32 v124, v122, v123")
        k("s_mov_b64 exec, -1")
    stamp(k, 1)
    k(f"v_mfma_f32_16x16x32_bf16 v[{A1}:{A1+3}], v[{VM}:{VM+3}], v[{PM}:{PM+3}], 0")
    k(f"v_mfma_f32_16x16x32_bf16 v[{A2}:{A2+3}], v[{VM+4}:{VM+7}], v[{PM}:{PM+3}], 0")
    for q in range(4):
        k(f"v_mfma_f32_16x16x32_bf16 v[{A1}:{A1+3}], v[{BX+8*q}:{BX+8*q+3}], v[{PX+4*q}:{PX+4*q+3}], v[{A1}:{A1+3}]")
        k(f"v_mfma_f32_16x16x32_bf16 v[{A2}:{A2+3}], v[{BX+8*q+4}:{BX+8*q+7}], v[{PX+4*q}:{PX+4*q+3}], v[{A2}:{A2+3}]")
        if q == 0 and CFG['hr_pos'] == 1:
            lh = k.new('nh')
            k("s_waitcnt lgkmcnt(0)")
            k("v_readfirstlane_b32 s24, v124")
            k("s_and_b32 s24, s24, 3")
            k(f"s_cmp_eq_u32 s24, {CFG['hr_wave']}")
            k(f"s_cbranch_scc0 {k.ref(lh)}")
            ahint(k, 120, 123, 's46')
            k.lab(lh)
    k("s_and_b32 s24, s40, 1"); k("s_mul_i32 s24, s24, 2560")
    k("v_add_u32 v14, s24, v11")
    k("v_add_u32 v15, s24, v12")
    for r in range(4): k(f"v_cndmask_b32 v{A1+r}, v{A1+r}, v{A2+r}, s[50:51]")
    for r in range(4): k(f"v_add_f32 v{A1+r}, v{A1+r}, v{A1+r} row_ror:8 row_mask:0xf bank_mask:0xf")
    k(f"ds_write_b128 v14, v[{A1}:{A1+3}]")
    k("s_waitcnt lgkmcnt(0)")
    k("s_barrier")
    stamp(k, 2)
    l = k.new('np')
    k("s_cmp_eq_u32 s3, 0")
    k(f"s_cbranch_scc0 {k.ref(l)}")
    Q0 = 220
    sum4x8(k, Q0, 15, 640)
    for q in range(4): k(f"v_cvt_pk_bf16_f32 v{Q0+8+q}, v{Q0+2*q}, v{Q0+2*q+1}")
    for q in range(4): k(f"v_min_u32 v{Q0+8+q}, -2, v{Q0+8+q}")
    k(f"buffer_store_dwordx4 v[{Q0+8}:{Q0+11}], v13, s[8:11], s47 offen sc1")
    k.lab(l)
    if CFG['xflag']:
        l = k.new('xf')
        k("s_cmp_eq_u32 s3, 1"); k(f"s_cbranch_scc0 {k.ref(l)}")
        k("s_cmp_eq_u32 s44, 39"); k(f"s_cbranch_scc0 {k.ref(l)}")
        k("s_lshl_b32 s24, s92, 6"); k("s_add_u32 s24, s24, s40"); k("s_add_u32 s24, s24, 1")
        k(f"v_lshlrev_b32 v{TQ}, 7, v1"); k(f"v_add_u32 v{TQ}, {WS_FLG + F_S}, v{TQ}")
        k(f"v_mov_b32 v{TQ+1}, {OOB}"); k("v_cmp_le_u32 vcc, 8, v1"); k(f"v_cndmask_b32 v{TQ}, v{TQ}, v{TQ+1}, vcc")
        k(f"v_mov_b32 v{TQ+1}, s24")
        k(f"buffer_store_dword v{TQ+1}, v{TQ}, s[8:11], 0 offen sc1")
        k.lab(l)
    stamp(k, 3)
    k("s_add_u32 s63, s40, 2"); k("s_min_u32 s63, s63, 64")
    if CFG['r_pre']:
        lq = k.new('rq')
        k("s_cmp_ge_i32 s62, s63"); k("s_cselect_b32 s58, 1, 0")
        if CFG['r_pre'] == 2: k("s_add_u32 s24, s63, 1"); k("s_min_u32 s24, s24, 64"); k("s_cmp_ge_i32 s62, s24"); k("s_cselect_b32 s58, 1, 0")
        k("s_cmp_eq_u32 s58, 1"); k(f"s_cbranch_scc1 {k.ref(lq)}")
        k("buffer_load_dword v253, v252, s[8:11], 0 offen sc1")
        k.lab(lq)
    if CFG['dly_vox']: k(f"s_sleep {CFG['dly_vox']}")
    if CFG['r_pre']:
        lq = k.new('rq')
        k("s_cmp_eq_u32 s58, 1"); k(f"s_cbranch_scc1 {k.ref(lq)}")
        k("s_waitcnt vmcnt(0)")
        k("v_readlane_b32 s58, v253, 0")
        for i in range(1, 8): k(f"v_readlane_b32 s24, v253, {i}"); k("s_min_i32 s58, s58, s24")
        k("s_max_i32 s62, s62, s58")
        k.lab(lq)
    ensure(k, 'r_en', 8, 252, 253)
    vox_loads()
    stamp(k, 5)
    stamp_out(k, 6, TQ)
    k("s_add_u32 s40, s40, 1")
    blk_base(k, 's40', 's37')
    for sreg, o_ in (('s42', O_VOM), ('s43', O_PB), ('s47', O_MB), ('s45', O_HS), ('s46', O_HR)): k(f"s_add_u32 {sreg}, s37, {o_}")
    k("s_cmp_lt_u32 s40, 64")
    k(f"s_cbranch_scc1 {k.ref('r_step')}")
    k("s_waitcnt vmcnt(0)")
    event(k, 3, 204)
    next_layer(k, 'r_top')
def flag_pub(k, val):
    l = k.new('fp')
    k("s_cmp_eq_u32 s3, 0")
    k(f"s_cbranch_scc0 {k.ref(l)}")
    k(f"v_mov_b32 v15, {val}")
    k("buffer_store_dword v15, v14, s[8:11], 0 offen sc1")
    k.lab(l)

def flag_addr(k, role_sreg_or_const):
    if isinstance(role_sreg_or_const, int): k(f"s_mov_b32 s24, {role_sreg_or_const * 4096}")
    else: k(f"s_lshl_b32 s24, {role_sreg_or_const}, 12")
    k("s_lshl_b32 s25, s44, 7"); k("s_add_u32 s24, s24, s25"); k(f"s_add_u32 s24, s24, s94")
    k("v_mov_b32 v14, s24")
    k(f"v_mov_b32 v15, {OOB}")
    k("v_cmp_eq_u32 vcc, 0, v1")
    k("v_cndmask_b32 v14, v15, v14, vcc")

X_L_O = 83968
def x_init(k):
    TQ = 192
    k("s_sub_u32 s70, s2, 104")
    k("s_mul_i32 s71, s70, 205"); k("s_lshr_b32 s71, s71, 12")
    k("s_mul_i32 s24, s71, 20"); k("s_sub_u32 s70, s70, s24")
    k("s_cmp_lt_u32 s71, 4"); k("s_cselect_b32 s64, s71, 64")
    if CFG['x_off']: k("s_cmp_eq_u32 s92, 1"); k("s_cselect_b32 s64, 64, s64")
    k("s_lshl_b32 s24, s70, 16"); k("s_lshl_b32 s25, s3, 13"); k("s_add_u32 s24, s24, s25")
    k("v_add_u32 v240, s24, v5")
    k("v_add_u32 v241, 4096, v240")
    k("s_lshl_b32 s24, s70, 15"); k("s_lshl_b32 s25, s3, 11"); k("s_add_u32 s24, s24, s25")
    k("v_add_u32 v242, s24, v5")
    k("s_lshl_b32 s24, s3, 15")
    k(f"v_add_u32 v{TQ+1}, s24, v5")
    for jj in range(4): k(f"v_add_u32 v{212+jj}, {(jj >> 1)*16384 + (jj & 1)*4096}, v{TQ+1}")
    k("s_lshl_b32 s24, s3, 12"); k("s_and_b32 s25, s24, 0x2000"); k("s_add_u32 s24, s24, s25"); k("s_add_u32 s24, s24, 131072")
    k("v_add_u32 v216, s24, v5")
    k(f"s_lshl_b32 s24, s3, 12"); k(f"s_add_u32 s24, s24, {X_L_O}")
    k("v_add_u32 v217, s24, v5")
    k(f"s_and_b32 s24, s3, 1"); k("s_lshl_b32 s24, s24, 10"); k(f"s_add_u32 s24, s24, {X_L_O}")
    k("v_add_u32 v218, s24, v5")
    k("s_and_b32 s24, s3, 1"); k("s_mul_i32 s24, s24, 20480"); k("s_lshl_b32 s25, s70, 10"); k("s_add_u32 s24, s24, s25")
    k("v_add_u32 v219, s24, v5")
    k("s_and_b32 s24, s3, 1"); k("s_lshl_b32 s24, s24, 4")
    k("v_add_u32 v243, s24, v2")
    k("v_mul_u32_u24 v243, 1280, v243")
    k("v_lshl_add_u32 v243, v3, 3, v243")
    k("s_lshl_b32 s24, s70, 6")
    k("v_add_u32 v243, s24, v243")
    k.ptr(KA_OUT, 26); k("s_waitcnt lgkmcnt(0)"); k.srd(12, 26, S * D * 2)
    k(f"s_mul_i32 s65, s71, {VOX_SEG}"); k(f"s_add_u32 s65, s65, {WS_VOX}")
    blk_base(k, 's71', 's66')
    k("s_xor_b32 s67, s66, 0x2000")
    assert O_VOM == 0 and O_PX == 0
    k(f"s_mul_i32 s68, s71, 40960")
    k("v_and_b32 v252, 7, v1")
    k("v_lshlrev_b32 v252, 7, v252")
    k(f"s_lshl_b32 s24, s3, 10"); k(f"s_add_u32 s24, s24, {3*4096}"); k("s_add_u32 s24, s24, s94")
    k("v_add_u32 v252, s24, v252")
    k("s_mov_b32 s69, -1")
    k("s_lshl_b32 s24, s71, 7"); k("s_lshl_b32 s25, s70, 2"); k("s_add_u32 s24, s24, s25"); k(f"s_add_u32 s24, s24, {WS_FLG + F_X}")
    k("s_cmp_eq_u32 s3, 0"); k(f"s_cselect_b32 s24, s24, {OOB}")
    k("v_mov_b32 v245, s24"); k(f"v_mov_b32 v246, {OOB}"); k("v_cmp_eq_u32 vcc, 0, v1"); k("v_cndmask_b32 v245, v246, v245, vcc")
    k("s_mov_b32 s79, -1")
    k("s_mov_b32 s76, -1")
    if CFG['xpre']:
        k("v_lshlrev_b32 v248, 2, v1"); k("v_subrev_u32 v248, 32, v248")
        k("s_and_b32 s24, s2, 7"); k("s_lshl_b32 s24, s24, 7"); k(f"s_add_u32 s25, s24, {WS_FLG + F_C}"); k(f"s_add_u32 s24, s24, {WS_FLG + F_S}")
        k("v_add_u32 v248, s25, v248")
        k("v_cmp_gt_u32 vcc, 8, v1"); k("v_cndmask_b32 v248, v248, v252, vcc")
        k("v_mov_b32 v249, s24"); k("v_cmp_le_u32 vcc, 11, v1"); k("v_cndmask_b32 v248, v248, v249, vcc")
        k("v_mov_b32 v249, -1")

def x_pending(k):
    k("s_cmp_ge_i32 s79, 0"); k(f"s_cselect_b32 s24, 0, {OOB}")
    k("v_or_b32 v246, s24, v245"); k("v_mov_b32 v247, s79")
    k("buffer_store_dword v247, v246, s[8:11], 0 offen sc1")
    k("s_mov_b32 s79, -1")

def x_iter(k):
    BX, XP, XM, VM, OA, TQ, RES, Q0 = 16, 80, 144, 160, 176, 192, 196, 16
    if CFG['xpre']:
        k("v_readlane_b32 s63, v249, 0")
        for i in range(1, 8): k(f"v_readlane_b32 s24, v249, {i}"); k("s_min_i32 s63, s63, s24")
        k("s_max_i32 s69, s69, s63")
        k("v_readlane_b32 s63, v249, 8")
        for i in range(9, 11): k(f"v_readlane_b32 s24, v249, {i}"); k("s_min_i32 s63, s63, s24")
        k("s_max_i32 s59, s59, s63")
        k("v_readlane_b32 s24, v249, 11"); k("s_max_i32 s76, s76, s24")
    def xev(i):
        if CFG['stamp']:
            l_ = k.new('xe'); k("s_lshr_b32 s24, s64, 2"); k("s_cmp_eq_u32 s24, 8"); k(f"s_cbranch_scc0 {k.ref(l_)}"); event(k, i, 254); k.lab(l_)
    xev(5)
    k("s_add_u32 s63, s64, 1")
    ensure(k, 'x_en', 8, 252, 253, known='s69')
    ensure_clear(k, 'x_ec', 253, 's64')
    def xs_addr(k, dst):
        k("s_and_b32 s24, s2, 7"); k("s_lshl_b32 s24, s24, 7"); k(f"s_add_u32 s24, s24, {WS_FLG + F_S}"); k(f"v_mov_b32 v{dst}, s24")
    xev(6)
    k("s_add_u32 s52, s65, 32768")
    for rr in range(2):
        so = 's65' if rr == 0 else 's52'
        for q in range(8):
            r = BX + rr * 32 + 4 * q
            k(f"buffer_load_dwordx4 v[{r}:{r+3}], v{240 + q//4}, s[8:11], {so} offen offset:{(q%4)*1024} sc1")
    k("s_add_u32 s24, s68, s73")
    k(f"buffer_load_dwordx4 v[{RES}:{RES+3}], v219, s[8:11], s24 offen sc1")
    loads_ = []
    for j in range(8):
        for tt in range(2):
            r = XP + (j * 2 + tt) * 4
            loads_.append(f"buffer_load_dwordx4 v[{r}:{r+3}], v{212 + j//2}, s[8:11], s67 offen offset:{(j%2)*2048 + tt*1024} sc1")
    for q in range(2):
        for tt in range(2):
            r = XM + (q * 2 + tt) * 4
            loads_.append(f"buffer_load_dwordx4 v[{r}:{r+3}], v216, s[8:11], s67 offen offset:{q*2048 + tt*1024} sc1")
    if CFG['xflag']:
        k("s_lshl_b32 s77, s92, 6"); k("s_add_u32 s77, s77, s64"); k("s_add_u32 s77, s77, 1")
        ensure(k, 'x_cs', 1, xs_addr, 253, need='s77', known='s76', sleep=CFG['sl_xc'])
    else:
        poll(k, 'x_p0', loads_[15:16], range(XP + 60, XP + 64), TQ, CFG['sl_x0'], 0)
    xev(7)
    k("s_add_u32 s53, s66, 16384")
    for rr in range(2):
        so = 's66' if rr == 0 else 's53'
        for q in range(2):
            r = VM + rr * 8 + 4 * q
            loads_.append(f"buffer_load_dwordx4 v[{r}:{r+3}], v242, s[8:11], {so} offen offset:{q*1024} sc1")
    poll(k, 'x_p1', loads_, range(XP, VM + 16), TQ, CFG['sl_x'], 0)
    xev(14)
    oa = lambda rr, tt: OA + (rr * 2 + tt) * 4
    for j in range(8):
        for rr in range(2):
            for tt in range(2):
                a = oa(rr, tt); r = XP + (j * 2 + tt) * 4; b = BX + rr * 32 + 4 * j
                c = f"v[{a}:{a+3}]" if j else "0"
                k(f"v_mfma_f32_16x16x32_bf16 v[{a}:{a+3}], v[{b}:{b+3}], v[{r}:{r+3}], {c}")
    for q in range(2):
        for rr in range(2):
            for tt in range(2):
                a = oa(rr, tt); b = VM + rr * 8 + 4 * q; r = XM + (q * 2 + tt) * 4
                k(f"v_mfma_f32_16x16x32_bf16 v[{a}:{a+3}], v[{b}:{b+3}], v[{r}:{r+3}], v[{a}:{a+3}]")
    for t in range(4): k(f"ds_write_b128 v217, v[{OA+4*t}:{OA+4*t+3}] offset:{t*1024}")
    k("s_waitcnt lgkmcnt(0)")
    k("s_barrier")
    lskip = k.new('xs')
    k("s_cmp_ge_u32 s3, 2"); k(f"s_cbranch_scc1 {k.ref(lskip)}")
    for rr in range(2):
        for w in range(4): k(f"ds_read_b128 v[{Q0+16*rr+4*w}:{Q0+16*rr+4*w+3}], v218 offset:{w*4096 + rr*2048}")
    O = 48
    for rr in range(2):
        q = Q0 + 16 * rr
        k(f"s_waitcnt lgkmcnt({4 if rr == 0 else 0})")
        for r in range(0, 4, 2):
            k(f"v_pk_add_f32 v[{q+r}:{q+r+1}], v[{q+r}:{q+r+1}], v[{q+4+r}:{q+4+r+1}]")
            k(f"v_pk_add_f32 v[{q+8+r}:{q+8+r+1}], v[{q+8+r}:{q+8+r+1}], v[{q+12+r}:{q+12+r+1}]")
        for r in range(0, 4, 2):
            k(f"v_pk_add_f32 v[{q+r}:{q+r+1}], v[{q+r}:{q+r+1}], v[{q+8+r}:{q+8+r+1}]")
        k(f"v_cvt_pk_bf16_f32 v{q+4}, v{q}, v{q+1}")
        k(f"v_cvt_pk_bf16_f32 v{q+5}, v{q+2}, v{q+3}")
        for h in range(2):
            k(f"v_lshlrev_b32 v{q}, 16, v{q+4+h}")
            k(f"v_and_b32 v{q+1}, 0xffff0000, v{q+4+h}")
            k(f"v_lshlrev_b32 v{q+6}, 16, v{RES+2*rr+h}")
            k(f"v_and_b32 v{q+7}, 0xffff0000, v{RES+2*rr+h}")
            k(f"v_pk_add_f32 v[{q}:{q+1}], v[{q}:{q+1}], v[{q+6}:{q+7}]")
            k(f"v_cvt_pk_bf16_f32 v{O+2*rr+h}, v{q}, v{q+1}")
    l1 = k.new('xo')
    k("s_cmp_eq_u32 s92, 0"); k(f"s_cbranch_scc0 {k.ref(l1)}")
    k(f"s_add_u32 s24, s68, {A.WS_XF2}")
    k(f"buffer_store_dwordx4 v[{O}:{O+3}], v219, s[8:11], s24 offen sc1")
    k(f"s_branch {k.ref(lskip)}")
    k.lab(l1)
    k(f"buffer_store_dwordx2 v[{O}:{O+1}], v243, s[12:15], s68 offen")
    k(f"buffer_store_dwordx2 v[{O+2}:{O+3}], v243, s[12:15], s68 offen offset:32")
    k.lab(lskip)
    l2 = k.new('xp')
    k("s_lshr_b32 s25, s64, 2"); k("s_add_u32 s25, s25, 1")
    k("s_cmp_eq_u32 s92, 0"); k("s_cselect_b32 s79, s25, -1")
    k("s_cmp_lt_u32 s40, 64"); k(f"s_cbranch_scc1 {k.ref(l2)}")
    k("s_waitcnt vmcnt(0)")
    k("s_barrier")
    x_pending(k)
    k.lab(l2)
    xev(15)
    k("s_add_u32 s64, s64, 4")
    k(f"s_add_u32 s65, s65, {4*VOX_SEG}")
    k(f"s_add_u32 s66, s66, {4*SYNC_STEP}")
    k(f"s_add_u32 s67, s67, {4*SYNC_STEP}")
    k(f"s_add_u32 s68, s68, {4*40960}")

def role_P(k):
    RS, L_ST, L_PS = 400, 81920, 81920
    XPRE, BF, ACC, OUT, TMP, ST, CS, ONE = 16, 56, 88, 112, 124, 132, 224, 236
    k("s_sub_u32 s44, s2, 104")
    k("s_lshr_b32 s46, s44, 5")
    k("s_and_b32 s44, s44, 31")
    k.ptr(KA_WQ, 6); k.ptr(KA_WK, 24); k.ptr(KA_WV, 26)
    k("s_waitcnt lgkmcnt(0)")
    k("s_cmp_eq_u32 s46, 1"); k("s_cselect_b32 s6, s24, s6"); k("s_cselect_b32 s7, s25, s7")
    k("s_cmp_eq_u32 s46, 2"); k("s_cselect_b32 s6, s26, s6"); k("s_cselect_b32 s7, s27, s7")
    k.srd(12, 6, D * HD * 2)
    GO, LO, DAT = 4, 10, 56
    stage_offsets(k, 6, 24, HD * 2, RS, L_ST, GO, LO, 16)
    k("v_lshrrev_b32 v16, 2, v2")
    k("v_lshl_add_u32 v16, v3, 2, v16")
    k(f"v_mul_u32_u24 v32, {RS}, v16")
    k("v_and_b32 v16, 3, v2")
    k("v_lshl_add_u32 v32, v16, 3, v32")
    k(f"s_mul_i32 s24, s3, 96"); k(f"s_add_u32 s24, s24, {L_ST}")
    k("v_add_u32 v32, s24, v32")
    k("s_mul_i32 s45, s44, 384")
    def loads(c):
        d = DAT + 24 * (c % 8)
        k(f"s_add_u32 s47, s45, {c * 64 * HD * 2}")
        for i in range(6):
            k(f"buffer_load_dwordx4 v[{d+4*i}:{d+4*i+3}], v{GO+i}, s[12:15], s47 offen")
    for c in range(8): loads(c)
    C0, O0 = 16, 28
    for r in range(4): k(f"v_mov_b32 v{O0+r}, 0x3f803f80")
    def cs_mfma(c):
        for jj in range(2):
            j = 2 * c + jj
            for t in range(3):
                w = (t * 20 + j) * 4; cc = f"v[{C0+4*t}:{C0+4*t+3}]"
                k(f"v_mfma_f32_16x16x32_bf16 {cc}, a[{w}:{w+3}], v[{O0}:{O0+3}], {cc if j else 0}")
    waits = [42, 42, 42, 36, 30, 24, 18, 12, 6, 0]
    for c in range(10):
        d = DAT + 24 * (c % 8)
        k(f"s_waitcnt vmcnt({waits[c]})")
        for i in range(6): k(f"ds_write_b128 v{LO+i}, v[{d+4*i}:{d+4*i+3}] offset:{(c%2)*25600}")
        k("s_waitcnt lgkmcnt(0)")
        if c < 2: loads(c + 8)
        if c > 0: cs_mfma(c - 1)
        k("s_barrier")
        for t in range(3):
            for jj in range(2):
                r = (t * 20 + 2 * c + jj) * 4
                for hf in range(2):
                    k(f"ds_read_b64_tr_b16 a[{r+2*hf}:{r+2*hf+1}], v32 offset:{(c%2)*25600 + (32*jj + 16*hf)*RS + 32*t}")
    k("s_waitcnt lgkmcnt(0)")
    cs_mfma(9)
    for r in range(12): k(f"v_mov_b32 v{CS+r}, v{C0+r}")
    for r in range(4): k(f"v_mov_b32 v{ONE+r}, v{O0+r}")
    k("s_barrier")
    event(k, 1, 16)
    k.lab('p_layer')
    layer_bases(k)
    k("s_sub_u32 s44, s2, 104")
    k("s_lshr_b32 s46, s44, 5")
    k("s_and_b32 s44, s44, 31")
    k(f"s_mov_b32 s43, {WS_QF}")
    k("s_cmp_eq_u32 s46, 1"); k(f"s_cselect_b32 s43, {WS_KF}, s43")
    k("s_cmp_eq_u32 s46, 2"); k(f"s_cselect_b32 s43, {WS_VF}, s43")
    k("s_cmp_eq_u32 s92, 0"); k(f"s_cselect_b32 s73, {A.WS_XF1}, {A.WS_XF3}")
    k("v_lshlrev_b32 v5, 4, v1")
    k("s_mul_i32 s24, s3, 10240")
    k("v_add_u32 v6, s24, v5")
    k("v_add_u32 v7, 4096, v6"); k("v_add_u32 v8, 8192, v6")
    k("s_mul_i32 s24, s44, 12288"); k("s_mul_i32 s25, s3, 3072"); k("s_add_u32 s24, s24, s25")
    k("v_add_u32 v11, s24, v5")
    if CFG['p_off']:
        k("s_cmp_eq_u32 s92, 1"); k(f"s_cselect_b32 s24, {OOB}, 0"); k("v_or_b32 v11, s24, v11")
    k("s_lshr_b32 s24, s3, 1"); k("s_lshl_b32 s24, s24, 8"); k("s_and_b32 s25, s3, 1"); k("s_lshl_b32 s25, s25, 3")
    k("s_add_u32 s24, s24, s25"); k(f"s_add_u32 s24, s24, {L_PS}")
    k("v_lshlrev_b32 v13, 4, v2")
    k("v_add_u32 v12, s24, v13")
    k(f"v_add_u32 v13, {L_PS}, v13")
    if CFG['pstat'] == 1:
        k("v_lshrrev_b32 v15, 2, v2"); k("v_cmp_eq_u32 vcc, v15, v3")
        k(f"v_lshlrev_b32 v15, 3, v1"); k(f"v_add_u32 v15, {L_PS + 1024}, v15")
        k("v_cndmask_b32 v12, v15, v12, vcc")
        k("v_and_b32 v15, 3, v2")
        for i_, sp in ((1, 48), (2, 50), (3, 54)): k(f"v_cmp_eq_u32 s[{sp}:{sp+1}], {i_}, v15")
    k("s_and_b32 s24, s2, 7"); k("s_lshl_b32 s24, s24, 7"); k("s_lshl_b32 s25, s92, 10"); k("s_add_u32 s24, s24, s25")
    k(f"s_add_u32 s24, s24, {WS_FLG + F_K3}")
    if CFG['k3w']: k("s_mov_b32 s25, 20"); k("s_mov_b32 s75, 2"); k("s_mov_b32 s74, 16")
    else: k("s_cmp_eq_u32 s92, 0"); k("s_cselect_b32 s25, 20, 5"); k("s_cselect_b32 s75, 2, 0"); k("s_cselect_b32 s74, 16, 64")
    k("v_cmp_gt_u32 vcc, s25, v1"); k("v_cndmask_b32 v4, 0, v1, vcc")
    k("v_lshlrev_b32 v4, 2, v4"); k("v_add_u32 v4, s24, v4")
    flag_addr(k, 's46')
    k("s_cmp_eq_u32 s3, 0"); k(f"s_cselect_b32 s24, 0, {OOB}"); k("v_or_b32 v14, s24, v14")
    x_init(k)
    def xloads():
        for i in range(10):
            k(f"buffer_load_dwordx4 v[{XPRE+4*i}:{XPRE+4*i+3}], v{6 + i//4}, s[8:11], s41 offen offset:{(i%4)*1024} {CFG['px_mod']}")
    SA = 136
    FL = 152
    def stats_list():
        class L(list):
            def __call__(self, t): self.append(t)
        l = L(); row_stats_partial(l, XPRE, 40, SA, SA + 1, ONE, SA + 2); return l
    SM, SQ = 144, 148
    def stats_mfma():
        l = []
        for i in range(10):
            x = f"v[{XPRE+4*i}:{XPRE+4*i+3}]"
            l.append(f"v_mfma_f32_16x16x32_bf16 v[{SQ}:{SQ+3}], {x}, {x}, " + (f"v[{SQ}:{SQ+3}]" if i else "0"))
            l.append(f"v_mfma_f32_16x16x32_bf16 v[{SM}:{SM+3}], v[{ONE}:{ONE+3}], {x}, " + (f"v[{SM}:{SM+3}]" if i else "0"))
        return l
    def stats_sel():
        return [f"v_cndmask_b32 v{SM+1}, v{SQ}, v{SQ+1}, s[48:49]", f"v_cndmask_b32 v{SM+1}, v{SM+1}, v{SQ+2}, s[50:51]",
                f"v_cndmask_b32 v{SM+1}, v{SM+1}, v{SQ+3}, s[54:55]"]
    SR = SM if CFG['pstat'] == 1 else SA
    def xstage(wbase, psw):
        if CFG['pstat'] == 1:
            for t in stats_mfma(): k(t)
            for i in range(10): k(f"ds_write_b128 v{wbase}, v[{XPRE+4*i}:{XPRE+4*i+3}] offset:{i*1024}")
            for t in stats_sel(): k(t)
        else:
            for t in stats_list(): k(t)
            for i in range(10): k(f"ds_write_b128 v{wbase}, v[{XPRE+4*i}:{XPRE+4*i+3}] offset:{i*1024}")
        k(f"ds_write_b64 v{psw}, v[{SR}:{SR+1}]")
    k("s_mov_b32 s62, -1"); k("s_mov_b32 s63, 1")
    if CFG['k3w']:
        k("s_mov_b32 s39, -1")
        ensure(k, 'p_en0', 5, 4, 16, known='s39')
    else: ensure(k, 'p_en0', 20, 4, 16)
    k("s_mov_b32 s41, s73")
    xloads()
    k("s_mov_b32 s40, 0")
    k("s_mov_b32 s42, 0")
    k("s_waitcnt vmcnt(0)")
    xstage(6, 12)
    k("s_waitcnt lgkmcnt(0)")
    k("s_barrier")
    event(k, 2, 16)
    acc = lambda tt, t: ACC + (tt * 3 + t) * 4
    def need_next():
        k("s_add_u32 s63, s40, 1"); k("s_lshr_b32 s63, s63, s75"); k("s_add_u32 s63, s63, 1"); k("s_min_u32 s63, s63, s74")
    def body(steady):
        if steady: stamp(k, 0)
        k("v_add_u32 v9, s42, v5")
        k("s_xor_b32 s42, s42, 40960")
        k("v_add_u32 v10, s42, v6")
        if steady:
            need_next()
            ensure(k, 'p_en', 20, 4, 16)
            k("s_add_u32 s41, s41, 40960")
            xloads()
            stamp(k, 1)
        k("s_and_b32 s24, s40, 1"); k("s_lshl_b32 s24, s24, 9")
        k(f"v_add_u32 v{TMP}, s24, v13")
        k("s_xor_b32 s24, s24, 512")
        k(f"v_add_u32 v{SA+4}, s24, v12")
        lg = LG(k)
        lg.issue('ps', f"ds_read_b128 v[{OUT}:{OUT+3}], v{TMP}")
        lg.issue('ps', f"ds_read_b128 v[{OUT+4}:{OUT+7}], v{TMP} offset:256")
        def rd(j):
            for tt in range(2):
                r = BF + ((j % 4) * 2 + tt) * 4
                lg.issue(j, f"ds_read_b128 v[{r}:{r+3}], v9 offset:{tt*20480 + j*1024}")
        rd(0); rd(1); rd(2)
        class L(list):
            def __call__(self, t): self.append(t)
        extra = L()
        row_stats_final(extra, OUT, ST); row_stats_final(extra, OUT + 4, ST + 2)
        wr = []; sm = []
        for j in range(20):
            if j + 3 < 20: rd(j + 3)
            lg.wait(j)
            if steady and j == 11:
                stamp(k, 4)
                k(f"s_waitcnt vmcnt({(3 if CFG['p_adapt'] else 2) + CFG['xpre']})")
                stamp(k, 5)
                if CFG['pstat'] == 1: sm = stats_mfma()
                else: extra.extend(stats_list())
                wr = [f"ds_write_b128 v10, v[{XPRE+4*i}:{XPRE+4*i+3}] offset:{i*1024}" for i in range(10)]
            for tt in range(2):
                r = BF + ((j % 4) * 2 + tt) * 4
                for t in range(3):
                    a = acc(tt, t); w = (t * 20 + j) * 4
                    c = f"v[{a}:{a+3}]" if j else "0"
                    k(f"v_mfma_f32_16x16x32_bf16 v[{a}:{a+3}], a[{w}:{w+3}], v[{r}:{r+3}], {c}")
                    for _ in range(CFG['p_nx']):
                        if extra: k(extra.pop(0))
                    if t == 1 and wr and (CFG['p_wr'] == 1 or tt == 0 or True) and (CFG['p_wr'] == 2 or tt == 0): lg.issue('w', wr.pop(0))
            for _ in range(3):
                if sm: k(sm.pop(0))
            if steady and CFG['pstat'] == 1 and j == 19:
                for t_ in stats_sel(): k(t_)
            if not steady and CFG['p_ovl'] and j == CFG['p_ovl_j']: k(f"buffer_load_dword v{FL}, v4, s[8:11], 0 offen sc1")
            if steady and j == 9:
                stamp(k, 2)
                k("s_waitcnt vmcnt(10)")
                k("s_barrier")
                stamp(k, 3)
                k("v_mov_b32 v15, s40")
                k("buffer_store_dword v15, v14, s[8:11], 0 offen sc1")
                x_pending(k)
                if CFG['p_adapt']: k(f"buffer_load_dword v{FL}, v4, s[8:11], 0 offen sc1")
                if CFG['xpre']: k("buffer_load_dword v249, v248, s[8:11], 0 offen sc1")
        for t_ in wr: lg.issue('w', t_)
        assert not sm
        for t_ in extra: k(t_)
        if steady: lg.issue('w', f"ds_write_b64 v{SA+4}, v[{SR}:{SR+1}]")
        for tt in range(2):
            for t in range(3): ln_fold(k, acc(tt, t), CS + 4 * t, ST + 2 * tt, TMP)
        for o, (tt, t) in enumerate([(0, 0), (0, 1), (1, 0), (1, 1), (0, 2), (1, 2)]):
            a = acc(tt, t)
            k(f"v_cvt_pk_bf16_f32 v{OUT+2*o}, v{a}, v{a+1}")
            k(f"v_cvt_pk_bf16_f32 v{OUT+2*o+1}, v{a+2}, v{a+3}")
        for b in range(3):
            k(f"buffer_store_dwordx4 v[{OUT+4*b}:{OUT+4*b+3}], v11, s[8:11], s43 offen offset:{b*1024} sc1")
        k(f"s_add_u32 s43, s43, {QF_SEG}")
        if steady and CFG['p_adapt']: k("s_waitcnt vmcnt(3)")
        if not steady:
            lj = k.new('po')
            if CFG['p_ovl']:
                lo = k.new('po')
                k("s_waitcnt vmcnt(3)")
                need_next()
                k(f"v_cmp_le_i32 vcc, s63, v{FL}")
                k("s_cmp_eq_u64 vcc, -1"); k("s_cselect_b32 s24, 1, 0")
                k("s_cmp_ge_i32 s62, s63"); k("s_cselect_b32 s24, 1, s24")
                k("s_cmp_eq_u32 s24, 1"); k(f"s_cbranch_scc0 {k.ref(lo)}")
                k("s_max_i32 s62, s62, s63")
                k("s_add_u32 s41, s41, 40960")
                xloads()
                k(f"buffer_load_dword v{FL}, v4, s[8:11], 0 offen sc1")
                k("s_waitcnt vmcnt(11)")
                k("s_barrier")
                k("s_add_u32 s24, s40, 1"); k("v_mov_b32 v15, s24")
                k("buffer_store_dword v15, v14, s[8:11], 0 offen sc1")
                k(f"s_branch {k.ref(lj)}")
                k.lab(lo)
            k("s_waitcnt vmcnt(0)")
            k("s_barrier")
            k("s_add_u32 s24, s40, 1"); k("v_mov_b32 v15, s24")
            k("buffer_store_dword v15, v14, s[8:11], 0 offen sc1")
            need_next()
            ensure(k, 'p_enA', 20, 4, 16)
            k("s_add_u32 s41, s41, 40960")
            xloads()
            if CFG['p_adapt']: k(f"buffer_load_dword v{FL}, v4, s[8:11], 0 offen sc1")
            k.lab(lj)
            k("s_waitcnt vmcnt(0)")
            xstage(10, SA + 4)
        if steady and CFG['stamp']:
            k("s_waitcnt lgkmcnt(0)"); k("s_memrealtime s[56:57]"); k("s_waitcnt lgkmcnt(0)"); k("s_mov_b32 s57, s56"); stamp_out(k, 6, 16)
        k("s_add_u32 s40, s40, 1")
        if CFG['p_adapt']:
            need_next()
            k(f"v_cmp_le_i32 vcc, s63, v{FL}")
            k("s_cmp_eq_u64 vcc, -1"); k("s_cselect_b32 s58, 1, 0")
            k("s_cmp_ge_i32 s62, s63"); k("s_cselect_b32 s58, 1, s58")
            k("s_and_b32 s24, s40, 1"); k("s_lshl_b32 s24, s24, 2"); k(f"s_add_u32 s24, s24, {L_PS + 1536}")
            k("s_lshl_b32 s25, s3, 4"); k("s_add_u32 s25, s25, s24")
            k("v_mov_b32 v15, s25"); k(f"v_mov_b32 v{FL}, s58")
            k(f"ds_write_b32 v15, v{FL}")
            k("v_mov_b32 v15, s24")
        k("s_waitcnt lgkmcnt(0)")
        k("s_barrier")
        if CFG['p_adapt']:
            k(f"ds_read_b32 v{FL}, v15")
            k("s_waitcnt lgkmcnt(0)")
            k(f"v_readfirstlane_b32 s58, v{FL}")
            k("s_cmp_eq_u32 s58, 1"); k("s_cselect_b32 s24, s63, s62"); k("s_max_i32 s62, s62, s24")
    k(f"s_branch {k.ref('p_segA')}")
    k.lab('p_pubA')
    k("s_waitcnt vmcnt(0)")
    k("s_barrier")
    flag_pub(k, 's40')
    k.lab('p_segA')
    body(False)
    if not CFG['p_adapt']:
        k(f"s_cmp_lt_u32 s40, {CFG['p_ns']}"); k(f"s_cbranch_scc1 {k.ref('p_segA')}")
    k(f"s_branch {k.ref('p_next')}")
    k.lab('p_seg')
    body(True)
    k.lab('p_next')
    if CFG['stamp']:
        for i_, sv in enumerate((8, 16, 32, 48)):
            l_ = k.new('pe'); k(f"s_cmp_eq_u32 s40, {sv}"); k(f"s_cbranch_scc0 {k.ref(l_)}"); event(k, 8 + i_, 16); k.lab(l_)
    def go_seg():
        if CFG['p_adapt']:
            l_ = k.new('pg')
            k("s_cmp_lt_u32 s40, 64"); k(f"s_cbranch_scc0 {k.ref(l_)}")
            k("s_cmp_eq_u32 s58, 1"); k(f"s_cbranch_scc1 {k.ref('p_seg')}")
            k(f"s_branch {k.ref('p_pubA')}")
            k.lab(l_)
        else:
            k("s_cmp_lt_u32 s40, 64"); k(f"s_cbranch_scc1 {k.ref('p_seg')}")
    def lag():
        if CFG['xlag_e'] != CFG['xlag']:
            k(f"s_cmp_ge_u32 s64, {CFG['xe0']}"); k(f"s_cselect_b32 s24, {CFG['xlag_e']}, {CFG['xlag']}"); k("s_add_u32 s24, s24, s64")
        else: k(f"s_add_u32 s24, s64, {CFG['xlag']}")
        k("s_cmp_le_u32 s24, s40")
    lag(); k(f"s_cbranch_scc1 {k.ref('p_pub')}")
    go_seg()
    k.lab('p_pub')
    k("s_waitcnt vmcnt(0)")
    k("s_barrier")
    flag_pub(k, 's40')
    lag(); k(f"s_cbranch_scc1 {k.ref('p_x')}")
    go_seg()
    k("s_cmp_ge_u32 s64, 64"); k(f"s_cbranch_scc1 {k.ref('p_done')}")
    k.lab('p_x')
    x_iter(k)
    k(f"s_branch {k.ref('p_next')}")
    k.lab('p_done')
    event(k, 3, 16)
    next_layer(k, 'p_layer')

def role_O(k):
    RS = 1312
    VFa, VFb, ACC, OUT = 16, 64, 112, 192
    k("s_sub_u32 s44, s2, 200")
    k.ptr(KA_WO, 6)
    k("s_waitcnt lgkmcnt(0)")
    k.srd(12, 6, D * HD * 2)
    LO, D0, D1 = 16, 48, 168
    for i in range(30):
        k(f"v_add_u32 v8, {256*i}, v0")
        divmod_const(k, 9, 10, 8, 80, 256 * 30, 24)
        k(f"v_mul_u32_u24 v{LO+i}, {RS}, v9")
        k(f"v_lshl_add_u32 v{LO+i}, v10, 4, v{LO+i}")
    k("v_lshlrev_b32 v4, 4, v0")
    k(f"s_mul_i32 s45, s44, {192*1280}")
    dat = lambda b, i: (D0 + 4 * i) if b == 0 else ((D1 + 4 * i) if i < 22 else (D0 + 4 * (i - 22)))
    def ld(b, i):
        k(f"s_add_u32 s46, s45, {b*96*1280 + i*4096}")
        d = dat(b, i)
        k(f"buffer_load_dwordx4 v[{d}:{d+3}], v4, s[12:15], s46 offen")
    for i in range(30): ld(0, i)
    for i in range(22): ld(1, i)
    k("v_lshrrev_b32 v8, 2, v2")
    k("v_lshl_add_u32 v8, v3, 2, v8")
    k(f"v_mul_u32_u24 v5, {RS}, v8")
    k("v_and_b32 v8, 3, v2")
    k("v_lshl_add_u32 v5, v8, 3, v5")
    k("s_mul_i32 s24, s3, 320")
    k("v_add_u32 v5, s24, v5")
    k(f"v_add_u32 v6, {48*RS}, v5")
    for b in range(2):
        k(f"s_waitcnt vmcnt({22 if b == 0 else 0})")
        for i in range(30):
            d = dat(b, i)
            k(f"ds_write_b128 v{LO+i}, v[{d}:{d+3}]")
        k("s_waitcnt lgkmcnt(0)")
        if b == 0:
            for i in range(22, 30): ld(1, i)
        k("s_barrier")
        for t in range(10):
            def tr(ks, hf, base, row):
                r = (t * 6 + ks) * 4 + 2 * hf
                k(f"ds_read_b64_tr_b16 a[{r}:{r+1}], v{base} offset:{row*RS + 32*t}")
            tr(2*b, 0, 5, 0); tr(2*b, 1, 5, 16)
            tr(2*b+1, 0, 6, 0); tr(2*b+1, 1, 6, 16)
            tr(4+b, 0, 5, 32); tr(4+b, 1, 6, 32)
        k("s_waitcnt lgkmcnt(0)")
        k("s_barrier")
    k("v_lshlrev_b32 v5, 4, v1")
    k("s_mul_i32 s24, s44, 12288")
    k("v_add_u32 v6, s24, v5")
    k("v_add_u32 v7, 4096, v6"); k("v_add_u32 v8, 8192, v6")
    k(f"s_mul_i32 s24, s3, {10*32768}"); k("s_lshl_b32 s25, s44, 10"); k("s_add_u32 s24, s24, s25")
    k("v_add_u32 v9, s24, v5")
    event(k, 1, 16)
    k.lab('o_layer')
    layer_bases(k)
    flag_addr(k, 3)
    if CFG['o_off']:
        k("s_cmp_eq_u32 s92, 1"); k(f"s_cselect_b32 s24, {OOB}, 0"); k("v_or_b32 v9, s24, v9")
    k(f"s_lshl_b32 s24, s44, 7"); k(f"s_add_u32 s24, s24, {2*4096}"); k("s_add_u32 s24, s24, s94")
    k("v_mov_b32 v10, s24")
    k(f"s_mov_b32 s41, {WS_VF}")
    k(f"s_mov_b32 s43, {WS_VOX}")
    k("s_mov_b32 s40, 0")
    def vloads(V):
        for i in range(12):
            k(f"buffer_load_dwordx4 v[{V+4*i}:{V+4*i+3}], v{6 + i//4}, s[8:11], s41 offen offset:{(i%4)*1024} sc1")
        k(f"s_add_u32 s41, s41, {QF_SEG}")
    k("s_mov_b32 s62, -1"); k("s_mov_b32 s63, 1")
    ensure(k, 'o_en0', 1, 10, 11)
    vloads(VFa)
    k("s_waitcnt vmcnt(0)")
    event(k, 2, 240)
    k.lab('o_seg')
    for par, (V, VN) in enumerate(((VFa, VFb), (VFb, VFa))):
        for p in range(2):
            X = V + (6 * p + 2) * 4; Y = V + (6 * p + 5) * 4
            k(f"v_swap_b32 v{X+2}, v{Y}"); k(f"v_swap_b32 v{X+3}, v{Y+1}")
        def frag(tt, ks):
            if ks < 4: return V + (3 * ks + tt) * 4
            p = ks - 4
            return V + (6 * p + 2) * 4 if tt == 0 else V + (6 * p + 5) * 4
        def nxt(tag):
            k("s_add_u32 s63, s40, 2"); k("s_min_u32 s63, s63, 64")
            ensure(k, tag, 1, 10, 11)
            vloads(VN)
        stamp(k, 0)
        if CFG['o_adapt']: k("buffer_load_dword v232, v10, s[8:11], 0 offen sc1")
        for ks in range(6):
            for t in range(10):
                for tt in range(2):
                    a = ACC + (t * 2 + tt) * 4; w = (t * 6 + ks) * 4; f = frag(tt, ks)
                    c = f"v[{a}:{a+3}]" if ks else "0"
                    k(f"v_mfma_f32_16x16x32_bf16 v[{a}:{a+3}], v[{f}:{f+3}], a[{w}:{w+3}], {c}")
            if ks == 4 and CFG['o_adapt'] and CFG['o_ovl']: k("buffer_load_dword v233, v10, s[8:11], 0 offen sc1")
            if ks == 2 and CFG['o_adapt']:
                lf = k.new('of')
                k("s_waitcnt vmcnt(0)")
                k("v_readfirstlane_b32 s24, v232"); k("s_max_i32 s62, s62, s24")
                k("s_add_u32 s63, s40, 2"); k("s_min_u32 s63, s63, 64")
                k("s_cmp_ge_i32 s62, s63"); k("s_cselect_b32 s24, 1, 0")
                k("s_lshl_b32 s25, s3, 4"); k(f"s_add_u32 s25, s25, {4*par}")
                k("v_mov_b32 v12, s25"); k("v_mov_b32 v13, s24")
                k("ds_write_b32 v12, v13")
                k(f"v_mov_b32 v12, {4*par}")
                k("s_waitcnt lgkmcnt(0)")
                k("s_barrier")
                k("ds_read_b32 v13, v12")
                flag_pub(k, 's40')
                k("s_waitcnt lgkmcnt(0)")
                k("v_readfirstlane_b32 s58, v13")
                k("s_cmp_eq_u32 s58, 1"); k(f"s_cbranch_scc0 {k.ref(lf)}")
                k("s_max_i32 s62, s62, s63")
                vloads(VN)
                k.lab(lf)
            elif ks == 2:
                lf = k.new('of')
                if par == 0:
                    k("s_cmp_eq_u32 s40, 0"); k(f"s_cbranch_scc1 {k.ref(lf)}")
                k("s_waitcnt vmcnt(0)")
                k("s_barrier")
                flag_pub(k, 's40')
                nxt(f'o_en{par+1}')
                k.lab(lf)
        stamp(k, 1)
        k("s_mov_b32 s46, s43")
        for t in range(10):
            o = OUT + 4 * t
            for tt in range(2):
                a = ACC + (t * 2 + tt) * 4
                k(f"v_cvt_pk_bf16_f32 v{o+2*tt}, v{a}, v{a+1}")
                k(f"v_cvt_pk_bf16_f32 v{o+2*tt+1}, v{a+2}, v{a+3}")
            k(f"buffer_store_dwordx4 v[{o}:{o+3}], v9, s[8:11], s46 offen sc1")
            if t < 9: k("s_add_u32 s46, s46, 32768")
        stamp(k, 2)
        if CFG['o_adapt']:
            lf = k.new('of')
            k("s_cmp_eq_u32 s58, 1"); k(f"s_cbranch_scc1 {k.ref(lf)}")
            if CFG['o_ovl']:
                lo = k.new('oo')
                k("s_waitcnt vmcnt(10)")
                k("v_readfirstlane_b32 s24, v233"); k("s_max_i32 s62, s62, s24")
                k("s_add_u32 s63, s40, 2"); k("s_min_u32 s63, s63, 64")
                k("s_cmp_ge_i32 s62, s63"); k(f"s_cbranch_scc0 {k.ref(lo)}")
                vloads(VN)
                k("s_waitcnt vmcnt(12)")
                k("s_barrier")
                k("s_add_u32 s24, s40, 1")
                flag_pub(k, 's24')
                k("s_waitcnt vmcnt(0)")
                k(f"s_branch {k.ref(lf)}")
                k.lab(lo)
            k("s_waitcnt vmcnt(0)")
            k("s_barrier")
            k("s_add_u32 s24, s40, 1")
            flag_pub(k, 's24')
            nxt(f'o_en{par+3}')
            k("s_waitcnt vmcnt(0)")
            k.lab(lf)
        elif par == 0:
            lf = k.new('of')
            k("s_cmp_eq_u32 s40, 0"); k(f"s_cbranch_scc0 {k.ref(lf)}")
            k("s_waitcnt vmcnt(0)")
            k("s_barrier")
            flag_pub(k, 1)
            nxt('o_en3')
            k("s_waitcnt vmcnt(0)")
            k.lab(lf)
        k("s_waitcnt vmcnt(10)")
        if CFG['stamp']:
            stamp(k, 3); k("s_waitcnt lgkmcnt(0)"); k("s_mov_b32 s57, s58"); k("s_mov_b32 s56, s62"); stamp_out(k, 4, 236)
        k("s_add_u32 s40, s40, 1")
        k(f"s_add_u32 s43, s43, {VOX_SEG}")
    k("s_cmp_lt_u32 s40, 64")
    k(f"s_cbranch_scc1 {k.ref('o_seg')}")
    k("s_waitcnt vmcnt(0)")
    k("s_barrier")
    flag_pub(k, 's40')
    event(k, 3, 240)
    next_layer(k, 'o_layer')
class Hooks(A.NoHooks):
    def ev(self, k, i, t=14): event(k, i, t)
    def k1_wait_x(self, k):
        k("s_and_b32 s24, s48, 3"); k("s_lshl_b32 s24, s24, 7"); k(f"s_add_u32 s24, s24, {WS_FLG + F_X}")
        k("v_lshlrev_b32 v15, 2, v1"); k("v_add_u32 v15, s24, v15")
        k("s_lshr_b32 s95, s48, 2"); k("s_add_u32 s95, s95, 1")
        wait_all(k, 'k1_wx', 20, 14, 's95', sleep=4)
    def tr(self, k, slot):
        if not (CFG['stamp'] and CFG.get('k1tr')): return
        k("s_memrealtime s[96:97]")
        k("s_lshl_b32 s34, s2, 2"); k("s_add_u32 s34, s34, s3"); k("s_lshl_b32 s34, s34, 7")
        k("s_lshl_b32 s35, s92, 6"); k("s_add_u32 s34, s34, s35")
        k("s_add_u32 s34, s34, s48"); k("s_lshl_b32 s34, s34, 5"); k(f"s_add_u32 s34, s34, {WS_TRACE + 4*slot}")
        k(f"v_mov_b32 v14, {OOB}"); k("v_cmp_eq_u32 vcc, 0, v1"); k("v_cndmask_b32 v14, v14, 0, vcc")
        k("s_waitcnt lgkmcnt(0)")
        k("v_mov_b32 v15, s96")
        k("buffer_store_dword v15, v14, s[8:11], s34 offen")
    def k1_prefetch(self, k):
        st = CFG['pf']
        if not st: return 0
        n = 32768 // (256 * st)
        l = k.new('pf')
        k("s_cmp_eq_u32 s92, 0"); k(f"s_cselect_b32 s25, 0, {OOB}")
        k("s_lshl_b32 s24, s45, 3"); k("s_add_u32 s24, s24, s44"); k("s_mul_i32 s24, s24, 30720"); k("s_add_u32 s24, s24, s25")
        k(f"v_mul_u32_u24 v154, {st}, v0")
        for i in range(4):
            k.srd(20, 64 + 2 * i, D * HD * 2)
            for q in range(n):
                k(f"s_add_u32 s25, s24, {q * 256 * st}")
                k("buffer_load_dword a255, v154, s[20:23], s25 offen")
        return 4 * n
    def k1_flag_issue(self, k, n):
        k(f"s_mul_i32 s24, s49, {n}"); k("s_add_u32 s24, s24, s48")
        k("s_and_b32 s24, s24, 3"); k("s_lshl_b32 s24, s24, 7"); k(f"s_add_u32 s24, s24, {WS_FLG + F_X}")
        k("v_lshlrev_b32 v15, 2, v1"); k("v_add_u32 v15, s24, v15")
        k("buffer_load_dword v13, v15, s[8:11], 0 offen sc1")
    def k1_flag_check(self, k, skip):
        if not CFG['k1_pre']:
            k(f"s_branch {k.ref(skip)}"); return
        k("s_add_u32 s24, s48, s49"); k("s_lshr_b32 s24, s24, 2"); k("s_add_u32 s24, s24, 1")
        k("v_cmp_le_i32 vcc, s24, v13")
        k("s_and_b32 s24, vcc_lo, 0xfffff"); k("s_cmp_eq_u32 s24, 0xfffff")
        k(f"s_cbranch_scc0 {k.ref(skip)}")
    def k1_first_barrier(self, k): pass
    def k1_after_weights(self, k):
        l = k.new('fb')
        k("s_cmp_eq_u32 s2, 255"); k(f"s_cbranch_scc0 {k.ref(l)}")
        k("s_cmp_eq_u32 s92, 0"); k(f"s_cbranch_scc0 {k.ref(l)}")
        if CFG['pol'] < 0:
            k("s_waitcnt vmcnt(0)")
            k("s_lshl_b32 s24, s3, 9"); k(f"s_add_u32 s24, s24, {WS_SYNC + 0xF0000}")
            k("v_mov_b32 v154, 0")
            k("s_lshl_b32 s27, s3, 3"); k("s_add_u32 s27, s27, 131072")
            for cl in range(2):
                k("s_barrier")
                k("s_mov_b32 s25, -1")
                k("s_mov_b64 exec, 1")
                for i in range(CFG['npol']):
                    k("v_mov_b32 v155, 0")
                    k("s_memtime s[28:29]"); k("s_waitcnt lgkmcnt(0)")
                    k(f"buffer_atomic_add v155, v154, s[8:11], s24 offen offset:{128 * i} sc0")
                    k("s_waitcnt vmcnt(0)")
                    k("s_memtime s[30:31]"); k("s_waitcnt lgkmcnt(0)")
                    k("s_sub_u32 s30, s30, s28"); k("s_min_u32 s25, s25, s30")
                k("v_mov_b32 v148, s27"); k("v_mov_b32 v155, s25")
                k(f"ds_write_b32 v148, v155 offset:{4 * cl}")
                k("s_mov_b64 exec, -1")
                k("s_add_u32 s24, s24, 0x2000")
            k("s_waitcnt lgkmcnt(0)")
            k("s_barrier")
            k("v_mov_b32 v154, 131072")
            k("ds_read_b128 v[148:151], v154"); k("ds_read_b128 v[152:155], v154 offset:16")
            k("s_waitcnt lgkmcnt(0)")
            k("v_min_u32 v148, v148, v152"); k("v_min_u32 v149, v149, v153"); k("v_min_u32 v150, v150, v154"); k("v_min_u32 v151, v151, v155")
            if CFG.get('poldbg'):
                k(f"v_mov_b32 v154, {OOB}"); k("v_cmp_eq_u32 vcc, 0, v1"); k("v_cndmask_b32 v154, v154, 16, vcc")
                k("buffer_store_dwordx4 v[148:151], v154, s[72:75], 0 offen sc1"); k("s_waitcnt vmcnt(0)")
            k("v_min_u32 v148, v148, v150"); k("v_min_u32 v149, v149, v151")
            k("v_cmp_lt_u32 vcc, v149, v148")
            k("v_cndmask_b32 v155, 1, 2, vcc")
        else:
            k("s_waitcnt vmcnt(0)")
            k("s_barrier")
            k(f"v_mov_b32 v155, {1 + CFG['pol']}")
        k("s_cmp_eq_u32 s3, 0"); k(f"s_cbranch_scc0 {k.ref(l)}")
        k(f"v_mov_b32 v154, {OOB}"); k("v_cmp_eq_u32 vcc, 0, v1"); k("v_cndmask_b32 v154, v154, 0, vcc")
        k("buffer_store_dword v155, v154, s[72:75], 0 offen sc1")
        k.lab(l)
    def k1_ready_issue(self, k):
        l = k.new('ri')
        k("s_cmp_eq_u32 s92, 0"); k(f"s_cbranch_scc0 {k.ref(l)}")
        k("v_mov_b32 v15, 0")
        k("buffer_load_dword v14, v15, s[72:75], 0 offen sc1")
        k.lab(l)
    def k1_ready_check(self, k):
        l = k.new('rc')
        k("s_cmp_eq_u32 s92, 0"); k(f"s_cbranch_scc0 {k.ref(l + '_ok')}")
        k("s_mov_b32 s61, 0")
        k.lab(l)
        k("s_waitcnt vmcnt(0)")
        k("v_readfirstlane_b32 s24, v14")
        k("s_sub_u32 s36, s24, 1"); k("s_and_b32 s36, s36, 1"); k("s_lshl_b32 s36, s36, 13")
        k("s_cmp_ge_u32 s24, 1"); k(f"s_cbranch_scc1 {k.ref(l + '_ok')}")
        k("s_add_u32 s61, s61, 1"); k("s_cmp_ge_u32 s61, s60"); k(f"s_cbranch_scc1 {k.ref(l + '_to')}")
        k("s_sleep 2")
        k("v_mov_b32 v15, 0")
        k("buffer_load_dword v14, v15, s[72:75], 0 offen sc1")
        k(f"s_branch {k.ref(l)}")
        k.lab(l + '_to')
        k("s_mov_b32 s60, 1")
        k.lab(l + '_ok')
    def k1_publish(self, k):
        k("s_lshl_b32 s24, s92, 3"); k("s_add_u32 s24, s24, s44"); k("s_lshl_b32 s24, s24, 7")
        k("s_lshl_b32 s25, s45, 2"); k("s_add_u32 s24, s24, s25"); k(f"s_add_u32 s24, s24, {WS_FLG + F_K1}")
        pub_dword(k, 's24', 1, 14)
    def k2_wait(self, k):
        k("s_lshl_b32 s24, s92, 3"); k("s_add_u32 s24, s24, s44"); k("s_lshl_b32 s24, s24, 7"); k(f"s_add_u32 s24, s24, {WS_FLG + F_K1}")
        k("v_lshlrev_b32 v15, 2, v1"); k("v_add_u32 v15, s24, v15")
        k("s_cmp_eq_u32 s92, 0"); k("s_cselect_b32 s26, -1, 3")
        wait_all(k, 'k2_w', 's26', 14, 1, sleep=2)
    def k2_publish(self, k):
        k("s_lshl_b32 s24, s92, 7"); k("s_sub_u32 s25, s2, 64"); k("s_lshl_b32 s25, s25, 2"); k("s_add_u32 s24, s24, s25")
        k(f"s_add_u32 s24, s24, {WS_FLG + F_K2}")
        pub_dword(k, 's24', 1, 14)
    def k3_wait0(self, k):
        k("s_cmp_eq_u32 s92, 0"); k("s_cselect_b32 s26, 32, 0"); k("s_cselect_b32 s27, 7, 1")
        k("s_lshl_b32 s24, s92, 10"); k(f"s_add_u32 s24, s24, {WS_FLG + F_K1}")
        k("v_and_b32 v15, 7, v1"); k("v_lshlrev_b32 v15, 7, v15")
        k("v_lshrrev_b32 v14, 3, v1"); k("v_and_b32 v14, s27, v14"); k("v_lshl_add_u32 v15, v14, 2, v15")
        k("v_add_u32 v15, s24, v15")
        k("s_lshl_b32 s27, s26, 1"); k("s_add_u32 s28, s27, s26")
        k("s_mov_b32 s61, 0")
        k.lab('k3_w0')
        for i, so in enumerate(('0', 's26', 's27', 's28')):
            k(f"buffer_load_dword v{16+i}, v15, s[8:11], {so} offen sc1")
        k("s_waitcnt vmcnt(0)")
        k("v_min_i32 v16, v16, v17"); k("v_min3_i32 v16, v16, v18, v19")
        k("v_cmp_le_i32 vcc, 1, v16")
        k("s_cmp_eq_u64 vcc, -1")
        k(f"s_cbranch_scc1 {k.ref('k3_w0_ok')}")
        k("s_add_u32 s61, s61, 1"); k("s_cmp_ge_u32 s61, s60"); k(f"s_cbranch_scc1 {k.ref('k3_w0_to')}")
        k("s_sleep 4")
        k(f"s_branch {k.ref('k3_w0')}")
        k.lab('k3_w0_to'); k("s_mov_b32 s60, 1")
        k.lab('k3_w0_ok')
    def k3_wait(self, k):
        k("s_lshl_b32 s24, s92, 7"); k(f"s_add_u32 s24, s24, {WS_FLG + F_K2}")
        k("v_lshlrev_b32 v15, 2, v1"); k("v_add_u32 v15, s24, v15")
        wait_all(k, 'k3_w', 24, 14, 1, sleep=2)
    def k3_publish(self, k, last):
        k("s_lshl_b32 s24, s92, 10"); k("s_lshl_b32 s25, s78, 2"); k("s_add_u32 s24, s24, s25")
        k(f"s_add_u32 s24, s24, {WS_FLG + F_K3}")
        pub_dword(k, 's24', 's40', 14, copies=8)

NCLR = 3
def role_clear(k):
    k("s_sub_u32 s44, s2, 253")
    k("s_lshl_b32 s24, s44, 2"); k("s_add_u32 s24, s24, s3"); k("s_mul_i32 s45, s24, 5")
    for i in range(5):
        k(f"s_add_u32 s24, s45, {i}"); k(f"s_min_u32 s24, s24, {N_NEAR + N_COMP - 1}")
        k(f"s_sub_u32 s25, s24, {N_NEAR}"); k(f"s_cmp_ge_u32 s24, {N_NEAR}")
        k("s_cselect_b32 s24, s25, s24"); k(f"s_cselect_b32 s{69+i}, 0x2000, 0"); k(f"s_lshl_b32 s{64+i}, s24, 14")
    k("v_lshlrev_b32 v5, 4, v1")
    for r in range(4): k(f"v_mov_b32 v{8+r}, -1")
    k("s_lshl_b32 s24, s44, 2"); k(f"s_add_u32 s42, s24, {WS_FLG + F_C}")
    k("s_mov_b32 s40, 0")
    def stores():
        for i in range(5):
            k(f"s_add_u32 s43, s41, s{64+i}"); k(f"s_xor_b32 s43, s43, s{69+i}"); k("s_add_u32 s46, s43, 4096")
            for q in range(8):
                k(f"buffer_store_dwordx4 v[8:11], v5, s[8:11], {'s43' if q < 4 else 's46'} offen offset:{(q%4)*1024} {CFG['clr_mod']}")
    k.lab('clr_blk')
    blk_base(k, 's40', 's41')
    stores()
    k("s_waitcnt vmcnt(40)")
    k("s_barrier")
    pub_dword(k, 's42', 's40', 14, copies=8)
    k("s_add_u32 s40, s40, 1")
    k("s_cmp_lt_u32 s40, 64"); k(f"s_cbranch_scc1 {k.ref('clr_blk')}")
    k("s_waitcnt vmcnt(0)")
    k("s_barrier")
    pub_dword(k, 's42', 's40', 14, copies=8)
    k.lab('clr_blk2')
    k("s_sub_u32 s47, s40, 64")
    k("s_cmp_ge_u32 s47, 60"); k(f"s_cbranch_scc1 {k.ref('clr_last')}")
    k("s_and_b32 s24, s47, 3"); k("s_lshl_b32 s24, s24, 7"); k(f"s_add_u32 s24, s24, {WS_FLG + F_X}")
    k("v_lshlrev_b32 v15, 2, v1"); k("v_add_u32 v15, s24, v15")
    k("s_lshr_b32 s95, s47, 2"); k("s_add_u32 s95, s95, 2")
    wait_all(k, 'clr_wx', 20, 14, 's95', sleep=32)
    k(f"s_branch {k.ref('clr_go')}")
    k.lab('clr_last')
    k(f"v_mov_b32 v15, {WS_FLG + F_S}")
    k("s_mov_b32 s95, 66")
    wait_all(k, 'clr_ws', 1, 14, 's95', sleep=32)
    k.lab('clr_go')
    blk_base(k, 's47', 's41')
    stores()
    k("s_waitcnt vmcnt(0)")
    k("s_barrier")
    k("s_add_u32 s40, s40, 1")
    pub_dword(k, 's42', 's40', 14, copies=8)
    k("s_cmp_lt_u32 s40, 128"); k(f"s_cbranch_scc1 {k.ref('clr_blk2')}")
    k("s_waitcnt vmcnt(0)")

def build():
    k = K(NAME, vgpr=256, sgpr=100, agpr=256)
    H = Hooks()
    k("s_cmp_ge_u32 s2, 256")
    k(f"s_cbranch_scc1 {k.ref('end')}")
    k.ptr(KA_WS, 4); k.ptr(KA_DBG, 6); k.ptr(KA_AX, 24); k.ptr(KA_WQKV, 98)
    if CFG['pf']:
        for i_, a_ in enumerate((KA_WQ, KA_WK, KA_WV, KA_WO)): k.ptr(a_, 64 + 2 * i_)
    k("s_and_b32 s44, s2, 7"); k("s_lshr_b32 s45, s2, 3")
    if CFG['xmap']:
        xm = CFG['xmap']
        k("s_and_b32 s26, s44, 3"); k("s_lshl_b32 s27, s45, 2"); k("s_add_u32 s26, s26, s27")
        k("s_add_u32 s27, s26, 128"); k("s_cmp_lt_u32 s26, 104"); k("s_cselect_b32 s27, s26, s27")
        k("s_add_u32 s26, s26, 104")
        k("s_cmp_lt_u32 s44, 4"); k("s_cselect_b32 s2, s27, s26" if xm == 1 else "s_cselect_b32 s2, s26, s27")
    k("v_and_b32 v1, 63, v0")
    k("v_lshrrev_b32 v4, 6, v0")
    k("v_and_b32 v2, 15, v1")
    k("v_lshrrev_b32 v3, 4, v1")
    k("v_readfirstlane_b32 s3, v4")
    k(f"s_mov_b32 s60, {CFG['spin']}")
    k("s_mov_b32 s59, -1")
    k("s_mov_b32 s92, 0")
    k("s_mov_b32 s36, 0")
    k("s_waitcnt lgkmcnt(0)")
    k.srd(8, 4, WS_BYTES)
    k.srd(72, 6, 256)
    k.srd(16, 24, A.XF_BYTES)
    event(k, 0)
    l = k.new('cf')
    k("s_cmp_eq_u32 s2, 255"); k(f"s_cbranch_scc0 {k.ref(l)}")
    k("v_lshlrev_b32 v5, 4, v0")
    for r in range(4): k(f"v_mov_b32 v{8+r}, -1")
    k(f"s_mov_b32 s24, {WS_FLG}")
    for i in range(FLG_BYTES // 4096):
        k(f"buffer_store_dwordx4 v[8:11], v5, s[8:11], s24 offen sc1")
        k("s_add_u32 s24, s24, 4096")
    k.lab(l)
    k("s_mov_b32 s46, 64"); k("s_mov_b32 s47, 32"); k("s_mov_b32 s50, 0")
    k("s_lshl_b32 s48, s45, 1"); k("s_mov_b32 s49, 1"); k("s_mov_b32 s40, 2")
    k.lab('k1_entry')
    A.role_K1(k, H, wq=98, l2pf=bool(CFG['l2pf']), xmod=CFG['k1xmod'])
    event(k, 4)
    if CFG['k3w']:
        l = k.new('k3w')
        k("s_cmp_eq_u32 s92, 0"); k(f"s_cbranch_scc1 {k.ref(l)}")
        k("s_cmp_eq_u32 s2, 247"); k(f"s_cbranch_scc1 {k.ref('end')}")
        k(f"s_branch {k.ref('helper')}")
        k.lab(l)
    else:
        k("s_cmp_eq_u32 s92, 0"); k(f"s_cbranch_scc0 {k.ref('end')}")
    k("s_cmp_ge_u32 s2, 232"); k(f"s_cbranch_scc1 {k.ref('helper')}")
    k("s_cmp_ge_u32 s2, 200"); k(f"s_cbranch_scc1 {k.ref('toO')}")
    k("s_cmp_ge_u32 s2, 104"); k(f"s_cbranch_scc1 {k.ref('toP')}")
    k("s_cmp_ge_u32 s2, 64"); k(f"s_cbranch_scc1 {k.ref('toR')}")
    k("s_cmp_ge_u32 s2, 32"); k(f"s_cbranch_scc1 {k.ref('toV')}")
    k(f"s_branch {k.ref('roleS')}")
    for nm in 'VRPO':
        k.lab('to' + nm); k(f"s_branch {k.ref('role' + nm)}")
    k.lab('helper')
    k("s_sub_u32 s24, s2, 232")
    k("s_cmp_ge_u32 s24, 21"); k(f"s_cbranch_scc1 {k.ref('helper_clr')}")
    k("s_cmp_eq_u32 s24, 15"); k(f"s_cbranch_scc1 {k.ref('helper_k1')}")
    k("s_mul_i32 s57, s24, 52"); k("s_lshr_b32 s57, s57, 8"); k("s_mul_i32 s56, s57, 5"); k("s_sub_u32 s56, s24, s56")
    k("s_add_u32 s57, s57, 1")
    k("s_sub_u32 s25, s24, 16"); k("s_cmp_ge_u32 s24, 16"); k("s_cselect_b32 s56, s25, s56"); k("s_cselect_b32 s57, 0, s57")
    k("s_mul_i32 s78, s57, 5"); k("s_add_u32 s78, s78, s56")
    A.k3_stage(k)
    if CFG['k3w']:
        k("s_cmp_eq_u32 s92, 1"); k(f"s_cbranch_scc1 {k.ref('k3_l1')}")
    k.ptr(KA_AX, 6); k("s_waitcnt lgkmcnt(0)"); k.srd(16, 6, A.XF_BYTES)
    k("s_mov_b32 s46, 64"); k("s_mov_b32 s47, 32"); k("s_mov_b32 s50, 0"); k(f"s_mov_b32 s58, {A.WS_XF1}")
    k("s_mov_b32 s76, 16"); k("s_mov_b32 s77, 163840")
    k.lab('k3_entry')
    A.role_K3(k, H)
    event(k, 6)
    k("s_cmp_eq_u32 s92, 0"); k(f"s_cbranch_scc0 {k.ref('end')}")
    k("s_mov_b32 s92, 1")
    k("s_cmp_lt_u32 s2, 248"); k(f"s_cbranch_scc1 {k.ref('helper_k1')}")
    k.lab('k3_l1')
    k.srd(16, 4, A.XF_BYTES, A.WS_XF2)
    k("s_mov_b32 s46, 1024"); k("s_mov_b32 s47, 8"); k("s_mov_b32 s50, 1"); k(f"s_mov_b32 s58, {A.WS_XF3}")
    if CFG['k3w']: k("s_mov_b32 s76, 16"); k("s_mov_b32 s77, 163840")
    else: k("s_mov_b32 s76, 64"); k("s_mov_b32 s77, 40960")
    k(f"s_branch {k.ref('k3_entry')}")
    k.lab('helper_k1')
    k("s_mov_b32 s92, 1")
    k("s_sub_u32 s24, s2, 232")
    k.srd(16, 4, A.XF_BYTES, A.WS_XF2)
    k("s_mov_b32 s46, 1024"); k("s_mov_b32 s47, 8"); k("s_mov_b32 s50, 1")
    k("s_and_b32 s44, s24, 7"); k("s_lshr_b32 s45, s24, 3")
    k("s_mov_b32 s48, s45"); k("s_mov_b32 s49, 2"); k("s_mov_b32 s40, 32")
    k(f"s_branch {k.ref('k1_entry')}")
    k.lab('helper_clr')
    role_clear(k)
    event(k, 6)
    k(f"s_branch {k.ref('end')}")
    k.lab('roleS'); role_S2(k)
    k.lab('roleV'); role_V2(k)
    k.lab('roleR'); role_R(k)
    k.lab('roleP'); role_P(k)
    k.lab('roleO'); role_O(k)
    k.lab('end')
    head = ["; generated by gen6.py (my own hand-written generator); kernarg: 13 pointers",
            f"; @launch kernel={k.name} grid=(256,1,1) block=(256,1,1) lds=135168",
            '.amdgcn_target "amdgcn-amd-amdhsa--gfx950"']
    return "\n".join(head) + "\n" + k.text() + "\n"

CFG.setdefault('xpre', 0); CFG.setdefault('s_pre', 0); CFG.setdefault('r_pre', 1); CFG.setdefault('k3w', 1); CFG.setdefault('o_ovl', 1); CFG.setdefault('p_ovl', 1); CFG.setdefault('p_ovl_j', 4); CFG.setdefault('xlag_e', 8); CFG.setdefault('xe0', 56); CFG.setdefault('pol', -1); CFG.setdefault('npol', 3); CFG.setdefault('xmap', 1); CFG.setdefault('l2pf', 1); CFG.setdefault('k1xmod', ''); CFG.setdefault('pf', 0); CFG.setdefault('p_adapt', 1); CFG.setdefault('o_adapt', 1); CFG.setdefault('xflag', 1); CFG.setdefault('sl_xc', 16); CFG.setdefault('k1_pre', 1); CFG.setdefault('dly_hr', 4); CFG.setdefault('hr_wave', 3); CFG.setdefault('s2', 1); CFG.setdefault('v2', 1); CFG.setdefault('v_x8', 4); CFG.setdefault('v_x9', 4); CFG.setdefault('tgt_m', 9); CFG.setdefault('tgt_p', 7); CFG.setdefault('kx_pos', 0); CFG.setdefault('px_pos', 1); CFG.setdefault('x_off', 0); CFG.setdefault('o_off', 0); CFG.setdefault('p_off', 0); CFG.setdefault('rv_off', 0); CFG.setdefault('noclr', 0); CFG.setdefault('pstat', 1); CFG.setdefault('p_nx', 1); CFG.setdefault('p_wr', 1); CFG.setdefault('px_mod', ''); CFG.setdefault('p_ns', 2); CFG.setdefault('spin', SPIN_MAX); CFG.setdefault('xlag', 8); CFG.setdefault('clr_mod', 'sc1')
if __name__ == "__main__":
    out = "z.s"
    for a in sys.argv[1:]:
        if a == "stamp": CFG['stamp'] = True
        elif a.endswith(".s"): out = a
        elif "=" in a:
            kk, v = a.split("=")
            try: CFG[kk] = int(v)
            except ValueError: CFG[kk] = v.replace('+', ' ')
    open(out, "w").write(build())
    print("written", out)
```

```python
import sys
from asmlib import K, magic
import genA as A
from genA import hexf, LOG2E, LG, lookup, row_stats_partial, row_stats_final, ln_fold

NAME = A.NAME
S, D, H, DH, HD, NSEG = 2048, 640, 32, 192, 6144, 64
KA_AX, KA_WQKV, KA_WOA, KA_BX, KA_MEM0, KA_WQ, KA_WK, KA_WV, KA_WO, KA_SEG, KA_OUT, KA_DBG, KA_WS = range(13)
WS_BYTES = 268435456

WS_FLG   = 0x01600000
FLG_BYTES = 0x10000
F_Q   = 0x0000
F_LAYER = 0x4000
F_K1  = 0x8000
F_K2  = 0x8800
F_K3  = 0x9000
F_X   = 0x9800
F_C   = 0xA000
F_S   = 0xA800
WS_TRACE = 0x01800000
WS_VF    = 0x02000000
WS_QF    = 0x04000000
WS_KF    = 0x05800000
QF_SEG   = 32 * 12288
WS_SYNC  = 0x07000000
SYNC_STEP = 0x100000
O_VOM, O_PB, O_MB, O_HR, O_HS = 0, 40 * 16384, 43 * 16384, 45 * 16384, 46 * 16384
O_PX = 0
N_NEAR, N_COMP = 47, 10
WS_VOX   = 0x0B000000
VOX_SEG  = 40 * 32 * 1024
assert WS_SYNC + 64 * SYNC_STEP <= WS_VOX and WS_VOX + 64 * VOX_SEG <= WS_BYTES
SCALE_B = DH ** -0.5
SPIN_MAX = 1 << 17
OOB = 0x7ff00000
RH_M, RH_P = 16, 8

CFG = dict(stamp=False, dly_vox=18, pd_m=2, pd_p=1, pdep=4, pgain=0, dly_m=5, dly_v=20, dly_p=0, sl_m=1, sl_p=1, sl_x=2, sl_x0=8,
           hs_pos=23, hr_pos=1, clr_sleep=0)


def poll(k, name, loads, regs, tmp, sleep, first_delay=0, depth=1):
    if first_delay:
        k(f"s_sleep {first_delay}")
    k("s_mov_b32 s61, 0")
    for d in range(depth - 1):
        for l in loads: k(l)
        if sleep: k(f"s_sleep {sleep}")
    k.lab(name)
    for l in loads: k(l)
    k(f"s_waitcnt vmcnt({(depth - 1) * len(loads)})")
    rs = list(regs)
    k(f"v_max3_u32 v{tmp}, v{rs[0]}, v{rs[1]}, v{rs[2]}")
    rs = rs[3:]
    while len(rs) >= 2:
        k(f"v_max3_u32 v{tmp}, v{tmp}, v{rs[0]}, v{rs[1]}"); rs = rs[2:]
    if rs: k(f"v_max_u32 v{tmp}, v{tmp}, v{rs[0]}")
    k(f"v_cmp_eq_u32 vcc, -1, v{tmp}")
    k("s_add_u32 s61, s61, 1")
    k(f"s_cbranch_vccz {k.ref(name + '_out')}")
    k("s_cmp_ge_u32 s61, s60")
    k(f"s_cbranch_scc1 {k.ref(name + '_to')}")
    if sleep: k(f"s_sleep {sleep}")
    k(f"s_branch {k.ref(name)}")
    k.lab(name + '_to')
    k("s_mov_b32 s60, 1")
    k.lab(name + '_out')

def check_regs(k, rs, tmp):
    rs = list(rs)
    k(f"v_max3_u32 v{tmp}, v{rs[0]}, v{rs[1]}, v{rs[2]}")
    rs = rs[3:]
    while len(rs) >= 2:
        k(f"v_max3_u32 v{tmp}, v{tmp}, v{rs[0]}, v{rs[1]}"); rs = rs[2:]
    if rs: k(f"v_max_u32 v{tmp}, v{tmp}, v{rs[0]}")
    k(f"v_cmp_eq_u32 vcc, -1, v{tmp}")


def aprobe(k, name, areg, sbase, target, ring, delta, depth, dly):
    ring = ring[:depth]
    if dly: k(f"s_sleep {dly}")
    k("s_mov_b64 exec, 1")
    k("s_mov_b32 s61, 0")
    def issue(i):
        k(f"v_mov_b32 v{ring[i]}, 0")
        k(f"buffer_atomic_add v{ring[i]}, v{areg}, s[8:11], {sbase} offen sc0")
    for d in range(depth - 1):
        issue(d + 1)
        if delta: k(f"s_sleep {delta}")
    k.lab(name)
    for i in range(depth):
        issue(i)
        k(f"s_waitcnt vmcnt({depth - 1})")
        k(f"v_cmp_le_i32 vcc, {target}, v{ring[(i + 1) % depth]}")
        k("s_add_u32 s61, s61, 1")
        k(f"s_cbranch_vccnz {k.ref(name + '_out')}")
        if delta: k(f"s_sleep {delta}")
    k("s_cmp_ge_u32 s61, s60")
    k(f"s_cbranch_scc0 {k.ref(name)}")
    k("s_mov_b32 s60, 1")
    k.lab(name + '_out')
    k("s_mov_b64 exec, -1")
    if CFG['stamp']: k("s_mov_b32 s56, s61")

def ahint(k, areg, one, sbase):
    k(f"buffer_atomic_add v{one}, v{areg}, s[8:11], {sbase} offen")

def ahint_addr(k, dst, t, w_sreg, nrep, only_wave0):
    k(f"s_mul_i32 s24, {w_sreg}, {nrep}")
    k(f"v_add_u32 v{dst}, s24, v1")
    k(f"v_lshlrev_b32 v{dst}, 7, v{dst}")
    k(f"v_mov_b32 v{t}, {OOB}")
    k(f"v_cmp_le_u32 vcc, {nrep}, v1")
    k(f"v_cndmask_b32 v{dst}, v{dst}, v{t}, vcc")
    if only_wave0:
        k("s_cmp_eq_u32 s3, 0"); k(f"s_cselect_b32 s24, 0, {OOB}")
        k(f"v_or_b32 v{dst}, s24, v{dst}")

def aprobe_addr(k, dst, wg_sreg, nrep):
    k(f"s_and_b32 s24, {wg_sreg}, {nrep - 1}")
    k(f"s_mul_i32 s25, s3, {nrep}")
    k("s_add_u32 s24, s24, s25"); k("s_lshl_b32 s24, s24, 7")
    k(f"v_mov_b32 v{dst}, s24")


def shot_check(k, name, loads, regs, tmp, nyoung, sleep):
    k(f"s_waitcnt vmcnt({nyoung})")
    check_regs(k, regs, tmp)
    if CFG['stamp']: k("s_mov_b32 s57, 0")
    k(f"s_cbranch_vccz {k.ref(name + '_out')}")
    k("s_mov_b32 s61, 0")
    k.lab(name)
    for l in loads: k(l)
    k("s_waitcnt vmcnt(0)")
    check_regs(k, regs, tmp)
    k("s_add_u32 s61, s61, 1")
    if CFG['stamp']: k("s_mov_b32 s57, s61")
    k(f"s_cbranch_vccz {k.ref(name + '_out')}")
    k("s_cmp_ge_u32 s61, s60")
    k(f"s_cbranch_scc1 {k.ref(name + '_to')}")
    if sleep: k(f"s_sleep {sleep}")
    k(f"s_branch {k.ref(name)}")
    k.lab(name + '_to')
    k("s_mov_b32 s60, 1")
    k.lab(name + '_out')


def divmod_const(k, q, r, x, d, maxn, stmp):
    m, sh = magic(d, maxn)
    k(f"s_mov_b32 s{stmp}, {m}")
    k(f"v_mul_lo_u32 v{q}, v{x}, s{stmp}")
    k(f"v_lshrrev_b32 v{q}, {sh}, v{q}")
    k(f"v_mul_u32_u24 v{r}, {d}, v{q}")
    k(f"v_sub_u32 v{r}, v{x}, v{r}")

def stage_offsets(k, n, cpr, gstride, RS, lbase, go, lo, t0):
    for i in range(n):
        k(f"v_add_u32 v{t0}, {256*i}, v0")
        divmod_const(k, t0 + 1, t0 + 2, t0, cpr, 256 * n, 24)
        k(f"s_mov_b32 s24, {gstride}")
        k(f"v_mul_lo_u32 v{go+i}, v{t0+1}, s24")
        k(f"v_lshl_add_u32 v{go+i}, v{t0+2}, 4, v{go+i}")
        k(f"v_mul_u32_u24 v{lo+i}, {RS}, v{t0+1}")
        k(f"v_lshl_add_u32 v{lo+i}, v{t0+2}, 4, v{lo+i}")
        k(f"v_add_u32 v{lo+i}, {lbase}, v{lo+i}")

def tr_base(k, dst, RS, lbase, t0):
    k(f"v_lshrrev_b32 v{t0}, 1, v3")
    k(f"v_lshlrev_b32 v{t0}, 4, v{t0}")
    k(f"v_and_b32 v{t0+1}, 1, v3")
    k(f"v_lshl_add_u32 v{t0}, v{t0+1}, 2, v{t0}")
    k(f"v_lshrrev_b32 v{t0+1}, 2, v2")
    k(f"v_and_b32 v{t0+2}, 1, v{t0+1}")
    k(f"v_add_u32 v{t0}, v{t0}, v{t0+2}")
    k(f"v_lshrrev_b32 v{t0+1}, 1, v{t0+1}")
    k(f"v_lshl_add_u32 v{t0}, v{t0+1}, 3, v{t0}")
    k(f"v_mul_u32_u24 v{dst}, {RS}, v{t0}")
    k(f"v_and_b32 v{t0+1}, 3, v2")
    k(f"v_lshl_add_u32 v{dst}, v{t0+1}, 3, v{dst}")
    k(f"v_add_u32 v{dst}, {lbase}, v{dst}")

def softmax8(k, P0, T0, T1, masks=None):
    if masks:
        k(f"v_mov_b32 v{T1}, 0xff800000")
        for j in range(8): k(f"v_cndmask_b32 v{P0+j}, v{T1}, v{P0+j}, s[{masks+2*j}:{masks+2*j+1}]")
    k(f"v_max3_f32 v{T0}, v{P0}, v{P0+1}, v{P0+2}")
    k(f"v_max3_f32 v{T0}, v{T0}, v{P0+3}, v{P0+4}")
    k(f"v_max3_f32 v{T0}, v{T0}, v{P0+5}, v{P0+6}")
    k(f"v_max_f32 v{T0}, v{T0}, v{P0+7}")
    k(f"v_mov_b32 v{T1}, 0xff800000")
    k(f"v_cndmask_b32 v{T0}, v{T1}, v{T0}, s[50:51]")
    for dpp in ("quad_perm:[1,0,3,2]", "quad_perm:[2,3,0,1]", "row_half_mirror"):
        k(f"v_max_f32 v{T0}, v{T0}, v{T0} {dpp} row_mask:0xf bank_mask:0xf")
    k(f"s_mov_b32 s24, {hexf(SCALE_B * LOG2E)}")
    k(f"v_mul_f32 v{T0}, s24, v{T0}")
    pk = CFG['smpk'] and T0 % 2 == 0 and T1 == T0 + 1 and P0 % 2 == 0
    if pk:
        for r in range(0, 8, 2):
            k(f"v_pk_fma_f32 v[{P0+r}:{P0+r+1}], v[{P0+r}:{P0+r+1}], s[24:25], v[{T0}:{T1}] op_sel_hi:[1,0,0] neg_lo:[0,0,1] neg_hi:[0,0,1]")
    else:
        for r in range(8): k(f"v_fma_f32 v{P0+r}, v{P0+r}, s24, -v{T0}")
    for r in range(8): k(f"v_exp_f32 v{P0+r}, v{P0+r}")
    if pk:
        k(f"v_pk_add_f32 v[{P0+8}:{P0+9}], v[{P0}:{P0+1}], v[{P0+2}:{P0+3}]")
        k(f"v_pk_add_f32 v[{P0+10}:{P0+11}], v[{P0+4}:{P0+5}], v[{P0+6}:{P0+7}]")
        k(f"v_pk_add_f32 v[{P0+8}:{P0+9}], v[{P0+8}:{P0+9}], v[{P0+10}:{P0+11}]")
        k(f"v_add_f32 v{T0}, v{P0+8}, v{P0+9}")
    else:
        k(f"v_add_f32 v{T0}, v{P0}, v{P0+1}")
        k(f"v_add_f32 v{T1}, v{P0+2}, v{P0+3}")
        k(f"v_add_f32 v{T0}, v{T0}, v{P0+4}")
        k(f"v_add_f32 v{T1}, v{T1}, v{P0+5}")
        k(f"v_add_f32 v{T0}, v{T0}, v{P0+6}")
        k(f"v_add_f32 v{T1}, v{T1}, v{P0+7}")
        k(f"v_add_f32 v{T0}, v{T0}, v{T1}")
    k(f"v_cndmask_b32 v{T0}, 0, v{T0}, s[50:51]")
    for dpp in ("quad_perm:[1,0,3,2]", "quad_perm:[2,3,0,1]", "row_half_mirror"):
        k(f"v_add_f32 v{T0}, v{T0}, v{T0} {dpp} row_mask:0xf bank_mask:0xf")
    k(f"v_rcp_f32 v{T0}, v{T0}")
    if pk:
        for r in range(0, 8, 2): k(f"v_pk_mul_f32 v[{P0+r}:{P0+r+1}], v[{P0+r}:{P0+r+1}], v[{T0}:{T1}] op_sel_hi:[1,0]")
    else:
        for r in range(8): k(f"v_mul_f32 v{P0+r}, v{P0+r}, v{T0}")
    for q in range(4): k(f"v_cvt_pk_bf16_f32 v{P0+8+q}, v{P0+2*q}, v{P0+2*q+1}")
    for q in range(4): k(f"v_min_u32 v{P0+8+q}, -2, v{P0+8+q}")

def sum4x8(k, P0, addr, stride):
    for w in range(4):
        k(f"ds_read_b128 v[{P0+8*w}:{P0+8*w+3}], v{addr} offset:{w*stride}")
        k(f"ds_read_b128 v[{P0+8*w+4}:{P0+8*w+7}], v{addr} offset:{w*stride+16}")
    k("s_waitcnt lgkmcnt(4)")
    for r in range(0, 8, 2): k(f"v_pk_add_f32 v[{P0+r}:{P0+r+1}], v[{P0+r}:{P0+r+1}], v[{P0+8+r}:{P0+8+r+1}]")
    k("s_waitcnt lgkmcnt(0)")
    for r in range(0, 8, 2): k(f"v_pk_add_f32 v[{P0+16+r}:{P0+16+r+1}], v[{P0+16+r}:{P0+16+r+1}], v[{P0+24+r}:{P0+24+r+1}]")
    for r in range(0, 8, 2): k(f"v_pk_add_f32 v[{P0+r}:{P0+r+1}], v[{P0+r}:{P0+r+1}], v[{P0+16+r}:{P0+16+r+1}]")


def tr_frag(k, reg, kind, addr, RS, off):
    for q, ro in enumerate((0, 2, 32, 34)):
        k(f"ds_read_b64_tr_b16 {kind}[{reg+2*q}:{reg+2*q+1}], v{addr} offset:{off + ro*RS}")

def m0_image(k, srd, t0):
    for p in range(3):
        k(f"s_lshl_b32 s24, s3, 6"); k(f"s_add_u32 s24, s24, {256*p}")
        k(f"v_add_u32 v{t0}, s24, v1")
        k(f"v_and_b32 v{t0+1}, 7, v{t0}")
        k(f"v_mul_u32_u24 v{t0+1}, 1280, v{t0+1}")
        k(f"v_lshrrev_b32 v{t0+2}, 3, v{t0}")
        k(f"v_lshl_add_u32 v{t0+1}, v{t0+2}, 4, v{t0+1}")
        k(f"v_cmp_gt_u32 vcc, 640, v{t0}")
        k(f"v_mov_b32 v{t0+3}, {OOB}")
        k(f"v_cndmask_b32 v{t0+1}, v{t0+3}, v{t0+1}, vcc")
        k(f"buffer_load_dwordx4 v[{t0+4}:{t0+7}], v{t0+1}, s[{srd}:{srd+3}], 0 offen")
        k(f"v_lshlrev_b32 v{t0}, 4, v{t0}")
        k("s_waitcnt vmcnt(0)")
        k(f"s_and_saveexec_b64 s[30:31], vcc")
        k(f"ds_write_b128 v{t0}, v[{t0+4}:{t0+7}]")
        k("s_mov_b64 exec, s[30:31]")

def stamp(k, i):
    if CFG['stamp']: k(f"s_memrealtime s[{80+2*i}:{81+2*i}]")

def stamp_out(k, nst, t):
    if not CFG['stamp']: return
    if CFG.get('clk'):
        k("s_memtime s[56:57]"); k("s_waitcnt lgkmcnt(0)")
    k("s_lshl_b32 s34, s2, 2"); k("s_add_u32 s34, s34, s3"); k("s_lshl_b32 s34, s34, 7")
    k("s_lshl_b32 s35, s92, 6"); k("s_add_u32 s34, s34, s35")
    k("s_add_u32 s34, s34, s40"); k("s_lshl_b32 s34, s34, 5"); k(f"s_add_u32 s34, s34, {WS_TRACE}")
    k(f"v_mov_b32 v{t}, {OOB}")
    k("v_cmp_eq_u32 vcc, 0, v1")
    k(f"v_cndmask_b32 v{t}, v{t}, 0, vcc")
    for i in range(nst):
        k(f"v_mov_b32 v{t+1}, s{80+2*i}")
        k(f"buffer_store_dword v{t+1}, v{t}, s[8:11], s34 offen offset:{i*4}")
    for i, sreg in ((6, 's57'), (7, 's56')):
        k(f"v_mov_b32 v{t+1}, {sreg}")
        k(f"buffer_store_dword v{t+1}, v{t}, s[8:11], s34 offen offset:{i*4}")

WS_EVT = 0x01C00000
def event(k, idx, t=14):
    if not CFG['stamp']: return
    k("s_memrealtime s[96:97]")
    k("s_lshl_b32 s34, s2, 7"); k("s_lshl_b32 s35, s92, 6"); k("s_add_u32 s34, s34, s35"); k(f"s_add_u32 s34, s34, {WS_EVT + 4*idx}")
    k("s_cmp_eq_u32 s3, 0"); k(f"s_cselect_b32 s34, s34, {OOB}")
    k(f"v_mov_b32 v{t}, {OOB}")
    k("v_cmp_eq_u32 vcc, 0, v1")
    k(f"v_cndmask_b32 v{t}, v{t}, 0, vcc")
    k("s_waitcnt lgkmcnt(0)")
    k(f"v_mov_b32 v{t+1}, s96")
    k(f"buffer_store_dword v{t+1}, v{t}, s[8:11], s34 offen")

def ensure(k, name, nfl, addr, tmp, need='s63', known='s62', sleep=2):
    k(f"s_cmp_ge_i32 {known}, {need}")
    k(f"s_cbranch_scc1 {k.ref(name + '_ok')}")
    if callable(addr):
        addr(k, tmp + 1); addr = tmp + 1
    k("s_mov_b32 s61, 0")
    k.lab(name)
    k(f"buffer_load_dword v{tmp}, v{addr}, s[8:11], 0 offen sc1")
    k("s_waitcnt vmcnt(0)")
    k(f"v_readlane_b32 {known}, v{tmp}, 0")
    for i in range(1, nfl):
        k(f"v_readlane_b32 s24, v{tmp}, {i}")
        k(f"s_min_i32 {known}, {known}, s24")
    k(f"s_cmp_ge_i32 {known}, {need}")
    k(f"s_cbranch_scc1 {k.ref(name + '_ok')}")
    k("s_add_u32 s61, s61, 1")
    k("s_cmp_ge_u32 s61, s60")
    k(f"s_cbranch_scc1 {k.ref(name + '_to')}")
    k(f"s_sleep {sleep}")
    k(f"s_branch {k.ref(name)}")
    k.lab(name + '_to')
    k("s_mov_b32 s60, 1")
    k.lab(name + '_ok')

def clr_addr(k, dst):
    k("s_and_b32 s24, s2, 7"); k("s_lshl_b32 s24, s24, 7"); k(f"s_add_u32 s24, s24, {WS_FLG + F_C}")
    k(f"v_and_b32 v{dst}, 3, v1"); k(f"v_lshl_add_u32 v{dst}, v{dst}, 2, s24")

def ensure_clear(k, name, tmp, blk):
    k("s_lshl_b32 s95, s92, 6"); k(f"s_add_u32 s95, s95, {blk}"); k("s_add_u32 s95, s95, 1")
    ensure(k, name, 3, clr_addr, tmp, need='s95', known='s59')

def wait_all(k, name, n, t, need, sleep=2):
    k("s_mov_b32 s61, 0")
    k.lab(name)
    k(f"buffer_load_dword v{t}, v{t+1}, s[8:11], 0 offen sc1")
    k("s_waitcnt vmcnt(0)")
    k(f"v_cmp_le_i32 vcc, {need}, v{t}")
    mask = ((1 << n) - 1) if isinstance(n, int) else n
    if isinstance(n, int): k(f"s_mov_b32 s25, {hex(mask & 0xffffffff)}"); mask = 's25'
    k(f"s_and_b32 s24, vcc_lo, {mask}")
    k(f"s_cmp_eq_u32 s24, {mask}")
    k(f"s_cbranch_scc1 {k.ref(name + '_ok')}")
    k("s_add_u32 s61, s61, 1")
    k("s_cmp_ge_u32 s61, s60")
    k(f"s_cbranch_scc1 {k.ref(name + '_to')}")
    k(f"s_sleep {sleep}")
    k(f"s_branch {k.ref(name)}")
    k.lab(name + '_to')
    k("s_mov_b32 s60, 1")
    k.lab(name + '_ok')

def pub_dword(k, saddr, val, t, copies=1):
    l = k.new('pb')
    k("s_cmp_eq_u32 s3, 0")
    k(f"s_cbranch_scc0 {k.ref(l)}")
    k(f"v_lshlrev_b32 v{t}, 7, v1"); k(f"v_add_u32 v{t}, {saddr}, v{t}")
    k(f"v_mov_b32 v{t+1}, {OOB}"); k(f"v_cmp_le_u32 vcc, {copies}, v1"); k(f"v_cndmask_b32 v{t}, v{t}, v{t+1}, vcc")
    k(f"v_mov_b32 v{t+1}, {val}")
    k(f"buffer_store_dword v{t+1}, v{t}, s[8:11], 0 offen sc1")
    k.lab(l)

def next_layer(k, again):
    k("s_cmp_eq_u32 s92, 0")
    k(f"s_cbranch_scc0 {k.ref('end')}")
    k("s_mov_b32 s92, 1")
    k(f"s_branch {k.ref(again)}")

def blk_base(k, step, dst, add=0):
    if add: k(f"s_add_u32 {dst}, {step}, {add}"); step = dst
    k(f"s_lshl_b32 s24, {step}, 12"); k("s_and_b32 s24, s24, 0x2000"); k("s_xor_b32 s24, s24, s36")
    k(f"s_lshl_b32 {dst}, {step}, 20"); k(f"s_add_u32 {dst}, {dst}, s24"); k(f"s_add_u32 {dst}, {dst}, {WS_SYNC}")

def spread(k, reg, t):
    k(f"v_and_b32 v{t}, 0xffffe000, v{reg}"); k(f"v_add_u32 v{reg}, v{reg}, v{t}")

def layer_bases(k):
    k("s_mov_b32 s93, 0"); blk_base(k, 's93', 's93')
    k(f"s_mul_i32 s94, s92, {F_LAYER}"); k(f"s_add_u32 s94, s94, {WS_FLG + F_Q}")


def role_S2(k):
    L_M, L_X, L_SP, L_DUM, L_W5, L_ST = 0, 10240, 16384, 22528, 24576, 106496
    RS = 400
    ACC, AF, WS5 = 24, 48, 68
    KX = 240
    QX = 80
    T0, T1 = 92, 93
    def wreg(t, c):
        if t < 3: return 'a', t * 80 + c * 8
        return 'v', 96 + (t - 4) * 80 + c * 8
    k("s_mov_b32 s44, s2")
    k.ptr(KA_WQ, 6); k.ptr(KA_WK, 24); k.ptr(KA_MEM0, 26)
    k("s_waitcnt lgkmcnt(0)")
    k.srd(12, 6, D * HD * 2); k.srd(16, 24, D * HD * 2); k.srd(20, 26, 8 * 640 * 2)
    GO, LO, DAT = 4, 10, 24
    stage_offsets(k, 6, 24, HD * 2, RS, L_ST, GO, LO, 16)
    tr_base(k, 16, RS, L_ST, 17)
    k("s_mul_i32 s24, s3, 96")
    k("v_add_u32 v16, s24, v16")
    k("v_lshlrev_b32 v17, 4, v1")
    k(f"s_mul_i32 s24, s3, 20480"); k(f"s_add_u32 s24, s24, {L_W5}")
    k("v_add_u32 v17, s24, v17")
    k(f"s_mul_i32 s45, s44, 384")
    blocks = [(c, m) for c in range(10) for m in range(2)]
    def loads(bi):
        c, m = blocks[bi]
        d = DAT + 24 * (bi % 3)
        k(f"s_add_u32 s46, s45, {c * 64 * HD * 2}")
        for i in range(6):
            k(f"buffer_load_dwordx4 v[{d+4*i}:{d+4*i+3}], v{GO+i}, s[{12+4*m}:{15+4*m}], s46 offen")
    loads(0); loads(1)
    for bi, (c, m) in enumerate(blocks):
        d = DAT + 24 * (bi % 3)
        k(f"s_waitcnt vmcnt({6 if bi + 1 < len(blocks) else 0})")
        for i in range(6): k(f"ds_write_b128 v{LO+i}, v[{d+4*i}:{d+4*i+3}]")
        if bi + 2 < len(blocks): loads(bi + 2)
        k("s_waitcnt lgkmcnt(0)")
        k("s_barrier")
        for t in range(3):
            tt = 3 * m + t
            if tt != 3:
                kind, r = wreg(tt, c)
                tr_frag(k, r, kind, 16, RS, 32 * t)
        if m == 1:
            tr_frag(k, d, 'v', 16, RS, 0)
            k("s_waitcnt lgkmcnt(0)")
            k(f"ds_write_b128 v17, v[{d}:{d+3}] offset:{c*2048}")
            k(f"ds_write_b128 v17, v[{d+4}:{d+7}] offset:{c*2048+1024}")
        k("s_waitcnt lgkmcnt(0)")
        k("s_barrier")
    A_, B_, C_, D_ = 30, 31, 32, 33
    k("v_mov_b32 v6, v17")
    k(f"v_mov_b32 v{A_}, 0xeeee"); k("v_mov_b32 v4, 0x4444")
    k("v_cmp_gt_u32 vcc, 8, v2")
    k(f"v_cndmask_b32 v4, v{A_}, v4, vcc")
    k("v_lshlrev_b32 v5, 4, v1")
    k("s_lshl_b32 s24, s3, 10")
    k("v_add_u32 v7, s24, v5")
    k("s_lshl_b32 s24, s3, 9"); k("s_add_u32 s24, s24, 8192")
    k("v_lshlrev_b32 v8, 3, v1")
    k("v_add_u32 v8, s24, v8")
    k(f"v_and_b32 v{A_}, 1, v2"); k(f"v_lshlrev_b32 v{A_}, 4, v{A_}")
    k(f"v_mov_b32 v{B_}, 0x3f80"); k(f"v_lshlrev_b32 v{B_}, v{A_}, v{B_}")
    k(f"v_lshrrev_b32 v{A_}, 2, v2"); k(f"v_cmp_eq_u32 vcc, v{A_}, v3"); k(f"v_cndmask_b32 v{B_}, 0, v{B_}, vcc")
    k(f"v_and_b32 v{A_}, 2, v2"); k(f"v_cmp_eq_u32 vcc, 0, v{A_}")
    k(f"v_cndmask_b32 v10, 0, v{B_}, vcc"); k(f"v_cndmask_b32 v11, v{B_}, 0, vcc")
    k(f"v_add_u32 v{D_}, {L_DUM}, v5")
    k(f"s_mul_i32 s24, s3, 1408"); k(f"s_add_u32 s24, s24, {L_SP}")
    k(f"v_mul_u32_u24 v{A_}, 176, v2")
    k(f"v_add_u32 v{A_}, s24, v{A_}")
    k(f"v_lshl_add_u32 v12, v3, 5, v{A_}")
    k("v_cmp_gt_u32 vcc, 8, v2")
    k(f"v_cndmask_b32 v12, v{D_}, v12, vcc")
    k(f"v_lshl_add_u32 v13, v3, 4, v{A_}")
    k("v_add_u32 v13, 96, v13")
    k("v_cmp_le_u32 s[24:25], 2, v3")
    k("s_and_b64 vcc, vcc, s[24:25]")
    k(f"v_cndmask_b32 v13, v{D_}, v13, vcc")
    k(f"s_mul_i32 s24, s3, 5632"); k(f"s_add_u32 s24, s24, {L_ST}")
    k(f"v_mul_u32_u24 v{A_}, 176, v2")
    k(f"v_add_u32 v{A_}, s24, v{A_}")
    k(f"v_lshl_add_u32 v16, v3, 5, v{A_}")
    k(f"v_lshl_add_u32 v17, v3, 4, v{A_}")
    k("v_add_u32 v17, 96, v17")
    k("v_add_u32 v18, 2816, v17")
    k("v_cmp_le_u32 vcc, 2, v3")
    k(f"v_cndmask_b32 v17, v{D_}, v17, vcc")
    k(f"v_cndmask_b32 v18, v{D_}, v18, vcc")
    k(f"v_lshrrev_b32 v{A_}, 3, v1")
    k(f"v_and_b32 v{B_}, 7, v1")
    k(f"v_min_u32 v{C_}, 4, v{B_}")
    k(f"v_mul_u32_u24 v14, 176, v{A_}")
    k(f"v_lshl_add_u32 v14, v{C_}, 5, v14")
    k("s_mul_i32 s24, s3, 1408"); k(f"s_add_u32 s24, s24, {L_ST}")
    k("v_add_u32 v21, s24, v14")
    k(f"v_add_u32 v14, {L_SP}, v14")
    k(f"v_cmp_gt_u32 s[50:51], 5, v{B_}")
    k("s_lshl_b32 s24, s3, 3")
    k(f"v_add_u32 v{C_}, s24, v{A_}")
    k(f"v_lshlrev_b32 v{D_}, 2, v{B_}")
    k(f"v_sub_u32 v{C_}, v{C_}, v{D_}")
    k(f"v_mov_b32 v{D_}, 100")
    k(f"v_cmp_gt_u32 vcc, 4, v{B_}")
    k(f"v_cndmask_b32 v{C_}, v{D_}, v{C_}, vcc")
    for j in range(8):
        cj = j if j < 4 else j + 12
        k(f"v_cmp_le_i32 s[{64+2*j}:{65+2*j}], {cj}, v{C_}")
    k("s_lshr_b32 s24, s44, 1"); k("s_lshl_b32 s24, s24, 10")
    k("s_and_b32 s25, s44, 1"); k("s_lshl_b32 s25, s25, 7"); k("s_add_u32 s24, s24, s25")
    k(f"v_lshlrev_b32 v15, 8, v{B_}")
    k(f"v_lshl_add_u32 v15, v{A_}, 4, v15")
    k("v_add_u32 v15, s24, v15")
    k("s_lshr_b32 s24, s44, 3"); k("s_lshl_b32 s24, s24, 10")
    k("s_and_b32 s25, s44, 3"); k("s_lshl_b32 s25, s25, 8"); k("s_add_u32 s24, s24, s25")
    k("s_lshr_b32 s25, s44, 2"); k("s_and_b32 s25, s25, 1"); k("s_lshl_b32 s25, s25, 7"); k("s_add_u32 s24, s24, s25")
    k("s_add_u32 s24, s24, 16384")
    k(f"v_lshlrev_b32 v{C_}, 4, v{A_}")
    k(f"v_add_u32 v{C_}, s24, v{C_}")
    k(f"v_cmp_eq_u32 vcc, 4, v{B_}")
    k(f"v_cndmask_b32 v15, v15, v{C_}, vcc")
    spread(k, 15, C_)
    k(f"v_mov_b32 v{C_}, {OOB}")
    k(f"v_cndmask_b32 v15, v{C_}, v15, s[50:51]")
    k(f"s_cmp_lt_u32 s3, 1"); k(f"s_cselect_b32 s24, 0, {OOB}")
    k("v_or_b32 v15, s24, v15")
    k("s_and_b32 s24, s3, 1"); k("s_lshl_b32 s24, s24, 7")
    k("s_lshr_b32 s25, s3, 1"); k("s_lshl_b32 s25, s25, 10")
    k("s_add_u32 s24, s24, s25")
    k("s_lshl_b32 s25, s44, 11"); k("s_add_u32 s25, s25, s24")
    k(f"v_lshlrev_b32 v22, 8, v{B_}")
    k(f"v_lshl_add_u32 v22, v{A_}, 4, v22")
    k("v_add_u32 v22, s25, v22")
    k("s_lshr_b32 s25, s44, 2"); k("s_lshl_b32 s25, s25, 11"); k("s_add_u32 s25, s25, s24")
    k("s_and_b32 s26, s44, 3"); k("s_lshl_b32 s26, s26, 8"); k("s_add_u32 s25, s25, s26"); k("s_add_u32 s25, s25, 65536")
    k(f"v_lshlrev_b32 v{C_}, 4, v{A_}")
    k(f"v_add_u32 v{C_}, s25, v{C_}")
    k(f"v_cmp_eq_u32 vcc, 4, v{B_}")
    k(f"v_cndmask_b32 v22, v22, v{C_}, vcc")
    spread(k, 22, C_)
    k(f"v_mov_b32 v{C_}, {OOB}")
    k(f"v_cndmask_b32 v22, v{C_}, v22, s[50:51]")
    k("s_mul_i32 s24, s44, 12288"); k("s_mul_i32 s25, s3, 3072"); k("s_add_u32 s24, s24, s25")
    k("v_add_u32 v19, s24, v5")
    aprobe_addr(k, 23, 's2', RH_M)
    k("s_lshr_b32 s25, s44, 3")
    ahint_addr(k, 20, A_, 's25', RH_P, True)
    k("v_mov_b32 v0, 1")
    event(k, 1, 48)
    pol_get(k, 48)
    k.lab('s_layer')
    layer_bases(k)
    k("v_and_b32 v9, 1, v1")
    k("v_lshlrev_b32 v9, 12, v9")
    k(f"s_lshl_b32 s24, s44, 7"); k(f"s_add_u32 s24, s24, s94")
    k("v_add_u32 v9, s24, v9")
    m0_image(k, 20, 48)
    k("s_mov_b32 s40, 0")
    k(f"s_mov_b32 s41, {WS_KF}")
    k("s_mov_b32 s37, s93")
    k(f"s_add_u32 s43, s93, {O_PB}")
    k(f"s_mov_b32 s45, {WS_QF}")
    k(f"s_add_u32 s49, s93, {O_HS}")
    def kx_loads():
        for b in range(3):
            k(f"buffer_load_dwordx4 a[{KX+4*b}:{KX+4*b+3}], v19, s[8:11], s41 offen offset:{b*1024} sc1")
    ensure_clear(k, 's_ec0', 48, 's40')
    k("s_mov_b32 s62, -1"); k("s_mov_b32 s63, 1")
    ensure(k, 's_en0', 2, 9, 48)
    kx_loads()
    event(k, 2, 48)
    k("s_waitcnt lgkmcnt(0)")
    for r in range(24): k(f"v_mov_b32 v{ACC+r}, 0")
    k("s_barrier")
    k("ds_read_b128 v[84:87], v7"); k("ds_read_b128 v[88:91], v7 offset:4096")
    k("s_waitcnt vmcnt(0) lgkmcnt(0)")
    for w in range(3):
        k(f"s_cmp_eq_u32 s3, {w}"); k(f"s_cbranch_scc1 {k.ref('s_gow' + str(w))}")
    k(f"s_branch {k.ref('s_gow3')}")
    P0 = 48
    def px_tail(t0, t1):
        sum4x8(k, P0, 21, 5632)
        softmax8(k, P0, t0, t1, masks=64)
        k(f"buffer_store_dwordx4 v[{P0+8}:{P0+11}], v22, s[8:11], s42 offen sc1")
    M32 = "v_mfma_f32_16x16x32_bf16"; M16 = "v_mfma_f32_16x16x16_bf16"
    XA, XB = 24, 32
    SC = [28, 36, 40]
    def epi_pair(p, dest):
        q = ACC + 4 * p; kk = ACC + 12 + 4 * p
        L = [f"v_permlane32_swap_b32 v{q+r}, v{kk+r}" for r in range(4)]
        L += [f"v_add_f32 v{q+r}, v{q+r}, v{kk+r}" for r in range(4)]
        L += [f"v_cvt_pk_bf16_f32 v{kk}, v{q}, v{q+1}", f"v_cvt_pk_bf16_f32 v{kk+1}, v{q+2}, v{q+3}"]
        L += [f"{M16} v[{q}:{q+3}], v[{kk}:{kk+1}], v[10:11], 0"]
        return L, [f"v_cvt_pk_bf16_f32 v{dest}, v{q}, v{q+1}", f"v_cvt_pk_bf16_f32 v{dest+1}, v{q+2}, v{q+3}"]
    def loop(w):
        sf = 'w' + str(w)
        k.lab('s_step' + sf)
        stamp(k, 0)
        for r in range(24): k(f"v_mov_b32 v{ACC+r}, 0")
        loads_ = [f"buffer_load_dwordx4 v[84:87], v7, s[8:11], s47 offen sc1",
                  f"buffer_load_dwordx4 v[88:91], v7, s[8:11], s46 offen sc1",
                  f"buffer_load_dwordx2 v[92:93], v8, s[8:11], s52 offen sc1"]
        k("s_add_u32 s46, s47, 4096"); k("s_add_u32 s52, s47, 8192")
        if CFG['s_pre']:
            lq = k.new('sq')
            k("s_cmp_eq_u32 s58, 1"); k(f"s_cbranch_scc1 {k.ref(lq)}")
            k("s_waitcnt vmcnt(0)")
            k("v_readlane_b32 s58, v60, 0"); k("v_readlane_b32 s24, v60, 1"); k("s_min_i32 s58, s58, s24"); k("s_max_i32 s62, s62, s58")
            k.lab(lq)
        ensure_clear(k, 's_ec' + sf, 48, 's40')
        k("s_add_u32 s63, s40, 1")
        ensure(k, 's_en' + sf, 2, 9, 48)
        if CFG['kx_pos'] == 0: kx_loads()
        if CFG['px_pos'] == 0: px_tail(80, 81)
        aprobe(k, 's_pr' + sf, 23, 's48', CFG['tgt_m'], [82, 83, 94, 95], CFG['pd_m'], CFG['pdep'], CFG['dly_m'])
        for l in loads_: k(l)
        ny = 0
        if CFG['kx_pos'] == 1: kx_loads(); ny += 3
        if CFG['px_pos'] == 1: px_tail(80, 81); ny += 1
        shot_check(k, 's_pm' + sf, loads_, range(84, 94), 58, ny, CFG['sl_m'])
        if CFG['kx_pos'] == 2: kx_loads()
        stamp(k, 1)
        k(f"ds_write_b128 v7, v[84:87]")
        k(f"ds_write_b128 v7, v[88:91] offset:4096")
        k(f"ds_write_b64 v8, v[92:93]")
        k.lab('s_go' + sf)
        lg = LG(k)
        own = [w, 4 + w]; oth = [c for c in range(10) if c not in own]
        def rdW(c, slot):
            b = WS5 + 8 * slot
            lg.issue(('W', c), f"ds_read_b128 v[{b}:{b+3}], v6 offset:{c*2048}")
            lg.issue(('W', c), f"ds_read_b128 v[{b+4}:{b+7}], v6 offset:{c*2048+1024}")
        def rdA(j):
            a = AF + 4 * (j % 5)
            lg.issue(('A', j), f"ds_read_b128 v[{a}:{a+3}], v5 offset:{oth[j % 8]*1024}")
        def sm(t, c, a, slot=None):
            if t == 3: B = f"v[{WS5+8*slot}:{WS5+8*slot+7}]"
            else:
                kind, r = wreg(t, c); B = f"{kind}[{r}:{r+7}]"
            k(f"v_smfmac_f32_16x16x64_bf16 v[{ACC+4*t}:{ACC+4*t+3}], v[{a}:{a+3}], {B}, v4")
        rdW(own[0], 0); rdW(own[1], 1)
        for t in (0, 1, 2, 4, 5): sm(t, own[0], 84)
        lg.wait(('W', own[0])); sm(3, own[0], 84, 0)
        rdW(oth[0], 0)
        k("s_barrier")
        for j in range(5): rdA(j)
        for t in (0, 1, 2, 4, 5): sm(t, own[1], 88)
        lg.wait(('W', own[1])); sm(3, own[1], 88, 1)
        rdW(oth[1], 1)
        for j in range(8):
            c = oth[j]; a = AF + 4 * (j % 5)
            lg.wait(('A', j))
            for t in (0, 1, 4): sm(t, c, a)
            lg.wait(('W', c)); sm(3, c, a, j % 2)
            if j + 2 < 8: rdW(oth[j + 2], j % 2)
            rdA(j + 5)
        for b in range(3):
            k(f"buffer_load_dwordx4 v[{QX+4*b}:{QX+4*b+3}], v19, s[8:11], s45 offen offset:{b*1024} sc1")
        e1a, e1b = epi_pair(1, XA + 2); e0a, e0b = epi_pair(0, XA)
        E = [None, None] + e1a + e0a + [None] + e0b + e1b + [f"s_waitcnt vmcnt({4 if (CFG['kx_pos'] == 1 and CFG['px_pos'] == 1) else 3})", None]
        E += [f"{M32} v[{SC[0]}:{SC[0]+3}], a[{KX}:{KX+3}], v[{XA}:{XA+3}], 0",
              f"{M32} v[{SC[1]}:{SC[1]+3}], a[{KX+4}:{KX+7}], v[{XA}:{XA+3}], 0",
              f"{M32} v[{SC[2]}:{SC[2]+3}], v[{XA}:{XA+3}], v[{XA}:{XA+3}], 0"]
        def extra(n):
            for _ in range(n):
                if E:
                    t_ = E.pop(0)
                    if t_: k(t_)
        for j in range(8, 16):
            c = oth[j - 8]; a = AF + 4 * (j % 5)
            lg.wait(('A', j))
            sm(2, c, a); extra(2)
            sm(5, c, a); extra(2)
            if j + 5 < 16: rdA(j + 5)
        extra(100)
        stamp(k, 2)
        if CFG['hs_pos'] == 2 and w == 0: ahint(k, 20, 0, 's49')
        e2a, e2b = epi_pair(2, XB)
        for t_ in e2a: k(t_)
        if CFG['hs_pos'] == 20 and w == 0: ahint(k, 20, 0, 's49')
        for t_ in e2b: k(t_)
        if CFG['hs_pos'] == 21 and w == 0: ahint(k, 20, 0, 's49')
        k(f"{M16} v[{SC[0]}:{SC[0]+3}], a[{KX+8}:{KX+9}], v[{XB}:{XB+1}], v[{SC[0]}:{SC[0]+3}]")
        k(f"{M16} v[{SC[1]}:{SC[1]+3}], a[{KX+10}:{KX+11}], v[{XB}:{XB+1}], v[{SC[1]}:{SC[1]+3}]")
        k(f"{M16} v[{SC[2]}:{SC[2]+3}], v[{XB}:{XB+1}], v[{XB}:{XB+1}], v[{SC[2]}:{SC[2]+3}]")
        if CFG['hs_pos'] == 22 and w == 0: ahint(k, 20, 0, 's49')
        k(f"ds_write_b128 v12, v[{SC[0]}:{SC[0]+3}]")
        k(f"ds_write_b128 v12, v[{SC[1]}:{SC[1]+3}] offset:16")
        k(f"ds_write_b128 v13, v[{SC[2]}:{SC[2]+3}]")
        if CFG['hs_pos'] == 23 and w == 0: ahint(k, 20, 0, 's49')
        k("s_waitcnt lgkmcnt(0)")
        k("s_barrier")
        stamp(k, 3)
        if w == 0:
            if CFG['hs_pos'] == 3: ahint(k, 20, 0, 's49')
            sum4x8(k, P0, 14, 1408)
            softmax8(k, P0, T0, T1)
            k(f"buffer_store_dwordx4 v[{P0+8}:{P0+11}], v15, s[8:11], s43 offen sc1")
        stamp(k, 4)
        sx = lambda kt, tt: [36, 40, 44, 64, 68, 72][kt * 2 + tt]
        k(f"s_waitcnt vmcnt({2 if w == 0 else 0})")
        if CFG['s_pre']:
            lq = k.new('sq')
            k(f"s_add_u32 s24, s40, {1 + CFG['s_pre']}"); k("s_min_u32 s24, s24, 64"); k("s_cmp_ge_i32 s62, s24"); k("s_cselect_b32 s58, 1, 0")
            k(f"s_cbranch_scc1 {k.ref(lq)}")
            k("buffer_load_dword v60, v9, s[8:11], 0 offen sc1")
            k.lab(lq)
        keys32 = [f"a[{KX}:{KX+3}]", f"a[{KX+4}:{KX+7}]", f"v[{XA}:{XA+3}]"]
        keys16 = [f"a[{KX+8}:{KX+9}]", f"a[{KX+10}:{KX+11}]", f"v[{XB}:{XB+1}]"]
        for tt in range(2):
            for kt in range(3):
                a = sx(kt, tt)
                k(f"{M32} v[{a}:{a+3}], {keys32[kt]}, v[{QX+4*tt}:{QX+4*tt+3}], 0")
        for tt in range(2):
            for kt in range(3):
                a = sx(kt, tt)
                k(f"{M16} v[{a}:{a+3}], {keys16[kt]}, v[{QX+8+2*tt}:{QX+8+2*tt+1}], v[{a}:{a+3}]")
        for tt in range(2):
            k(f"ds_write_b128 v16, v[{sx(0,tt)}:{sx(0,tt)+3}] offset:{tt*2816}")
            k(f"ds_write_b128 v16, v[{sx(1,tt)}:{sx(1,tt)+3}] offset:{tt*2816+16}")
            k(f"ds_write_b128 v{17+tt}, v[{sx(2,tt)}:{sx(2,tt)+3}]")
        k("s_add_u32 s40, s40, 1")
        k(f"s_add_u32 s41, s41, {QF_SEG}")
        k(f"s_add_u32 s45, s45, {QF_SEG}")
        k(f"s_add_u32 s47, s37, {O_MB}"); k(f"s_add_u32 s48, s37, {O_HR}"); k(f"s_xor_b32 s42, s37, 0x2000")
        blk_base(k, 's40', 's37')
        k(f"s_add_u32 s43, s37, {O_PB}"); k(f"s_add_u32 s49, s37, {O_HS}")
        k("s_waitcnt lgkmcnt(0)")
        k("s_barrier")
        stamp(k, 5)
        if CFG['stamp']:
            k("s_sub_u32 s40, s40, 1"); stamp_out(k, 6, 46); k("s_add_u32 s40, s40, 1")
        k("s_cmp_lt_u32 s40, 64")
        k(f"s_cbranch_scc1 {k.ref('s_step' + sf)}")
        if w < 3: k(f"s_branch {k.ref('s_end')}")
    for w in range(4): loop(w)
    k.lab('s_end')
    px_tail(80, 81)
    event(k, 3, 48)
    next_layer(k, 's_layer')

def role_V2(k):
    L_M, L_V, L_WO, L_ST = 0, 10240, 16384, 16384 + 73728
    RS1, RS2 = 400, 656
    MA, VACC, VA, STG = 16, 56, 68, 80
    def wv(t, c): return 'a', t * 80 + c * 8
    def wo(t, c):
        i = t * 3 + c
        if i < 2: return 'a', 240 + 8 * i
        return 'v', 104 + 8 * (i - 2)
    k("s_sub_u32 s44, s2, 32")
    k.ptr(KA_WV, 6); k.ptr(KA_WO, 24); k.ptr(KA_MEM0, 26)
    k("s_waitcnt lgkmcnt(0)")
    k.srd(12, 6, D * HD * 2); k.srd(16, 24, D * HD * 2); k.srd(20, 26, 8 * 640 * 2)
    GO, LO, DAT = 4, 10, 24
    stage_offsets(k, 6, 24, HD * 2, RS1, L_ST, GO, LO, 16)
    tr_base(k, 16, RS1, L_ST, 17)
    k("s_mul_i32 s24, s3, 96")
    k("v_add_u32 v16, s24, v16")
    k(f"s_mul_i32 s45, s44, 384")
    def loads(c):
        d = DAT + 24 * (c % 3)
        k(f"s_add_u32 s46, s45, {c * 64 * HD * 2}")
        for i in range(6):
            k(f"buffer_load_dwordx4 v[{d+4*i}:{d+4*i+3}], v{GO+i}, s[12:15], s46 offen")
    loads(0); loads(1)
    for c in range(10):
        d = DAT + 24 * (c % 3)
        k(f"s_waitcnt vmcnt({6 if c + 1 < 10 else 0})")
        for i in range(6): k(f"ds_write_b128 v{LO+i}, v[{d+4*i}:{d+4*i+3}]")
        if c + 2 < 10: loads(c + 2)
        k("s_waitcnt lgkmcnt(0)")
        k("s_barrier")
        for t in range(3):
            kind, r = wv(t, c)
            tr_frag(k, r, kind, 16, RS1, 32 * t)
        k("s_waitcnt lgkmcnt(0)")
        k("s_barrier")
    GO, LO, DAT = 4, 14, 24
    stage_offsets(k, 10, 40, 1280, RS2, L_ST, GO, LO, 64)
    tr_base(k, 72, RS2, L_ST, 64)
    k("s_and_b32 s24, s3, 1"); k("s_mul_i32 s24, s24, 320")
    k("v_add_u32 v72, s24, v72")
    k("v_lshlrev_b32 v73, 4, v1")
    k(f"s_mul_i32 s24, s3, 18432"); k(f"s_add_u32 s24, s24, {L_WO}")
    k("v_add_u32 v73, s24, v73")
    k(f"s_mul_i32 s45, s44, {192*1280}")
    for c in range(3):
        for hf in range(2):
            k(f"s_add_u32 s46, s45, {c*64*1280 + hf*640}")
            for i in range(10):
                k(f"buffer_load_dwordx4 v[{DAT+4*i}:{DAT+4*i+3}], v{GO+i}, s[16:19], s46 offen")
            k("s_waitcnt vmcnt(0)")
            for i in range(10): k(f"ds_write_b128 v{LO+i}, v[{DAT+4*i}:{DAT+4*i+3}]")
            k("s_waitcnt lgkmcnt(0)")
            k("s_barrier")
            l = k.new('wo')
            k("s_lshr_b32 s24, s3, 1")
            k(f"s_cmp_eq_u32 s24, {hf}")
            k(f"s_cbranch_scc0 {k.ref(l)}")
            for t in range(10):
                if t < 7:
                    kind, r = wo(t, c)
                    tr_frag(k, r, kind, 72, RS2, 32 * t)
                else:
                    tr_frag(k, 64, 'v', 72, RS2, 32 * t)
                    k("s_waitcnt lgkmcnt(0)")
                    o = ((t - 7) * 3 + c) * 2048
                    k(f"ds_write_b128 v73, v[64:67] offset:{o}")
                    k(f"ds_write_b128 v73, v[68:71] offset:{o+1024}")
                    k("s_waitcnt lgkmcnt(0)")
            k("s_waitcnt lgkmcnt(0)")
            k.lab(l)
            k("s_barrier")
    k("v_mov_b32 v6, v73")
    k("v_mov_b32 v4, 0x4444"); k("v_mov_b32 v5, 0xeeee")
    k("v_cmp_gt_u32 vcc, 8, v2")
    k("v_cndmask_b32 v4, v5, v4, vcc")
    k("v_lshlrev_b32 v5, 4, v1")
    k("s_lshl_b32 s24, s3, 10")
    k("v_add_u32 v7, s24, v5")
    k("s_lshl_b32 s24, s3, 9"); k("s_add_u32 s24, s24, 8192")
    k("v_lshlrev_b32 v8, 3, v1")
    k("v_add_u32 v8, s24, v8")
    k("v_and_b32 v64, 7, v2"); k("v_lshlrev_b32 v9, 5, v64")
    k("v_lshrrev_b32 v64, 3, v2"); k("v_lshl_add_u32 v9, v64, 4, v9")
    k("v_and_b32 v64, 1, v3"); k("v_lshl_add_u32 v9, v64, 3, v9")
    k(f"s_mul_i32 s24, s3, 768"); k(f"s_add_u32 s24, s24, {L_V}")
    k("v_add_u32 v9, s24, v9")
    k("v_lshrrev_b32 v65, 1, v3")
    k("v_lshl_add_u32 v10, v65, 8, v9")
    k("v_lshrrev_b32 v64, 2, v2"); k("v_lshlrev_b32 v11, 5, v64")
    k("v_and_b32 v64, 3, v2"); k("v_lshl_add_u32 v11, v64, 3, v11")
    k("v_lshl_add_u32 v11, v3, 8, v11")
    k(f"v_add_u32 v11, {L_V}, v11")
    k("s_mul_i32 s24, s3, 10"); k("s_lshl_b32 s24, s24, 14"); k("s_lshl_b32 s25, s44, 8"); k("s_add_u32 s24, s24, s25")
    k("v_lshlrev_b32 v14, 14, v3")
    k("v_lshl_add_u32 v14, v2, 4, v14")
    k("v_add_u32 v14, s24, v14")
    k("v_lshrrev_b32 v64, 1, v3")
    k("v_lshlrev_b32 v15, 14, v64")
    k("v_lshl_add_u32 v15, v2, 4, v15")
    k("v_add_u32 v15, s24, v15")
    k(f"v_add_u32 v15, {8*16384}, v15")
    k("v_and_b32 v64, 1, v3")
    k("v_cmp_eq_u32 vcc, 0, v64")
    k(f"v_mov_b32 v64, {OOB}")
    k("v_cndmask_b32 v15, v64, v15, vcc")
    aprobe_addr(k, 12, 's2', RH_M)
    k("v_mov_b32 v0, 1")
    event(k, 1, 64)
    pol_get(k, 64)
    k.lab('v_layer')
    layer_bases(k)
    m0_image(k, 20, 64)
    k("s_mov_b32 s40, 0")
    k("s_mov_b32 s37, s93")
    k(f"s_add_u32 s43, s93, {O_VOM}")
    ensure_clear(k, 'v_ec0', 64, 's40')
    for r in range(16, 68): k(f"v_mov_b32 v{r}, 0")
    k("s_waitcnt lgkmcnt(0)")
    k("s_barrier")
    k("ds_read_b128 v[68:71], v7"); k("ds_read_b128 v[72:75], v7 offset:4096")
    k("s_waitcnt lgkmcnt(0)")
    for w in range(3):
        k(f"s_cmp_eq_u32 s3, {w}"); k(f"s_cbranch_scc1 {k.ref('v_gow' + str(w))}")
    k(f"s_branch {k.ref('v_gow3')}")
    SMF = "v_smfmac_f32_16x16x64_bf16"
    def loop(w):
        sf = 'w' + str(w)
        k.lab('v_step' + sf)
        stamp(k, 0)
        for r in range(16, 68): k(f"v_mov_b32 v{r}, 0")
        loads_ = [f"buffer_load_dwordx4 v[68:71], v7, s[8:11], s47 offen sc1",
                  f"buffer_load_dwordx4 v[72:75], v7, s[8:11], s48 offen sc1",
                  f"buffer_load_dwordx2 v[76:77], v8, s[8:11], s50 offen sc1"]
        k("s_add_u32 s48, s47, 4096"); k("s_add_u32 s50, s47, 8192")
        ensure_clear(k, 'v_ec' + sf, 78, 's40')
        aprobe(k, 'v_pr' + sf, 12, 's45', CFG['tgt_m'], [80, 81, 82, 83], CFG['pd_m'], CFG['pdep'], CFG['dly_v'])
        stamp(k, 5)
        for l in loads_: k(l)
        shot_check(k, 'v_pm' + sf, loads_, range(68, 78), 104 - 1, 0, CFG['sl_m'])
        stamp(k, 1)
        k(f"ds_write_b128 v7, v[68:71]")
        k(f"ds_write_b128 v7, v[72:75] offset:4096")
        k(f"ds_write_b64 v8, v[76:77]")
        k.lab('v_go' + sf)
        lg = LG(k)
        own = [w, 4 + w]; oth = [c for c in range(10) if c not in own]
        SL = [80, 84, 88, 92, 96, 100, 76, 68]
        def rdA(j):
            lg.issue(('A', j), f"ds_read_b128 v[{SL[j]}:{SL[j]+3}], v5 offset:{oth[j]*1024}")
        def sm(t, c, a):
            kind, r = wv(t, c)
            k(f"{SMF} v[{VACC+4*t}:{VACC+4*t+3}], v[{a}:{a+3}], {kind}[{r}:{r+7}], v4")
        for t in range(3): sm(t, own[0], 68)
        k("s_waitcnt lgkmcnt(0)")
        k("s_barrier")
        for j in range(8): rdA(j)
        for t in (2, 0, 1): sm(t, own[1], 72)
        for j in range(8):
            lg.wait(('A', j)); sm(2, oth[j], SL[j])
        E = [None] * 5
        E += [f"v_mov_b32 v{72+r}, v{VACC+8+r}" for r in range(4)] + [None]
        E += [f"v_permlane32_swap_b32 v{VACC+8+r}, v{72+r}" for r in range(4)]
        E += [f"v_add_f32 v{VACC+8+r}, v{VACC+8+r}, v{72+r}" for r in range(4)]
        E += [f"v_cvt_pk_bf16_f32 v72, v{VACC+8}, v{VACC+9}", f"v_cvt_pk_bf16_f32 v73, v{VACC+10}, v{VACC+11}"]
        E += [('x', f"ds_write_b64 v9, v[72:73] offset:512")]
        def extra(n):
            for _ in range(n):
                if E:
                    t_ = E.pop(0)
                    if isinstance(t_, tuple): lg.issue(*t_)
                    elif t_: k(t_)
        for j in range(8):
            sm(0, oth[j], SL[j]); extra(2)
            sm(1, oth[j], SL[j]); extra(2)
        extra(100)
        stamp(k, 2)
        for r in range(4): k(f"v_permlane32_swap_b32 v{VACC+r}, v{VACC+4+r}")
        for r in range(4): k(f"v_add_f32 v{VACC+r}, v{VACC+r}, v{VACC+4+r}")
        k(f"v_cvt_pk_bf16_f32 v{VA}, v{VACC}, v{VACC+1}")
        k(f"v_cvt_pk_bf16_f32 v{VA+1}, v{VACC+2}, v{VACC+3}")
        lg.issue('x', f"ds_write_b64 v10, v[{VA}:{VA+1}]")
        lg.all()
        k("s_barrier")
        for c in range(3):
            lg.issue(('V', c), f"ds_read_b64_tr_b16 v[{VA+4*c}:{VA+4*c+1}], v11 offset:{c*1024}")
            lg.issue(('V', c), f"ds_read_b64_tr_b16 v[{VA+4*c+2}:{VA+4*c+3}], v11 offset:{c*1024+128}")
        def rdWo(t, c, slot):
            b = STG + 8 * slot; o = ((t - 7) * 3 + c) * 2048
            lg.issue(('W', t, c), f"ds_read_b128 v[{b}:{b+3}], v6 offset:{o}")
            lg.issue(('W', t, c), f"ds_read_b128 v[{b+4}:{b+7}], v6 offset:{o+1024}")
        for c in range(3): rdWo(7, c, c)
        stamp(k, 3)
        acc = lambda t: MA + 4 * t
        def mm(t, c, B):
            k(f"{SMF} v[{acc(t)}:{acc(t)+3}], v[{VA+4*c}:{VA+4*c+3}], {B}, v4")
        def B_reg(t, c):
            kind, r = wo(t, c); return f"{kind}[{r}:{r+7}]"
        OUT = 56
        def epi(T, o):
            L = []
            t0, t1, t2, t3 = T
            for (x, y) in ((t0, t2), (t1, t3)):
                for r in range(4): L.append(f"v_permlane32_swap_b32 v{acc(x)+r}, v{acc(y)+r}")
                for r in range(4): L.append(f"v_add_f32 v{acc(x)+r}, v{acc(x)+r}, v{acc(y)+r}")
            L.append(f"v_cvt_pk_bf16_f32 v{o}, v{acc(t0)}, v{acc(t0)+1}")
            L.append(f"v_cvt_pk_bf16_f32 v{o+1}, v{acc(t0)+2}, v{acc(t0)+3}")
            L.append(f"v_cvt_pk_bf16_f32 v{o+2}, v{acc(t1)}, v{acc(t1)+1}")
            L.append(f"v_cvt_pk_bf16_f32 v{o+3}, v{acc(t1)+2}, v{acc(t1)+3}")
            L.append(None)
            L.append(f"v_permlane16_swap_b32 v{o}, v{o+2}")
            L.append(f"v_permlane16_swap_b32 v{o+1}, v{o+3}")
            for r in range(4): L.append(f"v_min_u32 v{o+r}, -2, v{o+r}")
            return L
        for c in range(3):
            lg.wait(('V', c))
            for t in range(4): mm(t, c, B_reg(t, c))
        E += [None, None] + epi([0, 1, 2, 3], OUT) + [f"buffer_store_dwordx4 v[{OUT}:{OUT+3}], v14, s[8:11], s43 offen sc1"]
        for c in range(3):
            for t in (4, 5, 6): mm(t, c, B_reg(t, c)); extra(2)
            lg.wait(('W', 7, c))
            mm(7, c, f"v[{STG+8*c}:{STG+8*c+7}]"); extra(2)
            rdWo(8, c, c)
        extra(100)
        k("s_add_u32 s49, s43, 65536")
        E += [None] + epi([4, 5, 6, 7], OUT + 4) + [f"buffer_store_dwordx4 v[{OUT+4}:{OUT+7}], v14, s[8:11], s49 offen sc1"]
        for c in range(3):
            lg.wait(('W', 8, c))
            mm(8, c, f"v[{STG+8*c}:{STG+8*c+7}]"); extra(CFG['v_x8'])
            rdWo(9, c, c)
        extra(CFG['v_x9'])
        for c in range(3):
            lg.wait(('W', 9, c))
            mm(9, c, f"v[{STG+8*c}:{STG+8*c+7}]"); extra(3)
        extra(100)
        o = OUT + 8
        for r in range(4): k(f"v_permlane32_swap_b32 v{acc(8)+r}, v{acc(9)+r}")
        for r in range(4): k(f"v_add_f32 v{acc(8)+r}, v{acc(8)+r}, v{acc(9)+r}")
        k(f"v_cvt_pk_bf16_f32 v{o}, v{acc(8)}, v{acc(8)+1}")
        k(f"v_cvt_pk_bf16_f32 v{o+1}, v{acc(8)+2}, v{acc(8)+3}")
        k(f"v_mov_b32 v{o+2}, v{o}")
        k(f"v_mov_b32 v{o+3}, v{o+1}")
        k(f"v_permlane16_swap_b32 v{o}, v{o+2}")
        k(f"v_permlane16_swap_b32 v{o+1}, v{o+3}")
        for r in range(4): k(f"v_min_u32 v{o+r}, -2, v{o+r}")
        k(f"buffer_store_dwordx4 v[{o}:{o+3}], v15, s[8:11], s43 offen sc1")
        stamp(k, 4)
        stamp_out(k, 6, 46)
        k("s_add_u32 s40, s40, 1")
        k(f"s_add_u32 s47, s37, {O_MB}"); k(f"s_add_u32 s45, s37, {O_HR}")
        blk_base(k, 's40', 's37')
        k(f"s_add_u32 s43, s37, {O_VOM}")
        k("s_cmp_lt_u32 s40, 64")
        k(f"s_cbranch_scc1 {k.ref('v_step' + sf)}")
        if w < 3: k(f"s_branch {k.ref('v_end')}")
    for w in range(4): loop(w)
    k.lab('v_end')
    event(k, 3, 64)
    next_layer(k, 'v_layer')

def role_R(k):
    BX, BN, PX, PM, VM, A1, A2 = 16, 48, 80, 96, 100, 108, 112
    TQ = 204
    k.lab('r_top')
    k("s_barrier")
    lk = k.new('rk')
    k("s_sub_u32 s24, s2, 64")
    k("s_cmp_ge_u32 s24, 24"); k(f"s_cbranch_scc1 {k.ref(lk)}")
    k("s_and_b32 s44, s24, 7"); k("s_lshr_b32 s45, s24, 3")
    k("s_cmp_eq_u32 s92, 0"); k("s_cselect_b32 s46, 32, 2")
    A.role_K2(k, Hooks())
    event(k, 5, 14)
    k.lab(lk)
    k("s_sub_u32 s44, s2, 64")
    k("v_lshlrev_b32 v5, 4, v1")
    k("s_lshl_b32 s24, s44, 15"); k("s_lshl_b32 s25, s3, 13"); k("s_add_u32 s24, s24, s25")
    k("v_add_u32 v6, s24, v5")
    k("v_add_u32 v7, 4096, v6")
    k("s_lshl_b32 s24, s3, 12"); k("s_and_b32 s25, s24, 0x2000"); k("s_add_u32 s24, s24, s25")
    k("v_add_u32 v8, s24, v5")
    k("s_lshl_b32 s24, s3, 10"); k("s_add_u32 s24, s24, 32768")
    k("v_add_u32 v9, s24, v5")
    k("s_lshl_b32 s24, s44, 14"); k("s_lshl_b32 s25, s3, 11"); k("s_add_u32 s24, s24, s25")
    k("v_add_u32 v10, s24, v5")
    k(f"v_and_b32 v{TQ}, 7, v2"); k(f"v_mul_u32_u24 v11, 80, v{TQ}")
    k("v_lshl_add_u32 v11, v3, 4, v11")
    k("s_mul_i32 s24, s3, 640")
    k("v_add_u32 v11, s24, v11")
    k(f"v_add_u32 v{TQ}, 8192, v5")
    k("v_cmp_gt_u32 vcc, 8, v2")
    k(f"v_cndmask_b32 v11, v{TQ}, v11, vcc")
    k(f"v_and_b32 v{TQ}, 7, v2"); k(f"v_mul_u32_u24 v12, 80, v{TQ}")
    k(f"v_lshrrev_b32 v{TQ}, 3, v2"); k(f"v_lshl_add_u32 v12, v{TQ}, 5, v12")
    k("v_lshlrev_b32 v13, 4, v2")
    k("s_lshl_b32 s24, s44, 8"); k("s_and_b32 s25, s24, 0x2000"); k("s_add_u32 s24, s24, s25")
    k("v_add_u32 v13, s24, v13")
    if CFG['r64']:
        k(f"v_mul_u32_u24 v{TQ}, 640, v3"); k(f"v_add_u32 v12, v12, v{TQ}")
        k("v_lshl_add_u32 v13, v3, 2, v13")
    else:
        k(f"v_mov_b32 v{TQ}, {OOB}")
        k(f"v_cmp_gt_u32 vcc, 1, v3")
        k(f"v_cndmask_b32 v13, v{TQ}, v13, vcc")
    k("v_cmp_le_u32 s[50:51], 8, v2")
    k("s_and_b32 s25, s44, 15"); k("s_lshr_b32 s25, s25, 2")
    k("s_sub_u32 s26, s44, 32"); k("s_lshr_b32 s26, s26, 1")
    k("s_cmp_ge_u32 s44, 32"); k("s_cselect_b32 s25, s26, s25")
    ahint_addr(k, 120, TQ, 's25', RH_M, False)
    aprobe_addr(k, 125, 's44', RH_P)
    k("v_mov_b32 v122, 12288")
    k("v_mov_b32 v123, 0")
    k("s_barrier")
    k("ds_write_b32 v122, v123")
    k("v_mov_b32 v123, 1")
    k("s_waitcnt lgkmcnt(0)")
    k("s_barrier")
    if CFG['pol_late']:
        lp = k.new('rp')
        k("s_cmp_eq_u32 s92, 0"); k(f"s_cbranch_scc0 {k.ref(lp)}")
        pol_get(k, TQ)
        k.lab(lp)
    layer_bases(k)
    k("s_mov_b32 s40, 0")
    k(f"s_mov_b32 s41, {WS_VOX}")
    k(f"s_add_u32 s45, s93, {O_HS}")
    k(f"s_add_u32 s46, s93, {O_HR}")
    k(f"s_add_u32 s43, s93, {O_PB}")
    k(f"s_add_u32 s42, s93, {O_VOM}")
    k(f"s_add_u32 s47, s93, {O_MB}")
    if CFG['rv_off']:
        k("s_cmp_eq_u32 s92, 1"); k(f"s_cselect_b32 s24, {OOB}, 0"); k("v_or_b32 v6, s24, v6"); k("v_or_b32 v7, s24, v7")
    def vox_loads():
        for q in range(4):
            k(f"buffer_load_dwordx4 v[{BN+4*q}:{BN+4*q+3}], v6, s[8:11], s41 offen offset:{q*1024} sc1")
        for q in range(4):
            k(f"buffer_load_dwordx4 v[{BN+16+4*q}:{BN+16+4*q+3}], v7, s[8:11], s41 offen offset:{q*1024} sc1")
        k(f"s_add_u32 s41, s41, {VOX_SEG}")
    k("v_and_b32 v252, 7, v1")
    k("v_lshlrev_b32 v252, 7, v252")
    k(f"s_lshl_b32 s24, s3, 10"); k(f"s_add_u32 s24, s24, {3*4096}"); k("s_add_u32 s24, s24, s94")
    k("v_add_u32 v252, s24, v252")
    k("s_mov_b32 s62, -1"); k("s_mov_b32 s63, 1")
    ensure(k, 'r_en0', 8, 252, 253)
    vox_loads()
    event(k, 2, 204)
    k("s_mov_b32 s58, 0")
    k.lab('r_step')
    k("s_waitcnt vmcnt(0)")
    if CFG['r_pre'] == 3:
        lq = k.new('rq')
        k("s_cmp_eq_u32 s58, 1"); k(f"s_cbranch_scc0 {k.ref(lq)}")
        k("v_readlane_b32 s58, v253, 0")
        for i in range(1, 8): k(f"v_readlane_b32 s24, v253, {i}"); k("s_min_i32 s58, s58, s24")
        k("s_max_i32 s62, s62, s58")
        k.lab(lq)
    for r in range(32): k(f"v_mov_b32 v{BX+r}, v{BN+r}")
    stamp(k, 0)
    loads_ = [f"buffer_load_dwordx4 v[{PX+4*q}:{PX+4*q+3}], v8, s[8:11], s43 offen offset:{q*1024} sc1" for q in range(4)]
    loads_ += [f"buffer_load_dwordx4 v[{PM}:{PM+3}], v9, s[8:11], s43 offen sc1"]
    loads_ += [f"buffer_load_dwordx4 v[{VM+4*q}:{VM+4*q+3}], v10, s[8:11], s42 offen offset:{q*1024} sc1" for q in range(2)]
    ensure_clear(k, 'r_ec', 253, 's40')
    aprobe(k, 'r_pr', 125, 's45', CFG['tgt_p'], [116, 117, 118, 119], CFG['pd_p'], CFG['pdep'], CFG['dly_p'])
    stamp(k, 4)
    loads_ = loads_[5:] + loads_[:5]
    for l in loads_: k(l)
    if CFG['hr_pos'] == 0:
        k("s_mov_b64 exec, 1")
        k("ds_add_rtn_u32 v124, v122, v123")
        k("s_mov_b64 exec, -1")
        if CFG['dly_hr']: k(f"s_sleep {CFG['dly_hr']}")
        k("s_waitcnt lgkmcnt(0)")
        k("v_readfirstlane_b32 s24, v124")
        k("s_and_b32 s24, s24, 3")
        k("s_cmp_eq_u32 s24, 3"); k(f"s_cselect_b32 s24, 0, {OOB}")
        k("v_or_b32 v126, s24, v120")
        ahint(k, 126, 123, 's46')
    shot_check(k, 'r_p', loads_, range(PX, VM + 8), TQ, 1 if CFG['hr_pos'] == 0 else 0, CFG['sl_p'])
    if CFG['hr_pos'] == 1:
        k("s_mov_b64 exec, 1")
        k("ds_add_rtn_u32 v124, v122, v123")
        k("s_mov_b64 exec, -1")
    stamp(k, 1)
    k(f"v_mfma_f32_16x16x32_bf16 v[{A1}:{A1+3}], v[{VM}:{VM+3}], v[{PM}:{PM+3}], 0")
    k(f"v_mfma_f32_16x16x32_bf16 v[{A2}:{A2+3}], v[{VM+4}:{VM+7}], v[{PM}:{PM+3}], 0")
    for q in range(4):
        k(f"v_mfma_f32_16x16x32_bf16 v[{A1}:{A1+3}], v[{BX+8*q}:{BX+8*q+3}], v[{PX+4*q}:{PX+4*q+3}], v[{A1}:{A1+3}]")
        k(f"v_mfma_f32_16x16x32_bf16 v[{A2}:{A2+3}], v[{BX+8*q+4}:{BX+8*q+7}], v[{PX+4*q}:{PX+4*q+3}], v[{A2}:{A2+3}]")
        if q == 0 and CFG['hr_pos'] == 1:
            lh = k.new('nh')
            k("s_waitcnt lgkmcnt(0)")
            k("v_readfirstlane_b32 s24, v124")
            k("s_and_b32 s24, s24, 3")
            k(f"s_cmp_eq_u32 s24, {CFG['hr_wave']}")
            k(f"s_cbranch_scc0 {k.ref(lh)}")
            ahint(k, 120, 123, 's46')
            k.lab(lh)
    k("s_and_b32 s24, s40, 1"); k("s_mul_i32 s24, s24, 2560")
    k("v_add_u32 v14, s24, v11")
    k("v_add_u32 v15, s24, v12")
    for r in range(4): k(f"v_cndmask_b32 v{A1+r}, v{A1+r}, v{A2+r}, s[50:51]")
    for r in range(4): k(f"v_add_f32 v{A1+r}, v{A1+r}, v{A1+r} row_ror:8 row_mask:0xf bank_mask:0xf")
    k(f"ds_write_b128 v14, v[{A1}:{A1+3}]")
    k("s_waitcnt lgkmcnt(0)")
    k("s_barrier")
    stamp(k, 2)
    l = k.new('np')
    k("s_cmp_eq_u32 s3, 0")
    k(f"s_cbranch_scc0 {k.ref(l)}")
    Q0 = 220
    if CFG['r64']:
        k(f"ds_read_b128 v[{Q0}:{Q0+3}], v15"); k(f"ds_read_b128 v[{Q0+4}:{Q0+7}], v15 offset:16")
        k("s_waitcnt lgkmcnt(0)")
        for q in range(4): k(f"v_permlane32_swap_b32 v{Q0+q}, v{Q0+4+q}")
        for q in (0, 2): k(f"v_pk_add_f32 v[{Q0+q}:{Q0+q+1}], v[{Q0+q}:{Q0+q+1}], v[{Q0+4+q}:{Q0+5+q}]")
        for q in range(2): k(f"v_permlane16_swap_b32 v{Q0+q}, v{Q0+2+q}")
        k(f"v_pk_add_f32 v[{Q0}:{Q0+1}], v[{Q0}:{Q0+1}], v[{Q0+2}:{Q0+3}]")
        k(f"v_cvt_pk_bf16_f32 v{Q0+8}, v{Q0}, v{Q0+1}")
        k(f"v_min_u32 v{Q0+8}, -2, v{Q0+8}")
        k(f"buffer_store_dword v{Q0+8}, v13, s[8:11], s47 offen sc1")
    else:
        sum4x8(k, Q0, 15, 640)
        for q in range(4): k(f"v_cvt_pk_bf16_f32 v{Q0+8+q}, v{Q0+2*q}, v{Q0+2*q+1}")
        for q in range(4): k(f"v_min_u32 v{Q0+8+q}, -2, v{Q0+8+q}")
        k(f"buffer_store_dwordx4 v[{Q0+8}:{Q0+11}], v13, s[8:11], s47 offen sc1")
    k.lab(l)
    if CFG['xflag']:
        l = k.new('xf')
        k("s_cmp_eq_u32 s3, 1"); k(f"s_cbranch_scc0 {k.ref(l)}")
        k("s_cmp_eq_u32 s44, 39"); k(f"s_cbranch_scc0 {k.ref(l)}")
        k("s_lshl_b32 s24, s92, 6"); k("s_add_u32 s24, s24, s40"); k("s_add_u32 s24, s24, 1")
        k(f"v_lshlrev_b32 v{TQ}, 7, v1"); k(f"v_add_u32 v{TQ}, {WS_FLG + F_S}, v{TQ}")
        k(f"v_mov_b32 v{TQ+1}, {OOB}"); k("v_cmp_le_u32 vcc, 8, v1"); k(f"v_cndmask_b32 v{TQ}, v{TQ}, v{TQ+1}, vcc")
        k(f"v_mov_b32 v{TQ+1}, s24")
        k(f"buffer_store_dword v{TQ+1}, v{TQ}, s[8:11], 0 offen sc1")
        k.lab(l)
    stamp(k, 3)
    k("s_add_u32 s63, s40, 2"); k("s_min_u32 s63, s63, 64")
    if CFG['r_pre'] == 3:
        lq = k.new('rq'); lk_ = k.new('rq'); lz = k.new('rq')
        k("s_mov_b32 s58, 0")
        k("s_cmp_ge_i32 s62, s63"); k(f"s_cbranch_scc0 {k.ref(lk_)}")
        k(f"s_add_u32 s24, s63, {CFG['r_ahead']}"); k("s_min_u32 s24, s24, 64")
        k("s_cmp_ge_i32 s62, s24"); k(f"s_cbranch_scc1 {k.ref(lq)}")
        k("s_mov_b32 s58, 1")
        if CFG['r_at'] == 0: k("buffer_load_dword v253, v252, s[8:11], 0 offen sc1")
        k.lab(lq)
        if CFG['dly_vox']: k(f"s_sleep {CFG['dly_vox']}")
        k(f"s_branch {k.ref(lz)}")
        k.lab(lk_)
        k("buffer_load_dword v253, v252, s[8:11], 0 offen sc1")
        if CFG['dly_vox']: k(f"s_sleep {CFG['dly_vox']}")
        k("s_waitcnt vmcnt(0)")
        k("v_readlane_b32 s62, v253, 0")
        for i in range(1, 8): k(f"v_readlane_b32 s24, v253, {i}"); k("s_min_i32 s62, s62, s24")
        ensure(k, 'r_en', 8, 252, 253)
        k.lab(lz)
    elif CFG['r_pre']:
        lq = k.new('rq')
        k("s_cmp_ge_i32 s62, s63"); k("s_cselect_b32 s58, 1, 0")
        if CFG['r_pre'] == 2: k("s_add_u32 s24, s63, 1"); k("s_min_u32 s24, s24, 64"); k("s_cmp_ge_i32 s62, s24"); k("s_cselect_b32 s58, 1, 0")
        k("s_cmp_eq_u32 s58, 1"); k(f"s_cbranch_scc1 {k.ref(lq)}")
        k("buffer_load_dword v253, v252, s[8:11], 0 offen sc1")
        k.lab(lq)
    if CFG['dly_vox'] and CFG['r_pre'] != 3: k(f"s_sleep {CFG['dly_vox']}")
    if CFG['r_pre'] in (1, 2):
        lq = k.new('rq')
        k("s_cmp_eq_u32 s58, 1"); k(f"s_cbranch_scc1 {k.ref(lq)}")
        k("s_waitcnt vmcnt(0)")
        k("v_readlane_b32 s58, v253, 0")
        for i in range(1, 8): k(f"v_readlane_b32 s24, v253, {i}"); k("s_min_i32 s58, s58, s24")
        k("s_max_i32 s62, s62, s58")
        k.lab(lq)
    if CFG['r_pre'] != 3: ensure(k, 'r_en', 8, 252, 253)
    vox_loads()
    if CFG['r_pre'] == 3 and CFG['r_at'] == 1:
        lq = k.new('rq')
        k("s_cmp_eq_u32 s58, 1"); k(f"s_cbranch_scc0 {k.ref(lq)}")
        k("buffer_load_dword v253, v252, s[8:11], 0 offen sc1")
        k.lab(lq)
    stamp(k, 5)
    stamp_out(k, 6, TQ)
    k("s_add_u32 s40, s40, 1")
    blk_base(k, 's40', 's37')
    for sreg, o_ in (('s42', O_VOM), ('s43', O_PB), ('s47', O_MB), ('s45', O_HS), ('s46', O_HR)): k(f"s_add_u32 {sreg}, s37, {o_}")
    k("s_cmp_lt_u32 s40, 64")
    k(f"s_cbranch_scc1 {k.ref('r_step')}")
    k("s_waitcnt vmcnt(0)")
    event(k, 3, 204)
    next_layer(k, 'r_top')
def flag_pub(k, val):
    l = k.new('fp')
    k("s_cmp_eq_u32 s3, 0")
    k(f"s_cbranch_scc0 {k.ref(l)}")
    k(f"v_mov_b32 v15, {val}")
    k("buffer_store_dword v15, v14, s[8:11], 0 offen sc1")
    k.lab(l)

def flag_addr(k, role_sreg_or_const):
    if isinstance(role_sreg_or_const, int): k(f"s_mov_b32 s24, {role_sreg_or_const * 4096}")
    else: k(f"s_lshl_b32 s24, {role_sreg_or_const}, 12")
    k("s_lshl_b32 s25, s44, 7"); k("s_add_u32 s24, s24, s25"); k(f"s_add_u32 s24, s24, s94")
    k("v_mov_b32 v14, s24")
    k(f"v_mov_b32 v15, {OOB}")
    k("v_cmp_eq_u32 vcc, 0, v1")
    k("v_cndmask_b32 v14, v15, v14, vcc")

X_L_O = 83968
def x_init(k):
    TQ = 192
    k("s_sub_u32 s70, s2, 104")
    if CFG['xph'] == 1:
        k("s_and_b32 s71, s70, 3"); k("s_lshr_b32 s70, s70, 2")
        k("s_cmp_lt_u32 s70, 20"); k("s_cselect_b32 s64, s71, 64"); k("s_cselect_b32 s70, s70, 0")
    else:
        k("s_mul_i32 s71, s70, 205"); k("s_lshr_b32 s71, s71, 12")
        k("s_mul_i32 s24, s71, 20"); k("s_sub_u32 s70, s70, s24")
        k("s_cmp_lt_u32 s71, 4"); k("s_cselect_b32 s64, s71, 64")
    if CFG['x_off'] == 1: k("s_cmp_eq_u32 s92, 1"); k("s_cselect_b32 s64, 64, s64")
    if CFG['x_off'] in (2, 3):
        k("s_cmp_ge_u32 s2, 168"); k("s_cselect_b32 s24, 1, 0" if CFG['x_off'] == 2 else "s_cselect_b32 s24, 0, 1")
        k("s_and_b32 s24, s24, s92"); k("s_cmp_eq_u32 s24, 1"); k("s_cselect_b32 s64, 64, s64")
    k("s_lshl_b32 s24, s70, 16"); k("s_lshl_b32 s25, s3, 13"); k("s_add_u32 s24, s24, s25")
    k("v_add_u32 v240, s24, v5")
    k("v_add_u32 v241, 4096, v240")
    k("s_lshl_b32 s24, s70, 15"); k("s_lshl_b32 s25, s3, 11"); k("s_add_u32 s24, s24, s25")
    k("v_add_u32 v242, s24, v5")
    k("s_lshl_b32 s24, s3, 15")
    k(f"v_add_u32 v{TQ+1}, s24, v5")
    for jj in range(4): k(f"v_add_u32 v{212+jj}, {(jj >> 1)*16384 + (jj & 1)*4096}, v{TQ+1}")
    k("s_lshl_b32 s24, s3, 12"); k("s_and_b32 s25, s24, 0x2000"); k("s_add_u32 s24, s24, s25"); k("s_add_u32 s24, s24, 131072")
    k("v_add_u32 v216, s24, v5")
    k(f"s_lshl_b32 s24, s3, 12"); k(f"s_add_u32 s24, s24, {X_L_O}")
    k("v_add_u32 v217, s24, v5")
    k(f"s_and_b32 s24, s3, 1"); k("s_lshl_b32 s24, s24, 10"); k(f"s_add_u32 s24, s24, {X_L_O}")
    k("v_add_u32 v218, s24, v5")
    k("s_and_b32 s24, s3, 1"); k("s_mul_i32 s24, s24, 20480"); k("s_lshl_b32 s25, s70, 10"); k("s_add_u32 s24, s24, s25")
    k("v_add_u32 v219, s24, v5")
    k("s_and_b32 s24, s3, 1"); k("s_lshl_b32 s24, s24, 4")
    k("v_add_u32 v243, s24, v2")
    k("v_mul_u32_u24 v243, 1280, v243")
    k("v_lshl_add_u32 v243, v3, 3, v243")
    k("s_lshl_b32 s24, s70, 6")
    k("v_add_u32 v243, s24, v243")
    k.ptr(KA_OUT, 26); k("s_waitcnt lgkmcnt(0)"); k.srd(12, 26, S * D * 2)
    k(f"s_mul_i32 s65, s71, {VOX_SEG}"); k(f"s_add_u32 s65, s65, {WS_VOX}")
    blk_base(k, 's71', 's66')
    k("s_xor_b32 s67, s66, 0x2000")
    assert O_VOM == 0 and O_PX == 0
    k(f"s_mul_i32 s68, s71, 40960")
    k("v_and_b32 v252, 7, v1")
    k("v_lshlrev_b32 v252, 7, v252")
    k(f"s_lshl_b32 s24, s3, 10"); k(f"s_add_u32 s24, s24, {3*4096}"); k("s_add_u32 s24, s24, s94")
    k("v_add_u32 v252, s24, v252")
    k("s_mov_b32 s69, -1")
    k("s_lshl_b32 s24, s71, 7"); k("s_lshl_b32 s25, s70, 2"); k("s_add_u32 s24, s24, s25"); k(f"s_add_u32 s24, s24, {WS_FLG + F_X}")
    k("s_cmp_eq_u32 s3, 0"); k(f"s_cselect_b32 s24, s24, {OOB}")
    k("v_mov_b32 v245, s24"); k(f"v_mov_b32 v246, {OOB}"); k("v_cmp_eq_u32 vcc, 0, v1"); k("v_cndmask_b32 v245, v246, v245, vcc")
    k("s_mov_b32 s79, -1")
    k("s_mov_b32 s76, -1")
    if CFG['xpre']:
        k("v_lshlrev_b32 v248, 2, v1"); k("v_subrev_u32 v248, 32, v248")
        k("s_and_b32 s24, s2, 7"); k("s_lshl_b32 s24, s24, 7"); k(f"s_add_u32 s25, s24, {WS_FLG + F_C}"); k(f"s_add_u32 s24, s24, {WS_FLG + F_S}")
        k("v_add_u32 v248, s25, v248")
        k("v_cmp_gt_u32 vcc, 8, v1"); k("v_cndmask_b32 v248, v248, v252, vcc")
        k("v_mov_b32 v249, s24"); k("v_cmp_le_u32 vcc, 11, v1"); k("v_cndmask_b32 v248, v248, v249, vcc")
        k("v_mov_b32 v249, -1")

def x_pending(k):
    k("s_cmp_ge_i32 s79, 0"); k(f"s_cselect_b32 s24, 0, {OOB}")
    k("v_or_b32 v246, s24, v245"); k("v_mov_b32 v247, s79")
    k("buffer_store_dword v247, v246, s[8:11], 0 offen sc1")
    k("s_mov_b32 s79, -1")

def x_iter(k):
    BX, XP, XM, VM, OA, TQ, RES, Q0 = 16, 80, 144, 160, 176, 192, 196, 16
    if CFG['xpre']:
        k("v_readlane_b32 s63, v249, 0")
        for i in range(1, 8): k(f"v_readlane_b32 s24, v249, {i}"); k("s_min_i32 s63, s63, s24")
        k("s_max_i32 s69, s69, s63")
        k("v_readlane_b32 s63, v249, 8")
        for i in range(9, 11): k(f"v_readlane_b32 s24, v249, {i}"); k("s_min_i32 s63, s63, s24")
        k("s_max_i32 s59, s59, s63")
        k("v_readlane_b32 s24, v249, 11"); k("s_max_i32 s76, s76, s24")
    def xev(i):
        if CFG['stamp']:
            l_ = k.new('xe'); k("s_lshr_b32 s24, s64, 2"); k("s_cmp_eq_u32 s24, 8"); k(f"s_cbranch_scc0 {k.ref(l_)}"); event(k, i, 254); k.lab(l_)
    xev(5)
    k("s_add_u32 s63, s64, 1")
    ensure(k, 'x_en', 8, 252, 253, known='s69')
    ensure_clear(k, 'x_ec', 253, 's64')
    def xs_addr(k, dst):
        k("s_and_b32 s24, s2, 7"); k("s_lshl_b32 s24, s24, 7"); k(f"s_add_u32 s24, s24, {WS_FLG + F_S}"); k(f"v_mov_b32 v{dst}, s24")
    xev(6)
    k("s_add_u32 s52, s65, 32768")
    for rr in range(2):
        so = 's65' if rr == 0 else 's52'
        for q in range(8):
            r = BX + rr * 32 + 4 * q
            k(f"buffer_load_dwordx4 v[{r}:{r+3}], v{240 + q//4}, s[8:11], {so} offen offset:{(q%4)*1024} sc1")
    k("s_add_u32 s24, s68, s73")
    k(f"buffer_load_dwordx4 v[{RES}:{RES+3}], v219, s[8:11], s24 offen sc1")
    loads_ = []
    for j in range(8):
        for tt in range(2):
            r = XP + (j * 2 + tt) * 4
            loads_.append(f"buffer_load_dwordx4 v[{r}:{r+3}], v{212 + j//2}, s[8:11], s67 offen offset:{(j%2)*2048 + tt*1024} sc1")
    for q in range(2):
        for tt in range(2):
            r = XM + (q * 2 + tt) * 4
            loads_.append(f"buffer_load_dwordx4 v[{r}:{r+3}], v216, s[8:11], s67 offen offset:{q*2048 + tt*1024} sc1")
    if CFG['xflag']:
        k("s_lshl_b32 s77, s92, 6"); k("s_add_u32 s77, s77, s64"); k("s_add_u32 s77, s77, 1")
        ensure(k, 'x_cs', 1, xs_addr, 253, need='s77', known='s76', sleep=CFG['sl_xc'])
    else:
        poll(k, 'x_p0', loads_[15:16], range(XP + 60, XP + 64), TQ, CFG['sl_x0'], 0)
    xev(7)
    k("s_add_u32 s53, s66, 16384")
    for rr in range(2):
        so = 's66' if rr == 0 else 's53'
        for q in range(2):
            r = VM + rr * 8 + 4 * q
            loads_.append(f"buffer_load_dwordx4 v[{r}:{r+3}], v242, s[8:11], {so} offen offset:{q*1024} sc1")
    poll(k, 'x_p1', loads_, range(XP, VM + 16), TQ, CFG['sl_x'], 0)
    xev(14)
    oa = lambda rr, tt: OA + (rr * 2 + tt) * 4
    for j in range(8):
        for rr in range(2):
            for tt in range(2):
                a = oa(rr, tt); r = XP + (j * 2 + tt) * 4; b = BX + rr * 32 + 4 * j
                c = f"v[{a}:{a+3}]" if j else "0"
                k(f"v_mfma_f32_16x16x32_bf16 v[{a}:{a+3}], v[{b}:{b+3}], v[{r}:{r+3}], {c}")
    for q in range(2):
        for rr in range(2):
            for tt in range(2):
                a = oa(rr, tt); b = VM + rr * 8 + 4 * q; r = XM + (q * 2 + tt) * 4
                k(f"v_mfma_f32_16x16x32_bf16 v[{a}:{a+3}], v[{b}:{b+3}], v[{r}:{r+3}], v[{a}:{a+3}]")
    for t in range(4): k(f"ds_write_b128 v217, v[{OA+4*t}:{OA+4*t+3}] offset:{t*1024}")
    k("s_waitcnt lgkmcnt(0)")
    k("s_barrier")
    lskip = k.new('xs')
    k("s_cmp_ge_u32 s3, 2"); k(f"s_cbranch_scc1 {k.ref(lskip)}")
    for rr in range(2):
        for w in range(4): k(f"ds_read_b128 v[{Q0+16*rr+4*w}:{Q0+16*rr+4*w+3}], v218 offset:{w*4096 + rr*2048}")
    O = 48
    for rr in range(2):
        q = Q0 + 16 * rr
        k(f"s_waitcnt lgkmcnt({4 if rr == 0 else 0})")
        for r in range(0, 4, 2):
            k(f"v_pk_add_f32 v[{q+r}:{q+r+1}], v[{q+r}:{q+r+1}], v[{q+4+r}:{q+4+r+1}]")
            k(f"v_pk_add_f32 v[{q+8+r}:{q+8+r+1}], v[{q+8+r}:{q+8+r+1}], v[{q+12+r}:{q+12+r+1}]")
        for r in range(0, 4, 2):
            k(f"v_pk_add_f32 v[{q+r}:{q+r+1}], v[{q+r}:{q+r+1}], v[{q+8+r}:{q+8+r+1}]")
        k(f"v_cvt_pk_bf16_f32 v{q+4}, v{q}, v{q+1}")
        k(f"v_cvt_pk_bf16_f32 v{q+5}, v{q+2}, v{q+3}")
        for h in range(2):
            k(f"v_lshlrev_b32 v{q}, 16, v{q+4+h}")
            k(f"v_and_b32 v{q+1}, 0xffff0000, v{q+4+h}")
            k(f"v_lshlrev_b32 v{q+6}, 16, v{RES+2*rr+h}")
            k(f"v_and_b32 v{q+7}, 0xffff0000, v{RES+2*rr+h}")
            k(f"v_pk_add_f32 v[{q}:{q+1}], v[{q}:{q+1}], v[{q+6}:{q+7}]")
            k(f"v_cvt_pk_bf16_f32 v{O+2*rr+h}, v{q}, v{q+1}")
    l1 = k.new('xo')
    k("s_cmp_eq_u32 s92, 0"); k(f"s_cbranch_scc0 {k.ref(l1)}")
    k(f"s_add_u32 s24, s68, {A.WS_XF2}")
    k(f"buffer_store_dwordx4 v[{O}:{O+3}], v219, s[8:11], s24 offen sc1")
    k(f"s_branch {k.ref(lskip)}")
    k.lab(l1)
    k(f"buffer_store_dwordx2 v[{O}:{O+1}], v243, s[12:15], s68 offen")
    k(f"buffer_store_dwordx2 v[{O+2}:{O+3}], v243, s[12:15], s68 offen offset:32")
    k.lab(lskip)
    l2 = k.new('xp')
    k("s_lshr_b32 s25, s64, 2"); k("s_add_u32 s25, s25, 1")
    k("s_cmp_eq_u32 s92, 0"); k("s_cselect_b32 s79, s25, -1")
    k("s_cmp_lt_u32 s40, 64"); k(f"s_cbranch_scc1 {k.ref(l2)}")
    k("s_waitcnt vmcnt(0)")
    k("s_barrier")
    x_pending(k)
    k.lab(l2)
    xev(15)
    k("s_add_u32 s64, s64, 4")
    k(f"s_add_u32 s65, s65, {4*VOX_SEG}")
    k(f"s_add_u32 s66, s66, {4*SYNC_STEP}")
    k(f"s_add_u32 s67, s67, {4*SYNC_STEP}")
    k(f"s_add_u32 s68, s68, {4*40960}")

def role_P(k):
    RS, L_ST, L_PS = 400, 81920, 81920
    XPRE, BF, ACC, OUT, TMP, ST, CS, ONE = 16, 56, 88, 112, 124, 132, 224, 236
    k("s_sub_u32 s44, s2, 104")
    k("s_lshr_b32 s46, s44, 5")
    k("s_and_b32 s44, s44, 31")
    k.ptr(KA_WQ, 6); k.ptr(KA_WK, 24); k.ptr(KA_WV, 26)
    k("s_waitcnt lgkmcnt(0)")
    k("s_cmp_eq_u32 s46, 1"); k("s_cselect_b32 s6, s24, s6"); k("s_cselect_b32 s7, s25, s7")
    k("s_cmp_eq_u32 s46, 2"); k("s_cselect_b32 s6, s26, s6"); k("s_cselect_b32 s7, s27, s7")
    k.srd(12, 6, D * HD * 2)
    GO, LO, DAT = 4, 10, 56
    stage_offsets(k, 6, 24, HD * 2, RS, L_ST, GO, LO, 16)
    k("v_lshrrev_b32 v16, 2, v2")
    k("v_lshl_add_u32 v16, v3, 2, v16")
    k(f"v_mul_u32_u24 v32, {RS}, v16")
    k("v_and_b32 v16, 3, v2")
    k("v_lshl_add_u32 v32, v16, 3, v32")
    k(f"s_mul_i32 s24, s3, 96"); k(f"s_add_u32 s24, s24, {L_ST}")
    k("v_add_u32 v32, s24, v32")
    k("s_mul_i32 s45, s44, 384")
    def loads(c):
        d = DAT + 24 * (c % 8)
        k(f"s_add_u32 s47, s45, {c * 64 * HD * 2}")
        for i in range(6):
            k(f"buffer_load_dwordx4 v[{d+4*i}:{d+4*i+3}], v{GO+i}, s[12:15], s47 offen")
    for c in range(8): loads(c)
    C0, O0 = 16, 28
    for r in range(4): k(f"v_mov_b32 v{O0+r}, 0x3f803f80")
    def cs_mfma(c):
        for jj in range(2):
            j = 2 * c + jj
            for t in range(3):
                w = (t * 20 + j) * 4; cc = f"v[{C0+4*t}:{C0+4*t+3}]"
                k(f"v_mfma_f32_16x16x32_bf16 {cc}, a[{w}:{w+3}], v[{O0}:{O0+3}], {cc if j else 0}")
    waits = [42, 42, 42, 36, 30, 24, 18, 12, 6, 0]
    for c in range(10):
        d = DAT + 24 * (c % 8)
        k(f"s_waitcnt vmcnt({waits[c]})")
        for i in range(6): k(f"ds_write_b128 v{LO+i}, v[{d+4*i}:{d+4*i+3}] offset:{(c%2)*25600}")
        k("s_waitcnt lgkmcnt(0)")
        if c < 2: loads(c + 8)
        if c > 0: cs_mfma(c - 1)
        k("s_barrier")
        for t in range(3):
            for jj in range(2):
                r = (t * 20 + 2 * c + jj) * 4
                for hf in range(2):
                    k(f"ds_read_b64_tr_b16 a[{r+2*hf}:{r+2*hf+1}], v32 offset:{(c%2)*25600 + (32*jj + 16*hf)*RS + 32*t}")
    k("s_waitcnt lgkmcnt(0)")
    cs_mfma(9)
    for r in range(12): k(f"v_mov_b32 v{CS+r}, v{C0+r}")
    for r in range(4): k(f"v_mov_b32 v{ONE+r}, v{O0+r}")
    k("s_barrier")
    event(k, 1, 16)
    pol_get(k, 16)
    k.lab('p_layer')
    layer_bases(k)
    k("s_sub_u32 s44, s2, 104")
    k("s_lshr_b32 s46, s44, 5")
    k("s_and_b32 s44, s44, 31")
    k(f"s_mov_b32 s43, {WS_QF}")
    k("s_cmp_eq_u32 s46, 1"); k(f"s_cselect_b32 s43, {WS_KF}, s43")
    k("s_cmp_eq_u32 s46, 2"); k(f"s_cselect_b32 s43, {WS_VF}, s43")
    k("s_cmp_eq_u32 s92, 0"); k(f"s_cselect_b32 s73, {A.WS_XF1}, {A.WS_XF3}")
    k("v_lshlrev_b32 v5, 4, v1")
    k("s_mul_i32 s24, s3, 10240")
    k("v_add_u32 v6, s24, v5")
    k("v_add_u32 v7, 4096, v6"); k("v_add_u32 v8, 8192, v6")
    k("s_mul_i32 s24, s44, 12288"); k("s_mul_i32 s25, s3, 3072"); k("s_add_u32 s24, s24, s25")
    k("v_add_u32 v11, s24, v5")
    if CFG['p_off']:
        k("s_cmp_eq_u32 s92, 1"); k(f"s_cselect_b32 s24, {OOB}, 0"); k("v_or_b32 v11, s24, v11")
    k("s_lshr_b32 s24, s3, 1"); k("s_lshl_b32 s24, s24, 8"); k("s_and_b32 s25, s3, 1"); k("s_lshl_b32 s25, s25, 3")
    k("s_add_u32 s24, s24, s25"); k(f"s_add_u32 s24, s24, {L_PS}")
    k("v_lshlrev_b32 v13, 4, v2")
    k("v_add_u32 v12, s24, v13")
    k(f"v_add_u32 v13, {L_PS}, v13")
    if CFG['pstat'] == 1:
        k("v_lshrrev_b32 v15, 2, v2"); k("v_cmp_eq_u32 vcc, v15, v3")
        k(f"v_lshlrev_b32 v15, 3, v1"); k(f"v_add_u32 v15, {L_PS + 1024}, v15")
        k("v_cndmask_b32 v12, v15, v12, vcc")
        k("v_and_b32 v15, 3, v2")
        for i_, sp in ((1, 48), (2, 50), (3, 54)): k(f"v_cmp_eq_u32 s[{sp}:{sp+1}], {i_}, v15")
    k("s_and_b32 s24, s2, 7"); k("s_lshl_b32 s24, s24, 7"); k("s_lshl_b32 s25, s92, 10"); k("s_add_u32 s24, s24, s25")
    k(f"s_add_u32 s24, s24, {WS_FLG + F_K3}")
    if CFG['k3w']: k("s_mov_b32 s25, 20"); k("s_mov_b32 s75, 2"); k("s_mov_b32 s74, 16")
    else: k("s_cmp_eq_u32 s92, 0"); k("s_cselect_b32 s25, 20, 5"); k("s_cselect_b32 s75, 2, 0"); k("s_cselect_b32 s74, 16, 64")
    k("v_cmp_gt_u32 vcc, s25, v1"); k("v_cndmask_b32 v4, 0, v1, vcc")
    k("v_lshlrev_b32 v4, 2, v4"); k("v_add_u32 v4, s24, v4")
    flag_addr(k, 's46')
    k("s_cmp_eq_u32 s3, 0"); k(f"s_cselect_b32 s24, 0, {OOB}"); k("v_or_b32 v14, s24, v14")
    x_init(k)
    def xloads():
        for i in range(10):
            k(f"buffer_load_dwordx4 v[{XPRE+4*i}:{XPRE+4*i+3}], v{6 + i//4}, s[8:11], s41 offen offset:{(i%4)*1024} {CFG['px_mod']}")
    SA = 136
    FL = 152
    def stats_list():
        class L(list):
            def __call__(self, t): self.append(t)
        l = L(); row_stats_partial(l, XPRE, 40, SA, SA + 1, ONE, SA + 2); return l
    SM, SQ = 144, 148
    def stats_mfma():
        l = []
        for i in range(10):
            x = f"v[{XPRE+4*i}:{XPRE+4*i+3}]"
            l.append(f"v_mfma_f32_16x16x32_bf16 v[{SQ}:{SQ+3}], {x}, {x}, " + (f"v[{SQ}:{SQ+3}]" if i else "0"))
            l.append(f"v_mfma_f32_16x16x32_bf16 v[{SM}:{SM+3}], v[{ONE}:{ONE+3}], {x}, " + (f"v[{SM}:{SM+3}]" if i else "0"))
        return l
    def stats_sel():
        return [f"v_cndmask_b32 v{SM+1}, v{SQ}, v{SQ+1}, s[48:49]", f"v_cndmask_b32 v{SM+1}, v{SM+1}, v{SQ+2}, s[50:51]",
                f"v_cndmask_b32 v{SM+1}, v{SM+1}, v{SQ+3}, s[54:55]"]
    SR = SM if CFG['pstat'] == 1 else SA
    def xstage(wbase, psw):
        if CFG['pstat'] == 1:
            for t in stats_mfma(): k(t)
            for i in range(10): k(f"ds_write_b128 v{wbase}, v[{XPRE+4*i}:{XPRE+4*i+3}] offset:{i*1024}")
            for t in stats_sel(): k(t)
        else:
            for t in stats_list(): k(t)
            for i in range(10): k(f"ds_write_b128 v{wbase}, v[{XPRE+4*i}:{XPRE+4*i+3}] offset:{i*1024}")
        k(f"ds_write_b64 v{psw}, v[{SR}:{SR+1}]")
    k("s_mov_b32 s62, -1"); k("s_mov_b32 s63, 1")
    if CFG['k3w']:
        k("s_mov_b32 s39, -1")
        ensure(k, 'p_en0', 5, 4, 16, known='s39')
    else: ensure(k, 'p_en0', 20, 4, 16)
    k("s_mov_b32 s41, s73")
    xloads()
    k("s_mov_b32 s40, 0")
    k("s_mov_b32 s42, 0")
    k("s_waitcnt vmcnt(0)")
    xstage(6, 12)
    k("s_waitcnt lgkmcnt(0)")
    k("s_barrier")
    event(k, 2, 16)
    acc = lambda tt, t: ACC + (tt * 3 + t) * 4
    def need_next():
        k("s_add_u32 s63, s40, 1"); k("s_lshr_b32 s63, s63, s75"); k("s_add_u32 s63, s63, 1"); k("s_min_u32 s63, s63, s74")
    def body(steady):
        if steady: stamp(k, 0)
        k("v_add_u32 v9, s42, v5")
        k("s_xor_b32 s42, s42, 40960")
        k("v_add_u32 v10, s42, v6")
        if steady:
            need_next()
            ensure(k, 'p_en', 20, 4, 16)
            k("s_add_u32 s41, s41, 40960")
            xloads()
            stamp(k, 1)
        k("s_and_b32 s24, s40, 1"); k("s_lshl_b32 s24, s24, 9")
        k(f"v_add_u32 v{TMP}, s24, v13")
        k("s_xor_b32 s24, s24, 512")
        k(f"v_add_u32 v{SA+4}, s24, v12")
        lg = LG(k)
        lg.issue('ps', f"ds_read_b128 v[{OUT}:{OUT+3}], v{TMP}")
        lg.issue('ps', f"ds_read_b128 v[{OUT+4}:{OUT+7}], v{TMP} offset:256")
        def rd(j):
            for tt in range(2):
                r = BF + ((j % 4) * 2 + tt) * 4
                lg.issue(j, f"ds_read_b128 v[{r}:{r+3}], v9 offset:{tt*20480 + j*1024}")
        rd(0); rd(1); rd(2)
        class L(list):
            def __call__(self, t): self.append(t)
        extra = L()
        row_stats_final(extra, OUT, ST); row_stats_final(extra, OUT + 4, ST + 2)
        wr = []; sm = []
        for j in range(20):
            if j + 3 < 20: rd(j + 3)
            lg.wait(j)
            if steady and j == 11:
                stamp(k, 4)
                k(f"s_waitcnt vmcnt({(3 if CFG['p_adapt'] else 2) + CFG['xpre']})")
                stamp(k, 5)
                if CFG['pstat'] == 1: sm = stats_mfma()
                else: extra.extend(stats_list())
                wr = [f"ds_write_b128 v10, v[{XPRE+4*i}:{XPRE+4*i+3}] offset:{i*1024}" for i in range(10)]
            for tt in range(2):
                r = BF + ((j % 4) * 2 + tt) * 4
                for t in range(3):
                    a = acc(tt, t); w = (t * 20 + j) * 4
                    c = f"v[{a}:{a+3}]" if j else "0"
                    k(f"v_mfma_f32_16x16x32_bf16 v[{a}:{a+3}], a[{w}:{w+3}], v[{r}:{r+3}], {c}")
                    for _ in range(CFG['p_nx']):
                        if extra: k(extra.pop(0))
                    if t == 1 and wr and (CFG['p_wr'] == 1 or tt == 0 or True) and (CFG['p_wr'] == 2 or tt == 0): lg.issue('w', wr.pop(0))
            for _ in range(3):
                if sm: k(sm.pop(0))
            if steady and CFG['pstat'] == 1 and j == 19:
                for t_ in stats_sel(): k(t_)
            if not steady and CFG['p_ovl'] and j == CFG['p_ovl_j']: k(f"buffer_load_dword v{FL}, v4, s[8:11], 0 offen sc1")
            if steady and j == 9:
                stamp(k, 2)
                k("s_waitcnt vmcnt(10)")
                k("s_barrier")
                stamp(k, 3)
                k("v_mov_b32 v15, s40")
                k("buffer_store_dword v15, v14, s[8:11], 0 offen sc1")
                x_pending(k)
                if CFG['p_adapt']: k(f"buffer_load_dword v{FL}, v4, s[8:11], 0 offen sc1")
                if CFG['xpre']: k("buffer_load_dword v249, v248, s[8:11], 0 offen sc1")
        for t_ in wr: lg.issue('w', t_)
        assert not sm
        for t_ in extra: k(t_)
        if steady: lg.issue('w', f"ds_write_b64 v{SA+4}, v[{SR}:{SR+1}]")
        for tt in range(2):
            for t in range(3): ln_fold(k, acc(tt, t), CS + 4 * t, ST + 2 * tt, TMP)
        for o, (tt, t) in enumerate([(0, 0), (0, 1), (1, 0), (1, 1), (0, 2), (1, 2)]):
            a = acc(tt, t)
            k(f"v_cvt_pk_bf16_f32 v{OUT+2*o}, v{a}, v{a+1}")
            k(f"v_cvt_pk_bf16_f32 v{OUT+2*o+1}, v{a+2}, v{a+3}")
        for b in range(3):
            k(f"buffer_store_dwordx4 v[{OUT+4*b}:{OUT+4*b+3}], v11, s[8:11], s43 offen offset:{b*1024} sc1")
        k(f"s_add_u32 s43, s43, {QF_SEG}")
        if steady and CFG['p_adapt']: k("s_waitcnt vmcnt(3)")
        if not steady:
            lj = k.new('po')
            if CFG['p_ovl']:
                lo = k.new('po')
                k("s_waitcnt vmcnt(3)")
                need_next()
                k(f"v_cmp_le_i32 vcc, s63, v{FL}")
                k("s_cmp_eq_u64 vcc, -1"); k("s_cselect_b32 s24, 1, 0")
                k("s_cmp_ge_i32 s62, s63"); k("s_cselect_b32 s24, 1, s24")
                k("s_cmp_eq_u32 s24, 1"); k(f"s_cbranch_scc0 {k.ref(lo)}")
                k("s_max_i32 s62, s62, s63")
                k("s_add_u32 s41, s41, 40960")
                xloads()
                k(f"buffer_load_dword v{FL}, v4, s[8:11], 0 offen sc1")
                k("s_waitcnt vmcnt(11)")
                k("s_barrier")
                k("s_add_u32 s24, s40, 1"); k("v_mov_b32 v15, s24")
                k("buffer_store_dword v15, v14, s[8:11], 0 offen sc1")
                k(f"s_branch {k.ref(lj)}")
                k.lab(lo)
            k("s_waitcnt vmcnt(0)")
            k("s_barrier")
            k("s_add_u32 s24, s40, 1"); k("v_mov_b32 v15, s24")
            k("buffer_store_dword v15, v14, s[8:11], 0 offen sc1")
            need_next()
            ensure(k, 'p_enA', 20, 4, 16)
            k("s_add_u32 s41, s41, 40960")
            xloads()
            if CFG['p_adapt']: k(f"buffer_load_dword v{FL}, v4, s[8:11], 0 offen sc1")
            k.lab(lj)
            k("s_waitcnt vmcnt(0)")
            xstage(10, SA + 4)
        if steady and CFG['stamp']:
            k("s_waitcnt lgkmcnt(0)"); k("s_memrealtime s[56:57]"); k("s_waitcnt lgkmcnt(0)"); k("s_mov_b32 s57, s56"); stamp_out(k, 6, 16)
        k("s_add_u32 s40, s40, 1")
        if CFG['p_adapt']:
            need_next()
            k(f"v_cmp_le_i32 vcc, s63, v{FL}")
            k("s_cmp_eq_u64 vcc, -1"); k("s_cselect_b32 s58, 1, 0")
            k("s_cmp_ge_i32 s62, s63"); k("s_cselect_b32 s58, 1, s58")
            k("s_and_b32 s24, s40, 1"); k("s_lshl_b32 s24, s24, 2"); k(f"s_add_u32 s24, s24, {L_PS + 1536}")
            k("s_lshl_b32 s25, s3, 4"); k("s_add_u32 s25, s25, s24")
            k("v_mov_b32 v15, s25"); k(f"v_mov_b32 v{FL}, s58")
            k(f"ds_write_b32 v15, v{FL}")
            k("v_mov_b32 v15, s24")
        k("s_waitcnt lgkmcnt(0)")
        k("s_barrier")
        if CFG['p_adapt']:
            k(f"ds_read_b32 v{FL}, v15")
            k("s_waitcnt lgkmcnt(0)")
            k(f"v_readfirstlane_b32 s58, v{FL}")
            k("s_cmp_eq_u32 s58, 1"); k("s_cselect_b32 s24, s63, s62"); k("s_max_i32 s62, s62, s24")
    k(f"s_branch {k.ref('p_segA')}")
    k.lab('p_pubA')
    k("s_waitcnt vmcnt(0)")
    k("s_barrier")
    flag_pub(k, 's40')
    k.lab('p_segA')
    body(False)
    if not CFG['p_adapt']:
        k(f"s_cmp_lt_u32 s40, {CFG['p_ns']}"); k(f"s_cbranch_scc1 {k.ref('p_segA')}")
    k(f"s_branch {k.ref('p_next')}")
    k.lab('p_seg')
    body(True)
    k.lab('p_next')
    if CFG['stamp']:
        for i_, sv in enumerate((8, 16, 32, 48)):
            l_ = k.new('pe'); k(f"s_cmp_eq_u32 s40, {sv}"); k(f"s_cbranch_scc0 {k.ref(l_)}"); event(k, 8 + i_, 16); k.lab(l_)
    def go_seg():
        if CFG['p_adapt']:
            l_ = k.new('pg')
            k("s_cmp_lt_u32 s40, 64"); k(f"s_cbranch_scc0 {k.ref(l_)}")
            k("s_cmp_eq_u32 s58, 1"); k(f"s_cbranch_scc1 {k.ref('p_seg')}")
            k(f"s_branch {k.ref('p_pubA')}")
            k.lab(l_)
        else:
            k("s_cmp_lt_u32 s40, 64"); k(f"s_cbranch_scc1 {k.ref('p_seg')}")
    def lag():
        if CFG['xlag_e'] != CFG['xlag']:
            k(f"s_cmp_ge_u32 s64, {CFG['xe0']}"); k(f"s_cselect_b32 s24, {CFG['xlag_e']}, {CFG['xlag']}"); k("s_add_u32 s24, s24, s64")
        else: k(f"s_add_u32 s24, s64, {CFG['xlag']}")
        k("s_cmp_le_u32 s24, s40")
    lag(); k(f"s_cbranch_scc1 {k.ref('p_pub')}")
    go_seg()
    k.lab('p_pub')
    k("s_waitcnt vmcnt(0)")
    k("s_barrier")
    flag_pub(k, 's40')
    lag(); k(f"s_cbranch_scc1 {k.ref('p_x')}")
    go_seg()
    k("s_cmp_ge_u32 s64, 64"); k(f"s_cbranch_scc1 {k.ref('p_done')}")
    k.lab('p_x')
    x_iter(k)
    k(f"s_branch {k.ref('p_next')}")
    k.lab('p_done')
    event(k, 3, 16)
    next_layer(k, 'p_layer')

def role_O(k):
    RS = 1312
    VFa, VFb, ACC, OUT = 16, 64, 112, 192
    k("s_sub_u32 s44, s2, 200")
    k.ptr(KA_WO, 6)
    k("s_waitcnt lgkmcnt(0)")
    k.srd(12, 6, D * HD * 2)
    LO, D0, D1 = 16, 48, 168
    for i in range(30):
        k(f"v_add_u32 v8, {256*i}, v0")
        divmod_const(k, 9, 10, 8, 80, 256 * 30, 24)
        k(f"v_mul_u32_u24 v{LO+i}, {RS}, v9")
        k(f"v_lshl_add_u32 v{LO+i}, v10, 4, v{LO+i}")
    k("v_lshlrev_b32 v4, 4, v0")
    k(f"s_mul_i32 s45, s44, {192*1280}")
    dat = lambda b, i: (D0 + 4 * i) if b == 0 else ((D1 + 4 * i) if i < 22 else (D0 + 4 * (i - 22)))
    def ld(b, i):
        k(f"s_add_u32 s46, s45, {b*96*1280 + i*4096}")
        d = dat(b, i)
        k(f"buffer_load_dwordx4 v[{d}:{d+3}], v4, s[12:15], s46 offen")
    for i in range(30): ld(0, i)
    for i in range(22): ld(1, i)
    k("v_lshrrev_b32 v8, 2, v2")
    k("v_lshl_add_u32 v8, v3, 2, v8")
    k(f"v_mul_u32_u24 v5, {RS}, v8")
    k("v_and_b32 v8, 3, v2")
    k("v_lshl_add_u32 v5, v8, 3, v5")
    k("s_mul_i32 s24, s3, 320")
    k("v_add_u32 v5, s24, v5")
    k(f"v_add_u32 v6, {48*RS}, v5")
    for b in range(2):
        k(f"s_waitcnt vmcnt({22 if b == 0 else 0})")
        for i in range(30):
            d = dat(b, i)
            k(f"ds_write_b128 v{LO+i}, v[{d}:{d+3}]")
        k("s_waitcnt lgkmcnt(0)")
        if b == 0:
            for i in range(22, 30): ld(1, i)
        k("s_barrier")
        for t in range(10):
            def tr(ks, hf, base, row):
                r = (t * 6 + ks) * 4 + 2 * hf
                k(f"ds_read_b64_tr_b16 a[{r}:{r+1}], v{base} offset:{row*RS + 32*t}")
            tr(2*b, 0, 5, 0); tr(2*b, 1, 5, 16)
            tr(2*b+1, 0, 6, 0); tr(2*b+1, 1, 6, 16)
            tr(4+b, 0, 5, 32); tr(4+b, 1, 6, 32)
        k("s_waitcnt lgkmcnt(0)")
        k("s_barrier")
    k("v_lshlrev_b32 v5, 4, v1")
    k("s_mul_i32 s24, s44, 12288")
    k("v_add_u32 v6, s24, v5")
    k("v_add_u32 v7, 4096, v6"); k("v_add_u32 v8, 8192, v6")
    k(f"s_mul_i32 s24, s3, {10*32768}"); k("s_lshl_b32 s25, s44, 10"); k("s_add_u32 s24, s24, s25")
    k("v_add_u32 v9, s24, v5")
    event(k, 1, 16)
    k.lab('o_layer')
    layer_bases(k)
    flag_addr(k, 3)
    if CFG['o_off']:
        k("s_cmp_eq_u32 s92, 1"); k(f"s_cselect_b32 s24, {OOB}, 0"); k("v_or_b32 v9, s24, v9")
    k(f"s_lshl_b32 s24, s44, 7"); k(f"s_add_u32 s24, s24, {2*4096}"); k("s_add_u32 s24, s24, s94")
    k("v_mov_b32 v10, s24")
    k(f"s_mov_b32 s41, {WS_VF}")
    k(f"s_mov_b32 s43, {WS_VOX}")
    k("s_mov_b32 s40, 0")
    def vloads(V):
        for i in range(12):
            k(f"buffer_load_dwordx4 v[{V+4*i}:{V+4*i+3}], v{6 + i//4}, s[8:11], s41 offen offset:{(i%4)*1024} sc1")
        k(f"s_add_u32 s41, s41, {QF_SEG}")
    k("s_mov_b32 s62, -1"); k("s_mov_b32 s63, 1")
    ensure(k, 'o_en0', 1, 10, 11)
    vloads(VFa)
    k("s_waitcnt vmcnt(0)")
    event(k, 2, 240)
    k.lab('o_seg')
    for par, (V, VN) in enumerate(((VFa, VFb), (VFb, VFa))):
        for p in range(2):
            X = V + (6 * p + 2) * 4; Y = V + (6 * p + 5) * 4
            k(f"v_swap_b32 v{X+2}, v{Y}"); k(f"v_swap_b32 v{X+3}, v{Y+1}")
        def frag(tt, ks):
            if ks < 4: return V + (3 * ks + tt) * 4
            p = ks - 4
            return V + (6 * p + 2) * 4 if tt == 0 else V + (6 * p + 5) * 4
        def nxt(tag):
            k("s_add_u32 s63, s40, 2"); k("s_min_u32 s63, s63, 64")
            ensure(k, tag, 1, 10, 11)
            vloads(VN)
        stamp(k, 0)
        if CFG['o_adapt']: k("buffer_load_dword v232, v10, s[8:11], 0 offen sc1")
        for ks in range(6):
            for t in range(10):
                for tt in range(2):
                    a = ACC + (t * 2 + tt) * 4; w = (t * 6 + ks) * 4; f = frag(tt, ks)
                    c = f"v[{a}:{a+3}]" if ks else "0"
                    k(f"v_mfma_f32_16x16x32_bf16 v[{a}:{a+3}], v[{f}:{f+3}], a[{w}:{w+3}], {c}")
            if ks == 4 and CFG['o_adapt'] and CFG['o_ovl']: k("buffer_load_dword v233, v10, s[8:11], 0 offen sc1")
            if ks == 2 and CFG['o_adapt']:
                lf = k.new('of')
                k("s_waitcnt vmcnt(0)")
                k("v_readfirstlane_b32 s24, v232"); k("s_max_i32 s62, s62, s24")
                k("s_add_u32 s63, s40, 2"); k("s_min_u32 s63, s63, 64")
                k("s_cmp_ge_i32 s62, s63"); k("s_cselect_b32 s24, 1, 0")
                k("s_lshl_b32 s25, s3, 4"); k(f"s_add_u32 s25, s25, {4*par}")
                k("v_mov_b32 v12, s25"); k("v_mov_b32 v13, s24")
                k("ds_write_b32 v12, v13")
                k(f"v_mov_b32 v12, {4*par}")
                k("s_waitcnt lgkmcnt(0)")
                k("s_barrier")
                k("ds_read_b32 v13, v12")
                flag_pub(k, 's40')
                k("s_waitcnt lgkmcnt(0)")
                k("v_readfirstlane_b32 s58, v13")
                k("s_cmp_eq_u32 s58, 1"); k(f"s_cbranch_scc0 {k.ref(lf)}")
                k("s_max_i32 s62, s62, s63")
                vloads(VN)
                k.lab(lf)
            elif ks == 2:
                lf = k.new('of')
                if par == 0:
                    k("s_cmp_eq_u32 s40, 0"); k(f"s_cbranch_scc1 {k.ref(lf)}")
                k("s_waitcnt vmcnt(0)")
                k("s_barrier")
                flag_pub(k, 's40')
                nxt(f'o_en{par+1}')
                k.lab(lf)
        stamp(k, 1)
        k("s_mov_b32 s46, s43")
        for t in range(10):
            o = OUT + 4 * t
            for tt in range(2):
                a = ACC + (t * 2 + tt) * 4
                k(f"v_cvt_pk_bf16_f32 v{o+2*tt}, v{a}, v{a+1}")
                k(f"v_cvt_pk_bf16_f32 v{o+2*tt+1}, v{a+2}, v{a+3}")
            k(f"buffer_store_dwordx4 v[{o}:{o+3}], v9, s[8:11], s46 offen sc1")
            if t < 9: k("s_add_u32 s46, s46, 32768")
        stamp(k, 2)
        if CFG['o_adapt']:
            lf = k.new('of')
            k("s_cmp_eq_u32 s58, 1"); k(f"s_cbranch_scc1 {k.ref(lf)}")
            if CFG['o_ovl']:
                lo = k.new('oo')
                k("s_waitcnt vmcnt(10)")
                k("v_readfirstlane_b32 s24, v233"); k("s_max_i32 s62, s62, s24")
                k("s_add_u32 s63, s40, 2"); k("s_min_u32 s63, s63, 64")
                k("s_cmp_ge_i32 s62, s63"); k(f"s_cbranch_scc0 {k.ref(lo)}")
                vloads(VN)
                k("s_waitcnt vmcnt(12)")
                k("s_barrier")
                k("s_add_u32 s24, s40, 1")
                flag_pub(k, 's24')
                k("s_waitcnt vmcnt(0)")
                k(f"s_branch {k.ref(lf)}")
                k.lab(lo)
            k("s_waitcnt vmcnt(0)")
            k("s_barrier")
            k("s_add_u32 s24, s40, 1")
            flag_pub(k, 's24')
            nxt(f'o_en{par+3}')
            k("s_waitcnt vmcnt(0)")
            k.lab(lf)
        elif par == 0:
            lf = k.new('of')
            k("s_cmp_eq_u32 s40, 0"); k(f"s_cbranch_scc0 {k.ref(lf)}")
            k("s_waitcnt vmcnt(0)")
            k("s_barrier")
            flag_pub(k, 1)
            nxt('o_en3')
            k("s_waitcnt vmcnt(0)")
            k.lab(lf)
        k("s_waitcnt vmcnt(10)")
        if CFG['stamp']:
            stamp(k, 3); k("s_waitcnt lgkmcnt(0)"); k("s_mov_b32 s57, s58"); k("s_mov_b32 s56, s62"); stamp_out(k, 4, 236)
        k("s_add_u32 s40, s40, 1")
        k(f"s_add_u32 s43, s43, {VOX_SEG}")
    k("s_cmp_lt_u32 s40, 64")
    k(f"s_cbranch_scc1 {k.ref('o_seg')}")
    k("s_waitcnt vmcnt(0)")
    k("s_barrier")
    flag_pub(k, 's40')
    event(k, 3, 240)
    next_layer(k, 'o_layer')
def pol_probe(k):
    if CFG['pol'] < 0:
        k("s_waitcnt vmcnt(0)")
        k("s_lshl_b32 s24, s3, 9"); k(f"s_add_u32 s24, s24, {WS_SYNC + 0xF0000}")
        k("v_mov_b32 v154, 0")
        k("s_lshl_b32 s27, s3, 3"); k("s_add_u32 s27, s27, 131072")
        for cl in range(2):
            k("s_barrier")
            k("s_mov_b32 s25, -1")
            k("s_mov_b64 exec, 1")
            for i in range(CFG['npol']):
                k("v_mov_b32 v155, 0")
                k("s_memtime s[28:29]"); k("s_waitcnt lgkmcnt(0)")
                k(f"buffer_atomic_add v155, v154, s[8:11], s24 offen offset:{128 * i} sc0")
                k("s_waitcnt vmcnt(0)")
                k("s_memtime s[30:31]"); k("s_waitcnt lgkmcnt(0)")
                k("s_sub_u32 s30, s30, s28"); k("s_min_u32 s25, s25, s30")
            k("v_mov_b32 v148, s27"); k("v_mov_b32 v155, s25")
            k(f"ds_write_b32 v148, v155 offset:{4 * cl}")
            k("s_mov_b64 exec, -1")
            k("s_add_u32 s24, s24, 0x2000")
        k("s_waitcnt lgkmcnt(0)")
        k("s_barrier")
        k("v_mov_b32 v154, 131072")
        k("ds_read_b128 v[148:151], v154"); k("ds_read_b128 v[152:155], v154 offset:16")
        k("s_waitcnt lgkmcnt(0)")
        k("v_min_u32 v148, v148, v152"); k("v_min_u32 v149, v149, v153"); k("v_min_u32 v150, v150, v154"); k("v_min_u32 v151, v151, v155")
        if CFG.get('poldbg'):
            k(f"v_mov_b32 v154, {OOB}"); k("v_cmp_eq_u32 vcc, 0, v1"); k("v_cndmask_b32 v154, v154, 16, vcc")
            k("buffer_store_dwordx4 v[148:151], v154, s[72:75], 0 offen sc1"); k("s_waitcnt vmcnt(0)")
        k("v_min_u32 v148, v148, v150"); k("v_min_u32 v149, v149, v151")
        k("v_cmp_lt_u32 vcc, v149, v148")
        k("v_cndmask_b32 v155, 1, 2, vcc")
    else:
        k("s_waitcnt vmcnt(0)")
        k("s_barrier")
        k(f"v_mov_b32 v155, {1 + CFG['pol']}")

def pol_publish(k, l, off):
    k("s_cmp_eq_u32 s3, 0"); k(f"s_cbranch_scc0 {k.ref(l)}")
    k(f"v_mov_b32 v154, {OOB}"); k("v_cmp_eq_u32 vcc, 0, v1"); k(f"v_cndmask_b32 v154, v154, {off}, vcc")
    k("buffer_store_dword v155, v154, s[72:75], 0 offen sc1")
    k.lab(l)

def pol_get(k, t):
    if not CFG['pol_late']: return
    l = k.new('pg')
    k.ptr(KA_DBG, 26); k("s_waitcnt lgkmcnt(0)"); k.srd(28, 26, 256)
    k("s_mov_b32 s61, 0")
    k(f"v_mov_b32 v{t+1}, 4")
    k.lab(l)
    k(f"buffer_load_dword v{t}, v{t+1}, s[28:31], 0 offen sc1")
    k("s_waitcnt vmcnt(0)")
    k(f"v_readfirstlane_b32 s24, v{t}")
    k("s_cmp_ge_u32 s24, 1"); k(f"s_cbranch_scc1 {k.ref(l + '_ok')}")
    k("s_add_u32 s61, s61, 1"); k("s_cmp_ge_u32 s61, s60"); k(f"s_cbranch_scc1 {k.ref(l + '_ok')}")
    k("s_sleep 4")
    k(f"s_branch {k.ref(l)}")
    k.lab(l + '_ok')
    k("s_sub_u32 s24, s24, 1"); k("s_and_b32 s24, s24, 1"); k("s_lshl_b32 s36, s24, 13")

class Hooks(A.NoHooks):
    def ev(self, k, i, t=14): event(k, i, t)
    def k1_wait_x(self, k):
        k("s_and_b32 s24, s48, 3"); k("s_lshl_b32 s24, s24, 7"); k(f"s_add_u32 s24, s24, {WS_FLG + F_X}")
        k("v_lshlrev_b32 v15, 2, v1"); k("v_add_u32 v15, s24, v15")
        k("s_lshr_b32 s95, s48, 2"); k("s_add_u32 s95, s95, 1")
        wait_all(k, 'k1_wx', 20, 14, 's95', sleep=4)
    def tr(self, k, slot):
        if not (CFG['stamp'] and CFG.get('k1tr')): return
        k("s_memrealtime s[96:97]")
        k("s_lshl_b32 s34, s2, 2"); k("s_add_u32 s34, s34, s3"); k("s_lshl_b32 s34, s34, 7")
        k("s_lshl_b32 s35, s92, 6"); k("s_add_u32 s34, s34, s35")
        k("s_add_u32 s34, s34, s48"); k("s_lshl_b32 s34, s34, 5"); k(f"s_add_u32 s34, s34, {WS_TRACE + 4*slot}")
        k(f"v_mov_b32 v14, {OOB}"); k("v_cmp_eq_u32 vcc, 0, v1"); k("v_cndmask_b32 v14, v14, 0, vcc")
        k("s_waitcnt lgkmcnt(0)")
        k("v_mov_b32 v15, s96")
        k("buffer_store_dword v15, v14, s[8:11], s34 offen")
    def k1_prefetch(self, k):
        st = CFG['pf']
        if not st: return 0
        n = 32768 // (256 * st)
        l = k.new('pf')
        k("s_cmp_eq_u32 s92, 0"); k(f"s_cselect_b32 s25, 0, {OOB}")
        k("s_lshl_b32 s24, s45, 3"); k("s_add_u32 s24, s24, s44"); k("s_mul_i32 s24, s24, 30720"); k("s_add_u32 s24, s24, s25")
        k(f"v_mul_u32_u24 v154, {st}, v0")
        for i in range(4):
            k.srd(20, 64 + 2 * i, D * HD * 2)
            for q in range(n):
                k(f"s_add_u32 s25, s24, {q * 256 * st}")
                k("buffer_load_dword a255, v154, s[20:23], s25 offen")
        return 4 * n
    def k1_flag_issue(self, k, n):
        k(f"s_mul_i32 s24, s49, {n}"); k("s_add_u32 s24, s24, s48")
        k("s_and_b32 s24, s24, 3"); k("s_lshl_b32 s24, s24, 7"); k(f"s_add_u32 s24, s24, {WS_FLG + F_X}")
        k("v_lshlrev_b32 v15, 2, v1"); k("v_add_u32 v15, s24, v15")
        k("buffer_load_dword v13, v15, s[8:11], 0 offen sc1")
    def k1_flag_check(self, k, skip):
        if not CFG['k1_pre']:
            k(f"s_branch {k.ref(skip)}"); return
        k("s_add_u32 s24, s48, s49"); k("s_lshr_b32 s24, s24, 2"); k("s_add_u32 s24, s24, 1")
        k("v_cmp_le_i32 vcc, s24, v13")
        k("s_and_b32 s24, vcc_lo, 0xfffff"); k("s_cmp_eq_u32 s24, 0xfffff")
        k(f"s_cbranch_scc0 {k.ref(skip)}")
    def k1_first_barrier(self, k): pass
    def k1_after_weights(self, k):
        l = k.new('fb')
        k("s_cmp_eq_u32 s2, 255"); k(f"s_cbranch_scc0 {k.ref(l)}")
        k("s_cmp_eq_u32 s92, 0"); k(f"s_cbranch_scc0 {k.ref(l)}")
        if CFG['pol_late']:
            k("s_waitcnt vmcnt(0)")
            k("s_barrier")
            k("v_mov_b32 v155, 1")
            pol_publish(k, l, 0)
            return
        pol_probe(k)
        pol_publish(k, l, 0)
    def k1_ready_issue(self, k):
        l = k.new('ri')
        k("s_cmp_eq_u32 s92, 0"); k(f"s_cbranch_scc0 {k.ref(l)}")
        k("v_mov_b32 v15, 0")
        k("buffer_load_dword v14, v15, s[72:75], 0 offen sc1")
        k.lab(l)
    def k1_ready_check(self, k):
        l = k.new('rc')
        k("s_cmp_eq_u32 s92, 0"); k(f"s_cbranch_scc0 {k.ref(l + '_ok')}")
        k("s_mov_b32 s61, 0")
        k.lab(l)
        k("s_waitcnt vmcnt(0)")
        k("v_readfirstlane_b32 s24, v14")
        if not CFG['pol_late']: k("s_sub_u32 s36, s24, 1"); k("s_and_b32 s36, s36, 1"); k("s_lshl_b32 s36, s36, 13")
        k("s_cmp_ge_u32 s24, 1"); k(f"s_cbranch_scc1 {k.ref(l + '_ok')}")
        k("s_add_u32 s61, s61, 1"); k("s_cmp_ge_u32 s61, s60"); k(f"s_cbranch_scc1 {k.ref(l + '_to')}")
        k("s_sleep 2")
        k("v_mov_b32 v15, 0")
        k("buffer_load_dword v14, v15, s[72:75], 0 offen sc1")
        k(f"s_branch {k.ref(l)}")
        k.lab(l + '_to')
        k("s_mov_b32 s60, 1")
        k.lab(l + '_ok')
    def k1_publish(self, k):
        if CFG['k1at']:
            l = k.new('ka')
            k("s_cmp_eq_u32 s3, 0"); k(f"s_cbranch_scc0 {k.ref(l)}")
            k("s_lshl_b32 s24, s92, 3"); k("s_add_u32 s24, s24, s44"); k("s_lshl_b32 s24, s24, 7"); k(f"s_add_u32 s24, s24, {WS_FLG + F_K1}")
            k("v_mov_b32 v14, s24"); k(f"v_mov_b32 v15, {OOB}"); k("v_cmp_eq_u32 vcc, 0, v1"); k("v_cndmask_b32 v14, v15, v14, vcc")
            k("v_mov_b32 v15, 1")
            k("buffer_atomic_add v15, v14, s[8:11], 0 offen sc1")
            k.lab(l)
            return
        k("s_lshl_b32 s24, s92, 3"); k("s_add_u32 s24, s24, s44"); k("s_lshl_b32 s24, s24, 7")
        k("s_lshl_b32 s25, s45, 2"); k("s_add_u32 s24, s24, s25"); k(f"s_add_u32 s24, s24, {WS_FLG + F_K1}")
        pub_dword(k, 's24', 1, 14)
    def await_(self, k, name, nl, need, sleep):
        k(f"s_mov_b64 exec, {(1 << nl) - 1}")
        k("s_mov_b32 s61, 0")
        k.lab(name)
        k("v_mov_b32 v14, 0")
        k("buffer_atomic_add v14, v15, s[8:11], 0 offen sc0 sc1")
        k("s_waitcnt vmcnt(0)")
        k(f"v_cmp_gt_i32 vcc, {need}, v14")
        k(f"s_cbranch_vccz {k.ref(name + '_ok')}")
        k("s_add_u32 s61, s61, 1"); k("s_cmp_ge_u32 s61, s60"); k(f"s_cbranch_scc1 {k.ref(name + '_to')}")
        k(f"s_sleep {sleep}")
        k(f"s_branch {k.ref(name)}")
        k.lab(name + '_to'); k("s_mov_b32 s60, 1")
        k.lab(name + '_ok')
        k("s_mov_b64 exec, -1")
    def k2_wait(self, k):
        if CFG['k1at']:
            k("s_lshl_b32 s24, s92, 3"); k("s_add_u32 s24, s24, s44"); k("s_lshl_b32 s24, s24, 7"); k(f"s_add_u32 s24, s24, {WS_FLG + F_K1}")
            k("v_mov_b32 v15, s24")
            k("s_cmp_eq_u32 s92, 0"); k("s_cselect_b32 s26, 31, 1")
            self.await_(k, 'k2_w', 1, 's26', 2)
            return
        k("s_lshl_b32 s24, s92, 3"); k("s_add_u32 s24, s24, s44"); k("s_lshl_b32 s24, s24, 7"); k(f"s_add_u32 s24, s24, {WS_FLG + F_K1}")
        k("v_lshlrev_b32 v15, 2, v1"); k("v_add_u32 v15, s24, v15")
        k("s_cmp_eq_u32 s92, 0"); k("s_cselect_b32 s26, -1, 3")
        wait_all(k, 'k2_w', 's26', 14, 1, sleep=2)
    def k2_publish(self, k):
        k("s_lshl_b32 s24, s92, 7"); k("s_sub_u32 s25, s2, 64"); k("s_lshl_b32 s25, s25, 2"); k("s_add_u32 s24, s24, s25")
        k(f"s_add_u32 s24, s24, {WS_FLG + F_K2}")
        pub_dword(k, 's24', 1, 14)
    def k3_wait0(self, k):
        if CFG['k1at']:
            l = k.new('kw')
            k("s_cmp_eq_u32 s3, 0"); k(f"s_cbranch_scc0 {k.ref(l)}")
            k("s_lshl_b32 s24, s92, 10"); k(f"s_add_u32 s24, s24, {WS_FLG + F_K1}")
            k("v_and_b32 v15, 7, v1"); k("v_lshlrev_b32 v15, 7, v15"); k("v_add_u32 v15, s24, v15")
            k("s_cmp_eq_u32 s92, 0"); k("s_cselect_b32 s26, 31, 1")
            self.await_(k, 'k3_w0', 8, 's26', 6)
            k.lab(l)
            k("s_barrier")
            return
        k("s_cmp_eq_u32 s92, 0"); k("s_cselect_b32 s26, 32, 0"); k("s_cselect_b32 s27, 7, 1")
        k("s_lshl_b32 s24, s92, 10"); k(f"s_add_u32 s24, s24, {WS_FLG + F_K1}")
        k("v_and_b32 v15, 7, v1"); k("v_lshlrev_b32 v15, 7, v15")
        k("v_lshrrev_b32 v14, 3, v1"); k("v_and_b32 v14, s27, v14"); k("v_lshl_add_u32 v15, v14, 2, v15")
        k("v_add_u32 v15, s24, v15")
        k("s_lshl_b32 s27, s26, 1"); k("s_add_u32 s28, s27, s26")
        k("s_mov_b32 s61, 0")
        k.lab('k3_w0')
        for i, so in enumerate(('0', 's26', 's27', 's28')):
            k(f"buffer_load_dword v{16+i}, v15, s[8:11], {so} offen sc1")
        k("s_waitcnt vmcnt(0)")
        k("v_min_i32 v16, v16, v17"); k("v_min3_i32 v16, v16, v18, v19")
        k("v_cmp_le_i32 vcc, 1, v16")
        k("s_cmp_eq_u64 vcc, -1")
        k(f"s_cbranch_scc1 {k.ref('k3_w0_ok')}")
        k("s_add_u32 s61, s61, 1"); k("s_cmp_ge_u32 s61, s60"); k(f"s_cbranch_scc1 {k.ref('k3_w0_to')}")
        k("s_sleep 4")
        k(f"s_branch {k.ref('k3_w0')}")
        k.lab('k3_w0_to'); k("s_mov_b32 s60, 1")
        k.lab('k3_w0_ok')
    def k3_wait(self, k):
        k("s_lshl_b32 s24, s92, 7"); k(f"s_add_u32 s24, s24, {WS_FLG + F_K2}")
        k("v_lshlrev_b32 v15, 2, v1"); k("v_add_u32 v15, s24, v15")
        wait_all(k, 'k3_w', 24, 14, 1, sleep=2)
    def k3_publish(self, k, last):
        k("s_lshl_b32 s24, s92, 10"); k("s_lshl_b32 s25, s78, 2"); k("s_add_u32 s24, s24, s25")
        k(f"s_add_u32 s24, s24, {WS_FLG + F_K3}")
        pub_dword(k, 's24', 's40', 14, copies=8)

NCLR = 3
def role_clear(k):
    k("s_sub_u32 s44, s2, 253")
    k("s_lshl_b32 s24, s44, 2"); k("s_add_u32 s24, s24, s3"); k("s_mul_i32 s45, s24, 5")
    for i in range(5):
        k(f"s_add_u32 s24, s45, {i}"); k(f"s_min_u32 s24, s24, {N_NEAR + N_COMP - 1}")
        k(f"s_sub_u32 s25, s24, {N_NEAR}"); k(f"s_cmp_ge_u32 s24, {N_NEAR}")
        k("s_cselect_b32 s24, s25, s24"); k(f"s_cselect_b32 s{69+i}, 0x2000, 0"); k(f"s_lshl_b32 s{64+i}, s24, 14")
    k("v_lshlrev_b32 v5, 4, v1")
    for r in range(4): k(f"v_mov_b32 v{8+r}, -1")
    k("s_lshl_b32 s24, s44, 2"); k(f"s_add_u32 s42, s24, {WS_FLG + F_C}")
    k("s_mov_b32 s40, 0")
    def stores():
        for i in range(5):
            k(f"s_add_u32 s43, s41, s{64+i}"); k(f"s_xor_b32 s43, s43, s{69+i}"); k("s_add_u32 s46, s43, 4096")
            for q in range(8):
                k(f"buffer_store_dwordx4 v[8:11], v5, s[8:11], {'s43' if q < 4 else 's46'} offen offset:{(q%4)*1024} {CFG['clr_mod']}")
    k.lab('clr_blk')
    blk_base(k, 's40', 's41')
    stores()
    k("s_waitcnt vmcnt(40)")
    k("s_barrier")
    pub_dword(k, 's42', 's40', 14, copies=8)
    k("s_add_u32 s40, s40, 1")
    k("s_cmp_lt_u32 s40, 64"); k(f"s_cbranch_scc1 {k.ref('clr_blk')}")
    k("s_waitcnt vmcnt(0)")
    k("s_barrier")
    pub_dword(k, 's42', 's40', 14, copies=8)
    k.lab('clr_blk2')
    k("s_sub_u32 s47, s40, 64")
    k("s_cmp_ge_u32 s47, 60"); k(f"s_cbranch_scc1 {k.ref('clr_last')}")
    k("s_and_b32 s24, s47, 3"); k("s_lshl_b32 s24, s24, 7"); k(f"s_add_u32 s24, s24, {WS_FLG + F_X}")
    k("v_lshlrev_b32 v15, 2, v1"); k("v_add_u32 v15, s24, v15")
    k("s_lshr_b32 s95, s47, 2"); k("s_add_u32 s95, s95, 2")
    wait_all(k, 'clr_wx', 20, 14, 's95', sleep=32)
    k(f"s_branch {k.ref('clr_go')}")
    k.lab('clr_last')
    k(f"v_mov_b32 v15, {WS_FLG + F_S}")
    k("s_mov_b32 s95, 66")
    wait_all(k, 'clr_ws', 1, 14, 's95', sleep=32)
    k.lab('clr_go')
    blk_base(k, 's47', 's41')
    stores()
    k("s_waitcnt vmcnt(0)")
    k("s_barrier")
    k("s_add_u32 s40, s40, 1")
    pub_dword(k, 's42', 's40', 14, copies=8)
    k("s_cmp_lt_u32 s40, 128"); k(f"s_cbranch_scc1 {k.ref('clr_blk2')}")
    k("s_waitcnt vmcnt(0)")

def build():
    k = K(NAME, vgpr=256, sgpr=100, agpr=256)
    H = Hooks()
    k("s_cmp_ge_u32 s2, 256")
    k(f"s_cbranch_scc1 {k.ref('end')}")
    k.ptr(KA_WS, 4); k.ptr(KA_DBG, 6); k.ptr(KA_AX, 24); k.ptr(KA_WQKV, 98)
    if CFG['pf']:
        for i_, a_ in enumerate((KA_WQ, KA_WK, KA_WV, KA_WO)): k.ptr(a_, 64 + 2 * i_)
    k("s_and_b32 s44, s2, 7"); k("s_lshr_b32 s45, s2, 3")
    if CFG['xmap']:
        xm = CFG['xmap']
        k("s_and_b32 s26, s44, 3"); k("s_lshl_b32 s27, s45, 2"); k("s_add_u32 s26, s26, s27")
        k("s_add_u32 s27, s26, 128"); k("s_cmp_lt_u32 s26, 104"); k("s_cselect_b32 s27, s26, s27")
        k("s_add_u32 s26, s26, 104")
        k("s_cmp_lt_u32 s44, 4"); k("s_cselect_b32 s2, s27, s26" if xm == 1 else "s_cselect_b32 s2, s26, s27")
    k("v_and_b32 v1, 63, v0")
    k("v_lshrrev_b32 v4, 6, v0")
    k("v_and_b32 v2, 15, v1")
    k("v_lshrrev_b32 v3, 4, v1")
    k("v_readfirstlane_b32 s3, v4")
    k(f"s_mov_b32 s60, {CFG['spin']}")
    k("s_mov_b32 s59, -1")
    k("s_mov_b32 s92, 0")
    k("s_mov_b32 s36, 0")
    k("s_waitcnt lgkmcnt(0)")
    k.srd(8, 4, WS_BYTES)
    k.srd(72, 6, 256)
    k.srd(16, 24, A.XF_BYTES)
    event(k, 0)
    l = k.new('cf')
    k("s_cmp_eq_u32 s2, 255"); k(f"s_cbranch_scc0 {k.ref(l)}")
    k("v_lshlrev_b32 v5, 4, v0")
    for r in range(4): k(f"v_mov_b32 v{8+r}, -1")
    k(f"s_mov_b32 s24, {WS_FLG}")
    for i in range(FLG_BYTES // 4096):
        k(f"buffer_store_dwordx4 v[8:11], v5, s[8:11], s24 offen sc1")
        k("s_add_u32 s24, s24, 4096")
    k.lab(l)
    k("s_mov_b32 s46, 64"); k("s_mov_b32 s47, 32"); k("s_mov_b32 s50, 0")
    k("s_lshl_b32 s48, s45, 1"); k("s_mov_b32 s49, 1"); k("s_mov_b32 s40, 2")
    k.lab('k1_entry')
    A.role_K1(k, H, wq=98, l2pf=bool(CFG['l2pf']), xmod=CFG['k1xmod'])
    event(k, 4)
    if CFG['k3w']:
        l = k.new('k3w')
        k("s_cmp_eq_u32 s92, 0"); k(f"s_cbranch_scc1 {k.ref(l)}")
        k("s_cmp_eq_u32 s2, 247"); k(f"s_cbranch_scc1 {k.ref('end')}")
        k(f"s_branch {k.ref('helper')}")
        k.lab(l)
    else:
        k("s_cmp_eq_u32 s92, 0"); k(f"s_cbranch_scc0 {k.ref('end')}")
    k("s_cmp_ge_u32 s2, 232"); k(f"s_cbranch_scc1 {k.ref('helper')}")
    k("s_cmp_ge_u32 s2, 200"); k(f"s_cbranch_scc1 {k.ref('toO')}")
    k("s_cmp_ge_u32 s2, 104"); k(f"s_cbranch_scc1 {k.ref('toP')}")
    k("s_cmp_ge_u32 s2, 64"); k(f"s_cbranch_scc1 {k.ref('toR')}")
    k("s_cmp_ge_u32 s2, 32"); k(f"s_cbranch_scc1 {k.ref('toV')}")
    k(f"s_branch {k.ref('roleS')}")
    for nm in 'VRPO':
        k.lab('to' + nm); k(f"s_branch {k.ref('role' + nm)}")
    k.lab('helper')
    k("s_sub_u32 s24, s2, 232")
    k("s_cmp_ge_u32 s24, 21"); k(f"s_cbranch_scc1 {k.ref('helper_clr')}")
    k("s_cmp_eq_u32 s24, 15"); k(f"s_cbranch_scc1 {k.ref('helper_k1')}")
    k("s_mul_i32 s57, s24, 52"); k("s_lshr_b32 s57, s57, 8"); k("s_mul_i32 s56, s57, 5"); k("s_sub_u32 s56, s24, s56")
    k("s_add_u32 s57, s57, 1")
    k("s_sub_u32 s25, s24, 16"); k("s_cmp_ge_u32 s24, 16"); k("s_cselect_b32 s56, s25, s56"); k("s_cselect_b32 s57, 0, s57")
    k("s_mul_i32 s78, s57, 5"); k("s_add_u32 s78, s78, s56")
    A.k3_stage(k)
    if CFG['k3w']:
        k("s_cmp_eq_u32 s92, 1"); k(f"s_cbranch_scc1 {k.ref('k3_l1')}")
    k.ptr(KA_AX, 6); k("s_waitcnt lgkmcnt(0)"); k.srd(16, 6, A.XF_BYTES)
    k("s_mov_b32 s46, 64"); k("s_mov_b32 s47, 32"); k("s_mov_b32 s50, 0"); k(f"s_mov_b32 s58, {A.WS_XF1}")
    k("s_mov_b32 s76, 16"); k("s_mov_b32 s77, 163840")
    k.lab('k3_entry')
    A.role_K3(k, H)
    event(k, 6)
    k("s_cmp_eq_u32 s92, 0"); k(f"s_cbranch_scc0 {k.ref('end')}")
    k("s_mov_b32 s92, 1")
    k("s_cmp_lt_u32 s2, 248"); k(f"s_cbranch_scc1 {k.ref('helper_k1')}")
    k.lab('k3_l1')
    k.srd(16, 4, A.XF_BYTES, A.WS_XF2)
    k("s_mov_b32 s46, 1024"); k("s_mov_b32 s47, 8"); k("s_mov_b32 s50, 1"); k(f"s_mov_b32 s58, {A.WS_XF3}")
    if CFG['k3w']: k("s_mov_b32 s76, 16"); k("s_mov_b32 s77, 163840")
    else: k("s_mov_b32 s76, 64"); k("s_mov_b32 s77, 40960")
    k(f"s_branch {k.ref('k3_entry')}")
    k.lab('helper_k1')
    k("s_mov_b32 s92, 1")
    k("s_sub_u32 s24, s2, 232")
    k.srd(16, 4, A.XF_BYTES, A.WS_XF2)
    k("s_mov_b32 s46, 1024"); k("s_mov_b32 s47, 8"); k("s_mov_b32 s50, 1")
    k("s_and_b32 s44, s24, 7"); k("s_lshr_b32 s45, s24, 3")
    k("s_mov_b32 s48, s45"); k("s_mov_b32 s49, 2"); k("s_mov_b32 s40, 32")
    k(f"s_branch {k.ref('k1_entry')}")
    k.lab('helper_clr')
    if CFG['pol_late']:
        l = k.new('pl'); l2 = k.new('pl')
        k("s_cmp_eq_u32 s2, 255"); k(f"s_cbranch_scc0 {k.ref(l)}")
        pol_probe(k)
        pol_publish(k, l2, 4)
        k.lab(l)
        pol_get(k, 14)
    role_clear(k)
    event(k, 6)
    k(f"s_branch {k.ref('end')}")
    k.lab('roleS'); role_S2(k)
    k.lab('roleV'); role_V2(k)
    k.lab('roleR'); role_R(k)
    k.lab('roleP'); role_P(k)
    k.lab('roleO'); role_O(k)
    k.lab('end')
    head = ["; generated by gen6.py (my own hand-written generator); kernarg: 13 pointers",
            f"; @launch kernel={k.name} grid=(256,1,1) block=(256,1,1) lds=135168",
            '.amdgcn_target "amdgcn-amd-amdhsa--gfx950"']
    return "\n".join(head) + "\n" + k.text() + "\n"

CFG.setdefault('xpre', 0); CFG.setdefault('k1at', 1); CFG.setdefault('r_at', 1); CFG.setdefault('r_ahead', 1); CFG.setdefault('r64', 0); CFG.setdefault('smpk', 1); CFG.setdefault('pol_late', 0); CFG.setdefault('xph', 0); CFG.setdefault('s_pre', 0); CFG.setdefault('r_pre', 1); CFG.setdefault('k3w', 1); CFG.setdefault('o_ovl', 1); CFG.setdefault('p_ovl', 1); CFG.setdefault('p_ovl_j', 4); CFG.setdefault('xlag_e', 8); CFG.setdefault('xe0', 56); CFG.setdefault('pol', -1); CFG.setdefault('npol', 3); CFG.setdefault('xmap', 1); CFG.setdefault('l2pf', 1); CFG.setdefault('k1xmod', ''); CFG.setdefault('pf', 0); CFG.setdefault('p_adapt', 1); CFG.setdefault('o_adapt', 1); CFG.setdefault('xflag', 1); CFG.setdefault('sl_xc', 16); CFG.setdefault('k1_pre', 1); CFG.setdefault('dly_hr', 4); CFG.setdefault('hr_wave', 3); CFG.setdefault('s2', 1); CFG.setdefault('v2', 1); CFG.setdefault('v_x8', 4); CFG.setdefault('v_x9', 4); CFG.setdefault('tgt_m', 9); CFG.setdefault('tgt_p', 7); CFG.setdefault('kx_pos', 0); CFG.setdefault('px_pos', 1); CFG.setdefault('x_off', 0); CFG.setdefault('o_off', 0); CFG.setdefault('p_off', 0); CFG.setdefault('rv_off', 0); CFG.setdefault('noclr', 0); CFG.setdefault('pstat', 1); CFG.setdefault('p_nx', 1); CFG.setdefault('p_wr', 1); CFG.setdefault('px_mod', ''); CFG.setdefault('p_ns', 2); CFG.setdefault('spin', SPIN_MAX); CFG.setdefault('xlag', 8); CFG.setdefault('clr_mod', 'sc1')
if __name__ == "__main__":
    out = "z.s"
    for a in sys.argv[1:]:
        if a == "stamp": CFG['stamp'] = True
        elif a.endswith(".s"): out = a
        elif "=" in a:
            kk, v = a.split("=")
            try: CFG[kk] = int(v)
            except ValueError: CFG[kk] = v.replace('+', ' ')
    open(out, "w").write(build())
    print("written", out)
```

```python
import sys, struct
from asmlib import K, magic

NAME = "interleave_layers__linear_attn_block__memory_aug_recurrent_mem_tr__prompt"
S, D = 2048, 640
KA_AX, KA_WQKV, KA_WOA, KA_BX, KA_MEM0, KA_WQ, KA_WK, KA_WV, KA_WO, KA_SEG, KA_OUT, KA_DBG, KA_WS = range(13)
WS_BYTES = 268435456
OOB = 0x7ff00000
LOG2E = 1.4426950408889634
def hexf(x): return "0x%08x" % struct.unpack("<I", struct.pack("<f", x))[0]

WS_XF1, WS_XF2, WS_XF3 = 0x00000000, 0x00400000, 0x00800000
XF_BYTES = S * D * 2
WS_PQF  = 0x00C00000
WS_PART = 0x01000000
PART_GRP = 18 * 1024
PART_REP = 8 * PART_GRP
WS_BDF  = 0x01500000
BDF_LAYER = 0x20000

class LG:
    def __init__(self, k): self.k = k; self.q = []
    def issue(self, tag, text):
        self.k(text); self.q.append(tag)
    def wait(self, tag):
        if tag not in self.q: return
        idx = max(i for i, t in enumerate(self.q) if t == tag)
        n = len(self.q) - 1 - idx
        assert n <= 15, n
        self.k(f"s_waitcnt lgkmcnt({n})")
        self.q = self.q[idx + 1:]
    def all(self):
        self.k("s_waitcnt lgkmcnt(0)"); self.q = []

def lookup(k, dst, idx, table):
    k(f"s_mov_b32 {dst}, {table[0]}")
    for i, v in enumerate(table[1:], 1):
        if v == table[0]: continue
        k(f"s_cmp_eq_u32 {idx}, {i}")
        k(f"s_cselect_b32 {dst}, {v}, {dst}")

def divmod_const(k, q, r, x, d, maxn, stmp):
    m, sh = magic(d, maxn)
    k(f"s_mov_b32 s{stmp}, {m}")
    k(f"v_mul_lo_u32 v{q}, v{x}, s{stmp}")
    k(f"v_lshrrev_b32 v{q}, {sh}, v{q}")
    k(f"v_mul_u32_u24 v{r}, {d}, v{q}")
    k(f"v_sub_u32 v{r}, v{x}, v{r}")

def row_stats_partial(k, X, n, S1, S2, ones, t):
    k(f"v_mov_b32 v{S1}, 0"); k(f"v_mov_b32 v{S2}, 0"); k(f"v_mov_b32 v{t}, 0"); k(f"v_mov_b32 v{t+1}, 0")
    for i in range(0, n, 2):
        k(f"v_dot2c_f32_bf16 v{S1}, v{X+i}, v{ones}")
        k(f"v_dot2c_f32_bf16 v{S2}, v{X+i}, v{X+i}")
        k(f"v_dot2c_f32_bf16 v{t}, v{X+i+1}, v{ones}")
        k(f"v_dot2c_f32_bf16 v{t+1}, v{X+i+1}, v{X+i+1}")
    k(f"v_add_f32 v{S1}, v{S1}, v{t}")
    k(f"v_add_f32 v{S2}, v{S2}, v{t+1}")
    for sw in ("v_permlane16_swap_b32", "v_permlane32_swap_b32"):
        k(f"v_mov_b32 v{t}, v{S1}"); k(f"v_mov_b32 v{t+1}, v{S2}")
        k(f"{sw} v{S1}, v{t}"); k(f"{sw} v{S2}, v{t+1}")
        k(f"v_add_f32 v{S1}, v{S1}, v{t}"); k(f"v_add_f32 v{S2}, v{S2}, v{t+1}")

def row_stats_final(k, P, dst):
    k(f"v_add_f32 v{P}, v{P}, v{P+2}")
    k(f"v_add_f32 v{P+1}, v{P+1}, v{P+3}")
    k(f"v_mul_f32 v{P}, {hexf(1.0/D)}, v{P}")
    k(f"v_mul_f32 v{P+2}, v{P}, v{P}")
    k(f"v_mov_b32 v{P+3}, {hexf(1.0/D)}")
    k(f"v_fma_f32 v{P+1}, v{P+1}, v{P+3}, -v{P+2}")
    k(f"v_max_f32 v{P+1}, 0, v{P+1}")
    k(f"v_add_f32 v{P+1}, {hexf(1e-5)}, v{P+1}")
    k(f"v_rsq_f32 v{dst}, v{P+1}")
    k(f"v_mul_f32 v{dst+1}, v{P}, v{dst}")
    k(f"v_sub_f32 v{dst+1}, 0, v{dst+1}")

def ln_fold(k, a, cs, st, t):
    for h in (0, 2):
        k(f"v_pk_mul_f32 v[{t+h}:{t+h+1}], v[{cs+h}:{cs+h+1}], v[{st}:{st+1}] op_sel:[0,1] op_sel_hi:[1,1]")
    for h in (0, 2):
        k(f"v_pk_fma_f32 v[{a+h}:{a+h+1}], v[{a+h}:{a+h+1}], v[{st}:{st+1}], v[{t+h}:{t+h+1}] op_sel:[0,0,0] op_sel_hi:[1,0,1]")

STAMP = False
WS_TRACE = 0x01800000
def stamp(k, i):
    if STAMP: k(f"s_memrealtime s[{64+2*i}:{65+2*i}]")
def stamp_out(k, n, base=0):
    if not STAMP: return
    k("s_waitcnt lgkmcnt(0)")
    k("s_lshl_b32 s24, s2, 2"); k("s_add_u32 s24, s24, s3"); k("s_lshl_b32 s24, s24, 6"); k(f"s_add_u32 s24, s24, {WS_TRACE + base}")
    k(f"v_mov_b32 v14, {OOB}"); k("v_cmp_eq_u32 vcc, 0, v1"); k("v_cndmask_b32 v14, v14, 0, vcc")
    for i in range(n):
        k(f"v_mov_b32 v15, s{64+2*i}")
        k(f"buffer_store_dword v15, v14, s[8:11], s24 offen offset:{4*i}")

class NoHooks:
    def ev(self, k, i, t=14): pass
    def k1_wait_x(self, k): pass
    def k1_early(self, k): pass
    def k1_prefetch(self, k): return 0
    def tr(self, k, slot): pass
    def k1_flag_issue(self, k, n): pass
    def k1_flag_check(self, k, skip): k(f"s_branch {k.ref(skip)}")
    def k1_first_barrier(self, k): pass
    def k1_after_weights(self, k): pass
    def k1_ready_issue(self, k): pass
    def k1_ready_check(self, k): pass
    def k1_publish(self, k): pass
    def k2_wait(self, k): pass
    def k2_publish(self, k): pass
    def k3_wait0(self, k): pass
    def k3_wait(self, k): pass
    def k3_publish(self, k, last): pass

def role_K1(k, H, wq=None, l2pf=False, xmod='sc1'):
    RSW, L_W, WBUF = 544, 40960, 64 * 544
    L_KV, RSK, L_PS = 40960, 336, 40960 + 32 * 336
    XPRE, RING, ACC, KVA, CS, ST, TMP, ONE, W3 = 16, 56, 88, 120, 156, 144, 148, 172, 176
    DAT, GO, LO, TA = 56, 152, 153, 12
    def wreg(slot, j, lo=0, n=4):
        if slot < 3: r = (slot * 20 + j) * 4 + lo; return f"a[{r}:{r+n-1}]"
        r = W3 + j * 4 + lo; return f"v[{r}:{r+n-1}]"
    stamp(k, 0)
    if wq is None: k.ptr(KA_WQKV, 6)
    k("v_and_b32 v7, 31, v0"); k("v_lshrrev_b32 v8, 5, v0")
    k(f"v_mul_u32_u24 v{GO}, 3840, v8")
    k("v_lshlrev_b32 v9, 4, v7")
    k(f"v_add_u32 v{GO}, v{GO}, v9")
    k("v_cmp_le_u32 vcc, 10, v7"); k("v_cndmask_b32 v10, 0, 1, vcc")
    k("v_cmp_le_u32 vcc, 20, v7"); k("v_cndmask_b32 v11, 0, 1, vcc")
    k("v_add_u32 v10, v10, v11")
    k("v_mul_u32_u24 v10, 1120, v10")
    k(f"v_add_u32 v{GO}, v{GO}, v10")
    k(f"v_mov_b32 v10, {OOB}"); k("v_cmp_le_u32 vcc, 30, v7"); k(f"v_cndmask_b32 v{GO}, v{GO}, v10, vcc")
    k(f"v_mul_u32_u24 v{LO}, {RSW}, v8"); k(f"v_add_u32 v{LO}, v{LO}, v9"); k(f"v_add_u32 v{LO}, {L_W}, v{LO}")
    if wq is None:
        k("s_waitcnt lgkmcnt(0)")
        k.srd(12, 6, D * 1920 * 2)
    else:
        k.srd(12, wq, D * 1920 * 2)
    k("s_mul_i32 s52, s44, 160")
    if l2pf:
        k("v_lshrrev_b32 v10, 2, v0"); k("v_mul_u32_u24 v10, 3840, v10")
        k("v_and_b32 v11, 3, v0"); k("v_lshlrev_b32 v11, 6, v11"); k("v_min_u32 v11, 156, v11"); k("v_add_u32 v10, v10, v11")
        k("s_mul_i32 s24, s45, 205"); k("s_lshr_b32 s24, s24, 11"); k("s_mul_i32 s24, s24, 10"); k("s_sub_u32 s24, s45, s24")
        k(f"s_mul_i32 s24, s24, {64 * 3840}"); k("s_add_u32 s24, s24, s52")
        for p in range(3):
            k("buffer_load_dword a254, v10, s[12:15], s24 offen")
            if p < 2: k("s_add_u32 s24, s24, 1280")
    def wloads(c):
        d = DAT + 32 * (c % 3)
        k(f"s_add_u32 s24, s52, {c * 64 * 3840}")
        for i in range(8):
            k(f"buffer_load_dwordx4 v[{d+4*i}:{d+4*i+3}], v{GO}, s[12:15], s24 offen")
            if i < 7: k("s_add_u32 s24, s24, 30720")
    for c in range(3): wloads(c)
    k("s_lshr_b32 s24, s3, 1"); k("s_mul_i32 s24, s24, 20480")
    k("s_and_b32 s25, s3, 1"); k("s_mul_i32 s25, s25, 10"); k("s_mul_i32 s25, s25, s46"); k("s_add_u32 s24, s24, s25")
    k("s_cmp_eq_u32 s50, 1"); k("s_cselect_b32 s25, 16, 1280"); k("s_cselect_b32 s26, 256, 8")
    k("v_mul_u32_u24 v4, s25, v2"); k("v_mul_u32_u24 v5, s26, v3")
    k("v_add3_u32 v4, v4, v5, s24")
    k("v_add_u32 v5, s47, v4")
    k("s_mul_i32 s43, s48, 40960")
    k("s_mul_i32 s42, s49, 40960")
    def xloads(oob=False):
        k("s_mov_b32 s24, s41")
        for i in range(10):
            k(f"buffer_load_dwordx2 v[{XPRE+4*i}:{XPRE+4*i+1}], v4, s[16:19], s24 offen {xmod}")
            k(f"buffer_load_dwordx2 v[{XPRE+4*i+2}:{XPRE+4*i+3}], v5, s[16:19], s24 offen {xmod}")
            if i < 9: k("s_add_u32 s24, s24, s46")
    def xloads4():
        k("s_mov_b32 s24, s41")
        for i in range(10):
            k(f"buffer_load_dwordx4 v[{XPRE+4*i}:{XPRE+4*i+3}], v4, s[16:19], s24 offen sc1")
            if i < 9: k("s_add_u32 s24, s24, s46")
    k("s_cmp_eq_u32 s92, 0"); k("s_cselect_b32 s51, 1, 0"); k(f"s_cselect_b32 s41, s43, {OOB}")
    xloads()
    k("v_lshrrev_b32 v6, 2, v2"); k("v_lshl_add_u32 v6, v3, 2, v6")
    k(f"v_mul_u32_u24 v6, {RSW}, v6")
    k("v_and_b32 v7, 3, v2"); k("v_lshl_add_u32 v6, v7, 3, v6")
    k(f"v_add_u32 v6, {L_W}, v6")
    col = [[0, 64, 128, 224], [32, 96, 160, 256], [320, 384, 192, 288], [352, 416, 448, 288]]
    for s_ in range(4):
        lookup(k, 's24', 's3', col[s_]); k(f"v_add_u32 v{TA+s_}, s24, v6")
    H.k1_early(k)
    stamp(k, 1)
    for r in range(4): k(f"v_mov_b32 v{ONE+r}, 0x3f803f80")
    def cs_mfma(c):
        for jj in range(2):
            j = 2 * c + jj
            for s_ in range(4):
                cc = f"v[{CS+4*s_}:{CS+4*s_+3}]"
                k(f"v_mfma_f32_16x16x32_bf16 {cc}, {wreg(s_, j)}, v[{ONE}:{ONE+3}], {cc if j else 0}")
    npf = 0
    for c in range(10):
        d = DAT + 32 * (c % 3)
        k(f"s_waitcnt vmcnt({(36 if c < 3 else 16 if c < 8 else (8 if c == 8 else 0)) + npf})")
        if c in (0, 1, 3, 6): H.ev(k, {0: 8, 1: 9, 3: 10, 6: 11}[c], 154)
        for i in range(8): k(f"ds_write_b128 v{LO}, v[{d+4*i}:{d+4*i+3}] offset:{(c%2)*WBUF + i*8*RSW}")
        k("s_waitcnt lgkmcnt(0)")
        if c + 3 < 10: wloads(c + 3)
        if c == 6: npf = H.k1_prefetch(k)
        if c > 0: cs_mfma(c - 1)
        k("s_barrier")
        if c == 0: H.k1_first_barrier(k)
        for s_ in range(4):
            for jj in range(2):
                for hf in range(2):
                    k(f"ds_read_b64_tr_b16 {wreg(s_, 2*c+jj, 2*hf, 2)}, v{TA+s_} offset:{(c%2)*WBUF + (32*jj + 16*hf)*RSW}")
    stamp(k, 2)
    H.ev(k, 12)
    H.k1_after_weights(k)
    k("v_lshlrev_b32 v7, 4, v1")
    k("s_lshr_b32 s24, s3, 1"); k("s_mul_i32 s24, s24, 20"); k("s_and_b32 s25, s3, 1"); k("s_mul_i32 s25, s25, 10")
    k("s_add_u32 s24, s24, s25"); k("s_lshl_b32 s24, s24, 10")
    k("v_add_u32 v6, s24, v7")
    k("s_lshr_b32 s24, s3, 1"); k("s_lshl_b32 s24, s24, 8"); k("s_and_b32 s25, s3, 1"); k("s_lshl_b32 s25, s25, 3")
    k("s_add_u32 s24, s24, s25"); k(f"s_add_u32 s24, s24, {L_PS}")
    k("v_lshlrev_b32 v9, 4, v2")
    k("v_add_u32 v8, s24, v9")
    k(f"v_add_u32 v9, {L_PS}, v9")
    k(f"v_mul_u32_u24 v10, {RSK}, v2"); k("v_lshl_add_u32 v10, v3, 3, v10"); k(f"v_add_u32 v10, {L_KV}, v10")
    k("v_lshrrev_b32 v11, 2, v2"); k("v_lshl_add_u32 v11, v3, 3, v11"); k(f"v_mul_u32_u24 v11, {RSK}, v11")
    k("v_and_b32 v15, 3, v2"); k("v_lshl_add_u32 v11, v15, 3, v11")
    k("s_lshl_b32 s24, s3, 5"); k(f"s_add_u32 s24, s24, {L_KV}")
    k("v_add_u32 v11, s24, v11")
    k("s_lshl_b32 s24, s3, 10")
    k("v_add_u32 v12, s24, v7")
    k("v_lshlrev_b32 v15, 3, v1"); k("v_add_u32 v15, 2048, v15")
    k("s_cmp_eq_u32 s3, 2"); k("s_cselect_b64 vcc, -1, 0")
    k("v_cndmask_b32 v12, v12, v15, vcc")
    k("s_mul_i32 s24, s44, 2560"); k(f"s_add_u32 s24, s24, {WS_PQF}")
    k("v_add_u32 v12, s24, v12")
    k(f"s_mov_b32 s52, {hexf(LOG2E)}"); k("s_mov_b32 s53, s52")
    k(f"s_mov_b32 s54, {hexf(1e-6)}"); k("s_mov_b32 s55, s54")
    for r in range(24): k(f"v_mov_b32 v{KVA+r}, 0")
    k("s_waitcnt lgkmcnt(0)")
    cs_mfma(9)
    k("s_mov_b32 s56, 1")
    stamp(k, 3)
    if getattr(H, 'k1_nodrain', 0): k("s_mov_b32 s29, 0")
    k.lab('k1_seg')
    stamp(k, 7)
    H.tr(k, 0)
    l1 = k.new('k1')
    k("s_cmp_eq_u32 s51, 1"); k(f"s_cbranch_scc1 {k.ref(l1)}")
    H.k1_wait_x(k)
    k("s_mov_b32 s41, s43"); xloads4()
    H.k1_flag_issue(k, 1)
    k.lab(l1)
    H.tr(k, 1)
    lw = k.new('k1w')
    k("s_cmp_eq_u32 s92, 0"); k("s_cselect_b32 s24, s56, 0"); k("s_cmp_eq_u32 s24, 1"); k(f"s_cbranch_scc1 {k.ref(lw)}")
    if getattr(H, 'k1_nodrain', 0):
        la = k.new('k1a')
        k("s_cmp_eq_u32 s51, 1"); k("s_cselect_b32 s24, s29, 0"); k("s_cmp_eq_u32 s3, 3"); k("s_cselect_b32 s24, 0, s24")
        k("s_cmp_eq_u32 s24, 1"); k(f"s_cbranch_scc0 {k.ref(la)}")
        k("s_waitcnt vmcnt(2)"); k(f"s_branch {k.ref(lw)}")
        k.lab(la)
    k("s_waitcnt vmcnt(0)")
    k.lab(lw)
    k("s_mov_b32 s56, 0")
    H.tr(k, 2)
    row_stats_partial(k, XPRE, 40, TMP, TMP + 1, ONE, TMP + 2)
    for i in range(10): k(f"ds_write_b128 v6, v[{XPRE+4*i}:{XPRE+4*i+3}] offset:{i*1024}")
    k(f"ds_write_b64 v8, v[{TMP}:{TMP+1}]")
    k("s_mov_b32 s51, 0")
    k("s_waitcnt lgkmcnt(0)")
    l2 = k.new('k1'); l3 = k.new('k1')
    k("s_cmp_gt_u32 s40, 1"); k(f"s_cbranch_scc0 {k.ref(l2)}")
    k("s_cmp_eq_u32 s92, 0"); k(f"s_cbranch_scc1 {k.ref(l3)}")
    H.k1_flag_check(k, l2)
    k("s_add_u32 s41, s43, s42"); xloads4(); k("s_mov_b32 s51, 1")
    H.k1_flag_issue(k, 2)
    k(f"s_branch {k.ref(l2)}")
    k.lab(l3)
    k("s_add_u32 s41, s43, s42"); xloads(); k("s_mov_b32 s51, 1")
    k.lab(l2)
    k("s_barrier")
    stamp(k, 8)
    H.tr(k, 3)
    lg = LG(k)
    lg.issue('ps', f"ds_read_b128 v[{TMP}:{TMP+3}], v9")
    lg.issue('ps', f"ds_read_b128 v[{TMP+4}:{TMP+7}], v9 offset:256")
    def rd(j):
        for tt in range(2):
            r = RING + ((j % 4) * 2 + tt) * 4
            lg.issue(j, f"ds_read_b128 v[{r}:{r+3}], v7 offset:{tt*20480 + j*1024}")
    rd(0); rd(1); rd(2)
    lg.wait('ps')
    row_stats_final(k, TMP, ST)
    row_stats_final(k, TMP + 4, ST + 2)
    acc = lambda s_, tt: ACC + (s_ * 2 + tt) * 4
    for j in range(20):
        if j + 3 < 20: rd(j + 3)
        lg.wait(j)
        for tt in range(2):
            r = RING + ((j % 4) * 2 + tt) * 4
            for s_ in range(4):
                a = acc(s_, tt)
                k(f"v_mfma_f32_16x16x32_bf16 v[{a}:{a+3}], {wreg(s_, j)}, v[{r}:{r+3}], " + (f"v[{a}:{a+3}]" if j else "0"))
    stamp(k, 9)
    H.tr(k, 4)
    for s_ in range(4):
        for tt in range(2): ln_fold(k, acc(s_, tt), CS + 4 * s_, ST + 2 * tt, TMP)
    def phi(a):
        for h in (0, 2):
            t = TMP + h
            k(f"v_min_f32 v{t}, 0, v{a+h}"); k(f"v_min_f32 v{t+1}, 0, v{a+h+1}")
            k(f"v_pk_mul_f32 v[{t}:{t+1}], v[{t}:{t+1}], s[52:53]")
        for h in range(4): k(f"v_exp_f32 v{TMP+h}, v{TMP+h}")
        for h in range(4): k(f"v_max_f32 v{a+h}, 0, v{a+h}")
        for h in (0, 2): k(f"v_pk_add_f32 v[{a+h}:{a+h+1}], v[{a+h}:{a+h+1}], v[{TMP+h}:{TMP+h+1}]")
        for h in (0, 2): k(f"v_pk_add_f32 v[{a+h}:{a+h+1}], v[{a+h}:{a+h+1}], s[54:55]")
    O = RING
    def pack(a, o):
        k(f"v_cvt_pk_bf16_f32 v{o}, v{a}, v{a+1}"); k(f"v_cvt_pk_bf16_f32 v{o+1}, v{a+2}, v{a+3}")
    def to_lds(s_, off, addr, o):
        for tt in range(2):
            pack(acc(s_, tt), o + 2 * tt)
            k(f"ds_write_b64 v{addr}, v[{o+2*tt}:{o+2*tt+1}] offset:{tt*16*RSK + off}")
    k("s_add_u32 s25, s43, 20480")
    k("s_cmp_ge_u32 s3, 2"); k(f"s_cbranch_scc1 {k.ref('k1_e2')}")
    k("s_lshl_b32 s24, s3, 6"); k("v_add_u32 v15, s24, v10")
    to_lds(2, 160, 15, O + 8); to_lds(3, 192, 15, O + 12)
    for tt in range(2):
        phi(acc(0, tt)); phi(acc(1, tt))
        pack(acc(0, tt), O + 4 * tt); pack(acc(1, tt), O + 4 * tt + 2)
        k(f"buffer_store_dwordx4 v[{O+4*tt}:{O+4*tt+3}], v12, s[8:11], {'s25' if tt else 's43'} offen sc1")
    k(f"s_branch {k.ref('k1_ej')}")
    k.lab('k1_e2')
    k("s_cmp_eq_u32 s3, 3"); k(f"s_cbranch_scc1 {k.ref('k1_e3')}")
    to_lds(3, 160 + 128, 10, O + 12)
    for tt in range(2): phi(acc(1, tt)); phi(acc(2, tt))
    to_lds(1, 0, 10, O + 4); to_lds(2, 32, 10, O + 8)
    for tt in range(2):
        phi(acc(0, tt)); pack(acc(0, tt), O + 2 * tt)
        k(f"buffer_store_dwordx2 v[{O+2*tt}:{O+2*tt+1}], v12, s[8:11], {'s25' if tt else 's43'} offen sc1")
    k(f"s_branch {k.ref('k1_ej')}")
    k.lab('k1_e3')
    for s_ in range(3):
        for tt in range(2): phi(acc(s_, tt))
        to_lds(s_, 64 + 32 * s_, 10, O + 4 * s_)
    k.lab('k1_ej')
    stamp(k, 10)
    k("s_waitcnt lgkmcnt(0)")
    k("s_barrier")
    stamp(k, 4)
    H.tr(k, 5)
    KF = RING + 16
    for i, off in enumerate((0, 32, 160, 192)):
        k(f"ds_read_b64_tr_b16 v[{KF+4*i}:{KF+4*i+1}], v11 offset:{off}")
        k(f"ds_read_b64_tr_b16 v[{KF+4*i+2}:{KF+4*i+3}], v11 offset:{off + 4*RSK}")
    k("s_waitcnt lgkmcnt(0)")
    k0, k1, v0_, v1_ = KF, KF + 4, KF + 8, KF + 12
    for i, (a, b) in enumerate(((k0, v1_), (k1, v0_), (k1, v1_), (k1, ONE), (k0, v0_), (k0, ONE))):
        c = f"v[{KVA+4*i}:{KVA+4*i+3}]"
        k(f"v_mfma_f32_16x16x32_bf16 {c}, v[{a}:{a+3}], v[{b}:{b+3}], {c}")
    k("s_add_u32 s43, s43, s42"); k("s_add_u32 s48, s48, s49")
    H.ev(k, 13)
    if getattr(H, 'k1_nodrain', 0): k("s_mov_b32 s29, 1")
    k("s_sub_u32 s40, s40, 1"); k("s_cmp_gt_u32 s40, 0")
    k(f"s_cbranch_scc1 {k.ref('k1_seg')}")
    stamp(k, 5)
    H.k1_ready_issue(k)
    k(f"s_mul_i32 s24, s45, {PART_REP}"); k(f"s_mul_i32 s25, s44, {PART_GRP}"); k("s_add_u32 s24, s24, s25"); k(f"s_add_u32 s24, s24, {WS_PART}")
    k("s_mul_i32 s25, s3, 3072"); k("s_add_u32 s25, s25, s24")
    k("s_lshl_b32 s26, s3, 10"); k("s_add_u32 s26, s26, s24"); k(f"s_add_u32 s26, s26, {13*1024}")
    k("s_cmp_eq_u32 s3, 0"); k(f"s_cselect_b32 s27, 0, {OOB}"); k("s_add_u32 s27, s27, s24"); k(f"s_add_u32 s28, s27, {17*1024}"); k(f"s_add_u32 s27, s27, {12*1024}")
    for i in range(3): k(f"buffer_store_dwordx4 v[{KVA+4*i}:{KVA+4*i+3}], v7, s[8:11], s25 offen offset:{i*1024} sc1")
    k(f"buffer_store_dwordx4 v[{KVA+12}:{KVA+15}], v7, s[8:11], s26 offen sc1")
    k(f"buffer_store_dwordx4 v[{KVA+16}:{KVA+19}], v7, s[8:11], s27 offen sc1")
    k(f"buffer_store_dwordx4 v[{KVA+20}:{KVA+23}], v7, s[8:11], s28 offen sc1")
    k("s_waitcnt vmcnt(0)")
    H.k1_ready_check(k)
    k("s_barrier")
    stamp(k, 6)
    stamp_out(k, 11)
    H.k1_publish(k)

K2_TILES = [[12, 1, 0, 2, 4, 3, 3], [5, 7, 6, 8, 10, 9, 11], [17, 13, 14, 15, 16, 16, 16]]
def _k2p(tlo, thi, alo, ahi, b0, b1, b2): return tlo | thi << 3 | alo << 6 | ahi << 9 | b0 << 12 | b1 << 19 | b2 << 24
N_ = 7
K2_PAR = [_k2p(0, 1, 0, 1, 0, 1, 4), _k2p(2, 3, 0, 1, 16, 1, 4), _k2p(4, 0, 2, N_, 16, 1, 4), _k2p(0, 5, N_, 1, 32, 1, 4),
          _k2p(0, 1, 2, 3, 32, 1, 4), _k2p(2, 3, 2, 3, 48, 1, 4), _k2p(4, 0, 4, N_, 48, 1, 4), _k2p(0, 5, N_, 3, 64, 1, 4), _k2p(6, 0, 4, N_, 64, 1, 4),
          _k2p(0, 1, 0, 1, 0, 16, 4), _k2p(2, 3, 2, 3, 0, 16, 4), _k2p(4, 0, 4, N_, 0, 16, 4), _k2p(0, 3, N_, 3, 60, 0, 0), _k2p(4, 0, 4, N_, 60, 0, 0)]
def role_K2(k, H, mid=None):
    ACC, LD, T = 16, 44, 160
    k("v_lshlrev_b32 v5, 4, v1")
    for i in range(7): lookup(k, f"s{64+i}", 's45', [K2_TILES[t][i] * 1024 for t in range(3)])
    H.ev(k, 8, 160)
    H.k2_wait(k)
    H.ev(k, 9, 160)
    dst = lambda q: ACC if q == 0 else LD + (q - 1) * 28
    for q in range(8):
        k(f"s_add_u32 s25, s3, {4*q}")
        k(f"s_mul_i32 s24, s25, {PART_REP}"); k(f"s_mul_i32 s26, s44, {PART_GRP}"); k("s_add_u32 s24, s24, s26"); k(f"s_add_u32 s24, s24, {WS_PART}")
        k("s_cmp_lt_u32 s25, s46"); k(f"s_cselect_b32 s24, s24, {OOB}")
        for i in range(7):
            k(f"s_add_u32 s26, s24, s{64+i}")
            k(f"buffer_load_dwordx4 v[{dst(q)+i*4}:{dst(q)+i*4+3}], v5, s[8:11], s26 offen sc1")
    for q in range(1, 8):
        k(f"s_waitcnt vmcnt({(7-q)*7})")
        for r in range(0, 28, 2):
            k(f"v_pk_add_f32 v[{ACC+r}:{ACC+r+1}], v[{ACC+r}:{ACC+r+1}], v[{dst(q)+r}:{dst(q)+r+1}]")
    H.ev(k, 10, 160)
    k("s_mul_i32 s24, s3, 7168"); k("v_add_u32 v6, s24, v5")
    for i in range(7): k(f"ds_write_b128 v6, v[{ACC+4*i}:{ACC+4*i+3}] offset:{i*1024}")
    k("s_waitcnt lgkmcnt(0)")
    k("s_barrier")
    lookup(k, 's41', 's45', [0, 4, 9]); lookup(k, 's42', 's45', [4, 5, 5])
    k(f"s_mul_i32 s43, s92, {BDF_LAYER}"); k(f"s_mul_i32 s24, s44, {14*1024}"); k("s_add_u32 s43, s43, s24"); k(f"s_add_u32 s43, s43, {WS_BDF}")
    k("v_and_b32 v7, 3, v2"); k("v_lshrrev_b32 v8, 2, v2")
    for rnd in range(2):
        l = k.new('k2f')
        k(f"s_add_u32 s40, s3, {4*rnd}")
        k("s_cmp_lt_u32 s40, s42"); k(f"s_cbranch_scc0 {k.ref(l)}")
        k("s_add_u32 s40, s40, s41")
        lookup(k, 's47', 's40', K2_PAR)
        k("s_bfe_u32 s24, s47, 0x7000c"); k("s_bfe_u32 s25, s47, 0x50013"); k("s_bfe_u32 s26, s47, 0x30018")
        k("v_mul_u32_u24 v9, s25, v7"); k("v_mul_u32_u24 v10, s26, v8"); k("v_add3_u32 v9, v9, v10, s24")
        k("v_mul_u32_u24 v9, 205, v9"); k("v_lshrrev_b32 v9, 12, v9")
        for hf in range(2):
            k(f"s_bfe_u32 s24, s47, {0x30000 + 3*hf}")
            k("s_lshl_b32 s24, s24, 10")
            k("v_add_u32 v10, s24, v5")
            for w in range(4): k(f"ds_read_b128 v[{T+4*w}:{T+4*w+3}], v10 offset:{w*7168}")
            k(f"s_bfe_u32 s25, s47, {0x30006 + 3*hf}")
            k("s_lshl_b32 s25, s25, 4")
            k("v_lshl_add_u32 v11, v3, 2, s25")
            k("v_mul_u32_u24 v11, 205, v11"); k("v_lshrrev_b32 v11, 12, v11")
            k("v_cmp_eq_u32 vcc, v9, v11")
            k("s_waitcnt lgkmcnt(0)")
            for r in (0, 2):
                k(f"v_pk_add_f32 v[{T+r}:{T+r+1}], v[{T+r}:{T+r+1}], v[{T+4+r}:{T+4+r+1}]")
                k(f"v_pk_add_f32 v[{T+8+r}:{T+8+r+1}], v[{T+8+r}:{T+8+r+1}], v[{T+12+r}:{T+12+r+1}]")
            for r in (0, 2): k(f"v_pk_add_f32 v[{T+r}:{T+r+1}], v[{T+r}:{T+r+1}], v[{T+8+r}:{T+8+r+1}]")
            o = T + 16 + 2 * hf
            k(f"v_cvt_pk_bf16_f32 v{o}, v{T}, v{T+1}"); k(f"v_cvt_pk_bf16_f32 v{o+1}, v{T+2}, v{T+3}")
            k(f"v_cndmask_b32 v{o}, 0, v{o}, vcc"); k(f"v_cndmask_b32 v{o+1}, 0, v{o+1}, vcc")
        k("s_lshl_b32 s24, s40, 10"); k("s_add_u32 s24, s24, s43")
        k(f"buffer_store_dwordx4 v[{T+16}:{T+19}], v5, s[8:11], s24 offen sc1")
        k.lab(l)
    H.ev(k, 11, 160)
    k("s_waitcnt vmcnt(0)")
    k("s_barrier")
    H.k2_publish(k)

BD_OFF = [0, 4, 8, 12, 16, 20, 24, 26, 30, 32, 36, 40, 42, 46]
BD_N = [4, 4, 4, 4, 4, 4, 2, 4, 2, 4, 4, 2, 4, 2]
RSO = 288
def k3_wo_loads(k):
    k.ptr(KA_WOA, 6)
    k("v_lshrrev_b32 v12, 4, v0"); k("v_mul_u32_u24 v12, 1280, v12")
    k("v_and_b32 v13, 15, v0"); k("v_lshl_add_u32 v12, v13, 4, v12")
    k("s_waitcnt lgkmcnt(0)")
    k.srd(12, 6, D * D * 2)
    k("s_lshl_b32 s52, s56, 8")
    for c in range(10):
        for i in range(4):
            k(f"s_add_u32 s24, s52, {(c*64 + i*16) * 1280}")
            k(f"buffer_load_dwordx4 a[{16*c+4*i}:{16*c+4*i+3}], v12, s[12:15], s24 offen")
    return 40

def k3_stage(k):
    L_W, WBUF = 81920, 64 * RSO
    k3_wo_loads(k)
    k("v_lshrrev_b32 v6, 4, v0"); k(f"v_mul_u32_u24 v6, {RSO}, v6")
    k("v_and_b32 v7, 15, v0"); k("v_lshl_add_u32 v6, v7, 4, v6"); k(f"v_add_u32 v6, {L_W}, v6")
    k("v_lshrrev_b32 v7, 2, v2"); k("v_lshl_add_u32 v7, v3, 2, v7"); k(f"v_mul_u32_u24 v7, {RSO}, v7")
    k("v_and_b32 v8, 3, v2"); k("v_lshl_add_u32 v7, v8, 3, v7")
    k("s_lshl_b32 s24, s3, 6"); k(f"s_add_u32 s24, s24, {L_W}")
    k("v_add_u32 v7, s24, v7")
    for c in range(10):
        k(f"s_waitcnt vmcnt({36 - 4*c})")
        for i in range(4): k(f"ds_write_b128 v6, a[{16*c+4*i}:{16*c+4*i+3}] offset:{(c%2)*WBUF + i*16*RSO}")
        k("s_waitcnt lgkmcnt(0)")
        k("s_barrier")
        for jj in range(2):
            for i in range(2):
                for hf in range(2):
                    r = 16 * c + (jj * 2 + i) * 4 + 2 * hf
                    k(f"ds_read_b64_tr_b16 a[{r}:{r+1}], v7 offset:{(c%2)*WBUF + (32*jj + 16*hf)*RSO + 32*i}")
    k("s_waitcnt lgkmcnt(0)")

def role_K3(k, H):
    L_O = 0
    PQ, RES, BA, OFR, RING, OA = 16, 96, 112, 168, 208, 240
    wo = lambda i, J: (lambda r: f"a[{r}:{r+3}]")(16 * (J // 2) + ((J % 2) * 2 + i) * 4)
    k("v_lshlrev_b32 v5, 4, v1")
    k("s_mul_i32 s24, s3, 5120"); k(f"s_add_u32 s24, s24, {WS_PQF}")
    k("v_add_u32 v8, s24, v5")
    k("v_lshlrev_b32 v9, 3, v1"); k("s_add_u32 s24, s24, 2048"); k("v_add_u32 v9, s24, v9")
    k("s_cmp_eq_u32 s50, 1"); k("s_cselect_b32 s25, 16, 1280"); k("s_cselect_b32 s26, 256, 8")
    k("v_mul_u32_u24 v10, s25, v2"); k("v_mul_u32_u24 v11, s26, v3")
    k("s_lshl_b32 s24, s56, 2"); k("s_add_u32 s24, s24, s3")
    k("s_mul_i32 s25, s24, s46")
    k("v_add3_u32 v10, v10, v11, s25")
    k("v_add_u32 v11, s47, v10")
    k("s_lshl_b32 s24, s24, 10"); k("s_add_u32 s24, s24, s58")
    k("v_add_u32 v12, s24, v5")
    k("s_mul_i32 s24, s3, 5120"); k(f"s_add_u32 s24, s24, {L_O}")
    k("v_add_u32 v13, s24, v5")
    k(f"s_mov_b32 s54, {hexf(1e-6)}")
    k("s_mul_i32 s43, s57, 40960")
    k("s_mov_b32 s40, 0")
    k("s_mov_b32 s42, 0")
    def pq_loads(buf):
        b = PQ + 40 * buf
        k("s_add_u32 s25, s41, 20480")
        for tt in range(2):
            so = 's25' if tt else 's41'
            for gp in range(2):
                r = b + (tt * 2 + gp) * 10
                k(f"buffer_load_dwordx4 v[{r}:{r+3}], v8, s[8:11], {so} offen offset:{gp*2560} sc1")
                k(f"buffer_load_dwordx4 v[{r+4}:{r+7}], v8, s[8:11], {so} offen offset:{gp*2560+1024} sc1")
                k(f"buffer_load_dwordx2 v[{r+8}:{r+9}], v9, s[8:11], {so} offen offset:{gp*2560} sc1")
        for tt in range(2):
            so = 's25' if tt else 's41'
            r = RES + 8 * buf + 4 * tt
            k(f"buffer_load_dwordx2 v[{r}:{r+1}], v10, s[16:19], {so} offen sc1")
            k(f"buffer_load_dwordx2 v[{r+2}:{r+3}], v11, s[16:19], {so} offen sc1")
    bd = lambda gp, f: (lambda r: f"a[{r}:{r+BD_N[f]-1}]")(160 + gp * 48 + BD_OFF[f])
    def bd_stage(buf):
        b = PQ + 40 * buf
        for tt in range(2):
            sets = []
            for gp in range(2):
                r = b + (tt * 2 + gp) * 10
                k0, k1, k2 = f"v[{r}:{r+3}]", f"v[{r+4}:{r+7}]", f"v[{r+8}:{r+9}]"
                A = BA + 28 * gp
                t = lambda i: f"v[{A+4*i}:{A+4*i+3}]"
                M32 = "v_mfma_f32_16x16x32_bf16"; M16 = "v_mfma_f32_16x16x16_bf16"
                k(f"{M32} {t(5)}, {bd(gp,9)}, {k0}, 0");  k(f"{M32} {t(6)}, {bd(gp,12)}, {k1}, 0")
                k(f"{M32} {t(0)}, {bd(gp,0)}, {k0}, 0");  k(f"{M32} {t(1)}, {bd(gp,1)}, {k0}, 0"); k(f"{M32} {t(2)}, {bd(gp,3)}, {k0}, 0")
                k(f"{M32} {t(3)}, {bd(gp,5)}, {k1}, 0");  k(f"{M32} {t(4)}, {bd(gp,7)}, {k1}, 0")
                k(f"{M32} {t(5)}, {bd(gp,10)}, {k1}, {t(5)}")
                k(f"{M32} {t(1)}, {bd(gp,2)}, {k1}, {t(1)}"); k(f"{M32} {t(2)}, {bd(gp,4)}, {k1}, {t(2)}")
                k(f"{M16} {t(6)}, {bd(gp,13)}, {k2}, {t(6)}")
                k(f"{M16} {t(3)}, {bd(gp,6)}, {k2}, {t(3)}"); k(f"{M16} {t(4)}, {bd(gp,8)}, {k2}, {t(4)}")
                k(f"{M16} {t(5)}, {bd(gp,11)}, {k2}, {t(5)}")
            for gp in range(2):
                A = BA + 28 * gp
                for i in range(5): k(f"v_add_f32 v{A+20+i}, s54, v{A+20+i}")
                for i in range(5): k(f"v_rcp_f32 v{A+20+i}, v{A+20+i}")
                for i in range(5):
                    for h in range(4): k(f"v_mul_f32 v{A+4*i+h}, v{A+4*i+h}, v{A+20+i}")
                    o = OFR + tt * 20 + (gp * 5 + i) * 2
                    k(f"v_cvt_pk_bf16_f32 v{o}, v{A+4*i}, v{A+4*i+1}"); k(f"v_cvt_pk_bf16_f32 v{o+1}, v{A+4*i+2}, v{A+4*i+3}")
        k("v_add_u32 v14, s42, v13")
        for tt in range(2):
            for p in range(5):
                o = OFR + tt * 20 + 4 * p
                k(f"ds_write_b128 v14, v[{o}:{o+3}] offset:{tt*20480 + p*1024}")
    H.k3_wait0(k)
    k("s_mov_b32 s41, s43"); pq_loads(0)
    k("s_add_u32 s41, s43, s77"); pq_loads(1)
    H.k3_wait(k)
    H.ev(k, 7)
    k(f"s_mul_i32 s24, s92, {BDF_LAYER}"); k(f"s_mul_i32 s25, s3, {2*14*1024}"); k("s_add_u32 s24, s24, s25"); k(f"s_add_u32 s24, s24, {WS_BDF}")
    for gp in range(2):
        for f in range(14):
            r = 160 + gp * 48 + BD_OFF[f]
            k(f"s_add_u32 s25, s24, {(gp*14+f)*1024}")
            if BD_N[f] == 4: k(f"buffer_load_dwordx4 a[{r}:{r+3}], v5, s[8:11], s25 offen sc1")
            else: k(f"buffer_load_dwordx2 a[{r}:{r+1}], v5, s[8:11], s25 offen sc1")
    k("s_waitcnt vmcnt(0)")
    stamp(k, 2)
    H.ev(k, 14)
    bd_stage(0)
    k("s_waitcnt lgkmcnt(0)"); k("s_barrier")
    stamp(k, 3)
    k.lab('k3_seg')
    for par in range(2):
        if par == 0: stamp(k, 4)
        k("v_add_u32 v15, s42, v5")
        lg = LG(k)
        def rd(J):
            for tt in range(2):
                r = RING + ((J % 4) * 2 + tt) * 4
                lg.issue(J, f"ds_read_b128 v[{r}:{r+3}], v15 offset:{tt*20480 + J*1024}")
        rd(0); rd(1); rd(2)
        for J in range(20):
            if J + 3 < 20: rd(J + 3)
            lg.wait(J)
            for tt in range(2):
                r = RING + ((J % 4) * 2 + tt) * 4
                for i in range(2):
                    a = OA + (tt * 2 + i) * 4
                    k(f"v_mfma_f32_16x16x32_bf16 v[{a}:{a+3}], {wo(i, J)}, v[{r}:{r+3}], " + (f"v[{a}:{a+3}]" if J else "0"))
        if par == 0: stamp(k, 5)
        T = RING
        for tt in range(2):
            for i in range(2):
                a = OA + (tt * 2 + i) * 4; rr = RES + 8 * par + 4 * tt + 2 * i; o = T + 8 + 4 * tt + 2 * i
                k(f"v_cvt_pk_bf16_f32 v{T}, v{a}, v{a+1}"); k(f"v_cvt_pk_bf16_f32 v{T+1}, v{a+2}, v{a+3}")
                for h in range(2):
                    k(f"v_lshlrev_b32 v{T+2}, 16, v{T+h}"); k(f"v_and_b32 v{T+3}, 0xffff0000, v{T+h}")
                    k(f"v_lshlrev_b32 v{T+4}, 16, v{rr+h}"); k(f"v_and_b32 v{T+5}, 0xffff0000, v{rr+h}")
                    k(f"v_pk_add_f32 v[{T+2}:{T+3}], v[{T+2}:{T+3}], v[{T+4}:{T+5}]")
                    k(f"v_cvt_pk_bf16_f32 v{o+h}, v{T+2}, v{T+3}")
        k("s_add_u32 s25, s43, 20480")
        k(f"buffer_store_dwordx4 v[{T+8}:{T+11}], v12, s[8:11], s43 offen sc1")
        k(f"buffer_store_dwordx4 v[{T+12}:{T+15}], v12, s[8:11], s25 offen sc1")
        k("s_add_u32 s40, s40, 1")
        k("s_add_u32 s43, s43, s77")
        k("s_cmp_ge_u32 s40, s76"); k(f"s_cbranch_scc1 {k.ref('k3_done')}")
        if par == 0:
            lq = k.new('k3q')
            k("s_cmp_eq_u32 s40, 1"); k(f"s_cbranch_scc0 {k.ref(lq)}")
            k("s_waitcnt vmcnt(0)"); k("s_barrier")
            H.k3_publish(k, False)
            H.ev(k, 15)
            k.lab(lq)
        k("s_xor_b32 s42, s42, 40960")
        if par == 0: stamp(k, 6)
        k("s_waitcnt vmcnt(2)")
        if par == 0: stamp(k, 7)
        bd_stage(1 - par)
        if par == 0: stamp(k, 8)
        k("s_add_u32 s41, s43, s77")
        k("s_add_u32 s24, s40, 1")
        k("s_cmp_lt_u32 s24, s76"); k(f"s_cselect_b32 s41, s41, {OOB}")
        k("s_waitcnt vmcnt(0)")
        pq_loads(par)
        k("s_waitcnt lgkmcnt(0)"); k("s_barrier")
        if par == 0: stamp(k, 9)
        H.k3_publish(k, False)
    k(f"s_branch {k.ref('k3_seg')}")
    k.lab('k3_done')
    k("s_waitcnt vmcnt(0)"); k("s_barrier")
    stamp(k, 10)
    stamp_out(k, 11, 0x20000)
    H.k3_publish(k, True)

def common_prologue(k, nwg):
    k(f"s_cmp_ge_u32 s2, {nwg}")
    k(f"s_cbranch_scc1 {k.ref('end')}")
    k.ptr(KA_WS, 4)
    k("v_and_b32 v1, 63, v0")
    k("v_lshrrev_b32 v4, 6, v0")
    k("v_and_b32 v2, 15, v1")
    k("v_lshrrev_b32 v3, 4, v1")
    k("v_readfirstlane_b32 s3, v4")
    k("s_waitcnt lgkmcnt(0)")
    k.srd(8, 4, WS_BYTES)

def src_setup(k, layer, sreg=16):
    if layer == 0:
        k.ptr(KA_AX, 6); k("s_waitcnt lgkmcnt(0)"); k.srd(sreg, 6, XF_BYTES)
        k("s_mov_b32 s46, 64"); k("s_mov_b32 s47, 32"); k("s_mov_b32 s50, 0")
    else:
        k.srd(sreg, 4, XF_BYTES, WS_XF2)
        k("s_mov_b32 s46, 1024"); k("s_mov_b32 s47, 8"); k("s_mov_b32 s50, 1")

def test_kernels(layer):
    H = NoHooks()
    k1 = K(f"k1_{layer}", vgpr=256, sgpr=100, agpr=256)
    common_prologue(k1, 256 if layer == 0 else 16)
    k1(f"s_mov_b32 s92, {layer}")
    src_setup(k1, layer)
    k1("s_and_b32 s44, s2, 7"); k1("s_lshr_b32 s45, s2, 3")
    if layer == 0: k1("s_lshl_b32 s48, s45, 1"); k1("s_mov_b32 s49, 1"); k1("s_mov_b32 s40, 2")
    else: k1("s_mov_b32 s48, s45"); k1("s_mov_b32 s49, 2"); k1("s_mov_b32 s40, 32")
    role_K1(k1, H); k1.lab('end')
    k2 = K(f"k2_{layer}", vgpr=256, sgpr=100, agpr=256)
    common_prologue(k2, 24)
    k2(f"s_mov_b32 s92, {layer}")
    k2("s_and_b32 s44, s2, 7"); k2("s_lshr_b32 s45, s2, 3"); k2(f"s_mov_b32 s46, {32 if layer == 0 else 2}")
    role_K2(k2, H); k2.lab('end')
    k3 = K(f"k3_{layer}", vgpr=256, sgpr=100, agpr=256)
    common_prologue(k3, 20)
    k3(f"s_mov_b32 s92, {layer}")
    src_setup(k3, layer)
    k3("s_mul_i32 s57, s2, 52"); k3("s_lshr_b32 s57, s57, 8"); k3("s_mul_i32 s56, s57, 5"); k3("s_sub_u32 s56, s2, s56")
    k3(f"s_mov_b32 s58, {WS_XF1 if layer == 0 else WS_XF3}")
    k3("s_mov_b32 s76, 16"); k3("s_mov_b32 s77, 163840")
    k3_stage(k3); role_K3(k3, H); k3.lab('end')
    return [(k1, 256 if layer == 0 else 16, 135168), (k2, 24, 135168), (k3, 20, 135168)]

if __name__ == "__main__":
    out = "za.s"
    for a in sys.argv[1:]:
        if a == "stamp": STAMP = True
        elif a.endswith(".s"): out = a
    ks = test_kernels(0)
    head = ["; layer A test list"]
    for kk, n, lds in ks: head.append(f"; @launch kernel={kk.name} grid=({n},1,1) block=(256,1,1) lds={lds}")
    head.append('.amdgcn_target "amdgcn-amd-amdhsa--gfx950"')
    open(out, "w").write("\n".join(head) + "\n" + "\n".join(kk.text() for kk, _, _ in ks) + "\n")
    print("written", out)
```

```python
import sys
from asmlib import K, magic
import genA as A
from genA import hexf, LOG2E, LG, lookup, row_stats_partial, row_stats_final, ln_fold

NAME = A.NAME
S, D, H, DH, HD, NSEG = 2048, 640, 32, 192, 6144, 64
KA_AX, KA_WQKV, KA_WOA, KA_BX, KA_MEM0, KA_WQ, KA_WK, KA_WV, KA_WO, KA_SEG, KA_OUT, KA_DBG, KA_WS = range(13)
WS_BYTES = 268435456

WS_FLG   = 0x01600000
FLG_BYTES = 0x10000
F_Q   = 0x0000
F_LAYER = 0x4000
F_K1  = 0x8000
F_K2  = 0x8800
F_K3  = 0x9000
F_X   = 0x9800
F_C   = 0xA000
F_S   = 0xA800
WS_TRACE = 0x01800000
WS_VF    = 0x02000000
WS_QF    = 0x04000000
WS_KF    = 0x05800000
QF_SEG   = 32 * 12288
WS_SYNC  = 0x07000000
SYNC_STEP = 0x100000
O_VOM, O_PB, O_MB, O_HR, O_HS = 0, 40 * 16384, 43 * 16384, 45 * 16384, 46 * 16384
O_PX = 0
N_NEAR, N_COMP = 47, 10
WS_VOX   = 0x0B000000
VOX_SEG  = 40 * 32 * 1024
assert WS_SYNC + 64 * SYNC_STEP <= WS_VOX and WS_VOX + 64 * VOX_SEG <= WS_BYTES
SCALE_B = DH ** -0.5
SPIN_MAX = 1 << 17
OOB = 0x7ff00000
RH_M, RH_P = 16, 8

CFG = dict(stamp=False, dly_vox=18, pd_m=2, pd_p=1, pdep=4, pgain=0, dly_m=5, dly_v=20, dly_p=0, sl_m=1, sl_p=1, sl_x=2, sl_x0=8,
           hs_pos=23, hr_pos=1, clr_sleep=0)


def poll(k, name, loads, regs, tmp, sleep, first_delay=0, depth=1):
    if first_delay:
        k(f"s_sleep {first_delay}")
    k("s_mov_b32 s61, 0")
    for d in range(depth - 1):
        for l in loads: k(l)
        if sleep: k(f"s_sleep {sleep}")
    k.lab(name)
    for l in loads: k(l)
    k(f"s_waitcnt vmcnt({(depth - 1) * len(loads)})")
    rs = list(regs)
    k(f"v_max3_u32 v{tmp}, v{rs[0]}, v{rs[1]}, v{rs[2]}")
    rs = rs[3:]
    while len(rs) >= 2:
        k(f"v_max3_u32 v{tmp}, v{tmp}, v{rs[0]}, v{rs[1]}"); rs = rs[2:]
    if rs: k(f"v_max_u32 v{tmp}, v{tmp}, v{rs[0]}")
    k(f"v_cmp_eq_u32 vcc, -1, v{tmp}")
    k("s_add_u32 s61, s61, 1")
    k(f"s_cbranch_vccz {k.ref(name + '_out')}")
    k("s_cmp_ge_u32 s61, s60")
    k(f"s_cbranch_scc1 {k.ref(name + '_to')}")
    if sleep: k(f"s_sleep {sleep}")
    k(f"s_branch {k.ref(name)}")
    k.lab(name + '_to')
    k("s_mov_b32 s60, 1")
    k.lab(name + '_out')

def check_regs(k, rs, tmp):
    rs = list(rs)
    k(f"v_max3_u32 v{tmp}, v{rs[0]}, v{rs[1]}, v{rs[2]}")
    rs = rs[3:]
    while len(rs) >= 2:
        k(f"v_max3_u32 v{tmp}, v{tmp}, v{rs[0]}, v{rs[1]}"); rs = rs[2:]
    if rs: k(f"v_max_u32 v{tmp}, v{tmp}, v{rs[0]}")
    k(f"v_cmp_eq_u32 vcc, -1, v{tmp}")


def aprobe(k, name, areg, sbase, target, ring, delta, depth, dly):
    ring = ring[:depth]
    if dly: k(f"s_sleep {dly}")
    k("s_mov_b64 exec, 1")
    k("s_mov_b32 s61, 0")
    def issue(i):
        k(f"v_mov_b32 v{ring[i]}, 0")
        k(f"buffer_atomic_add v{ring[i]}, v{areg}, s[8:11], {sbase} offen sc0")
    for d in range(depth - 1):
        issue(d + 1)
        if delta: k(f"s_sleep {delta}")
    k.lab(name)
    for i in range(depth):
        issue(i)
        k(f"s_waitcnt vmcnt({depth - 1})")
        k(f"v_cmp_le_i32 vcc, {target}, v{ring[(i + 1) % depth]}")
        k("s_add_u32 s61, s61, 1")
        k(f"s_cbranch_vccnz {k.ref(name + '_out')}")
        if delta: k(f"s_sleep {delta}")
    k("s_cmp_ge_u32 s61, s60")
    k(f"s_cbranch_scc0 {k.ref(name)}")
    k("s_mov_b32 s60, 1")
    k.lab(name + '_out')
    k("s_mov_b64 exec, -1")
    if CFG['stamp']: k("s_mov_b32 s56, s61")

def ahint(k, areg, one, sbase):
    k(f"buffer_atomic_add v{one}, v{areg}, s[8:11], {sbase} offen")

def ahint_addr(k, dst, t, w_sreg, nrep, only_wave0):
    k(f"s_mul_i32 s24, {w_sreg}, {nrep}")
    k(f"v_add_u32 v{dst}, s24, v1")
    k(f"v_lshlrev_b32 v{dst}, 7, v{dst}")
    k(f"v_mov_b32 v{t}, {OOB}")
    k(f"v_cmp_le_u32 vcc, {nrep}, v1")
    k(f"v_cndmask_b32 v{dst}, v{dst}, v{t}, vcc")
    if only_wave0:
        k("s_cmp_eq_u32 s3, 0"); k(f"s_cselect_b32 s24, 0, {OOB}")
        k(f"v_or_b32 v{dst}, s24, v{dst}")

def aprobe_addr(k, dst, wg_sreg, nrep):
    k(f"s_and_b32 s24, {wg_sreg}, {nrep - 1}")
    k(f"s_mul_i32 s25, s3, {nrep}")
    k("s_add_u32 s24, s24, s25"); k("s_lshl_b32 s24, s24, 7")
    k(f"v_mov_b32 v{dst}, s24")


def shot_check(k, name, loads, regs, tmp, nyoung, sleep):
    k(f"s_waitcnt vmcnt({nyoung})")
    check_regs(k, regs, tmp)
    if CFG['stamp']: k("s_mov_b32 s57, 0")
    k(f"s_cbranch_vccz {k.ref(name + '_out')}")
    k("s_mov_b32 s61, 0")
    k.lab(name)
    for l in loads: k(l)
    k("s_waitcnt vmcnt(0)")
    check_regs(k, regs, tmp)
    k("s_add_u32 s61, s61, 1")
    if CFG['stamp']: k("s_mov_b32 s57, s61")
    k(f"s_cbranch_vccz {k.ref(name + '_out')}")
    k("s_cmp_ge_u32 s61, s60")
    k(f"s_cbranch_scc1 {k.ref(name + '_to')}")
    if sleep: k(f"s_sleep {sleep}")
    k(f"s_branch {k.ref(name)}")
    k.lab(name + '_to')
    k("s_mov_b32 s60, 1")
    k.lab(name + '_out')


def divmod_const(k, q, r, x, d, maxn, stmp):
    m, sh = magic(d, maxn)
    k(f"s_mov_b32 s{stmp}, {m}")
    k(f"v_mul_lo_u32 v{q}, v{x}, s{stmp}")
    k(f"v_lshrrev_b32 v{q}, {sh}, v{q}")
    k(f"v_mul_u32_u24 v{r}, {d}, v{q}")
    k(f"v_sub_u32 v{r}, v{x}, v{r}")

def stage_offsets(k, n, cpr, gstride, RS, lbase, go, lo, t0):
    for i in range(n):
        k(f"v_add_u32 v{t0}, {256*i}, v0")
        divmod_const(k, t0 + 1, t0 + 2, t0, cpr, 256 * n, 24)
        k(f"s_mov_b32 s24, {gstride}")
        k(f"v_mul_lo_u32 v{go+i}, v{t0+1}, s24")
        k(f"v_lshl_add_u32 v{go+i}, v{t0+2}, 4, v{go+i}")
        k(f"v_mul_u32_u24 v{lo+i}, {RS}, v{t0+1}")
        k(f"v_lshl_add_u32 v{lo+i}, v{t0+2}, 4, v{lo+i}")
        k(f"v_add_u32 v{lo+i}, {lbase}, v{lo+i}")

def tr_base(k, dst, RS, lbase, t0):
    k(f"v_lshrrev_b32 v{t0}, 1, v3")
    k(f"v_lshlrev_b32 v{t0}, 4, v{t0}")
    k(f"v_and_b32 v{t0+1}, 1, v3")
    k(f"v_lshl_add_u32 v{t0}, v{t0+1}, 2, v{t0}")
    k(f"v_lshrrev_b32 v{t0+1}, 2, v2")
    k(f"v_and_b32 v{t0+2}, 1, v{t0+1}")
    k(f"v_add_u32 v{t0}, v{t0}, v{t0+2}")
    k(f"v_lshrrev_b32 v{t0+1}, 1, v{t0+1}")
    k(f"v_lshl_add_u32 v{t0}, v{t0+1}, 3, v{t0}")
    k(f"v_mul_u32_u24 v{dst}, {RS}, v{t0}")
    k(f"v_and_b32 v{t0+1}, 3, v2")
    k(f"v_lshl_add_u32 v{dst}, v{t0+1}, 3, v{dst}")
    k(f"v_add_u32 v{dst}, {lbase}, v{dst}")

def softmax8(k, P0, T0, T1, masks=None):
    if masks:
        k(f"v_mov_b32 v{T1}, 0xff800000")
        for j in range(8): k(f"v_cndmask_b32 v{P0+j}, v{T1}, v{P0+j}, s[{masks+2*j}:{masks+2*j+1}]")
    k(f"v_max3_f32 v{T0}, v{P0}, v{P0+1}, v{P0+2}")
    k(f"v_max3_f32 v{T0}, v{T0}, v{P0+3}, v{P0+4}")
    k(f"v_max3_f32 v{T0}, v{T0}, v{P0+5}, v{P0+6}")
    k(f"v_max_f32 v{T0}, v{T0}, v{P0+7}")
    k(f"v_mov_b32 v{T1}, 0xff800000")
    k(f"v_cndmask_b32 v{T0}, v{T1}, v{T0}, s[50:51]")
    for dpp in ("quad_perm:[1,0,3,2]", "quad_perm:[2,3,0,1]", "row_half_mirror"):
        k(f"v_max_f32 v{T0}, v{T0}, v{T0} {dpp} row_mask:0xf bank_mask:0xf")
    k(f"s_mov_b32 s24, {hexf(SCALE_B * LOG2E)}")
    k(f"v_mul_f32 v{T0}, s24, v{T0}")
    pk = CFG['smpk'] and T0 % 2 == 0 and T1 == T0 + 1 and P0 % 2 == 0
    if pk:
        for r in range(0, 8, 2):
            k(f"v_pk_fma_f32 v[{P0+r}:{P0+r+1}], v[{P0+r}:{P0+r+1}], s[24:25], v[{T0}:{T1}] op_sel_hi:[1,0,0] neg_lo:[0,0,1] neg_hi:[0,0,1]")
    else:
        for r in range(8): k(f"v_fma_f32 v{P0+r}, v{P0+r}, s24, -v{T0}")
    for r in range(8): k(f"v_exp_f32 v{P0+r}, v{P0+r}")
    if pk:
        k(f"v_pk_add_f32 v[{P0+8}:{P0+9}], v[{P0}:{P0+1}], v[{P0+2}:{P0+3}]")
        k(f"v_pk_add_f32 v[{P0+10}:{P0+11}], v[{P0+4}:{P0+5}], v[{P0+6}:{P0+7}]")
        k(f"v_pk_add_f32 v[{P0+8}:{P0+9}], v[{P0+8}:{P0+9}], v[{P0+10}:{P0+11}]")
        k(f"v_add_f32 v{T0}, v{P0+8}, v{P0+9}")
    else:
        k(f"v_add_f32 v{T0}, v{P0}, v{P0+1}")
        k(f"v_add_f32 v{T1}, v{P0+2}, v{P0+3}")
        k(f"v_add_f32 v{T0}, v{T0}, v{P0+4}")
        k(f"v_add_f32 v{T1}, v{T1}, v{P0+5}")
        k(f"v_add_f32 v{T0}, v{T0}, v{P0+6}")
        k(f"v_add_f32 v{T1}, v{T1}, v{P0+7}")
        k(f"v_add_f32 v{T0}, v{T0}, v{T1}")
    k(f"v_cndmask_b32 v{T0}, 0, v{T0}, s[50:51]")
    for dpp in ("quad_perm:[1,0,3,2]", "quad_perm:[2,3,0,1]", "row_half_mirror"):
        k(f"v_add_f32 v{T0}, v{T0}, v{T0} {dpp} row_mask:0xf bank_mask:0xf")
    k(f"v_rcp_f32 v{T0}, v{T0}")
    if pk:
        for r in range(0, 8, 2): k(f"v_pk_mul_f32 v[{P0+r}:{P0+r+1}], v[{P0+r}:{P0+r+1}], v[{T0}:{T1}] op_sel_hi:[1,0]")
    else:
        for r in range(8): k(f"v_mul_f32 v{P0+r}, v{P0+r}, v{T0}")
    for q in range(4): k(f"v_cvt_pk_bf16_f32 v{P0+8+q}, v{P0+2*q}, v{P0+2*q+1}")
    for q in range(4): k(f"v_min_u32 v{P0+8+q}, -2, v{P0+8+q}")

def sum4x8(k, P0, addr, stride):
    for w in range(4):
        k(f"ds_read_b128 v[{P0+8*w}:{P0+8*w+3}], v{addr} offset:{w*stride}")
        k(f"ds_read_b128 v[{P0+8*w+4}:{P0+8*w+7}], v{addr} offset:{w*stride+16}")
    k("s_waitcnt lgkmcnt(4)")
    for r in range(0, 8, 2): k(f"v_pk_add_f32 v[{P0+r}:{P0+r+1}], v[{P0+r}:{P0+r+1}], v[{P0+8+r}:{P0+8+r+1}]")
    k("s_waitcnt lgkmcnt(0)")
    for r in range(0, 8, 2): k(f"v_pk_add_f32 v[{P0+16+r}:{P0+16+r+1}], v[{P0+16+r}:{P0+16+r+1}], v[{P0+24+r}:{P0+24+r+1}]")
    for r in range(0, 8, 2): k(f"v_pk_add_f32 v[{P0+r}:{P0+r+1}], v[{P0+r}:{P0+r+1}], v[{P0+16+r}:{P0+16+r+1}]")


def tr_frag(k, reg, kind, addr, RS, off):
    for q, ro in enumerate((0, 2, 32, 34)):
        k(f"ds_read_b64_tr_b16 {kind}[{reg+2*q}:{reg+2*q+1}], v{addr} offset:{off + ro*RS}")

def m0_image(k, srd, t0):
    for p in range(3):
        k(f"s_lshl_b32 s24, s3, 6"); k(f"s_add_u32 s24, s24, {256*p}")
        k(f"v_add_u32 v{t0}, s24, v1")
        k(f"v_and_b32 v{t0+1}, 7, v{t0}")
        k(f"v_mul_u32_u24 v{t0+1}, 1280, v{t0+1}")
        k(f"v_lshrrev_b32 v{t0+2}, 3, v{t0}")
        k(f"v_lshl_add_u32 v{t0+1}, v{t0+2}, 4, v{t0+1}")
        k(f"v_cmp_gt_u32 vcc, 640, v{t0}")
        k(f"v_mov_b32 v{t0+3}, {OOB}")
        k(f"v_cndmask_b32 v{t0+1}, v{t0+3}, v{t0+1}, vcc")
        k(f"buffer_load_dwordx4 v[{t0+4}:{t0+7}], v{t0+1}, s[{srd}:{srd+3}], 0 offen")
        k(f"v_lshlrev_b32 v{t0}, 4, v{t0}")
        k("s_waitcnt vmcnt(0)")
        k(f"s_and_saveexec_b64 s[30:31], vcc")
        k(f"ds_write_b128 v{t0}, v[{t0+4}:{t0+7}]")
        k("s_mov_b64 exec, s[30:31]")

def stamp(k, i):
    if CFG['stamp']: k(f"s_memrealtime s[{80+2*i}:{81+2*i}]")

def stamp_out(k, nst, t):
    if not CFG['stamp']: return
    if CFG.get('clk'):
        k("s_memtime s[56:57]"); k("s_waitcnt lgkmcnt(0)")
    k("s_lshl_b32 s34, s2, 2"); k("s_add_u32 s34, s34, s3"); k("s_lshl_b32 s34, s34, 7")
    k("s_lshl_b32 s35, s92, 6"); k("s_add_u32 s34, s34, s35")
    k("s_add_u32 s34, s34, s40"); k("s_lshl_b32 s34, s34, 5"); k(f"s_add_u32 s34, s34, {WS_TRACE}")
    k(f"v_mov_b32 v{t}, {OOB}")
    k("v_cmp_eq_u32 vcc, 0, v1")
    k(f"v_cndmask_b32 v{t}, v{t}, 0, vcc")
    for i in range(nst):
        k(f"v_mov_b32 v{t+1}, s{80+2*i}")
        k(f"buffer_store_dword v{t+1}, v{t}, s[8:11], s34 offen offset:{i*4}")
    for i, sreg in ((6, 's57'), (7, 's56')):
        k(f"v_mov_b32 v{t+1}, {sreg}")
        k(f"buffer_store_dword v{t+1}, v{t}, s[8:11], s34 offen offset:{i*4}")

WS_EVT = 0x01C00000
def event(k, idx, t=14):
    if not CFG['stamp']: return
    k("s_memrealtime s[96:97]")
    k("s_lshl_b32 s34, s2, 7"); k("s_lshl_b32 s35, s92, 6"); k("s_add_u32 s34, s34, s35"); k(f"s_add_u32 s34, s34, {WS_EVT + 4*idx}")
    k("s_cmp_eq_u32 s3, 0"); k(f"s_cselect_b32 s34, s34, {OOB}")
    k(f"v_mov_b32 v{t}, {OOB}")
    k("v_cmp_eq_u32 vcc, 0, v1")
    k(f"v_cndmask_b32 v{t}, v{t}, 0, vcc")
    k("s_waitcnt lgkmcnt(0)")
    k(f"v_mov_b32 v{t+1}, s96")
    k(f"buffer_store_dword v{t+1}, v{t}, s[8:11], s34 offen")

def flag_read(k, dst, addr, nfl, atomic):
    if atomic:
        k(f"s_mov_b64 exec, {(1 << nfl) - 1}")
        k(f"v_mov_b32 v{dst}, 0")
        k(f"buffer_atomic_add v{dst}, v{addr}, s[8:11], 0 offen sc0 sc1")
        k("s_mov_b64 exec, -1")
    else: k(f"buffer_load_dword v{dst}, v{addr}, s[8:11], 0 offen sc1")

def ensure(k, name, nfl, addr, tmp, need='s63', known='s62', sleep=2, atomic=False):
    k(f"s_cmp_ge_i32 {known}, {need}")
    k(f"s_cbranch_scc1 {k.ref(name + '_ok')}")
    if callable(addr):
        addr(k, tmp + 1); addr = tmp + 1
    k("s_mov_b32 s61, 0")
    k.lab(name)
    flag_read(k, tmp, addr, nfl, atomic)
    k("s_waitcnt vmcnt(0)")
    k(f"v_readlane_b32 {known}, v{tmp}, 0")
    for i in range(1, nfl):
        k(f"v_readlane_b32 s24, v{tmp}, {i}")
        k(f"s_min_i32 {known}, {known}, s24")
    k(f"s_cmp_ge_i32 {known}, {need}")
    k(f"s_cbranch_scc1 {k.ref(name + '_ok')}")
    k("s_add_u32 s61, s61, 1")
    k("s_cmp_ge_u32 s61, s60")
    k(f"s_cbranch_scc1 {k.ref(name + '_to')}")
    k(f"s_sleep {sleep}")
    k(f"s_branch {k.ref(name)}")
    k.lab(name + '_to')
    k("s_mov_b32 s60, 1")
    k.lab(name + '_ok')

def clr_addr(k, dst):
    k("s_and_b32 s24, s2, 7"); k("s_lshl_b32 s24, s24, 7"); k(f"s_add_u32 s24, s24, {WS_FLG + F_C}")
    k(f"v_and_b32 v{dst}, 3, v1"); k(f"v_lshl_add_u32 v{dst}, v{dst}, 2, s24")

def ensure_clear(k, name, tmp, blk):
    k("s_lshl_b32 s95, s92, 6"); k(f"s_add_u32 s95, s95, {blk}"); k("s_add_u32 s95, s95, 1")
    ensure(k, name, 3, clr_addr, tmp, need='s95', known='s59')

def wait_all(k, name, n, t, need, sleep=2):
    k("s_mov_b32 s61, 0")
    k.lab(name)
    k(f"buffer_load_dword v{t}, v{t+1}, s[8:11], 0 offen sc1")
    k("s_waitcnt vmcnt(0)")
    k(f"v_cmp_le_i32 vcc, {need}, v{t}")
    mask = ((1 << n) - 1) if isinstance(n, int) else n
    if isinstance(n, int): k(f"s_mov_b32 s25, {hex(mask & 0xffffffff)}"); mask = 's25'
    k(f"s_and_b32 s24, vcc_lo, {mask}")
    k(f"s_cmp_eq_u32 s24, {mask}")
    k(f"s_cbranch_scc1 {k.ref(name + '_ok')}")
    k("s_add_u32 s61, s61, 1")
    k("s_cmp_ge_u32 s61, s60")
    k(f"s_cbranch_scc1 {k.ref(name + '_to')}")
    k(f"s_sleep {sleep}")
    k(f"s_branch {k.ref(name)}")
    k.lab(name + '_to')
    k("s_mov_b32 s60, 1")
    k.lab(name + '_ok')

def pub_dword(k, saddr, val, t, copies=1):
    l = k.new('pb')
    k("s_cmp_eq_u32 s3, 0")
    k(f"s_cbranch_scc0 {k.ref(l)}")
    k(f"v_lshlrev_b32 v{t}, 7, v1"); k(f"v_add_u32 v{t}, {saddr}, v{t}")
    k(f"v_mov_b32 v{t+1}, {OOB}"); k(f"v_cmp_le_u32 vcc, {copies}, v1"); k(f"v_cndmask_b32 v{t}, v{t}, v{t+1}, vcc")
    k(f"v_mov_b32 v{t+1}, {val}")
    k(f"buffer_store_dword v{t+1}, v{t}, s[8:11], 0 offen sc1")
    k.lab(l)

def next_layer(k, again):
    k("s_cmp_eq_u32 s92, 0")
    k(f"s_cbranch_scc0 {k.ref('end')}")
    k("s_mov_b32 s92, 1")
    k(f"s_branch {k.ref(again)}")

def blk_base(k, step, dst, add=0):
    if add: k(f"s_add_u32 {dst}, {step}, {add}"); step = dst
    k(f"s_lshl_b32 s24, {step}, 12"); k("s_and_b32 s24, s24, 0x2000"); k("s_xor_b32 s24, s24, s36")
    k(f"s_lshl_b32 {dst}, {step}, 20"); k(f"s_add_u32 {dst}, {dst}, s24"); k(f"s_add_u32 {dst}, {dst}, {WS_SYNC}")

def spread(k, reg, t):
    k(f"v_and_b32 v{t}, 0xffffe000, v{reg}"); k(f"v_add_u32 v{reg}, v{reg}, v{t}")

def layer_bases(k):
    k("s_mov_b32 s93, 0"); blk_base(k, 's93', 's93')
    k(f"s_mul_i32 s94, s92, {F_LAYER}"); k(f"s_add_u32 s94, s94, {WS_FLG + F_Q}")


def role_S2(k):
    L_M, L_X, L_SP, L_DUM, L_W5, L_ST = 0, 10240, 16384, 22528, 24576, 106496
    RS = 400
    ACC, AF, WS5 = 24, 48, 68
    KX = 240
    QX = 80
    T0, T1 = 92, 93
    def wreg(t, c):
        if t < 3: return 'a', t * 80 + c * 8
        return 'v', 96 + (t - 4) * 80 + c * 8
    k("s_mov_b32 s44, s2")
    k.ptr(KA_WQ, 6); k.ptr(KA_WK, 24); k.ptr(KA_MEM0, 26)
    k("s_waitcnt lgkmcnt(0)")
    k.srd(12, 6, D * HD * 2); k.srd(16, 24, D * HD * 2); k.srd(20, 26, 8 * 640 * 2)
    GO, LO, DAT = 4, 10, 24
    stage_offsets(k, 6, 24, HD * 2, RS, L_ST, GO, LO, 16)
    tr_base(k, 16, RS, L_ST, 17)
    k("s_mul_i32 s24, s3, 96")
    k("v_add_u32 v16, s24, v16")
    k("v_lshlrev_b32 v17, 4, v1")
    k(f"s_mul_i32 s24, s3, 20480"); k(f"s_add_u32 s24, s24, {L_W5}")
    k("v_add_u32 v17, s24, v17")
    k(f"s_mul_i32 s45, s44, 384")
    blocks = [(c, m) for c in range(10) for m in range(2)]
    def loads(bi):
        c, m = blocks[bi]
        d = DAT + 24 * (bi % 3)
        k(f"s_add_u32 s46, s45, {c * 64 * HD * 2}")
        for i in range(6):
            k(f"buffer_load_dwordx4 v[{d+4*i}:{d+4*i+3}], v{GO+i}, s[{12+4*m}:{15+4*m}], s46 offen")
    loads(0); loads(1)
    for bi, (c, m) in enumerate(blocks):
        d = DAT + 24 * (bi % 3)
        k(f"s_waitcnt vmcnt({6 if bi + 1 < len(blocks) else 0})")
        for i in range(6): k(f"ds_write_b128 v{LO+i}, v[{d+4*i}:{d+4*i+3}]")
        if bi + 2 < len(blocks): loads(bi + 2)
        k("s_waitcnt lgkmcnt(0)")
        k("s_barrier")
        for t in range(3):
            tt = 3 * m + t
            if tt != 3:
                kind, r = wreg(tt, c)
                tr_frag(k, r, kind, 16, RS, 32 * t)
        if m == 1:
            tr_frag(k, d, 'v', 16, RS, 0)
            k("s_waitcnt lgkmcnt(0)")
            k(f"ds_write_b128 v17, v[{d}:{d+3}] offset:{c*2048}")
            k(f"ds_write_b128 v17, v[{d+4}:{d+7}] offset:{c*2048+1024}")
        k("s_waitcnt lgkmcnt(0)")
        k("s_barrier")
    A_, B_, C_, D_ = 30, 31, 32, 33
    k("v_mov_b32 v6, v17")
    k(f"v_mov_b32 v{A_}, 0xeeee"); k("v_mov_b32 v4, 0x4444")
    k("v_cmp_gt_u32 vcc, 8, v2")
    k(f"v_cndmask_b32 v4, v{A_}, v4, vcc")
    k("v_lshlrev_b32 v5, 4, v1")
    k("s_lshl_b32 s24, s3, 10")
    k("v_add_u32 v7, s24, v5")
    k("s_lshl_b32 s24, s3, 9"); k("s_add_u32 s24, s24, 8192")
    k("v_lshlrev_b32 v8, 3, v1")
    k("v_add_u32 v8, s24, v8")
    k(f"v_and_b32 v{A_}, 1, v2"); k(f"v_lshlrev_b32 v{A_}, 4, v{A_}")
    k(f"v_mov_b32 v{B_}, 0x3f80"); k(f"v_lshlrev_b32 v{B_}, v{A_}, v{B_}")
    k(f"v_lshrrev_b32 v{A_}, 2, v2"); k(f"v_cmp_eq_u32 vcc, v{A_}, v3"); k(f"v_cndmask_b32 v{B_}, 0, v{B_}, vcc")
    k(f"v_and_b32 v{A_}, 2, v2"); k(f"v_cmp_eq_u32 vcc, 0, v{A_}")
    k(f"v_cndmask_b32 v10, 0, v{B_}, vcc"); k(f"v_cndmask_b32 v11, v{B_}, 0, vcc")
    k(f"v_add_u32 v{D_}, {L_DUM}, v5")
    k(f"s_mul_i32 s24, s3, 1408"); k(f"s_add_u32 s24, s24, {L_SP}")
    k(f"v_mul_u32_u24 v{A_}, 176, v2")
    k(f"v_add_u32 v{A_}, s24, v{A_}")
    k(f"v_lshl_add_u32 v12, v3, 5, v{A_}")
    k("v_cmp_gt_u32 vcc, 8, v2")
    k(f"v_cndmask_b32 v12, v{D_}, v12, vcc")
    k(f"v_lshl_add_u32 v13, v3, 4, v{A_}")
    k("v_add_u32 v13, 96, v13")
    k("v_cmp_le_u32 s[24:25], 2, v3")
    k("s_and_b64 vcc, vcc, s[24:25]")
    k(f"v_cndmask_b32 v13, v{D_}, v13, vcc")
    k(f"s_mul_i32 s24, s3, 5632"); k(f"s_add_u32 s24, s24, {L_ST}")
    k(f"v_mul_u32_u24 v{A_}, 176, v2")
    k(f"v_add_u32 v{A_}, s24, v{A_}")
    k(f"v_lshl_add_u32 v16, v3, 5, v{A_}")
    k(f"v_lshl_add_u32 v17, v3, 4, v{A_}")
    k("v_add_u32 v17, 96, v17")
    k("v_add_u32 v18, 2816, v17")
    k("v_cmp_le_u32 vcc, 2, v3")
    k(f"v_cndmask_b32 v17, v{D_}, v17, vcc")
    k(f"v_cndmask_b32 v18, v{D_}, v18, vcc")
    k(f"v_lshrrev_b32 v{A_}, 3, v1")
    k(f"v_and_b32 v{B_}, 7, v1")
    k(f"v_min_u32 v{C_}, 4, v{B_}")
    k(f"v_mul_u32_u24 v14, 176, v{A_}")
    k(f"v_lshl_add_u32 v14, v{C_}, 5, v14")
    k("s_mul_i32 s24, s3, 1408"); k(f"s_add_u32 s24, s24, {L_ST}")
    k("v_add_u32 v21, s24, v14")
    k(f"v_add_u32 v14, {L_SP}, v14")
    k(f"v_cmp_gt_u32 s[50:51], 5, v{B_}")
    k("s_lshl_b32 s24, s3, 3")
    k(f"v_add_u32 v{C_}, s24, v{A_}")
    k(f"v_lshlrev_b32 v{D_}, 2, v{B_}")
    k(f"v_sub_u32 v{C_}, v{C_}, v{D_}")
    k(f"v_mov_b32 v{D_}, 100")
    k(f"v_cmp_gt_u32 vcc, 4, v{B_}")
    k(f"v_cndmask_b32 v{C_}, v{D_}, v{C_}, vcc")
    for j in range(8):
        cj = j if j < 4 else j + 12
        k(f"v_cmp_le_i32 s[{64+2*j}:{65+2*j}], {cj}, v{C_}")
    k("s_lshr_b32 s24, s44, 1"); k("s_lshl_b32 s24, s24, 10")
    k("s_and_b32 s25, s44, 1"); k("s_lshl_b32 s25, s25, 7"); k("s_add_u32 s24, s24, s25")
    k(f"v_lshlrev_b32 v15, 8, v{B_}")
    k(f"v_lshl_add_u32 v15, v{A_}, 4, v15")
    k("v_add_u32 v15, s24, v15")
    k("s_lshr_b32 s24, s44, 3"); k("s_lshl_b32 s24, s24, 10")
    k("s_and_b32 s25, s44, 3"); k("s_lshl_b32 s25, s25, 8"); k("s_add_u32 s24, s24, s25")
    k("s_lshr_b32 s25, s44, 2"); k("s_and_b32 s25, s25, 1"); k("s_lshl_b32 s25, s25, 7"); k("s_add_u32 s24, s24, s25")
    k("s_add_u32 s24, s24, 16384")
    k(f"v_lshlrev_b32 v{C_}, 4, v{A_}")
    k(f"v_add_u32 v{C_}, s24, v{C_}")
    k(f"v_cmp_eq_u32 vcc, 4, v{B_}")
    k(f"v_cndmask_b32 v15, v15, v{C_}, vcc")
    spread(k, 15, C_)
    k(f"v_mov_b32 v{C_}, {OOB}")
    k(f"v_cndmask_b32 v15, v{C_}, v15, s[50:51]")
    k(f"s_cmp_lt_u32 s3, 1"); k(f"s_cselect_b32 s24, 0, {OOB}")
    k("v_or_b32 v15, s24, v15")
    k("s_and_b32 s24, s3, 1"); k("s_lshl_b32 s24, s24, 7")
    k("s_lshr_b32 s25, s3, 1"); k("s_lshl_b32 s25, s25, 10")
    k("s_add_u32 s24, s24, s25")
    k("s_lshl_b32 s25, s44, 11"); k("s_add_u32 s25, s25, s24")
    k(f"v_lshlrev_b32 v22, 8, v{B_}")
    k(f"v_lshl_add_u32 v22, v{A_}, 4, v22")
    k("v_add_u32 v22, s25, v22")
    k("s_lshr_b32 s25, s44, 2"); k("s_lshl_b32 s25, s25, 11"); k("s_add_u32 s25, s25, s24")
    k("s_and_b32 s26, s44, 3"); k("s_lshl_b32 s26, s26, 8"); k("s_add_u32 s25, s25, s26"); k("s_add_u32 s25, s25, 65536")
    k(f"v_lshlrev_b32 v{C_}, 4, v{A_}")
    k(f"v_add_u32 v{C_}, s25, v{C_}")
    k(f"v_cmp_eq_u32 vcc, 4, v{B_}")
    k(f"v_cndmask_b32 v22, v22, v{C_}, vcc")
    spread(k, 22, C_)
    k(f"v_mov_b32 v{C_}, {OOB}")
    k(f"v_cndmask_b32 v22, v{C_}, v22, s[50:51]")
    k("s_mul_i32 s24, s44, 12288"); k("s_mul_i32 s25, s3, 3072"); k("s_add_u32 s24, s24, s25")
    k("v_add_u32 v19, s24, v5")
    aprobe_addr(k, 23, 's2', RH_M)
    k("s_lshr_b32 s25, s44, 3")
    ahint_addr(k, 20, A_, 's25', RH_P, True)
    k("v_mov_b32 v0, 1")
    event(k, 1, 48)
    pol_get(k, 48)
    k.lab('s_layer')
    layer_bases(k)
    k("v_and_b32 v9, 1, v1")
    k("v_lshlrev_b32 v9, 12, v9")
    k(f"s_lshl_b32 s24, s44, 7"); k(f"s_add_u32 s24, s24, s94")
    k("v_add_u32 v9, s24, v9")
    m0_image(k, 20, 48)
    k("s_mov_b32 s40, 0")
    k(f"s_mov_b32 s41, {WS_KF}")
    k("s_mov_b32 s37, s93")
    k(f"s_add_u32 s43, s93, {O_PB}")
    k(f"s_mov_b32 s45, {WS_QF}")
    k(f"s_add_u32 s49, s93, {O_HS}")
    def kx_loads():
        for b in range(3):
            k(f"buffer_load_dwordx4 a[{KX+4*b}:{KX+4*b+3}], v19, s[8:11], s41 offen offset:{b*1024} sc1")
    ensure_clear(k, 's_ec0', 48, 's40')
    k("s_mov_b32 s62, -1"); k("s_mov_b32 s63, 1")
    ensure(k, 's_en0', 2, 9, 48, atomic=CFG['eat'] & 2)
    kx_loads()
    event(k, 2, 48)
    k("s_waitcnt lgkmcnt(0)")
    for r in range(24): k(f"v_mov_b32 v{ACC+r}, 0")
    k("s_barrier")
    k("ds_read_b128 v[84:87], v7"); k("ds_read_b128 v[88:91], v7 offset:4096")
    k("s_waitcnt vmcnt(0) lgkmcnt(0)")
    for w in range(3):
        k(f"s_cmp_eq_u32 s3, {w}"); k(f"s_cbranch_scc1 {k.ref('s_gow' + str(w))}")
    k(f"s_branch {k.ref('s_gow3')}")
    P0 = 48
    def px_tail(t0, t1):
        sum4x8(k, P0, 21, 5632)
        softmax8(k, P0, t0, t1, masks=64)
        k(f"buffer_store_dwordx4 v[{P0+8}:{P0+11}], v22, s[8:11], s42 offen sc1")
    M32 = "v_mfma_f32_16x16x32_bf16"; M16 = "v_mfma_f32_16x16x16_bf16"
    XA, XB = 24, 32
    SC = [28, 36, 40]
    def epi_pair(p, dest):
        q = ACC + 4 * p; kk = ACC + 12 + 4 * p
        L = [f"v_permlane32_swap_b32 v{q+r}, v{kk+r}" for r in range(4)]
        L += [f"v_add_f32 v{q+r}, v{q+r}, v{kk+r}" for r in range(4)]
        L += [f"v_cvt_pk_bf16_f32 v{kk}, v{q}, v{q+1}", f"v_cvt_pk_bf16_f32 v{kk+1}, v{q+2}, v{q+3}"]
        L += [f"{M16} v[{q}:{q+3}], v[{kk}:{kk+1}], v[10:11], 0"]
        return L, [f"v_cvt_pk_bf16_f32 v{dest}, v{q}, v{q+1}", f"v_cvt_pk_bf16_f32 v{dest+1}, v{q+2}, v{q+3}"]
    def loop(w):
        sf = 'w' + str(w)
        k.lab('s_step' + sf)
        stamp(k, 0)
        for r in range(24): k(f"v_mov_b32 v{ACC+r}, 0")
        loads_ = [f"buffer_load_dwordx4 v[84:87], v7, s[8:11], s47 offen sc1",
                  f"buffer_load_dwordx4 v[88:91], v7, s[8:11], s46 offen sc1",
                  f"buffer_load_dwordx2 v[92:93], v8, s[8:11], s52 offen sc1"]
        k("s_add_u32 s46, s47, 4096"); k("s_add_u32 s52, s47, 8192")
        if CFG['s_pre']:
            lq = k.new('sq')
            k("s_cmp_eq_u32 s58, 1"); k(f"s_cbranch_scc1 {k.ref(lq)}")
            k("s_waitcnt vmcnt(0)")
            k("v_readlane_b32 s58, v60, 0"); k("v_readlane_b32 s24, v60, 1"); k("s_min_i32 s58, s58, s24"); k("s_max_i32 s62, s62, s58")
            k.lab(lq)
        ensure_clear(k, 's_ec' + sf, 48, 's40')
        k("s_add_u32 s63, s40, 1")
        ensure(k, 's_en' + sf, 2, 9, 48, atomic=CFG['eat'] & 2)
        if CFG['kx_pos'] == 0: kx_loads()
        if CFG['px_pos'] == 0: px_tail(80, 81)
        aprobe(k, 's_pr' + sf, 23, 's48', CFG['tgt_m'], [82, 83, 94, 95], CFG['pd_m'], CFG['pdep'], CFG['dly_m'])
        for l in loads_: k(l)
        ny = 0
        if CFG['kx_pos'] == 1: kx_loads(); ny += 3
        if CFG['px_pos'] == 1: px_tail(80, 81); ny += 1
        shot_check(k, 's_pm' + sf, loads_, range(84, 94), 58, ny, CFG['sl_m'])
        if CFG['kx_pos'] == 2: kx_loads()
        stamp(k, 1)
        k(f"ds_write_b128 v7, v[84:87]")
        k(f"ds_write_b128 v7, v[88:91] offset:4096")
        k(f"ds_write_b64 v8, v[92:93]")
        k.lab('s_go' + sf)
        lg = LG(k)
        own = [w, 4 + w]; oth = [c for c in range(10) if c not in own]
        def rdW(c, slot):
            b = WS5 + 8 * slot
            lg.issue(('W', c), f"ds_read_b128 v[{b}:{b+3}], v6 offset:{c*2048}")
            lg.issue(('W', c), f"ds_read_b128 v[{b+4}:{b+7}], v6 offset:{c*2048+1024}")
        def rdA(j):
            a = AF + 4 * (j % 5)
            lg.issue(('A', j), f"ds_read_b128 v[{a}:{a+3}], v5 offset:{oth[j % 8]*1024}")
        def sm(t, c, a, slot=None):
            if t == 3: B = f"v[{WS5+8*slot}:{WS5+8*slot+7}]"
            else:
                kind, r = wreg(t, c); B = f"{kind}[{r}:{r+7}]"
            k(f"v_smfmac_f32_16x16x64_bf16 v[{ACC+4*t}:{ACC+4*t+3}], v[{a}:{a+3}], {B}, v4")
        rdW(own[0], 0); rdW(own[1], 1)
        for t in (0, 1, 2, 4, 5): sm(t, own[0], 84)
        lg.wait(('W', own[0])); sm(3, own[0], 84, 0)
        rdW(oth[0], 0)
        k("s_barrier")
        for j in range(5): rdA(j)
        for t in (0, 1, 2, 4, 5): sm(t, own[1], 88)
        lg.wait(('W', own[1])); sm(3, own[1], 88, 1)
        rdW(oth[1], 1)
        for j in range(8):
            c = oth[j]; a = AF + 4 * (j % 5)
            lg.wait(('A', j))
            for t in (0, 1, 4): sm(t, c, a)
            lg.wait(('W', c)); sm(3, c, a, j % 2)
            if j + 2 < 8: rdW(oth[j + 2], j % 2)
            rdA(j + 5)
        for b in range(3):
            k(f"buffer_load_dwordx4 v[{QX+4*b}:{QX+4*b+3}], v19, s[8:11], s45 offen offset:{b*1024} sc1")
        e1a, e1b = epi_pair(1, XA + 2); e0a, e0b = epi_pair(0, XA)
        E = [None, None] + e1a + e0a + [None] + e0b + e1b + [f"s_waitcnt vmcnt({4 if (CFG['kx_pos'] == 1 and CFG['px_pos'] == 1) else 3})", None]
        E += [f"{M32} v[{SC[0]}:{SC[0]+3}], a[{KX}:{KX+3}], v[{XA}:{XA+3}], 0",
              f"{M32} v[{SC[1]}:{SC[1]+3}], a[{KX+4}:{KX+7}], v[{XA}:{XA+3}], 0",
              f"{M32} v[{SC[2]}:{SC[2]+3}], v[{XA}:{XA+3}], v[{XA}:{XA+3}], 0"]
        def extra(n):
            for _ in range(n):
                if E:
                    t_ = E.pop(0)
                    if t_: k(t_)
        for j in range(8, 16):
            c = oth[j - 8]; a = AF + 4 * (j % 5)
            lg.wait(('A', j))
            sm(2, c, a); extra(2)
            sm(5, c, a); extra(2)
            if j + 5 < 16: rdA(j + 5)
        extra(100)
        stamp(k, 2)
        if CFG['hs_pos'] == 2 and w == 0: ahint(k, 20, 0, 's49')
        e2a, e2b = epi_pair(2, XB)
        for t_ in e2a: k(t_)
        if CFG['hs_pos'] == 20 and w == 0: ahint(k, 20, 0, 's49')
        for t_ in e2b: k(t_)
        if CFG['hs_pos'] == 21 and w == 0: ahint(k, 20, 0, 's49')
        k(f"{M16} v[{SC[0]}:{SC[0]+3}], a[{KX+8}:{KX+9}], v[{XB}:{XB+1}], v[{SC[0]}:{SC[0]+3}]")
        k(f"{M16} v[{SC[1]}:{SC[1]+3}], a[{KX+10}:{KX+11}], v[{XB}:{XB+1}], v[{SC[1]}:{SC[1]+3}]")
        k(f"{M16} v[{SC[2]}:{SC[2]+3}], v[{XB}:{XB+1}], v[{XB}:{XB+1}], v[{SC[2]}:{SC[2]+3}]")
        if CFG['hs_pos'] == 22 and w == 0: ahint(k, 20, 0, 's49')
        k(f"ds_write_b128 v12, v[{SC[0]}:{SC[0]+3}]")
        k(f"ds_write_b128 v12, v[{SC[1]}:{SC[1]+3}] offset:16")
        k(f"ds_write_b128 v13, v[{SC[2]}:{SC[2]+3}]")
        if CFG['hs_pos'] == 23 and w == 0: ahint(k, 20, 0, 's49')
        k("s_waitcnt lgkmcnt(0)")
        k("s_barrier")
        stamp(k, 3)
        if w == 0:
            if CFG['hs_pos'] == 3: ahint(k, 20, 0, 's49')
            sum4x8(k, P0, 14, 1408)
            softmax8(k, P0, T0, T1)
            k(f"buffer_store_dwordx4 v[{P0+8}:{P0+11}], v15, s[8:11], s43 offen sc1")
        stamp(k, 4)
        sx = lambda kt, tt: [36, 40, 44, 64, 68, 72][kt * 2 + tt]
        k(f"s_waitcnt vmcnt({2 if w == 0 else 0})")
        if CFG['s_pre']:
            lq = k.new('sq')
            k(f"s_add_u32 s24, s40, {1 + CFG['s_pre']}"); k("s_min_u32 s24, s24, 64"); k("s_cmp_ge_i32 s62, s24"); k("s_cselect_b32 s58, 1, 0")
            k(f"s_cbranch_scc1 {k.ref(lq)}")
            k("buffer_load_dword v60, v9, s[8:11], 0 offen sc1")
            k.lab(lq)
        keys32 = [f"a[{KX}:{KX+3}]", f"a[{KX+4}:{KX+7}]", f"v[{XA}:{XA+3}]"]
        keys16 = [f"a[{KX+8}:{KX+9}]", f"a[{KX+10}:{KX+11}]", f"v[{XB}:{XB+1}]"]
        for tt in range(2):
            for kt in range(3):
                a = sx(kt, tt)
                k(f"{M32} v[{a}:{a+3}], {keys32[kt]}, v[{QX+4*tt}:{QX+4*tt+3}], 0")
        for tt in range(2):
            for kt in range(3):
                a = sx(kt, tt)
                k(f"{M16} v[{a}:{a+3}], {keys16[kt]}, v[{QX+8+2*tt}:{QX+8+2*tt+1}], v[{a}:{a+3}]")
        for tt in range(2):
            k(f"ds_write_b128 v16, v[{sx(0,tt)}:{sx(0,tt)+3}] offset:{tt*2816}")
            k(f"ds_write_b128 v16, v[{sx(1,tt)}:{sx(1,tt)+3}] offset:{tt*2816+16}")
            k(f"ds_write_b128 v{17+tt}, v[{sx(2,tt)}:{sx(2,tt)+3}]")
        k("s_add_u32 s40, s40, 1")
        k(f"s_add_u32 s41, s41, {QF_SEG}")
        k(f"s_add_u32 s45, s45, {QF_SEG}")
        k(f"s_add_u32 s47, s37, {O_MB}"); k(f"s_add_u32 s48, s37, {O_HR}"); k(f"s_xor_b32 s42, s37, 0x2000")
        blk_base(k, 's40', 's37')
        k(f"s_add_u32 s43, s37, {O_PB}"); k(f"s_add_u32 s49, s37, {O_HS}")
        k("s_waitcnt lgkmcnt(0)")
        k("s_barrier")
        stamp(k, 5)
        if CFG['stamp']:
            k("s_sub_u32 s40, s40, 1"); stamp_out(k, 6, 46); k("s_add_u32 s40, s40, 1")
        k("s_cmp_lt_u32 s40, 64")
        k(f"s_cbranch_scc1 {k.ref('s_step' + sf)}")
        if w < 3: k(f"s_branch {k.ref('s_end')}")
    for w in range(4): loop(w)
    k.lab('s_end')
    px_tail(80, 81)
    if CFG['s_hint']:
        l = k.new('sh')
        k("s_cmp_eq_u32 s44, 0"); k(f"s_cbranch_scc0 {k.ref(l)}")
        k("s_cmp_eq_u32 s3, 3"); k(f"s_cbranch_scc0 {k.ref(l)}")
        k("s_lshl_b32 s24, s92, 6"); k("s_add_u32 s24, s24, 64")
        k(f"v_lshlrev_b32 v82, 7, v1"); k(f"v_add_u32 v82, {WS_FLG + F_S}, v82")
        k(f"v_mov_b32 v83, {OOB}"); k("v_cmp_le_u32 vcc, 8, v1"); k("v_cndmask_b32 v82, v82, v83, vcc")
        k("v_mov_b32 v83, s24")
        k("buffer_store_dword v83, v82, s[8:11], 0 offen sc1")
        k.lab(l)
    event(k, 3, 48)
    next_layer(k, 's_layer')

def role_V2(k):
    L_M, L_V, L_WO, L_ST = 0, 10240, 16384, 16384 + 73728
    RS1, RS2 = 400, 656
    MA, VACC, VA, STG = 16, 56, 68, 80
    def wv(t, c): return 'a', t * 80 + c * 8
    def wo(t, c):
        i = t * 3 + c
        if i < 2: return 'a', 240 + 8 * i
        return 'v', 104 + 8 * (i - 2)
    k("s_sub_u32 s44, s2, 32")
    k.ptr(KA_WV, 6); k.ptr(KA_WO, 24); k.ptr(KA_MEM0, 26)
    k("s_waitcnt lgkmcnt(0)")
    k.srd(12, 6, D * HD * 2); k.srd(16, 24, D * HD * 2); k.srd(20, 26, 8 * 640 * 2)
    GO, LO, DAT = 4, 10, 24
    stage_offsets(k, 6, 24, HD * 2, RS1, L_ST, GO, LO, 16)
    tr_base(k, 16, RS1, L_ST, 17)
    k("s_mul_i32 s24, s3, 96")
    k("v_add_u32 v16, s24, v16")
    k(f"s_mul_i32 s45, s44, 384")
    def loads(c):
        d = DAT + 24 * (c % 3)
        k(f"s_add_u32 s46, s45, {c * 64 * HD * 2}")
        for i in range(6):
            k(f"buffer_load_dwordx4 v[{d+4*i}:{d+4*i+3}], v{GO+i}, s[12:15], s46 offen")
    loads(0); loads(1)
    for c in range(10):
        d = DAT + 24 * (c % 3)
        k(f"s_waitcnt vmcnt({6 if c + 1 < 10 else 0})")
        for i in range(6): k(f"ds_write_b128 v{LO+i}, v[{d+4*i}:{d+4*i+3}]")
        if c + 2 < 10: loads(c + 2)
        k("s_waitcnt lgkmcnt(0)")
        k("s_barrier")
        for t in range(3):
            kind, r = wv(t, c)
            tr_frag(k, r, kind, 16, RS1, 32 * t)
        k("s_waitcnt lgkmcnt(0)")
        k("s_barrier")
    GO, LO, DAT = 4, 14, 24
    stage_offsets(k, 10, 40, 1280, RS2, L_ST, GO, LO, 64)
    tr_base(k, 72, RS2, L_ST, 64)
    k("s_and_b32 s24, s3, 1"); k("s_mul_i32 s24, s24, 320")
    k("v_add_u32 v72, s24, v72")
    k("v_lshlrev_b32 v73, 4, v1")
    k(f"s_mul_i32 s24, s3, 18432"); k(f"s_add_u32 s24, s24, {L_WO}")
    k("v_add_u32 v73, s24, v73")
    k(f"s_mul_i32 s45, s44, {192*1280}")
    for c in range(3):
        for hf in range(2):
            k(f"s_add_u32 s46, s45, {c*64*1280 + hf*640}")
            for i in range(10):
                k(f"buffer_load_dwordx4 v[{DAT+4*i}:{DAT+4*i+3}], v{GO+i}, s[16:19], s46 offen")
            k("s_waitcnt vmcnt(0)")
            for i in range(10): k(f"ds_write_b128 v{LO+i}, v[{DAT+4*i}:{DAT+4*i+3}]")
            k("s_waitcnt lgkmcnt(0)")
            k("s_barrier")
            l = k.new('wo')
            k("s_lshr_b32 s24, s3, 1")
            k(f"s_cmp_eq_u32 s24, {hf}")
            k(f"s_cbranch_scc0 {k.ref(l)}")
            for t in range(10):
                if t < 7:
                    kind, r = wo(t, c)
                    tr_frag(k, r, kind, 72, RS2, 32 * t)
                else:
                    tr_frag(k, 64, 'v', 72, RS2, 32 * t)
                    k("s_waitcnt lgkmcnt(0)")
                    o = ((t - 7) * 3 + c) * 2048
                    k(f"ds_write_b128 v73, v[64:67] offset:{o}")
                    k(f"ds_write_b128 v73, v[68:71] offset:{o+1024}")
                    k("s_waitcnt lgkmcnt(0)")
            k("s_waitcnt lgkmcnt(0)")
            k.lab(l)
            k("s_barrier")
    k("v_mov_b32 v6, v73")
    k("v_mov_b32 v4, 0x4444"); k("v_mov_b32 v5, 0xeeee")
    k("v_cmp_gt_u32 vcc, 8, v2")
    k("v_cndmask_b32 v4, v5, v4, vcc")
    k("v_lshlrev_b32 v5, 4, v1")
    k("s_lshl_b32 s24, s3, 10")
    k("v_add_u32 v7, s24, v5")
    k("s_lshl_b32 s24, s3, 9"); k("s_add_u32 s24, s24, 8192")
    k("v_lshlrev_b32 v8, 3, v1")
    k("v_add_u32 v8, s24, v8")
    k("v_and_b32 v64, 7, v2"); k("v_lshlrev_b32 v9, 5, v64")
    k("v_lshrrev_b32 v64, 3, v2"); k("v_lshl_add_u32 v9, v64, 4, v9")
    k("v_and_b32 v64, 1, v3"); k("v_lshl_add_u32 v9, v64, 3, v9")
    k(f"s_mul_i32 s24, s3, 768"); k(f"s_add_u32 s24, s24, {L_V}")
    k("v_add_u32 v9, s24, v9")
    k("v_lshrrev_b32 v65, 1, v3")
    k("v_lshl_add_u32 v10, v65, 8, v9")
    k("v_lshrrev_b32 v64, 2, v2"); k("v_lshlrev_b32 v11, 5, v64")
    k("v_and_b32 v64, 3, v2"); k("v_lshl_add_u32 v11, v64, 3, v11")
    k("v_lshl_add_u32 v11, v3, 8, v11")
    k(f"v_add_u32 v11, {L_V}, v11")
    k("s_mul_i32 s24, s3, 10"); k("s_lshl_b32 s24, s24, 14"); k("s_lshl_b32 s25, s44, 8"); k("s_add_u32 s24, s24, s25")
    k("v_lshlrev_b32 v14, 14, v3")
    k("v_lshl_add_u32 v14, v2, 4, v14")
    k("v_add_u32 v14, s24, v14")
    k("v_lshrrev_b32 v64, 1, v3")
    k("v_lshlrev_b32 v15, 14, v64")
    k("v_lshl_add_u32 v15, v2, 4, v15")
    k("v_add_u32 v15, s24, v15")
    k(f"v_add_u32 v15, {8*16384}, v15")
    k("v_and_b32 v64, 1, v3")
    k("v_cmp_eq_u32 vcc, 0, v64")
    k(f"v_mov_b32 v64, {OOB}")
    k("v_cndmask_b32 v15, v64, v15, vcc")
    aprobe_addr(k, 12, 's2', RH_M)
    k("v_mov_b32 v0, 1")
    event(k, 1, 64)
    pol_get(k, 64)
    k.lab('v_layer')
    layer_bases(k)
    m0_image(k, 20, 64)
    k("s_mov_b32 s40, 0")
    k("s_mov_b32 s37, s93")
    k(f"s_add_u32 s43, s93, {O_VOM}")
    ensure_clear(k, 'v_ec0', 64, 's40')
    for r in range(16, 68): k(f"v_mov_b32 v{r}, 0")
    k("s_waitcnt lgkmcnt(0)")
    k("s_barrier")
    k("ds_read_b128 v[68:71], v7"); k("ds_read_b128 v[72:75], v7 offset:4096")
    k("s_waitcnt lgkmcnt(0)")
    for w in range(3):
        k(f"s_cmp_eq_u32 s3, {w}"); k(f"s_cbranch_scc1 {k.ref('v_gow' + str(w))}")
    k(f"s_branch {k.ref('v_gow3')}")
    SMF = "v_smfmac_f32_16x16x64_bf16"
    def loop(w):
        sf = 'w' + str(w)
        k.lab('v_step' + sf)
        stamp(k, 0)
        for r in range(16, 68): k(f"v_mov_b32 v{r}, 0")
        loads_ = [f"buffer_load_dwordx4 v[68:71], v7, s[8:11], s47 offen sc1",
                  f"buffer_load_dwordx4 v[72:75], v7, s[8:11], s48 offen sc1",
                  f"buffer_load_dwordx2 v[76:77], v8, s[8:11], s50 offen sc1"]
        k("s_add_u32 s48, s47, 4096"); k("s_add_u32 s50, s47, 8192")
        ensure_clear(k, 'v_ec' + sf, 78, 's40')
        aprobe(k, 'v_pr' + sf, 12, 's45', CFG['tgt_m'], [80, 81, 82, 83], CFG['pd_m'], CFG['pdep'], CFG['dly_v'])
        stamp(k, 5)
        for l in loads_: k(l)
        shot_check(k, 'v_pm' + sf, loads_, range(68, 78), 104 - 1, 0, CFG['sl_m'])
        stamp(k, 1)
        k(f"ds_write_b128 v7, v[68:71]")
        k(f"ds_write_b128 v7, v[72:75] offset:4096")
        k(f"ds_write_b64 v8, v[76:77]")
        k.lab('v_go' + sf)
        lg = LG(k)
        own = [w, 4 + w]; oth = [c for c in range(10) if c not in own]
        SL = [80, 84, 88, 92, 96, 100, 76, 68]
        def rdA(j):
            lg.issue(('A', j), f"ds_read_b128 v[{SL[j]}:{SL[j]+3}], v5 offset:{oth[j]*1024}")
        def sm(t, c, a):
            kind, r = wv(t, c)
            k(f"{SMF} v[{VACC+4*t}:{VACC+4*t+3}], v[{a}:{a+3}], {kind}[{r}:{r+7}], v4")
        for t in range(3): sm(t, own[0], 68)
        k("s_waitcnt lgkmcnt(0)")
        k("s_barrier")
        for j in range(8): rdA(j)
        for t in (2, 0, 1): sm(t, own[1], 72)
        for j in range(8):
            lg.wait(('A', j)); sm(2, oth[j], SL[j])
        E = [None] * 5
        E += [f"v_mov_b32 v{72+r}, v{VACC+8+r}" for r in range(4)] + [None]
        E += [f"v_permlane32_swap_b32 v{VACC+8+r}, v{72+r}" for r in range(4)]
        E += [f"v_add_f32 v{VACC+8+r}, v{VACC+8+r}, v{72+r}" for r in range(4)]
        E += [f"v_cvt_pk_bf16_f32 v72, v{VACC+8}, v{VACC+9}", f"v_cvt_pk_bf16_f32 v73, v{VACC+10}, v{VACC+11}"]
        E += [('x', f"ds_write_b64 v9, v[72:73] offset:512")]
        def extra(n):
            for _ in range(n):
                if E:
                    t_ = E.pop(0)
                    if isinstance(t_, tuple): lg.issue(*t_)
                    elif t_: k(t_)
        for j in range(8):
            sm(0, oth[j], SL[j]); extra(2)
            sm(1, oth[j], SL[j]); extra(2)
        extra(100)
        stamp(k, 2)
        for r in range(4): k(f"v_permlane32_swap_b32 v{VACC+r}, v{VACC+4+r}")
        for r in range(4): k(f"v_add_f32 v{VACC+r}, v{VACC+r}, v{VACC+4+r}")
        k(f"v_cvt_pk_bf16_f32 v{VA}, v{VACC}, v{VACC+1}")
        k(f"v_cvt_pk_bf16_f32 v{VA+1}, v{VACC+2}, v{VACC+3}")
        lg.issue('x', f"ds_write_b64 v10, v[{VA}:{VA+1}]")
        lg.all()
        k("s_barrier")
        for c in range(3):
            lg.issue(('V', c), f"ds_read_b64_tr_b16 v[{VA+4*c}:{VA+4*c+1}], v11 offset:{c*1024}")
            lg.issue(('V', c), f"ds_read_b64_tr_b16 v[{VA+4*c+2}:{VA+4*c+3}], v11 offset:{c*1024+128}")
        def rdWo(t, c, slot):
            b = STG + 8 * slot; o = ((t - 7) * 3 + c) * 2048
            lg.issue(('W', t, c), f"ds_read_b128 v[{b}:{b+3}], v6 offset:{o}")
            lg.issue(('W', t, c), f"ds_read_b128 v[{b+4}:{b+7}], v6 offset:{o+1024}")
        for c in range(3): rdWo(7, c, c)
        stamp(k, 3)
        acc = lambda t: MA + 4 * t
        def mm(t, c, B):
            k(f"{SMF} v[{acc(t)}:{acc(t)+3}], v[{VA+4*c}:{VA+4*c+3}], {B}, v4")
        def B_reg(t, c):
            kind, r = wo(t, c); return f"{kind}[{r}:{r+7}]"
        OUT = 56
        def epi(T, o):
            L = []
            t0, t1, t2, t3 = T
            for (x, y) in ((t0, t2), (t1, t3)):
                for r in range(4): L.append(f"v_permlane32_swap_b32 v{acc(x)+r}, v{acc(y)+r}")
                for r in range(4): L.append(f"v_add_f32 v{acc(x)+r}, v{acc(x)+r}, v{acc(y)+r}")
            L.append(f"v_cvt_pk_bf16_f32 v{o}, v{acc(t0)}, v{acc(t0)+1}")
            L.append(f"v_cvt_pk_bf16_f32 v{o+1}, v{acc(t0)+2}, v{acc(t0)+3}")
            L.append(f"v_cvt_pk_bf16_f32 v{o+2}, v{acc(t1)}, v{acc(t1)+1}")
            L.append(f"v_cvt_pk_bf16_f32 v{o+3}, v{acc(t1)+2}, v{acc(t1)+3}")
            L.append(None)
            L.append(f"v_permlane16_swap_b32 v{o}, v{o+2}")
            L.append(f"v_permlane16_swap_b32 v{o+1}, v{o+3}")
            for r in range(4): L.append(f"v_min_u32 v{o+r}, -2, v{o+r}")
            return L
        for c in range(3):
            lg.wait(('V', c))
            for t in range(4): mm(t, c, B_reg(t, c))
        E += [None, None] + epi([0, 1, 2, 3], OUT) + [f"buffer_store_dwordx4 v[{OUT}:{OUT+3}], v14, s[8:11], s43 offen sc1"]
        for c in range(3):
            for t in (4, 5, 6): mm(t, c, B_reg(t, c)); extra(2)
            lg.wait(('W', 7, c))
            mm(7, c, f"v[{STG+8*c}:{STG+8*c+7}]"); extra(2)
            rdWo(8, c, c)
        extra(100)
        k("s_add_u32 s49, s43, 65536")
        E += [None] + epi([4, 5, 6, 7], OUT + 4) + [f"buffer_store_dwordx4 v[{OUT+4}:{OUT+7}], v14, s[8:11], s49 offen sc1"]
        for c in range(3):
            lg.wait(('W', 8, c))
            mm(8, c, f"v[{STG+8*c}:{STG+8*c+7}]"); extra(CFG['v_x8'])
            rdWo(9, c, c)
        extra(CFG['v_x9'])
        for c in range(3):
            lg.wait(('W', 9, c))
            mm(9, c, f"v[{STG+8*c}:{STG+8*c+7}]"); extra(3)
        extra(100)
        o = OUT + 8
        for r in range(4): k(f"v_permlane32_swap_b32 v{acc(8)+r}, v{acc(9)+r}")
        for r in range(4): k(f"v_add_f32 v{acc(8)+r}, v{acc(8)+r}, v{acc(9)+r}")
        k(f"v_cvt_pk_bf16_f32 v{o}, v{acc(8)}, v{acc(8)+1}")
        k(f"v_cvt_pk_bf16_f32 v{o+1}, v{acc(8)+2}, v{acc(8)+3}")
        k(f"v_mov_b32 v{o+2}, v{o}")
        k(f"v_mov_b32 v{o+3}, v{o+1}")
        k(f"v_permlane16_swap_b32 v{o}, v{o+2}")
        k(f"v_permlane16_swap_b32 v{o+1}, v{o+3}")
        for r in range(4): k(f"v_min_u32 v{o+r}, -2, v{o+r}")
        k(f"buffer_store_dwordx4 v[{o}:{o+3}], v15, s[8:11], s43 offen sc1")
        stamp(k, 4)
        stamp_out(k, 6, 46)
        k("s_add_u32 s40, s40, 1")
        k(f"s_add_u32 s47, s37, {O_MB}"); k(f"s_add_u32 s45, s37, {O_HR}")
        blk_base(k, 's40', 's37')
        k(f"s_add_u32 s43, s37, {O_VOM}")
        k("s_cmp_lt_u32 s40, 64")
        k(f"s_cbranch_scc1 {k.ref('v_step' + sf)}")
        if w < 3: k(f"s_branch {k.ref('v_end')}")
    for w in range(4): loop(w)
    k.lab('v_end')
    event(k, 3, 64)
    next_layer(k, 'v_layer')

def role_R(k):
    BX, BN, PX, PM, VM, A1, A2 = 16, 48, 80, 96, 100, 108, 112
    TQ = 204
    k.lab('r_top')
    k("s_barrier")
    lk = k.new('rk')
    k("s_sub_u32 s24, s2, 64")
    k("s_cmp_ge_u32 s24, 24"); k(f"s_cbranch_scc1 {k.ref(lk)}")
    k("s_and_b32 s44, s24, 7"); k("s_lshr_b32 s45, s24, 3")
    k("s_cmp_eq_u32 s92, 0"); k("s_cselect_b32 s46, 32, 2")
    A.role_K2(k, Hooks())
    event(k, 5, 14)
    k.lab(lk)
    k("s_sub_u32 s44, s2, 64")
    k("v_lshlrev_b32 v5, 4, v1")
    k("s_lshl_b32 s24, s44, 15"); k("s_lshl_b32 s25, s3, 13"); k("s_add_u32 s24, s24, s25")
    k("v_add_u32 v6, s24, v5")
    k("v_add_u32 v7, 4096, v6")
    k("s_lshl_b32 s24, s3, 12"); k("s_and_b32 s25, s24, 0x2000"); k("s_add_u32 s24, s24, s25")
    k("v_add_u32 v8, s24, v5")
    k("s_lshl_b32 s24, s3, 10"); k("s_add_u32 s24, s24, 32768")
    k("v_add_u32 v9, s24, v5")
    k("s_lshl_b32 s24, s44, 14"); k("s_lshl_b32 s25, s3, 11"); k("s_add_u32 s24, s24, s25")
    k("v_add_u32 v10, s24, v5")
    k(f"v_and_b32 v{TQ}, 7, v2"); k(f"v_mul_u32_u24 v11, 80, v{TQ}")
    k("v_lshl_add_u32 v11, v3, 4, v11")
    k("s_mul_i32 s24, s3, 640")
    k("v_add_u32 v11, s24, v11")
    k(f"v_add_u32 v{TQ}, 8192, v5")
    k("v_cmp_gt_u32 vcc, 8, v2")
    k(f"v_cndmask_b32 v11, v{TQ}, v11, vcc")
    k(f"v_and_b32 v{TQ}, 7, v2"); k(f"v_mul_u32_u24 v12, 80, v{TQ}")
    k(f"v_lshrrev_b32 v{TQ}, 3, v2"); k(f"v_lshl_add_u32 v12, v{TQ}, 5, v12")
    k("v_lshlrev_b32 v13, 4, v2")
    k("s_lshl_b32 s24, s44, 8"); k("s_and_b32 s25, s24, 0x2000"); k("s_add_u32 s24, s24, s25")
    k("v_add_u32 v13, s24, v13")
    if CFG['r64']:
        k(f"v_mul_u32_u24 v{TQ}, 640, v3"); k(f"v_add_u32 v12, v12, v{TQ}")
        k("v_lshl_add_u32 v13, v3, 2, v13")
    else:
        k(f"v_mov_b32 v{TQ}, {OOB}")
        k(f"v_cmp_gt_u32 vcc, 1, v3")
        k(f"v_cndmask_b32 v13, v{TQ}, v13, vcc")
    k("v_cmp_le_u32 s[50:51], 8, v2")
    k("s_and_b32 s25, s44, 15"); k("s_lshr_b32 s25, s25, 2")
    k("s_sub_u32 s26, s44, 32"); k("s_lshr_b32 s26, s26, 1")
    k("s_cmp_ge_u32 s44, 32"); k("s_cselect_b32 s25, s26, s25")
    ahint_addr(k, 120, TQ, 's25', RH_M, False)
    aprobe_addr(k, 125, 's44', RH_P)
    k("v_mov_b32 v122, 12288")
    k("v_mov_b32 v123, 0")
    k("s_barrier")
    k("ds_write_b32 v122, v123")
    k("v_mov_b32 v123, 1")
    k("s_waitcnt lgkmcnt(0)")
    k("s_barrier")
    if CFG['pol_late']:
        lp = k.new('rp')
        k("s_cmp_eq_u32 s92, 0"); k(f"s_cbranch_scc0 {k.ref(lp)}")
        pol_get(k, TQ)
        k.lab(lp)
    layer_bases(k)
    k("s_mov_b32 s40, 0")
    k(f"s_mov_b32 s41, {WS_VOX}")
    k(f"s_add_u32 s45, s93, {O_HS}")
    k(f"s_add_u32 s46, s93, {O_HR}")
    k(f"s_add_u32 s43, s93, {O_PB}")
    k(f"s_add_u32 s42, s93, {O_VOM}")
    k(f"s_add_u32 s47, s93, {O_MB}")
    if CFG['rv_off']:
        k("s_cmp_eq_u32 s92, 1"); k(f"s_cselect_b32 s24, {OOB}, 0"); k("v_or_b32 v6, s24, v6"); k("v_or_b32 v7, s24, v7")
    def vox_loads():
        for q in range(4):
            k(f"buffer_load_dwordx4 v[{BN+4*q}:{BN+4*q+3}], v6, s[8:11], s41 offen offset:{q*1024} sc1")
        for q in range(4):
            k(f"buffer_load_dwordx4 v[{BN+16+4*q}:{BN+16+4*q+3}], v7, s[8:11], s41 offen offset:{q*1024} sc1")
        k(f"s_add_u32 s41, s41, {VOX_SEG}")
    k("v_and_b32 v252, 7, v1")
    k("v_lshlrev_b32 v252, 7, v252")
    k(f"s_lshl_b32 s24, s3, 10"); k(f"s_add_u32 s24, s24, {3*4096}"); k("s_add_u32 s24, s24, s94")
    k("v_add_u32 v252, s24, v252")
    k("s_mov_b32 s62, -1"); k("s_mov_b32 s63, 1")
    ensure(k, 'r_en0', 8, 252, 253, atomic=CFG['eat'] & 1)
    vox_loads()
    event(k, 2, 204)
    k("s_mov_b32 s58, 0")
    k.lab('r_step')
    k("s_waitcnt vmcnt(0)")
    if CFG['r_pre'] == 3:
        lq = k.new('rq')
        k("s_cmp_eq_u32 s58, 1"); k(f"s_cbranch_scc0 {k.ref(lq)}")
        k("v_readlane_b32 s58, v253, 0")
        for i in range(1, 8): k(f"v_readlane_b32 s24, v253, {i}"); k("s_min_i32 s58, s58, s24")
        k("s_max_i32 s62, s62, s58")
        k.lab(lq)
    for r in range(32): k(f"v_mov_b32 v{BX+r}, v{BN+r}")
    stamp(k, 0)
    loads_ = [f"buffer_load_dwordx4 v[{PX+4*q}:{PX+4*q+3}], v8, s[8:11], s43 offen offset:{q*1024} sc1" for q in range(4)]
    loads_ += [f"buffer_load_dwordx4 v[{PM}:{PM+3}], v9, s[8:11], s43 offen sc1"]
    loads_ += [f"buffer_load_dwordx4 v[{VM+4*q}:{VM+4*q+3}], v10, s[8:11], s42 offen offset:{q*1024} sc1" for q in range(2)]
    ensure_clear(k, 'r_ec', 253, 's40')
    aprobe(k, 'r_pr', 125, 's45', CFG['tgt_p'], [116, 117, 118, 119], CFG['pd_p'], CFG['pdep'], CFG['dly_p'])
    stamp(k, 4)
    loads_ = loads_[5:] + loads_[:5]
    for l in loads_: k(l)
    if CFG['hr_pos'] == 0:
        k("s_mov_b64 exec, 1")
        k("ds_add_rtn_u32 v124, v122, v123")
        k("s_mov_b64 exec, -1")
        if CFG['dly_hr']: k(f"s_sleep {CFG['dly_hr']}")
        k("s_waitcnt lgkmcnt(0)")
        k("v_readfirstlane_b32 s24, v124")
        k("s_and_b32 s24, s24, 3")
        k("s_cmp_eq_u32 s24, 3"); k(f"s_cselect_b32 s24, 0, {OOB}")
        k("v_or_b32 v126, s24, v120")
        ahint(k, 126, 123, 's46')
    shot_check(k, 'r_p', loads_, range(PX, VM + 8), TQ, 1 if CFG['hr_pos'] == 0 else 0, CFG['sl_p'])
    if CFG['hr_pos'] == 1:
        k("s_mov_b64 exec, 1")
        k("ds_add_rtn_u32 v124, v122, v123")
        k("s_mov_b64 exec, -1")
    stamp(k, 1)
    k(f"v_mfma_f32_16x16x32_bf16 v[{A1}:{A1+3}], v[{VM}:{VM+3}], v[{PM}:{PM+3}], 0")
    k(f"v_mfma_f32_16x16x32_bf16 v[{A2}:{A2+3}], v[{VM+4}:{VM+7}], v[{PM}:{PM+3}], 0")
    for q in range(4):
        k(f"v_mfma_f32_16x16x32_bf16 v[{A1}:{A1+3}], v[{BX+8*q}:{BX+8*q+3}], v[{PX+4*q}:{PX+4*q+3}], v[{A1}:{A1+3}]")
        k(f"v_mfma_f32_16x16x32_bf16 v[{A2}:{A2+3}], v[{BX+8*q+4}:{BX+8*q+7}], v[{PX+4*q}:{PX+4*q+3}], v[{A2}:{A2+3}]")
        if q == 0 and CFG['hr_pos'] == 1:
            lh = k.new('nh')
            k("s_waitcnt lgkmcnt(0)")
            k("v_readfirstlane_b32 s24, v124")
            k("s_and_b32 s24, s24, 3")
            k(f"s_cmp_eq_u32 s24, {CFG['hr_wave']}")
            k(f"s_cbranch_scc0 {k.ref(lh)}")
            ahint(k, 120, 123, 's46')
            k.lab(lh)
    k("s_and_b32 s24, s40, 1"); k("s_mul_i32 s24, s24, 2560")
    k("v_add_u32 v14, s24, v11")
    k("v_add_u32 v15, s24, v12")
    for r in range(4): k(f"v_cndmask_b32 v{A1+r}, v{A1+r}, v{A2+r}, s[50:51]")
    for r in range(4): k(f"v_add_f32 v{A1+r}, v{A1+r}, v{A1+r} row_ror:8 row_mask:0xf bank_mask:0xf")
    k(f"ds_write_b128 v14, v[{A1}:{A1+3}]")
    k("s_waitcnt lgkmcnt(0)")
    k("s_barrier")
    stamp(k, 2)
    l = k.new('np')
    k("s_cmp_eq_u32 s3, 0")
    k(f"s_cbranch_scc0 {k.ref(l)}")
    Q0 = 220
    if CFG['r64']:
        k(f"ds_read_b128 v[{Q0}:{Q0+3}], v15"); k(f"ds_read_b128 v[{Q0+4}:{Q0+7}], v15 offset:16")
        k("s_waitcnt lgkmcnt(0)")
        for q in range(4): k(f"v_permlane32_swap_b32 v{Q0+q}, v{Q0+4+q}")
        for q in (0, 2): k(f"v_pk_add_f32 v[{Q0+q}:{Q0+q+1}], v[{Q0+q}:{Q0+q+1}], v[{Q0+4+q}:{Q0+5+q}]")
        for q in range(2): k(f"v_permlane16_swap_b32 v{Q0+q}, v{Q0+2+q}")
        k(f"v_pk_add_f32 v[{Q0}:{Q0+1}], v[{Q0}:{Q0+1}], v[{Q0+2}:{Q0+3}]")
        k(f"v_cvt_pk_bf16_f32 v{Q0+8}, v{Q0}, v{Q0+1}")
        k(f"v_min_u32 v{Q0+8}, -2, v{Q0+8}")
        k(f"buffer_store_dword v{Q0+8}, v13, s[8:11], s47 offen sc1")
    else:
        sum4x8(k, Q0, 15, 640)
        for q in range(4): k(f"v_cvt_pk_bf16_f32 v{Q0+8+q}, v{Q0+2*q}, v{Q0+2*q+1}")
        for q in range(4): k(f"v_min_u32 v{Q0+8+q}, -2, v{Q0+8+q}")
        k(f"buffer_store_dwordx4 v[{Q0+8}:{Q0+11}], v13, s[8:11], s47 offen sc1")
    k.lab(l)
    if CFG['xflag']:
        l = k.new('xf')
        k("s_cmp_eq_u32 s3, 1"); k(f"s_cbranch_scc0 {k.ref(l)}")
        k("s_cmp_eq_u32 s44, 39"); k(f"s_cbranch_scc0 {k.ref(l)}")
        k("s_lshl_b32 s24, s92, 6"); k("s_add_u32 s24, s24, s40"); k("s_add_u32 s24, s24, 1")
        k(f"v_lshlrev_b32 v{TQ}, 7, v1"); k(f"v_add_u32 v{TQ}, {WS_FLG + F_S}, v{TQ}")
        k(f"v_mov_b32 v{TQ+1}, {OOB}"); k("v_cmp_le_u32 vcc, 8, v1"); k(f"v_cndmask_b32 v{TQ}, v{TQ}, v{TQ+1}, vcc")
        k(f"v_mov_b32 v{TQ+1}, s24")
        k(f"buffer_store_dword v{TQ+1}, v{TQ}, s[8:11], 0 offen sc1")
        k.lab(l)
    stamp(k, 3)
    k("s_add_u32 s63, s40, 2"); k("s_min_u32 s63, s63, 64")
    if CFG['r_pre'] == 3:
        lq = k.new('rq'); lk_ = k.new('rq'); lz = k.new('rq')
        k("s_mov_b32 s58, 0")
        k("s_cmp_ge_i32 s62, s63"); k(f"s_cbranch_scc0 {k.ref(lk_)}")
        k(f"s_add_u32 s24, s63, {CFG['r_ahead']}"); k("s_min_u32 s24, s24, 64")
        k("s_cmp_ge_i32 s62, s24"); k(f"s_cbranch_scc1 {k.ref(lq)}")
        k("s_mov_b32 s58, 1")
        if CFG['r_at'] == 0: k("buffer_load_dword v253, v252, s[8:11], 0 offen sc1")
        k.lab(lq)
        if CFG['dly_vox']: k(f"s_sleep {CFG['dly_vox']}")
        k(f"s_branch {k.ref(lz)}")
        k.lab(lk_)
        k("buffer_load_dword v253, v252, s[8:11], 0 offen sc1")
        if CFG['dly_vox']: k(f"s_sleep {CFG['dly_vox']}")
        k("s_waitcnt vmcnt(0)")
        k("v_readlane_b32 s62, v253, 0")
        for i in range(1, 8): k(f"v_readlane_b32 s24, v253, {i}"); k("s_min_i32 s62, s62, s24")
        ensure(k, 'r_en', 8, 252, 253)
        k.lab(lz)
    elif CFG['r_pre']:
        lq = k.new('rq')
        k("s_cmp_ge_i32 s62, s63"); k("s_cselect_b32 s58, 1, 0")
        if CFG['r_pre'] == 2: k("s_add_u32 s24, s63, 1"); k("s_min_u32 s24, s24, 64"); k("s_cmp_ge_i32 s62, s24"); k("s_cselect_b32 s58, 1, 0")
        k("s_cmp_eq_u32 s58, 1"); k(f"s_cbranch_scc1 {k.ref(lq)}")
        flag_read(k, 253, 252, 8, CFG['eat'] & 1)
        k.lab(lq)
    if CFG['dly_vox'] and CFG['r_pre'] != 3: k(f"s_sleep {CFG['dly_vox']}")
    if CFG['r_pre'] in (1, 2):
        lq = k.new('rq')
        k("s_cmp_eq_u32 s58, 1"); k(f"s_cbranch_scc1 {k.ref(lq)}")
        k("s_waitcnt vmcnt(0)")
        k("v_readlane_b32 s58, v253, 0")
        for i in range(1, 8): k(f"v_readlane_b32 s24, v253, {i}"); k("s_min_i32 s58, s58, s24")
        k("s_max_i32 s62, s62, s58")
        k.lab(lq)
    if CFG['r_pre'] != 3: ensure(k, 'r_en', 8, 252, 253, atomic=CFG['eat'] & 1)
    vox_loads()
    if CFG['r_pre'] == 3 and CFG['r_at'] == 1:
        lq = k.new('rq')
        k("s_cmp_eq_u32 s58, 1"); k(f"s_cbranch_scc0 {k.ref(lq)}")
        k("buffer_load_dword v253, v252, s[8:11], 0 offen sc1")
        k.lab(lq)
    stamp(k, 5)
    stamp_out(k, 6, TQ)
    k("s_add_u32 s40, s40, 1")
    blk_base(k, 's40', 's37')
    for sreg, o_ in (('s42', O_VOM), ('s43', O_PB), ('s47', O_MB), ('s45', O_HS), ('s46', O_HR)): k(f"s_add_u32 {sreg}, s37, {o_}")
    k("s_cmp_lt_u32 s40, 64")
    k(f"s_cbranch_scc1 {k.ref('r_step')}")
    k("s_waitcnt vmcnt(0)")
    event(k, 3, 204)
    next_layer(k, 'r_top')
def flag_pub(k, val):
    l = k.new('fp')
    k("s_cmp_eq_u32 s3, 0")
    k(f"s_cbranch_scc0 {k.ref(l)}")
    k(f"v_mov_b32 v15, {val}")
    k("buffer_store_dword v15, v14, s[8:11], 0 offen sc1")
    k.lab(l)

def flag_addr(k, role_sreg_or_const):
    if isinstance(role_sreg_or_const, int): k(f"s_mov_b32 s24, {role_sreg_or_const * 4096}")
    else: k(f"s_lshl_b32 s24, {role_sreg_or_const}, 12")
    k("s_lshl_b32 s25, s44, 7"); k("s_add_u32 s24, s24, s25"); k(f"s_add_u32 s24, s24, s94")
    k("v_mov_b32 v14, s24")
    k(f"v_mov_b32 v15, {OOB}")
    k("v_cmp_eq_u32 vcc, 0, v1")
    k("v_cndmask_b32 v14, v15, v14, vcc")

X_L_O = 83968
def x_init(k):
    TQ = 192
    k("s_sub_u32 s70, s2, 104")
    if CFG['xph'] == 1:
        k("s_and_b32 s71, s70, 3"); k("s_lshr_b32 s70, s70, 2")
        k("s_cmp_lt_u32 s70, 20"); k("s_cselect_b32 s64, s71, 64"); k("s_cselect_b32 s70, s70, 0")
    else:
        k("s_mul_i32 s71, s70, 205"); k("s_lshr_b32 s71, s71, 12")
        k("s_mul_i32 s24, s71, 20"); k("s_sub_u32 s70, s70, s24")
        k("s_cmp_lt_u32 s71, 4"); k("s_cselect_b32 s64, s71, 64")
    if CFG['x_off'] == 1: k("s_cmp_eq_u32 s92, 1"); k("s_cselect_b32 s64, 64, s64")
    if CFG['x_off'] in (2, 3):
        k("s_cmp_ge_u32 s2, 168"); k("s_cselect_b32 s24, 1, 0" if CFG['x_off'] == 2 else "s_cselect_b32 s24, 0, 1")
        k("s_and_b32 s24, s24, s92"); k("s_cmp_eq_u32 s24, 1"); k("s_cselect_b32 s64, 64, s64")
    k("s_lshl_b32 s24, s70, 16"); k("s_lshl_b32 s25, s3, 13"); k("s_add_u32 s24, s24, s25")
    k("v_add_u32 v240, s24, v5")
    k("v_add_u32 v241, 4096, v240")
    k("s_lshl_b32 s24, s70, 15"); k("s_lshl_b32 s25, s3, 11"); k("s_add_u32 s24, s24, s25")
    k("v_add_u32 v242, s24, v5")
    k("s_lshl_b32 s24, s3, 15")
    k(f"v_add_u32 v{TQ+1}, s24, v5")
    for jj in range(4): k(f"v_add_u32 v{212+jj}, {(jj >> 1)*16384 + (jj & 1)*4096}, v{TQ+1}")
    k("s_lshl_b32 s24, s3, 12"); k("s_and_b32 s25, s24, 0x2000"); k("s_add_u32 s24, s24, s25"); k("s_add_u32 s24, s24, 131072")
    k("v_add_u32 v216, s24, v5")
    k(f"s_lshl_b32 s24, s3, 12"); k(f"s_add_u32 s24, s24, {X_L_O}")
    k("v_add_u32 v217, s24, v5")
    k(f"s_and_b32 s24, s3, 1"); k("s_lshl_b32 s24, s24, 10"); k(f"s_add_u32 s24, s24, {X_L_O}")
    k("v_add_u32 v218, s24, v5")
    k("s_and_b32 s24, s3, 1"); k("s_mul_i32 s24, s24, 20480"); k("s_lshl_b32 s25, s70, 10"); k("s_add_u32 s24, s24, s25")
    k("v_add_u32 v219, s24, v5")
    k("s_and_b32 s24, s3, 1"); k("s_lshl_b32 s24, s24, 4")
    k("v_add_u32 v243, s24, v2")
    k("v_mul_u32_u24 v243, 1280, v243")
    k("v_lshl_add_u32 v243, v3, 3, v243")
    k("s_lshl_b32 s24, s70, 6")
    k("v_add_u32 v243, s24, v243")
    k.ptr(KA_OUT, 26); k("s_waitcnt lgkmcnt(0)"); k.srd(12, 26, S * D * 2)
    k(f"s_mul_i32 s65, s71, {VOX_SEG}"); k(f"s_add_u32 s65, s65, {WS_VOX}")
    blk_base(k, 's71', 's66')
    k("s_xor_b32 s67, s66, 0x2000")
    assert O_VOM == 0 and O_PX == 0
    k(f"s_mul_i32 s68, s71, 40960")
    k("v_and_b32 v252, 7, v1")
    k("v_lshlrev_b32 v252, 7, v252")
    k(f"s_lshl_b32 s24, s3, 10"); k(f"s_add_u32 s24, s24, {3*4096}"); k("s_add_u32 s24, s24, s94")
    k("v_add_u32 v252, s24, v252")
    k("s_mov_b32 s69, -1")
    k("s_lshl_b32 s24, s71, 7"); k("s_lshl_b32 s25, s70, 2"); k("s_add_u32 s24, s24, s25"); k(f"s_add_u32 s24, s24, {WS_FLG + F_X}")
    k("s_cmp_eq_u32 s3, 0"); k(f"s_cselect_b32 s24, s24, {OOB}")
    k("v_mov_b32 v245, s24"); k(f"v_mov_b32 v246, {OOB}"); k("v_cmp_eq_u32 vcc, 0, v1"); k("v_cndmask_b32 v245, v246, v245, vcc")
    k("s_mov_b32 s79, -1")
    k("s_mov_b32 s76, -1")
    if CFG['xpre']:
        k("v_lshlrev_b32 v248, 2, v1"); k("v_subrev_u32 v248, 32, v248")
        k("s_and_b32 s24, s2, 7"); k("s_lshl_b32 s24, s24, 7"); k(f"s_add_u32 s25, s24, {WS_FLG + F_C}"); k(f"s_add_u32 s24, s24, {WS_FLG + F_S}")
        k("v_add_u32 v248, s25, v248")
        k("v_cmp_gt_u32 vcc, 8, v1"); k("v_cndmask_b32 v248, v248, v252, vcc")
        k("v_mov_b32 v249, s24"); k("v_cmp_le_u32 vcc, 11, v1"); k("v_cndmask_b32 v248, v248, v249, vcc")
        k("v_mov_b32 v249, -1")

def x_pending(k):
    k("s_cmp_ge_i32 s79, 0"); k(f"s_cselect_b32 s24, 0, {OOB}")
    k("v_or_b32 v246, s24, v245"); k("v_mov_b32 v247, s79")
    k("buffer_store_dword v247, v246, s[8:11], 0 offen sc1")
    k("s_mov_b32 s79, -1")

def x_iter(k):
    BX, XP, XM, VM, OA, TQ, RES, Q0 = 16, 80, 144, 160, 176, 192, 196, 16
    if CFG['xpre']:
        k("v_readlane_b32 s63, v249, 0")
        for i in range(1, 8): k(f"v_readlane_b32 s24, v249, {i}"); k("s_min_i32 s63, s63, s24")
        k("s_max_i32 s69, s69, s63")
        k("v_readlane_b32 s63, v249, 8")
        for i in range(9, 11): k(f"v_readlane_b32 s24, v249, {i}"); k("s_min_i32 s63, s63, s24")
        k("s_max_i32 s59, s59, s63")
        k("v_readlane_b32 s24, v249, 11"); k("s_max_i32 s76, s76, s24")
    def xev(i):
        if CFG['stamp']:
            l_ = k.new('xe'); k("s_lshr_b32 s24, s64, 2"); k("s_cmp_eq_u32 s24, 8"); k(f"s_cbranch_scc0 {k.ref(l_)}"); event(k, i, 254); k.lab(l_)
    xev(5)
    k("s_add_u32 s63, s64, 1")
    ensure(k, 'x_en', 8, 252, 253, known='s69', atomic=CFG['eat'] & 4)
    ensure_clear(k, 'x_ec', 253, 's64')
    def xs_addr(k, dst):
        k("s_and_b32 s24, s2, 7"); k("s_lshl_b32 s24, s24, 7"); k(f"s_add_u32 s24, s24, {WS_FLG + F_S}"); k(f"v_mov_b32 v{dst}, s24")
    xev(6)
    k("s_add_u32 s52, s65, 32768")
    for rr in range(2):
        so = 's65' if rr == 0 else 's52'
        for q in range(8):
            r = BX + rr * 32 + 4 * q
            k(f"buffer_load_dwordx4 v[{r}:{r+3}], v{240 + q//4}, s[8:11], {so} offen offset:{(q%4)*1024} sc1")
    k("s_add_u32 s24, s68, s73")
    k(f"buffer_load_dwordx4 v[{RES}:{RES+3}], v219, s[8:11], s24 offen sc1")
    loads_ = []
    for j in range(8):
        for tt in range(2):
            r = XP + (j * 2 + tt) * 4
            loads_.append(f"buffer_load_dwordx4 v[{r}:{r+3}], v{212 + j//2}, s[8:11], s67 offen offset:{(j%2)*2048 + tt*1024} sc1")
    for q in range(2):
        for tt in range(2):
            r = XM + (q * 2 + tt) * 4
            loads_.append(f"buffer_load_dwordx4 v[{r}:{r+3}], v216, s[8:11], s67 offen offset:{q*2048 + tt*1024} sc1")
    if CFG['xflag']:
        k("s_lshl_b32 s77, s92, 6"); k("s_add_u32 s77, s77, s64"); k("s_add_u32 s77, s77, 1")
        if CFG['s_hint']:
            lx = k.new('xc'); ly = k.new('xc')
            k("s_cmp_ge_u32 s64, 60"); k(f"s_cbranch_scc0 {k.ref(lx)}")
            ensure(k, 'x_cf', 1, xs_addr, 253, need='s77', known='s76', sleep=CFG['sl_xf'])
            k(f"s_branch {k.ref(ly)}")
            k.lab(lx)
            ensure(k, 'x_cs', 1, xs_addr, 253, need='s77', known='s76', sleep=CFG['sl_xc'])
            k.lab(ly)
        else: ensure(k, 'x_cs', 1, xs_addr, 253, need='s77', known='s76', sleep=CFG['sl_xc'])
    else:
        poll(k, 'x_p0', loads_[15:16], range(XP + 60, XP + 64), TQ, CFG['sl_x0'], 0)
    xev(7)
    k("s_add_u32 s53, s66, 16384")
    for rr in range(2):
        so = 's66' if rr == 0 else 's53'
        for q in range(2):
            r = VM + rr * 8 + 4 * q
            loads_.append(f"buffer_load_dwordx4 v[{r}:{r+3}], v242, s[8:11], {so} offen offset:{q*1024} sc1")
    poll(k, 'x_p1', loads_, range(XP, VM + 16), TQ, CFG['sl_x'], 0)
    xev(14)
    oa = lambda rr, tt: OA + (rr * 2 + tt) * 4
    for j in range(8):
        for rr in range(2):
            for tt in range(2):
                a = oa(rr, tt); r = XP + (j * 2 + tt) * 4; b = BX + rr * 32 + 4 * j
                c = f"v[{a}:{a+3}]" if j else "0"
                k(f"v_mfma_f32_16x16x32_bf16 v[{a}:{a+3}], v[{b}:{b+3}], v[{r}:{r+3}], {c}")
    for q in range(2):
        for rr in range(2):
            for tt in range(2):
                a = oa(rr, tt); b = VM + rr * 8 + 4 * q; r = XM + (q * 2 + tt) * 4
                k(f"v_mfma_f32_16x16x32_bf16 v[{a}:{a+3}], v[{b}:{b+3}], v[{r}:{r+3}], v[{a}:{a+3}]")
    for t in range(4): k(f"ds_write_b128 v217, v[{OA+4*t}:{OA+4*t+3}] offset:{t*1024}")
    k("s_waitcnt lgkmcnt(0)")
    k("s_barrier")
    lskip = k.new('xs')
    k("s_cmp_ge_u32 s3, 2"); k(f"s_cbranch_scc1 {k.ref(lskip)}")
    for rr in range(2):
        for w in range(4): k(f"ds_read_b128 v[{Q0+16*rr+4*w}:{Q0+16*rr+4*w+3}], v218 offset:{w*4096 + rr*2048}")
    O = 48
    for rr in range(2):
        q = Q0 + 16 * rr
        k(f"s_waitcnt lgkmcnt({4 if rr == 0 else 0})")
        for r in range(0, 4, 2):
            k(f"v_pk_add_f32 v[{q+r}:{q+r+1}], v[{q+r}:{q+r+1}], v[{q+4+r}:{q+4+r+1}]")
            k(f"v_pk_add_f32 v[{q+8+r}:{q+8+r+1}], v[{q+8+r}:{q+8+r+1}], v[{q+12+r}:{q+12+r+1}]")
        for r in range(0, 4, 2):
            k(f"v_pk_add_f32 v[{q+r}:{q+r+1}], v[{q+r}:{q+r+1}], v[{q+8+r}:{q+8+r+1}]")
        k(f"v_cvt_pk_bf16_f32 v{q+4}, v{q}, v{q+1}")
        k(f"v_cvt_pk_bf16_f32 v{q+5}, v{q+2}, v{q+3}")
        for h in range(2):
            k(f"v_lshlrev_b32 v{q}, 16, v{q+4+h}")
            k(f"v_and_b32 v{q+1}, 0xffff0000, v{q+4+h}")
            k(f"v_lshlrev_b32 v{q+6}, 16, v{RES+2*rr+h}")
            k(f"v_and_b32 v{q+7}, 0xffff0000, v{RES+2*rr+h}")
            k(f"v_pk_add_f32 v[{q}:{q+1}], v[{q}:{q+1}], v[{q+6}:{q+7}]")
            k(f"v_cvt_pk_bf16_f32 v{O+2*rr+h}, v{q}, v{q+1}")
    l1 = k.new('xo')
    k("s_cmp_eq_u32 s92, 0"); k(f"s_cbranch_scc0 {k.ref(l1)}")
    k(f"s_add_u32 s24, s68, {A.WS_XF2}")
    k(f"buffer_store_dwordx4 v[{O}:{O+3}], v219, s[8:11], s24 offen sc1")
    k(f"s_branch {k.ref(lskip)}")
    k.lab(l1)
    k(f"buffer_store_dwordx2 v[{O}:{O+1}], v243, s[12:15], s68 offen")
    k(f"buffer_store_dwordx2 v[{O+2}:{O+3}], v243, s[12:15], s68 offen offset:32")
    k.lab(lskip)
    l2 = k.new('xp')
    k("s_lshr_b32 s25, s64, 2"); k("s_add_u32 s25, s25, 1")
    k("s_cmp_eq_u32 s92, 0"); k("s_cselect_b32 s79, s25, -1")
    k("s_cmp_lt_u32 s40, 64"); k(f"s_cbranch_scc1 {k.ref(l2)}")
    k("s_waitcnt vmcnt(0)")
    k("s_barrier")
    x_pending(k)
    k.lab(l2)
    xev(15)
    k("s_add_u32 s64, s64, 4")
    k(f"s_add_u32 s65, s65, {4*VOX_SEG}")
    k(f"s_add_u32 s66, s66, {4*SYNC_STEP}")
    k(f"s_add_u32 s67, s67, {4*SYNC_STEP}")
    k(f"s_add_u32 s68, s68, {4*40960}")

def role_P(k):
    RS, L_ST, L_PS = 400, 81920, 81920
    XPRE, BF, ACC, OUT, TMP, ST, CS, ONE = 16, 56, 88, 112, 124, 132, 224, 236
    k("s_sub_u32 s44, s2, 104")
    k("s_lshr_b32 s46, s44, 5")
    k("s_and_b32 s44, s44, 31")
    k.ptr(KA_WQ, 6); k.ptr(KA_WK, 24); k.ptr(KA_WV, 26)
    k("s_waitcnt lgkmcnt(0)")
    k("s_cmp_eq_u32 s46, 1"); k("s_cselect_b32 s6, s24, s6"); k("s_cselect_b32 s7, s25, s7")
    k("s_cmp_eq_u32 s46, 2"); k("s_cselect_b32 s6, s26, s6"); k("s_cselect_b32 s7, s27, s7")
    k.srd(12, 6, D * HD * 2)
    GO, LO, DAT = 4, 10, 56
    stage_offsets(k, 6, 24, HD * 2, RS, L_ST, GO, LO, 16)
    k("v_lshrrev_b32 v16, 2, v2")
    k("v_lshl_add_u32 v16, v3, 2, v16")
    k(f"v_mul_u32_u24 v32, {RS}, v16")
    k("v_and_b32 v16, 3, v2")
    k("v_lshl_add_u32 v32, v16, 3, v32")
    k(f"s_mul_i32 s24, s3, 96"); k(f"s_add_u32 s24, s24, {L_ST}")
    k("v_add_u32 v32, s24, v32")
    k("s_mul_i32 s45, s44, 384")
    def loads(c):
        d = DAT + 24 * (c % 8)
        k(f"s_add_u32 s47, s45, {c * 64 * HD * 2}")
        for i in range(6):
            k(f"buffer_load_dwordx4 v[{d+4*i}:{d+4*i+3}], v{GO+i}, s[12:15], s47 offen")
    for c in range(8): loads(c)
    C0, O0 = 16, 28
    for r in range(4): k(f"v_mov_b32 v{O0+r}, 0x3f803f80")
    def cs_mfma(c):
        for jj in range(2):
            j = 2 * c + jj
            for t in range(3):
                w = (t * 20 + j) * 4; cc = f"v[{C0+4*t}:{C0+4*t+3}]"
                k(f"v_mfma_f32_16x16x32_bf16 {cc}, a[{w}:{w+3}], v[{O0}:{O0+3}], {cc if j else 0}")
    waits = [42, 42, 42, 36, 30, 24, 18, 12, 6, 0]
    for c in range(10):
        d = DAT + 24 * (c % 8)
        k(f"s_waitcnt vmcnt({waits[c]})")
        for i in range(6): k(f"ds_write_b128 v{LO+i}, v[{d+4*i}:{d+4*i+3}] offset:{(c%2)*25600}")
        k("s_waitcnt lgkmcnt(0)")
        if c < 2: loads(c + 8)
        if c > 0: cs_mfma(c - 1)
        k("s_barrier")
        for t in range(3):
            for jj in range(2):
                r = (t * 20 + 2 * c + jj) * 4
                for hf in range(2):
                    k(f"ds_read_b64_tr_b16 a[{r+2*hf}:{r+2*hf+1}], v32 offset:{(c%2)*25600 + (32*jj + 16*hf)*RS + 32*t}")
    k("s_waitcnt lgkmcnt(0)")
    cs_mfma(9)
    for r in range(12): k(f"v_mov_b32 v{CS+r}, v{C0+r}")
    for r in range(4): k(f"v_mov_b32 v{ONE+r}, v{O0+r}")
    k("s_barrier")
    event(k, 1, 16)
    pol_get(k, 16)
    k.lab('p_layer')
    layer_bases(k)
    k("s_sub_u32 s44, s2, 104")
    k("s_lshr_b32 s46, s44, 5")
    k("s_and_b32 s44, s44, 31")
    k(f"s_mov_b32 s43, {WS_QF}")
    k("s_cmp_eq_u32 s46, 1"); k(f"s_cselect_b32 s43, {WS_KF}, s43")
    k("s_cmp_eq_u32 s46, 2"); k(f"s_cselect_b32 s43, {WS_VF}, s43")
    k("s_cmp_eq_u32 s92, 0"); k(f"s_cselect_b32 s73, {A.WS_XF1}, {A.WS_XF3}")
    k("v_lshlrev_b32 v5, 4, v1")
    k("s_mul_i32 s24, s3, 10240")
    k("v_add_u32 v6, s24, v5")
    k("v_add_u32 v7, 4096, v6"); k("v_add_u32 v8, 8192, v6")
    k("s_mul_i32 s24, s44, 12288"); k("s_mul_i32 s25, s3, 3072"); k("s_add_u32 s24, s24, s25")
    k("v_add_u32 v11, s24, v5")
    if CFG['p_off']:
        k("s_cmp_eq_u32 s92, 1"); k(f"s_cselect_b32 s24, {OOB}, 0"); k("v_or_b32 v11, s24, v11")
    k("s_lshr_b32 s24, s3, 1"); k("s_lshl_b32 s24, s24, 8"); k("s_and_b32 s25, s3, 1"); k("s_lshl_b32 s25, s25, 3")
    k("s_add_u32 s24, s24, s25"); k(f"s_add_u32 s24, s24, {L_PS}")
    k("v_lshlrev_b32 v13, 4, v2")
    k("v_add_u32 v12, s24, v13")
    k(f"v_add_u32 v13, {L_PS}, v13")
    if CFG['pstat'] == 1:
        k("v_lshrrev_b32 v15, 2, v2"); k("v_cmp_eq_u32 vcc, v15, v3")
        k(f"v_lshlrev_b32 v15, 3, v1"); k(f"v_add_u32 v15, {L_PS + 1024}, v15")
        k("v_cndmask_b32 v12, v15, v12, vcc")
        k("v_and_b32 v15, 3, v2")
        for i_, sp in ((1, 48), (2, 50), (3, 54)): k(f"v_cmp_eq_u32 s[{sp}:{sp+1}], {i_}, v15")
    k("s_and_b32 s24, s2, 7"); k("s_lshl_b32 s24, s24, 7"); k("s_lshl_b32 s25, s92, 10"); k("s_add_u32 s24, s24, s25")
    k(f"s_add_u32 s24, s24, {WS_FLG + F_K3}")
    if CFG['k3w']: k("s_mov_b32 s25, 20"); k("s_mov_b32 s75, 2"); k("s_mov_b32 s74, 16")
    else: k("s_cmp_eq_u32 s92, 0"); k("s_cselect_b32 s25, 20, 5"); k("s_cselect_b32 s75, 2, 0"); k("s_cselect_b32 s74, 16, 64")
    k("v_cmp_gt_u32 vcc, s25, v1"); k("v_cndmask_b32 v4, 0, v1, vcc")
    k("v_lshlrev_b32 v4, 2, v4"); k("v_add_u32 v4, s24, v4")
    flag_addr(k, 's46')
    k("s_cmp_eq_u32 s3, 0"); k(f"s_cselect_b32 s24, 0, {OOB}"); k("v_or_b32 v14, s24, v14")
    x_init(k)
    def xloads():
        for i in range(10):
            k(f"buffer_load_dwordx4 v[{XPRE+4*i}:{XPRE+4*i+3}], v{6 + i//4}, s[8:11], s41 offen offset:{(i%4)*1024} {CFG['px_mod']}")
    SA = 136
    FL = 152
    def stats_list():
        class L(list):
            def __call__(self, t): self.append(t)
        l = L(); row_stats_partial(l, XPRE, 40, SA, SA + 1, ONE, SA + 2); return l
    SM, SQ = 144, 148
    def stats_mfma():
        l = []
        for i in range(10):
            x = f"v[{XPRE+4*i}:{XPRE+4*i+3}]"
            l.append(f"v_mfma_f32_16x16x32_bf16 v[{SQ}:{SQ+3}], {x}, {x}, " + (f"v[{SQ}:{SQ+3}]" if i else "0"))
            l.append(f"v_mfma_f32_16x16x32_bf16 v[{SM}:{SM+3}], v[{ONE}:{ONE+3}], {x}, " + (f"v[{SM}:{SM+3}]" if i else "0"))
        return l
    def stats_sel():
        return [f"v_cndmask_b32 v{SM+1}, v{SQ}, v{SQ+1}, s[48:49]", f"v_cndmask_b32 v{SM+1}, v{SM+1}, v{SQ+2}, s[50:51]",
                f"v_cndmask_b32 v{SM+1}, v{SM+1}, v{SQ+3}, s[54:55]"]
    SR = SM if CFG['pstat'] == 1 else SA
    def xstage(wbase, psw):
        if CFG['pstat'] == 1:
            for t in stats_mfma(): k(t)
            for i in range(10): k(f"ds_write_b128 v{wbase}, v[{XPRE+4*i}:{XPRE+4*i+3}] offset:{i*1024}")
            for t in stats_sel(): k(t)
        else:
            for t in stats_list(): k(t)
            for i in range(10): k(f"ds_write_b128 v{wbase}, v[{XPRE+4*i}:{XPRE+4*i+3}] offset:{i*1024}")
        k(f"ds_write_b64 v{psw}, v[{SR}:{SR+1}]")
    k("s_mov_b32 s62, -1"); k("s_mov_b32 s63, 1")
    if CFG['k3w']:
        k("s_mov_b32 s39, -1")
        ensure(k, 'p_en0', 5, 4, 16, known='s39')
    else: ensure(k, 'p_en0', 20, 4, 16)
    k("s_mov_b32 s41, s73")
    xloads()
    k("s_mov_b32 s40, 0")
    k("s_mov_b32 s42, 0")
    k("s_waitcnt vmcnt(0)")
    xstage(6, 12)
    k("s_waitcnt lgkmcnt(0)")
    k("s_barrier")
    event(k, 2, 16)
    acc = lambda tt, t: ACC + (tt * 3 + t) * 4
    def need_next():
        k("s_add_u32 s63, s40, 1"); k("s_lshr_b32 s63, s63, s75"); k("s_add_u32 s63, s63, 1"); k("s_min_u32 s63, s63, s74")
    def body(steady):
        if steady: stamp(k, 0)
        k("v_add_u32 v9, s42, v5")
        k("s_xor_b32 s42, s42, 40960")
        k("v_add_u32 v10, s42, v6")
        if steady:
            need_next()
            ensure(k, 'p_en', 20, 4, 16)
            k("s_add_u32 s41, s41, 40960")
            xloads()
            stamp(k, 1)
        k("s_and_b32 s24, s40, 1"); k("s_lshl_b32 s24, s24, 9")
        k(f"v_add_u32 v{TMP}, s24, v13")
        k("s_xor_b32 s24, s24, 512")
        k(f"v_add_u32 v{SA+4}, s24, v12")
        lg = LG(k)
        lg.issue('ps', f"ds_read_b128 v[{OUT}:{OUT+3}], v{TMP}")
        lg.issue('ps', f"ds_read_b128 v[{OUT+4}:{OUT+7}], v{TMP} offset:256")
        def rd(j):
            for tt in range(2):
                r = BF + ((j % 4) * 2 + tt) * 4
                lg.issue(j, f"ds_read_b128 v[{r}:{r+3}], v9 offset:{tt*20480 + j*1024}")
        rd(0); rd(1); rd(2)
        class L(list):
            def __call__(self, t): self.append(t)
        extra = L()
        row_stats_final(extra, OUT, ST); row_stats_final(extra, OUT + 4, ST + 2)
        wr = []; sm = []
        for j in range(20):
            if j + 3 < 20: rd(j + 3)
            lg.wait(j)
            if steady and j == 11:
                stamp(k, 4)
                k(f"s_waitcnt vmcnt({(3 if CFG['p_adapt'] else 2) + CFG['xpre']})")
                stamp(k, 5)
                if CFG['pstat'] == 1: sm = stats_mfma()
                else: extra.extend(stats_list())
                wr = [f"ds_write_b128 v10, v[{XPRE+4*i}:{XPRE+4*i+3}] offset:{i*1024}" for i in range(10)]
            for tt in range(2):
                r = BF + ((j % 4) * 2 + tt) * 4
                for t in range(3):
                    a = acc(tt, t); w = (t * 20 + j) * 4
                    c = f"v[{a}:{a+3}]" if j else "0"
                    k(f"v_mfma_f32_16x16x32_bf16 v[{a}:{a+3}], a[{w}:{w+3}], v[{r}:{r+3}], {c}")
                    for _ in range(CFG['p_nx']):
                        if extra: k(extra.pop(0))
                    if t == 1 and wr and (CFG['p_wr'] == 1 or tt == 0 or True) and (CFG['p_wr'] == 2 or tt == 0): lg.issue('w', wr.pop(0))
            for _ in range(3):
                if sm: k(sm.pop(0))
            if steady and CFG['pstat'] == 1 and j == 19:
                for t_ in stats_sel(): k(t_)
            if not steady and CFG['p_ovl'] and j == CFG['p_ovl_j']: k(f"buffer_load_dword v{FL}, v4, s[8:11], 0 offen sc1")
            if steady and j == 9:
                stamp(k, 2)
                k("s_waitcnt vmcnt(10)")
                k("s_barrier")
                stamp(k, 3)
                k("v_mov_b32 v15, s40")
                k("buffer_store_dword v15, v14, s[8:11], 0 offen sc1")
                x_pending(k)
                if CFG['p_adapt']: k(f"buffer_load_dword v{FL}, v4, s[8:11], 0 offen sc1")
                if CFG['xpre']: k("buffer_load_dword v249, v248, s[8:11], 0 offen sc1")
        for t_ in wr: lg.issue('w', t_)
        assert not sm
        for t_ in extra: k(t_)
        if steady: lg.issue('w', f"ds_write_b64 v{SA+4}, v[{SR}:{SR+1}]")
        for tt in range(2):
            for t in range(3): ln_fold(k, acc(tt, t), CS + 4 * t, ST + 2 * tt, TMP)
        for o, (tt, t) in enumerate([(0, 0), (0, 1), (1, 0), (1, 1), (0, 2), (1, 2)]):
            a = acc(tt, t)
            k(f"v_cvt_pk_bf16_f32 v{OUT+2*o}, v{a}, v{a+1}")
            k(f"v_cvt_pk_bf16_f32 v{OUT+2*o+1}, v{a+2}, v{a+3}")
        for b in range(3):
            k(f"buffer_store_dwordx4 v[{OUT+4*b}:{OUT+4*b+3}], v11, s[8:11], s43 offen offset:{b*1024} sc1")
        k(f"s_add_u32 s43, s43, {QF_SEG}")
        if steady and CFG['p_adapt']: k("s_waitcnt vmcnt(3)")
        if not steady:
            lj = k.new('po')
            if CFG['p_ovl']:
                lo = k.new('po')
                k("s_waitcnt vmcnt(3)")
                need_next()
                k(f"v_cmp_le_i32 vcc, s63, v{FL}")
                k("s_cmp_eq_u64 vcc, -1"); k("s_cselect_b32 s24, 1, 0")
                k("s_cmp_ge_i32 s62, s63"); k("s_cselect_b32 s24, 1, s24")
                k("s_cmp_eq_u32 s24, 1"); k(f"s_cbranch_scc0 {k.ref(lo)}")
                k("s_max_i32 s62, s62, s63")
                k("s_add_u32 s41, s41, 40960")
                xloads()
                k(f"buffer_load_dword v{FL}, v4, s[8:11], 0 offen sc1")
                k("s_waitcnt vmcnt(11)")
                k("s_barrier")
                k("s_add_u32 s24, s40, 1"); k("v_mov_b32 v15, s24")
                k("buffer_store_dword v15, v14, s[8:11], 0 offen sc1")
                k(f"s_branch {k.ref(lj)}")
                k.lab(lo)
            k("s_waitcnt vmcnt(0)")
            k("s_barrier")
            k("s_add_u32 s24, s40, 1"); k("v_mov_b32 v15, s24")
            k("buffer_store_dword v15, v14, s[8:11], 0 offen sc1")
            need_next()
            ensure(k, 'p_enA', 20, 4, 16)
            k("s_add_u32 s41, s41, 40960")
            xloads()
            if CFG['p_adapt']: k(f"buffer_load_dword v{FL}, v4, s[8:11], 0 offen sc1")
            k.lab(lj)
            k("s_waitcnt vmcnt(0)")
            xstage(10, SA + 4)
        if steady and CFG['stamp']:
            k("s_waitcnt lgkmcnt(0)"); k("s_memrealtime s[56:57]"); k("s_waitcnt lgkmcnt(0)"); k("s_mov_b32 s57, s56"); stamp_out(k, 6, 16)
        k("s_add_u32 s40, s40, 1")
        if CFG['p_adapt']:
            need_next()
            k(f"v_cmp_le_i32 vcc, s63, v{FL}")
            k("s_cmp_eq_u64 vcc, -1"); k("s_cselect_b32 s58, 1, 0")
            k("s_cmp_ge_i32 s62, s63"); k("s_cselect_b32 s58, 1, s58")
            k("s_and_b32 s24, s40, 1"); k("s_lshl_b32 s24, s24, 2"); k(f"s_add_u32 s24, s24, {L_PS + 1536}")
            k("s_lshl_b32 s25, s3, 4"); k("s_add_u32 s25, s25, s24")
            k("v_mov_b32 v15, s25"); k(f"v_mov_b32 v{FL}, s58")
            k(f"ds_write_b32 v15, v{FL}")
            k("v_mov_b32 v15, s24")
        k("s_waitcnt lgkmcnt(0)")
        k("s_barrier")
        if CFG['p_adapt']:
            k(f"ds_read_b32 v{FL}, v15")
            k("s_waitcnt lgkmcnt(0)")
            k(f"v_readfirstlane_b32 s58, v{FL}")
            k("s_cmp_eq_u32 s58, 1"); k("s_cselect_b32 s24, s63, s62"); k("s_max_i32 s62, s62, s24")
    k(f"s_branch {k.ref('p_segA')}")
    k.lab('p_pubA')
    k("s_waitcnt vmcnt(0)")
    k("s_barrier")
    flag_pub(k, 's40')
    k.lab('p_segA')
    body(False)
    if not CFG['p_adapt']:
        k(f"s_cmp_lt_u32 s40, {CFG['p_ns']}"); k(f"s_cbranch_scc1 {k.ref('p_segA')}")
    k(f"s_branch {k.ref('p_next')}")
    k.lab('p_seg')
    body(True)
    k.lab('p_next')
    if CFG['stamp']:
        for i_, sv in enumerate((8, 16, 32, 48)):
            l_ = k.new('pe'); k(f"s_cmp_eq_u32 s40, {sv}"); k(f"s_cbranch_scc0 {k.ref(l_)}"); event(k, 8 + i_, 16); k.lab(l_)
    def go_seg():
        if CFG['p_adapt']:
            l_ = k.new('pg')
            k("s_cmp_lt_u32 s40, 64"); k(f"s_cbranch_scc0 {k.ref(l_)}")
            k("s_cmp_eq_u32 s58, 1"); k(f"s_cbranch_scc1 {k.ref('p_seg')}")
            k(f"s_branch {k.ref('p_pubA')}")
            k.lab(l_)
        else:
            k("s_cmp_lt_u32 s40, 64"); k(f"s_cbranch_scc1 {k.ref('p_seg')}")
    def lag():
        if CFG['xlag_e'] != CFG['xlag']:
            k(f"s_cmp_ge_u32 s64, {CFG['xe0']}"); k(f"s_cselect_b32 s24, {CFG['xlag_e']}, {CFG['xlag']}"); k("s_add_u32 s24, s24, s64")
        else: k(f"s_add_u32 s24, s64, {CFG['xlag']}")
        k("s_cmp_le_u32 s24, s40")
    lag(); k(f"s_cbranch_scc1 {k.ref('p_pub')}")
    go_seg()
    k.lab('p_pub')
    k("s_waitcnt vmcnt(0)")
    k("s_barrier")
    flag_pub(k, 's40')
    lag(); k(f"s_cbranch_scc1 {k.ref('p_x')}")
    go_seg()
    k("s_cmp_ge_u32 s64, 64"); k(f"s_cbranch_scc1 {k.ref('p_done')}")
    k.lab('p_x')
    x_iter(k)
    k(f"s_branch {k.ref('p_next')}")
    k.lab('p_done')
    event(k, 3, 16)
    next_layer(k, 'p_layer')

def role_O(k):
    RS = 1312
    VFa, VFb, ACC, OUT = 16, 64, 112, 192
    k("s_sub_u32 s44, s2, 200")
    k.ptr(KA_WO, 6)
    k("s_waitcnt lgkmcnt(0)")
    k.srd(12, 6, D * HD * 2)
    LO, D0, D1 = 16, 48, 168
    for i in range(30):
        k(f"v_add_u32 v8, {256*i}, v0")
        divmod_const(k, 9, 10, 8, 80, 256 * 30, 24)
        k(f"v_mul_u32_u24 v{LO+i}, {RS}, v9")
        k(f"v_lshl_add_u32 v{LO+i}, v10, 4, v{LO+i}")
    k("v_lshlrev_b32 v4, 4, v0")
    k(f"s_mul_i32 s45, s44, {192*1280}")
    dat = lambda b, i: (D0 + 4 * i) if b == 0 else ((D1 + 4 * i) if i < 22 else (D0 + 4 * (i - 22)))
    def ld(b, i):
        k(f"s_add_u32 s46, s45, {b*96*1280 + i*4096}")
        d = dat(b, i)
        k(f"buffer_load_dwordx4 v[{d}:{d+3}], v4, s[12:15], s46 offen")
    for i in range(30): ld(0, i)
    for i in range(22): ld(1, i)
    k("v_lshrrev_b32 v8, 2, v2")
    k("v_lshl_add_u32 v8, v3, 2, v8")
    k(f"v_mul_u32_u24 v5, {RS}, v8")
    k("v_and_b32 v8, 3, v2")
    k("v_lshl_add_u32 v5, v8, 3, v5")
    k("s_mul_i32 s24, s3, 320")
    k("v_add_u32 v5, s24, v5")
    k(f"v_add_u32 v6, {48*RS}, v5")
    for b in range(2):
        k(f"s_waitcnt vmcnt({22 if b == 0 else 0})")
        for i in range(30):
            d = dat(b, i)
            k(f"ds_write_b128 v{LO+i}, v[{d}:{d+3}]")
        k("s_waitcnt lgkmcnt(0)")
        if b == 0:
            for i in range(22, 30): ld(1, i)
        k("s_barrier")
        for t in range(10):
            def tr(ks, hf, base, row):
                r = (t * 6 + ks) * 4 + 2 * hf
                k(f"ds_read_b64_tr_b16 a[{r}:{r+1}], v{base} offset:{row*RS + 32*t}")
            tr(2*b, 0, 5, 0); tr(2*b, 1, 5, 16)
            tr(2*b+1, 0, 6, 0); tr(2*b+1, 1, 6, 16)
            tr(4+b, 0, 5, 32); tr(4+b, 1, 6, 32)
        k("s_waitcnt lgkmcnt(0)")
        k("s_barrier")
    k("v_lshlrev_b32 v5, 4, v1")
    k("s_mul_i32 s24, s44, 12288")
    k("v_add_u32 v6, s24, v5")
    k("v_add_u32 v7, 4096, v6"); k("v_add_u32 v8, 8192, v6")
    k(f"s_mul_i32 s24, s3, {10*32768}"); k("s_lshl_b32 s25, s44, 10"); k("s_add_u32 s24, s24, s25")
    k("v_add_u32 v9, s24, v5")
    event(k, 1, 16)
    k.lab('o_layer')
    layer_bases(k)
    flag_addr(k, 3)
    if CFG['o_off']:
        k("s_cmp_eq_u32 s92, 1"); k(f"s_cselect_b32 s24, {OOB}, 0"); k("v_or_b32 v9, s24, v9")
    k(f"s_lshl_b32 s24, s44, 7"); k(f"s_add_u32 s24, s24, {2*4096}"); k("s_add_u32 s24, s24, s94")
    k("v_mov_b32 v10, s24")
    k(f"s_mov_b32 s41, {WS_VF}")
    k(f"s_mov_b32 s43, {WS_VOX}")
    k("s_mov_b32 s40, 0")
    def vloads(V):
        for i in range(12):
            k(f"buffer_load_dwordx4 v[{V+4*i}:{V+4*i+3}], v{6 + i//4}, s[8:11], s41 offen offset:{(i%4)*1024} sc1")
        k(f"s_add_u32 s41, s41, {QF_SEG}")
    k("s_mov_b32 s62, -1"); k("s_mov_b32 s63, 1")
    ensure(k, 'o_en0', 1, 10, 11, atomic=CFG['eat'] & 8)
    vloads(VFa)
    k("s_waitcnt vmcnt(0)")
    event(k, 2, 240)
    k.lab('o_seg')
    for par, (V, VN) in enumerate(((VFa, VFb), (VFb, VFa))):
        for p in range(2):
            X = V + (6 * p + 2) * 4; Y = V + (6 * p + 5) * 4
            k(f"v_swap_b32 v{X+2}, v{Y}"); k(f"v_swap_b32 v{X+3}, v{Y+1}")
        def frag(tt, ks):
            if ks < 4: return V + (3 * ks + tt) * 4
            p = ks - 4
            return V + (6 * p + 2) * 4 if tt == 0 else V + (6 * p + 5) * 4
        def nxt(tag):
            k("s_add_u32 s63, s40, 2"); k("s_min_u32 s63, s63, 64")
            ensure(k, tag, 1, 10, 11, atomic=CFG['eat'] & 8)
            vloads(VN)
        stamp(k, 0)
        if CFG['o_adapt']: flag_read(k, 232, 10, 1, CFG['eat'] & 8)
        for ks in range(6):
            for t in range(10):
                for tt in range(2):
                    a = ACC + (t * 2 + tt) * 4; w = (t * 6 + ks) * 4; f = frag(tt, ks)
                    c = f"v[{a}:{a+3}]" if ks else "0"
                    k(f"v_mfma_f32_16x16x32_bf16 v[{a}:{a+3}], v[{f}:{f+3}], a[{w}:{w+3}], {c}")
            if ks == 4 and CFG['o_adapt'] and CFG['o_ovl']: flag_read(k, 233, 10, 1, CFG['eat'] & 8)
            if ks == 2 and CFG['o_adapt']:
                lf = k.new('of')
                k("s_waitcnt vmcnt(0)")
                k("v_readfirstlane_b32 s24, v232"); k("s_max_i32 s62, s62, s24")
                k("s_add_u32 s63, s40, 2"); k("s_min_u32 s63, s63, 64")
                k("s_cmp_ge_i32 s62, s63"); k("s_cselect_b32 s24, 1, 0")
                k("s_lshl_b32 s25, s3, 4"); k(f"s_add_u32 s25, s25, {4*par}")
                k("v_mov_b32 v12, s25"); k("v_mov_b32 v13, s24")
                k("ds_write_b32 v12, v13")
                k(f"v_mov_b32 v12, {4*par}")
                k("s_waitcnt lgkmcnt(0)")
                k("s_barrier")
                k("ds_read_b32 v13, v12")
                flag_pub(k, 's40')
                k("s_waitcnt lgkmcnt(0)")
                k("v_readfirstlane_b32 s58, v13")
                k("s_cmp_eq_u32 s58, 1"); k(f"s_cbranch_scc0 {k.ref(lf)}")
                k("s_max_i32 s62, s62, s63")
                vloads(VN)
                k.lab(lf)
            elif ks == 2:
                lf = k.new('of')
                if par == 0:
                    k("s_cmp_eq_u32 s40, 0"); k(f"s_cbranch_scc1 {k.ref(lf)}")
                k("s_waitcnt vmcnt(0)")
                k("s_barrier")
                flag_pub(k, 's40')
                nxt(f'o_en{par+1}')
                k.lab(lf)
        stamp(k, 1)
        k("s_mov_b32 s46, s43")
        for t in range(10):
            o = OUT + 4 * t
            for tt in range(2):
                a = ACC + (t * 2 + tt) * 4
                k(f"v_cvt_pk_bf16_f32 v{o+2*tt}, v{a}, v{a+1}")
                k(f"v_cvt_pk_bf16_f32 v{o+2*tt+1}, v{a+2}, v{a+3}")
            k(f"buffer_store_dwordx4 v[{o}:{o+3}], v9, s[8:11], s46 offen sc1")
            if t < 9: k("s_add_u32 s46, s46, 32768")
        stamp(k, 2)
        if CFG['o_adapt']:
            lf = k.new('of')
            k("s_cmp_eq_u32 s58, 1"); k(f"s_cbranch_scc1 {k.ref(lf)}")
            if CFG['o_ovl']:
                lo = k.new('oo')
                k("s_waitcnt vmcnt(10)")
                k("v_readfirstlane_b32 s24, v233"); k("s_max_i32 s62, s62, s24")
                k("s_add_u32 s63, s40, 2"); k("s_min_u32 s63, s63, 64")
                k("s_cmp_ge_i32 s62, s63"); k(f"s_cbranch_scc0 {k.ref(lo)}")
                vloads(VN)
                k("s_waitcnt vmcnt(12)")
                k("s_barrier")
                k("s_add_u32 s24, s40, 1")
                flag_pub(k, 's24')
                k("s_waitcnt vmcnt(0)")
                k(f"s_branch {k.ref(lf)}")
                k.lab(lo)
            k("s_waitcnt vmcnt(0)")
            k("s_barrier")
            k("s_add_u32 s24, s40, 1")
            flag_pub(k, 's24')
            nxt(f'o_en{par+3}')
            k("s_waitcnt vmcnt(0)")
            k.lab(lf)
        elif par == 0:
            lf = k.new('of')
            k("s_cmp_eq_u32 s40, 0"); k(f"s_cbranch_scc0 {k.ref(lf)}")
            k("s_waitcnt vmcnt(0)")
            k("s_barrier")
            flag_pub(k, 1)
            nxt('o_en3')
            k("s_waitcnt vmcnt(0)")
            k.lab(lf)
        k("s_waitcnt vmcnt(10)")
        if CFG['stamp']:
            stamp(k, 3); k("s_waitcnt lgkmcnt(0)"); k("s_mov_b32 s57, s58"); k("s_mov_b32 s56, s62"); stamp_out(k, 4, 236)
        k("s_add_u32 s40, s40, 1")
        k(f"s_add_u32 s43, s43, {VOX_SEG}")
    k("s_cmp_lt_u32 s40, 64")
    k(f"s_cbranch_scc1 {k.ref('o_seg')}")
    k("s_waitcnt vmcnt(0)")
    k("s_barrier")
    flag_pub(k, 's40')
    event(k, 3, 240)
    next_layer(k, 'o_layer')
def pol_probe(k):
    if CFG['pol'] < 0:
        k("s_waitcnt vmcnt(0)")
        k("s_lshl_b32 s24, s3, 9"); k(f"s_add_u32 s24, s24, {WS_SYNC + 0xF0000}")
        k("v_mov_b32 v154, 0")
        k("s_lshl_b32 s27, s3, 3"); k("s_add_u32 s27, s27, 131072")
        for cl in range(2):
            k("s_barrier")
            k("s_mov_b32 s25, -1")
            k("s_mov_b64 exec, 1")
            for i in range(CFG['npol']):
                k("v_mov_b32 v155, 0")
                k("s_memtime s[28:29]"); k("s_waitcnt lgkmcnt(0)")
                k(f"buffer_atomic_add v155, v154, s[8:11], s24 offen offset:{128 * i} sc0")
                k("s_waitcnt vmcnt(0)")
                k("s_memtime s[30:31]"); k("s_waitcnt lgkmcnt(0)")
                k("s_sub_u32 s30, s30, s28"); k("s_min_u32 s25, s25, s30")
            k("v_mov_b32 v148, s27"); k("v_mov_b32 v155, s25")
            k(f"ds_write_b32 v148, v155 offset:{4 * cl}")
            k("s_mov_b64 exec, -1")
            k("s_add_u32 s24, s24, 0x2000")
        k("s_waitcnt lgkmcnt(0)")
        k("s_barrier")
        k("v_mov_b32 v154, 131072")
        k("ds_read_b128 v[148:151], v154"); k("ds_read_b128 v[152:155], v154 offset:16")
        k("s_waitcnt lgkmcnt(0)")
        k("v_min_u32 v148, v148, v152"); k("v_min_u32 v149, v149, v153"); k("v_min_u32 v150, v150, v154"); k("v_min_u32 v151, v151, v155")
        if CFG.get('poldbg'):
            k(f"v_mov_b32 v154, {OOB}"); k("v_cmp_eq_u32 vcc, 0, v1"); k("v_cndmask_b32 v154, v154, 16, vcc")
            k("buffer_store_dwordx4 v[148:151], v154, s[72:75], 0 offen sc1"); k("s_waitcnt vmcnt(0)")
        k("v_min_u32 v148, v148, v150"); k("v_min_u32 v149, v149, v151")
        k("v_cmp_lt_u32 vcc, v149, v148")
        k("v_cndmask_b32 v155, 1, 2, vcc")
    else:
        k("s_waitcnt vmcnt(0)")
        k("s_barrier")
        k(f"v_mov_b32 v155, {1 + CFG['pol']}")

def pol_publish(k, l, off):
    k("s_cmp_eq_u32 s3, 0"); k(f"s_cbranch_scc0 {k.ref(l)}")
    k(f"v_mov_b32 v154, {OOB}"); k("v_cmp_eq_u32 vcc, 0, v1"); k(f"v_cndmask_b32 v154, v154, {off}, vcc")
    k("buffer_store_dword v155, v154, s[72:75], 0 offen sc1")
    k.lab(l)

def pol_get(k, t):
    if not CFG['pol_late']: return
    l = k.new('pg')
    k.ptr(KA_DBG, 26); k("s_waitcnt lgkmcnt(0)"); k.srd(28, 26, 256)
    k("s_mov_b32 s61, 0")
    k(f"v_mov_b32 v{t+1}, 4")
    k.lab(l)
    k(f"buffer_load_dword v{t}, v{t+1}, s[28:31], 0 offen sc1")
    k("s_waitcnt vmcnt(0)")
    k(f"v_readfirstlane_b32 s24, v{t}")
    k("s_cmp_ge_u32 s24, 1"); k(f"s_cbranch_scc1 {k.ref(l + '_ok')}")
    k("s_add_u32 s61, s61, 1"); k("s_cmp_ge_u32 s61, s60"); k(f"s_cbranch_scc1 {k.ref(l + '_ok')}")
    k("s_sleep 4")
    k(f"s_branch {k.ref(l)}")
    k.lab(l + '_ok')
    k("s_sub_u32 s24, s24, 1"); k("s_and_b32 s24, s24, 1"); k("s_lshl_b32 s36, s24, 13")

class Hooks(A.NoHooks):
    def ev(self, k, i, t=14): event(k, i, t)
    def k1_wait_x(self, k):
        k("s_and_b32 s24, s48, 3"); k("s_lshl_b32 s24, s24, 7"); k(f"s_add_u32 s24, s24, {WS_FLG + F_X}")
        k("v_lshlrev_b32 v15, 2, v1"); k("v_add_u32 v15, s24, v15")
        k("s_lshr_b32 s95, s48, 2"); k("s_add_u32 s95, s95, 1")
        wait_all(k, 'k1_wx', 20, 14, 's95', sleep=CFG.get('sl_k1', 4))
    def tr(self, k, slot):
        if not (CFG['stamp'] and CFG.get('k1tr')): return
        k("s_memrealtime s[96:97]")
        k("s_lshl_b32 s34, s2, 2"); k("s_add_u32 s34, s34, s3"); k("s_lshl_b32 s34, s34, 7")
        k("s_lshl_b32 s35, s92, 6"); k("s_add_u32 s34, s34, s35")
        k("s_add_u32 s34, s34, s48"); k("s_lshl_b32 s34, s34, 5"); k(f"s_add_u32 s34, s34, {WS_TRACE + 4*slot}")
        k(f"v_mov_b32 v14, {OOB}"); k("v_cmp_eq_u32 vcc, 0, v1"); k("v_cndmask_b32 v14, v14, 0, vcc")
        k("s_waitcnt lgkmcnt(0)")
        k("v_mov_b32 v15, s96")
        k("buffer_store_dword v15, v14, s[8:11], s34 offen")
    def k1_prefetch(self, k):
        st = CFG['pf']
        if not st: return 0
        n = 32768 // (256 * st)
        l = k.new('pf')
        k("s_cmp_eq_u32 s92, 0"); k(f"s_cselect_b32 s25, 0, {OOB}")
        k("s_lshl_b32 s24, s45, 3"); k("s_add_u32 s24, s24, s44"); k("s_mul_i32 s24, s24, 30720"); k("s_add_u32 s24, s24, s25")
        k(f"v_mul_u32_u24 v154, {st}, v0")
        for i in range(4):
            k.srd(20, 64 + 2 * i, D * HD * 2)
            for q in range(n):
                k(f"s_add_u32 s25, s24, {q * 256 * st}")
                k("buffer_load_dword a255, v154, s[20:23], s25 offen")
        return 4 * n
    def k1_flag_issue(self, k, n):
        k(f"s_mul_i32 s24, s49, {n}"); k("s_add_u32 s24, s24, s48")
        k("s_and_b32 s24, s24, 3"); k("s_lshl_b32 s24, s24, 7"); k(f"s_add_u32 s24, s24, {WS_FLG + F_X}")
        k("v_lshlrev_b32 v15, 2, v1"); k("v_add_u32 v15, s24, v15")
        k("buffer_load_dword v13, v15, s[8:11], 0 offen sc1")
    def k1_flag_check(self, k, skip):
        if not CFG['k1_pre']:
            k(f"s_branch {k.ref(skip)}"); return
        k("s_add_u32 s24, s48, s49"); k("s_lshr_b32 s24, s24, 2"); k("s_add_u32 s24, s24, 1")
        k("v_cmp_le_i32 vcc, s24, v13")
        k("s_and_b32 s24, vcc_lo, 0xfffff"); k("s_cmp_eq_u32 s24, 0xfffff")
        k(f"s_cbranch_scc0 {k.ref(skip)}")
    def k1_first_barrier(self, k): pass
    def k1_after_weights(self, k):
        l = k.new('fb')
        k("s_cmp_eq_u32 s2, 255"); k(f"s_cbranch_scc0 {k.ref(l)}")
        k("s_cmp_eq_u32 s92, 0"); k(f"s_cbranch_scc0 {k.ref(l)}")
        if CFG['pol_late']:
            k("s_waitcnt vmcnt(0)")
            k("s_barrier")
            k("v_mov_b32 v155, 1")
            pol_publish(k, l, 0)
            return
        pol_probe(k)
        pol_publish(k, l, 0)
    def k1_ready_issue(self, k):
        l = k.new('ri')
        k("s_cmp_eq_u32 s92, 0"); k(f"s_cbranch_scc0 {k.ref(l)}")
        k("v_mov_b32 v15, 0")
        k("buffer_load_dword v14, v15, s[72:75], 0 offen sc1")
        k.lab(l)
    def k1_ready_check(self, k):
        l = k.new('rc')
        k("s_cmp_eq_u32 s92, 0"); k(f"s_cbranch_scc0 {k.ref(l + '_ok')}")
        k("s_mov_b32 s61, 0")
        k.lab(l)
        k("s_waitcnt vmcnt(0)")
        k("v_readfirstlane_b32 s24, v14")
        if not CFG['pol_late']: k("s_sub_u32 s36, s24, 1"); k("s_and_b32 s36, s36, 1"); k("s_lshl_b32 s36, s36, 13")
        k("s_cmp_ge_u32 s24, 1"); k(f"s_cbranch_scc1 {k.ref(l + '_ok')}")
        k("s_add_u32 s61, s61, 1"); k("s_cmp_ge_u32 s61, s60"); k(f"s_cbranch_scc1 {k.ref(l + '_to')}")
        k("s_sleep 2")
        k("v_mov_b32 v15, 0")
        k("buffer_load_dword v14, v15, s[72:75], 0 offen sc1")
        k(f"s_branch {k.ref(l)}")
        k.lab(l + '_to')
        k("s_mov_b32 s60, 1")
        k.lab(l + '_ok')
    def k1_publish(self, k):
        if CFG['k1at']:
            l = k.new('ka')
            k("s_cmp_eq_u32 s3, 0"); k(f"s_cbranch_scc0 {k.ref(l)}")
            k("s_lshl_b32 s24, s92, 3"); k("s_add_u32 s24, s24, s44"); k("s_lshl_b32 s24, s24, 7"); k(f"s_add_u32 s24, s24, {WS_FLG + F_K1}")
            k("v_mov_b32 v14, s24"); k(f"v_mov_b32 v15, {OOB}"); k("v_cmp_eq_u32 vcc, 0, v1"); k("v_cndmask_b32 v14, v15, v14, vcc")
            k("v_mov_b32 v15, 1")
            k("buffer_atomic_add v15, v14, s[8:11], 0 offen sc1")
            k.lab(l)
            return
        k("s_lshl_b32 s24, s92, 3"); k("s_add_u32 s24, s24, s44"); k("s_lshl_b32 s24, s24, 7")
        k("s_lshl_b32 s25, s45, 2"); k("s_add_u32 s24, s24, s25"); k(f"s_add_u32 s24, s24, {WS_FLG + F_K1}")
        pub_dword(k, 's24', 1, 14)
    def await_(self, k, name, nl, need, sleep):
        k(f"s_mov_b64 exec, {(1 << nl) - 1}")
        k("s_mov_b32 s61, 0")
        k.lab(name)
        k("v_mov_b32 v14, 0")
        k("buffer_atomic_add v14, v15, s[8:11], 0 offen sc0 sc1")
        k("s_waitcnt vmcnt(0)")
        k(f"v_cmp_gt_i32 vcc, {need}, v14")
        k(f"s_cbranch_vccz {k.ref(name + '_ok')}")
        k("s_add_u32 s61, s61, 1"); k("s_cmp_ge_u32 s61, s60"); k(f"s_cbranch_scc1 {k.ref(name + '_to')}")
        k(f"s_sleep {sleep}")
        k(f"s_branch {k.ref(name)}")
        k.lab(name + '_to'); k("s_mov_b32 s60, 1")
        k.lab(name + '_ok')
        k("s_mov_b64 exec, -1")
    def k2_wait(self, k):
        if CFG['k1at']:
            k("s_lshl_b32 s24, s92, 3"); k("s_add_u32 s24, s24, s44"); k("s_lshl_b32 s24, s24, 7"); k(f"s_add_u32 s24, s24, {WS_FLG + F_K1}")
            k("v_mov_b32 v15, s24")
            k("s_cmp_eq_u32 s92, 0"); k("s_cselect_b32 s26, 31, 1")
            self.await_(k, 'k2_w', 1, 's26', 2)
            return
        k("s_lshl_b32 s24, s92, 3"); k("s_add_u32 s24, s24, s44"); k("s_lshl_b32 s24, s24, 7"); k(f"s_add_u32 s24, s24, {WS_FLG + F_K1}")
        k("v_lshlrev_b32 v15, 2, v1"); k("v_add_u32 v15, s24, v15")
        k("s_cmp_eq_u32 s92, 0"); k("s_cselect_b32 s26, -1, 3")
        wait_all(k, 'k2_w', 's26', 14, 1, sleep=2)
    def k2_publish(self, k):
        k("s_lshl_b32 s24, s92, 7"); k("s_sub_u32 s25, s2, 64"); k("s_lshl_b32 s25, s25, 2"); k("s_add_u32 s24, s24, s25")
        k(f"s_add_u32 s24, s24, {WS_FLG + F_K2}")
        pub_dword(k, 's24', 1, 14)
    def k3_wait0(self, k):
        if CFG['k1at']:
            l = k.new('kw')
            k("s_cmp_eq_u32 s3, 0"); k(f"s_cbranch_scc0 {k.ref(l)}")
            k("s_lshl_b32 s24, s92, 10"); k(f"s_add_u32 s24, s24, {WS_FLG + F_K1}")
            k("v_and_b32 v15, 7, v1"); k("v_lshlrev_b32 v15, 7, v15"); k("v_add_u32 v15, s24, v15")
            k("s_cmp_eq_u32 s92, 0"); k("s_cselect_b32 s26, 31, 1")
            self.await_(k, 'k3_w0', 8, 's26', 6)
            k.lab(l)
            k("s_barrier")
            return
        k("s_cmp_eq_u32 s92, 0"); k("s_cselect_b32 s26, 32, 0"); k("s_cselect_b32 s27, 7, 1")
        k("s_lshl_b32 s24, s92, 10"); k(f"s_add_u32 s24, s24, {WS_FLG + F_K1}")
        k("v_and_b32 v15, 7, v1"); k("v_lshlrev_b32 v15, 7, v15")
        k("v_lshrrev_b32 v14, 3, v1"); k("v_and_b32 v14, s27, v14"); k("v_lshl_add_u32 v15, v14, 2, v15")
        k("v_add_u32 v15, s24, v15")
        k("s_lshl_b32 s27, s26, 1"); k("s_add_u32 s28, s27, s26")
        k("s_mov_b32 s61, 0")
        k.lab('k3_w0')
        for i, so in enumerate(('0', 's26', 's27', 's28')):
            k(f"buffer_load_dword v{16+i}, v15, s[8:11], {so} offen sc1")
        k("s_waitcnt vmcnt(0)")
        k("v_min_i32 v16, v16, v17"); k("v_min3_i32 v16, v16, v18, v19")
        k("v_cmp_le_i32 vcc, 1, v16")
        k("s_cmp_eq_u64 vcc, -1")
        k(f"s_cbranch_scc1 {k.ref('k3_w0_ok')}")
        k("s_add_u32 s61, s61, 1"); k("s_cmp_ge_u32 s61, s60"); k(f"s_cbranch_scc1 {k.ref('k3_w0_to')}")
        k("s_sleep 4")
        k(f"s_branch {k.ref('k3_w0')}")
        k.lab('k3_w0_to'); k("s_mov_b32 s60, 1")
        k.lab('k3_w0_ok')
    def k3_wait(self, k):
        k("s_lshl_b32 s24, s92, 7"); k(f"s_add_u32 s24, s24, {WS_FLG + F_K2}")
        k("v_lshlrev_b32 v15, 2, v1"); k("v_add_u32 v15, s24, v15")
        wait_all(k, 'k3_w', 24, 14, 1, sleep=2)
    def k3_publish(self, k, last):
        k("s_lshl_b32 s24, s92, 10"); k("s_lshl_b32 s25, s78, 2"); k("s_add_u32 s24, s24, s25")
        k(f"s_add_u32 s24, s24, {WS_FLG + F_K3}")
        pub_dword(k, 's24', 's40', 14, copies=8)

NCLR = 3
def role_clear(k):
    k("s_sub_u32 s44, s2, 253")
    k("s_lshl_b32 s24, s44, 2"); k("s_add_u32 s24, s24, s3"); k("s_mul_i32 s45, s24, 5")
    for i in range(5):
        k(f"s_add_u32 s24, s45, {i}"); k(f"s_min_u32 s24, s24, {N_NEAR + N_COMP - 1}")
        k(f"s_sub_u32 s25, s24, {N_NEAR}"); k(f"s_cmp_ge_u32 s24, {N_NEAR}")
        k("s_cselect_b32 s24, s25, s24"); k(f"s_cselect_b32 s{69+i}, 0x2000, 0"); k(f"s_lshl_b32 s{64+i}, s24, 14")
    k("v_lshlrev_b32 v5, 4, v1")
    for r in range(4): k(f"v_mov_b32 v{8+r}, -1")
    k("s_lshl_b32 s24, s44, 2"); k(f"s_add_u32 s42, s24, {WS_FLG + F_C}")
    k("s_mov_b32 s40, 0")
    def stores():
        for i in range(5):
            k(f"s_add_u32 s43, s41, s{64+i}"); k(f"s_xor_b32 s43, s43, s{69+i}"); k("s_add_u32 s46, s43, 4096")
            for q in range(8):
                k(f"buffer_store_dwordx4 v[8:11], v5, s[8:11], {'s43' if q < 4 else 's46'} offen offset:{(q%4)*1024} {CFG['clr_mod']}")
    k.lab('clr_blk')
    blk_base(k, 's40', 's41')
    stores()
    k("s_waitcnt vmcnt(40)")
    k("s_barrier")
    pub_dword(k, 's42', 's40', 14, copies=8)
    k("s_add_u32 s40, s40, 1")
    k("s_cmp_lt_u32 s40, 64"); k(f"s_cbranch_scc1 {k.ref('clr_blk')}")
    k("s_waitcnt vmcnt(0)")
    k("s_barrier")
    pub_dword(k, 's42', 's40', 14, copies=8)
    k.lab('clr_blk2')
    k("s_sub_u32 s47, s40, 64")
    k("s_cmp_ge_u32 s47, 60"); k(f"s_cbranch_scc1 {k.ref('clr_last')}")
    k("s_and_b32 s24, s47, 3"); k("s_lshl_b32 s24, s24, 7"); k(f"s_add_u32 s24, s24, {WS_FLG + F_X}")
    k("v_lshlrev_b32 v15, 2, v1"); k("v_add_u32 v15, s24, v15")
    k("s_lshr_b32 s95, s47, 2"); k("s_add_u32 s95, s95, 2")
    wait_all(k, 'clr_wx', 20, 14, 's95', sleep=32)
    k(f"s_branch {k.ref('clr_go')}")
    k.lab('clr_last')
    k(f"v_mov_b32 v15, {WS_FLG + F_S}")
    k("s_mov_b32 s95, 66")
    wait_all(k, 'clr_ws', 1, 14, 's95', sleep=32)
    k.lab('clr_go')
    blk_base(k, 's47', 's41')
    stores()
    k("s_waitcnt vmcnt(0)")
    k("s_barrier")
    k("s_add_u32 s40, s40, 1")
    pub_dword(k, 's42', 's40', 14, copies=8)
    k("s_cmp_lt_u32 s40, 128"); k(f"s_cbranch_scc1 {k.ref('clr_blk2')}")
    k("s_waitcnt vmcnt(0)")

def build():
    k = K(NAME, vgpr=256, sgpr=100, agpr=256)
    H = Hooks(); H.k1_nodrain = CFG['k1nd']
    k("s_cmp_ge_u32 s2, 256")
    k(f"s_cbranch_scc1 {k.ref('end')}")
    k.ptr(KA_WS, 4); k.ptr(KA_DBG, 6); k.ptr(KA_AX, 24); k.ptr(KA_WQKV, 98)
    if CFG['pf']:
        for i_, a_ in enumerate((KA_WQ, KA_WK, KA_WV, KA_WO)): k.ptr(a_, 64 + 2 * i_)
    k("s_and_b32 s44, s2, 7"); k("s_lshr_b32 s45, s2, 3")
    if CFG['xmap']:
        xm = CFG['xmap']
        k("s_and_b32 s26, s44, 3"); k("s_lshl_b32 s27, s45, 2"); k("s_add_u32 s26, s26, s27")
        k("s_add_u32 s27, s26, 128"); k("s_cmp_lt_u32 s26, 104"); k("s_cselect_b32 s27, s26, s27")
        k("s_add_u32 s26, s26, 104")
        k("s_cmp_lt_u32 s44, 4"); k("s_cselect_b32 s2, s27, s26" if xm == 1 else "s_cselect_b32 s2, s26, s27")
    k("v_and_b32 v1, 63, v0")
    k("v_lshrrev_b32 v4, 6, v0")
    k("v_and_b32 v2, 15, v1")
    k("v_lshrrev_b32 v3, 4, v1")
    k("v_readfirstlane_b32 s3, v4")
    k(f"s_mov_b32 s60, {CFG['spin']}")
    k("s_mov_b32 s59, -1")
    k("s_mov_b32 s92, 0")
    k("s_mov_b32 s36, 0")
    k("s_waitcnt lgkmcnt(0)")
    k.srd(8, 4, WS_BYTES)
    k.srd(72, 6, 256)
    k.srd(16, 24, A.XF_BYTES)
    event(k, 0)
    l = k.new('cf')
    k("s_cmp_eq_u32 s2, 255"); k(f"s_cbranch_scc0 {k.ref(l)}")
    k("v_lshlrev_b32 v5, 4, v0")
    for r in range(4): k(f"v_mov_b32 v{8+r}, -1")
    k(f"s_mov_b32 s24, {WS_FLG}")
    for i in range(FLG_BYTES // 4096):
        k(f"buffer_store_dwordx4 v[8:11], v5, s[8:11], s24 offen sc1")
        k("s_add_u32 s24, s24, 4096")
    k.lab(l)
    k("s_mov_b32 s46, 64"); k("s_mov_b32 s47, 32"); k("s_mov_b32 s50, 0")
    k("s_lshl_b32 s48, s45, 1"); k("s_mov_b32 s49, 1"); k("s_mov_b32 s40, 2")
    k.lab('k1_entry')
    A.role_K1(k, H, wq=98, l2pf=bool(CFG['l2pf']), xmod=CFG['k1xmod'])
    event(k, 4)
    if CFG['k3w']:
        l = k.new('k3w')
        k("s_cmp_eq_u32 s92, 0"); k(f"s_cbranch_scc1 {k.ref(l)}")
        k("s_cmp_eq_u32 s2, 247"); k(f"s_cbranch_scc1 {k.ref('end')}")
        k(f"s_branch {k.ref('helper')}")
        k.lab(l)
    else:
        k("s_cmp_eq_u32 s92, 0"); k(f"s_cbranch_scc0 {k.ref('end')}")
    k("s_cmp_ge_u32 s2, 232"); k(f"s_cbranch_scc1 {k.ref('helper')}")
    k("s_cmp_ge_u32 s2, 200"); k(f"s_cbranch_scc1 {k.ref('toO')}")
    k("s_cmp_ge_u32 s2, 104"); k(f"s_cbranch_scc1 {k.ref('toP')}")
    k("s_cmp_ge_u32 s2, 64"); k(f"s_cbranch_scc1 {k.ref('toR')}")
    k("s_cmp_ge_u32 s2, 32"); k(f"s_cbranch_scc1 {k.ref('toV')}")
    k(f"s_branch {k.ref('roleS')}")
    for nm in 'VRPO':
        k.lab('to' + nm); k(f"s_branch {k.ref('role' + nm)}")
    k.lab('helper')
    k("s_sub_u32 s24, s2, 232")
    k("s_cmp_ge_u32 s24, 21"); k(f"s_cbranch_scc1 {k.ref('helper_clr')}")
    k("s_cmp_eq_u32 s24, 15"); k(f"s_cbranch_scc1 {k.ref('helper_k1')}")
    k("s_mul_i32 s57, s24, 52"); k("s_lshr_b32 s57, s57, 8"); k("s_mul_i32 s56, s57, 5"); k("s_sub_u32 s56, s24, s56")
    k("s_add_u32 s57, s57, 1")
    k("s_sub_u32 s25, s24, 16"); k("s_cmp_ge_u32 s24, 16"); k("s_cselect_b32 s56, s25, s56"); k("s_cselect_b32 s57, 0, s57")
    k("s_mul_i32 s78, s57, 5"); k("s_add_u32 s78, s78, s56")
    A.k3_stage(k)
    if CFG['k3w']:
        k("s_cmp_eq_u32 s92, 1"); k(f"s_cbranch_scc1 {k.ref('k3_l1')}")
    k.ptr(KA_AX, 6); k("s_waitcnt lgkmcnt(0)"); k.srd(16, 6, A.XF_BYTES)
    k("s_mov_b32 s46, 64"); k("s_mov_b32 s47, 32"); k("s_mov_b32 s50, 0"); k(f"s_mov_b32 s58, {A.WS_XF1}")
    k("s_mov_b32 s76, 16"); k("s_mov_b32 s77, 163840")
    k.lab('k3_entry')
    A.role_K3(k, H)
    event(k, 6)
    k("s_cmp_eq_u32 s92, 0"); k(f"s_cbranch_scc0 {k.ref('end')}")
    k("s_mov_b32 s92, 1")
    k("s_cmp_lt_u32 s2, 248"); k(f"s_cbranch_scc1 {k.ref('helper_k1')}")
    k.lab('k3_l1')
    k.srd(16, 4, A.XF_BYTES, A.WS_XF2)
    k("s_mov_b32 s46, 1024"); k("s_mov_b32 s47, 8"); k("s_mov_b32 s50, 1"); k(f"s_mov_b32 s58, {A.WS_XF3}")
    if CFG['k3w']: k("s_mov_b32 s76, 16"); k("s_mov_b32 s77, 163840")
    else: k("s_mov_b32 s76, 64"); k("s_mov_b32 s77, 40960")
    k(f"s_branch {k.ref('k3_entry')}")
    k.lab('helper_k1')
    k("s_mov_b32 s92, 1")
    k("s_sub_u32 s24, s2, 232")
    k.srd(16, 4, A.XF_BYTES, A.WS_XF2)
    k("s_mov_b32 s46, 1024"); k("s_mov_b32 s47, 8"); k("s_mov_b32 s50, 1")
    k("s_and_b32 s44, s24, 7"); k("s_lshr_b32 s45, s24, 3")
    k("s_mov_b32 s48, s45"); k("s_mov_b32 s49, 2"); k("s_mov_b32 s40, 32")
    k(f"s_branch {k.ref('k1_entry')}")
    k.lab('helper_clr')
    if CFG['pol_late']:
        l = k.new('pl'); l2 = k.new('pl')
        k("s_cmp_eq_u32 s2, 255"); k(f"s_cbranch_scc0 {k.ref(l)}")
        pol_probe(k)
        pol_publish(k, l2, 4)
        k.lab(l)
        pol_get(k, 14)
    role_clear(k)
    event(k, 6)
    k(f"s_branch {k.ref('end')}")
    k.lab('roleS'); role_S2(k)
    k.lab('roleV'); role_V2(k)
    k.lab('roleR'); role_R(k)
    k.lab('roleP'); role_P(k)
    k.lab('roleO'); role_O(k)
    k.lab('end')
    head = ["; generated by gen6.py (my own hand-written generator); kernarg: 13 pointers",
            f"; @launch kernel={k.name} grid=(256,1,1) block=(256,1,1) lds=135168",
            '.amdgcn_target "amdgcn-amd-amdhsa--gfx950"']
    return "\n".join(head) + "\n" + k.text() + "\n"

CFG.setdefault('k1nd', 0); CFG.setdefault('xpre', 0); CFG.setdefault('s_hint', 0); CFG.setdefault('sl_xf', 6); CFG.setdefault('eat', 0); CFG.setdefault('k1at', 1); CFG.setdefault('r_at', 1); CFG.setdefault('r_ahead', 1); CFG.setdefault('r64', 0); CFG.setdefault('smpk', 1); CFG.setdefault('pol_late', 0); CFG.setdefault('xph', 0); CFG.setdefault('s_pre', 0); CFG.setdefault('r_pre', 1); CFG.setdefault('k3w', 1); CFG.setdefault('o_ovl', 1); CFG.setdefault('p_ovl', 1); CFG.setdefault('p_ovl_j', 4); CFG.setdefault('xlag_e', 8); CFG.setdefault('xe0', 56); CFG.setdefault('pol', -1); CFG.setdefault('npol', 3); CFG.setdefault('xmap', 1); CFG.setdefault('l2pf', 1); CFG.setdefault('k1xmod', ''); CFG.setdefault('pf', 0); CFG.setdefault('p_adapt', 1); CFG.setdefault('o_adapt', 1); CFG.setdefault('xflag', 1); CFG.setdefault('sl_xc', 16); CFG.setdefault('k1_pre', 1); CFG.setdefault('dly_hr', 4); CFG.setdefault('hr_wave', 3); CFG.setdefault('s2', 1); CFG.setdefault('v2', 1); CFG.setdefault('v_x8', 4); CFG.setdefault('v_x9', 4); CFG.setdefault('tgt_m', 9); CFG.setdefault('tgt_p', 7); CFG.setdefault('kx_pos', 0); CFG.setdefault('px_pos', 1); CFG.setdefault('x_off', 0); CFG.setdefault('o_off', 0); CFG.setdefault('p_off', 0); CFG.setdefault('rv_off', 0); CFG.setdefault('noclr', 0); CFG.setdefault('pstat', 1); CFG.setdefault('p_nx', 1); CFG.setdefault('p_wr', 1); CFG.setdefault('px_mod', ''); CFG.setdefault('p_ns', 2); CFG.setdefault('spin', SPIN_MAX); CFG.setdefault('xlag', 12); CFG.setdefault('clr_mod', 'sc1')
if __name__ == "__main__":
    out = "z.s"
    for a in sys.argv[1:]:
        if a == "stamp": CFG['stamp'] = True
        elif a.endswith(".s"): out = a
        elif "=" in a:
            kk, v = a.split("=")
            try: CFG[kk] = int(v)
            except ValueError: CFG[kk] = v.replace('+', ' ')
    open(out, "w").write(build())
    print("written", out)
```
